```python
import torch

def _softmax(x, axis=-1):
    return torch.softmax(x, dim=axis)

def _gelu(x):
    return torch.nn.functional.gelu(x, approximate='tanh')

def _silu(x):
    return torch.nn.functional.silu(x)

def _sigmoid(x):
    return torch.sigmoid(x)

def _layernorm(x, axis=-1, eps=1e-05):
    m = x.mean(dim=axis, keepdim=True)
    v = x.var(dim=axis, keepdim=True, unbiased=False)
    return (x - m) / torch.sqrt(v + eps)

def _scatter_add(tgt, idx, src, axis=0):
    return tgt.clone().index_add_(axis, idx, src)

def _segment_sum(src, seg, n):
    out = torch.zeros((n,) + src.shape[1:], dtype=src.dtype)
    return out.index_add_(0, seg, src)

def _pad(x, pw):
    flat = tuple((v for pair in reversed(pw) for v in pair))
    return torch.nn.functional.pad(x, flat)
kernel_name = 'adaLN_cond__memory_aug_recurrent_mem_tr__swiglu_ffn__prompt'

def setup_inputs():

    _w = lambda a: (lambda t: t.to(torch.bfloat16) if t.is_floating_point() else t)(torch.as_tensor(a))

    def _A_setup():
        B, S, Dm = (1, 2048, 640)
        H, Dh = (32, 128)
        M, seg = (8, 32)
        seg = min(seg, S)
        S = S // seg * seg
        return {'x': _w((lambda *s: torch.randn(*s, dtype=torch.bfloat16) * 0.05)(B, S, Dm)), 'mem0': _w((lambda *s: torch.randn(*s, dtype=torch.bfloat16) * 0.4)(B, M, Dm)), 'Wq': _w((lambda *s: torch.randn(*s, dtype=torch.bfloat16) * 3.2)(Dm, H, Dh) * Dm ** (-0.5)), 'Wk': _w((lambda *s: torch.randn(*s, dtype=torch.bfloat16) * 3.2)(Dm, H, Dh) * Dm ** (-0.5)), 'Wv': _w((lambda *s: torch.randn(*s, dtype=torch.bfloat16) * 0.4)(Dm, H, Dh) * Dm ** (-0.5)), 'Wo': _w((lambda *s: torch.randn(*s, dtype=torch.bfloat16) * 0.4)(H, Dh, Dm) * (H * Dh) ** (-0.5)), 'seg_len': seg}
    _A_in = _A_setup()

    def _B_setup():
        B, S, D, F = (1, 2048, 640, 1728)
        return {'x': _w((lambda *s: torch.randn(*s, dtype=torch.bfloat16) * 0.05)(B, S, D)), 'w_gate': _w((lambda *s: torch.randn(*s, dtype=torch.bfloat16) * 0.05)(D, F)), 'w_up': _w((lambda *s: torch.randn(*s, dtype=torch.bfloat16) * 0.05)(D, F)), 'w_down': _w((lambda *s: torch.randn(*s, dtype=torch.bfloat16) * 0.05)(F, D))}
    _B_in = _B_setup()
    return {'A_x': _A_in['x'], 'A_mem0': _A_in['mem0'], 'A_Wq': _A_in['Wq'], 'A_Wk': _A_in['Wk'], 'A_Wv': _A_in['Wv'], 'A_Wo': _A_in['Wo'], 'A_seg_len': _A_in['seg_len'], 'B_x': _B_in['x'], 'B_w_gate': _B_in['w_gate'], 'B_w_up': _B_in['w_up'], 'B_w_down': _B_in['w_down'], 'c': _w((lambda *s: torch.randn(*s, dtype=torch.bfloat16) * 0.1)(1, 640) * 8.0), 'w_mod': _w((lambda *s: torch.randn(*s, dtype=torch.bfloat16) * 0.1)(640, 6 * 640) * 640 ** (-0.5) * 8.0)}

def reference(A_x, A_mem0, A_Wq, A_Wk, A_Wv, A_Wo, A_seg_len, B_x, B_w_gate, B_w_up, B_w_down, c, w_mod):

    def _A_ref(x, mem0, Wq, Wk, Wv, Wo, seg_len):
        B, S, Dm = x.shape
        H, Dh = (Wq.shape[1], Wq.shape[2])
        M = mem0.shape[1]
        scale = Dh ** (-0.5)
        n_seg = S // seg_len
        L = M + seg_len
        idx = torch.arange(L)
        mask = (idx[:, None] < M) | (idx[:, None] >= idx[None, :])
        mem = mem0
        outs = []
        for s in range(n_seg):
            xs = x[:, s * seg_len:(s + 1) * seg_len, :].clone()
            h = torch.concatenate([mem, xs], axis=1)
            q = torch.einsum('btd,dhe->bhte', h, Wq)
            k = torch.einsum('btd,dhe->bhte', h, Wk)
            v = torch.einsum('btd,dhe->bhte', h, Wv)
            scores = torch.einsum('bhqe,bhke->bhqk', q, k) * scale
            scores = torch.where(mask[None, None], scores, -1000000000.0)
            p = _softmax(scores, axis=-1)
            o = torch.einsum('bhqk,bhke->bhqe', p, v)
            o = torch.einsum('bhte,hed->btd', o, Wo)
            mem = o[:, :M, :].clone()
            outs.append(o[:, M:, :])
        return torch.concatenate(outs, axis=1)

    def _B_ref(x, w_gate, w_up, w_down):
        g = _silu(x @ w_gate)
        u = x @ w_up
        return g * u @ w_down
    x = A_x
    mod = (_silu(c) @ w_mod).reshape(c.shape[0], 6, 1, -1)
    sa, ca, ga, sb, cb, gb = (mod[:, 0].clone(), mod[:, 1].clone(), mod[:, 2].clone(), mod[:, 3].clone(), mod[:, 4].clone(), mod[:, 5].clone())
    h = _layernorm(x, axis=-1) * (1 + ca) + sa
    x = x + ga * _A_ref(h, A_mem0, A_Wq, A_Wk, A_Wv, A_Wo, A_seg_len)
    h = _layernorm(x, axis=-1) * (1 + cb) + sb
    x = x + gb * _B_ref(h, B_w_gate, B_w_up, B_w_down)
    return x
```

```python
NAME = "adaLN_cond__memory_aug_recurrent_mem_tr__swiglu_ffn__prompt"

S, D, H, E, M, SEG, NSEG, F = 2048, 640, 32, 128, 8, 32, 64, 1728

KA_X, KA_MEM0, KA_WQ, KA_WK, KA_WV, KA_WO = 0, 8, 16, 24, 32, 40
KA_WG, KA_WU, KA_WD, KA_C, KA_WMOD = 64, 72, 80, 88, 96
KA_OUT, KA_DBG, KA_WS = 104, 112, 120

WS_SIZE = 0x10000000
WS_MOD = 0x00000000
WS_FLAGS = 0x00010000
FLAGS_BYTES = 0x8000
WS_MEM = 0x00100000
WS_PB = 0x001A2800
WS_H1F = 0x01000000
WS_X1 = 0x01400000
WS_H2F = 0x01800000
WS_ACT = 0x02000000
WS_KX = 0x03000000
WS_QX = 0x04000000
WS_WVO = 0x06000000
WS_UX = 0x08000000

MEM_STEP = 10240
PB_RG = 32 * 640
PB_STEP = 5 * PB_RG

PI16 = [0, 1, 8, 9, 2, 3, 10, 11, 4, 5, 12, 13, 6, 7, 14, 15]


class Asm:
    def __init__(self):
        self.lines = []
        self.uid = 0

    def __call__(self, s):
        for ln in s.strip("\n").split("\n"):
            self.lines.append("    " + ln.strip() if ln.strip() and not ln.strip().endswith(":") else ln.strip())

    def label(self, name):
        self.lines.append(name + ":")

    def newlabel(self, base="L"):
        self.uid += 1
        return f"{base}_{self.uid}"

    def comment(self, s):
        self.lines.append("    ; " + s)

    def nop(self, n):
        while n > 0:
            k = min(n, 16)
            self.lines.append(f"    s_nop {k-1}")
            n -= k

    def text(self):
        return "\n".join(self.lines) + "\n"


def vr(b, n=1):
    return f"v{b}" if n == 1 else f"v[{b}:{b+n-1}]"


def ar(b, n=1):
    return f"a{b}" if n == 1 else f"a[{b}:{b+n-1}]"


def sr(b, n=1):
    return f"s{b}" if n == 1 else f"s[{b}:{b+n-1}]"


def srd(a, sbase, sptr, nbytes):
    a(f"s_mov_b32 s{sbase}, s{sptr}")
    a(f"s_and_b32 s{sbase+1}, s{sptr+1}, 0xffff")
    a(f"s_mov_b32 s{sbase+2}, 0x{nbytes:x}")
    a(f"s_mov_b32 s{sbase+3}, 0x00020000")


def kernel_header(a, label):
    a.lines.append(f".globl {label}")
    a.lines.append(".p2align 8")
    a.lines.append(f".type {label},@function")
    a.label(label)


def kernel_desc(label, vgpr, accum, sgpr=102):
    return f""".p2align 6
.amdhsa_kernel {label}
  .amdhsa_next_free_vgpr {vgpr}
  .amdhsa_next_free_sgpr {sgpr}
  .amdhsa_accum_offset {accum}
  .amdhsa_group_segment_fixed_size 0
  .amdhsa_kernarg_size 128
  .amdhsa_user_sgpr_count 2
  .amdhsa_user_sgpr_kernarg_segment_ptr 1
  .amdhsa_system_sgpr_workgroup_id_x 1
  .amdhsa_float_denorm_mode_32 3
.end_amdhsa_kernel
"""
```

```python
from gen_common import *

WS = "s[8:11]"


def gemm_core(a, L, nmat, nkk, a_base, a_ks, row_stride, sigma, NS, nblk_n, grid):
    ntile = 2 * nmat
    STAGE = 16384 + 8192 * nmat
    nB = 4 if nmat == 2 else 2
    nper = 4 + nB
    ACC = 64
    a(f"""
    v_readfirstlane_b32 s3, v1
    ; block decode: mb = id % 16, nb = id / 16   (same-mb workgroups share an XCD under round-robin: speed only)
    s_and_b32 s40, s2, 15
    s_lshr_b32 s41, s2, 4
    v_lshlrev_b32 v3, 4, v2                 ; lane*16
    s_lshl_b32 s42, s40, 3
    s_lshl_b32 s43, s3, 1
    s_add_u32 s42, s42, s43
    s_mul_i32 s42, s42, {a_ks*1024}
    s_add_u32 s42, s42, 0x{a_base:x}
    s_lshl_b32 s44, s3, 12
    ; ---- B DMA
    v_lshrrev_b32 v4, 3, v2                 ; r8
    v_and_b32 v5, 7, v2                     ; chunk'
    v_bfe_u32 v6, v4, 1, 1                  ; b1
    """)
    if sigma:
        a(f"""
        v_bfe_u32 v7, v4, 2, 1              ; b2
        v_lshl_or_b32 v6, v7, 1, v6         ; f2
        s_lshl_b32 s45, s3, 3
        """)
        b_rowstep = 32
    else:
        a(f"""
        s_and_b32 s45, s3, 1
        s_lshl_b32 s46, s45, 1
        v_or_b32 v6, s46, v6                ; f2 = b1 | b3<<1
        s_lshl_b32 s45, s45, 3
        """)
        b_rowstep = 16
    a(f"""
    v_lshlrev_b32 v6, 1, v6
    v_xor_b32 v5, v5, v6
    v_lshlrev_b32 v5, 4, v5
    v_add_u32 v4, s45, v4
    v_mul_u32_u24 v4, {row_stride}, v4
    v_add_u32 v4, v4, v5                    ; B voff
    s_lshl_b32 s46, s41, 7
    s_lshl_b32 s47, s45, 7
    s_add_u32 s47, s47, 16384
    """)
    if nmat == 2:
        a(f"""
        s_lshr_b32 s48, s3, 1
        s_lshl_b32 s48, s48, 13
        s_add_u32 s47, s47, s48             ; + mat*8192
        """)
    a(f"""
    s_lshr_b32 s48, s3, 1                   ; wm
    s_and_b32 s49, s3, 1                    ; wn
    s_lshl_b32 s50, s48, 13
    v_add_u32 v8, s50, v3
    v_lshrrev_b32 v5, 4, v2                 ; g
    v_bfe_u32 v6, v2, 2, 2                  ; r
    v_and_b32 v7, 3, v2                     ; c
    v_lshl_add_u32 v9, v5, {2 if sigma else 3}, v6
    v_lshlrev_b32 v9, 7, v9
    v_lshl_add_u32 v9, v7, 3, v9
    v_lshrrev_b32 v6, 1, v6
    v_and_b32 v5, 1, v5
    v_lshl_or_b32 v6, v5, 1, v6             ; f2
    v_lshl_or_b32 v9, v6, 5, v9
    s_lshl_b32 s50, s49, 6                  ; (2wn)<<5
    v_xor_b32 v9, s50, v9
    v_add_u32 v9, 16384, v9
    v_xor_b32 v10, 32, v9
    s_mov_b32 s51, 0
    s_mov_b32 s52, 0
    """)

    def dma():
        a("s_add_u32 s53, s44, s51")
        for q in range(4):
            mt, ksl = q // 2, q % 2
            a(f"""
            s_add_u32 s54, s53, {q*1024}
            s_mov_b32 m0, s54
            s_add_u32 s55, s42, {mt*a_ks*1024 + ksl*1024}
            buffer_load_dwordx4 v3, {WS}, s55 offen lds
            """)
        a("s_add_u32 s53, s47, s51")
        for q in range(nB):
            a(f"""
            s_add_u32 s54, s53, {q*b_rowstep*128}
            s_mov_b32 m0, s54
            s_add_u32 s55, s46, {q*b_rowstep*row_stride}
            buffer_load_dwordx4 v4, s[16:19], s55 offen lds
            """)
        a(f"""
        s_add_u32 s42, s42, 2048
        s_add_u32 s46, s46, {64*row_stride}
        s_add_u32 s51, s51, {STAGE}
        s_cmp_ge_u32 s51, {NS*STAGE}
        s_cselect_b32 s51, 0, s51
        """)
    for _ in range(NS - 1):
        dma()
    for r in range(16 * ntile):
        a(f"v_mov_b32 v{ACC+r}, 0")
    a(f"s_mov_b32 s56, {nkk}")
    a.label(f"{L}_loop")
    a(f"""
    s_waitcnt vmcnt({(NS-2)*nper})
    s_barrier
    """)
    a(f"""
    v_add_u32 v11, s52, v8
    v_add_u32 v12, s52, v9
    v_add_u32 v13, s52, v10
    """)
    AF = [16, 32]
    BF = [48 - 0, 0]
    BFR = [192, 208]
    joff = 2048 if sigma else 512

    def reads(ksl):
        for mat in range(nmat):
            for tt in range(2):
                for j in range(2):
                    a(f"ds_read_b64_tr_b16 {vr(BFR[ksl]+(mat*2+tt)*4+2*j,2)}, v{12+tt} offset:{mat*8192+ksl*4096+j*joff}")
        for mt in range(4):
            a(f"ds_read_b128 {vr(AF[ksl]+4*mt,4)}, v11 offset:{mt*2048+ksl*1024}")
    reads(0)
    dma()
    reads(1)
    nrd = 4 * nmat + 4
    for ksl in range(2):
        a(f"s_waitcnt lgkmcnt({nrd if ksl == 0 else 0})")
        for mt in range(4):
            for t in range(ntile):
                acc = vr(ACC + (mt*ntile+t)*4, 4)
                a(f"v_mfma_f32_16x16x32_bf16 {acc}, {vr(BFR[ksl]+4*t,4)}, {vr(AF[ksl]+4*mt,4)}, {acc}")
    a(f"""
    s_add_u32 s52, s52, {STAGE}
    s_cmp_ge_u32 s52, {NS*STAGE}
    s_cselect_b32 s52, 0, s52
    s_sub_u32 s56, s56, 1
    s_cmp_lg_u32 s56, 0
    s_cbranch_scc1 {L}_loop
    """)
    return ACC, NS * STAGE


def rnd2(a, x0, x1, t):
    a(f"v_cvt_pk_bf16_f32 v{t}, v{x0}, v{x1}")
    a(f"v_lshlrev_b32 v{x0}, 16, v{t}")
    a(f"v_and_b32 v{x1}, 0xffff0000, v{t}")


def gen_ffn1(a):
    L = "ffn1_kernel"
    grid = 16 * 27
    kernel_header(a, L)
    a(f"""
    s_cmp_ge_u32 s2, {grid}
    s_cbranch_scc1 {L}_end
    s_load_dwordx2 s[4:5], s[0:1], {KA_WS}
    s_load_dwordx4 s[24:27], s[0:1], {KA_WG}
    v_lshrrev_b32 v1, 6, v0
    v_and_b32 v2, 63, v0
    s_nop 0
    v_readfirstlane_b32 s3, v1
    s_waitcnt lgkmcnt(0)
    """)
    srd(a, 8, 4, WS_SIZE)
    a(f"""
    s_cmp_ge_u32 s3, 2
    s_cselect_b32 s28, s26, s24
    s_cselect_b32 s29, s27, s25
    """)
    srd(a, 16, 28, D * F * 2)
    ACC, lds = gemm_core(a, L, 2, 10, WS_H2F, 20, F * 2, False, 2, 27, grid)
    a(f"""
    s_mov_b32 s57, 0xbfb8aa3b
    s_lshl_b32 s58, s40, 3
    s_lshl_b32 s59, s48, 2
    s_add_u32 s58, s58, s59
    s_mul_i32 s58, s58, {54*1024}
    s_lshl_b32 s59, s41, 1
    s_add_u32 s59, s59, s49
    s_lshl_b32 s59, s59, 10
    s_add_u32 s58, s58, s59
    s_add_u32 s58, s58, 0x{WS_ACT:x}
    """)
    for mt in range(4):
        o = 16 + (mt % 2) * 4
        for tt in range(2):
            g = ACC + (mt*4 + tt) * 4
            u = ACC + (mt*4 + 2 + tt) * 4
            for hf in range(2):
                g0, g1, u0, u1 = g+2*hf, g+2*hf+1, u+2*hf, u+2*hf+1
                rnd2(a, g0, g1, 24)
                rnd2(a, u0, u1, 25)
                a(f"""
                v_mul_f32 v26, s57, v{g0}
                v_mul_f32 v27, s57, v{g1}
                v_exp_f32 v26, v26
                v_exp_f32 v27, v27
                s_nop 0
                v_add_f32 v26, 1.0, v26
                v_add_f32 v27, 1.0, v27
                v_rcp_f32 v26, v26
                v_rcp_f32 v27, v27
                s_nop 0
                v_mul_f32 v{g0}, v{g0}, v26
                v_mul_f32 v{g1}, v{g1}, v27
                """)
                rnd2(a, g0, g1, 24)
                a(f"""
                v_mul_f32 v{g0}, v{g0}, v{u0}
                v_mul_f32 v{g1}, v{g1}, v{u1}
                v_cvt_pk_bf16_f32 v{o+2*tt+hf}, v{g0}, v{g1}
                """)
        a(f"buffer_store_dwordx4 {vr(o,4)}, v3, {WS}, s58 offen")
        a(f"s_add_u32 s58, s58, {54*1024}")
    a.label(f"{L}_end")
    a("s_endpgm")
    return (L, grid, 256, lds, kernel_desc(L, 224, 224))


def gen_ffn2(a):
    L = "ffn2_kernel"
    grid = 16 * 10
    kernel_header(a, L)
    a(f"""
    s_cmp_ge_u32 s2, {grid}
    s_cbranch_scc1 {L}_end
    s_load_dwordx2 s[4:5], s[0:1], {KA_WS}
    s_load_dwordx2 s[24:25], s[0:1], {KA_WD}
    s_load_dwordx2 s[26:27], s[0:1], {KA_OUT}
    v_lshrrev_b32 v1, 6, v0
    v_and_b32 v2, 63, v0
    s_waitcnt lgkmcnt(0)
    """)
    srd(a, 8, 4, WS_SIZE)
    srd(a, 16, 24, D * F * 2)
    srd(a, 20, 26, S * D * 2)
    ACC, lds = gemm_core(a, L, 1, 27, WS_ACT, 54, D * 2, True, 4, 10, grid)
    a(f"""
    v_and_b32 v16, 15, v2
    v_mul_u32_u24 v16, 1280, v16
    v_lshrrev_b32 v17, 4, v2
    v_lshl_add_u32 v16, v17, 3, v16
    v_lshlrev_b32 v17, 4, v17
    s_lshl_b32 s57, s40, 1
    s_add_u32 s57, s57, s48
    s_mul_i32 s57, s57, {64*1280}
    s_lshl_b32 s58, s41, 1
    s_add_u32 s58, s58, s49                 ; 2nb+wn
    s_lshl_b32 s59, s58, 6
    s_add_u32 s57, s57, s59
    s_lshl_b32 s58, s58, 7
    s_add_u32 s58, s58, {WS_MOD + 5*2560}
    s_waitcnt vmcnt(0)
    buffer_load_dwordx4 v[20:23], v17, {WS}, s58 offen
    buffer_load_dwordx4 v[24:27], v17, {WS}, s58 offen offset:64
    s_add_u32 s59, s57, 0x{WS_X1:x}
    """)
    for mt in range(4):
        for tt in range(2):
            a(f"buffer_load_dwordx2 {vr(32+(mt*2+tt)*2,2)}, v16, {WS}, s59 offen offset:{tt*32}")
        a(f"s_add_u32 s59, s59, {16*1280}")
    a("s_waitcnt vmcnt(0)")
    for mt in range(4):
        for tt in range(2):
            d = ACC + (mt*2+tt)*4
            x = 32 + (mt*2+tt)*2
            for hf in range(2):
                d0, d1 = d+2*hf, d+2*hf+1
                rnd2(a, d0, d1, 28)
                a(f"v_mul_f32 v{d0}, v{d0}, v{20+4*tt+2*hf}")
                a(f"v_mul_f32 v{d1}, v{d1}, v{21+4*tt+2*hf}")
                rnd2(a, d0, d1, 28)
                a(f"""
                v_lshlrev_b32 v28, 16, v{x+hf}
                v_and_b32 v29, 0xffff0000, v{x+hf}
                v_add_f32 v{d0}, v{d0}, v28
                v_add_f32 v{d1}, v{d1}, v29
                v_cvt_pk_bf16_f32 v{x+hf}, v{d0}, v{d1}
                """)
            a(f"buffer_store_dwordx2 {vr(x,2)}, v16, s[20:23], s57 offen offset:{tt*32}")
        a(f"s_add_u32 s57, s57, {16*1280}")
    a.label(f"{L}_end")
    a("s_endpgm")
    return (L, grid, 256, lds, kernel_desc(L, 224, 224))
```

```python
from gen_common import *


def wave_sum(a, v, tmp_s=(40, 41, 42)):
    for ctrl in ["quad_perm:[1,0,3,2]", "quad_perm:[2,3,0,1]", "row_half_mirror", "row_mirror"]:
        a.nop(2)
        a(f"v_add_f32_dpp v{v}, v{v}, v{v} {ctrl} row_mask:0xf bank_mask:0xf")
    a.nop(1)
    a(f"v_readlane_b32 s{tmp_s[0]}, v{v}, 0")
    a(f"v_readlane_b32 s{tmp_s[1]}, v{v}, 16")
    a(f"v_readlane_b32 s{tmp_s[2]}, v{v}, 32")
    a.nop(2)
    a(f"v_mov_b32 v{v}, s{tmp_s[0]}")
    a(f"v_add_f32 v{v}, s{tmp_s[1]}, v{v}")
    a(f"v_add_f32 v{v}, s{tmp_s[2]}, v{v}")


def bf16r(a, v):
    a(f"v_cvt_pk_bf16_f32 v{v}, v{v}, v{v}")
    a(f"v_and_b32 v{v}, 0xffff0000, v{v}")


def gen_ln(a, L, from_ws, src_off, shift_idx, scale_idx, dst_off, perm):
    kernel_header(a, L)
    a(f"""
    s_cmp_ge_u32 s2, 512
    s_cbranch_scc1 {L}_end
    s_load_dwordx2 s[4:5], s[0:1], {KA_WS}
    s_load_dwordx2 s[6:7], s[0:1], {KA_X}
    v_lshrrev_b32 v1, 6, v0
    v_and_b32 v2, 63, v0
    s_waitcnt lgkmcnt(0)
    """)
    srd(a, 8, 4, WS_SIZE)
    srd(a, 12, 6, S * D * 2)
    src = "s[8:11]" if from_ws else "s[12:15]"
    a(f"""
    v_readfirstlane_b32 s3, v1
    s_lshl_b32 s16, s2, 2
    s_add_u32 s16, s16, s3            ; row
    v_cmp_gt_u32 vcc, 40, v2
    v_lshlrev_b32 v3, 5, v2           ; b*32
    v_mov_b32 v4, 0x7ffffff0
    v_cndmask_b32 v3, v4, v3, vcc
    v_lshlrev_b32 v5, 6, v2
    v_cndmask_b32 v5, v4, v5, vcc
    v_lshlrev_b32 v6, 9, v2           ; b*512
    v_cndmask_b32 v6, v4, v6, vcc
    s_mov_b64 s[20:21], vcc
    s_mul_i32 s17, s16, 1280
    s_add_u32 s17, s17, 0x{src_off:x}
    buffer_load_dwordx4 v[8:11], v3, {src}, s17 offen
    buffer_load_dwordx4 v[12:15], v3, {src}, s17 offen offset:16
    s_mov_b32 s18, {WS_MOD + scale_idx*2560}
    s_mov_b32 s19, {WS_MOD + shift_idx*2560}
    """)
    for k in range(4):
        a(f"buffer_load_dwordx4 {vr(32+4*k,4)}, v5, s[8:11], s18 offen offset:{16*k}")
    for k in range(4):
        a(f"buffer_load_dwordx4 {vr(48+4*k,4)}, v5, s[8:11], s19 offen offset:{16*k}")
    a(f"""
    s_lshr_b32 s22, s16, 4
    s_mul_i32 s22, s22, 20480
    s_and_b32 s23, s16, 15
    s_lshl_b32 s23, s23, 4
    s_add_u32 s22, s22, s23
    s_add_u32 s22, s22, 0x{dst_off:x}
    s_waitcnt vmcnt(8)
    """)
    X = 16
    for j in range(8):
        a(f"v_lshlrev_b32 v{X+2*j}, 16, v{8+j}")
        a(f"v_and_b32 v{X+2*j+1}, 0xffff0000, v{8+j}")
    a(f"v_add_f32 v7, v{X}, v{X+1}")
    for j in range(2, 16):
        a(f"v_add_f32 v7, v7, v{X+j}")
    wave_sum(a, 7)
    a(f"v_mul_f32 v7, 0x{0x3ACCCCCD:x}, v7      ; mean (1/640)")
    a(f"v_sub_f32 v64, v{X}, v7")
    a(f"v_mul_f32 v65, v64, v64")
    for j in range(1, 16):
        a(f"v_sub_f32 v64, v{X+j}, v7")
        a(f"v_fmac_f32 v65, v64, v64")
    a(f"v_cndmask_b32 v65, 0, v65, s[20:21]")
    wave_sum(a, 65)
    a(f"v_mul_f32 v65, 0x{0x3ACCCCCD:x}, v65")
    bf16r(a, 65)
    a(f"v_add_f32 v65, 0x3727c5ac, v65      ; + 1e-5")
    bf16r(a, 65)
    a("v_sqrt_f32 v65, v65")
    a.nop(1)
    bf16r(a, 65)
    a("v_rcp_f32 v65, v65")
    bf16r(a, 7)
    a("s_waitcnt vmcnt(0)")
    for j in range(8):
        a(f"v_add_f32 v{32+2*j}, 1.0, v{32+2*j}")
        a(f"v_add_f32 v{33+2*j}, 1.0, v{33+2*j}")
        a(f"v_cvt_pk_bf16_f32 v66, v{32+2*j}, v{33+2*j}")
        a(f"v_lshlrev_b32 v{32+2*j}, 16, v66")
        a(f"v_and_b32 v{33+2*j}, 0xffff0000, v66")
    if perm:
        dst = {0: 8, 4: 9, 1: 10, 5: 11, 2: 12, 6: 13, 3: 14, 7: 15}
    else:
        dst = {j: 8 + j for j in range(8)}
    for j in range(8):
        x0, x1 = X + 2*j, X + 2*j + 1
        a(f"""
        v_sub_f32 v{x0}, v{x0}, v7
        v_sub_f32 v{x1}, v{x1}, v7
        v_cvt_pk_bf16_f32 v66, v{x0}, v{x1}
        v_lshlrev_b32 v{x0}, 16, v66
        v_and_b32 v{x1}, 0xffff0000, v66
        v_mul_f32 v{x0}, v{x0}, v65
        v_mul_f32 v{x1}, v{x1}, v65
        v_cvt_pk_bf16_f32 v66, v{x0}, v{x1}
        v_lshlrev_b32 v{x0}, 16, v66
        v_and_b32 v{x1}, 0xffff0000, v66
        v_mul_f32 v{x0}, v{x0}, v{32+2*j}
        v_mul_f32 v{x1}, v{x1}, v{33+2*j}
        v_cvt_pk_bf16_f32 v66, v{x0}, v{x1}
        v_lshlrev_b32 v{x0}, 16, v66
        v_and_b32 v{x1}, 0xffff0000, v66
        v_add_f32 v{x0}, v{x0}, v{48+2*j}
        v_add_f32 v{x1}, v{x1}, v{49+2*j}
        v_cvt_pk_bf16_f32 v{dst[j]}, v{x0}, v{x1}
        """)
    a(f"""
    buffer_store_dwordx4 v[8:11], v6, s[8:11], s22 offen
    buffer_store_dwordx4 v[12:15], v6, s[8:11], s22 offen offset:256
    """)
    a.label(f"{L}_end")
    a("s_endpgm")
    return (L, 512, 256, 0, kernel_desc(L, 72, 72))
```

```python
from gen_common import *

N_WVO, N_MOD, N_INIT = 160, 60, 32
PREP_GRID = N_WVO + N_MOD + N_INIT


def gen_prep(a):
    L = "prep_kernel"
    kernel_header(a, L)
    a(f"""
    s_cmp_ge_u32 s2, {PREP_GRID}
    s_cbranch_scc1 prep_end
    s_load_dwordx2 s[4:5], s[0:1], {KA_WS}
    s_load_dwordx2 s[6:7], s[0:1], {KA_WV}
    s_load_dwordx2 s[24:25], s[0:1], {KA_WO}
    s_load_dwordx2 s[26:27], s[0:1], {KA_C}
    s_load_dwordx2 s[28:29], s[0:1], {KA_WMOD}
    s_load_dwordx2 s[30:31], s[0:1], {KA_MEM0}
    v_lshrrev_b32 v1, 6, v0
    v_and_b32 v2, 63, v0
    s_waitcnt lgkmcnt(0)
    """)
    srd(a, 8, 4, WS_SIZE)
    srd(a, 12, 6, D * H * E * 2)
    srd(a, 16, 24, D * H * E * 2)
    srd(a, 20, 26, D * 2)
    srd(a, 32, 28, D * 3840 * 2)
    srd(a, 36, 30, M * D * 2)
    a(f"""
    v_readfirstlane_b32 s3, v1
    s_cmp_ge_u32 s2, {N_WVO}
    s_cbranch_scc1 prep_not_wvo
    """)
    a(f"""
    s_mul_i32 s40, s2, 52429
    s_lshr_b32 s40, s40, 18           ; h
    s_mul_i32 s41, s40, 5
    s_sub_u32 s41, s2, s41            ; nb
    v_lshrrev_b32 v3, 4, v2           ; r = lane/16
    v_and_b32 v4, 15, v2              ; chunk'
    s_lshr_b32 s42, s3, 1
    s_and_b32 s42, s42, 1
    s_lshl_b32 s42, s42, 2            ; ((w>>1)&1)<<2
    v_or_b32 v5, s42, v3              ; f3
    v_lshlrev_b32 v5, 1, v5
    v_xor_b32 v4, v4, v5
    v_lshlrev_b32 v4, 4, v4
    s_lshl_b32 s43, s3, 2             ; 4w
    v_add_u32 v5, s43, v3             ; 4w + r
    v_mul_u32_u24 v5, 1280, v5
    v_add_u32 v4, v4, v5
    s_mul_i32 s44, s40, 163840
    s_lshl_b32 s45, s41, 8
    s_add_u32 s44, s44, s45
    s_lshl_b32 s45, s3, 10            ; m0 base = 4w*256
    """)
    for q in range(8):
        a(f"""
        s_add_u32 s46, s45, {q*4096}
        s_mov_b32 m0, s46
        s_add_u32 s47, s44, {q*16*1280}
        buffer_load_dwordx4 v4, s[16:19], s47 offen lds
        """)
    a(f"""
    v_and_b32 v6, 15, v2              ; rho
    v_lshrrev_b32 v7, 3, v6           ; rho/8
    v_lshlrev_b32 v7, 4, v7           ; 16*(rho/8)
    v_bfe_u32 v8, v6, 2, 1
    v_lshl_add_u32 v7, v8, 2, v7      ; + 4*((rho/4)%2)
    v_and_b32 v8, 1, v6
    v_add_u32 v7, v7, v8              ; + (rho&1)
    v_bfe_u32 v8, v6, 1, 1
    v_lshl_add_u32 v7, v8, 3, v7      ; + 8*((rho>>1)&1)
    v_lshlrev_b32 v7, 13, v7          ; * 8192
    v_lshl_add_u32 v7, v3, 4, v7
    v_add_u32 v8, 16384, v7
    s_lshl_b32 s48, s40, 8            ; h*256
    s_lshl_b32 s49, s3, 18            ; w*32*8192
    s_add_u32 s48, s48, s49
    """)
    AB = [32, 64]
    ACC = 96
    TMP = [160, 164]

    def loadA(buf):
        for X in range(2):
            for k in range(4):
                a(f"buffer_load_dwordx4 {vr(AB[buf]+X*16+k*4,4)}, v{7+X}, s[12:15], s48 offen offset:{k*64}")
        a(f"s_add_u32 s48, s48, {4*32*8192}")
    loadA(0)
    loadA(1)
    a(f"""
    v_bfe_u32 v9, v2, 2, 2            ; r = (l%16)/4
    v_and_b32 v10, 3, v2              ; c
    v_lshl_add_u32 v11, v3, 3, v9     ; 8g + r
    v_lshlrev_b32 v11, 8, v11
    v_lshl_add_u32 v11, v10, 3, v11   ; + c*8
    v_and_b32 v12, 1, v3
    v_lshl_or_b32 v12, v12, 2, v9     ; f3 = r | (g&1)<<2
    v_lshl_or_b32 v11, v12, 5, v11    ; base | f3<<5
    """)
    for t in range(8):
        a(f"v_xor_b32 v{16+t}, {t<<5}, v11")
    a(f"""
    v_bfe_u32 v12, v2, 3, 1
    v_mul_u32_u24 v12, 327680, v12
    v_lshl_add_u32 v12, v3, 8, v12
    v_and_b32 v13, 7, v2
    v_lshl_add_u32 v12, v13, 4, v12
    s_lshr_b32 s50, s40, 3            ; wU
    s_bfe_u32 s51, s40, 0x20001       ; tU = (h>>1)&3
    s_lshl_b32 s50, s50, 2
    s_add_u32 s50, s50, s51
    s_mul_i32 s50, s50, 20480
    s_and_b32 s51, s40, 1
    s_lshl_b32 s51, s51, 7
    s_add_u32 s50, s50, s51
    s_mul_i32 s51, s41, {16*327680}
    s_add_u32 s50, s50, s51
    s_lshl_b32 s51, s3, 10
    s_add_u32 s50, s50, s51
    s_add_u32 s50, s50, 0x{WS_WVO:x}
    s_waitcnt vmcnt(16)
    s_barrier
    """)
    for t in range(8):
        for k in range(4):
            for j in range(2):
                a(f"ds_read_b64_tr_b16 {ar(t*16+k*4+j*2,2)}, v{16+t} offset:{k*8192+j*1024}")
        if t % 2 == 1:
            a("s_waitcnt lgkmcnt(0)")
    for p in range(5):
        buf = p % 2
        if p == 0:
            a("s_waitcnt vmcnt(8)")
        elif p < 4:
            a("s_waitcnt vmcnt(16)")
        else:
            a("s_waitcnt vmcnt(8)")
        for k in range(4):
            for t in range(8):
                for X in range(2):
                    acc = vr(ACC + t*8 + X*4, 4)
                    c = "0" if k == 0 else acc
                    a(f"v_mfma_f32_16x16x32_bf16 {acc}, {vr(AB[buf]+X*16+k*4,4)}, {ar(t*16+k*4,4)}, {c}")
        a("s_mov_b32 s52, s50")
        for t in range(8):
            tm = TMP[t % 2]
            b = ACC + t*8
            if t == 7:
                pass
            a(f"""
            v_cvt_pk_bf16_f32 v{tm}, v{b}, v{b+1}
            v_cvt_pk_bf16_f32 v{tm+1}, v{b+2}, v{b+3}
            v_cvt_pk_bf16_f32 v{tm+2}, v{b+4}, v{b+5}
            v_cvt_pk_bf16_f32 v{tm+3}, v{b+6}, v{b+7}
            buffer_store_dwordx4 {vr(tm,4)}, v12, s[8:11], s52 offen
            s_add_u32 s52, s52, {2*327680}
            """)
        a("s_add_u32 s50, s50, 4096")
        if p + 2 < 5:
            loadA(buf)
    a("s_endpgm")

    a.label("prep_not_wvo")
    a(f"""
    s_cmp_ge_u32 s2, {N_WVO+N_MOD}
    s_cbranch_scc1 prep_init
    s_sub_u32 s40, s2, {N_WVO}        ; j
    v_and_b32 v3, 7, v0               ; cc
    v_lshrrev_b32 v4, 3, v0           ; rg
    v_mul_u32_u24 v5, 40, v4
    """)
    for i in range(5):
        a(f"buffer_load_dwordx2 {vr(10+2*i,2)}, v5, s[20:23], 0 offen offset:{8*i}")
    a(f"""
    v_mul_u32_u24 v6, {20*7680}, v4
    v_lshl_add_u32 v6, v3, 4, v6
    s_lshl_b32 s41, s40, 7
    """)
    for i in range(20):
        a(f"buffer_load_dwordx4 {vr(64+4*i,4)}, v6, s[32:35], s41 offen")
        a(f"s_add_u32 s41, s41, 7680")
    a("s_waitcnt vmcnt(20)")
    a("s_mov_b32 s42, 0xbfb8aa3b      ; -log2(e)")
    for i in range(10):
        a(f"v_lshlrev_b32 v{30+2*i}, 16, v{10+i}")
        a(f"v_and_b32 v{31+2*i}, 0xffff0000, v{10+i}")
    for i in range(20):
        a(f"v_mul_f32 v{10+i}, s42, v{30+i}")
    for i in range(20):
        a(f"v_exp_f32 v{10+i}, v{10+i}")
    for i in range(20):
        a(f"v_add_f32 v{10+i}, 1.0, v{10+i}")
    for i in range(20):
        a(f"v_rcp_f32 v{10+i}, v{10+i}")
    for i in range(20):
        a(f"v_mul_f32 v{10+i}, v{10+i}, v{30+i}")
    for i in range(10):
        a(f"v_cvt_pk_bf16_f32 v{50}, v{10+2*i}, v{11+2*i}")
        a(f"v_lshlrev_b32 v{30+2*i}, 16, v50")
        a(f"v_and_b32 v{31+2*i}, 0xffff0000, v50")
    for k in range(8):
        a(f"v_mov_b32 v{52+k}, 0")
    for i in range(20):
        a(f"s_waitcnt vmcnt({19-i})")
        for k in range(4):
            a(f"v_lshlrev_b32 v50, 16, v{64+4*i+k}")
            a(f"v_and_b32 v51, 0xffff0000, v{64+4*i+k}")
            a(f"v_fmac_f32 v{52+2*k}, v50, v{30+i}")
            a(f"v_fmac_f32 v{53+2*k}, v51, v{30+i}")
    a(f"""
    v_lshlrev_b32 v7, 8, v4
    v_lshl_add_u32 v7, v3, 5, v7
    ds_write_b128 v7, v[52:55]
    ds_write_b128 v7, v[56:59] offset:16
    s_waitcnt lgkmcnt(0)
    s_barrier
    s_cmp_lg_u32 s3, 0
    s_cbranch_scc1 prep_end
    v_lshlrev_b32 v7, 2, v0
    """)
    for r in range(32):
        a(f"ds_read_b32 v{64+r}, v7 offset:{r*256}")
        if r == 15:
            a("s_waitcnt lgkmcnt(0)")
    a("s_waitcnt lgkmcnt(0)")
    for r in range(1, 32):
        a(f"v_add_f32 v64, v64, v{64+r}")
    a(f"""
    v_cvt_pk_bf16_f32 v64, v64, v64
    v_and_b32 v64, 0xffff0000, v64
    s_lshl_b32 s41, s40, 8
    buffer_store_dword v64, v7, s[8:11], s41 offen offset:{WS_MOD}
    s_endpgm
    """)

    a.label("prep_init")
    a(f"""
    s_sub_u32 s40, s2, {N_WVO+N_MOD}
    v_lshlrev_b32 v3, 4, v0
    v_mov_b32 v4, -1
    v_mov_b32 v5, -1
    v_mov_b32 v6, -1
    v_mov_b32 v7, -1
    s_mul_i32 s41, s40, {55*4096}
    s_add_u32 s41, s41, 0x{WS_MEM+MEM_STEP:x}
    s_mov_b32 s42, 55
    """)
    a.label("prep_init_loop")
    a(f"""
    buffer_store_dwordx4 v[4:7], v3, s[8:11], s41 offen
    s_add_u32 s41, s41, 4096
    s_sub_u32 s42, s42, 1
    s_cmp_lg_u32 s42, 0
    s_cbranch_scc1 prep_init_loop
    s_cmp_lg_u32 s40, 0
    s_cbranch_scc1 prep_init_1
    v_mov_b32 v8, 0
    v_mov_b32 v9, 0
    v_mov_b32 v10, 0
    v_mov_b32 v11, 0
    s_mov_b32 s41, 0x{WS_FLAGS:x}
    """)
    for k in range(FLAGS_BYTES // 4096):
        a(f"buffer_store_dwordx4 v[8:11], v3, s[8:11], s41 offen")
        a(f"s_add_u32 s41, s41, 4096")
    a("s_endpgm")
    a.label("prep_init_1")
    a(f"""
    s_cmp_lg_u32 s40, 1
    s_cbranch_scc1 prep_end
    v_and_b32 v8, 7, v0
    v_mul_u32_u24 v8, 1280, v8
    v_lshrrev_b32 v9, 3, v0
    v_lshl_add_u32 v8, v9, 4, v8
    buffer_load_dwordx4 v[12:15], v8, s[36:39], 0 offen
    buffer_load_dwordx4 v[16:19], v8, s[36:39], 0 offen offset:512
    buffer_load_dwordx4 v[20:23], v8, s[36:39], 0 offen offset:1024
    v_mov_b32 v24, 0x7fc07fc0
    s_mov_b32 s41, 0x{WS_MEM:x}
    s_waitcnt vmcnt(0)
    """)
    for k in range(12):
        a(f"v_cmp_eq_u32 vcc, -1, v{12+k}")
        a.nop(2)
        a(f"v_cndmask_b32 v{12+k}, v{12+k}, v24, vcc")
    a(f"""
    buffer_store_dwordx4 v[12:15], v3, s[8:11], s41 offen
    s_add_u32 s41, s41, 4096
    buffer_store_dwordx4 v[16:19], v3, s[8:11], s41 offen
    s_add_u32 s41, s41, 4096
    s_cmp_ge_u32 s3, 2
    s_cbranch_scc1 prep_end
    buffer_store_dwordx4 v[20:23], v3, s[8:11], s41 offen
    """)
    a.label("prep_end")
    a("s_endpgm")
    return (L, PREP_GRID, 256, 32768, kernel_desc(L, 168 + 128, 168))
```

```python
from gen_common import *
import os

P_SLEEP0 = int(os.environ.get("P_SLEEP0", "36"))
P_SLEEP1 = int(os.environ.get("P_SLEEP1", "46"))
U_SLEEPM = int(os.environ.get("U_SLEEPM", "24"))
U_SLEEPP = int(os.environ.get("U_SLEEPP", "12"))
STAMP = int(os.environ.get("STAMP", "0"))
LOOK = int(os.environ.get("LOOK", "3"))

WS, DBG, WQ, WK, XS = "s[8:11]", "s[12:15]", "s[16:19]", "s[20:23]", "s[24:27]"
sW, sID, sSTEP, sBUD = 3, 28, 29, 30
vLANE, vIDX = 2, 4
vL16, vL16b, vL16c = 5, 6, 7
MEMF = 16
ACC = 56
LDS_T = 0x14000
LDS_R = 0x15000
LDS_ROLE = 0x1F000


def wreg(t, ks, n=4):
    idx = (t * 20 + ks) * 4
    if idx < 256:
        return ar(idx, n)
    return vr(192 + idx - 256, n)


def l16(off):
    return f"v{vL16 + off // 4096}", off % 4096


def poll_fail(a, retry_label, sleep=2):
    ok = a.newlabel("pok")
    a(f"""
    s_cbranch_vccz {ok}
    s_sub_u32 s{sBUD}, s{sBUD}, 1
    s_cmp_lt_i32 s{sBUD}, 0
    s_cbranch_scc1 {ok}
    s_sleep {sleep}
    s_branch {retry_label}
    """)
    a.label(ok)


def wait_flag(a, s_flagoff, s_need, s_seen, vt, sleep=8):
    top = a.newlabel("wf")
    done = a.newlabel("wfd")
    a.label(top)
    a(f"""
    s_cmp_ge_u32 s{s_seen}, s{s_need}
    s_cbranch_scc1 {done}
    buffer_load_dword v{vt}, off, {WS}, s{s_flagoff} sc1
    s_waitcnt vmcnt(0)
    v_readfirstlane_b32 s{s_seen}, v{vt}
    s_nop 3
    s_cmp_ge_u32 s{s_seen}, s{s_need}
    s_cbranch_scc1 {done}
    s_sub_u32 s{sBUD}, s{sBUD}, 1
    s_cmp_lt_i32 s{sBUD}, 0
    s_cbranch_scc1 {done}
    s_sleep {sleep}
    s_branch {top}
    """)
    a.label(done)


def mem_proj(a, tiles, s_memoff, vmax, sleep=2):
    top = a.newlabel("mp")
    a.label(top)
    for kb in range(10):
        r, o = l16(kb * 1024)
        a(f"buffer_load_dwordx4 {vr(MEMF+4*kb,4)}, {r}, {WS}, s{s_memoff} offen offset:{o} sc1")
    for t in tiles:
        for r in range(4):
            a(f"v_mov_b32 v{ACC+4*t+r}, 0")
    a(f"v_mov_b32 v{vmax}, 0")
    for kb in range(10):
        a(f"s_waitcnt vmcnt({9-kb})")
        f = MEMF + 4 * kb
        for n, t in enumerate(tiles):
            a(f"v_smfmac_f32_16x16x64_bf16 {vr(ACC+4*t,4)}, {vr(f,4)}, {wreg(t,2*kb,8)}, v{vIDX}")
            if n == 0:
                a(f"v_max3_u32 v{vmax}, v{vmax}, v{f}, v{f+1}")
            if n == 1:
                a(f"v_max3_u32 v{vmax}, v{vmax}, v{f+2}, v{f+3}")
    a(f"v_cmp_eq_u32 vcc, -1, v{vmax}")
    poll_fail(a, top, sleep)


def combine_pair(a, t0, t1, d01, d23):
    A, B = ACC + 4 * t0, ACC + 4 * t1
    for r in range(4):
        a(f"v_permlane32_swap_b32 v{A+r}, v{B+r}")
    for r in range(4):
        a(f"v_add_f32 v{A+r}, v{A+r}, v{B+r}")
    a(f"v_cvt_pk_bf16_f32 v{d01}, v{A}, v{A+1}")
    a(f"v_cvt_pk_bf16_f32 v{d23}, v{A+2}, v{A+3}")


def load_wqk(a):
    a.comment("---- load Wq/Wk fragments")
    a(f"""
    v_lshrrev_b32 v10, 4, v{vLANE}          ; r = lane/16
    v_and_b32 v11, 15, v{vLANE}             ; chunk'
    v_and_b32 v12, 1, v10
    s_lshl_b32 s40, s{sW}, 1
    v_or_b32 v12, s40, v12                  ; f = (r&1)|(w<<1)
    v_lshlrev_b32 v12, 1, v12
    v_xor_b32 v11, v11, v12
    v_lshlrev_b32 v11, 4, v11
    s_lshl_b32 s40, s{sW}, 2
    v_add_u32 v12, s40, v10                 ; 4w+r
    v_lshl_add_u32 v11, v12, 13, v11
    s_lshl_b32 s41, s{sID}, 8
    s_lshl_b32 s42, s{sW}, 10
    v_bfe_u32 v12, v{vLANE}, 2, 2           ; r
    v_and_b32 v13, 3, v{vLANE}              ; c
    v_lshrrev_b32 v14, 1, v10               ; g>>1
    v_lshlrev_b32 v14, 4, v14               ; 16*(g>>1)
    v_and_b32 v15, 1, v10                   ; g&1
    v_lshl_add_u32 v14, v15, 2, v14         ; +4*(g&1)
    v_and_b32 v16, 1, v12
    v_add_u32 v14, v14, v16                 ; +(r&1)
    v_lshrrev_b32 v17, 1, v12               ; r>>1
    v_lshl_add_u32 v14, v17, 3, v14         ; +8*(r>>1)
    v_lshlrev_b32 v14, 8, v14
    v_lshl_add_u32 v14, v13, 3, v14         ; + c*8
    v_lshl_or_b32 v16, v15, 1, v16
    v_lshl_or_b32 v16, v17, 2, v16          ; f
    v_lshl_or_b32 v14, v16, 5, v14
    s_lshl_b32 s40, s{sW}, 6                ; (2w)<<5
    v_xor_b32 v18, s40, v14                 ; tile 2w
    v_xor_b32 v19, 32, v18                  ; tile 2w+1
    v_add_u32 v20, 0x10000, v18
    v_add_u32 v21, 0x10000, v19
    """)

    def dma(cn):
        buf = cn % 4
        for mat, sd in enumerate((WQ, WK)):
            for q in range(4):
                a(f"""
                s_add_u32 s43, s42, {buf*32768 + mat*16384 + q*4096}
                s_mov_b32 m0, s43
                s_add_u32 s44, s41, {(cn*64+16*q)*8192}
                buffer_load_dwordx4 v11, {sd}, s44 offen lds
                """)
    for cn in range(3):
        dma(cn)
    for cn in range(10):
        later = min(2, 9 - cn)
        a(f"s_waitcnt vmcnt({8*later})")
        a("s_barrier")
        if cn + 3 < 10:
            dma(cn + 3)
        buf = cn % 4
        for mat in range(2):
            for tt in range(2):
                for ksl in range(2):
                    for j in range(2):
                        idx = ((mat*2+tt) * 20 + cn*2 + ksl) * 4 + 2*j
                        dst = ar(idx, 2) if idx < 256 else vr(192 + idx - 256, 2)
                        av = 18 + tt + (2 if buf >= 2 else 0)
                        a(f"ds_read_b64_tr_b16 {dst}, v{av} offset:{(buf&1)*32768 + mat*16384 + ksl*8192 + j*512}")
            a("s_waitcnt lgkmcnt(0)")
    a("s_barrier")


def load_wvo(a):
    a.comment("---- load Wvo fragments (linear)")
    a(f"""
    s_lshl_b32 s40, s{sID}, 2
    s_add_u32 s40, s40, s{sW}
    s_mul_i32 s40, s40, 81920
    s_add_u32 s40, s40, 0x{WS_WVO:x}
    """)
    for f in range(80):
        a(f"buffer_load_dwordx4 {wreg(f//20, f%20)}, v{vL16}, {WS}, s40 offen offset:{(f%4)*1024}")
        if f % 4 == 3:
            a("s_add_u32 s40, s40, 4096")
        if f % 40 == 39:
            a("s_waitcnt vmcnt(20)" if f < 79 else "s_waitcnt vmcnt(0)")


def dma_h(a, s_hoff, s_buf):
    a(f"""
    s_mul_i32 s43, s{sW}, 10240
    s_add_u32 s44, s43, s{s_hoff}
    s_add_u32 s43, s43, s{s_buf}
    """)
    for k in range(10):
        a(f"""
        s_mov_b32 m0, s43
        s_add_u32 s43, s43, 1024
        buffer_load_dwordx4 v{vL16}, {WS}, s44 offen lds
        s_add_u32 s44, s44, 1024
        """)


HF = 104
TACC = 72


def dense_proj(a, vH, transposed):
    def rd(ks):
        st = HF + (ks % 3) * 8
        for mt in range(2):
            a(f"ds_read_b128 {vr(st+4*mt,4)}, v{vH} offset:{mt*20480+ks*1024}")
    rd(0)
    rd(1)
    for ks in range(20):
        if ks + 2 < 20:
            rd(ks + 2)
            a("s_waitcnt lgkmcnt(4)")
        elif ks + 1 < 20:
            a("s_waitcnt lgkmcnt(2)")
        else:
            a("s_waitcnt lgkmcnt(0)")
        st = HF + (ks % 3) * 8
        for t in range(4):
            for mt in range(2):
                acc = vr(TACC + (t*2+mt)*4, 4)
                c = "0" if ks == 0 else acc
                if transposed:
                    a(f"v_mfma_f32_16x16x32_bf16 {acc}, {wreg(t,ks)}, {vr(st+4*mt,4)}, {c}")
                else:
                    a(f"v_mfma_f32_16x16x32_bf16 {acc}, {vr(st+4*mt,4)}, {wreg(t,ks)}, {c}")


def round_scale(a, xs, tmp, s_scale):
    def rnd():
        for k in range(0, len(xs), 2):
            x0 = xs[k]
            x1 = xs[k+1] if k + 1 < len(xs) else xs[k]
            a(f"v_cvt_pk_bf16_f32 v{tmp+k//2}, v{x0}, v{x1}")
        for k in range(0, len(xs), 2):
            a(f"v_lshlrev_b32 v{xs[k]}, 16, v{tmp+k//2}")
            if k + 1 < len(xs):
                a(f"v_and_b32 v{xs[k+1]}, 0xffff0000, v{tmp+k//2}")
    rnd()
    for x in xs:
        a(f"v_mul_f32 v{x}, s{s_scale}, v{x}")
    rnd()


def xlane(a, op, v, t, with8):
    if with8:
        a.nop(2)
        a(f"{op}_dpp v{v}, v{v}, v{v} row_ror:8 row_mask:0xf bank_mask:0xf")
    for sw in ("v_permlane16_swap_b32", "v_permlane32_swap_b32"):
        a(f"v_mov_b32 v{t}, v{v}")
        a.nop(2)
        a(f"{sw} v{v}, v{t}")
        a(f"{op} v{v}, v{v}, v{t}")


def softmax(a, xs, vm, vt, s_log2e, with8):
    a(f"v_max3_f32 v{vm}, v{xs[0]}, v{xs[1]}, v{xs[2]}")
    k = 3
    while k < len(xs):
        if k + 1 < len(xs):
            a(f"v_max3_f32 v{vm}, v{vm}, v{xs[k]}, v{xs[k+1]}")
            k += 2
        else:
            a(f"v_max_f32 v{vm}, v{vm}, v{xs[k]}")
            k += 1
    xlane(a, "v_max_f32", vm, vt, with8)
    for x in xs:
        a(f"v_sub_f32 v{x}, v{x}, v{vm}")
    for x in xs:
        a(f"v_mul_f32 v{x}, s{s_log2e}, v{x}")
    for x in xs:
        a(f"v_exp_f32 v{x}, v{x}")
    a(f"v_add_f32 v{vm}, v{xs[0]}, v{xs[1]}")
    for x in xs[2:]:
        a(f"v_add_f32 v{vm}, v{vm}, v{x}")
    xlane(a, "v_add_f32", vm, vt, with8)
    a(f"v_rcp_f32 v{vm}, v{vm}")
    a.nop(1)
    for x in xs:
        a(f"v_mul_f32 v{x}, v{x}, v{vm}")


def setup_qk_lds_addrs(a, vW, vR):
    a(f"""
    v_and_b32 v10, 15, v{vLANE}             ; n
    v_lshrrev_b32 v11, 4, v{vLANE}          ; g
    v_lshrrev_b32 v12, 1, v11
    v_lshl_add_u32 v10, v12, 4, v10         ; 16*(g>>1)+n
    s_lshl_b32 s40, s{sW}, 5
    v_add_u32 v10, s40, v10                 ; +32w
    v_lshlrev_b32 v10, 4, v10
    v_and_b32 v12, 1, v11
    v_lshl_add_u32 v10, v12, 3, v10
    v_add_u32 v{vW}, 0x{LDS_T:x}, v10
    v_bfe_u32 v12, v{vLANE}, 2, 2           ; r
    v_lshl_add_u32 v12, v11, 2, v12         ; 4g+r
    v_lshlrev_b32 v12, 4, v12
    v_and_b32 v13, 1, v{vLANE}
    v_lshl_add_u32 v12, v13, 3, v12
    v_add_u32 v{vR}, 0x{LDS_T:x}, v12
    """)


def setup_p_load_addrs(a, vA, vB):
    a(f"""
    v_bfe_u32 v10, v{vLANE}, 3, 1           ; rho
    v_and_b32 v11, 7, v{vLANE}              ; i
    v_lshrrev_b32 v12, 4, v{vLANE}          ; gA
    v_lshrrev_b32 v13, 1, v12               ; gA>>1
    v_and_b32 v14, 1, v12                   ; gA&1
    s_mul_i32 s40, s{sW}, {8*640}
    v_mul_u32_u24 v15, 1280, v10
    v_add_u32 v15, s40, v15
    v_lshl_add_u32 v15, v13, 8, v15
    v_lshl_add_u32 v15, v11, 5, v15
    v_lshl_add_u32 v{vA}, v14, 4, v15
    v_mul_u32_u24 v15, 2560, v10
    v_mul_u32_u24 v12, 1280, v13
    v_add3_u32 v15, v15, v12, s40
    v_lshl_add_u32 v15, v11, 4, v15
    v_lshl_add_u32 v15, v14, 3, v15
    v_add_u32 v{vB}, 512, v15
    """)


def p_loads(a, PF, vA, vB, s_off):
    for blk in range(2):
        for pi in range(2):
            a(f"buffer_load_dwordx4 {vr(PF+(blk*2+pi)*4,4)}, v{vA}, {WS}, s{s_off} offen offset:{(4*blk+pi)*640} sc1")
    for pi in range(2):
        a(f"buffer_load_dwordx2 {vr(PF+16+2*pi,2)}, v{vB}, {WS}, s{s_off} offen offset:{pi*640} sc1")


def p_combine(a, PF, BX, BM, CA, vmax):
    for blk in range(2):
        for pi in range(2):
            f = PF + (blk*2+pi)*4
            a(f"v_smfmac_f32_16x16x64_bf16 {vr(CA+4*pi,4)}, {vr(f,4)}, {vr(BX+8*blk,8)}, v{vIDX}")
            a(f"v_max3_u32 v{vmax}, v{vmax}, v{f}, v{f+1}")
            a(f"v_max3_u32 v{vmax}, v{vmax}, v{f+2}, v{f+3}")
    a.nop(2)
    for pi in range(2):
        f = PF + 16 + 2*pi
        a(f"v_smfmac_f32_16x16x32_bf16 {vr(CA+4*pi,4)}, {vr(f,2)}, {vr(BM,4)}, v{vIDX}")
        a(f"v_max3_u32 v{vmax}, v{vmax}, v{f}, v{f+1}")


def setup_red_addrs(a, vWr, vRd):
    a(f"""
    v_and_b32 v10, 15, v{vLANE}             ; n
    v_lshrrev_b32 v11, 4, v{vLANE}          ; g
    v_and_b32 v12, 1, v11
    v_lshlrev_b32 v12, 10, v12              ; 4*(g&1)*256
    v_lshl_add_u32 v12, v10, 5, v12         ; + n*32
    v_lshrrev_b32 v13, 1, v11
    v_lshl_add_u32 v12, v13, 2, v12         ; + (g>>1)*4
    s_lshl_b32 s40, s{sW}, 3
    s_add_u32 s40, s40, 0x{LDS_R:x}
    v_add_u32 v12, s40, v12
    v_mov_b32 v13, 0x{LDS_R+0x2800:x}
    v_cmp_gt_u32 vcc, 8, v10
    s_nop 1
    v_cndmask_b32 v{vWr}, v13, v12, vcc
    v_lshlrev_b32 v12, 5, v{vLANE}
    v_add_u32 v{vRd}, 0x{LDS_R:x}, v12
    """)


def red_write(a, CA, vWr, off):
    for r in range(4):
        a(f"v_add_f32_dpp v{CA+r}, v{CA+4+r}, v{CA+r} row_ror:8 row_mask:0xf bank_mask:0xf")
    for r in range(4):
        a(f"ds_write_b32 v{vWr}, v{CA+r} offset:{off + r*256}")


def stamp(a, slot):
    if not STAMP:
        return
    a(f"""
    s_memtime s[60:61]
    s_waitcnt lgkmcnt(0)
    v_mov_b32 v191, s60
    buffer_store_dword v191, off, {DBG}, 0 offset:{slot*4}
    """)


def gen_r(a):
    L = "rec_kernel"
    kernel_header(a, L)
    a(f"""
    s_cmp_ge_u32 s2, 256
    s_cbranch_scc1 r_end
    s_load_dwordx2 s[4:5], s[0:1], {KA_WS}
    s_load_dwordx2 s[6:7], s[0:1], {KA_DBG}
    s_load_dwordx4 s[32:35], s[0:1], {KA_WQ}
    s_load_dwordx2 s[36:37], s[0:1], {KA_X}
    v_lshrrev_b32 v1, 6, v0
    v_and_b32 v{vLANE}, 63, v0
    s_waitcnt lgkmcnt(0)
    """)
    srd(a, 8, 4, WS_SIZE)
    srd(a, 12, 6, 256)
    srd(a, 16, 32, D * H * E * 2)
    srd(a, 20, 34, D * H * E * 2)
    srd(a, 24, 36, S * D * 2)
    a(f"""
    v_readfirstlane_b32 s{sW}, v1
    v_lshlrev_b32 v{vL16}, 4, v{vLANE}
    v_add_u32 v{vL16b}, 4096, v{vL16}
    v_add_u32 v{vL16c}, 8192, v{vL16}
    v_mov_b32 v{vIDX}, 0x4444
    v_mov_b32 v10, 0xeeee
    v_and_b32 v11, 8, v{vLANE}
    v_cmp_ne_u32 vcc, 0, v11
    s_mov_b32 s{sBUD}, 200000
    v_mov_b32 v9, 0x{LDS_ROLE:x}
    v_cndmask_b32 v{vIDX}, v{vIDX}, v10, vcc
    s_cmp_lg_u32 s{sW}, 0
    s_cbranch_scc1 r_role_wait
    s_getreg_b32 s40, hwreg(HW_REG_XCC_ID)
    s_and_b32 s40, s40, 7
    s_mov_b64 exec, 1
    s_cmp_eq_u32 s40, 0
    s_cbranch_scc1 r_try_p
    s_cmp_le_u32 s40, 3
    s_cbranch_scc1 r_try_u
    s_branch r_try_o
    """)

    def try_pool(label, off, size, base, nxt):
        a.label(label)
        a(f"""
        v_mov_b32 v10, 1
        buffer_atomic_add v10, off, {DBG}, 0 offset:{off} sc0
        s_waitcnt vmcnt(0)
        v_readfirstlane_b32 s41, v10
        s_nop 3
        s_add_u32 s42, s41, {base}
        s_cmp_lt_u32 s41, {size}
        s_cbranch_scc1 r_role_done
        s_branch {nxt}
        """)
    try_pool("r_try_p", 0, 32, 0, "r_try_o")
    try_pool("r_try_u", 4, 80, 32, "r_try_o")
    try_pool("r_try_o", 8, 112, 112, "r_spare")
    a.label("r_spare")
    a("s_mov_b32 s43, 64")
    a.label("r_spare_loop")
    a(f"""
    buffer_load_dwordx2 v[10:11], off, {DBG}, 0 sc1
    s_waitcnt vmcnt(0)
    v_readfirstlane_b32 s44, v10
    v_readfirstlane_b32 s45, v11
    s_mov_b32 s42, 255
    s_nop 2
    s_cmp_ge_u32 s44, 32
    s_cselect_b32 s46, 1, 0
    s_cmp_ge_u32 s45, 80
    s_cselect_b32 s47, 1, 0
    s_and_b32 s46, s46, s47
    s_cmp_lg_u32 s46, 0
    s_cbranch_scc1 r_role_done
    s_sleep 8
    s_sub_u32 s43, s43, 1
    s_cmp_lg_u32 s43, 0
    s_cbranch_scc1 r_spare_loop
    """)
    try_pool("r_late_p", 0, 32, 0, "r_late_u")
    try_pool("r_late_u", 4, 80, 32, "r_late_none")
    a.label("r_late_none")
    a("s_mov_b32 s42, 255")
    a.label("r_role_done")
    a(f"""
    v_mov_b32 v10, s42
    ds_write_b32 v9, v10
    s_mov_b64 exec, -1
    s_waitcnt lgkmcnt(0)
    """)
    a.label("r_role_wait")
    a(f"""
    s_barrier
    ds_read_b32 v10, v9
    s_waitcnt lgkmcnt(0)
    v_readfirstlane_b32 s{sID}, v10
    s_mov_b32 s{sSTEP}, 0
    s_mov_b32 s50, 0x3db504f3          ; 128^-0.5
    s_mov_b32 s51, 0x3fb8aa3b          ; log2(e)
    s_barrier
    s_cmp_lt_u32 s{sID}, 32
    s_cbranch_scc1 role_p
    s_cmp_lt_u32 s{sID}, 112
    s_cbranch_scc1 role_u
    s_cmp_lt_u32 s{sID}, 144
    s_cbranch_scc1 role_t
    s_cmp_lt_u32 s{sID}, 224
    s_cbranch_scc1 role_ut
    s_endpgm
    """)

    KF, QF, KMF, SA = 72, 104, 120, 136
    X0 = 148
    vTW, vTR, vST, vSM = 8, 9, 12, 13
    sMEM, sPB, sKX, sFT, sSEEN, sNEED = 31, 32, 33, 34, 35, 36
    a.label("role_p")
    load_wqk(a)
    setup_qk_lds_addrs(a, vTW, vTR)
    a(f"""
    v_bfe_u32 v10, v{vLANE}, 3, 1           ; b
    v_and_b32 v11, 7, v{vLANE}              ; i
    v_lshrrev_b32 v14, 4, v{vLANE}          ; g
    v_lshlrev_b32 v{vST}, 8, v10
    v_lshl_add_u32 v{vST}, v11, 5, v{vST}
    v_lshl_add_u32 v{vST}, v14, 3, v{vST}
    v_lshlrev_b32 v{vSM}, 4, v11
    v_and_b32 v15, 1, v14
    v_lshl_add_u32 v{vSM}, v15, 3, v{vSM}
    v_lshrrev_b32 v15, 1, v14
    v_lshl_add_u32 v{vSM}, v15, 2, v{vSM}
    v_add_u32 v{vSM}, 512, v{vSM}
    v_mov_b32 v15, 0x7ffffff0
    v_cmp_ne_u32 vcc, 0, v10
    s_mov_b32 s52, 0xff00ff00
    s_mov_b32 s53, 0xff00ff00
    v_cndmask_b32 v{vSM}, v{vSM}, v15, vcc
    s_mov_b32 s54, 0
    s_mov_b32 s55, -1                       ; s[54:55]: lanes g>=2
    s_mov_b32 s{sMEM}, 0x{WS_MEM:x}
    s_mul_i32 s{sPB}, s{sID}, 640
    s_add_u32 s{sPB}, s{sPB}, 0x{WS_PB:x}
    s_lshl_b32 s{sKX}, s{sID}, 13
    s_add_u32 s{sKX}, s{sKX}, 0x{WS_KX:x}
    s_lshl_b32 s{sFT}, s{sID}, 7
    s_add_u32 s{sFT}, s{sFT}, 0x{WS_FLAGS+128:x}
    s_mov_b32 s{sSEEN}, 0
    s_mov_b32 s56, 0x{WS_FLAGS:x}
    """)
    a.label("p_loop")
    a(f"""
    s_cmp_lg_u32 s{sW}, 0
    s_cbranch_scc1 p_nokx
    s_add_u32 s{sNEED}, s{sSTEP}, 1
    """)
    wait_flag(a, sFT, sNEED, sSEEN, X0)
    for f in range(8):
        r, o = l16(f * 1024)
        a(f"buffer_load_dwordx4 {vr(KF+4*f,4)}, {r}, {WS}, s{sKX} offen offset:{o} sc1")
    a(f"""
    buffer_load_dword v190, off, {WS}, s{sFT} sc1
    s_cmp_eq_u32 s{sSTEP}, 0
    s_cbranch_scc1 p_poll
    s_sleep {P_SLEEP0}
    s_branch p_poll
    """)
    a.label("p_nokx")
    a(f"""
    s_cmp_eq_u32 s{sSTEP}, 0
    s_cbranch_scc1 p_poll
    s_sleep {P_SLEEP1}
    """)
    a.label("p_poll")
    mem_proj(a, [0, 1, 2, 3], sMEM, X0)
    a.nop(4)
    combine_pair(a, 0, 1, X0+2, X0+3)
    a(f"ds_write_b64 v{vTW}, {vr(X0+2,2)}")
    combine_pair(a, 2, 3, X0+4, X0+5)
    a(f"""
    ds_write_b64 v{vTW}, {vr(X0+4,2)} offset:2048
    s_waitcnt lgkmcnt(0)
    s_barrier
    s_cmp_lg_u32 s{sW}, 0
    s_cbranch_scc1 p_other
    """)
    for k in range(4):
        for tp in range(2):
            a(f"ds_read_b64_tr_b16 {vr(QF+4*k+2*tp,2)}, v{vTR} offset:{k*512+tp*256}")
    for k in range(4):
        for tp in range(2):
            a(f"ds_read_b64_tr_b16 {vr(KMF+4*k+2*tp,2)}, v{vTR} offset:{2048+k*512+tp*256}")
    for k in range(4):
        a(f"s_waitcnt lgkmcnt({14-2*k})")
        for mt in range(2):
            acc = vr(SA+4*mt, 4)
            a(f"v_mfma_f32_16x16x32_bf16 {acc}, {vr(KF+(mt*4+k)*4,4)}, {vr(QF+4*k,4)}, {'0' if k==0 else acc}")
    for k in range(4):
        a(f"s_waitcnt lgkmcnt({6-2*k})")
        acc = vr(SA+8, 4)
        a(f"v_mfma_f32_16x16x32_bf16 {acc}, {vr(KMF+4*k,4)}, {vr(QF+4*k,4)}, {'0' if k==0 else acc}")
    for r in range(4):
        a(f"v_cndmask_b32 v{X0+r}, v{SA+r}, v{SA+4+r}, s[52:53]")
    a.nop(4)
    a(f"""
    v_cndmask_b32 v{X0+4}, v{SA+8}, v{SA+9}, s[52:53]
    v_cndmask_b32 v{X0+5}, v{SA+10}, v{SA+11}, s[52:53]
    v_cndmask_b32 v{X0+4}, v{X0+4}, v{X0+5}, s[54:55]
    """)
    xs = [X0 + k for k in range(5)]
    round_scale(a, xs, X0+8, 50)
    softmax(a, xs, X0+6, X0+7, 51, True)
    a(f"""
    v_cvt_pk_bf16_f32 v{X0+8}, v{X0}, v{X0+1}
    v_cvt_pk_bf16_f32 v{X0+9}, v{X0+2}, v{X0+3}
    v_mov_b32_dpp v{X0+5}, v{X0+4} row_ror:8 row_mask:0xf bank_mask:0xf
    v_min_u32 v{X0+8}, -2, v{X0+8}
    v_min_u32 v{X0+9}, -2, v{X0+9}
    v_cvt_pk_bf16_f32 v{X0+10}, v{X0+4}, v{X0+5}
    buffer_store_dwordx2 {vr(X0+8,2)}, v{vST}, {WS}, s{sPB} offen sc1
    v_min_u32 v{X0+10}, -2, v{X0+10}
    buffer_store_dword v{X0+10}, v{vSM}, {WS}, s{sPB} offen sc1
    v_readfirstlane_b32 s{sSEEN}, v190
    s_branch p_next
    """)
    a.label("p_other")
    a(f"""
    s_cmp_lg_u32 s{sW}, 1
    s_cbranch_scc1 p_next
    s_cmp_lg_u32 s{sID}, 0
    s_cbranch_scc1 p_next
    s_add_u32 s40, s{sSTEP}, 1
    v_mov_b32 v{X0}, s40
    s_mov_b64 exec, 1
    buffer_store_dword v{X0}, off, {WS}, s56 sc1
    s_mov_b64 exec, -1
    """)
    a.label("p_next")
    a(f"""
    s_add_u32 s{sMEM}, s{sMEM}, {MEM_STEP}
    s_add_u32 s{sPB}, s{sPB}, {PB_STEP}
    s_add_u32 s{sKX}, s{sKX}, {32*8192}
    s_add_u32 s{sSTEP}, s{sSTEP}, 1
    s_cmp_lt_u32 s{sSTEP}, 64
    s_cbranch_scc1 p_loop
    s_endpgm
    """)

    BX, BM, PF, CA = 72, 88, 92, 112
    vPA, vPB, vWr, vRd, vMS = 8, 9, 12, 13, 14
    sUX = 33
    a.label("role_u")
    a(f"s_sub_u32 s{sID}, s{sID}, 32")
    load_wvo(a)
    setup_p_load_addrs(a, vPA, vPB)
    setup_red_addrs(a, 120, 121)
    a(f"""
    v_mov_b32 v{vWr}, v120
    v_mov_b32 v{vRd}, v121
    v_lshlrev_b32 v{vMS}, 1, v{vLANE}
    v_and_b32 v10, 1, v{vLANE}
    v_mov_b32 v11, 0x7ffffff0
    v_cmp_ne_u32 vcc, 0, v10
    s_mov_b32 s{sMEM}, 0x{WS_MEM:x}
    s_mov_b32 s{sPB}, 0x{WS_PB:x}
    v_cndmask_b32 v{vMS}, v{vMS}, v11, vcc
    s_lshl_b32 s{sUX}, s{sID}, 2
    s_add_u32 s{sUX}, s{sUX}, s{sW}
    s_lshl_b32 s{sUX}, s{sUX}, 12
    s_add_u32 s{sUX}, s{sUX}, 0x{WS_UX:x}
    s_lshl_b32 s{sFT}, s{sID}, 7
    s_add_u32 s{sFT}, s{sFT}, 0x{WS_FLAGS+64*128:x}
    s_mov_b32 s{sSEEN}, 0
    s_lshl_b32 s57, s{sID}, 7
    s_add_u32 s57, s57, {MEM_STEP}
    """)
    a.label("u_loop")
    a(f"s_add_u32 s{sNEED}, s{sSTEP}, 1")
    wait_flag(a, sFT, sNEED, sSEEN, 122)
    for q in range(4):
        a(f"buffer_load_dwordx4 {vr(BX+4*q,4)}, v{vL16}, {WS}, s{sUX} offen offset:{q*1024} sc1")
    a(f"""
    buffer_load_dword v123, off, {WS}, s{sFT} sc1
    s_cmp_eq_u32 s{sSTEP}, 0
    s_cbranch_scc1 u_poll
    s_sleep {U_SLEEPM}
    """)
    a.label("u_poll")
    mem_proj(a, [0, 1, 2, 3], sMEM, 122)
    a.nop(4)
    combine_pair(a, 0, 1, BM, BM+2)
    combine_pair(a, 2, 3, BM+1, BM+3)
    a(f"v_readfirstlane_b32 s{sSEEN}, v123")
    a(f"s_sleep {U_SLEEPP}")
    a.label("u_ppoll")
    p_loads(a, PF, vPA, vPB, sPB)
    for r in range(8):
        a(f"v_mov_b32 v{CA+r}, 0")
    a("v_mov_b32 v122, 0")
    a("s_waitcnt vmcnt(0)")
    p_combine(a, PF, BX, BM, CA, 122)
    a("v_cmp_eq_u32 vcc, -1, v122")
    poll_fail(a, "u_ppoll")
    a.nop(6)
    red_write(a, CA, vWr, 0)
    a(f"""
    s_waitcnt lgkmcnt(0)
    s_barrier
    s_cmp_lg_u32 s{sW}, 0
    s_cbranch_scc1 u_next
    ds_read_b128 v[124:127], v{vRd}
    ds_read_b128 v[128:131], v{vRd} offset:16
    s_add_u32 s40, s{sMEM}, s57
    s_waitcnt lgkmcnt(1)
    v_add_f32 v124, v124, v125
    v_add_f32 v126, v126, v127
    s_waitcnt lgkmcnt(0)
    v_add_f32 v128, v128, v129
    v_add_f32 v130, v130, v131
    v_add_f32 v124, v124, v126
    v_add_f32 v128, v128, v130
    v_add_f32 v124, v124, v128
    s_nop 1
    v_mov_b32_dpp v125, v124 quad_perm:[1,0,3,2] row_mask:0xf bank_mask:0xf
    v_cvt_pk_bf16_f32 v124, v124, v125
    v_min_u32 v124, -2, v124
    buffer_store_dword v124, v{vMS}, {WS}, s40 offen sc1
    """)
    a.label("u_next")
    a(f"""
    s_add_u32 s{sMEM}, s{sMEM}, {MEM_STEP}
    s_add_u32 s{sPB}, s{sPB}, {PB_STEP}
    s_add_u32 s{sUX}, s{sUX}, {80*16384}
    s_add_u32 s{sSTEP}, s{sSTEP}, 1
    s_cmp_lt_u32 s{sSTEP}, 63
    s_cbranch_scc1 u_loop
    s_endpgm
    """)

    vH = 14
    sHOFF, sHBUF, sKXW, sKXR, sFM = 37, 38, 39, 33, 56
    a.label("role_t")
    a(f"s_sub_u32 s{sID}, s{sID}, 112")
    load_wqk(a)
    setup_qk_lds_addrs(a, vTW, vTR)
    a(f"""
    s_mov_b32 s{sHOFF}, 0x{WS_H1F:x}
    s_mov_b32 s{sHBUF}, 0
    """)
    dma_h(a, sHOFF, sHBUF)
    a(f"""
    v_bfe_u32 v10, v{vLANE}, 3, 1           ; b
    v_and_b32 v11, 7, v{vLANE}              ; i
    v_lshrrev_b32 v15, 4, v{vLANE}          ; g
    v_mul_u32_u24 v10, {PB_RG}, v10
    s_mul_i32 s40, s{sW}, {2*PB_RG}
    s_add_u32 s40, s40, {PB_RG}
    v_add_u32 v10, s40, v10
    v_lshl_add_u32 v{vST}, v11, 5, v10
    v_lshl_add_u32 v{vST}, v15, 3, v{vST}
    v_lshl_add_u32 v{vSM}, v11, 4, v10
    v_and_b32 v11, 1, v15
    v_lshl_add_u32 v{vSM}, v11, 3, v{vSM}
    v_lshrrev_b32 v11, 1, v15
    v_lshl_add_u32 v{vSM}, v11, 2, v{vSM}
    v_add_u32 v{vSM}, 512, v{vSM}
    ; causal masks: keep[m][r] = (16m + 4g + r <= 16w + l%16)
    v_and_b32 v10, 15, v{vLANE}
    s_lshl_b32 s40, s{sW}, 4
    v_add_u32 v10, s40, v10
    v_lshlrev_b32 v11, 2, v15               ; 4g
    """)
    for m in range(2):
        for r in range(4):
            a(f"v_add_u32 v15, {16*m+r}, v11")
            a(f"v_cmp_le_u32 s[{64+(m*4+r)*2}:{65+(m*4+r)*2}], v15, v10")
    a(f"""
    s_mov_b32 s54, 0
    s_mov_b32 s55, -1
    s_mov_b32 s{sMEM}, 0x{WS_MEM:x}
    s_mul_i32 s{sPB}, s{sID}, 640
    s_add_u32 s{sPB}, s{sPB}, 0x{WS_PB:x}
    s_lshl_b32 s{sKXR}, s{sID}, 13
    s_add_u32 s{sKXR}, s{sKXR}, 0x{WS_KX:x}
    s_lshl_b32 s40, s{sW}, 10
    s_add_u32 s{sKXW}, s{sKXR}, s40
    s_lshl_b32 s{sFT}, s{sID}, 7
    s_add_u32 s{sFT}, s{sFT}, 0x{WS_FLAGS+128:x}
    s_mov_b32 s{sSEEN}, 0
    s_mov_b32 s{sFM}, 0x{WS_FLAGS:x}
    s_waitcnt vmcnt(0)
    s_barrier
    """)
    a.label("t_loop")
    a(f"""
    s_cmp_ge_u32 s{sSTEP}, 64
    s_cbranch_scc1 t_att
    v_add_u32 v{vH}, s{sHBUF}, v{vL16}
    s_sub_u32 s{sHBUF}, 40960, s{sHBUF}
    s_add_u32 s{sHOFF}, s{sHOFF}, 40960
    s_cmp_ge_u32 s{sSTEP}, 63
    s_cbranch_scc1 t_nodma
    """)
    dma_h(a, sHOFF, sHBUF)
    a.label("t_nodma")
    dense_proj(a, vH, True)
    a.nop(4)
    a(f"s_add_u32 s40, s{sKXW}, 0x{WS_QX-WS_KX:x}")
    for mat in (0, 1):
        for mt in range(2):
            tm = 128 + ((mat*2+mt) % 2) * 4
            for tt in range(2):
                b = TACC + ((mat*2+tt)*2 + mt) * 4
                a(f"v_cvt_pk_bf16_f32 v{tm+2*tt}, v{b}, v{b+1}")
                a(f"v_cvt_pk_bf16_f32 v{tm+2*tt+1}, v{b+2}, v{b+3}")
            so = "s40" if mat == 0 else f"s{sKXW}"
            a(f"buffer_store_dwordx4 {vr(tm,4)}, v{vL16+mt}, {WS}, {so} offen sc1")
    a(f"""
    s_add_u32 s{sKXW}, s{sKXW}, {32*8192}
    s_waitcnt vmcnt(0)
    s_barrier
    s_cmp_lg_u32 s{sW}, 3
    s_cbranch_scc1 t_att
    s_add_u32 s40, s{sSTEP}, 1
    v_mov_b32 v128, s40
    s_mov_b64 exec, 1
    buffer_store_dword v128, off, {WS}, s{sFT} sc1
    s_mov_b64 exec, -1
    """)
    a.label("t_att")
    a(f"""
    s_cmp_lt_u32 s{sSTEP}, {LOOK}
    s_cbranch_scc1 t_next
    s_sub_u32 s{sNEED}, s{sSTEP}, {LOOK-1}
    """)
    wait_flag(a, sFM, sNEED, sSEEN, X0, sleep=16)
    a(f"""
    s_cmp_ge_u32 s{sW}, 2
    s_cbranch_scc1 t_noqk
    s_lshl_b32 s40, s{sW}, 12
    s_add_u32 s40, s40, s{sKXR}
    s_add_u32 s40, s40, 0x{WS_QX-WS_KX:x}
    """)
    for f in range(8):
        r, o = l16(f * 1024)
        a(f"buffer_load_dwordx4 {vr(KF+4*f,4)}, {r}, {WS}, s{sKXR} offen offset:{o} sc1")
    for k in range(4):
        a(f"buffer_load_dwordx4 {vr(QF+4*k,4)}, v{vL16}, {WS}, s40 offen offset:{k*1024} sc1")
    a.label("t_noqk")
    mem_proj(a, [2, 3], sMEM, X0, sleep=8)
    a.nop(6)
    combine_pair(a, 2, 3, X0+4, X0+5)
    a(f"""
    ds_write_b64 v{vTW}, {vr(X0+4,2)} offset:2048
    s_waitcnt lgkmcnt(0)
    s_barrier
    s_cmp_ge_u32 s{sW}, 2
    s_cbranch_scc1 t_att_done
    """)
    for k in range(4):
        for tp in range(2):
            a(f"ds_read_b64_tr_b16 {vr(KMF+4*k+2*tp,2)}, v{vTR} offset:{2048+k*512+tp*256}")
    for k in range(4):
        for mt in range(2):
            acc = vr(SA+4*mt, 4)
            a(f"v_mfma_f32_16x16x32_bf16 {acc}, {vr(KF+(mt*4+k)*4,4)}, {vr(QF+4*k,4)}, {'0' if k==0 else acc}")
    a("s_waitcnt lgkmcnt(0)")
    for k in range(4):
        acc = vr(SA+8, 4)
        a(f"v_mfma_f32_16x16x32_bf16 {acc}, {vr(KMF+4*k,4)}, {vr(QF+4*k,4)}, {'0' if k==0 else acc}")
    a.nop(8)
    a(f"""
    v_cndmask_b32 v{SA+8}, v{SA+8}, v{SA+10}, s[54:55]
    v_cndmask_b32 v{SA+9}, v{SA+9}, v{SA+11}, s[54:55]
    """)
    xs = [SA + k for k in range(10)]
    round_scale(a, xs, X0+8, 50)
    a(f"v_mov_b32 v{X0}, 0xce6e6b28")
    for k in range(8):
        a(f"v_cndmask_b32 v{SA+k}, v{X0}, v{SA+k}, s[{64+2*k}:{65+2*k}]")
    softmax(a, xs, X0+6, X0+7, 51, False)
    for k in range(5):
        a(f"v_cvt_pk_bf16_f32 v{X0+8+k}, v{SA+2*k}, v{SA+2*k+1}")
    for k in range(5):
        a(f"v_min_u32 v{X0+8+k}, -2, v{X0+8+k}")
    a(f"""
    buffer_store_dwordx2 {vr(X0+8,2)}, v{vST}, {WS}, s{sPB} offen sc1
    buffer_store_dwordx2 {vr(X0+10,2)}, v{vST}, {WS}, s{sPB} offen offset:256 sc1
    buffer_store_dword v{X0+12}, v{vSM}, {WS}, s{sPB} offen sc1
    """)
    a.label("t_att_done")
    a(f"""
    s_barrier
    s_add_u32 s{sMEM}, s{sMEM}, {MEM_STEP}
    s_add_u32 s{sPB}, s{sPB}, {PB_STEP}
    s_add_u32 s{sKXR}, s{sKXR}, {32*8192}
    """)
    a.label("t_next")
    a(f"""
    s_add_u32 s{sSTEP}, s{sSTEP}, 1
    s_cmp_lt_u32 s{sSTEP}, {64+LOOK}
    s_cbranch_scc1 t_loop
    s_endpgm
    """)

    BX2, BM2 = 128, 144
    PF2 = [72, 92, 148, 168]
    CA2 = 112
    vXA, vGA = 15, 188
    sUXW, sUXR, sXO = 39, 33, 57
    a.label("role_ut")
    a(f"s_sub_u32 s{sID}, s{sID}, 144")
    a(f"""
    s_mov_b32 s{sHOFF}, 0x{WS_H1F:x}
    s_mov_b32 s{sHBUF}, 0
    """)
    dma_h(a, sHOFF, sHBUF)
    load_wvo(a)
    setup_p_load_addrs(a, vPA, vPB)
    setup_red_addrs(a, 120, 121)
    a(f"""
    v_mov_b32 v{vWr}, v120
    s_lshl_b32 s40, s{sW}, 11
    v_add_u32 v{vRd}, s40, v121
    ; x / x1 addressing: token = 8w + l/8 ; col = 8c + l%8
    v_lshrrev_b32 v10, 3, v{vLANE}
    s_lshl_b32 s40, s{sW}, 3
    v_add_u32 v10, s40, v10
    v_mul_u32_u24 v10, 1280, v10
    v_and_b32 v11, 7, v{vLANE}
    v_lshl_add_u32 v{vXA}, v11, 1, v10
    v_lshlrev_b32 v11, 2, v11
    s_lshl_b32 s40, s{sID}, 5
    s_add_u32 s40, s40, {WS_MOD + 2*2560}
    buffer_load_dword v{vGA}, v11, {WS}, s40 offen
    v_and_b32 v10, 1, v{vLANE}
    v_mov_b32 v11, 0x7ffffff0
    v_cmp_ne_u32 vcc, 0, v10
    s_mov_b32 s{sMEM}, 0x{WS_MEM:x}
    s_mov_b32 s{sPB}, 0x{WS_PB+PB_RG:x}
    v_cndmask_b32 v189, v{vXA}, v11, vcc
    s_lshl_b32 s{sUXR}, s{sID}, 2
    s_add_u32 s{sUXR}, s{sUXR}, s{sW}
    s_lshl_b32 s{sUXR}, s{sUXR}, 12
    s_add_u32 s{sUXR}, s{sUXR}, 0x{WS_UX:x}
    s_mov_b32 s{sUXW}, s{sUXR}
    s_lshl_b32 s{sFT}, s{sID}, 7
    s_add_u32 s{sFT}, s{sFT}, 0x{WS_FLAGS+64*128:x}
    s_mov_b32 s{sSEEN}, 0
    s_mov_b32 s{sFM}, 0x{WS_FLAGS:x}
    s_lshl_b32 s{sXO}, s{sID}, 4
    s_waitcnt vmcnt(0)
    s_barrier
    """)
    a.label("ut_loop")
    a(f"""
    s_cmp_ge_u32 s{sSTEP}, 64
    s_cbranch_scc1 ut_cmb
    v_add_u32 v{vH}, s{sHBUF}, v{vL16}
    s_sub_u32 s{sHBUF}, 40960, s{sHBUF}
    s_add_u32 s{sHOFF}, s{sHOFF}, 40960
    s_cmp_ge_u32 s{sSTEP}, 63
    s_cbranch_scc1 ut_nodma
    """)
    dma_h(a, sHOFF, sHBUF)
    a.label("ut_nodma")
    dense_proj(a, vH, False)
    a.nop(4)
    for t in range(4):
        blk, rho = t // 2, t % 2
        for mt in range(2):
            b = TACC + (t*2+mt)*4
            for half in range(2):
                a(f"v_cvt_pk_bf16_f32 v{BX2 + 8*blk + 4*mt + 2*half + rho}, v{b+2*half}, v{b+2*half+1}")
    for q in range(4):
        a(f"buffer_store_dwordx4 {vr(BX2+4*q,4)}, v{vL16}, {WS}, s{sUXW} offen offset:{q*1024} sc1")
    a(f"""
    s_add_u32 s{sUXW}, s{sUXW}, {80*16384}
    s_waitcnt vmcnt(0)
    s_barrier
    s_cmp_lg_u32 s{sW}, 3
    s_cbranch_scc1 ut_cmb
    s_add_u32 s40, s{sSTEP}, 1
    v_mov_b32 v122, s40
    s_mov_b64 exec, 1
    buffer_store_dword v122, off, {WS}, s{sFT} sc1
    s_mov_b64 exec, -1
    """)
    a.label("ut_cmb")
    a(f"""
    s_cmp_lt_u32 s{sSTEP}, {LOOK}
    s_cbranch_scc1 ut_next
    s_sub_u32 s{sNEED}, s{sSTEP}, {LOOK-1}
    """)
    wait_flag(a, sFM, sNEED, sSEEN, 122, sleep=16)
    for q in range(4):
        a(f"buffer_load_dwordx4 {vr(BX2+4*q,4)}, v{vL16}, {WS}, s{sUXR} offen offset:{q*1024} sc1")
    a(f"buffer_load_ushort v190, v{vXA}, {XS}, s{sXO} offen")
    mem_proj(a, [0, 1, 2, 3], sMEM, 122, sleep=8)
    a.nop(4)
    combine_pair(a, 0, 1, BM2, BM2+2)
    combine_pair(a, 2, 3, BM2+1, BM2+3)
    a.label("ut_ppoll")
    a(f"s_mov_b32 s40, s{sPB}")
    for rg in range(4):
        p_loads(a, PF2[rg], vPA, vPB, 40)
        a(f"s_add_u32 s40, s40, {PB_RG}")
    a("v_mov_b32 v122, 0")
    for rg in range(4):
        ca = 16 + 8 * rg
        for r in range(8):
            a(f"v_mov_b32 v{ca+r}, 0")
        a(f"s_waitcnt vmcnt({18-6*rg})")
        p_combine(a, PF2[rg], BX2, BM2, ca, 122)
    a("v_cmp_eq_u32 vcc, -1, v122")
    poll_fail(a, "ut_ppoll", sleep=16)
    a.nop(6)
    for rg in range(4):
        red_write(a, 16 + 8*rg, vWr, rg * 2048)
    a(f"""
    s_waitcnt lgkmcnt(0)
    s_barrier
    ds_read_b128 v[124:127], v{vRd}
    ds_read_b128 v[112:115], v{vRd} offset:16
    v_lshlrev_b32 v190, 16, v190
    s_add_u32 s40, s{sXO}, 0x{WS_X1:x}
    s_waitcnt lgkmcnt(0)
    v_add_f32 v124, v124, v125
    v_add_f32 v126, v126, v127
    v_add_f32 v112, v112, v113
    v_add_f32 v114, v114, v115
    v_add_f32 v124, v124, v126
    v_add_f32 v112, v112, v114
    v_add_f32 v124, v124, v112
    v_cvt_pk_bf16_f32 v124, v124, v124
    v_and_b32 v124, 0xffff0000, v124
    v_mul_f32 v124, v124, v{vGA}
    v_cvt_pk_bf16_f32 v124, v124, v124
    v_and_b32 v124, 0xffff0000, v124
    v_add_f32 v124, v124, v190
    s_nop 1
    v_mov_b32_dpp v125, v124 quad_perm:[1,0,3,2] row_mask:0xf bank_mask:0xf
    v_cvt_pk_bf16_f32 v124, v124, v125
    buffer_store_dword v124, v189, {WS}, s40 offen
    s_barrier
    s_add_u32 s{sMEM}, s{sMEM}, {MEM_STEP}
    s_add_u32 s{sPB}, s{sPB}, {PB_STEP}
    s_add_u32 s{sUXR}, s{sUXR}, {80*16384}
    s_add_u32 s{sXO}, s{sXO}, {32*1280}
    """)
    a.label("ut_next")
    a(f"""
    s_add_u32 s{sSTEP}, s{sSTEP}, 1
    s_cmp_lt_u32 s{sSTEP}, {64+LOOK}
    s_cbranch_scc1 ut_loop
    """)
    a.label("r_end")
    a("s_endpgm")
    return (L, 256, 256, 131072, kernel_desc(L, 512, 256))
```

```python
import sys
from gen_common import *
from gen_prep import gen_prep
from gen_ln import gen_ln

HEADER = open('cdna_kernels/' + NAME + '.s.ref').read().split('; Override launch geometry')[0]


def build(stages):
    a = Asm()
    ks = []
    ks.append(gen_prep(a))
    ks.append(gen_ln(a, "ln1_kernel", False, 0, 0, 1, WS_H1F, True))
    if 'r' in stages:
        from gen_r import gen_r
        ks.append(gen_r(a))
    if 'ffn' in stages:
        from gen_ffn import gen_ffn1, gen_ffn2
        ks.append(gen_ln(a, "ln2_kernel", True, WS_X1, 3, 4, WS_H2F, False))
        ks.append(gen_ffn1(a))
        ks.append(gen_ffn2(a))
    out = HEADER
    for (L, grid, block, lds, desc) in ks:
        out += f"; @launch kernel={L} grid=({grid},1,1) block=({block},1,1) lds={lds}\n"
    out += '.amdgcn_target "amdgcn-amd-amdhsa--gfx950"\n.text\n'
    out += a.text()
    out += '.section .rodata,"a"\n'
    for (L, grid, block, lds, desc) in ks:
        out += desc
    return out


if __name__ == "__main__":
    stages = sys.argv[2].split(',') if len(sys.argv) > 2 else ['r', 'ffn']
    open(sys.argv[1], 'w').write(build(stages))
```

```python
NAME = "adaLN_cond__memory_aug_recurrent_mem_tr__swiglu_ffn__prompt"

S, D, H, E, M, SEG, NSEG, F = 2048, 640, 32, 128, 8, 32, 64, 1728

KA_X, KA_MEM0, KA_WQ, KA_WK, KA_WV, KA_WO = 0, 8, 16, 24, 32, 40
KA_WG, KA_WU, KA_WD, KA_C, KA_WMOD = 64, 72, 80, 88, 96
KA_OUT, KA_DBG, KA_WS = 104, 112, 120

WS_SIZE = 0x10000000
WS_MOD = 0x00000000
WS_FLAGS = 0x00010000
FLAGS_BYTES = 0x10000
MEM_STEP = 20480
WS_MEM = 0x00100000
WS_PM = WS_MEM + 64 * MEM_STEP
PB_RG = 32 * 640
WS_UM = WS_PM + 64 * PB_RG
UM_STEP = 32 * 10240
INIT_UNITS = (63 * MEM_STEP + 64 * PB_RG + 8 * UM_STEP) // 4096
WS_PT = 0x00800000
PT_STEP = 4 * PB_RG
WS_KM = 0x00E00000
WS_H1F = 0x02400000
WS_X1 = 0x02800000
WS_H2F = 0x02C00000
WS_ACT = 0x03000000
WS_KX = 0x03800000
WS_QX = 0x04800000
WS_WVO = 0x06000000
WS_UX = 0x08000000
FL_MEM, FL_T, FL_DOOR, FL_VO, FL_UF, FL_KM, FL_A, FL_C, FL_L, FL_F1 = 0, 1, 40, 64, 96, 176, 208, 240, 260, 296
WS_CRA = 0x06000000
CRA_SLOT = 40 * 16384
WS_CRB = 0x06200000
CRB_SLOT = 8 * 16384
CRB_DOOR = 4 * CRB_SLOT
WS_UMC = 0x06800000
FL_CN = 400
FL_CC = 330
WS_ATT = 0x01400000
NC = 25
SENT0 = 60
UX_STEP = 32 * 40960


def flag(idx):
    return WS_FLAGS + idx * 128


PI16 = [0, 1, 8, 9, 2, 3, 10, 11, 4, 5, 12, 13, 6, 7, 14, 15]


class Asm:
    def __init__(self):
        self.lines = []
        self.uid = 0

    def __call__(self, s):
        for ln in s.strip("\n").split("\n"):
            self.lines.append("    " + ln.strip() if ln.strip() and not ln.strip().endswith(":") else ln.strip())

    def label(self, name):
        self.lines.append(name + ":")

    def newlabel(self, base="L"):
        self.uid += 1
        return f"{base}_{self.uid}"

    def comment(self, s):
        self.lines.append("    ; " + s)

    def nop(self, n):
        while n > 0:
            k = min(n, 16)
            self.lines.append(f"    s_nop {k-1}")
            n -= k

    def text(self):
        return "\n".join(self.lines) + "\n"


def vr(b, n=1):
    return f"v{b}" if n == 1 else f"v[{b}:{b+n-1}]"


def ar(b, n=1):
    return f"a{b}" if n == 1 else f"a[{b}:{b+n-1}]"


def sr(b, n=1):
    return f"s{b}" if n == 1 else f"s[{b}:{b+n-1}]"


def srd(a, sbase, sptr, nbytes):
    a(f"s_mov_b32 s{sbase}, s{sptr}")
    a(f"s_and_b32 s{sbase+1}, s{sptr+1}, 0xffff")
    a(f"s_mov_b32 s{sbase+2}, 0x{nbytes:x}")
    a(f"s_mov_b32 s{sbase+3}, 0x00020000")


def kernel_header(a, label):
    a.lines.append(f".globl {label}")
    a.lines.append(".p2align 8")
    a.lines.append(f".type {label},@function")
    a.label(label)


def kernel_desc(label, vgpr, accum, sgpr=102):
    return f""".p2align 6
.amdhsa_kernel {label}
  .amdhsa_next_free_vgpr {vgpr}
  .amdhsa_next_free_sgpr {sgpr}
  .amdhsa_accum_offset {accum}
  .amdhsa_group_segment_fixed_size 0
  .amdhsa_kernarg_size 128
  .amdhsa_user_sgpr_count 2
  .amdhsa_user_sgpr_kernarg_segment_ptr 1
  .amdhsa_system_sgpr_workgroup_id_x 1
  .amdhsa_float_denorm_mode_32 3
.end_amdhsa_kernel
"""
```

```python
from gen_common import *
from gen_r import *

NG = 1


def rnd2(a, x0, x1, t):
    a(f"v_cvt_pk_bf16_f32 v{t}, v{x0}, v{x1}")
    a(f"v_lshlrev_b32 v{x0}, 16, v{t}")
    a(f"v_and_b32 v{x1}, 0xffff0000, v{t}")


def gen_phase2(a):
    sG, sJ, sSEG, sCNT, sFL, sFO = 31, 32, 33, 34, 35, 36
    vF = 9
    a.label("role_f")
    a(f"""
    s_load_dwordx4 s[64:67], s[0:1], {KA_WG}
    s_load_dwordx2 s[68:69], s[0:1], {KA_WD}
    s_load_dwordx2 s[70:71], s[0:1], {KA_OUT}
    v_lshlrev_b32 v{vF}, 7, v{vLANE}
    s_mov_b32 s45, 0x{flag(FL_MEM):x}
    s_mov_b32 s46, 1
    s_mov_b32 s47, 0
    s_waitcnt lgkmcnt(0)
    """)
    wait_flag(a, 45, 46, 47, 3, sleep=16)
    a(f"""
    s_cmp_ge_u32 s{sID}, 239
    s_cbranch_scc1 role_f2
    """)
    a(f"""
    s_mov_b32 s{sG}, 0
    s_sub_u32 s{sJ}, s{sID}, 212
    s_cmp_ge_u32 s{sW}, 2
    s_cselect_b32 s72, s66, s64
    s_cselect_b32 s73, s67, s65
    """)
    srd(a, 16, 72, D * F * 2)
    a(f"""
    v_lshrrev_b32 v10, 3, v{vLANE}          ; r8
    v_and_b32 v11, 7, v{vLANE}
    v_bfe_u32 v12, v10, 1, 1
    s_and_b32 s40, s{sW}, 1
    s_lshl_b32 s41, s40, 1
    v_or_b32 v12, s41, v12                  ; f2 = b1 | b3<<1
    v_lshlrev_b32 v12, 1, v12
    v_xor_b32 v11, v11, v12
    v_lshlrev_b32 v11, 4, v11
    s_lshl_b32 s41, s40, 3
    v_add_u32 v10, s41, v10
    v_mul_u32_u24 v10, {F*2}, v10
    v_add_u32 v11, v10, v11
    s_lshl_b32 s42, s{sJ}, 7                ; soffset
    s_lshr_b32 s43, s{sW}, 1
    s_mul_i32 s43, s43, 40960
    s_lshl_b32 s41, s41, 7
    s_add_u32 s43, s43, s41
    v_lshrrev_b32 v12, 4, v{vLANE}          ; g
    v_bfe_u32 v13, v{vLANE}, 2, 2           ; r
    v_and_b32 v14, 3, v{vLANE}              ; c
    v_lshl_add_u32 v15, v12, 3, v13
    v_lshlrev_b32 v15, 7, v15
    v_lshl_add_u32 v15, v14, 3, v15
    v_lshrrev_b32 v13, 1, v13
    v_and_b32 v12, 1, v12
    v_lshl_or_b32 v13, v12, 1, v13
    v_lshl_or_b32 v15, v13, 5, v15
    s_lshl_b32 s41, s40, 6                  ; (2fp)<<5
    v_xor_b32 v16, s41, v15
    v_xor_b32 v17, 32, v16
    v_add_u32 v18, 40960, v16
    v_add_u32 v19, 40960, v17
    """)
    for ph in range(2):
        a("s_mov_b32 s44, s43")
        for q in range(20):
            a(f"""
            s_mov_b32 m0, s44
            s_add_u32 s44, s44, 2048
            buffer_load_dwordx4 v11, s[16:19], s42 offen lds
            s_add_u32 s42, s42, {16*F*2}
            """)
        a("s_waitcnt vmcnt(0)")
        a("s_barrier")
        for ksl in range(10):
            for t in range(4):
                for j in range(2):
                    idx = (t * 20 + ph*10 + ksl) * 4 + 2*j
                    dst = ar(idx, 2) if idx < 256 else vr(192 + idx - 256, 2)
                    a(f"ds_read_b64_tr_b16 {dst}, v{16+t} offset:{ksl*4096+j*512}")
            a("s_waitcnt lgkmcnt(0)")
        a("s_barrier")
    sHOFF, sHBUF, sOUT, sPFD = 37, 38, 39, 46
    vH = 14
    dma_h_setup(a)
    a(f"""
    s_mov_b32 s{sSEG}, s{sG}
    s_mov_b32 s{sCNT}, 0
    s_mov_b32 s{sFL}, 0x{flag(FL_L):x}
    s_lshl_b32 s{sFO}, s{sG}, 5
    s_add_u32 s{sFO}, s{sFO}, s{sJ}
    s_lshl_b32 s{sFO}, s{sFO}, 7
    s_lshl_b32 s40, s{sW}, 2
    s_add_u32 s{sFO}, s{sFO}, s40
    s_add_u32 s{sFO}, s{sFO}, 0x{flag(FL_F1):x}
    s_mul_i32 s{sHOFF}, s{sG}, 40960
    s_add_u32 s{sHOFF}, s{sHOFF}, 0x{WS_H2F:x}
    s_mov_b32 s{sHBUF}, 0
    s_lshl_b32 s40, s{sG}, 1
    s_lshr_b32 s41, s{sW}, 1
    s_add_u32 s40, s40, s41
    s_mul_i32 s{sOUT}, s40, {54*1024}
    s_lshl_b32 s40, s{sJ}, 1
    s_and_b32 s42, s{sW}, 1
    s_add_u32 s40, s40, s42
    s_lshl_b32 s40, s40, 10
    s_add_u32 s{sOUT}, s{sOUT}, s40
    s_add_u32 s{sOUT}, s{sOUT}, 0x{WS_ACT:x}
    s_mul_i32 s47, s41, 20480
    s_mov_b32 s57, 0xbfb8aa3b
    s_add_u32 s56, s{sSEG}, 1
    """)
    wait_all(a, 32, vF, sFL, 56, 20)
    dma_h(a, sHOFF, sHBUF)
    a.label("f1_loop")
    stamp(a, 0)
    a(f"""
    v_mov_b32 v3, s{sCNT}
    s_add_u32 s40, s{sHBUF}, s47
    v_add_u32 v{vH}, s40, v{vL16}
    s_sub_u32 s{sHBUF}, 40960, s{sHBUF}
    s_add_u32 s{sHOFF}, s{sHOFF}, {NG*40960}
    s_add_u32 s{sSEG}, s{sSEG}, {NG}
    s_add_u32 s56, s{sSEG}, 1
    s_waitcnt vmcnt(0)
    s_mov_b64 exec, 1
    buffer_store_dword v3, off, {WS}, s{sFO} sc1
    s_mov_b32 exec_lo, -1
    s_mov_b32 exec_hi, 0
    v_cmp_gt_u32 vcc, s56, v20
    s_mov_b64 exec, -1
    s_barrier
    """)
    stamp(a, 1)
    HF1, AC1 = 24, 40

    def rd(ks):
        a(f"ds_read_b128 {vr(HF1+(ks%4)*4,4)}, v{vH} offset:{ks*1024}")

    def mm(with_dma):
        for k in range(3):
            rd(k)
        for ks in range(20):
            if ks + 3 < 20:
                rd(ks + 3)
            a(f"s_waitcnt lgkmcnt({min(3, 19-ks)})")
            for t in range(4):
                acc = vr(AC1 + 4*t, 4)
                a(f"v_mfma_f32_16x16x32_bf16 {acc}, {wreg(t,ks)}, {vr(HF1+(ks%4)*4,4)}, {'0' if ks == 0 else acc}")
                if with_dma and t == 1 and ks % 2 == 0:
                    dma_h_one(a)
    a(f"""
    s_mov_b32 s{sPFD}, 0
    s_cbranch_vccnz f1_plain
    s_mov_b32 s{sPFD}, 1
    """)
    dma_h_init(a, sHOFF, sHBUF)
    mm(True)
    a("s_branch f1_epi")
    a.label("f1_plain")
    mm(False)
    a.label("f1_epi")
    stamp(a, 2)
    a(f"""
    s_mov_b32 exec_lo, -1
    s_mov_b32 exec_hi, 0
    buffer_load_dword v20, v{vF}, {WS}, s{sFL} offen sc1
    s_mov_b64 exec, -1
    """)
    a.nop(4)
    O = 60
    for tt in range(2):
        g = AC1 + tt * 4
        u = AC1 + (2 + tt) * 4
        for hf in range(2):
            g0, g1, u0, u1 = g+2*hf, g+2*hf+1, u+2*hf, u+2*hf+1
            rnd2(a, g0, g1, 64)
            rnd2(a, u0, u1, 65)
            a(f"""
            v_mul_f32 v66, s57, v{g0}
            v_mul_f32 v67, s57, v{g1}
            v_exp_f32 v66, v66
            v_exp_f32 v67, v67
            s_nop 0
            v_add_f32 v66, 1.0, v66
            v_add_f32 v67, 1.0, v67
            v_rcp_f32 v66, v66
            v_rcp_f32 v67, v67
            s_nop 0
            v_mul_f32 v{g0}, v{g0}, v66
            v_mul_f32 v{g1}, v{g1}, v67
            """)
            rnd2(a, g0, g1, 64)
            a(f"""
            v_mul_f32 v{g0}, v{g0}, v{u0}
            v_mul_f32 v{g1}, v{g1}, v{u1}
            v_cvt_pk_bf16_f32 v{O+2*tt+hf}, v{g0}, v{g1}
            """)
    a(f"""
    buffer_store_dwordx4 {vr(O,4)}, v{vL16}, {WS}, s{sOUT} offen sc1
    s_add_u32 s{sOUT}, s{sOUT}, {NG*2*54*1024}
    s_add_u32 s{sCNT}, s{sCNT}, 1
    """)
    stamp(a, 3)
    stamp_flush(a, 4, 1)
    a(f"""
    s_add_u32 s{sSTEP}, s{sSTEP}, 1
    s_cmp_ge_u32 s{sSEG}, 64
    s_cbranch_scc1 f1_fin
    s_cmp_eq_u32 s{sPFD}, 1
    s_cbranch_scc1 f1_loop
    v_mov_b32 v3, s{sCNT}
    s_waitcnt vmcnt(0)
    s_mov_b64 exec, 1
    buffer_store_dword v3, off, {WS}, s{sFO} sc1
    s_mov_b64 exec, -1
    """)
    wait_all(a, 32, vF, sFL, 56, 20)
    dma_h(a, sHOFF, sHBUF)
    a("s_branch f1_loop")
    a.label("f1_fin")
    a(f"""
    v_mov_b32 v3, s{sCNT}
    s_waitcnt vmcnt(0)
    s_mov_b64 exec, 1
    buffer_store_dword v3, off, {WS}, s{sFO} sc1
    s_endpgm
    """)

    a.label("role_f2")
    srd(a, 16, 68, D * F * 2)
    srd(a, 20, 70, S * D * 2)
    sKS0 = 37
    a(f"""
    s_sub_u32 s40, s{sID}, 239
    s_mul_i32 s{sG}, s40, 6554
    s_lshr_b32 s{sG}, s{sG}, 16
    s_mul_i32 s41, s{sG}, 10
    s_sub_u32 s{sJ}, s40, s41
    s_mul_i32 s{sKS0}, s{sW}, 13
    s_min_u32 s40, s{sW}, 1
    s_add_u32 s{sKS0}, s{sKS0}, s40
    v_lshrrev_b32 v10, 3, v{vLANE}
    v_and_b32 v11, 7, v{vLANE}
    v_bfe_u32 v12, v10, 1, 2
    v_lshlrev_b32 v12, 1, v12
    v_xor_b32 v11, v11, v12
    v_lshlrev_b32 v11, 4, v11
    v_mul_u32_u24 v10, {D*2}, v10
    v_add_u32 v11, v10, v11
    s_mul_i32 s42, s{sKS0}, {32*D*2}
    s_lshl_b32 s40, s{sJ}, 7
    s_add_u32 s42, s42, s40                 ; soffset
    s_mul_i32 s43, s{sW}, 28672
    v_lshrrev_b32 v12, 4, v{vLANE}          ; g
    v_bfe_u32 v13, v{vLANE}, 2, 2           ; r
    v_and_b32 v14, 3, v{vLANE}              ; c
    v_lshl_add_u32 v15, v12, 2, v13
    v_lshlrev_b32 v15, 7, v15
    v_lshl_add_u32 v15, v14, 3, v15
    v_lshrrev_b32 v13, 1, v13
    v_and_b32 v12, 1, v12
    v_lshl_or_b32 v13, v12, 1, v13
    v_lshl_or_b32 v15, v13, 5, v15
    """)
    for t in range(4):
        a(f"v_xor_b32 v{16+t}, {t<<5}, v15")
        a(f"v_add_u32 v{16+t}, s43, v{16+t}")
    for ph in range(2):
        a("s_mov_b32 s44, s43")
        for q in range(28):
            a(f"""
            s_mov_b32 m0, s44
            s_add_u32 s44, s44, 1024
            buffer_load_dwordx4 v11, s[16:19], s42 offen lds
            s_add_u32 s42, s42, {8*D*2}
            """)
        a("s_waitcnt vmcnt(0)")
        for ksl in range(7):
            for t in range(4):
                for j in range(2):
                    a(f"ds_read_b64_tr_b16 {ar(((ph*7+ksl)*4+t)*4+2*j,2)}, v{16+t} offset:{ksl*4096+j*2048}")
            a("s_waitcnt lgkmcnt(0)")
    a(f"""
    s_cmp_lt_u32 s{sW}, 2
    s_cbranch_scc1 f2_nz
    """)
    for r in range(16):
        a(f"v_accvgpr_write_b32 a{r}, 0")
    a.label("f2_nz")
    AF2, AC2, FT = 16, 128, 160
    vWr, vRd, vO, vG = 12, 13, 14, 15
    sACT, sXO = 38, 39
    a(f"""
    s_barrier
    s_mov_b32 s{sSEG}, s{sG}
    s_mov_b32 s{sCNT}, 1
    s_lshr_b32 s{sFL}, s{sG}, 1
    s_lshl_b32 s{sFL}, s{sFL}, 12
    s_add_u32 s{sFL}, s{sFL}, 0x{flag(FL_F1):x}
    s_mul_i32 s{sACT}, s{sG}, {54*1024}
    s_lshl_b32 s40, s{sKS0}, 10
    s_add_u32 s{sACT}, s{sACT}, s40
    s_add_u32 s{sACT}, s{sACT}, 0x{WS_ACT:x}
    s_lshl_b32 s40, s{sW}, 10
    v_add_u32 v{vWr}, s40, v{vL16}
    s_lshl_b32 s40, s{sW}, 12
    v_add_u32 v{vRd}, s40, v{vL16}
    ; output: token = l%16, col = 64j + 16w + 4g
    v_and_b32 v10, 15, v{vLANE}
    v_mul_u32_u24 v10, 1280, v10
    v_lshrrev_b32 v11, 4, v{vLANE}
    v_lshl_add_u32 v{vO}, v11, 3, v10
    v_lshlrev_b32 v11, 4, v11
    s_lshl_b32 s40, s{sJ}, 2
    s_add_u32 s40, s40, s{sW}
    s_lshl_b32 s{sXO}, s40, 5
    s_mul_i32 s41, s{sG}, {16*1280}
    s_add_u32 s{sXO}, s{sXO}, s41
    s_lshl_b32 s40, s40, 6
    s_add_u32 s40, s40, {WS_MOD + 5*2560}
    buffer_load_dwordx4 v[200:203], v11, {WS}, s40 offen
    v_add_u32 v8, 12288, v{vL16}
    """)
    a.label("f2_loop")
    stamp(a, 0)
    wait_all(a, 27, vF, sFL, sCNT, 204, ndw=4)
    stamp(a, 1)
    for ks in range(14):
        off = ks * 1024
        av = [vL16, vL16b, vL16c, 8][off // 4096]
        a(f"buffer_load_dwordx4 {vr(AF2+ks*4,4)}, v{av}, {WS}, s{sACT} offen offset:{off%4096} sc1")
    a(f"""
    s_add_u32 s41, s{sXO}, 0x{WS_X1:x}
    buffer_load_dwordx2 v[208:209], v{vO}, {WS}, s41 offen sc1
    """)
    for ks in range(14):
        a(f"s_waitcnt vmcnt({14-ks})")
        for t in range(4):
            acc = vr(AC2 + t*4, 4)
            a(f"v_mfma_f32_16x16x32_bf16 {acc}, {ar((ks*4+t)*4,4)}, {vr(AF2+ks*4,4)}, {'0' if ks == 0 else acc}")
    stamp(a, 2)
    a.nop(6)
    for t in range(4):
        a(f"ds_write_b128 v{vWr}, {vr(AC2+t*4,4)} offset:{t*4096}")
    a(f"""
    s_waitcnt lgkmcnt(0)
    s_barrier
    """)
    for q in range(4):
        a(f"ds_read_b128 {vr(FT+q*4,4)}, v{vRd} offset:{q*1024}")
    a(f"""
    s_waitcnt vmcnt(0) lgkmcnt(0)
    s_barrier
    """)
    b = FT
    for r in range(4):
        a(f"v_add_f32 v{b+r}, v{b+r}, v{b+4+r}")
        a(f"v_add_f32 v{b+8+r}, v{b+8+r}, v{b+12+r}")
    for r in range(4):
        a(f"v_add_f32 v{b+r}, v{b+r}, v{b+8+r}")
    x = 208
    for hf in range(2):
        d0, d1 = b+2*hf, b+2*hf+1
        rnd2(a, d0, d1, 212)
        a(f"v_mul_f32 v{d0}, v{d0}, v{200+2*hf}")
        a(f"v_mul_f32 v{d1}, v{d1}, v{201+2*hf}")
        rnd2(a, d0, d1, 212)
        a(f"""
        v_lshlrev_b32 v212, 16, v{x+hf}
        v_and_b32 v213, 0xffff0000, v{x+hf}
        v_add_f32 v{d0}, v{d0}, v212
        v_add_f32 v{d1}, v{d1}, v213
        v_cvt_pk_bf16_f32 v{b+4+hf}, v{d0}, v{d1}
        """)
    a(f"buffer_store_dwordx2 {vr(b+4,2)}, v{vO}, s[20:23], s{sXO} offen")
    stamp(a, 3)
    stamp_flush(a, 4, 1)
    a(f"""
    s_add_u32 s{sSTEP}, s{sSTEP}, 1
    s_add_u32 s{sACT}, s{sACT}, {2*54*1024}
    s_add_u32 s{sXO}, s{sXO}, {2*16*1280}
    s_add_u32 s{sCNT}, s{sCNT}, 1
    s_add_u32 s{sSEG}, s{sSEG}, 2
    s_cmp_lt_u32 s{sSEG}, 128
    s_cbranch_scc1 f2_loop
    s_endpgm
    """)
```

```python
from gen_common import *
import os
PSKIP = os.environ.get('PSKIP', '')

N_WVO, N_MOD, N_INIT = 0, 60, 256
PREP_GRID = N_WVO + N_MOD + N_INIT


def gen_prep(a):
    L = "prep_kernel"
    kernel_header(a, L)
    a(f"""
    s_cmp_ge_u32 s2, {PREP_GRID}
    s_cbranch_scc1 prep_end
    s_load_dwordx2 s[4:5], s[0:1], {KA_WS}
    s_load_dwordx2 s[6:7], s[0:1], {KA_WV}
    s_load_dwordx2 s[24:25], s[0:1], {KA_WO}
    s_load_dwordx2 s[26:27], s[0:1], {KA_C}
    s_load_dwordx2 s[28:29], s[0:1], {KA_WMOD}
    s_load_dwordx2 s[30:31], s[0:1], {KA_MEM0}
    s_load_dwordx2 s[60:61], s[0:1], {KA_X}
    s_load_dwordx2 s[62:63], s[0:1], {KA_DBG}
    v_lshrrev_b32 v1, 6, v0
    v_and_b32 v2, 63, v0
    s_waitcnt lgkmcnt(0)
    """)
    srd(a, 8, 4, WS_SIZE)
    srd(a, 12, 6, D * H * E * 2)
    srd(a, 16, 24, D * H * E * 2)
    srd(a, 20, 26, D * 2)
    srd(a, 32, 28, D * 3840 * 2)
    srd(a, 36, 30, M * D * 2)
    srd(a, 64, 60, S * D * 2)
    srd(a, 68, 62, 256)
    a(f"""
    v_readfirstlane_b32 s3, v1
    """)
    a.label("prep_not_wvo")
    if 'm' in PSKIP:
        a("s_endpgm")
    a(f"""
    s_cmp_ge_u32 s2, {N_WVO+N_MOD}
    s_cbranch_scc1 prep_init
    s_sub_u32 s40, s2, {N_WVO}        ; j
    v_and_b32 v3, 7, v0               ; cc
    v_lshrrev_b32 v4, 3, v0           ; rg
    v_mul_u32_u24 v5, 40, v4
    """)
    for i in range(5):
        a(f"buffer_load_dwordx2 {vr(10+2*i,2)}, v5, s[20:23], 0 offen offset:{8*i}")
    a(f"""
    v_mul_u32_u24 v6, {20*7680}, v4
    v_lshl_add_u32 v6, v3, 4, v6
    s_lshl_b32 s41, s40, 7
    """)
    for i in range(20):
        a(f"buffer_load_dwordx4 {vr(64+4*i,4)}, v6, s[32:35], s41 offen")
        a(f"s_add_u32 s41, s41, 7680")
    a("s_waitcnt vmcnt(20)")
    a("s_mov_b32 s42, 0xbfb8aa3b      ; -log2(e)")
    for i in range(10):
        a(f"v_lshlrev_b32 v{30+2*i}, 16, v{10+i}")
        a(f"v_and_b32 v{31+2*i}, 0xffff0000, v{10+i}")
    for i in range(20):
        a(f"v_mul_f32 v{10+i}, s42, v{30+i}")
    for i in range(20):
        a(f"v_exp_f32 v{10+i}, v{10+i}")
    for i in range(20):
        a(f"v_add_f32 v{10+i}, 1.0, v{10+i}")
    for i in range(20):
        a(f"v_rcp_f32 v{10+i}, v{10+i}")
    for i in range(20):
        a(f"v_mul_f32 v{10+i}, v{10+i}, v{30+i}")
    for i in range(10):
        a(f"v_cvt_pk_bf16_f32 v{50}, v{10+2*i}, v{11+2*i}")
        a(f"v_lshlrev_b32 v{30+2*i}, 16, v50")
        a(f"v_and_b32 v{31+2*i}, 0xffff0000, v50")
    for k in range(8):
        a(f"v_mov_b32 v{52+k}, 0")
    for i in range(20):
        a(f"s_waitcnt vmcnt({19-i})")
        for k in range(4):
            a(f"v_lshlrev_b32 v50, 16, v{64+4*i+k}")
            a(f"v_and_b32 v51, 0xffff0000, v{64+4*i+k}")
            a(f"v_fmac_f32 v{52+2*k}, v50, v{30+i}")
            a(f"v_fmac_f32 v{53+2*k}, v51, v{30+i}")
    a(f"""
    v_lshlrev_b32 v7, 8, v4
    v_lshl_add_u32 v7, v3, 5, v7
    ds_write_b128 v7, v[52:55]
    ds_write_b128 v7, v[56:59] offset:16
    s_waitcnt lgkmcnt(0)
    s_barrier
    s_cmp_lg_u32 s3, 0
    s_cbranch_scc1 prep_end
    v_lshlrev_b32 v7, 2, v0
    """)
    for r in range(32):
        a(f"ds_read_b32 v{64+r}, v7 offset:{r*256}")
        if r == 15:
            a("s_waitcnt lgkmcnt(0)")
    a("s_waitcnt lgkmcnt(0)")
    for r in range(1, 32):
        a(f"v_add_f32 v64, v64, v{64+r}")
    a(f"""
    v_cvt_pk_bf16_f32 v64, v64, v64
    v_and_b32 v64, 0xffff0000, v64
    s_lshl_b32 s41, s40, 8
    buffer_store_dword v64, v7, s[8:11], s41 offen offset:{WS_MOD} sc1
    s_cmp_ge_u32 s40, 20
    s_cbranch_scc1 prep_end
    v_mov_b32 v65, 1
    s_waitcnt vmcnt(0)
    s_mov_b64 exec, 1
    buffer_atomic_add v65, off, s[68:71], 0
    s_endpgm
    """)

    a.label("prep_init")
    a(f"""
    s_sub_u32 s40, s2, {N_WVO+N_MOD}
    s_lshl_b32 s16, s40, 3
    s_lshl_b32 s17, s3, 1
    s_add_u32 s16, s16, s17
    v_cmp_gt_u32 vcc, 40, v2
    v_lshlrev_b32 v100, 5, v2
    v_mov_b32 v4, 0x7ffffff0
    v_cndmask_b32 v100, v4, v100, vcc
    v_lshlrev_b32 v101, 6, v2
    v_cndmask_b32 v101, v4, v101, vcc
    v_lshlrev_b32 v102, 9, v2
    v_cndmask_b32 v102, v4, v102, vcc
    s_mov_b64 s[20:21], vcc
    s_mul_i32 s17, s16, 1280
    buffer_load_dwordx4 v[80:83], v100, s[64:67], s17 offen
    buffer_load_dwordx4 v[84:87], v100, s[64:67], s17 offen offset:16
    buffer_load_dwordx4 v[88:91], v100, s[64:67], s17 offen offset:1280
    buffer_load_dwordx4 v[92:95], v100, s[64:67], s17 offen offset:1296
    v_lshlrev_b32 v3, 4, v0
    v_mov_b32 v4, -1
    v_mov_b32 v5, -1
    v_mov_b32 v6, -1
    v_mov_b32 v7, -1
    s_mov_b32 s42, s40
    """)
    a.label("prep_init_loop")
    a(f"""
    s_lshl_b32 s41, s42, 12
    s_cmp_ge_u32 s42, 480
    s_cselect_b32 s43, 0x{WS_CRB + 0x10000 - 480*4096 - WS_CRA:x}, 0
    s_add_u32 s41, s41, s43
    s_add_u32 s41, s41, 0x{WS_CRA:x}
    buffer_store_dwordx4 v[4:7], v3, s[8:11], s41 offen
    s_add_u32 s42, s42, {N_INIT}
    s_cmp_lt_u32 s42, 592
    s_cbranch_scc1 prep_init_loop
    s_cmp_lg_u32 s40, 0
    s_cbranch_scc1 prep_init_1
    v_mov_b32 v8, 0
    v_mov_b32 v9, 0
    v_mov_b32 v10, 0
    v_mov_b32 v11, 0
    s_mov_b32 s41, 0x{WS_FLAGS:x}
    """)
    for k in range(FLAGS_BYTES // 4096):
        a(f"buffer_store_dwordx4 v[8:11], v3, s[8:11], s41 offen")
        a(f"s_add_u32 s41, s41, 4096")
    a(f"""
    s_mov_b32 s41, 0x{WS_CRB + CRB_DOOR:x}
    buffer_store_dwordx4 v[8:11], v3, s[8:11], s41 offen
    s_mov_b32 s41, 0x{WS_CRB + CRB_DOOR + 8192:x}
    buffer_store_dwordx4 v[8:11], v3, s[8:11], s41 offen
    """)
    a("s_branch prep_ln")
    a.label("prep_init_1")
    a(f"""
    s_cmp_lg_u32 s40, 1
    s_cbranch_scc1 prep_ln
    v_and_b32 v8, 7, v0
    v_mul_u32_u24 v8, 1280, v8
    v_lshrrev_b32 v9, 3, v0
    v_lshl_add_u32 v8, v9, 4, v8
    buffer_load_dwordx4 v[12:15], v8, s[36:39], 0 offen
    buffer_load_dwordx4 v[16:19], v8, s[36:39], 0 offen offset:512
    buffer_load_dwordx4 v[20:23], v8, s[36:39], 0 offen offset:1024
    v_mov_b32 v24, 0x7fc07fc0
    s_waitcnt vmcnt(0)
    """)
    for k in range(12):
        a(f"v_cmp_eq_u32 vcc, -1, v{12+k}")
        a.nop(2)
        a(f"v_cndmask_b32 v{12+k}, v{12+k}, v24, vcc")
    a(f"""
    """)
    for cp in range(2):
        for sel in range(2):
            base = WS_CRB + cp*32768 + sel*8192
            a(f"""
            s_mov_b32 s41, 0x{base:x}
            buffer_store_dwordx4 v[12:15], v3, s[8:11], s41 offen
            s_mov_b32 s41, 0x{base+4096:x}
            buffer_store_dwordx4 v[16:19], v3, s[8:11], s41 offen
            """)
    a("""
    s_cmp_ge_u32 s3, 2
    s_cbranch_scc1 prep_ln
    """)
    for cp in range(2):
        for sel in range(2):
            base = WS_CRB + cp*32768 + sel*8192 + 16384
            a(f"""
            s_mov_b32 s41, 0x{base:x}
            buffer_store_dwordx4 v[20:23], v3, s[8:11], s41 offen
            """)
    from gen_ln import wave_sum, bf16r
    a.label("prep_ln")
    X = 16
    a("s_waitcnt vmcnt(0)")
    a("s_mov_b32 s46, 0")
    a.label("prep_nrm")
    for j in range(8):
        a(f"v_lshlrev_b32 v{X+2*j}, 16, v{80+j}")
        a(f"v_and_b32 v{X+2*j+1}, 0xffff0000, v{80+j}")
        a(f"v_mov_b32 v{80+j}, v{88+j}")
        a(f"v_mov_b32 v{104+j}, v{112+j}")
    a(f"v_add_f32 v7, v{X}, v{X+1}")
    for j in range(2, 16):
        a(f"v_add_f32 v7, v7, v{X+j}")
    wave_sum(a, 7)
    a(f"v_mul_f32 v7, 0x3acccccd, v7")
    a(f"v_sub_f32 v64, v{X}, v7")
    a(f"v_mul_f32 v65, v64, v64")
    for j in range(1, 16):
        a(f"v_sub_f32 v64, v{X+j}, v7")
        a(f"v_fmac_f32 v65, v64, v64")
    a(f"v_cndmask_b32 v65, 0, v65, s[20:21]")
    wave_sum(a, 65)
    a(f"v_mul_f32 v65, 0x3acccccd, v65")
    bf16r(a, 65)
    a(f"v_add_f32 v65, 0x3727c5ac, v65")
    bf16r(a, 65)
    a("v_sqrt_f32 v65, v65")
    a.nop(1)
    bf16r(a, 65)
    a("v_rcp_f32 v65, v65")
    bf16r(a, 7)
    for j in range(8):
        x0, x1 = X + 2*j, X + 2*j + 1
        a(f"""
        v_sub_f32 v{x0}, v{x0}, v7
        v_sub_f32 v{x1}, v{x1}, v7
        v_cvt_pk_bf16_f32 v66, v{x0}, v{x1}
        v_lshlrev_b32 v{x0}, 16, v66
        v_and_b32 v{x1}, 0xffff0000, v66
        v_mul_f32 v{x0}, v{x0}, v65
        v_mul_f32 v{x1}, v{x1}, v65
        v_cvt_pk_bf16_f32 v{112+j}, v{x0}, v{x1}
        """)
    a("""
    s_add_u32 s46, s46, 1
    s_cmp_lt_u32 s46, 2
    s_cbranch_scc1 prep_nrm
    s_mov_b32 s45, 100000
    s_cmp_lg_u32 s3, 0
    s_cbranch_scc1 prep_ln_go
    """)
    a.label("prep_ln_wait")
    a(f"""
    buffer_load_dword v7, off, s[68:71], 0 sc1
    s_waitcnt vmcnt(0)
    v_readfirstlane_b32 s44, v7
    s_sub_u32 s45, s45, 1
    s_cmp_eq_u32 s45, 0
    s_cbranch_scc1 prep_ln_go
    s_cmp_ge_u32 s44, 20
    s_cbranch_scc1 prep_ln_go
    s_sleep 4
    s_branch prep_ln_wait
    """)
    a.label("prep_ln_go")
    a(f"""
    s_barrier
    s_mov_b32 s18, {WS_MOD + 1*2560}
    s_mov_b32 s19, {WS_MOD + 0*2560}
    """)
    for k in range(4):
        a(f"buffer_load_dwordx4 {vr(32+4*k,4)}, v101, s[8:11], s18 offen offset:{16*k} sc1")
    for k in range(4):
        a(f"buffer_load_dwordx4 {vr(48+4*k,4)}, v101, s[8:11], s19 offen offset:{16*k} sc1")
    a(f"""
    s_lshr_b32 s22, s16, 4
    s_mul_i32 s22, s22, 20480
    s_and_b32 s23, s16, 15
    s_lshl_b32 s23, s23, 4
    s_add_u32 s22, s22, s23
    s_add_u32 s22, s22, 0x{WS_H1F:x}
    s_waitcnt vmcnt(0)
    """)
    dst = [0, 2, 4, 6, 1, 3, 5, 7]
    for j in range(8):
        a(f"""
        v_add_f32 v{32+2*j}, 1.0, v{32+2*j}
        v_add_f32 v{33+2*j}, 1.0, v{33+2*j}
        v_cvt_pk_bf16_f32 v66, v{32+2*j}, v{33+2*j}
        v_lshlrev_b32 v{32+2*j}, 16, v66
        v_and_b32 v{33+2*j}, 0xffff0000, v66
        """)
        for r in range(2):
            src = 104 + 8*r + j
            a(f"""
            v_lshlrev_b32 v64, 16, v{src}
            v_and_b32 v65, 0xffff0000, v{src}
            v_mul_f32 v64, v64, v{32+2*j}
            v_mul_f32 v65, v65, v{33+2*j}
            v_cvt_pk_bf16_f32 v66, v64, v65
            v_lshlrev_b32 v64, 16, v66
            v_and_b32 v65, 0xffff0000, v66
            v_add_f32 v64, v64, v{48+2*j}
            v_add_f32 v65, v65, v{49+2*j}
            v_cvt_pk_bf16_f32 v{8+8*r+dst[j]}, v64, v65
            """)
    for r in range(2):
        a(f"buffer_store_dwordx4 {vr(8+8*r,4)}, v102, s[8:11], s22 offen offset:{16*r}")
        a(f"buffer_store_dwordx4 {vr(12+8*r,4)}, v102, s[8:11], s22 offen offset:{256+16*r}")
    a.label("prep_end")
    a("s_endpgm")
    return (L, PREP_GRID, 256, 8192, kernel_desc(L, 152, 152))
```

```python
from gen_common import *
import os

P_SLEEP0 = int(os.environ.get("P_SLEEP0", "33"))
P_SLEEP1 = int(os.environ.get("P_SLEEP1", "46"))
U_SLEEPM = int(os.environ.get("U_SLEEPM", "14"))
U_SLEEPP = int(os.environ.get("U_SLEEPP", "12"))
STAMP = int(os.environ.get("STAMP", "0"))
L1FIRST = 0
FORCEPOL = os.environ.get("FORCEPOL", "")
U_SLEEPD = int(os.environ.get("U_SLEEPD", "12"))
DOOR = int(os.environ.get("DOOR", "1"))
C_GAP = int(os.environ.get("C_GAP", "56"))
C_UXTAIL = int(os.environ.get("C_UXTAIL", "16"))
V_SLEEP = int(os.environ.get("V_SLEEP", "8"))
VM_FILL = int(os.environ.get("VM_FILL", "3"))
PKADD = int(os.environ.get("PKADD", "1"))
NOTOK = int(os.environ.get("NOTOK", "0"))

WS, DBG, WQ, WK, XS = "s[8:11]", "s[12:15]", "s[16:19]", "s[20:23]", "s[24:27]"
sW, sID, sSTEP, sBUD = 3, 28, 29, 30
vLANE, vIDX = 2, 4
vL16, vL16b, vL16c = 5, 6, 7
vM8 = 187
sSA, sSB = 98, 99
MEMF = 16
ACC = 56
LDS_T = 0x14000
LDS_R = 0x15000
LDS_ROLE = 0x1F000


def wreg(t, ks, n=4):
    idx = (t * 20 + ks) * 4
    if idx < 256:
        return ar(idx, n)
    return vr(192 + idx - 256, n)


def widx(idx, n=4):
    return ar(idx, n) if idx < 256 else vr(192 + idx - 256, n)


def l16(off):
    return f"v{vL16 + off // 4096}", off % 4096


def poll_fail(a, retry_label, sleep=2):
    ok = a.newlabel("pok")
    a(f"""
    s_cbranch_vccz {ok}
    s_sub_u32 s{sBUD}, s{sBUD}, 1
    s_cmp_lt_i32 s{sBUD}, 0
    s_cbranch_scc1 {ok}
    s_sleep {sleep}
    s_branch {retry_label}
    """)
    a.label(ok)


def wait_flag(a, s_flagoff, s_need, s_seen, vt, sleep=8):
    top = a.newlabel("wf")
    done = a.newlabel("wfd")
    a.label(top)
    a(f"""
    s_cmp_ge_u32 s{s_seen}, s{s_need}
    s_cbranch_scc1 {done}
    buffer_load_dword v{vt}, off, {WS}, s{s_flagoff} sc1
    s_waitcnt vmcnt(0)
    v_readfirstlane_b32 s{s_seen}, v{vt}
    s_nop 3
    s_cmp_ge_u32 s{s_seen}, s{s_need}
    s_cbranch_scc1 {done}
    s_sub_u32 s{sBUD}, s{sBUD}, 1
    s_cmp_lt_i32 s{sBUD}, 0
    s_cbranch_scc1 {done}
    s_sleep {sleep}
    s_branch {top}
    """)
    a.label(done)


def get_pol(a, vt):
    a(f"""
    s_mov_b32 s45, 0x{flag(FL_POL):x}
    s_mov_b32 s46, 1
    s_mov_b32 s{sSA}, 0
    """)
    wait_flag(a, 45, 46, sSA, vt, sleep=4)
    a(f"""
    s_mov_b32 s45, 0x{flag(FL_POL+1):x}
    s_mov_b32 s{sSB}, 0
    """)
    wait_flag(a, 45, 46, sSB, vt, sleep=4)
    a(f"""
    s_and_b32 s{sSA}, s{sSA}, 2
    s_lshl_b32 s{sSA}, s{sSA}, 12
    s_and_b32 s{sSB}, s{sSB}, 2
    s_lshl_b32 s{sSB}, s{sSB}, 12
    v_add_u32 v{vM8}, 16384, v{vL16}
    """)


def mem_loads(a, s_memoff, flag="sc1", start=0):
    for kb in range(start, 10):
        r, o = l16(kb * 1024)
        if kb >= 8:
            r = f"v{vM8}"
        a(f"buffer_load_dwordx4 {vr(MEMF+4*kb,4)}, {r}, {WS}, s{s_memoff} offen offset:{o} {flag}")


DEFERRED = []


def flush_deferred(a):
    for f in DEFERRED:
        f()
    DEFERRED.clear()


def mem_proj(a, tiles, s_memoff, vmax, sleep=1, after_first=None):
    base = a.newlabel("mp")
    mem_loads(a, s_memoff, "" if L1FIRST else "sc1")
    for t in tiles:
        for r in range(4):
            a(f"v_mov_b32 v{ACC+4*t+r}, 0")

    def chk(kb):
        f = MEMF + 4 * kb
        return [f"s_waitcnt vmcnt({9-kb})",
                f"v_max3_u32 v{vmax}, v{f}, v{f+1}, v{f+2}",
                f"v_max_u32 v{vmax}, v{vmax}, v{f+3}\nv_cmp_eq_u32 vcc, -1, v{vmax}"]
    for x in chk(0):
        a(x)
    a(f"s_cbranch_vccnz {base}_r0")
    for kb in range(10):
        f = MEMF + 4 * kb
        a.label(f"{base}_c{kb}")
        if kb == 9 and after_first:
            after_first()
        nxt = chk(kb + 1) if kb < 9 else []
        for n, t in enumerate(tiles):
            a(f"v_smfmac_f32_16x16x64_bf16 {vr(ACC+4*t,4)}, {vr(f,4)}, {wreg(t,2*kb,8)}, v{vIDX}")
            if n < len(nxt):
                a(nxt[n])
        for x in nxt[len(tiles):]:
            a(x)
        if kb < 9:
            a(f"s_cbranch_vccnz {base}_r{kb+1}")

    def ool():
        for kb in range(10):
            a.label(f"{base}_r{kb}")
            a(f"""
            s_sub_u32 s{sBUD}, s{sBUD}, 1
            s_cmp_lt_i32 s{sBUD}, 0
            s_cbranch_scc1 {base}_c{kb}
            s_sleep {sleep}
            """)
            mem_loads(a, s_memoff, "sc1", kb)
            for x in chk(kb):
                a(x)
            a(f"s_cbranch_vccnz {base}_r{kb}")
            a(f"s_branch {base}_c{kb}")
    DEFERRED.append(ool)


def combine_pair(a, t0, t1, d01, d23):
    A, B = ACC + 4 * t0, ACC + 4 * t1
    for r in range(4):
        a(f"v_permlane32_swap_b32 v{A+r}, v{B+r}")
    if PKADD:
        for r in (0, 2):
            a(f"v_pk_add_f32 v[{A+r}:{A+r+1}], v[{A+r}:{A+r+1}], v[{B+r}:{B+r+1}]")
    else:
        for r in range(4):
            a(f"v_add_f32 v{A+r}, v{A+r}, v{B+r}")
    a(f"v_cvt_pk_bf16_f32 v{d01}, v{A}, v{A+1}")
    a(f"v_cvt_pk_bf16_f32 v{d23}, v{A+2}, v{A+3}")


def load_wqk(a, mats=(WQ, WK)):
    a.comment("---- load Wq/Wk fragments")
    a(f"""
    v_lshrrev_b32 v10, 4, v{vLANE}          ; r = lane/16
    v_and_b32 v11, 15, v{vLANE}             ; chunk'
    v_and_b32 v12, 1, v10
    s_lshl_b32 s40, s{sW}, 1
    v_or_b32 v12, s40, v12                  ; f = (r&1)|(w<<1)
    v_lshlrev_b32 v12, 1, v12
    v_xor_b32 v11, v11, v12
    v_lshlrev_b32 v11, 4, v11
    s_lshl_b32 s40, s{sW}, 2
    v_add_u32 v12, s40, v10                 ; 4w+r
    v_lshl_add_u32 v11, v12, 13, v11
    s_lshl_b32 s41, s{sID}, 8
    s_lshl_b32 s42, s{sW}, 10
    v_bfe_u32 v12, v{vLANE}, 2, 2           ; r
    v_and_b32 v13, 3, v{vLANE}              ; c
    v_lshrrev_b32 v14, 1, v10               ; g>>1
    v_lshlrev_b32 v14, 4, v14               ; 16*(g>>1)
    v_and_b32 v15, 1, v10                   ; g&1
    v_lshl_add_u32 v14, v15, 2, v14         ; +4*(g&1)
    v_and_b32 v16, 1, v12
    v_add_u32 v14, v14, v16                 ; +(r&1)
    v_lshrrev_b32 v17, 1, v12               ; r>>1
    v_lshl_add_u32 v14, v17, 3, v14         ; +8*(r>>1)
    v_lshlrev_b32 v14, 8, v14
    v_lshl_add_u32 v14, v13, 3, v14         ; + c*8
    v_lshl_or_b32 v16, v15, 1, v16
    v_lshl_or_b32 v16, v17, 2, v16          ; f
    v_lshl_or_b32 v14, v16, 5, v14
    s_lshl_b32 s40, s{sW}, 6                ; (2w)<<5
    v_xor_b32 v18, s40, v14                 ; tile 2w
    v_xor_b32 v19, 32, v18                  ; tile 2w+1
    v_add_u32 v20, 0x10000, v18
    v_add_u32 v21, 0x10000, v19
    """)

    nm = len(mats)

    def dma(cn):
        buf = cn % 4
        for mat, sd in enumerate(mats):
            for q in range(4):
                a(f"""
                s_add_u32 s43, s42, {buf*32768 + mat*16384 + q*4096}
                s_mov_b32 m0, s43
                s_add_u32 s44, s41, {(cn*64+16*q)*8192}
                buffer_load_dwordx4 v11, {sd}, s44 offen lds
                """)
    for cn in range(3):
        dma(cn)
    for cn in range(10):
        later = min(2, 9 - cn)
        a(f"s_waitcnt vmcnt({4*nm*later})")
        a("s_barrier")
        if cn + 3 < 10:
            dma(cn + 3)
        buf = cn % 4
        for mat in range(nm):
            for tt in range(2):
                for ksl in range(2):
                    for j in range(2):
                        idx = ((mat*2+tt) * 20 + cn*2 + ksl) * 4 + 2*j
                        av = 18 + tt + (2 if buf >= 2 else 0)
                        a(f"ds_read_b64_tr_b16 {widx(idx,2)}, v{av} offset:{(buf&1)*32768 + mat*16384 + ksl*8192 + j*512}")
            a("s_waitcnt lgkmcnt(0)")
    a("s_barrier")


def load_wo(a, sd):
    a.comment("---- load Wo fragments")
    for q in range(5):
        a(f"""
        v_add_u32 v10, {64*q}, v{vLANE}
        v_mul_u32_u24 v11, 3277, v10
        v_lshrrev_b32 v11, 16, v11            ; row = q/20
        v_mul_u32_u24 v12, 20, v11
        v_sub_u32 v10, v10, v12               ; chunk
        v_mul_u32_u24 v11, 1280, v11
        v_lshl_add_u32 v{16+q}, v10, 4, v11
        """)
    a(f"""
    s_mul_i32 s41, s{sID}, 163840
    s_mul_i32 s40, s{sW}, 320
    s_add_u32 s41, s41, s40                 ; soffset
    s_mul_i32 s42, s{sW}, 20480
    v_lshrrev_b32 v10, 4, v{vLANE}          ; g
    v_bfe_u32 v11, v{vLANE}, 2, 2           ; r
    v_lshl_add_u32 v10, v10, 2, v11
    v_mul_u32_u24 v10, 320, v10
    v_and_b32 v11, 3, v{vLANE}
    v_lshl_add_u32 v10, v11, 3, v10
    v_add_u32 v21, s42, v10
    """)
    for half in range(2):
        a("s_mov_b32 s43, s42")
        for blk in range(4):
            for q in range(5):
                a(f"""
                s_mov_b32 m0, s43
                s_add_u32 s43, s43, 1024
                buffer_load_dwordx4 v{16+q}, {sd}, s41 offen lds
                """)
            a(f"s_add_u32 s41, s41, {16*1280}")
        a("s_waitcnt vmcnt(0)")
        for jt in range(10):
            for kl in range(2):
                for j in range(2):
                    idx = 160 + (jt*4 + half*2 + kl) * 4 + 2*j
                    a(f"ds_read_b64_tr_b16 {widx(idx,2)}, v21 offset:{(32*kl+16*j)*320 + jt*32}")
            if jt % 2 == 1:
                a("s_waitcnt lgkmcnt(0)")
    a("s_barrier")


def load_wvo(a):
    a.comment("---- load Wvo fragments (linear)")
    a(f"""
    s_lshl_b32 s40, s{sID}, 2
    s_add_u32 s40, s40, s{sW}
    s_mul_i32 s40, s40, 81920
    s_add_u32 s40, s40, 0x{WS_WVO:x}
    """)
    for f in range(80):
        a(f"buffer_load_dwordx4 {wreg(f//20, f%20)}, v{vL16}, {WS}, s40 offen offset:{(f%4)*1024}")
        if f % 4 == 3:
            a("s_add_u32 s40, s40, 4096")
        if f % 40 == 39:
            a("s_waitcnt vmcnt(20)" if f < 79 else "s_waitcnt vmcnt(0)")


vHG = 15


def dma_h_setup(a):
    a(f"""
    v_and_b32 v10, 15, v{vLANE}
    v_mul_u32_u24 v10, 1280, v10
    v_lshrrev_b32 v{vHG}, 4, v{vLANE}
    v_lshl_add_u32 v{vHG}, v{vHG}, 4, v10
    """)


def dma_h_init(a, s_hoff, s_buf):
    a(f"""
    s_mul_i32 s43, s{sW}, 10240
    s_add_u32 s43, s43, s{s_buf}
    s_lshr_b32 s44, s{sW}, 1
    s_mul_i32 s44, s44, 20480
    s_and_b32 s45, s{sW}, 1
    s_mul_i32 s45, s45, 640
    s_add_u32 s44, s44, s45
    s_add_u32 s44, s44, s{s_hoff}
    """)


def dma_h_one(a):
    a(f"""
    s_mov_b32 m0, s43
    s_add_u32 s43, s43, 1024
    buffer_load_dwordx4 v{vHG}, {WS}, s44 offen sc1 lds
    s_add_u32 s44, s44, 64
    """)


def dmal_init(a, s_hoff, s_buf):
    a(f"""
    s_mul_i32 s43, s{sW}, 10240
    s_add_u32 s44, s43, s{s_hoff}
    s_add_u32 s43, s43, s{s_buf}
    """)


def dmal_one(a):
    a(f"""
    s_mov_b32 m0, s43
    s_add_u32 s43, s43, 1024
    buffer_load_dwordx4 v{vL16}, {WS}, s44 offen lds
    s_add_u32 s44, s44, 1024
    """)


def dma_h(a, s_hoff, s_buf):
    dma_h_init(a, s_hoff, s_buf)
    for k in range(10):
        dma_h_one(a)


HF = 104
TACC = 72


def dense_proj(a, vH, transposed, hook=None, tiles=(0, 1, 2, 3)):
    def rd(ks):
        st = HF + (ks % 3) * 8
        for mt in range(2):
            a(f"ds_read_b128 {vr(st+4*mt,4)}, v{vH} offset:{mt*20480+ks*1024}")
    rd(0)
    rd(1)
    for ks in range(20):
        if ks + 2 < 20:
            rd(ks + 2)
            a("s_waitcnt lgkmcnt(4)")
        elif ks + 1 < 20:
            a("s_waitcnt lgkmcnt(2)")
        else:
            a("s_waitcnt lgkmcnt(0)")
        st = HF + (ks % 3) * 8
        for n, t in enumerate(tiles):
            for mt in range(2):
                acc = vr(TACC + (t*2+mt)*4, 4)
                c = "0" if ks == 0 else acc
                if transposed:
                    a(f"v_mfma_f32_16x16x32_bf16 {acc}, {wreg(t,ks)}, {vr(st+4*mt,4)}, {c}")
                else:
                    a(f"v_mfma_f32_16x16x32_bf16 {acc}, {vr(st+4*mt,4)}, {wreg(t,ks)}, {c}")
            if n == len(tiles) // 2 - 1 and hook:
                hook(ks)


def round_scale(a, xs, tmp, s_scale):
    def rnd():
        for k in range(0, len(xs), 2):
            x0 = xs[k]
            x1 = xs[k+1] if k + 1 < len(xs) else xs[k]
            a(f"v_cvt_pk_bf16_f32 v{tmp+k//2}, v{x0}, v{x1}")
        for k in range(0, len(xs), 2):
            a(f"v_lshlrev_b32 v{xs[k]}, 16, v{tmp+k//2}")
            if k + 1 < len(xs):
                a(f"v_and_b32 v{xs[k+1]}, 0xffff0000, v{tmp+k//2}")
    rnd()
    for x in xs:
        a(f"v_mul_f32 v{x}, s{s_scale}, v{x}")
    rnd()


def xlane(a, op, v, t, with8):
    if with8:
        a.nop(2)
        a(f"{op}_dpp v{v}, v{v}, v{v} row_ror:8 row_mask:0xf bank_mask:0xf")
    for sw in ("v_permlane16_swap_b32", "v_permlane32_swap_b32"):
        a(f"v_mov_b32 v{t}, v{v}")
        a.nop(2)
        a(f"{sw} v{v}, v{t}")
        a(f"{op} v{v}, v{v}, v{t}")


def softmax(a, xs, vm, vt, s_log2e, with8):
    a(f"v_max3_f32 v{vm}, v{xs[0]}, v{xs[1]}, v{xs[2]}")
    k = 3
    while k < len(xs):
        if k + 1 < len(xs):
            a(f"v_max3_f32 v{vm}, v{vm}, v{xs[k]}, v{xs[k+1]}")
            k += 2
        else:
            a(f"v_max_f32 v{vm}, v{vm}, v{xs[k]}")
            k += 1
    xlane(a, "v_max_f32", vm, vt, with8)
    for x in xs:
        a(f"v_sub_f32 v{x}, v{x}, v{vm}")
    for x in xs:
        a(f"v_mul_f32 v{x}, s{s_log2e}, v{x}")
    for x in xs:
        a(f"v_exp_f32 v{x}, v{x}")
    a(f"v_add_f32 v{vm}, v{xs[0]}, v{xs[1]}")
    for x in xs[2:]:
        a(f"v_add_f32 v{vm}, v{vm}, v{x}")
    xlane(a, "v_add_f32", vm, vt, with8)
    a(f"v_rcp_f32 v{vm}, v{vm}")
    a.nop(1)
    for x in xs:
        a(f"v_mul_f32 v{x}, v{x}, v{vm}")


def setup_qk_lds_addrs(a, vW, vR):
    a(f"""
    v_and_b32 v10, 15, v{vLANE}             ; n
    v_lshrrev_b32 v11, 4, v{vLANE}          ; g
    v_lshrrev_b32 v12, 1, v11
    v_lshl_add_u32 v10, v12, 4, v10         ; 16*(g>>1)+n
    s_lshl_b32 s40, s{sW}, 5
    v_add_u32 v10, s40, v10                 ; +32w
    v_lshlrev_b32 v10, 4, v10
    v_and_b32 v12, 1, v11
    v_lshl_add_u32 v10, v12, 3, v10
    v_add_u32 v{vW}, 0x{LDS_T:x}, v10
    v_bfe_u32 v12, v{vLANE}, 2, 2           ; r
    v_lshl_add_u32 v12, v11, 2, v12         ; 4g+r
    v_lshlrev_b32 v12, 4, v12
    v_and_b32 v13, 1, v{vLANE}
    v_lshl_add_u32 v12, v13, 3, v12
    v_add_u32 v{vR}, 0x{LDS_T:x}, v12
    """)


def setup_p_load_addrs(a, vA, vB, vM, wstride=8*640, hstride=10240):
    a(f"""
    v_bfe_u32 v10, v{vLANE}, 3, 1           ; rho
    v_and_b32 v11, 7, v{vLANE}              ; i
    v_lshrrev_b32 v12, 4, v{vLANE}          ; gA
    v_lshrrev_b32 v13, 1, v12               ; gA>>1
    v_and_b32 v14, 1, v12                   ; gA&1
    s_mul_i32 s40, s{sW}, {wstride}
    v_mul_u32_u24 v15, 640, v10
    v_add_u32 v15, s40, v15
    v_lshl_add_u32 v15, v13, 8, v15
    v_lshl_add_u32 v15, v11, 5, v15
    v_lshl_add_u32 v{vA}, v14, 4, v15
    v_lshl_add_u32 v15, v13, 2, v14
    v_mul_u32_u24 v15, 640, v15
    v_add_u32 v15, s40, v15
    v_lshl_add_u32 v15, v10, 6, v15
    v_lshl_add_u32 v15, v11, 3, v15
    v_add_u32 v{vB}, 512, v15
    s_mul_i32 s40, s{sW}, {8*hstride}
    v_mul_u32_u24 v15, {hstride}, v13
    v_add_u32 v15, s40, v15
    v_lshl_add_u32 v15, v14, 7, v15
    v_and_b32 v11, 15, v{vLANE}
    v_lshl_add_u32 v{vM}, v11, 3, v15
    """)


def p_loads(a, PF, vA, vB, s_off):
    for blk in range(2):
        for pi in range(2):
            a(f"buffer_load_dwordx4 {vr(PF+(blk*2+pi)*4,4)}, v{vA}, {WS}, s{s_off} offen offset:{(4*blk+pi)*640} sc1")
    for pi in range(2):
        a(f"buffer_load_dwordx2 {vr(PF+16+2*pi,2)}, v{vB}, {WS}, s{s_off} offen offset:{pi*640} sc1")


def p_combine(a, PF, BX, BM, CA, vmax):
    for blk in range(2):
        for pi in range(2):
            f = PF + (blk*2+pi)*4
            a(f"v_smfmac_f32_16x16x64_bf16 {vr(CA+4*pi,4)}, {vr(f,4)}, {vr(BX+8*blk,8)}, v{vIDX}")
            if vmax is not None:
                a(f"v_max3_u32 v{vmax}, v{vmax}, v{f}, v{f+1}")
                a(f"v_max3_u32 v{vmax}, v{vmax}, v{f+2}, v{f+3}")
    a.nop(2 if vmax is not None else 6)
    for pi in range(2):
        f = PF + 16 + 2*pi
        a(f"v_smfmac_f32_16x16x32_bf16 {vr(CA+4*pi,4)}, {vr(f,2)}, {vr(BM,4)}, v{vIDX}")
        if vmax is not None:
            a(f"v_max3_u32 v{vmax}, v{vmax}, v{f}, v{f+1}")


def setup_red_addrs(a, vWr, vRd):
    a(f"""
    v_and_b32 v10, 15, v{vLANE}             ; n
    v_lshrrev_b32 v11, 4, v{vLANE}          ; g
    v_and_b32 v12, 1, v11
    v_lshlrev_b32 v12, 10, v12              ; 4*(g&1)*256
    v_lshl_add_u32 v12, v10, 5, v12         ; + n*32
    v_lshrrev_b32 v13, 1, v11
    v_lshl_add_u32 v12, v13, 2, v12         ; + (g>>1)*4
    s_lshl_b32 s40, s{sW}, 3
    s_add_u32 s40, s40, 0x{LDS_R:x}
    v_add_u32 v12, s40, v12
    v_mov_b32 v13, 0x{LDS_R+0x2800:x}
    v_cmp_gt_u32 vcc, 8, v10
    s_nop 1
    v_cndmask_b32 v{vWr}, v13, v12, vcc
    v_lshlrev_b32 v12, 5, v{vLANE}
    v_add_u32 v{vRd}, 0x{LDS_R:x}, v12
    """)


def red_write(a, CA, vWr, off):
    for r in range(4):
        a(f"v_add_f32_dpp v{CA+r}, v{CA+4+r}, v{CA+r} row_ror:8 row_mask:0xf bank_mask:0xf")
    for r in range(4):
        a(f"ds_write_b32 v{vWr}, v{CA+r} offset:{off + r*256}")


LB = 140
L_SRC, L_DST, L_M, L_V, L_T, L_T2 = LB, LB+1, LB+2, LB+3, LB+4, LB+5
L_RAW, L_OUT, L_X, L_SC, L_SH = LB+8, LB+16, LB+24, LB+40, LB+56


def ln_wave_sum(a, v):
    for ctrl in ["quad_perm:[1,0,3,2]", "quad_perm:[2,3,0,1]", "row_half_mirror", "row_mirror"]:
        a.nop(2)
        a(f"v_add_f32_dpp v{v}, v{v}, v{v} {ctrl} row_mask:0xf bank_mask:0xf")
    a.nop(1)
    a(f"v_readlane_b32 s72, v{v}, 0")
    a(f"v_readlane_b32 s73, v{v}, 16")
    a(f"v_readlane_b32 s74, v{v}, 32")
    a.nop(2)
    a(f"v_mov_b32 v{v}, s72")
    a(f"v_add_f32 v{v}, s73, v{v}")
    a(f"v_add_f32 v{v}, s74, v{v}")


def bf16r(a, v):
    a(f"v_cvt_pk_bf16_f32 v{v}, v{v}, v{v}")
    a(f"v_and_b32 v{v}, 0xffff0000, v{v}")


def ln_setup(a, shift_idx, scale_idx, perm):
    a(f"""
    v_cmp_gt_u32 vcc, 40, v{vLANE}
    v_mov_b32 v{L_T}, 0x7ffffff0
    v_lshlrev_b32 v{L_DST}, 4, v{vLANE}
    """)
    if perm:
        a(f"""
        v_lshrrev_b32 v{L_SRC}, 1, v{vLANE}
        v_lshlrev_b32 v{L_SRC}, 5, v{L_SRC}
        v_and_b32 v{L_T2}, 1, v{vLANE}
        v_lshl_add_u32 v{L_SRC}, v{L_T2}, 3, v{L_SRC}
        """)
    else:
        a(f"v_mov_b32 v{L_SRC}, v{L_DST}")
    a(f"""
    v_lshlrev_b32 v{L_T2}, 1, v{L_SRC}
    v_cndmask_b32 v{L_SRC}, v{L_T}, v{L_SRC}, vcc
    v_cndmask_b32 v{L_T2}, v{L_T}, v{L_T2}, vcc
    v_cndmask_b32 v{L_DST}, v{L_T}, v{L_DST}, vcc
    s_mov_b64 s[76:77], vcc
    s_mov_b32 s72, {WS_MOD + scale_idx*2560}
    s_mov_b32 s73, {WS_MOD + shift_idx*2560}
    """)
    for dst, so in ((L_SC, 72), (L_SH, 73)):
        for h in range(2):
            if perm:
                a(f"buffer_load_dwordx2 {vr(dst+8*h,2)}, v{L_T2}, {WS}, s{so} offen offset:{h*1280}")
                a(f"buffer_load_dwordx2 {vr(dst+8*h+4,2)}, v{L_T2}, {WS}, s{so} offen offset:{h*1280+8}")
                a(f"buffer_load_dwordx2 {vr(dst+8*h+2,2)}, v{L_T2}, {WS}, s{so} offen offset:{h*1280+32}")
                a(f"buffer_load_dwordx2 {vr(dst+8*h+6,2)}, v{L_T2}, {WS}, s{so} offen offset:{h*1280+40}")
            else:
                a(f"buffer_load_dwordx4 {vr(dst+8*h,4)}, v{L_T2}, {WS}, s{so} offen offset:{h*1280}")
                a(f"buffer_load_dwordx4 {vr(dst+8*h+4,4)}, v{L_T2}, {WS}, s{so} offen offset:{h*1280+16}")
    a("s_waitcnt vmcnt(0)")
    for j in range(8):
        a(f"v_add_f32 v{L_SC+2*j}, 1.0, v{L_SC+2*j}")
        a(f"v_add_f32 v{L_SC+2*j+1}, 1.0, v{L_SC+2*j+1}")
        a(f"v_cvt_pk_bf16_f32 v{L_T}, v{L_SC+2*j}, v{L_SC+2*j+1}")
        a(f"v_lshlrev_b32 v{L_SC+2*j}, 16, v{L_T}")
        a(f"v_and_b32 v{L_SC+2*j+1}, 0xffff0000, v{L_T}")


def ln_load(a, srd_, s_off, fl, perm, raw=L_RAW, extra=0):
    if perm:
        for h in range(2):
            a(f"buffer_load_dwordx2 {vr(raw+4*h,2)}, v{L_SRC}, {srd_}, s{s_off} offen offset:{extra+h*640} {fl}")
            a(f"buffer_load_dwordx2 {vr(raw+4*h+2,2)}, v{L_SRC}, {srd_}, s{s_off} offen offset:{extra+h*640+16} {fl}")
        return 4
    for h in range(2):
        a(f"buffer_load_dwordx4 {vr(raw+4*h,4)}, v{L_SRC}, {srd_}, s{s_off} offen offset:{extra+h*640} {fl}")
    return 2


def ln_unpack(a, perm, raw=L_RAW):
    pos = [0, 2, 1, 3] if perm else [0, 1, 2, 3]
    for h in range(2):
        for j in range(4):
            d = 4*h + pos[j]
            a(f"v_lshlrev_b32 v{L_X+2*d}, 16, v{raw+4*h+j}")
            a(f"v_and_b32 v{L_X+2*d+1}, 0xffff0000, v{raw+4*h+j}")


def ln_compute_store(a, s_dst, extra=0, out=L_OUT):
    X = L_X
    a(f"v_add_f32 v{L_M}, v{X}, v{X+1}")
    a(f"v_add_f32 v{L_T}, v{X+2}, v{X+3}")
    for j in range(4, 16, 2):
        a(f"v_add_f32 v{L_M}, v{L_M}, v{X+j}")
        a(f"v_add_f32 v{L_T}, v{L_T}, v{X+j+1}")
    a(f"v_add_f32 v{L_M}, v{L_M}, v{L_T}")
    ln_wave_sum(a, L_M)
    a(f"v_mul_f32 v{L_M}, 0x3acccccd, v{L_M}")
    a(f"v_sub_f32 v{L_T}, v{X}, v{L_M}")
    a(f"v_mul_f32 v{L_V}, v{L_T}, v{L_T}")
    for j in range(1, 16):
        t = L_T if j % 2 == 0 else L_T2
        a(f"v_sub_f32 v{t}, v{X+j}, v{L_M}")
        a(f"v_fmac_f32 v{L_V}, v{t}, v{t}")
    a(f"v_cndmask_b32 v{L_V}, 0, v{L_V}, s[76:77]")
    ln_wave_sum(a, L_V)
    a(f"v_mul_f32 v{L_V}, 0x3acccccd, v{L_V}")
    bf16r(a, L_V)
    a(f"v_add_f32 v{L_V}, 0x3727c5ac, v{L_V}")
    bf16r(a, L_V)
    a(f"v_sqrt_f32 v{L_V}, v{L_V}")
    a.nop(1)
    bf16r(a, L_V)
    a(f"v_rcp_f32 v{L_V}, v{L_V}")
    bf16r(a, L_M)
    for j in range(8):
        x0, x1 = X + 2*j, X + 2*j + 1
        a(f"""
        v_sub_f32 v{x0}, v{x0}, v{L_M}
        v_sub_f32 v{x1}, v{x1}, v{L_M}
        v_cvt_pk_bf16_f32 v{L_T}, v{x0}, v{x1}
        v_lshlrev_b32 v{x0}, 16, v{L_T}
        v_and_b32 v{x1}, 0xffff0000, v{L_T}
        v_mul_f32 v{x0}, v{x0}, v{L_V}
        v_mul_f32 v{x1}, v{x1}, v{L_V}
        v_cvt_pk_bf16_f32 v{L_T}, v{x0}, v{x1}
        v_lshlrev_b32 v{x0}, 16, v{L_T}
        v_and_b32 v{x1}, 0xffff0000, v{L_T}
        v_mul_f32 v{x0}, v{x0}, v{L_SC+2*j}
        v_mul_f32 v{x1}, v{x1}, v{L_SC+2*j+1}
        v_cvt_pk_bf16_f32 v{L_T}, v{x0}, v{x1}
        v_lshlrev_b32 v{x0}, 16, v{L_T}
        v_and_b32 v{x1}, 0xffff0000, v{L_T}
        v_add_f32 v{x0}, v{x0}, v{L_SH+2*j}
        v_add_f32 v{x1}, v{x1}, v{L_SH+2*j+1}
        v_cvt_pk_bf16_f32 v{out+j}, v{x0}, v{x1}
        """)
    a(f"buffer_store_dwordx4 {vr(out,4)}, v{L_DST}, {WS}, s{s_dst} offen offset:{extra} sc1")
    a(f"buffer_store_dwordx4 {vr(out+4,4)}, v{L_DST}, {WS}, s{s_dst} offen offset:{extra+640} sc1")


def wait_all(a, nl, vaddr, s_off, s_need, vt, ndw=1, sleep=4):
    top, done = a.newlabel("wa"), a.newlabel("wad")
    a.label(top)
    op = {1: "dword", 4: "dwordx4"}[ndw]
    a(f"""
    s_mov_b32 exec_lo, 0x{(1 << nl) - 1:x}
    s_mov_b32 exec_hi, 0
    buffer_load_{op} {vr(vt, ndw)}, v{vaddr}, {WS}, s{s_off} offen sc1
    s_waitcnt vmcnt(0)
    """)
    if ndw == 4:
        a(f"v_min3_u32 v{vt}, v{vt}, v{vt+1}, v{vt+2}")
        a(f"v_min_u32 v{vt}, v{vt}, v{vt+3}")
    a(f"""
    v_cmp_gt_u32 vcc, s{s_need}, v{vt}
    s_mov_b64 exec, -1
    s_cbranch_vccz {done}
    s_sub_u32 s{sBUD}, s{sBUD}, 1
    s_cmp_lt_i32 s{sBUD}, 0
    s_cbranch_scc1 {done}
    s_sleep {sleep}
    s_branch {top}
    """)
    a.label(done)


WS_TRACE = 0x0F000000


def stamp(a, slot):
    if not STAMP:
        return
    a(f"s_memrealtime s[{80+2*slot}:{81+2*slot}]")


def stamp_flush(a, n, vt):
    if not STAMP:
        return
    skip = a.newlabel("stf")
    a(f"""
    s_cmp_lg_u32 s{sW}, 0
    s_cbranch_scc1 {skip}
    s_waitcnt lgkmcnt(0)
    s_lshl_b32 s96, s{sSTEP}, 5
    s_add_u32 s96, s96, s97
    s_mov_b64 exec, 1
    """)
    for k in range(n):
        a(f"v_mov_b32 v{vt}, s{80+2*k}")
        a(f"buffer_store_dword v{vt}, off, {WS}, s96 offset:{4*k}")
        a.nop(2)
    a(f"v_mov_b32 v{vt}, s{sBUD}")
    a(f"buffer_store_dword v{vt}, off, {WS}, s96 offset:28")
    a("s_mov_b64 exec, -1")
    a.label(skip)


def gen_r(a):
    L = "rec_kernel"
    kernel_header(a, L)
    a(f"""
    s_cmp_ge_u32 s2, 256
    s_cbranch_scc1 r_end
    s_load_dwordx2 s[4:5], s[0:1], {KA_WS}
    s_load_dwordx2 s[6:7], s[0:1], {KA_DBG}
    s_load_dwordx4 s[32:35], s[0:1], {KA_WQ}
    s_load_dwordx2 s[36:37], s[0:1], {KA_X}
    v_lshrrev_b32 v1, 6, v0
    v_and_b32 v{vLANE}, 63, v0
    s_waitcnt lgkmcnt(0)
    """)
    srd(a, 8, 4, WS_SIZE)
    srd(a, 12, 6, 256)
    srd(a, 16, 32, D * H * E * 2)
    srd(a, 20, 34, D * H * E * 2)
    srd(a, 24, 36, S * D * 2)
    a(f"""
    v_readfirstlane_b32 s{sW}, v1
    v_lshlrev_b32 v{vL16}, 4, v{vLANE}
    v_add_u32 v{vL16b}, 4096, v{vL16}
    v_add_u32 v{vL16c}, 8192, v{vL16}
    v_mov_b32 v{vIDX}, 0x4444
    v_mov_b32 v10, 0xeeee
    v_and_b32 v11, 8, v{vLANE}
    v_cmp_ne_u32 vcc, 0, v11
    s_mov_b32 s{sBUD}, 200000
    v_mov_b32 v9, 0x{LDS_ROLE:x}
    v_cndmask_b32 v{vIDX}, v{vIDX}, v10, vcc
    s_cmp_lg_u32 s{sW}, 0
    s_cbranch_scc1 r_role_wait
    s_getreg_b32 s40, hwreg(HW_REG_XCC_ID)
    s_and_b32 s40, s40, 7
    s_mov_b64 exec, 1
    s_mov_b32 s43, s40
    s_mov_b32 s48, 0
    """)
    a.label("r_try")
    a(f"""
    s_lshl_b32 s45, s43, 2
    v_mov_b32 v10, 1
    buffer_atomic_add v10, off, {DBG}, s45 sc0
    s_waitcnt vmcnt(0)
    v_readfirstlane_b32 s41, v10
    s_nop 3
    s_cmp_lt_u32 s41, 32
    s_cbranch_scc1 r_got
    s_add_u32 s48, s48, 1
    s_sub_u32 s43, s48, 1
    s_mov_b32 s42, 999
    s_cmp_ge_u32 s43, 8
    s_cbranch_scc1 r_role_done
    s_branch r_try
    """)
    a.label("r_got")
    a(f"""
    s_lshl_b32 s42, s43, 5
    s_add_u32 s42, s42, s41                 ; P: t, VM: 32+t
    s_cmp_lt_u32 s43, 2
    s_cbranch_scc1 r_role_done
    s_cmp_ge_u32 s43, 4
    s_cbranch_scc1 r_got4
    s_sub_u32 s43, s43, 2                   ; q = 0,1
    s_mul_i32 s44, s43, 20
    s_add_u32 s42, s41, s44
    s_add_u32 s42, s42, 64                  ; U: 64 + 20q + t
    s_cmp_lt_u32 s41, 20
    s_cbranch_scc1 r_role_done
    s_mul_i32 s44, s43, 10
    s_add_u32 s42, s41, s44
    s_add_u32 s42, s42, 219                 ; F2: 239 + 10q + (t-20)
    s_cmp_lt_u32 s41, 30
    s_cbranch_scc1 r_role_done
    s_lshl_b32 s44, s43, 1
    s_add_u32 s42, s41, s44
    s_add_u32 s42, s42, 174                 ; L: 204 + 2q + (t-30)
    s_branch r_role_done
    """)
    a.label("r_got4")
    a(f"""
    s_sub_u32 s43, s43, 4                   ; q = 0..3
    s_lshl_b32 s44, s43, 3
    s_add_u32 s42, s41, s44
    s_add_u32 s42, s42, 112                 ; T
    s_cmp_lt_u32 s41, 8
    s_cbranch_scc1 r_role_done
    s_add_u32 s42, s42, 24                  ; VO
    s_cmp_lt_u32 s41, 16
    s_cbranch_scc1 r_role_done
    s_add_u32 s42, s43, 208                 ; L: 204 + 4 + q
    s_cmp_eq_u32 s41, 23
    s_cbranch_scc1 r_role_done
    s_lshl_b32 s44, s43, 1
    s_add_u32 s42, s41, s44
    s_add_u32 s42, s42, 160                 ; A
    s_cmp_lt_u32 s41, 18
    s_cbranch_scc1 r_role_done
    s_mul_i32 s44, s43, 5
    s_add_u32 s42, s41, s44
    s_add_u32 s42, s42, 166                 ; C
    s_cmp_lt_u32 s41, 23
    s_cbranch_scc1 r_role_done
    s_mul_i32 s44, s43, 7
    s_add_u32 s42, s41, s44
    s_add_u32 s42, s42, 188                 ; F1: 212 + 7q + (t-24)
    s_cmp_eq_u32 s42, 239
    s_cselect_b32 s42, 264, s42
    s_add_u32 s44, s43, 260
    s_cmp_eq_u32 s41, 31
    s_cselect_b32 s42, s44, s42
    """)
    a.label("r_role_done")
    a(f"""
    v_mov_b32 v10, s42
    ds_write_b32 v9, v10
    s_mov_b64 exec, -1
    s_waitcnt lgkmcnt(0)
    """)
    a.label("r_role_wait")
    a(f"""
    s_barrier
    ds_read_b32 v10, v9
    s_waitcnt lgkmcnt(0)
    v_readfirstlane_b32 s{sID}, v10
    s_mov_b32 s{sSTEP}, 0
    s_mov_b32 s50, 0x3db504f3          ; 128^-0.5
    s_mov_b32 s51, 0x3fb8aa3b          ; log2(e)
    s_mov_b32 s62, s50
    s_mov_b32 s63, s50
    s_mul_i32 s97, s{sID}, {72*32}
    s_add_u32 s97, s97, 0x{WS_TRACE:x}
    s_barrier
    s_cmp_lt_u32 s{sID}, 32
    s_cbranch_scc1 role_p
    s_cmp_lt_u32 s{sID}, 64
    s_cbranch_scc1 role_vm
    s_cmp_lt_u32 s{sID}, 112
    s_cbranch_scc1 role_u
    s_cmp_lt_u32 s{sID}, 144
    s_cbranch_scc1 role_t
    s_cmp_lt_u32 s{sID}, 176
    s_cbranch_scc1 role_vo
    {"s_endpgm" if NOTOK else ""}
    s_cmp_lt_u32 s{sID}, 184
    s_cbranch_scc1 role_a
    s_cmp_lt_u32 s{sID}, 204
    s_cbranch_scc1 role_c
    s_cmp_lt_u32 s{sID}, 212
    s_cbranch_scc1 role_l
    s_cmp_lt_u32 s{sID}, 259
    s_cbranch_scc1 role_f
    s_sub_u32 s{sID}, s{sID}, 56            ; 260.. -> 204..
    s_cmp_lt_u32 s{sID}, 209
    s_cbranch_scc1 role_c
    s_endpgm
    """)

    KF, QF, KMF, SA = 72, 104, 120, 136
    X0 = 148
    vTW, vTR, vST, vSM = 8, 9, 12, 13
    sMEM, sPB, sKX, sFT, sSEEN, sNEED = 31, 32, 33, 34, 35, 36
    a.label("role_p")
    load_wqk(a)
    setup_qk_lds_addrs(a, vTW, vTR)
    a(f"""
    v_bfe_u32 v10, v{vLANE}, 3, 1           ; b
    v_and_b32 v11, 7, v{vLANE}              ; i
    v_lshrrev_b32 v14, 4, v{vLANE}          ; g
    v_lshlrev_b32 v{vST}, 8, v10
    v_lshl_add_u32 v{vST}, v11, 5, v{vST}
    v_lshl_add_u32 v{vST}, v14, 3, v{vST}
    v_lshlrev_b32 v{vSM}, 3, v11
    v_and_b32 v15, 1, v14
    v_lshl_add_u32 v{vSM}, v15, 2, v{vSM}
    v_lshrrev_b32 v15, 1, v14
    v_lshl_add_u32 v{vSM}, v15, 6, v{vSM}
    v_add_u32 v{vSM}, 512, v{vSM}
    v_mov_b32 v15, 0x7ffffff0
    v_cmp_ne_u32 vcc, 0, v10
    s_mov_b32 s52, 0xff00ff00
    s_mov_b32 s53, 0xff00ff00
    v_cndmask_b32 v{vSM}, v{vSM}, v15, vcc
    s_mov_b32 s54, 0
    s_mov_b32 s55, -1                       ; s[54:55]: lanes g>=2
    s_lshl_b32 s{sKX}, s{sID}, 13
    s_add_u32 s{sKX}, s{sKX}, 0x{WS_KX:x}
    s_lshl_b32 s{sFT}, s{sID}, 7
    s_add_u32 s{sFT}, s{sFT}, 0x{flag(FL_T):x}
    s_mov_b32 s{sSEEN}, 0
    s_mov_b32 s56, 0x{WS_FLAGS:x}
    ; KM store voff: g*128 + (l%8)*16, lanes with b=1 dropped
    v_lshlrev_b32 v189, 7, v14
    v_lshl_add_u32 v189, v11, 4, v189
    v_cndmask_b32 v189, v189, v15, vcc
    s_lshl_b32 s57, s{sID}, 11
    s_add_u32 s57, s57, 0x{WS_KM:x}
    s_lshl_b32 s58, s{sID}, 2
    s_add_u32 s58, s58, s{sW}
    s_lshl_b32 s60, s{sID}, 7
    s_add_u32 s60, s60, 0x{flag(FL_KM):x}
    v_cmp_gt_u32 vcc, 40, v{vLANE}
    v_mov_b32 v180, -1
    v_mov_b32 v181, -1
    v_mov_b32 v182, -1
    v_mov_b32 v183, -1
    v_cndmask_b32 v184, v15, v{vL16}, vcc
    """)
    get_pol(a, X0)
    a(f"""
    s_add_u32 s59, s{sSB}, 0x{WS_CRB + CRB_DOOR:x}
    s_add_u32 s64, s{sSB}, 0x{WS_CRB:x}
    s_lshr_b32 s40, s{sID}, 3
    s_lshl_b32 s40, s40, 14
    s_and_b32 s41, s{sID}, 7
    s_mul_i32 s41, s41, 640
    s_add_u32 s65, s40, s41
    s_add_u32 s65, s65, s64
    s_add_u32 s65, s65, {4*16384}           ; p base
    """)
    a.label("p_loop")
    stamp(a, 0)
    a(f"""
    s_and_b32 s40, s{sSTEP}, 3
    s_lshl_b32 s40, s40, 17
    s_add_u32 s{sMEM}, s40, s64
    s_add_u32 s{sPB}, s40, s65
    s_xor_b32 s40, s40, 0x40000
    s_add_u32 s66, s40, s65
    s_cmp_lg_u32 s{sW}, 0
    s_cbranch_scc1 p_sync
    s_add_u32 s{sNEED}, s{sSTEP}, 1
    """)
    wait_flag(a, sFT, sNEED, sSEEN, X0)
    for f in range(8):
        r, o = l16(f * 1024)
        a(f"buffer_load_dwordx4 {vr(KF+4*f,4)}, {r}, {WS}, s{sKX} offen offset:{o} sc1")
    a(f"""
    buffer_load_dword v190, off, {WS}, s{sFT} sc1
    s_cmp_eq_u32 s{sSTEP}, 0
    s_cbranch_scc1 p_sync
    s_sleep {P_SLEEP0}
    """)
    a.label("p_sync")
    a("s_barrier")
    stamp(a, 1)
    def door():
        if not DOOR:
            return
        a(f"""
        s_cmp_lg_u32 s58, 3
        s_cbranch_scc1 p_nodoor
        s_mov_b64 exec, 1
        buffer_store_dword v188, off, {WS}, s59 sc1
        s_mov_b64 exec, -1
        p_nodoor:
        """)
    a(f"""
    s_add_u32 s40, s{sSTEP}, 1
    v_mov_b32 v188, s40
    """)
    mem_proj(a, [0, 1, 2, 3], sMEM, X0, after_first=door)
    stamp(a, 2)
    a.nop(6)
    combine_pair(a, 0, 1, X0+2, X0+3)
    a(f"ds_write_b64 v{vTW}, {vr(X0+2,2)}")
    combine_pair(a, 2, 3, X0+4, X0+5)
    a(f"""
    ds_write_b64 v{vTW}, {vr(X0+4,2)} offset:2048
    s_waitcnt lgkmcnt(0)
    s_barrier
    s_cmp_lg_u32 s{sW}, 0
    s_cbranch_scc1 p_other
    """)
    stamp(a, 3)
    for k in range(4):
        for tp in range(2):
            a(f"ds_read_b64_tr_b16 {vr(QF+4*k+2*tp,2)}, v{vTR} offset:{k*512+tp*256}")
    for k in range(4):
        for tp in range(2):
            a(f"ds_read_b64_tr_b16 {vr(KMF+4*k+2*tp,2)}, v{vTR} offset:{2048+k*512+tp*256}")
    for k in range(4):
        a(f"s_waitcnt lgkmcnt({14-2*k})")
        for mt in range(2):
            acc = vr(SA+4*mt, 4)
            a(f"v_mfma_f32_16x16x32_bf16 {acc}, {vr(KF+(mt*4+k)*4,4)}, {vr(QF+4*k,4)}, {'0' if k==0 else acc}")
    for k in range(4):
        a(f"s_waitcnt lgkmcnt({6-2*k})")
        acc = vr(SA+8, 4)
        a(f"v_mfma_f32_16x16x32_bf16 {acc}, {vr(KMF+4*k,4)}, {vr(QF+4*k,4)}, {'0' if k==0 else acc}")
    for r in range(4):
        a(f"v_cndmask_b32 v{X0+r}, v{SA+r}, v{SA+4+r}, s[52:53]")
    T0 = X0 + 8
    a(f"""
    v_cvt_pk_bf16_f32 v{T0}, v{X0}, v{X0+1}
    v_cvt_pk_bf16_f32 v{T0+1}, v{X0+2}, v{X0+3}
    v_lshlrev_b32 v{X0}, 16, v{T0}
    v_and_b32 v{X0+1}, 0xffff0000, v{T0}
    v_cndmask_b32 v{X0+4}, v{SA+8}, v{SA+9}, s[52:53]
    v_cndmask_b32 v{X0+5}, v{SA+10}, v{SA+11}, s[52:53]
    v_lshlrev_b32 v{X0+2}, 16, v{T0+1}
    v_cndmask_b32 v{X0+4}, v{X0+4}, v{X0+5}, s[54:55]
    v_and_b32 v{X0+3}, 0xffff0000, v{T0+1}
    v_cvt_pk_bf16_f32 v{T0+2}, v{X0+4}, v{X0+4}
    v_pk_mul_f32 v[{X0}:{X0+1}], v[{X0}:{X0+1}], s[62:63]
    v_and_b32 v{X0+4}, 0xffff0000, v{T0+2}
    v_pk_mul_f32 v[{X0+2}:{X0+3}], v[{X0+2}:{X0+3}], s[62:63]
    v_mul_f32 v{X0+4}, s50, v{X0+4}
    v_cvt_pk_bf16_f32 v{T0}, v{X0}, v{X0+1}
    v_cvt_pk_bf16_f32 v{T0+1}, v{X0+2}, v{X0+3}
    v_cvt_pk_bf16_f32 v{T0+2}, v{X0+4}, v{X0+4}
    v_lshlrev_b32 v{X0}, 16, v{T0}
    v_and_b32 v{X0+1}, 0xffff0000, v{T0}
    v_lshlrev_b32 v{X0+2}, 16, v{T0+1}
    v_and_b32 v{X0+3}, 0xffff0000, v{T0+1}
    v_and_b32 v{X0+4}, 0xffff0000, v{T0+2}
    v_max3_f32 v{X0+6}, v{X0}, v{X0+1}, v{X0+2}
    v_max3_f32 v{X0+6}, v{X0+6}, v{X0+3}, v{X0+4}
    v_mul_f32 v{X0}, s51, v{X0}
    v_mul_f32 v{X0+1}, s51, v{X0+1}
    v_max_f32_dpp v{X0+6}, v{X0+6}, v{X0+6} row_ror:8 row_mask:0xf bank_mask:0xf
    v_mov_b32 v{X0+7}, v{X0+6}
    v_mul_f32 v{X0+2}, s51, v{X0+2}
    v_mul_f32 v{X0+3}, s51, v{X0+3}
    v_permlane16_swap_b32 v{X0+6}, v{X0+7}
    v_max_f32 v{X0+6}, v{X0+6}, v{X0+7}
    v_mov_b32 v{X0+7}, v{X0+6}
    v_mul_f32 v{X0+4}, s51, v{X0+4}
    s_nop 0
    v_permlane32_swap_b32 v{X0+6}, v{X0+7}
    v_max_f32 v{X0+6}, v{X0+6}, v{X0+7}
    v_mul_f32 v{X0+6}, s51, v{X0+6}
    v_sub_f32 v{X0}, v{X0}, v{X0+6}
    v_sub_f32 v{X0+1}, v{X0+1}, v{X0+6}
    v_exp_f32 v{X0}, v{X0}
    v_sub_f32 v{X0+2}, v{X0+2}, v{X0+6}
    v_exp_f32 v{X0+1}, v{X0+1}
    v_sub_f32 v{X0+3}, v{X0+3}, v{X0+6}
    v_exp_f32 v{X0+2}, v{X0+2}
    v_sub_f32 v{X0+4}, v{X0+4}, v{X0+6}
    v_exp_f32 v{X0+3}, v{X0+3}
    v_add_f32 v{X0+6}, v{X0}, v{X0+1}
    v_exp_f32 v{X0+4}, v{X0+4}
    v_add_f32 v{X0+6}, v{X0+6}, v{X0+2}
    v_add_f32 v{X0+6}, v{X0+6}, v{X0+3}
    v_add_f32 v{X0+6}, v{X0+6}, v{X0+4}
    s_nop 1
    v_add_f32_dpp v{X0+6}, v{X0+6}, v{X0+6} row_ror:8 row_mask:0xf bank_mask:0xf
    v_mov_b32 v{X0+7}, v{X0+6}
    v_mov_b32_dpp v{X0+5}, v{X0+4} row_ror:8 row_mask:0xf bank_mask:0xf
    s_nop 0
    v_permlane16_swap_b32 v{X0+6}, v{X0+7}
    v_add_f32 v{X0+6}, v{X0+6}, v{X0+7}
    v_mov_b32 v{X0+7}, v{X0+6}
    s_nop 1
    v_permlane32_swap_b32 v{X0+6}, v{X0+7}
    v_add_f32 v{X0+6}, v{X0+6}, v{X0+7}
    v_rcp_f32 v{X0+6}, v{X0+6}
    s_nop 0
    v_mul_f32 v{X0}, v{X0}, v{X0+6}
    v_mul_f32 v{X0+1}, v{X0+1}, v{X0+6}
    v_mul_f32 v{X0+2}, v{X0+2}, v{X0+6}
    v_mul_f32 v{X0+3}, v{X0+3}, v{X0+6}
    v_cvt_pk_bf16_f32 v{T0}, v{X0}, v{X0+1}
    v_cvt_pk_bf16_f32 v{T0+1}, v{X0+2}, v{X0+3}
    v_mul_f32 v{X0+4}, v{X0+4}, v{X0+6}
    v_min_u32 v{T0}, -2, v{T0}
    v_min_u32 v{T0+1}, -2, v{T0+1}
    v_mul_f32 v{X0+5}, v{X0+5}, v{X0+6}
    buffer_store_dwordx2 {vr(T0,2)}, v{vST}, {WS}, s{sPB} offen sc1
    v_cvt_pk_bf16_f32 v{T0+2}, v{X0+4}, v{X0+5}
    v_min_u32 v{T0+2}, -2, v{T0+2}
    buffer_store_dword v{T0+2}, v{vSM}, {WS}, s{sPB} offen sc1
    v_readfirstlane_b32 s{sSEEN}, v190
    s_branch p_next
    """)
    a.label("p_other")
    a(f"""
    s_cmp_lg_u32 s{sW}, 1
    s_cbranch_scc1 p_w23
    """)
    for k in range(4):
        for tp in range(2):
            a(f"ds_read_b64_tr_b16 {vr(KMF+4*k+2*tp,2)}, v{vTR} offset:{2048+k*512+tp*256}")
    a("s_waitcnt lgkmcnt(0)")
    for k in range(4):
        a(f"buffer_store_dwordx4 {vr(KMF+4*k,4)}, v189, {WS}, s57 offen offset:{k*512} sc1")
    a(f"""
    s_waitcnt vmcnt(0)
    s_mov_b64 exec, 1
    buffer_store_dword v188, off, {WS}, s60 sc1
    s_mov_b64 exec, -1
    s_branch p_next
    """)
    a.label("p_w23")
    a(f"""
    s_cmp_lg_u32 s{sW}, 2
    s_cbranch_scc1 p_next
    buffer_store_dwordx4 v[180:183], v184, {WS}, s66 offen sc1
    s_cmp_lg_u32 s{sID}, 0
    s_cbranch_scc1 p_next
    s_add_u32 s40, s{sSTEP}, 1
    v_mov_b32 v{X0}, s40
    s_mov_b64 exec, 1
    buffer_store_dword v{X0}, off, {WS}, s56 sc1
    s_mov_b64 exec, -1
    """)
    a.label("p_next")
    stamp(a, 4)
    stamp_flush(a, 5, 191)
    a(f"""
    s_add_u32 s{sKX}, s{sKX}, {32*8192}
    s_add_u32 s57, s57, {32*2048}
    s_add_u32 s{sSTEP}, s{sSTEP}, 1
    s_cmp_lt_u32 s{sSTEP}, 64
    s_cbranch_scc1 p_loop
    s_endpgm
    """)
    flush_deferred(a)

    AF, AC3, PKM = 72, 80, 120
    a.label("role_vm")
    a(f"""
    s_sub_u32 s{sID}, s{sID}, 32
    s_load_dwordx4 s[64:67], s[0:1], {KA_WV}
    s_waitcnt lgkmcnt(0)
    """)
    srd(a, 16, 64, D * H * E * 2)
    srd(a, 20, 66, D * H * E * 2)
    load_wqk(a, (WQ,))
    load_wo(a, WK)
    setup_qk_lds_addrs(a, vTW, vTR)
    a(f"""
    ; sparse-A transposing read: e0 = 32(gA/2) + 16(r/2) + 8(gA%2) + 2(c/2) + (r%2)
    v_lshrrev_b32 v10, 5, v{vLANE}
    v_lshlrev_b32 v10, 5, v10
    v_bfe_u32 v11, v{vLANE}, 3, 1
    v_lshl_add_u32 v10, v11, 4, v10
    v_bfe_u32 v11, v{vLANE}, 4, 1
    v_lshl_add_u32 v10, v11, 3, v10
    v_bfe_u32 v11, v{vLANE}, 1, 1
    v_lshl_add_u32 v10, v11, 1, v10
    v_bfe_u32 v11, v{vLANE}, 2, 1
    v_add_u32 v10, v10, v11
    v_lshlrev_b32 v10, 4, v10
    v_and_b32 v11, 1, v{vLANE}
    v_lshl_add_u32 v10, v11, 3, v10
    v_add_u32 v{vTR}, 0x{LDS_T:x}, v10
    v_lshlrev_b32 v12, 3, v{vLANE}
    v_and_b32 v13, 31, v{vLANE}
    v_lshlrev_b32 v13, 3, v13
    v_lshrrev_b32 v10, 5, v{vLANE}
    v_lshl_add_u32 v13, v10, 14, v13
    v_mov_b32 v132, -1
    v_mov_b32 v133, -1
    s_mul_i32 s57, s{sID}, 10240
    s_mul_i32 s40, s{sW}, 2560
    s_add_u32 s57, s57, s40
    s_add_u32 s57, s57, 0x{WS_UMC:x}
    s_lshl_b32 s61, s{sID}, 7
    s_lshl_b32 s40, s{sW}, 2
    s_add_u32 s61, s61, s40
    s_add_u32 s61, s61, 0x{flag(FL_UF):x}
    """)
    get_pol(a, 135)
    a(f"""
    s_add_u32 s64, s{sSB}, 0x{WS_CRB + 32768:x}
    s_mul_i32 s65, s{sW}, {10*16384}
    s_lshl_b32 s40, s{sID}, 8
    s_add_u32 s65, s65, s40
    s_add_u32 s65, s65, s{sSA}
    s_add_u32 s65, s65, 0x{WS_CRA:x}
    s_mov_b32 s66, 0
    s_mov_b32 s67, {2*CRA_SLOT}
    """)
    a.label("vm_loop")
    stamp(a, 0)
    for r in range(40):
        a(f"v_mov_b32 v{AC3+r}, 0")
    a(f"""
    s_and_b32 s40, s{sSTEP}, 3
    s_lshl_b32 s40, s40, 17
    s_add_u32 s{sMEM}, s40, s64
    s_add_u32 s58, s65, s66
    s_cmp_eq_u32 s{sSTEP}, 0
    s_cbranch_scc1 vm_sync
    s_sleep {V_SLEEP}
    vm_sync:
    s_barrier
    """)
    stamp(a, 1)
    mem_proj(a, [0, 1], sMEM, 135)
    stamp(a, 2)
    a.nop(8)
    combine_pair(a, 0, 1, 136, 137)
    a(f"""
    ds_write_b64 v{vTW}, v[136:137]
    s_waitcnt lgkmcnt(0)
    s_barrier
    """)
    for kb in range(2):
        for n in range(2):
            a(f"ds_read_b64_tr_b16 {vr(AF+4*kb+2*n,2)}, v{vTR} offset:{(64*kb+4*n)*16}")
    stamp(a, 3)

    def vm_pack(p):
        A, B = AC3 + 8*p, AC3 + 8*p + 4
        L = [f"v_permlane32_swap_b32 v{A+r}, v{B+r}" for r in range(4)]
        if PKADD:
            L += [f"v_pk_add_f32 v[{A+r}:{A+r+1}], v[{A+r}:{A+r+1}], v[{B+r}:{B+r+1}]" for r in (0, 2)]
        else:
            L += [f"v_add_f32 v{A+r}, v{A+r}, v{B+r}" for r in range(4)]
        L += [f"v_cvt_pk_bf16_f32 v{PKM+2*p}, v{A}, v{A+1}", f"v_cvt_pk_bf16_f32 v{PKM+2*p+1}, v{A+2}, v{A+3}",
              f"buffer_store_dwordx2 {vr(PKM+2*p,2)}, v13, {WS}, s{68+p} offen sc1"]
        return L
    for p in range(5):
        a(f"s_add_u32 s{68+p}, s58, {p*32768}")
    a("s_waitcnt lgkmcnt(0)")
    pend = []
    slot = 0
    last_mf = {}
    for p in range(5):
        for kb in range(2):
            for jj in range(2):
                jt = 2*p + jj
                a(f"v_smfmac_f32_16x16x64_bf16 {vr(AC3+4*jt,4)}, {vr(AF+4*kb,4)}, {widx(160+(jt*4+2*kb)*4,8)}, v{vIDX}")
                slot += 1
                n = 0
                while pend and pend[0][0] <= slot and n < VM_FILL:
                    a(pend.pop(0)[1])
                    slot += 1
                    n += 1
        for x in vm_pack(p):
            pend.append((slot + 8, x))
    while pend:
        if pend[0][0] > slot:
            a.nop(pend[0][0] - slot)
            slot = pend[0][0]
        a(pend.pop(0)[1])
        slot += 1
    stamp(a, 4)
    for p in range(5):
        a(f"buffer_store_dwordx2 {vr(PKM+2*p,2)}, v12, {WS}, s57 offen offset:{p*512} sc1")
    a("s_add_u32 s40, s65, s67")
    for p in range(5):
        a(f"buffer_store_dwordx2 v[132:133], v13, {WS}, s40 offen sc1")
        a("s_add_u32 s40, s40, 32768")
    a(f"""
    s_add_u32 s57, s57, {UM_STEP}
    s_mov_b32 s67, s66
    s_add_u32 s66, s66, {CRA_SLOT}
    s_cmp_ge_u32 s66, {3*CRA_SLOT}
    s_cselect_b32 s66, 0, s66
    s_add_u32 s40, s{sSTEP}, 1
    v_mov_b32 v134, s40
    s_waitcnt vmcnt(5)
    s_mov_b64 exec, 1
    buffer_store_dword v134, off, {WS}, s61 sc1
    s_mov_b64 exec, -1
    """)
    stamp_flush(a, 5, 191)
    a(f"""
    s_add_u32 s{sSTEP}, s{sSTEP}, 1
    s_cmp_lt_u32 s{sSTEP}, 64
    s_cbranch_scc1 vm_loop
    s_endpgm
    """)
    flush_deferred(a)

    TX, BX, PF, BM, CA = 16, 48, 80, 104, 112
    vPA, vPB, vWr, vRd, vUM = 8, 9, 12, 13, 140
    sUX = 33
    a.label("role_u")
    a(f"s_sub_u32 s{sID}, s{sID}, 64")
    setup_p_load_addrs(a, vPA, vPB, vUM, 16384, 256)
    a(f"""
    s_lshl_b32 s40, s{sW}, 9
    v_lshlrev_b32 v{vWr}, 3, v{vLANE}
    v_add_u32 v{vWr}, s40, v{vWr}
    ; final lane l: c8 = l/32, i = (l/4)%8, cp = l%4 ; src lane' = (r&1)*32 + (i/4)*16 + 8c8 + 2cp ; comp = r>>1
    v_bfe_u32 v10, v{vLANE}, 2, 1           ; r&1
    v_lshlrev_b32 v10, 5, v10
    v_bfe_u32 v11, v{vLANE}, 4, 1           ; i/4
    v_lshl_add_u32 v10, v11, 4, v10
    v_lshrrev_b32 v11, 5, v{vLANE}
    v_lshl_add_u32 v10, v11, 3, v10
    v_and_b32 v11, 3, v{vLANE}
    v_lshl_add_u32 v10, v11, 1, v10
    v_lshlrev_b32 v10, 3, v10
    v_bfe_u32 v11, v{vLANE}, 3, 1           ; r>>1
    v_lshl_add_u32 v{vRd}, v11, 2, v10
    v_add_u32 v14, 1024, v{vRd}
    v_lshlrev_b32 v15, 2, v{vLANE}
    v_lshlrev_b32 v133, 7, v{vLANE}
    v_mov_b32 v123, 0
    s_mul_i32 s{sUX}, s{sW}, {8*40960}
    s_lshl_b32 s40, s{sID}, 10
    s_add_u32 s{sUX}, s{sUX}, s40
    s_add_u32 s{sUX}, s{sUX}, 0x{WS_UX:x}
    s_lshl_b32 s{sFT}, s{sW}, 10
    s_add_u32 s{sFT}, s{sFT}, 0x{flag(FL_VO):x}
    v_mov_b32 v134, -1
    s_cmp_ge_u32 s{sID}, 2
    s_cbranch_scc1 u_nomeas
    s_lshl_b32 s40, s{sID}, 21
    s_add_u32 s40, s40, 0x{WS_CRA + 0x1F0000:x}
    s_lshl_b32 s41, s{sW}, 14
    s_add_u32 s40, s40, s41
    s_mov_b32 s42, -1
    s_mov_b32 s43, -1
    s_mov_b64 exec, 1
    """)
    for k in range(3):
        for half in range(2):
            a(f"""
            s_add_u32 s41, s40, {half*8192 + (k%2)*4096 + k*1152}
            s_memtime s[44:45]
            s_waitcnt lgkmcnt(0)
            buffer_store_dword v134, off, {WS}, s41 sc1
            s_waitcnt vmcnt(0)
            buffer_load_dword v135, off, {WS}, s41 sc1
            s_waitcnt vmcnt(0)
            s_memtime s[46:47]
            s_waitcnt lgkmcnt(0)
            s_sub_u32 s46, s46, s44
            s_min_u32 s{42+half}, s{42+half}, s46
            """)
    a(f"""
    v_mov_b32 v136, s42
    v_mov_b32 v137, s43
    s_lshl_b32 s40, s{sW}, 3
    v_mov_b32 v135, s40
    ds_write_b64 v135, v[136:137]
    s_mov_b64 exec, -1
    s_waitcnt lgkmcnt(0)
    s_barrier
    v_mov_b32 v135, 0
    ds_read_b128 v[124:127], v135
    ds_read_b128 v[128:131], v135 offset:16
    s_waitcnt lgkmcnt(0)
    v_add3_u32 v124, v124, v126, v128
    v_add3_u32 v125, v125, v127, v129
    v_add_u32 v124, v124, v130
    v_add_u32 v125, v125, v131
    v_cmp_lt_u32 vcc, v125, v124
    v_mov_b32 v126, 1
    v_mov_b32 v127, 3
    v_cndmask_b32 v126, v126, v127, vcc
    {"v_mov_b32 v126, " + FORCEPOL if FORCEPOL else ""}
    s_lshl_b32 s40, s{sID}, 7
    s_add_u32 s40, s40, 0x{flag(FL_POL):x}
    s_barrier
    s_cmp_lg_u32 s{sW}, 0
    s_cbranch_scc1 u_nomeas
    s_mov_b64 exec, 1
    buffer_store_dword v126, off, {WS}, s40 sc1
    s_mov_b64 exec, -1
    u_nomeas:
    """)
    get_pol(a, 135)
    a(f"""
    s_add_u32 s60, s{sSB}, 0x{WS_CRB + CRB_DOOR:x}
    s_add_u32 s64, s{sSB}, 0x{WS_CRB + 4*16384:x}   ; p base
    s_lshl_b32 s65, s{sID}, 8
    s_cmp_ge_u32 s{sID}, 32
    s_cselect_b32 s40, 8192, 0
    s_add_u32 s65, s65, s40
    s_add_u32 s65, s65, s{sSB}
    s_add_u32 s65, s65, 0x{WS_CRB:x}
    s_lshl_b32 s57, s{sID}, 14
    s_add_u32 s57, s57, s{sSA}
    s_add_u32 s57, s57, 0x{WS_CRA:x}
    s_mov_b32 s66, 0
    """)
    a.label("u_loop")
    stamp(a, 0)
    a(f"""
    s_and_b32 s40, s{sSTEP}, 3
    s_lshl_b32 s40, s40, 17
    s_add_u32 s{sPB}, s40, s64
    s_xor_b32 s41, s40, 0x40000
    s_add_u32 s41, s41, s65
    s_add_u32 s40, s{sSTEP}, 1
    s_and_b32 s40, s40, 3
    s_lshl_b32 s40, s40, 17
    s_add_u32 s{sMEM}, s40, s65
    s_cmp_lg_u32 s{sW}, 1
    s_cbranch_scc1 u_noarm
    buffer_store_dword v134, v15, {WS}, s41 offen sc1
    s_add_u32 s41, s41, 32768
    buffer_store_dword v134, v15, {WS}, s41 offen sc1
    u_noarm:
    """)
    a(f"""
    s_add_u32 s{sNEED}, s{sSTEP}, 1
    s_mov_b64 exec, 255
    v_cmp_gt_u32 vcc, s{sNEED}, v123
    s_mov_b64 exec, -1
    s_cbranch_vccz u_vok
    """)
    wait_all(a, 8, 133, sFT, sNEED, 123)
    a.label("u_vok")
    a(f"s_mov_b32 s40, s{sUX}")
    for hh in range(8):
        a(f"buffer_load_dwordx4 {vr(TX+4*hh,4)}, v{vL16}, {WS}, s40 offen sc1")
        a(f"s_add_u32 s40, s40, 40960")
    a(f"""
    s_mov_b64 exec, 255
    buffer_load_dword v123, v133, {WS}, s{sFT} offen sc1
    s_mov_b64 exec, -1
    s_add_u32 s58, s57, s66
    s_add_u32 s66, s66, {CRA_SLOT}
    s_cmp_ge_u32 s66, {3*CRA_SLOT}
    s_cselect_b32 s66, 0, s66
    s_waitcnt vmcnt(0)
    """)
    for hh in range(8):
        for d in range(4):
            a(f"v_mov_b32 v{BX + 8*(hh//2) + 2*d + hh%2}, v{TX+4*hh+d}")
    stamp(a, 1)
    a(f"""
    s_cmp_lg_u32 s{sW}, 0
    s_cbranch_scc1 u_dsync
    """)
    for k in range(3):
        a(f"buffer_load_dword v{124+k}, off, {WS}, s60 sc1")
        a(f"s_sleep 1")
    a.label("u_dspin")
    for k in range(4):
        a(f"""
        buffer_load_dword v{124+(k+3)%4}, off, {WS}, s60 sc1
        s_waitcnt vmcnt(3)
        v_cmp_le_u32 vcc, s{sNEED}, v{124+k}
        s_cbranch_vccnz u_ddone
        s_nop 7
        """)
    a(f"""
    s_sub_u32 s{sBUD}, s{sBUD}, 1
    s_cmp_ge_i32 s{sBUD}, 0
    s_cbranch_scc1 u_dspin
    """)
    a.label("u_ddone")
    stamp(a, 2)
    a(f"s_sleep {U_SLEEPD}")
    a.label("u_dsync")
    a("s_barrier")
    stamp(a, 3)
    def u_mloads():
        for k in range(2):
            a(f"buffer_load_dwordx2 {vr(PF+16+2*k,2)}, v{vPB}, {WS}, s{sPB} offen offset:{k*1280} sc1")
        for j in range(4):
            a(f"buffer_load_dwordx2 {vr(BM+2*j,2)}, v{vUM}, {WS}, s58 offen offset:{j*512} sc1")
    a.label("u_ppoll")
    for q in range(4):
        a(f"buffer_load_dwordx4 {vr(PF+4*q,4)}, v{vPA}, {WS}, s{sPB} offen offset:{q*1280} sc1")
    u_mloads()
    for r in range(4):
        a(f"v_mov_b32 v{CA+r}, 0")
    a("v_mov_b32 v122, 0")
    for q in range(4):
        f = PF + 4*q
        a(f"s_waitcnt vmcnt({9-q})")
        a(f"v_smfmac_f32_16x16x64_bf16 {vr(CA,4)}, {vr(f,4)}, {vr(BX+8*q,8)}, v{vIDX}")
        a(f"v_max3_u32 v122, v122, v{f}, v{f+1}")
        a(f"v_max3_u32 v122, v122, v{f+2}, v{f+3}")
    a("v_cmp_eq_u32 vcc, -1, v122")
    poll_fail(a, "u_ppoll", sleep=1)
    a.label("u_mchk")
    a(f"""
    s_waitcnt vmcnt(4)
    v_swap_b32 v{PF+17}, v{PF+18}
    v_max3_u32 v122, v{PF+16}, v{PF+17}, v{PF+18}
    v_max_u32 v122, v122, v{PF+19}
    s_waitcnt vmcnt(2)
    v_max3_u32 v122, v122, v{BM}, v{BM+1}
    v_max3_u32 v122, v122, v{BM+2}, v{BM+3}
    s_waitcnt vmcnt(0)
    v_max3_u32 v122, v122, v{BM+4}, v{BM+5}
    v_max3_u32 v122, v122, v{BM+6}, v{BM+7}
    v_cmp_eq_u32 vcc, -1, v122
    s_cbranch_vccnz u_mretry
    u_mok:
    v_smfmac_f32_16x16x64_bf16 {vr(CA,4)}, {vr(PF+16,4)}, {vr(BM,8)}, v{vIDX}
    """)

    def u_ool():
        a.label("u_mretry")
        a(f"""
        s_sub_u32 s{sBUD}, s{sBUD}, 1
        s_cmp_lt_i32 s{sBUD}, 0
        s_cbranch_scc1 u_mok
        """)
        u_mloads()
        a("s_branch u_mchk")
    DEFERRED.append(u_ool)
    a.nop(2)
    stamp(a, 4)
    a.nop(6)
    a(f"""
    v_permlane32_swap_b32 v{CA}, v{CA+1}
    v_permlane32_swap_b32 v{CA+2}, v{CA+3}
    v_add_f32 v{CA}, v{CA}, v{CA+1}
    v_add_f32 v{CA+1}, v{CA+2}, v{CA+3}
    ds_write_b64 v{vWr}, {vr(CA,2)}
    s_waitcnt lgkmcnt(0)
    s_barrier
    s_cmp_lg_u32 s{sW}, 0
    s_cbranch_scc1 u_next
    ds_read2_b32 v[124:125], v{vRd} offset0:0 offset1:2
    ds_read2_b32 v[126:127], v{vRd} offset0:128 offset1:130
    ds_read2_b32 v[128:129], v14 offset0:0 offset1:2
    ds_read2_b32 v[130:131], v14 offset0:128 offset1:130
    s_add_u32 s40, s{sMEM}, 32768
    s_waitcnt lgkmcnt(2)
    v_add_f32 v124, v124, v126
    v_add_f32 v125, v125, v127
    s_waitcnt lgkmcnt(0)
    v_add_f32 v128, v128, v130
    v_add_f32 v129, v129, v131
    v_add_f32 v124, v124, v128
    v_add_f32 v125, v125, v129
    v_cvt_pk_bf16_f32 v124, v124, v125
    v_min_u32 v124, -2, v124
    buffer_store_dword v124, v15, {WS}, s{sMEM} offen sc1
    buffer_store_dword v124, v15, {WS}, s40 offen sc1
    """)
    a.label("u_next")
    stamp(a, 5)
    stamp_flush(a, 6, 191)
    a(f"""
    s_add_u32 s{sUX}, s{sUX}, {UX_STEP}
    s_add_u32 s{sSTEP}, s{sSTEP}, 1
    s_cmp_lt_u32 s{sSTEP}, 63
    s_cbranch_scc1 u_loop
    s_endpgm
    """)
    flush_deferred(a)

    vH = 14
    sHOFF, sHBUF, sOUT, sFM = 37, 38, 39, 56

    def publish(role, sval, wv=3):
        lab = a.newlabel("pub")
        a(f"""
        s_cmp_lg_u32 s{sW}, {wv}
        s_cbranch_scc1 {lab}
        v_mov_b32 v3, {sval}
        s_mov_b64 exec, 1
        buffer_store_dword v3, off, {WS}, s{sFT} sc1
        s_mov_b64 exec, -1
        {lab}:
        """)

    def loop_top():
        a(f"""
        v_add_u32 v{vH}, s{sHBUF}, v{vL16}
        s_sub_u32 s{sHBUF}, 40960, s{sHBUF}
        s_add_u32 s{sHOFF}, s{sHOFF}, 40960
        """)
        dmal_init(a, sHOFF, sHBUF)

    a.label("role_t")
    a(f"""
    s_sub_u32 s{sID}, s{sID}, 112
    s_mov_b32 s{sHOFF}, 0x{WS_H1F:x}
    s_mov_b32 s{sHBUF}, 0
    """)
    load_wqk(a)
    dmal_init(a, sHOFF, sHBUF)
    for k in range(10):
        dmal_one(a)
    a(f"""
    s_lshl_b32 s{sOUT}, s{sID}, 13
    s_lshl_b32 s40, s{sW}, 10
    s_add_u32 s{sOUT}, s{sOUT}, s40
    s_add_u32 s{sOUT}, s{sOUT}, 0x{WS_KX:x}
    s_lshl_b32 s{sFT}, s{sID}, 7
    s_add_u32 s{sFT}, s{sFT}, 0x{flag(FL_T):x}
    s_waitcnt vmcnt(0)
    s_barrier
    """)
    a.label("t_loop")
    stamp(a, 0)
    loop_top()
    DMK = [0, 1, 3, 4, 6, 7, 9, 10, 12, 13]

    def hook_t(ks):
        if ks in DMK:
            dmal_one(a)
        if ks == 5:
            a("s_waitcnt vmcnt(4)")
            a("s_barrier")
            publish("t", f"s{sSTEP}")
    dense_proj(a, vH, True, hook_t)
    stamp(a, 1)
    a.nop(4)
    PK = 128
    a(f"s_add_u32 s40, s{sOUT}, 0x{WS_QX-WS_KX:x}")
    for mat in (0, 1):
        for mt in range(2):
            tm = PK + (mat*2+mt) * 4
            for tt in range(2):
                b = TACC + ((mat*2+tt)*2 + mt) * 4
                a(f"v_cvt_pk_bf16_f32 v{tm+2*tt}, v{b}, v{b+1}")
                a(f"v_cvt_pk_bf16_f32 v{tm+2*tt+1}, v{b+2}, v{b+3}")
    a("s_waitcnt vmcnt(0)")
    for mat in (1, 0):
        for mt in range(2):
            tm = PK + (mat*2+mt) * 4
            so = "s40" if mat == 0 else f"s{sOUT}"
            a(f"buffer_store_dwordx4 {vr(tm,4)}, v{vL16+mt}, {WS}, {so} offen sc1")
    a(f"""
    s_add_u32 s{sOUT}, s{sOUT}, {32*8192}
    s_cmp_lg_u32 s{sSTEP}, 0
    s_cbranch_scc1 t_ne
    s_waitcnt vmcnt(0)
    s_barrier
    """)
    publish("t", "1")
    a("t_ne:")
    a("s_barrier")
    stamp(a, 2)
    stamp_flush(a, 3, 1)
    a(f"""
    s_add_u32 s{sSTEP}, s{sSTEP}, 1
    s_cmp_lt_u32 s{sSTEP}, 64
    s_cbranch_scc1 t_loop
    s_waitcnt vmcnt(0)
    s_barrier
    """)
    publish("t", f"s{sSTEP}")
    a("s_endpgm")

    VF, AC2 = 16, 128
    LDS_V = LDS_T
    a.label("role_vo")
    a(f"""
    s_sub_u32 s{sID}, s{sID}, 144
    s_load_dwordx4 s[64:67], s[0:1], {KA_WV}
    s_mov_b32 s{sHOFF}, 0x{WS_H1F:x}
    s_mov_b32 s{sHBUF}, 0
    s_waitcnt lgkmcnt(0)
    """)
    srd(a, 16, 64, D * H * E * 2)
    srd(a, 20, 66, D * H * E * 2)
    load_wqk(a, (WQ,))
    load_wo(a, WK)
    dmal_init(a, sHOFF, sHBUF)
    for k in range(10):
        dmal_one(a)
    a(f"""
    s_mul_i32 s{sOUT}, s{sID}, 40960
    s_mul_i32 s40, s{sW}, 10240
    s_add_u32 s{sOUT}, s{sOUT}, s40
    s_add_u32 s{sOUT}, s{sOUT}, 0x{WS_UX:x}
    s_lshl_b32 s{sFT}, s{sID}, 7
    s_add_u32 s{sFT}, s{sFT}, 0x{flag(FL_VO):x}
    s_lshl_b32 s40, s{sW}, 10
    s_add_u32 s40, s40, 0x{LDS_V:x}
    v_add_u32 v12, s40, v{vL16}
    v_add_u32 v13, 0x{LDS_V:x}, v{vL16}
    s_waitcnt vmcnt(0)
    s_barrier
    """)
    a.label("vo_loop")
    stamp(a, 0)
    loop_top()

    def hook_v(ks):
        if ks % 2 == 0:
            dmal_one(a)
    dense_proj(a, vH, True, hook_v, tiles=(0, 1))
    a.nop(6)
    for mt in range(2):
        for tt in range(2):
            b = TACC + (tt*2 + mt) * 4
            a(f"v_cvt_pk_bf16_f32 v{168+4*mt+2*tt}, v{b}, v{b+1}")
            a(f"v_cvt_pk_bf16_f32 v{168+4*mt+2*tt+1}, v{b+2}, v{b+3}")
        a(f"ds_write_b128 v12, {vr(168+4*mt,4)} offset:{mt*4096}")
    a(f"""
    s_waitcnt vmcnt(10) lgkmcnt(0)
    s_barrier
    """)
    stamp(a, 1)
    for k in range(4):
        for mt in range(2):
            a(f"ds_read_b128 {vr(VF+(mt*4+k)*4,4)}, v13 offset:{mt*4096+k*1024}")
    publish("vo", f"s{sSTEP}")
    for hb in range(2):
        for k in range(4):
            if hb == 0:
                a(f"s_waitcnt lgkmcnt({6-2*k})")
            for j5 in range(5):
                for mt in range(2):
                    acc = vr(AC2 + (j5*2+mt)*4, 4) if hb == 0 else vr(TACC + (j5*2+mt)*4, 4)
                    a(f"v_mfma_f32_16x16x32_bf16 {acc}, {vr(VF+(mt*4+k)*4,4)}, {widx(160+((hb*5+j5)*4+k)*4)}, {'0' if k == 0 else acc}")
                if hb == 1 and k < 3 and j5 < 2 and (k*2+j5) < 5:
                    q = k*2 + j5
                    tm = 168 + (q % 2) * 4
                    for mt in range(2):
                        b = AC2 + (q*2+mt)*4
                        a(f"v_cvt_pk_bf16_f32 v{tm+2*mt}, v{b}, v{b+1}")
                        a(f"v_cvt_pk_bf16_f32 v{tm+2*mt+1}, v{b+2}, v{b+3}")
                    r, o = l16(q * 1024)
                    a(f"buffer_store_dwordx4 {vr(tm,4)}, {r}, {WS}, s{sOUT} offen offset:{o} sc1")
    for q in range(5):
        tm = 176 + (q % 2) * 4
        for mt in range(2):
            b = TACC + (q*2+mt)*4
            a(f"v_cvt_pk_bf16_f32 v{tm+2*mt}, v{b}, v{b+1}")
            a(f"v_cvt_pk_bf16_f32 v{tm+2*mt+1}, v{b+2}, v{b+3}")
        r, o = l16((5+q) * 1024)
        a(f"buffer_store_dwordx4 {vr(tm,4)}, {r}, {WS}, s{sOUT} offen offset:{o} sc1")
    a(f"""
    s_add_u32 s{sOUT}, s{sOUT}, {UX_STEP}
    s_cmp_lg_u32 s{sSTEP}, 0
    s_cbranch_scc1 vo_ne
    s_waitcnt vmcnt(0)
    s_barrier
    """)
    publish("vo", "1")
    a(f"""
    vo_ne:
    s_waitcnt vmcnt(10)
    s_barrier
    """)
    stamp(a, 2)
    stamp_flush(a, 3, 1)
    a(f"""
    s_add_u32 s{sSTEP}, s{sSTEP}, 1
    s_cmp_lt_u32 s{sSTEP}, 64
    s_cbranch_scc1 vo_loop
    s_waitcnt vmcnt(0)
    s_barrier
    """)
    publish("vo", f"s{sSTEP}")
    a("s_endpgm")

    KF2, QF2, KMF2, SA2, Y0 = 16, 48, 80, 96, 112
    sKXR, sKM = 33, 57
    a.label("role_a")
    a(f"""
    s_sub_u32 s{sID}, s{sID}, 176
    s_lshl_b32 s{sID}, s{sID}, 2
    s_add_u32 s{sID}, s{sID}, s{sW}         ; head
    v_bfe_u32 v10, v{vLANE}, 3, 1           ; b
    v_and_b32 v11, 7, v{vLANE}              ; i
    v_lshrrev_b32 v15, 4, v{vLANE}          ; g
    v_lshlrev_b32 v8, 7, v15
    v_lshl_add_u32 v8, v11, 4, v8
    v_mul_u32_u24 v10, {PB_RG}, v10
    v_lshl_add_u32 v{vST}, v11, 4, v10      ; + i*16
    v_and_b32 v11, 1, v15
    v_lshl_add_u32 v{vST}, v11, 3, v{vST}   ; + (g&1)*8
    v_lshrrev_b32 v11, 1, v15
    v_lshl_add_u32 v{vSM}, v11, 7, v{vST}
    v_lshl_add_u32 v{vST}, v11, 8, v{vST}
    v_and_b32 v10, 15, v{vLANE}
    v_lshlrev_b32 v11, 2, v15               ; 4g
    """)
    for r in range(4):
        a(f"v_add_u32 v15, {r}, v11")
        a(f"v_cmp_le_u32 s[{64+r*2}:{65+r*2}], v15, v10")
    a(f"""
    s_mov_b32 s54, 0
    s_mov_b32 s55, -1
    s_lshl_b32 s{sPB}, s{sID}, 9
    s_add_u32 s{sPB}, s{sPB}, 0x{WS_PT:x}
    ; mem part offset relative to token part: 16384 + (2(h/4) + h%2)*256 + ((h>>1)&1)*4 - h*512
    s_lshr_b32 s40, s{sID}, 2
    s_lshl_b32 s40, s40, 1
    s_and_b32 s41, s{sID}, 1
    s_add_u32 s40, s40, s41
    s_lshl_b32 s40, s40, 8
    s_bfe_u32 s41, s{sID}, 0x10001
    s_lshl_b32 s41, s41, 2
    s_add_u32 s40, s40, s41
    s_add_u32 s40, s40, 16384
    s_lshl_b32 s41, s{sID}, 9
    s_sub_u32 s61, s40, s41
    s_lshl_b32 s58, s{sID}, 7
    s_add_u32 s59, s58, 0x{flag(FL_A):x}
    s_add_u32 s58, s58, 0x{flag(FL_KM):x}
    s_mov_b32 s60, 0
    s_lshl_b32 s{sKXR}, s{sID}, 13
    s_add_u32 s{sKXR}, s{sKXR}, 0x{WS_KX:x}
    s_lshl_b32 s{sKM}, s{sID}, 11
    s_add_u32 s{sKM}, s{sKM}, 0x{WS_KM:x}
    s_lshl_b32 s{sFT}, s{sID}, 7
    s_add_u32 s{sFT}, s{sFT}, 0x{flag(FL_T):x}
    s_mov_b32 s{sSEEN}, 0
    """)
    a.label("a_loop")
    stamp(a, 0)
    a(f"s_add_u32 s{sNEED}, s{sSTEP}, 1")
    wait_flag(a, sFT, sNEED, sSEEN, Y0, sleep=8)
    a(f"s_add_u32 s40, s{sKXR}, 0x{WS_QX-WS_KX:x}")
    for f in range(8):
        r, o = l16(f * 1024)
        a(f"buffer_load_dwordx4 {vr(KF2+4*f,4)}, {r}, {WS}, s{sKXR} offen offset:{o} sc1")
    for f in range(8):
        r, o = l16(f * 1024)
        a(f"buffer_load_dwordx4 {vr(QF2+4*f,4)}, {r}, {WS}, s40 offen offset:{o} sc1")
    stamp(a, 1)
    wait_flag(a, 58, sNEED, 60, Y0, sleep=4)
    for k in range(4):
        a(f"buffer_load_dwordx4 {vr(KMF2+4*k,4)}, v8, {WS}, s{sKM} offen offset:{k*512} sc1")
    a("s_waitcnt vmcnt(0)")
    stamp(a, 2)
    for qt in range(2):
        for k in range(4):
            for mt in range(qt + 1):
                acc = vr(SA2+4*mt, 4)
                a(f"v_mfma_f32_16x16x32_bf16 {acc}, {vr(KF2+(mt*4+k)*4,4)}, {vr(QF2+(qt*4+k)*4,4)}, {'0' if k==0 else acc}")
            acc = vr(SA2+8, 4)
            a(f"v_mfma_f32_16x16x32_bf16 {acc}, {vr(KMF2+4*k,4)}, {vr(QF2+(qt*4+k)*4,4)}, {'0' if k==0 else acc}")
        a.nop(8)
        a(f"""
        v_cndmask_b32 v{SA2+8}, v{SA2+8}, v{SA2+10}, s[54:55]
        v_cndmask_b32 v{SA2+9}, v{SA2+9}, v{SA2+11}, s[54:55]
        """)
        xs = [SA2 + k for k in range(4*(qt+1))] + [SA2+8, SA2+9]
        round_scale(a, xs, Y0+8, 50)
        a(f"v_mov_b32 v{Y0}, 0xce6e6b28")
        for k in range(4):
            a(f"v_cndmask_b32 v{SA2+4*qt+k}, v{Y0}, v{SA2+4*qt+k}, s[{64+2*k}:{65+2*k}]")
        softmax(a, xs, Y0+6, Y0+7, 51, False)
        O = Y0 + 16 + 8*qt
        for half in range(2):
            for m in range(2):
                if m <= qt:
                    a(f"v_cvt_pk_bf16_f32 v{O+2*half+m}, v{SA2+4*m+2*half}, v{SA2+4*m+2*half+1}")
                else:
                    a(f"v_mov_b32 v{O+2*half+m}, 0")
        a(f"v_cvt_pk_bf16_f32 v{O+4}, v{SA2+8}, v{SA2+9}")
        a(f"s_add_u32 s40, s{sPB}, {qt*2*PB_RG}")
        for half in range(2):
            a(f"buffer_store_dwordx2 {vr(O+2*half,2)}, v{vST}, {WS}, s40 offen offset:{half*128} sc1")
        a(f"s_add_u32 s40, s40, s61")
        a(f"buffer_store_dword v{O+4}, v{vSM}, {WS}, s40 offen sc1")
    a(f"""
    v_mov_b32 v{Y0}, s{sNEED}
    s_waitcnt vmcnt(0)
    s_mov_b64 exec, 1
    buffer_store_dword v{Y0}, off, {WS}, s59 sc1
    s_mov_b64 exec, -1
    """)
    stamp(a, 3)
    stamp_flush(a, 4, 1)
    a(f"""
    s_add_u32 s{sPB}, s{sPB}, {PT_STEP}
    s_add_u32 s{sKXR}, s{sKXR}, {32*8192}
    s_add_u32 s{sKM}, s{sKM}, {32*2048}
    s_add_u32 s{sSTEP}, s{sSTEP}, 1
    s_cmp_lt_u32 s{sSTEP}, 64
    s_cbranch_scc1 a_loop
    s_endpgm
    """)

    a.label("role_l")
    ln_setup(a, 3, 4, False)
    a(f"""
    s_sub_u32 s40, s{sID}, 204
    s_lshl_b32 s40, s40, 2
    s_add_u32 s40, s40, s{sW}
    s_mul_i32 s46, s40, 1280
    s_add_u32 s47, s46, 0x{WS_H2F:x}
    s_lshl_b32 s48, s40, 7
    s_add_u32 s48, s48, 0x{flag(FL_L):x}
    s_mov_b32 s49, 0x{flag(FL_CC):x}
    v_lshlrev_b32 v9, 1, v{L_DST}
    v_cndmask_b32 v9, v{L_DST}, v9, s[76:77]
    s_mov_b32 s40, {WS_MOD + 2*2560}
    s_mov_b32 s52, 20
    """)
    GA = 48
    for h in range(2):
        a(f"buffer_load_dwordx4 {vr(GA+8*h,4)}, v9, {WS}, s40 offen offset:{h*1280}")
        a(f"buffer_load_dwordx4 {vr(GA+8*h+4,4)}, v9, {WS}, s40 offen offset:{h*1280+16}")
    a.label("l_loop")
    stamp(a, 0)
    a(f"""
    s_add_u32 s45, s{sSTEP}, 1
    s_add_u32 s41, s46, 0x{WS_ATT:x}
    s_add_u32 s42, s46, 0x{WS_X1:x}
    s_mov_b32 s53, 0
    """)
    ln_load(a, XS, 46, "", False, raw=24)
    wait_flag(a, 49, 52, 53, 16, sleep=3)
    stamp(a, 1)
    ln_load(a, WS, 41, "sc1", False)
    a("s_waitcnt vmcnt(0)")
    ln_unpack(a, False)
    for j in range(8):
        x0, x1 = L_X + 2*j, L_X + 2*j + 1
        a(f"""
        v_mul_f32 v{x0}, v{x0}, v{GA+2*j}
        v_mul_f32 v{x1}, v{x1}, v{GA+2*j+1}
        v_cvt_pk_bf16_f32 v{L_T}, v{x0}, v{x1}
        v_lshlrev_b32 v{x0}, 16, v{L_T}
        v_and_b32 v{x1}, 0xffff0000, v{L_T}
        v_lshlrev_b32 v{L_T}, 16, v{24+j}
        v_and_b32 v{L_T2}, 0xffff0000, v{24+j}
        v_add_f32 v{x0}, v{x0}, v{L_T}
        v_add_f32 v{x1}, v{x1}, v{L_T2}
        v_cvt_pk_bf16_f32 v{32+j}, v{x0}, v{x1}
        v_lshlrev_b32 v{x0}, 16, v{32+j}
        v_and_b32 v{x1}, 0xffff0000, v{32+j}
        """)
    a(f"buffer_store_dwordx4 v[32:35], v{L_DST}, {WS}, s42 offen sc1")
    a(f"buffer_store_dwordx4 v[36:39], v{L_DST}, {WS}, s42 offen offset:640 sc1")
    ln_compute_store(a, 47)
    a("s_add_u32 s49, s49, 128")
    stamp(a, 2)
    a(f"""
    v_mov_b32 v16, s45
    s_add_u32 s46, s46, {32*1280}
    s_add_u32 s47, s47, {32*1280}
    s_waitcnt vmcnt(0)
    s_mov_b64 exec, 1
    buffer_store_dword v16, off, {WS}, s48 sc1
    s_mov_b64 exec, -1
    """)
    stamp(a, 3)
    stamp_flush(a, 4, 1)
    a(f"""
    s_add_u32 s{sSTEP}, s{sSTEP}, 1
    s_cmp_lt_u32 s{sSTEP}, 64
    s_cbranch_scc1 l_loop
    s_endpgm
    """)

    vPT, vBM, vXS = 240, 239, 242
    sUXR, sPFC = 33, 59
    sA, sV = 61, 62
    PFB = [16, 96]
    BMB = [128, 144]
    CAC = 176
    a.label("role_c")
    a(f"s_sub_u32 s{sID}, s{sID}, 184")
    setup_p_load_addrs(a, vPA, vPB, vBM)
    a(f"""
    s_lshl_b32 s40, s{sW}, 12
    v_add_u32 v{vPT}, s40, v{vL16}
    v_add_u32 v{vRd}, s40, v{vL16}
    s_lshl_b32 s40, s{sW}, 10
    v_add_u32 v{vWr}, s40, v{vL16}
    v_add_u32 v241, 16384, v{vWr}
    v_and_b32 v10, 15, v{vLANE}             ; n
    v_lshrrev_b32 v11, 5, v{vLANE}          ; pr
    v_lshl_add_u32 v10, v11, 4, v10
    v_bfe_u32 v11, v{vLANE}, 4, 1
    v_lshlrev_b32 v11, 2, v11
    s_lshl_b32 s40, s{sW}, 3
    v_add_u32 v11, s40, v11
    v_mul_u32_u24 v11, 1280, v11
    v_lshl_add_u32 v{vXS}, v10, 1, v11
    v_and_b32 v10, 1, v{vLANE}
    v_mov_b32 v11, 0x7ffffff0
    v_cmp_ne_u32 vcc, 0, v10
    v_lshlrev_b32 v243, 7, v{vLANE}
    v_mov_b32 v232, 0
    v_cndmask_b32 v{vXS}, v{vXS}, v11, vcc
    v_mov_b32 v231, 1
    s_lshl_b32 s40, s{sW}, 10
    s_add_u32 s{sFT}, s40, 0x{flag(FL_UF):x}
    s_add_u32 s{sA}, s40, 0x{flag(FL_A):x}
    s_add_u32 s{sV}, s40, 0x{flag(FL_VO):x}
    s_mov_b32 s{sFM}, 0x{flag(FL_MEM):x}
    s_mul_i32 s73, s{sW}, {8*40960}
    s_add_u32 s73, s73, 0x{WS_UX:x}
    s_cmp_ge_u32 s{sID}, 20
    s_cselect_b32 s57, 1, 0
    s_cselect_b32 s40, 20, 0
    s_sub_u32 s58, s{sID}, s40
    s_mov_b32 s60, s57
    s_mov_b32 s63, s58
    s_mov_b32 s68, s57
    s_mov_b32 s72, s58
    """)

    def adv(ss, sk):
        a(f"""
        s_add_u32 s{sk}, s{sk}, {NC-20}
        s_add_u32 s{ss}, s{ss}, 1
        s_cmp_ge_u32 s{sk}, 20
        s_cselect_b32 s40, 20, 0
        s_cselect_b32 s41, 1, 0
        s_sub_u32 s{sk}, s{sk}, s40
        s_add_u32 s{ss}, s{ss}, s41
        """)

    def c_needs():
        a(f"s_add_u32 s44, s60, 1")

    def c_offs():
        a(f"""
        s_mul_i32 s{sPB}, s60, {PT_STEP}
        s_add_u32 s{sPB}, s{sPB}, 0x{WS_PT:x}
        s_add_u32 s64, s{sPB}, {PB_RG}
        s_add_u32 s65, s{sPB}, {2*PB_RG}
        s_add_u32 s66, s{sPB}, {3*PB_RG}
        s_mul_i32 s67, s60, {UM_STEP}
        s_lshl_b32 s40, s63, 9
        s_add_u32 s67, s67, s40
        s_add_u32 s67, s67, 0x{WS_UMC:x}
        s_add_u32 s69, s67, 20480
        s_add_u32 s70, s67, 40960
        s_add_u32 s71, s67, 61440
        """)

    def c_flag_loads():
        a(f"""
        s_mov_b64 exec, 255
        buffer_load_dword v233, v243, {WS}, s{sA} offen sc1
        buffer_load_dwordx4 v[224:227], v243, {WS}, s{sFT} offen sc1
        s_mov_b64 exec, -1
        """)

    def c_test(fail):
        a(f"""
        v_min3_u32 v234, v233, v224, v225
        v_min3_u32 v234, v234, v226, v227
        s_mov_b64 exec, 255
        v_cmp_gt_u32 vcc, s44, v234
        s_mov_b64 exec, -1
        s_cbranch_vccnz {fail}
        """)

    def c_block():
        c_needs()
        top, retry, done = a.newlabel("cb"), a.newlabel("cb"), a.newlabel("cb")
        a.label(top)
        c_flag_loads()
        a("s_waitcnt vmcnt(0)")
        c_test(retry)
        a(f"s_branch {done}")
        a.label(retry)
        a(f"""
        s_sub_u32 s{sBUD}, s{sBUD}, 1
        s_cmp_lt_i32 s{sBUD}, 0
        s_cbranch_scc1 {done}
        s_sleep 3
        s_branch {top}
        """)
        a.label(done)

    def c_load_list(buf):
        L = []
        for rg in range(4):
            so = [sPB, 64, 65, 66][rg]
            PF = PFB[buf] + 20*rg
            for q in range(4):
                L.append(f"buffer_load_dwordx4 {vr(PF+q*4,4)}, v{vPT}, {WS}, s{so} offen offset:{q*1024} sc1")
            L.append(f"buffer_load_dwordx4 {vr(PF+16,4)}, v241, {WS}, s{so} offen sc1")
        for j in range(4):
            for pr in range(2):
                L.append(f"buffer_load_dwordx2 {ar(BMB[buf]+pr*8+2*j,2)}, v{vBM}, {WS}, s{[67,69,70,71][j]} offen offset:{pr*256} sc1")
        return L

    def c_ux(buf):
        ok, skip = a.newlabel("cux"), a.newlabel("cux")
        a(f"""
        s_cmp_ge_u32 s68, 64
        s_cbranch_scc1 {skip}
        s_add_u32 s45, s68, 1
        s_mov_b64 exec, 255
        v_cmp_gt_u32 vcc, s45, v232
        s_mov_b64 exec, -1
        s_cbranch_vccz {ok}
        """)
        wait_all(a, 8, 243, sV, 45, 232)
        a.label(ok)
        a(f"""
        s_mul_i32 s{sUXR}, s68, {UX_STEP}
        s_lshl_b32 s40, s72, 11
        s_add_u32 s{sUXR}, s{sUXR}, s40
        s_add_u32 s{sUXR}, s{sUXR}, s73
        """)
        for hh in range(8):
            for pr in range(2):
                a(f"buffer_load_dwordx4 {ar(buf*64+pr*32+hh*4,4)}, v{vL16}, {WS}, s{sUXR} offen offset:{pr*1024} sc1")
            a(f"s_add_u32 s{sUXR}, s{sUXR}, 40960")
        a.label(skip)
        adv(68, 72)

    def c_burst(buf):
        c_block()
        c_offs()
        for x in c_load_list(buf):
            a(x)
        adv(60, 63)
        c_flag_loads()
        a("s_waitcnt vmcnt(0)")

    def c_compute(buf, LL):
        b = Asm()
        for r in range(32):
            b(f"v_mov_b32 v{CAC+r}, 0")
        b.nop(1)
        for q in range(5):
            for pr in range(2):
                for rg in range(4):
                    f = PFB[buf] + 20*rg + q*4
                    B = ar(buf*64+pr*32+q*8, 8) if q < 4 else ar(BMB[buf]+pr*8, 8)
                    b(f"v_smfmac_f32_16x16x64_bf16 {vr(CAC+(pr*4+rg)*4,4)}, {vr(f,4)}, {B}, v{vIDX}")
        b.nop(6)
        for rg in range(4):
            A, B = CAC + rg*4, CAC + (4+rg)*4
            for r in range(4):
                b(f"v_permlane32_swap_b32 v{A+r}, v{B+r}")
            for r in range(4):
                b(f"v_add_f32 v{A+r}, v{A+r}, v{B+r}")
            b(f"ds_write_b128 v{vWr}, {vr(A,4)} offset:{rg*4096}")
        b(f"""
        s_waitcnt lgkmcnt(0)
        s_barrier
        """)
        FT = 208
        for q in range(4):
            b(f"ds_read_b128 {vr(FT+4*q,4)}, v{vRd} offset:{q*1024}")
        b(f"""
        s_mul_i32 s74, s57, {32*1280}
        s_lshl_b32 s75, s58, 6
        s_add_u32 s74, s74, s75
        s_add_u32 s74, s74, 0x{WS_ATT:x}
        s_lshl_b32 s75, s57, 7
        s_add_u32 s75, s75, 0x{flag(FL_CC):x}
        s_waitcnt lgkmcnt(0)
        """)
        for r in range(4):
            b(f"v_add_f32 v{FT+r}, v{FT+r}, v{FT+4+r}")
            b(f"v_add_f32 v{FT+8+r}, v{FT+8+r}, v{FT+12+r}")
        for r in range(4):
            b(f"v_add_f32 v{FT+r}, v{FT+r}, v{FT+8+r}")
        b.nop(1)
        for r in range(4):
            b(f"v_mov_b32_dpp v{FT+8+r}, v{FT+r} quad_perm:[1,0,3,2] row_mask:0xf bank_mask:0xf")
        for r in range(4):
            b(f"v_cvt_pk_bf16_f32 v{FT+r}, v{FT+r}, v{FT+8+r}")
            b(f"buffer_store_dword v{FT+r}, v{vXS}, {WS}, s74 offen offset:{r*1280} sc1")
        LL = list(LL)
        acc = 0
        for ln in b.lines:
            t = ln.strip()
            a.lines.append(ln)
            if not t or t.startswith(";"):
                continue
            if t.startswith("v_smfmac"):
                acc += 16
            elif t.startswith("ds_") or t.startswith("s_waitcnt") or t.startswith("s_barrier"):
                acc += 24
            elif t.startswith("buffer_store"):
                acc = 0
            else:
                acc += 4
            if acc >= C_GAP and LL and not t.startswith("v_cvt_pk_bf16_f32 v2"):
                a(LL.pop(0))
                acc = 0
        for x in LL:
            a(x)

    c_ux(0)
    c_ux(1)
    c_burst(0)
    a.label("c_loop")
    for buf in range(2):
        stamp(a, 0)
        plain, join, nb = a.newlabel("cpl"), a.newlabel("cjn"), a.newlabel("cnb")
        c_needs()
        a(f"s_mov_b32 s{sPFC}, 0")
        c_test(plain)
        a(f"""
        s_mov_b32 s{sPFC}, 1
        """)
        c_offs()
        c_compute(buf, c_load_list(1 - buf))
        c_flag_loads()
        adv(60, 63)
        a(f"s_branch {join}")
        a.label(plain)
        c_compute(buf, [])
        a.label(join)
        stamp(a, 1)
        a(f"""
        s_waitcnt vmcnt(0)
        s_barrier
        s_cmp_lg_u32 s{sW}, 3
        s_cbranch_scc1 c_nf{buf}
        s_mov_b64 exec, 1
        buffer_atomic_add v231, off, {WS}, s75
        s_mov_b64 exec, -1
        c_nf{buf}:
        """)
        adv(57, 58)
        c_ux(buf)
        stamp(a, 2)
        stamp_flush(a, 3, 1)
        a(f"""
        s_add_u32 s{sSTEP}, s{sSTEP}, 1
        s_cmp_ge_u32 s57, 64
        s_cbranch_scc1 r_end
        s_cmp_eq_u32 s{sPFC}, 1
        s_cbranch_scc1 {nb}
        """)
        c_burst(1 - buf)
        a.label(nb)
    a("s_branch c_loop")
    from gen_f import gen_phase2
    gen_phase2(a)
    a.label("r_end")
    a("s_endpgm")
    return (L, 256, 256, 131072, kernel_desc(L, 512, 256))
```

```python
import sys
from gen_common import *
from gen_prep import gen_prep
from gen_ln import gen_ln

HEADER = open('cdna_kernels/' + NAME + '.s.ref').read().split('; Override launch geometry')[0]


def build(stages):
    a = Asm()
    ks = []
    ks.append(gen_prep(a))
    import os
    if not os.environ.get('PREPONLY'):
        from gen_r import gen_r
        ks.append(gen_r(a))
    out = HEADER
    for (L, grid, block, lds, desc) in ks:
        out += f"; @launch kernel={L} grid=({grid},1,1) block=({block},1,1) lds={lds}\n"
    out += '.amdgcn_target "amdgcn-amd-amdhsa--gfx950"\n.text\n'
    out += a.text()
    out += '.section .rodata,"a"\n'
    for (L, grid, block, lds, desc) in ks:
        out += desc
    return out


if __name__ == "__main__":
    stages = sys.argv[2].split(',') if len(sys.argv) > 2 else ['r', 'ffn']
    open(sys.argv[1], 'w').write(build(stages))
```

```python
from gen_common import *
from gen_r import *

CNT_INIT, CNT_MOD20, CNT_MOD60, CNT_LN = 32, 36, 40, 64
DBG_INIT, DBG_MOD20, DBG_MOD60, DBG_LN, DBG_POL = 128+32, 128+36, 128+40, 128+64, 128+48
N_INITW = 68


def dbg_wait(a, off, need, vt, sleep=4):
    top, done = a.newlabel("dw"), a.newlabel("dwd")
    a.label(top)
    a(f"""
    buffer_load_dword v{vt}, off, {DBG}, 0 offset:{off} sc1
    s_waitcnt vmcnt(0)
    v_readfirstlane_b32 s44, v{vt}
    s_sub_u32 s{sBUD}, s{sBUD}, 1
    s_cmp_lt_i32 s{sBUD}, 0
    s_cbranch_scc1 {done}
    s_cmp_ge_u32 s44, {need}
    s_cbranch_scc1 {done}
    s_sleep {sleep}
    s_branch {top}
    """)
    a.label(done)


def dbg_wait_wg(a, items, vt, sleep=6):
    lab = a.newlabel("dwg")
    a(f"""
    s_cmp_lg_u32 s{sW}, 0
    s_cbranch_scc1 {lab}
    """)
    for off, need in items:
        dbg_wait(a, off, need, vt, sleep)
    a.label(lab)
    a("s_barrier")


def arrive(a, srd_, soff, off_cnt, n, off_flag, vt, soff_flag=None):
    lab = a.newlabel("ar")
    a(f"""
    v_mov_b32 v{vt}, 1
    buffer_atomic_add v{vt}, off, {srd_}, {soff} offset:{off_cnt} sc0
    s_waitcnt vmcnt(0)
    v_cmp_eq_u32 vcc, {n-1}, v{vt}
    v_mov_b32 v{vt}, 1
    s_cbranch_vccz {lab}
    buffer_store_dword v{vt}, off, {srd_}, {soff_flag or soff} offset:{off_flag} sc1
    {lab}:
    """)


def dbg_add(a, soff, off_cnt, n, vt, wv=0):
    lab = a.newlabel("da")
    a(f"""
    s_cmp_lg_u32 s{sW}, {wv}
    s_cbranch_scc1 {lab}
    s_mov_b64 exec, 1
    """)
    arrive(a, DBG, soff, off_cnt, n, off_cnt + 128, vt)
    a(f"""
    s_mov_b64 exec, -1
    {lab}:
    """)


def gen_boot(a):
    sBI = 31
    a.label("boot")
    a(f"""
    s_sub_u32 s{sBI}, s{sID}, 64            ; U: 0..39
    s_cmp_lt_u32 s{sID}, 112
    s_cbranch_scc1 boot_go
    s_sub_u32 s{sBI}, s{sID}, 136           ; 176..258 -> 40..122
    s_cmp_lt_u32 s{sID}, 259
    s_cbranch_scc1 boot_go
    s_sub_u32 s{sBI}, s{sID}, 137           ; 260..264 -> 123..127
    boot_go:
    s_load_dwordx4 s[64:67], s[0:1], {KA_C}
    s_load_dwordx2 s[68:69], s[0:1], {KA_MEM0}
    s_lshl_b32 s32, s{sBI}, 3
    s_lshl_b32 s40, s{sW}, 1
    s_add_u32 s32, s32, s40
    v_cmp_gt_u32 vcc, 40, v{vLANE}
    v_lshlrev_b32 v100, 5, v{vLANE}
    v_mov_b32 v10, 0x7ffffff0
    v_cndmask_b32 v100, v10, v100, vcc
    v_lshlrev_b32 v101, 6, v{vLANE}
    v_cndmask_b32 v101, v10, v101, vcc
    s_mov_b64 s[76:77], vcc
    s_mul_i32 s33, s32, 1280
    s_add_u32 s34, s33, {1024*1280}
    """)
    RAW = 160

    def xloads():
        for t in range(2):
            for r in range(2):
                a(f"buffer_load_dwordx4 {vr(RAW+16*t+8*r,4)}, v100, {XS}, s{33+t} offen offset:{r*1280}")
                a(f"buffer_load_dwordx4 {vr(RAW+16*t+8*r+4,4)}, v100, {XS}, s{33+t} offen offset:{r*1280+16}")
    a(f"""
    v_lshlrev_b32 v3, 4, v0
    s_sub_u32 s35, s{sBI}, 64
    s_waitcnt lgkmcnt(0)
    """)
    srd(a, 16, 64, D * 2)
    srd(a, 20, 66, D * 3840 * 2)
    srd(a, 72, 68, M * D * 2)
    a(f"""
    s_cmp_lt_u32 s35, 60
    s_cbranch_scc1 boot_mod
    s_sub_u32 s42, s{sBI}, 60
    s_cmp_lt_u32 s{sBI}, 64
    s_cselect_b32 s42, s{sBI}, s42
    """)
    xloads()
    a.label("boot_init")
    a(f"""
    s_lshl_b32 s41, s42, 12
    s_add_u32 s43, s41, 0x{WS_CRA:x}
    s_add_u32 s45, s41, 0x{WS_CRB + 0x10000 - 480*4096:x}
    s_cmp_ge_u32 s42, 480
    s_cselect_b32 s43, s45, s43
    s_sub_u32 s45, s41, {592*4096 - WS_FLAGS}
    s_cmp_ge_u32 s42, 592
    s_cselect_b32 s43, s45, s43
    s_cselect_b32 s46, 0, -1
    s_lshl_b32 s45, s42, 13
    s_add_u32 s45, s45, 0x{WS_CRB + CRB_DOOR - 608*8192:x}
    s_cmp_ge_u32 s42, 608
    s_cselect_b32 s43, s45, s43
    v_mov_b32 v12, s46
    v_mov_b32 v13, s46
    v_mov_b32 v14, s46
    v_mov_b32 v15, s46
    buffer_store_dwordx4 v[12:15], v3, {WS}, s43 offen sc1
    s_add_u32 s42, s42, {N_INITW}
    s_cmp_lt_u32 s42, 610
    s_cbranch_scc1 boot_init
    s_sub_u32 s42, s42, 610
    v_mov_b32 v12, -1
    v_mov_b32 v13, -1
    v_mov_b32 v14, -1
    v_mov_b32 v15, -1
    """)
    NL = 64 - SENT0
    regs = [(WS_PT + SENT0*PT_STEP, NL*PT_STEP), (WS_KM + SENT0*65536, NL*65536), (WS_ATT + SENT0*40960, NL*40960),
            (WS_X1 + SENT0*40960, NL*40960), (WS_H2F + SENT0*40960, NL*40960), (WS_ACT + SENT0*110592, NL*110592)]
    a.label("boot_arm")
    a("s_lshl_b32 s41, s42, 12")
    u = 0
    for k, (base, n) in enumerate(regs):
        if k == 0:
            a(f"s_add_u32 s43, s41, 0x{base:x}")
        else:
            a(f"""
            s_add_u32 s45, s41, 0x{base - u*4096:x}
            s_cmp_ge_u32 s42, {u}
            s_cselect_b32 s43, s45, s43
            """)
        assert n % 4096 == 0
        u += n // 4096
    a(f"""
    buffer_store_dwordx4 v[12:15], v3, {WS}, s43 offen sc1
    s_add_u32 s42, s42, {N_INITW}
    s_cmp_lt_u32 s42, {u}
    s_cbranch_scc1 boot_arm
    s_cmp_lg_u32 s{sBI}, 2
    s_cbranch_scc1 boot_nomem
    v_and_b32 v8, 7, v0
    v_mul_u32_u24 v8, 1280, v8
    v_lshrrev_b32 v9, 3, v0
    v_lshl_add_u32 v8, v9, 4, v8
    buffer_load_dwordx4 v[16:19], v8, s[72:75], 0 offen
    buffer_load_dwordx4 v[20:23], v8, s[72:75], 0 offen offset:512
    buffer_load_dwordx4 v[24:27], v8, s[72:75], 0 offen offset:1024
    s_waitcnt vmcnt(0)
    """)
    for k in range(12):
        a(f"v_min_u32 v{16+k}, -2, v{16+k}")
    for cp in range(2):
        for sel in range(2):
            base = WS_CRB + cp*32768 + sel*8192
            a(f"""
            s_mov_b32 s41, 0x{base:x}
            buffer_store_dwordx4 v[16:19], v3, {WS}, s41 offen sc1
            s_mov_b32 s41, 0x{base+4096:x}
            buffer_store_dwordx4 v[20:23], v3, {WS}, s41 offen sc1
            """)
    a(f"""
    s_cmp_ge_u32 s{sW}, 2
    s_cbranch_scc1 boot_nomem
    """)
    for cp in range(2):
        for sel in range(2):
            base = WS_CRB + cp*32768 + sel*8192 + 16384
            a(f"""
            s_mov_b32 s41, 0x{base:x}
            buffer_store_dwordx4 v[24:27], v3, {WS}, s41 offen sc1
            """)
    a.label("boot_nomem")
    a("s_waitcnt vmcnt(0)")
    a("s_barrier")
    dbg_add(a, "0", CNT_INIT, N_INITW, 12, wv=3)
    a(f"""
    s_and_b32 s40, s{sID}, 0xfffe
    s_cmp_eq_u32 s40, 102
    s_cbranch_scc1 pre_boot
    s_branch boot_nrm0
    """)
    a.label("boot_mod")
    a(f"""
    s_add_u32 s35, s35, 21
    s_cmp_ge_u32 s35, 60
    s_cselect_b32 s40, 60, 0
    s_sub_u32 s35, s35, s40
    v_and_b32 v8, 7, v0                     ; cc
    v_lshrrev_b32 v9, 3, v0                 ; rg
    v_mul_u32_u24 v10, 40, v9
    """)
    for i in range(5):
        a(f"buffer_load_dwordx2 {vr(104+2*i,2)}, v10, s[16:19], 0 offen offset:{8*i}")
    a(f"""
    v_mul_u32_u24 v11, {20*7680}, v9
    v_lshl_add_u32 v11, v8, 4, v11
    s_lshl_b32 s41, s35, 7
    """)
    for i in range(20):
        a(f"buffer_load_dwordx4 {vr(16+4*i,4)}, v11, s[20:23], s41 offen")
        a(f"s_add_u32 s41, s41, 7680")
    xloads()
    stamp(a, 0)
    a("s_waitcnt vmcnt(28)")
    stamp(a, 1)
    a("s_mov_b32 s42, 0xbfb8aa3b")
    C0, T0 = 116, 136
    for i in range(10):
        a(f"v_lshlrev_b32 v{C0+2*i}, 16, v{104+i}")
        a(f"v_and_b32 v{C0+2*i+1}, 0xffff0000, v{104+i}")
    for i in range(20):
        a(f"v_mul_f32 v{T0+i}, s42, v{C0+i}")
    for i in range(20):
        a(f"v_exp_f32 v{T0+i}, v{T0+i}")
    for i in range(20):
        a(f"v_add_f32 v{T0+i}, 1.0, v{T0+i}")
    for i in range(20):
        a(f"v_rcp_f32 v{T0+i}, v{T0+i}")
    for i in range(20):
        a(f"v_mul_f32 v{T0+i}, v{T0+i}, v{C0+i}")
    for i in range(10):
        a(f"v_cvt_pk_bf16_f32 v12, v{T0+2*i}, v{T0+2*i+1}")
        a(f"v_lshlrev_b32 v{C0+2*i}, 16, v12")
        a(f"v_and_b32 v{C0+2*i+1}, 0xffff0000, v12")
    for k in range(8):
        a(f"v_mov_b32 v{104+k}, 0")
    for i in range(20):
        a(f"s_waitcnt vmcnt({27-i})")
        for k in range(4):
            a(f"v_lshlrev_b32 v12, 16, v{16+4*i+k}")
            a(f"v_and_b32 v13, 0xffff0000, v{16+4*i+k}")
            a(f"v_fmac_f32 v{104+2*k}, v12, v{C0+i}")
            a(f"v_fmac_f32 v{105+2*k}, v13, v{C0+i}")
    stamp(a, 2)
    a(f"""
    v_lshlrev_b32 v12, 8, v9
    v_lshl_add_u32 v12, v8, 5, v12
    ds_write_b128 v12, v[104:107]
    ds_write_b128 v12, v[108:111] offset:16
    s_waitcnt lgkmcnt(0)
    s_barrier
    s_cmp_lg_u32 s{sW}, 0
    s_cbranch_scc1 boot_nrm0
    v_lshlrev_b32 v12, 2, v0
    """)
    for r in range(32):
        a(f"ds_read_b32 v{16+r}, v12 offset:{r*256}")
        if r == 15:
            a("s_waitcnt lgkmcnt(0)")
    a("s_waitcnt lgkmcnt(0)")
    for r in range(1, 32):
        a(f"v_add_f32 v16, v16, v{16+r}")
    a(f"""
    v_cvt_pk_bf16_f32 v16, v16, v16
    v_and_b32 v16, 0xffff0000, v16
    s_lshl_b32 s41, s35, 8
    buffer_store_dword v16, v12, {WS}, s41 offen offset:{WS_MOD} sc1
    s_waitcnt vmcnt(0)
    s_mov_b64 exec, 1
    s_cmp_ge_u32 s35, 20
    s_cbranch_scc1 boot_mod_no20
    """)
    arrive(a, DBG, "0", CNT_MOD20, 20, DBG_MOD20, 17)
    a.label("boot_mod_no20")
    arrive(a, DBG, "0", CNT_MOD60, 60, DBG_MOD60, 17)
    a("s_mov_b64 exec, -1")
    a.label("boot_nrm0")
    stamp(a, 3)
    X, NR = 16, 200
    a("s_mov_b32 s46, 0")
    a("s_waitcnt vmcnt(0)")
    a.label("boot_nrm")
    for j in range(8):
        a(f"v_lshlrev_b32 v{X+2*j}, 16, v{RAW+j}")
        a(f"v_and_b32 v{X+2*j+1}, 0xffff0000, v{RAW+j}")
    for j in range(24):
        a(f"v_mov_b32 v{RAW+j}, v{RAW+8+j}")
        a(f"v_mov_b32 v{NR+j}, v{NR+8+j}")
    a(f"v_add_f32 v12, v{X}, v{X+1}")
    for j in range(2, 16):
        a(f"v_add_f32 v12, v12, v{X+j}")
    ln_wave_sum(a, 12)
    a(f"v_mul_f32 v12, 0x3acccccd, v12")
    a(f"v_sub_f32 v14, v{X}, v12")
    a(f"v_mul_f32 v13, v14, v14")
    for j in range(1, 16):
        a(f"v_sub_f32 v14, v{X+j}, v12")
        a(f"v_fmac_f32 v13, v14, v14")
    a(f"v_cndmask_b32 v13, 0, v13, s[76:77]")
    ln_wave_sum(a, 13)
    a(f"v_mul_f32 v13, 0x3acccccd, v13")
    bf16r(a, 13)
    a(f"v_add_f32 v13, 0x3727c5ac, v13")
    bf16r(a, 13)
    a("v_sqrt_f32 v13, v13")
    a.nop(1)
    bf16r(a, 13)
    a("v_rcp_f32 v13, v13")
    bf16r(a, 12)
    for j in range(8):
        x0, x1 = X + 2*j, X + 2*j + 1
        a(f"""
        v_sub_f32 v{x0}, v{x0}, v12
        v_sub_f32 v{x1}, v{x1}, v12
        v_cvt_pk_bf16_f32 v14, v{x0}, v{x1}
        v_lshlrev_b32 v{x0}, 16, v14
        v_and_b32 v{x1}, 0xffff0000, v14
        v_mul_f32 v{x0}, v{x0}, v13
        v_mul_f32 v{x1}, v{x1}, v13
        v_cvt_pk_bf16_f32 v{NR+24+j}, v{x0}, v{x1}
        """)
    a(f"""
    s_add_u32 s46, s46, 1
    s_cmp_lt_u32 s46, 4
    s_cbranch_scc1 boot_nrm
    s_cmp_lg_u32 s{sW}, 0
    s_cbranch_scc1 boot_go2
    """)
    stamp(a, 4)
    dbg_wait(a, DBG_MOD20, 1, 12)
    stamp(a, 5)
    a.label("boot_go2")
    a(f"""
    s_barrier
    s_mov_b32 s40, {WS_MOD + 1*2560}
    s_mov_b32 s41, {WS_MOD + 0*2560}
    """)
    for k in range(4):
        a(f"buffer_load_dwordx4 {vr(32+4*k,4)}, v101, {WS}, s40 offen offset:{16*k} sc1")
    for k in range(4):
        a(f"buffer_load_dwordx4 {vr(48+4*k,4)}, v101, {WS}, s41 offen offset:{16*k} sc1")
    a(f"""
    v_lshlrev_b32 v100, 8, v{vLANE}
    s_lshl_b32 s40, s{sW}, 5
    v_add_u32 v100, s40, v100               ; b*256 + (2w)*16
    v_mov_b32 v10, 0x8000
    v_cndmask_b32 v100, v10, v100, s[76:77]
    ; global: linear LDS offset o -> (o/128)*256 + o%128
    v_lshrrev_b32 v10, 7, v3
    v_lshlrev_b32 v10, 8, v10
    v_and_b32 v11, 127, v3
    v_add_u32 v102, v10, v11
    s_lshr_b32 s40, s{sBI}, 1
    s_mul_i32 s40, s40, 20480
    s_and_b32 s41, s{sBI}, 1
    s_lshl_b32 s41, s41, 7
    s_add_u32 s40, s40, s41
    s_add_u32 s33, s40, 0x{WS_H1F:x}
    s_add_u32 s34, s33, {64*20480}
    s_waitcnt vmcnt(0)
    """)
    dst = [0, 2, 4, 6, 1, 3, 5, 7]
    OUT = 64
    for j in range(8):
        a(f"""
        v_add_f32 v{32+2*j}, 1.0, v{32+2*j}
        v_add_f32 v{33+2*j}, 1.0, v{33+2*j}
        v_cvt_pk_bf16_f32 v14, v{32+2*j}, v{33+2*j}
        v_lshlrev_b32 v{32+2*j}, 16, v14
        v_and_b32 v{33+2*j}, 0xffff0000, v14
        """)
        for r in range(4):
            src = NR + 8*r + j
            a(f"""
            v_lshlrev_b32 v12, 16, v{src}
            v_and_b32 v13, 0xffff0000, v{src}
            v_mul_f32 v12, v12, v{32+2*j}
            v_mul_f32 v13, v13, v{33+2*j}
            v_cvt_pk_bf16_f32 v14, v12, v13
            v_lshlrev_b32 v12, 16, v14
            v_and_b32 v13, 0xffff0000, v14
            v_add_f32 v12, v12, v{48+2*j}
            v_add_f32 v13, v13, v{49+2*j}
            v_cvt_pk_bf16_f32 v{OUT+8*r+dst[j]}, v12, v13
            """)
    for r in range(4):
        t, rr = r // 2, r % 2
        a(f"ds_write_b128 v100, {vr(OUT+8*r,4)} offset:{t*10240 + rr*16}")
        a(f"ds_write_b128 v100, {vr(OUT+8*r+4,4)} offset:{t*10240 + rr*16 + 128}")
    a("s_waitcnt lgkmcnt(0)")
    a("s_barrier")
    for t in range(2):
        for k in range(3):
            a(f"ds_read_b128 {vr(16+(t*3+k)*4,4)}, v3 offset:{t*10240 + k*4096}")
    a("s_waitcnt lgkmcnt(0)")
    for t in range(2):
        for k in range(2):
            a(f"s_add_u32 s40, s{33+t}, {k*8192}")
            a(f"buffer_store_dwordx4 {vr(16+(t*3+k)*4,4)}, v102, {WS}, s40 offen sc1")
    a(f"""
    s_cmp_ge_u32 s{sW}, 2
    s_cbranch_scc1 boot_st
    """)
    for t in range(2):
        a(f"s_add_u32 s40, s{33+t}, {2*8192}")
        a(f"buffer_store_dwordx4 {vr(16+(t*3+2)*4,4)}, v102, {WS}, s40 offen sc1")
    a(f"""
    boot_st:
    s_lshr_b32 s40, s{sBI}, 5
    s_lshl_b32 s40, s40, 2
    s_add_u32 s41, s40, 16
    s_waitcnt vmcnt(0)
    s_barrier
    """)
    stamp(a, 6)
    if STAMP:
        a(f"s_mov_b32 s{sSTEP}, 70")
        stamp_flush(a, 7, 12)
        a(f"s_mov_b32 s{sSTEP}, 0")
    dbg_add(a, "s40", CNT_LN, 32, 12, wv=0)
    dbg_add(a, "s41", CNT_LN, 32, 12, wv=1)
    dbg_wait_wg(a, [(DBG_INIT, 1), (DBG_MOD60, 1)], 12)
    a("s_branch boot_done")
```

```python
from gen_common import *
from gen_r import *

NG = 1


def rnd2(a, x0, x1, t):
    a(f"v_cvt_pk_bf16_f32 v{t}, v{x0}, v{x1}")
    a(f"v_lshlrev_b32 v{x0}, 16, v{t}")
    a(f"v_and_b32 v{x1}, 0xffff0000, v{t}")


def gen_phase2(a):
    sG, sJ, sSEG, sCNT, sFL, sFO = 31, 32, 33, 34, 35, 36
    vF = 9
    a.label("role_f")
    a(f"""
    s_load_dwordx4 s[64:67], s[0:1], {KA_WG}
    s_load_dwordx2 s[68:69], s[0:1], {KA_WD}
    s_load_dwordx2 s[70:71], s[0:1], {KA_OUT}
    v_lshlrev_b32 v{vF}, 7, v{vLANE}
    s_mov_b32 s45, 0x{flag(FL_MEM):x}
    s_mov_b32 s46, 1
    s_mov_b32 s47, 0
    s_waitcnt lgkmcnt(0)
    """)
    wait_flag(a, 45, 46, 47, 3, sleep=16)
    a(f"""
    s_cmp_ge_u32 s{sID}, 239
    s_cbranch_scc1 role_f2
    """)
    a(f"""
    s_mov_b32 s{sG}, 0
    s_sub_u32 s{sJ}, s{sID}, 212
    s_cmp_ge_u32 s{sW}, 2
    s_cselect_b32 s72, s66, s64
    s_cselect_b32 s73, s67, s65
    """)
    srd(a, 16, 72, D * F * 2)
    a(f"""
    v_lshrrev_b32 v10, 3, v{vLANE}          ; r8
    v_and_b32 v11, 7, v{vLANE}
    v_bfe_u32 v12, v10, 1, 1
    s_and_b32 s40, s{sW}, 1
    s_lshl_b32 s41, s40, 1
    v_or_b32 v12, s41, v12                  ; f2 = b1 | b3<<1
    v_lshlrev_b32 v12, 1, v12
    v_xor_b32 v11, v11, v12
    v_lshlrev_b32 v11, 4, v11
    s_lshl_b32 s41, s40, 3
    v_add_u32 v10, s41, v10
    v_mul_u32_u24 v10, {F*2}, v10
    v_add_u32 v11, v10, v11
    s_lshl_b32 s42, s{sJ}, 7                ; soffset
    s_lshr_b32 s43, s{sW}, 1
    s_mul_i32 s43, s43, 40960
    s_lshl_b32 s41, s41, 7
    s_add_u32 s43, s43, s41
    v_lshrrev_b32 v12, 4, v{vLANE}          ; g
    v_bfe_u32 v13, v{vLANE}, 2, 2           ; r
    v_and_b32 v14, 3, v{vLANE}              ; c
    v_lshl_add_u32 v15, v12, 3, v13
    v_lshlrev_b32 v15, 7, v15
    v_lshl_add_u32 v15, v14, 3, v15
    v_lshrrev_b32 v13, 1, v13
    v_and_b32 v12, 1, v12
    v_lshl_or_b32 v13, v12, 1, v13
    v_lshl_or_b32 v15, v13, 5, v15
    s_lshl_b32 s41, s40, 6                  ; (2fp)<<5
    v_xor_b32 v16, s41, v15
    v_xor_b32 v17, 32, v16
    v_add_u32 v18, 40960, v16
    v_add_u32 v19, 40960, v17
    """)
    for ph in range(2):
        a("s_mov_b32 s44, s43")
        for q in range(20):
            a(f"""
            s_mov_b32 m0, s44
            s_add_u32 s44, s44, 2048
            buffer_load_dwordx4 v11, s[16:19], s42 offen lds
            s_add_u32 s42, s42, {16*F*2}
            """)
        a("s_waitcnt vmcnt(0)")
        a("s_barrier")
        for ksl in range(10):
            for t in range(4):
                for j in range(2):
                    idx = (t * 20 + ph*10 + ksl) * 4 + 2*j
                    dst = ar(idx, 2) if idx < 256 else vr(192 + idx - 256, 2)
                    a(f"ds_read_b64_tr_b16 {dst}, v{16+t} offset:{ksl*4096+j*512}")
            a("s_waitcnt lgkmcnt(0)")
        a("s_barrier")
    sHOFF, sHBUF, sOUT, sPFD = 37, 38, 39, 46
    vH = 14
    dma_h_setup(a)
    a(f"""
    s_mov_b32 s{sSEG}, s{sG}
    s_mov_b32 s{sCNT}, 0
    s_mov_b32 s{sFL}, 0x{flag(FL_L):x}
    s_lshl_b32 s{sFO}, s{sG}, 5
    s_add_u32 s{sFO}, s{sFO}, s{sJ}
    s_lshl_b32 s{sFO}, s{sFO}, 7
    s_lshl_b32 s40, s{sW}, 2
    s_add_u32 s{sFO}, s{sFO}, s40
    s_add_u32 s{sFO}, s{sFO}, 0x{flag(FL_F1):x}
    s_mul_i32 s{sHOFF}, s{sG}, 40960
    s_add_u32 s{sHOFF}, s{sHOFF}, 0x{WS_H2F:x}
    s_mov_b32 s{sHBUF}, 0
    s_lshl_b32 s40, s{sG}, 1
    s_lshr_b32 s41, s{sW}, 1
    s_add_u32 s40, s40, s41
    s_mul_i32 s{sOUT}, s40, {54*1024}
    s_lshl_b32 s40, s{sJ}, 1
    s_and_b32 s42, s{sW}, 1
    s_add_u32 s40, s40, s42
    s_lshl_b32 s40, s40, 10
    s_add_u32 s{sOUT}, s{sOUT}, s40
    s_add_u32 s{sOUT}, s{sOUT}, 0x{WS_ACT:x}
    s_mul_i32 s47, s41, 20480
    s_mov_b32 s57, 0xbfb8aa3b
    s_add_u32 s56, s{sSEG}, 1
    """)
    wait_all(a, 32, vF, sFL, 56, 20)
    dma_h(a, sHOFF, sHBUF)
    a.label("f1_loop")
    stamp(a, 0)
    a(f"""
    v_mov_b32 v3, s{sCNT}
    s_add_u32 s40, s{sHBUF}, s47
    v_add_u32 v{vH}, s40, v{vL16}
    s_sub_u32 s{sHBUF}, 40960, s{sHBUF}
    s_add_u32 s{sHOFF}, s{sHOFF}, {NG*40960}
    s_add_u32 s{sSEG}, s{sSEG}, {NG}
    s_add_u32 s56, s{sSEG}, 1
    s_waitcnt vmcnt(0)
    s_mov_b64 exec, 1
    buffer_store_dword v3, off, {WS}, s{sFO} sc1
    s_mov_b32 exec_lo, -1
    s_mov_b32 exec_hi, 0
    v_cmp_gt_u32 vcc, s56, v20
    s_mov_b64 exec, -1
    s_barrier
    """)
    stamp(a, 1)
    HF1, AC1 = 24, 40

    def rd(ks):
        a(f"ds_read_b128 {vr(HF1+(ks%4)*4,4)}, v{vH} offset:{ks*1024}")

    def mm(with_dma):
        for k in range(3):
            rd(k)
        for ks in range(20):
            if ks + 3 < 20:
                rd(ks + 3)
            a(f"s_waitcnt lgkmcnt({min(3, 19-ks)})")
            for t in range(4):
                acc = vr(AC1 + 4*t, 4)
                a(f"v_mfma_f32_16x16x32_bf16 {acc}, {wreg(t,ks)}, {vr(HF1+(ks%4)*4,4)}, {'0' if ks == 0 else acc}")
                if with_dma and t == 1 and ks % 2 == 0:
                    dma_h_one(a)
    a(f"""
    s_mov_b32 s{sPFD}, 0
    s_cbranch_vccnz f1_plain
    s_mov_b32 s{sPFD}, 1
    """)
    dma_h_init(a, sHOFF, sHBUF)
    mm(True)
    a("s_branch f1_epi")
    a.label("f1_plain")
    a(f"""
    s_mov_b32 exec_lo, -1
    s_mov_b32 exec_hi, 0
    buffer_load_dword v20, v{vF}, {WS}, s{sFL} offen sc1
    s_mov_b64 exec, -1
    """)
    mm(False)
    a(f"""
    s_waitcnt vmcnt(0)
    s_mov_b32 exec_lo, -1
    s_mov_b32 exec_hi, 0
    v_cmp_gt_u32 vcc, s56, v20
    s_mov_b64 exec, -1
    s_cbranch_vccnz f1_epi
    s_mov_b32 s{sPFD}, 1
    """)
    dma_h(a, sHOFF, sHBUF)
    a.label("f1_epi")
    stamp(a, 2)
    a(f"""
    s_mov_b32 exec_lo, -1
    s_mov_b32 exec_hi, 0
    buffer_load_dword v20, v{vF}, {WS}, s{sFL} offen sc1
    s_mov_b64 exec, -1
    """)
    a.nop(4)
    O = 60
    for tt in range(2):
        g = AC1 + tt * 4
        u = AC1 + (2 + tt) * 4
        for hf in range(2):
            g0, g1, u0, u1 = g+2*hf, g+2*hf+1, u+2*hf, u+2*hf+1
            rnd2(a, g0, g1, 64)
            rnd2(a, u0, u1, 65)
            a(f"""
            v_mul_f32 v66, s57, v{g0}
            v_mul_f32 v67, s57, v{g1}
            v_exp_f32 v66, v66
            v_exp_f32 v67, v67
            s_nop 0
            v_add_f32 v66, 1.0, v66
            v_add_f32 v67, 1.0, v67
            v_rcp_f32 v66, v66
            v_rcp_f32 v67, v67
            s_nop 0
            v_mul_f32 v{g0}, v{g0}, v66
            v_mul_f32 v{g1}, v{g1}, v67
            """)
            rnd2(a, g0, g1, 64)
            a(f"""
            v_mul_f32 v{g0}, v{g0}, v{u0}
            v_mul_f32 v{g1}, v{g1}, v{u1}
            v_cvt_pk_bf16_f32 v{O+2*tt+hf}, v{g0}, v{g1}
            """)
    for k in range(4):
        a(f"v_min_u32 v{O+k}, -2, v{O+k}")
    a(f"""
    buffer_store_dwordx4 {vr(O,4)}, v{vL16}, {WS}, s{sOUT} offen sc1
    s_add_u32 s{sOUT}, s{sOUT}, {NG*2*54*1024}
    s_add_u32 s{sCNT}, s{sCNT}, 1
    """)
    stamp(a, 3)
    stamp_flush(a, 4, 1)
    a(f"""
    s_add_u32 s{sSTEP}, s{sSTEP}, 1
    s_cmp_ge_u32 s{sSEG}, 64
    s_cbranch_scc1 f1_fin
    s_cmp_eq_u32 s{sPFD}, 1
    s_cbranch_scc1 f1_loop
    s_cmp_gt_u32 s{sSEG}, {SENT0}
    s_cbranch_scc1 f1_late
    v_mov_b32 v3, s{sCNT}
    s_waitcnt vmcnt(0)
    s_mov_b64 exec, 1
    buffer_store_dword v3, off, {WS}, s{sFO} sc1
    s_mov_b64 exec, -1
    s_cmp_ge_u32 s{sSEG}, {SENT0}
    s_cbranch_scc1 f1_late
    """)
    wait_all(a, 32, vF, sFL, 56, 20)
    dma_h(a, sHOFF, sHBUF)
    a("s_branch f1_loop")
    a.label("f1_late")
    dma_h(a, sHOFF, sHBUF)
    a(f"""
    s_sub_u32 s43, s43, 10240
    v_add_u32 v21, s43, v{vL16}
    s_waitcnt vmcnt(0)
    """)
    for k in range(10):
        a(f"ds_read_b128 {vr(72+4*k,4)}, v21 offset:{k*1024}")
    a("s_waitcnt lgkmcnt(0)")
    vmax_chain(a, 22, range(72, 112))
    poll_fail(a, "f1_late", sleep=3)
    a("s_branch f1_loop")
    a.label("f1_fin")
    a(f"""
    v_mov_b32 v3, s{sCNT}
    s_waitcnt vmcnt(0)
    s_mov_b64 exec, 1
    buffer_store_dword v3, off, {WS}, s{sFO} sc1
    s_endpgm
    """)

    a.label("role_f2")
    srd(a, 16, 68, D * F * 2)
    srd(a, 20, 70, S * D * 2)
    sKS0 = 37
    a(f"""
    s_sub_u32 s40, s{sID}, 239
    s_mul_i32 s{sG}, s40, 6554
    s_lshr_b32 s{sG}, s{sG}, 16
    s_mul_i32 s41, s{sG}, 10
    s_sub_u32 s{sJ}, s40, s41
    s_mul_i32 s{sKS0}, s{sW}, 13
    s_min_u32 s40, s{sW}, 1
    s_add_u32 s{sKS0}, s{sKS0}, s40
    v_lshrrev_b32 v10, 3, v{vLANE}
    v_and_b32 v11, 7, v{vLANE}
    v_bfe_u32 v12, v10, 1, 2
    v_lshlrev_b32 v12, 1, v12
    v_xor_b32 v11, v11, v12
    v_lshlrev_b32 v11, 4, v11
    v_mul_u32_u24 v10, {D*2}, v10
    v_add_u32 v11, v10, v11
    s_mul_i32 s42, s{sKS0}, {32*D*2}
    s_lshl_b32 s40, s{sJ}, 7
    s_add_u32 s42, s42, s40                 ; soffset
    s_mul_i32 s43, s{sW}, 28672
    v_lshrrev_b32 v12, 4, v{vLANE}          ; g
    v_bfe_u32 v13, v{vLANE}, 2, 2           ; r
    v_and_b32 v14, 3, v{vLANE}              ; c
    v_lshl_add_u32 v15, v12, 2, v13
    v_lshlrev_b32 v15, 7, v15
    v_lshl_add_u32 v15, v14, 3, v15
    v_lshrrev_b32 v13, 1, v13
    v_and_b32 v12, 1, v12
    v_lshl_or_b32 v13, v12, 1, v13
    v_lshl_or_b32 v15, v13, 5, v15
    """)
    for t in range(4):
        a(f"v_xor_b32 v{16+t}, {t<<5}, v15")
        a(f"v_add_u32 v{16+t}, s43, v{16+t}")
    for ph in range(2):
        a("s_mov_b32 s44, s43")
        for q in range(28):
            a(f"""
            s_mov_b32 m0, s44
            s_add_u32 s44, s44, 1024
            buffer_load_dwordx4 v11, s[16:19], s42 offen lds
            s_add_u32 s42, s42, {8*D*2}
            """)
        a("s_waitcnt vmcnt(0)")
        for ksl in range(7):
            for t in range(4):
                for j in range(2):
                    a(f"ds_read_b64_tr_b16 {ar(((ph*7+ksl)*4+t)*4+2*j,2)}, v{16+t} offset:{ksl*4096+j*2048}")
            a("s_waitcnt lgkmcnt(0)")
    a(f"""
    s_cmp_lt_u32 s{sW}, 2
    s_cbranch_scc1 f2_nz
    """)
    for r in range(16):
        a(f"v_accvgpr_write_b32 a{r}, 0")
    a.label("f2_nz")
    AF2, AC2, FT = 16, 128, 160
    vWr, vRd, vO, vG = 12, 13, 14, 15
    sACT, sXO = 38, 39
    a(f"""
    s_barrier
    s_mov_b32 s{sSEG}, s{sG}
    s_mov_b32 s{sCNT}, 1
    s_lshr_b32 s{sFL}, s{sG}, 1
    s_lshl_b32 s{sFL}, s{sFL}, 12
    s_add_u32 s{sFL}, s{sFL}, 0x{flag(FL_F1):x}
    s_mul_i32 s{sACT}, s{sG}, {54*1024}
    s_lshl_b32 s40, s{sKS0}, 10
    s_add_u32 s{sACT}, s{sACT}, s40
    s_add_u32 s{sACT}, s{sACT}, 0x{WS_ACT:x}
    s_lshl_b32 s40, s{sW}, 10
    v_add_u32 v{vWr}, s40, v{vL16}
    s_lshl_b32 s40, s{sW}, 12
    v_add_u32 v{vRd}, s40, v{vL16}
    ; output: token = l%16, col = 64j + 16w + 4g
    v_and_b32 v10, 15, v{vLANE}
    v_mul_u32_u24 v10, 1280, v10
    v_lshrrev_b32 v11, 4, v{vLANE}
    v_lshl_add_u32 v{vO}, v11, 3, v10
    v_lshlrev_b32 v11, 4, v11
    s_lshl_b32 s40, s{sJ}, 2
    s_add_u32 s40, s40, s{sW}
    s_lshl_b32 s{sXO}, s40, 5
    s_mul_i32 s41, s{sG}, {16*1280}
    s_add_u32 s{sXO}, s{sXO}, s41
    s_lshl_b32 s40, s40, 6
    s_add_u32 s40, s40, {WS_MOD + 5*2560}
    buffer_load_dwordx4 v[200:203], v11, {WS}, s40 offen sc1
    v_add_u32 v8, 12288, v{vL16}
    """)
    a.label("f2_loop")
    stamp(a, 0)
    a(f"""
    s_cmp_ge_u32 s{sSEG}, {2*SENT0}
    s_cbranch_scc1 f2_ld
    """)
    wait_all(a, 27, vF, sFL, sCNT, 204, ndw=4)
    stamp(a, 1)
    a.label("f2_ld")
    for ks in range(14):
        off = ks * 1024
        av = [vL16, vL16b, vL16c, 8][off // 4096]
        a(f"buffer_load_dwordx4 {vr(AF2+ks*4,4)}, v{av}, {WS}, s{sACT} offen offset:{off%4096} sc1")
    a(f"""
    s_add_u32 s41, s{sXO}, 0x{WS_X1:x}
    buffer_load_dwordx2 v[208:209], v{vO}, {WS}, s41 offen sc1
    v_mov_b32 v204, 0
    """)
    for ks in range(14):
        a(f"s_waitcnt vmcnt({14-ks})")
        for t in range(4):
            acc = vr(AC2 + t*4, 4)
            a(f"v_mfma_f32_16x16x32_bf16 {acc}, {ar((ks*4+t)*4,4)}, {vr(AF2+ks*4,4)}, {'0' if ks == 0 else acc}")
            if t < 2:
                a(f"v_max3_u32 v204, v204, v{AF2+ks*4+2*t}, v{AF2+ks*4+2*t+1}")
    a(f"""
    s_waitcnt vmcnt(0)
    v_max3_u32 v204, v204, v208, v209
    v_cmp_eq_u32 vcc, -1, v204
    """)
    poll_fail(a, "f2_ld", sleep=3)
    stamp(a, 2)
    a.nop(6)
    for t in range(4):
        a(f"ds_write_b128 v{vWr}, {vr(AC2+t*4,4)} offset:{t*4096}")
    a(f"""
    s_waitcnt lgkmcnt(0)
    s_barrier
    """)
    for q in range(4):
        a(f"ds_read_b128 {vr(FT+q*4,4)}, v{vRd} offset:{q*1024}")
    a(f"""
    s_waitcnt vmcnt(0) lgkmcnt(0)
    s_barrier
    """)
    b = FT
    for r in range(4):
        a(f"v_add_f32 v{b+r}, v{b+r}, v{b+4+r}")
        a(f"v_add_f32 v{b+8+r}, v{b+8+r}, v{b+12+r}")
    for r in range(4):
        a(f"v_add_f32 v{b+r}, v{b+r}, v{b+8+r}")
    x = 208
    for hf in range(2):
        d0, d1 = b+2*hf, b+2*hf+1
        rnd2(a, d0, d1, 212)
        a(f"v_mul_f32 v{d0}, v{d0}, v{200+2*hf}")
        a(f"v_mul_f32 v{d1}, v{d1}, v{201+2*hf}")
        rnd2(a, d0, d1, 212)
        a(f"""
        v_lshlrev_b32 v212, 16, v{x+hf}
        v_and_b32 v213, 0xffff0000, v{x+hf}
        v_add_f32 v{d0}, v{d0}, v212
        v_add_f32 v{d1}, v{d1}, v213
        v_cvt_pk_bf16_f32 v{b+4+hf}, v{d0}, v{d1}
        """)
    a(f"buffer_store_dwordx2 {vr(b+4,2)}, v{vO}, s[20:23], s{sXO} offen")
    stamp(a, 3)
    stamp_flush(a, 4, 1)
    a(f"""
    s_add_u32 s{sSTEP}, s{sSTEP}, 1
    s_add_u32 s{sACT}, s{sACT}, {2*54*1024}
    s_add_u32 s{sXO}, s{sXO}, {2*16*1280}
    s_add_u32 s{sCNT}, s{sCNT}, 1
    s_add_u32 s{sSEG}, s{sSEG}, 2
    s_cmp_lt_u32 s{sSEG}, 128
    s_cbranch_scc1 f2_loop
    s_endpgm
    """)
```

```python
from gen_common import *
import os

P_SLEEP0 = int(os.environ.get("P_SLEEP0", "33"))
P_SLEEP1 = int(os.environ.get("P_SLEEP1", "46"))
U_SLEEPM = int(os.environ.get("U_SLEEPM", "14"))
U_SLEEPP = int(os.environ.get("U_SLEEPP", "12"))
STAMP = int(os.environ.get("STAMP", "0"))
L1FIRST = 0
FORCEPOL = os.environ.get("FORCEPOL", "")
U_SLEEPD = int(os.environ.get("U_SLEEPD", "12"))
DOOR = int(os.environ.get("DOOR", "1"))
C_GAP = int(os.environ.get("C_GAP", "56"))
C_UXTAIL = int(os.environ.get("C_UXTAIL", "16"))
V_SLEEP = int(os.environ.get("V_SLEEP", "8"))
VM_FILL = int(os.environ.get("VM_FILL", "3"))
PKADD = int(os.environ.get("PKADD", "1"))
PDELAY = int(os.environ.get("PDELAY", "0"))
TDEPTH = int(os.environ.get("TDEPTH", "2"))
PDEPTH = int(os.environ.get("PDEPTH", "2"))
CT0 = 20 * int(os.environ.get("CSEG0", "48"))
XMAP = int(os.environ.get("XMAP", "76540321"), 16)
NOTOK = int(os.environ.get("NOTOK", "0"))

WS, DBG, WQ, WK, XS = "s[8:11]", "s[12:15]", "s[16:19]", "s[20:23]", "s[24:27]"
sW, sID, sSTEP, sBUD = 3, 28, 29, 30
vLANE, vIDX = 2, 4
vL16, vL16b, vL16c = 5, 6, 7
vM8 = 187
sSA, sSB = 98, 99
MEMF = 16
ACC = 56
LDS_T = 0x14000
LDS_R = 0x15000
LDS_ROLE = 0x1F000


def wreg(t, ks, n=4):
    idx = (t * 20 + ks) * 4
    if idx < 256:
        return ar(idx, n)
    return vr(192 + idx - 256, n)


def widx(idx, n=4):
    return ar(idx, n) if idx < 256 else vr(192 + idx - 256, n)


def l16(off):
    return f"v{vL16 + off // 4096}", off % 4096


def poll_fail(a, retry_label, sleep=2):
    ok = a.newlabel("pok")
    a(f"""
    s_cbranch_vccz {ok}
    s_sub_u32 s{sBUD}, s{sBUD}, 1
    s_cmp_lt_i32 s{sBUD}, 0
    s_cbranch_scc1 {ok}
    s_sleep {sleep}
    s_branch {retry_label}
    """)
    a.label(ok)


def wait_flag(a, s_flagoff, s_need, s_seen, vt, sleep=8):
    top = a.newlabel("wf")
    done = a.newlabel("wfd")
    a.label(top)
    a(f"""
    s_cmp_ge_u32 s{s_seen}, s{s_need}
    s_cbranch_scc1 {done}
    buffer_load_dword v{vt}, off, {WS}, s{s_flagoff} sc1
    s_waitcnt vmcnt(0)
    v_readfirstlane_b32 s{s_seen}, v{vt}
    s_nop 3
    s_cmp_ge_u32 s{s_seen}, s{s_need}
    s_cbranch_scc1 {done}
    s_sub_u32 s{sBUD}, s{sBUD}, 1
    s_cmp_lt_i32 s{sBUD}, 0
    s_cbranch_scc1 {done}
    s_sleep {sleep}
    s_branch {top}
    """)
    a.label(done)


def vmax_chain(a, vt, regs):
    regs = list(regs)
    a(f"v_max3_u32 v{vt}, v{regs[0]}, v{regs[1]}, v{regs[2]}")
    k = 3
    while k < len(regs):
        if k + 1 < len(regs):
            a(f"v_max3_u32 v{vt}, v{vt}, v{regs[k]}, v{regs[k+1]}")
            k += 2
        else:
            a(f"v_max_u32 v{vt}, v{vt}, v{regs[k]}")
            k += 1
    a(f"v_cmp_eq_u32 vcc, -1, v{vt}")


def get_pol(a, vt):
    from gen_boot import dbg_wait_wg, DBG_INIT, DBG_POL
    dbg_wait_wg(a, [(DBG_INIT, 1), (DBG_POL, 1), (DBG_POL+4, 1)], vt)
    a(f"""
    buffer_load_dwordx2 v[184:185], off, {DBG}, 0 offset:{DBG_POL} sc1
    s_waitcnt vmcnt(0)
    v_readfirstlane_b32 s{sSA}, v184
    v_readfirstlane_b32 s{sSB}, v185
    s_nop 3
    s_and_b32 s{sSA}, s{sSA}, 2
    s_lshl_b32 s{sSA}, s{sSA}, 12
    s_and_b32 s{sSB}, s{sSB}, 2
    s_lshl_b32 s{sSB}, s{sSB}, 12
    v_add_u32 v{vM8}, 16384, v{vL16}
    """)


def mem_loads(a, s_memoff, flag="sc1", start=0):
    for kb in range(start, 10):
        r, o = l16(kb * 1024)
        if kb >= 8:
            r = f"v{vM8}"
        a(f"buffer_load_dwordx4 {vr(MEMF+4*kb,4)}, {r}, {WS}, s{s_memoff} offen offset:{o} {flag}")


DEFERRED = []


def flush_deferred(a):
    for f in DEFERRED:
        f()
    DEFERRED.clear()


def mem_proj(a, tiles, s_memoff, vmax, sleep=1, after_first=None):
    base = a.newlabel("mp")
    mem_loads(a, s_memoff, "" if L1FIRST else "sc1")
    for t in tiles:
        for r in range(4):
            a(f"v_mov_b32 v{ACC+4*t+r}, 0")

    def chk(kb):
        f = MEMF + 4 * kb
        return [f"s_waitcnt vmcnt({9-kb})",
                f"v_max3_u32 v{vmax}, v{f}, v{f+1}, v{f+2}",
                f"v_max_u32 v{vmax}, v{vmax}, v{f+3}\nv_cmp_eq_u32 vcc, -1, v{vmax}"]
    for x in chk(0):
        a(x)
    a(f"s_cbranch_vccnz {base}_r0")
    for kb in range(10):
        f = MEMF + 4 * kb
        a.label(f"{base}_c{kb}")
        if kb == 9 and after_first:
            after_first()
        nxt = chk(kb + 1) if kb < 9 else []
        for n, t in enumerate(tiles):
            a(f"v_smfmac_f32_16x16x64_bf16 {vr(ACC+4*t,4)}, {vr(f,4)}, {wreg(t,2*kb,8)}, v{vIDX}")
            if n < len(nxt):
                a(nxt[n])
        for x in nxt[len(tiles):]:
            a(x)
        if kb < 9:
            a(f"s_cbranch_vccnz {base}_r{kb+1}")

    def ool():
        for kb in range(10):
            a.label(f"{base}_r{kb}")
            a(f"""
            s_sub_u32 s{sBUD}, s{sBUD}, 1
            s_cmp_lt_i32 s{sBUD}, 0
            s_cbranch_scc1 {base}_c{kb}
            s_sleep {sleep}
            """)
            mem_loads(a, s_memoff, "sc1", kb)
            for x in chk(kb):
                a(x)
            a(f"s_cbranch_vccnz {base}_r{kb}")
            a(f"s_branch {base}_c{kb}")
    DEFERRED.append(ool)


def combine_pair(a, t0, t1, d01, d23):
    A, B = ACC + 4 * t0, ACC + 4 * t1
    for r in range(4):
        a(f"v_permlane32_swap_b32 v{A+r}, v{B+r}")
    if PKADD:
        for r in (0, 2):
            a(f"v_pk_add_f32 v[{A+r}:{A+r+1}], v[{A+r}:{A+r+1}], v[{B+r}:{B+r+1}]")
    else:
        for r in range(4):
            a(f"v_add_f32 v{A+r}, v{A+r}, v{B+r}")
    a(f"v_cvt_pk_bf16_f32 v{d01}, v{A}, v{A+1}")
    a(f"v_cvt_pk_bf16_f32 v{d23}, v{A+2}, v{A+3}")


def load_wqk(a, mats=(WQ, WK), depth=3):
    a.comment("---- load Wq/Wk fragments")
    a(f"""
    v_lshrrev_b32 v10, 4, v{vLANE}          ; r = lane/16
    v_and_b32 v11, 15, v{vLANE}             ; chunk'
    v_and_b32 v12, 1, v10
    s_lshl_b32 s40, s{sW}, 1
    v_or_b32 v12, s40, v12                  ; f = (r&1)|(w<<1)
    v_lshlrev_b32 v12, 1, v12
    v_xor_b32 v11, v11, v12
    v_lshlrev_b32 v11, 4, v11
    s_lshl_b32 s40, s{sW}, 2
    v_add_u32 v12, s40, v10                 ; 4w+r
    v_lshl_add_u32 v11, v12, 13, v11
    s_lshl_b32 s41, s{sID}, 8
    s_lshl_b32 s42, s{sW}, 10
    v_bfe_u32 v12, v{vLANE}, 2, 2           ; r
    v_and_b32 v13, 3, v{vLANE}              ; c
    v_lshrrev_b32 v14, 1, v10               ; g>>1
    v_lshlrev_b32 v14, 4, v14               ; 16*(g>>1)
    v_and_b32 v15, 1, v10                   ; g&1
    v_lshl_add_u32 v14, v15, 2, v14         ; +4*(g&1)
    v_and_b32 v16, 1, v12
    v_add_u32 v14, v14, v16                 ; +(r&1)
    v_lshrrev_b32 v17, 1, v12               ; r>>1
    v_lshl_add_u32 v14, v17, 3, v14         ; +8*(r>>1)
    v_lshlrev_b32 v14, 8, v14
    v_lshl_add_u32 v14, v13, 3, v14         ; + c*8
    v_lshl_or_b32 v16, v15, 1, v16
    v_lshl_or_b32 v16, v17, 2, v16          ; f
    v_lshl_or_b32 v14, v16, 5, v14
    s_lshl_b32 s40, s{sW}, 6                ; (2w)<<5
    v_xor_b32 v18, s40, v14                 ; tile 2w
    v_xor_b32 v19, 32, v18                  ; tile 2w+1
    v_add_u32 v20, 0x10000, v18
    v_add_u32 v21, 0x10000, v19
    """)

    nm = len(mats)

    def dma(cn):
        buf = cn % 4
        for mat, sd in enumerate(mats):
            for q in range(4):
                a(f"""
                s_add_u32 s43, s42, {buf*32768 + mat*16384 + q*4096}
                s_mov_b32 m0, s43
                s_add_u32 s44, s41, {(cn*64+16*q)*8192}
                buffer_load_dwordx4 v11, {sd}, s44 offen lds
                """)
    for cn in range(depth):
        dma(cn)
    for cn in range(10):
        later = min(depth - 1, 9 - cn)
        a(f"s_waitcnt vmcnt({4*nm*later})")
        a("s_barrier")
        if cn + depth < 10:
            dma(cn + depth)
        buf = cn % 4
        for mat in range(nm):
            for tt in range(2):
                for ksl in range(2):
                    for j in range(2):
                        idx = ((mat*2+tt) * 20 + cn*2 + ksl) * 4 + 2*j
                        av = 18 + tt + (2 if buf >= 2 else 0)
                        a(f"ds_read_b64_tr_b16 {widx(idx,2)}, v{av} offset:{(buf&1)*32768 + mat*16384 + ksl*8192 + j*512}")
            a("s_waitcnt lgkmcnt(0)")
    a("s_barrier")


def load_wo(a, sd):
    a.comment("---- load Wo fragments")
    for q in range(5):
        a(f"""
        v_add_u32 v10, {64*q}, v{vLANE}
        v_mul_u32_u24 v11, 3277, v10
        v_lshrrev_b32 v11, 16, v11            ; row = q/20
        v_mul_u32_u24 v12, 20, v11
        v_sub_u32 v10, v10, v12               ; chunk
        v_mul_u32_u24 v11, 1280, v11
        v_lshl_add_u32 v{16+q}, v10, 4, v11
        """)
    a(f"""
    s_mul_i32 s41, s{sID}, 163840
    s_mul_i32 s40, s{sW}, 320
    s_add_u32 s41, s41, s40                 ; soffset
    s_mul_i32 s42, s{sW}, 20480
    v_lshrrev_b32 v10, 4, v{vLANE}          ; g
    v_bfe_u32 v11, v{vLANE}, 2, 2           ; r
    v_lshl_add_u32 v10, v10, 2, v11
    v_mul_u32_u24 v10, 320, v10
    v_and_b32 v11, 3, v{vLANE}
    v_lshl_add_u32 v10, v11, 3, v10
    v_add_u32 v21, s42, v10
    """)
    for half in range(2):
        a("s_mov_b32 s43, s42")
        for blk in range(4):
            for q in range(5):
                a(f"""
                s_mov_b32 m0, s43
                s_add_u32 s43, s43, 1024
                buffer_load_dwordx4 v{16+q}, {sd}, s41 offen lds
                """)
            a(f"s_add_u32 s41, s41, {16*1280}")
        a("s_waitcnt vmcnt(0)")
        for jt in range(10):
            for kl in range(2):
                for j in range(2):
                    idx = 160 + (jt*4 + half*2 + kl) * 4 + 2*j
                    a(f"ds_read_b64_tr_b16 {widx(idx,2)}, v21 offset:{(32*kl+16*j)*320 + jt*32}")
            if jt % 2 == 1:
                a("s_waitcnt lgkmcnt(0)")
    a("s_barrier")


def load_wvo(a):
    a.comment("---- load Wvo fragments (linear)")
    a(f"""
    s_lshl_b32 s40, s{sID}, 2
    s_add_u32 s40, s40, s{sW}
    s_mul_i32 s40, s40, 81920
    s_add_u32 s40, s40, 0x{WS_WVO:x}
    """)
    for f in range(80):
        a(f"buffer_load_dwordx4 {wreg(f//20, f%20)}, v{vL16}, {WS}, s40 offen offset:{(f%4)*1024}")
        if f % 4 == 3:
            a("s_add_u32 s40, s40, 4096")
        if f % 40 == 39:
            a("s_waitcnt vmcnt(20)" if f < 79 else "s_waitcnt vmcnt(0)")


vHG = 15


def dma_h_setup(a):
    a(f"""
    v_and_b32 v10, 15, v{vLANE}
    v_mul_u32_u24 v10, 1280, v10
    v_lshrrev_b32 v{vHG}, 4, v{vLANE}
    v_lshl_add_u32 v{vHG}, v{vHG}, 4, v10
    """)


def dma_h_init(a, s_hoff, s_buf):
    a(f"""
    s_mul_i32 s43, s{sW}, 10240
    s_add_u32 s43, s43, s{s_buf}
    s_lshr_b32 s44, s{sW}, 1
    s_mul_i32 s44, s44, 20480
    s_and_b32 s45, s{sW}, 1
    s_mul_i32 s45, s45, 640
    s_add_u32 s44, s44, s45
    s_add_u32 s44, s44, s{s_hoff}
    """)


def dma_h_one(a):
    a(f"""
    s_mov_b32 m0, s43
    s_add_u32 s43, s43, 1024
    buffer_load_dwordx4 v{vHG}, {WS}, s44 offen sc1 lds
    s_add_u32 s44, s44, 64
    """)


def dmal_init(a, s_hoff, s_buf):
    a(f"""
    s_mul_i32 s43, s{sW}, 10240
    s_add_u32 s44, s43, s{s_hoff}
    s_add_u32 s43, s43, s{s_buf}
    """)


def dmal_one(a):
    a(f"""
    s_mov_b32 m0, s43
    s_add_u32 s43, s43, 1024
    buffer_load_dwordx4 v{vL16}, {WS}, s44 offen sc1 lds
    s_add_u32 s44, s44, 1024
    """)


def dma_h(a, s_hoff, s_buf):
    dma_h_init(a, s_hoff, s_buf)
    for k in range(10):
        dma_h_one(a)


HF = 104
TACC = 72


def dense_proj(a, vH, transposed, hook=None, tiles=(0, 1, 2, 3)):
    def rd(ks):
        st = HF + (ks % 3) * 8
        for mt in range(2):
            a(f"ds_read_b128 {vr(st+4*mt,4)}, v{vH} offset:{mt*20480+ks*1024}")
    rd(0)
    rd(1)
    for ks in range(20):
        if ks + 2 < 20:
            rd(ks + 2)
            a("s_waitcnt lgkmcnt(4)")
        elif ks + 1 < 20:
            a("s_waitcnt lgkmcnt(2)")
        else:
            a("s_waitcnt lgkmcnt(0)")
        st = HF + (ks % 3) * 8
        for n, t in enumerate(tiles):
            for mt in range(2):
                acc = vr(TACC + (t*2+mt)*4, 4)
                c = "0" if ks == 0 else acc
                if transposed:
                    a(f"v_mfma_f32_16x16x32_bf16 {acc}, {wreg(t,ks)}, {vr(st+4*mt,4)}, {c}")
                else:
                    a(f"v_mfma_f32_16x16x32_bf16 {acc}, {vr(st+4*mt,4)}, {wreg(t,ks)}, {c}")
            if n == len(tiles) // 2 - 1 and hook:
                hook(ks)


def round_scale(a, xs, tmp, s_scale):
    def rnd():
        for k in range(0, len(xs), 2):
            x0 = xs[k]
            x1 = xs[k+1] if k + 1 < len(xs) else xs[k]
            a(f"v_cvt_pk_bf16_f32 v{tmp+k//2}, v{x0}, v{x1}")
        for k in range(0, len(xs), 2):
            a(f"v_lshlrev_b32 v{xs[k]}, 16, v{tmp+k//2}")
            if k + 1 < len(xs):
                a(f"v_and_b32 v{xs[k+1]}, 0xffff0000, v{tmp+k//2}")
    rnd()
    for x in xs:
        a(f"v_mul_f32 v{x}, s{s_scale}, v{x}")
    rnd()


def xlane(a, op, v, t, with8):
    if with8:
        a.nop(2)
        a(f"{op}_dpp v{v}, v{v}, v{v} row_ror:8 row_mask:0xf bank_mask:0xf")
    for sw in ("v_permlane16_swap_b32", "v_permlane32_swap_b32"):
        a(f"v_mov_b32 v{t}, v{v}")
        a.nop(2)
        a(f"{sw} v{v}, v{t}")
        a(f"{op} v{v}, v{v}, v{t}")


def softmax(a, xs, vm, vt, s_log2e, with8):
    a(f"v_max3_f32 v{vm}, v{xs[0]}, v{xs[1]}, v{xs[2]}")
    k = 3
    while k < len(xs):
        if k + 1 < len(xs):
            a(f"v_max3_f32 v{vm}, v{vm}, v{xs[k]}, v{xs[k+1]}")
            k += 2
        else:
            a(f"v_max_f32 v{vm}, v{vm}, v{xs[k]}")
            k += 1
    xlane(a, "v_max_f32", vm, vt, with8)
    for x in xs:
        a(f"v_sub_f32 v{x}, v{x}, v{vm}")
    for x in xs:
        a(f"v_mul_f32 v{x}, s{s_log2e}, v{x}")
    for x in xs:
        a(f"v_exp_f32 v{x}, v{x}")
    a(f"v_add_f32 v{vm}, v{xs[0]}, v{xs[1]}")
    for x in xs[2:]:
        a(f"v_add_f32 v{vm}, v{vm}, v{x}")
    xlane(a, "v_add_f32", vm, vt, with8)
    a(f"v_rcp_f32 v{vm}, v{vm}")
    a.nop(1)
    for x in xs:
        a(f"v_mul_f32 v{x}, v{x}, v{vm}")


def setup_qk_lds_addrs(a, vW, vR):
    a(f"""
    v_and_b32 v10, 15, v{vLANE}             ; n
    v_lshrrev_b32 v11, 4, v{vLANE}          ; g
    v_lshrrev_b32 v12, 1, v11
    v_lshl_add_u32 v10, v12, 4, v10         ; 16*(g>>1)+n
    s_lshl_b32 s40, s{sW}, 5
    v_add_u32 v10, s40, v10                 ; +32w
    v_lshlrev_b32 v10, 4, v10
    v_and_b32 v12, 1, v11
    v_lshl_add_u32 v10, v12, 3, v10
    v_add_u32 v{vW}, 0x{LDS_T:x}, v10
    v_bfe_u32 v12, v{vLANE}, 2, 2           ; r
    v_lshl_add_u32 v12, v11, 2, v12         ; 4g+r
    v_lshlrev_b32 v12, 4, v12
    v_and_b32 v13, 1, v{vLANE}
    v_lshl_add_u32 v12, v13, 3, v12
    v_add_u32 v{vR}, 0x{LDS_T:x}, v12
    """)


def setup_p_load_addrs(a, vA, vB, vM, wstride=8*640, hstride=10240):
    a(f"""
    v_bfe_u32 v10, v{vLANE}, 3, 1           ; rho
    v_and_b32 v11, 7, v{vLANE}              ; i
    v_lshrrev_b32 v12, 4, v{vLANE}          ; gA
    v_lshrrev_b32 v13, 1, v12               ; gA>>1
    v_and_b32 v14, 1, v12                   ; gA&1
    s_mul_i32 s40, s{sW}, {wstride}
    v_mul_u32_u24 v15, 640, v10
    v_add_u32 v15, s40, v15
    v_lshl_add_u32 v15, v13, 8, v15
    v_lshl_add_u32 v15, v11, 5, v15
    v_lshl_add_u32 v{vA}, v14, 4, v15
    v_lshl_add_u32 v15, v13, 2, v14
    v_mul_u32_u24 v15, 640, v15
    v_add_u32 v15, s40, v15
    v_lshl_add_u32 v15, v10, 6, v15
    v_lshl_add_u32 v15, v11, 3, v15
    v_add_u32 v{vB}, 512, v15
    s_mul_i32 s40, s{sW}, {8*hstride}
    v_mul_u32_u24 v15, {hstride}, v13
    v_add_u32 v15, s40, v15
    v_lshl_add_u32 v15, v14, 7, v15
    v_and_b32 v11, 15, v{vLANE}
    v_lshl_add_u32 v{vM}, v11, 3, v15
    """)


def p_loads(a, PF, vA, vB, s_off):
    for blk in range(2):
        for pi in range(2):
            a(f"buffer_load_dwordx4 {vr(PF+(blk*2+pi)*4,4)}, v{vA}, {WS}, s{s_off} offen offset:{(4*blk+pi)*640} sc1")
    for pi in range(2):
        a(f"buffer_load_dwordx2 {vr(PF+16+2*pi,2)}, v{vB}, {WS}, s{s_off} offen offset:{pi*640} sc1")


def p_combine(a, PF, BX, BM, CA, vmax):
    for blk in range(2):
        for pi in range(2):
            f = PF + (blk*2+pi)*4
            a(f"v_smfmac_f32_16x16x64_bf16 {vr(CA+4*pi,4)}, {vr(f,4)}, {vr(BX+8*blk,8)}, v{vIDX}")
            if vmax is not None:
                a(f"v_max3_u32 v{vmax}, v{vmax}, v{f}, v{f+1}")
                a(f"v_max3_u32 v{vmax}, v{vmax}, v{f+2}, v{f+3}")
    a.nop(2 if vmax is not None else 6)
    for pi in range(2):
        f = PF + 16 + 2*pi
        a(f"v_smfmac_f32_16x16x32_bf16 {vr(CA+4*pi,4)}, {vr(f,2)}, {vr(BM,4)}, v{vIDX}")
        if vmax is not None:
            a(f"v_max3_u32 v{vmax}, v{vmax}, v{f}, v{f+1}")


def setup_red_addrs(a, vWr, vRd):
    a(f"""
    v_and_b32 v10, 15, v{vLANE}             ; n
    v_lshrrev_b32 v11, 4, v{vLANE}          ; g
    v_and_b32 v12, 1, v11
    v_lshlrev_b32 v12, 10, v12              ; 4*(g&1)*256
    v_lshl_add_u32 v12, v10, 5, v12         ; + n*32
    v_lshrrev_b32 v13, 1, v11
    v_lshl_add_u32 v12, v13, 2, v12         ; + (g>>1)*4
    s_lshl_b32 s40, s{sW}, 3
    s_add_u32 s40, s40, 0x{LDS_R:x}
    v_add_u32 v12, s40, v12
    v_mov_b32 v13, 0x{LDS_R+0x2800:x}
    v_cmp_gt_u32 vcc, 8, v10
    s_nop 1
    v_cndmask_b32 v{vWr}, v13, v12, vcc
    v_lshlrev_b32 v12, 5, v{vLANE}
    v_add_u32 v{vRd}, 0x{LDS_R:x}, v12
    """)


def red_write(a, CA, vWr, off):
    for r in range(4):
        a(f"v_add_f32_dpp v{CA+r}, v{CA+4+r}, v{CA+r} row_ror:8 row_mask:0xf bank_mask:0xf")
    for r in range(4):
        a(f"ds_write_b32 v{vWr}, v{CA+r} offset:{off + r*256}")


LB = 140
L_SRC, L_DST, L_M, L_V, L_T, L_T2 = LB, LB+1, LB+2, LB+3, LB+4, LB+5
L_RAW, L_OUT, L_X, L_SC, L_SH = LB+8, LB+16, LB+24, LB+40, LB+56


def ln_wave_sum(a, v):
    for ctrl in ["quad_perm:[1,0,3,2]", "quad_perm:[2,3,0,1]", "row_half_mirror", "row_mirror"]:
        a.nop(2)
        a(f"v_add_f32_dpp v{v}, v{v}, v{v} {ctrl} row_mask:0xf bank_mask:0xf")
    a.nop(1)
    a(f"v_readlane_b32 s72, v{v}, 0")
    a(f"v_readlane_b32 s73, v{v}, 16")
    a(f"v_readlane_b32 s74, v{v}, 32")
    a.nop(2)
    a(f"v_mov_b32 v{v}, s72")
    a(f"v_add_f32 v{v}, s73, v{v}")
    a(f"v_add_f32 v{v}, s74, v{v}")


def bf16r(a, v):
    a(f"v_cvt_pk_bf16_f32 v{v}, v{v}, v{v}")
    a(f"v_and_b32 v{v}, 0xffff0000, v{v}")


def ln_setup(a, shift_idx, scale_idx, perm):
    a(f"""
    v_cmp_gt_u32 vcc, 40, v{vLANE}
    v_mov_b32 v{L_T}, 0x7ffffff0
    v_lshlrev_b32 v{L_DST}, 4, v{vLANE}
    """)
    if perm:
        a(f"""
        v_lshrrev_b32 v{L_SRC}, 1, v{vLANE}
        v_lshlrev_b32 v{L_SRC}, 5, v{L_SRC}
        v_and_b32 v{L_T2}, 1, v{vLANE}
        v_lshl_add_u32 v{L_SRC}, v{L_T2}, 3, v{L_SRC}
        """)
    else:
        a(f"v_mov_b32 v{L_SRC}, v{L_DST}")
    a(f"""
    v_lshlrev_b32 v{L_T2}, 1, v{L_SRC}
    v_cndmask_b32 v{L_SRC}, v{L_T}, v{L_SRC}, vcc
    v_cndmask_b32 v{L_T2}, v{L_T}, v{L_T2}, vcc
    v_cndmask_b32 v{L_DST}, v{L_T}, v{L_DST}, vcc
    s_mov_b64 s[76:77], vcc
    s_mov_b32 s72, {WS_MOD + scale_idx*2560}
    s_mov_b32 s73, {WS_MOD + shift_idx*2560}
    """)
    for dst, so in ((L_SC, 72), (L_SH, 73)):
        for h in range(2):
            if perm:
                a(f"buffer_load_dwordx2 {vr(dst+8*h,2)}, v{L_T2}, {WS}, s{so} offen offset:{h*1280}")
                a(f"buffer_load_dwordx2 {vr(dst+8*h+4,2)}, v{L_T2}, {WS}, s{so} offen offset:{h*1280+8}")
                a(f"buffer_load_dwordx2 {vr(dst+8*h+2,2)}, v{L_T2}, {WS}, s{so} offen offset:{h*1280+32}")
                a(f"buffer_load_dwordx2 {vr(dst+8*h+6,2)}, v{L_T2}, {WS}, s{so} offen offset:{h*1280+40}")
            else:
                a(f"buffer_load_dwordx4 {vr(dst+8*h,4)}, v{L_T2}, {WS}, s{so} offen offset:{h*1280} sc1")
                a(f"buffer_load_dwordx4 {vr(dst+8*h+4,4)}, v{L_T2}, {WS}, s{so} offen offset:{h*1280+16} sc1")
    a("s_waitcnt vmcnt(0)")
    for j in range(8):
        a(f"v_add_f32 v{L_SC+2*j}, 1.0, v{L_SC+2*j}")
        a(f"v_add_f32 v{L_SC+2*j+1}, 1.0, v{L_SC+2*j+1}")
        a(f"v_cvt_pk_bf16_f32 v{L_T}, v{L_SC+2*j}, v{L_SC+2*j+1}")
        a(f"v_lshlrev_b32 v{L_SC+2*j}, 16, v{L_T}")
        a(f"v_and_b32 v{L_SC+2*j+1}, 0xffff0000, v{L_T}")


def ln_load(a, srd_, s_off, fl, perm, raw=L_RAW, extra=0):
    if perm:
        for h in range(2):
            a(f"buffer_load_dwordx2 {vr(raw+4*h,2)}, v{L_SRC}, {srd_}, s{s_off} offen offset:{extra+h*640} {fl}")
            a(f"buffer_load_dwordx2 {vr(raw+4*h+2,2)}, v{L_SRC}, {srd_}, s{s_off} offen offset:{extra+h*640+16} {fl}")
        return 4
    for h in range(2):
        a(f"buffer_load_dwordx4 {vr(raw+4*h,4)}, v{L_SRC}, {srd_}, s{s_off} offen offset:{extra+h*640} {fl}")
    return 2


def ln_unpack(a, perm, raw=L_RAW):
    pos = [0, 2, 1, 3] if perm else [0, 1, 2, 3]
    for h in range(2):
        for j in range(4):
            d = 4*h + pos[j]
            a(f"v_lshlrev_b32 v{L_X+2*d}, 16, v{raw+4*h+j}")
            a(f"v_and_b32 v{L_X+2*d+1}, 0xffff0000, v{raw+4*h+j}")


def ln_compute_store(a, s_dst, extra=0, out=L_OUT):
    X = L_X
    a(f"v_add_f32 v{L_M}, v{X}, v{X+1}")
    a(f"v_add_f32 v{L_T}, v{X+2}, v{X+3}")
    for j in range(4, 16, 2):
        a(f"v_add_f32 v{L_M}, v{L_M}, v{X+j}")
        a(f"v_add_f32 v{L_T}, v{L_T}, v{X+j+1}")
    a(f"v_add_f32 v{L_M}, v{L_M}, v{L_T}")
    ln_wave_sum(a, L_M)
    a(f"v_mul_f32 v{L_M}, 0x3acccccd, v{L_M}")
    a(f"v_sub_f32 v{L_T}, v{X}, v{L_M}")
    a(f"v_mul_f32 v{L_V}, v{L_T}, v{L_T}")
    for j in range(1, 16):
        t = L_T if j % 2 == 0 else L_T2
        a(f"v_sub_f32 v{t}, v{X+j}, v{L_M}")
        a(f"v_fmac_f32 v{L_V}, v{t}, v{t}")
    a(f"v_cndmask_b32 v{L_V}, 0, v{L_V}, s[76:77]")
    ln_wave_sum(a, L_V)
    a(f"v_mul_f32 v{L_V}, 0x3acccccd, v{L_V}")
    bf16r(a, L_V)
    a(f"v_add_f32 v{L_V}, 0x3727c5ac, v{L_V}")
    bf16r(a, L_V)
    a(f"v_sqrt_f32 v{L_V}, v{L_V}")
    a.nop(1)
    bf16r(a, L_V)
    a(f"v_rcp_f32 v{L_V}, v{L_V}")
    bf16r(a, L_M)
    for j in range(8):
        x0, x1 = X + 2*j, X + 2*j + 1
        a(f"""
        v_sub_f32 v{x0}, v{x0}, v{L_M}
        v_sub_f32 v{x1}, v{x1}, v{L_M}
        v_cvt_pk_bf16_f32 v{L_T}, v{x0}, v{x1}
        v_lshlrev_b32 v{x0}, 16, v{L_T}
        v_and_b32 v{x1}, 0xffff0000, v{L_T}
        v_mul_f32 v{x0}, v{x0}, v{L_V}
        v_mul_f32 v{x1}, v{x1}, v{L_V}
        v_cvt_pk_bf16_f32 v{L_T}, v{x0}, v{x1}
        v_lshlrev_b32 v{x0}, 16, v{L_T}
        v_and_b32 v{x1}, 0xffff0000, v{L_T}
        v_mul_f32 v{x0}, v{x0}, v{L_SC+2*j}
        v_mul_f32 v{x1}, v{x1}, v{L_SC+2*j+1}
        v_cvt_pk_bf16_f32 v{L_T}, v{x0}, v{x1}
        v_lshlrev_b32 v{x0}, 16, v{L_T}
        v_and_b32 v{x1}, 0xffff0000, v{L_T}
        v_add_f32 v{x0}, v{x0}, v{L_SH+2*j}
        v_add_f32 v{x1}, v{x1}, v{L_SH+2*j+1}
        v_cvt_pk_bf16_f32 v{out+j}, v{x0}, v{x1}
        v_min_u32 v{out+j}, -2, v{out+j}
        """)
    a(f"buffer_store_dwordx4 {vr(out,4)}, v{L_DST}, {WS}, s{s_dst} offen offset:{extra} sc1")
    a(f"buffer_store_dwordx4 {vr(out+4,4)}, v{L_DST}, {WS}, s{s_dst} offen offset:{extra+640} sc1")


def wait_all(a, nl, vaddr, s_off, s_need, vt, ndw=1, sleep=4):
    top, done = a.newlabel("wa"), a.newlabel("wad")
    a.label(top)
    op = {1: "dword", 4: "dwordx4"}[ndw]
    a(f"""
    s_mov_b32 exec_lo, 0x{(1 << nl) - 1:x}
    s_mov_b32 exec_hi, 0
    buffer_load_{op} {vr(vt, ndw)}, v{vaddr}, {WS}, s{s_off} offen sc1
    s_waitcnt vmcnt(0)
    """)
    if ndw == 4:
        a(f"v_min3_u32 v{vt}, v{vt}, v{vt+1}, v{vt+2}")
        a(f"v_min_u32 v{vt}, v{vt}, v{vt+3}")
    a(f"""
    v_cmp_gt_u32 vcc, s{s_need}, v{vt}
    s_mov_b64 exec, -1
    s_cbranch_vccz {done}
    s_sub_u32 s{sBUD}, s{sBUD}, 1
    s_cmp_lt_i32 s{sBUD}, 0
    s_cbranch_scc1 {done}
    s_sleep {sleep}
    s_branch {top}
    """)
    a.label(done)


WS_TRACE = 0x0F000000


def stamp(a, slot):
    if not STAMP:
        return
    a(f"s_memrealtime s[{80+2*slot}:{81+2*slot}]")


def stamp_flush(a, n, vt):
    if not STAMP:
        return
    skip = a.newlabel("stf")
    a(f"""
    s_cmp_lg_u32 s{sW}, 0
    s_cbranch_scc1 {skip}
    s_waitcnt lgkmcnt(0)
    s_lshl_b32 s96, s{sSTEP}, 5
    s_add_u32 s96, s96, s97
    s_mov_b64 exec, 1
    """)
    for k in range(n):
        a(f"v_mov_b32 v{vt}, s{80+2*k}")
        a(f"buffer_store_dword v{vt}, off, {WS}, s96 offset:{4*k}")
        a.nop(2)
    a(f"v_mov_b32 v{vt}, s{sBUD}")
    a(f"buffer_store_dword v{vt}, off, {WS}, s96 offset:28")
    a("s_mov_b64 exec, -1")
    a.label(skip)


def gen_r(a):
    L = NAME + "_kernel"
    kernel_header(a, L)
    a(f"""
    s_cmp_ge_u32 s2, 256
    s_cbranch_scc1 r_end
    s_load_dwordx2 s[4:5], s[0:1], {KA_WS}
    s_load_dwordx2 s[6:7], s[0:1], {KA_DBG}
    s_load_dwordx4 s[32:35], s[0:1], {KA_WQ}
    s_load_dwordx2 s[36:37], s[0:1], {KA_X}
    v_lshrrev_b32 v1, 6, v0
    v_and_b32 v{vLANE}, 63, v0
    s_waitcnt lgkmcnt(0)
    """)
    srd(a, 8, 4, WS_SIZE)
    srd(a, 12, 6, 256)
    srd(a, 16, 32, D * H * E * 2)
    srd(a, 20, 34, D * H * E * 2)
    srd(a, 24, 36, S * D * 2)
    a(f"""
    v_readfirstlane_b32 s{sW}, v1
    v_lshlrev_b32 v{vL16}, 4, v{vLANE}
    v_add_u32 v{vL16b}, 4096, v{vL16}
    v_add_u32 v{vL16c}, 8192, v{vL16}
    v_mov_b32 v{vIDX}, 0x4444
    v_mov_b32 v10, 0xeeee
    v_and_b32 v11, 8, v{vLANE}
    v_cmp_ne_u32 vcc, 0, v11
    s_mov_b32 s{sBUD}, 200000
    v_mov_b32 v9, 0x{LDS_ROLE:x}
    v_cndmask_b32 v{vIDX}, v{vIDX}, v10, vcc
    s_cmp_lg_u32 s{sW}, 0
    s_cbranch_scc1 r_role_wait
    s_getreg_b32 s40, hwreg(HW_REG_XCC_ID)
    s_and_b32 s40, s40, 7
    s_mov_b64 exec, 1
    s_lshl_b32 s43, s40, 2
    s_lshr_b32 s43, 0x{XMAP:x}, s43
    s_and_b32 s43, s43, 7
    s_mov_b32 s48, 0
    """)
    a.label("r_try")
    a(f"""
    s_lshr_b32 s45, s43, 1
    s_lshl_b32 s45, s45, 2
    s_and_b32 s44, s43, 1
    s_lshl_b32 s44, s44, 7
    s_add_u32 s45, s45, s44
    v_mov_b32 v10, 1
    buffer_atomic_add v10, off, {DBG}, s45 sc0
    s_waitcnt vmcnt(0)
    v_readfirstlane_b32 s41, v10
    s_nop 3
    s_cmp_lt_u32 s41, 32
    s_cbranch_scc1 r_got
    s_add_u32 s48, s48, 1
    s_sub_u32 s43, s48, 1
    s_mov_b32 s42, 999
    s_cmp_ge_u32 s43, 8
    s_cbranch_scc1 r_role_done
    s_branch r_try
    """)
    a.label("r_got")
    a(f"""
    s_lshl_b32 s42, s43, 5
    s_add_u32 s42, s42, s41                 ; P: t, VM: 32+t
    s_cmp_lt_u32 s43, 2
    s_cbranch_scc1 r_role_done
    s_cmp_ge_u32 s43, 4
    s_cbranch_scc1 r_got4
    s_sub_u32 s43, s43, 2                   ; q = 0,1
    s_mul_i32 s44, s43, 10
    s_add_u32 s42, s41, s44
    s_add_u32 s42, s42, 239                 ; F2: 239 + 10q + t
    s_cmp_lt_u32 s41, 10
    s_cbranch_scc1 r_role_done
    s_mul_i32 s44, s43, 20
    s_add_u32 s42, s41, s44
    s_add_u32 s42, s42, 54                  ; U: 64 + 20q + (t-10)
    s_cmp_lt_u32 s41, 30
    s_cbranch_scc1 r_role_done
    s_lshl_b32 s44, s43, 1
    s_add_u32 s42, s41, s44
    s_add_u32 s42, s42, 174                 ; L: 204 + 2q + (t-30)
    s_branch r_role_done
    """)
    a.label("r_got4")
    a(f"""
    s_sub_u32 s43, s43, 4                   ; q = 0..3
    s_lshl_b32 s44, s43, 3
    s_add_u32 s42, s41, s44
    s_add_u32 s42, s42, 112                 ; T
    s_cmp_lt_u32 s41, 8
    s_cbranch_scc1 r_role_done
    s_add_u32 s42, s42, 24                  ; VO
    s_cmp_lt_u32 s41, 16
    s_cbranch_scc1 r_role_done
    s_add_u32 s42, s43, 208                 ; L: 204 + 4 + q
    s_cmp_eq_u32 s41, 23
    s_cbranch_scc1 r_role_done
    s_lshl_b32 s44, s43, 1
    s_add_u32 s42, s41, s44
    s_add_u32 s42, s42, 160                 ; A
    s_cmp_lt_u32 s41, 18
    s_cbranch_scc1 r_role_done
    s_mul_i32 s44, s43, 5
    s_add_u32 s42, s41, s44
    s_add_u32 s42, s42, 166                 ; C
    s_cmp_lt_u32 s41, 23
    s_cbranch_scc1 r_role_done
    s_mul_i32 s44, s43, 7
    s_add_u32 s42, s41, s44
    s_add_u32 s42, s42, 188                 ; F1: 212 + 7q + (t-24)
    s_cmp_eq_u32 s42, 239
    s_cselect_b32 s42, 264, s42
    s_add_u32 s44, s43, 260
    s_cmp_eq_u32 s41, 31
    s_cselect_b32 s42, s44, s42
    """)
    a.label("r_role_done")
    a(f"""
    v_mov_b32 v10, s42
    ds_write_b32 v9, v10
    s_mov_b64 exec, -1
    s_waitcnt lgkmcnt(0)
    """)
    a.label("r_role_wait")
    a(f"""
    s_barrier
    ds_read_b32 v10, v9
    s_waitcnt lgkmcnt(0)
    v_readfirstlane_b32 s{sID}, v10
    s_mov_b32 s{sSTEP}, 0
    s_mov_b32 s50, 0x3db504f3          ; 128^-0.5
    s_mov_b32 s51, 0x3fb8aa3b          ; log2(e)
    s_mov_b32 s62, s50
    s_mov_b32 s63, s50
    s_mul_i32 s97, s{sID}, {72*32}
    s_add_u32 s97, s97, 0x{WS_TRACE:x}
    s_barrier
    """)
    if STAMP:
        a(f"""
        s_memrealtime s[80:81]
        s_waitcnt lgkmcnt(0)
        v_mov_b32 v3, s80
        buffer_store_dword v3, off, {WS}, s97 offset:{71*32}
        """)
    a(f"""
    s_cmp_lt_u32 s{sID}, 32
    s_cbranch_scc1 role_p
    s_cmp_lt_u32 s{sID}, 64
    s_cbranch_scc1 role_vm
    s_cmp_lt_u32 s{sID}, 112
    s_cbranch_scc1 boot
    s_cmp_lt_u32 s{sID}, 144
    s_cbranch_scc1 role_t
    s_cmp_lt_u32 s{sID}, 176
    s_cbranch_scc1 role_vo
    s_cmp_ge_u32 s{sID}, 265
    s_cbranch_scc1 r_end
    s_branch boot
    boot_done:
    s_cmp_lt_u32 s{sID}, 112
    s_cbranch_scc1 role_u
    {"s_endpgm" if NOTOK else ""}
    s_cmp_lt_u32 s{sID}, 184
    s_cbranch_scc1 role_a
    s_cmp_lt_u32 s{sID}, 204
    s_cbranch_scc1 role_c
    s_cmp_lt_u32 s{sID}, 212
    s_cbranch_scc1 role_l
    s_cmp_lt_u32 s{sID}, 259
    s_cbranch_scc1 role_f
    s_sub_u32 s{sID}, s{sID}, 56            ; 260.. -> 204..
    s_cmp_lt_u32 s{sID}, 209
    s_cbranch_scc1 role_c
    s_endpgm
    """)

    KF, QF, KMF, SA = 72, 104, 120, 136
    X0 = 148
    vTW, vTR, vST, vSM = 8, 9, 12, 13
    sMEM, sPB, sKX, sFT, sSEEN, sNEED = 31, 32, 33, 34, 35, 36
    from gen_boot import dbg_wait_wg, DBG_MOD20
    a.label("role_p")
    if PDELAY:
        dbg_wait_wg(a, [(DBG_MOD20, 1)], 3, sleep=10)
    load_wqk(a, depth=PDEPTH)
    setup_qk_lds_addrs(a, vTW, vTR)
    a(f"""
    v_bfe_u32 v10, v{vLANE}, 3, 1           ; b
    v_and_b32 v11, 7, v{vLANE}              ; i
    v_lshrrev_b32 v14, 4, v{vLANE}          ; g
    v_lshlrev_b32 v{vST}, 8, v10
    v_lshl_add_u32 v{vST}, v11, 5, v{vST}
    v_lshl_add_u32 v{vST}, v14, 3, v{vST}
    v_lshlrev_b32 v{vSM}, 3, v11
    v_and_b32 v15, 1, v14
    v_lshl_add_u32 v{vSM}, v15, 2, v{vSM}
    v_lshrrev_b32 v15, 1, v14
    v_lshl_add_u32 v{vSM}, v15, 6, v{vSM}
    v_add_u32 v{vSM}, 512, v{vSM}
    v_mov_b32 v15, 0x7ffffff0
    v_cmp_ne_u32 vcc, 0, v10
    s_mov_b32 s52, 0xff00ff00
    s_mov_b32 s53, 0xff00ff00
    v_cndmask_b32 v{vSM}, v{vSM}, v15, vcc
    s_mov_b32 s54, 0
    s_mov_b32 s55, -1                       ; s[54:55]: lanes g>=2
    s_lshl_b32 s{sKX}, s{sID}, 13
    s_add_u32 s{sKX}, s{sKX}, 0x{WS_KX:x}
    s_lshl_b32 s{sFT}, s{sID}, 7
    s_add_u32 s{sFT}, s{sFT}, 0x{flag(FL_T):x}
    s_mov_b32 s{sSEEN}, 0
    s_mov_b32 s56, 0x{WS_FLAGS:x}
    ; KM store voff: g*128 + (l%8)*16, lanes with b=1 dropped
    v_lshlrev_b32 v189, 7, v14
    v_lshl_add_u32 v189, v11, 4, v189
    v_cndmask_b32 v189, v189, v15, vcc
    s_lshl_b32 s57, s{sID}, 11
    s_add_u32 s57, s57, 0x{WS_KM:x}
    s_lshl_b32 s58, s{sID}, 2
    s_add_u32 s58, s58, s{sW}
    s_lshl_b32 s60, s{sID}, 7
    s_add_u32 s60, s60, 0x{flag(FL_KM):x}
    v_cmp_gt_u32 vcc, 40, v{vLANE}
    v_mov_b32 v180, -1
    v_mov_b32 v181, -1
    v_mov_b32 v182, -1
    v_mov_b32 v183, -1
    v_cndmask_b32 v186, v15, v{vL16}, vcc
    """)
    get_pol(a, X0)
    a(f"""
    s_add_u32 s59, s{sSB}, 0x{WS_CRB + CRB_DOOR:x}
    s_add_u32 s64, s{sSB}, 0x{WS_CRB:x}
    s_lshr_b32 s40, s{sID}, 3
    s_lshl_b32 s40, s40, 14
    s_and_b32 s41, s{sID}, 7
    s_mul_i32 s41, s41, 640
    s_add_u32 s65, s40, s41
    s_add_u32 s65, s65, s64
    s_add_u32 s65, s65, {4*16384}           ; p base
    """)
    a.label("p_loop")
    stamp(a, 0)
    a(f"""
    s_and_b32 s40, s{sSTEP}, 3
    s_lshl_b32 s40, s40, 17
    s_add_u32 s{sMEM}, s40, s64
    s_add_u32 s{sPB}, s40, s65
    s_xor_b32 s40, s40, 0x40000
    s_add_u32 s66, s40, s65
    s_cmp_lg_u32 s{sW}, 0
    s_cbranch_scc1 p_sync
    s_add_u32 s{sNEED}, s{sSTEP}, 1
    """)
    wait_flag(a, sFT, sNEED, sSEEN, X0)
    for f in range(8):
        r, o = l16(f * 1024)
        a(f"buffer_load_dwordx4 {vr(KF+4*f,4)}, {r}, {WS}, s{sKX} offen offset:{o} sc1")
    a(f"""
    buffer_load_dword v190, off, {WS}, s{sFT} sc1
    s_cmp_eq_u32 s{sSTEP}, 0
    s_cbranch_scc1 p_sync
    s_sleep {P_SLEEP0}
    """)
    a.label("p_sync")
    a("s_barrier")
    stamp(a, 1)
    def door():
        if not DOOR:
            return
        a(f"""
        s_cmp_lg_u32 s58, 3
        s_cbranch_scc1 p_nodoor
        s_mov_b64 exec, 1
        buffer_store_dword v188, off, {WS}, s59 sc1
        s_mov_b64 exec, -1
        p_nodoor:
        """)
    a(f"""
    s_add_u32 s40, s{sSTEP}, 1
    v_mov_b32 v188, s40
    """)
    mem_proj(a, [0, 1, 2, 3], sMEM, X0, after_first=door)
    stamp(a, 2)
    a.nop(6)
    combine_pair(a, 0, 1, X0+2, X0+3)
    a(f"ds_write_b64 v{vTW}, {vr(X0+2,2)}")
    combine_pair(a, 2, 3, X0+4, X0+5)
    a(f"""
    ds_write_b64 v{vTW}, {vr(X0+4,2)} offset:2048
    s_waitcnt lgkmcnt(0)
    s_barrier
    s_cmp_lg_u32 s{sW}, 0
    s_cbranch_scc1 p_other
    """)
    stamp(a, 3)
    for k in range(4):
        for tp in range(2):
            a(f"ds_read_b64_tr_b16 {vr(QF+4*k+2*tp,2)}, v{vTR} offset:{k*512+tp*256}")
    for k in range(4):
        for tp in range(2):
            a(f"ds_read_b64_tr_b16 {vr(KMF+4*k+2*tp,2)}, v{vTR} offset:{2048+k*512+tp*256}")
    for k in range(4):
        a(f"s_waitcnt lgkmcnt({14-2*k})")
        for mt in range(2):
            acc = vr(SA+4*mt, 4)
            a(f"v_mfma_f32_16x16x32_bf16 {acc}, {vr(KF+(mt*4+k)*4,4)}, {vr(QF+4*k,4)}, {'0' if k==0 else acc}")
    for k in range(4):
        a(f"s_waitcnt lgkmcnt({6-2*k})")
        acc = vr(SA+8, 4)
        a(f"v_mfma_f32_16x16x32_bf16 {acc}, {vr(KMF+4*k,4)}, {vr(QF+4*k,4)}, {'0' if k==0 else acc}")
    for r in range(4):
        a(f"v_cndmask_b32 v{X0+r}, v{SA+r}, v{SA+4+r}, s[52:53]")
    T0 = X0 + 8
    a(f"""
    v_cvt_pk_bf16_f32 v{T0}, v{X0}, v{X0+1}
    v_cvt_pk_bf16_f32 v{T0+1}, v{X0+2}, v{X0+3}
    v_lshlrev_b32 v{X0}, 16, v{T0}
    v_and_b32 v{X0+1}, 0xffff0000, v{T0}
    v_cndmask_b32 v{X0+4}, v{SA+8}, v{SA+9}, s[52:53]
    v_cndmask_b32 v{X0+5}, v{SA+10}, v{SA+11}, s[52:53]
    v_lshlrev_b32 v{X0+2}, 16, v{T0+1}
    v_cndmask_b32 v{X0+4}, v{X0+4}, v{X0+5}, s[54:55]
    v_and_b32 v{X0+3}, 0xffff0000, v{T0+1}
    v_cvt_pk_bf16_f32 v{T0+2}, v{X0+4}, v{X0+4}
    v_pk_mul_f32 v[{X0}:{X0+1}], v[{X0}:{X0+1}], s[62:63]
    v_and_b32 v{X0+4}, 0xffff0000, v{T0+2}
    v_pk_mul_f32 v[{X0+2}:{X0+3}], v[{X0+2}:{X0+3}], s[62:63]
    v_mul_f32 v{X0+4}, s50, v{X0+4}
    v_cvt_pk_bf16_f32 v{T0}, v{X0}, v{X0+1}
    v_cvt_pk_bf16_f32 v{T0+1}, v{X0+2}, v{X0+3}
    v_cvt_pk_bf16_f32 v{T0+2}, v{X0+4}, v{X0+4}
    v_lshlrev_b32 v{X0}, 16, v{T0}
    v_and_b32 v{X0+1}, 0xffff0000, v{T0}
    v_lshlrev_b32 v{X0+2}, 16, v{T0+1}
    v_and_b32 v{X0+3}, 0xffff0000, v{T0+1}
    v_and_b32 v{X0+4}, 0xffff0000, v{T0+2}
    v_max3_f32 v{X0+6}, v{X0}, v{X0+1}, v{X0+2}
    v_max3_f32 v{X0+6}, v{X0+6}, v{X0+3}, v{X0+4}
    v_mul_f32 v{X0}, s51, v{X0}
    v_mul_f32 v{X0+1}, s51, v{X0+1}
    v_max_f32_dpp v{X0+6}, v{X0+6}, v{X0+6} row_ror:8 row_mask:0xf bank_mask:0xf
    v_mov_b32 v{X0+7}, v{X0+6}
    v_mul_f32 v{X0+2}, s51, v{X0+2}
    v_mul_f32 v{X0+3}, s51, v{X0+3}
    v_permlane16_swap_b32 v{X0+6}, v{X0+7}
    v_max_f32 v{X0+6}, v{X0+6}, v{X0+7}
    v_mov_b32 v{X0+7}, v{X0+6}
    v_mul_f32 v{X0+4}, s51, v{X0+4}
    s_nop 0
    v_permlane32_swap_b32 v{X0+6}, v{X0+7}
    v_max_f32 v{X0+6}, v{X0+6}, v{X0+7}
    v_mul_f32 v{X0+6}, s51, v{X0+6}
    v_sub_f32 v{X0}, v{X0}, v{X0+6}
    v_sub_f32 v{X0+1}, v{X0+1}, v{X0+6}
    v_exp_f32 v{X0}, v{X0}
    v_sub_f32 v{X0+2}, v{X0+2}, v{X0+6}
    v_exp_f32 v{X0+1}, v{X0+1}
    v_sub_f32 v{X0+3}, v{X0+3}, v{X0+6}
    v_exp_f32 v{X0+2}, v{X0+2}
    v_sub_f32 v{X0+4}, v{X0+4}, v{X0+6}
    v_exp_f32 v{X0+3}, v{X0+3}
    v_add_f32 v{X0+6}, v{X0}, v{X0+1}
    v_exp_f32 v{X0+4}, v{X0+4}
    v_add_f32 v{X0+6}, v{X0+6}, v{X0+2}
    v_add_f32 v{X0+6}, v{X0+6}, v{X0+3}
    v_add_f32 v{X0+6}, v{X0+6}, v{X0+4}
    s_nop 1
    v_add_f32_dpp v{X0+6}, v{X0+6}, v{X0+6} row_ror:8 row_mask:0xf bank_mask:0xf
    v_mov_b32 v{X0+7}, v{X0+6}
    v_mov_b32_dpp v{X0+5}, v{X0+4} row_ror:8 row_mask:0xf bank_mask:0xf
    s_nop 0
    v_permlane16_swap_b32 v{X0+6}, v{X0+7}
    v_add_f32 v{X0+6}, v{X0+6}, v{X0+7}
    v_mov_b32 v{X0+7}, v{X0+6}
    s_nop 1
    v_permlane32_swap_b32 v{X0+6}, v{X0+7}
    v_add_f32 v{X0+6}, v{X0+6}, v{X0+7}
    v_rcp_f32 v{X0+6}, v{X0+6}
    s_nop 0
    v_mul_f32 v{X0}, v{X0}, v{X0+6}
    v_mul_f32 v{X0+1}, v{X0+1}, v{X0+6}
    v_mul_f32 v{X0+2}, v{X0+2}, v{X0+6}
    v_mul_f32 v{X0+3}, v{X0+3}, v{X0+6}
    v_cvt_pk_bf16_f32 v{T0}, v{X0}, v{X0+1}
    v_cvt_pk_bf16_f32 v{T0+1}, v{X0+2}, v{X0+3}
    v_mul_f32 v{X0+4}, v{X0+4}, v{X0+6}
    v_min_u32 v{T0}, -2, v{T0}
    v_min_u32 v{T0+1}, -2, v{T0+1}
    v_mul_f32 v{X0+5}, v{X0+5}, v{X0+6}
    buffer_store_dwordx2 {vr(T0,2)}, v{vST}, {WS}, s{sPB} offen sc1
    v_cvt_pk_bf16_f32 v{T0+2}, v{X0+4}, v{X0+5}
    v_min_u32 v{T0+2}, -2, v{T0+2}
    buffer_store_dword v{T0+2}, v{vSM}, {WS}, s{sPB} offen sc1
    v_readfirstlane_b32 s{sSEEN}, v190
    s_branch p_next
    """)
    a.label("p_other")
    a(f"""
    s_cmp_lg_u32 s{sW}, 1
    s_cbranch_scc1 p_w23
    """)
    for k in range(4):
        for tp in range(2):
            a(f"ds_read_b64_tr_b16 {vr(KMF+4*k+2*tp,2)}, v{vTR} offset:{2048+k*512+tp*256}")
    a("s_waitcnt lgkmcnt(0)")
    for r in range(16):
        a(f"v_min_u32 v{KMF+r}, -2, v{KMF+r}")
    for k in range(4):
        a(f"buffer_store_dwordx4 {vr(KMF+4*k,4)}, v189, {WS}, s57 offen offset:{k*512} sc1")
    a(f"""
    s_waitcnt vmcnt(0)
    s_mov_b64 exec, 1
    buffer_store_dword v188, off, {WS}, s60 sc1
    s_mov_b64 exec, -1
    s_branch p_next
    """)
    a.label("p_w23")
    a(f"""
    s_cmp_lg_u32 s{sW}, 2
    s_cbranch_scc1 p_next
    buffer_store_dwordx4 v[180:183], v186, {WS}, s66 offen sc1
    s_cmp_lg_u32 s{sID}, 0
    s_cbranch_scc1 p_next
    s_add_u32 s40, s{sSTEP}, 1
    v_mov_b32 v{X0}, s40
    s_mov_b64 exec, 1
    buffer_store_dword v{X0}, off, {WS}, s56 sc1
    s_mov_b64 exec, -1
    """)
    a.label("p_next")
    stamp(a, 4)
    stamp_flush(a, 5, 191)
    a(f"""
    s_add_u32 s{sKX}, s{sKX}, {32*8192}
    s_add_u32 s57, s57, {32*2048}
    s_add_u32 s{sSTEP}, s{sSTEP}, 1
    s_cmp_lt_u32 s{sSTEP}, 64
    s_cbranch_scc1 p_loop
    s_endpgm
    """)
    flush_deferred(a)

    AF, AC3, PKM = 72, 80, 120
    a.label("role_vm")
    a(f"""
    s_sub_u32 s{sID}, s{sID}, 32
    s_load_dwordx4 s[64:67], s[0:1], {KA_WV}
    s_waitcnt lgkmcnt(0)
    """)
    srd(a, 16, 64, D * H * E * 2)
    srd(a, 20, 66, D * H * E * 2)
    if PDELAY:
        dbg_wait_wg(a, [(DBG_MOD20, 1)], 3, sleep=10)
    load_wqk(a, (WQ,))
    load_wo(a, WK)
    setup_qk_lds_addrs(a, vTW, vTR)
    a(f"""
    ; sparse-A transposing read: e0 = 32(gA/2) + 16(r/2) + 8(gA%2) + 2(c/2) + (r%2)
    v_lshrrev_b32 v10, 5, v{vLANE}
    v_lshlrev_b32 v10, 5, v10
    v_bfe_u32 v11, v{vLANE}, 3, 1
    v_lshl_add_u32 v10, v11, 4, v10
    v_bfe_u32 v11, v{vLANE}, 4, 1
    v_lshl_add_u32 v10, v11, 3, v10
    v_bfe_u32 v11, v{vLANE}, 1, 1
    v_lshl_add_u32 v10, v11, 1, v10
    v_bfe_u32 v11, v{vLANE}, 2, 1
    v_add_u32 v10, v10, v11
    v_lshlrev_b32 v10, 4, v10
    v_and_b32 v11, 1, v{vLANE}
    v_lshl_add_u32 v10, v11, 3, v10
    v_add_u32 v{vTR}, 0x{LDS_T:x}, v10
    v_lshlrev_b32 v12, 3, v{vLANE}
    v_and_b32 v13, 31, v{vLANE}
    v_lshlrev_b32 v13, 3, v13
    v_lshrrev_b32 v10, 5, v{vLANE}
    v_lshl_add_u32 v13, v10, 14, v13
    v_mov_b32 v132, -1
    v_mov_b32 v133, -1
    s_mul_i32 s57, s{sID}, 10240
    s_mul_i32 s40, s{sW}, 2560
    s_add_u32 s57, s57, s40
    s_add_u32 s57, s57, 0x{WS_UMC:x}
    s_lshl_b32 s61, s{sID}, 7
    s_lshl_b32 s40, s{sW}, 2
    s_add_u32 s61, s61, s40
    s_add_u32 s61, s61, 0x{flag(FL_UF):x}
    """)
    get_pol(a, 135)
    a(f"""
    s_add_u32 s64, s{sSB}, 0x{WS_CRB + 32768:x}
    s_mul_i32 s65, s{sW}, {10*16384}
    s_lshl_b32 s40, s{sID}, 8
    s_add_u32 s65, s65, s40
    s_add_u32 s65, s65, s{sSA}
    s_add_u32 s65, s65, 0x{WS_CRA:x}
    s_mov_b32 s66, 0
    s_mov_b32 s67, {2*CRA_SLOT}
    """)
    a.label("vm_loop")
    stamp(a, 0)
    for r in range(40):
        a(f"v_mov_b32 v{AC3+r}, 0")
    a(f"""
    s_and_b32 s40, s{sSTEP}, 3
    s_lshl_b32 s40, s40, 17
    s_add_u32 s{sMEM}, s40, s64
    s_add_u32 s58, s65, s66
    s_cmp_eq_u32 s{sSTEP}, 0
    s_cbranch_scc1 vm_sync
    s_sleep {V_SLEEP}
    vm_sync:
    s_barrier
    """)
    stamp(a, 1)
    mem_proj(a, [0, 1], sMEM, 135)
    stamp(a, 2)
    a.nop(8)
    combine_pair(a, 0, 1, 136, 137)
    a(f"""
    ds_write_b64 v{vTW}, v[136:137]
    s_waitcnt lgkmcnt(0)
    s_barrier
    """)
    for kb in range(2):
        for n in range(2):
            a(f"ds_read_b64_tr_b16 {vr(AF+4*kb+2*n,2)}, v{vTR} offset:{(64*kb+4*n)*16}")
    stamp(a, 3)

    def vm_pack(p):
        A, B = AC3 + 8*p, AC3 + 8*p + 4
        L = [f"v_permlane32_swap_b32 v{A+r}, v{B+r}" for r in range(4)]
        if PKADD:
            L += [f"v_pk_add_f32 v[{A+r}:{A+r+1}], v[{A+r}:{A+r+1}], v[{B+r}:{B+r+1}]" for r in (0, 2)]
        else:
            L += [f"v_add_f32 v{A+r}, v{A+r}, v{B+r}" for r in range(4)]
        L += [f"v_cvt_pk_bf16_f32 v{PKM+2*p}, v{A}, v{A+1}", f"v_cvt_pk_bf16_f32 v{PKM+2*p+1}, v{A+2}, v{A+3}",
              f"buffer_store_dwordx2 {vr(PKM+2*p,2)}, v13, {WS}, s{68+p} offen sc1"]
        return L
    for p in range(5):
        a(f"s_add_u32 s{68+p}, s58, {p*32768}")
    a("s_waitcnt lgkmcnt(0)")
    pend = []
    slot = 0
    last_mf = {}
    for p in range(5):
        for kb in range(2):
            for jj in range(2):
                jt = 2*p + jj
                a(f"v_smfmac_f32_16x16x64_bf16 {vr(AC3+4*jt,4)}, {vr(AF+4*kb,4)}, {widx(160+(jt*4+2*kb)*4,8)}, v{vIDX}")
                slot += 1
                n = 0
                while pend and pend[0][0] <= slot and n < VM_FILL:
                    a(pend.pop(0)[1])
                    slot += 1
                    n += 1
        for x in vm_pack(p):
            pend.append((slot + 8, x))
    while pend:
        if pend[0][0] > slot:
            a.nop(pend[0][0] - slot)
            slot = pend[0][0]
        a(pend.pop(0)[1])
        slot += 1
    stamp(a, 4)
    for p in range(5):
        a(f"buffer_store_dwordx2 {vr(PKM+2*p,2)}, v12, {WS}, s57 offen offset:{p*512} sc1")
    a("s_add_u32 s40, s65, s67")
    for p in range(5):
        a(f"buffer_store_dwordx2 v[132:133], v13, {WS}, s40 offen sc1")
        a("s_add_u32 s40, s40, 32768")
    a(f"""
    s_add_u32 s57, s57, {UM_STEP}
    s_mov_b32 s67, s66
    s_add_u32 s66, s66, {CRA_SLOT}
    s_cmp_ge_u32 s66, {3*CRA_SLOT}
    s_cselect_b32 s66, 0, s66
    s_add_u32 s40, s{sSTEP}, 1
    v_mov_b32 v134, s40
    s_waitcnt vmcnt(5)
    s_mov_b64 exec, 1
    buffer_store_dword v134, off, {WS}, s61 sc1
    s_mov_b64 exec, -1
    """)
    stamp_flush(a, 5, 191)
    a(f"""
    s_add_u32 s{sSTEP}, s{sSTEP}, 1
    s_cmp_lt_u32 s{sSTEP}, 64
    s_cbranch_scc1 vm_loop
    s_endpgm
    """)
    flush_deferred(a)

    TX, BX, PF, BM, CA = 16, 48, 80, 104, 112
    vPA, vPB, vWr, vRd, vUM = 8, 9, 12, 13, 140
    sUX = 33
    a.label("role_u")
    a(f"s_sub_u32 s{sID}, s{sID}, 64")
    setup_p_load_addrs(a, vPA, vPB, vUM, 16384, 256)
    a(f"""
    s_lshl_b32 s40, s{sW}, 9
    v_lshlrev_b32 v{vWr}, 3, v{vLANE}
    v_add_u32 v{vWr}, s40, v{vWr}
    ; final lane l: c8 = l/32, i = (l/4)%8, cp = l%4 ; src lane' = (r&1)*32 + (i/4)*16 + 8c8 + 2cp ; comp = r>>1
    v_bfe_u32 v10, v{vLANE}, 2, 1           ; r&1
    v_lshlrev_b32 v10, 5, v10
    v_bfe_u32 v11, v{vLANE}, 4, 1           ; i/4
    v_lshl_add_u32 v10, v11, 4, v10
    v_lshrrev_b32 v11, 5, v{vLANE}
    v_lshl_add_u32 v10, v11, 3, v10
    v_and_b32 v11, 3, v{vLANE}
    v_lshl_add_u32 v10, v11, 1, v10
    v_lshlrev_b32 v10, 3, v10
    v_bfe_u32 v11, v{vLANE}, 3, 1           ; r>>1
    v_lshl_add_u32 v{vRd}, v11, 2, v10
    v_add_u32 v14, 1024, v{vRd}
    v_lshlrev_b32 v15, 2, v{vLANE}
    v_lshlrev_b32 v133, 7, v{vLANE}
    v_mov_b32 v123, 0
    s_mul_i32 s{sUX}, s{sW}, {8*40960}
    s_lshl_b32 s40, s{sID}, 10
    s_add_u32 s{sUX}, s{sUX}, s40
    s_add_u32 s{sUX}, s{sUX}, 0x{WS_UX:x}
    s_lshl_b32 s{sFT}, s{sW}, 10
    s_add_u32 s{sFT}, s{sFT}, 0x{flag(FL_VO):x}
    v_mov_b32 v134, -1
    """)
    get_pol(a, 135)
    a(f"""
    s_add_u32 s60, s{sSB}, 0x{WS_CRB + CRB_DOOR:x}
    s_add_u32 s64, s{sSB}, 0x{WS_CRB + 4*16384:x}   ; p base
    s_lshl_b32 s65, s{sID}, 8
    s_cmp_ge_u32 s{sID}, 32
    s_cselect_b32 s40, 8192, 0
    s_add_u32 s65, s65, s40
    s_add_u32 s65, s65, s{sSB}
    s_add_u32 s65, s65, 0x{WS_CRB:x}
    s_lshl_b32 s57, s{sID}, 14
    s_add_u32 s57, s57, s{sSA}
    s_add_u32 s57, s57, 0x{WS_CRA:x}
    s_mov_b32 s66, 0
    """)
    a.label("u_loop")
    stamp(a, 0)
    a(f"""
    s_and_b32 s40, s{sSTEP}, 3
    s_lshl_b32 s40, s40, 17
    s_add_u32 s{sPB}, s40, s64
    s_xor_b32 s41, s40, 0x40000
    s_add_u32 s41, s41, s65
    s_add_u32 s40, s{sSTEP}, 1
    s_and_b32 s40, s40, 3
    s_lshl_b32 s40, s40, 17
    s_add_u32 s{sMEM}, s40, s65
    s_cmp_lg_u32 s{sW}, 1
    s_cbranch_scc1 u_noarm
    buffer_store_dword v134, v15, {WS}, s41 offen sc1
    s_add_u32 s41, s41, 32768
    buffer_store_dword v134, v15, {WS}, s41 offen sc1
    u_noarm:
    """)
    a(f"""
    s_add_u32 s{sNEED}, s{sSTEP}, 1
    s_mov_b64 exec, 255
    v_cmp_gt_u32 vcc, s{sNEED}, v123
    s_mov_b64 exec, -1
    s_cbranch_vccz u_vok
    """)
    wait_all(a, 8, 133, sFT, sNEED, 123)
    a.label("u_vok")
    a(f"s_mov_b32 s40, s{sUX}")
    for hh in range(8):
        a(f"buffer_load_dwordx4 {vr(TX+4*hh,4)}, v{vL16}, {WS}, s40 offen sc1")
        a(f"s_add_u32 s40, s40, 40960")
    a(f"""
    s_mov_b64 exec, 255
    buffer_load_dword v123, v133, {WS}, s{sFT} offen sc1
    s_mov_b64 exec, -1
    s_add_u32 s58, s57, s66
    s_add_u32 s66, s66, {CRA_SLOT}
    s_cmp_ge_u32 s66, {3*CRA_SLOT}
    s_cselect_b32 s66, 0, s66
    s_waitcnt vmcnt(0)
    """)
    for hh in range(8):
        for d in range(4):
            a(f"v_mov_b32 v{BX + 8*(hh//2) + 2*d + hh%2}, v{TX+4*hh+d}")
    stamp(a, 1)
    a(f"""
    s_cmp_lg_u32 s{sW}, 0
    s_cbranch_scc1 u_dsync
    """)
    for k in range(3):
        a(f"buffer_load_dword v{124+k}, off, {WS}, s60 sc1")
        a(f"s_sleep 1")
    a.label("u_dspin")
    for k in range(4):
        a(f"""
        buffer_load_dword v{124+(k+3)%4}, off, {WS}, s60 sc1
        s_waitcnt vmcnt(3)
        v_cmp_le_u32 vcc, s{sNEED}, v{124+k}
        s_cbranch_vccnz u_ddone
        s_nop 7
        """)
    a(f"""
    s_sub_u32 s{sBUD}, s{sBUD}, 1
    s_cmp_ge_i32 s{sBUD}, 0
    s_cbranch_scc1 u_dspin
    """)
    a.label("u_ddone")
    stamp(a, 2)
    a(f"s_sleep {U_SLEEPD}")
    a.label("u_dsync")
    a("s_barrier")
    stamp(a, 3)
    def u_mloads():
        for k in range(2):
            a(f"buffer_load_dwordx2 {vr(PF+16+2*k,2)}, v{vPB}, {WS}, s{sPB} offen offset:{k*1280} sc1")
        for j in range(4):
            a(f"buffer_load_dwordx2 {vr(BM+2*j,2)}, v{vUM}, {WS}, s58 offen offset:{j*512} sc1")
    a.label("u_ppoll")
    for q in range(4):
        a(f"buffer_load_dwordx4 {vr(PF+4*q,4)}, v{vPA}, {WS}, s{sPB} offen offset:{q*1280} sc1")
    u_mloads()
    for r in range(4):
        a(f"v_mov_b32 v{CA+r}, 0")
    a("v_mov_b32 v122, 0")
    for q in range(4):
        f = PF + 4*q
        a(f"s_waitcnt vmcnt({9-q})")
        a(f"v_smfmac_f32_16x16x64_bf16 {vr(CA,4)}, {vr(f,4)}, {vr(BX+8*q,8)}, v{vIDX}")
        a(f"v_max3_u32 v122, v122, v{f}, v{f+1}")
        a(f"v_max3_u32 v122, v122, v{f+2}, v{f+3}")
    a("v_cmp_eq_u32 vcc, -1, v122")
    poll_fail(a, "u_ppoll", sleep=1)
    a.label("u_mchk")
    a(f"""
    s_waitcnt vmcnt(4)
    v_swap_b32 v{PF+17}, v{PF+18}
    v_max3_u32 v122, v{PF+16}, v{PF+17}, v{PF+18}
    v_max_u32 v122, v122, v{PF+19}
    s_waitcnt vmcnt(2)
    v_max3_u32 v122, v122, v{BM}, v{BM+1}
    v_max3_u32 v122, v122, v{BM+2}, v{BM+3}
    s_waitcnt vmcnt(0)
    v_max3_u32 v122, v122, v{BM+4}, v{BM+5}
    v_max3_u32 v122, v122, v{BM+6}, v{BM+7}
    v_cmp_eq_u32 vcc, -1, v122
    s_cbranch_vccnz u_mretry
    u_mok:
    v_smfmac_f32_16x16x64_bf16 {vr(CA,4)}, {vr(PF+16,4)}, {vr(BM,8)}, v{vIDX}
    """)

    def u_ool():
        a.label("u_mretry")
        a(f"""
        s_sub_u32 s{sBUD}, s{sBUD}, 1
        s_cmp_lt_i32 s{sBUD}, 0
        s_cbranch_scc1 u_mok
        """)
        u_mloads()
        a("s_branch u_mchk")
    DEFERRED.append(u_ool)
    a.nop(2)
    stamp(a, 4)
    a.nop(6)
    a(f"""
    v_permlane32_swap_b32 v{CA}, v{CA+1}
    v_permlane32_swap_b32 v{CA+2}, v{CA+3}
    v_add_f32 v{CA}, v{CA}, v{CA+1}
    v_add_f32 v{CA+1}, v{CA+2}, v{CA+3}
    ds_write_b64 v{vWr}, {vr(CA,2)}
    s_waitcnt lgkmcnt(0)
    s_barrier
    s_cmp_lg_u32 s{sW}, 0
    s_cbranch_scc1 u_next
    ds_read2_b32 v[124:125], v{vRd} offset0:0 offset1:2
    ds_read2_b32 v[126:127], v{vRd} offset0:128 offset1:130
    ds_read2_b32 v[128:129], v14 offset0:0 offset1:2
    ds_read2_b32 v[130:131], v14 offset0:128 offset1:130
    s_add_u32 s40, s{sMEM}, 32768
    s_waitcnt lgkmcnt(2)
    v_add_f32 v124, v124, v126
    v_add_f32 v125, v125, v127
    s_waitcnt lgkmcnt(0)
    v_add_f32 v128, v128, v130
    v_add_f32 v129, v129, v131
    v_add_f32 v124, v124, v128
    v_add_f32 v125, v125, v129
    v_cvt_pk_bf16_f32 v124, v124, v125
    v_min_u32 v124, -2, v124
    buffer_store_dword v124, v15, {WS}, s{sMEM} offen sc1
    buffer_store_dword v124, v15, {WS}, s40 offen sc1
    """)
    a.label("u_next")
    stamp(a, 5)
    stamp_flush(a, 6, 191)
    a(f"""
    s_add_u32 s{sUX}, s{sUX}, {UX_STEP}
    s_add_u32 s{sSTEP}, s{sSTEP}, 1
    s_cmp_lt_u32 s{sSTEP}, 63
    s_cbranch_scc1 u_loop
    s_endpgm
    """)
    flush_deferred(a)

    vH = 14
    sHOFF, sHBUF, sOUT, sFM = 37, 38, 39, 56

    def publish(role, sval, wv=3):
        lab = a.newlabel("pub")
        a(f"""
        s_cmp_lg_u32 s{sW}, {wv}
        s_cbranch_scc1 {lab}
        v_mov_b32 v3, {sval}
        s_mov_b64 exec, 1
        buffer_store_dword v3, off, {WS}, s{sFT} sc1
        s_mov_b64 exec, -1
        {lab}:
        """)

    from gen_boot import dbg_wait_wg, DBG_INIT, DBG_LN, N_INITW

    def ln_ready():
        top, done = a.newlabel("lr"), a.newlabel("lrd")
        a(f"""
        s_add_u32 s45, s{sSTEP}, 1
        s_and_b32 s46, s45, 7
        s_cmp_lg_u32 s46, 0
        s_cbranch_scc1 {done}
        s_cmp_ge_u32 s45, 64
        s_cbranch_scc1 {done}
        s_lshr_b32 s45, s45, 1
        {top}:
        buffer_load_dword v3, off, {DBG}, s45 offset:{DBG_LN} sc1
        s_waitcnt vmcnt(0)
        v_readfirstlane_b32 s44, v3
        s_sub_u32 s{sBUD}, s{sBUD}, 1
        s_cmp_lt_i32 s{sBUD}, 0
        s_cbranch_scc1 {done}
        s_cmp_ge_u32 s44, 1
        s_cbranch_scc1 {done}
        s_sleep 4
        s_branch {top}
        {done}:
        """)

    def loop_top():
        a(f"""
        v_add_u32 v{vH}, s{sHBUF}, v{vL16}
        s_sub_u32 s{sHBUF}, 40960, s{sHBUF}
        s_add_u32 s{sHOFF}, s{sHOFF}, 40960
        """)
        ln_ready()
        dmal_init(a, sHOFF, sHBUF)

    a.label("role_t")
    a(f"""
    s_sub_u32 s{sID}, s{sID}, 112
    s_mov_b32 s{sHOFF}, 0x{WS_H1F:x}
    s_mov_b32 s{sHBUF}, 0
    """)
    load_wqk(a, depth=TDEPTH)
    dbg_wait_wg(a, [(DBG_INIT, 1), (DBG_LN, 1)], 3)
    dmal_init(a, sHOFF, sHBUF)
    for k in range(10):
        dmal_one(a)
    a(f"""
    s_lshl_b32 s{sOUT}, s{sID}, 13
    s_lshl_b32 s40, s{sW}, 10
    s_add_u32 s{sOUT}, s{sOUT}, s40
    s_add_u32 s{sOUT}, s{sOUT}, 0x{WS_KX:x}
    s_lshl_b32 s{sFT}, s{sID}, 7
    s_add_u32 s{sFT}, s{sFT}, 0x{flag(FL_T):x}
    s_waitcnt vmcnt(0)
    s_barrier
    """)
    a.label("t_loop")
    stamp(a, 0)
    loop_top()
    DMK = [0, 1, 3, 4, 6, 7, 9, 10, 12, 13]

    def hook_t(ks):
        if ks in DMK:
            dmal_one(a)
        if ks == 5:
            a("s_waitcnt vmcnt(4)")
            a("s_barrier")
            publish("t", f"s{sSTEP}")
    dense_proj(a, vH, True, hook_t)
    stamp(a, 1)
    a.nop(4)
    PK = 128
    a(f"s_add_u32 s40, s{sOUT}, 0x{WS_QX-WS_KX:x}")
    for mat in (0, 1):
        for mt in range(2):
            tm = PK + (mat*2+mt) * 4
            for tt in range(2):
                b = TACC + ((mat*2+tt)*2 + mt) * 4
                a(f"v_cvt_pk_bf16_f32 v{tm+2*tt}, v{b}, v{b+1}")
                a(f"v_cvt_pk_bf16_f32 v{tm+2*tt+1}, v{b+2}, v{b+3}")
    a("s_waitcnt vmcnt(0)")
    for mat in (1, 0):
        for mt in range(2):
            tm = PK + (mat*2+mt) * 4
            so = "s40" if mat == 0 else f"s{sOUT}"
            a(f"buffer_store_dwordx4 {vr(tm,4)}, v{vL16+mt}, {WS}, {so} offen sc1")
    a(f"""
    s_add_u32 s{sOUT}, s{sOUT}, {32*8192}
    s_cmp_lg_u32 s{sSTEP}, 0
    s_cbranch_scc1 t_ne
    s_waitcnt vmcnt(0)
    s_barrier
    """)
    publish("t", "1")
    a("t_ne:")
    a("s_barrier")
    stamp(a, 2)
    stamp_flush(a, 3, 1)
    a(f"""
    s_add_u32 s{sSTEP}, s{sSTEP}, 1
    s_cmp_lt_u32 s{sSTEP}, 64
    s_cbranch_scc1 t_loop
    s_waitcnt vmcnt(0)
    s_barrier
    """)
    publish("t", f"s{sSTEP}")
    a(f"""
    s_cmp_ge_u32 s{sID}, {NC}
    s_cbranch_scc1 r_end
    {"s_endpgm" if NOTOK else ""}
    s_add_u32 s{sID}, s{sID}, {184+NC}
    s_mov_b32 s{sSTEP}, 0
    s_add_u32 s97, s97, {300*72*32}
    s_branch role_c
    """)

    VF, AC2 = 16, 128
    LDS_V = LDS_T
    a.label("role_vo")
    a(f"""
    s_sub_u32 s{sID}, s{sID}, 144
    s_load_dwordx4 s[64:67], s[0:1], {KA_WV}
    s_mov_b32 s{sHOFF}, 0x{WS_H1F:x}
    s_mov_b32 s{sHBUF}, 0
    s_waitcnt lgkmcnt(0)
    """)
    srd(a, 16, 64, D * H * E * 2)
    srd(a, 20, 66, D * H * E * 2)
    load_wqk(a, (WQ,))
    load_wo(a, WK)
    dbg_wait_wg(a, [(DBG_INIT, 1), (DBG_LN, 1)], 3)
    dmal_init(a, sHOFF, sHBUF)
    for k in range(10):
        dmal_one(a)
    a(f"""
    s_mul_i32 s{sOUT}, s{sID}, 40960
    s_mul_i32 s40, s{sW}, 10240
    s_add_u32 s{sOUT}, s{sOUT}, s40
    s_add_u32 s{sOUT}, s{sOUT}, 0x{WS_UX:x}
    s_lshl_b32 s{sFT}, s{sID}, 7
    s_add_u32 s{sFT}, s{sFT}, 0x{flag(FL_VO):x}
    s_lshl_b32 s40, s{sW}, 10
    s_add_u32 s40, s40, 0x{LDS_V:x}
    v_add_u32 v12, s40, v{vL16}
    v_add_u32 v13, 0x{LDS_V:x}, v{vL16}
    s_waitcnt vmcnt(0)
    s_barrier
    """)
    a.label("vo_loop")
    stamp(a, 0)
    loop_top()

    def hook_v(ks):
        if ks % 2 == 0:
            dmal_one(a)
    dense_proj(a, vH, True, hook_v, tiles=(0, 1))
    a.nop(6)
    for mt in range(2):
        for tt in range(2):
            b = TACC + (tt*2 + mt) * 4
            a(f"v_cvt_pk_bf16_f32 v{168+4*mt+2*tt}, v{b}, v{b+1}")
            a(f"v_cvt_pk_bf16_f32 v{168+4*mt+2*tt+1}, v{b+2}, v{b+3}")
        a(f"ds_write_b128 v12, {vr(168+4*mt,4)} offset:{mt*4096}")
    a(f"""
    s_waitcnt vmcnt(10) lgkmcnt(0)
    s_barrier
    """)
    stamp(a, 1)
    for k in range(4):
        for mt in range(2):
            a(f"ds_read_b128 {vr(VF+(mt*4+k)*4,4)}, v13 offset:{mt*4096+k*1024}")
    publish("vo", f"s{sSTEP}")
    for hb in range(2):
        for k in range(4):
            if hb == 0:
                a(f"s_waitcnt lgkmcnt({6-2*k})")
            for j5 in range(5):
                for mt in range(2):
                    acc = vr(AC2 + (j5*2+mt)*4, 4) if hb == 0 else vr(TACC + (j5*2+mt)*4, 4)
                    a(f"v_mfma_f32_16x16x32_bf16 {acc}, {vr(VF+(mt*4+k)*4,4)}, {widx(160+((hb*5+j5)*4+k)*4)}, {'0' if k == 0 else acc}")
                if hb == 1 and k < 3 and j5 < 2 and (k*2+j5) < 5:
                    q = k*2 + j5
                    tm = 168 + (q % 2) * 4
                    for mt in range(2):
                        b = AC2 + (q*2+mt)*4
                        a(f"v_cvt_pk_bf16_f32 v{tm+2*mt}, v{b}, v{b+1}")
                        a(f"v_cvt_pk_bf16_f32 v{tm+2*mt+1}, v{b+2}, v{b+3}")
                    r, o = l16(q * 1024)
                    a(f"buffer_store_dwordx4 {vr(tm,4)}, {r}, {WS}, s{sOUT} offen offset:{o} sc1")
    for q in range(5):
        tm = 176 + (q % 2) * 4
        for mt in range(2):
            b = TACC + (q*2+mt)*4
            a(f"v_cvt_pk_bf16_f32 v{tm+2*mt}, v{b}, v{b+1}")
            a(f"v_cvt_pk_bf16_f32 v{tm+2*mt+1}, v{b+2}, v{b+3}")
        r, o = l16((5+q) * 1024)
        a(f"buffer_store_dwordx4 {vr(tm,4)}, {r}, {WS}, s{sOUT} offen offset:{o} sc1")
    a(f"""
    s_add_u32 s{sOUT}, s{sOUT}, {UX_STEP}
    s_cmp_lg_u32 s{sSTEP}, 0
    s_cbranch_scc1 vo_ne
    s_waitcnt vmcnt(0)
    s_barrier
    """)
    publish("vo", "1")
    a(f"""
    vo_ne:
    s_waitcnt vmcnt(10)
    s_barrier
    """)
    stamp(a, 2)
    stamp_flush(a, 3, 1)
    a(f"""
    s_add_u32 s{sSTEP}, s{sSTEP}, 1
    s_cmp_lt_u32 s{sSTEP}, 64
    s_cbranch_scc1 vo_loop
    s_waitcnt vmcnt(0)
    s_barrier
    """)
    publish("vo", f"s{sSTEP}")
    a("s_endpgm")

    KF2, QF2, KMF2, SA2, Y0 = 16, 48, 80, 96, 112
    sKXR, sKM = 33, 57
    a.label("role_a")
    a(f"""
    s_sub_u32 s{sID}, s{sID}, 176
    s_lshl_b32 s{sID}, s{sID}, 2
    s_add_u32 s{sID}, s{sID}, s{sW}         ; head
    v_bfe_u32 v10, v{vLANE}, 3, 1           ; b
    v_and_b32 v11, 7, v{vLANE}              ; i
    v_lshrrev_b32 v15, 4, v{vLANE}          ; g
    v_lshlrev_b32 v8, 7, v15
    v_lshl_add_u32 v8, v11, 4, v8
    v_mul_u32_u24 v10, {PB_RG}, v10
    v_lshl_add_u32 v{vST}, v11, 4, v10      ; + i*16
    v_and_b32 v11, 1, v15
    v_lshl_add_u32 v{vST}, v11, 3, v{vST}   ; + (g&1)*8
    v_lshrrev_b32 v11, 1, v15
    v_lshl_add_u32 v{vSM}, v11, 7, v{vST}
    v_lshl_add_u32 v{vST}, v11, 8, v{vST}
    v_and_b32 v10, 15, v{vLANE}
    v_lshlrev_b32 v11, 2, v15               ; 4g
    """)
    for r in range(4):
        a(f"v_add_u32 v15, {r}, v11")
        a(f"v_cmp_le_u32 s[{64+r*2}:{65+r*2}], v15, v10")
    a(f"""
    s_mov_b32 s54, 0
    s_mov_b32 s55, -1
    s_lshl_b32 s{sPB}, s{sID}, 9
    s_add_u32 s{sPB}, s{sPB}, 0x{WS_PT:x}
    ; mem part offset relative to token part: 16384 + (2(h/4) + h%2)*256 + ((h>>1)&1)*4 - h*512
    s_lshr_b32 s40, s{sID}, 2
    s_lshl_b32 s40, s40, 1
    s_and_b32 s41, s{sID}, 1
    s_add_u32 s40, s40, s41
    s_lshl_b32 s40, s40, 8
    s_bfe_u32 s41, s{sID}, 0x10001
    s_lshl_b32 s41, s41, 2
    s_add_u32 s40, s40, s41
    s_add_u32 s40, s40, 16384
    s_lshl_b32 s41, s{sID}, 9
    s_sub_u32 s61, s40, s41
    s_lshl_b32 s58, s{sID}, 7
    s_add_u32 s59, s58, 0x{flag(FL_A):x}
    s_add_u32 s58, s58, 0x{flag(FL_KM):x}
    s_mov_b32 s60, 0
    s_lshl_b32 s{sKXR}, s{sID}, 13
    s_add_u32 s{sKXR}, s{sKXR}, 0x{WS_KX:x}
    s_lshl_b32 s{sKM}, s{sID}, 11
    s_add_u32 s{sKM}, s{sKM}, 0x{WS_KM:x}
    s_lshl_b32 s{sFT}, s{sID}, 7
    s_add_u32 s{sFT}, s{sFT}, 0x{flag(FL_T):x}
    s_mov_b32 s{sSEEN}, 0
    """)
    def a_kq(need):
        wait_flag(a, sFT, need, sSEEN, Y0+1, sleep=8)
        a(f"s_add_u32 s40, s{sKXR}, 0x{WS_QX-WS_KX:x}")
        for f in range(8):
            r, o = l16(f * 1024)
            a(f"buffer_load_dwordx4 {vr(KF2+4*f,4)}, {r}, {WS}, s{sKXR} offen offset:{o} sc1")
        for f in range(8):
            r, o = l16(f * 1024)
            a(f"buffer_load_dwordx4 {vr(QF2+4*f,4)}, {r}, {WS}, s40 offen offset:{o} sc1")
        a(f"s_add_u32 s{sKXR}, s{sKXR}, {32*8192}")
    a(f"s_mov_b32 s{sNEED}, 1")
    a_kq(sNEED)
    a.label("a_loop")
    stamp(a, 0)
    a(f"s_add_u32 s{sNEED}, s{sSTEP}, 1")
    stamp(a, 1)
    a(f"""
    s_cmp_ge_u32 s{sSTEP}, {SENT0}
    s_cbranch_scc1 a_kml
    """)
    wait_flag(a, 58, sNEED, 60, Y0, sleep=4)
    a.label("a_kml")
    for k in range(4):
        a(f"buffer_load_dwordx4 {vr(KMF2+4*k,4)}, v8, {WS}, s{sKM} offen offset:{k*512} sc1")
    a("s_waitcnt vmcnt(0)")
    vmax_chain(a, Y0, range(KMF2, KMF2+16))
    poll_fail(a, "a_kml", sleep=3)
    stamp(a, 2)
    for qt in range(2):
        for k in range(4):
            for mt in range(qt + 1):
                acc = vr(SA2+4*mt, 4)
                a(f"v_mfma_f32_16x16x32_bf16 {acc}, {vr(KF2+(mt*4+k)*4,4)}, {vr(QF2+(qt*4+k)*4,4)}, {'0' if k==0 else acc}")
            acc = vr(SA2+8, 4)
            a(f"v_mfma_f32_16x16x32_bf16 {acc}, {vr(KMF2+4*k,4)}, {vr(QF2+(qt*4+k)*4,4)}, {'0' if k==0 else acc}")
        a.nop(8)
        a(f"""
        v_cndmask_b32 v{SA2+8}, v{SA2+8}, v{SA2+10}, s[54:55]
        v_cndmask_b32 v{SA2+9}, v{SA2+9}, v{SA2+11}, s[54:55]
        """)
        xs = [SA2 + k for k in range(4*(qt+1))] + [SA2+8, SA2+9]
        round_scale(a, xs, Y0+8, 50)
        a(f"v_mov_b32 v{Y0}, 0xce6e6b28")
        for k in range(4):
            a(f"v_cndmask_b32 v{SA2+4*qt+k}, v{Y0}, v{SA2+4*qt+k}, s[{64+2*k}:{65+2*k}]")
        softmax(a, xs, Y0+6, Y0+7, 51, False)
        O = Y0 + 16 + 8*qt
        for half in range(2):
            for m in range(2):
                if m <= qt:
                    a(f"v_cvt_pk_bf16_f32 v{O+2*half+m}, v{SA2+4*m+2*half}, v{SA2+4*m+2*half+1}")
                else:
                    a(f"v_mov_b32 v{O+2*half+m}, 0")
        a(f"v_cvt_pk_bf16_f32 v{O+4}, v{SA2+8}, v{SA2+9}")
        for k in range(5):
            a(f"v_min_u32 v{O+k}, -2, v{O+k}")
        a(f"s_add_u32 s40, s{sPB}, {qt*2*PB_RG}")
        for half in range(2):
            a(f"buffer_store_dwordx2 {vr(O+2*half,2)}, v{vST}, {WS}, s40 offen offset:{half*128} sc1")
        a(f"s_add_u32 s40, s40, s61")
        a(f"buffer_store_dword v{O+4}, v{vSM}, {WS}, s40 offen sc1")
    a(f"""
    s_add_u32 s45, s{sNEED}, 1
    s_min_u32 s45, s45, 64
    """)
    a_kq(45)
    a(f"""
    buffer_load_dword v{Y0+2}, off, {WS}, s58 sc1
    v_mov_b32 v{Y0}, s{sNEED}
    s_waitcnt vmcnt(17)
    s_mov_b64 exec, 1
    buffer_store_dword v{Y0}, off, {WS}, s59 sc1
    s_mov_b64 exec, -1
    s_waitcnt vmcnt(1)
    v_readfirstlane_b32 s60, v{Y0+2}
    """)
    stamp(a, 3)
    stamp_flush(a, 4, 1)
    a(f"""
    s_add_u32 s{sPB}, s{sPB}, {PT_STEP}
    s_add_u32 s{sKM}, s{sKM}, {32*2048}
    s_add_u32 s{sSTEP}, s{sSTEP}, 1
    s_cmp_lt_u32 s{sSTEP}, 64
    s_cbranch_scc1 a_loop
    s_endpgm
    """)

    a.label("role_l")
    ln_setup(a, 3, 4, False)
    a(f"""
    s_sub_u32 s40, s{sID}, 204
    s_lshl_b32 s40, s40, 2
    s_add_u32 s40, s40, s{sW}
    s_mul_i32 s46, s40, 1280
    s_add_u32 s47, s46, 0x{WS_H2F:x}
    s_lshl_b32 s48, s40, 7
    s_add_u32 s48, s48, 0x{flag(FL_L):x}
    s_mov_b32 s49, 0x{flag(FL_CC):x}
    v_lshlrev_b32 v9, 1, v{L_DST}
    v_cndmask_b32 v9, v{L_DST}, v9, s[76:77]
    s_mov_b32 s40, {WS_MOD + 2*2560}
    s_mov_b32 s52, 1
    """)
    GA = 48
    for h in range(2):
        a(f"buffer_load_dwordx4 {vr(GA+8*h,4)}, v9, {WS}, s40 offen offset:{h*1280} sc1")
        a(f"buffer_load_dwordx4 {vr(GA+8*h+4,4)}, v9, {WS}, s40 offen offset:{h*1280+16} sc1")
    a.label("l_loop")
    stamp(a, 0)
    a(f"""
    s_add_u32 s45, s{sSTEP}, 1
    s_add_u32 s41, s46, 0x{WS_ATT:x}
    s_add_u32 s42, s46, 0x{WS_X1:x}
    s_mov_b32 s53, 0
    """)
    ln_load(a, XS, 46, "", False, raw=24)
    a(f"""
    s_cmp_ge_u32 s{sSTEP}, {SENT0}
    s_cbranch_scc1 l_ld
    """)
    wait_flag(a, 49, 52, 53, 16, sleep=3)
    stamp(a, 1)
    a.label("l_ld")
    ln_load(a, WS, 41, "sc1", False)
    a("s_waitcnt vmcnt(0)")
    vmax_chain(a, 16, range(L_RAW, L_RAW+8))
    poll_fail(a, "l_ld", sleep=3)
    ln_unpack(a, False)
    for j in range(8):
        x0, x1 = L_X + 2*j, L_X + 2*j + 1
        a(f"""
        v_mul_f32 v{x0}, v{x0}, v{GA+2*j}
        v_mul_f32 v{x1}, v{x1}, v{GA+2*j+1}
        v_cvt_pk_bf16_f32 v{L_T}, v{x0}, v{x1}
        v_lshlrev_b32 v{x0}, 16, v{L_T}
        v_and_b32 v{x1}, 0xffff0000, v{L_T}
        v_lshlrev_b32 v{L_T}, 16, v{24+j}
        v_and_b32 v{L_T2}, 0xffff0000, v{24+j}
        v_add_f32 v{x0}, v{x0}, v{L_T}
        v_add_f32 v{x1}, v{x1}, v{L_T2}
        v_cvt_pk_bf16_f32 v{32+j}, v{x0}, v{x1}
        v_lshlrev_b32 v{x0}, 16, v{32+j}
        v_and_b32 v{x1}, 0xffff0000, v{32+j}
        """)
    for j in range(8):
        a(f"v_min_u32 v{32+j}, -2, v{32+j}")
    a(f"buffer_store_dwordx4 v[32:35], v{L_DST}, {WS}, s42 offen sc1")
    a(f"buffer_store_dwordx4 v[36:39], v{L_DST}, {WS}, s42 offen offset:640 sc1")
    ln_compute_store(a, 47)
    a("s_add_u32 s49, s49, 128")
    stamp(a, 2)
    a(f"""
    v_mov_b32 v16, s45
    s_add_u32 s46, s46, {32*1280}
    s_add_u32 s47, s47, {32*1280}
    s_waitcnt vmcnt(0)
    s_mov_b64 exec, 1
    buffer_store_dword v16, off, {WS}, s48 sc1
    s_mov_b64 exec, -1
    """)
    stamp(a, 3)
    stamp_flush(a, 4, 1)
    a(f"""
    s_add_u32 s{sSTEP}, s{sSTEP}, 1
    s_cmp_lt_u32 s{sSTEP}, 64
    s_cbranch_scc1 l_loop
    s_endpgm
    """)

    vPT, vBM, vXS = 240, 239, 242
    sUXR, sPFC = 33, 59
    sA, sV = 61, 62
    PFB = [16, 96]
    BMB = [128, 144]
    CAC = 176
    from gen_boot import arrive
    a.label("role_c")
    a(f"s_sub_u32 s{sID}, s{sID}, 184")
    setup_p_load_addrs(a, vPA, vPB, vBM)
    a(f"""
    s_lshl_b32 s40, s{sW}, 12
    v_add_u32 v{vPT}, s40, v{vL16}
    v_add_u32 v{vRd}, s40, v{vL16}
    s_lshl_b32 s40, s{sW}, 10
    v_add_u32 v{vWr}, s40, v{vL16}
    v_add_u32 v241, 16384, v{vWr}
    v_and_b32 v10, 15, v{vLANE}             ; n
    v_lshrrev_b32 v11, 5, v{vLANE}          ; pr
    v_lshl_add_u32 v10, v11, 4, v10
    v_bfe_u32 v11, v{vLANE}, 4, 1
    v_lshlrev_b32 v11, 2, v11
    s_lshl_b32 s40, s{sW}, 3
    v_add_u32 v11, s40, v11
    v_mul_u32_u24 v11, 1280, v11
    v_lshl_add_u32 v{vXS}, v10, 1, v11
    v_and_b32 v10, 1, v{vLANE}
    v_mov_b32 v11, 0x7ffffff0
    v_cmp_ne_u32 vcc, 0, v10
    v_lshlrev_b32 v243, 7, v{vLANE}
    v_mov_b32 v232, 0
    v_cndmask_b32 v{vXS}, v{vXS}, v11, vcc
    v_mov_b32 v231, 1
    s_lshl_b32 s40, s{sW}, 10
    s_add_u32 s{sFT}, s40, 0x{flag(FL_UF):x}
    s_add_u32 s{sA}, s40, 0x{flag(FL_A):x}
    s_add_u32 s{sV}, s40, 0x{flag(FL_VO):x}
    s_mov_b32 s{sFM}, 0x{flag(FL_MEM):x}
    s_mul_i32 s73, s{sW}, {8*40960}
    s_add_u32 s73, s73, 0x{WS_UX:x}
    s_add_u32 s76, s{sID}, {CT0}
    s_cmp_ge_u32 s{sID}, {NC}
    s_cselect_b32 s77, s76, s{sID}
    s_mov_b32 s78, s77
    s_mov_b32 s79, s77
    """)

    TIX = {57: 77, 60: 78, 68: 79}

    def dec(ss, sk):
        t = TIX[ss]
        a(f"""
        s_mul_i32 s{ss}, s{t}, 3277
        s_lshr_b32 s{ss}, s{ss}, 16
        s_mul_i32 s40, s{ss}, 20
        s_sub_u32 s{sk}, s{t}, s40
        """)

    def adv(ss, sk):
        t = TIX[ss]
        a(f"""
        s_add_u32 s40, s{t}, {NC}
        s_cmp_lt_u32 s40, {CT0}
        s_cselect_b32 s40, s40, s76
        s_add_u32 s41, s{t}, {2*NC}
        s_cmp_lt_u32 s{t}, {CT0}
        s_cselect_b32 s{t}, s40, s41
        """)
        dec(ss, sk)
    dec(57, 58)
    dec(60, 63)
    dec(68, 72)

    def c_needs():
        a(f"s_add_u32 s44, s60, 1")

    def c_offs():
        a(f"""
        s_mul_i32 s{sPB}, s60, {PT_STEP}
        s_add_u32 s{sPB}, s{sPB}, 0x{WS_PT:x}
        s_add_u32 s64, s{sPB}, {PB_RG}
        s_add_u32 s65, s{sPB}, {2*PB_RG}
        s_add_u32 s66, s{sPB}, {3*PB_RG}
        s_mul_i32 s67, s60, {UM_STEP}
        s_lshl_b32 s40, s63, 9
        s_add_u32 s67, s67, s40
        s_add_u32 s67, s67, 0x{WS_UMC:x}
        s_add_u32 s69, s67, 20480
        s_add_u32 s70, s67, 40960
        s_add_u32 s71, s67, 61440
        """)

    def c_flag_loads():
        a(f"""
        s_mov_b64 exec, 255
        buffer_load_dword v233, v243, {WS}, s{sA} offen sc1
        buffer_load_dwordx4 v[224:227], v243, {WS}, s{sFT} offen sc1
        s_mov_b64 exec, -1
        """)

    def c_test(fail):
        a(f"""
        v_min3_u32 v234, v233, v224, v225
        v_min3_u32 v234, v234, v226, v227
        s_mov_b64 exec, 255
        v_cmp_gt_u32 vcc, s44, v234
        s_mov_b64 exec, -1
        s_cbranch_vccnz {fail}
        """)

    def c_block():
        c_needs()
        top, retry, done = a.newlabel("cb"), a.newlabel("cb"), a.newlabel("cb")
        a.label(top)
        c_flag_loads()
        a("s_waitcnt vmcnt(0)")
        sk = a.newlabel("cb")
        a(f"""
        s_cmp_lt_u32 s60, {SENT0}
        s_cbranch_scc1 {sk}
        v_mov_b32 v233, 64
        {sk}:
        """)
        c_test(retry)
        a(f"s_branch {done}")
        a.label(retry)
        a(f"""
        s_sub_u32 s{sBUD}, s{sBUD}, 1
        s_cmp_lt_i32 s{sBUD}, 0
        s_cbranch_scc1 {done}
        s_sleep 3
        s_branch {top}
        """)
        a.label(done)

    def c_load_list(buf):
        L = []
        for rg in range(4):
            so = [sPB, 64, 65, 66][rg]
            PF = PFB[buf] + 20*rg
            for q in range(4):
                L.append(f"buffer_load_dwordx4 {vr(PF+q*4,4)}, v{vPT}, {WS}, s{so} offen offset:{q*1024} sc1")
            L.append(f"buffer_load_dwordx4 {vr(PF+16,4)}, v241, {WS}, s{so} offen sc1")
        for j in range(4):
            for pr in range(2):
                L.append(f"buffer_load_dwordx2 {ar(BMB[buf]+pr*8+2*j,2)}, v{vBM}, {WS}, s{[67,69,70,71][j]} offen offset:{pr*256} sc1")
        return L

    def c_ux(buf):
        ok, skip = a.newlabel("cux"), a.newlabel("cux")
        a(f"""
        s_cmp_ge_u32 s68, 64
        s_cbranch_scc1 {skip}
        s_add_u32 s45, s68, 1
        s_mov_b64 exec, 255
        v_cmp_gt_u32 vcc, s45, v232
        s_mov_b64 exec, -1
        s_cbranch_vccz {ok}
        """)
        wait_all(a, 8, 243, sV, 45, 232)
        a.label(ok)
        a(f"""
        s_mul_i32 s{sUXR}, s68, {UX_STEP}
        s_lshl_b32 s40, s72, 11
        s_add_u32 s{sUXR}, s{sUXR}, s40
        s_add_u32 s{sUXR}, s{sUXR}, s73
        """)
        for hh in range(8):
            for pr in range(2):
                a(f"buffer_load_dwordx4 {ar(buf*64+pr*32+hh*4,4)}, v{vL16}, {WS}, s{sUXR} offen offset:{pr*1024} sc1")
            a(f"s_add_u32 s{sUXR}, s{sUXR}, 40960")
        a.label(skip)
        adv(68, 72)

    def c_burst(buf):
        c_block()
        c_offs()
        top = a.newlabel("cbl")
        a.label(top)
        for x in c_load_list(buf):
            a(x)
        c_flag_loads()
        a("s_waitcnt vmcnt(0)")
        vmax_chain(a, 3, range(PFB[buf], PFB[buf]+80))
        poll_fail(a, top, sleep=4)
        adv(60, 63)

    def c_compute(buf, LL):
        b = Asm()
        for r in range(32):
            b(f"v_mov_b32 v{CAC+r}, 0")
        b.nop(1)
        for q in range(5):
            for pr in range(2):
                for rg in range(4):
                    f = PFB[buf] + 20*rg + q*4
                    B = ar(buf*64+pr*32+q*8, 8) if q < 4 else ar(BMB[buf]+pr*8, 8)
                    b(f"v_smfmac_f32_16x16x64_bf16 {vr(CAC+(pr*4+rg)*4,4)}, {vr(f,4)}, {B}, v{vIDX}")
        b.nop(6)
        for rg in range(4):
            A, B = CAC + rg*4, CAC + (4+rg)*4
            for r in range(4):
                b(f"v_permlane32_swap_b32 v{A+r}, v{B+r}")
            for r in range(4):
                b(f"v_add_f32 v{A+r}, v{A+r}, v{B+r}")
            b(f"ds_write_b128 v{vWr}, {vr(A,4)} offset:{rg*4096}")
        b(f"""
        s_waitcnt lgkmcnt(0)
        s_barrier
        """)
        FT = 208
        for q in range(4):
            b(f"ds_read_b128 {vr(FT+4*q,4)}, v{vRd} offset:{q*1024}")
        b(f"""
        s_mul_i32 s74, s57, {32*1280}
        s_lshl_b32 s75, s58, 6
        s_add_u32 s74, s74, s75
        s_add_u32 s74, s74, 0x{WS_ATT:x}
        s_lshl_b32 s75, s57, 7
        s_add_u32 s75, s75, 0x{flag(FL_CC):x}
        s_waitcnt lgkmcnt(0)
        """)
        for r in range(4):
            b(f"v_add_f32 v{FT+r}, v{FT+r}, v{FT+4+r}")
            b(f"v_add_f32 v{FT+8+r}, v{FT+8+r}, v{FT+12+r}")
        for r in range(4):
            b(f"v_add_f32 v{FT+r}, v{FT+r}, v{FT+8+r}")
        b.nop(1)
        for r in range(4):
            b(f"v_mov_b32_dpp v{FT+8+r}, v{FT+r} quad_perm:[1,0,3,2] row_mask:0xf bank_mask:0xf")
        for r in range(4):
            b(f"v_cvt_pk_bf16_f32 v{FT+r}, v{FT+r}, v{FT+8+r}")
            b(f"v_min_u32 v{FT+r}, -2, v{FT+r}")
            b(f"buffer_store_dword v{FT+r}, v{vXS}, {WS}, s74 offen offset:{r*1280} sc1")
        LL = list(LL)
        acc = 0
        for ln in b.lines:
            t = ln.strip()
            a.lines.append(ln)
            if not t or t.startswith(";"):
                continue
            if t.startswith("v_smfmac"):
                acc += 16
            elif t.startswith("ds_") or t.startswith("s_waitcnt") or t.startswith("s_barrier"):
                acc += 24
            elif t.startswith("buffer_store"):
                acc = 0
            else:
                acc += 4
            if acc >= C_GAP and LL and not t.startswith("v_cvt_pk_bf16_f32 v2"):
                a(LL.pop(0))
                acc = 0
        for x in LL:
            a(x)

    c_ux(0)
    c_ux(1)
    c_burst(0)
    a.label("c_loop")
    for buf in range(2):
        stamp(a, 0)
        plain, join, nb = a.newlabel("cpl"), a.newlabel("cjn"), a.newlabel("cnb")
        c_needs()
        a(f"s_mov_b32 s{sPFC}, 0")
        c_test(plain)
        a(f"""
        s_mov_b32 s{sPFC}, 1
        """)
        c_offs()
        c_compute(buf, c_load_list(1 - buf))
        c_flag_loads()
        adv(60, 63)
        a(f"s_branch {join}")
        a.label(plain)
        c_compute(buf, [])
        a.label(join)
        stamp(a, 1)
        a(f"""
        s_waitcnt vmcnt(0)
        s_barrier
        s_cmp_lg_u32 s{sW}, 3
        s_cbranch_scc1 c_nf{buf}
        s_mov_b64 exec, 1
        s_lshl_b32 s40, s57, 2
        s_add_u32 s40, s40, 0x{flag(FL_CN):x}
        """)
        arrive(a, WS, "s40", 0, 20, 0, 231, soff_flag="s75")
        a(f"""
        s_mov_b64 exec, -1
        c_nf{buf}:
        """)
        adv(57, 58)
        c_ux(buf)
        stamp(a, 2)
        stamp_flush(a, 3, 1)
        a(f"""
        s_add_u32 s{sSTEP}, s{sSTEP}, 1
        s_cmp_ge_u32 s57, 64
        s_cbranch_scc1 r_end
        s_cmp_eq_u32 s{sPFC}, 1
        s_cbranch_scc1 {nb}
        """)
        c_burst(1 - buf)
        a.label(nb)
    a("s_branch c_loop")
    a.label("pre_boot")
    a(f"""
    v_mov_b32 v134, -1
    s_sub_u32 s40, s{sID}, 102
    s_lshl_b32 s40, s40, 21
    s_add_u32 s40, s40, 0x{WS_CRA + 0x1F0000:x}
    s_lshl_b32 s41, s{sW}, 14
    s_add_u32 s40, s40, s41
    s_mov_b32 s42, -1
    s_mov_b32 s43, -1
    s_mov_b64 exec, 1
    """)
    for k in range(3):
        for half in range(2):
            a(f"""
            s_add_u32 s41, s40, {half*8192 + (k%2)*4096 + k*1152}
            s_memtime s[44:45]
            s_waitcnt lgkmcnt(0)
            buffer_store_dword v134, off, {WS}, s41 sc1
            s_waitcnt vmcnt(0)
            buffer_load_dword v135, off, {WS}, s41 sc1
            s_waitcnt vmcnt(0)
            s_memtime s[46:47]
            s_waitcnt lgkmcnt(0)
            s_sub_u32 s46, s46, s44
            s_min_u32 s{42+half}, s{42+half}, s46
            """)
    a(f"""
    v_mov_b32 v136, s42
    v_mov_b32 v137, s43
    s_lshl_b32 s40, s{sW}, 3
    v_mov_b32 v135, s40
    ds_write_b64 v135, v[136:137]
    s_mov_b64 exec, -1
    s_waitcnt lgkmcnt(0)
    s_barrier
    v_mov_b32 v135, 0
    ds_read_b128 v[124:127], v135
    ds_read_b128 v[128:131], v135 offset:16
    s_waitcnt lgkmcnt(0)
    v_add3_u32 v124, v124, v126, v128
    v_add3_u32 v125, v125, v127, v129
    v_add_u32 v124, v124, v130
    v_add_u32 v125, v125, v131
    v_cmp_lt_u32 vcc, v125, v124
    v_mov_b32 v126, 1
    v_mov_b32 v127, 3
    v_cndmask_b32 v126, v126, v127, vcc
    {"v_mov_b32 v126, " + FORCEPOL if FORCEPOL else ""}
    s_sub_u32 s40, s{sID}, 102
    s_lshl_b32 s40, s40, 2
    s_barrier
    s_cmp_lg_u32 s{sW}, 0
    s_cbranch_scc1 boot_nrm0
    s_mov_b64 exec, 1
    buffer_store_dword v126, off, {DBG}, s40 offset:176 sc1
    s_mov_b64 exec, -1
    s_branch boot_nrm0
    """)
    from gen_boot import gen_boot
    gen_boot(a)
    from gen_f import gen_phase2
    gen_phase2(a)
    a.label("r_end")
    a("s_endpgm")
    return (L, 256, 256, 131072, kernel_desc(L, 512, 256))
```

```python
import sys
from gen_common import *
from gen_prep import gen_prep
from gen_ln import gen_ln

HEADER = open('cdna_kernels/' + NAME + '.s.ref').read().split('; Override launch geometry')[0]


def build(stages):
    a = Asm()
    ks = []
    import os
    if not os.environ.get('PREPONLY'):
        from gen_r import gen_r
        ks.append(gen_r(a))
    out = HEADER
    import os
    for (L, grid, block, lds, desc) in ks:
        if os.environ.get('FINAL'):
            out += f"; @launch grid=({grid},1,1) block=({block},1,1) lds={lds}\n"
        else:
            out += f"; @launch kernel={L} grid=({grid},1,1) block=({block},1,1) lds={lds}\n"
    out += '.amdgcn_target "amdgcn-amd-amdhsa--gfx950"\n.text\n'
    out += a.text()
    out += '.section .rodata,"a"\n'
    for (L, grid, block, lds, desc) in ks:
        out += desc
    return out


if __name__ == "__main__":
    stages = sys.argv[2].split(',') if len(sys.argv) > 2 else ['r', 'ffn']
    open(sys.argv[1], 'w').write(build(stages))
```

```python
import os
NAME = "adaLN_cond__memory_aug_recurrent_mem_tr__swiglu_ffn__prompt"

S, D, H, E, M, SEG, NSEG, F = 2048, 640, 32, 128, 8, 32, 64, 1728

KA_X, KA_MEM0, KA_WQ, KA_WK, KA_WV, KA_WO = 0, 8, 16, 24, 32, 40
KA_WG, KA_WU, KA_WD, KA_C, KA_WMOD = 64, 72, 80, 88, 96
KA_OUT, KA_DBG, KA_WS = 104, 112, 120

WS_SIZE = 0x10000000
WS_MOD = 0x00000000
WS_FLAGS = 0x00010000
FLAGS_BYTES = 0x10000
MEM_STEP = 20480
WS_MEM = 0x00100000
WS_PM = WS_MEM + 64 * MEM_STEP
PB_RG = 32 * 640
WS_UM = WS_PM + 64 * PB_RG
UM_STEP = 32 * 10240
INIT_UNITS = (63 * MEM_STEP + 64 * PB_RG + 8 * UM_STEP) // 4096
WS_PT = 0x00800000
PT_STEP = 4 * PB_RG
WS_KM = 0x00E00000
WS_H1F = 0x02400000
WS_X1 = 0x02800000
WS_H2F = 0x02C00000
WS_ACT = 0x03000000
WS_KX = 0x03800000
WS_QX = 0x04800000
WS_WVO = 0x06000000
WS_UX = 0x08000000
FL_MEM, FL_T, FL_DOOR, FL_VO, FL_UF, FL_KM, FL_A, FL_C, FL_L, FL_F1 = 0, 1, 40, 64, 96, 176, 208, 240, 260, 296
WS_CRA = 0x06000000
CRA_SLOT = 40 * 16384
WS_CRB = 0x06200000
CRB_SLOT = 8 * 16384
CRB_DOOR = 4 * CRB_SLOT
WS_UMC = 0x06800000
FL_DUMMY = 410
FL_F1B = 416
F1S = int(os.environ.get('F1S', '54'))
FL_CN = 400
FL_CC = 330
WS_ATT = 0x01400000
NC = 25
import os
SENT0 = int(os.environ.get('SENT0', '56'))
UX_STEP = 32 * 40960


def flag(idx):
    return WS_FLAGS + idx * 128


PI16 = [0, 1, 8, 9, 2, 3, 10, 11, 4, 5, 12, 13, 6, 7, 14, 15]


class Asm:
    def __init__(self):
        self.lines = []
        self.uid = 0

    def __call__(self, s):
        for ln in s.strip("\n").split("\n"):
            self.lines.append("    " + ln.strip() if ln.strip() and not ln.strip().endswith(":") else ln.strip())

    def label(self, name):
        self.lines.append(name + ":")

    def newlabel(self, base="L"):
        self.uid += 1
        return f"{base}_{self.uid}"

    def comment(self, s):
        self.lines.append("    ; " + s)

    def nop(self, n):
        while n > 0:
            k = min(n, 16)
            self.lines.append(f"    s_nop {k-1}")
            n -= k

    def text(self):
        return "\n".join(self.lines) + "\n"


def vr(b, n=1):
    return f"v{b}" if n == 1 else f"v[{b}:{b+n-1}]"


def ar(b, n=1):
    return f"a{b}" if n == 1 else f"a[{b}:{b+n-1}]"


def sr(b, n=1):
    return f"s{b}" if n == 1 else f"s[{b}:{b+n-1}]"


def srd(a, sbase, sptr, nbytes):
    a(f"s_mov_b32 s{sbase}, s{sptr}")
    a(f"s_and_b32 s{sbase+1}, s{sptr+1}, 0xffff")
    a(f"s_mov_b32 s{sbase+2}, 0x{nbytes:x}")
    a(f"s_mov_b32 s{sbase+3}, 0x00020000")


def kernel_header(a, label):
    a.lines.append(f".globl {label}")
    a.lines.append(".p2align 8")
    a.lines.append(f".type {label},@function")
    a.label(label)


def kernel_desc(label, vgpr, accum, sgpr=102):
    return f""".p2align 6
.amdhsa_kernel {label}
  .amdhsa_next_free_vgpr {vgpr}
  .amdhsa_next_free_sgpr {sgpr}
  .amdhsa_accum_offset {accum}
  .amdhsa_group_segment_fixed_size 0
  .amdhsa_kernarg_size 128
  .amdhsa_user_sgpr_count 2
  .amdhsa_user_sgpr_kernarg_segment_ptr 1
  .amdhsa_system_sgpr_workgroup_id_x 1
  .amdhsa_float_denorm_mode_32 3
.end_amdhsa_kernel
"""
```

```python
from gen_common import *
import os
from gen_r import *

NG = 1
OUTF = os.environ.get('OUTF', '')
F2_POLL = int(os.environ.get('F2_POLL', '8'))
F2_GATE = int(os.environ.get('F2_GATE', '4'))


def rnd2(a, x0, x1, t):
    a(f"v_cvt_pk_bf16_f32 v{t}, v{x0}, v{x1}")
    a(f"v_lshlrev_b32 v{x0}, 16, v{t}")
    a(f"v_and_b32 v{x1}, 0xffff0000, v{t}")


def gen_phase2(a):
    sG, sJ, sSEG, sCNT, sFL, sFO = 31, 32, 33, 34, 35, 36
    vF = 9
    a.label("role_f")
    a(f"""
    s_load_dwordx4 s[64:67], s[0:1], {KA_WG}
    s_load_dwordx2 s[68:69], s[0:1], {KA_WD}
    s_load_dwordx2 s[70:71], s[0:1], {KA_OUT}
    v_lshlrev_b32 v{vF}, 7, v{vLANE}
    s_mov_b32 s45, 0x{flag(FL_MEM):x}
    s_mov_b32 s46, 1
    s_mov_b32 s47, 0
    s_waitcnt lgkmcnt(0)
    """)
    wait_flag(a, 45, 46, 47, 3, sleep=16)
    a(f"""
    s_cmp_ge_u32 s{sID}, 239
    s_cbranch_scc1 role_f2
    """)
    a(f"""
    s_mov_b32 s{sG}, s100
    s_sub_u32 s{sJ}, s{sID}, 212
    s_cmp_ge_u32 s{sW}, 2
    s_cselect_b32 s72, s66, s64
    s_cselect_b32 s73, s67, s65
    """)
    srd(a, 16, 72, D * F * 2)
    a(f"""
    v_lshrrev_b32 v10, 3, v{vLANE}          ; r8
    v_and_b32 v11, 7, v{vLANE}
    v_bfe_u32 v12, v10, 1, 1
    s_and_b32 s40, s{sW}, 1
    s_lshl_b32 s41, s40, 1
    v_or_b32 v12, s41, v12                  ; f2 = b1 | b3<<1
    v_lshlrev_b32 v12, 1, v12
    v_xor_b32 v11, v11, v12
    v_lshlrev_b32 v11, 4, v11
    s_lshl_b32 s41, s40, 3
    v_add_u32 v10, s41, v10
    v_mul_u32_u24 v10, {F*2}, v10
    v_add_u32 v11, v10, v11
    s_lshl_b32 s42, s{sJ}, 7                ; soffset
    s_lshr_b32 s43, s{sW}, 1
    s_mul_i32 s43, s43, 40960
    s_lshl_b32 s41, s41, 7
    s_add_u32 s43, s43, s41
    v_lshrrev_b32 v12, 4, v{vLANE}          ; g
    v_bfe_u32 v13, v{vLANE}, 2, 2           ; r
    v_and_b32 v14, 3, v{vLANE}              ; c
    v_lshl_add_u32 v15, v12, 3, v13
    v_lshlrev_b32 v15, 7, v15
    v_lshl_add_u32 v15, v14, 3, v15
    v_lshrrev_b32 v13, 1, v13
    v_and_b32 v12, 1, v12
    v_lshl_or_b32 v13, v12, 1, v13
    v_lshl_or_b32 v15, v13, 5, v15
    s_lshl_b32 s41, s40, 6                  ; (2fp)<<5
    v_xor_b32 v16, s41, v15
    v_xor_b32 v17, 32, v16
    v_add_u32 v18, 40960, v16
    v_add_u32 v19, 40960, v17
    """)
    for ph in range(2):
        a("s_mov_b32 s44, s43")
        for q in range(20):
            a(f"""
            s_mov_b32 m0, s44
            s_add_u32 s44, s44, 2048
            buffer_load_dwordx4 v11, s[16:19], s42 offen lds
            s_add_u32 s42, s42, {16*F*2}
            """)
        a("s_waitcnt vmcnt(0)")
        a("s_barrier")
        for ksl in range(10):
            for t in range(4):
                for j in range(2):
                    idx = (t * 20 + ph*10 + ksl) * 4 + 2*j
                    dst = ar(idx, 2) if idx < 256 else vr(192 + idx - 256, 2)
                    a(f"ds_read_b64_tr_b16 {dst}, v{16+t} offset:{ksl*4096+j*512}")
            a("s_waitcnt lgkmcnt(0)")
        a("s_barrier")
    sHOFF, sHBUF, sOUT, sPFD = 37, 38, 39, 46
    vH = 14
    dma_h_setup(a)
    a(f"""
    s_mov_b32 s{sSEG}, s{sG}
    s_mov_b32 s{sCNT}, 0
    s_mov_b32 s{sFL}, 0x{flag(FL_L):x}
    s_lshl_b32 s{sFO}, s{sJ}, 7
    s_lshl_b32 s40, s{sW}, 2
    s_add_u32 s{sFO}, s{sFO}, s40
    s_add_u32 s{sFO}, s{sFO}, 0x{flag(FL_F1):x}
    s_mul_i32 s{sHOFF}, s{sG}, 40960
    s_add_u32 s{sHOFF}, s{sHOFF}, 0x{WS_H2F:x}
    s_mov_b32 s{sHBUF}, 0
    s_lshl_b32 s40, s{sG}, 1
    s_lshr_b32 s41, s{sW}, 1
    s_add_u32 s40, s40, s41
    s_mul_i32 s{sOUT}, s40, {54*1024}
    s_lshl_b32 s40, s{sJ}, 1
    s_and_b32 s42, s{sW}, 1
    s_add_u32 s40, s40, s42
    s_lshl_b32 s40, s40, 10
    s_add_u32 s{sOUT}, s{sOUT}, s40
    s_add_u32 s{sOUT}, s{sOUT}, 0x{WS_ACT:x}
    s_mul_i32 s47, s41, 20480
    s_mov_b32 s57, 0xbfb8aa3b
    s_mov_b32 s{sPFD}, 0
    s_add_u32 s56, s{sSEG}, 1
    s_cmp_eq_u32 s100, 0
    s_cbranch_scc1 f1_prim
    s_add_u32 s{sFO}, s{sFO}, {(FL_F1B-FL_F1)*128}
    """)
    wait_all(a, 32, vF, sFL, sSEG, 20, sleep=32)
    a.label("f1_prim")
    wait_all(a, 32, vF, sFL, 56, 20)
    dma_h(a, sHOFF, sHBUF)
    a.label("f1_loop")
    stamp(a, 0)
    a(f"""
    v_mov_b32 v3, s{sCNT}
    s_add_u32 s40, s{sHBUF}, s47
    v_add_u32 v{vH}, s40, v{vL16}
    s_sub_u32 s{sHBUF}, 40960, s{sHBUF}
    s_add_u32 s61, s{sSEG}, 1
    s_cmp_ge_u32 s{sSEG}, {F1S}
    s_cselect_b32 s58, 2, 1
    s_mul_i32 s40, s58, 40960
    s_add_u32 s{sHOFF}, s{sHOFF}, s40
    s_add_u32 s{sSEG}, s{sSEG}, s58
    s_add_u32 s56, s{sSEG}, 1
    s_cmp_eq_u32 s{sPFD}, 1
    s_cbranch_scc1 f1_w1
    s_waitcnt vmcnt(0)
    f1_w1:
    s_waitcnt vmcnt(1)
    s_mov_b32 exec_lo, -1
    s_mov_b32 exec_hi, 0
    v_cmp_gt_u32 vcc, s56, v20
    s_mov_b64 exec, -1
    s_barrier
    """)
    stamp(a, 1)
    HF1, AC1 = 24, 40

    def rd(ks):
        a(f"ds_read_b128 {vr(HF1+(ks%4)*4,4)}, v{vH} offset:{ks*1024}")

    def mm(with_dma):
        for k in range(3):
            rd(k)
        for ks in range(20):
            if ks + 3 < 20:
                rd(ks + 3)
            a(f"s_waitcnt lgkmcnt({min(3, 19-ks)})")
            for t in range(4):
                acc = vr(AC1 + 4*t, 4)
                a(f"v_mfma_f32_16x16x32_bf16 {acc}, {wreg(t,ks)}, {vr(HF1+(ks%4)*4,4)}, {'0' if ks == 0 else acc}")
                if with_dma and t == 1 and ks in (0, 1, 3, 4, 6, 7, 9, 10, 12, 13):
                    dma_h_one(a)
    a(f"""
    s_mov_b32 s{sPFD}, 0
    s_cbranch_vccnz f1_plain
    s_mov_b32 s{sPFD}, 1
    """)
    dma_h_init(a, sHOFF, sHBUF)
    mm(True)
    a(f"""
    s_waitcnt vmcnt(10)
    s_mov_b64 exec, 1
    buffer_store_dword v3, off, {WS}, s{sFO} sc1
    s_mov_b64 exec, -1
    s_branch f1_epi
    """)
    a.label("f1_plain")
    a(f"""
    s_mov_b32 exec_lo, -1
    s_mov_b32 exec_hi, 0
    buffer_load_dword v20, v{vF}, {WS}, s{sFL} offen sc1
    s_mov_b64 exec, -1
    """)
    mm(False)
    a(f"""
    s_waitcnt vmcnt(0)
    s_mov_b64 exec, 1
    buffer_store_dword v3, off, {WS}, s{sFO} sc1
    s_mov_b32 exec_lo, -1
    s_mov_b32 exec_hi, 0
    v_cmp_gt_u32 vcc, s56, v20
    s_mov_b64 exec, -1
    s_cbranch_vccnz f1_epi
    s_mov_b32 s{sPFD}, 1
    """)
    dma_h(a, sHOFF, sHBUF)
    a.label("f1_epi")
    stamp(a, 2)
    a(f"""
    s_mov_b32 exec_lo, -1
    s_mov_b32 exec_hi, 0
    buffer_load_dword v20, v{vF}, {WS}, s{sFL} offen sc1
    s_mov_b64 exec, -1
    """)
    a.nop(4)
    O = 60
    for tt in range(2):
        g = AC1 + tt * 4
        u = AC1 + (2 + tt) * 4
        for hf in range(2):
            g0, g1, u0, u1 = g+2*hf, g+2*hf+1, u+2*hf, u+2*hf+1
            rnd2(a, g0, g1, 64)
            rnd2(a, u0, u1, 65)
            a(f"""
            v_mul_f32 v66, s57, v{g0}
            v_mul_f32 v67, s57, v{g1}
            v_exp_f32 v66, v66
            v_exp_f32 v67, v67
            s_nop 0
            v_add_f32 v66, 1.0, v66
            v_add_f32 v67, 1.0, v67
            v_rcp_f32 v66, v66
            v_rcp_f32 v67, v67
            s_nop 0
            v_mul_f32 v{g0}, v{g0}, v66
            v_mul_f32 v{g1}, v{g1}, v67
            """)
            rnd2(a, g0, g1, 64)
            a(f"""
            v_mul_f32 v{g0}, v{g0}, v{u0}
            v_mul_f32 v{g1}, v{g1}, v{u1}
            v_cvt_pk_bf16_f32 v{O+2*tt+hf}, v{g0}, v{g1}
            """)
    for k in range(4):
        a(f"v_min_u32 v{O+k}, -2, v{O+k}")
    a(f"""
    buffer_store_dwordx4 {vr(O,4)}, v{vL16}, {WS}, s{sOUT} offen sc1
    s_mul_i32 s40, s58, {2*54*1024}
    s_add_u32 s{sOUT}, s{sOUT}, s40
    s_mov_b32 s{sCNT}, s61
    """)
    stamp(a, 3)
    stamp_flush(a, 4, 1)
    a(f"""
    s_add_u32 s{sSTEP}, s{sSTEP}, 1
    s_cmp_ge_u32 s{sSEG}, 64
    s_cbranch_scc1 f1_fin
    s_cmp_eq_u32 s{sPFD}, 1
    s_cbranch_scc1 f1_loop
    s_cmp_gt_u32 s{sCNT}, {SENT0}
    s_cbranch_scc1 f1_late
    v_mov_b32 v3, s{sCNT}
    s_waitcnt vmcnt(0)
    s_mov_b64 exec, 1
    buffer_store_dword v3, off, {WS}, s{sFO} sc1
    s_mov_b64 exec, -1
    s_cmp_ge_u32 s{sSEG}, {SENT0}
    s_cbranch_scc1 f1_late
    """)
    wait_all(a, 32, vF, sFL, 56, 20)
    dma_h(a, sHOFF, sHBUF)
    a("s_branch f1_loop")
    a.label("f1_late")
    a(f"""
    s_lshl_b32 s45, s{sSEG}, 7
    s_add_u32 s45, s45, 0x{flag(FL_CC):x}
    s_mov_b32 s59, 20
    s_mov_b32 s60, 0
    """)
    wait_flag(a, 45, 59, 60, 22, sleep=3)
    a.label("f1_late2")
    dma_h(a, sHOFF, sHBUF)
    a(f"""
    s_sub_u32 s43, s43, 10240
    v_add_u32 v21, s43, v{vL16}
    s_waitcnt vmcnt(0)
    """)
    for k in range(10):
        a(f"ds_read_b128 {vr(72+4*k,4)}, v21 offset:{k*1024}")
    a("s_waitcnt lgkmcnt(0)")
    vmax_chain(a, 22, range(72, 112))
    poll_fail(a, "f1_late2", sleep=3)
    a("s_branch f1_loop")
    a.label("f1_fin")
    a(f"""
    v_mov_b32 v3, s{sCNT}
    s_waitcnt vmcnt(0)
    s_mov_b64 exec, 1
    buffer_store_dword v3, off, {WS}, s{sFO} sc1
    s_endpgm
    """)

    a.label("role_f2")
    srd(a, 16, 68, D * F * 2)
    srd(a, 20, 70, S * D * 2)
    sKS0 = 37
    a(f"""
    s_sub_u32 s40, s{sID}, 239
    s_mul_i32 s{sG}, s40, 6554
    s_lshr_b32 s{sG}, s{sG}, 16
    s_mul_i32 s41, s{sG}, 10
    s_sub_u32 s{sJ}, s40, s41
    s_mul_i32 s{sKS0}, s{sW}, 13
    s_min_u32 s40, s{sW}, 1
    s_add_u32 s{sKS0}, s{sKS0}, s40
    v_lshrrev_b32 v10, 3, v{vLANE}
    v_and_b32 v11, 7, v{vLANE}
    v_bfe_u32 v12, v10, 1, 2
    v_lshlrev_b32 v12, 1, v12
    v_xor_b32 v11, v11, v12
    v_lshlrev_b32 v11, 4, v11
    v_mul_u32_u24 v10, {D*2}, v10
    v_add_u32 v11, v10, v11
    s_mul_i32 s42, s{sKS0}, {32*D*2}
    s_lshl_b32 s40, s{sJ}, 7
    s_add_u32 s42, s42, s40                 ; soffset
    s_mul_i32 s43, s{sW}, 28672
    v_lshrrev_b32 v12, 4, v{vLANE}          ; g
    v_bfe_u32 v13, v{vLANE}, 2, 2           ; r
    v_and_b32 v14, 3, v{vLANE}              ; c
    v_lshl_add_u32 v15, v12, 2, v13
    v_lshlrev_b32 v15, 7, v15
    v_lshl_add_u32 v15, v14, 3, v15
    v_lshrrev_b32 v13, 1, v13
    v_and_b32 v12, 1, v12
    v_lshl_or_b32 v13, v12, 1, v13
    v_lshl_or_b32 v15, v13, 5, v15
    """)
    for t in range(4):
        a(f"v_xor_b32 v{16+t}, {t<<5}, v15")
        a(f"v_add_u32 v{16+t}, s43, v{16+t}")
    for ph in range(2):
        a("s_mov_b32 s44, s43")
        for q in range(28):
            a(f"""
            s_mov_b32 m0, s44
            s_add_u32 s44, s44, 1024
            buffer_load_dwordx4 v11, s[16:19], s42 offen lds
            s_add_u32 s42, s42, {8*D*2}
            """)
        a("s_waitcnt vmcnt(0)")
        for ksl in range(7):
            for t in range(4):
                for j in range(2):
                    a(f"ds_read_b64_tr_b16 {ar(((ph*7+ksl)*4+t)*4+2*j,2)}, v{16+t} offset:{ksl*4096+j*2048}")
            a("s_waitcnt lgkmcnt(0)")
    a(f"""
    s_cmp_lt_u32 s{sW}, 2
    s_cbranch_scc1 f2_nz
    """)
    for r in range(16):
        a(f"v_accvgpr_write_b32 a{r}, 0")
    a.label("f2_nz")
    AF2, AC2, FT = 16, 128, 160
    vWr, vRd, vO, vG = 12, 13, 14, 15
    sACT, sXO = 38, 39
    a(f"""
    s_barrier
    s_mov_b32 s{sSEG}, s{sG}
    s_mov_b32 s{sCNT}, 1
    s_lshr_b32 s{sFL}, s{sG}, 1
    s_lshl_b32 s{sFL}, s{sFL}, 12
    s_add_u32 s{sFL}, s{sFL}, 0x{flag(FL_F1):x}
    s_mul_i32 s{sACT}, s{sG}, {54*1024}
    s_lshl_b32 s40, s{sKS0}, 10
    s_add_u32 s{sACT}, s{sACT}, s40
    s_add_u32 s{sACT}, s{sACT}, 0x{WS_ACT:x}
    s_lshl_b32 s40, s{sW}, 10
    v_add_u32 v{vWr}, s40, v{vL16}
    s_lshl_b32 s40, s{sW}, 12
    v_add_u32 v{vRd}, s40, v{vL16}
    ; output: token = l%16, col = 64j + 16w + 4g
    v_and_b32 v10, 15, v{vLANE}
    v_mul_u32_u24 v10, 1280, v10
    v_lshrrev_b32 v11, 4, v{vLANE}
    v_lshl_add_u32 v{vO}, v11, 3, v10
    v_lshlrev_b32 v11, 4, v11
    s_lshl_b32 s40, s{sJ}, 2
    s_add_u32 s40, s40, s{sW}
    s_lshl_b32 s{sXO}, s40, 5
    s_mul_i32 s41, s{sG}, {16*1280}
    s_add_u32 s{sXO}, s{sXO}, s41
    s_lshl_b32 s40, s40, 6
    s_add_u32 s40, s40, {WS_MOD + 5*2560}
    buffer_load_dwordx4 v[200:203], v11, {WS}, s40 offen sc1
    v_add_u32 v8, 12288, v{vL16}
    """)
    a("v_mov_b32 v216, 0")
    a.label("f2_loop")
    stamp(a, 0)
    a(f"""
    s_cmp_lg_u32 s{sW}, 0
    s_cbranch_scc1 f2_bar
    s_cmp_ge_u32 s{sSEG}, {2*SENT0}
    s_cbranch_scc1 f2_gate
    s_waitcnt vmcnt(0)
    v_min3_u32 v216, v216, v217, v218
    v_min_u32 v216, v216, v219
    s_mov_b32 exec_lo, 0x7ffffff
    s_mov_b32 exec_hi, 0
    v_cmp_gt_u32 vcc, s{sCNT}, v216
    s_mov_b64 exec, -1
    s_cbranch_vccz f2_bar
    """)
    wait_all(a, 27, vF, sFL, sCNT, 204, ndw=4, sleep=F2_POLL)
    stamp(a, 1)
    a("s_branch f2_bar")
    a.label("f2_gate")
    a(f"""
    s_mov_b32 s45, 0x{flag(FL_L):x}
    s_mov_b32 s60, 0
    """)
    wait_flag(a, 45, sCNT, 60, 204, sleep=3)
    a(f"s_sleep {F2_GATE}")
    a.label("f2_bar")
    a("s_barrier")
    a.label("f2_ld")
    for ks in range(14):
        off = ks * 1024
        av = [vL16, vL16b, vL16c, 8][off // 4096]
        a(f"buffer_load_dwordx4 {vr(AF2+ks*4,4)}, v{av}, {WS}, s{sACT} offen offset:{off%4096} sc1")
    a(f"""
    s_add_u32 s41, s{sXO}, 0x{WS_X1:x}
    buffer_load_dwordx2 v[208:209], v{vO}, {WS}, s41 offen sc1
    v_mov_b32 v204, 0
    """)
    for ks in range(14):
        a(f"s_waitcnt vmcnt({14-ks})")
        for t in range(4):
            acc = vr(AC2 + t*4, 4)
            a(f"v_mfma_f32_16x16x32_bf16 {acc}, {ar((ks*4+t)*4,4)}, {vr(AF2+ks*4,4)}, {'0' if ks == 0 else acc}")
            if t < 2:
                a(f"v_max3_u32 v204, v204, v{AF2+ks*4+2*t}, v{AF2+ks*4+2*t+1}")
    a(f"""
    s_waitcnt vmcnt(0)
    v_max3_u32 v204, v204, v208, v209
    v_cmp_eq_u32 vcc, -1, v204
    """)
    poll_fail(a, "f2_ld", sleep=3)
    stamp(a, 2)
    a.nop(6)
    for t in range(4):
        a(f"ds_write_b128 v{vWr}, {vr(AC2+t*4,4)} offset:{t*4096}")
    a(f"""
    s_waitcnt lgkmcnt(0)
    s_barrier
    """)
    for q in range(4):
        a(f"ds_read_b128 {vr(FT+q*4,4)}, v{vRd} offset:{q*1024}")
    a(f"""
    s_and_b32 s40, s{sCNT}, 1
    s_cmp_ge_u32 s{sCNT}, {F1S}
    s_cselect_b32 s40, s40, 0
    s_mul_i32 s40, s40, {(FL_F1B-FL_F1)*128}
    s_add_u32 s{sFL}, s40, 0x{flag(FL_F1):x}
    s_cmp_lg_u32 s{sW}, 0
    s_cbranch_scc1 f2_nf
    s_mov_b32 exec_lo, 0x7ffffff
    s_mov_b32 exec_hi, 0
    buffer_load_dwordx4 v[216:219], v{vF}, {WS}, s{sFL} offen sc1
    s_mov_b64 exec, -1
    f2_nf:
    s_waitcnt lgkmcnt(0)
    s_barrier
    """)
    b = FT
    for r in range(4):
        a(f"v_add_f32 v{b+r}, v{b+r}, v{b+4+r}")
        a(f"v_add_f32 v{b+8+r}, v{b+8+r}, v{b+12+r}")
    for r in range(4):
        a(f"v_add_f32 v{b+r}, v{b+r}, v{b+8+r}")
    x = 208
    for hf in range(2):
        d0, d1 = b+2*hf, b+2*hf+1
        rnd2(a, d0, d1, 212)
        a(f"v_mul_f32 v{d0}, v{d0}, v{200+2*hf}")
        a(f"v_mul_f32 v{d1}, v{d1}, v{201+2*hf}")
        rnd2(a, d0, d1, 212)
        a(f"""
        v_lshlrev_b32 v212, 16, v{x+hf}
        v_and_b32 v213, 0xffff0000, v{x+hf}
        v_add_f32 v{d0}, v{d0}, v212
        v_add_f32 v{d1}, v{d1}, v213
        v_cvt_pk_bf16_f32 v{b+4+hf}, v{d0}, v{d1}
        """)
    a(f"buffer_store_dwordx2 {vr(b+4,2)}, v{vO}, s[20:23], s{sXO} offen {OUTF}")
    stamp(a, 3)
    stamp_flush(a, 4, 1)
    a(f"""
    s_add_u32 s{sSTEP}, s{sSTEP}, 1
    s_add_u32 s{sACT}, s{sACT}, {2*54*1024}
    s_add_u32 s{sXO}, s{sXO}, {2*16*1280}
    s_add_u32 s{sCNT}, s{sCNT}, 1
    s_add_u32 s{sSEG}, s{sSEG}, 2
    s_cmp_lt_u32 s{sSEG}, 128
    s_cbranch_scc1 f2_loop
    """)
    dstamp(a, 14, 3, f"s_cmp_lg_u32 s{sID}, 239\ns_cbranch_scc1 {{lab}}")
    a("s_endpgm")
```

```python
from gen_common import *
import os

P_SLEEP0 = int(os.environ.get("P_SLEEP0", "35"))
P_SLEEP1 = int(os.environ.get("P_SLEEP1", "46"))
U_SLEEPM = int(os.environ.get("U_SLEEPM", "14"))
U_SLEEPP = int(os.environ.get("U_SLEEPP", "12"))
STAMP = int(os.environ.get("STAMP", "0"))
L1FIRST = 0
FORCEPOL = os.environ.get("FORCEPOL", "")
U_SLEEPD = int(os.environ.get("U_SLEEPD", "22"))
DOOR = int(os.environ.get("DOOR", "1"))
C_GAP = int(os.environ.get("C_GAP", "56"))
C_UXTAIL = int(os.environ.get("C_UXTAIL", "16"))
V_SLEEP = int(os.environ.get("V_SLEEP", "14"))
VM_FILL = int(os.environ.get("VM_FILL", "3"))
PKADD = int(os.environ.get("PKADD", "1"))
PDELAY = int(os.environ.get("PDELAY", "0"))
TDEPTH = int(os.environ.get("TDEPTH", "2"))
PDEPTH = int(os.environ.get("PDEPTH", "2"))
CT0 = 20 * int(os.environ.get("CSEG0", "48"))
XMAP = int(os.environ.get("XMAP", "76540321"), 16)
NOTOK = int(os.environ.get("NOTOK", "0"))

WS, DBG, WQ, WK, XS = "s[8:11]", "s[12:15]", "s[16:19]", "s[20:23]", "s[24:27]"
sW, sID, sSTEP, sBUD = 3, 28, 29, 30
vLANE, vIDX = 2, 4
vL16, vL16b, vL16c = 5, 6, 7
vM8 = 187
sSA, sSB = 98, 99
MEMF = 16
ACC = 56
LDS_T = 0x14000
LDS_R = 0x15000
LDS_ROLE = 0x1F000


def wreg(t, ks, n=4):
    idx = (t * 20 + ks) * 4
    if idx < 256:
        return ar(idx, n)
    return vr(192 + idx - 256, n)


def widx(idx, n=4):
    return ar(idx, n) if idx < 256 else vr(192 + idx - 256, n)


def l16(off):
    return f"v{vL16 + off // 4096}", off % 4096


def poll_fail(a, retry_label, sleep=2):
    ok = a.newlabel("pok")
    a(f"""
    s_cbranch_vccz {ok}
    s_sub_u32 s{sBUD}, s{sBUD}, 1
    s_cmp_lt_i32 s{sBUD}, 0
    s_cbranch_scc1 {ok}
    s_sleep {sleep}
    s_branch {retry_label}
    """)
    a.label(ok)


def wait_flag(a, s_flagoff, s_need, s_seen, vt, sleep=8):
    top = a.newlabel("wf")
    done = a.newlabel("wfd")
    a.label(top)
    a(f"""
    s_cmp_ge_u32 s{s_seen}, s{s_need}
    s_cbranch_scc1 {done}
    buffer_load_dword v{vt}, off, {WS}, s{s_flagoff} sc1
    s_waitcnt vmcnt(0)
    v_readfirstlane_b32 s{s_seen}, v{vt}
    s_nop 3
    s_cmp_ge_u32 s{s_seen}, s{s_need}
    s_cbranch_scc1 {done}
    s_sub_u32 s{sBUD}, s{sBUD}, 1
    s_cmp_lt_i32 s{sBUD}, 0
    s_cbranch_scc1 {done}
    s_sleep {sleep}
    s_branch {top}
    """)
    a.label(done)


def vmax_chain(a, vt, regs):
    regs = list(regs)
    a(f"v_max3_u32 v{vt}, v{regs[0]}, v{regs[1]}, v{regs[2]}")
    k = 3
    while k < len(regs):
        if k + 1 < len(regs):
            a(f"v_max3_u32 v{vt}, v{vt}, v{regs[k]}, v{regs[k+1]}")
            k += 2
        else:
            a(f"v_max_u32 v{vt}, v{vt}, v{regs[k]}")
            k += 1
    a(f"v_cmp_eq_u32 vcc, -1, v{vt}")


def get_pol(a, vt):
    from gen_boot import dbg_wait_wg, DBG_INIT, DBG_POL
    dbg_wait_wg(a, [(DBG_INIT, 1), (DBG_POL, 1), (DBG_POL+4, 1)], vt)
    a(f"""
    buffer_load_dwordx2 v[184:185], off, {DBG}, 0 offset:{DBG_POL} sc1
    s_waitcnt vmcnt(0)
    v_readfirstlane_b32 s{sSA}, v184
    v_readfirstlane_b32 s{sSB}, v185
    s_nop 3
    s_and_b32 s{sSA}, s{sSA}, 2
    s_lshl_b32 s{sSA}, s{sSA}, 12
    s_and_b32 s{sSB}, s{sSB}, 2
    s_lshl_b32 s{sSB}, s{sSB}, 12
    v_add_u32 v{vM8}, 16384, v{vL16}
    """)


def mem_loads(a, s_memoff, flag="sc1", start=0):
    for kb in range(start, 10):
        r, o = l16(kb * 1024)
        if kb >= 8:
            r = f"v{vM8}"
        a(f"buffer_load_dwordx4 {vr(MEMF+4*kb,4)}, {r}, {WS}, s{s_memoff} offen offset:{o} {flag}")


DEFERRED = []
MODE2 = [False]


def flush_deferred(a):
    for f in DEFERRED:
        f()
    DEFERRED.clear()


def mem_proj(a, tiles, s_memoff, vmax, sleep=1, after_first=None):
    base = a.newlabel("mp")
    mem_loads(a, s_memoff, "" if L1FIRST else "sc1")
    for t in tiles:
        for r in range(4):
            a(f"v_mov_b32 v{ACC+4*t+r}, 0")

    def chk(kb):
        f = MEMF + 4 * kb
        return [f"s_waitcnt vmcnt({9-kb})",
                f"v_max3_u32 v{vmax}, v{f}, v{f+1}, v{f+2}",
                f"v_max_u32 v{vmax}, v{vmax}, v{f+3}\nv_cmp_eq_u32 vcc, -1, v{vmax}"]
    for x in chk(0):
        a(x)
    a(f"s_cbranch_vccnz {base}_r0")
    for kb in range(10):
        f = MEMF + 4 * kb
        a.label(f"{base}_c{kb}")
        if STAMP == 2 and kb in (0, 4, 9):
            a(f"s_memrealtime s[{ {0:86,4:88,9:90}[kb] }:{ {0:87,4:89,9:91}[kb] }]")
        if kb == 9 and after_first:
            after_first()
        nxt = chk(kb + 1) if kb < 9 else []
        for n, t in enumerate(tiles):
            a(f"v_smfmac_f32_16x16x64_bf16 {vr(ACC+4*t,4)}, {vr(f,4)}, {wreg(t,2*kb,8)}, v{vIDX}")
            if n < len(nxt):
                a(nxt[n])
        for x in nxt[len(tiles):]:
            a(x)
        if kb < 9:
            a(f"s_cbranch_vccnz {base}_r{kb+1}")

    def ool():
        for kb in range(10):
            a.label(f"{base}_r{kb}")
            a(f"""
            s_sub_u32 s{sBUD}, s{sBUD}, 1
            s_cmp_lt_i32 s{sBUD}, 0
            s_cbranch_scc1 {base}_c{kb}
            s_sleep {sleep}
            """)
            mem_loads(a, s_memoff, "sc1", kb)
            for x in chk(kb):
                a(x)
            a(f"s_cbranch_vccnz {base}_r{kb}")
            a(f"s_branch {base}_c{kb}")
    DEFERRED.append(ool)


LDS_M = 0x18000


def mem_setup(a):
    a(f"""
    s_lshl_b32 s40, s{sW}, 10
    v_add_u32 v176, s40, v{vL16}
    v_add_u32 v177, 4096, v176
    v_add_u32 v178, 16384, v176
    v_add_u32 v179, 0x{LDS_M:x}, v176
    v_add_u32 v175, 0x{LDS_M:x}, v{vL16}
    s_cmp_lt_u32 s{sW}, 2
    s_cbranch_scc1 {a.newlabel("ms")}_ok
    v_mov_b32 v178, 0x7ffffff0
    """)
    a.label(f"ms_{a.uid}_ok")


def mem_proj2(a, order, s_memoff, vmax, after_valid=None, fill=None):
    top = a.newlabel("mq")
    G = 160
    a.label(top)
    for k in range(3):
        a(f"buffer_load_dwordx4 {vr(G+4*k,4)}, v{176+k}, {WS}, s{s_memoff} offen sc1")
    for grp in order:
        for t in grp:
            for r in range(4):
                a(f"v_mov_b32 v{ACC+4*t+r}, 0")
    a("s_waitcnt vmcnt(2)")
    a(f"ds_write_b128 v179, {vr(G,4)}")
    a(f"v_max3_u32 v{vmax}, v{G}, v{G+1}, v{G+2}")
    a("s_waitcnt vmcnt(1)")
    a(f"ds_write_b128 v179, {vr(G+4,4)} offset:4096")
    a(f"v_max3_u32 v{vmax}, v{vmax}, v{G+3}, v{G+4}")
    a(f"v_max3_u32 v{vmax}, v{vmax}, v{G+5}, v{G+6}")
    a("s_waitcnt vmcnt(0)")
    a(f"ds_write_b128 v179, {vr(G+8,4)} offset:8192")
    a(f"v_max3_u32 v{vmax}, v{vmax}, v{G+7}, v{G+8}")
    a(f"v_max3_u32 v{vmax}, v{vmax}, v{G+9}, v{G+10}")
    a(f"v_max_u32 v{vmax}, v{vmax}, v{G+11}")
    a(f"v_cmp_eq_u32 vcc, -1, v{vmax}")
    poll_fail(a, top, sleep=1)
    if after_valid:
        after_valid()
    if STAMP == 2:
        a("s_memrealtime s[86:87]")
    join = a.newlabel("mj")
    labs = [a.newlabel("mw") for _ in range(4)]
    a(f"""
    s_cmp_ge_u32 s{sW}, 2
    s_cbranch_scc1 {labs[2]}
    s_cmp_eq_u32 s{sW}, 1
    s_cbranch_scc1 {labs[1]}
    """)

    def sm(t, kb, src):
        a(f"v_smfmac_f32_16x16x64_bf16 {vr(ACC+4*t,4)}, {vr(src,4)}, {wreg(t,2*kb,8)}, v{vIDX}")
    for w in range(4):
        a.label(labs[w])
        if w == 2:
            a(f"""
            s_cmp_eq_u32 s{sW}, 3
            s_cbranch_scc1 {labs[3]}
            """)
        own = [w, w + 4] + ([8 + w] if w < 2 else [])
        oth = [kb for kb in range(10) if kb not in own]
        a("s_waitcnt lgkmcnt(0)")
        a("s_barrier")
        if STAMP == 2:
            a("s_memrealtime s[88:89]")
        for kb in oth:
            a(f"ds_read_b128 {vr(MEMF+4*kb,4)}, v175 offset:{kb*1024}")
        for grp in order:
            for k, kb in enumerate(own):
                for t in grp:
                    sm(t, kb, G + 4*k)
        for gi, grp in enumerate(order):
            F = list(fill.get(gi, [])) if fill else []
            n = 0
            tot = len(oth) * len(grp)
            for k, kb in enumerate(oth):
                if gi == 0:
                    a(f"s_waitcnt lgkmcnt({len(oth)-1-k})")
                for t in grp:
                    sm(t, kb, MEMF + 4*kb)
                    n += 1
                    if F and n == 2:
                        a.nop(6)
                    if n >= 2 and F:
                        a(F.pop(0))
            for x in F:
                a(x)
        if w < 3:
            a(f"s_branch {join}")
    a.label(join)
    if STAMP == 2:
        a("s_memrealtime s[90:91]")


def combine_list(t0, t1, d01, d23):
    A, B = ACC + 4 * t0, ACC + 4 * t1
    L = [f"v_permlane32_swap_b32 v{A+r}, v{B+r}" for r in range(4)]
    L += [f"v_pk_add_f32 v[{A+r}:{A+r+1}], v[{A+r}:{A+r+1}], v[{B+r}:{B+r+1}]" for r in (0, 2)]
    L += [f"v_cvt_pk_bf16_f32 v{d01}, v{A}, v{A+1}", f"v_cvt_pk_bf16_f32 v{d23}, v{A+2}, v{A+3}"]
    return L


def combine_pair(a, t0, t1, d01, d23):
    A, B = ACC + 4 * t0, ACC + 4 * t1
    for r in range(4):
        a(f"v_permlane32_swap_b32 v{A+r}, v{B+r}")
    if PKADD:
        for r in (0, 2):
            a(f"v_pk_add_f32 v[{A+r}:{A+r+1}], v[{A+r}:{A+r+1}], v[{B+r}:{B+r+1}]")
    else:
        for r in range(4):
            a(f"v_add_f32 v{A+r}, v{A+r}, v{B+r}")
    a(f"v_cvt_pk_bf16_f32 v{d01}, v{A}, v{A+1}")
    a(f"v_cvt_pk_bf16_f32 v{d23}, v{A+2}, v{A+3}")


def load_wqk(a, mats=(WQ, WK), depth=3):
    a.comment("---- load Wq/Wk fragments")
    a(f"""
    v_lshrrev_b32 v10, 4, v{vLANE}          ; r = lane/16
    v_and_b32 v11, 15, v{vLANE}             ; chunk'
    v_and_b32 v12, 1, v10
    s_lshl_b32 s40, s{sW}, 1
    v_or_b32 v12, s40, v12                  ; f = (r&1)|(w<<1)
    v_lshlrev_b32 v12, 1, v12
    v_xor_b32 v11, v11, v12
    v_lshlrev_b32 v11, 4, v11
    s_lshl_b32 s40, s{sW}, 2
    v_add_u32 v12, s40, v10                 ; 4w+r
    v_lshl_add_u32 v11, v12, 13, v11
    s_lshl_b32 s41, s{sID}, 8
    s_lshl_b32 s42, s{sW}, 10
    v_bfe_u32 v12, v{vLANE}, 2, 2           ; r
    v_and_b32 v13, 3, v{vLANE}              ; c
    v_lshrrev_b32 v14, 1, v10               ; g>>1
    v_lshlrev_b32 v14, 4, v14               ; 16*(g>>1)
    v_and_b32 v15, 1, v10                   ; g&1
    v_lshl_add_u32 v14, v15, 2, v14         ; +4*(g&1)
    v_and_b32 v16, 1, v12
    v_add_u32 v14, v14, v16                 ; +(r&1)
    v_lshrrev_b32 v17, 1, v12               ; r>>1
    v_lshl_add_u32 v14, v17, 3, v14         ; +8*(r>>1)
    v_lshlrev_b32 v14, 8, v14
    v_lshl_add_u32 v14, v13, 3, v14         ; + c*8
    v_lshl_or_b32 v16, v15, 1, v16
    v_lshl_or_b32 v16, v17, 2, v16          ; f
    v_lshl_or_b32 v14, v16, 5, v14
    s_lshl_b32 s40, s{sW}, 6                ; (2w)<<5
    v_xor_b32 v18, s40, v14                 ; tile 2w
    v_xor_b32 v19, 32, v18                  ; tile 2w+1
    v_add_u32 v20, 0x10000, v18
    v_add_u32 v21, 0x10000, v19
    """)

    nm = len(mats)

    def dma(cn):
        buf = cn % 4
        for mat, sd in enumerate(mats):
            for q in range(4):
                a(f"""
                s_add_u32 s43, s42, {buf*32768 + mat*16384 + q*4096}
                s_mov_b32 m0, s43
                s_add_u32 s44, s41, {(cn*64+16*q)*8192}
                buffer_load_dwordx4 v11, {sd}, s44 offen lds
                """)
    for cn in range(depth):
        dma(cn)
    for cn in range(10):
        later = min(depth - 1, 9 - cn)
        a(f"s_waitcnt vmcnt({4*nm*later})")
        a("s_barrier")
        if cn + depth < 10:
            dma(cn + depth)
        buf = cn % 4
        for mat in range(nm):
            for tt in range(2):
                for ksl in range(2):
                    for j in range(2):
                        idx = ((mat*2+tt) * 20 + cn*2 + ksl) * 4 + 2*j
                        av = 18 + tt + (2 if buf >= 2 else 0)
                        a(f"ds_read_b64_tr_b16 {widx(idx,2)}, v{av} offset:{(buf&1)*32768 + mat*16384 + ksl*8192 + j*512}")
            a("s_waitcnt lgkmcnt(0)")
    a("s_barrier")


def load_wo(a, sd):
    a.comment("---- load Wo fragments")
    for q in range(5):
        a(f"""
        v_add_u32 v10, {64*q}, v{vLANE}
        v_mul_u32_u24 v11, 3277, v10
        v_lshrrev_b32 v11, 16, v11            ; row = q/20
        v_mul_u32_u24 v12, 20, v11
        v_sub_u32 v10, v10, v12               ; chunk
        v_mul_u32_u24 v11, 1280, v11
        v_lshl_add_u32 v{16+q}, v10, 4, v11
        """)
    a(f"""
    s_mul_i32 s41, s{sID}, 163840
    s_mul_i32 s40, s{sW}, 320
    s_add_u32 s41, s41, s40                 ; soffset
    s_mul_i32 s42, s{sW}, 20480
    v_lshrrev_b32 v10, 4, v{vLANE}          ; g
    v_bfe_u32 v11, v{vLANE}, 2, 2           ; r
    v_lshl_add_u32 v10, v10, 2, v11
    v_mul_u32_u24 v10, 320, v10
    v_and_b32 v11, 3, v{vLANE}
    v_lshl_add_u32 v10, v11, 3, v10
    v_add_u32 v21, s42, v10
    """)
    for half in range(2):
        a("s_mov_b32 s43, s42")
        for blk in range(4):
            for q in range(5):
                a(f"""
                s_mov_b32 m0, s43
                s_add_u32 s43, s43, 1024
                buffer_load_dwordx4 v{16+q}, {sd}, s41 offen lds
                """)
            a(f"s_add_u32 s41, s41, {16*1280}")
        a("s_waitcnt vmcnt(0)")
        for jt in range(10):
            for kl in range(2):
                for j in range(2):
                    idx = 160 + (jt*4 + half*2 + kl) * 4 + 2*j
                    a(f"ds_read_b64_tr_b16 {widx(idx,2)}, v21 offset:{(32*kl+16*j)*320 + jt*32}")
            if jt % 2 == 1:
                a("s_waitcnt lgkmcnt(0)")
    a("s_barrier")


def load_wvo(a):
    a.comment("---- load Wvo fragments (linear)")
    a(f"""
    s_lshl_b32 s40, s{sID}, 2
    s_add_u32 s40, s40, s{sW}
    s_mul_i32 s40, s40, 81920
    s_add_u32 s40, s40, 0x{WS_WVO:x}
    """)
    for f in range(80):
        a(f"buffer_load_dwordx4 {wreg(f//20, f%20)}, v{vL16}, {WS}, s40 offen offset:{(f%4)*1024}")
        if f % 4 == 3:
            a("s_add_u32 s40, s40, 4096")
        if f % 40 == 39:
            a("s_waitcnt vmcnt(20)" if f < 79 else "s_waitcnt vmcnt(0)")


vHG = 15


def dma_h_setup(a):
    a(f"""
    v_and_b32 v10, 15, v{vLANE}
    v_mul_u32_u24 v10, 1280, v10
    v_lshrrev_b32 v{vHG}, 4, v{vLANE}
    v_lshl_add_u32 v{vHG}, v{vHG}, 4, v10
    """)


def dma_h_init(a, s_hoff, s_buf):
    a(f"""
    s_mul_i32 s43, s{sW}, 10240
    s_add_u32 s43, s43, s{s_buf}
    s_lshr_b32 s44, s{sW}, 1
    s_mul_i32 s44, s44, 20480
    s_and_b32 s45, s{sW}, 1
    s_mul_i32 s45, s45, 640
    s_add_u32 s44, s44, s45
    s_add_u32 s44, s44, s{s_hoff}
    """)


def dma_h_one(a):
    a(f"""
    s_mov_b32 m0, s43
    s_add_u32 s43, s43, 1024
    buffer_load_dwordx4 v{vHG}, {WS}, s44 offen sc1 lds
    s_add_u32 s44, s44, 64
    """)


def dmal_init(a, s_hoff, s_buf):
    a(f"""
    s_mul_i32 s43, s{sW}, 10240
    s_add_u32 s44, s43, s{s_hoff}
    s_add_u32 s43, s43, s{s_buf}
    """)


def dmal_one(a):
    a(f"""
    s_mov_b32 m0, s43
    s_add_u32 s43, s43, 1024
    buffer_load_dwordx4 v{vL16}, {WS}, s44 offen sc1 lds
    s_add_u32 s44, s44, 1024
    """)


def dma_h(a, s_hoff, s_buf):
    dma_h_init(a, s_hoff, s_buf)
    for k in range(10):
        dma_h_one(a)


HF = 104
TACC = 72


def dense_proj(a, vH, transposed, hook=None, tiles=(0, 1, 2, 3)):
    def rd(ks):
        st = HF + (ks % 3) * 8
        for mt in range(2):
            a(f"ds_read_b128 {vr(st+4*mt,4)}, v{vH} offset:{mt*20480+ks*1024}")
    rd(0)
    rd(1)
    for ks in range(20):
        if ks + 2 < 20:
            rd(ks + 2)
            a("s_waitcnt lgkmcnt(4)")
        elif ks + 1 < 20:
            a("s_waitcnt lgkmcnt(2)")
        else:
            a("s_waitcnt lgkmcnt(0)")
        st = HF + (ks % 3) * 8
        for n, t in enumerate(tiles):
            for mt in range(2):
                acc = vr(TACC + (t*2+mt)*4, 4)
                c = "0" if ks == 0 else acc
                if transposed:
                    a(f"v_mfma_f32_16x16x32_bf16 {acc}, {wreg(t,ks)}, {vr(st+4*mt,4)}, {c}")
                else:
                    a(f"v_mfma_f32_16x16x32_bf16 {acc}, {vr(st+4*mt,4)}, {wreg(t,ks)}, {c}")
            if n == len(tiles) // 2 - 1 and hook:
                hook(ks)


def round_scale(a, xs, tmp, s_scale):
    def rnd():
        for k in range(0, len(xs), 2):
            x0 = xs[k]
            x1 = xs[k+1] if k + 1 < len(xs) else xs[k]
            a(f"v_cvt_pk_bf16_f32 v{tmp+k//2}, v{x0}, v{x1}")
        for k in range(0, len(xs), 2):
            a(f"v_lshlrev_b32 v{xs[k]}, 16, v{tmp+k//2}")
            if k + 1 < len(xs):
                a(f"v_and_b32 v{xs[k+1]}, 0xffff0000, v{tmp+k//2}")
    rnd()
    for x in xs:
        a(f"v_mul_f32 v{x}, s{s_scale}, v{x}")
    rnd()


def xlane(a, op, v, t, with8):
    if with8:
        a.nop(2)
        a(f"{op}_dpp v{v}, v{v}, v{v} row_ror:8 row_mask:0xf bank_mask:0xf")
    for sw in ("v_permlane16_swap_b32", "v_permlane32_swap_b32"):
        a(f"v_mov_b32 v{t}, v{v}")
        a.nop(2)
        a(f"{sw} v{v}, v{t}")
        a(f"{op} v{v}, v{v}, v{t}")


def softmax(a, xs, vm, vt, s_log2e, with8):
    a(f"v_max3_f32 v{vm}, v{xs[0]}, v{xs[1]}, v{xs[2]}")
    k = 3
    while k < len(xs):
        if k + 1 < len(xs):
            a(f"v_max3_f32 v{vm}, v{vm}, v{xs[k]}, v{xs[k+1]}")
            k += 2
        else:
            a(f"v_max_f32 v{vm}, v{vm}, v{xs[k]}")
            k += 1
    xlane(a, "v_max_f32", vm, vt, with8)
    for x in xs:
        a(f"v_sub_f32 v{x}, v{x}, v{vm}")
    for x in xs:
        a(f"v_mul_f32 v{x}, s{s_log2e}, v{x}")
    for x in xs:
        a(f"v_exp_f32 v{x}, v{x}")
    a(f"v_add_f32 v{vm}, v{xs[0]}, v{xs[1]}")
    for x in xs[2:]:
        a(f"v_add_f32 v{vm}, v{vm}, v{x}")
    xlane(a, "v_add_f32", vm, vt, with8)
    a(f"v_rcp_f32 v{vm}, v{vm}")
    a.nop(1)
    for x in xs:
        a(f"v_mul_f32 v{x}, v{x}, v{vm}")


def setup_qk_lds_addrs(a, vW, vR):
    a(f"""
    v_and_b32 v10, 15, v{vLANE}             ; n
    v_lshrrev_b32 v11, 4, v{vLANE}          ; g
    v_lshrrev_b32 v12, 1, v11
    v_lshl_add_u32 v10, v12, 4, v10         ; 16*(g>>1)+n
    s_lshl_b32 s40, s{sW}, 5
    v_add_u32 v10, s40, v10                 ; +32w
    v_lshlrev_b32 v10, 4, v10
    v_and_b32 v12, 1, v11
    v_lshl_add_u32 v10, v12, 3, v10
    v_add_u32 v{vW}, 0x{LDS_T:x}, v10
    v_bfe_u32 v12, v{vLANE}, 2, 2           ; r
    v_lshl_add_u32 v12, v11, 2, v12         ; 4g+r
    v_lshlrev_b32 v12, 4, v12
    v_and_b32 v13, 1, v{vLANE}
    v_lshl_add_u32 v12, v13, 3, v12
    v_add_u32 v{vR}, 0x{LDS_T:x}, v12
    """)


def setup_p_load_addrs(a, vA, vB, vM, wstride=8*640, hstride=10240):
    a(f"""
    v_bfe_u32 v10, v{vLANE}, 3, 1           ; rho
    v_and_b32 v11, 7, v{vLANE}              ; i
    v_lshrrev_b32 v12, 4, v{vLANE}          ; gA
    v_lshrrev_b32 v13, 1, v12               ; gA>>1
    v_and_b32 v14, 1, v12                   ; gA&1
    s_mul_i32 s40, s{sW}, {wstride}
    v_mul_u32_u24 v15, 640, v10
    v_add_u32 v15, s40, v15
    v_lshl_add_u32 v15, v13, 8, v15
    v_lshl_add_u32 v15, v11, 5, v15
    v_lshl_add_u32 v{vA}, v14, 4, v15
    v_lshl_add_u32 v15, v13, 2, v14
    v_mul_u32_u24 v15, 640, v15
    v_add_u32 v15, s40, v15
    v_lshl_add_u32 v15, v10, 6, v15
    v_lshl_add_u32 v15, v11, 3, v15
    v_add_u32 v{vB}, 512, v15
    s_mul_i32 s40, s{sW}, {8*hstride}
    v_mul_u32_u24 v15, {hstride}, v13
    v_add_u32 v15, s40, v15
    v_lshl_add_u32 v15, v14, 7, v15
    v_and_b32 v11, 15, v{vLANE}
    v_lshl_add_u32 v{vM}, v11, 3, v15
    """)


def p_loads(a, PF, vA, vB, s_off):
    for blk in range(2):
        for pi in range(2):
            a(f"buffer_load_dwordx4 {vr(PF+(blk*2+pi)*4,4)}, v{vA}, {WS}, s{s_off} offen offset:{(4*blk+pi)*640} sc1")
    for pi in range(2):
        a(f"buffer_load_dwordx2 {vr(PF+16+2*pi,2)}, v{vB}, {WS}, s{s_off} offen offset:{pi*640} sc1")


def p_combine(a, PF, BX, BM, CA, vmax):
    for blk in range(2):
        for pi in range(2):
            f = PF + (blk*2+pi)*4
            a(f"v_smfmac_f32_16x16x64_bf16 {vr(CA+4*pi,4)}, {vr(f,4)}, {vr(BX+8*blk,8)}, v{vIDX}")
            if vmax is not None:
                a(f"v_max3_u32 v{vmax}, v{vmax}, v{f}, v{f+1}")
                a(f"v_max3_u32 v{vmax}, v{vmax}, v{f+2}, v{f+3}")
    a.nop(2 if vmax is not None else 6)
    for pi in range(2):
        f = PF + 16 + 2*pi
        a(f"v_smfmac_f32_16x16x32_bf16 {vr(CA+4*pi,4)}, {vr(f,2)}, {vr(BM,4)}, v{vIDX}")
        if vmax is not None:
            a(f"v_max3_u32 v{vmax}, v{vmax}, v{f}, v{f+1}")


def setup_red_addrs(a, vWr, vRd):
    a(f"""
    v_and_b32 v10, 15, v{vLANE}             ; n
    v_lshrrev_b32 v11, 4, v{vLANE}          ; g
    v_and_b32 v12, 1, v11
    v_lshlrev_b32 v12, 10, v12              ; 4*(g&1)*256
    v_lshl_add_u32 v12, v10, 5, v12         ; + n*32
    v_lshrrev_b32 v13, 1, v11
    v_lshl_add_u32 v12, v13, 2, v12         ; + (g>>1)*4
    s_lshl_b32 s40, s{sW}, 3
    s_add_u32 s40, s40, 0x{LDS_R:x}
    v_add_u32 v12, s40, v12
    v_mov_b32 v13, 0x{LDS_R+0x2800:x}
    v_cmp_gt_u32 vcc, 8, v10
    s_nop 1
    v_cndmask_b32 v{vWr}, v13, v12, vcc
    v_lshlrev_b32 v12, 5, v{vLANE}
    v_add_u32 v{vRd}, 0x{LDS_R:x}, v12
    """)


def red_write(a, CA, vWr, off):
    for r in range(4):
        a(f"v_add_f32_dpp v{CA+r}, v{CA+4+r}, v{CA+r} row_ror:8 row_mask:0xf bank_mask:0xf")
    for r in range(4):
        a(f"ds_write_b32 v{vWr}, v{CA+r} offset:{off + r*256}")


LB = 140
L_SRC, L_DST, L_M, L_V, L_T, L_T2 = LB, LB+1, LB+2, LB+3, LB+4, LB+5
L_RAW, L_OUT, L_X, L_SC, L_SH = LB+8, LB+16, LB+24, LB+40, LB+56


def ln_wave_sum(a, v):
    for ctrl in ["quad_perm:[1,0,3,2]", "quad_perm:[2,3,0,1]", "row_half_mirror", "row_mirror"]:
        a.nop(2)
        a(f"v_add_f32_dpp v{v}, v{v}, v{v} {ctrl} row_mask:0xf bank_mask:0xf")
    a.nop(1)
    a(f"v_readlane_b32 s72, v{v}, 0")
    a(f"v_readlane_b32 s73, v{v}, 16")
    a(f"v_readlane_b32 s74, v{v}, 32")
    a.nop(2)
    a(f"v_mov_b32 v{v}, s72")
    a(f"v_add_f32 v{v}, s73, v{v}")
    a(f"v_add_f32 v{v}, s74, v{v}")


def bf16r(a, v):
    a(f"v_cvt_pk_bf16_f32 v{v}, v{v}, v{v}")
    a(f"v_and_b32 v{v}, 0xffff0000, v{v}")


def ln_setup(a, shift_idx, scale_idx, perm):
    a(f"""
    v_cmp_gt_u32 vcc, 40, v{vLANE}
    v_mov_b32 v{L_T}, 0x7ffffff0
    v_lshlrev_b32 v{L_DST}, 4, v{vLANE}
    """)
    if perm:
        a(f"""
        v_lshrrev_b32 v{L_SRC}, 1, v{vLANE}
        v_lshlrev_b32 v{L_SRC}, 5, v{L_SRC}
        v_and_b32 v{L_T2}, 1, v{vLANE}
        v_lshl_add_u32 v{L_SRC}, v{L_T2}, 3, v{L_SRC}
        """)
    else:
        a(f"v_mov_b32 v{L_SRC}, v{L_DST}")
    a(f"""
    v_lshlrev_b32 v{L_T2}, 1, v{L_SRC}
    v_cndmask_b32 v{L_SRC}, v{L_T}, v{L_SRC}, vcc
    v_cndmask_b32 v{L_T2}, v{L_T}, v{L_T2}, vcc
    v_cndmask_b32 v{L_DST}, v{L_T}, v{L_DST}, vcc
    s_mov_b64 s[76:77], vcc
    s_mov_b32 s72, {WS_MOD + scale_idx*2560}
    s_mov_b32 s73, {WS_MOD + shift_idx*2560}
    """)
    for dst, so in ((L_SC, 72), (L_SH, 73)):
        for h in range(2):
            if perm:
                a(f"buffer_load_dwordx2 {vr(dst+8*h,2)}, v{L_T2}, {WS}, s{so} offen offset:{h*1280}")
                a(f"buffer_load_dwordx2 {vr(dst+8*h+4,2)}, v{L_T2}, {WS}, s{so} offen offset:{h*1280+8}")
                a(f"buffer_load_dwordx2 {vr(dst+8*h+2,2)}, v{L_T2}, {WS}, s{so} offen offset:{h*1280+32}")
                a(f"buffer_load_dwordx2 {vr(dst+8*h+6,2)}, v{L_T2}, {WS}, s{so} offen offset:{h*1280+40}")
            else:
                a(f"buffer_load_dwordx4 {vr(dst+8*h,4)}, v{L_T2}, {WS}, s{so} offen offset:{h*1280} sc1")
                a(f"buffer_load_dwordx4 {vr(dst+8*h+4,4)}, v{L_T2}, {WS}, s{so} offen offset:{h*1280+16} sc1")
    a("s_waitcnt vmcnt(0)")
    for j in range(8):
        a(f"v_add_f32 v{L_SC+2*j}, 1.0, v{L_SC+2*j}")
        a(f"v_add_f32 v{L_SC+2*j+1}, 1.0, v{L_SC+2*j+1}")
        a(f"v_cvt_pk_bf16_f32 v{L_T}, v{L_SC+2*j}, v{L_SC+2*j+1}")
        a(f"v_lshlrev_b32 v{L_SC+2*j}, 16, v{L_T}")
        a(f"v_and_b32 v{L_SC+2*j+1}, 0xffff0000, v{L_T}")


def ln_load(a, srd_, s_off, fl, perm, raw=L_RAW, extra=0):
    if perm:
        for h in range(2):
            a(f"buffer_load_dwordx2 {vr(raw+4*h,2)}, v{L_SRC}, {srd_}, s{s_off} offen offset:{extra+h*640} {fl}")
            a(f"buffer_load_dwordx2 {vr(raw+4*h+2,2)}, v{L_SRC}, {srd_}, s{s_off} offen offset:{extra+h*640+16} {fl}")
        return 4
    for h in range(2):
        a(f"buffer_load_dwordx4 {vr(raw+4*h,4)}, v{L_SRC}, {srd_}, s{s_off} offen offset:{extra+h*640} {fl}")
    return 2


def ln_unpack(a, perm, raw=L_RAW):
    pos = [0, 2, 1, 3] if perm else [0, 1, 2, 3]
    for h in range(2):
        for j in range(4):
            d = 4*h + pos[j]
            a(f"v_lshlrev_b32 v{L_X+2*d}, 16, v{raw+4*h+j}")
            a(f"v_and_b32 v{L_X+2*d+1}, 0xffff0000, v{raw+4*h+j}")


def ln_compute_store(a, s_dst, extra=0, out=L_OUT):
    X = L_X
    a(f"v_add_f32 v{L_M}, v{X}, v{X+1}")
    a(f"v_add_f32 v{L_T}, v{X+2}, v{X+3}")
    for j in range(4, 16, 2):
        a(f"v_add_f32 v{L_M}, v{L_M}, v{X+j}")
        a(f"v_add_f32 v{L_T}, v{L_T}, v{X+j+1}")
    a(f"v_add_f32 v{L_M}, v{L_M}, v{L_T}")
    ln_wave_sum(a, L_M)
    a(f"v_mul_f32 v{L_M}, 0x3acccccd, v{L_M}")
    a(f"v_sub_f32 v{L_T}, v{X}, v{L_M}")
    a(f"v_mul_f32 v{L_V}, v{L_T}, v{L_T}")
    for j in range(1, 16):
        t = L_T if j % 2 == 0 else L_T2
        a(f"v_sub_f32 v{t}, v{X+j}, v{L_M}")
        a(f"v_fmac_f32 v{L_V}, v{t}, v{t}")
    a(f"v_cndmask_b32 v{L_V}, 0, v{L_V}, s[76:77]")
    ln_wave_sum(a, L_V)
    a(f"v_mul_f32 v{L_V}, 0x3acccccd, v{L_V}")
    bf16r(a, L_V)
    a(f"v_add_f32 v{L_V}, 0x3727c5ac, v{L_V}")
    bf16r(a, L_V)
    a(f"v_sqrt_f32 v{L_V}, v{L_V}")
    a.nop(1)
    bf16r(a, L_V)
    a(f"v_rcp_f32 v{L_V}, v{L_V}")
    bf16r(a, L_M)
    for j in range(8):
        x0, x1 = X + 2*j, X + 2*j + 1
        a(f"""
        v_sub_f32 v{x0}, v{x0}, v{L_M}
        v_sub_f32 v{x1}, v{x1}, v{L_M}
        v_cvt_pk_bf16_f32 v{L_T}, v{x0}, v{x1}
        v_lshlrev_b32 v{x0}, 16, v{L_T}
        v_and_b32 v{x1}, 0xffff0000, v{L_T}
        v_mul_f32 v{x0}, v{x0}, v{L_V}
        v_mul_f32 v{x1}, v{x1}, v{L_V}
        v_cvt_pk_bf16_f32 v{L_T}, v{x0}, v{x1}
        v_lshlrev_b32 v{x0}, 16, v{L_T}
        v_and_b32 v{x1}, 0xffff0000, v{L_T}
        v_mul_f32 v{x0}, v{x0}, v{L_SC+2*j}
        v_mul_f32 v{x1}, v{x1}, v{L_SC+2*j+1}
        v_cvt_pk_bf16_f32 v{L_T}, v{x0}, v{x1}
        v_lshlrev_b32 v{x0}, 16, v{L_T}
        v_and_b32 v{x1}, 0xffff0000, v{L_T}
        v_add_f32 v{x0}, v{x0}, v{L_SH+2*j}
        v_add_f32 v{x1}, v{x1}, v{L_SH+2*j+1}
        v_cvt_pk_bf16_f32 v{out+j}, v{x0}, v{x1}
        v_min_u32 v{out+j}, -2, v{out+j}
        """)
    a(f"buffer_store_dwordx4 {vr(out,4)}, v{L_DST}, {WS}, s{s_dst} offen offset:{extra} sc1")
    a(f"buffer_store_dwordx4 {vr(out+4,4)}, v{L_DST}, {WS}, s{s_dst} offen offset:{extra+640} sc1")


def wait_all(a, nl, vaddr, s_off, s_need, vt, ndw=1, sleep=4):
    top, done = a.newlabel("wa"), a.newlabel("wad")
    a.label(top)
    op = {1: "dword", 4: "dwordx4"}[ndw]
    a(f"""
    s_mov_b32 exec_lo, 0x{(1 << nl) - 1:x}
    s_mov_b32 exec_hi, 0
    buffer_load_{op} {vr(vt, ndw)}, v{vaddr}, {WS}, s{s_off} offen sc1
    s_waitcnt vmcnt(0)
    """)
    if ndw == 4:
        a(f"v_min3_u32 v{vt}, v{vt}, v{vt+1}, v{vt+2}")
        a(f"v_min_u32 v{vt}, v{vt}, v{vt+3}")
    a(f"""
    v_cmp_gt_u32 vcc, s{s_need}, v{vt}
    s_mov_b64 exec, -1
    s_cbranch_vccz {done}
    s_sub_u32 s{sBUD}, s{sBUD}, 1
    s_cmp_lt_i32 s{sBUD}, 0
    s_cbranch_scc1 {done}
    s_sleep {sleep}
    s_branch {top}
    """)
    a.label(done)


WS_TRACE = 0x0F000000


def stamp(a, slot):
    if not STAMP:
        return
    if STAMP == 2 and MODE2[0] and slot in (3, 4):
        slot = 6
    if STAMP == 2 and MODE2[0] and slot == 0:
        a("s_memtime s[80:81]")
        return
    a(f"s_memrealtime s[{80+2*slot}:{81+2*slot}]")


def stamp_flush(a, n, vt):
    if not STAMP:
        return
    if STAMP == 2 and MODE2[0]:
        n = 7
    skip = a.newlabel("stf")
    a(f"""
    s_cmp_lg_u32 s{sW}, 0
    s_cbranch_scc1 {skip}
    s_waitcnt lgkmcnt(0)
    s_lshl_b32 s96, s{sSTEP}, 5
    s_add_u32 s96, s96, s97
    s_mov_b64 exec, 1
    """)
    for k in range(n):
        a(f"v_mov_b32 v{vt}, s{80+2*k}")
        a(f"buffer_store_dword v{vt}, off, {WS}, s96 offset:{4*k}")
        a.nop(2)
    a(f"v_mov_b32 v{vt}, s{sBUD}")
    a(f"buffer_store_dword v{vt}, off, {WS}, s96 offset:28")
    a("s_mov_b64 exec, -1")
    a.label(skip)


def gen_r(a):
    L = NAME + "_kernel"
    kernel_header(a, L)
    a(f"""
    s_cmp_ge_u32 s2, 256
    s_cbranch_scc1 r_end
    s_load_dwordx2 s[4:5], s[0:1], {KA_WS}
    s_load_dwordx2 s[6:7], s[0:1], {KA_DBG}
    s_load_dwordx4 s[32:35], s[0:1], {KA_WQ}
    s_load_dwordx2 s[36:37], s[0:1], {KA_X}
    v_lshrrev_b32 v1, 6, v0
    v_and_b32 v{vLANE}, 63, v0
    s_waitcnt lgkmcnt(0)
    """)
    srd(a, 8, 4, WS_SIZE)
    srd(a, 12, 6, 256)
    srd(a, 16, 32, D * H * E * 2)
    srd(a, 20, 34, D * H * E * 2)
    srd(a, 24, 36, S * D * 2)
    a(f"""
    v_readfirstlane_b32 s{sW}, v1
    v_lshlrev_b32 v{vL16}, 4, v{vLANE}
    v_add_u32 v{vL16b}, 4096, v{vL16}
    v_add_u32 v{vL16c}, 8192, v{vL16}
    v_mov_b32 v{vIDX}, 0x4444
    v_mov_b32 v10, 0xeeee
    v_and_b32 v11, 8, v{vLANE}
    v_cmp_ne_u32 vcc, 0, v11
    s_mov_b32 s{sBUD}, 200000
    v_mov_b32 v9, 0x{LDS_ROLE:x}
    v_cndmask_b32 v{vIDX}, v{vIDX}, v10, vcc
    s_cmp_lg_u32 s{sW}, 0
    s_cbranch_scc1 r_role_wait
    s_getreg_b32 s40, hwreg(HW_REG_XCC_ID)
    s_and_b32 s40, s40, 7
    s_mov_b64 exec, 1
    s_lshl_b32 s43, s40, 2
    s_lshr_b32 s43, 0x{XMAP:x}, s43
    s_and_b32 s43, s43, 7
    s_mov_b32 s48, 0
    """)
    a.label("r_try")
    a(f"""
    s_lshr_b32 s45, s43, 1
    s_lshl_b32 s45, s45, 2
    s_and_b32 s44, s43, 1
    s_lshl_b32 s44, s44, 7
    s_add_u32 s45, s45, s44
    v_mov_b32 v10, 1
    buffer_atomic_add v10, off, {DBG}, s45 sc0
    s_waitcnt vmcnt(0)
    v_readfirstlane_b32 s41, v10
    s_nop 3
    s_cmp_lt_u32 s41, 32
    s_cbranch_scc1 r_got
    s_add_u32 s48, s48, 1
    s_sub_u32 s43, s48, 1
    s_mov_b32 s42, 999
    s_cmp_ge_u32 s43, 8
    s_cbranch_scc1 r_role_done
    s_branch r_try
    """)
    a.label("r_got")
    a(f"""
    s_lshl_b32 s42, s43, 5
    s_add_u32 s42, s42, s41                 ; P: t, VM: 32+t
    s_cmp_lt_u32 s43, 2
    s_cbranch_scc1 r_role_done
    s_cmp_ge_u32 s43, 4
    s_cbranch_scc1 r_got4
    s_sub_u32 s43, s43, 2                   ; q = 0,1
    s_mul_i32 s44, s43, 10
    s_add_u32 s42, s41, s44
    s_add_u32 s42, s42, 239                 ; F2: 239 + 10q + t
    s_cmp_lt_u32 s41, 10
    s_cbranch_scc1 r_role_done
    s_mul_i32 s44, s43, 20
    s_add_u32 s42, s41, s44
    s_add_u32 s42, s42, 54                  ; U: 64 + 20q + (t-10)
    s_cmp_lt_u32 s41, 30
    s_cbranch_scc1 r_role_done
    s_lshl_b32 s44, s43, 1
    s_add_u32 s42, s41, s44
    s_add_u32 s42, s42, 174                 ; L: 204 + 2q + (t-30)
    s_branch r_role_done
    """)
    a.label("r_got4")
    a(f"""
    s_sub_u32 s43, s43, 4                   ; q = 0..3
    s_lshl_b32 s44, s43, 3
    s_add_u32 s42, s41, s44
    s_add_u32 s42, s42, 112                 ; T
    s_cmp_lt_u32 s41, 8
    s_cbranch_scc1 r_role_done
    s_add_u32 s42, s42, 24                  ; VO
    s_cmp_lt_u32 s41, 16
    s_cbranch_scc1 r_role_done
    s_add_u32 s42, s43, 208                 ; L: 204 + 4 + q
    s_cmp_eq_u32 s41, 23
    s_cbranch_scc1 r_role_done
    s_lshl_b32 s44, s43, 1
    s_add_u32 s42, s41, s44
    s_add_u32 s42, s42, 160                 ; A
    s_cmp_lt_u32 s41, 18
    s_cbranch_scc1 r_role_done
    s_mul_i32 s44, s43, 5
    s_add_u32 s42, s41, s44
    s_add_u32 s42, s42, 166                 ; C
    s_cmp_lt_u32 s41, 23
    s_cbranch_scc1 r_role_done
    s_mul_i32 s44, s43, 7
    s_add_u32 s42, s41, s44
    s_add_u32 s42, s42, 188                 ; F1: 212 + 7q + (t-24)
    s_cmp_eq_u32 s42, 239
    s_cselect_b32 s42, 264, s42
    s_add_u32 s44, s43, 260
    s_cmp_eq_u32 s41, 31
    s_cselect_b32 s42, s44, s42
    """)
    a.label("r_role_done")
    a(f"""
    v_mov_b32 v10, s42
    ds_write_b32 v9, v10
    s_mov_b64 exec, -1
    s_waitcnt lgkmcnt(0)
    """)
    a.label("r_role_wait")
    a(f"""
    s_barrier
    ds_read_b32 v10, v9
    s_waitcnt lgkmcnt(0)
    v_readfirstlane_b32 s{sID}, v10
    s_mov_b32 s{sSTEP}, 0
    s_mov_b32 s50, 0x3db504f3          ; 128^-0.5
    s_mov_b32 s51, 0x3fb8aa3b          ; log2(e)
    s_mov_b32 s62, s50
    s_mov_b32 s63, s50
    s_mov_b32 s100, 0
    s_mul_i32 s97, s{sID}, {72*32}
    s_add_u32 s97, s97, 0x{WS_TRACE:x}
    s_barrier
    """)
    if STAMP:
        a(f"""
        s_memrealtime s[80:81]
        s_waitcnt lgkmcnt(0)
        v_mov_b32 v3, s80
        buffer_store_dword v3, off, {WS}, s97 offset:{71*32}
        """)
    a(f"""
    s_cmp_lt_u32 s{sID}, 32
    s_cbranch_scc1 role_p
    s_cmp_lt_u32 s{sID}, 64
    s_cbranch_scc1 role_vm
    s_cmp_lt_u32 s{sID}, 112
    s_cbranch_scc1 boot
    s_cmp_lt_u32 s{sID}, 144
    s_cbranch_scc1 role_t
    s_cmp_lt_u32 s{sID}, 176
    s_cbranch_scc1 role_vo
    s_cmp_ge_u32 s{sID}, 265
    s_cbranch_scc1 r_end
    s_branch boot
    boot_done:
    s_cmp_lt_u32 s{sID}, 112
    s_cbranch_scc1 role_u
    {"s_endpgm" if NOTOK else ""}
    s_cmp_lt_u32 s{sID}, 184
    s_cbranch_scc1 role_al
    s_cmp_lt_u32 s{sID}, 204
    s_cbranch_scc1 role_c
    s_cmp_lt_u32 s{sID}, 212
    s_cbranch_scc1 role_al
    s_cmp_lt_u32 s{sID}, 259
    s_cbranch_scc1 role_f
    s_sub_u32 s{sID}, s{sID}, 56            ; 260.. -> 204..
    s_cmp_lt_u32 s{sID}, 209
    s_cbranch_scc1 role_c
    s_endpgm
    """)

    KF, QF, KMF, SA = 72, 104, 120, 136
    X0 = 148
    vTW, vTR, vST, vSM = 8, 9, 12, 13
    sMEM, sPB, sKX, sFT, sSEEN, sNEED = 31, 32, 33, 34, 35, 36
    from gen_boot import dbg_wait_wg, DBG_MOD20
    a.label("role_p")
    MODE2[0] = True
    if PDELAY:
        dbg_wait_wg(a, [(DBG_MOD20, 1)], 3, sleep=10)
    load_wqk(a, depth=PDEPTH)
    setup_qk_lds_addrs(a, vTW, vTR)
    a(f"""
    v_bfe_u32 v10, v{vLANE}, 3, 1           ; b
    v_and_b32 v11, 7, v{vLANE}              ; i
    v_lshrrev_b32 v14, 4, v{vLANE}          ; g
    v_lshlrev_b32 v{vST}, 8, v10
    v_lshl_add_u32 v{vST}, v11, 5, v{vST}
    v_lshl_add_u32 v{vST}, v14, 3, v{vST}
    v_lshlrev_b32 v{vSM}, 3, v11
    v_and_b32 v15, 1, v14
    v_lshl_add_u32 v{vSM}, v15, 2, v{vSM}
    v_lshrrev_b32 v15, 1, v14
    v_lshl_add_u32 v{vSM}, v15, 6, v{vSM}
    v_add_u32 v{vSM}, 512, v{vSM}
    v_mov_b32 v15, 0x7ffffff0
    v_cmp_ne_u32 vcc, 0, v10
    s_mov_b32 s52, 0xff00ff00
    s_mov_b32 s53, 0xff00ff00
    v_cndmask_b32 v{vSM}, v{vSM}, v15, vcc
    s_mov_b32 s54, 0
    s_mov_b32 s55, -1                       ; s[54:55]: lanes g>=2
    s_lshl_b32 s{sKX}, s{sID}, 13
    s_add_u32 s{sKX}, s{sKX}, 0x{WS_KX:x}
    s_lshl_b32 s{sFT}, s{sID}, 7
    s_add_u32 s{sFT}, s{sFT}, 0x{flag(FL_T):x}
    s_mov_b32 s{sSEEN}, 0
    s_mov_b32 s56, 0x{WS_FLAGS:x}
    ; KM store voff: g*128 + (l%8)*16, lanes with b=1 dropped
    v_lshlrev_b32 v189, 7, v14
    v_lshl_add_u32 v189, v11, 4, v189
    v_cndmask_b32 v189, v189, v15, vcc
    s_lshl_b32 s57, s{sID}, 11
    s_add_u32 s57, s57, 0x{WS_KM:x}
    s_lshl_b32 s58, s{sID}, 2
    s_add_u32 s58, s58, s{sW}
    s_lshl_b32 s60, s{sID}, 7
    s_add_u32 s60, s60, 0x{flag(FL_KM):x}
    v_cmp_gt_u32 vcc, 40, v{vLANE}
    v_mov_b32 v180, -1
    v_mov_b32 v181, -1
    v_mov_b32 v182, -1
    v_mov_b32 v183, -1
    v_cndmask_b32 v186, v15, v{vL16}, vcc
    """)
    get_pol(a, X0)
    mem_setup(a)
    a(f"""
    s_add_u32 s59, s{sSB}, 0x{WS_CRB + CRB_DOOR:x}
    s_add_u32 s64, s{sSB}, 0x{WS_CRB:x}
    s_lshr_b32 s40, s{sID}, 3
    s_lshl_b32 s40, s40, 14
    s_and_b32 s41, s{sID}, 7
    s_mul_i32 s41, s41, 640
    s_add_u32 s65, s40, s41
    s_add_u32 s65, s65, s64
    s_add_u32 s65, s65, {4*16384}           ; p base
    """)
    a.label("p_loop")
    stamp(a, 0)
    a(f"""
    s_and_b32 s40, s{sSTEP}, 3
    s_lshl_b32 s40, s40, 17
    s_add_u32 s{sMEM}, s40, s64
    s_add_u32 s{sPB}, s40, s65
    s_xor_b32 s40, s40, 0x40000
    s_add_u32 s66, s40, s65
    s_cmp_lg_u32 s{sW}, 0
    s_cbranch_scc1 p_sync
    s_add_u32 s{sNEED}, s{sSTEP}, 1
    """)
    wait_flag(a, sFT, sNEED, sSEEN, X0)
    for f in range(8):
        r, o = l16(f * 1024)
        a(f"buffer_load_dwordx4 {vr(KF+4*f,4)}, {r}, {WS}, s{sKX} offen offset:{o} sc1")
    a(f"""
    buffer_load_dword v190, off, {WS}, s{sFT} sc1
    s_cmp_eq_u32 s{sSTEP}, 0
    s_cbranch_scc1 p_sync
    s_sleep {P_SLEEP0}
    """)
    a.label("p_sync")
    a("s_barrier")
    stamp(a, 1)
    def door():
        if not DOOR:
            return
        a(f"""
        s_cmp_lg_u32 s58, 3
        s_cbranch_scc1 p_nodoor
        s_mov_b64 exec, 1
        buffer_store_dword v188, off, {WS}, s59 sc1
        s_mov_b64 exec, -1
        p_nodoor:
        """)
    a(f"""
    s_add_u32 s40, s{sSTEP}, 1
    v_mov_b32 v188, s40
    """)
    qrd = [f"ds_read_b64_tr_b16 {vr(QF+4*k+2*tp,2)}, v{vTR} offset:{k*512+tp*256}" for k in range(4) for tp in range(2)]
    cl = combine_list(0, 1, X0+2, X0+3)
    fl = ["\n".join(cl[0:2]), "\n".join(cl[2:4]), "\n".join(cl[4:6]), "\n".join(cl[6:8]),
          f"ds_write_b64 v{vTW}, {vr(X0+2,2)}", "s_nop 0", "s_nop 0", "s_waitcnt lgkmcnt(0)\ns_barrier",
          "\n".join(qrd[0:2]), "\n".join(qrd[2:4]), "\n".join(qrd[4:6]), "\n".join(qrd[6:8])]
    mem_proj2(a, [[0, 1], [2, 3]], sMEM, X0, after_valid=door, fill={1: fl})
    stamp(a, 2)
    kc = combine_list(2, 3, X0+4, X0+5) + [f"ds_write_b64 v{vTW}, {vr(X0+4,2)} offset:2048"]
    n = 0
    for k in range(4):
        if k < 3:
            a(f"s_waitcnt lgkmcnt({[6, 4, 3][k]})")
        for mt in range(2):
            acc = vr(SA+4*mt, 4)
            a(f"v_mfma_f32_16x16x32_bf16 {acc}, {vr(KF+(mt*4+k)*4,4)}, {vr(QF+4*k,4)}, {'0' if k==0 else acc}")
            n += 1
            if n == 2:
                a.nop(5)
            if n >= 2:
                for _ in range(3):
                    if kc:
                        a(kc.pop(0))
            if n == 5:
                a(f"""
                s_waitcnt lgkmcnt(0)
                s_barrier
                s_cmp_lg_u32 s{sW}, 0
                s_cbranch_scc1 p_other
                """)
                stamp(a, 3)
                for k2 in range(4):
                    for tp in range(2):
                        a(f"ds_read_b64_tr_b16 {vr(KMF+4*k2+2*tp,2)}, v{vTR} offset:{2048+k2*512+tp*256}")
    assert not kc
    for k in range(4):
        a(f"s_waitcnt lgkmcnt({6-2*k})")
        acc = vr(SA+8, 4)
        a(f"v_mfma_f32_16x16x32_bf16 {acc}, {vr(KMF+4*k,4)}, {vr(QF+4*k,4)}, {'0' if k==0 else acc}")
    for r in range(4):
        a(f"v_cndmask_b32 v{X0+r}, v{SA+r}, v{SA+4+r}, s[52:53]")
    T0 = X0 + 8
    a(f"""
    v_cvt_pk_bf16_f32 v{T0}, v{X0}, v{X0+1}
    v_cvt_pk_bf16_f32 v{T0+1}, v{X0+2}, v{X0+3}
    v_lshlrev_b32 v{X0}, 16, v{T0}
    v_and_b32 v{X0+1}, 0xffff0000, v{T0}
    v_cndmask_b32 v{X0+4}, v{SA+8}, v{SA+9}, s[52:53]
    v_cndmask_b32 v{X0+5}, v{SA+10}, v{SA+11}, s[52:53]
    v_lshlrev_b32 v{X0+2}, 16, v{T0+1}
    v_cndmask_b32 v{X0+4}, v{X0+4}, v{X0+5}, s[54:55]
    v_and_b32 v{X0+3}, 0xffff0000, v{T0+1}
    v_cvt_pk_bf16_f32 v{T0+2}, v{X0+4}, v{X0+4}
    v_pk_mul_f32 v[{X0}:{X0+1}], v[{X0}:{X0+1}], s[62:63]
    v_and_b32 v{X0+4}, 0xffff0000, v{T0+2}
    v_pk_mul_f32 v[{X0+2}:{X0+3}], v[{X0+2}:{X0+3}], s[62:63]
    v_mul_f32 v{X0+4}, s50, v{X0+4}
    v_cvt_pk_bf16_f32 v{T0}, v{X0}, v{X0+1}
    v_cvt_pk_bf16_f32 v{T0+1}, v{X0+2}, v{X0+3}
    v_cvt_pk_bf16_f32 v{T0+2}, v{X0+4}, v{X0+4}
    v_lshlrev_b32 v{X0}, 16, v{T0}
    v_and_b32 v{X0+1}, 0xffff0000, v{T0}
    v_lshlrev_b32 v{X0+2}, 16, v{T0+1}
    v_and_b32 v{X0+3}, 0xffff0000, v{T0+1}
    v_and_b32 v{X0+4}, 0xffff0000, v{T0+2}
    v_max3_f32 v{X0+6}, v{X0}, v{X0+1}, v{X0+2}
    v_max3_f32 v{X0+6}, v{X0+6}, v{X0+3}, v{X0+4}
    v_mul_f32 v{X0}, s51, v{X0}
    v_mul_f32 v{X0+1}, s51, v{X0+1}
    v_max_f32_dpp v{X0+6}, v{X0+6}, v{X0+6} row_ror:8 row_mask:0xf bank_mask:0xf
    v_mov_b32 v{X0+7}, v{X0+6}
    v_mul_f32 v{X0+2}, s51, v{X0+2}
    v_mul_f32 v{X0+3}, s51, v{X0+3}
    v_permlane16_swap_b32 v{X0+6}, v{X0+7}
    v_max_f32 v{X0+6}, v{X0+6}, v{X0+7}
    v_mov_b32 v{X0+7}, v{X0+6}
    v_mul_f32 v{X0+4}, s51, v{X0+4}
    s_nop 0
    v_permlane32_swap_b32 v{X0+6}, v{X0+7}
    v_max_f32 v{X0+6}, v{X0+6}, v{X0+7}
    v_mul_f32 v{X0+6}, s51, v{X0+6}
    v_sub_f32 v{X0}, v{X0}, v{X0+6}
    v_sub_f32 v{X0+1}, v{X0+1}, v{X0+6}
    v_exp_f32 v{X0}, v{X0}
    v_sub_f32 v{X0+2}, v{X0+2}, v{X0+6}
    v_exp_f32 v{X0+1}, v{X0+1}
    v_sub_f32 v{X0+3}, v{X0+3}, v{X0+6}
    v_exp_f32 v{X0+2}, v{X0+2}
    v_sub_f32 v{X0+4}, v{X0+4}, v{X0+6}
    v_exp_f32 v{X0+3}, v{X0+3}
    v_add_f32 v{X0+6}, v{X0}, v{X0+1}
    v_exp_f32 v{X0+4}, v{X0+4}
    v_add_f32 v{X0+6}, v{X0+6}, v{X0+2}
    v_add_f32 v{X0+6}, v{X0+6}, v{X0+3}
    v_add_f32 v{X0+6}, v{X0+6}, v{X0+4}
    s_nop 1
    v_add_f32_dpp v{X0+6}, v{X0+6}, v{X0+6} row_ror:8 row_mask:0xf bank_mask:0xf
    v_mov_b32 v{X0+7}, v{X0+6}
    v_mov_b32_dpp v{X0+5}, v{X0+4} row_ror:8 row_mask:0xf bank_mask:0xf
    s_nop 0
    v_permlane16_swap_b32 v{X0+6}, v{X0+7}
    v_add_f32 v{X0+6}, v{X0+6}, v{X0+7}
    v_mov_b32 v{X0+7}, v{X0+6}
    s_nop 1
    v_permlane32_swap_b32 v{X0+6}, v{X0+7}
    v_add_f32 v{X0+6}, v{X0+6}, v{X0+7}
    v_rcp_f32 v{X0+6}, v{X0+6}
    s_nop 0
    v_mul_f32 v{X0}, v{X0}, v{X0+6}
    v_mul_f32 v{X0+1}, v{X0+1}, v{X0+6}
    v_mul_f32 v{X0+2}, v{X0+2}, v{X0+6}
    v_mul_f32 v{X0+3}, v{X0+3}, v{X0+6}
    v_cvt_pk_bf16_f32 v{T0}, v{X0}, v{X0+1}
    v_cvt_pk_bf16_f32 v{T0+1}, v{X0+2}, v{X0+3}
    v_mul_f32 v{X0+4}, v{X0+4}, v{X0+6}
    v_min_u32 v{T0}, -2, v{T0}
    v_min_u32 v{T0+1}, -2, v{T0+1}
    v_mul_f32 v{X0+5}, v{X0+5}, v{X0+6}
    buffer_store_dwordx2 {vr(T0,2)}, v{vST}, {WS}, s{sPB} offen sc1
    v_cvt_pk_bf16_f32 v{T0+2}, v{X0+4}, v{X0+5}
    v_min_u32 v{T0+2}, -2, v{T0+2}
    buffer_store_dword v{T0+2}, v{vSM}, {WS}, s{sPB} offen sc1
    v_readfirstlane_b32 s{sSEEN}, v190
    s_branch p_next
    """)
    a.label("p_other")
    a(f"""
    s_cmp_lg_u32 s{sW}, 1
    s_cbranch_scc1 p_w23
    """)
    for k in range(4):
        for tp in range(2):
            a(f"ds_read_b64_tr_b16 {vr(KMF+4*k+2*tp,2)}, v{vTR} offset:{2048+k*512+tp*256}")
    a("s_waitcnt lgkmcnt(0)")
    for r in range(16):
        a(f"v_min_u32 v{KMF+r}, -2, v{KMF+r}")
    for k in range(4):
        a(f"buffer_store_dwordx4 {vr(KMF+4*k,4)}, v189, {WS}, s57 offen offset:{k*512} sc1")
    a(f"""
    s_waitcnt vmcnt(0)
    s_mov_b64 exec, 1
    buffer_store_dword v188, off, {WS}, s60 sc1
    s_mov_b64 exec, -1
    s_branch p_next
    """)
    a.label("p_w23")
    a(f"""
    s_cmp_lg_u32 s{sW}, 2
    s_cbranch_scc1 p_next
    buffer_store_dwordx4 v[180:183], v186, {WS}, s66 offen sc1
    s_cmp_lg_u32 s{sID}, 0
    s_cbranch_scc1 p_next
    s_add_u32 s40, s{sSTEP}, 1
    v_mov_b32 v{X0}, s40
    s_mov_b64 exec, 1
    buffer_store_dword v{X0}, off, {WS}, s56 sc1
    s_mov_b64 exec, -1
    """)
    a.label("p_next")
    stamp(a, 4)
    stamp_flush(a, 5, 191)
    a(f"""
    s_add_u32 s{sKX}, s{sKX}, {32*8192}
    s_add_u32 s57, s57, {32*2048}
    s_add_u32 s{sSTEP}, s{sSTEP}, 1
    s_cmp_lt_u32 s{sSTEP}, 64
    s_cbranch_scc1 p_loop
    s_endpgm
    """)
    flush_deferred(a)

    AF, AC3, PKM = 72, 80, 120
    a.label("role_vm")
    a(f"""
    s_sub_u32 s{sID}, s{sID}, 32
    s_load_dwordx4 s[64:67], s[0:1], {KA_WV}
    s_waitcnt lgkmcnt(0)
    """)
    srd(a, 16, 64, D * H * E * 2)
    srd(a, 20, 66, D * H * E * 2)
    if PDELAY:
        dbg_wait_wg(a, [(DBG_MOD20, 1)], 3, sleep=10)
    load_wqk(a, (WQ,))
    load_wo(a, WK)
    setup_qk_lds_addrs(a, vTW, vTR)
    a(f"""
    ; sparse-A transposing read: e0 = 32(gA/2) + 16(r/2) + 8(gA%2) + 2(c/2) + (r%2)
    v_lshrrev_b32 v10, 5, v{vLANE}
    v_lshlrev_b32 v10, 5, v10
    v_bfe_u32 v11, v{vLANE}, 3, 1
    v_lshl_add_u32 v10, v11, 4, v10
    v_bfe_u32 v11, v{vLANE}, 4, 1
    v_lshl_add_u32 v10, v11, 3, v10
    v_bfe_u32 v11, v{vLANE}, 1, 1
    v_lshl_add_u32 v10, v11, 1, v10
    v_bfe_u32 v11, v{vLANE}, 2, 1
    v_add_u32 v10, v10, v11
    v_lshlrev_b32 v10, 4, v10
    v_and_b32 v11, 1, v{vLANE}
    v_lshl_add_u32 v10, v11, 3, v10
    v_add_u32 v{vTR}, 0x{LDS_T:x}, v10
    v_lshlrev_b32 v12, 3, v{vLANE}
    v_and_b32 v13, 31, v{vLANE}
    v_lshlrev_b32 v13, 3, v13
    v_lshrrev_b32 v10, 5, v{vLANE}
    v_lshl_add_u32 v13, v10, 14, v13
    v_mov_b32 v132, -1
    v_mov_b32 v133, -1
    s_mul_i32 s57, s{sID}, 10240
    s_mul_i32 s40, s{sW}, 2560
    s_add_u32 s57, s57, s40
    s_add_u32 s57, s57, 0x{WS_UMC:x}
    s_lshl_b32 s61, s{sID}, 7
    s_lshl_b32 s40, s{sW}, 2
    s_add_u32 s61, s61, s40
    s_add_u32 s61, s61, 0x{flag(FL_UF):x}
    """)
    get_pol(a, 135)
    mem_setup(a)
    a(f"""
    s_add_u32 s64, s{sSB}, 0x{WS_CRB + 32768:x}
    s_mul_i32 s65, s{sW}, {10*16384}
    s_lshl_b32 s40, s{sID}, 8
    s_add_u32 s65, s65, s40
    s_add_u32 s65, s65, s{sSA}
    s_add_u32 s65, s65, 0x{WS_CRA:x}
    s_mov_b32 s66, 0
    s_mov_b32 s67, {2*CRA_SLOT}
    """)
    a.label("vm_loop")
    stamp(a, 0)
    for r in range(40):
        a(f"v_mov_b32 v{AC3+r}, 0")
    a(f"""
    s_and_b32 s40, s{sSTEP}, 3
    s_lshl_b32 s40, s40, 17
    s_add_u32 s{sMEM}, s40, s64
    s_add_u32 s58, s65, s66
    s_cmp_eq_u32 s{sSTEP}, 0
    s_cbranch_scc1 vm_sync
    s_sleep {V_SLEEP}
    vm_sync:
    s_barrier
    """)
    stamp(a, 1)
    mem_proj2(a, [[0, 1]], sMEM, 135)
    stamp(a, 2)
    a.nop(8)
    combine_pair(a, 0, 1, 136, 137)
    a(f"""
    ds_write_b64 v{vTW}, v[136:137]
    s_waitcnt lgkmcnt(0)
    s_barrier
    """)
    for kb in range(2):
        for n in range(2):
            a(f"ds_read_b64_tr_b16 {vr(AF+4*kb+2*n,2)}, v{vTR} offset:{(64*kb+4*n)*16}")
    stamp(a, 3)

    def vm_pack(p):
        A, B = AC3 + 8*p, AC3 + 8*p + 4
        L = [f"v_permlane32_swap_b32 v{A+r}, v{B+r}" for r in range(4)]
        if PKADD:
            L += [f"v_pk_add_f32 v[{A+r}:{A+r+1}], v[{A+r}:{A+r+1}], v[{B+r}:{B+r+1}]" for r in (0, 2)]
        else:
            L += [f"v_add_f32 v{A+r}, v{A+r}, v{B+r}" for r in range(4)]
        L += [f"v_cvt_pk_bf16_f32 v{PKM+2*p}, v{A}, v{A+1}", f"v_cvt_pk_bf16_f32 v{PKM+2*p+1}, v{A+2}, v{A+3}",
              f"buffer_store_dwordx2 {vr(PKM+2*p,2)}, v13, {WS}, s{68+p} offen sc1"]
        return L
    for p in range(5):
        a(f"s_add_u32 s{68+p}, s58, {p*32768}")
    a("s_waitcnt lgkmcnt(0)")
    pend = []
    slot = 0
    last_mf = {}
    for p in range(5):
        for kb in range(2):
            for jj in range(2):
                jt = 2*p + jj
                a(f"v_smfmac_f32_16x16x64_bf16 {vr(AC3+4*jt,4)}, {vr(AF+4*kb,4)}, {widx(160+(jt*4+2*kb)*4,8)}, v{vIDX}")
                slot += 1
                n = 0
                while pend and pend[0][0] <= slot and n < VM_FILL:
                    a(pend.pop(0)[1])
                    slot += 1
                    n += 1
        for x in vm_pack(p):
            pend.append((slot + 8, x))
    while pend:
        if pend[0][0] > slot:
            a.nop(pend[0][0] - slot)
            slot = pend[0][0]
        a(pend.pop(0)[1])
        slot += 1
    stamp(a, 4)
    for p in range(5):
        a(f"buffer_store_dwordx2 {vr(PKM+2*p,2)}, v12, {WS}, s57 offen offset:{p*512} sc1")
    a("s_add_u32 s40, s65, s67")
    for p in range(5):
        a(f"buffer_store_dwordx2 v[132:133], v13, {WS}, s40 offen sc1")
        a("s_add_u32 s40, s40, 32768")
    a(f"""
    s_add_u32 s57, s57, {UM_STEP}
    s_mov_b32 s67, s66
    s_add_u32 s66, s66, {CRA_SLOT}
    s_cmp_ge_u32 s66, {3*CRA_SLOT}
    s_cselect_b32 s66, 0, s66
    s_add_u32 s40, s{sSTEP}, 1
    v_mov_b32 v134, s40
    s_waitcnt vmcnt(5)
    s_mov_b64 exec, 1
    buffer_store_dword v134, off, {WS}, s61 sc1
    s_mov_b64 exec, -1
    """)
    stamp_flush(a, 5, 191)
    a(f"""
    s_add_u32 s{sSTEP}, s{sSTEP}, 1
    s_cmp_lt_u32 s{sSTEP}, 64
    s_cbranch_scc1 vm_loop
    s_endpgm
    """)
    flush_deferred(a)

    TX, BX, PF, BM, CA = 16, 48, 80, 104, 112
    vPA, vPB, vWr, vRd, vUM = 8, 9, 12, 13, 140
    sUX = 33
    a.label("role_u")
    MODE2[0] = False
    a(f"s_sub_u32 s{sID}, s{sID}, 64")
    setup_p_load_addrs(a, vPA, vPB, vUM, 16384, 256)
    a(f"""
    s_lshl_b32 s40, s{sW}, 9
    v_lshlrev_b32 v{vWr}, 3, v{vLANE}
    v_add_u32 v{vWr}, s40, v{vWr}
    ; final lane l: c8 = l/32, i = (l/4)%8, cp = l%4 ; src lane' = (r&1)*32 + (i/4)*16 + 8c8 + 2cp ; comp = r>>1
    v_bfe_u32 v10, v{vLANE}, 2, 1           ; r&1
    v_lshlrev_b32 v10, 5, v10
    v_bfe_u32 v11, v{vLANE}, 4, 1           ; i/4
    v_lshl_add_u32 v10, v11, 4, v10
    v_lshrrev_b32 v11, 5, v{vLANE}
    v_lshl_add_u32 v10, v11, 3, v10
    v_and_b32 v11, 3, v{vLANE}
    v_lshl_add_u32 v10, v11, 1, v10
    v_lshlrev_b32 v10, 3, v10
    v_bfe_u32 v11, v{vLANE}, 3, 1           ; r>>1
    v_lshl_add_u32 v{vRd}, v11, 2, v10
    v_add_u32 v14, 1024, v{vRd}
    v_lshlrev_b32 v15, 2, v{vLANE}
    v_lshlrev_b32 v133, 7, v{vLANE}
    v_mov_b32 v123, 0
    s_mul_i32 s{sUX}, s{sW}, {8*40960}
    s_lshl_b32 s40, s{sID}, 10
    s_add_u32 s{sUX}, s{sUX}, s40
    s_add_u32 s{sUX}, s{sUX}, 0x{WS_UX:x}
    s_lshl_b32 s{sFT}, s{sW}, 10
    s_add_u32 s{sFT}, s{sFT}, 0x{flag(FL_VO):x}
    v_mov_b32 v134, -1
    """)
    get_pol(a, 135)
    a(f"""
    s_add_u32 s60, s{sSB}, 0x{WS_CRB + CRB_DOOR:x}
    s_add_u32 s64, s{sSB}, 0x{WS_CRB + 4*16384:x}   ; p base
    s_lshl_b32 s65, s{sID}, 8
    s_cmp_ge_u32 s{sID}, 32
    s_cselect_b32 s40, 8192, 0
    s_add_u32 s65, s65, s40
    s_add_u32 s65, s65, s{sSB}
    s_add_u32 s65, s65, 0x{WS_CRB:x}
    s_lshl_b32 s57, s{sID}, 14
    s_add_u32 s57, s57, s{sSA}
    s_add_u32 s57, s57, 0x{WS_CRA:x}
    s_mov_b32 s66, 0
    """)
    a.label("u_loop")
    stamp(a, 0)
    a(f"""
    s_and_b32 s40, s{sSTEP}, 3
    s_lshl_b32 s40, s40, 17
    s_add_u32 s{sPB}, s40, s64
    s_xor_b32 s41, s40, 0x40000
    s_add_u32 s41, s41, s65
    s_add_u32 s40, s{sSTEP}, 1
    s_and_b32 s40, s40, 3
    s_lshl_b32 s40, s40, 17
    s_add_u32 s{sMEM}, s40, s65
    s_cmp_lg_u32 s{sW}, 1
    s_cbranch_scc1 u_noarm
    buffer_store_dword v134, v15, {WS}, s41 offen sc1
    s_add_u32 s41, s41, 32768
    buffer_store_dword v134, v15, {WS}, s41 offen sc1
    u_noarm:
    """)
    a(f"""
    s_add_u32 s{sNEED}, s{sSTEP}, 1
    s_mov_b64 exec, 255
    v_cmp_gt_u32 vcc, s{sNEED}, v123
    s_mov_b64 exec, -1
    s_cbranch_vccz u_vok
    """)
    wait_all(a, 8, 133, sFT, sNEED, 123)
    a.label("u_vok")
    a(f"s_mov_b32 s40, s{sUX}")
    for hh in range(8):
        a(f"buffer_load_dwordx4 {vr(TX+4*hh,4)}, v{vL16}, {WS}, s40 offen sc1")
        a(f"s_add_u32 s40, s40, 40960")
    a(f"""
    s_mov_b64 exec, 255
    buffer_load_dword v123, v133, {WS}, s{sFT} offen sc1
    s_mov_b64 exec, -1
    s_add_u32 s58, s57, s66
    s_add_u32 s66, s66, {CRA_SLOT}
    s_cmp_ge_u32 s66, {3*CRA_SLOT}
    s_cselect_b32 s66, 0, s66
    s_waitcnt vmcnt(0)
    """)
    for hh in range(8):
        for d in range(4):
            a(f"v_mov_b32 v{BX + 8*(hh//2) + 2*d + hh%2}, v{TX+4*hh+d}")
    stamp(a, 1)
    a(f"""
    s_cmp_lg_u32 s{sW}, 0
    s_cbranch_scc1 u_dsync
    """)
    for k in range(3):
        a(f"buffer_load_dword v{124+k}, off, {WS}, s60 sc1")
        a(f"s_sleep 1")
    a.label("u_dspin")
    for k in range(4):
        a(f"""
        buffer_load_dword v{124+(k+3)%4}, off, {WS}, s60 sc1
        s_waitcnt vmcnt(3)
        v_cmp_le_u32 vcc, s{sNEED}, v{124+k}
        s_cbranch_vccnz u_ddone
        s_nop 7
        """)
    a(f"""
    s_sub_u32 s{sBUD}, s{sBUD}, 1
    s_cmp_ge_i32 s{sBUD}, 0
    s_cbranch_scc1 u_dspin
    """)
    a.label("u_ddone")
    stamp(a, 2)
    a(f"s_sleep {U_SLEEPD}")
    a.label("u_dsync")
    a("s_barrier")
    stamp(a, 3)
    def u_mloads():
        for k in range(2):
            a(f"buffer_load_dwordx2 {vr(PF+16+2*k,2)}, v{vPB}, {WS}, s{sPB} offen offset:{k*1280} sc1")
        for j in range(4):
            a(f"buffer_load_dwordx2 {vr(BM+2*j,2)}, v{vUM}, {WS}, s58 offen offset:{j*512} sc1")
    a.label("u_ppoll")
    for q in range(4):
        a(f"buffer_load_dwordx4 {vr(PF+4*q,4)}, v{vPA}, {WS}, s{sPB} offen offset:{q*1280} sc1")
    u_mloads()
    for r in range(4):
        a(f"v_mov_b32 v{CA+r}, 0")
    a("v_mov_b32 v122, 0")
    for q in range(4):
        f = PF + 4*q
        a(f"s_waitcnt vmcnt({9-q})")
        a(f"v_smfmac_f32_16x16x64_bf16 {vr(CA,4)}, {vr(f,4)}, {vr(BX+8*q,8)}, v{vIDX}")
        a(f"v_max3_u32 v122, v122, v{f}, v{f+1}")
        a(f"v_max3_u32 v122, v122, v{f+2}, v{f+3}")
    a("v_cmp_eq_u32 vcc, -1, v122")
    poll_fail(a, "u_ppoll", sleep=1)
    a.label("u_mchk")
    a(f"""
    s_waitcnt vmcnt(4)
    v_swap_b32 v{PF+17}, v{PF+18}
    v_max3_u32 v122, v{PF+16}, v{PF+17}, v{PF+18}
    v_max_u32 v122, v122, v{PF+19}
    s_waitcnt vmcnt(2)
    v_max3_u32 v122, v122, v{BM}, v{BM+1}
    v_max3_u32 v122, v122, v{BM+2}, v{BM+3}
    s_waitcnt vmcnt(0)
    v_max3_u32 v122, v122, v{BM+4}, v{BM+5}
    v_max3_u32 v122, v122, v{BM+6}, v{BM+7}
    v_cmp_eq_u32 vcc, -1, v122
    s_cbranch_vccnz u_mretry
    u_mok:
    v_smfmac_f32_16x16x64_bf16 {vr(CA,4)}, {vr(PF+16,4)}, {vr(BM,8)}, v{vIDX}
    """)

    def u_ool():
        a.label("u_mretry")
        a(f"""
        s_sub_u32 s{sBUD}, s{sBUD}, 1
        s_cmp_lt_i32 s{sBUD}, 0
        s_cbranch_scc1 u_mok
        """)
        u_mloads()
        a("s_branch u_mchk")
    DEFERRED.append(u_ool)
    a.nop(2)
    stamp(a, 4)
    a.nop(6)
    a(f"""
    v_permlane32_swap_b32 v{CA}, v{CA+1}
    v_permlane32_swap_b32 v{CA+2}, v{CA+3}
    v_add_f32 v{CA}, v{CA}, v{CA+1}
    v_add_f32 v{CA+1}, v{CA+2}, v{CA+3}
    ds_write_b64 v{vWr}, {vr(CA,2)}
    s_waitcnt lgkmcnt(0)
    s_barrier
    s_cmp_lg_u32 s{sW}, 0
    s_cbranch_scc1 u_next
    ds_read2_b32 v[124:125], v{vRd} offset0:0 offset1:2
    ds_read2_b32 v[126:127], v{vRd} offset0:128 offset1:130
    ds_read2_b32 v[128:129], v14 offset0:0 offset1:2
    ds_read2_b32 v[130:131], v14 offset0:128 offset1:130
    s_add_u32 s40, s{sMEM}, 32768
    s_waitcnt lgkmcnt(2)
    v_add_f32 v124, v124, v126
    v_add_f32 v125, v125, v127
    s_waitcnt lgkmcnt(0)
    v_add_f32 v128, v128, v130
    v_add_f32 v129, v129, v131
    v_add_f32 v124, v124, v128
    v_add_f32 v125, v125, v129
    v_cvt_pk_bf16_f32 v124, v124, v125
    v_min_u32 v124, -2, v124
    buffer_store_dword v124, v15, {WS}, s{sMEM} offen sc1
    buffer_store_dword v124, v15, {WS}, s40 offen sc1
    """)
    a.label("u_next")
    stamp(a, 5)
    stamp_flush(a, 6, 191)
    a(f"""
    s_add_u32 s{sUX}, s{sUX}, {UX_STEP}
    s_add_u32 s{sSTEP}, s{sSTEP}, 1
    s_cmp_lt_u32 s{sSTEP}, 63
    s_cbranch_scc1 u_loop
    s_endpgm
    """)
    flush_deferred(a)

    vH = 14
    sHOFF, sHBUF, sOUT, sFM = 37, 38, 39, 56

    def publish(role, sval, wv=3):
        lab = a.newlabel("pub")
        a(f"""
        s_cmp_lg_u32 s{sW}, {wv}
        s_cbranch_scc1 {lab}
        v_mov_b32 v3, {sval}
        s_mov_b64 exec, 1
        buffer_store_dword v3, off, {WS}, s{sFT} sc1
        s_mov_b64 exec, -1
        {lab}:
        """)

    from gen_boot import dbg_wait_wg, DBG_INIT, DBG_LN, N_INITW

    def ln_ready():
        top, done = a.newlabel("lr"), a.newlabel("lrd")
        a(f"""
        s_add_u32 s45, s{sSTEP}, 1
        s_and_b32 s46, s45, 7
        s_cmp_lg_u32 s46, 0
        s_cbranch_scc1 {done}
        s_cmp_ge_u32 s45, 64
        s_cbranch_scc1 {done}
        s_lshr_b32 s45, s45, 1
        {top}:
        buffer_load_dword v3, off, {DBG}, s45 offset:{DBG_LN} sc1
        s_waitcnt vmcnt(0)
        v_readfirstlane_b32 s44, v3
        s_sub_u32 s{sBUD}, s{sBUD}, 1
        s_cmp_lt_i32 s{sBUD}, 0
        s_cbranch_scc1 {done}
        s_cmp_ge_u32 s44, 1
        s_cbranch_scc1 {done}
        s_sleep 4
        s_branch {top}
        {done}:
        """)

    def loop_top():
        a(f"""
        v_add_u32 v{vH}, s{sHBUF}, v{vL16}
        s_sub_u32 s{sHBUF}, 40960, s{sHBUF}
        s_add_u32 s{sHOFF}, s{sHOFF}, 40960
        """)
        ln_ready()
        dmal_init(a, sHOFF, sHBUF)

    a.label("role_t")
    a(f"""
    s_sub_u32 s{sID}, s{sID}, 112
    s_mov_b32 s{sHOFF}, 0x{WS_H1F:x}
    s_mov_b32 s{sHBUF}, 0
    """)
    load_wqk(a, depth=TDEPTH)
    dbg_wait_wg(a, [(DBG_INIT, 1), (DBG_LN, 1)], 3)
    dmal_init(a, sHOFF, sHBUF)
    for k in range(10):
        dmal_one(a)
    a(f"""
    s_lshl_b32 s{sOUT}, s{sID}, 13
    s_lshl_b32 s40, s{sW}, 10
    s_add_u32 s{sOUT}, s{sOUT}, s40
    s_add_u32 s{sOUT}, s{sOUT}, 0x{WS_KX:x}
    s_lshl_b32 s{sFT}, s{sID}, 7
    s_add_u32 s{sFT}, s{sFT}, 0x{flag(FL_T):x}
    s_waitcnt vmcnt(0)
    s_barrier
    """)
    a.label("t_loop")
    stamp(a, 0)
    loop_top()
    DMK = [0, 1, 3, 4, 6, 7, 9, 10, 12, 13]

    def hook_t(ks):
        if ks in DMK:
            dmal_one(a)
        if ks == 5:
            a("s_waitcnt vmcnt(4)")
            a("s_barrier")
            publish("t", f"s{sSTEP}")
    dense_proj(a, vH, True, hook_t)
    stamp(a, 1)
    a.nop(4)
    PK = 128
    a(f"s_add_u32 s40, s{sOUT}, 0x{WS_QX-WS_KX:x}")
    for mat in (0, 1):
        for mt in range(2):
            tm = PK + (mat*2+mt) * 4
            for tt in range(2):
                b = TACC + ((mat*2+tt)*2 + mt) * 4
                a(f"v_cvt_pk_bf16_f32 v{tm+2*tt}, v{b}, v{b+1}")
                a(f"v_cvt_pk_bf16_f32 v{tm+2*tt+1}, v{b+2}, v{b+3}")
    a("s_waitcnt vmcnt(0)")
    for mat in (1, 0):
        for mt in range(2):
            tm = PK + (mat*2+mt) * 4
            so = "s40" if mat == 0 else f"s{sOUT}"
            a(f"buffer_store_dwordx4 {vr(tm,4)}, v{vL16+mt}, {WS}, {so} offen sc1")
    a(f"""
    s_add_u32 s{sOUT}, s{sOUT}, {32*8192}
    s_cmp_lg_u32 s{sSTEP}, 0
    s_cbranch_scc1 t_ne
    s_waitcnt vmcnt(0)
    s_barrier
    """)
    publish("t", "1")
    a("t_ne:")
    a("s_barrier")
    stamp(a, 2)
    stamp_flush(a, 3, 1)
    a(f"""
    s_add_u32 s{sSTEP}, s{sSTEP}, 1
    s_cmp_lt_u32 s{sSTEP}, 64
    s_cbranch_scc1 t_loop
    s_waitcnt vmcnt(0)
    s_barrier
    """)
    publish("t", f"s{sSTEP}")
    a(f"""
    {"s_endpgm" if NOTOK else ""}
    s_mov_b32 s{sSTEP}, 0
    s_add_u32 s97, s97, {300*72*32}
    s_cmp_ge_u32 s{sID}, {NC}
    s_cbranch_scc1 t_f1
    s_add_u32 s{sID}, s{sID}, {184+NC}
    s_branch role_c
    t_f1:
    s_cmp_ge_u32 s{sID}, {NC+3}
    s_cbranch_scc1 r_end
    s_add_u32 s{sID}, s{sID}, {212+24-NC}   ; F1 slices 24..26
    s_mov_b32 s100, {F1S+1}
    s_branch role_f
    """)

    VF, AC2 = 16, 128
    LDS_V = LDS_T
    a.label("role_vo")
    a(f"""
    s_sub_u32 s{sID}, s{sID}, 144
    s_load_dwordx4 s[64:67], s[0:1], {KA_WV}
    s_mov_b32 s{sHOFF}, 0x{WS_H1F:x}
    s_mov_b32 s{sHBUF}, 0
    s_waitcnt lgkmcnt(0)
    """)
    srd(a, 16, 64, D * H * E * 2)
    srd(a, 20, 66, D * H * E * 2)
    load_wqk(a, (WQ,))
    load_wo(a, WK)
    dbg_wait_wg(a, [(DBG_INIT, 1), (DBG_LN, 1)], 3)
    dmal_init(a, sHOFF, sHBUF)
    for k in range(10):
        dmal_one(a)
    a(f"""
    s_mul_i32 s{sOUT}, s{sID}, 40960
    s_mul_i32 s40, s{sW}, 10240
    s_add_u32 s{sOUT}, s{sOUT}, s40
    s_add_u32 s{sOUT}, s{sOUT}, 0x{WS_UX:x}
    s_lshl_b32 s{sFT}, s{sID}, 7
    s_add_u32 s{sFT}, s{sFT}, 0x{flag(FL_VO):x}
    s_lshl_b32 s40, s{sW}, 10
    s_add_u32 s40, s40, 0x{LDS_V:x}
    v_add_u32 v12, s40, v{vL16}
    v_add_u32 v13, 0x{LDS_V:x}, v{vL16}
    s_waitcnt vmcnt(0)
    s_barrier
    """)
    a.label("vo_loop")
    stamp(a, 0)
    loop_top()

    def hook_v(ks):
        if ks % 2 == 0:
            dmal_one(a)
    dense_proj(a, vH, True, hook_v, tiles=(0, 1))
    a.nop(6)
    for mt in range(2):
        for tt in range(2):
            b = TACC + (tt*2 + mt) * 4
            a(f"v_cvt_pk_bf16_f32 v{168+4*mt+2*tt}, v{b}, v{b+1}")
            a(f"v_cvt_pk_bf16_f32 v{168+4*mt+2*tt+1}, v{b+2}, v{b+3}")
        a(f"ds_write_b128 v12, {vr(168+4*mt,4)} offset:{mt*4096}")
    a(f"""
    s_waitcnt vmcnt(10) lgkmcnt(0)
    s_barrier
    """)
    stamp(a, 1)
    for k in range(4):
        for mt in range(2):
            a(f"ds_read_b128 {vr(VF+(mt*4+k)*4,4)}, v13 offset:{mt*4096+k*1024}")
    publish("vo", f"s{sSTEP}")
    for hb in range(2):
        for k in range(4):
            if hb == 0:
                a(f"s_waitcnt lgkmcnt({6-2*k})")
            for j5 in range(5):
                for mt in range(2):
                    acc = vr(AC2 + (j5*2+mt)*4, 4) if hb == 0 else vr(TACC + (j5*2+mt)*4, 4)
                    a(f"v_mfma_f32_16x16x32_bf16 {acc}, {vr(VF+(mt*4+k)*4,4)}, {widx(160+((hb*5+j5)*4+k)*4)}, {'0' if k == 0 else acc}")
                if hb == 1 and k < 3 and j5 < 2 and (k*2+j5) < 5:
                    q = k*2 + j5
                    tm = 168 + (q % 2) * 4
                    for mt in range(2):
                        b = AC2 + (q*2+mt)*4
                        a(f"v_cvt_pk_bf16_f32 v{tm+2*mt}, v{b}, v{b+1}")
                        a(f"v_cvt_pk_bf16_f32 v{tm+2*mt+1}, v{b+2}, v{b+3}")
                    r, o = l16(q * 1024)
                    a(f"buffer_store_dwordx4 {vr(tm,4)}, {r}, {WS}, s{sOUT} offen offset:{o} sc1")
    for q in range(5):
        tm = 176 + (q % 2) * 4
        for mt in range(2):
            b = TACC + (q*2+mt)*4
            a(f"v_cvt_pk_bf16_f32 v{tm+2*mt}, v{b}, v{b+1}")
            a(f"v_cvt_pk_bf16_f32 v{tm+2*mt+1}, v{b+2}, v{b+3}")
        r, o = l16((5+q) * 1024)
        a(f"buffer_store_dwordx4 {vr(tm,4)}, {r}, {WS}, s{sOUT} offen offset:{o} sc1")
    a(f"""
    s_add_u32 s{sOUT}, s{sOUT}, {UX_STEP}
    s_cmp_lg_u32 s{sSTEP}, 0
    s_cbranch_scc1 vo_ne
    s_waitcnt vmcnt(0)
    s_barrier
    """)
    publish("vo", "1")
    a(f"""
    vo_ne:
    s_waitcnt vmcnt(10)
    s_barrier
    """)
    stamp(a, 2)
    stamp_flush(a, 3, 1)
    a(f"""
    s_add_u32 s{sSTEP}, s{sSTEP}, 1
    s_cmp_lt_u32 s{sSTEP}, 64
    s_cbranch_scc1 vo_loop
    s_waitcnt vmcnt(0)
    s_barrier
    """)
    publish("vo", f"s{sSTEP}")
    a(f"""
    {"s_endpgm" if NOTOK else ""}
    s_mov_b32 s{sSTEP}, 0
    s_add_u32 s97, s97, {300*72*32}
    s_mov_b32 s100, {SENT0+1}
    s_cmp_ge_u32 s{sID}, 24
    s_cbranch_scc1 vo_a
    s_add_u32 s{sID}, s{sID}, 212           ; F1 slices 0..23
    s_mov_b32 s100, {F1S+1}
    s_branch role_f
    vo_a:
    s_add_u32 s{sID}, s{sID}, {176-24}
    s_branch role_a
    """)

    KF2, QF2, KMF2, SA2, Y0 = 16, 48, 80, 96, 112
    sKXR, sKM = 33, 57
    a.label("role_al")
    a(f"""
    s_sub_u32 s40, s{sID}, 176
    s_sub_u32 s41, s{sID}, 196
    s_cmp_lt_u32 s{sID}, 184
    s_cselect_b32 s40, s40, s41             ; 0..15
    s_lshl_b32 s40, s40, 1
    s_and_b32 s41, s{sW}, 1
    s_add_u32 s{sID}, s40, s41
    s_cmp_ge_u32 s{sW}, 2
    s_cbranch_scc1 role_l
    s_branch role_a2
    """)
    a.label("role_a")
    a(f"""
    s_sub_u32 s{sID}, s{sID}, 176
    s_lshl_b32 s{sID}, s{sID}, 2
    s_add_u32 s{sID}, s{sID}, s{sW}         ; head
    role_a2:
    v_bfe_u32 v10, v{vLANE}, 3, 1           ; b
    v_and_b32 v11, 7, v{vLANE}              ; i
    v_lshrrev_b32 v15, 4, v{vLANE}          ; g
    v_lshlrev_b32 v8, 7, v15
    v_lshl_add_u32 v8, v11, 4, v8
    v_mul_u32_u24 v10, {PB_RG}, v10
    v_lshl_add_u32 v{vST}, v11, 4, v10      ; + i*16
    v_and_b32 v11, 1, v15
    v_lshl_add_u32 v{vST}, v11, 3, v{vST}   ; + (g&1)*8
    v_lshrrev_b32 v11, 1, v15
    v_lshl_add_u32 v{vSM}, v11, 7, v{vST}
    v_lshl_add_u32 v{vST}, v11, 8, v{vST}
    v_and_b32 v10, 15, v{vLANE}
    v_lshlrev_b32 v11, 2, v15               ; 4g
    """)
    for r in range(4):
        a(f"v_add_u32 v15, {r}, v11")
        a(f"v_cmp_le_u32 s[{64+r*2}:{65+r*2}], v15, v10")
    a(f"""
    s_mov_b32 s54, 0
    s_mov_b32 s55, -1
    s_lshl_b32 s{sPB}, s{sID}, 9
    s_add_u32 s{sPB}, s{sPB}, 0x{WS_PT:x}
    ; mem part offset relative to token part: 16384 + (2(h/4) + h%2)*256 + ((h>>1)&1)*4 - h*512
    s_lshr_b32 s40, s{sID}, 2
    s_lshl_b32 s40, s40, 1
    s_and_b32 s41, s{sID}, 1
    s_add_u32 s40, s40, s41
    s_lshl_b32 s40, s40, 8
    s_bfe_u32 s41, s{sID}, 0x10001
    s_lshl_b32 s41, s41, 2
    s_add_u32 s40, s40, s41
    s_add_u32 s40, s40, 16384
    s_lshl_b32 s41, s{sID}, 9
    s_sub_u32 s61, s40, s41
    s_lshl_b32 s58, s{sID}, 7
    s_add_u32 s59, s58, 0x{flag(FL_A):x}
    s_add_u32 s58, s58, 0x{flag(FL_KM):x}
    s_mov_b32 s60, 0
    s_lshl_b32 s{sKXR}, s{sID}, 13
    s_add_u32 s{sKXR}, s{sKXR}, 0x{WS_KX:x}
    s_lshl_b32 s{sKM}, s{sID}, 11
    s_add_u32 s{sKM}, s{sKM}, 0x{WS_KM:x}
    s_lshl_b32 s{sFT}, s{sID}, 7
    s_add_u32 s{sFT}, s{sFT}, 0x{flag(FL_T):x}
    s_mov_b32 s{sSEEN}, 0
    s_mov_b32 s{sSTEP}, s100
    s_cmp_eq_u32 s100, 0
    s_cbranch_scc1 a_prim
    s_add_u32 s{sPB}, s{sPB}, {(SENT0+1)*PT_STEP}
    s_add_u32 s{sKXR}, s{sKXR}, {(SENT0+1)*32*8192}
    s_add_u32 s{sKM}, s{sKM}, {(SENT0+1)*32*2048}
    s_mov_b32 s59, 0x{flag(FL_DUMMY):x}
    """)
    wait_flag(a, 58, 100, 60, Y0, sleep=32)
    a.label("a_prim")

    def a_kq(need):
        wait_flag(a, sFT, need, sSEEN, Y0+1, sleep=8)
        a(f"s_add_u32 s40, s{sKXR}, 0x{WS_QX-WS_KX:x}")
        for f in range(8):
            r, o = l16(f * 1024)
            a(f"buffer_load_dwordx4 {vr(KF2+4*f,4)}, {r}, {WS}, s{sKXR} offen offset:{o} sc1")
        for f in range(8):
            r, o = l16(f * 1024)
            a(f"buffer_load_dwordx4 {vr(QF2+4*f,4)}, {r}, {WS}, s40 offen offset:{o} sc1")
        a(f"s_add_u32 s{sKXR}, s{sKXR}, {32*8192}")
    a(f"s_add_u32 s{sNEED}, s{sSTEP}, 1")
    a_kq(sNEED)
    a.label("a_loop")
    stamp(a, 0)
    a(f"s_add_u32 s{sNEED}, s{sSTEP}, 1")
    stamp(a, 1)
    a(f"""
    s_cmp_ge_u32 s{sSTEP}, {SENT0}
    s_cbranch_scc1 a_kml
    """)
    wait_flag(a, 58, sNEED, 60, Y0, sleep=4)
    a.label("a_kml")
    for k in range(4):
        a(f"buffer_load_dwordx4 {vr(KMF2+4*k,4)}, v8, {WS}, s{sKM} offen offset:{k*512} sc1")
    a("s_waitcnt vmcnt(0)")
    vmax_chain(a, Y0, range(KMF2, KMF2+16))
    poll_fail(a, "a_kml", sleep=3)
    stamp(a, 2)
    for qt in range(2):
        for k in range(4):
            for mt in range(qt + 1):
                acc = vr(SA2+4*mt, 4)
                a(f"v_mfma_f32_16x16x32_bf16 {acc}, {vr(KF2+(mt*4+k)*4,4)}, {vr(QF2+(qt*4+k)*4,4)}, {'0' if k==0 else acc}")
            acc = vr(SA2+8, 4)
            a(f"v_mfma_f32_16x16x32_bf16 {acc}, {vr(KMF2+4*k,4)}, {vr(QF2+(qt*4+k)*4,4)}, {'0' if k==0 else acc}")
        a.nop(8)
        a(f"""
        v_cndmask_b32 v{SA2+8}, v{SA2+8}, v{SA2+10}, s[54:55]
        v_cndmask_b32 v{SA2+9}, v{SA2+9}, v{SA2+11}, s[54:55]
        """)
        xs = [SA2 + k for k in range(4*(qt+1))] + [SA2+8, SA2+9]
        round_scale(a, xs, Y0+8, 50)
        a(f"v_mov_b32 v{Y0}, 0xce6e6b28")
        for k in range(4):
            a(f"v_cndmask_b32 v{SA2+4*qt+k}, v{Y0}, v{SA2+4*qt+k}, s[{64+2*k}:{65+2*k}]")
        softmax(a, xs, Y0+6, Y0+7, 51, False)
        O = Y0 + 16 + 8*qt
        for half in range(2):
            for m in range(2):
                if m <= qt:
                    a(f"v_cvt_pk_bf16_f32 v{O+2*half+m}, v{SA2+4*m+2*half}, v{SA2+4*m+2*half+1}")
                else:
                    a(f"v_mov_b32 v{O+2*half+m}, 0")
        a(f"v_cvt_pk_bf16_f32 v{O+4}, v{SA2+8}, v{SA2+9}")
        for k in range(5):
            a(f"v_min_u32 v{O+k}, -2, v{O+k}")
        a(f"s_add_u32 s40, s{sPB}, {qt*2*PB_RG}")
        for half in range(2):
            a(f"buffer_store_dwordx2 {vr(O+2*half,2)}, v{vST}, {WS}, s40 offen offset:{half*128} sc1")
        a(f"s_add_u32 s40, s40, s61")
        a(f"buffer_store_dword v{O+4}, v{vSM}, {WS}, s40 offen sc1")
    a(f"""
    s_cmp_ge_u32 s{sSTEP}, {SENT0}
    s_cselect_b32 s46, 2, 1
    s_cselect_b32 s45, {32*8192}, 0
    s_add_u32 s{sKXR}, s{sKXR}, s45
    s_add_u32 s45, s{sNEED}, s46
    s_min_u32 s45, s45, 64
    """)
    a(f"buffer_load_dword v{Y0+2}, off, {WS}, s58 sc1")
    a_kq(45)
    a(f"""
    v_mov_b32 v{Y0}, s{sNEED}
    s_waitcnt vmcnt(16)
    s_mov_b64 exec, 1
    buffer_store_dword v{Y0}, off, {WS}, s59 sc1
    s_mov_b64 exec, -1
    v_readfirstlane_b32 s60, v{Y0+2}
    """)
    stamp(a, 3)
    stamp_flush(a, 4, 1)
    a(f"""
    s_mul_i32 s40, s46, {PT_STEP}
    s_add_u32 s{sPB}, s{sPB}, s40
    s_lshl_b32 s40, s46, 16
    s_add_u32 s{sKM}, s{sKM}, s40
    s_add_u32 s{sSTEP}, s{sSTEP}, s46
    s_cmp_lt_u32 s{sSTEP}, 64
    s_cbranch_scc1 a_loop
    s_endpgm
    """)

    a.label("role_l")
    ln_setup(a, 3, 4, False)
    a(f"""
    s_mov_b32 s40, s{sID}                   ; row
    {"s_sub_u32 s3, s3, 2" if STAMP else ""}
    {"s_add_u32 s97, s97, " + str(100*72*32) if STAMP else ""}
    s_mul_i32 s46, s40, 1280
    s_add_u32 s47, s46, 0x{WS_H2F:x}
    s_lshl_b32 s48, s40, 7
    s_add_u32 s48, s48, 0x{flag(FL_L):x}
    s_mov_b32 s49, 0x{flag(FL_CC):x}
    v_lshlrev_b32 v9, 1, v{L_DST}
    v_cndmask_b32 v9, v{L_DST}, v9, s[76:77]
    s_mov_b32 s40, {WS_MOD + 2*2560}
    s_mov_b32 s52, 20
    """)
    GA = 48
    for h in range(2):
        a(f"buffer_load_dwordx4 {vr(GA+8*h,4)}, v9, {WS}, s40 offen offset:{h*1280} sc1")
        a(f"buffer_load_dwordx4 {vr(GA+8*h+4,4)}, v9, {WS}, s40 offen offset:{h*1280+16} sc1")
    a("s_mov_b32 s54, 0")
    a.label("l_loop")
    stamp(a, 0)
    a(f"""
    s_add_u32 s45, s{sSTEP}, 1
    s_add_u32 s41, s46, 0x{WS_ATT:x}
    s_add_u32 s42, s46, 0x{WS_X1:x}
    s_mov_b32 s53, 0
    s_cmp_eq_u32 s54, 1
    s_cbranch_scc1 l_chk
    """)
    ln_load(a, XS, 46, "", False, raw=24)
    a(f"""
    s_cmp_ge_u32 s{sSTEP}, {SENT0}
    s_cbranch_scc1 l_ld
    """)
    wait_flag(a, 49, 52, 53, 16, sleep=3)
    a.label("l_ld")
    ln_load(a, WS, 41, "sc1", False)
    a(f"buffer_load_dword v17, off, {WS}, s49 offset:128 sc1")
    a("s_waitcnt vmcnt(0)")
    a.label("l_chk")
    stamp(a, 1)
    vmax_chain(a, 16, range(L_RAW, L_RAW+8))
    poll_fail(a, "l_ld", sleep=3)
    a("v_readfirstlane_b32 s55, v17")
    ln_unpack(a, False)
    for j in range(8):
        x0, x1 = L_X + 2*j, L_X + 2*j + 1
        a(f"""
        v_mul_f32 v{x0}, v{x0}, v{GA+2*j}
        v_mul_f32 v{x1}, v{x1}, v{GA+2*j+1}
        v_cvt_pk_bf16_f32 v{L_T}, v{x0}, v{x1}
        v_lshlrev_b32 v{x0}, 16, v{L_T}
        v_and_b32 v{x1}, 0xffff0000, v{L_T}
        v_lshlrev_b32 v{L_T}, 16, v{24+j}
        v_and_b32 v{L_T2}, 0xffff0000, v{24+j}
        v_add_f32 v{x0}, v{x0}, v{L_T}
        v_add_f32 v{x1}, v{x1}, v{L_T2}
        v_cvt_pk_bf16_f32 v{32+j}, v{x0}, v{x1}
        v_lshlrev_b32 v{x0}, 16, v{32+j}
        v_and_b32 v{x1}, 0xffff0000, v{32+j}
        """)
    for j in range(8):
        a(f"v_min_u32 v{32+j}, -2, v{32+j}")
    a(f"buffer_store_dwordx4 v[32:35], v{L_DST}, {WS}, s42 offen sc1")
    a(f"buffer_store_dwordx4 v[36:39], v{L_DST}, {WS}, s42 offen offset:640 sc1")
    a(f"""
    s_mov_b32 s54, 0
    s_cmp_ge_u32 s{sSTEP}, {SENT0-1}
    s_cselect_b32 s55, 20, s55
    s_cmp_lt_u32 s55, 20
    s_cbranch_scc1 l_nopf
    s_cmp_ge_u32 s{sSTEP}, 63
    s_cbranch_scc1 l_nopf
    s_mov_b32 s54, 1
    s_add_u32 s40, s46, {32*1280}
    s_add_u32 s41, s41, {32*1280}
    """)
    ln_load(a, XS, 40, "", False, raw=24)
    ln_load(a, WS, 41, "sc1", False)
    a(f"buffer_load_dword v17, off, {WS}, s49 offset:256 sc1")
    a.label("l_nopf")
    ln_compute_store(a, 47)
    a("s_add_u32 s49, s49, 128")
    stamp(a, 2)
    a(f"""
    v_mov_b32 v16, s45
    s_add_u32 s46, s46, {32*1280}
    s_add_u32 s47, s47, {32*1280}
    s_waitcnt vmcnt(0)
    s_mov_b64 exec, 1
    buffer_store_dword v16, off, {WS}, s48 sc1
    s_mov_b64 exec, -1
    """)
    stamp(a, 3)
    stamp_flush(a, 4, 1)
    a(f"""
    s_add_u32 s{sSTEP}, s{sSTEP}, 1
    s_cmp_lt_u32 s{sSTEP}, 64
    s_cbranch_scc1 l_loop
    s_endpgm
    """)

    vPT, vBM, vXS = 240, 239, 242
    sUXR, sPFC = 33, 59
    sA, sV = 61, 62
    PFB = [16, 96]
    BMB = [128, 144]
    CAC = 176
    from gen_boot import arrive
    a.label("role_c")
    a(f"s_sub_u32 s{sID}, s{sID}, 184")
    setup_p_load_addrs(a, vPA, vPB, vBM)
    a(f"""
    s_lshl_b32 s40, s{sW}, 12
    v_add_u32 v{vPT}, s40, v{vL16}
    v_add_u32 v{vRd}, s40, v{vL16}
    s_lshl_b32 s40, s{sW}, 10
    v_add_u32 v{vWr}, s40, v{vL16}
    v_add_u32 v241, 16384, v{vWr}
    v_and_b32 v10, 15, v{vLANE}             ; n
    v_lshrrev_b32 v11, 5, v{vLANE}          ; pr
    v_lshl_add_u32 v10, v11, 4, v10
    v_bfe_u32 v11, v{vLANE}, 4, 1
    v_lshlrev_b32 v11, 2, v11
    s_lshl_b32 s40, s{sW}, 3
    v_add_u32 v11, s40, v11
    v_mul_u32_u24 v11, 1280, v11
    v_lshl_add_u32 v{vXS}, v10, 1, v11
    v_and_b32 v10, 1, v{vLANE}
    v_mov_b32 v11, 0x7ffffff0
    v_cmp_ne_u32 vcc, 0, v10
    v_lshlrev_b32 v243, 7, v{vLANE}
    v_mov_b32 v232, 0
    v_cndmask_b32 v{vXS}, v{vXS}, v11, vcc
    v_mov_b32 v231, 20
    s_lshl_b32 s40, s{sW}, 10
    s_add_u32 s{sFT}, s40, 0x{flag(FL_UF):x}
    s_add_u32 s{sA}, s40, 0x{flag(FL_A):x}
    s_add_u32 s{sV}, s40, 0x{flag(FL_VO):x}
    s_mov_b32 s{sFM}, 0x{flag(FL_MEM):x}
    s_mul_i32 s73, s{sW}, {8*40960}
    s_add_u32 s73, s73, 0x{WS_UX:x}
    s_add_u32 s76, s{sID}, {CT0}
    s_cmp_ge_u32 s{sID}, {NC}
    s_cselect_b32 s77, s76, s{sID}
    s_mov_b32 s78, s77
    s_mov_b32 s79, s77
    """)

    TIX = {57: 77, 60: 78, 68: 79}

    def dec(ss, sk):
        t = TIX[ss]
        a(f"""
        s_mul_i32 s{ss}, s{t}, 3277
        s_lshr_b32 s{ss}, s{ss}, 16
        s_mul_i32 s40, s{ss}, 20
        s_sub_u32 s{sk}, s{t}, s40
        """)

    def adv(ss, sk):
        t = TIX[ss]
        a(f"""
        s_add_u32 s40, s{t}, {NC}
        s_cmp_lt_u32 s40, {CT0}
        s_cselect_b32 s40, s40, s76
        s_add_u32 s41, s{t}, {2*NC}
        s_cmp_lt_u32 s{t}, {CT0}
        s_cselect_b32 s{t}, s40, s41
        """)
        dec(ss, sk)
    dec(57, 58)
    dec(60, 63)
    dec(68, 72)

    def c_needs():
        a(f"s_add_u32 s44, s60, 1")

    def c_offs():
        a(f"""
        s_mul_i32 s{sPB}, s60, {PT_STEP}
        s_add_u32 s{sPB}, s{sPB}, 0x{WS_PT:x}
        s_add_u32 s64, s{sPB}, {PB_RG}
        s_add_u32 s65, s{sPB}, {2*PB_RG}
        s_add_u32 s66, s{sPB}, {3*PB_RG}
        s_mul_i32 s67, s60, {UM_STEP}
        s_lshl_b32 s40, s63, 9
        s_add_u32 s67, s67, s40
        s_add_u32 s67, s67, 0x{WS_UMC:x}
        s_add_u32 s69, s67, 20480
        s_add_u32 s70, s67, 40960
        s_add_u32 s71, s67, 61440
        """)

    def c_flag_loads():
        a(f"""
        s_mov_b64 exec, 255
        buffer_load_dword v233, v243, {WS}, s{sA} offen sc1
        buffer_load_dwordx4 v[224:227], v243, {WS}, s{sFT} offen sc1
        s_mov_b64 exec, -1
        """)

    def c_test(fail):
        a(f"""
        v_min3_u32 v234, v233, v224, v225
        v_min3_u32 v234, v234, v226, v227
        s_mov_b64 exec, 255
        v_cmp_gt_u32 vcc, s44, v234
        s_mov_b64 exec, -1
        s_cbranch_vccnz {fail}
        """)

    def c_block():
        c_needs()
        top, retry, done = a.newlabel("cb"), a.newlabel("cb"), a.newlabel("cb")
        a.label(top)
        c_flag_loads()
        a("s_waitcnt vmcnt(0)")
        sk = a.newlabel("cb")
        a(f"""
        s_cmp_lt_u32 s60, {SENT0}
        s_cbranch_scc1 {sk}
        v_mov_b32 v233, 64
        {sk}:
        """)
        c_test(retry)
        a(f"s_branch {done}")
        a.label(retry)
        a(f"""
        s_sub_u32 s{sBUD}, s{sBUD}, 1
        s_cmp_lt_i32 s{sBUD}, 0
        s_cbranch_scc1 {done}
        s_sleep 3
        s_branch {top}
        """)
        a.label(done)

    def c_load_list(buf):
        L = []
        for rg in range(4):
            so = [sPB, 64, 65, 66][rg]
            PF = PFB[buf] + 20*rg
            for q in range(4):
                L.append(f"buffer_load_dwordx4 {vr(PF+q*4,4)}, v{vPT}, {WS}, s{so} offen offset:{q*1024} sc1")
            L.append(f"buffer_load_dwordx4 {vr(PF+16,4)}, v241, {WS}, s{so} offen sc1")
        for j in range(4):
            for pr in range(2):
                L.append(f"buffer_load_dwordx2 {ar(BMB[buf]+pr*8+2*j,2)}, v{vBM}, {WS}, s{[67,69,70,71][j]} offen offset:{pr*256} sc1")
        return L

    def c_ux(buf, tail_wait=False):
        ok, skip, end = a.newlabel("cux"), a.newlabel("cux"), a.newlabel("cux")
        a(f"""
        s_cmp_ge_u32 s68, 64
        s_cbranch_scc1 {skip}
        s_add_u32 s45, s68, 1
        s_mov_b64 exec, 255
        v_cmp_gt_u32 vcc, s45, v232
        s_mov_b64 exec, -1
        s_cbranch_vccz {ok}
        """)
        wait_all(a, 8, 243, sV, 45, 232)
        a.label(ok)
        a(f"""
        s_mul_i32 s{sUXR}, s68, {UX_STEP}
        s_lshl_b32 s40, s72, 11
        s_add_u32 s{sUXR}, s{sUXR}, s40
        s_add_u32 s{sUXR}, s{sUXR}, s73
        """)
        for hh in range(8):
            for pr in range(2):
                a(f"buffer_load_dwordx4 {ar(buf*64+pr*32+hh*4,4)}, v{vL16}, {WS}, s{sUXR} offen offset:{pr*1024} sc1")
            a(f"s_add_u32 s{sUXR}, s{sUXR}, 40960")
        if tail_wait:
            a("s_waitcnt vmcnt(16)")
            a(f"s_branch {end}")
        a.label(skip)
        if tail_wait:
            a("s_waitcnt vmcnt(0)")
        a.label(end)
        adv(68, 72)

    def c_burst(buf):
        c_block()
        c_offs()
        top = a.newlabel("cbl")
        a.label(top)
        for x in c_load_list(buf):
            a(x)
        c_flag_loads()
        a("s_waitcnt vmcnt(0)")
        vmax_chain(a, 3, range(PFB[buf], PFB[buf]+80))
        poll_fail(a, top, sleep=4)
        adv(60, 63)

    def c_compute(buf, LL):
        b = Asm()
        for r in range(32):
            b(f"v_mov_b32 v{CAC+r}, 0")
        b.nop(1)
        for q in range(5):
            for pr in range(2):
                for rg in range(4):
                    f = PFB[buf] + 20*rg + q*4
                    B = ar(buf*64+pr*32+q*8, 8) if q < 4 else ar(BMB[buf]+pr*8, 8)
                    b(f"v_smfmac_f32_16x16x64_bf16 {vr(CAC+(pr*4+rg)*4,4)}, {vr(f,4)}, {B}, v{vIDX}")
        b.nop(6)
        for rg in range(4):
            A, B = CAC + rg*4, CAC + (4+rg)*4
            for r in range(4):
                b(f"v_permlane32_swap_b32 v{A+r}, v{B+r}")
            for r in range(4):
                b(f"v_add_f32 v{A+r}, v{A+r}, v{B+r}")
            b(f"ds_write_b128 v{vWr}, {vr(A,4)} offset:{rg*4096}")
        b(f"""
        s_waitcnt lgkmcnt(0)
        s_barrier
        """)
        FT = 208
        for q in range(4):
            b(f"ds_read_b128 {vr(FT+4*q,4)}, v{vRd} offset:{q*1024}")
        b(f"""
        s_mul_i32 s74, s57, {32*1280}
        s_lshl_b32 s75, s58, 6
        s_add_u32 s74, s74, s75
        s_add_u32 s74, s74, 0x{WS_ATT:x}
        s_lshl_b32 s75, s57, 7
        s_add_u32 s75, s75, 0x{flag(FL_CC):x}
        s_waitcnt lgkmcnt(0)
        """)
        for r in range(4):
            b(f"v_add_f32 v{FT+r}, v{FT+r}, v{FT+4+r}")
            b(f"v_add_f32 v{FT+8+r}, v{FT+8+r}, v{FT+12+r}")
        for r in range(4):
            b(f"v_add_f32 v{FT+r}, v{FT+r}, v{FT+8+r}")
        b.nop(1)
        for r in range(4):
            b(f"v_mov_b32_dpp v{FT+8+r}, v{FT+r} quad_perm:[1,0,3,2] row_mask:0xf bank_mask:0xf")
        for r in range(4):
            b(f"v_cvt_pk_bf16_f32 v{FT+r}, v{FT+r}, v{FT+8+r}")
            b(f"v_min_u32 v{FT+r}, -2, v{FT+r}")
            b(f"buffer_store_dword v{FT+r}, v{vXS}, {WS}, s74 offen offset:{r*1280} sc1")
        LL = list(LL)
        acc = 0
        for ln in b.lines:
            t = ln.strip()
            a.lines.append(ln)
            if not t or t.startswith(";"):
                continue
            if t.startswith("v_smfmac"):
                acc += 16
            elif t.startswith("ds_") or t.startswith("s_waitcnt") or t.startswith("s_barrier"):
                acc += 24
            elif t.startswith("buffer_store"):
                acc = 0
            else:
                acc += 4
            if acc >= C_GAP and LL and not t.startswith("v_cvt_pk_bf16_f32 v2"):
                a(LL.pop(0))
                acc = 0
        for x in LL:
            a(x)

    c_ux(0)
    c_ux(1)
    c_burst(0)
    a.label("c_loop")
    for buf in range(2):
        stamp(a, 0)
        plain, join, nb = a.newlabel("cpl"), a.newlabel("cjn"), a.newlabel("cnb")
        c_needs()
        a(f"s_mov_b32 s{sPFC}, 0")
        c_test(plain)
        a(f"""
        s_cmp_ge_u32 s60, {SENT0}
        s_cbranch_scc1 {plain}
        s_mov_b32 s{sPFC}, 1
        """)
        c_offs()
        c_compute(buf, c_load_list(1 - buf))
        c_flag_loads()
        adv(60, 63)
        a(f"s_branch {join}")
        a.label(plain)
        c_compute(buf, [])
        a.label(join)
        stamp(a, 1)
        a(f"""
        s_waitcnt vmcnt(0)
        s_barrier
        s_cmp_lg_u32 s{sW}, 3
        s_cbranch_scc1 c_nf{buf}
        s_lshl_b32 s40, s57, 2
        s_add_u32 s40, s40, 0x{flag(FL_CN):x}
        v_mov_b32 v230, 1
        s_mov_b64 exec, 1
        buffer_atomic_add v230, off, {WS}, s40 sc0
        s_mov_b64 exec, -1
        c_nf{buf}:
        """)
        c_ux(buf, tail_wait=True)
        a(f"""
        s_cmp_lg_u32 s{sW}, 3
        s_cbranch_scc1 c_ng{buf}
        s_mov_b64 exec, 1
        v_cmp_eq_u32 vcc, 19, v230
        s_cbranch_vccz c_nh{buf}
        buffer_store_dword v231, off, {WS}, s75 sc1
        c_nh{buf}:
        s_mov_b64 exec, -1
        c_ng{buf}:
        """)
        adv(57, 58)
        stamp(a, 2)
        stamp_flush(a, 3, 1)
        a(f"""
        s_add_u32 s{sSTEP}, s{sSTEP}, 1
        s_cmp_ge_u32 s57, 64
        s_cbranch_scc1 r_end
        s_cmp_eq_u32 s{sPFC}, 1
        s_cbranch_scc1 {nb}
        """)
        c_burst(1 - buf)
        a.label(nb)
    a("s_branch c_loop")
    a.label("pre_boot")
    a(f"""
    v_mov_b32 v134, -1
    s_sub_u32 s40, s{sID}, 102
    s_lshl_b32 s40, s40, 21
    s_add_u32 s40, s40, 0x{WS_CRA + 0x1F0000:x}
    s_lshl_b32 s41, s{sW}, 14
    s_add_u32 s40, s40, s41
    s_mov_b32 s42, -1
    s_mov_b32 s43, -1
    s_mov_b64 exec, 1
    """)
    for k in range(3):
        for half in range(2):
            a(f"""
            s_add_u32 s41, s40, {half*8192 + (k%2)*4096 + k*1152}
            s_memtime s[44:45]
            s_waitcnt lgkmcnt(0)
            buffer_store_dword v134, off, {WS}, s41 sc1
            s_waitcnt vmcnt(0)
            buffer_load_dword v135, off, {WS}, s41 sc1
            s_waitcnt vmcnt(0)
            s_memtime s[46:47]
            s_waitcnt lgkmcnt(0)
            s_sub_u32 s46, s46, s44
            s_min_u32 s{42+half}, s{42+half}, s46
            """)
    a(f"""
    v_mov_b32 v136, s42
    v_mov_b32 v137, s43
    s_lshl_b32 s40, s{sW}, 3
    v_mov_b32 v135, s40
    ds_write_b64 v135, v[136:137]
    s_mov_b64 exec, -1
    s_waitcnt lgkmcnt(0)
    s_barrier
    v_mov_b32 v135, 0
    ds_read_b128 v[124:127], v135
    ds_read_b128 v[128:131], v135 offset:16
    s_waitcnt lgkmcnt(0)
    v_add3_u32 v124, v124, v126, v128
    v_add3_u32 v125, v125, v127, v129
    v_add_u32 v124, v124, v130
    v_add_u32 v125, v125, v131
    v_cmp_lt_u32 vcc, v125, v124
    v_mov_b32 v126, 1
    v_mov_b32 v127, 3
    v_cndmask_b32 v126, v126, v127, vcc
    {"v_mov_b32 v126, " + FORCEPOL if FORCEPOL else ""}
    s_sub_u32 s40, s{sID}, 102
    s_lshl_b32 s40, s40, 2
    s_barrier
    s_cmp_lg_u32 s{sW}, 0
    s_cbranch_scc1 boot_nrm0
    s_mov_b64 exec, 1
    buffer_store_dword v126, off, {DBG}, s40 offset:176 sc1
    s_mov_b64 exec, -1
    s_branch boot_nrm0
    """)
    from gen_boot import gen_boot
    gen_boot(a)
    from gen_f import gen_phase2
    gen_phase2(a)
    a.label("r_end")
    a("s_endpgm")
    return (L, 256, 256, 131072, kernel_desc(L, 512, 256))
```

```python
from gen_common import *
import os

P_SLEEP0 = int(os.environ.get("P_SLEEP0", "35"))
P_SLEEP1 = int(os.environ.get("P_SLEEP1", "46"))
U_SLEEPM = int(os.environ.get("U_SLEEPM", "14"))
U_SLEEPP = int(os.environ.get("U_SLEEPP", "12"))
STAMP = int(os.environ.get("STAMP", "0"))
L1FIRST = 0
FORCEPOL = os.environ.get("FORCEPOL", "")
U_SLEEPD = int(os.environ.get("U_SLEEPD", "22"))
DOOR = int(os.environ.get("DOOR", "1"))
C_GAP = int(os.environ.get("C_GAP", "56"))
C_UXTAIL = int(os.environ.get("C_UXTAIL", "16"))
V_SLEEP = int(os.environ.get("V_SLEEP", "14"))
VM_FILL = int(os.environ.get("VM_FILL", "3"))
PKADD = int(os.environ.get("PKADD", "1"))
PDELAY = int(os.environ.get("PDELAY", "0"))
TDEPTH = int(os.environ.get("TDEPTH", "2"))
PDEPTH = int(os.environ.get("PDEPTH", "2"))
CT0 = 20 * int(os.environ.get("CSEG0", "48"))
XMAP = int(os.environ.get("XMAP", "76540321"), 16)
WARM = int(os.environ.get("WARM", "1"))
NOTOK = int(os.environ.get("NOTOK", "0"))

WS, DBG, WQ, WK, XS = "s[8:11]", "s[12:15]", "s[16:19]", "s[20:23]", "s[24:27]"
sW, sID, sSTEP, sBUD = 3, 28, 29, 30
vLANE, vIDX = 2, 4
vL16, vL16b, vL16c = 5, 6, 7
vM8 = 187
sSA, sSB = 98, 99
MEMF = 16
ACC = 56
LDS_T = 0x14000
LDS_R = 0x15000
LDS_ROLE = 0x1F000


def wreg(t, ks, n=4):
    idx = (t * 20 + ks) * 4
    if idx < 256:
        return ar(idx, n)
    return vr(192 + idx - 256, n)


def widx(idx, n=4):
    return ar(idx, n) if idx < 256 else vr(192 + idx - 256, n)


def l16(off):
    return f"v{vL16 + off // 4096}", off % 4096


def poll_fail(a, retry_label, sleep=2):
    ok = a.newlabel("pok")
    a(f"""
    s_cbranch_vccz {ok}
    s_sub_u32 s{sBUD}, s{sBUD}, 1
    s_cmp_lt_i32 s{sBUD}, 0
    s_cbranch_scc1 {ok}
    s_sleep {sleep}
    s_branch {retry_label}
    """)
    a.label(ok)


def wait_flag(a, s_flagoff, s_need, s_seen, vt, sleep=8):
    top = a.newlabel("wf")
    done = a.newlabel("wfd")
    a.label(top)
    a(f"""
    s_cmp_ge_u32 s{s_seen}, s{s_need}
    s_cbranch_scc1 {done}
    buffer_load_dword v{vt}, off, {WS}, s{s_flagoff} sc1
    s_waitcnt vmcnt(0)
    v_readfirstlane_b32 s{s_seen}, v{vt}
    s_nop 3
    s_cmp_ge_u32 s{s_seen}, s{s_need}
    s_cbranch_scc1 {done}
    s_sub_u32 s{sBUD}, s{sBUD}, 1
    s_cmp_lt_i32 s{sBUD}, 0
    s_cbranch_scc1 {done}
    s_sleep {sleep}
    s_branch {top}
    """)
    a.label(done)


def vmax_chain(a, vt, regs):
    regs = list(regs)
    a(f"v_max3_u32 v{vt}, v{regs[0]}, v{regs[1]}, v{regs[2]}")
    k = 3
    while k < len(regs):
        if k + 1 < len(regs):
            a(f"v_max3_u32 v{vt}, v{vt}, v{regs[k]}, v{regs[k+1]}")
            k += 2
        else:
            a(f"v_max_u32 v{vt}, v{vt}, v{regs[k]}")
            k += 1
    a(f"v_cmp_eq_u32 vcc, -1, v{vt}")


def get_pol(a, vt):
    from gen_boot import dbg_wait_wg, DBG_INIT, DBG_POL
    dbg_wait_wg(a, [(DBG_INIT, 1), (DBG_POL, 1), (DBG_POL+4, 1)], vt)
    a(f"""
    buffer_load_dwordx2 v[184:185], off, {DBG}, 0 offset:{DBG_POL} sc1
    s_waitcnt vmcnt(0)
    v_readfirstlane_b32 s{sSA}, v184
    v_readfirstlane_b32 s{sSB}, v185
    s_nop 3
    s_and_b32 s{sSA}, s{sSA}, 2
    s_lshl_b32 s{sSA}, s{sSA}, 12
    s_and_b32 s{sSB}, s{sSB}, 2
    s_lshl_b32 s{sSB}, s{sSB}, 12
    v_add_u32 v{vM8}, 16384, v{vL16}
    """)


def mem_loads(a, s_memoff, flag="sc1", start=0):
    for kb in range(start, 10):
        r, o = l16(kb * 1024)
        if kb >= 8:
            r = f"v{vM8}"
        a(f"buffer_load_dwordx4 {vr(MEMF+4*kb,4)}, {r}, {WS}, s{s_memoff} offen offset:{o} {flag}")


DEFERRED = []
MODE2 = [False]


def flush_deferred(a):
    for f in DEFERRED:
        f()
    DEFERRED.clear()


def mem_proj(a, tiles, s_memoff, vmax, sleep=1, after_first=None):
    base = a.newlabel("mp")
    mem_loads(a, s_memoff, "" if L1FIRST else "sc1")
    for t in tiles:
        for r in range(4):
            a(f"v_mov_b32 v{ACC+4*t+r}, 0")

    def chk(kb):
        f = MEMF + 4 * kb
        return [f"s_waitcnt vmcnt({9-kb})",
                f"v_max3_u32 v{vmax}, v{f}, v{f+1}, v{f+2}",
                f"v_max_u32 v{vmax}, v{vmax}, v{f+3}\nv_cmp_eq_u32 vcc, -1, v{vmax}"]
    for x in chk(0):
        a(x)
    a(f"s_cbranch_vccnz {base}_r0")
    for kb in range(10):
        f = MEMF + 4 * kb
        a.label(f"{base}_c{kb}")
        if STAMP == 2 and kb in (0, 4, 9):
            a(f"s_memrealtime s[{ {0:86,4:88,9:90}[kb] }:{ {0:87,4:89,9:91}[kb] }]")
        if kb == 9 and after_first:
            after_first()
        nxt = chk(kb + 1) if kb < 9 else []
        for n, t in enumerate(tiles):
            a(f"v_smfmac_f32_16x16x64_bf16 {vr(ACC+4*t,4)}, {vr(f,4)}, {wreg(t,2*kb,8)}, v{vIDX}")
            if n < len(nxt):
                a(nxt[n])
        for x in nxt[len(tiles):]:
            a(x)
        if kb < 9:
            a(f"s_cbranch_vccnz {base}_r{kb+1}")

    def ool():
        for kb in range(10):
            a.label(f"{base}_r{kb}")
            a(f"""
            s_sub_u32 s{sBUD}, s{sBUD}, 1
            s_cmp_lt_i32 s{sBUD}, 0
            s_cbranch_scc1 {base}_c{kb}
            s_sleep {sleep}
            """)
            mem_loads(a, s_memoff, "sc1", kb)
            for x in chk(kb):
                a(x)
            a(f"s_cbranch_vccnz {base}_r{kb}")
            a(f"s_branch {base}_c{kb}")
    DEFERRED.append(ool)


LDS_M = 0x18000


def mem_setup(a):
    a(f"""
    s_lshl_b32 s40, s{sW}, 10
    v_add_u32 v176, s40, v{vL16}
    v_add_u32 v177, 4096, v176
    v_add_u32 v178, 16384, v176
    v_add_u32 v179, 0x{LDS_M:x}, v176
    v_add_u32 v175, 0x{LDS_M:x}, v{vL16}
    s_cmp_lt_u32 s{sW}, 2
    s_cbranch_scc1 {a.newlabel("ms")}_ok
    v_mov_b32 v178, 0x7ffffff0
    """)
    a.label(f"ms_{a.uid}_ok")


def mem_proj2(a, order, s_memoff, vmax, after_valid=None, fill=None):
    top = a.newlabel("mq")
    G = 160
    a.label(top)
    for k in range(3):
        a(f"buffer_load_dwordx4 {vr(G+4*k,4)}, v{176+k}, {WS}, s{s_memoff} offen sc1")
    for grp in order:
        for t in grp:
            for r in range(4):
                a(f"v_mov_b32 v{ACC+4*t+r}, 0")
    a("s_waitcnt vmcnt(2)")
    a(f"ds_write_b128 v179, {vr(G,4)}")
    a(f"v_max3_u32 v{vmax}, v{G}, v{G+1}, v{G+2}")
    a("s_waitcnt vmcnt(1)")
    a(f"ds_write_b128 v179, {vr(G+4,4)} offset:4096")
    a(f"v_max3_u32 v{vmax}, v{vmax}, v{G+3}, v{G+4}")
    a(f"v_max3_u32 v{vmax}, v{vmax}, v{G+5}, v{G+6}")
    a("s_waitcnt vmcnt(0)")
    a(f"ds_write_b128 v179, {vr(G+8,4)} offset:8192")
    a(f"v_max3_u32 v{vmax}, v{vmax}, v{G+7}, v{G+8}")
    a(f"v_max3_u32 v{vmax}, v{vmax}, v{G+9}, v{G+10}")
    a(f"v_max_u32 v{vmax}, v{vmax}, v{G+11}")
    a(f"v_cmp_eq_u32 vcc, -1, v{vmax}")
    poll_fail(a, top, sleep=1)
    if after_valid:
        after_valid()
    if STAMP == 2:
        a("s_memrealtime s[86:87]")
    join = a.newlabel("mj")
    labs = [a.newlabel("mw") for _ in range(4)]
    a(f"""
    s_cmp_ge_u32 s{sW}, 2
    s_cbranch_scc1 {labs[2]}
    s_cmp_eq_u32 s{sW}, 1
    s_cbranch_scc1 {labs[1]}
    """)

    def sm(t, kb, src):
        a(f"v_smfmac_f32_16x16x64_bf16 {vr(ACC+4*t,4)}, {vr(src,4)}, {wreg(t,2*kb,8)}, v{vIDX}")
    for w in range(4):
        a.label(labs[w])
        if w == 2:
            a(f"""
            s_cmp_eq_u32 s{sW}, 3
            s_cbranch_scc1 {labs[3]}
            """)
        own = [w, w + 4] + ([8 + w] if w < 2 else [])
        oth = [kb for kb in range(10) if kb not in own]
        a("s_waitcnt lgkmcnt(0)")
        a("s_barrier")
        if STAMP == 2:
            a("s_memrealtime s[88:89]")
        for kb in oth:
            a(f"ds_read_b128 {vr(MEMF+4*kb,4)}, v175 offset:{kb*1024}")
        for grp in order:
            for k, kb in enumerate(own):
                for t in grp:
                    sm(t, kb, G + 4*k)
        for gi, grp in enumerate(order):
            F = list(fill.get(gi, [])) if fill else []
            n = 0
            tot = len(oth) * len(grp)
            for k, kb in enumerate(oth):
                if gi == 0:
                    a(f"s_waitcnt lgkmcnt({len(oth)-1-k})")
                for t in grp:
                    sm(t, kb, MEMF + 4*kb)
                    n += 1
                    if F and n == 2:
                        a.nop(6)
                    if n >= 2 and F:
                        a(F.pop(0))
            for x in F:
                a(x)
        if w < 3:
            a(f"s_branch {join}")
    a.label(join)
    if STAMP == 2:
        a("s_memrealtime s[90:91]")


def combine_list(t0, t1, d01, d23):
    A, B = ACC + 4 * t0, ACC + 4 * t1
    L = [f"v_permlane32_swap_b32 v{A+r}, v{B+r}" for r in range(4)]
    L += [f"v_pk_add_f32 v[{A+r}:{A+r+1}], v[{A+r}:{A+r+1}], v[{B+r}:{B+r+1}]" for r in (0, 2)]
    L += [f"v_cvt_pk_bf16_f32 v{d01}, v{A}, v{A+1}", f"v_cvt_pk_bf16_f32 v{d23}, v{A+2}, v{A+3}"]
    return L


def combine_pair(a, t0, t1, d01, d23):
    A, B = ACC + 4 * t0, ACC + 4 * t1
    for r in range(4):
        a(f"v_permlane32_swap_b32 v{A+r}, v{B+r}")
    if PKADD:
        for r in (0, 2):
            a(f"v_pk_add_f32 v[{A+r}:{A+r+1}], v[{A+r}:{A+r+1}], v[{B+r}:{B+r+1}]")
    else:
        for r in range(4):
            a(f"v_add_f32 v{A+r}, v{A+r}, v{B+r}")
    a(f"v_cvt_pk_bf16_f32 v{d01}, v{A}, v{A+1}")
    a(f"v_cvt_pk_bf16_f32 v{d23}, v{A+2}, v{A+3}")


def load_wqk(a, mats=(WQ, WK), depth=3):
    a.comment("---- load Wq/Wk fragments")
    a(f"""
    v_lshrrev_b32 v10, 4, v{vLANE}          ; r = lane/16
    v_and_b32 v11, 15, v{vLANE}             ; chunk'
    v_and_b32 v12, 1, v10
    s_lshl_b32 s40, s{sW}, 1
    v_or_b32 v12, s40, v12                  ; f = (r&1)|(w<<1)
    v_lshlrev_b32 v12, 1, v12
    v_xor_b32 v11, v11, v12
    v_lshlrev_b32 v11, 4, v11
    s_lshl_b32 s40, s{sW}, 2
    v_add_u32 v12, s40, v10                 ; 4w+r
    v_lshl_add_u32 v11, v12, 13, v11
    s_lshl_b32 s41, s{sID}, 8
    s_lshl_b32 s42, s{sW}, 10
    v_bfe_u32 v12, v{vLANE}, 2, 2           ; r
    v_and_b32 v13, 3, v{vLANE}              ; c
    v_lshrrev_b32 v14, 1, v10               ; g>>1
    v_lshlrev_b32 v14, 4, v14               ; 16*(g>>1)
    v_and_b32 v15, 1, v10                   ; g&1
    v_lshl_add_u32 v14, v15, 2, v14         ; +4*(g&1)
    v_and_b32 v16, 1, v12
    v_add_u32 v14, v14, v16                 ; +(r&1)
    v_lshrrev_b32 v17, 1, v12               ; r>>1
    v_lshl_add_u32 v14, v17, 3, v14         ; +8*(r>>1)
    v_lshlrev_b32 v14, 8, v14
    v_lshl_add_u32 v14, v13, 3, v14         ; + c*8
    v_lshl_or_b32 v16, v15, 1, v16
    v_lshl_or_b32 v16, v17, 2, v16          ; f
    v_lshl_or_b32 v14, v16, 5, v14
    s_lshl_b32 s40, s{sW}, 6                ; (2w)<<5
    v_xor_b32 v18, s40, v14                 ; tile 2w
    v_xor_b32 v19, 32, v18                  ; tile 2w+1
    v_add_u32 v20, 0x10000, v18
    v_add_u32 v21, 0x10000, v19
    """)

    nm = len(mats)

    def dma(cn):
        buf = cn % 4
        for mat, sd in enumerate(mats):
            for q in range(4):
                a(f"""
                s_add_u32 s43, s42, {buf*32768 + mat*16384 + q*4096}
                s_mov_b32 m0, s43
                s_add_u32 s44, s41, {(cn*64+16*q)*8192}
                buffer_load_dwordx4 v11, {sd}, s44 offen lds
                """)
    for cn in range(depth):
        dma(cn)
    for cn in range(10):
        later = min(depth - 1, 9 - cn)
        a(f"s_waitcnt vmcnt({4*nm*later})")
        a("s_barrier")
        if cn + depth < 10:
            dma(cn + depth)
        buf = cn % 4
        for mat in range(nm):
            for tt in range(2):
                for ksl in range(2):
                    for j in range(2):
                        idx = ((mat*2+tt) * 20 + cn*2 + ksl) * 4 + 2*j
                        av = 18 + tt + (2 if buf >= 2 else 0)
                        a(f"ds_read_b64_tr_b16 {widx(idx,2)}, v{av} offset:{(buf&1)*32768 + mat*16384 + ksl*8192 + j*512}")
            a("s_waitcnt lgkmcnt(0)")
    a("s_barrier")


def load_wo(a, sd):
    a.comment("---- load Wo fragments")
    for q in range(5):
        a(f"""
        v_add_u32 v10, {64*q}, v{vLANE}
        v_mul_u32_u24 v11, 3277, v10
        v_lshrrev_b32 v11, 16, v11            ; row = q/20
        v_mul_u32_u24 v12, 20, v11
        v_sub_u32 v10, v10, v12               ; chunk
        v_mul_u32_u24 v11, 1280, v11
        v_lshl_add_u32 v{16+q}, v10, 4, v11
        """)
    a(f"""
    s_mul_i32 s41, s{sID}, 163840
    s_mul_i32 s40, s{sW}, 320
    s_add_u32 s41, s41, s40                 ; soffset
    s_mul_i32 s42, s{sW}, 20480
    v_lshrrev_b32 v10, 4, v{vLANE}          ; g
    v_bfe_u32 v11, v{vLANE}, 2, 2           ; r
    v_lshl_add_u32 v10, v10, 2, v11
    v_mul_u32_u24 v10, 320, v10
    v_and_b32 v11, 3, v{vLANE}
    v_lshl_add_u32 v10, v11, 3, v10
    v_add_u32 v21, s42, v10
    """)
    for half in range(2):
        a("s_mov_b32 s43, s42")
        for blk in range(4):
            for q in range(5):
                a(f"""
                s_mov_b32 m0, s43
                s_add_u32 s43, s43, 1024
                buffer_load_dwordx4 v{16+q}, {sd}, s41 offen lds
                """)
            a(f"s_add_u32 s41, s41, {16*1280}")
        a("s_waitcnt vmcnt(0)")
        for jt in range(10):
            for kl in range(2):
                for j in range(2):
                    idx = 160 + (jt*4 + half*2 + kl) * 4 + 2*j
                    a(f"ds_read_b64_tr_b16 {widx(idx,2)}, v21 offset:{(32*kl+16*j)*320 + jt*32}")
            if jt % 2 == 1:
                a("s_waitcnt lgkmcnt(0)")
    a("s_barrier")


def load_wvo(a):
    a.comment("---- load Wvo fragments (linear)")
    a(f"""
    s_lshl_b32 s40, s{sID}, 2
    s_add_u32 s40, s40, s{sW}
    s_mul_i32 s40, s40, 81920
    s_add_u32 s40, s40, 0x{WS_WVO:x}
    """)
    for f in range(80):
        a(f"buffer_load_dwordx4 {wreg(f//20, f%20)}, v{vL16}, {WS}, s40 offen offset:{(f%4)*1024}")
        if f % 4 == 3:
            a("s_add_u32 s40, s40, 4096")
        if f % 40 == 39:
            a("s_waitcnt vmcnt(20)" if f < 79 else "s_waitcnt vmcnt(0)")


vHG = 15


def dma_h_setup(a):
    a(f"""
    v_and_b32 v10, 15, v{vLANE}
    v_mul_u32_u24 v10, 1280, v10
    v_lshrrev_b32 v{vHG}, 4, v{vLANE}
    v_lshl_add_u32 v{vHG}, v{vHG}, 4, v10
    """)


def dma_h_init(a, s_hoff, s_buf):
    a(f"""
    s_mul_i32 s43, s{sW}, 10240
    s_add_u32 s43, s43, s{s_buf}
    s_lshr_b32 s44, s{sW}, 1
    s_mul_i32 s44, s44, 20480
    s_and_b32 s45, s{sW}, 1
    s_mul_i32 s45, s45, 640
    s_add_u32 s44, s44, s45
    s_add_u32 s44, s44, s{s_hoff}
    """)


def dma_h_one(a):
    a(f"""
    s_mov_b32 m0, s43
    s_add_u32 s43, s43, 1024
    buffer_load_dwordx4 v{vHG}, {WS}, s44 offen sc1 lds
    s_add_u32 s44, s44, 64
    """)


def dmal_init(a, s_hoff, s_buf):
    a(f"""
    s_mul_i32 s43, s{sW}, 10240
    s_add_u32 s44, s43, s{s_hoff}
    s_add_u32 s43, s43, s{s_buf}
    """)


def dmal_one(a):
    a(f"""
    s_mov_b32 m0, s43
    s_add_u32 s43, s43, 1024
    buffer_load_dwordx4 v{vL16}, {WS}, s44 offen sc1 lds
    s_add_u32 s44, s44, 1024
    """)


def dma_h(a, s_hoff, s_buf):
    dma_h_init(a, s_hoff, s_buf)
    for k in range(10):
        dma_h_one(a)


HF = 104
TACC = 72


def dense_proj(a, vH, transposed, hook=None, tiles=(0, 1, 2, 3)):
    def rd(ks):
        st = HF + (ks % 3) * 8
        for mt in range(2):
            a(f"ds_read_b128 {vr(st+4*mt,4)}, v{vH} offset:{mt*20480+ks*1024}")
    rd(0)
    rd(1)
    for ks in range(20):
        if ks + 2 < 20:
            rd(ks + 2)
            a("s_waitcnt lgkmcnt(4)")
        elif ks + 1 < 20:
            a("s_waitcnt lgkmcnt(2)")
        else:
            a("s_waitcnt lgkmcnt(0)")
        st = HF + (ks % 3) * 8
        for n, t in enumerate(tiles):
            for mt in range(2):
                acc = vr(TACC + (t*2+mt)*4, 4)
                c = "0" if ks == 0 else acc
                if transposed:
                    a(f"v_mfma_f32_16x16x32_bf16 {acc}, {wreg(t,ks)}, {vr(st+4*mt,4)}, {c}")
                else:
                    a(f"v_mfma_f32_16x16x32_bf16 {acc}, {vr(st+4*mt,4)}, {wreg(t,ks)}, {c}")
            if n == len(tiles) // 2 - 1 and hook:
                hook(ks)


def round_scale(a, xs, tmp, s_scale):
    def rnd():
        for k in range(0, len(xs), 2):
            x0 = xs[k]
            x1 = xs[k+1] if k + 1 < len(xs) else xs[k]
            a(f"v_cvt_pk_bf16_f32 v{tmp+k//2}, v{x0}, v{x1}")
        for k in range(0, len(xs), 2):
            a(f"v_lshlrev_b32 v{xs[k]}, 16, v{tmp+k//2}")
            if k + 1 < len(xs):
                a(f"v_and_b32 v{xs[k+1]}, 0xffff0000, v{tmp+k//2}")
    rnd()
    for x in xs:
        a(f"v_mul_f32 v{x}, s{s_scale}, v{x}")
    rnd()


def xlane(a, op, v, t, with8):
    if with8:
        a.nop(2)
        a(f"{op}_dpp v{v}, v{v}, v{v} row_ror:8 row_mask:0xf bank_mask:0xf")
    for sw in ("v_permlane16_swap_b32", "v_permlane32_swap_b32"):
        a(f"v_mov_b32 v{t}, v{v}")
        a.nop(2)
        a(f"{sw} v{v}, v{t}")
        a(f"{op} v{v}, v{v}, v{t}")


def softmax(a, xs, vm, vt, s_log2e, with8):
    a(f"v_max3_f32 v{vm}, v{xs[0]}, v{xs[1]}, v{xs[2]}")
    k = 3
    while k < len(xs):
        if k + 1 < len(xs):
            a(f"v_max3_f32 v{vm}, v{vm}, v{xs[k]}, v{xs[k+1]}")
            k += 2
        else:
            a(f"v_max_f32 v{vm}, v{vm}, v{xs[k]}")
            k += 1
    xlane(a, "v_max_f32", vm, vt, with8)
    for x in xs:
        a(f"v_sub_f32 v{x}, v{x}, v{vm}")
    for x in xs:
        a(f"v_mul_f32 v{x}, s{s_log2e}, v{x}")
    for x in xs:
        a(f"v_exp_f32 v{x}, v{x}")
    a(f"v_add_f32 v{vm}, v{xs[0]}, v{xs[1]}")
    for x in xs[2:]:
        a(f"v_add_f32 v{vm}, v{vm}, v{x}")
    xlane(a, "v_add_f32", vm, vt, with8)
    a(f"v_rcp_f32 v{vm}, v{vm}")
    a.nop(1)
    for x in xs:
        a(f"v_mul_f32 v{x}, v{x}, v{vm}")


def setup_qk_lds_addrs(a, vW, vR):
    a(f"""
    v_and_b32 v10, 15, v{vLANE}             ; n
    v_lshrrev_b32 v11, 4, v{vLANE}          ; g
    v_lshrrev_b32 v12, 1, v11
    v_lshl_add_u32 v10, v12, 4, v10         ; 16*(g>>1)+n
    s_lshl_b32 s40, s{sW}, 5
    v_add_u32 v10, s40, v10                 ; +32w
    v_lshlrev_b32 v10, 4, v10
    v_and_b32 v12, 1, v11
    v_lshl_add_u32 v10, v12, 3, v10
    v_add_u32 v{vW}, 0x{LDS_T:x}, v10
    v_bfe_u32 v12, v{vLANE}, 2, 2           ; r
    v_lshl_add_u32 v12, v11, 2, v12         ; 4g+r
    v_lshlrev_b32 v12, 4, v12
    v_and_b32 v13, 1, v{vLANE}
    v_lshl_add_u32 v12, v13, 3, v12
    v_add_u32 v{vR}, 0x{LDS_T:x}, v12
    """)


def setup_p_load_addrs(a, vA, vB, vM, wstride=8*640, hstride=10240):
    a(f"""
    v_bfe_u32 v10, v{vLANE}, 3, 1           ; rho
    v_and_b32 v11, 7, v{vLANE}              ; i
    v_lshrrev_b32 v12, 4, v{vLANE}          ; gA
    v_lshrrev_b32 v13, 1, v12               ; gA>>1
    v_and_b32 v14, 1, v12                   ; gA&1
    s_mul_i32 s40, s{sW}, {wstride}
    v_mul_u32_u24 v15, 640, v10
    v_add_u32 v15, s40, v15
    v_lshl_add_u32 v15, v13, 8, v15
    v_lshl_add_u32 v15, v11, 5, v15
    v_lshl_add_u32 v{vA}, v14, 4, v15
    v_lshl_add_u32 v15, v13, 2, v14
    v_mul_u32_u24 v15, 640, v15
    v_add_u32 v15, s40, v15
    v_lshl_add_u32 v15, v10, 6, v15
    v_lshl_add_u32 v15, v11, 3, v15
    v_add_u32 v{vB}, 512, v15
    s_mul_i32 s40, s{sW}, {8*hstride}
    v_mul_u32_u24 v15, {hstride}, v13
    v_add_u32 v15, s40, v15
    v_lshl_add_u32 v15, v14, 7, v15
    v_and_b32 v11, 15, v{vLANE}
    v_lshl_add_u32 v{vM}, v11, 3, v15
    """)


def p_loads(a, PF, vA, vB, s_off):
    for blk in range(2):
        for pi in range(2):
            a(f"buffer_load_dwordx4 {vr(PF+(blk*2+pi)*4,4)}, v{vA}, {WS}, s{s_off} offen offset:{(4*blk+pi)*640} sc1")
    for pi in range(2):
        a(f"buffer_load_dwordx2 {vr(PF+16+2*pi,2)}, v{vB}, {WS}, s{s_off} offen offset:{pi*640} sc1")


def p_combine(a, PF, BX, BM, CA, vmax):
    for blk in range(2):
        for pi in range(2):
            f = PF + (blk*2+pi)*4
            a(f"v_smfmac_f32_16x16x64_bf16 {vr(CA+4*pi,4)}, {vr(f,4)}, {vr(BX+8*blk,8)}, v{vIDX}")
            if vmax is not None:
                a(f"v_max3_u32 v{vmax}, v{vmax}, v{f}, v{f+1}")
                a(f"v_max3_u32 v{vmax}, v{vmax}, v{f+2}, v{f+3}")
    a.nop(2 if vmax is not None else 6)
    for pi in range(2):
        f = PF + 16 + 2*pi
        a(f"v_smfmac_f32_16x16x32_bf16 {vr(CA+4*pi,4)}, {vr(f,2)}, {vr(BM,4)}, v{vIDX}")
        if vmax is not None:
            a(f"v_max3_u32 v{vmax}, v{vmax}, v{f}, v{f+1}")


def setup_red_addrs(a, vWr, vRd):
    a(f"""
    v_and_b32 v10, 15, v{vLANE}             ; n
    v_lshrrev_b32 v11, 4, v{vLANE}          ; g
    v_and_b32 v12, 1, v11
    v_lshlrev_b32 v12, 10, v12              ; 4*(g&1)*256
    v_lshl_add_u32 v12, v10, 5, v12         ; + n*32
    v_lshrrev_b32 v13, 1, v11
    v_lshl_add_u32 v12, v13, 2, v12         ; + (g>>1)*4
    s_lshl_b32 s40, s{sW}, 3
    s_add_u32 s40, s40, 0x{LDS_R:x}
    v_add_u32 v12, s40, v12
    v_mov_b32 v13, 0x{LDS_R+0x2800:x}
    v_cmp_gt_u32 vcc, 8, v10
    s_nop 1
    v_cndmask_b32 v{vWr}, v13, v12, vcc
    v_lshlrev_b32 v12, 5, v{vLANE}
    v_add_u32 v{vRd}, 0x{LDS_R:x}, v12
    """)


def red_write(a, CA, vWr, off):
    for r in range(4):
        a(f"v_add_f32_dpp v{CA+r}, v{CA+4+r}, v{CA+r} row_ror:8 row_mask:0xf bank_mask:0xf")
    for r in range(4):
        a(f"ds_write_b32 v{vWr}, v{CA+r} offset:{off + r*256}")


LB = 140
L_SRC, L_DST, L_M, L_V, L_T, L_T2 = LB, LB+1, LB+2, LB+3, LB+4, LB+5
L_RAW, L_OUT, L_X, L_SC, L_SH = LB+8, LB+16, LB+24, LB+40, LB+56


def ln_wave_sum(a, v):
    for ctrl in ["quad_perm:[1,0,3,2]", "quad_perm:[2,3,0,1]", "row_half_mirror", "row_mirror"]:
        a.nop(2)
        a(f"v_add_f32_dpp v{v}, v{v}, v{v} {ctrl} row_mask:0xf bank_mask:0xf")
    a.nop(1)
    a(f"v_readlane_b32 s72, v{v}, 0")
    a(f"v_readlane_b32 s73, v{v}, 16")
    a(f"v_readlane_b32 s74, v{v}, 32")
    a.nop(2)
    a(f"v_mov_b32 v{v}, s72")
    a(f"v_add_f32 v{v}, s73, v{v}")
    a(f"v_add_f32 v{v}, s74, v{v}")


def bf16r(a, v):
    a(f"v_cvt_pk_bf16_f32 v{v}, v{v}, v{v}")
    a(f"v_and_b32 v{v}, 0xffff0000, v{v}")


def ln_setup(a, shift_idx, scale_idx, perm):
    a(f"""
    v_cmp_gt_u32 vcc, 40, v{vLANE}
    v_mov_b32 v{L_T}, 0x7ffffff0
    v_lshlrev_b32 v{L_DST}, 4, v{vLANE}
    """)
    if perm:
        a(f"""
        v_lshrrev_b32 v{L_SRC}, 1, v{vLANE}
        v_lshlrev_b32 v{L_SRC}, 5, v{L_SRC}
        v_and_b32 v{L_T2}, 1, v{vLANE}
        v_lshl_add_u32 v{L_SRC}, v{L_T2}, 3, v{L_SRC}
        """)
    else:
        a(f"v_mov_b32 v{L_SRC}, v{L_DST}")
    a(f"""
    v_lshlrev_b32 v{L_T2}, 1, v{L_SRC}
    v_cndmask_b32 v{L_SRC}, v{L_T}, v{L_SRC}, vcc
    v_cndmask_b32 v{L_T2}, v{L_T}, v{L_T2}, vcc
    v_cndmask_b32 v{L_DST}, v{L_T}, v{L_DST}, vcc
    s_mov_b64 s[76:77], vcc
    s_mov_b32 s72, {WS_MOD + scale_idx*2560}
    s_mov_b32 s73, {WS_MOD + shift_idx*2560}
    """)
    for dst, so in ((L_SC, 72), (L_SH, 73)):
        for h in range(2):
            if perm:
                a(f"buffer_load_dwordx2 {vr(dst+8*h,2)}, v{L_T2}, {WS}, s{so} offen offset:{h*1280}")
                a(f"buffer_load_dwordx2 {vr(dst+8*h+4,2)}, v{L_T2}, {WS}, s{so} offen offset:{h*1280+8}")
                a(f"buffer_load_dwordx2 {vr(dst+8*h+2,2)}, v{L_T2}, {WS}, s{so} offen offset:{h*1280+32}")
                a(f"buffer_load_dwordx2 {vr(dst+8*h+6,2)}, v{L_T2}, {WS}, s{so} offen offset:{h*1280+40}")
            else:
                a(f"buffer_load_dwordx4 {vr(dst+8*h,4)}, v{L_T2}, {WS}, s{so} offen offset:{h*1280} sc1")
                a(f"buffer_load_dwordx4 {vr(dst+8*h+4,4)}, v{L_T2}, {WS}, s{so} offen offset:{h*1280+16} sc1")
    a("s_waitcnt vmcnt(0)")
    for j in range(8):
        a(f"v_add_f32 v{L_SC+2*j}, 1.0, v{L_SC+2*j}")
        a(f"v_add_f32 v{L_SC+2*j+1}, 1.0, v{L_SC+2*j+1}")
        a(f"v_cvt_pk_bf16_f32 v{L_T}, v{L_SC+2*j}, v{L_SC+2*j+1}")
        a(f"v_lshlrev_b32 v{L_SC+2*j}, 16, v{L_T}")
        a(f"v_and_b32 v{L_SC+2*j+1}, 0xffff0000, v{L_T}")


def ln_load(a, srd_, s_off, fl, perm, raw=L_RAW, extra=0):
    if perm:
        for h in range(2):
            a(f"buffer_load_dwordx2 {vr(raw+4*h,2)}, v{L_SRC}, {srd_}, s{s_off} offen offset:{extra+h*640} {fl}")
            a(f"buffer_load_dwordx2 {vr(raw+4*h+2,2)}, v{L_SRC}, {srd_}, s{s_off} offen offset:{extra+h*640+16} {fl}")
        return 4
    for h in range(2):
        a(f"buffer_load_dwordx4 {vr(raw+4*h,4)}, v{L_SRC}, {srd_}, s{s_off} offen offset:{extra+h*640} {fl}")
    return 2


def ln_unpack(a, perm, raw=L_RAW):
    pos = [0, 2, 1, 3] if perm else [0, 1, 2, 3]
    for h in range(2):
        for j in range(4):
            d = 4*h + pos[j]
            a(f"v_lshlrev_b32 v{L_X+2*d}, 16, v{raw+4*h+j}")
            a(f"v_and_b32 v{L_X+2*d+1}, 0xffff0000, v{raw+4*h+j}")


def ln_compute_store(a, s_dst, extra=0, out=L_OUT):
    X = L_X
    a(f"v_add_f32 v{L_M}, v{X}, v{X+1}")
    a(f"v_add_f32 v{L_T}, v{X+2}, v{X+3}")
    for j in range(4, 16, 2):
        a(f"v_add_f32 v{L_M}, v{L_M}, v{X+j}")
        a(f"v_add_f32 v{L_T}, v{L_T}, v{X+j+1}")
    a(f"v_add_f32 v{L_M}, v{L_M}, v{L_T}")
    ln_wave_sum(a, L_M)
    a(f"v_mul_f32 v{L_M}, 0x3acccccd, v{L_M}")
    a(f"v_sub_f32 v{L_T}, v{X}, v{L_M}")
    a(f"v_mul_f32 v{L_V}, v{L_T}, v{L_T}")
    for j in range(1, 16):
        t = L_T if j % 2 == 0 else L_T2
        a(f"v_sub_f32 v{t}, v{X+j}, v{L_M}")
        a(f"v_fmac_f32 v{L_V}, v{t}, v{t}")
    a(f"v_cndmask_b32 v{L_V}, 0, v{L_V}, s[76:77]")
    ln_wave_sum(a, L_V)
    a(f"v_mul_f32 v{L_V}, 0x3acccccd, v{L_V}")
    bf16r(a, L_V)
    a(f"v_add_f32 v{L_V}, 0x3727c5ac, v{L_V}")
    bf16r(a, L_V)
    a(f"v_sqrt_f32 v{L_V}, v{L_V}")
    a.nop(1)
    bf16r(a, L_V)
    a(f"v_rcp_f32 v{L_V}, v{L_V}")
    bf16r(a, L_M)
    for j in range(8):
        x0, x1 = X + 2*j, X + 2*j + 1
        a(f"""
        v_sub_f32 v{x0}, v{x0}, v{L_M}
        v_sub_f32 v{x1}, v{x1}, v{L_M}
        v_cvt_pk_bf16_f32 v{L_T}, v{x0}, v{x1}
        v_lshlrev_b32 v{x0}, 16, v{L_T}
        v_and_b32 v{x1}, 0xffff0000, v{L_T}
        v_mul_f32 v{x0}, v{x0}, v{L_V}
        v_mul_f32 v{x1}, v{x1}, v{L_V}
        v_cvt_pk_bf16_f32 v{L_T}, v{x0}, v{x1}
        v_lshlrev_b32 v{x0}, 16, v{L_T}
        v_and_b32 v{x1}, 0xffff0000, v{L_T}
        v_mul_f32 v{x0}, v{x0}, v{L_SC+2*j}
        v_mul_f32 v{x1}, v{x1}, v{L_SC+2*j+1}
        v_cvt_pk_bf16_f32 v{L_T}, v{x0}, v{x1}
        v_lshlrev_b32 v{x0}, 16, v{L_T}
        v_and_b32 v{x1}, 0xffff0000, v{L_T}
        v_add_f32 v{x0}, v{x0}, v{L_SH+2*j}
        v_add_f32 v{x1}, v{x1}, v{L_SH+2*j+1}
        v_cvt_pk_bf16_f32 v{out+j}, v{x0}, v{x1}
        v_min_u32 v{out+j}, -2, v{out+j}
        """)
    a(f"buffer_store_dwordx4 {vr(out,4)}, v{L_DST}, {WS}, s{s_dst} offen offset:{extra} sc1")
    a(f"buffer_store_dwordx4 {vr(out+4,4)}, v{L_DST}, {WS}, s{s_dst} offen offset:{extra+640} sc1")


def wait_all(a, nl, vaddr, s_off, s_need, vt, ndw=1, sleep=4):
    top, done = a.newlabel("wa"), a.newlabel("wad")
    a.label(top)
    op = {1: "dword", 4: "dwordx4"}[ndw]
    a(f"""
    s_mov_b32 exec_lo, 0x{(1 << nl) - 1:x}
    s_mov_b32 exec_hi, 0
    buffer_load_{op} {vr(vt, ndw)}, v{vaddr}, {WS}, s{s_off} offen sc1
    s_waitcnt vmcnt(0)
    """)
    if ndw == 4:
        a(f"v_min3_u32 v{vt}, v{vt}, v{vt+1}, v{vt+2}")
        a(f"v_min_u32 v{vt}, v{vt}, v{vt+3}")
    a(f"""
    v_cmp_gt_u32 vcc, s{s_need}, v{vt}
    s_mov_b64 exec, -1
    s_cbranch_vccz {done}
    s_sub_u32 s{sBUD}, s{sBUD}, 1
    s_cmp_lt_i32 s{sBUD}, 0
    s_cbranch_scc1 {done}
    s_sleep {sleep}
    s_branch {top}
    """)
    a.label(done)


WS_TRACE = 0x0F000000


def stamp(a, slot):
    if not STAMP:
        return
    if STAMP == 2 and MODE2[0] and slot in (3, 4):
        slot = 6
    if STAMP == 2 and MODE2[0] and slot == 0:
        a("s_memtime s[80:81]")
        return
    a(f"s_memrealtime s[{80+2*slot}:{81+2*slot}]")


def stamp_flush(a, n, vt):
    if not STAMP:
        return
    if STAMP == 2 and MODE2[0]:
        n = 7
    skip = a.newlabel("stf")
    a(f"""
    s_cmp_lg_u32 s{sW}, 0
    s_cbranch_scc1 {skip}
    s_waitcnt lgkmcnt(0)
    s_lshl_b32 s96, s{sSTEP}, 5
    s_add_u32 s96, s96, s97
    s_mov_b64 exec, 1
    """)
    for k in range(n):
        a(f"v_mov_b32 v{vt}, s{80+2*k}")
        a(f"buffer_store_dword v{vt}, off, {WS}, s96 offset:{4*k}")
        a.nop(2)
    a(f"v_mov_b32 v{vt}, s{sBUD}")
    a(f"buffer_store_dword v{vt}, off, {WS}, s96 offset:28")
    a("s_mov_b64 exec, -1")
    a.label(skip)


def gen_r(a):
    L = NAME + "_kernel"
    kernel_header(a, L)
    a(f"""
    s_cmp_ge_u32 s2, 256
    s_cbranch_scc1 r_end
    s_load_dwordx2 s[4:5], s[0:1], {KA_WS}
    s_load_dwordx2 s[6:7], s[0:1], {KA_DBG}
    s_load_dwordx4 s[32:35], s[0:1], {KA_WQ}
    s_load_dwordx2 s[36:37], s[0:1], {KA_X}
    v_lshrrev_b32 v1, 6, v0
    v_and_b32 v{vLANE}, 63, v0
    s_waitcnt lgkmcnt(0)
    """)
    srd(a, 8, 4, WS_SIZE)
    srd(a, 12, 6, 256)
    srd(a, 16, 32, D * H * E * 2)
    srd(a, 20, 34, D * H * E * 2)
    srd(a, 24, 36, S * D * 2)
    a(f"""
    v_readfirstlane_b32 s{sW}, v1
    v_lshlrev_b32 v{vL16}, 4, v{vLANE}
    v_add_u32 v{vL16b}, 4096, v{vL16}
    v_add_u32 v{vL16c}, 8192, v{vL16}
    v_mov_b32 v{vIDX}, 0x4444
    v_mov_b32 v10, 0xeeee
    v_and_b32 v11, 8, v{vLANE}
    v_cmp_ne_u32 vcc, 0, v11
    s_mov_b32 s{sBUD}, 200000
    v_mov_b32 v9, 0x{LDS_ROLE:x}
    v_cndmask_b32 v{vIDX}, v{vIDX}, v10, vcc
    s_cmp_lg_u32 s{sW}, 0
    s_cbranch_scc1 r_warm
    s_getreg_b32 s40, hwreg(HW_REG_XCC_ID)
    s_and_b32 s40, s40, 7
    s_mov_b64 exec, 1
    s_lshl_b32 s43, s40, 2
    s_lshr_b32 s43, 0x{XMAP:x}, s43
    s_and_b32 s43, s43, 7
    s_mov_b32 s48, 0
    """)
    a.label("r_try")
    a(f"""
    s_lshr_b32 s45, s43, 1
    s_lshl_b32 s45, s45, 2
    s_and_b32 s44, s43, 1
    s_lshl_b32 s44, s44, 7
    s_add_u32 s45, s45, s44
    v_mov_b32 v10, 1
    buffer_atomic_add v10, off, {DBG}, s45 sc0
    s_waitcnt vmcnt(0)
    v_readfirstlane_b32 s41, v10
    s_nop 3
    s_cmp_lt_u32 s41, 32
    s_cbranch_scc1 r_got
    s_add_u32 s48, s48, 1
    s_sub_u32 s43, s48, 1
    s_mov_b32 s42, 999
    s_cmp_ge_u32 s43, 8
    s_cbranch_scc1 r_role_done
    s_branch r_try
    """)
    a.label("r_got")
    a(f"""
    s_lshl_b32 s42, s43, 5
    s_add_u32 s42, s42, s41                 ; P: t, VM: 32+t
    s_cmp_lt_u32 s43, 2
    s_cbranch_scc1 r_role_done
    s_cmp_ge_u32 s43, 4
    s_cbranch_scc1 r_got4
    s_sub_u32 s43, s43, 2                   ; q = 0,1
    s_mul_i32 s44, s43, 10
    s_add_u32 s42, s41, s44
    s_add_u32 s42, s42, 239                 ; F2: 239 + 10q + t
    s_cmp_lt_u32 s41, 10
    s_cbranch_scc1 r_role_done
    s_mul_i32 s44, s43, 20
    s_add_u32 s42, s41, s44
    s_add_u32 s42, s42, 54                  ; U: 64 + 20q + (t-10)
    s_cmp_lt_u32 s41, 30
    s_cbranch_scc1 r_role_done
    s_lshl_b32 s44, s43, 1
    s_add_u32 s42, s41, s44
    s_add_u32 s42, s42, 174                 ; L: 204 + 2q + (t-30)
    s_branch r_role_done
    """)
    a.label("r_got4")
    a(f"""
    s_sub_u32 s43, s43, 4                   ; q = 0..3
    s_lshl_b32 s44, s43, 3
    s_add_u32 s42, s41, s44
    s_add_u32 s42, s42, 112                 ; T
    s_cmp_lt_u32 s41, 8
    s_cbranch_scc1 r_role_done
    s_add_u32 s42, s42, 24                  ; VO
    s_cmp_lt_u32 s41, 16
    s_cbranch_scc1 r_role_done
    s_add_u32 s42, s43, 208                 ; L: 204 + 4 + q
    s_cmp_eq_u32 s41, 23
    s_cbranch_scc1 r_role_done
    s_lshl_b32 s44, s43, 1
    s_add_u32 s42, s41, s44
    s_add_u32 s42, s42, 160                 ; A
    s_cmp_lt_u32 s41, 18
    s_cbranch_scc1 r_role_done
    s_mul_i32 s44, s43, 5
    s_add_u32 s42, s41, s44
    s_add_u32 s42, s42, 166                 ; C
    s_cmp_lt_u32 s41, 23
    s_cbranch_scc1 r_role_done
    s_mul_i32 s44, s43, 7
    s_add_u32 s42, s41, s44
    s_add_u32 s42, s42, 188                 ; F1: 212 + 7q + (t-24)
    s_cmp_eq_u32 s42, 239
    s_cselect_b32 s42, 264, s42
    s_add_u32 s44, s43, 260
    s_cmp_eq_u32 s41, 31
    s_cselect_b32 s42, s44, s42
    """)
    a.label("r_role_done")
    a(f"""
    v_mov_b32 v10, s42
    ds_write_b32 v9, v10
    s_mov_b64 exec, -1
    s_waitcnt lgkmcnt(0)
    """)
    a("s_branch r_role_wait")
    a.label("r_warm")
    if WARM:
        a(f"""
        s_getpc_b64 s[40:41]
        r_warm_pc:
        s_sub_u32 s40, s40, r_warm_pc-{L}
        s_subb_u32 s41, s41, 0
        s_lshr_b32 s42, s2, 3
        s_mul_i32 s42, s42, 3
        s_add_u32 s42, s42, s{sW}
        s_sub_u32 s42, s42, 1                   ; 0..95
        s_lshl_b32 s42, s42, 10
        v_add_u32 v12, s42, v{vL16}
        v_min_u32 v12, r_code_end-{L}-16, v12
        global_load_dwordx4 v[16:19], v12, s[40:41]
        s_waitcnt vmcnt(0)
        """)
    a.label("r_role_wait")
    a(f"""
    s_barrier
    ds_read_b32 v10, v9
    s_waitcnt lgkmcnt(0)
    v_readfirstlane_b32 s{sID}, v10
    s_mov_b32 s{sSTEP}, 0
    s_mov_b32 s50, 0x3db504f3          ; 128^-0.5
    s_mov_b32 s51, 0x3fb8aa3b          ; log2(e)
    s_mov_b32 s62, s50
    s_mov_b32 s63, s50
    s_mov_b32 s100, 0
    s_mul_i32 s97, s{sID}, {72*32}
    s_add_u32 s97, s97, 0x{WS_TRACE:x}
    s_barrier
    """)
    if STAMP:
        a(f"""
        s_memrealtime s[80:81]
        s_waitcnt lgkmcnt(0)
        v_mov_b32 v3, s80
        buffer_store_dword v3, off, {WS}, s97 offset:{71*32}
        """)
    a(f"""
    s_cmp_lt_u32 s{sID}, 32
    s_cbranch_scc1 role_p
    s_cmp_lt_u32 s{sID}, 64
    s_cbranch_scc1 role_vm
    s_cmp_lt_u32 s{sID}, 112
    s_cbranch_scc1 boot
    s_cmp_lt_u32 s{sID}, 144
    s_cbranch_scc1 role_t
    s_cmp_lt_u32 s{sID}, 176
    s_cbranch_scc1 role_vo
    s_cmp_ge_u32 s{sID}, 265
    s_cbranch_scc1 r_end
    s_branch boot
    boot_done:
    s_cmp_lt_u32 s{sID}, 112
    s_cbranch_scc1 role_u
    {"s_endpgm" if NOTOK else ""}
    s_cmp_lt_u32 s{sID}, 184
    s_cbranch_scc1 role_al
    s_cmp_lt_u32 s{sID}, 204
    s_cbranch_scc1 role_c
    s_cmp_lt_u32 s{sID}, 212
    s_cbranch_scc1 role_al
    s_cmp_lt_u32 s{sID}, 259
    s_cbranch_scc1 role_f
    s_sub_u32 s{sID}, s{sID}, 56            ; 260.. -> 204..
    s_cmp_lt_u32 s{sID}, 209
    s_cbranch_scc1 role_c
    s_endpgm
    """)

    KF, QF, KMF, SA = 72, 104, 120, 136
    X0 = 148
    vTW, vTR, vST, vSM = 8, 9, 12, 13
    sMEM, sPB, sKX, sFT, sSEEN, sNEED = 31, 32, 33, 34, 35, 36
    from gen_boot import dbg_wait_wg, DBG_MOD20
    a.label("role_p")
    MODE2[0] = True
    if PDELAY:
        dbg_wait_wg(a, [(DBG_MOD20, 1)], 3, sleep=10)
    load_wqk(a, depth=PDEPTH)
    setup_qk_lds_addrs(a, vTW, vTR)
    a(f"""
    v_bfe_u32 v10, v{vLANE}, 3, 1           ; b
    v_and_b32 v11, 7, v{vLANE}              ; i
    v_lshrrev_b32 v14, 4, v{vLANE}          ; g
    v_lshlrev_b32 v{vST}, 8, v10
    v_lshl_add_u32 v{vST}, v11, 5, v{vST}
    v_lshl_add_u32 v{vST}, v14, 3, v{vST}
    v_lshlrev_b32 v{vSM}, 3, v11
    v_and_b32 v15, 1, v14
    v_lshl_add_u32 v{vSM}, v15, 2, v{vSM}
    v_lshrrev_b32 v15, 1, v14
    v_lshl_add_u32 v{vSM}, v15, 6, v{vSM}
    v_add_u32 v{vSM}, 512, v{vSM}
    v_mov_b32 v15, 0x7ffffff0
    v_cmp_ne_u32 vcc, 0, v10
    s_mov_b32 s52, 0xff00ff00
    s_mov_b32 s53, 0xff00ff00
    v_cndmask_b32 v{vSM}, v{vSM}, v15, vcc
    s_mov_b32 s54, 0
    s_mov_b32 s55, -1                       ; s[54:55]: lanes g>=2
    s_lshl_b32 s{sKX}, s{sID}, 13
    s_add_u32 s{sKX}, s{sKX}, 0x{WS_KX:x}
    s_lshl_b32 s{sFT}, s{sID}, 7
    s_add_u32 s{sFT}, s{sFT}, 0x{flag(FL_T):x}
    s_mov_b32 s{sSEEN}, 0
    s_mov_b32 s56, 0x{WS_FLAGS:x}
    ; KM store voff: g*128 + (l%8)*16, lanes with b=1 dropped
    v_lshlrev_b32 v189, 7, v14
    v_lshl_add_u32 v189, v11, 4, v189
    v_cndmask_b32 v189, v189, v15, vcc
    s_lshl_b32 s57, s{sID}, 11
    s_add_u32 s57, s57, 0x{WS_KM:x}
    s_lshl_b32 s58, s{sID}, 2
    s_add_u32 s58, s58, s{sW}
    s_lshl_b32 s60, s{sID}, 7
    s_add_u32 s60, s60, 0x{flag(FL_KM):x}
    v_cmp_gt_u32 vcc, 40, v{vLANE}
    v_mov_b32 v180, -1
    v_mov_b32 v181, -1
    v_mov_b32 v182, -1
    v_mov_b32 v183, -1
    v_cndmask_b32 v186, v15, v{vL16}, vcc
    """)
    get_pol(a, X0)
    mem_setup(a)
    a(f"""
    s_add_u32 s59, s{sSB}, 0x{WS_CRB + CRB_DOOR:x}
    s_add_u32 s64, s{sSB}, 0x{WS_CRB:x}
    s_lshr_b32 s40, s{sID}, 3
    s_lshl_b32 s40, s40, 14
    s_and_b32 s41, s{sID}, 7
    s_mul_i32 s41, s41, 640
    s_add_u32 s65, s40, s41
    s_add_u32 s65, s65, s64
    s_add_u32 s65, s65, {4*16384}           ; p base
    """)
    a.label("p_loop")
    stamp(a, 0)
    a(f"""
    s_and_b32 s40, s{sSTEP}, 3
    s_lshl_b32 s40, s40, 17
    s_add_u32 s{sMEM}, s40, s64
    s_add_u32 s{sPB}, s40, s65
    s_xor_b32 s40, s40, 0x40000
    s_add_u32 s66, s40, s65
    s_cmp_lg_u32 s{sW}, 0
    s_cbranch_scc1 p_sync
    s_add_u32 s{sNEED}, s{sSTEP}, 1
    """)
    wait_flag(a, sFT, sNEED, sSEEN, X0)
    for f in range(8):
        r, o = l16(f * 1024)
        a(f"buffer_load_dwordx4 {vr(KF+4*f,4)}, {r}, {WS}, s{sKX} offen offset:{o} sc1")
    a(f"""
    buffer_load_dword v190, off, {WS}, s{sFT} sc1
    s_cmp_eq_u32 s{sSTEP}, 0
    s_cbranch_scc1 p_sync
    s_sleep {P_SLEEP0}
    """)
    a.label("p_sync")
    a("s_barrier")
    stamp(a, 1)
    def door():
        if not DOOR:
            return
        a(f"""
        s_cmp_lg_u32 s58, 3
        s_cbranch_scc1 p_nodoor
        s_mov_b64 exec, 1
        buffer_store_dword v188, off, {WS}, s59 sc1
        s_mov_b64 exec, -1
        p_nodoor:
        """)
    a(f"""
    s_add_u32 s40, s{sSTEP}, 1
    v_mov_b32 v188, s40
    """)
    qrd = [f"ds_read_b64_tr_b16 {vr(QF+4*k+2*tp,2)}, v{vTR} offset:{k*512+tp*256}" for k in range(4) for tp in range(2)]
    cl = combine_list(0, 1, X0+2, X0+3)
    fl = ["\n".join(cl[0:2]), "\n".join(cl[2:4]), "\n".join(cl[4:6]), "\n".join(cl[6:8]),
          f"ds_write_b64 v{vTW}, {vr(X0+2,2)}", "s_nop 0", "s_nop 0", "s_waitcnt lgkmcnt(0)\ns_barrier",
          "\n".join(qrd[0:2]), "\n".join(qrd[2:4]), "\n".join(qrd[4:6]), "\n".join(qrd[6:8])]
    mem_proj2(a, [[0, 1], [2, 3]], sMEM, X0, after_valid=door, fill={1: fl})
    stamp(a, 2)
    kc = combine_list(2, 3, X0+4, X0+5) + [f"ds_write_b64 v{vTW}, {vr(X0+4,2)} offset:2048"]
    n = 0
    for k in range(4):
        if k < 3:
            a(f"s_waitcnt lgkmcnt({[6, 4, 3][k]})")
        for mt in range(2):
            acc = vr(SA+4*mt, 4)
            a(f"v_mfma_f32_16x16x32_bf16 {acc}, {vr(KF+(mt*4+k)*4,4)}, {vr(QF+4*k,4)}, {'0' if k==0 else acc}")
            n += 1
            if n == 2:
                a.nop(5)
            if n >= 2:
                for _ in range(3):
                    if kc:
                        a(kc.pop(0))
            if n == 5:
                a(f"""
                s_waitcnt lgkmcnt(0)
                s_barrier
                s_cmp_lg_u32 s{sW}, 0
                s_cbranch_scc1 p_other
                """)
                stamp(a, 3)
                for k2 in range(4):
                    for tp in range(2):
                        a(f"ds_read_b64_tr_b16 {vr(KMF+4*k2+2*tp,2)}, v{vTR} offset:{2048+k2*512+tp*256}")
    assert not kc
    for k in range(4):
        a(f"s_waitcnt lgkmcnt({6-2*k})")
        acc = vr(SA+8, 4)
        a(f"v_mfma_f32_16x16x32_bf16 {acc}, {vr(KMF+4*k,4)}, {vr(QF+4*k,4)}, {'0' if k==0 else acc}")
    for r in range(4):
        a(f"v_cndmask_b32 v{X0+r}, v{SA+r}, v{SA+4+r}, s[52:53]")
    T0 = X0 + 8
    a(f"""
    v_cvt_pk_bf16_f32 v{T0}, v{X0}, v{X0+1}
    v_cvt_pk_bf16_f32 v{T0+1}, v{X0+2}, v{X0+3}
    v_lshlrev_b32 v{X0}, 16, v{T0}
    v_and_b32 v{X0+1}, 0xffff0000, v{T0}
    v_cndmask_b32 v{X0+4}, v{SA+8}, v{SA+9}, s[52:53]
    v_cndmask_b32 v{X0+5}, v{SA+10}, v{SA+11}, s[52:53]
    v_lshlrev_b32 v{X0+2}, 16, v{T0+1}
    v_cndmask_b32 v{X0+4}, v{X0+4}, v{X0+5}, s[54:55]
    v_and_b32 v{X0+3}, 0xffff0000, v{T0+1}
    v_cvt_pk_bf16_f32 v{T0+2}, v{X0+4}, v{X0+4}
    v_pk_mul_f32 v[{X0}:{X0+1}], v[{X0}:{X0+1}], s[62:63]
    v_and_b32 v{X0+4}, 0xffff0000, v{T0+2}
    v_pk_mul_f32 v[{X0+2}:{X0+3}], v[{X0+2}:{X0+3}], s[62:63]
    v_mul_f32 v{X0+4}, s50, v{X0+4}
    v_cvt_pk_bf16_f32 v{T0}, v{X0}, v{X0+1}
    v_cvt_pk_bf16_f32 v{T0+1}, v{X0+2}, v{X0+3}
    v_cvt_pk_bf16_f32 v{T0+2}, v{X0+4}, v{X0+4}
    v_lshlrev_b32 v{X0}, 16, v{T0}
    v_and_b32 v{X0+1}, 0xffff0000, v{T0}
    v_lshlrev_b32 v{X0+2}, 16, v{T0+1}
    v_and_b32 v{X0+3}, 0xffff0000, v{T0+1}
    v_and_b32 v{X0+4}, 0xffff0000, v{T0+2}
    v_max3_f32 v{X0+6}, v{X0}, v{X0+1}, v{X0+2}
    v_max3_f32 v{X0+6}, v{X0+6}, v{X0+3}, v{X0+4}
    v_mul_f32 v{X0}, s51, v{X0}
    v_mul_f32 v{X0+1}, s51, v{X0+1}
    v_max_f32_dpp v{X0+6}, v{X0+6}, v{X0+6} row_ror:8 row_mask:0xf bank_mask:0xf
    v_mov_b32 v{X0+7}, v{X0+6}
    v_mul_f32 v{X0+2}, s51, v{X0+2}
    v_mul_f32 v{X0+3}, s51, v{X0+3}
    v_permlane16_swap_b32 v{X0+6}, v{X0+7}
    v_max_f32 v{X0+6}, v{X0+6}, v{X0+7}
    v_mov_b32 v{X0+7}, v{X0+6}
    v_mul_f32 v{X0+4}, s51, v{X0+4}
    s_nop 0
    v_permlane32_swap_b32 v{X0+6}, v{X0+7}
    v_max_f32 v{X0+6}, v{X0+6}, v{X0+7}
    v_mul_f32 v{X0+6}, s51, v{X0+6}
    v_sub_f32 v{X0}, v{X0}, v{X0+6}
    v_sub_f32 v{X0+1}, v{X0+1}, v{X0+6}
    v_exp_f32 v{X0}, v{X0}
    v_sub_f32 v{X0+2}, v{X0+2}, v{X0+6}
    v_exp_f32 v{X0+1}, v{X0+1}
    v_sub_f32 v{X0+3}, v{X0+3}, v{X0+6}
    v_exp_f32 v{X0+2}, v{X0+2}
    v_sub_f32 v{X0+4}, v{X0+4}, v{X0+6}
    v_exp_f32 v{X0+3}, v{X0+3}
    v_add_f32 v{X0+6}, v{X0}, v{X0+1}
    v_exp_f32 v{X0+4}, v{X0+4}
    v_add_f32 v{X0+6}, v{X0+6}, v{X0+2}
    v_add_f32 v{X0+6}, v{X0+6}, v{X0+3}
    v_add_f32 v{X0+6}, v{X0+6}, v{X0+4}
    s_nop 1
    v_add_f32_dpp v{X0+6}, v{X0+6}, v{X0+6} row_ror:8 row_mask:0xf bank_mask:0xf
    v_mov_b32 v{X0+7}, v{X0+6}
    v_mov_b32_dpp v{X0+5}, v{X0+4} row_ror:8 row_mask:0xf bank_mask:0xf
    s_nop 0
    v_permlane16_swap_b32 v{X0+6}, v{X0+7}
    v_add_f32 v{X0+6}, v{X0+6}, v{X0+7}
    v_mov_b32 v{X0+7}, v{X0+6}
    s_nop 1
    v_permlane32_swap_b32 v{X0+6}, v{X0+7}
    v_add_f32 v{X0+6}, v{X0+6}, v{X0+7}
    v_rcp_f32 v{X0+6}, v{X0+6}
    s_nop 0
    v_mul_f32 v{X0}, v{X0}, v{X0+6}
    v_mul_f32 v{X0+1}, v{X0+1}, v{X0+6}
    v_mul_f32 v{X0+2}, v{X0+2}, v{X0+6}
    v_mul_f32 v{X0+3}, v{X0+3}, v{X0+6}
    v_cvt_pk_bf16_f32 v{T0}, v{X0}, v{X0+1}
    v_cvt_pk_bf16_f32 v{T0+1}, v{X0+2}, v{X0+3}
    v_mul_f32 v{X0+4}, v{X0+4}, v{X0+6}
    v_min_u32 v{T0}, -2, v{T0}
    v_min_u32 v{T0+1}, -2, v{T0+1}
    v_mul_f32 v{X0+5}, v{X0+5}, v{X0+6}
    buffer_store_dwordx2 {vr(T0,2)}, v{vST}, {WS}, s{sPB} offen sc1
    v_cvt_pk_bf16_f32 v{T0+2}, v{X0+4}, v{X0+5}
    v_min_u32 v{T0+2}, -2, v{T0+2}
    buffer_store_dword v{T0+2}, v{vSM}, {WS}, s{sPB} offen sc1
    v_readfirstlane_b32 s{sSEEN}, v190
    s_branch p_next
    """)
    a.label("p_other")
    a(f"""
    s_cmp_lg_u32 s{sW}, 1
    s_cbranch_scc1 p_w23
    """)
    for k in range(4):
        for tp in range(2):
            a(f"ds_read_b64_tr_b16 {vr(KMF+4*k+2*tp,2)}, v{vTR} offset:{2048+k*512+tp*256}")
    a("s_waitcnt lgkmcnt(0)")
    for r in range(16):
        a(f"v_min_u32 v{KMF+r}, -2, v{KMF+r}")
    for k in range(4):
        a(f"buffer_store_dwordx4 {vr(KMF+4*k,4)}, v189, {WS}, s57 offen offset:{k*512} sc1")
    a(f"""
    s_waitcnt vmcnt(0)
    s_mov_b64 exec, 1
    buffer_store_dword v188, off, {WS}, s60 sc1
    s_mov_b64 exec, -1
    s_branch p_next
    """)
    a.label("p_w23")
    a(f"""
    s_cmp_lg_u32 s{sW}, 2
    s_cbranch_scc1 p_next
    buffer_store_dwordx4 v[180:183], v186, {WS}, s66 offen sc1
    s_cmp_lg_u32 s{sID}, 0
    s_cbranch_scc1 p_next
    s_add_u32 s40, s{sSTEP}, 1
    v_mov_b32 v{X0}, s40
    s_mov_b64 exec, 1
    buffer_store_dword v{X0}, off, {WS}, s56 sc1
    s_mov_b64 exec, -1
    """)
    a.label("p_next")
    stamp(a, 4)
    stamp_flush(a, 5, 191)
    a(f"""
    s_add_u32 s{sKX}, s{sKX}, {32*8192}
    s_add_u32 s57, s57, {32*2048}
    s_add_u32 s{sSTEP}, s{sSTEP}, 1
    s_cmp_lt_u32 s{sSTEP}, 64
    s_cbranch_scc1 p_loop
    s_endpgm
    """)
    flush_deferred(a)

    AF, AC3, PKM = 72, 80, 120
    a.label("role_vm")
    a(f"""
    s_sub_u32 s{sID}, s{sID}, 32
    s_load_dwordx4 s[64:67], s[0:1], {KA_WV}
    s_waitcnt lgkmcnt(0)
    """)
    srd(a, 16, 64, D * H * E * 2)
    srd(a, 20, 66, D * H * E * 2)
    if PDELAY:
        dbg_wait_wg(a, [(DBG_MOD20, 1)], 3, sleep=10)
    load_wqk(a, (WQ,))
    load_wo(a, WK)
    setup_qk_lds_addrs(a, vTW, vTR)
    a(f"""
    ; sparse-A transposing read: e0 = 32(gA/2) + 16(r/2) + 8(gA%2) + 2(c/2) + (r%2)
    v_lshrrev_b32 v10, 5, v{vLANE}
    v_lshlrev_b32 v10, 5, v10
    v_bfe_u32 v11, v{vLANE}, 3, 1
    v_lshl_add_u32 v10, v11, 4, v10
    v_bfe_u32 v11, v{vLANE}, 4, 1
    v_lshl_add_u32 v10, v11, 3, v10
    v_bfe_u32 v11, v{vLANE}, 1, 1
    v_lshl_add_u32 v10, v11, 1, v10
    v_bfe_u32 v11, v{vLANE}, 2, 1
    v_add_u32 v10, v10, v11
    v_lshlrev_b32 v10, 4, v10
    v_and_b32 v11, 1, v{vLANE}
    v_lshl_add_u32 v10, v11, 3, v10
    v_add_u32 v{vTR}, 0x{LDS_T:x}, v10
    v_lshlrev_b32 v12, 3, v{vLANE}
    v_and_b32 v13, 31, v{vLANE}
    v_lshlrev_b32 v13, 3, v13
    v_lshrrev_b32 v10, 5, v{vLANE}
    v_lshl_add_u32 v13, v10, 14, v13
    v_mov_b32 v132, -1
    v_mov_b32 v133, -1
    s_mul_i32 s57, s{sID}, 10240
    s_mul_i32 s40, s{sW}, 2560
    s_add_u32 s57, s57, s40
    s_add_u32 s57, s57, 0x{WS_UMC:x}
    s_lshl_b32 s61, s{sID}, 7
    s_lshl_b32 s40, s{sW}, 2
    s_add_u32 s61, s61, s40
    s_add_u32 s61, s61, 0x{flag(FL_UF):x}
    """)
    get_pol(a, 135)
    mem_setup(a)
    a(f"""
    s_add_u32 s64, s{sSB}, 0x{WS_CRB + 32768:x}
    s_mul_i32 s65, s{sW}, {10*16384}
    s_lshl_b32 s40, s{sID}, 8
    s_add_u32 s65, s65, s40
    s_add_u32 s65, s65, s{sSA}
    s_add_u32 s65, s65, 0x{WS_CRA:x}
    s_mov_b32 s66, 0
    s_mov_b32 s67, {2*CRA_SLOT}
    """)
    a.label("vm_loop")
    stamp(a, 0)
    for r in range(40):
        a(f"v_mov_b32 v{AC3+r}, 0")
    a(f"""
    s_and_b32 s40, s{sSTEP}, 3
    s_lshl_b32 s40, s40, 17
    s_add_u32 s{sMEM}, s40, s64
    s_add_u32 s58, s65, s66
    s_cmp_eq_u32 s{sSTEP}, 0
    s_cbranch_scc1 vm_sync
    s_sleep {V_SLEEP}
    vm_sync:
    s_barrier
    """)
    stamp(a, 1)
    mem_proj2(a, [[0, 1]], sMEM, 135)
    stamp(a, 2)
    a.nop(8)
    combine_pair(a, 0, 1, 136, 137)
    a(f"""
    ds_write_b64 v{vTW}, v[136:137]
    s_waitcnt lgkmcnt(0)
    s_barrier
    """)
    for kb in range(2):
        for n in range(2):
            a(f"ds_read_b64_tr_b16 {vr(AF+4*kb+2*n,2)}, v{vTR} offset:{(64*kb+4*n)*16}")
    stamp(a, 3)

    def vm_pack(p):
        A, B = AC3 + 8*p, AC3 + 8*p + 4
        L = [f"v_permlane32_swap_b32 v{A+r}, v{B+r}" for r in range(4)]
        if PKADD:
            L += [f"v_pk_add_f32 v[{A+r}:{A+r+1}], v[{A+r}:{A+r+1}], v[{B+r}:{B+r+1}]" for r in (0, 2)]
        else:
            L += [f"v_add_f32 v{A+r}, v{A+r}, v{B+r}" for r in range(4)]
        L += [f"v_cvt_pk_bf16_f32 v{PKM+2*p}, v{A}, v{A+1}", f"v_cvt_pk_bf16_f32 v{PKM+2*p+1}, v{A+2}, v{A+3}",
              f"buffer_store_dwordx2 {vr(PKM+2*p,2)}, v13, {WS}, s{68+p} offen sc1"]
        return L
    for p in range(5):
        a(f"s_add_u32 s{68+p}, s58, {p*32768}")
    a("s_waitcnt lgkmcnt(0)")
    pend = []
    slot = 0
    last_mf = {}
    for p in range(5):
        for kb in range(2):
            for jj in range(2):
                jt = 2*p + jj
                a(f"v_smfmac_f32_16x16x64_bf16 {vr(AC3+4*jt,4)}, {vr(AF+4*kb,4)}, {widx(160+(jt*4+2*kb)*4,8)}, v{vIDX}")
                slot += 1
                n = 0
                while pend and pend[0][0] <= slot and n < VM_FILL:
                    a(pend.pop(0)[1])
                    slot += 1
                    n += 1
        for x in vm_pack(p):
            pend.append((slot + 8, x))
    while pend:
        if pend[0][0] > slot:
            a.nop(pend[0][0] - slot)
            slot = pend[0][0]
        a(pend.pop(0)[1])
        slot += 1
    stamp(a, 4)
    for p in range(5):
        a(f"buffer_store_dwordx2 {vr(PKM+2*p,2)}, v12, {WS}, s57 offen offset:{p*512} sc1")
    a("s_add_u32 s40, s65, s67")
    for p in range(5):
        a(f"buffer_store_dwordx2 v[132:133], v13, {WS}, s40 offen sc1")
        a("s_add_u32 s40, s40, 32768")
    a(f"""
    s_add_u32 s57, s57, {UM_STEP}
    s_mov_b32 s67, s66
    s_add_u32 s66, s66, {CRA_SLOT}
    s_cmp_ge_u32 s66, {3*CRA_SLOT}
    s_cselect_b32 s66, 0, s66
    s_add_u32 s40, s{sSTEP}, 1
    v_mov_b32 v134, s40
    s_waitcnt vmcnt(5)
    s_mov_b64 exec, 1
    buffer_store_dword v134, off, {WS}, s61 sc1
    s_mov_b64 exec, -1
    """)
    stamp_flush(a, 5, 191)
    a(f"""
    s_add_u32 s{sSTEP}, s{sSTEP}, 1
    s_cmp_lt_u32 s{sSTEP}, 64
    s_cbranch_scc1 vm_loop
    s_endpgm
    """)
    flush_deferred(a)

    TX, BX, PF, BM, CA = 16, 48, 80, 104, 112
    vPA, vPB, vWr, vRd, vUM = 8, 9, 12, 13, 140
    sUX = 33
    a.label("role_u")
    MODE2[0] = False
    a(f"s_sub_u32 s{sID}, s{sID}, 64")
    setup_p_load_addrs(a, vPA, vPB, vUM, 16384, 256)
    a(f"""
    s_lshl_b32 s40, s{sW}, 9
    v_lshlrev_b32 v{vWr}, 3, v{vLANE}
    v_add_u32 v{vWr}, s40, v{vWr}
    ; final lane l: c8 = l/32, i = (l/4)%8, cp = l%4 ; src lane' = (r&1)*32 + (i/4)*16 + 8c8 + 2cp ; comp = r>>1
    v_bfe_u32 v10, v{vLANE}, 2, 1           ; r&1
    v_lshlrev_b32 v10, 5, v10
    v_bfe_u32 v11, v{vLANE}, 4, 1           ; i/4
    v_lshl_add_u32 v10, v11, 4, v10
    v_lshrrev_b32 v11, 5, v{vLANE}
    v_lshl_add_u32 v10, v11, 3, v10
    v_and_b32 v11, 3, v{vLANE}
    v_lshl_add_u32 v10, v11, 1, v10
    v_lshlrev_b32 v10, 3, v10
    v_bfe_u32 v11, v{vLANE}, 3, 1           ; r>>1
    v_lshl_add_u32 v{vRd}, v11, 2, v10
    v_add_u32 v14, 1024, v{vRd}
    v_lshlrev_b32 v15, 2, v{vLANE}
    v_lshlrev_b32 v133, 7, v{vLANE}
    v_mov_b32 v123, 0
    s_mul_i32 s{sUX}, s{sW}, {8*40960}
    s_lshl_b32 s40, s{sID}, 10
    s_add_u32 s{sUX}, s{sUX}, s40
    s_add_u32 s{sUX}, s{sUX}, 0x{WS_UX:x}
    s_lshl_b32 s{sFT}, s{sW}, 10
    s_add_u32 s{sFT}, s{sFT}, 0x{flag(FL_VO):x}
    v_mov_b32 v134, -1
    """)
    get_pol(a, 135)
    a(f"""
    s_add_u32 s60, s{sSB}, 0x{WS_CRB + CRB_DOOR:x}
    s_add_u32 s64, s{sSB}, 0x{WS_CRB + 4*16384:x}   ; p base
    s_lshl_b32 s65, s{sID}, 8
    s_cmp_ge_u32 s{sID}, 32
    s_cselect_b32 s40, 8192, 0
    s_add_u32 s65, s65, s40
    s_add_u32 s65, s65, s{sSB}
    s_add_u32 s65, s65, 0x{WS_CRB:x}
    s_lshl_b32 s57, s{sID}, 14
    s_add_u32 s57, s57, s{sSA}
    s_add_u32 s57, s57, 0x{WS_CRA:x}
    s_mov_b32 s66, 0
    """)
    a.label("u_loop")
    stamp(a, 0)
    a(f"""
    s_and_b32 s40, s{sSTEP}, 3
    s_lshl_b32 s40, s40, 17
    s_add_u32 s{sPB}, s40, s64
    s_xor_b32 s41, s40, 0x40000
    s_add_u32 s41, s41, s65
    s_add_u32 s40, s{sSTEP}, 1
    s_and_b32 s40, s40, 3
    s_lshl_b32 s40, s40, 17
    s_add_u32 s{sMEM}, s40, s65
    s_cmp_lg_u32 s{sW}, 1
    s_cbranch_scc1 u_noarm
    buffer_store_dword v134, v15, {WS}, s41 offen sc1
    s_add_u32 s41, s41, 32768
    buffer_store_dword v134, v15, {WS}, s41 offen sc1
    u_noarm:
    """)
    a(f"""
    s_add_u32 s{sNEED}, s{sSTEP}, 1
    s_mov_b64 exec, 255
    v_cmp_gt_u32 vcc, s{sNEED}, v123
    s_mov_b64 exec, -1
    s_cbranch_vccz u_vok
    """)
    wait_all(a, 8, 133, sFT, sNEED, 123)
    a.label("u_vok")
    a(f"s_mov_b32 s40, s{sUX}")
    for hh in range(8):
        a(f"buffer_load_dwordx4 {vr(TX+4*hh,4)}, v{vL16}, {WS}, s40 offen sc1")
        a(f"s_add_u32 s40, s40, 40960")
    a(f"""
    s_mov_b64 exec, 255
    buffer_load_dword v123, v133, {WS}, s{sFT} offen sc1
    s_mov_b64 exec, -1
    s_add_u32 s58, s57, s66
    s_add_u32 s66, s66, {CRA_SLOT}
    s_cmp_ge_u32 s66, {3*CRA_SLOT}
    s_cselect_b32 s66, 0, s66
    s_waitcnt vmcnt(0)
    """)
    for hh in range(8):
        for d in range(4):
            a(f"v_mov_b32 v{BX + 8*(hh//2) + 2*d + hh%2}, v{TX+4*hh+d}")
    stamp(a, 1)
    a(f"""
    s_cmp_lg_u32 s{sW}, 0
    s_cbranch_scc1 u_dsync
    """)
    for k in range(3):
        a(f"buffer_load_dword v{124+k}, off, {WS}, s60 sc1")
        a(f"s_sleep 1")
    a.label("u_dspin")
    for k in range(4):
        a(f"""
        buffer_load_dword v{124+(k+3)%4}, off, {WS}, s60 sc1
        s_waitcnt vmcnt(3)
        v_cmp_le_u32 vcc, s{sNEED}, v{124+k}
        s_cbranch_vccnz u_ddone
        s_nop 7
        """)
    a(f"""
    s_sub_u32 s{sBUD}, s{sBUD}, 1
    s_cmp_ge_i32 s{sBUD}, 0
    s_cbranch_scc1 u_dspin
    """)
    a.label("u_ddone")
    stamp(a, 2)
    a(f"s_sleep {U_SLEEPD}")
    a.label("u_dsync")
    a("s_barrier")
    stamp(a, 3)
    def u_mloads():
        for k in range(2):
            a(f"buffer_load_dwordx2 {vr(PF+16+2*k,2)}, v{vPB}, {WS}, s{sPB} offen offset:{k*1280} sc1")
        for j in range(4):
            a(f"buffer_load_dwordx2 {vr(BM+2*j,2)}, v{vUM}, {WS}, s58 offen offset:{j*512} sc1")
    a.label("u_ppoll")
    for q in range(4):
        a(f"buffer_load_dwordx4 {vr(PF+4*q,4)}, v{vPA}, {WS}, s{sPB} offen offset:{q*1280} sc1")
    u_mloads()
    for r in range(4):
        a(f"v_mov_b32 v{CA+r}, 0")
    a("v_mov_b32 v122, 0")
    for q in range(4):
        f = PF + 4*q
        a(f"s_waitcnt vmcnt({9-q})")
        a(f"v_smfmac_f32_16x16x64_bf16 {vr(CA,4)}, {vr(f,4)}, {vr(BX+8*q,8)}, v{vIDX}")
        a(f"v_max3_u32 v122, v122, v{f}, v{f+1}")
        a(f"v_max3_u32 v122, v122, v{f+2}, v{f+3}")
    a("v_cmp_eq_u32 vcc, -1, v122")
    poll_fail(a, "u_ppoll", sleep=1)
    a.label("u_mchk")
    a(f"""
    s_waitcnt vmcnt(4)
    v_swap_b32 v{PF+17}, v{PF+18}
    v_max3_u32 v122, v{PF+16}, v{PF+17}, v{PF+18}
    v_max_u32 v122, v122, v{PF+19}
    s_waitcnt vmcnt(2)
    v_max3_u32 v122, v122, v{BM}, v{BM+1}
    v_max3_u32 v122, v122, v{BM+2}, v{BM+3}
    s_waitcnt vmcnt(0)
    v_max3_u32 v122, v122, v{BM+4}, v{BM+5}
    v_max3_u32 v122, v122, v{BM+6}, v{BM+7}
    v_cmp_eq_u32 vcc, -1, v122
    s_cbranch_vccnz u_mretry
    u_mok:
    v_smfmac_f32_16x16x64_bf16 {vr(CA,4)}, {vr(PF+16,4)}, {vr(BM,8)}, v{vIDX}
    """)

    def u_ool():
        a.label("u_mretry")
        a(f"""
        s_sub_u32 s{sBUD}, s{sBUD}, 1
        s_cmp_lt_i32 s{sBUD}, 0
        s_cbranch_scc1 u_mok
        """)
        u_mloads()
        a("s_branch u_mchk")
    DEFERRED.append(u_ool)
    a.nop(2)
    stamp(a, 4)
    a.nop(6)
    a(f"""
    v_permlane32_swap_b32 v{CA}, v{CA+1}
    v_permlane32_swap_b32 v{CA+2}, v{CA+3}
    v_add_f32 v{CA}, v{CA}, v{CA+1}
    v_add_f32 v{CA+1}, v{CA+2}, v{CA+3}
    ds_write_b64 v{vWr}, {vr(CA,2)}
    s_waitcnt lgkmcnt(0)
    s_barrier
    s_cmp_lg_u32 s{sW}, 0
    s_cbranch_scc1 u_next
    ds_read2_b32 v[124:125], v{vRd} offset0:0 offset1:2
    ds_read2_b32 v[126:127], v{vRd} offset0:128 offset1:130
    ds_read2_b32 v[128:129], v14 offset0:0 offset1:2
    ds_read2_b32 v[130:131], v14 offset0:128 offset1:130
    s_add_u32 s40, s{sMEM}, 32768
    s_waitcnt lgkmcnt(2)
    v_add_f32 v124, v124, v126
    v_add_f32 v125, v125, v127
    s_waitcnt lgkmcnt(0)
    v_add_f32 v128, v128, v130
    v_add_f32 v129, v129, v131
    v_add_f32 v124, v124, v128
    v_add_f32 v125, v125, v129
    v_cvt_pk_bf16_f32 v124, v124, v125
    v_min_u32 v124, -2, v124
    buffer_store_dword v124, v15, {WS}, s{sMEM} offen sc1
    buffer_store_dword v124, v15, {WS}, s40 offen sc1
    """)
    a.label("u_next")
    stamp(a, 5)
    stamp_flush(a, 6, 191)
    a(f"""
    s_add_u32 s{sUX}, s{sUX}, {UX_STEP}
    s_add_u32 s{sSTEP}, s{sSTEP}, 1
    s_cmp_lt_u32 s{sSTEP}, 63
    s_cbranch_scc1 u_loop
    s_endpgm
    """)
    flush_deferred(a)

    vH = 14
    sHOFF, sHBUF, sOUT, sFM = 37, 38, 39, 56

    def publish(role, sval, wv=3):
        lab = a.newlabel("pub")
        a(f"""
        s_cmp_lg_u32 s{sW}, {wv}
        s_cbranch_scc1 {lab}
        v_mov_b32 v3, {sval}
        s_mov_b64 exec, 1
        buffer_store_dword v3, off, {WS}, s{sFT} sc1
        s_mov_b64 exec, -1
        {lab}:
        """)

    from gen_boot import dbg_wait_wg, DBG_INIT, DBG_LN, N_INITW

    def ln_ready():
        top, done = a.newlabel("lr"), a.newlabel("lrd")
        a(f"""
        s_add_u32 s45, s{sSTEP}, 1
        s_and_b32 s46, s45, 7
        s_cmp_lg_u32 s46, 0
        s_cbranch_scc1 {done}
        s_cmp_ge_u32 s45, 64
        s_cbranch_scc1 {done}
        s_lshr_b32 s45, s45, 1
        {top}:
        buffer_load_dword v3, off, {DBG}, s45 offset:{DBG_LN} sc1
        s_waitcnt vmcnt(0)
        v_readfirstlane_b32 s44, v3
        s_sub_u32 s{sBUD}, s{sBUD}, 1
        s_cmp_lt_i32 s{sBUD}, 0
        s_cbranch_scc1 {done}
        s_cmp_ge_u32 s44, 1
        s_cbranch_scc1 {done}
        s_sleep 4
        s_branch {top}
        {done}:
        """)

    def loop_top():
        a(f"""
        v_add_u32 v{vH}, s{sHBUF}, v{vL16}
        s_sub_u32 s{sHBUF}, 40960, s{sHBUF}
        s_add_u32 s{sHOFF}, s{sHOFF}, 40960
        """)
        ln_ready()
        dmal_init(a, sHOFF, sHBUF)

    a.label("role_t")
    a(f"""
    s_sub_u32 s{sID}, s{sID}, 112
    s_mov_b32 s{sHOFF}, 0x{WS_H1F:x}
    s_mov_b32 s{sHBUF}, 0
    """)
    load_wqk(a, depth=TDEPTH)
    dbg_wait_wg(a, [(DBG_INIT, 1), (DBG_LN, 1)], 3)
    dmal_init(a, sHOFF, sHBUF)
    for k in range(10):
        dmal_one(a)
    a(f"""
    s_lshl_b32 s{sOUT}, s{sID}, 13
    s_lshl_b32 s40, s{sW}, 10
    s_add_u32 s{sOUT}, s{sOUT}, s40
    s_add_u32 s{sOUT}, s{sOUT}, 0x{WS_KX:x}
    s_lshl_b32 s{sFT}, s{sID}, 7
    s_add_u32 s{sFT}, s{sFT}, 0x{flag(FL_T):x}
    s_waitcnt vmcnt(0)
    s_barrier
    """)
    a.label("t_loop")
    stamp(a, 0)
    loop_top()
    DMK = [0, 1, 3, 4, 6, 7, 9, 10, 12, 13]

    def hook_t(ks):
        if ks in DMK:
            dmal_one(a)
        if ks == 5:
            a("s_waitcnt vmcnt(4)")
            a("s_barrier")
            publish("t", f"s{sSTEP}")
    dense_proj(a, vH, True, hook_t)
    stamp(a, 1)
    a.nop(4)
    PK = 128
    a(f"s_add_u32 s40, s{sOUT}, 0x{WS_QX-WS_KX:x}")
    for mat in (0, 1):
        for mt in range(2):
            tm = PK + (mat*2+mt) * 4
            for tt in range(2):
                b = TACC + ((mat*2+tt)*2 + mt) * 4
                a(f"v_cvt_pk_bf16_f32 v{tm+2*tt}, v{b}, v{b+1}")
                a(f"v_cvt_pk_bf16_f32 v{tm+2*tt+1}, v{b+2}, v{b+3}")
    a("s_waitcnt vmcnt(0)")
    for mat in (1, 0):
        for mt in range(2):
            tm = PK + (mat*2+mt) * 4
            so = "s40" if mat == 0 else f"s{sOUT}"
            a(f"buffer_store_dwordx4 {vr(tm,4)}, v{vL16+mt}, {WS}, {so} offen sc1")
    a(f"""
    s_add_u32 s{sOUT}, s{sOUT}, {32*8192}
    s_cmp_lg_u32 s{sSTEP}, 0
    s_cbranch_scc1 t_ne
    s_waitcnt vmcnt(0)
    s_barrier
    """)
    publish("t", "1")
    a("t_ne:")
    a("s_barrier")
    stamp(a, 2)
    stamp_flush(a, 3, 1)
    a(f"""
    s_add_u32 s{sSTEP}, s{sSTEP}, 1
    s_cmp_lt_u32 s{sSTEP}, 64
    s_cbranch_scc1 t_loop
    s_waitcnt vmcnt(0)
    s_barrier
    """)
    publish("t", f"s{sSTEP}")
    a(f"""
    {"s_endpgm" if NOTOK else ""}
    s_mov_b32 s{sSTEP}, 0
    s_add_u32 s97, s97, {300*72*32}
    s_cmp_ge_u32 s{sID}, {NC}
    s_cbranch_scc1 t_f1
    s_add_u32 s{sID}, s{sID}, {184+NC}
    s_branch role_c
    t_f1:
    s_cmp_ge_u32 s{sID}, {NC+3}
    s_cbranch_scc1 r_end
    s_add_u32 s{sID}, s{sID}, {212+24-NC}   ; F1 slices 24..26
    s_mov_b32 s100, {F1S+1}
    s_branch role_f
    """)

    VF, AC2 = 16, 128
    LDS_V = LDS_T
    a.label("role_vo")
    a(f"""
    s_sub_u32 s{sID}, s{sID}, 144
    s_load_dwordx4 s[64:67], s[0:1], {KA_WV}
    s_mov_b32 s{sHOFF}, 0x{WS_H1F:x}
    s_mov_b32 s{sHBUF}, 0
    s_waitcnt lgkmcnt(0)
    """)
    srd(a, 16, 64, D * H * E * 2)
    srd(a, 20, 66, D * H * E * 2)
    load_wqk(a, (WQ,))
    load_wo(a, WK)
    dbg_wait_wg(a, [(DBG_INIT, 1), (DBG_LN, 1)], 3)
    dmal_init(a, sHOFF, sHBUF)
    for k in range(10):
        dmal_one(a)
    a(f"""
    s_mul_i32 s{sOUT}, s{sID}, 40960
    s_mul_i32 s40, s{sW}, 10240
    s_add_u32 s{sOUT}, s{sOUT}, s40
    s_add_u32 s{sOUT}, s{sOUT}, 0x{WS_UX:x}
    s_lshl_b32 s{sFT}, s{sID}, 7
    s_add_u32 s{sFT}, s{sFT}, 0x{flag(FL_VO):x}
    s_lshl_b32 s40, s{sW}, 10
    s_add_u32 s40, s40, 0x{LDS_V:x}
    v_add_u32 v12, s40, v{vL16}
    v_add_u32 v13, 0x{LDS_V:x}, v{vL16}
    s_waitcnt vmcnt(0)
    s_barrier
    """)
    a.label("vo_loop")
    stamp(a, 0)
    loop_top()

    def hook_v(ks):
        if ks % 2 == 0:
            dmal_one(a)
    dense_proj(a, vH, True, hook_v, tiles=(0, 1))
    a.nop(6)
    for mt in range(2):
        for tt in range(2):
            b = TACC + (tt*2 + mt) * 4
            a(f"v_cvt_pk_bf16_f32 v{168+4*mt+2*tt}, v{b}, v{b+1}")
            a(f"v_cvt_pk_bf16_f32 v{168+4*mt+2*tt+1}, v{b+2}, v{b+3}")
        a(f"ds_write_b128 v12, {vr(168+4*mt,4)} offset:{mt*4096}")
    a(f"""
    s_waitcnt vmcnt(10) lgkmcnt(0)
    s_barrier
    """)
    stamp(a, 1)
    for k in range(4):
        for mt in range(2):
            a(f"ds_read_b128 {vr(VF+(mt*4+k)*4,4)}, v13 offset:{mt*4096+k*1024}")
    publish("vo", f"s{sSTEP}")
    for hb in range(2):
        for k in range(4):
            if hb == 0:
                a(f"s_waitcnt lgkmcnt({6-2*k})")
            for j5 in range(5):
                for mt in range(2):
                    acc = vr(AC2 + (j5*2+mt)*4, 4) if hb == 0 else vr(TACC + (j5*2+mt)*4, 4)
                    a(f"v_mfma_f32_16x16x32_bf16 {acc}, {vr(VF+(mt*4+k)*4,4)}, {widx(160+((hb*5+j5)*4+k)*4)}, {'0' if k == 0 else acc}")
                if hb == 1 and k < 3 and j5 < 2 and (k*2+j5) < 5:
                    q = k*2 + j5
                    tm = 168 + (q % 2) * 4
                    for mt in range(2):
                        b = AC2 + (q*2+mt)*4
                        a(f"v_cvt_pk_bf16_f32 v{tm+2*mt}, v{b}, v{b+1}")
                        a(f"v_cvt_pk_bf16_f32 v{tm+2*mt+1}, v{b+2}, v{b+3}")
                    r, o = l16(q * 1024)
                    a(f"buffer_store_dwordx4 {vr(tm,4)}, {r}, {WS}, s{sOUT} offen offset:{o} sc1")
    for q in range(5):
        tm = 176 + (q % 2) * 4
        for mt in range(2):
            b = TACC + (q*2+mt)*4
            a(f"v_cvt_pk_bf16_f32 v{tm+2*mt}, v{b}, v{b+1}")
            a(f"v_cvt_pk_bf16_f32 v{tm+2*mt+1}, v{b+2}, v{b+3}")
        r, o = l16((5+q) * 1024)
        a(f"buffer_store_dwordx4 {vr(tm,4)}, {r}, {WS}, s{sOUT} offen offset:{o} sc1")
    a(f"""
    s_add_u32 s{sOUT}, s{sOUT}, {UX_STEP}
    s_cmp_lg_u32 s{sSTEP}, 0
    s_cbranch_scc1 vo_ne
    s_waitcnt vmcnt(0)
    s_barrier
    """)
    publish("vo", "1")
    a(f"""
    vo_ne:
    s_waitcnt vmcnt(10)
    s_barrier
    """)
    stamp(a, 2)
    stamp_flush(a, 3, 1)
    a(f"""
    s_add_u32 s{sSTEP}, s{sSTEP}, 1
    s_cmp_lt_u32 s{sSTEP}, 64
    s_cbranch_scc1 vo_loop
    s_waitcnt vmcnt(0)
    s_barrier
    """)
    publish("vo", f"s{sSTEP}")
    a(f"""
    {"s_endpgm" if NOTOK else ""}
    s_mov_b32 s{sSTEP}, 0
    s_add_u32 s97, s97, {300*72*32}
    s_mov_b32 s100, {SENT0+1}
    s_cmp_ge_u32 s{sID}, 24
    s_cbranch_scc1 vo_a
    s_add_u32 s{sID}, s{sID}, 212           ; F1 slices 0..23
    s_mov_b32 s100, {F1S+1}
    s_branch role_f
    vo_a:
    s_add_u32 s{sID}, s{sID}, {176-24}
    s_branch role_a
    """)

    KF2, QF2, KMF2, SA2, Y0 = 16, 48, 80, 96, 112
    sKXR, sKM = 33, 57
    a.label("role_al")
    a(f"""
    s_sub_u32 s40, s{sID}, 176
    s_sub_u32 s41, s{sID}, 196
    s_cmp_lt_u32 s{sID}, 184
    s_cselect_b32 s40, s40, s41             ; 0..15
    s_lshl_b32 s40, s40, 1
    s_and_b32 s41, s{sW}, 1
    s_add_u32 s{sID}, s40, s41
    s_cmp_ge_u32 s{sW}, 2
    s_cbranch_scc1 role_l
    s_branch role_a2
    """)
    a.label("role_a")
    a(f"""
    s_sub_u32 s{sID}, s{sID}, 176
    s_lshl_b32 s{sID}, s{sID}, 2
    s_add_u32 s{sID}, s{sID}, s{sW}         ; head
    role_a2:
    v_bfe_u32 v10, v{vLANE}, 3, 1           ; b
    v_and_b32 v11, 7, v{vLANE}              ; i
    v_lshrrev_b32 v15, 4, v{vLANE}          ; g
    v_lshlrev_b32 v8, 7, v15
    v_lshl_add_u32 v8, v11, 4, v8
    v_mul_u32_u24 v10, {PB_RG}, v10
    v_lshl_add_u32 v{vST}, v11, 4, v10      ; + i*16
    v_and_b32 v11, 1, v15
    v_lshl_add_u32 v{vST}, v11, 3, v{vST}   ; + (g&1)*8
    v_lshrrev_b32 v11, 1, v15
    v_lshl_add_u32 v{vSM}, v11, 7, v{vST}
    v_lshl_add_u32 v{vST}, v11, 8, v{vST}
    v_and_b32 v10, 15, v{vLANE}
    v_lshlrev_b32 v11, 2, v15               ; 4g
    """)
    for r in range(4):
        a(f"v_add_u32 v15, {r}, v11")
        a(f"v_cmp_le_u32 s[{64+r*2}:{65+r*2}], v15, v10")
    a(f"""
    s_mov_b32 s54, 0
    s_mov_b32 s55, -1
    s_lshl_b32 s{sPB}, s{sID}, 9
    s_add_u32 s{sPB}, s{sPB}, 0x{WS_PT:x}
    ; mem part offset relative to token part: 16384 + (2(h/4) + h%2)*256 + ((h>>1)&1)*4 - h*512
    s_lshr_b32 s40, s{sID}, 2
    s_lshl_b32 s40, s40, 1
    s_and_b32 s41, s{sID}, 1
    s_add_u32 s40, s40, s41
    s_lshl_b32 s40, s40, 8
    s_bfe_u32 s41, s{sID}, 0x10001
    s_lshl_b32 s41, s41, 2
    s_add_u32 s40, s40, s41
    s_add_u32 s40, s40, 16384
    s_lshl_b32 s41, s{sID}, 9
    s_sub_u32 s61, s40, s41
    s_lshl_b32 s58, s{sID}, 7
    s_add_u32 s59, s58, 0x{flag(FL_A):x}
    s_add_u32 s58, s58, 0x{flag(FL_KM):x}
    s_mov_b32 s60, 0
    s_lshl_b32 s{sKXR}, s{sID}, 13
    s_add_u32 s{sKXR}, s{sKXR}, 0x{WS_KX:x}
    s_lshl_b32 s{sKM}, s{sID}, 11
    s_add_u32 s{sKM}, s{sKM}, 0x{WS_KM:x}
    s_lshl_b32 s{sFT}, s{sID}, 7
    s_add_u32 s{sFT}, s{sFT}, 0x{flag(FL_T):x}
    s_mov_b32 s{sSEEN}, 0
    s_mov_b32 s{sSTEP}, s100
    s_cmp_eq_u32 s100, 0
    s_cbranch_scc1 a_prim
    s_add_u32 s{sPB}, s{sPB}, {(SENT0+1)*PT_STEP}
    s_add_u32 s{sKXR}, s{sKXR}, {(SENT0+1)*32*8192}
    s_add_u32 s{sKM}, s{sKM}, {(SENT0+1)*32*2048}
    s_mov_b32 s59, 0x{flag(FL_DUMMY):x}
    """)
    wait_flag(a, 58, 100, 60, Y0, sleep=32)
    a.label("a_prim")

    def a_kq(need):
        wait_flag(a, sFT, need, sSEEN, Y0+1, sleep=8)
        a(f"s_add_u32 s40, s{sKXR}, 0x{WS_QX-WS_KX:x}")
        for f in range(8):
            r, o = l16(f * 1024)
            a(f"buffer_load_dwordx4 {vr(KF2+4*f,4)}, {r}, {WS}, s{sKXR} offen offset:{o} sc1")
        for f in range(8):
            r, o = l16(f * 1024)
            a(f"buffer_load_dwordx4 {vr(QF2+4*f,4)}, {r}, {WS}, s40 offen offset:{o} sc1")
        a(f"s_add_u32 s{sKXR}, s{sKXR}, {32*8192}")
    a(f"s_add_u32 s{sNEED}, s{sSTEP}, 1")
    a_kq(sNEED)
    a.label("a_loop")
    stamp(a, 0)
    a(f"s_add_u32 s{sNEED}, s{sSTEP}, 1")
    stamp(a, 1)
    a(f"""
    s_cmp_ge_u32 s{sSTEP}, {SENT0}
    s_cbranch_scc1 a_kml
    """)
    wait_flag(a, 58, sNEED, 60, Y0, sleep=4)
    a.label("a_kml")
    for k in range(4):
        a(f"buffer_load_dwordx4 {vr(KMF2+4*k,4)}, v8, {WS}, s{sKM} offen offset:{k*512} sc1")
    a("s_waitcnt vmcnt(0)")
    vmax_chain(a, Y0, range(KMF2, KMF2+16))
    poll_fail(a, "a_kml", sleep=3)
    stamp(a, 2)
    for qt in range(2):
        for k in range(4):
            for mt in range(qt + 1):
                acc = vr(SA2+4*mt, 4)
                a(f"v_mfma_f32_16x16x32_bf16 {acc}, {vr(KF2+(mt*4+k)*4,4)}, {vr(QF2+(qt*4+k)*4,4)}, {'0' if k==0 else acc}")
            acc = vr(SA2+8, 4)
            a(f"v_mfma_f32_16x16x32_bf16 {acc}, {vr(KMF2+4*k,4)}, {vr(QF2+(qt*4+k)*4,4)}, {'0' if k==0 else acc}")
        a.nop(8)
        a(f"""
        v_cndmask_b32 v{SA2+8}, v{SA2+8}, v{SA2+10}, s[54:55]
        v_cndmask_b32 v{SA2+9}, v{SA2+9}, v{SA2+11}, s[54:55]
        """)
        xs = [SA2 + k for k in range(4*(qt+1))] + [SA2+8, SA2+9]
        round_scale(a, xs, Y0+8, 50)
        a(f"v_mov_b32 v{Y0}, 0xce6e6b28")
        for k in range(4):
            a(f"v_cndmask_b32 v{SA2+4*qt+k}, v{Y0}, v{SA2+4*qt+k}, s[{64+2*k}:{65+2*k}]")
        softmax(a, xs, Y0+6, Y0+7, 51, False)
        O = Y0 + 16 + 8*qt
        for half in range(2):
            for m in range(2):
                if m <= qt:
                    a(f"v_cvt_pk_bf16_f32 v{O+2*half+m}, v{SA2+4*m+2*half}, v{SA2+4*m+2*half+1}")
                else:
                    a(f"v_mov_b32 v{O+2*half+m}, 0")
        a(f"v_cvt_pk_bf16_f32 v{O+4}, v{SA2+8}, v{SA2+9}")
        for k in range(5):
            a(f"v_min_u32 v{O+k}, -2, v{O+k}")
        a(f"s_add_u32 s40, s{sPB}, {qt*2*PB_RG}")
        for half in range(2):
            a(f"buffer_store_dwordx2 {vr(O+2*half,2)}, v{vST}, {WS}, s40 offen offset:{half*128} sc1")
        a(f"s_add_u32 s40, s40, s61")
        a(f"buffer_store_dword v{O+4}, v{vSM}, {WS}, s40 offen sc1")
    a(f"""
    s_cmp_ge_u32 s{sSTEP}, {SENT0}
    s_cselect_b32 s46, 2, 1
    s_cselect_b32 s45, {32*8192}, 0
    s_add_u32 s{sKXR}, s{sKXR}, s45
    s_add_u32 s45, s{sNEED}, s46
    s_min_u32 s45, s45, 64
    """)
    a(f"buffer_load_dword v{Y0+2}, off, {WS}, s58 sc1")
    a_kq(45)
    a(f"""
    v_mov_b32 v{Y0}, s{sNEED}
    s_waitcnt vmcnt(16)
    s_mov_b64 exec, 1
    buffer_store_dword v{Y0}, off, {WS}, s59 sc1
    s_mov_b64 exec, -1
    v_readfirstlane_b32 s60, v{Y0+2}
    """)
    stamp(a, 3)
    stamp_flush(a, 4, 1)
    a(f"""
    s_mul_i32 s40, s46, {PT_STEP}
    s_add_u32 s{sPB}, s{sPB}, s40
    s_lshl_b32 s40, s46, 16
    s_add_u32 s{sKM}, s{sKM}, s40
    s_add_u32 s{sSTEP}, s{sSTEP}, s46
    s_cmp_lt_u32 s{sSTEP}, 64
    s_cbranch_scc1 a_loop
    s_endpgm
    """)

    a.label("role_l")
    ln_setup(a, 3, 4, False)
    a(f"""
    s_mov_b32 s40, s{sID}                   ; row
    {"s_sub_u32 s3, s3, 2" if STAMP else ""}
    {"s_add_u32 s97, s97, " + str(100*72*32) if STAMP else ""}
    s_mul_i32 s46, s40, 1280
    s_add_u32 s47, s46, 0x{WS_H2F:x}
    s_lshl_b32 s48, s40, 7
    s_add_u32 s48, s48, 0x{flag(FL_L):x}
    s_mov_b32 s49, 0x{flag(FL_CC):x}
    v_lshlrev_b32 v9, 1, v{L_DST}
    v_cndmask_b32 v9, v{L_DST}, v9, s[76:77]
    s_mov_b32 s40, {WS_MOD + 2*2560}
    s_mov_b32 s52, 20
    """)
    GA = 48
    for h in range(2):
        a(f"buffer_load_dwordx4 {vr(GA+8*h,4)}, v9, {WS}, s40 offen offset:{h*1280} sc1")
        a(f"buffer_load_dwordx4 {vr(GA+8*h+4,4)}, v9, {WS}, s40 offen offset:{h*1280+16} sc1")
    a("s_mov_b32 s54, 0")
    a.label("l_loop")
    stamp(a, 0)
    a(f"""
    s_add_u32 s45, s{sSTEP}, 1
    s_add_u32 s41, s46, 0x{WS_ATT:x}
    s_add_u32 s42, s46, 0x{WS_X1:x}
    s_mov_b32 s53, 0
    s_cmp_eq_u32 s54, 1
    s_cbranch_scc1 l_chk
    """)
    ln_load(a, XS, 46, "", False, raw=24)
    a(f"""
    s_cmp_ge_u32 s{sSTEP}, {SENT0}
    s_cbranch_scc1 l_ld
    """)
    wait_flag(a, 49, 52, 53, 16, sleep=3)
    a.label("l_ld")
    ln_load(a, WS, 41, "sc1", False)
    a(f"buffer_load_dword v17, off, {WS}, s49 offset:128 sc1")
    a("s_waitcnt vmcnt(0)")
    a.label("l_chk")
    stamp(a, 1)
    vmax_chain(a, 16, range(L_RAW, L_RAW+8))
    poll_fail(a, "l_ld", sleep=3)
    a("v_readfirstlane_b32 s55, v17")
    ln_unpack(a, False)
    for j in range(8):
        x0, x1 = L_X + 2*j, L_X + 2*j + 1
        a(f"""
        v_mul_f32 v{x0}, v{x0}, v{GA+2*j}
        v_mul_f32 v{x1}, v{x1}, v{GA+2*j+1}
        v_cvt_pk_bf16_f32 v{L_T}, v{x0}, v{x1}
        v_lshlrev_b32 v{x0}, 16, v{L_T}
        v_and_b32 v{x1}, 0xffff0000, v{L_T}
        v_lshlrev_b32 v{L_T}, 16, v{24+j}
        v_and_b32 v{L_T2}, 0xffff0000, v{24+j}
        v_add_f32 v{x0}, v{x0}, v{L_T}
        v_add_f32 v{x1}, v{x1}, v{L_T2}
        v_cvt_pk_bf16_f32 v{32+j}, v{x0}, v{x1}
        v_lshlrev_b32 v{x0}, 16, v{32+j}
        v_and_b32 v{x1}, 0xffff0000, v{32+j}
        """)
    for j in range(8):
        a(f"v_min_u32 v{32+j}, -2, v{32+j}")
    a(f"buffer_store_dwordx4 v[32:35], v{L_DST}, {WS}, s42 offen sc1")
    a(f"buffer_store_dwordx4 v[36:39], v{L_DST}, {WS}, s42 offen offset:640 sc1")
    a(f"""
    s_mov_b32 s54, 0
    s_cmp_ge_u32 s{sSTEP}, {SENT0-1}
    s_cselect_b32 s55, 20, s55
    s_cmp_lt_u32 s55, 20
    s_cbranch_scc1 l_nopf
    s_cmp_ge_u32 s{sSTEP}, 63
    s_cbranch_scc1 l_nopf
    s_mov_b32 s54, 1
    s_add_u32 s40, s46, {32*1280}
    s_add_u32 s41, s41, {32*1280}
    """)
    ln_load(a, XS, 40, "", False, raw=24)
    ln_load(a, WS, 41, "sc1", False)
    a(f"buffer_load_dword v17, off, {WS}, s49 offset:256 sc1")
    a.label("l_nopf")
    ln_compute_store(a, 47)
    a("s_add_u32 s49, s49, 128")
    stamp(a, 2)
    a(f"""
    v_mov_b32 v16, s45
    s_add_u32 s46, s46, {32*1280}
    s_add_u32 s47, s47, {32*1280}
    s_waitcnt vmcnt(0)
    s_mov_b64 exec, 1
    buffer_store_dword v16, off, {WS}, s48 sc1
    s_mov_b64 exec, -1
    """)
    stamp(a, 3)
    stamp_flush(a, 4, 1)
    a(f"""
    s_add_u32 s{sSTEP}, s{sSTEP}, 1
    s_cmp_lt_u32 s{sSTEP}, 64
    s_cbranch_scc1 l_loop
    s_endpgm
    """)

    vPT, vBM, vXS = 240, 239, 242
    sUXR, sPFC = 33, 59
    sA, sV = 61, 62
    PFB = [16, 96]
    BMB = [128, 144]
    CAC = 176
    from gen_boot import arrive
    a.label("role_c")
    a(f"s_sub_u32 s{sID}, s{sID}, 184")
    setup_p_load_addrs(a, vPA, vPB, vBM)
    a(f"""
    s_lshl_b32 s40, s{sW}, 12
    v_add_u32 v{vPT}, s40, v{vL16}
    v_add_u32 v{vRd}, s40, v{vL16}
    s_lshl_b32 s40, s{sW}, 10
    v_add_u32 v{vWr}, s40, v{vL16}
    v_add_u32 v241, 16384, v{vWr}
    v_and_b32 v10, 15, v{vLANE}             ; n
    v_lshrrev_b32 v11, 5, v{vLANE}          ; pr
    v_lshl_add_u32 v10, v11, 4, v10
    v_bfe_u32 v11, v{vLANE}, 4, 1
    v_lshlrev_b32 v11, 2, v11
    s_lshl_b32 s40, s{sW}, 3
    v_add_u32 v11, s40, v11
    v_mul_u32_u24 v11, 1280, v11
    v_lshl_add_u32 v{vXS}, v10, 1, v11
    v_and_b32 v10, 1, v{vLANE}
    v_mov_b32 v11, 0x7ffffff0
    v_cmp_ne_u32 vcc, 0, v10
    v_lshlrev_b32 v243, 7, v{vLANE}
    v_mov_b32 v232, 0
    v_cndmask_b32 v{vXS}, v{vXS}, v11, vcc
    v_mov_b32 v231, 20
    s_lshl_b32 s40, s{sW}, 10
    s_add_u32 s{sFT}, s40, 0x{flag(FL_UF):x}
    s_add_u32 s{sA}, s40, 0x{flag(FL_A):x}
    s_add_u32 s{sV}, s40, 0x{flag(FL_VO):x}
    s_mov_b32 s{sFM}, 0x{flag(FL_MEM):x}
    s_mul_i32 s73, s{sW}, {8*40960}
    s_add_u32 s73, s73, 0x{WS_UX:x}
    s_add_u32 s76, s{sID}, {CT0}
    s_cmp_ge_u32 s{sID}, {NC}
    s_cselect_b32 s77, s76, s{sID}
    s_mov_b32 s78, s77
    s_mov_b32 s79, s77
    """)

    TIX = {57: 77, 60: 78, 68: 79}

    def dec(ss, sk):
        t = TIX[ss]
        a(f"""
        s_mul_i32 s{ss}, s{t}, 3277
        s_lshr_b32 s{ss}, s{ss}, 16
        s_mul_i32 s40, s{ss}, 20
        s_sub_u32 s{sk}, s{t}, s40
        """)

    def adv(ss, sk):
        t = TIX[ss]
        a(f"""
        s_add_u32 s40, s{t}, {NC}
        s_cmp_lt_u32 s40, {CT0}
        s_cselect_b32 s40, s40, s76
        s_add_u32 s41, s{t}, {2*NC}
        s_cmp_lt_u32 s{t}, {CT0}
        s_cselect_b32 s{t}, s40, s41
        """)
        dec(ss, sk)
    dec(57, 58)
    dec(60, 63)
    dec(68, 72)

    def c_needs():
        a(f"s_add_u32 s44, s60, 1")

    def c_offs():
        a(f"""
        s_mul_i32 s{sPB}, s60, {PT_STEP}
        s_add_u32 s{sPB}, s{sPB}, 0x{WS_PT:x}
        s_add_u32 s64, s{sPB}, {PB_RG}
        s_add_u32 s65, s{sPB}, {2*PB_RG}
        s_add_u32 s66, s{sPB}, {3*PB_RG}
        s_mul_i32 s67, s60, {UM_STEP}
        s_lshl_b32 s40, s63, 9
        s_add_u32 s67, s67, s40
        s_add_u32 s67, s67, 0x{WS_UMC:x}
        s_add_u32 s69, s67, 20480
        s_add_u32 s70, s67, 40960
        s_add_u32 s71, s67, 61440
        """)

    def c_flag_loads():
        a(f"""
        s_mov_b64 exec, 255
        buffer_load_dword v233, v243, {WS}, s{sA} offen sc1
        buffer_load_dwordx4 v[224:227], v243, {WS}, s{sFT} offen sc1
        s_mov_b64 exec, -1
        """)

    def c_test(fail):
        a(f"""
        v_min3_u32 v234, v233, v224, v225
        v_min3_u32 v234, v234, v226, v227
        s_mov_b64 exec, 255
        v_cmp_gt_u32 vcc, s44, v234
        s_mov_b64 exec, -1
        s_cbranch_vccnz {fail}
        """)

    def c_block():
        c_needs()
        top, retry, done = a.newlabel("cb"), a.newlabel("cb"), a.newlabel("cb")
        a.label(top)
        c_flag_loads()
        a("s_waitcnt vmcnt(0)")
        sk = a.newlabel("cb")
        a(f"""
        s_cmp_lt_u32 s60, {SENT0}
        s_cbranch_scc1 {sk}
        v_mov_b32 v233, 64
        {sk}:
        """)
        c_test(retry)
        a(f"s_branch {done}")
        a.label(retry)
        a(f"""
        s_sub_u32 s{sBUD}, s{sBUD}, 1
        s_cmp_lt_i32 s{sBUD}, 0
        s_cbranch_scc1 {done}
        s_sleep 3
        s_branch {top}
        """)
        a.label(done)

    def c_load_list(buf):
        L = []
        for rg in range(4):
            so = [sPB, 64, 65, 66][rg]
            PF = PFB[buf] + 20*rg
            for q in range(4):
                L.append(f"buffer_load_dwordx4 {vr(PF+q*4,4)}, v{vPT}, {WS}, s{so} offen offset:{q*1024} sc1")
            L.append(f"buffer_load_dwordx4 {vr(PF+16,4)}, v241, {WS}, s{so} offen sc1")
        for j in range(4):
            for pr in range(2):
                L.append(f"buffer_load_dwordx2 {ar(BMB[buf]+pr*8+2*j,2)}, v{vBM}, {WS}, s{[67,69,70,71][j]} offen offset:{pr*256} sc1")
        return L

    def c_ux(buf, tail_wait=False):
        ok, skip, end = a.newlabel("cux"), a.newlabel("cux"), a.newlabel("cux")
        a(f"""
        s_cmp_ge_u32 s68, 64
        s_cbranch_scc1 {skip}
        s_add_u32 s45, s68, 1
        s_mov_b64 exec, 255
        v_cmp_gt_u32 vcc, s45, v232
        s_mov_b64 exec, -1
        s_cbranch_vccz {ok}
        """)
        wait_all(a, 8, 243, sV, 45, 232)
        a.label(ok)
        a(f"""
        s_mul_i32 s{sUXR}, s68, {UX_STEP}
        s_lshl_b32 s40, s72, 11
        s_add_u32 s{sUXR}, s{sUXR}, s40
        s_add_u32 s{sUXR}, s{sUXR}, s73
        """)
        for hh in range(8):
            for pr in range(2):
                a(f"buffer_load_dwordx4 {ar(buf*64+pr*32+hh*4,4)}, v{vL16}, {WS}, s{sUXR} offen offset:{pr*1024} sc1")
            a(f"s_add_u32 s{sUXR}, s{sUXR}, 40960")
        if tail_wait:
            a("s_waitcnt vmcnt(16)")
            a(f"s_branch {end}")
        a.label(skip)
        if tail_wait:
            a("s_waitcnt vmcnt(0)")
        a.label(end)
        adv(68, 72)

    def c_burst(buf):
        c_block()
        c_offs()
        top = a.newlabel("cbl")
        a.label(top)
        for x in c_load_list(buf):
            a(x)
        c_flag_loads()
        a("s_waitcnt vmcnt(0)")
        vmax_chain(a, 3, range(PFB[buf], PFB[buf]+80))
        poll_fail(a, top, sleep=4)
        adv(60, 63)

    def c_compute(buf, LL):
        b = Asm()
        for r in range(32):
            b(f"v_mov_b32 v{CAC+r}, 0")
        b.nop(1)
        for q in range(5):
            for pr in range(2):
                for rg in range(4):
                    f = PFB[buf] + 20*rg + q*4
                    B = ar(buf*64+pr*32+q*8, 8) if q < 4 else ar(BMB[buf]+pr*8, 8)
                    b(f"v_smfmac_f32_16x16x64_bf16 {vr(CAC+(pr*4+rg)*4,4)}, {vr(f,4)}, {B}, v{vIDX}")
        b.nop(6)
        for rg in range(4):
            A, B = CAC + rg*4, CAC + (4+rg)*4
            for r in range(4):
                b(f"v_permlane32_swap_b32 v{A+r}, v{B+r}")
            for r in range(4):
                b(f"v_add_f32 v{A+r}, v{A+r}, v{B+r}")
            b(f"ds_write_b128 v{vWr}, {vr(A,4)} offset:{rg*4096}")
        b(f"""
        s_waitcnt lgkmcnt(0)
        s_barrier
        """)
        FT = 208
        for q in range(4):
            b(f"ds_read_b128 {vr(FT+4*q,4)}, v{vRd} offset:{q*1024}")
        b(f"""
        s_mul_i32 s74, s57, {32*1280}
        s_lshl_b32 s75, s58, 6
        s_add_u32 s74, s74, s75
        s_add_u32 s74, s74, 0x{WS_ATT:x}
        s_lshl_b32 s75, s57, 7
        s_add_u32 s75, s75, 0x{flag(FL_CC):x}
        s_waitcnt lgkmcnt(0)
        """)
        for r in range(4):
            b(f"v_add_f32 v{FT+r}, v{FT+r}, v{FT+4+r}")
            b(f"v_add_f32 v{FT+8+r}, v{FT+8+r}, v{FT+12+r}")
        for r in range(4):
            b(f"v_add_f32 v{FT+r}, v{FT+r}, v{FT+8+r}")
        b.nop(1)
        for r in range(4):
            b(f"v_mov_b32_dpp v{FT+8+r}, v{FT+r} quad_perm:[1,0,3,2] row_mask:0xf bank_mask:0xf")
        for r in range(4):
            b(f"v_cvt_pk_bf16_f32 v{FT+r}, v{FT+r}, v{FT+8+r}")
            b(f"v_min_u32 v{FT+r}, -2, v{FT+r}")
            b(f"buffer_store_dword v{FT+r}, v{vXS}, {WS}, s74 offen offset:{r*1280} sc1")
        LL = list(LL)
        acc = 0
        for ln in b.lines:
            t = ln.strip()
            a.lines.append(ln)
            if not t or t.startswith(";"):
                continue
            if t.startswith("v_smfmac"):
                acc += 16
            elif t.startswith("ds_") or t.startswith("s_waitcnt") or t.startswith("s_barrier"):
                acc += 24
            elif t.startswith("buffer_store"):
                acc = 0
            else:
                acc += 4
            if acc >= C_GAP and LL and not t.startswith("v_cvt_pk_bf16_f32 v2"):
                a(LL.pop(0))
                acc = 0
        for x in LL:
            a(x)

    c_ux(0)
    c_ux(1)
    c_burst(0)
    a.label("c_loop")
    for buf in range(2):
        stamp(a, 0)
        plain, join, nb = a.newlabel("cpl"), a.newlabel("cjn"), a.newlabel("cnb")
        c_needs()
        a(f"s_mov_b32 s{sPFC}, 0")
        c_test(plain)
        a(f"""
        s_cmp_ge_u32 s60, {SENT0}
        s_cbranch_scc1 {plain}
        s_mov_b32 s{sPFC}, 1
        """)
        c_offs()
        c_compute(buf, c_load_list(1 - buf))
        c_flag_loads()
        adv(60, 63)
        a(f"s_branch {join}")
        a.label(plain)
        c_compute(buf, [])
        a.label(join)
        stamp(a, 1)
        a(f"""
        s_waitcnt vmcnt(0)
        s_barrier
        s_cmp_lg_u32 s{sW}, 3
        s_cbranch_scc1 c_nf{buf}
        s_lshl_b32 s40, s57, 2
        s_add_u32 s40, s40, 0x{flag(FL_CN):x}
        v_mov_b32 v230, 1
        s_mov_b64 exec, 1
        buffer_atomic_add v230, off, {WS}, s40 sc0
        s_mov_b64 exec, -1
        c_nf{buf}:
        """)
        c_ux(buf, tail_wait=True)
        a(f"""
        s_cmp_lg_u32 s{sW}, 3
        s_cbranch_scc1 c_ng{buf}
        s_mov_b64 exec, 1
        v_cmp_eq_u32 vcc, 19, v230
        s_cbranch_vccz c_nh{buf}
        buffer_store_dword v231, off, {WS}, s75 sc1
        c_nh{buf}:
        s_mov_b64 exec, -1
        c_ng{buf}:
        """)
        adv(57, 58)
        stamp(a, 2)
        stamp_flush(a, 3, 1)
        a(f"""
        s_add_u32 s{sSTEP}, s{sSTEP}, 1
        s_cmp_ge_u32 s57, 64
        s_cbranch_scc1 r_end
        s_cmp_eq_u32 s{sPFC}, 1
        s_cbranch_scc1 {nb}
        """)
        c_burst(1 - buf)
        a.label(nb)
    a("s_branch c_loop")
    a.label("pre_boot")
    a(f"""
    v_mov_b32 v134, -1
    s_sub_u32 s40, s{sID}, 102
    s_lshl_b32 s40, s40, 21
    s_add_u32 s40, s40, 0x{WS_CRA + 0x1F0000:x}
    s_lshl_b32 s41, s{sW}, 14
    s_add_u32 s40, s40, s41
    s_mov_b32 s42, -1
    s_mov_b32 s43, -1
    s_mov_b64 exec, 1
    """)
    for k in range(3):
        for half in range(2):
            a(f"""
            s_add_u32 s41, s40, {half*8192 + (k%2)*4096 + k*1152}
            s_memtime s[44:45]
            s_waitcnt lgkmcnt(0)
            buffer_store_dword v134, off, {WS}, s41 sc1
            s_waitcnt vmcnt(0)
            buffer_load_dword v135, off, {WS}, s41 sc1
            s_waitcnt vmcnt(0)
            s_memtime s[46:47]
            s_waitcnt lgkmcnt(0)
            s_sub_u32 s46, s46, s44
            s_min_u32 s{42+half}, s{42+half}, s46
            """)
    a(f"""
    v_mov_b32 v136, s42
    v_mov_b32 v137, s43
    s_lshl_b32 s40, s{sW}, 3
    v_mov_b32 v135, s40
    ds_write_b64 v135, v[136:137]
    s_mov_b64 exec, -1
    s_waitcnt lgkmcnt(0)
    s_barrier
    v_mov_b32 v135, 0
    ds_read_b128 v[124:127], v135
    ds_read_b128 v[128:131], v135 offset:16
    s_waitcnt lgkmcnt(0)
    v_add3_u32 v124, v124, v126, v128
    v_add3_u32 v125, v125, v127, v129
    v_add_u32 v124, v124, v130
    v_add_u32 v125, v125, v131
    v_cmp_lt_u32 vcc, v125, v124
    v_mov_b32 v126, 1
    v_mov_b32 v127, 3
    v_cndmask_b32 v126, v126, v127, vcc
    {"v_mov_b32 v126, " + FORCEPOL if FORCEPOL else ""}
    s_sub_u32 s40, s{sID}, 102
    s_lshl_b32 s40, s40, 2
    s_barrier
    s_cmp_lg_u32 s{sW}, 0
    s_cbranch_scc1 boot_nrm0
    s_mov_b64 exec, 1
    buffer_store_dword v126, off, {DBG}, s40 offset:176 sc1
    s_mov_b64 exec, -1
    s_branch boot_nrm0
    """)
    from gen_boot import gen_boot
    gen_boot(a)
    from gen_f import gen_phase2
    gen_phase2(a)
    a.label("r_end")
    a("s_endpgm")
    a.label("r_code_end")
    return (L, 256, 256, 131072, kernel_desc(L, 512, 256))
```

```python
from gen_common import *
import os

P_SLEEP0 = int(os.environ.get("P_SLEEP0", "35"))
P_SLEEP1 = int(os.environ.get("P_SLEEP1", "46"))
U_SLEEPM = int(os.environ.get("U_SLEEPM", "14"))
U_SLEEPP = int(os.environ.get("U_SLEEPP", "12"))
STAMP = int(os.environ.get("STAMP", "0"))
L1FIRST = 0
FORCEPOL = os.environ.get("FORCEPOL", "")
U_SLEEPD = int(os.environ.get("U_SLEEPD", "22"))
DOOR = int(os.environ.get("DOOR", "1"))
C_GAP = int(os.environ.get("C_GAP", "56"))
C_UXTAIL = int(os.environ.get("C_UXTAIL", "16"))
V_SLEEP = int(os.environ.get("V_SLEEP", "14"))
VM_FILL = int(os.environ.get("VM_FILL", "3"))
PKADD = int(os.environ.get("PKADD", "1"))
PDELAY = int(os.environ.get("PDELAY", "0"))
TDEPTH = int(os.environ.get("TDEPTH", "2"))
PDEPTH = int(os.environ.get("PDEPTH", "2"))
CT0 = 20 * int(os.environ.get("CSEG0", "48"))
XMAP = int(os.environ.get("XMAP", "76540321"), 16)
WARM = int(os.environ.get("WARM", "0"))
DST = int(os.environ.get("DST", "0"))
NOTOK = int(os.environ.get("NOTOK", "0"))

WS, DBG, WQ, WK, XS = "s[8:11]", "s[12:15]", "s[16:19]", "s[20:23]", "s[24:27]"
sW, sID, sSTEP, sBUD = 3, 28, 29, 30
vLANE, vIDX = 2, 4
vL16, vL16b, vL16c = 5, 6, 7
vM8 = 187
sSA, sSB = 98, 99
MEMF = 16
ACC = 56
LDS_T = 0x14000
LDS_R = 0x15000
LDS_ROLE = 0x1F000


def wreg(t, ks, n=4):
    idx = (t * 20 + ks) * 4
    if idx < 256:
        return ar(idx, n)
    return vr(192 + idx - 256, n)


def widx(idx, n=4):
    return ar(idx, n) if idx < 256 else vr(192 + idx - 256, n)


def l16(off):
    return f"v{vL16 + off // 4096}", off % 4096


def poll_fail(a, retry_label, sleep=2):
    ok = a.newlabel("pok")
    a(f"""
    s_cbranch_vccz {ok}
    s_sub_u32 s{sBUD}, s{sBUD}, 1
    s_cmp_lt_i32 s{sBUD}, 0
    s_cbranch_scc1 {ok}
    s_sleep {sleep}
    s_branch {retry_label}
    """)
    a.label(ok)


def wait_flag(a, s_flagoff, s_need, s_seen, vt, sleep=8):
    top = a.newlabel("wf")
    done = a.newlabel("wfd")
    a.label(top)
    a(f"""
    s_cmp_ge_u32 s{s_seen}, s{s_need}
    s_cbranch_scc1 {done}
    buffer_load_dword v{vt}, off, {WS}, s{s_flagoff} sc1
    s_waitcnt vmcnt(0)
    v_readfirstlane_b32 s{s_seen}, v{vt}
    s_nop 3
    s_cmp_ge_u32 s{s_seen}, s{s_need}
    s_cbranch_scc1 {done}
    s_sub_u32 s{sBUD}, s{sBUD}, 1
    s_cmp_lt_i32 s{sBUD}, 0
    s_cbranch_scc1 {done}
    s_sleep {sleep}
    s_branch {top}
    """)
    a.label(done)


def vmax_chain(a, vt, regs):
    regs = list(regs)
    a(f"v_max3_u32 v{vt}, v{regs[0]}, v{regs[1]}, v{regs[2]}")
    k = 3
    while k < len(regs):
        if k + 1 < len(regs):
            a(f"v_max3_u32 v{vt}, v{vt}, v{regs[k]}, v{regs[k+1]}")
            k += 2
        else:
            a(f"v_max_u32 v{vt}, v{vt}, v{regs[k]}")
            k += 1
    a(f"v_cmp_eq_u32 vcc, -1, v{vt}")


def get_pol(a, vt):
    from gen_boot import dbg_wait_wg, DBG_INIT, DBG_POL
    dbg_wait_wg(a, [(DBG_INIT, 1), (DBG_POL, 1), (DBG_POL+4, 1)], vt)
    a(f"""
    buffer_load_dwordx2 v[184:185], off, {DBG}, 0 offset:{DBG_POL} sc1
    s_waitcnt vmcnt(0)
    v_readfirstlane_b32 s{sSA}, v184
    v_readfirstlane_b32 s{sSB}, v185
    s_nop 3
    s_and_b32 s{sSA}, s{sSA}, 2
    s_lshl_b32 s{sSA}, s{sSA}, 12
    s_and_b32 s{sSB}, s{sSB}, 2
    s_lshl_b32 s{sSB}, s{sSB}, 12
    v_add_u32 v{vM8}, 16384, v{vL16}
    """)


def mem_loads(a, s_memoff, flag="sc1", start=0):
    for kb in range(start, 10):
        r, o = l16(kb * 1024)
        if kb >= 8:
            r = f"v{vM8}"
        a(f"buffer_load_dwordx4 {vr(MEMF+4*kb,4)}, {r}, {WS}, s{s_memoff} offen offset:{o} {flag}")


DEFERRED = []
MODE2 = [False]


def flush_deferred(a):
    for f in DEFERRED:
        f()
    DEFERRED.clear()


def mem_proj(a, tiles, s_memoff, vmax, sleep=1, after_first=None):
    base = a.newlabel("mp")
    mem_loads(a, s_memoff, "" if L1FIRST else "sc1")
    for t in tiles:
        for r in range(4):
            a(f"v_mov_b32 v{ACC+4*t+r}, 0")

    def chk(kb):
        f = MEMF + 4 * kb
        return [f"s_waitcnt vmcnt({9-kb})",
                f"v_max3_u32 v{vmax}, v{f}, v{f+1}, v{f+2}",
                f"v_max_u32 v{vmax}, v{vmax}, v{f+3}\nv_cmp_eq_u32 vcc, -1, v{vmax}"]
    for x in chk(0):
        a(x)
    a(f"s_cbranch_vccnz {base}_r0")
    for kb in range(10):
        f = MEMF + 4 * kb
        a.label(f"{base}_c{kb}")
        if STAMP == 2 and kb in (0, 4, 9):
            a(f"s_memrealtime s[{ {0:86,4:88,9:90}[kb] }:{ {0:87,4:89,9:91}[kb] }]")
        if kb == 9 and after_first:
            after_first()
        nxt = chk(kb + 1) if kb < 9 else []
        for n, t in enumerate(tiles):
            a(f"v_smfmac_f32_16x16x64_bf16 {vr(ACC+4*t,4)}, {vr(f,4)}, {wreg(t,2*kb,8)}, v{vIDX}")
            if n < len(nxt):
                a(nxt[n])
        for x in nxt[len(tiles):]:
            a(x)
        if kb < 9:
            a(f"s_cbranch_vccnz {base}_r{kb+1}")

    def ool():
        for kb in range(10):
            a.label(f"{base}_r{kb}")
            a(f"""
            s_sub_u32 s{sBUD}, s{sBUD}, 1
            s_cmp_lt_i32 s{sBUD}, 0
            s_cbranch_scc1 {base}_c{kb}
            s_sleep {sleep}
            """)
            mem_loads(a, s_memoff, "sc1", kb)
            for x in chk(kb):
                a(x)
            a(f"s_cbranch_vccnz {base}_r{kb}")
            a(f"s_branch {base}_c{kb}")
    DEFERRED.append(ool)


LDS_M = 0x18000


def mem_setup(a):
    a(f"""
    s_lshl_b32 s40, s{sW}, 10
    v_add_u32 v176, s40, v{vL16}
    v_add_u32 v177, 4096, v176
    v_add_u32 v178, 16384, v176
    v_add_u32 v179, 0x{LDS_M:x}, v176
    v_add_u32 v175, 0x{LDS_M:x}, v{vL16}
    s_cmp_lt_u32 s{sW}, 2
    s_cbranch_scc1 {a.newlabel("ms")}_ok
    v_mov_b32 v178, 0x7ffffff0
    """)
    a.label(f"ms_{a.uid}_ok")


def mem_proj2(a, order, s_memoff, vmax, after_valid=None, fill=None):
    top = a.newlabel("mq")
    G = 160
    a.label(top)
    for k in range(3):
        a(f"buffer_load_dwordx4 {vr(G+4*k,4)}, v{176+k}, {WS}, s{s_memoff} offen sc1")
    for grp in order:
        for t in grp:
            for r in range(4):
                a(f"v_mov_b32 v{ACC+4*t+r}, 0")
    a("s_waitcnt vmcnt(2)")
    a(f"ds_write_b128 v179, {vr(G,4)}")
    a(f"v_max3_u32 v{vmax}, v{G}, v{G+1}, v{G+2}")
    a("s_waitcnt vmcnt(1)")
    a(f"ds_write_b128 v179, {vr(G+4,4)} offset:4096")
    a(f"v_max3_u32 v{vmax}, v{vmax}, v{G+3}, v{G+4}")
    a(f"v_max3_u32 v{vmax}, v{vmax}, v{G+5}, v{G+6}")
    a("s_waitcnt vmcnt(0)")
    a(f"ds_write_b128 v179, {vr(G+8,4)} offset:8192")
    a(f"v_max3_u32 v{vmax}, v{vmax}, v{G+7}, v{G+8}")
    a(f"v_max3_u32 v{vmax}, v{vmax}, v{G+9}, v{G+10}")
    a(f"v_max_u32 v{vmax}, v{vmax}, v{G+11}")
    a(f"v_cmp_eq_u32 vcc, -1, v{vmax}")
    poll_fail(a, top, sleep=1)
    if after_valid:
        after_valid()
    if STAMP == 2:
        a("s_memrealtime s[86:87]")
    join = a.newlabel("mj")
    labs = [a.newlabel("mw") for _ in range(4)]
    a(f"""
    s_cmp_ge_u32 s{sW}, 2
    s_cbranch_scc1 {labs[2]}
    s_cmp_eq_u32 s{sW}, 1
    s_cbranch_scc1 {labs[1]}
    """)

    def sm(t, kb, src):
        a(f"v_smfmac_f32_16x16x64_bf16 {vr(ACC+4*t,4)}, {vr(src,4)}, {wreg(t,2*kb,8)}, v{vIDX}")
    for w in range(4):
        a.label(labs[w])
        if w == 2:
            a(f"""
            s_cmp_eq_u32 s{sW}, 3
            s_cbranch_scc1 {labs[3]}
            """)
        own = [w, w + 4] + ([8 + w] if w < 2 else [])
        oth = [kb for kb in range(10) if kb not in own]
        a("s_waitcnt lgkmcnt(0)")
        a("s_barrier")
        if STAMP == 2:
            a("s_memrealtime s[88:89]")
        for kb in oth:
            a(f"ds_read_b128 {vr(MEMF+4*kb,4)}, v175 offset:{kb*1024}")
        for grp in order:
            for k, kb in enumerate(own):
                for t in grp:
                    sm(t, kb, G + 4*k)
        for gi, grp in enumerate(order):
            F = list(fill.get(gi, [])) if fill else []
            n = 0
            tot = len(oth) * len(grp)
            for k, kb in enumerate(oth):
                if gi == 0:
                    a(f"s_waitcnt lgkmcnt({len(oth)-1-k})")
                for t in grp:
                    sm(t, kb, MEMF + 4*kb)
                    n += 1
                    if F and n == 2:
                        a.nop(6)
                    if n >= 2 and F:
                        a(F.pop(0))
            for x in F:
                a(x)
        if w < 3:
            a(f"s_branch {join}")
    a.label(join)
    if STAMP == 2:
        a("s_memrealtime s[90:91]")


def combine_list(t0, t1, d01, d23):
    A, B = ACC + 4 * t0, ACC + 4 * t1
    L = [f"v_permlane32_swap_b32 v{A+r}, v{B+r}" for r in range(4)]
    L += [f"v_pk_add_f32 v[{A+r}:{A+r+1}], v[{A+r}:{A+r+1}], v[{B+r}:{B+r+1}]" for r in (0, 2)]
    L += [f"v_cvt_pk_bf16_f32 v{d01}, v{A}, v{A+1}", f"v_cvt_pk_bf16_f32 v{d23}, v{A+2}, v{A+3}"]
    return L


def combine_pair(a, t0, t1, d01, d23):
    A, B = ACC + 4 * t0, ACC + 4 * t1
    for r in range(4):
        a(f"v_permlane32_swap_b32 v{A+r}, v{B+r}")
    if PKADD:
        for r in (0, 2):
            a(f"v_pk_add_f32 v[{A+r}:{A+r+1}], v[{A+r}:{A+r+1}], v[{B+r}:{B+r+1}]")
    else:
        for r in range(4):
            a(f"v_add_f32 v{A+r}, v{A+r}, v{B+r}")
    a(f"v_cvt_pk_bf16_f32 v{d01}, v{A}, v{A+1}")
    a(f"v_cvt_pk_bf16_f32 v{d23}, v{A+2}, v{A+3}")


def load_wqk(a, mats=(WQ, WK), depth=3):
    a.comment("---- load Wq/Wk fragments")
    a(f"""
    v_lshrrev_b32 v10, 4, v{vLANE}          ; r = lane/16
    v_and_b32 v11, 15, v{vLANE}             ; chunk'
    v_and_b32 v12, 1, v10
    s_lshl_b32 s40, s{sW}, 1
    v_or_b32 v12, s40, v12                  ; f = (r&1)|(w<<1)
    v_lshlrev_b32 v12, 1, v12
    v_xor_b32 v11, v11, v12
    v_lshlrev_b32 v11, 4, v11
    s_lshl_b32 s40, s{sW}, 2
    v_add_u32 v12, s40, v10                 ; 4w+r
    v_lshl_add_u32 v11, v12, 13, v11
    s_lshl_b32 s41, s{sID}, 8
    s_lshl_b32 s42, s{sW}, 10
    v_bfe_u32 v12, v{vLANE}, 2, 2           ; r
    v_and_b32 v13, 3, v{vLANE}              ; c
    v_lshrrev_b32 v14, 1, v10               ; g>>1
    v_lshlrev_b32 v14, 4, v14               ; 16*(g>>1)
    v_and_b32 v15, 1, v10                   ; g&1
    v_lshl_add_u32 v14, v15, 2, v14         ; +4*(g&1)
    v_and_b32 v16, 1, v12
    v_add_u32 v14, v14, v16                 ; +(r&1)
    v_lshrrev_b32 v17, 1, v12               ; r>>1
    v_lshl_add_u32 v14, v17, 3, v14         ; +8*(r>>1)
    v_lshlrev_b32 v14, 8, v14
    v_lshl_add_u32 v14, v13, 3, v14         ; + c*8
    v_lshl_or_b32 v16, v15, 1, v16
    v_lshl_or_b32 v16, v17, 2, v16          ; f
    v_lshl_or_b32 v14, v16, 5, v14
    s_lshl_b32 s40, s{sW}, 6                ; (2w)<<5
    v_xor_b32 v18, s40, v14                 ; tile 2w
    v_xor_b32 v19, 32, v18                  ; tile 2w+1
    v_add_u32 v20, 0x10000, v18
    v_add_u32 v21, 0x10000, v19
    """)

    nm = len(mats)

    def dma(cn):
        buf = cn % 4
        for mat, sd in enumerate(mats):
            for q in range(4):
                a(f"""
                s_add_u32 s43, s42, {buf*32768 + mat*16384 + q*4096}
                s_mov_b32 m0, s43
                s_add_u32 s44, s41, {(cn*64+16*q)*8192}
                buffer_load_dwordx4 v11, {sd}, s44 offen lds
                """)
    for cn in range(depth):
        dma(cn)
    for cn in range(10):
        later = min(depth - 1, 9 - cn)
        a(f"s_waitcnt vmcnt({4*nm*later})")
        a("s_barrier")
        if cn + depth < 10:
            dma(cn + depth)
        buf = cn % 4
        for mat in range(nm):
            for tt in range(2):
                for ksl in range(2):
                    for j in range(2):
                        idx = ((mat*2+tt) * 20 + cn*2 + ksl) * 4 + 2*j
                        av = 18 + tt + (2 if buf >= 2 else 0)
                        a(f"ds_read_b64_tr_b16 {widx(idx,2)}, v{av} offset:{(buf&1)*32768 + mat*16384 + ksl*8192 + j*512}")
            a("s_waitcnt lgkmcnt(0)")
    a("s_barrier")


def load_wo(a, sd):
    a.comment("---- load Wo fragments")
    for q in range(5):
        a(f"""
        v_add_u32 v10, {64*q}, v{vLANE}
        v_mul_u32_u24 v11, 3277, v10
        v_lshrrev_b32 v11, 16, v11            ; row = q/20
        v_mul_u32_u24 v12, 20, v11
        v_sub_u32 v10, v10, v12               ; chunk
        v_mul_u32_u24 v11, 1280, v11
        v_lshl_add_u32 v{16+q}, v10, 4, v11
        """)
    a(f"""
    s_mul_i32 s41, s{sID}, 163840
    s_mul_i32 s40, s{sW}, 320
    s_add_u32 s41, s41, s40                 ; soffset
    s_mul_i32 s42, s{sW}, 20480
    v_lshrrev_b32 v10, 4, v{vLANE}          ; g
    v_bfe_u32 v11, v{vLANE}, 2, 2           ; r
    v_lshl_add_u32 v10, v10, 2, v11
    v_mul_u32_u24 v10, 320, v10
    v_and_b32 v11, 3, v{vLANE}
    v_lshl_add_u32 v10, v11, 3, v10
    v_add_u32 v21, s42, v10
    """)
    for half in range(2):
        a("s_mov_b32 s43, s42")
        for blk in range(4):
            for q in range(5):
                a(f"""
                s_mov_b32 m0, s43
                s_add_u32 s43, s43, 1024
                buffer_load_dwordx4 v{16+q}, {sd}, s41 offen lds
                """)
            a(f"s_add_u32 s41, s41, {16*1280}")
        a("s_waitcnt vmcnt(0)")
        for jt in range(10):
            for kl in range(2):
                for j in range(2):
                    idx = 160 + (jt*4 + half*2 + kl) * 4 + 2*j
                    a(f"ds_read_b64_tr_b16 {widx(idx,2)}, v21 offset:{(32*kl+16*j)*320 + jt*32}")
            if jt % 2 == 1:
                a("s_waitcnt lgkmcnt(0)")
    a("s_barrier")


def load_wvo(a):
    a.comment("---- load Wvo fragments (linear)")
    a(f"""
    s_lshl_b32 s40, s{sID}, 2
    s_add_u32 s40, s40, s{sW}
    s_mul_i32 s40, s40, 81920
    s_add_u32 s40, s40, 0x{WS_WVO:x}
    """)
    for f in range(80):
        a(f"buffer_load_dwordx4 {wreg(f//20, f%20)}, v{vL16}, {WS}, s40 offen offset:{(f%4)*1024}")
        if f % 4 == 3:
            a("s_add_u32 s40, s40, 4096")
        if f % 40 == 39:
            a("s_waitcnt vmcnt(20)" if f < 79 else "s_waitcnt vmcnt(0)")


vHG = 15


def dma_h_setup(a):
    a(f"""
    v_and_b32 v10, 15, v{vLANE}
    v_mul_u32_u24 v10, 1280, v10
    v_lshrrev_b32 v{vHG}, 4, v{vLANE}
    v_lshl_add_u32 v{vHG}, v{vHG}, 4, v10
    """)


def dma_h_init(a, s_hoff, s_buf):
    a(f"""
    s_mul_i32 s43, s{sW}, 10240
    s_add_u32 s43, s43, s{s_buf}
    s_lshr_b32 s44, s{sW}, 1
    s_mul_i32 s44, s44, 20480
    s_and_b32 s45, s{sW}, 1
    s_mul_i32 s45, s45, 640
    s_add_u32 s44, s44, s45
    s_add_u32 s44, s44, s{s_hoff}
    """)


def dma_h_one(a):
    a(f"""
    s_mov_b32 m0, s43
    s_add_u32 s43, s43, 1024
    buffer_load_dwordx4 v{vHG}, {WS}, s44 offen sc1 lds
    s_add_u32 s44, s44, 64
    """)


def dmal_init(a, s_hoff, s_buf):
    a(f"""
    s_mul_i32 s43, s{sW}, 10240
    s_add_u32 s44, s43, s{s_hoff}
    s_add_u32 s43, s43, s{s_buf}
    """)


def dmal_one(a):
    a(f"""
    s_mov_b32 m0, s43
    s_add_u32 s43, s43, 1024
    buffer_load_dwordx4 v{vL16}, {WS}, s44 offen sc1 lds
    s_add_u32 s44, s44, 1024
    """)


def dma_h(a, s_hoff, s_buf):
    dma_h_init(a, s_hoff, s_buf)
    for k in range(10):
        dma_h_one(a)


HF = 104
TACC = 72


def dense_proj(a, vH, transposed, hook=None, tiles=(0, 1, 2, 3)):
    def rd(ks):
        st = HF + (ks % 3) * 8
        for mt in range(2):
            a(f"ds_read_b128 {vr(st+4*mt,4)}, v{vH} offset:{mt*20480+ks*1024}")
    rd(0)
    rd(1)
    for ks in range(20):
        if ks + 2 < 20:
            rd(ks + 2)
            a("s_waitcnt lgkmcnt(4)")
        elif ks + 1 < 20:
            a("s_waitcnt lgkmcnt(2)")
        else:
            a("s_waitcnt lgkmcnt(0)")
        st = HF + (ks % 3) * 8
        for n, t in enumerate(tiles):
            for mt in range(2):
                acc = vr(TACC + (t*2+mt)*4, 4)
                c = "0" if ks == 0 else acc
                if transposed:
                    a(f"v_mfma_f32_16x16x32_bf16 {acc}, {wreg(t,ks)}, {vr(st+4*mt,4)}, {c}")
                else:
                    a(f"v_mfma_f32_16x16x32_bf16 {acc}, {vr(st+4*mt,4)}, {wreg(t,ks)}, {c}")
            if n == len(tiles) // 2 - 1 and hook:
                hook(ks)


def round_scale(a, xs, tmp, s_scale):
    def rnd():
        for k in range(0, len(xs), 2):
            x0 = xs[k]
            x1 = xs[k+1] if k + 1 < len(xs) else xs[k]
            a(f"v_cvt_pk_bf16_f32 v{tmp+k//2}, v{x0}, v{x1}")
        for k in range(0, len(xs), 2):
            a(f"v_lshlrev_b32 v{xs[k]}, 16, v{tmp+k//2}")
            if k + 1 < len(xs):
                a(f"v_and_b32 v{xs[k+1]}, 0xffff0000, v{tmp+k//2}")
    rnd()
    for x in xs:
        a(f"v_mul_f32 v{x}, s{s_scale}, v{x}")
    rnd()


def xlane(a, op, v, t, with8):
    if with8:
        a.nop(2)
        a(f"{op}_dpp v{v}, v{v}, v{v} row_ror:8 row_mask:0xf bank_mask:0xf")
    for sw in ("v_permlane16_swap_b32", "v_permlane32_swap_b32"):
        a(f"v_mov_b32 v{t}, v{v}")
        a.nop(2)
        a(f"{sw} v{v}, v{t}")
        a(f"{op} v{v}, v{v}, v{t}")


def softmax(a, xs, vm, vt, s_log2e, with8):
    a(f"v_max3_f32 v{vm}, v{xs[0]}, v{xs[1]}, v{xs[2]}")
    k = 3
    while k < len(xs):
        if k + 1 < len(xs):
            a(f"v_max3_f32 v{vm}, v{vm}, v{xs[k]}, v{xs[k+1]}")
            k += 2
        else:
            a(f"v_max_f32 v{vm}, v{vm}, v{xs[k]}")
            k += 1
    xlane(a, "v_max_f32", vm, vt, with8)
    for x in xs:
        a(f"v_sub_f32 v{x}, v{x}, v{vm}")
    for x in xs:
        a(f"v_mul_f32 v{x}, s{s_log2e}, v{x}")
    for x in xs:
        a(f"v_exp_f32 v{x}, v{x}")
    a(f"v_add_f32 v{vm}, v{xs[0]}, v{xs[1]}")
    for x in xs[2:]:
        a(f"v_add_f32 v{vm}, v{vm}, v{x}")
    xlane(a, "v_add_f32", vm, vt, with8)
    a(f"v_rcp_f32 v{vm}, v{vm}")
    a.nop(1)
    for x in xs:
        a(f"v_mul_f32 v{x}, v{x}, v{vm}")


def setup_qk_lds_addrs(a, vW, vR):
    a(f"""
    v_and_b32 v10, 15, v{vLANE}             ; n
    v_lshrrev_b32 v11, 4, v{vLANE}          ; g
    v_lshrrev_b32 v12, 1, v11
    v_lshl_add_u32 v10, v12, 4, v10         ; 16*(g>>1)+n
    s_lshl_b32 s40, s{sW}, 5
    v_add_u32 v10, s40, v10                 ; +32w
    v_lshlrev_b32 v10, 4, v10
    v_and_b32 v12, 1, v11
    v_lshl_add_u32 v10, v12, 3, v10
    v_add_u32 v{vW}, 0x{LDS_T:x}, v10
    v_bfe_u32 v12, v{vLANE}, 2, 2           ; r
    v_lshl_add_u32 v12, v11, 2, v12         ; 4g+r
    v_lshlrev_b32 v12, 4, v12
    v_and_b32 v13, 1, v{vLANE}
    v_lshl_add_u32 v12, v13, 3, v12
    v_add_u32 v{vR}, 0x{LDS_T:x}, v12
    """)


def setup_p_load_addrs(a, vA, vB, vM, wstride=8*640, hstride=10240):
    a(f"""
    v_bfe_u32 v10, v{vLANE}, 3, 1           ; rho
    v_and_b32 v11, 7, v{vLANE}              ; i
    v_lshrrev_b32 v12, 4, v{vLANE}          ; gA
    v_lshrrev_b32 v13, 1, v12               ; gA>>1
    v_and_b32 v14, 1, v12                   ; gA&1
    s_mul_i32 s40, s{sW}, {wstride}
    v_mul_u32_u24 v15, 640, v10
    v_add_u32 v15, s40, v15
    v_lshl_add_u32 v15, v13, 8, v15
    v_lshl_add_u32 v15, v11, 5, v15
    v_lshl_add_u32 v{vA}, v14, 4, v15
    v_lshl_add_u32 v15, v13, 2, v14
    v_mul_u32_u24 v15, 640, v15
    v_add_u32 v15, s40, v15
    v_lshl_add_u32 v15, v10, 6, v15
    v_lshl_add_u32 v15, v11, 3, v15
    v_add_u32 v{vB}, 512, v15
    s_mul_i32 s40, s{sW}, {8*hstride}
    v_mul_u32_u24 v15, {hstride}, v13
    v_add_u32 v15, s40, v15
    v_lshl_add_u32 v15, v14, 7, v15
    v_and_b32 v11, 15, v{vLANE}
    v_lshl_add_u32 v{vM}, v11, 3, v15
    """)


def p_loads(a, PF, vA, vB, s_off):
    for blk in range(2):
        for pi in range(2):
            a(f"buffer_load_dwordx4 {vr(PF+(blk*2+pi)*4,4)}, v{vA}, {WS}, s{s_off} offen offset:{(4*blk+pi)*640} sc1")
    for pi in range(2):
        a(f"buffer_load_dwordx2 {vr(PF+16+2*pi,2)}, v{vB}, {WS}, s{s_off} offen offset:{pi*640} sc1")


def p_combine(a, PF, BX, BM, CA, vmax):
    for blk in range(2):
        for pi in range(2):
            f = PF + (blk*2+pi)*4
            a(f"v_smfmac_f32_16x16x64_bf16 {vr(CA+4*pi,4)}, {vr(f,4)}, {vr(BX+8*blk,8)}, v{vIDX}")
            if vmax is not None:
                a(f"v_max3_u32 v{vmax}, v{vmax}, v{f}, v{f+1}")
                a(f"v_max3_u32 v{vmax}, v{vmax}, v{f+2}, v{f+3}")
    a.nop(2 if vmax is not None else 6)
    for pi in range(2):
        f = PF + 16 + 2*pi
        a(f"v_smfmac_f32_16x16x32_bf16 {vr(CA+4*pi,4)}, {vr(f,2)}, {vr(BM,4)}, v{vIDX}")
        if vmax is not None:
            a(f"v_max3_u32 v{vmax}, v{vmax}, v{f}, v{f+1}")


def setup_red_addrs(a, vWr, vRd):
    a(f"""
    v_and_b32 v10, 15, v{vLANE}             ; n
    v_lshrrev_b32 v11, 4, v{vLANE}          ; g
    v_and_b32 v12, 1, v11
    v_lshlrev_b32 v12, 10, v12              ; 4*(g&1)*256
    v_lshl_add_u32 v12, v10, 5, v12         ; + n*32
    v_lshrrev_b32 v13, 1, v11
    v_lshl_add_u32 v12, v13, 2, v12         ; + (g>>1)*4
    s_lshl_b32 s40, s{sW}, 3
    s_add_u32 s40, s40, 0x{LDS_R:x}
    v_add_u32 v12, s40, v12
    v_mov_b32 v13, 0x{LDS_R+0x2800:x}
    v_cmp_gt_u32 vcc, 8, v10
    s_nop 1
    v_cndmask_b32 v{vWr}, v13, v12, vcc
    v_lshlrev_b32 v12, 5, v{vLANE}
    v_add_u32 v{vRd}, 0x{LDS_R:x}, v12
    """)


def red_write(a, CA, vWr, off):
    for r in range(4):
        a(f"v_add_f32_dpp v{CA+r}, v{CA+4+r}, v{CA+r} row_ror:8 row_mask:0xf bank_mask:0xf")
    for r in range(4):
        a(f"ds_write_b32 v{vWr}, v{CA+r} offset:{off + r*256}")


LB = 140
L_SRC, L_DST, L_M, L_V, L_T, L_T2 = LB, LB+1, LB+2, LB+3, LB+4, LB+5
L_RAW, L_OUT, L_X, L_SC, L_SH = LB+8, LB+16, LB+24, LB+40, LB+56


def ln_wave_sum(a, v):
    for ctrl in ["quad_perm:[1,0,3,2]", "quad_perm:[2,3,0,1]", "row_half_mirror", "row_mirror"]:
        a.nop(2)
        a(f"v_add_f32_dpp v{v}, v{v}, v{v} {ctrl} row_mask:0xf bank_mask:0xf")
    a.nop(1)
    a(f"v_readlane_b32 s72, v{v}, 0")
    a(f"v_readlane_b32 s73, v{v}, 16")
    a(f"v_readlane_b32 s74, v{v}, 32")
    a.nop(2)
    a(f"v_mov_b32 v{v}, s72")
    a(f"v_add_f32 v{v}, s73, v{v}")
    a(f"v_add_f32 v{v}, s74, v{v}")


def bf16r(a, v):
    a(f"v_cvt_pk_bf16_f32 v{v}, v{v}, v{v}")
    a(f"v_and_b32 v{v}, 0xffff0000, v{v}")


def ln_setup(a, shift_idx, scale_idx, perm):
    a(f"""
    v_cmp_gt_u32 vcc, 40, v{vLANE}
    v_mov_b32 v{L_T}, 0x7ffffff0
    v_lshlrev_b32 v{L_DST}, 4, v{vLANE}
    """)
    if perm:
        a(f"""
        v_lshrrev_b32 v{L_SRC}, 1, v{vLANE}
        v_lshlrev_b32 v{L_SRC}, 5, v{L_SRC}
        v_and_b32 v{L_T2}, 1, v{vLANE}
        v_lshl_add_u32 v{L_SRC}, v{L_T2}, 3, v{L_SRC}
        """)
    else:
        a(f"v_mov_b32 v{L_SRC}, v{L_DST}")
    a(f"""
    v_lshlrev_b32 v{L_T2}, 1, v{L_SRC}
    v_cndmask_b32 v{L_SRC}, v{L_T}, v{L_SRC}, vcc
    v_cndmask_b32 v{L_T2}, v{L_T}, v{L_T2}, vcc
    v_cndmask_b32 v{L_DST}, v{L_T}, v{L_DST}, vcc
    s_mov_b64 s[76:77], vcc
    s_mov_b32 s72, {WS_MOD + scale_idx*2560}
    s_mov_b32 s73, {WS_MOD + shift_idx*2560}
    """)
    for dst, so in ((L_SC, 72), (L_SH, 73)):
        for h in range(2):
            if perm:
                a(f"buffer_load_dwordx2 {vr(dst+8*h,2)}, v{L_T2}, {WS}, s{so} offen offset:{h*1280}")
                a(f"buffer_load_dwordx2 {vr(dst+8*h+4,2)}, v{L_T2}, {WS}, s{so} offen offset:{h*1280+8}")
                a(f"buffer_load_dwordx2 {vr(dst+8*h+2,2)}, v{L_T2}, {WS}, s{so} offen offset:{h*1280+32}")
                a(f"buffer_load_dwordx2 {vr(dst+8*h+6,2)}, v{L_T2}, {WS}, s{so} offen offset:{h*1280+40}")
            else:
                a(f"buffer_load_dwordx4 {vr(dst+8*h,4)}, v{L_T2}, {WS}, s{so} offen offset:{h*1280} sc1")
                a(f"buffer_load_dwordx4 {vr(dst+8*h+4,4)}, v{L_T2}, {WS}, s{so} offen offset:{h*1280+16} sc1")
    a("s_waitcnt vmcnt(0)")
    for j in range(8):
        a(f"v_add_f32 v{L_SC+2*j}, 1.0, v{L_SC+2*j}")
        a(f"v_add_f32 v{L_SC+2*j+1}, 1.0, v{L_SC+2*j+1}")
        a(f"v_cvt_pk_bf16_f32 v{L_T}, v{L_SC+2*j}, v{L_SC+2*j+1}")
        a(f"v_lshlrev_b32 v{L_SC+2*j}, 16, v{L_T}")
        a(f"v_and_b32 v{L_SC+2*j+1}, 0xffff0000, v{L_T}")


def ln_load(a, srd_, s_off, fl, perm, raw=L_RAW, extra=0):
    if perm:
        for h in range(2):
            a(f"buffer_load_dwordx2 {vr(raw+4*h,2)}, v{L_SRC}, {srd_}, s{s_off} offen offset:{extra+h*640} {fl}")
            a(f"buffer_load_dwordx2 {vr(raw+4*h+2,2)}, v{L_SRC}, {srd_}, s{s_off} offen offset:{extra+h*640+16} {fl}")
        return 4
    for h in range(2):
        a(f"buffer_load_dwordx4 {vr(raw+4*h,4)}, v{L_SRC}, {srd_}, s{s_off} offen offset:{extra+h*640} {fl}")
    return 2


def ln_unpack(a, perm, raw=L_RAW):
    pos = [0, 2, 1, 3] if perm else [0, 1, 2, 3]
    for h in range(2):
        for j in range(4):
            d = 4*h + pos[j]
            a(f"v_lshlrev_b32 v{L_X+2*d}, 16, v{raw+4*h+j}")
            a(f"v_and_b32 v{L_X+2*d+1}, 0xffff0000, v{raw+4*h+j}")


def ln_compute_store(a, s_dst, extra=0, out=L_OUT):
    X = L_X
    a(f"v_add_f32 v{L_M}, v{X}, v{X+1}")
    a(f"v_add_f32 v{L_T}, v{X+2}, v{X+3}")
    for j in range(4, 16, 2):
        a(f"v_add_f32 v{L_M}, v{L_M}, v{X+j}")
        a(f"v_add_f32 v{L_T}, v{L_T}, v{X+j+1}")
    a(f"v_add_f32 v{L_M}, v{L_M}, v{L_T}")
    ln_wave_sum(a, L_M)
    a(f"v_mul_f32 v{L_M}, 0x3acccccd, v{L_M}")
    a(f"v_sub_f32 v{L_T}, v{X}, v{L_M}")
    a(f"v_mul_f32 v{L_V}, v{L_T}, v{L_T}")
    for j in range(1, 16):
        t = L_T if j % 2 == 0 else L_T2
        a(f"v_sub_f32 v{t}, v{X+j}, v{L_M}")
        a(f"v_fmac_f32 v{L_V}, v{t}, v{t}")
    a(f"v_cndmask_b32 v{L_V}, 0, v{L_V}, s[76:77]")
    ln_wave_sum(a, L_V)
    a(f"v_mul_f32 v{L_V}, 0x3acccccd, v{L_V}")
    bf16r(a, L_V)
    a(f"v_add_f32 v{L_V}, 0x3727c5ac, v{L_V}")
    bf16r(a, L_V)
    a(f"v_sqrt_f32 v{L_V}, v{L_V}")
    a.nop(1)
    bf16r(a, L_V)
    a(f"v_rcp_f32 v{L_V}, v{L_V}")
    bf16r(a, L_M)
    for j in range(8):
        x0, x1 = X + 2*j, X + 2*j + 1
        a(f"""
        v_sub_f32 v{x0}, v{x0}, v{L_M}
        v_sub_f32 v{x1}, v{x1}, v{L_M}
        v_cvt_pk_bf16_f32 v{L_T}, v{x0}, v{x1}
        v_lshlrev_b32 v{x0}, 16, v{L_T}
        v_and_b32 v{x1}, 0xffff0000, v{L_T}
        v_mul_f32 v{x0}, v{x0}, v{L_V}
        v_mul_f32 v{x1}, v{x1}, v{L_V}
        v_cvt_pk_bf16_f32 v{L_T}, v{x0}, v{x1}
        v_lshlrev_b32 v{x0}, 16, v{L_T}
        v_and_b32 v{x1}, 0xffff0000, v{L_T}
        v_mul_f32 v{x0}, v{x0}, v{L_SC+2*j}
        v_mul_f32 v{x1}, v{x1}, v{L_SC+2*j+1}
        v_cvt_pk_bf16_f32 v{L_T}, v{x0}, v{x1}
        v_lshlrev_b32 v{x0}, 16, v{L_T}
        v_and_b32 v{x1}, 0xffff0000, v{L_T}
        v_add_f32 v{x0}, v{x0}, v{L_SH+2*j}
        v_add_f32 v{x1}, v{x1}, v{L_SH+2*j+1}
        v_cvt_pk_bf16_f32 v{out+j}, v{x0}, v{x1}
        v_min_u32 v{out+j}, -2, v{out+j}
        """)
    a(f"buffer_store_dwordx4 {vr(out,4)}, v{L_DST}, {WS}, s{s_dst} offen offset:{extra} sc1")
    a(f"buffer_store_dwordx4 {vr(out+4,4)}, v{L_DST}, {WS}, s{s_dst} offen offset:{extra+640} sc1")


def wait_all(a, nl, vaddr, s_off, s_need, vt, ndw=1, sleep=4):
    top, done = a.newlabel("wa"), a.newlabel("wad")
    a.label(top)
    op = {1: "dword", 4: "dwordx4"}[ndw]
    a(f"""
    s_mov_b32 exec_lo, 0x{(1 << nl) - 1:x}
    s_mov_b32 exec_hi, 0
    buffer_load_{op} {vr(vt, ndw)}, v{vaddr}, {WS}, s{s_off} offen sc1
    s_waitcnt vmcnt(0)
    """)
    if ndw == 4:
        a(f"v_min3_u32 v{vt}, v{vt}, v{vt+1}, v{vt+2}")
        a(f"v_min_u32 v{vt}, v{vt}, v{vt+3}")
    a(f"""
    v_cmp_gt_u32 vcc, s{s_need}, v{vt}
    s_mov_b64 exec, -1
    s_cbranch_vccz {done}
    s_sub_u32 s{sBUD}, s{sBUD}, 1
    s_cmp_lt_i32 s{sBUD}, 0
    s_cbranch_scc1 {done}
    s_sleep {sleep}
    s_branch {top}
    """)
    a.label(done)


WS_TRACE = 0x0F000000


def stamp(a, slot):
    if not STAMP:
        return
    if STAMP == 2 and MODE2[0] and slot in (3, 4):
        slot = 6
    if STAMP == 2 and MODE2[0] and slot == 0:
        a("s_memtime s[80:81]")
        return
    a(f"s_memrealtime s[{80+2*slot}:{81+2*slot}]")


def dstamp(a, word, vt, cond=""):
    if not DST:
        return
    lab = a.newlabel("ds")
    a(f"""
    {cond.format(lab=lab)}
    s_cmp_lg_u32 s{sW}, 0
    s_cbranch_scc1 {lab}
    s_memrealtime s[80:81]
    s_waitcnt lgkmcnt(0)
    v_mov_b32 v{vt}, s80
    s_mov_b64 exec, 1
    buffer_store_dword v{vt}, off, {DBG}, 0 offset:{word*4}
    s_mov_b64 exec, -1
    {lab}:
    """)


def stamp_flush(a, n, vt):
    if not STAMP:
        return
    if STAMP == 2 and MODE2[0]:
        n = 7
    skip = a.newlabel("stf")
    a(f"""
    s_cmp_lg_u32 s{sW}, 0
    s_cbranch_scc1 {skip}
    s_waitcnt lgkmcnt(0)
    s_lshl_b32 s96, s{sSTEP}, 5
    s_add_u32 s96, s96, s97
    s_mov_b64 exec, 1
    """)
    for k in range(n):
        a(f"v_mov_b32 v{vt}, s{80+2*k}")
        a(f"buffer_store_dword v{vt}, off, {WS}, s96 offset:{4*k}")
        a.nop(2)
    a(f"v_mov_b32 v{vt}, s{sBUD}")
    a(f"buffer_store_dword v{vt}, off, {WS}, s96 offset:28")
    a("s_mov_b64 exec, -1")
    a.label(skip)


def gen_r(a):
    L = NAME + "_kernel"
    kernel_header(a, L)
    a(f"""
    s_cmp_ge_u32 s2, 256
    s_cbranch_scc1 r_end
    s_load_dwordx2 s[4:5], s[0:1], {KA_WS}
    s_load_dwordx2 s[6:7], s[0:1], {KA_DBG}
    s_load_dwordx4 s[32:35], s[0:1], {KA_WQ}
    s_load_dwordx2 s[36:37], s[0:1], {KA_X}
    v_lshrrev_b32 v1, 6, v0
    v_and_b32 v{vLANE}, 63, v0
    s_waitcnt lgkmcnt(0)
    """)
    srd(a, 8, 4, WS_SIZE)
    srd(a, 12, 6, 256)
    srd(a, 16, 32, D * H * E * 2)
    srd(a, 20, 34, D * H * E * 2)
    srd(a, 24, 36, S * D * 2)
    a(f"""
    v_readfirstlane_b32 s{sW}, v1
    v_lshlrev_b32 v{vL16}, 4, v{vLANE}
    v_add_u32 v{vL16b}, 4096, v{vL16}
    v_add_u32 v{vL16c}, 8192, v{vL16}
    v_mov_b32 v{vIDX}, 0x4444
    v_mov_b32 v10, 0xeeee
    v_and_b32 v11, 8, v{vLANE}
    v_cmp_ne_u32 vcc, 0, v11
    s_mov_b32 s{sBUD}, 200000
    v_mov_b32 v9, 0x{LDS_ROLE:x}
    v_cndmask_b32 v{vIDX}, v{vIDX}, v10, vcc
    s_cmp_lg_u32 s{sW}, 0
    s_cbranch_scc1 r_warm
    s_getreg_b32 s40, hwreg(HW_REG_XCC_ID)
    s_and_b32 s40, s40, 7
    s_mov_b64 exec, 1
    s_lshl_b32 s43, s40, 2
    s_lshr_b32 s43, 0x{XMAP:x}, s43
    s_and_b32 s43, s43, 7
    s_mov_b32 s48, 0
    """)
    a.label("r_try")
    a(f"""
    s_lshr_b32 s45, s43, 1
    s_lshl_b32 s45, s45, 2
    s_and_b32 s44, s43, 1
    s_lshl_b32 s44, s44, 7
    s_add_u32 s45, s45, s44
    v_mov_b32 v10, 1
    buffer_atomic_add v10, off, {DBG}, s45 sc0
    s_waitcnt vmcnt(0)
    v_readfirstlane_b32 s41, v10
    s_nop 3
    s_cmp_lt_u32 s41, 32
    s_cbranch_scc1 r_got
    s_add_u32 s48, s48, 1
    s_sub_u32 s43, s48, 1
    s_mov_b32 s42, 999
    s_cmp_ge_u32 s43, 8
    s_cbranch_scc1 r_role_done
    s_branch r_try
    """)
    a.label("r_got")
    a(f"""
    s_lshl_b32 s42, s43, 5
    s_add_u32 s42, s42, s41                 ; P: t, VM: 32+t
    s_cmp_lt_u32 s43, 2
    s_cbranch_scc1 r_role_done
    s_cmp_ge_u32 s43, 4
    s_cbranch_scc1 r_got4
    s_sub_u32 s43, s43, 2                   ; q = 0,1
    s_mul_i32 s44, s43, 10
    s_add_u32 s42, s41, s44
    s_add_u32 s42, s42, 239                 ; F2: 239 + 10q + t
    s_cmp_lt_u32 s41, 10
    s_cbranch_scc1 r_role_done
    s_mul_i32 s44, s43, 20
    s_add_u32 s42, s41, s44
    s_add_u32 s42, s42, 54                  ; U: 64 + 20q + (t-10)
    s_cmp_lt_u32 s41, 30
    s_cbranch_scc1 r_role_done
    s_lshl_b32 s44, s43, 1
    s_add_u32 s42, s41, s44
    s_add_u32 s42, s42, 174                 ; L: 204 + 2q + (t-30)
    s_branch r_role_done
    """)
    a.label("r_got4")
    a(f"""
    s_sub_u32 s43, s43, 4                   ; q = 0..3
    s_lshl_b32 s44, s43, 3
    s_add_u32 s42, s41, s44
    s_add_u32 s42, s42, 112                 ; T
    s_cmp_lt_u32 s41, 8
    s_cbranch_scc1 r_role_done
    s_add_u32 s42, s42, 24                  ; VO
    s_cmp_lt_u32 s41, 16
    s_cbranch_scc1 r_role_done
    s_add_u32 s42, s43, 208                 ; L: 204 + 4 + q
    s_cmp_eq_u32 s41, 23
    s_cbranch_scc1 r_role_done
    s_lshl_b32 s44, s43, 1
    s_add_u32 s42, s41, s44
    s_add_u32 s42, s42, 160                 ; A
    s_cmp_lt_u32 s41, 18
    s_cbranch_scc1 r_role_done
    s_mul_i32 s44, s43, 5
    s_add_u32 s42, s41, s44
    s_add_u32 s42, s42, 166                 ; C
    s_cmp_lt_u32 s41, 23
    s_cbranch_scc1 r_role_done
    s_mul_i32 s44, s43, 7
    s_add_u32 s42, s41, s44
    s_add_u32 s42, s42, 188                 ; F1: 212 + 7q + (t-24)
    s_cmp_eq_u32 s42, 239
    s_cselect_b32 s42, 264, s42
    s_add_u32 s44, s43, 260
    s_cmp_eq_u32 s41, 31
    s_cselect_b32 s42, s44, s42
    """)
    a.label("r_role_done")
    a(f"""
    v_mov_b32 v10, s42
    ds_write_b32 v9, v10
    s_mov_b64 exec, -1
    s_waitcnt lgkmcnt(0)
    """)
    a("s_branch r_role_wait")
    a.label("r_warm")
    if WARM:
        a(f"""
        s_getpc_b64 s[40:41]
        r_warm_pc:
        s_sub_u32 s40, s40, r_warm_pc-{L}
        s_subb_u32 s41, s41, 0
        s_lshr_b32 s42, s2, 3
        s_mul_i32 s42, s42, 3
        s_add_u32 s42, s42, s{sW}
        s_sub_u32 s42, s42, 1                   ; 0..95
        s_lshl_b32 s42, s42, 10
        v_add_u32 v12, s42, v{vL16}
        v_min_u32 v12, r_code_end-{L}-16, v12
        global_load_dwordx4 v[16:19], v12, s[40:41]
        s_waitcnt vmcnt(0)
        """)
    a.label("r_role_wait")
    a(f"""
    s_barrier
    ds_read_b32 v10, v9
    s_waitcnt lgkmcnt(0)
    v_readfirstlane_b32 s{sID}, v10
    s_mov_b32 s{sSTEP}, 0
    s_mov_b32 s50, 0x3db504f3          ; 128^-0.5
    s_mov_b32 s51, 0x3fb8aa3b          ; log2(e)
    s_mov_b32 s62, s50
    s_mov_b32 s63, s50
    s_mov_b32 s100, 0
    s_mul_i32 s97, s{sID}, {72*32}
    s_add_u32 s97, s97, 0x{WS_TRACE:x}
    s_barrier
    """)
    if STAMP:
        a(f"""
        s_memrealtime s[80:81]
        s_waitcnt lgkmcnt(0)
        v_mov_b32 v3, s80
        buffer_store_dword v3, off, {WS}, s97 offset:{71*32}
        """)
    a(f"""
    s_cmp_lt_u32 s{sID}, 32
    s_cbranch_scc1 role_p
    s_cmp_lt_u32 s{sID}, 64
    s_cbranch_scc1 role_vm
    s_cmp_lt_u32 s{sID}, 112
    s_cbranch_scc1 boot
    s_cmp_lt_u32 s{sID}, 144
    s_cbranch_scc1 role_t
    s_cmp_lt_u32 s{sID}, 176
    s_cbranch_scc1 role_vo
    s_cmp_ge_u32 s{sID}, 265
    s_cbranch_scc1 r_end
    s_branch boot
    boot_done:
    s_cmp_lt_u32 s{sID}, 112
    s_cbranch_scc1 role_u
    {"s_endpgm" if NOTOK else ""}
    s_cmp_lt_u32 s{sID}, 184
    s_cbranch_scc1 role_al
    s_cmp_lt_u32 s{sID}, 204
    s_cbranch_scc1 role_c
    s_cmp_lt_u32 s{sID}, 212
    s_cbranch_scc1 role_al
    s_cmp_lt_u32 s{sID}, 259
    s_cbranch_scc1 role_f
    s_sub_u32 s{sID}, s{sID}, 56            ; 260.. -> 204..
    s_cmp_lt_u32 s{sID}, 209
    s_cbranch_scc1 role_c
    s_endpgm
    """)

    KF, QF, KMF, SA = 72, 104, 120, 136
    X0 = 148
    vTW, vTR, vST, vSM = 8, 9, 12, 13
    sMEM, sPB, sKX, sFT, sSEEN, sNEED = 31, 32, 33, 34, 35, 36
    from gen_boot import dbg_wait_wg, DBG_MOD20
    a.label("role_p")
    MODE2[0] = True
    dstamp(a, 11, 3, f"s_cmp_lg_u32 s{sID}, 0\ns_cbranch_scc1 {{lab}}")
    if PDELAY:
        dbg_wait_wg(a, [(DBG_MOD20, 1)], 3, sleep=10)
    load_wqk(a, depth=PDEPTH)
    setup_qk_lds_addrs(a, vTW, vTR)
    a(f"""
    v_bfe_u32 v10, v{vLANE}, 3, 1           ; b
    v_and_b32 v11, 7, v{vLANE}              ; i
    v_lshrrev_b32 v14, 4, v{vLANE}          ; g
    v_lshlrev_b32 v{vST}, 8, v10
    v_lshl_add_u32 v{vST}, v11, 5, v{vST}
    v_lshl_add_u32 v{vST}, v14, 3, v{vST}
    v_lshlrev_b32 v{vSM}, 3, v11
    v_and_b32 v15, 1, v14
    v_lshl_add_u32 v{vSM}, v15, 2, v{vSM}
    v_lshrrev_b32 v15, 1, v14
    v_lshl_add_u32 v{vSM}, v15, 6, v{vSM}
    v_add_u32 v{vSM}, 512, v{vSM}
    v_mov_b32 v15, 0x7ffffff0
    v_cmp_ne_u32 vcc, 0, v10
    s_mov_b32 s52, 0xff00ff00
    s_mov_b32 s53, 0xff00ff00
    v_cndmask_b32 v{vSM}, v{vSM}, v15, vcc
    s_mov_b32 s54, 0
    s_mov_b32 s55, -1                       ; s[54:55]: lanes g>=2
    s_lshl_b32 s{sKX}, s{sID}, 13
    s_add_u32 s{sKX}, s{sKX}, 0x{WS_KX:x}
    s_lshl_b32 s{sFT}, s{sID}, 7
    s_add_u32 s{sFT}, s{sFT}, 0x{flag(FL_T):x}
    s_mov_b32 s{sSEEN}, 0
    s_mov_b32 s56, 0x{WS_FLAGS:x}
    ; KM store voff: g*128 + (l%8)*16, lanes with b=1 dropped
    v_lshlrev_b32 v189, 7, v14
    v_lshl_add_u32 v189, v11, 4, v189
    v_cndmask_b32 v189, v189, v15, vcc
    s_lshl_b32 s57, s{sID}, 11
    s_add_u32 s57, s57, 0x{WS_KM:x}
    s_lshl_b32 s58, s{sID}, 2
    s_add_u32 s58, s58, s{sW}
    s_lshl_b32 s60, s{sID}, 7
    s_add_u32 s60, s60, 0x{flag(FL_KM):x}
    v_cmp_gt_u32 vcc, 40, v{vLANE}
    v_mov_b32 v180, -1
    v_mov_b32 v181, -1
    v_mov_b32 v182, -1
    v_mov_b32 v183, -1
    v_cndmask_b32 v186, v15, v{vL16}, vcc
    """)
    get_pol(a, X0)
    mem_setup(a)
    a(f"""
    s_add_u32 s59, s{sSB}, 0x{WS_CRB + CRB_DOOR:x}
    s_add_u32 s64, s{sSB}, 0x{WS_CRB:x}
    s_lshr_b32 s40, s{sID}, 3
    s_lshl_b32 s40, s40, 14
    s_and_b32 s41, s{sID}, 7
    s_mul_i32 s41, s41, 640
    s_add_u32 s65, s40, s41
    s_add_u32 s65, s65, s64
    s_add_u32 s65, s65, {4*16384}           ; p base
    """)
    a.label("p_loop")
    stamp(a, 0)
    a(f"""
    s_and_b32 s40, s{sSTEP}, 3
    s_lshl_b32 s40, s40, 17
    s_add_u32 s{sMEM}, s40, s64
    s_add_u32 s{sPB}, s40, s65
    s_xor_b32 s40, s40, 0x40000
    s_add_u32 s66, s40, s65
    s_cmp_lg_u32 s{sW}, 0
    s_cbranch_scc1 p_sync
    s_add_u32 s{sNEED}, s{sSTEP}, 1
    """)
    wait_flag(a, sFT, sNEED, sSEEN, X0)
    for f in range(8):
        r, o = l16(f * 1024)
        a(f"buffer_load_dwordx4 {vr(KF+4*f,4)}, {r}, {WS}, s{sKX} offen offset:{o} sc1")
    a(f"""
    buffer_load_dword v190, off, {WS}, s{sFT} sc1
    s_cmp_eq_u32 s{sSTEP}, 0
    s_cbranch_scc1 p_sync
    s_sleep {P_SLEEP0}
    """)
    a.label("p_sync")
    a("s_barrier")
    stamp(a, 1)
    def door():
        if not DOOR:
            return
        a(f"""
        s_cmp_lg_u32 s58, 3
        s_cbranch_scc1 p_nodoor
        s_mov_b64 exec, 1
        buffer_store_dword v188, off, {WS}, s59 sc1
        s_mov_b64 exec, -1
        p_nodoor:
        """)
    a(f"""
    s_add_u32 s40, s{sSTEP}, 1
    v_mov_b32 v188, s40
    """)
    qrd = [f"ds_read_b64_tr_b16 {vr(QF+4*k+2*tp,2)}, v{vTR} offset:{k*512+tp*256}" for k in range(4) for tp in range(2)]
    cl = combine_list(0, 1, X0+2, X0+3)
    fl = ["\n".join(cl[0:2]), "\n".join(cl[2:4]), "\n".join(cl[4:6]), "\n".join(cl[6:8]),
          f"ds_write_b64 v{vTW}, {vr(X0+2,2)}", "s_nop 0", "s_nop 0", "s_waitcnt lgkmcnt(0)\ns_barrier",
          "\n".join(qrd[0:2]), "\n".join(qrd[2:4]), "\n".join(qrd[4:6]), "\n".join(qrd[6:8])]
    mem_proj2(a, [[0, 1], [2, 3]], sMEM, X0, after_valid=door, fill={1: fl})
    stamp(a, 2)
    kc = combine_list(2, 3, X0+4, X0+5) + [f"ds_write_b64 v{vTW}, {vr(X0+4,2)} offset:2048"]
    n = 0
    for k in range(4):
        if k < 3:
            a(f"s_waitcnt lgkmcnt({[6, 4, 3][k]})")
        for mt in range(2):
            acc = vr(SA+4*mt, 4)
            a(f"v_mfma_f32_16x16x32_bf16 {acc}, {vr(KF+(mt*4+k)*4,4)}, {vr(QF+4*k,4)}, {'0' if k==0 else acc}")
            n += 1
            if n == 2:
                a.nop(5)
            if n >= 2:
                for _ in range(3):
                    if kc:
                        a(kc.pop(0))
            if n == 5:
                a(f"""
                s_waitcnt lgkmcnt(0)
                s_barrier
                s_cmp_lg_u32 s{sW}, 0
                s_cbranch_scc1 p_other
                """)
                stamp(a, 3)
                for k2 in range(4):
                    for tp in range(2):
                        a(f"ds_read_b64_tr_b16 {vr(KMF+4*k2+2*tp,2)}, v{vTR} offset:{2048+k2*512+tp*256}")
    assert not kc
    for k in range(4):
        a(f"s_waitcnt lgkmcnt({6-2*k})")
        acc = vr(SA+8, 4)
        a(f"v_mfma_f32_16x16x32_bf16 {acc}, {vr(KMF+4*k,4)}, {vr(QF+4*k,4)}, {'0' if k==0 else acc}")
    for r in range(4):
        a(f"v_cndmask_b32 v{X0+r}, v{SA+r}, v{SA+4+r}, s[52:53]")
    T0 = X0 + 8
    a(f"""
    v_cvt_pk_bf16_f32 v{T0}, v{X0}, v{X0+1}
    v_cvt_pk_bf16_f32 v{T0+1}, v{X0+2}, v{X0+3}
    v_lshlrev_b32 v{X0}, 16, v{T0}
    v_and_b32 v{X0+1}, 0xffff0000, v{T0}
    v_cndmask_b32 v{X0+4}, v{SA+8}, v{SA+9}, s[52:53]
    v_cndmask_b32 v{X0+5}, v{SA+10}, v{SA+11}, s[52:53]
    v_lshlrev_b32 v{X0+2}, 16, v{T0+1}
    v_cndmask_b32 v{X0+4}, v{X0+4}, v{X0+5}, s[54:55]
    v_and_b32 v{X0+3}, 0xffff0000, v{T0+1}
    v_cvt_pk_bf16_f32 v{T0+2}, v{X0+4}, v{X0+4}
    v_pk_mul_f32 v[{X0}:{X0+1}], v[{X0}:{X0+1}], s[62:63]
    v_and_b32 v{X0+4}, 0xffff0000, v{T0+2}
    v_pk_mul_f32 v[{X0+2}:{X0+3}], v[{X0+2}:{X0+3}], s[62:63]
    v_mul_f32 v{X0+4}, s50, v{X0+4}
    v_cvt_pk_bf16_f32 v{T0}, v{X0}, v{X0+1}
    v_cvt_pk_bf16_f32 v{T0+1}, v{X0+2}, v{X0+3}
    v_cvt_pk_bf16_f32 v{T0+2}, v{X0+4}, v{X0+4}
    v_lshlrev_b32 v{X0}, 16, v{T0}
    v_and_b32 v{X0+1}, 0xffff0000, v{T0}
    v_lshlrev_b32 v{X0+2}, 16, v{T0+1}
    v_and_b32 v{X0+3}, 0xffff0000, v{T0+1}
    v_and_b32 v{X0+4}, 0xffff0000, v{T0+2}
    v_max3_f32 v{X0+6}, v{X0}, v{X0+1}, v{X0+2}
    v_max3_f32 v{X0+6}, v{X0+6}, v{X0+3}, v{X0+4}
    v_mul_f32 v{X0}, s51, v{X0}
    v_mul_f32 v{X0+1}, s51, v{X0+1}
    v_max_f32_dpp v{X0+6}, v{X0+6}, v{X0+6} row_ror:8 row_mask:0xf bank_mask:0xf
    v_mov_b32 v{X0+7}, v{X0+6}
    v_mul_f32 v{X0+2}, s51, v{X0+2}
    v_mul_f32 v{X0+3}, s51, v{X0+3}
    v_permlane16_swap_b32 v{X0+6}, v{X0+7}
    v_max_f32 v{X0+6}, v{X0+6}, v{X0+7}
    v_mov_b32 v{X0+7}, v{X0+6}
    v_mul_f32 v{X0+4}, s51, v{X0+4}
    s_nop 0
    v_permlane32_swap_b32 v{X0+6}, v{X0+7}
    v_max_f32 v{X0+6}, v{X0+6}, v{X0+7}
    v_mul_f32 v{X0+6}, s51, v{X0+6}
    v_sub_f32 v{X0}, v{X0}, v{X0+6}
    v_sub_f32 v{X0+1}, v{X0+1}, v{X0+6}
    v_exp_f32 v{X0}, v{X0}
    v_sub_f32 v{X0+2}, v{X0+2}, v{X0+6}
    v_exp_f32 v{X0+1}, v{X0+1}
    v_sub_f32 v{X0+3}, v{X0+3}, v{X0+6}
    v_exp_f32 v{X0+2}, v{X0+2}
    v_sub_f32 v{X0+4}, v{X0+4}, v{X0+6}
    v_exp_f32 v{X0+3}, v{X0+3}
    v_add_f32 v{X0+6}, v{X0}, v{X0+1}
    v_exp_f32 v{X0+4}, v{X0+4}
    v_add_f32 v{X0+6}, v{X0+6}, v{X0+2}
    v_add_f32 v{X0+6}, v{X0+6}, v{X0+3}
    v_add_f32 v{X0+6}, v{X0+6}, v{X0+4}
    s_nop 1
    v_add_f32_dpp v{X0+6}, v{X0+6}, v{X0+6} row_ror:8 row_mask:0xf bank_mask:0xf
    v_mov_b32 v{X0+7}, v{X0+6}
    v_mov_b32_dpp v{X0+5}, v{X0+4} row_ror:8 row_mask:0xf bank_mask:0xf
    s_nop 0
    v_permlane16_swap_b32 v{X0+6}, v{X0+7}
    v_add_f32 v{X0+6}, v{X0+6}, v{X0+7}
    v_mov_b32 v{X0+7}, v{X0+6}
    s_nop 1
    v_permlane32_swap_b32 v{X0+6}, v{X0+7}
    v_add_f32 v{X0+6}, v{X0+6}, v{X0+7}
    v_rcp_f32 v{X0+6}, v{X0+6}
    s_nop 0
    v_mul_f32 v{X0}, v{X0}, v{X0+6}
    v_mul_f32 v{X0+1}, v{X0+1}, v{X0+6}
    v_mul_f32 v{X0+2}, v{X0+2}, v{X0+6}
    v_mul_f32 v{X0+3}, v{X0+3}, v{X0+6}
    v_cvt_pk_bf16_f32 v{T0}, v{X0}, v{X0+1}
    v_cvt_pk_bf16_f32 v{T0+1}, v{X0+2}, v{X0+3}
    v_mul_f32 v{X0+4}, v{X0+4}, v{X0+6}
    v_min_u32 v{T0}, -2, v{T0}
    v_min_u32 v{T0+1}, -2, v{T0+1}
    v_mul_f32 v{X0+5}, v{X0+5}, v{X0+6}
    buffer_store_dwordx2 {vr(T0,2)}, v{vST}, {WS}, s{sPB} offen sc1
    v_cvt_pk_bf16_f32 v{T0+2}, v{X0+4}, v{X0+5}
    v_min_u32 v{T0+2}, -2, v{T0+2}
    buffer_store_dword v{T0+2}, v{vSM}, {WS}, s{sPB} offen sc1
    v_readfirstlane_b32 s{sSEEN}, v190
    s_branch p_next
    """)
    a.label("p_other")
    a(f"""
    s_cmp_lg_u32 s{sW}, 1
    s_cbranch_scc1 p_w23
    """)
    for k in range(4):
        for tp in range(2):
            a(f"ds_read_b64_tr_b16 {vr(KMF+4*k+2*tp,2)}, v{vTR} offset:{2048+k*512+tp*256}")
    a("s_waitcnt lgkmcnt(0)")
    for r in range(16):
        a(f"v_min_u32 v{KMF+r}, -2, v{KMF+r}")
    for k in range(4):
        a(f"buffer_store_dwordx4 {vr(KMF+4*k,4)}, v189, {WS}, s57 offen offset:{k*512} sc1")
    a(f"""
    s_waitcnt vmcnt(0)
    s_mov_b64 exec, 1
    buffer_store_dword v188, off, {WS}, s60 sc1
    s_mov_b64 exec, -1
    s_branch p_next
    """)
    a.label("p_w23")
    a(f"""
    s_cmp_lg_u32 s{sW}, 2
    s_cbranch_scc1 p_next
    buffer_store_dwordx4 v[180:183], v186, {WS}, s66 offen sc1
    s_cmp_lg_u32 s{sID}, 0
    s_cbranch_scc1 p_next
    s_add_u32 s40, s{sSTEP}, 1
    v_mov_b32 v{X0}, s40
    s_mov_b64 exec, 1
    buffer_store_dword v{X0}, off, {WS}, s56 sc1
    s_mov_b64 exec, -1
    """)
    a.label("p_next")
    dstamp(a, 12, 191, f"s_cmp_lg_u32 s{sID}, 0\ns_cbranch_scc1 {{lab}}\ns_cmp_lg_u32 s{sSTEP}, 1\ns_cbranch_scc1 {{lab}}")
    dstamp(a, 13, 191, f"s_cmp_lg_u32 s{sID}, 0\ns_cbranch_scc1 {{lab}}\ns_cmp_lg_u32 s{sSTEP}, 63\ns_cbranch_scc1 {{lab}}")
    dstamp(a, 15, 191, f"s_cmp_lg_u32 s{sID}, 0\ns_cbranch_scc1 {{lab}}\ns_cmp_lg_u32 s{sSTEP}, 11\ns_cbranch_scc1 {{lab}}")
    stamp(a, 4)
    stamp_flush(a, 5, 191)
    a(f"""
    s_add_u32 s{sKX}, s{sKX}, {32*8192}
    s_add_u32 s57, s57, {32*2048}
    s_add_u32 s{sSTEP}, s{sSTEP}, 1
    s_cmp_lt_u32 s{sSTEP}, 64
    s_cbranch_scc1 p_loop
    s_endpgm
    """)
    flush_deferred(a)

    AF, AC3, PKM = 72, 80, 120
    a.label("role_vm")
    a(f"""
    s_sub_u32 s{sID}, s{sID}, 32
    s_load_dwordx4 s[64:67], s[0:1], {KA_WV}
    s_waitcnt lgkmcnt(0)
    """)
    srd(a, 16, 64, D * H * E * 2)
    srd(a, 20, 66, D * H * E * 2)
    if PDELAY:
        dbg_wait_wg(a, [(DBG_MOD20, 1)], 3, sleep=10)
    load_wqk(a, (WQ,))
    load_wo(a, WK)
    setup_qk_lds_addrs(a, vTW, vTR)
    a(f"""
    ; sparse-A transposing read: e0 = 32(gA/2) + 16(r/2) + 8(gA%2) + 2(c/2) + (r%2)
    v_lshrrev_b32 v10, 5, v{vLANE}
    v_lshlrev_b32 v10, 5, v10
    v_bfe_u32 v11, v{vLANE}, 3, 1
    v_lshl_add_u32 v10, v11, 4, v10
    v_bfe_u32 v11, v{vLANE}, 4, 1
    v_lshl_add_u32 v10, v11, 3, v10
    v_bfe_u32 v11, v{vLANE}, 1, 1
    v_lshl_add_u32 v10, v11, 1, v10
    v_bfe_u32 v11, v{vLANE}, 2, 1
    v_add_u32 v10, v10, v11
    v_lshlrev_b32 v10, 4, v10
    v_and_b32 v11, 1, v{vLANE}
    v_lshl_add_u32 v10, v11, 3, v10
    v_add_u32 v{vTR}, 0x{LDS_T:x}, v10
    v_lshlrev_b32 v12, 3, v{vLANE}
    v_and_b32 v13, 31, v{vLANE}
    v_lshlrev_b32 v13, 3, v13
    v_lshrrev_b32 v10, 5, v{vLANE}
    v_lshl_add_u32 v13, v10, 14, v13
    v_mov_b32 v132, -1
    v_mov_b32 v133, -1
    s_mul_i32 s57, s{sID}, 10240
    s_mul_i32 s40, s{sW}, 2560
    s_add_u32 s57, s57, s40
    s_add_u32 s57, s57, 0x{WS_UMC:x}
    s_lshl_b32 s61, s{sID}, 7
    s_lshl_b32 s40, s{sW}, 2
    s_add_u32 s61, s61, s40
    s_add_u32 s61, s61, 0x{flag(FL_UF):x}
    """)
    get_pol(a, 135)
    mem_setup(a)
    a(f"""
    s_add_u32 s64, s{sSB}, 0x{WS_CRB + 32768:x}
    s_mul_i32 s65, s{sW}, {10*16384}
    s_lshl_b32 s40, s{sID}, 8
    s_add_u32 s65, s65, s40
    s_add_u32 s65, s65, s{sSA}
    s_add_u32 s65, s65, 0x{WS_CRA:x}
    s_mov_b32 s66, 0
    s_mov_b32 s67, {2*CRA_SLOT}
    """)
    a.label("vm_loop")
    stamp(a, 0)
    for r in range(40):
        a(f"v_mov_b32 v{AC3+r}, 0")
    a(f"""
    s_and_b32 s40, s{sSTEP}, 3
    s_lshl_b32 s40, s40, 17
    s_add_u32 s{sMEM}, s40, s64
    s_add_u32 s58, s65, s66
    s_cmp_eq_u32 s{sSTEP}, 0
    s_cbranch_scc1 vm_sync
    s_sleep {V_SLEEP}
    vm_sync:
    s_barrier
    """)
    stamp(a, 1)
    mem_proj2(a, [[0, 1]], sMEM, 135)
    stamp(a, 2)
    a.nop(8)
    combine_pair(a, 0, 1, 136, 137)
    a(f"""
    ds_write_b64 v{vTW}, v[136:137]
    s_waitcnt lgkmcnt(0)
    s_barrier
    """)
    for kb in range(2):
        for n in range(2):
            a(f"ds_read_b64_tr_b16 {vr(AF+4*kb+2*n,2)}, v{vTR} offset:{(64*kb+4*n)*16}")
    stamp(a, 3)

    def vm_pack(p):
        A, B = AC3 + 8*p, AC3 + 8*p + 4
        L = [f"v_permlane32_swap_b32 v{A+r}, v{B+r}" for r in range(4)]
        if PKADD:
            L += [f"v_pk_add_f32 v[{A+r}:{A+r+1}], v[{A+r}:{A+r+1}], v[{B+r}:{B+r+1}]" for r in (0, 2)]
        else:
            L += [f"v_add_f32 v{A+r}, v{A+r}, v{B+r}" for r in range(4)]
        L += [f"v_cvt_pk_bf16_f32 v{PKM+2*p}, v{A}, v{A+1}", f"v_cvt_pk_bf16_f32 v{PKM+2*p+1}, v{A+2}, v{A+3}",
              f"buffer_store_dwordx2 {vr(PKM+2*p,2)}, v13, {WS}, s{68+p} offen sc1"]
        return L
    for p in range(5):
        a(f"s_add_u32 s{68+p}, s58, {p*32768}")
    a("s_waitcnt lgkmcnt(0)")
    pend = []
    slot = 0
    last_mf = {}
    for p in range(5):
        for kb in range(2):
            for jj in range(2):
                jt = 2*p + jj
                a(f"v_smfmac_f32_16x16x64_bf16 {vr(AC3+4*jt,4)}, {vr(AF+4*kb,4)}, {widx(160+(jt*4+2*kb)*4,8)}, v{vIDX}")
                slot += 1
                n = 0
                while pend and pend[0][0] <= slot and n < VM_FILL:
                    a(pend.pop(0)[1])
                    slot += 1
                    n += 1
        for x in vm_pack(p):
            pend.append((slot + 8, x))
    while pend:
        if pend[0][0] > slot:
            a.nop(pend[0][0] - slot)
            slot = pend[0][0]
        a(pend.pop(0)[1])
        slot += 1
    stamp(a, 4)
    for p in range(5):
        a(f"buffer_store_dwordx2 {vr(PKM+2*p,2)}, v12, {WS}, s57 offen offset:{p*512} sc1")
    a("s_add_u32 s40, s65, s67")
    for p in range(5):
        a(f"buffer_store_dwordx2 v[132:133], v13, {WS}, s40 offen sc1")
        a("s_add_u32 s40, s40, 32768")
    a(f"""
    s_add_u32 s57, s57, {UM_STEP}
    s_mov_b32 s67, s66
    s_add_u32 s66, s66, {CRA_SLOT}
    s_cmp_ge_u32 s66, {3*CRA_SLOT}
    s_cselect_b32 s66, 0, s66
    s_add_u32 s40, s{sSTEP}, 1
    v_mov_b32 v134, s40
    s_waitcnt vmcnt(5)
    s_mov_b64 exec, 1
    buffer_store_dword v134, off, {WS}, s61 sc1
    s_mov_b64 exec, -1
    """)
    stamp_flush(a, 5, 191)
    a(f"""
    s_add_u32 s{sSTEP}, s{sSTEP}, 1
    s_cmp_lt_u32 s{sSTEP}, 64
    s_cbranch_scc1 vm_loop
    s_endpgm
    """)
    flush_deferred(a)

    TX, BX, PF, BM, CA = 16, 48, 80, 104, 112
    vPA, vPB, vWr, vRd, vUM = 8, 9, 12, 13, 140
    sUX = 33
    a.label("role_u")
    MODE2[0] = False
    a(f"s_sub_u32 s{sID}, s{sID}, 64")
    setup_p_load_addrs(a, vPA, vPB, vUM, 16384, 256)
    a(f"""
    s_lshl_b32 s40, s{sW}, 9
    v_lshlrev_b32 v{vWr}, 3, v{vLANE}
    v_add_u32 v{vWr}, s40, v{vWr}
    ; final lane l: c8 = l/32, i = (l/4)%8, cp = l%4 ; src lane' = (r&1)*32 + (i/4)*16 + 8c8 + 2cp ; comp = r>>1
    v_bfe_u32 v10, v{vLANE}, 2, 1           ; r&1
    v_lshlrev_b32 v10, 5, v10
    v_bfe_u32 v11, v{vLANE}, 4, 1           ; i/4
    v_lshl_add_u32 v10, v11, 4, v10
    v_lshrrev_b32 v11, 5, v{vLANE}
    v_lshl_add_u32 v10, v11, 3, v10
    v_and_b32 v11, 3, v{vLANE}
    v_lshl_add_u32 v10, v11, 1, v10
    v_lshlrev_b32 v10, 3, v10
    v_bfe_u32 v11, v{vLANE}, 3, 1           ; r>>1
    v_lshl_add_u32 v{vRd}, v11, 2, v10
    v_add_u32 v14, 1024, v{vRd}
    v_lshlrev_b32 v15, 2, v{vLANE}
    v_lshlrev_b32 v133, 7, v{vLANE}
    v_mov_b32 v123, 0
    s_mul_i32 s{sUX}, s{sW}, {8*40960}
    s_lshl_b32 s40, s{sID}, 10
    s_add_u32 s{sUX}, s{sUX}, s40
    s_add_u32 s{sUX}, s{sUX}, 0x{WS_UX:x}
    s_lshl_b32 s{sFT}, s{sW}, 10
    s_add_u32 s{sFT}, s{sFT}, 0x{flag(FL_VO):x}
    v_mov_b32 v134, -1
    """)
    get_pol(a, 135)
    a(f"""
    s_add_u32 s60, s{sSB}, 0x{WS_CRB + CRB_DOOR:x}
    s_add_u32 s64, s{sSB}, 0x{WS_CRB + 4*16384:x}   ; p base
    s_lshl_b32 s65, s{sID}, 8
    s_cmp_ge_u32 s{sID}, 32
    s_cselect_b32 s40, 8192, 0
    s_add_u32 s65, s65, s40
    s_add_u32 s65, s65, s{sSB}
    s_add_u32 s65, s65, 0x{WS_CRB:x}
    s_lshl_b32 s57, s{sID}, 14
    s_add_u32 s57, s57, s{sSA}
    s_add_u32 s57, s57, 0x{WS_CRA:x}
    s_mov_b32 s66, 0
    """)
    a.label("u_loop")
    stamp(a, 0)
    a(f"""
    s_and_b32 s40, s{sSTEP}, 3
    s_lshl_b32 s40, s40, 17
    s_add_u32 s{sPB}, s40, s64
    s_xor_b32 s41, s40, 0x40000
    s_add_u32 s41, s41, s65
    s_add_u32 s40, s{sSTEP}, 1
    s_and_b32 s40, s40, 3
    s_lshl_b32 s40, s40, 17
    s_add_u32 s{sMEM}, s40, s65
    s_cmp_lg_u32 s{sW}, 1
    s_cbranch_scc1 u_noarm
    buffer_store_dword v134, v15, {WS}, s41 offen sc1
    s_add_u32 s41, s41, 32768
    buffer_store_dword v134, v15, {WS}, s41 offen sc1
    u_noarm:
    """)
    a(f"""
    s_add_u32 s{sNEED}, s{sSTEP}, 1
    s_mov_b64 exec, 255
    v_cmp_gt_u32 vcc, s{sNEED}, v123
    s_mov_b64 exec, -1
    s_cbranch_vccz u_vok
    """)
    wait_all(a, 8, 133, sFT, sNEED, 123)
    a.label("u_vok")
    a(f"s_mov_b32 s40, s{sUX}")
    for hh in range(8):
        a(f"buffer_load_dwordx4 {vr(TX+4*hh,4)}, v{vL16}, {WS}, s40 offen sc1")
        a(f"s_add_u32 s40, s40, 40960")
    a(f"""
    s_mov_b64 exec, 255
    buffer_load_dword v123, v133, {WS}, s{sFT} offen sc1
    s_mov_b64 exec, -1
    s_add_u32 s58, s57, s66
    s_add_u32 s66, s66, {CRA_SLOT}
    s_cmp_ge_u32 s66, {3*CRA_SLOT}
    s_cselect_b32 s66, 0, s66
    s_waitcnt vmcnt(0)
    """)
    for hh in range(8):
        for d in range(4):
            a(f"v_mov_b32 v{BX + 8*(hh//2) + 2*d + hh%2}, v{TX+4*hh+d}")
    stamp(a, 1)
    a(f"""
    s_cmp_lg_u32 s{sW}, 0
    s_cbranch_scc1 u_dsync
    """)
    for k in range(3):
        a(f"buffer_load_dword v{124+k}, off, {WS}, s60 sc1")
        a(f"s_sleep 1")
    a.label("u_dspin")
    for k in range(4):
        a(f"""
        buffer_load_dword v{124+(k+3)%4}, off, {WS}, s60 sc1
        s_waitcnt vmcnt(3)
        v_cmp_le_u32 vcc, s{sNEED}, v{124+k}
        s_cbranch_vccnz u_ddone
        s_nop 7
        """)
    a(f"""
    s_sub_u32 s{sBUD}, s{sBUD}, 1
    s_cmp_ge_i32 s{sBUD}, 0
    s_cbranch_scc1 u_dspin
    """)
    a.label("u_ddone")
    stamp(a, 2)
    a(f"s_sleep {U_SLEEPD}")
    a.label("u_dsync")
    a("s_barrier")
    stamp(a, 3)
    def u_mloads():
        for k in range(2):
            a(f"buffer_load_dwordx2 {vr(PF+16+2*k,2)}, v{vPB}, {WS}, s{sPB} offen offset:{k*1280} sc1")
        for j in range(4):
            a(f"buffer_load_dwordx2 {vr(BM+2*j,2)}, v{vUM}, {WS}, s58 offen offset:{j*512} sc1")
    a.label("u_ppoll")
    for q in range(4):
        a(f"buffer_load_dwordx4 {vr(PF+4*q,4)}, v{vPA}, {WS}, s{sPB} offen offset:{q*1280} sc1")
    u_mloads()
    for r in range(4):
        a(f"v_mov_b32 v{CA+r}, 0")
    a("v_mov_b32 v122, 0")
    for q in range(4):
        f = PF + 4*q
        a(f"s_waitcnt vmcnt({9-q})")
        a(f"v_smfmac_f32_16x16x64_bf16 {vr(CA,4)}, {vr(f,4)}, {vr(BX+8*q,8)}, v{vIDX}")
        a(f"v_max3_u32 v122, v122, v{f}, v{f+1}")
        a(f"v_max3_u32 v122, v122, v{f+2}, v{f+3}")
    a("v_cmp_eq_u32 vcc, -1, v122")
    poll_fail(a, "u_ppoll", sleep=1)
    a.label("u_mchk")
    a(f"""
    s_waitcnt vmcnt(4)
    v_swap_b32 v{PF+17}, v{PF+18}
    v_max3_u32 v122, v{PF+16}, v{PF+17}, v{PF+18}
    v_max_u32 v122, v122, v{PF+19}
    s_waitcnt vmcnt(2)
    v_max3_u32 v122, v122, v{BM}, v{BM+1}
    v_max3_u32 v122, v122, v{BM+2}, v{BM+3}
    s_waitcnt vmcnt(0)
    v_max3_u32 v122, v122, v{BM+4}, v{BM+5}
    v_max3_u32 v122, v122, v{BM+6}, v{BM+7}
    v_cmp_eq_u32 vcc, -1, v122
    s_cbranch_vccnz u_mretry
    u_mok:
    v_smfmac_f32_16x16x64_bf16 {vr(CA,4)}, {vr(PF+16,4)}, {vr(BM,8)}, v{vIDX}
    """)

    def u_ool():
        a.label("u_mretry")
        a(f"""
        s_sub_u32 s{sBUD}, s{sBUD}, 1
        s_cmp_lt_i32 s{sBUD}, 0
        s_cbranch_scc1 u_mok
        """)
        u_mloads()
        a("s_branch u_mchk")
    DEFERRED.append(u_ool)
    a.nop(2)
    stamp(a, 4)
    a.nop(6)
    a(f"""
    v_permlane32_swap_b32 v{CA}, v{CA+1}
    v_permlane32_swap_b32 v{CA+2}, v{CA+3}
    v_add_f32 v{CA}, v{CA}, v{CA+1}
    v_add_f32 v{CA+1}, v{CA+2}, v{CA+3}
    ds_write_b64 v{vWr}, {vr(CA,2)}
    s_waitcnt lgkmcnt(0)
    s_barrier
    s_cmp_lg_u32 s{sW}, 0
    s_cbranch_scc1 u_next
    ds_read2_b32 v[124:125], v{vRd} offset0:0 offset1:2
    ds_read2_b32 v[126:127], v{vRd} offset0:128 offset1:130
    ds_read2_b32 v[128:129], v14 offset0:0 offset1:2
    ds_read2_b32 v[130:131], v14 offset0:128 offset1:130
    s_add_u32 s40, s{sMEM}, 32768
    s_waitcnt lgkmcnt(2)
    v_add_f32 v124, v124, v126
    v_add_f32 v125, v125, v127
    s_waitcnt lgkmcnt(0)
    v_add_f32 v128, v128, v130
    v_add_f32 v129, v129, v131
    v_add_f32 v124, v124, v128
    v_add_f32 v125, v125, v129
    v_cvt_pk_bf16_f32 v124, v124, v125
    v_min_u32 v124, -2, v124
    buffer_store_dword v124, v15, {WS}, s{sMEM} offen sc1
    buffer_store_dword v124, v15, {WS}, s40 offen sc1
    """)
    a.label("u_next")
    stamp(a, 5)
    stamp_flush(a, 6, 191)
    a(f"""
    s_add_u32 s{sUX}, s{sUX}, {UX_STEP}
    s_add_u32 s{sSTEP}, s{sSTEP}, 1
    s_cmp_lt_u32 s{sSTEP}, 63
    s_cbranch_scc1 u_loop
    s_endpgm
    """)
    flush_deferred(a)

    vH = 14
    sHOFF, sHBUF, sOUT, sFM = 37, 38, 39, 56

    def publish(role, sval, wv=3):
        lab = a.newlabel("pub")
        a(f"""
        s_cmp_lg_u32 s{sW}, {wv}
        s_cbranch_scc1 {lab}
        v_mov_b32 v3, {sval}
        s_mov_b64 exec, 1
        buffer_store_dword v3, off, {WS}, s{sFT} sc1
        s_mov_b64 exec, -1
        {lab}:
        """)

    from gen_boot import dbg_wait_wg, DBG_INIT, DBG_LN, N_INITW

    def ln_ready():
        top, done = a.newlabel("lr"), a.newlabel("lrd")
        a(f"""
        s_add_u32 s45, s{sSTEP}, 1
        s_and_b32 s46, s45, 7
        s_cmp_lg_u32 s46, 0
        s_cbranch_scc1 {done}
        s_cmp_ge_u32 s45, 64
        s_cbranch_scc1 {done}
        s_lshr_b32 s45, s45, 1
        {top}:
        buffer_load_dword v3, off, {DBG}, s45 offset:{DBG_LN} sc1
        s_waitcnt vmcnt(0)
        v_readfirstlane_b32 s44, v3
        s_sub_u32 s{sBUD}, s{sBUD}, 1
        s_cmp_lt_i32 s{sBUD}, 0
        s_cbranch_scc1 {done}
        s_cmp_ge_u32 s44, 1
        s_cbranch_scc1 {done}
        s_sleep 4
        s_branch {top}
        {done}:
        """)

    def loop_top():
        a(f"""
        v_add_u32 v{vH}, s{sHBUF}, v{vL16}
        s_sub_u32 s{sHBUF}, 40960, s{sHBUF}
        s_add_u32 s{sHOFF}, s{sHOFF}, 40960
        """)
        ln_ready()
        dmal_init(a, sHOFF, sHBUF)

    a.label("role_t")
    a(f"""
    s_sub_u32 s{sID}, s{sID}, 112
    s_mov_b32 s{sHOFF}, 0x{WS_H1F:x}
    s_mov_b32 s{sHBUF}, 0
    """)
    load_wqk(a, depth=TDEPTH)
    dbg_wait_wg(a, [(DBG_INIT, 1), (DBG_LN, 1)], 3)
    dmal_init(a, sHOFF, sHBUF)
    for k in range(10):
        dmal_one(a)
    a(f"""
    s_lshl_b32 s{sOUT}, s{sID}, 13
    s_lshl_b32 s40, s{sW}, 10
    s_add_u32 s{sOUT}, s{sOUT}, s40
    s_add_u32 s{sOUT}, s{sOUT}, 0x{WS_KX:x}
    s_lshl_b32 s{sFT}, s{sID}, 7
    s_add_u32 s{sFT}, s{sFT}, 0x{flag(FL_T):x}
    s_waitcnt vmcnt(0)
    s_barrier
    """)
    a.label("t_loop")
    stamp(a, 0)
    loop_top()
    DMK = [0, 1, 3, 4, 6, 7, 9, 10, 12, 13]

    def hook_t(ks):
        if ks in DMK:
            dmal_one(a)
        if ks == 5:
            a("s_waitcnt vmcnt(4)")
            a("s_barrier")
            publish("t", f"s{sSTEP}")
    dense_proj(a, vH, True, hook_t)
    stamp(a, 1)
    a.nop(4)
    PK = 128
    a(f"s_add_u32 s40, s{sOUT}, 0x{WS_QX-WS_KX:x}")
    for mat in (0, 1):
        for mt in range(2):
            tm = PK + (mat*2+mt) * 4
            for tt in range(2):
                b = TACC + ((mat*2+tt)*2 + mt) * 4
                a(f"v_cvt_pk_bf16_f32 v{tm+2*tt}, v{b}, v{b+1}")
                a(f"v_cvt_pk_bf16_f32 v{tm+2*tt+1}, v{b+2}, v{b+3}")
    a("s_waitcnt vmcnt(0)")
    for mat in (1, 0):
        for mt in range(2):
            tm = PK + (mat*2+mt) * 4
            so = "s40" if mat == 0 else f"s{sOUT}"
            a(f"buffer_store_dwordx4 {vr(tm,4)}, v{vL16+mt}, {WS}, {so} offen sc1")
    a(f"""
    s_add_u32 s{sOUT}, s{sOUT}, {32*8192}
    s_cmp_lg_u32 s{sSTEP}, 0
    s_cbranch_scc1 t_ne
    s_waitcnt vmcnt(0)
    s_barrier
    """)
    publish("t", "1")
    a("t_ne:")
    a("s_barrier")
    stamp(a, 2)
    stamp_flush(a, 3, 1)
    a(f"""
    s_add_u32 s{sSTEP}, s{sSTEP}, 1
    s_cmp_lt_u32 s{sSTEP}, 64
    s_cbranch_scc1 t_loop
    s_waitcnt vmcnt(0)
    s_barrier
    """)
    publish("t", f"s{sSTEP}")
    a(f"""
    {"s_endpgm" if NOTOK else ""}
    s_mov_b32 s{sSTEP}, 0
    s_add_u32 s97, s97, {300*72*32}
    s_cmp_ge_u32 s{sID}, {NC}
    s_cbranch_scc1 t_f1
    s_add_u32 s{sID}, s{sID}, {184+NC}
    s_branch role_c
    t_f1:
    s_cmp_ge_u32 s{sID}, {NC+3}
    s_cbranch_scc1 r_end
    s_add_u32 s{sID}, s{sID}, {212+24-NC}   ; F1 slices 24..26
    s_mov_b32 s100, {F1S+1}
    s_branch role_f
    """)

    VF, AC2 = 16, 128
    LDS_V = LDS_T
    a.label("role_vo")
    a(f"""
    s_sub_u32 s{sID}, s{sID}, 144
    s_load_dwordx4 s[64:67], s[0:1], {KA_WV}
    s_mov_b32 s{sHOFF}, 0x{WS_H1F:x}
    s_mov_b32 s{sHBUF}, 0
    s_waitcnt lgkmcnt(0)
    """)
    srd(a, 16, 64, D * H * E * 2)
    srd(a, 20, 66, D * H * E * 2)
    load_wqk(a, (WQ,))
    load_wo(a, WK)
    dbg_wait_wg(a, [(DBG_INIT, 1), (DBG_LN, 1)], 3)
    dmal_init(a, sHOFF, sHBUF)
    for k in range(10):
        dmal_one(a)
    a(f"""
    s_mul_i32 s{sOUT}, s{sID}, 40960
    s_mul_i32 s40, s{sW}, 10240
    s_add_u32 s{sOUT}, s{sOUT}, s40
    s_add_u32 s{sOUT}, s{sOUT}, 0x{WS_UX:x}
    s_lshl_b32 s{sFT}, s{sID}, 7
    s_add_u32 s{sFT}, s{sFT}, 0x{flag(FL_VO):x}
    s_lshl_b32 s40, s{sW}, 10
    s_add_u32 s40, s40, 0x{LDS_V:x}
    v_add_u32 v12, s40, v{vL16}
    v_add_u32 v13, 0x{LDS_V:x}, v{vL16}
    s_waitcnt vmcnt(0)
    s_barrier
    """)
    a.label("vo_loop")
    stamp(a, 0)
    loop_top()

    def hook_v(ks):
        if ks % 2 == 0:
            dmal_one(a)
    dense_proj(a, vH, True, hook_v, tiles=(0, 1))
    a.nop(6)
    for mt in range(2):
        for tt in range(2):
            b = TACC + (tt*2 + mt) * 4
            a(f"v_cvt_pk_bf16_f32 v{168+4*mt+2*tt}, v{b}, v{b+1}")
            a(f"v_cvt_pk_bf16_f32 v{168+4*mt+2*tt+1}, v{b+2}, v{b+3}")
        a(f"ds_write_b128 v12, {vr(168+4*mt,4)} offset:{mt*4096}")
    a(f"""
    s_waitcnt vmcnt(10) lgkmcnt(0)
    s_barrier
    """)
    stamp(a, 1)
    for k in range(4):
        for mt in range(2):
            a(f"ds_read_b128 {vr(VF+(mt*4+k)*4,4)}, v13 offset:{mt*4096+k*1024}")
    publish("vo", f"s{sSTEP}")
    for hb in range(2):
        for k in range(4):
            if hb == 0:
                a(f"s_waitcnt lgkmcnt({6-2*k})")
            for j5 in range(5):
                for mt in range(2):
                    acc = vr(AC2 + (j5*2+mt)*4, 4) if hb == 0 else vr(TACC + (j5*2+mt)*4, 4)
                    a(f"v_mfma_f32_16x16x32_bf16 {acc}, {vr(VF+(mt*4+k)*4,4)}, {widx(160+((hb*5+j5)*4+k)*4)}, {'0' if k == 0 else acc}")
                if hb == 1 and k < 3 and j5 < 2 and (k*2+j5) < 5:
                    q = k*2 + j5
                    tm = 168 + (q % 2) * 4
                    for mt in range(2):
                        b = AC2 + (q*2+mt)*4
                        a(f"v_cvt_pk_bf16_f32 v{tm+2*mt}, v{b}, v{b+1}")
                        a(f"v_cvt_pk_bf16_f32 v{tm+2*mt+1}, v{b+2}, v{b+3}")
                    r, o = l16(q * 1024)
                    a(f"buffer_store_dwordx4 {vr(tm,4)}, {r}, {WS}, s{sOUT} offen offset:{o} sc1")
    for q in range(5):
        tm = 176 + (q % 2) * 4
        for mt in range(2):
            b = TACC + (q*2+mt)*4
            a(f"v_cvt_pk_bf16_f32 v{tm+2*mt}, v{b}, v{b+1}")
            a(f"v_cvt_pk_bf16_f32 v{tm+2*mt+1}, v{b+2}, v{b+3}")
        r, o = l16((5+q) * 1024)
        a(f"buffer_store_dwordx4 {vr(tm,4)}, {r}, {WS}, s{sOUT} offen offset:{o} sc1")
    a(f"""
    s_add_u32 s{sOUT}, s{sOUT}, {UX_STEP}
    s_cmp_lg_u32 s{sSTEP}, 0
    s_cbranch_scc1 vo_ne
    s_waitcnt vmcnt(0)
    s_barrier
    """)
    publish("vo", "1")
    a(f"""
    vo_ne:
    s_waitcnt vmcnt(10)
    s_barrier
    """)
    stamp(a, 2)
    stamp_flush(a, 3, 1)
    a(f"""
    s_add_u32 s{sSTEP}, s{sSTEP}, 1
    s_cmp_lt_u32 s{sSTEP}, 64
    s_cbranch_scc1 vo_loop
    s_waitcnt vmcnt(0)
    s_barrier
    """)
    publish("vo", f"s{sSTEP}")
    a(f"""
    {"s_endpgm" if NOTOK else ""}
    s_mov_b32 s{sSTEP}, 0
    s_add_u32 s97, s97, {300*72*32}
    s_mov_b32 s100, {SENT0+1}
    s_cmp_ge_u32 s{sID}, 24
    s_cbranch_scc1 vo_a
    s_add_u32 s{sID}, s{sID}, 212           ; F1 slices 0..23
    s_mov_b32 s100, {F1S+1}
    s_branch role_f
    vo_a:
    s_add_u32 s{sID}, s{sID}, {176-24}
    s_branch role_a
    """)

    KF2, QF2, KMF2, SA2, Y0 = 16, 48, 80, 96, 112
    sKXR, sKM = 33, 57
    a.label("role_al")
    a(f"""
    s_sub_u32 s40, s{sID}, 176
    s_sub_u32 s41, s{sID}, 196
    s_cmp_lt_u32 s{sID}, 184
    s_cselect_b32 s40, s40, s41             ; 0..15
    s_lshl_b32 s40, s40, 1
    s_and_b32 s41, s{sW}, 1
    s_add_u32 s{sID}, s40, s41
    s_cmp_ge_u32 s{sW}, 2
    s_cbranch_scc1 role_l
    s_branch role_a2
    """)
    a.label("role_a")
    a(f"""
    s_sub_u32 s{sID}, s{sID}, 176
    s_lshl_b32 s{sID}, s{sID}, 2
    s_add_u32 s{sID}, s{sID}, s{sW}         ; head
    role_a2:
    v_bfe_u32 v10, v{vLANE}, 3, 1           ; b
    v_and_b32 v11, 7, v{vLANE}              ; i
    v_lshrrev_b32 v15, 4, v{vLANE}          ; g
    v_lshlrev_b32 v8, 7, v15
    v_lshl_add_u32 v8, v11, 4, v8
    v_mul_u32_u24 v10, {PB_RG}, v10
    v_lshl_add_u32 v{vST}, v11, 4, v10      ; + i*16
    v_and_b32 v11, 1, v15
    v_lshl_add_u32 v{vST}, v11, 3, v{vST}   ; + (g&1)*8
    v_lshrrev_b32 v11, 1, v15
    v_lshl_add_u32 v{vSM}, v11, 7, v{vST}
    v_lshl_add_u32 v{vST}, v11, 8, v{vST}
    v_and_b32 v10, 15, v{vLANE}
    v_lshlrev_b32 v11, 2, v15               ; 4g
    """)
    for r in range(4):
        a(f"v_add_u32 v15, {r}, v11")
        a(f"v_cmp_le_u32 s[{64+r*2}:{65+r*2}], v15, v10")
    a(f"""
    s_mov_b32 s54, 0
    s_mov_b32 s55, -1
    s_lshl_b32 s{sPB}, s{sID}, 9
    s_add_u32 s{sPB}, s{sPB}, 0x{WS_PT:x}
    ; mem part offset relative to token part: 16384 + (2(h/4) + h%2)*256 + ((h>>1)&1)*4 - h*512
    s_lshr_b32 s40, s{sID}, 2
    s_lshl_b32 s40, s40, 1
    s_and_b32 s41, s{sID}, 1
    s_add_u32 s40, s40, s41
    s_lshl_b32 s40, s40, 8
    s_bfe_u32 s41, s{sID}, 0x10001
    s_lshl_b32 s41, s41, 2
    s_add_u32 s40, s40, s41
    s_add_u32 s40, s40, 16384
    s_lshl_b32 s41, s{sID}, 9
    s_sub_u32 s61, s40, s41
    s_lshl_b32 s58, s{sID}, 7
    s_add_u32 s59, s58, 0x{flag(FL_A):x}
    s_add_u32 s58, s58, 0x{flag(FL_KM):x}
    s_mov_b32 s60, 0
    s_lshl_b32 s{sKXR}, s{sID}, 13
    s_add_u32 s{sKXR}, s{sKXR}, 0x{WS_KX:x}
    s_lshl_b32 s{sKM}, s{sID}, 11
    s_add_u32 s{sKM}, s{sKM}, 0x{WS_KM:x}
    s_lshl_b32 s{sFT}, s{sID}, 7
    s_add_u32 s{sFT}, s{sFT}, 0x{flag(FL_T):x}
    s_mov_b32 s{sSEEN}, 0
    s_mov_b32 s{sSTEP}, s100
    s_cmp_eq_u32 s100, 0
    s_cbranch_scc1 a_prim
    s_add_u32 s{sPB}, s{sPB}, {(SENT0+1)*PT_STEP}
    s_add_u32 s{sKXR}, s{sKXR}, {(SENT0+1)*32*8192}
    s_add_u32 s{sKM}, s{sKM}, {(SENT0+1)*32*2048}
    s_mov_b32 s59, 0x{flag(FL_DUMMY):x}
    """)
    wait_flag(a, 58, 100, 60, Y0, sleep=32)
    a.label("a_prim")

    def a_kq(need):
        wait_flag(a, sFT, need, sSEEN, Y0+1, sleep=8)
        a(f"s_add_u32 s40, s{sKXR}, 0x{WS_QX-WS_KX:x}")
        for f in range(8):
            r, o = l16(f * 1024)
            a(f"buffer_load_dwordx4 {vr(KF2+4*f,4)}, {r}, {WS}, s{sKXR} offen offset:{o} sc1")
        for f in range(8):
            r, o = l16(f * 1024)
            a(f"buffer_load_dwordx4 {vr(QF2+4*f,4)}, {r}, {WS}, s40 offen offset:{o} sc1")
        a(f"s_add_u32 s{sKXR}, s{sKXR}, {32*8192}")
    a(f"s_add_u32 s{sNEED}, s{sSTEP}, 1")
    a_kq(sNEED)
    a.label("a_loop")
    stamp(a, 0)
    a(f"s_add_u32 s{sNEED}, s{sSTEP}, 1")
    stamp(a, 1)
    a(f"""
    s_cmp_ge_u32 s{sSTEP}, {SENT0}
    s_cbranch_scc1 a_kml
    """)
    wait_flag(a, 58, sNEED, 60, Y0, sleep=4)
    a.label("a_kml")
    for k in range(4):
        a(f"buffer_load_dwordx4 {vr(KMF2+4*k,4)}, v8, {WS}, s{sKM} offen offset:{k*512} sc1")
    a("s_waitcnt vmcnt(0)")
    vmax_chain(a, Y0, range(KMF2, KMF2+16))
    poll_fail(a, "a_kml", sleep=3)
    stamp(a, 2)
    for qt in range(2):
        for k in range(4):
            for mt in range(qt + 1):
                acc = vr(SA2+4*mt, 4)
                a(f"v_mfma_f32_16x16x32_bf16 {acc}, {vr(KF2+(mt*4+k)*4,4)}, {vr(QF2+(qt*4+k)*4,4)}, {'0' if k==0 else acc}")
            acc = vr(SA2+8, 4)
            a(f"v_mfma_f32_16x16x32_bf16 {acc}, {vr(KMF2+4*k,4)}, {vr(QF2+(qt*4+k)*4,4)}, {'0' if k==0 else acc}")
        a.nop(8)
        a(f"""
        v_cndmask_b32 v{SA2+8}, v{SA2+8}, v{SA2+10}, s[54:55]
        v_cndmask_b32 v{SA2+9}, v{SA2+9}, v{SA2+11}, s[54:55]
        """)
        xs = [SA2 + k for k in range(4*(qt+1))] + [SA2+8, SA2+9]
        round_scale(a, xs, Y0+8, 50)
        a(f"v_mov_b32 v{Y0}, 0xce6e6b28")
        for k in range(4):
            a(f"v_cndmask_b32 v{SA2+4*qt+k}, v{Y0}, v{SA2+4*qt+k}, s[{64+2*k}:{65+2*k}]")
        softmax(a, xs, Y0+6, Y0+7, 51, False)
        O = Y0 + 16 + 8*qt
        for half in range(2):
            for m in range(2):
                if m <= qt:
                    a(f"v_cvt_pk_bf16_f32 v{O+2*half+m}, v{SA2+4*m+2*half}, v{SA2+4*m+2*half+1}")
                else:
                    a(f"v_mov_b32 v{O+2*half+m}, 0")
        a(f"v_cvt_pk_bf16_f32 v{O+4}, v{SA2+8}, v{SA2+9}")
        for k in range(5):
            a(f"v_min_u32 v{O+k}, -2, v{O+k}")
        a(f"s_add_u32 s40, s{sPB}, {qt*2*PB_RG}")
        for half in range(2):
            a(f"buffer_store_dwordx2 {vr(O+2*half,2)}, v{vST}, {WS}, s40 offen offset:{half*128} sc1")
        a(f"s_add_u32 s40, s40, s61")
        a(f"buffer_store_dword v{O+4}, v{vSM}, {WS}, s40 offen sc1")
    a(f"""
    s_cmp_ge_u32 s{sSTEP}, {SENT0}
    s_cselect_b32 s46, 2, 1
    s_cselect_b32 s45, {32*8192}, 0
    s_add_u32 s{sKXR}, s{sKXR}, s45
    s_add_u32 s45, s{sNEED}, s46
    s_min_u32 s45, s45, 64
    """)
    a(f"buffer_load_dword v{Y0+2}, off, {WS}, s58 sc1")
    a_kq(45)
    a(f"""
    v_mov_b32 v{Y0}, s{sNEED}
    s_waitcnt vmcnt(16)
    s_mov_b64 exec, 1
    buffer_store_dword v{Y0}, off, {WS}, s59 sc1
    s_mov_b64 exec, -1
    v_readfirstlane_b32 s60, v{Y0+2}
    """)
    stamp(a, 3)
    stamp_flush(a, 4, 1)
    a(f"""
    s_mul_i32 s40, s46, {PT_STEP}
    s_add_u32 s{sPB}, s{sPB}, s40
    s_lshl_b32 s40, s46, 16
    s_add_u32 s{sKM}, s{sKM}, s40
    s_add_u32 s{sSTEP}, s{sSTEP}, s46
    s_cmp_lt_u32 s{sSTEP}, 64
    s_cbranch_scc1 a_loop
    s_endpgm
    """)

    a.label("role_l")
    ln_setup(a, 3, 4, False)
    a(f"""
    s_mov_b32 s40, s{sID}                   ; row
    {"s_sub_u32 s3, s3, 2" if STAMP else ""}
    {"s_add_u32 s97, s97, " + str(100*72*32) if STAMP else ""}
    s_mul_i32 s46, s40, 1280
    s_add_u32 s47, s46, 0x{WS_H2F:x}
    s_lshl_b32 s48, s40, 7
    s_add_u32 s48, s48, 0x{flag(FL_L):x}
    s_mov_b32 s49, 0x{flag(FL_CC):x}
    v_lshlrev_b32 v9, 1, v{L_DST}
    v_cndmask_b32 v9, v{L_DST}, v9, s[76:77]
    s_mov_b32 s40, {WS_MOD + 2*2560}
    s_mov_b32 s52, 20
    """)
    GA = 48
    for h in range(2):
        a(f"buffer_load_dwordx4 {vr(GA+8*h,4)}, v9, {WS}, s40 offen offset:{h*1280} sc1")
        a(f"buffer_load_dwordx4 {vr(GA+8*h+4,4)}, v9, {WS}, s40 offen offset:{h*1280+16} sc1")
    a("s_mov_b32 s54, 0")
    a.label("l_loop")
    stamp(a, 0)
    a(f"""
    s_add_u32 s45, s{sSTEP}, 1
    s_add_u32 s41, s46, 0x{WS_ATT:x}
    s_add_u32 s42, s46, 0x{WS_X1:x}
    s_mov_b32 s53, 0
    s_cmp_eq_u32 s54, 1
    s_cbranch_scc1 l_chk
    """)
    ln_load(a, XS, 46, "", False, raw=24)
    a(f"""
    s_cmp_ge_u32 s{sSTEP}, {SENT0}
    s_cbranch_scc1 l_ld
    """)
    wait_flag(a, 49, 52, 53, 16, sleep=3)
    a.label("l_ld")
    ln_load(a, WS, 41, "sc1", False)
    a(f"buffer_load_dword v17, off, {WS}, s49 offset:128 sc1")
    a("s_waitcnt vmcnt(0)")
    a.label("l_chk")
    stamp(a, 1)
    vmax_chain(a, 16, range(L_RAW, L_RAW+8))
    poll_fail(a, "l_ld", sleep=3)
    a("v_readfirstlane_b32 s55, v17")
    ln_unpack(a, False)
    for j in range(8):
        x0, x1 = L_X + 2*j, L_X + 2*j + 1
        a(f"""
        v_mul_f32 v{x0}, v{x0}, v{GA+2*j}
        v_mul_f32 v{x1}, v{x1}, v{GA+2*j+1}
        v_cvt_pk_bf16_f32 v{L_T}, v{x0}, v{x1}
        v_lshlrev_b32 v{x0}, 16, v{L_T}
        v_and_b32 v{x1}, 0xffff0000, v{L_T}
        v_lshlrev_b32 v{L_T}, 16, v{24+j}
        v_and_b32 v{L_T2}, 0xffff0000, v{24+j}
        v_add_f32 v{x0}, v{x0}, v{L_T}
        v_add_f32 v{x1}, v{x1}, v{L_T2}
        v_cvt_pk_bf16_f32 v{32+j}, v{x0}, v{x1}
        v_lshlrev_b32 v{x0}, 16, v{32+j}
        v_and_b32 v{x1}, 0xffff0000, v{32+j}
        """)
    for j in range(8):
        a(f"v_min_u32 v{32+j}, -2, v{32+j}")
    a(f"buffer_store_dwordx4 v[32:35], v{L_DST}, {WS}, s42 offen sc1")
    a(f"buffer_store_dwordx4 v[36:39], v{L_DST}, {WS}, s42 offen offset:640 sc1")
    a(f"""
    s_mov_b32 s54, 0
    s_cmp_ge_u32 s{sSTEP}, {SENT0-1}
    s_cselect_b32 s55, 20, s55
    s_cmp_lt_u32 s55, 20
    s_cbranch_scc1 l_nopf
    s_cmp_ge_u32 s{sSTEP}, 63
    s_cbranch_scc1 l_nopf
    s_mov_b32 s54, 1
    s_add_u32 s40, s46, {32*1280}
    s_add_u32 s41, s41, {32*1280}
    """)
    ln_load(a, XS, 40, "", False, raw=24)
    ln_load(a, WS, 41, "sc1", False)
    a(f"buffer_load_dword v17, off, {WS}, s49 offset:256 sc1")
    a.label("l_nopf")
    ln_compute_store(a, 47)
    a("s_add_u32 s49, s49, 128")
    stamp(a, 2)
    a(f"""
    v_mov_b32 v16, s45
    s_add_u32 s46, s46, {32*1280}
    s_add_u32 s47, s47, {32*1280}
    s_waitcnt vmcnt(0)
    s_mov_b64 exec, 1
    buffer_store_dword v16, off, {WS}, s48 sc1
    s_mov_b64 exec, -1
    """)
    stamp(a, 3)
    stamp_flush(a, 4, 1)
    a(f"""
    s_add_u32 s{sSTEP}, s{sSTEP}, 1
    s_cmp_lt_u32 s{sSTEP}, 64
    s_cbranch_scc1 l_loop
    s_endpgm
    """)

    vPT, vBM, vXS = 240, 239, 242
    sUXR, sPFC = 33, 59
    sA, sV = 61, 62
    PFB = [16, 96]
    BMB = [128, 144]
    CAC = 176
    from gen_boot import arrive
    a.label("role_c")
    a(f"s_sub_u32 s{sID}, s{sID}, 184")
    setup_p_load_addrs(a, vPA, vPB, vBM)
    a(f"""
    s_lshl_b32 s40, s{sW}, 12
    v_add_u32 v{vPT}, s40, v{vL16}
    v_add_u32 v{vRd}, s40, v{vL16}
    s_lshl_b32 s40, s{sW}, 10
    v_add_u32 v{vWr}, s40, v{vL16}
    v_add_u32 v241, 16384, v{vWr}
    v_and_b32 v10, 15, v{vLANE}             ; n
    v_lshrrev_b32 v11, 5, v{vLANE}          ; pr
    v_lshl_add_u32 v10, v11, 4, v10
    v_bfe_u32 v11, v{vLANE}, 4, 1
    v_lshlrev_b32 v11, 2, v11
    s_lshl_b32 s40, s{sW}, 3
    v_add_u32 v11, s40, v11
    v_mul_u32_u24 v11, 1280, v11
    v_lshl_add_u32 v{vXS}, v10, 1, v11
    v_and_b32 v10, 1, v{vLANE}
    v_mov_b32 v11, 0x7ffffff0
    v_cmp_ne_u32 vcc, 0, v10
    v_lshlrev_b32 v243, 7, v{vLANE}
    v_mov_b32 v232, 0
    v_cndmask_b32 v{vXS}, v{vXS}, v11, vcc
    v_mov_b32 v231, 20
    s_lshl_b32 s40, s{sW}, 10
    s_add_u32 s{sFT}, s40, 0x{flag(FL_UF):x}
    s_add_u32 s{sA}, s40, 0x{flag(FL_A):x}
    s_add_u32 s{sV}, s40, 0x{flag(FL_VO):x}
    s_mov_b32 s{sFM}, 0x{flag(FL_MEM):x}
    s_mul_i32 s73, s{sW}, {8*40960}
    s_add_u32 s73, s73, 0x{WS_UX:x}
    s_add_u32 s76, s{sID}, {CT0}
    s_cmp_ge_u32 s{sID}, {NC}
    s_cselect_b32 s77, s76, s{sID}
    s_mov_b32 s78, s77
    s_mov_b32 s79, s77
    """)

    TIX = {57: 77, 60: 78, 68: 79}

    def dec(ss, sk):
        t = TIX[ss]
        a(f"""
        s_mul_i32 s{ss}, s{t}, 3277
        s_lshr_b32 s{ss}, s{ss}, 16
        s_mul_i32 s40, s{ss}, 20
        s_sub_u32 s{sk}, s{t}, s40
        """)

    def adv(ss, sk):
        t = TIX[ss]
        a(f"""
        s_add_u32 s40, s{t}, {NC}
        s_cmp_lt_u32 s40, {CT0}
        s_cselect_b32 s40, s40, s76
        s_add_u32 s41, s{t}, {2*NC}
        s_cmp_lt_u32 s{t}, {CT0}
        s_cselect_b32 s{t}, s40, s41
        """)
        dec(ss, sk)
    dec(57, 58)
    dec(60, 63)
    dec(68, 72)

    def c_needs():
        a(f"s_add_u32 s44, s60, 1")

    def c_offs():
        a(f"""
        s_mul_i32 s{sPB}, s60, {PT_STEP}
        s_add_u32 s{sPB}, s{sPB}, 0x{WS_PT:x}
        s_add_u32 s64, s{sPB}, {PB_RG}
        s_add_u32 s65, s{sPB}, {2*PB_RG}
        s_add_u32 s66, s{sPB}, {3*PB_RG}
        s_mul_i32 s67, s60, {UM_STEP}
        s_lshl_b32 s40, s63, 9
        s_add_u32 s67, s67, s40
        s_add_u32 s67, s67, 0x{WS_UMC:x}
        s_add_u32 s69, s67, 20480
        s_add_u32 s70, s67, 40960
        s_add_u32 s71, s67, 61440
        """)

    def c_flag_loads():
        a(f"""
        s_mov_b64 exec, 255
        buffer_load_dword v233, v243, {WS}, s{sA} offen sc1
        buffer_load_dwordx4 v[224:227], v243, {WS}, s{sFT} offen sc1
        s_mov_b64 exec, -1
        """)

    def c_test(fail):
        a(f"""
        v_min3_u32 v234, v233, v224, v225
        v_min3_u32 v234, v234, v226, v227
        s_mov_b64 exec, 255
        v_cmp_gt_u32 vcc, s44, v234
        s_mov_b64 exec, -1
        s_cbranch_vccnz {fail}
        """)

    def c_block():
        c_needs()
        top, retry, done = a.newlabel("cb"), a.newlabel("cb"), a.newlabel("cb")
        a.label(top)
        c_flag_loads()
        a("s_waitcnt vmcnt(0)")
        sk = a.newlabel("cb")
        a(f"""
        s_cmp_lt_u32 s60, {SENT0}
        s_cbranch_scc1 {sk}
        v_mov_b32 v233, 64
        {sk}:
        """)
        c_test(retry)
        a(f"s_branch {done}")
        a.label(retry)
        a(f"""
        s_sub_u32 s{sBUD}, s{sBUD}, 1
        s_cmp_lt_i32 s{sBUD}, 0
        s_cbranch_scc1 {done}
        s_sleep 3
        s_branch {top}
        """)
        a.label(done)

    def c_load_list(buf):
        L = []
        for rg in range(4):
            so = [sPB, 64, 65, 66][rg]
            PF = PFB[buf] + 20*rg
            for q in range(4):
                L.append(f"buffer_load_dwordx4 {vr(PF+q*4,4)}, v{vPT}, {WS}, s{so} offen offset:{q*1024} sc1")
            L.append(f"buffer_load_dwordx4 {vr(PF+16,4)}, v241, {WS}, s{so} offen sc1")
        for j in range(4):
            for pr in range(2):
                L.append(f"buffer_load_dwordx2 {ar(BMB[buf]+pr*8+2*j,2)}, v{vBM}, {WS}, s{[67,69,70,71][j]} offen offset:{pr*256} sc1")
        return L

    def c_ux(buf, tail_wait=False):
        ok, skip, end = a.newlabel("cux"), a.newlabel("cux"), a.newlabel("cux")
        a(f"""
        s_cmp_ge_u32 s68, 64
        s_cbranch_scc1 {skip}
        s_add_u32 s45, s68, 1
        s_mov_b64 exec, 255
        v_cmp_gt_u32 vcc, s45, v232
        s_mov_b64 exec, -1
        s_cbranch_vccz {ok}
        """)
        wait_all(a, 8, 243, sV, 45, 232)
        a.label(ok)
        a(f"""
        s_mul_i32 s{sUXR}, s68, {UX_STEP}
        s_lshl_b32 s40, s72, 11
        s_add_u32 s{sUXR}, s{sUXR}, s40
        s_add_u32 s{sUXR}, s{sUXR}, s73
        """)
        for hh in range(8):
            for pr in range(2):
                a(f"buffer_load_dwordx4 {ar(buf*64+pr*32+hh*4,4)}, v{vL16}, {WS}, s{sUXR} offen offset:{pr*1024} sc1")
            a(f"s_add_u32 s{sUXR}, s{sUXR}, 40960")
        if tail_wait:
            a("s_waitcnt vmcnt(16)")
            a(f"s_branch {end}")
        a.label(skip)
        if tail_wait:
            a("s_waitcnt vmcnt(0)")
        a.label(end)
        adv(68, 72)

    def c_burst(buf):
        c_block()
        c_offs()
        top = a.newlabel("cbl")
        a.label(top)
        for x in c_load_list(buf):
            a(x)
        c_flag_loads()
        a("s_waitcnt vmcnt(0)")
        vmax_chain(a, 3, range(PFB[buf], PFB[buf]+80))
        poll_fail(a, top, sleep=4)
        adv(60, 63)

    def c_compute(buf, LL):
        b = Asm()
        for r in range(32):
            b(f"v_mov_b32 v{CAC+r}, 0")
        b.nop(1)
        for q in range(5):
            for pr in range(2):
                for rg in range(4):
                    f = PFB[buf] + 20*rg + q*4
                    B = ar(buf*64+pr*32+q*8, 8) if q < 4 else ar(BMB[buf]+pr*8, 8)
                    b(f"v_smfmac_f32_16x16x64_bf16 {vr(CAC+(pr*4+rg)*4,4)}, {vr(f,4)}, {B}, v{vIDX}")
        b.nop(6)
        for rg in range(4):
            A, B = CAC + rg*4, CAC + (4+rg)*4
            for r in range(4):
                b(f"v_permlane32_swap_b32 v{A+r}, v{B+r}")
            for r in range(4):
                b(f"v_add_f32 v{A+r}, v{A+r}, v{B+r}")
            b(f"ds_write_b128 v{vWr}, {vr(A,4)} offset:{rg*4096}")
        b(f"""
        s_waitcnt lgkmcnt(0)
        s_barrier
        """)
        FT = 208
        for q in range(4):
            b(f"ds_read_b128 {vr(FT+4*q,4)}, v{vRd} offset:{q*1024}")
        b(f"""
        s_mul_i32 s74, s57, {32*1280}
        s_lshl_b32 s75, s58, 6
        s_add_u32 s74, s74, s75
        s_add_u32 s74, s74, 0x{WS_ATT:x}
        s_lshl_b32 s75, s57, 7
        s_add_u32 s75, s75, 0x{flag(FL_CC):x}
        s_waitcnt lgkmcnt(0)
        """)
        for r in range(4):
            b(f"v_add_f32 v{FT+r}, v{FT+r}, v{FT+4+r}")
            b(f"v_add_f32 v{FT+8+r}, v{FT+8+r}, v{FT+12+r}")
        for r in range(4):
            b(f"v_add_f32 v{FT+r}, v{FT+r}, v{FT+8+r}")
        b.nop(1)
        for r in range(4):
            b(f"v_mov_b32_dpp v{FT+8+r}, v{FT+r} quad_perm:[1,0,3,2] row_mask:0xf bank_mask:0xf")
        for r in range(4):
            b(f"v_cvt_pk_bf16_f32 v{FT+r}, v{FT+r}, v{FT+8+r}")
            b(f"v_min_u32 v{FT+r}, -2, v{FT+r}")
            b(f"buffer_store_dword v{FT+r}, v{vXS}, {WS}, s74 offen offset:{r*1280} sc1")
        LL = list(LL)
        acc = 0
        for ln in b.lines:
            t = ln.strip()
            a.lines.append(ln)
            if not t or t.startswith(";"):
                continue
            if t.startswith("v_smfmac"):
                acc += 16
            elif t.startswith("ds_") or t.startswith("s_waitcnt") or t.startswith("s_barrier"):
                acc += 24
            elif t.startswith("buffer_store"):
                acc = 0
            else:
                acc += 4
            if acc >= C_GAP and LL and not t.startswith("v_cvt_pk_bf16_f32 v2"):
                a(LL.pop(0))
                acc = 0
        for x in LL:
            a(x)

    c_ux(0)
    c_ux(1)
    c_burst(0)
    a.label("c_loop")
    for buf in range(2):
        stamp(a, 0)
        plain, join, nb = a.newlabel("cpl"), a.newlabel("cjn"), a.newlabel("cnb")
        c_needs()
        a(f"s_mov_b32 s{sPFC}, 0")
        c_test(plain)
        a(f"""
        s_cmp_ge_u32 s60, {SENT0}
        s_cbranch_scc1 {plain}
        s_mov_b32 s{sPFC}, 1
        """)
        c_offs()
        c_compute(buf, c_load_list(1 - buf))
        c_flag_loads()
        adv(60, 63)
        a(f"s_branch {join}")
        a.label(plain)
        c_compute(buf, [])
        a.label(join)
        stamp(a, 1)
        a(f"""
        s_waitcnt vmcnt(0)
        s_barrier
        s_cmp_lg_u32 s{sW}, 3
        s_cbranch_scc1 c_nf{buf}
        s_lshl_b32 s40, s57, 2
        s_add_u32 s40, s40, 0x{flag(FL_CN):x}
        v_mov_b32 v230, 1
        s_mov_b64 exec, 1
        buffer_atomic_add v230, off, {WS}, s40 sc0
        s_mov_b64 exec, -1
        c_nf{buf}:
        """)
        c_ux(buf, tail_wait=True)
        a(f"""
        s_cmp_lg_u32 s{sW}, 3
        s_cbranch_scc1 c_ng{buf}
        s_mov_b64 exec, 1
        v_cmp_eq_u32 vcc, 19, v230
        s_cbranch_vccz c_nh{buf}
        buffer_store_dword v231, off, {WS}, s75 sc1
        c_nh{buf}:
        s_mov_b64 exec, -1
        c_ng{buf}:
        """)
        adv(57, 58)
        stamp(a, 2)
        stamp_flush(a, 3, 1)
        a(f"""
        s_add_u32 s{sSTEP}, s{sSTEP}, 1
        s_cmp_ge_u32 s57, 64
        s_cbranch_scc1 r_end
        s_cmp_eq_u32 s{sPFC}, 1
        s_cbranch_scc1 {nb}
        """)
        c_burst(1 - buf)
        a.label(nb)
    a("s_branch c_loop")
    a.label("pre_boot")
    a(f"""
    v_mov_b32 v134, -1
    s_sub_u32 s40, s{sID}, 102
    s_lshl_b32 s40, s40, 21
    s_add_u32 s40, s40, 0x{WS_CRA + 0x1F0000:x}
    s_lshl_b32 s41, s{sW}, 14
    s_add_u32 s40, s40, s41
    s_mov_b32 s42, -1
    s_mov_b32 s43, -1
    s_mov_b64 exec, 1
    """)
    for k in range(3):
        for half in range(2):
            a(f"""
            s_add_u32 s41, s40, {half*8192 + (k%2)*4096 + k*1152}
            s_memtime s[44:45]
            s_waitcnt lgkmcnt(0)
            buffer_store_dword v134, off, {WS}, s41 sc1
            s_waitcnt vmcnt(0)
            buffer_load_dword v135, off, {WS}, s41 sc1
            s_waitcnt vmcnt(0)
            s_memtime s[46:47]
            s_waitcnt lgkmcnt(0)
            s_sub_u32 s46, s46, s44
            s_min_u32 s{42+half}, s{42+half}, s46
            """)
    a(f"""
    v_mov_b32 v136, s42
    v_mov_b32 v137, s43
    s_lshl_b32 s40, s{sW}, 3
    v_mov_b32 v135, s40
    ds_write_b64 v135, v[136:137]
    s_mov_b64 exec, -1
    s_waitcnt lgkmcnt(0)
    s_barrier
    v_mov_b32 v135, 0
    ds_read_b128 v[124:127], v135
    ds_read_b128 v[128:131], v135 offset:16
    s_waitcnt lgkmcnt(0)
    v_add3_u32 v124, v124, v126, v128
    v_add3_u32 v125, v125, v127, v129
    v_add_u32 v124, v124, v130
    v_add_u32 v125, v125, v131
    v_cmp_lt_u32 vcc, v125, v124
    v_mov_b32 v126, 1
    v_mov_b32 v127, 3
    v_cndmask_b32 v126, v126, v127, vcc
    {"v_mov_b32 v126, " + FORCEPOL if FORCEPOL else ""}
    s_sub_u32 s40, s{sID}, 102
    s_lshl_b32 s40, s40, 2
    s_barrier
    s_cmp_lg_u32 s{sW}, 0
    s_cbranch_scc1 boot_nrm0
    s_mov_b64 exec, 1
    buffer_store_dword v126, off, {DBG}, s40 offset:176 sc1
    s_mov_b64 exec, -1
    s_branch boot_nrm0
    """)
    from gen_boot import gen_boot
    gen_boot(a)
    from gen_f import gen_phase2
    gen_phase2(a)
    a.label("r_end")
    a("s_endpgm")
    a.label("r_code_end")
    return (L, 256, 256, 131072, kernel_desc(L, 512, 256))
```

```python
from gen_common import *
import os

P_SLEEP0 = int(os.environ.get("P_SLEEP0", "35"))
P_SLEEP1 = int(os.environ.get("P_SLEEP1", "46"))
U_SLEEPM = int(os.environ.get("U_SLEEPM", "14"))
U_SLEEPP = int(os.environ.get("U_SLEEPP", "12"))
STAMP = int(os.environ.get("STAMP", "0"))
L1FIRST = 0
FORCEPOL = os.environ.get("FORCEPOL", "")
U_SLEEPD = int(os.environ.get("U_SLEEPD", "19"))
DOOR = int(os.environ.get("DOOR", "1"))
C_GAP = int(os.environ.get("C_GAP", "56"))
C_UXTAIL = int(os.environ.get("C_UXTAIL", "16"))
V_SLEEP = int(os.environ.get("V_SLEEP", "14"))
VM_FILL = int(os.environ.get("VM_FILL", "3"))
PKADD = int(os.environ.get("PKADD", "1"))
PDELAY = int(os.environ.get("PDELAY", "0"))
TDEPTH = int(os.environ.get("TDEPTH", "2"))
PDEPTH = int(os.environ.get("PDEPTH", "2"))
CT0 = 20 * int(os.environ.get("CSEG0", "48"))
XMAP = int(os.environ.get("XMAP", "76540321"), 16)
WARM = int(os.environ.get("WARM", "0"))
DST = int(os.environ.get("DST", "0"))
NOMIMIC = int(os.environ.get("NOMIMIC", "1"))
NOTOK = int(os.environ.get("NOTOK", "0"))

WS, DBG, WQ, WK, XS = "s[8:11]", "s[12:15]", "s[16:19]", "s[20:23]", "s[24:27]"
sW, sID, sSTEP, sBUD = 3, 28, 29, 30
vLANE, vIDX = 2, 4
vL16, vL16b, vL16c = 5, 6, 7
vM8 = 187
sSA, sSB = 98, 99
MEMF = 16
ACC = 56
LDS_T = 0x14000
LDS_R = 0x15000
LDS_ROLE = 0x1F000


def wreg(t, ks, n=4):
    idx = (t * 20 + ks) * 4
    if idx < 256:
        return ar(idx, n)
    return vr(192 + idx - 256, n)


def widx(idx, n=4):
    return ar(idx, n) if idx < 256 else vr(192 + idx - 256, n)


def l16(off):
    return f"v{vL16 + off // 4096}", off % 4096


def poll_fail(a, retry_label, sleep=2):
    ok = a.newlabel("pok")
    a(f"""
    s_cbranch_vccz {ok}
    s_sub_u32 s{sBUD}, s{sBUD}, 1
    s_cmp_lt_i32 s{sBUD}, 0
    s_cbranch_scc1 {ok}
    s_sleep {sleep}
    s_branch {retry_label}
    """)
    a.label(ok)


def wait_flag(a, s_flagoff, s_need, s_seen, vt, sleep=8):
    top = a.newlabel("wf")
    done = a.newlabel("wfd")
    a.label(top)
    a(f"""
    s_cmp_ge_u32 s{s_seen}, s{s_need}
    s_cbranch_scc1 {done}
    buffer_load_dword v{vt}, off, {WS}, s{s_flagoff} sc1
    s_waitcnt vmcnt(0)
    v_readfirstlane_b32 s{s_seen}, v{vt}
    s_nop 3
    s_cmp_ge_u32 s{s_seen}, s{s_need}
    s_cbranch_scc1 {done}
    s_sub_u32 s{sBUD}, s{sBUD}, 1
    s_cmp_lt_i32 s{sBUD}, 0
    s_cbranch_scc1 {done}
    s_sleep {sleep}
    s_branch {top}
    """)
    a.label(done)


def vmax_chain(a, vt, regs):
    regs = list(regs)
    a(f"v_max3_u32 v{vt}, v{regs[0]}, v{regs[1]}, v{regs[2]}")
    k = 3
    while k < len(regs):
        if k + 1 < len(regs):
            a(f"v_max3_u32 v{vt}, v{vt}, v{regs[k]}, v{regs[k+1]}")
            k += 2
        else:
            a(f"v_max_u32 v{vt}, v{vt}, v{regs[k]}")
            k += 1
    a(f"v_cmp_eq_u32 vcc, -1, v{vt}")


def get_pol(a, vt):
    from gen_boot import dbg_wait_wg, DBG_INIT, DBG_POL
    dbg_wait_wg(a, [(DBG_INIT, 1), (DBG_POL, 1), (DBG_POL+4, 1)], vt)
    a(f"""
    buffer_load_dwordx2 v[184:185], off, {DBG}, 0 offset:{DBG_POL} sc1
    s_waitcnt vmcnt(0)
    v_readfirstlane_b32 s{sSA}, v184
    v_readfirstlane_b32 s{sSB}, v185
    s_nop 3
    s_and_b32 s{sSA}, s{sSA}, 2
    s_lshl_b32 s{sSA}, s{sSA}, 12
    s_and_b32 s{sSB}, s{sSB}, 2
    s_lshl_b32 s{sSB}, s{sSB}, 12
    v_add_u32 v{vM8}, 16384, v{vL16}
    """)


def mem_loads(a, s_memoff, flag="sc1", start=0):
    for kb in range(start, 10):
        r, o = l16(kb * 1024)
        if kb >= 8:
            r = f"v{vM8}"
        a(f"buffer_load_dwordx4 {vr(MEMF+4*kb,4)}, {r}, {WS}, s{s_memoff} offen offset:{o} {flag}")


DEFERRED = []
MODE2 = [False]


def flush_deferred(a):
    for f in DEFERRED:
        f()
    DEFERRED.clear()


def mem_proj(a, tiles, s_memoff, vmax, sleep=1, after_first=None):
    base = a.newlabel("mp")
    mem_loads(a, s_memoff, "" if L1FIRST else "sc1")
    for t in tiles:
        for r in range(4):
            a(f"v_mov_b32 v{ACC+4*t+r}, 0")

    def chk(kb):
        f = MEMF + 4 * kb
        return [f"s_waitcnt vmcnt({9-kb})",
                f"v_max3_u32 v{vmax}, v{f}, v{f+1}, v{f+2}",
                f"v_max_u32 v{vmax}, v{vmax}, v{f+3}\nv_cmp_eq_u32 vcc, -1, v{vmax}"]
    for x in chk(0):
        a(x)
    a(f"s_cbranch_vccnz {base}_r0")
    for kb in range(10):
        f = MEMF + 4 * kb
        a.label(f"{base}_c{kb}")
        if STAMP == 2 and kb in (0, 4, 9):
            a(f"s_memrealtime s[{ {0:86,4:88,9:90}[kb] }:{ {0:87,4:89,9:91}[kb] }]")
        if kb == 9 and after_first:
            after_first()
        nxt = chk(kb + 1) if kb < 9 else []
        for n, t in enumerate(tiles):
            a(f"v_smfmac_f32_16x16x64_bf16 {vr(ACC+4*t,4)}, {vr(f,4)}, {wreg(t,2*kb,8)}, v{vIDX}")
            if n < len(nxt):
                a(nxt[n])
        for x in nxt[len(tiles):]:
            a(x)
        if kb < 9:
            a(f"s_cbranch_vccnz {base}_r{kb+1}")

    def ool():
        for kb in range(10):
            a.label(f"{base}_r{kb}")
            a(f"""
            s_sub_u32 s{sBUD}, s{sBUD}, 1
            s_cmp_lt_i32 s{sBUD}, 0
            s_cbranch_scc1 {base}_c{kb}
            s_sleep {sleep}
            """)
            mem_loads(a, s_memoff, "sc1", kb)
            for x in chk(kb):
                a(x)
            a(f"s_cbranch_vccnz {base}_r{kb}")
            a(f"s_branch {base}_c{kb}")
    DEFERRED.append(ool)


LDS_M = 0x18000


def mem_setup(a):
    a(f"""
    s_lshl_b32 s40, s{sW}, 10
    v_add_u32 v176, s40, v{vL16}
    v_add_u32 v177, 4096, v176
    v_add_u32 v178, 16384, v176
    v_add_u32 v179, 0x{LDS_M:x}, v176
    v_add_u32 v175, 0x{LDS_M:x}, v{vL16}
    s_cmp_lt_u32 s{sW}, 2
    s_cbranch_scc1 {a.newlabel("ms")}_ok
    v_mov_b32 v178, 0x7ffffff0
    """)
    a.label(f"ms_{a.uid}_ok")


def mem_proj2(a, order, s_memoff, vmax, after_valid=None, fill=None):
    top = a.newlabel("mq")
    G = 160
    a.label(top)
    for k in range(3):
        a(f"buffer_load_dwordx4 {vr(G+4*k,4)}, v{176+k}, {WS}, s{s_memoff} offen sc1")
    for grp in order:
        for t in grp:
            for r in range(4):
                a(f"v_mov_b32 v{ACC+4*t+r}, 0")
    a("s_waitcnt vmcnt(2)")
    a(f"ds_write_b128 v179, {vr(G,4)}")
    a(f"v_max3_u32 v{vmax}, v{G}, v{G+1}, v{G+2}")
    a("s_waitcnt vmcnt(1)")
    a(f"ds_write_b128 v179, {vr(G+4,4)} offset:4096")
    a(f"v_max3_u32 v{vmax}, v{vmax}, v{G+3}, v{G+4}")
    a(f"v_max3_u32 v{vmax}, v{vmax}, v{G+5}, v{G+6}")
    a("s_waitcnt vmcnt(0)")
    a(f"ds_write_b128 v179, {vr(G+8,4)} offset:8192")
    a(f"v_max3_u32 v{vmax}, v{vmax}, v{G+7}, v{G+8}")
    a(f"v_max3_u32 v{vmax}, v{vmax}, v{G+9}, v{G+10}")
    a(f"v_max_u32 v{vmax}, v{vmax}, v{G+11}")
    a(f"v_cmp_eq_u32 vcc, -1, v{vmax}")
    poll_fail(a, top, sleep=1)
    if after_valid:
        after_valid()
    if STAMP == 2:
        a("s_memrealtime s[86:87]")
    join = a.newlabel("mj")
    labs = [a.newlabel("mw") for _ in range(4)]
    a(f"""
    s_cmp_ge_u32 s{sW}, 2
    s_cbranch_scc1 {labs[2]}
    s_cmp_eq_u32 s{sW}, 1
    s_cbranch_scc1 {labs[1]}
    """)

    def sm(t, kb, src):
        a(f"v_smfmac_f32_16x16x64_bf16 {vr(ACC+4*t,4)}, {vr(src,4)}, {wreg(t,2*kb,8)}, v{vIDX}")
    for w in range(4):
        a.label(labs[w])
        if w == 2:
            a(f"""
            s_cmp_eq_u32 s{sW}, 3
            s_cbranch_scc1 {labs[3]}
            """)
        own = [w, w + 4] + ([8 + w] if w < 2 else [])
        oth = [kb for kb in range(10) if kb not in own]
        a("s_waitcnt lgkmcnt(0)")
        a("s_barrier")
        if STAMP == 2:
            a("s_memrealtime s[88:89]")
        for kb in oth:
            a(f"ds_read_b128 {vr(MEMF+4*kb,4)}, v175 offset:{kb*1024}")
        for grp in order:
            for k, kb in enumerate(own):
                for t in grp:
                    sm(t, kb, G + 4*k)
        for gi, grp in enumerate(order):
            F = list(fill.get(gi, [])) if fill else []
            n = 0
            tot = len(oth) * len(grp)
            for k, kb in enumerate(oth):
                if gi == 0:
                    a(f"s_waitcnt lgkmcnt({len(oth)-1-k})")
                for t in grp:
                    sm(t, kb, MEMF + 4*kb)
                    n += 1
                    if F and n == 2:
                        a.nop(6)
                    if n >= 2 and F:
                        a(F.pop(0))
            for x in F:
                a(x)
        if w < 3:
            a(f"s_branch {join}")
    a.label(join)
    if STAMP == 2:
        a("s_memrealtime s[90:91]")


def combine_list(t0, t1, d01, d23):
    A, B = ACC + 4 * t0, ACC + 4 * t1
    L = [f"v_permlane32_swap_b32 v{A+r}, v{B+r}" for r in range(4)]
    L += [f"v_pk_add_f32 v[{A+r}:{A+r+1}], v[{A+r}:{A+r+1}], v[{B+r}:{B+r+1}]" for r in (0, 2)]
    L += [f"v_cvt_pk_bf16_f32 v{d01}, v{A}, v{A+1}", f"v_cvt_pk_bf16_f32 v{d23}, v{A+2}, v{A+3}"]
    return L


def combine_pair(a, t0, t1, d01, d23):
    A, B = ACC + 4 * t0, ACC + 4 * t1
    for r in range(4):
        a(f"v_permlane32_swap_b32 v{A+r}, v{B+r}")
    if PKADD:
        for r in (0, 2):
            a(f"v_pk_add_f32 v[{A+r}:{A+r+1}], v[{A+r}:{A+r+1}], v[{B+r}:{B+r+1}]")
    else:
        for r in range(4):
            a(f"v_add_f32 v{A+r}, v{A+r}, v{B+r}")
    a(f"v_cvt_pk_bf16_f32 v{d01}, v{A}, v{A+1}")
    a(f"v_cvt_pk_bf16_f32 v{d23}, v{A+2}, v{A+3}")


def load_wqk(a, mats=(WQ, WK), depth=3):
    a.comment("---- load Wq/Wk fragments")
    a(f"""
    v_lshrrev_b32 v10, 4, v{vLANE}          ; r = lane/16
    v_and_b32 v11, 15, v{vLANE}             ; chunk'
    v_and_b32 v12, 1, v10
    s_lshl_b32 s40, s{sW}, 1
    v_or_b32 v12, s40, v12                  ; f = (r&1)|(w<<1)
    v_lshlrev_b32 v12, 1, v12
    v_xor_b32 v11, v11, v12
    v_lshlrev_b32 v11, 4, v11
    s_lshl_b32 s40, s{sW}, 2
    v_add_u32 v12, s40, v10                 ; 4w+r
    v_lshl_add_u32 v11, v12, 13, v11
    s_lshl_b32 s41, s{sID}, 8
    s_lshl_b32 s42, s{sW}, 10
    v_bfe_u32 v12, v{vLANE}, 2, 2           ; r
    v_and_b32 v13, 3, v{vLANE}              ; c
    v_lshrrev_b32 v14, 1, v10               ; g>>1
    v_lshlrev_b32 v14, 4, v14               ; 16*(g>>1)
    v_and_b32 v15, 1, v10                   ; g&1
    v_lshl_add_u32 v14, v15, 2, v14         ; +4*(g&1)
    v_and_b32 v16, 1, v12
    v_add_u32 v14, v14, v16                 ; +(r&1)
    v_lshrrev_b32 v17, 1, v12               ; r>>1
    v_lshl_add_u32 v14, v17, 3, v14         ; +8*(r>>1)
    v_lshlrev_b32 v14, 8, v14
    v_lshl_add_u32 v14, v13, 3, v14         ; + c*8
    v_lshl_or_b32 v16, v15, 1, v16
    v_lshl_or_b32 v16, v17, 2, v16          ; f
    v_lshl_or_b32 v14, v16, 5, v14
    s_lshl_b32 s40, s{sW}, 6                ; (2w)<<5
    v_xor_b32 v18, s40, v14                 ; tile 2w
    v_xor_b32 v19, 32, v18                  ; tile 2w+1
    v_add_u32 v20, 0x10000, v18
    v_add_u32 v21, 0x10000, v19
    """)

    nm = len(mats)

    def dma(cn):
        buf = cn % 4
        for mat, sd in enumerate(mats):
            for q in range(4):
                a(f"""
                s_add_u32 s43, s42, {buf*32768 + mat*16384 + q*4096}
                s_mov_b32 m0, s43
                s_add_u32 s44, s41, {(cn*64+16*q)*8192}
                buffer_load_dwordx4 v11, {sd}, s44 offen lds
                """)
    for cn in range(depth):
        dma(cn)
    for cn in range(10):
        later = min(depth - 1, 9 - cn)
        a(f"s_waitcnt vmcnt({4*nm*later})")
        a("s_barrier")
        if cn + depth < 10:
            dma(cn + depth)
        buf = cn % 4
        for mat in range(nm):
            for tt in range(2):
                for ksl in range(2):
                    for j in range(2):
                        idx = ((mat*2+tt) * 20 + cn*2 + ksl) * 4 + 2*j
                        av = 18 + tt + (2 if buf >= 2 else 0)
                        a(f"ds_read_b64_tr_b16 {widx(idx,2)}, v{av} offset:{(buf&1)*32768 + mat*16384 + ksl*8192 + j*512}")
            a("s_waitcnt lgkmcnt(0)")
    a("s_barrier")


def load_wo(a, sd):
    a.comment("---- load Wo fragments")
    for q in range(5):
        a(f"""
        v_add_u32 v10, {64*q}, v{vLANE}
        v_mul_u32_u24 v11, 3277, v10
        v_lshrrev_b32 v11, 16, v11            ; row = q/20
        v_mul_u32_u24 v12, 20, v11
        v_sub_u32 v10, v10, v12               ; chunk
        v_mul_u32_u24 v11, 1280, v11
        v_lshl_add_u32 v{16+q}, v10, 4, v11
        """)
    a(f"""
    s_mul_i32 s41, s{sID}, 163840
    s_mul_i32 s40, s{sW}, 320
    s_add_u32 s41, s41, s40                 ; soffset
    s_mul_i32 s42, s{sW}, 20480
    v_lshrrev_b32 v10, 4, v{vLANE}          ; g
    v_bfe_u32 v11, v{vLANE}, 2, 2           ; r
    v_lshl_add_u32 v10, v10, 2, v11
    v_mul_u32_u24 v10, 320, v10
    v_and_b32 v11, 3, v{vLANE}
    v_lshl_add_u32 v10, v11, 3, v10
    v_add_u32 v21, s42, v10
    """)
    for half in range(2):
        a("s_mov_b32 s43, s42")
        for blk in range(4):
            for q in range(5):
                a(f"""
                s_mov_b32 m0, s43
                s_add_u32 s43, s43, 1024
                buffer_load_dwordx4 v{16+q}, {sd}, s41 offen lds
                """)
            a(f"s_add_u32 s41, s41, {16*1280}")
        a("s_waitcnt vmcnt(0)")
        for jt in range(10):
            for kl in range(2):
                for j in range(2):
                    idx = 160 + (jt*4 + half*2 + kl) * 4 + 2*j
                    a(f"ds_read_b64_tr_b16 {widx(idx,2)}, v21 offset:{(32*kl+16*j)*320 + jt*32}")
            if jt % 2 == 1:
                a("s_waitcnt lgkmcnt(0)")
    a("s_barrier")


def load_wvo(a):
    a.comment("---- load Wvo fragments (linear)")
    a(f"""
    s_lshl_b32 s40, s{sID}, 2
    s_add_u32 s40, s40, s{sW}
    s_mul_i32 s40, s40, 81920
    s_add_u32 s40, s40, 0x{WS_WVO:x}
    """)
    for f in range(80):
        a(f"buffer_load_dwordx4 {wreg(f//20, f%20)}, v{vL16}, {WS}, s40 offen offset:{(f%4)*1024}")
        if f % 4 == 3:
            a("s_add_u32 s40, s40, 4096")
        if f % 40 == 39:
            a("s_waitcnt vmcnt(20)" if f < 79 else "s_waitcnt vmcnt(0)")


vHG = 15


def dma_h_setup(a):
    a(f"""
    v_and_b32 v10, 15, v{vLANE}
    v_mul_u32_u24 v10, 1280, v10
    v_lshrrev_b32 v{vHG}, 4, v{vLANE}
    v_lshl_add_u32 v{vHG}, v{vHG}, 4, v10
    """)


def dma_h_init(a, s_hoff, s_buf):
    a(f"""
    s_mul_i32 s43, s{sW}, 10240
    s_add_u32 s43, s43, s{s_buf}
    s_lshr_b32 s44, s{sW}, 1
    s_mul_i32 s44, s44, 20480
    s_and_b32 s45, s{sW}, 1
    s_mul_i32 s45, s45, 640
    s_add_u32 s44, s44, s45
    s_add_u32 s44, s44, s{s_hoff}
    """)


def dma_h_one(a):
    a(f"""
    s_mov_b32 m0, s43
    s_add_u32 s43, s43, 1024
    buffer_load_dwordx4 v{vHG}, {WS}, s44 offen sc1 lds
    s_add_u32 s44, s44, 64
    """)


def dmal_init(a, s_hoff, s_buf):
    a(f"""
    s_mul_i32 s43, s{sW}, 10240
    s_add_u32 s44, s43, s{s_hoff}
    s_add_u32 s43, s43, s{s_buf}
    """)


def dmal_one(a):
    a(f"""
    s_mov_b32 m0, s43
    s_add_u32 s43, s43, 1024
    buffer_load_dwordx4 v{vL16}, {WS}, s44 offen sc1 lds
    s_add_u32 s44, s44, 1024
    """)


def dma_h(a, s_hoff, s_buf):
    dma_h_init(a, s_hoff, s_buf)
    for k in range(10):
        dma_h_one(a)


HF = 104
TACC = 72


def dense_proj(a, vH, transposed, hook=None, tiles=(0, 1, 2, 3)):
    def rd(ks):
        st = HF + (ks % 3) * 8
        for mt in range(2):
            a(f"ds_read_b128 {vr(st+4*mt,4)}, v{vH} offset:{mt*20480+ks*1024}")
    rd(0)
    rd(1)
    for ks in range(20):
        if ks + 2 < 20:
            rd(ks + 2)
            a("s_waitcnt lgkmcnt(4)")
        elif ks + 1 < 20:
            a("s_waitcnt lgkmcnt(2)")
        else:
            a("s_waitcnt lgkmcnt(0)")
        st = HF + (ks % 3) * 8
        for n, t in enumerate(tiles):
            for mt in range(2):
                acc = vr(TACC + (t*2+mt)*4, 4)
                c = "0" if ks == 0 else acc
                if transposed:
                    a(f"v_mfma_f32_16x16x32_bf16 {acc}, {wreg(t,ks)}, {vr(st+4*mt,4)}, {c}")
                else:
                    a(f"v_mfma_f32_16x16x32_bf16 {acc}, {vr(st+4*mt,4)}, {wreg(t,ks)}, {c}")
            if n == len(tiles) // 2 - 1 and hook:
                hook(ks)


def round_scale(a, xs, tmp, s_scale):
    def rnd():
        for k in range(0, len(xs), 2):
            x0 = xs[k]
            x1 = xs[k+1] if k + 1 < len(xs) else xs[k]
            a(f"v_cvt_pk_bf16_f32 v{tmp+k//2}, v{x0}, v{x1}")
        for k in range(0, len(xs), 2):
            a(f"v_lshlrev_b32 v{xs[k]}, 16, v{tmp+k//2}")
            if k + 1 < len(xs):
                a(f"v_and_b32 v{xs[k+1]}, 0xffff0000, v{tmp+k//2}")
    rnd()
    for x in xs:
        a(f"v_mul_f32 v{x}, s{s_scale}, v{x}")
    rnd()


def xlane(a, op, v, t, with8):
    if with8:
        a.nop(2)
        a(f"{op}_dpp v{v}, v{v}, v{v} row_ror:8 row_mask:0xf bank_mask:0xf")
    for sw in ("v_permlane16_swap_b32", "v_permlane32_swap_b32"):
        a(f"v_mov_b32 v{t}, v{v}")
        a.nop(2)
        a(f"{sw} v{v}, v{t}")
        a(f"{op} v{v}, v{v}, v{t}")


def softmax(a, xs, vm, vt, s_log2e, with8):
    a(f"v_max3_f32 v{vm}, v{xs[0]}, v{xs[1]}, v{xs[2]}")
    k = 3
    while k < len(xs):
        if k + 1 < len(xs):
            a(f"v_max3_f32 v{vm}, v{vm}, v{xs[k]}, v{xs[k+1]}")
            k += 2
        else:
            a(f"v_max_f32 v{vm}, v{vm}, v{xs[k]}")
            k += 1
    xlane(a, "v_max_f32", vm, vt, with8)
    for x in xs:
        a(f"v_sub_f32 v{x}, v{x}, v{vm}")
    for x in xs:
        a(f"v_mul_f32 v{x}, s{s_log2e}, v{x}")
    for x in xs:
        a(f"v_exp_f32 v{x}, v{x}")
    a(f"v_add_f32 v{vm}, v{xs[0]}, v{xs[1]}")
    for x in xs[2:]:
        a(f"v_add_f32 v{vm}, v{vm}, v{x}")
    xlane(a, "v_add_f32", vm, vt, with8)
    a(f"v_rcp_f32 v{vm}, v{vm}")
    a.nop(1)
    for x in xs:
        a(f"v_mul_f32 v{x}, v{x}, v{vm}")


def setup_qk_lds_addrs(a, vW, vR):
    a(f"""
    v_and_b32 v10, 15, v{vLANE}             ; n
    v_lshrrev_b32 v11, 4, v{vLANE}          ; g
    v_lshrrev_b32 v12, 1, v11
    v_lshl_add_u32 v10, v12, 4, v10         ; 16*(g>>1)+n
    s_lshl_b32 s40, s{sW}, 5
    v_add_u32 v10, s40, v10                 ; +32w
    v_lshlrev_b32 v10, 4, v10
    v_and_b32 v12, 1, v11
    v_lshl_add_u32 v10, v12, 3, v10
    v_add_u32 v{vW}, 0x{LDS_T:x}, v10
    v_bfe_u32 v12, v{vLANE}, 2, 2           ; r
    v_lshl_add_u32 v12, v11, 2, v12         ; 4g+r
    v_lshlrev_b32 v12, 4, v12
    v_and_b32 v13, 1, v{vLANE}
    v_lshl_add_u32 v12, v13, 3, v12
    v_add_u32 v{vR}, 0x{LDS_T:x}, v12
    """)


def setup_p_load_addrs(a, vA, vB, vM, wstride=8*640, hstride=10240):
    a(f"""
    v_bfe_u32 v10, v{vLANE}, 3, 1           ; rho
    v_and_b32 v11, 7, v{vLANE}              ; i
    v_lshrrev_b32 v12, 4, v{vLANE}          ; gA
    v_lshrrev_b32 v13, 1, v12               ; gA>>1
    v_and_b32 v14, 1, v12                   ; gA&1
    s_mul_i32 s40, s{sW}, {wstride}
    v_mul_u32_u24 v15, 640, v10
    v_add_u32 v15, s40, v15
    v_lshl_add_u32 v15, v13, 8, v15
    v_lshl_add_u32 v15, v11, 5, v15
    v_lshl_add_u32 v{vA}, v14, 4, v15
    v_lshl_add_u32 v15, v13, 2, v14
    v_mul_u32_u24 v15, 640, v15
    v_add_u32 v15, s40, v15
    v_lshl_add_u32 v15, v10, 6, v15
    v_lshl_add_u32 v15, v11, 3, v15
    v_add_u32 v{vB}, 512, v15
    s_mul_i32 s40, s{sW}, {8*hstride}
    v_mul_u32_u24 v15, {hstride}, v13
    v_add_u32 v15, s40, v15
    v_lshl_add_u32 v15, v14, 7, v15
    v_and_b32 v11, 15, v{vLANE}
    v_lshl_add_u32 v{vM}, v11, 3, v15
    """)


def p_loads(a, PF, vA, vB, s_off):
    for blk in range(2):
        for pi in range(2):
            a(f"buffer_load_dwordx4 {vr(PF+(blk*2+pi)*4,4)}, v{vA}, {WS}, s{s_off} offen offset:{(4*blk+pi)*640} sc1")
    for pi in range(2):
        a(f"buffer_load_dwordx2 {vr(PF+16+2*pi,2)}, v{vB}, {WS}, s{s_off} offen offset:{pi*640} sc1")


def p_combine(a, PF, BX, BM, CA, vmax):
    for blk in range(2):
        for pi in range(2):
            f = PF + (blk*2+pi)*4
            a(f"v_smfmac_f32_16x16x64_bf16 {vr(CA+4*pi,4)}, {vr(f,4)}, {vr(BX+8*blk,8)}, v{vIDX}")
            if vmax is not None:
                a(f"v_max3_u32 v{vmax}, v{vmax}, v{f}, v{f+1}")
                a(f"v_max3_u32 v{vmax}, v{vmax}, v{f+2}, v{f+3}")
    a.nop(2 if vmax is not None else 6)
    for pi in range(2):
        f = PF + 16 + 2*pi
        a(f"v_smfmac_f32_16x16x32_bf16 {vr(CA+4*pi,4)}, {vr(f,2)}, {vr(BM,4)}, v{vIDX}")
        if vmax is not None:
            a(f"v_max3_u32 v{vmax}, v{vmax}, v{f}, v{f+1}")


def setup_red_addrs(a, vWr, vRd):
    a(f"""
    v_and_b32 v10, 15, v{vLANE}             ; n
    v_lshrrev_b32 v11, 4, v{vLANE}          ; g
    v_and_b32 v12, 1, v11
    v_lshlrev_b32 v12, 10, v12              ; 4*(g&1)*256
    v_lshl_add_u32 v12, v10, 5, v12         ; + n*32
    v_lshrrev_b32 v13, 1, v11
    v_lshl_add_u32 v12, v13, 2, v12         ; + (g>>1)*4
    s_lshl_b32 s40, s{sW}, 3
    s_add_u32 s40, s40, 0x{LDS_R:x}
    v_add_u32 v12, s40, v12
    v_mov_b32 v13, 0x{LDS_R+0x2800:x}
    v_cmp_gt_u32 vcc, 8, v10
    s_nop 1
    v_cndmask_b32 v{vWr}, v13, v12, vcc
    v_lshlrev_b32 v12, 5, v{vLANE}
    v_add_u32 v{vRd}, 0x{LDS_R:x}, v12
    """)


def red_write(a, CA, vWr, off):
    for r in range(4):
        a(f"v_add_f32_dpp v{CA+r}, v{CA+4+r}, v{CA+r} row_ror:8 row_mask:0xf bank_mask:0xf")
    for r in range(4):
        a(f"ds_write_b32 v{vWr}, v{CA+r} offset:{off + r*256}")


LB = 140
L_SRC, L_DST, L_M, L_V, L_T, L_T2 = LB, LB+1, LB+2, LB+3, LB+4, LB+5
L_RAW, L_OUT, L_X, L_SC, L_SH = LB+8, LB+16, LB+24, LB+40, LB+56


def ln_wave_sum(a, v):
    for ctrl in ["quad_perm:[1,0,3,2]", "quad_perm:[2,3,0,1]", "row_half_mirror", "row_mirror"]:
        a.nop(2)
        a(f"v_add_f32_dpp v{v}, v{v}, v{v} {ctrl} row_mask:0xf bank_mask:0xf")
    a.nop(1)
    a(f"v_readlane_b32 s72, v{v}, 0")
    a(f"v_readlane_b32 s73, v{v}, 16")
    a(f"v_readlane_b32 s74, v{v}, 32")
    a.nop(2)
    a(f"v_mov_b32 v{v}, s72")
    a(f"v_add_f32 v{v}, s73, v{v}")
    a(f"v_add_f32 v{v}, s74, v{v}")


def bf16r(a, v):
    a(f"v_cvt_pk_bf16_f32 v{v}, v{v}, v{v}")
    a(f"v_and_b32 v{v}, 0xffff0000, v{v}")


def ln_setup(a, shift_idx, scale_idx, perm):
    a(f"""
    v_cmp_gt_u32 vcc, 40, v{vLANE}
    v_mov_b32 v{L_T}, 0x7ffffff0
    v_lshlrev_b32 v{L_DST}, 4, v{vLANE}
    """)
    if perm:
        a(f"""
        v_lshrrev_b32 v{L_SRC}, 1, v{vLANE}
        v_lshlrev_b32 v{L_SRC}, 5, v{L_SRC}
        v_and_b32 v{L_T2}, 1, v{vLANE}
        v_lshl_add_u32 v{L_SRC}, v{L_T2}, 3, v{L_SRC}
        """)
    else:
        a(f"v_mov_b32 v{L_SRC}, v{L_DST}")
    a(f"""
    v_lshlrev_b32 v{L_T2}, 1, v{L_SRC}
    v_cndmask_b32 v{L_SRC}, v{L_T}, v{L_SRC}, vcc
    v_cndmask_b32 v{L_T2}, v{L_T}, v{L_T2}, vcc
    v_cndmask_b32 v{L_DST}, v{L_T}, v{L_DST}, vcc
    s_mov_b64 s[76:77], vcc
    s_mov_b32 s72, {WS_MOD + scale_idx*2560}
    s_mov_b32 s73, {WS_MOD + shift_idx*2560}
    """)
    for dst, so in ((L_SC, 72), (L_SH, 73)):
        for h in range(2):
            if perm:
                a(f"buffer_load_dwordx2 {vr(dst+8*h,2)}, v{L_T2}, {WS}, s{so} offen offset:{h*1280}")
                a(f"buffer_load_dwordx2 {vr(dst+8*h+4,2)}, v{L_T2}, {WS}, s{so} offen offset:{h*1280+8}")
                a(f"buffer_load_dwordx2 {vr(dst+8*h+2,2)}, v{L_T2}, {WS}, s{so} offen offset:{h*1280+32}")
                a(f"buffer_load_dwordx2 {vr(dst+8*h+6,2)}, v{L_T2}, {WS}, s{so} offen offset:{h*1280+40}")
            else:
                a(f"buffer_load_dwordx4 {vr(dst+8*h,4)}, v{L_T2}, {WS}, s{so} offen offset:{h*1280} sc1")
                a(f"buffer_load_dwordx4 {vr(dst+8*h+4,4)}, v{L_T2}, {WS}, s{so} offen offset:{h*1280+16} sc1")
    a("s_waitcnt vmcnt(0)")
    for j in range(8):
        a(f"v_add_f32 v{L_SC+2*j}, 1.0, v{L_SC+2*j}")
        a(f"v_add_f32 v{L_SC+2*j+1}, 1.0, v{L_SC+2*j+1}")
        a(f"v_cvt_pk_bf16_f32 v{L_T}, v{L_SC+2*j}, v{L_SC+2*j+1}")
        a(f"v_lshlrev_b32 v{L_SC+2*j}, 16, v{L_T}")
        a(f"v_and_b32 v{L_SC+2*j+1}, 0xffff0000, v{L_T}")


def ln_load(a, srd_, s_off, fl, perm, raw=L_RAW, extra=0):
    if perm:
        for h in range(2):
            a(f"buffer_load_dwordx2 {vr(raw+4*h,2)}, v{L_SRC}, {srd_}, s{s_off} offen offset:{extra+h*640} {fl}")
            a(f"buffer_load_dwordx2 {vr(raw+4*h+2,2)}, v{L_SRC}, {srd_}, s{s_off} offen offset:{extra+h*640+16} {fl}")
        return 4
    for h in range(2):
        a(f"buffer_load_dwordx4 {vr(raw+4*h,4)}, v{L_SRC}, {srd_}, s{s_off} offen offset:{extra+h*640} {fl}")
    return 2


def ln_unpack(a, perm, raw=L_RAW):
    pos = [0, 2, 1, 3] if perm else [0, 1, 2, 3]
    for h in range(2):
        for j in range(4):
            d = 4*h + pos[j]
            a(f"v_lshlrev_b32 v{L_X+2*d}, 16, v{raw+4*h+j}")
            a(f"v_and_b32 v{L_X+2*d+1}, 0xffff0000, v{raw+4*h+j}")


def ln_compute_store(a, s_dst, extra=0, out=L_OUT):
    X = L_X
    a(f"v_add_f32 v{L_M}, v{X}, v{X+1}")
    a(f"v_add_f32 v{L_T}, v{X+2}, v{X+3}")
    for j in range(4, 16, 2):
        a(f"v_add_f32 v{L_M}, v{L_M}, v{X+j}")
        a(f"v_add_f32 v{L_T}, v{L_T}, v{X+j+1}")
    a(f"v_add_f32 v{L_M}, v{L_M}, v{L_T}")
    ln_wave_sum(a, L_M)
    a(f"v_mul_f32 v{L_M}, 0x3acccccd, v{L_M}")
    a(f"v_sub_f32 v{L_T}, v{X}, v{L_M}")
    a(f"v_mul_f32 v{L_V}, v{L_T}, v{L_T}")
    for j in range(1, 16):
        t = L_T if j % 2 == 0 else L_T2
        a(f"v_sub_f32 v{t}, v{X+j}, v{L_M}")
        a(f"v_fmac_f32 v{L_V}, v{t}, v{t}")
    a(f"v_cndmask_b32 v{L_V}, 0, v{L_V}, s[76:77]")
    ln_wave_sum(a, L_V)
    a(f"v_mul_f32 v{L_V}, 0x3acccccd, v{L_V}")
    bf16r(a, L_V)
    a(f"v_add_f32 v{L_V}, 0x3727c5ac, v{L_V}")
    bf16r(a, L_V)
    a(f"v_sqrt_f32 v{L_V}, v{L_V}")
    a.nop(1)
    bf16r(a, L_V)
    a(f"v_rcp_f32 v{L_V}, v{L_V}")
    bf16r(a, L_M)
    for j in range(8):
        x0, x1 = X + 2*j, X + 2*j + 1
        a(f"""
        v_sub_f32 v{x0}, v{x0}, v{L_M}
        v_sub_f32 v{x1}, v{x1}, v{L_M}
        v_cvt_pk_bf16_f32 v{L_T}, v{x0}, v{x1}
        v_lshlrev_b32 v{x0}, 16, v{L_T}
        v_and_b32 v{x1}, 0xffff0000, v{L_T}
        v_mul_f32 v{x0}, v{x0}, v{L_V}
        v_mul_f32 v{x1}, v{x1}, v{L_V}
        v_cvt_pk_bf16_f32 v{L_T}, v{x0}, v{x1}
        v_lshlrev_b32 v{x0}, 16, v{L_T}
        v_and_b32 v{x1}, 0xffff0000, v{L_T}
        v_mul_f32 v{x0}, v{x0}, v{L_SC+2*j}
        v_mul_f32 v{x1}, v{x1}, v{L_SC+2*j+1}
        v_cvt_pk_bf16_f32 v{L_T}, v{x0}, v{x1}
        v_lshlrev_b32 v{x0}, 16, v{L_T}
        v_and_b32 v{x1}, 0xffff0000, v{L_T}
        v_add_f32 v{x0}, v{x0}, v{L_SH+2*j}
        v_add_f32 v{x1}, v{x1}, v{L_SH+2*j+1}
        v_cvt_pk_bf16_f32 v{out+j}, v{x0}, v{x1}
        v_min_u32 v{out+j}, -2, v{out+j}
        """)
    a(f"buffer_store_dwordx4 {vr(out,4)}, v{L_DST}, {WS}, s{s_dst} offen offset:{extra} sc1")
    a(f"buffer_store_dwordx4 {vr(out+4,4)}, v{L_DST}, {WS}, s{s_dst} offen offset:{extra+640} sc1")


def wait_all(a, nl, vaddr, s_off, s_need, vt, ndw=1, sleep=4):
    top, done = a.newlabel("wa"), a.newlabel("wad")
    a.label(top)
    op = {1: "dword", 4: "dwordx4"}[ndw]
    a(f"""
    s_mov_b32 exec_lo, 0x{(1 << nl) - 1:x}
    s_mov_b32 exec_hi, 0
    buffer_load_{op} {vr(vt, ndw)}, v{vaddr}, {WS}, s{s_off} offen sc1
    s_waitcnt vmcnt(0)
    """)
    if ndw == 4:
        a(f"v_min3_u32 v{vt}, v{vt}, v{vt+1}, v{vt+2}")
        a(f"v_min_u32 v{vt}, v{vt}, v{vt+3}")
    a(f"""
    v_cmp_gt_u32 vcc, s{s_need}, v{vt}
    s_mov_b64 exec, -1
    s_cbranch_vccz {done}
    s_sub_u32 s{sBUD}, s{sBUD}, 1
    s_cmp_lt_i32 s{sBUD}, 0
    s_cbranch_scc1 {done}
    s_sleep {sleep}
    s_branch {top}
    """)
    a.label(done)


WS_TRACE = 0x0F000000


def stamp(a, slot):
    if not STAMP:
        return
    if STAMP == 2 and MODE2[0] and slot in (3, 4):
        slot = 6
    if STAMP == 2 and MODE2[0] and slot == 0:
        a("s_memtime s[80:81]")
        return
    a(f"s_memrealtime s[{80+2*slot}:{81+2*slot}]")


def dstamp(a, word, vt, cond=""):
    if not DST:
        return
    lab = a.newlabel("ds")
    a(f"""
    {cond.format(lab=lab)}
    s_cmp_lg_u32 s{sW}, 0
    s_cbranch_scc1 {lab}
    s_memrealtime s[80:81]
    s_waitcnt lgkmcnt(0)
    v_mov_b32 v{vt}, s80
    s_mov_b64 exec, 1
    buffer_store_dword v{vt}, off, {DBG}, 0 offset:{word*4}
    s_mov_b64 exec, -1
    {lab}:
    """)


def stamp_flush(a, n, vt):
    if not STAMP:
        return
    if STAMP == 2 and MODE2[0]:
        n = 7
    skip = a.newlabel("stf")
    a(f"""
    s_cmp_lg_u32 s{sW}, 0
    s_cbranch_scc1 {skip}
    s_waitcnt lgkmcnt(0)
    s_lshl_b32 s96, s{sSTEP}, 5
    s_add_u32 s96, s96, s97
    s_mov_b64 exec, 1
    """)
    for k in range(n):
        a(f"v_mov_b32 v{vt}, s{80+2*k}")
        a(f"buffer_store_dword v{vt}, off, {WS}, s96 offset:{4*k}")
        a.nop(2)
    a(f"v_mov_b32 v{vt}, s{sBUD}")
    a(f"buffer_store_dword v{vt}, off, {WS}, s96 offset:28")
    a("s_mov_b64 exec, -1")
    a.label(skip)


def gen_r(a):
    L = NAME + "_kernel"
    kernel_header(a, L)
    a(f"""
    s_cmp_ge_u32 s2, 256
    s_cbranch_scc1 r_end
    s_load_dwordx2 s[4:5], s[0:1], {KA_WS}
    s_load_dwordx2 s[6:7], s[0:1], {KA_DBG}
    s_load_dwordx4 s[32:35], s[0:1], {KA_WQ}
    s_load_dwordx2 s[36:37], s[0:1], {KA_X}
    v_lshrrev_b32 v1, 6, v0
    v_and_b32 v{vLANE}, 63, v0
    s_waitcnt lgkmcnt(0)
    """)
    srd(a, 8, 4, WS_SIZE)
    srd(a, 12, 6, 256)
    srd(a, 16, 32, D * H * E * 2)
    srd(a, 20, 34, D * H * E * 2)
    srd(a, 24, 36, S * D * 2)
    a(f"""
    v_readfirstlane_b32 s{sW}, v1
    v_lshlrev_b32 v{vL16}, 4, v{vLANE}
    v_add_u32 v{vL16b}, 4096, v{vL16}
    v_add_u32 v{vL16c}, 8192, v{vL16}
    v_mov_b32 v{vIDX}, 0x4444
    v_mov_b32 v10, 0xeeee
    v_and_b32 v11, 8, v{vLANE}
    v_cmp_ne_u32 vcc, 0, v11
    s_mov_b32 s{sBUD}, 200000
    v_mov_b32 v9, 0x{LDS_ROLE:x}
    v_cndmask_b32 v{vIDX}, v{vIDX}, v10, vcc
    s_cmp_lg_u32 s{sW}, 0
    s_cbranch_scc1 r_warm
    s_getreg_b32 s40, hwreg(HW_REG_XCC_ID)
    s_and_b32 s40, s40, 7
    s_mov_b64 exec, 1
    s_lshl_b32 s43, s40, 2
    s_lshr_b32 s43, 0x{XMAP:x}, s43
    s_and_b32 s43, s43, 7
    s_mov_b32 s48, 0
    """)
    a.label("r_try")
    a(f"""
    s_lshr_b32 s45, s43, 1
    s_lshl_b32 s45, s45, 2
    s_and_b32 s44, s43, 1
    s_lshl_b32 s44, s44, 7
    s_add_u32 s45, s45, s44
    v_mov_b32 v10, 1
    buffer_atomic_add v10, off, {DBG}, s45 sc0
    s_waitcnt vmcnt(0)
    v_readfirstlane_b32 s41, v10
    s_nop 3
    s_cmp_lt_u32 s41, 32
    s_cbranch_scc1 r_got
    s_add_u32 s48, s48, 1
    s_sub_u32 s43, s48, 1
    s_mov_b32 s42, 999
    s_cmp_ge_u32 s43, 8
    s_cbranch_scc1 r_role_done
    s_branch r_try
    """)
    a.label("r_got")
    a(f"""
    s_lshl_b32 s42, s43, 5
    s_add_u32 s42, s42, s41                 ; P: t, VM: 32+t
    s_cmp_lt_u32 s43, 2
    s_cbranch_scc1 r_role_done
    s_cmp_ge_u32 s43, 4
    s_cbranch_scc1 r_got4
    s_sub_u32 s43, s43, 2                   ; q = 0,1
    s_mul_i32 s44, s43, 10
    s_add_u32 s42, s41, s44
    s_add_u32 s42, s42, 239                 ; F2: 239 + 10q + t
    s_cmp_lt_u32 s41, 10
    s_cbranch_scc1 r_role_done
    s_mul_i32 s44, s43, 20
    s_add_u32 s42, s41, s44
    s_add_u32 s42, s42, 54                  ; U: 64 + 20q + (t-10)
    s_cmp_lt_u32 s41, 30
    s_cbranch_scc1 r_role_done
    s_lshl_b32 s44, s43, 1
    s_add_u32 s42, s41, s44
    s_add_u32 s42, s42, 174                 ; L: 204 + 2q + (t-30)
    s_branch r_role_done
    """)
    a.label("r_got4")
    a(f"""
    s_sub_u32 s43, s43, 4                   ; q = 0..3
    s_lshl_b32 s44, s43, 3
    s_add_u32 s42, s41, s44
    s_add_u32 s42, s42, 112                 ; T
    s_cmp_lt_u32 s41, 8
    s_cbranch_scc1 r_role_done
    s_add_u32 s42, s42, 24                  ; VO
    s_cmp_lt_u32 s41, 16
    s_cbranch_scc1 r_role_done
    s_add_u32 s42, s43, 208                 ; L: 204 + 4 + q
    s_cmp_eq_u32 s41, 23
    s_cbranch_scc1 r_role_done
    s_lshl_b32 s44, s43, 1
    s_add_u32 s42, s41, s44
    s_add_u32 s42, s42, 160                 ; A
    s_cmp_lt_u32 s41, 18
    s_cbranch_scc1 r_role_done
    s_mul_i32 s44, s43, 5
    s_add_u32 s42, s41, s44
    s_add_u32 s42, s42, 166                 ; C
    s_cmp_lt_u32 s41, 23
    s_cbranch_scc1 r_role_done
    s_mul_i32 s44, s43, 7
    s_add_u32 s42, s41, s44
    s_add_u32 s42, s42, 188                 ; F1: 212 + 7q + (t-24)
    s_cmp_eq_u32 s42, 239
    s_cselect_b32 s42, 264, s42
    s_add_u32 s44, s43, 260
    s_cmp_eq_u32 s41, 31
    s_cselect_b32 s42, s44, s42
    """)
    a.label("r_role_done")
    a(f"""
    v_mov_b32 v10, s42
    ds_write_b32 v9, v10
    s_mov_b64 exec, -1
    s_waitcnt lgkmcnt(0)
    """)
    a("s_branch r_role_wait")
    a.label("r_warm")
    if WARM:
        a(f"""
        s_getpc_b64 s[40:41]
        r_warm_pc:
        s_sub_u32 s40, s40, r_warm_pc-{L}
        s_subb_u32 s41, s41, 0
        s_lshr_b32 s42, s2, 3
        s_mul_i32 s42, s42, 3
        s_add_u32 s42, s42, s{sW}
        s_sub_u32 s42, s42, 1                   ; 0..95
        s_lshl_b32 s42, s42, 10
        v_add_u32 v12, s42, v{vL16}
        v_min_u32 v12, r_code_end-{L}-16, v12
        global_load_dwordx4 v[16:19], v12, s[40:41]
        s_waitcnt vmcnt(0)
        """)
    a.label("r_role_wait")
    a(f"""
    s_barrier
    ds_read_b32 v10, v9
    s_waitcnt lgkmcnt(0)
    v_readfirstlane_b32 s{sID}, v10
    s_mov_b32 s{sSTEP}, 0
    s_mov_b32 s50, 0x3db504f3          ; 128^-0.5
    s_mov_b32 s51, 0x3fb8aa3b          ; log2(e)
    s_mov_b32 s62, s50
    s_mov_b32 s63, s50
    s_mov_b32 s100, 0
    s_mul_i32 s97, s{sID}, {72*32}
    s_add_u32 s97, s97, 0x{WS_TRACE:x}
    s_barrier
    """)
    if STAMP:
        a(f"""
        s_memrealtime s[80:81]
        s_waitcnt lgkmcnt(0)
        v_mov_b32 v3, s80
        buffer_store_dword v3, off, {WS}, s97 offset:{71*32}
        """)
    a(f"""
    s_cmp_lt_u32 s{sID}, 32
    s_cbranch_scc1 role_p
    s_cmp_lt_u32 s{sID}, 64
    s_cbranch_scc1 role_vm
    s_cmp_lt_u32 s{sID}, 112
    s_cbranch_scc1 boot
    s_cmp_lt_u32 s{sID}, 144
    s_cbranch_scc1 role_t
    s_cmp_lt_u32 s{sID}, 176
    s_cbranch_scc1 role_vo
    s_cmp_ge_u32 s{sID}, 265
    s_cbranch_scc1 r_end
    s_branch boot
    boot_done:
    s_cmp_lt_u32 s{sID}, 112
    s_cbranch_scc1 role_u
    {"s_endpgm" if NOTOK else ""}
    s_cmp_lt_u32 s{sID}, 184
    s_cbranch_scc1 role_al
    s_cmp_lt_u32 s{sID}, 204
    s_cbranch_scc1 role_c
    s_cmp_lt_u32 s{sID}, 212
    s_cbranch_scc1 role_al
    s_cmp_lt_u32 s{sID}, 259
    s_cbranch_scc1 role_f
    s_sub_u32 s{sID}, s{sID}, 56            ; 260.. -> 204..
    s_cmp_lt_u32 s{sID}, 209
    s_cbranch_scc1 role_c
    s_endpgm
    """)

    KF, QF, KMF, SA = 72, 104, 120, 136
    X0 = 148
    vTW, vTR, vST, vSM = 8, 9, 12, 13
    sMEM, sPB, sKX, sFT, sSEEN, sNEED = 31, 32, 33, 34, 35, 36
    from gen_boot import dbg_wait_wg, DBG_MOD20
    a.label("role_p")
    MODE2[0] = True
    dstamp(a, 11, 3, f"s_cmp_lg_u32 s{sID}, 0\ns_cbranch_scc1 {{lab}}")
    if PDELAY:
        dbg_wait_wg(a, [(DBG_MOD20, 1)], 3, sleep=10)
    load_wqk(a, depth=PDEPTH)
    setup_qk_lds_addrs(a, vTW, vTR)
    a(f"""
    v_bfe_u32 v10, v{vLANE}, 3, 1           ; b
    v_and_b32 v11, 7, v{vLANE}              ; i
    v_lshrrev_b32 v14, 4, v{vLANE}          ; g
    v_lshlrev_b32 v{vST}, 8, v10
    v_lshl_add_u32 v{vST}, v11, 5, v{vST}
    v_lshl_add_u32 v{vST}, v14, 3, v{vST}
    v_lshlrev_b32 v{vSM}, 3, v11
    v_and_b32 v15, 1, v14
    v_lshl_add_u32 v{vSM}, v15, 2, v{vSM}
    v_lshrrev_b32 v15, 1, v14
    v_lshl_add_u32 v{vSM}, v15, 6, v{vSM}
    v_add_u32 v{vSM}, 512, v{vSM}
    v_mov_b32 v15, 0x7ffffff0
    v_cmp_ne_u32 vcc, 0, v10
    s_mov_b32 s52, 0xff00ff00
    s_mov_b32 s53, 0xff00ff00
    v_cndmask_b32 v{vSM}, v{vSM}, v15, vcc
    s_mov_b32 s54, 0
    s_mov_b32 s55, -1                       ; s[54:55]: lanes g>=2
    s_lshl_b32 s{sKX}, s{sID}, 13
    s_add_u32 s{sKX}, s{sKX}, 0x{WS_KX:x}
    s_lshl_b32 s{sFT}, s{sID}, 7
    s_add_u32 s{sFT}, s{sFT}, 0x{flag(FL_T):x}
    s_mov_b32 s{sSEEN}, 0
    s_mov_b32 s56, 0x{WS_FLAGS:x}
    ; KM store voff: g*128 + (l%8)*16, lanes with b=1 dropped
    v_lshlrev_b32 v189, 7, v14
    v_lshl_add_u32 v189, v11, 4, v189
    v_cndmask_b32 v189, v189, v15, vcc
    s_lshl_b32 s57, s{sID}, 11
    s_add_u32 s57, s57, 0x{WS_KM:x}
    s_lshl_b32 s58, s{sID}, 2
    s_add_u32 s58, s58, s{sW}
    s_lshl_b32 s60, s{sID}, 7
    s_add_u32 s60, s60, 0x{flag(FL_KM):x}
    v_cmp_gt_u32 vcc, 40, v{vLANE}
    v_mov_b32 v180, -1
    v_mov_b32 v181, -1
    v_mov_b32 v182, -1
    v_mov_b32 v183, -1
    v_cndmask_b32 v186, v15, v{vL16}, vcc
    """)
    get_pol(a, X0)
    mem_setup(a)
    a(f"""
    s_add_u32 s59, s{sSB}, 0x{WS_CRB + CRB_DOOR:x}
    s_add_u32 s64, s{sSB}, 0x{WS_CRB:x}
    s_lshr_b32 s40, s{sID}, 3
    s_lshl_b32 s40, s40, 14
    s_and_b32 s41, s{sID}, 7
    s_mul_i32 s41, s41, 640
    s_add_u32 s65, s40, s41
    s_add_u32 s65, s65, s64
    s_add_u32 s65, s65, {4*16384}           ; p base
    s_mov_b32 s61, 0x3e0293ee               ; 128^-0.5 * log2(e)
    """)
    a.label("p_loop")
    stamp(a, 0)
    a(f"""
    s_and_b32 s40, s{sSTEP}, 3
    s_lshl_b32 s40, s40, 17
    s_add_u32 s{sMEM}, s40, s64
    s_add_u32 s{sPB}, s40, s65
    s_xor_b32 s40, s40, 0x40000
    s_add_u32 s66, s40, s65
    s_cmp_lg_u32 s{sW}, 0
    s_cbranch_scc1 p_sync
    s_add_u32 s{sNEED}, s{sSTEP}, 1
    """)
    wait_flag(a, sFT, sNEED, sSEEN, X0)
    for f in range(8):
        r, o = l16(f * 1024)
        a(f"buffer_load_dwordx4 {vr(KF+4*f,4)}, {r}, {WS}, s{sKX} offen offset:{o} sc1")
    a(f"""
    buffer_load_dword v190, off, {WS}, s{sFT} sc1
    s_cmp_eq_u32 s{sSTEP}, 0
    s_cbranch_scc1 p_sync
    s_sleep {P_SLEEP0}
    """)
    a.label("p_sync")
    a("s_barrier")
    stamp(a, 1)
    def door():
        if not DOOR:
            return
        a(f"""
        s_cmp_lg_u32 s58, 3
        s_cbranch_scc1 p_nodoor
        s_mov_b64 exec, 1
        buffer_store_dword v188, off, {WS}, s59 sc1
        s_mov_b64 exec, -1
        p_nodoor:
        """)
    a(f"""
    s_add_u32 s40, s{sSTEP}, 1
    v_mov_b32 v188, s40
    """)
    qrd = [f"ds_read_b64_tr_b16 {vr(QF+4*k+2*tp,2)}, v{vTR} offset:{k*512+tp*256}" for k in range(4) for tp in range(2)]
    cl = combine_list(0, 1, X0+2, X0+3)
    fl = ["\n".join(cl[0:2]), "\n".join(cl[2:4]), "\n".join(cl[4:6]), "\n".join(cl[6:8]),
          f"ds_write_b64 v{vTW}, {vr(X0+2,2)}", "s_nop 0", "s_nop 0", "s_waitcnt lgkmcnt(0)\ns_barrier",
          "\n".join(qrd[0:2]), "\n".join(qrd[2:4]), "\n".join(qrd[4:6]), "\n".join(qrd[6:8])]
    mem_proj2(a, [[0, 1], [2, 3]], sMEM, X0, after_valid=door, fill={1: fl})
    stamp(a, 2)
    kc = combine_list(2, 3, X0+4, X0+5) + [f"ds_write_b64 v{vTW}, {vr(X0+4,2)} offset:2048"]
    n = 0
    for k in range(4):
        a(f"s_waitcnt lgkmcnt({[6, 4, 3, 1][k]})")
        for mt in range(2):
            acc = vr(SA+4*mt, 4)
            a(f"v_mfma_f32_16x16x32_bf16 {acc}, {vr(KF+(mt*4+k)*4,4)}, {vr(QF+4*k,4)}, {'0' if k==0 else acc}")
            n += 1
            if n == 2:
                a.nop(5)
            if n >= 2:
                for _ in range(3):
                    if kc:
                        a(kc.pop(0))
    assert not kc
    a(f"""
    s_waitcnt lgkmcnt(0)
    s_barrier
    s_cmp_lg_u32 s{sW}, 0
    s_cbranch_scc1 p_other
    """)
    stamp(a, 3)
    for k2 in range(4):
        for tp in range(2):
            a(f"ds_read_b64_tr_b16 {vr(KMF+4*k2+2*tp,2)}, v{vTR} offset:{2048+k2*512+tp*256}")
    T0 = X0 + 8
    M0, TT, S0, MR, XM, FF = X0+6, X0+7, X0+11, X0+5, X0+4, 172

    def mm(k):
        acc = vr(SA+8, 4)
        return f"""s_waitcnt lgkmcnt({6-2*k})
        v_mfma_f32_16x16x32_bf16 {acc}, {vr(KMF+4*k,4)}, {vr(QF+4*k,4)}, {'0' if k==0 else acc}"""
    if NOMIMIC:
        a(f"""
        v_cndmask_b32 v{X0}, v{SA}, v{SA+4}, s[52:53]
        v_cndmask_b32 v{X0+1}, v{SA+1}, v{SA+5}, s[52:53]
        v_cndmask_b32 v{X0+2}, v{SA+2}, v{SA+6}, s[52:53]
        v_cndmask_b32 v{X0+3}, v{SA+3}, v{SA+7}, s[52:53]
        v_max3_f32 v{M0}, v{X0}, v{X0+1}, v{X0+2}
        v_max_f32 v{M0}, v{M0}, v{X0+3}
        {mm(0)}
        v_max_f32_dpp v{M0}, v{M0}, v{M0} row_ror:8 row_mask:0xf bank_mask:0xf
        v_mov_b32 v{TT}, v{M0}
        {mm(1)}
        v_permlane32_swap_b32 v{M0}, v{TT}
        {mm(2)}
        v_max_f32 v{M0}, v{M0}, v{TT}
        {mm(3)}
        s_nop 7
        v_max3_f32 v{M0}, v{M0}, v{SA+8}, v{SA+9}
        v_max3_f32 v{M0}, v{M0}, v{SA+10}, v{SA+11}
        v_mov_b32 v{TT}, v{M0}
        v_cndmask_b32 v{XM}, v{SA+8}, v{SA+9}, s[52:53]
        v_cndmask_b32 v{FF}, v{SA+10}, v{SA+11}, s[52:53]
        v_permlane16_swap_b32 v{M0}, v{TT}
        v_cndmask_b32 v{XM}, v{XM}, v{FF}, s[54:55]
        v_max_f32 v{M0}, v{M0}, v{TT}
        v_mul_f32 v{M0}, s61, v{M0}
        v_fma_f32 v{XM}, v{XM}, s61, -v{M0}
        v_fma_f32 v{X0}, v{X0}, s61, -v{M0}
        v_exp_f32 v{XM}, v{XM}
        v_fma_f32 v{X0+1}, v{X0+1}, s61, -v{M0}
        v_exp_f32 v{X0}, v{X0}
        v_fma_f32 v{X0+2}, v{X0+2}, s61, -v{M0}
        v_exp_f32 v{X0+1}, v{X0+1}
        v_fma_f32 v{X0+3}, v{X0+3}, s61, -v{M0}
        v_exp_f32 v{X0+2}, v{X0+2}
        v_add_f32 v{S0}, v{X0}, v{XM}
        v_exp_f32 v{X0+3}, v{X0+3}
        v_add_f32 v{S0}, v{S0}, v{X0+1}
        v_add_f32 v{S0}, v{S0}, v{X0+2}
        v_add_f32 v{S0}, v{S0}, v{X0+3}
        v_mov_b32_dpp v{MR}, v{XM} row_ror:8 row_mask:0xf bank_mask:0xf
        s_nop 0
        v_add_f32_dpp v{S0}, v{S0}, v{S0} row_ror:8 row_mask:0xf bank_mask:0xf
        v_mov_b32 v{TT}, v{S0}
        s_nop 1
        v_permlane16_swap_b32 v{S0}, v{TT}
        v_add_f32 v{S0}, v{S0}, v{TT}
        v_mov_b32 v{TT}, v{S0}
        s_nop 1
        v_permlane32_swap_b32 v{S0}, v{TT}
        v_add_f32 v{S0}, v{S0}, v{TT}
        v_rcp_f32 v{S0}, v{S0}
        s_nop 0
        v_mul_f32 v{X0}, v{X0}, v{S0}
        v_mul_f32 v{X0+1}, v{X0+1}, v{S0}
        v_mul_f32 v{X0+2}, v{X0+2}, v{S0}
        v_mul_f32 v{X0+3}, v{X0+3}, v{S0}
        v_cvt_pk_bf16_f32 v{T0}, v{X0}, v{X0+1}
        v_cvt_pk_bf16_f32 v{T0+1}, v{X0+2}, v{X0+3}
        v_mul_f32 v{XM}, v{XM}, v{S0}
        v_min_u32 v{T0}, -2, v{T0}
        v_min_u32 v{T0+1}, -2, v{T0+1}
        v_mul_f32 v{MR}, v{MR}, v{S0}
        buffer_store_dwordx2 {vr(T0,2)}, v{vST}, {WS}, s{sPB} offen sc1
        v_cvt_pk_bf16_f32 v{T0+2}, v{XM}, v{MR}
        v_min_u32 v{T0+2}, -2, v{T0+2}
        buffer_store_dword v{T0+2}, v{vSM}, {WS}, s{sPB} offen sc1
        v_readfirstlane_b32 s{sSEEN}, v190
        s_branch p_next
        """)
    else:
        a(f"""
        v_cndmask_b32 v{X0}, v{SA}, v{SA+4}, s[52:53]
        v_cndmask_b32 v{X0+1}, v{SA+1}, v{SA+5}, s[52:53]
        v_cndmask_b32 v{X0+2}, v{SA+2}, v{SA+6}, s[52:53]
        v_cndmask_b32 v{X0+3}, v{SA+3}, v{SA+7}, s[52:53]
        v_cvt_pk_bf16_f32 v{T0}, v{X0}, v{X0+1}
        v_cvt_pk_bf16_f32 v{T0+1}, v{X0+2}, v{X0+3}
        v_lshlrev_b32 v{X0}, 16, v{T0}
        v_and_b32 v{X0+1}, 0xffff0000, v{T0}
        v_lshlrev_b32 v{X0+2}, 16, v{T0+1}
        v_and_b32 v{X0+3}, 0xffff0000, v{T0+1}
        v_pk_mul_f32 v[{X0}:{X0+1}], v[{X0}:{X0+1}], s[62:63]
        v_pk_mul_f32 v[{X0+2}:{X0+3}], v[{X0+2}:{X0+3}], s[62:63]
        v_cvt_pk_bf16_f32 v{T0}, v{X0}, v{X0+1}
        v_cvt_pk_bf16_f32 v{T0+1}, v{X0+2}, v{X0+3}
        {mm(0)}
        v_lshlrev_b32 v{X0}, 16, v{T0}
        v_and_b32 v{X0+1}, 0xffff0000, v{T0}
        {mm(1)}
        v_lshlrev_b32 v{X0+2}, 16, v{T0+1}
        v_and_b32 v{X0+3}, 0xffff0000, v{T0+1}
        {mm(2)}
        v_max3_f32 v{M0}, v{X0}, v{X0+1}, v{X0+2}
        v_max_f32 v{M0}, v{M0}, v{X0+3}
        {mm(3)}
        v_mul_f32 v{X0}, s51, v{X0}
        v_max_f32_dpp v{M0}, v{M0}, v{M0} row_ror:8 row_mask:0xf bank_mask:0xf
        v_mov_b32 v{TT}, v{M0}
        v_mul_f32 v{X0+1}, s51, v{X0+1}
        v_mul_f32 v{X0+2}, s51, v{X0+2}
        v_permlane16_swap_b32 v{M0}, v{TT}
        v_max_f32 v{M0}, v{M0}, v{TT}
        v_mov_b32 v{TT}, v{M0}
        v_mul_f32 v{X0+3}, s51, v{X0+3}
        v_max3_f32 v{MR}, v{SA+8}, v{SA+9}, v{SA+10}
        v_permlane32_swap_b32 v{M0}, v{TT}
        v_max_f32 v{MR}, v{MR}, v{SA+11}
        v_max_f32 v{M0}, v{M0}, v{TT}
        v_mov_b32 v{TT}, v{MR}
        v_cndmask_b32 v{XM}, v{SA+8}, v{SA+9}, s[52:53]
        v_cndmask_b32 v{FF}, v{SA+10}, v{SA+11}, s[52:53]
        v_permlane16_swap_b32 v{MR}, v{TT}
        v_cndmask_b32 v{XM}, v{XM}, v{FF}, s[54:55]
        v_max_f32 v{MR}, v{MR}, v{TT}
        v_mul_f32 v{M0}, s51, v{M0}
        v_cvt_pk_bf16_f32 v{T0+2}, v{XM}, v{MR}
        v_sub_f32 v{X0}, v{X0}, v{M0}
        v_lshlrev_b32 v{XM}, 16, v{T0+2}
        v_and_b32 v{MR}, 0xffff0000, v{T0+2}
        v_sub_f32 v{X0+1}, v{X0+1}, v{M0}
        v_pk_mul_f32 v[{XM}:{MR}], v[{XM}:{MR}], s[62:63]
        v_exp_f32 v{X0}, v{X0}
        v_cvt_pk_bf16_f32 v{T0+2}, v{XM}, v{MR}
        v_exp_f32 v{X0+1}, v{X0+1}
        v_and_b32 v{MR}, 0xffff0000, v{T0+2}
        v_lshlrev_b32 v{XM}, 16, v{T0+2}
        v_mul_f32 v{MR}, s51, v{MR}
        v_mul_f32 v{XM}, s51, v{XM}
        v_max_f32 v{MR}, v{MR}, v{M0}
        v_sub_f32 v{X0+2}, v{X0+2}, v{M0}
        v_sub_f32 v{XM}, v{XM}, v{MR}
        v_sub_f32 v{FF}, v{M0}, v{MR}
        v_exp_f32 v{XM}, v{XM}
        v_sub_f32 v{X0+3}, v{X0+3}, v{M0}
        v_exp_f32 v{FF}, v{FF}
        v_exp_f32 v{X0+2}, v{X0+2}
        v_add_f32 v{S0}, v{X0}, v{X0+1}
        v_exp_f32 v{X0+3}, v{X0+3}
        v_add_f32 v{S0}, v{S0}, v{X0+2}
        v_mov_b32_dpp v{MR}, v{XM} row_ror:8 row_mask:0xf bank_mask:0xf
        v_add_f32 v{S0}, v{S0}, v{X0+3}
        v_fma_f32 v{S0}, v{S0}, v{FF}, v{XM}
        v_mul_f32 v{X0}, v{X0}, v{FF}
        v_mul_f32 v{X0+1}, v{X0+1}, v{FF}
        v_add_f32_dpp v{S0}, v{S0}, v{S0} row_ror:8 row_mask:0xf bank_mask:0xf
        v_mov_b32 v{TT}, v{S0}
        v_mul_f32 v{X0+2}, v{X0+2}, v{FF}
        v_mul_f32 v{X0+3}, v{X0+3}, v{FF}
        v_permlane16_swap_b32 v{S0}, v{TT}
        v_add_f32 v{S0}, v{S0}, v{TT}
        v_mov_b32 v{TT}, v{S0}
        s_nop 1
        v_permlane32_swap_b32 v{S0}, v{TT}
        v_add_f32 v{S0}, v{S0}, v{TT}
        v_rcp_f32 v{S0}, v{S0}
        s_nop 0
        v_mul_f32 v{X0}, v{X0}, v{S0}
        v_mul_f32 v{X0+1}, v{X0+1}, v{S0}
        v_mul_f32 v{X0+2}, v{X0+2}, v{S0}
        v_mul_f32 v{X0+3}, v{X0+3}, v{S0}
        v_cvt_pk_bf16_f32 v{T0}, v{X0}, v{X0+1}
        v_cvt_pk_bf16_f32 v{T0+1}, v{X0+2}, v{X0+3}
        v_mul_f32 v{XM}, v{XM}, v{S0}
        v_min_u32 v{T0}, -2, v{T0}
        v_min_u32 v{T0+1}, -2, v{T0+1}
        v_mul_f32 v{MR}, v{MR}, v{S0}
        buffer_store_dwordx2 {vr(T0,2)}, v{vST}, {WS}, s{sPB} offen sc1
        v_cvt_pk_bf16_f32 v{T0+2}, v{XM}, v{MR}
        v_min_u32 v{T0+2}, -2, v{T0+2}
        buffer_store_dword v{T0+2}, v{vSM}, {WS}, s{sPB} offen sc1
        v_readfirstlane_b32 s{sSEEN}, v190
        s_branch p_next
        """)
    a.label("p_other")
    a(f"""
    s_cmp_lg_u32 s{sW}, 1
    s_cbranch_scc1 p_w23
    """)
    for k in range(4):
        for tp in range(2):
            a(f"ds_read_b64_tr_b16 {vr(KMF+4*k+2*tp,2)}, v{vTR} offset:{2048+k*512+tp*256}")
    a("s_waitcnt lgkmcnt(0)")
    for r in range(16):
        a(f"v_min_u32 v{KMF+r}, -2, v{KMF+r}")
    for k in range(4):
        a(f"buffer_store_dwordx4 {vr(KMF+4*k,4)}, v189, {WS}, s57 offen offset:{k*512} sc1")
    a(f"""
    s_waitcnt vmcnt(0)
    s_mov_b64 exec, 1
    buffer_store_dword v188, off, {WS}, s60 sc1
    s_mov_b64 exec, -1
    s_branch p_next
    """)
    a.label("p_w23")
    a(f"""
    s_cmp_lg_u32 s{sW}, 2
    s_cbranch_scc1 p_next
    buffer_store_dwordx4 v[180:183], v186, {WS}, s66 offen sc1
    s_cmp_lg_u32 s{sID}, 0
    s_cbranch_scc1 p_next
    s_add_u32 s40, s{sSTEP}, 1
    v_mov_b32 v{X0}, s40
    s_mov_b64 exec, 1
    buffer_store_dword v{X0}, off, {WS}, s56 sc1
    s_mov_b64 exec, -1
    """)
    a.label("p_next")
    dstamp(a, 12, 191, f"s_cmp_lg_u32 s{sID}, 0\ns_cbranch_scc1 {{lab}}\ns_cmp_lg_u32 s{sSTEP}, 1\ns_cbranch_scc1 {{lab}}")
    dstamp(a, 13, 191, f"s_cmp_lg_u32 s{sID}, 0\ns_cbranch_scc1 {{lab}}\ns_cmp_lg_u32 s{sSTEP}, 63\ns_cbranch_scc1 {{lab}}")
    dstamp(a, 15, 191, f"s_cmp_lg_u32 s{sID}, 0\ns_cbranch_scc1 {{lab}}\ns_cmp_lg_u32 s{sSTEP}, 11\ns_cbranch_scc1 {{lab}}")
    stamp(a, 4)
    stamp_flush(a, 5, 191)
    a(f"""
    s_add_u32 s{sKX}, s{sKX}, {32*8192}
    s_add_u32 s57, s57, {32*2048}
    s_add_u32 s{sSTEP}, s{sSTEP}, 1
    s_cmp_lt_u32 s{sSTEP}, 64
    s_cbranch_scc1 p_loop
    s_endpgm
    """)
    flush_deferred(a)

    AF, AC3, PKM = 72, 80, 120
    a.label("role_vm")
    a(f"""
    s_sub_u32 s{sID}, s{sID}, 32
    s_load_dwordx4 s[64:67], s[0:1], {KA_WV}
    s_waitcnt lgkmcnt(0)
    """)
    srd(a, 16, 64, D * H * E * 2)
    srd(a, 20, 66, D * H * E * 2)
    if PDELAY:
        dbg_wait_wg(a, [(DBG_MOD20, 1)], 3, sleep=10)
    load_wqk(a, (WQ,))
    load_wo(a, WK)
    setup_qk_lds_addrs(a, vTW, vTR)
    a(f"""
    ; sparse-A transposing read: e0 = 32(gA/2) + 16(r/2) + 8(gA%2) + 2(c/2) + (r%2)
    v_lshrrev_b32 v10, 5, v{vLANE}
    v_lshlrev_b32 v10, 5, v10
    v_bfe_u32 v11, v{vLANE}, 3, 1
    v_lshl_add_u32 v10, v11, 4, v10
    v_bfe_u32 v11, v{vLANE}, 4, 1
    v_lshl_add_u32 v10, v11, 3, v10
    v_bfe_u32 v11, v{vLANE}, 1, 1
    v_lshl_add_u32 v10, v11, 1, v10
    v_bfe_u32 v11, v{vLANE}, 2, 1
    v_add_u32 v10, v10, v11
    v_lshlrev_b32 v10, 4, v10
    v_and_b32 v11, 1, v{vLANE}
    v_lshl_add_u32 v10, v11, 3, v10
    v_add_u32 v{vTR}, 0x{LDS_T:x}, v10
    v_lshlrev_b32 v12, 3, v{vLANE}
    v_and_b32 v13, 31, v{vLANE}
    v_lshlrev_b32 v13, 3, v13
    v_lshrrev_b32 v10, 5, v{vLANE}
    v_lshl_add_u32 v13, v10, 14, v13
    v_mov_b32 v132, -1
    v_mov_b32 v133, -1
    s_mul_i32 s57, s{sID}, 10240
    s_mul_i32 s40, s{sW}, 2560
    s_add_u32 s57, s57, s40
    s_add_u32 s57, s57, 0x{WS_UMC:x}
    s_lshl_b32 s61, s{sID}, 7
    s_lshl_b32 s40, s{sW}, 2
    s_add_u32 s61, s61, s40
    s_add_u32 s61, s61, 0x{flag(FL_UF):x}
    """)
    get_pol(a, 135)
    mem_setup(a)
    a(f"""
    s_add_u32 s64, s{sSB}, 0x{WS_CRB + 32768:x}
    s_mul_i32 s65, s{sW}, {10*16384}
    s_lshl_b32 s40, s{sID}, 8
    s_add_u32 s65, s65, s40
    s_add_u32 s65, s65, s{sSA}
    s_add_u32 s65, s65, 0x{WS_CRA:x}
    s_mov_b32 s66, 0
    s_mov_b32 s67, {2*CRA_SLOT}
    """)
    a.label("vm_loop")
    stamp(a, 0)
    for r in range(40):
        a(f"v_mov_b32 v{AC3+r}, 0")
    a(f"""
    s_and_b32 s40, s{sSTEP}, 3
    s_lshl_b32 s40, s40, 17
    s_add_u32 s{sMEM}, s40, s64
    s_add_u32 s58, s65, s66
    s_cmp_eq_u32 s{sSTEP}, 0
    s_cbranch_scc1 vm_sync
    s_sleep {V_SLEEP}
    vm_sync:
    s_barrier
    """)
    stamp(a, 1)
    mem_proj2(a, [[0, 1]], sMEM, 135)
    stamp(a, 2)
    a.nop(8)
    combine_pair(a, 0, 1, 136, 137)
    a(f"""
    ds_write_b64 v{vTW}, v[136:137]
    s_waitcnt lgkmcnt(0)
    s_barrier
    """)
    for kb in range(2):
        for n in range(2):
            a(f"ds_read_b64_tr_b16 {vr(AF+4*kb+2*n,2)}, v{vTR} offset:{(64*kb+4*n)*16}")
    stamp(a, 3)

    def vm_pack(p):
        A, B = AC3 + 8*p, AC3 + 8*p + 4
        L = [f"v_permlane32_swap_b32 v{A+r}, v{B+r}" for r in range(4)]
        if PKADD:
            L += [f"v_pk_add_f32 v[{A+r}:{A+r+1}], v[{A+r}:{A+r+1}], v[{B+r}:{B+r+1}]" for r in (0, 2)]
        else:
            L += [f"v_add_f32 v{A+r}, v{A+r}, v{B+r}" for r in range(4)]
        L += [f"v_cvt_pk_bf16_f32 v{PKM+2*p}, v{A}, v{A+1}", f"v_cvt_pk_bf16_f32 v{PKM+2*p+1}, v{A+2}, v{A+3}",
              f"buffer_store_dwordx2 {vr(PKM+2*p,2)}, v13, {WS}, s{68+p} offen sc1"]
        return L
    for p in range(5):
        a(f"s_add_u32 s{68+p}, s58, {p*32768}")
    a("s_waitcnt lgkmcnt(0)")
    pend = []
    slot = 0
    last_mf = {}
    for p in range(5):
        for kb in range(2):
            for jj in range(2):
                jt = 2*p + jj
                a(f"v_smfmac_f32_16x16x64_bf16 {vr(AC3+4*jt,4)}, {vr(AF+4*kb,4)}, {widx(160+(jt*4+2*kb)*4,8)}, v{vIDX}")
                slot += 1
                rdy = slot + 8
                n = 0
                if pend and slot < pend[0][0]:
                    k = min(2, pend[0][0] - slot)
                    a.nop(k)
                    slot += k
                    n = 2
                while pend and pend[0][0] <= slot and n < VM_FILL:
                    a(pend.pop(0)[1])
                    slot += 1
                    n += 1
        for x in vm_pack(p):
            pend.append((rdy, x))
    while pend:
        if pend[0][0] > slot:
            a.nop(pend[0][0] - slot)
            slot = pend[0][0]
        a(pend.pop(0)[1])
        slot += 1
    stamp(a, 4)
    for p in range(5):
        a(f"buffer_store_dwordx2 {vr(PKM+2*p,2)}, v12, {WS}, s57 offen offset:{p*512} sc1")
    a("s_add_u32 s40, s65, s67")
    for p in range(5):
        a(f"buffer_store_dwordx2 v[132:133], v13, {WS}, s40 offen sc1")
        a("s_add_u32 s40, s40, 32768")
    a(f"""
    s_add_u32 s57, s57, {UM_STEP}
    s_mov_b32 s67, s66
    s_add_u32 s66, s66, {CRA_SLOT}
    s_cmp_ge_u32 s66, {3*CRA_SLOT}
    s_cselect_b32 s66, 0, s66
    s_add_u32 s40, s{sSTEP}, 1
    v_mov_b32 v134, s40
    s_waitcnt vmcnt(5)
    s_mov_b64 exec, 1
    buffer_store_dword v134, off, {WS}, s61 sc1
    s_mov_b64 exec, -1
    """)
    stamp_flush(a, 5, 191)
    a(f"""
    s_add_u32 s{sSTEP}, s{sSTEP}, 1
    s_cmp_lt_u32 s{sSTEP}, 64
    s_cbranch_scc1 vm_loop
    s_endpgm
    """)
    flush_deferred(a)

    TX, BX, PF, BM, CA = 16, 48, 80, 104, 112
    vPA, vPB, vWr, vRd, vUM = 8, 9, 12, 13, 140
    sUX = 33
    a.label("role_u")
    MODE2[0] = False
    a(f"s_sub_u32 s{sID}, s{sID}, 64")
    setup_p_load_addrs(a, vPA, vPB, vUM, 16384, 256)
    a(f"""
    s_lshl_b32 s40, s{sW}, 9
    v_lshlrev_b32 v{vWr}, 3, v{vLANE}
    v_add_u32 v{vWr}, s40, v{vWr}
    ; final lane l: c8 = l/32, i = (l/4)%8, cp = l%4 ; src lane' = (r&1)*32 + (i/4)*16 + 8c8 + 2cp ; comp = r>>1
    v_bfe_u32 v10, v{vLANE}, 2, 1           ; r&1
    v_lshlrev_b32 v10, 5, v10
    v_bfe_u32 v11, v{vLANE}, 4, 1           ; i/4
    v_lshl_add_u32 v10, v11, 4, v10
    v_lshrrev_b32 v11, 5, v{vLANE}
    v_lshl_add_u32 v10, v11, 3, v10
    v_and_b32 v11, 3, v{vLANE}
    v_lshl_add_u32 v10, v11, 1, v10
    v_lshlrev_b32 v10, 3, v10
    v_bfe_u32 v11, v{vLANE}, 3, 1           ; r>>1
    v_lshl_add_u32 v{vRd}, v11, 2, v10
    v_add_u32 v14, 1024, v{vRd}
    v_lshlrev_b32 v15, 2, v{vLANE}
    v_lshlrev_b32 v133, 7, v{vLANE}
    v_mov_b32 v123, 0
    s_mul_i32 s{sUX}, s{sW}, {8*40960}
    s_lshl_b32 s40, s{sID}, 10
    s_add_u32 s{sUX}, s{sUX}, s40
    s_add_u32 s{sUX}, s{sUX}, 0x{WS_UX:x}
    s_lshl_b32 s{sFT}, s{sW}, 10
    s_add_u32 s{sFT}, s{sFT}, 0x{flag(FL_VO):x}
    v_mov_b32 v134, -1
    """)
    get_pol(a, 135)
    a(f"""
    s_add_u32 s60, s{sSB}, 0x{WS_CRB + CRB_DOOR:x}
    s_add_u32 s64, s{sSB}, 0x{WS_CRB + 4*16384:x}   ; p base
    s_lshl_b32 s65, s{sID}, 8
    s_cmp_ge_u32 s{sID}, 32
    s_cselect_b32 s40, 8192, 0
    s_add_u32 s65, s65, s40
    s_add_u32 s65, s65, s{sSB}
    s_add_u32 s65, s65, 0x{WS_CRB:x}
    s_lshl_b32 s57, s{sID}, 14
    s_add_u32 s57, s57, s{sSA}
    s_add_u32 s57, s57, 0x{WS_CRA:x}
    s_mov_b32 s66, 0
    """)
    a.label("u_loop")
    stamp(a, 0)
    a(f"""
    s_and_b32 s40, s{sSTEP}, 3
    s_lshl_b32 s40, s40, 17
    s_add_u32 s{sPB}, s40, s64
    s_xor_b32 s41, s40, 0x40000
    s_add_u32 s41, s41, s65
    s_add_u32 s40, s{sSTEP}, 1
    s_and_b32 s40, s40, 3
    s_lshl_b32 s40, s40, 17
    s_add_u32 s{sMEM}, s40, s65
    s_cmp_lg_u32 s{sW}, 1
    s_cbranch_scc1 u_noarm
    buffer_store_dword v134, v15, {WS}, s41 offen sc1
    s_add_u32 s41, s41, 32768
    buffer_store_dword v134, v15, {WS}, s41 offen sc1
    u_noarm:
    """)
    a(f"""
    s_add_u32 s{sNEED}, s{sSTEP}, 1
    s_mov_b64 exec, 255
    v_cmp_gt_u32 vcc, s{sNEED}, v123
    s_mov_b64 exec, -1
    s_cbranch_vccz u_vok
    """)
    wait_all(a, 8, 133, sFT, sNEED, 123)
    a.label("u_vok")
    a(f"s_mov_b32 s40, s{sUX}")
    for hh in range(8):
        a(f"buffer_load_dwordx4 {vr(TX+4*hh,4)}, v{vL16}, {WS}, s40 offen sc1")
        a(f"s_add_u32 s40, s40, 40960")
    a(f"""
    s_mov_b64 exec, 255
    buffer_load_dword v123, v133, {WS}, s{sFT} offen sc1
    s_mov_b64 exec, -1
    s_add_u32 s58, s57, s66
    s_add_u32 s66, s66, {CRA_SLOT}
    s_cmp_ge_u32 s66, {3*CRA_SLOT}
    s_cselect_b32 s66, 0, s66
    s_waitcnt vmcnt(0)
    """)
    for hh in range(8):
        for d in range(4):
            a(f"v_mov_b32 v{BX + 8*(hh//2) + 2*d + hh%2}, v{TX+4*hh+d}")
    stamp(a, 1)
    a(f"""
    s_cmp_lg_u32 s{sW}, 0
    s_cbranch_scc1 u_dsync
    """)
    for k in range(3):
        a(f"buffer_load_dword v{124+k}, off, {WS}, s60 sc1")
        a(f"s_sleep 1")
    a.label("u_dspin")
    for k in range(4):
        a(f"""
        buffer_load_dword v{124+(k+3)%4}, off, {WS}, s60 sc1
        s_waitcnt vmcnt(3)
        v_cmp_le_u32 vcc, s{sNEED}, v{124+k}
        s_cbranch_vccnz u_ddone
        s_nop 7
        """)
    a(f"""
    s_sub_u32 s{sBUD}, s{sBUD}, 1
    s_cmp_ge_i32 s{sBUD}, 0
    s_cbranch_scc1 u_dspin
    """)
    a.label("u_ddone")
    stamp(a, 2)
    a(f"s_sleep {U_SLEEPD}")
    a.label("u_dsync")
    a("s_barrier")
    stamp(a, 3)
    def u_mloads():
        for k in range(2):
            a(f"buffer_load_dwordx2 {vr(PF+16+2*k,2)}, v{vPB}, {WS}, s{sPB} offen offset:{k*1280} sc1")
        for j in range(4):
            a(f"buffer_load_dwordx2 {vr(BM+2*j,2)}, v{vUM}, {WS}, s58 offen offset:{j*512} sc1")
    a.label("u_ppoll")
    for q in range(4):
        a(f"buffer_load_dwordx4 {vr(PF+4*q,4)}, v{vPA}, {WS}, s{sPB} offen offset:{q*1280} sc1")
    u_mloads()
    for r in range(4):
        a(f"v_mov_b32 v{CA+r}, 0")
    a("v_mov_b32 v122, 0")
    for q in range(4):
        f = PF + 4*q
        a(f"s_waitcnt vmcnt({9-q})")
        a(f"v_smfmac_f32_16x16x64_bf16 {vr(CA,4)}, {vr(f,4)}, {vr(BX+8*q,8)}, v{vIDX}")
        a(f"v_max3_u32 v122, v122, v{f}, v{f+1}")
        a(f"v_max3_u32 v122, v122, v{f+2}, v{f+3}")
    a("v_cmp_eq_u32 vcc, -1, v122")
    poll_fail(a, "u_ppoll", sleep=1)
    a.label("u_mchk")
    a(f"""
    s_waitcnt vmcnt(4)
    v_swap_b32 v{PF+17}, v{PF+18}
    v_max3_u32 v122, v{PF+16}, v{PF+17}, v{PF+18}
    v_max_u32 v122, v122, v{PF+19}
    s_waitcnt vmcnt(2)
    v_max3_u32 v122, v122, v{BM}, v{BM+1}
    v_max3_u32 v122, v122, v{BM+2}, v{BM+3}
    s_waitcnt vmcnt(0)
    v_max3_u32 v122, v122, v{BM+4}, v{BM+5}
    v_max3_u32 v122, v122, v{BM+6}, v{BM+7}
    v_cmp_eq_u32 vcc, -1, v122
    s_cbranch_vccnz u_mretry
    u_mok:
    v_smfmac_f32_16x16x64_bf16 {vr(CA,4)}, {vr(PF+16,4)}, {vr(BM,8)}, v{vIDX}
    """)

    def u_ool():
        a.label("u_mretry")
        a(f"""
        s_sub_u32 s{sBUD}, s{sBUD}, 1
        s_cmp_lt_i32 s{sBUD}, 0
        s_cbranch_scc1 u_mok
        """)
        u_mloads()
        a("s_branch u_mchk")
    DEFERRED.append(u_ool)
    a.nop(2)
    stamp(a, 4)
    a.nop(6)
    a(f"""
    v_permlane32_swap_b32 v{CA}, v{CA+1}
    v_permlane32_swap_b32 v{CA+2}, v{CA+3}
    v_add_f32 v{CA}, v{CA}, v{CA+1}
    v_add_f32 v{CA+1}, v{CA+2}, v{CA+3}
    ds_write_b64 v{vWr}, {vr(CA,2)}
    s_waitcnt lgkmcnt(0)
    s_barrier
    s_cmp_lg_u32 s{sW}, 0
    s_cbranch_scc1 u_next
    ds_read2_b32 v[124:125], v{vRd} offset0:0 offset1:2
    ds_read2_b32 v[126:127], v{vRd} offset0:128 offset1:130
    ds_read2_b32 v[128:129], v14 offset0:0 offset1:2
    ds_read2_b32 v[130:131], v14 offset0:128 offset1:130
    s_add_u32 s40, s{sMEM}, 32768
    s_waitcnt lgkmcnt(2)
    v_add_f32 v124, v124, v126
    v_add_f32 v125, v125, v127
    s_waitcnt lgkmcnt(0)
    v_add_f32 v128, v128, v130
    v_add_f32 v129, v129, v131
    v_add_f32 v124, v124, v128
    v_add_f32 v125, v125, v129
    v_cvt_pk_bf16_f32 v124, v124, v125
    v_min_u32 v124, -2, v124
    buffer_store_dword v124, v15, {WS}, s{sMEM} offen sc1
    buffer_store_dword v124, v15, {WS}, s40 offen sc1
    """)
    a.label("u_next")
    stamp(a, 5)
    stamp_flush(a, 6, 191)
    a(f"""
    s_add_u32 s{sUX}, s{sUX}, {UX_STEP}
    s_add_u32 s{sSTEP}, s{sSTEP}, 1
    s_cmp_lt_u32 s{sSTEP}, 63
    s_cbranch_scc1 u_loop
    s_endpgm
    """)
    flush_deferred(a)

    vH = 14
    sHOFF, sHBUF, sOUT, sFM = 37, 38, 39, 56

    def publish(role, sval, wv=3):
        lab = a.newlabel("pub")
        a(f"""
        s_cmp_lg_u32 s{sW}, {wv}
        s_cbranch_scc1 {lab}
        v_mov_b32 v3, {sval}
        s_mov_b64 exec, 1
        buffer_store_dword v3, off, {WS}, s{sFT} sc1
        s_mov_b64 exec, -1
        {lab}:
        """)

    from gen_boot import dbg_wait_wg, DBG_INIT, DBG_LN, N_INITW

    def ln_ready():
        top, done = a.newlabel("lr"), a.newlabel("lrd")
        a(f"""
        s_add_u32 s45, s{sSTEP}, 1
        s_and_b32 s46, s45, 7
        s_cmp_lg_u32 s46, 0
        s_cbranch_scc1 {done}
        s_cmp_ge_u32 s45, 64
        s_cbranch_scc1 {done}
        s_lshr_b32 s45, s45, 1
        {top}:
        buffer_load_dword v3, off, {DBG}, s45 offset:{DBG_LN} sc1
        s_waitcnt vmcnt(0)
        v_readfirstlane_b32 s44, v3
        s_sub_u32 s{sBUD}, s{sBUD}, 1
        s_cmp_lt_i32 s{sBUD}, 0
        s_cbranch_scc1 {done}
        s_cmp_ge_u32 s44, 1
        s_cbranch_scc1 {done}
        s_sleep 4
        s_branch {top}
        {done}:
        """)

    def loop_top():
        a(f"""
        v_add_u32 v{vH}, s{sHBUF}, v{vL16}
        s_sub_u32 s{sHBUF}, 40960, s{sHBUF}
        s_add_u32 s{sHOFF}, s{sHOFF}, 40960
        """)
        ln_ready()
        dmal_init(a, sHOFF, sHBUF)

    a.label("role_t")
    a(f"""
    s_sub_u32 s{sID}, s{sID}, 112
    s_mov_b32 s{sHOFF}, 0x{WS_H1F:x}
    s_mov_b32 s{sHBUF}, 0
    """)
    load_wqk(a, depth=TDEPTH)
    dbg_wait_wg(a, [(DBG_INIT, 1), (DBG_LN, 1)], 3)
    dmal_init(a, sHOFF, sHBUF)
    for k in range(10):
        dmal_one(a)
    a(f"""
    s_lshl_b32 s{sOUT}, s{sID}, 13
    s_lshl_b32 s40, s{sW}, 10
    s_add_u32 s{sOUT}, s{sOUT}, s40
    s_add_u32 s{sOUT}, s{sOUT}, 0x{WS_KX:x}
    s_lshl_b32 s{sFT}, s{sID}, 7
    s_add_u32 s{sFT}, s{sFT}, 0x{flag(FL_T):x}
    s_waitcnt vmcnt(0)
    s_barrier
    """)
    a.label("t_loop")
    stamp(a, 0)
    loop_top()
    DMK = [0, 1, 3, 4, 6, 7, 9, 10, 12, 13]

    def hook_t(ks):
        if ks in DMK:
            dmal_one(a)
        if ks == 5:
            a("s_waitcnt vmcnt(4)")
            a("s_barrier")
            publish("t", f"s{sSTEP}")
    dense_proj(a, vH, True, hook_t)
    stamp(a, 1)
    a.nop(4)
    PK = 128
    a(f"s_add_u32 s40, s{sOUT}, 0x{WS_QX-WS_KX:x}")
    for mat in (0, 1):
        for mt in range(2):
            tm = PK + (mat*2+mt) * 4
            for tt in range(2):
                b = TACC + ((mat*2+tt)*2 + mt) * 4
                a(f"v_cvt_pk_bf16_f32 v{tm+2*tt}, v{b}, v{b+1}")
                a(f"v_cvt_pk_bf16_f32 v{tm+2*tt+1}, v{b+2}, v{b+3}")
    a("s_waitcnt vmcnt(0)")
    for mat in (1, 0):
        for mt in range(2):
            tm = PK + (mat*2+mt) * 4
            so = "s40" if mat == 0 else f"s{sOUT}"
            a(f"buffer_store_dwordx4 {vr(tm,4)}, v{vL16+mt}, {WS}, {so} offen sc1")
    a(f"""
    s_add_u32 s{sOUT}, s{sOUT}, {32*8192}
    s_cmp_lg_u32 s{sSTEP}, 0
    s_cbranch_scc1 t_ne
    s_waitcnt vmcnt(0)
    s_barrier
    """)
    publish("t", "1")
    a("t_ne:")
    a("s_barrier")
    stamp(a, 2)
    stamp_flush(a, 3, 1)
    a(f"""
    s_add_u32 s{sSTEP}, s{sSTEP}, 1
    s_cmp_lt_u32 s{sSTEP}, 64
    s_cbranch_scc1 t_loop
    s_waitcnt vmcnt(0)
    s_barrier
    """)
    publish("t", f"s{sSTEP}")
    a(f"""
    {"s_endpgm" if NOTOK else ""}
    s_mov_b32 s{sSTEP}, 0
    s_add_u32 s97, s97, {300*72*32}
    s_cmp_ge_u32 s{sID}, {NC}
    s_cbranch_scc1 t_f1
    s_add_u32 s{sID}, s{sID}, {184+NC}
    s_branch role_c
    t_f1:
    s_cmp_ge_u32 s{sID}, {NC+3}
    s_cbranch_scc1 r_end
    s_add_u32 s{sID}, s{sID}, {212+24-NC}   ; F1 slices 24..26
    s_mov_b32 s100, {F1S+1}
    s_branch role_f
    """)

    VF, AC2 = 16, 128
    LDS_V = LDS_T
    a.label("role_vo")
    a(f"""
    s_sub_u32 s{sID}, s{sID}, 144
    s_load_dwordx4 s[64:67], s[0:1], {KA_WV}
    s_mov_b32 s{sHOFF}, 0x{WS_H1F:x}
    s_mov_b32 s{sHBUF}, 0
    s_waitcnt lgkmcnt(0)
    """)
    srd(a, 16, 64, D * H * E * 2)
    srd(a, 20, 66, D * H * E * 2)
    load_wqk(a, (WQ,))
    load_wo(a, WK)
    dbg_wait_wg(a, [(DBG_INIT, 1), (DBG_LN, 1)], 3)
    dmal_init(a, sHOFF, sHBUF)
    for k in range(10):
        dmal_one(a)
    a(f"""
    s_mul_i32 s{sOUT}, s{sID}, 40960
    s_mul_i32 s40, s{sW}, 10240
    s_add_u32 s{sOUT}, s{sOUT}, s40
    s_add_u32 s{sOUT}, s{sOUT}, 0x{WS_UX:x}
    s_lshl_b32 s{sFT}, s{sID}, 7
    s_add_u32 s{sFT}, s{sFT}, 0x{flag(FL_VO):x}
    s_lshl_b32 s40, s{sW}, 10
    s_add_u32 s40, s40, 0x{LDS_V:x}
    v_add_u32 v12, s40, v{vL16}
    v_add_u32 v13, 0x{LDS_V:x}, v{vL16}
    s_waitcnt vmcnt(0)
    s_barrier
    """)
    a.label("vo_loop")
    stamp(a, 0)
    loop_top()

    def hook_v(ks):
        if ks % 2 == 0:
            dmal_one(a)
    dense_proj(a, vH, True, hook_v, tiles=(0, 1))
    a.nop(6)
    for mt in range(2):
        for tt in range(2):
            b = TACC + (tt*2 + mt) * 4
            a(f"v_cvt_pk_bf16_f32 v{168+4*mt+2*tt}, v{b}, v{b+1}")
            a(f"v_cvt_pk_bf16_f32 v{168+4*mt+2*tt+1}, v{b+2}, v{b+3}")
        a(f"ds_write_b128 v12, {vr(168+4*mt,4)} offset:{mt*4096}")
    a(f"""
    s_waitcnt vmcnt(10) lgkmcnt(0)
    s_barrier
    """)
    stamp(a, 1)
    for k in range(4):
        for mt in range(2):
            a(f"ds_read_b128 {vr(VF+(mt*4+k)*4,4)}, v13 offset:{mt*4096+k*1024}")
    publish("vo", f"s{sSTEP}")
    for hb in range(2):
        for k in range(4):
            if hb == 0:
                a(f"s_waitcnt lgkmcnt({6-2*k})")
            for j5 in range(5):
                for mt in range(2):
                    acc = vr(AC2 + (j5*2+mt)*4, 4) if hb == 0 else vr(TACC + (j5*2+mt)*4, 4)
                    a(f"v_mfma_f32_16x16x32_bf16 {acc}, {vr(VF+(mt*4+k)*4,4)}, {widx(160+((hb*5+j5)*4+k)*4)}, {'0' if k == 0 else acc}")
                if hb == 1 and k < 3 and j5 < 2 and (k*2+j5) < 5:
                    q = k*2 + j5
                    tm = 168 + (q % 2) * 4
                    for mt in range(2):
                        b = AC2 + (q*2+mt)*4
                        a(f"v_cvt_pk_bf16_f32 v{tm+2*mt}, v{b}, v{b+1}")
                        a(f"v_cvt_pk_bf16_f32 v{tm+2*mt+1}, v{b+2}, v{b+3}")
                    r, o = l16(q * 1024)
                    a(f"buffer_store_dwordx4 {vr(tm,4)}, {r}, {WS}, s{sOUT} offen offset:{o} sc1")
    for q in range(5):
        tm = 176 + (q % 2) * 4
        for mt in range(2):
            b = TACC + (q*2+mt)*4
            a(f"v_cvt_pk_bf16_f32 v{tm+2*mt}, v{b}, v{b+1}")
            a(f"v_cvt_pk_bf16_f32 v{tm+2*mt+1}, v{b+2}, v{b+3}")
        r, o = l16((5+q) * 1024)
        a(f"buffer_store_dwordx4 {vr(tm,4)}, {r}, {WS}, s{sOUT} offen offset:{o} sc1")
    a(f"""
    s_add_u32 s{sOUT}, s{sOUT}, {UX_STEP}
    s_cmp_lg_u32 s{sSTEP}, 0
    s_cbranch_scc1 vo_ne
    s_waitcnt vmcnt(0)
    s_barrier
    """)
    publish("vo", "1")
    a(f"""
    vo_ne:
    s_waitcnt vmcnt(10)
    s_barrier
    """)
    stamp(a, 2)
    stamp_flush(a, 3, 1)
    a(f"""
    s_add_u32 s{sSTEP}, s{sSTEP}, 1
    s_cmp_lt_u32 s{sSTEP}, 64
    s_cbranch_scc1 vo_loop
    s_waitcnt vmcnt(0)
    s_barrier
    """)
    publish("vo", f"s{sSTEP}")
    a(f"""
    {"s_endpgm" if NOTOK else ""}
    s_mov_b32 s{sSTEP}, 0
    s_add_u32 s97, s97, {300*72*32}
    s_mov_b32 s100, {SENT0+1}
    s_cmp_ge_u32 s{sID}, 24
    s_cbranch_scc1 vo_a
    s_add_u32 s{sID}, s{sID}, 212           ; F1 slices 0..23
    s_mov_b32 s100, {F1S+1}
    s_branch role_f
    vo_a:
    s_add_u32 s{sID}, s{sID}, {176-24}
    s_branch role_a
    """)

    KF2, QF2, KMF2, SA2, Y0 = 16, 48, 80, 96, 112
    sKXR, sKM = 33, 57
    a.label("role_al")
    a(f"""
    s_sub_u32 s40, s{sID}, 176
    s_sub_u32 s41, s{sID}, 196
    s_cmp_lt_u32 s{sID}, 184
    s_cselect_b32 s40, s40, s41             ; 0..15
    s_lshl_b32 s40, s40, 1
    s_and_b32 s41, s{sW}, 1
    s_add_u32 s{sID}, s40, s41
    s_cmp_ge_u32 s{sW}, 2
    s_cbranch_scc1 role_l
    s_branch role_a2
    """)
    a.label("role_a")
    a(f"""
    s_sub_u32 s{sID}, s{sID}, 176
    s_lshl_b32 s{sID}, s{sID}, 2
    s_add_u32 s{sID}, s{sID}, s{sW}         ; head
    role_a2:
    v_bfe_u32 v10, v{vLANE}, 3, 1           ; b
    v_and_b32 v11, 7, v{vLANE}              ; i
    v_lshrrev_b32 v15, 4, v{vLANE}          ; g
    v_lshlrev_b32 v8, 7, v15
    v_lshl_add_u32 v8, v11, 4, v8
    v_mul_u32_u24 v10, {PB_RG}, v10
    v_lshl_add_u32 v{vST}, v11, 4, v10      ; + i*16
    v_and_b32 v11, 1, v15
    v_lshl_add_u32 v{vST}, v11, 3, v{vST}   ; + (g&1)*8
    v_lshrrev_b32 v11, 1, v15
    v_lshl_add_u32 v{vSM}, v11, 7, v{vST}
    v_lshl_add_u32 v{vST}, v11, 8, v{vST}
    v_and_b32 v10, 15, v{vLANE}
    v_lshlrev_b32 v11, 2, v15               ; 4g
    """)
    for r in range(4):
        a(f"v_add_u32 v15, {r}, v11")
        a(f"v_cmp_le_u32 s[{64+r*2}:{65+r*2}], v15, v10")
    a(f"""
    s_mov_b32 s54, 0
    s_mov_b32 s55, -1
    s_lshl_b32 s{sPB}, s{sID}, 9
    s_add_u32 s{sPB}, s{sPB}, 0x{WS_PT:x}
    ; mem part offset relative to token part: 16384 + (2(h/4) + h%2)*256 + ((h>>1)&1)*4 - h*512
    s_lshr_b32 s40, s{sID}, 2
    s_lshl_b32 s40, s40, 1
    s_and_b32 s41, s{sID}, 1
    s_add_u32 s40, s40, s41
    s_lshl_b32 s40, s40, 8
    s_bfe_u32 s41, s{sID}, 0x10001
    s_lshl_b32 s41, s41, 2
    s_add_u32 s40, s40, s41
    s_add_u32 s40, s40, 16384
    s_lshl_b32 s41, s{sID}, 9
    s_sub_u32 s61, s40, s41
    s_lshl_b32 s58, s{sID}, 7
    s_add_u32 s59, s58, 0x{flag(FL_A):x}
    s_add_u32 s58, s58, 0x{flag(FL_KM):x}
    s_mov_b32 s60, 0
    s_lshl_b32 s{sKXR}, s{sID}, 13
    s_add_u32 s{sKXR}, s{sKXR}, 0x{WS_KX:x}
    s_lshl_b32 s{sKM}, s{sID}, 11
    s_add_u32 s{sKM}, s{sKM}, 0x{WS_KM:x}
    s_lshl_b32 s{sFT}, s{sID}, 7
    s_add_u32 s{sFT}, s{sFT}, 0x{flag(FL_T):x}
    s_mov_b32 s{sSEEN}, 0
    s_mov_b32 s{sSTEP}, s100
    s_cmp_eq_u32 s100, 0
    s_cbranch_scc1 a_prim
    s_add_u32 s{sPB}, s{sPB}, {(SENT0+1)*PT_STEP}
    s_add_u32 s{sKXR}, s{sKXR}, {(SENT0+1)*32*8192}
    s_add_u32 s{sKM}, s{sKM}, {(SENT0+1)*32*2048}
    s_mov_b32 s59, 0x{flag(FL_DUMMY):x}
    """)
    wait_flag(a, 58, 100, 60, Y0, sleep=32)
    a.label("a_prim")

    def a_kq(need):
        wait_flag(a, sFT, need, sSEEN, Y0+1, sleep=8)
        a(f"s_add_u32 s40, s{sKXR}, 0x{WS_QX-WS_KX:x}")
        for f in range(8):
            r, o = l16(f * 1024)
            a(f"buffer_load_dwordx4 {vr(KF2+4*f,4)}, {r}, {WS}, s{sKXR} offen offset:{o} sc1")
        for f in range(8):
            r, o = l16(f * 1024)
            a(f"buffer_load_dwordx4 {vr(QF2+4*f,4)}, {r}, {WS}, s40 offen offset:{o} sc1")
        a(f"s_add_u32 s{sKXR}, s{sKXR}, {32*8192}")
    a(f"s_add_u32 s{sNEED}, s{sSTEP}, 1")
    a_kq(sNEED)
    a.label("a_loop")
    stamp(a, 0)
    a(f"s_add_u32 s{sNEED}, s{sSTEP}, 1")
    stamp(a, 1)
    a(f"""
    s_cmp_ge_u32 s{sSTEP}, {SENT0}
    s_cbranch_scc1 a_kml
    """)
    wait_flag(a, 58, sNEED, 60, Y0, sleep=4)
    a.label("a_kml")
    for k in range(4):
        a(f"buffer_load_dwordx4 {vr(KMF2+4*k,4)}, v8, {WS}, s{sKM} offen offset:{k*512} sc1")
    a("s_waitcnt vmcnt(0)")
    vmax_chain(a, Y0, range(KMF2, KMF2+16))
    poll_fail(a, "a_kml", sleep=3)
    stamp(a, 2)
    for qt in range(2):
        for k in range(4):
            for mt in range(qt + 1):
                acc = vr(SA2+4*mt, 4)
                a(f"v_mfma_f32_16x16x32_bf16 {acc}, {vr(KF2+(mt*4+k)*4,4)}, {vr(QF2+(qt*4+k)*4,4)}, {'0' if k==0 else acc}")
            acc = vr(SA2+8, 4)
            a(f"v_mfma_f32_16x16x32_bf16 {acc}, {vr(KMF2+4*k,4)}, {vr(QF2+(qt*4+k)*4,4)}, {'0' if k==0 else acc}")
        a.nop(8)
        a(f"""
        v_cndmask_b32 v{SA2+8}, v{SA2+8}, v{SA2+10}, s[54:55]
        v_cndmask_b32 v{SA2+9}, v{SA2+9}, v{SA2+11}, s[54:55]
        """)
        xs = [SA2 + k for k in range(4*(qt+1))] + [SA2+8, SA2+9]
        round_scale(a, xs, Y0+8, 50)
        a(f"v_mov_b32 v{Y0}, 0xce6e6b28")
        for k in range(4):
            a(f"v_cndmask_b32 v{SA2+4*qt+k}, v{Y0}, v{SA2+4*qt+k}, s[{64+2*k}:{65+2*k}]")
        softmax(a, xs, Y0+6, Y0+7, 51, False)
        O = Y0 + 16 + 8*qt
        for half in range(2):
            for m in range(2):
                if m <= qt:
                    a(f"v_cvt_pk_bf16_f32 v{O+2*half+m}, v{SA2+4*m+2*half}, v{SA2+4*m+2*half+1}")
                else:
                    a(f"v_mov_b32 v{O+2*half+m}, 0")
        a(f"v_cvt_pk_bf16_f32 v{O+4}, v{SA2+8}, v{SA2+9}")
        for k in range(5):
            a(f"v_min_u32 v{O+k}, -2, v{O+k}")
        a(f"s_add_u32 s40, s{sPB}, {qt*2*PB_RG}")
        for half in range(2):
            a(f"buffer_store_dwordx2 {vr(O+2*half,2)}, v{vST}, {WS}, s40 offen offset:{half*128} sc1")
        a(f"s_add_u32 s40, s40, s61")
        a(f"buffer_store_dword v{O+4}, v{vSM}, {WS}, s40 offen sc1")
    a(f"""
    s_cmp_ge_u32 s{sSTEP}, {SENT0}
    s_cselect_b32 s46, 2, 1
    s_cselect_b32 s45, {32*8192}, 0
    s_add_u32 s{sKXR}, s{sKXR}, s45
    s_add_u32 s45, s{sNEED}, s46
    s_min_u32 s45, s45, 64
    """)
    a(f"buffer_load_dword v{Y0+2}, off, {WS}, s58 sc1")
    a_kq(45)
    a(f"""
    v_mov_b32 v{Y0}, s{sNEED}
    s_waitcnt vmcnt(16)
    s_mov_b64 exec, 1
    buffer_store_dword v{Y0}, off, {WS}, s59 sc1
    s_mov_b64 exec, -1
    v_readfirstlane_b32 s60, v{Y0+2}
    """)
    stamp(a, 3)
    stamp_flush(a, 4, 1)
    a(f"""
    s_mul_i32 s40, s46, {PT_STEP}
    s_add_u32 s{sPB}, s{sPB}, s40
    s_lshl_b32 s40, s46, 16
    s_add_u32 s{sKM}, s{sKM}, s40
    s_add_u32 s{sSTEP}, s{sSTEP}, s46
    s_cmp_lt_u32 s{sSTEP}, 64
    s_cbranch_scc1 a_loop
    s_endpgm
    """)

    a.label("role_l")
    ln_setup(a, 3, 4, False)
    a(f"""
    s_mov_b32 s40, s{sID}                   ; row
    {"s_sub_u32 s3, s3, 2" if STAMP else ""}
    {"s_add_u32 s97, s97, " + str(100*72*32) if STAMP else ""}
    s_mul_i32 s46, s40, 1280
    s_add_u32 s47, s46, 0x{WS_H2F:x}
    s_lshl_b32 s48, s40, 7
    s_add_u32 s48, s48, 0x{flag(FL_L):x}
    s_mov_b32 s49, 0x{flag(FL_CC):x}
    v_lshlrev_b32 v9, 1, v{L_DST}
    v_cndmask_b32 v9, v{L_DST}, v9, s[76:77]
    s_mov_b32 s40, {WS_MOD + 2*2560}
    s_mov_b32 s52, 20
    """)
    GA = 48
    for h in range(2):
        a(f"buffer_load_dwordx4 {vr(GA+8*h,4)}, v9, {WS}, s40 offen offset:{h*1280} sc1")
        a(f"buffer_load_dwordx4 {vr(GA+8*h+4,4)}, v9, {WS}, s40 offen offset:{h*1280+16} sc1")
    a("s_mov_b32 s54, 0")
    a.label("l_loop")
    stamp(a, 0)
    a(f"""
    s_add_u32 s45, s{sSTEP}, 1
    s_add_u32 s41, s46, 0x{WS_ATT:x}
    s_add_u32 s42, s46, 0x{WS_X1:x}
    s_mov_b32 s53, 0
    s_cmp_eq_u32 s54, 1
    s_cbranch_scc1 l_chk
    """)
    ln_load(a, XS, 46, "", False, raw=24)
    a(f"""
    s_cmp_ge_u32 s{sSTEP}, {SENT0}
    s_cbranch_scc1 l_ld
    """)
    wait_flag(a, 49, 52, 53, 16, sleep=3)
    a.label("l_ld")
    ln_load(a, WS, 41, "sc1", False)
    a(f"buffer_load_dword v17, off, {WS}, s49 offset:128 sc1")
    a("s_waitcnt vmcnt(0)")
    a.label("l_chk")
    stamp(a, 1)
    vmax_chain(a, 16, range(L_RAW, L_RAW+8))
    poll_fail(a, "l_ld", sleep=3)
    a("v_readfirstlane_b32 s55, v17")
    ln_unpack(a, False)
    for j in range(8):
        x0, x1 = L_X + 2*j, L_X + 2*j + 1
        a(f"""
        v_mul_f32 v{x0}, v{x0}, v{GA+2*j}
        v_mul_f32 v{x1}, v{x1}, v{GA+2*j+1}
        v_cvt_pk_bf16_f32 v{L_T}, v{x0}, v{x1}
        v_lshlrev_b32 v{x0}, 16, v{L_T}
        v_and_b32 v{x1}, 0xffff0000, v{L_T}
        v_lshlrev_b32 v{L_T}, 16, v{24+j}
        v_and_b32 v{L_T2}, 0xffff0000, v{24+j}
        v_add_f32 v{x0}, v{x0}, v{L_T}
        v_add_f32 v{x1}, v{x1}, v{L_T2}
        v_cvt_pk_bf16_f32 v{32+j}, v{x0}, v{x1}
        v_lshlrev_b32 v{x0}, 16, v{32+j}
        v_and_b32 v{x1}, 0xffff0000, v{32+j}
        """)
    for j in range(8):
        a(f"v_min_u32 v{32+j}, -2, v{32+j}")
    a(f"buffer_store_dwordx4 v[32:35], v{L_DST}, {WS}, s42 offen sc1")
    a(f"buffer_store_dwordx4 v[36:39], v{L_DST}, {WS}, s42 offen offset:640 sc1")
    a(f"""
    s_mov_b32 s54, 0
    s_cmp_ge_u32 s{sSTEP}, {SENT0-1}
    s_cselect_b32 s55, 20, s55
    s_cmp_lt_u32 s55, 20
    s_cbranch_scc1 l_nopf
    s_cmp_ge_u32 s{sSTEP}, 63
    s_cbranch_scc1 l_nopf
    s_mov_b32 s54, 1
    s_add_u32 s40, s46, {32*1280}
    s_add_u32 s41, s41, {32*1280}
    """)
    ln_load(a, XS, 40, "", False, raw=24)
    ln_load(a, WS, 41, "sc1", False)
    a(f"buffer_load_dword v17, off, {WS}, s49 offset:256 sc1")
    a.label("l_nopf")
    ln_compute_store(a, 47)
    a("s_add_u32 s49, s49, 128")
    stamp(a, 2)
    a(f"""
    v_mov_b32 v16, s45
    s_add_u32 s46, s46, {32*1280}
    s_add_u32 s47, s47, {32*1280}
    s_waitcnt vmcnt(0)
    s_mov_b64 exec, 1
    buffer_store_dword v16, off, {WS}, s48 sc1
    s_mov_b64 exec, -1
    """)
    stamp(a, 3)
    stamp_flush(a, 4, 1)
    a(f"""
    s_add_u32 s{sSTEP}, s{sSTEP}, 1
    s_cmp_lt_u32 s{sSTEP}, 64
    s_cbranch_scc1 l_loop
    s_endpgm
    """)

    vPT, vBM, vXS = 240, 239, 242
    sUXR, sPFC = 33, 59
    sA, sV = 61, 62
    PFB = [16, 96]
    BMB = [128, 144]
    CAC = 176
    from gen_boot import arrive
    a.label("role_c")
    a(f"s_sub_u32 s{sID}, s{sID}, 184")
    setup_p_load_addrs(a, vPA, vPB, vBM)
    a(f"""
    s_lshl_b32 s40, s{sW}, 12
    v_add_u32 v{vPT}, s40, v{vL16}
    v_add_u32 v{vRd}, s40, v{vL16}
    s_lshl_b32 s40, s{sW}, 10
    v_add_u32 v{vWr}, s40, v{vL16}
    v_add_u32 v241, 16384, v{vWr}
    v_and_b32 v10, 15, v{vLANE}             ; n
    v_lshrrev_b32 v11, 5, v{vLANE}          ; pr
    v_lshl_add_u32 v10, v11, 4, v10
    v_bfe_u32 v11, v{vLANE}, 4, 1
    v_lshlrev_b32 v11, 2, v11
    s_lshl_b32 s40, s{sW}, 3
    v_add_u32 v11, s40, v11
    v_mul_u32_u24 v11, 1280, v11
    v_lshl_add_u32 v{vXS}, v10, 1, v11
    v_and_b32 v10, 1, v{vLANE}
    v_mov_b32 v11, 0x7ffffff0
    v_cmp_ne_u32 vcc, 0, v10
    v_lshlrev_b32 v243, 7, v{vLANE}
    v_mov_b32 v232, 0
    v_cndmask_b32 v{vXS}, v{vXS}, v11, vcc
    v_mov_b32 v231, 20
    s_lshl_b32 s40, s{sW}, 10
    s_add_u32 s{sFT}, s40, 0x{flag(FL_UF):x}
    s_add_u32 s{sA}, s40, 0x{flag(FL_A):x}
    s_add_u32 s{sV}, s40, 0x{flag(FL_VO):x}
    s_mov_b32 s{sFM}, 0x{flag(FL_MEM):x}
    s_mul_i32 s73, s{sW}, {8*40960}
    s_add_u32 s73, s73, 0x{WS_UX:x}
    s_add_u32 s76, s{sID}, {CT0}
    s_cmp_ge_u32 s{sID}, {NC}
    s_cselect_b32 s77, s76, s{sID}
    s_mov_b32 s78, s77
    s_mov_b32 s79, s77
    """)

    TIX = {57: 77, 60: 78, 68: 79}

    def dec(ss, sk):
        t = TIX[ss]
        a(f"""
        s_mul_i32 s{ss}, s{t}, 3277
        s_lshr_b32 s{ss}, s{ss}, 16
        s_mul_i32 s40, s{ss}, 20
        s_sub_u32 s{sk}, s{t}, s40
        """)

    def adv(ss, sk):
        t = TIX[ss]
        a(f"""
        s_add_u32 s40, s{t}, {NC}
        s_cmp_lt_u32 s40, {CT0}
        s_cselect_b32 s40, s40, s76
        s_add_u32 s41, s{t}, {2*NC}
        s_cmp_lt_u32 s{t}, {CT0}
        s_cselect_b32 s{t}, s40, s41
        """)
        dec(ss, sk)
    dec(57, 58)
    dec(60, 63)
    dec(68, 72)

    def c_needs():
        a(f"s_add_u32 s44, s60, 1")

    def c_offs():
        a(f"""
        s_mul_i32 s{sPB}, s60, {PT_STEP}
        s_add_u32 s{sPB}, s{sPB}, 0x{WS_PT:x}
        s_add_u32 s64, s{sPB}, {PB_RG}
        s_add_u32 s65, s{sPB}, {2*PB_RG}
        s_add_u32 s66, s{sPB}, {3*PB_RG}
        s_mul_i32 s67, s60, {UM_STEP}
        s_lshl_b32 s40, s63, 9
        s_add_u32 s67, s67, s40
        s_add_u32 s67, s67, 0x{WS_UMC:x}
        s_add_u32 s69, s67, 20480
        s_add_u32 s70, s67, 40960
        s_add_u32 s71, s67, 61440
        """)

    def c_flag_loads():
        a(f"""
        s_mov_b64 exec, 255
        buffer_load_dword v233, v243, {WS}, s{sA} offen sc1
        buffer_load_dwordx4 v[224:227], v243, {WS}, s{sFT} offen sc1
        s_mov_b64 exec, -1
        """)

    def c_test(fail):
        a(f"""
        v_min3_u32 v234, v233, v224, v225
        v_min3_u32 v234, v234, v226, v227
        s_mov_b64 exec, 255
        v_cmp_gt_u32 vcc, s44, v234
        s_mov_b64 exec, -1
        s_cbranch_vccnz {fail}
        """)

    def c_block():
        c_needs()
        top, retry, done = a.newlabel("cb"), a.newlabel("cb"), a.newlabel("cb")
        a.label(top)
        c_flag_loads()
        a("s_waitcnt vmcnt(0)")
        sk = a.newlabel("cb")
        a(f"""
        s_cmp_lt_u32 s60, {SENT0}
        s_cbranch_scc1 {sk}
        v_mov_b32 v233, 64
        {sk}:
        """)
        c_test(retry)
        a(f"s_branch {done}")
        a.label(retry)
        a(f"""
        s_sub_u32 s{sBUD}, s{sBUD}, 1
        s_cmp_lt_i32 s{sBUD}, 0
        s_cbranch_scc1 {done}
        s_sleep 3
        s_branch {top}
        """)
        a.label(done)

    def c_load_list(buf):
        L = []
        for rg in range(4):
            so = [sPB, 64, 65, 66][rg]
            PF = PFB[buf] + 20*rg
            for q in range(4):
                L.append(f"buffer_load_dwordx4 {vr(PF+q*4,4)}, v{vPT}, {WS}, s{so} offen offset:{q*1024} sc1")
            L.append(f"buffer_load_dwordx4 {vr(PF+16,4)}, v241, {WS}, s{so} offen sc1")
        for j in range(4):
            for pr in range(2):
                L.append(f"buffer_load_dwordx2 {ar(BMB[buf]+pr*8+2*j,2)}, v{vBM}, {WS}, s{[67,69,70,71][j]} offen offset:{pr*256} sc1")
        return L

    def c_ux(buf, tail_wait=False):
        ok, skip, end = a.newlabel("cux"), a.newlabel("cux"), a.newlabel("cux")
        a(f"""
        s_cmp_ge_u32 s68, 64
        s_cbranch_scc1 {skip}
        s_add_u32 s45, s68, 1
        s_mov_b64 exec, 255
        v_cmp_gt_u32 vcc, s45, v232
        s_mov_b64 exec, -1
        s_cbranch_vccz {ok}
        """)
        wait_all(a, 8, 243, sV, 45, 232)
        a.label(ok)
        a(f"""
        s_mul_i32 s{sUXR}, s68, {UX_STEP}
        s_lshl_b32 s40, s72, 11
        s_add_u32 s{sUXR}, s{sUXR}, s40
        s_add_u32 s{sUXR}, s{sUXR}, s73
        """)
        for hh in range(8):
            for pr in range(2):
                a(f"buffer_load_dwordx4 {ar(buf*64+pr*32+hh*4,4)}, v{vL16}, {WS}, s{sUXR} offen offset:{pr*1024} sc1")
            a(f"s_add_u32 s{sUXR}, s{sUXR}, 40960")
        if tail_wait:
            a("s_waitcnt vmcnt(16)")
            a(f"s_branch {end}")
        a.label(skip)
        if tail_wait:
            a("s_waitcnt vmcnt(0)")
        a.label(end)
        adv(68, 72)

    def c_burst(buf):
        c_block()
        c_offs()
        top = a.newlabel("cbl")
        a.label(top)
        for x in c_load_list(buf):
            a(x)
        c_flag_loads()
        a("s_waitcnt vmcnt(0)")
        vmax_chain(a, 3, range(PFB[buf], PFB[buf]+80))
        poll_fail(a, top, sleep=4)
        adv(60, 63)

    def c_compute(buf, LL):
        b = Asm()
        for r in range(32):
            b(f"v_mov_b32 v{CAC+r}, 0")
        b.nop(1)
        for q in range(5):
            for pr in range(2):
                for rg in range(4):
                    f = PFB[buf] + 20*rg + q*4
                    B = ar(buf*64+pr*32+q*8, 8) if q < 4 else ar(BMB[buf]+pr*8, 8)
                    b(f"v_smfmac_f32_16x16x64_bf16 {vr(CAC+(pr*4+rg)*4,4)}, {vr(f,4)}, {B}, v{vIDX}")
        b.nop(6)
        for rg in range(4):
            A, B = CAC + rg*4, CAC + (4+rg)*4
            for r in range(4):
                b(f"v_permlane32_swap_b32 v{A+r}, v{B+r}")
            for r in range(4):
                b(f"v_add_f32 v{A+r}, v{A+r}, v{B+r}")
            b(f"ds_write_b128 v{vWr}, {vr(A,4)} offset:{rg*4096}")
        b(f"""
        s_waitcnt lgkmcnt(0)
        s_barrier
        """)
        FT = 208
        for q in range(4):
            b(f"ds_read_b128 {vr(FT+4*q,4)}, v{vRd} offset:{q*1024}")
        b(f"""
        s_mul_i32 s74, s57, {32*1280}
        s_lshl_b32 s75, s58, 6
        s_add_u32 s74, s74, s75
        s_add_u32 s74, s74, 0x{WS_ATT:x}
        s_lshl_b32 s75, s57, 7
        s_add_u32 s75, s75, 0x{flag(FL_CC):x}
        s_waitcnt lgkmcnt(0)
        """)
        for r in range(4):
            b(f"v_add_f32 v{FT+r}, v{FT+r}, v{FT+4+r}")
            b(f"v_add_f32 v{FT+8+r}, v{FT+8+r}, v{FT+12+r}")
        for r in range(4):
            b(f"v_add_f32 v{FT+r}, v{FT+r}, v{FT+8+r}")
        b.nop(1)
        for r in range(4):
            b(f"v_mov_b32_dpp v{FT+8+r}, v{FT+r} quad_perm:[1,0,3,2] row_mask:0xf bank_mask:0xf")
        for r in range(4):
            b(f"v_cvt_pk_bf16_f32 v{FT+r}, v{FT+r}, v{FT+8+r}")
            b(f"v_min_u32 v{FT+r}, -2, v{FT+r}")
            b(f"buffer_store_dword v{FT+r}, v{vXS}, {WS}, s74 offen offset:{r*1280} sc1")
        LL = list(LL)
        acc = 0
        for ln in b.lines:
            t = ln.strip()
            a.lines.append(ln)
            if not t or t.startswith(";"):
                continue
            if t.startswith("v_smfmac"):
                acc += 16
            elif t.startswith("ds_") or t.startswith("s_waitcnt") or t.startswith("s_barrier"):
                acc += 24
            elif t.startswith("buffer_store"):
                acc = 0
            else:
                acc += 4
            if acc >= C_GAP and LL and not t.startswith("v_cvt_pk_bf16_f32 v2"):
                a(LL.pop(0))
                acc = 0
        for x in LL:
            a(x)

    c_ux(0)
    c_ux(1)
    c_burst(0)
    a.label("c_loop")
    for buf in range(2):
        stamp(a, 0)
        plain, join, nb = a.newlabel("cpl"), a.newlabel("cjn"), a.newlabel("cnb")
        c_needs()
        a(f"s_mov_b32 s{sPFC}, 0")
        c_test(plain)
        a(f"""
        s_cmp_ge_u32 s60, {SENT0}
        s_cbranch_scc1 {plain}
        s_mov_b32 s{sPFC}, 1
        """)
        c_offs()
        c_compute(buf, c_load_list(1 - buf))
        c_flag_loads()
        adv(60, 63)
        a(f"s_branch {join}")
        a.label(plain)
        c_compute(buf, [])
        a.label(join)
        stamp(a, 1)
        a(f"""
        s_waitcnt vmcnt(0)
        s_barrier
        s_cmp_lg_u32 s{sW}, 3
        s_cbranch_scc1 c_nf{buf}
        s_lshl_b32 s40, s57, 2
        s_add_u32 s40, s40, 0x{flag(FL_CN):x}
        v_mov_b32 v230, 1
        s_mov_b64 exec, 1
        buffer_atomic_add v230, off, {WS}, s40 sc0
        s_mov_b64 exec, -1
        c_nf{buf}:
        """)
        c_ux(buf, tail_wait=True)
        a(f"""
        s_cmp_lg_u32 s{sW}, 3
        s_cbranch_scc1 c_ng{buf}
        s_mov_b64 exec, 1
        v_cmp_eq_u32 vcc, 19, v230
        s_cbranch_vccz c_nh{buf}
        buffer_store_dword v231, off, {WS}, s75 sc1
        c_nh{buf}:
        s_mov_b64 exec, -1
        c_ng{buf}:
        """)
        adv(57, 58)
        stamp(a, 2)
        stamp_flush(a, 3, 1)
        a(f"""
        s_add_u32 s{sSTEP}, s{sSTEP}, 1
        s_cmp_ge_u32 s57, 64
        s_cbranch_scc1 r_end
        s_cmp_eq_u32 s{sPFC}, 1
        s_cbranch_scc1 {nb}
        """)
        c_burst(1 - buf)
        a.label(nb)
    a("s_branch c_loop")
    a.label("pre_boot")
    a(f"""
    v_mov_b32 v134, -1
    s_sub_u32 s40, s{sID}, 102
    s_lshl_b32 s40, s40, 21
    s_add_u32 s40, s40, 0x{WS_CRA + 0x1F0000:x}
    s_lshl_b32 s41, s{sW}, 14
    s_add_u32 s40, s40, s41
    s_mov_b32 s42, -1
    s_mov_b32 s43, -1
    s_mov_b64 exec, 1
    """)
    for k in range(3):
        for half in range(2):
            a(f"""
            s_add_u32 s41, s40, {half*8192 + (k%2)*4096 + k*1152}
            s_memtime s[44:45]
            s_waitcnt lgkmcnt(0)
            buffer_store_dword v134, off, {WS}, s41 sc1
            s_waitcnt vmcnt(0)
            buffer_load_dword v135, off, {WS}, s41 sc1
            s_waitcnt vmcnt(0)
            s_memtime s[46:47]
            s_waitcnt lgkmcnt(0)
            s_sub_u32 s46, s46, s44
            s_min_u32 s{42+half}, s{42+half}, s46
            """)
    a(f"""
    v_mov_b32 v136, s42
    v_mov_b32 v137, s43
    s_lshl_b32 s40, s{sW}, 3
    v_mov_b32 v135, s40
    ds_write_b64 v135, v[136:137]
    s_mov_b64 exec, -1
    s_waitcnt lgkmcnt(0)
    s_barrier
    v_mov_b32 v135, 0
    ds_read_b128 v[124:127], v135
    ds_read_b128 v[128:131], v135 offset:16
    s_waitcnt lgkmcnt(0)
    v_add3_u32 v124, v124, v126, v128
    v_add3_u32 v125, v125, v127, v129
    v_add_u32 v124, v124, v130
    v_add_u32 v125, v125, v131
    v_cmp_lt_u32 vcc, v125, v124
    v_mov_b32 v126, 1
    v_mov_b32 v127, 3
    v_cndmask_b32 v126, v126, v127, vcc
    {"v_mov_b32 v126, " + FORCEPOL if FORCEPOL else ""}
    s_sub_u32 s40, s{sID}, 102
    s_lshl_b32 s40, s40, 2
    s_barrier
    s_cmp_lg_u32 s{sW}, 0
    s_cbranch_scc1 boot_nrm0
    s_mov_b64 exec, 1
    buffer_store_dword v126, off, {DBG}, s40 offset:176 sc1
    s_mov_b64 exec, -1
    s_branch boot_nrm0
    """)
    from gen_boot import gen_boot
    gen_boot(a)
    from gen_f import gen_phase2
    gen_phase2(a)
    a.label("r_end")
    a("s_endpgm")
    a.label("r_code_end")
    return (L, 256, 256, 131072, kernel_desc(L, 512, 256))
```

```python
from gen_common import *
import os
from gen_r import *

NG = 1
OUTF = os.environ.get('OUTF', '')
F2_POLL = int(os.environ.get('F2_POLL', '8'))
F2_GATE = int(os.environ.get('F2_GATE', '4'))


def rnd2(a, x0, x1, t):
    a(f"v_cvt_pk_bf16_f32 v{t}, v{x0}, v{x1}")
    a(f"v_lshlrev_b32 v{x0}, 16, v{t}")
    a(f"v_and_b32 v{x1}, 0xffff0000, v{t}")


def gen_phase2(a):
    sG, sJ, sSEG, sCNT, sFL, sFO = 31, 32, 33, 34, 35, 36
    vF = 9
    a.label("role_f")
    a(f"""
    s_load_dwordx4 s[64:67], s[0:1], {KA_WG}
    s_load_dwordx2 s[68:69], s[0:1], {KA_WD}
    s_load_dwordx2 s[70:71], s[0:1], {KA_OUT}
    v_lshlrev_b32 v{vF}, 7, v{vLANE}
    s_mov_b32 s45, 0x{flag(FL_MEM):x}
    s_mov_b32 s46, 1
    s_mov_b32 s47, 0
    s_waitcnt lgkmcnt(0)
    """)
    wait_flag(a, 45, 46, 47, 3, sleep=16)
    a(f"""
    s_cmp_ge_u32 s{sID}, 239
    s_cbranch_scc1 role_f2
    """)
    a(f"""
    s_mov_b32 s{sG}, s100
    s_sub_u32 s{sJ}, s{sID}, 212
    s_cmp_ge_u32 s{sW}, 2
    s_cselect_b32 s72, s66, s64
    s_cselect_b32 s73, s67, s65
    """)
    srd(a, 16, 72, D * F * 2)
    a(f"""
    v_lshrrev_b32 v10, 3, v{vLANE}          ; r8
    v_and_b32 v11, 7, v{vLANE}
    v_bfe_u32 v12, v10, 1, 1
    s_and_b32 s40, s{sW}, 1
    s_lshl_b32 s41, s40, 1
    v_or_b32 v12, s41, v12                  ; f2 = b1 | b3<<1
    v_lshlrev_b32 v12, 1, v12
    v_xor_b32 v11, v11, v12
    v_lshlrev_b32 v11, 4, v11
    s_lshl_b32 s41, s40, 3
    v_add_u32 v10, s41, v10
    v_mul_u32_u24 v10, {F*2}, v10
    v_add_u32 v11, v10, v11
    s_lshl_b32 s42, s{sJ}, 7                ; soffset
    s_lshr_b32 s43, s{sW}, 1
    s_mul_i32 s43, s43, 40960
    s_lshl_b32 s41, s41, 7
    s_add_u32 s43, s43, s41
    v_lshrrev_b32 v12, 4, v{vLANE}          ; g
    v_bfe_u32 v13, v{vLANE}, 2, 2           ; r
    v_and_b32 v14, 3, v{vLANE}              ; c
    v_lshl_add_u32 v15, v12, 3, v13
    v_lshlrev_b32 v15, 7, v15
    v_lshl_add_u32 v15, v14, 3, v15
    v_lshrrev_b32 v13, 1, v13
    v_and_b32 v12, 1, v12
    v_lshl_or_b32 v13, v12, 1, v13
    v_lshl_or_b32 v15, v13, 5, v15
    s_lshl_b32 s41, s40, 6                  ; (2fp)<<5
    v_xor_b32 v16, s41, v15
    v_xor_b32 v17, 32, v16
    v_add_u32 v18, 40960, v16
    v_add_u32 v19, 40960, v17
    """)
    for ph in range(2):
        a("s_mov_b32 s44, s43")
        for q in range(20):
            a(f"""
            s_mov_b32 m0, s44
            s_add_u32 s44, s44, 2048
            buffer_load_dwordx4 v11, s[16:19], s42 offen lds
            s_add_u32 s42, s42, {16*F*2}
            """)
        a("s_waitcnt vmcnt(0)")
        a("s_barrier")
        for ksl in range(10):
            for t in range(4):
                for j in range(2):
                    idx = (t * 20 + ph*10 + ksl) * 4 + 2*j
                    dst = ar(idx, 2) if idx < 256 else vr(192 + idx - 256, 2)
                    a(f"ds_read_b64_tr_b16 {dst}, v{16+t} offset:{ksl*4096+j*512}")
            a("s_waitcnt lgkmcnt(0)")
        a("s_barrier")
    sHOFF, sHBUF, sOUT, sPFD = 37, 38, 39, 46
    vH = 14
    dma_h_setup(a)
    a(f"""
    s_mov_b32 s{sSEG}, s{sG}
    s_mov_b32 s{sCNT}, 0
    s_mov_b32 s{sFL}, 0x{flag(FL_L):x}
    s_lshl_b32 s{sFO}, s{sJ}, 7
    s_lshl_b32 s40, s{sW}, 2
    s_add_u32 s{sFO}, s{sFO}, s40
    s_add_u32 s{sFO}, s{sFO}, 0x{flag(FL_F1):x}
    s_mul_i32 s{sHOFF}, s{sG}, 40960
    s_add_u32 s{sHOFF}, s{sHOFF}, 0x{WS_H2F:x}
    s_mov_b32 s{sHBUF}, 0
    s_lshl_b32 s40, s{sG}, 1
    s_lshr_b32 s41, s{sW}, 1
    s_add_u32 s40, s40, s41
    s_mul_i32 s{sOUT}, s40, {54*1024}
    s_lshl_b32 s40, s{sJ}, 1
    s_and_b32 s42, s{sW}, 1
    s_add_u32 s40, s40, s42
    s_lshl_b32 s40, s40, 10
    s_add_u32 s{sOUT}, s{sOUT}, s40
    s_add_u32 s{sOUT}, s{sOUT}, 0x{WS_ACT:x}
    s_mul_i32 s47, s41, 20480
    s_mov_b32 s57, 0xbfb8aa3b
    s_mov_b32 s{sPFD}, 0
    s_add_u32 s56, s{sSEG}, 1
    s_cmp_eq_u32 s100, 0
    s_cbranch_scc1 f1_prim
    s_add_u32 s{sFO}, s{sFO}, {(FL_F1B-FL_F1)*128}
    """)
    wait_all(a, 32, vF, sFL, sSEG, 20, sleep=32)
    a.label("f1_prim")
    wait_all(a, 32, vF, sFL, 56, 20)
    dma_h(a, sHOFF, sHBUF)
    a.label("f1_loop")
    stamp(a, 0)
    a(f"""
    v_mov_b32 v3, s{sCNT}
    s_add_u32 s40, s{sHBUF}, s47
    v_add_u32 v{vH}, s40, v{vL16}
    s_sub_u32 s{sHBUF}, 40960, s{sHBUF}
    s_add_u32 s61, s{sSEG}, 1
    s_cmp_ge_u32 s{sSEG}, {F1S}
    s_cselect_b32 s58, 2, 1
    s_mul_i32 s40, s58, 40960
    s_add_u32 s{sHOFF}, s{sHOFF}, s40
    s_add_u32 s{sSEG}, s{sSEG}, s58
    s_add_u32 s56, s{sSEG}, 1
    s_cmp_lg_u32 s{sPFD}, 0
    s_cbranch_scc1 f1_w1
    s_waitcnt vmcnt(0)
    f1_w1:
    s_waitcnt vmcnt(2)
    s_cmp_eq_u32 s{sPFD}, 2
    s_cbranch_scc0 f1_w2
    s_waitcnt vmcnt(1)
    f1_w2:
    s_mov_b32 exec_lo, -1
    s_mov_b32 exec_hi, 0
    v_cmp_gt_u32 vcc, s56, v20
    s_mov_b64 exec, -1
    s_barrier
    """)
    stamp(a, 1)
    HF1, AC1 = 24, 40

    def rd(ks):
        a(f"ds_read_b128 {vr(HF1+(ks%4)*4,4)}, v{vH} offset:{ks*1024}")

    def mm(with_dma):
        for k in range(3):
            rd(k)
        for ks in range(20):
            if ks + 3 < 20:
                rd(ks + 3)
            a(f"s_waitcnt lgkmcnt({min(3, 19-ks)})")
            for t in range(4):
                acc = vr(AC1 + 4*t, 4)
                a(f"v_mfma_f32_16x16x32_bf16 {acc}, {wreg(t,ks)}, {vr(HF1+(ks%4)*4,4)}, {'0' if ks == 0 else acc}")
                if with_dma and t == 1 and ks in (0, 1, 3, 4, 6, 7, 9, 10, 12, 13):
                    dma_h_one(a)
                if with_dma and t == 1 and ks == 15:
                    a(f"""
                    s_mov_b32 exec_lo, -1
                    s_mov_b32 exec_hi, 0
                    buffer_load_dword v20, v{vF}, {WS}, s{sFL} offen sc1
                    s_mov_b64 exec, -1
                    """)
    a(f"""
    s_mov_b32 s{sPFD}, 0
    s_cbranch_vccnz f1_plain
    s_mov_b32 s{sPFD}, 1
    """)
    dma_h_init(a, sHOFF, sHBUF)
    mm(True)
    a(f"""
    s_waitcnt vmcnt(11)
    s_mov_b64 exec, 1
    buffer_store_dword v3, off, {WS}, s{sFO} sc1
    s_mov_b64 exec, -1
    s_branch f1_epi
    """)
    a.label("f1_plain")
    a(f"""
    s_mov_b32 exec_lo, -1
    s_mov_b32 exec_hi, 0
    buffer_load_dword v20, v{vF}, {WS}, s{sFL} offen sc1
    s_mov_b64 exec, -1
    """)
    mm(False)
    a(f"""
    s_waitcnt vmcnt(0)
    s_mov_b64 exec, 1
    buffer_store_dword v3, off, {WS}, s{sFO} sc1
    s_mov_b32 exec_lo, -1
    s_mov_b32 exec_hi, 0
    v_cmp_gt_u32 vcc, s56, v20
    s_mov_b64 exec, -1
    s_cbranch_vccnz f1_epi
    s_mov_b32 s{sPFD}, 2
    """)
    dma_h(a, sHOFF, sHBUF)
    a.label("f1_epi")
    stamp(a, 2)
    a.nop(4)
    O = 60
    for tt in range(2):
        g = AC1 + tt * 4
        u = AC1 + (2 + tt) * 4
        for hf in range(2):
            g0, g1, u0, u1 = g+2*hf, g+2*hf+1, u+2*hf, u+2*hf+1
            rnd2(a, g0, g1, 64)
            rnd2(a, u0, u1, 65)
            a(f"""
            v_mul_f32 v66, s57, v{g0}
            v_mul_f32 v67, s57, v{g1}
            v_exp_f32 v66, v66
            v_exp_f32 v67, v67
            s_nop 0
            v_add_f32 v66, 1.0, v66
            v_add_f32 v67, 1.0, v67
            v_rcp_f32 v66, v66
            v_rcp_f32 v67, v67
            s_nop 0
            v_mul_f32 v{g0}, v{g0}, v66
            v_mul_f32 v{g1}, v{g1}, v67
            """)
            rnd2(a, g0, g1, 64)
            a(f"""
            v_mul_f32 v{g0}, v{g0}, v{u0}
            v_mul_f32 v{g1}, v{g1}, v{u1}
            v_cvt_pk_bf16_f32 v{O+2*tt+hf}, v{g0}, v{g1}
            """)
    for k in range(4):
        a(f"v_min_u32 v{O+k}, -2, v{O+k}")
    a(f"""
    buffer_store_dwordx4 {vr(O,4)}, v{vL16}, {WS}, s{sOUT} offen sc1
    s_mul_i32 s40, s58, {2*54*1024}
    s_add_u32 s{sOUT}, s{sOUT}, s40
    s_mov_b32 s{sCNT}, s61
    """)
    stamp(a, 3)
    stamp_flush(a, 4, 1)
    a(f"""
    s_add_u32 s{sSTEP}, s{sSTEP}, 1
    s_cmp_ge_u32 s{sSEG}, 64
    s_cbranch_scc1 f1_fin
    s_cmp_lg_u32 s{sPFD}, 0
    s_cbranch_scc1 f1_loop
    s_cmp_gt_u32 s{sCNT}, {SENT0}
    s_cbranch_scc1 f1_late
    v_mov_b32 v3, s{sCNT}
    s_waitcnt vmcnt(0)
    s_mov_b64 exec, 1
    buffer_store_dword v3, off, {WS}, s{sFO} sc1
    s_mov_b64 exec, -1
    s_cmp_ge_u32 s{sSEG}, {SENT0}
    s_cbranch_scc1 f1_late
    """)
    wait_all(a, 32, vF, sFL, 56, 20)
    dma_h(a, sHOFF, sHBUF)
    a("s_branch f1_loop")
    a.label("f1_late")
    a(f"""
    s_lshl_b32 s45, s{sSEG}, 7
    s_add_u32 s45, s45, 0x{flag(FL_CC):x}
    s_mov_b32 s59, 20
    s_mov_b32 s60, 0
    """)
    wait_flag(a, 45, 59, 60, 22, sleep=3)
    a.label("f1_late2")
    dma_h(a, sHOFF, sHBUF)
    a(f"""
    s_sub_u32 s43, s43, 10240
    v_add_u32 v21, s43, v{vL16}
    s_waitcnt vmcnt(0)
    """)
    for k in range(10):
        a(f"ds_read_b128 {vr(72+4*k,4)}, v21 offset:{k*1024}")
    a("s_waitcnt lgkmcnt(0)")
    vmax_chain(a, 22, range(72, 112))
    poll_fail(a, "f1_late2", sleep=3)
    a("s_branch f1_loop")
    a.label("f1_fin")
    a(f"""
    v_mov_b32 v3, s{sCNT}
    s_waitcnt vmcnt(0)
    s_mov_b64 exec, 1
    buffer_store_dword v3, off, {WS}, s{sFO} sc1
    s_endpgm
    """)

    a.label("role_f2")
    srd(a, 16, 68, D * F * 2)
    srd(a, 20, 70, S * D * 2)
    sKS0 = 37
    a(f"""
    s_sub_u32 s40, s{sID}, 239
    s_mul_i32 s{sG}, s40, 6554
    s_lshr_b32 s{sG}, s{sG}, 16
    s_mul_i32 s41, s{sG}, 10
    s_sub_u32 s{sJ}, s40, s41
    s_mul_i32 s{sKS0}, s{sW}, 13
    s_min_u32 s40, s{sW}, 1
    s_add_u32 s{sKS0}, s{sKS0}, s40
    v_lshrrev_b32 v10, 3, v{vLANE}
    v_and_b32 v11, 7, v{vLANE}
    v_bfe_u32 v12, v10, 1, 2
    v_lshlrev_b32 v12, 1, v12
    v_xor_b32 v11, v11, v12
    v_lshlrev_b32 v11, 4, v11
    v_mul_u32_u24 v10, {D*2}, v10
    v_add_u32 v11, v10, v11
    s_mul_i32 s42, s{sKS0}, {32*D*2}
    s_lshl_b32 s40, s{sJ}, 7
    s_add_u32 s42, s42, s40                 ; soffset
    s_mul_i32 s43, s{sW}, 28672
    v_lshrrev_b32 v12, 4, v{vLANE}          ; g
    v_bfe_u32 v13, v{vLANE}, 2, 2           ; r
    v_and_b32 v14, 3, v{vLANE}              ; c
    v_lshl_add_u32 v15, v12, 2, v13
    v_lshlrev_b32 v15, 7, v15
    v_lshl_add_u32 v15, v14, 3, v15
    v_lshrrev_b32 v13, 1, v13
    v_and_b32 v12, 1, v12
    v_lshl_or_b32 v13, v12, 1, v13
    v_lshl_or_b32 v15, v13, 5, v15
    """)
    for t in range(4):
        a(f"v_xor_b32 v{16+t}, {t<<5}, v15")
        a(f"v_add_u32 v{16+t}, s43, v{16+t}")
    for ph in range(2):
        a("s_mov_b32 s44, s43")
        for q in range(28):
            a(f"""
            s_mov_b32 m0, s44
            s_add_u32 s44, s44, 1024
            buffer_load_dwordx4 v11, s[16:19], s42 offen lds
            s_add_u32 s42, s42, {8*D*2}
            """)
        a("s_waitcnt vmcnt(0)")
        for ksl in range(7):
            for t in range(4):
                for j in range(2):
                    a(f"ds_read_b64_tr_b16 {ar(((ph*7+ksl)*4+t)*4+2*j,2)}, v{16+t} offset:{ksl*4096+j*2048}")
            a("s_waitcnt lgkmcnt(0)")
    a(f"""
    s_cmp_lt_u32 s{sW}, 2
    s_cbranch_scc1 f2_nz
    """)
    for r in range(16):
        a(f"v_accvgpr_write_b32 a{r}, 0")
    a.label("f2_nz")
    AF2, AC2, FT = 16, 128, 160
    vWr, vRd, vO, vG = 12, 13, 14, 15
    sACT, sXO = 38, 39
    a(f"""
    s_barrier
    s_mov_b32 s{sSEG}, s{sG}
    s_mov_b32 s{sCNT}, 1
    s_lshr_b32 s{sFL}, s{sG}, 1
    s_lshl_b32 s{sFL}, s{sFL}, 12
    s_add_u32 s{sFL}, s{sFL}, 0x{flag(FL_F1):x}
    s_mul_i32 s{sACT}, s{sG}, {54*1024}
    s_lshl_b32 s40, s{sKS0}, 10
    s_add_u32 s{sACT}, s{sACT}, s40
    s_add_u32 s{sACT}, s{sACT}, 0x{WS_ACT:x}
    s_lshl_b32 s40, s{sW}, 10
    v_add_u32 v{vWr}, s40, v{vL16}
    s_lshl_b32 s40, s{sW}, 12
    v_add_u32 v{vRd}, s40, v{vL16}
    ; output: token = l%16, col = 64j + 16w + 4g
    v_and_b32 v10, 15, v{vLANE}
    v_mul_u32_u24 v10, 1280, v10
    v_lshrrev_b32 v11, 4, v{vLANE}
    v_lshl_add_u32 v{vO}, v11, 3, v10
    v_lshlrev_b32 v11, 4, v11
    s_lshl_b32 s40, s{sJ}, 2
    s_add_u32 s40, s40, s{sW}
    s_lshl_b32 s{sXO}, s40, 5
    s_mul_i32 s41, s{sG}, {16*1280}
    s_add_u32 s{sXO}, s{sXO}, s41
    s_lshl_b32 s40, s40, 6
    s_add_u32 s40, s40, {WS_MOD + 5*2560}
    buffer_load_dwordx4 v[200:203], v11, {WS}, s40 offen sc1
    v_add_u32 v8, 12288, v{vL16}
    """)
    AFB = [16, 72]
    XB = [208, 210]
    sPF2 = 46

    def f2_loads(buf):
        for ks in range(14):
            off = ks * 1024
            av = [vL16, vL16b, vL16c, 8][off // 4096]
            a(f"buffer_load_dwordx4 {vr(AFB[buf]+ks*4,4)}, v{av}, {WS}, s{sACT} offen offset:{off%4096} sc1")
        a(f"buffer_load_dwordx2 {vr(XB[buf],2)}, v{vO}, {WS}, s47 offen sc1")

    def f2_nextflags():
        a(f"""
        s_and_b32 s40, s{sCNT}, 1
        s_cmp_ge_u32 s{sCNT}, {F1S}
        s_cselect_b32 s40, s40, 0
        s_mul_i32 s40, s40, {(FL_F1B-FL_F1)*128}
        s_add_u32 s{sFL}, s40, 0x{flag(FL_F1):x}
        s_mov_b32 exec_lo, 0x7ffffff
        s_mov_b32 exec_hi, 0
        buffer_load_dwordx4 v[216:219], v{vF}, {WS}, s{sFL} offen sc1
        s_mov_b64 exec, -1
        """)
    a(f"""
    s_mov_b32 s{sPF2}, 0
    s_add_u32 s47, s{sXO}, 0x{WS_X1:x}
    """)
    a.label("f2_loop")
    for buf in range(2):
        AF2 = AFB[buf]
        stamp(a, 0)
        a(f"""
        s_cmp_eq_u32 s{sPF2}, 1
        s_cbranch_scc1 f2_mm{buf}
        s_cmp_ge_u32 s{sSEG}, {2*SENT0}
        s_cbranch_scc1 f2_gate{buf}
        """)
        wait_all(a, 27, vF, sFL, sCNT, 204, ndw=4, sleep=F2_POLL)
        a(f"s_branch f2_ld{buf}")
        a.label(f"f2_gate{buf}")
        a(f"""
        s_mov_b32 s45, 0x{flag(FL_L):x}
        s_mov_b32 s60, 0
        """)
        wait_flag(a, 45, sCNT, 60, 204, sleep=3)
        a(f"s_sleep {F2_GATE}")
        a.label(f"f2_ld{buf}")
        f2_loads(buf)
        a.label(f"f2_mm{buf}")
        stamp(a, 1)
        f2_nextflags()
        a("v_mov_b32 v204, 0")
        for ks in range(14):
            a(f"s_waitcnt vmcnt({15-ks})")
            for t in range(4):
                acc = vr(AC2 + t*4, 4)
                a(f"v_mfma_f32_16x16x32_bf16 {acc}, {ar((ks*4+t)*4,4)}, {vr(AF2+ks*4,4)}, {'0' if ks == 0 else acc}")
                if t < 2:
                    a(f"v_max3_u32 v204, v204, v{AF2+ks*4+2*t}, v{AF2+ks*4+2*t+1}")
        a(f"""
        s_waitcnt vmcnt(1)
        v_max3_u32 v204, v204, v{XB[buf]}, v{XB[buf]+1}
        v_cmp_eq_u32 vcc, -1, v204
        """)
        poll_fail(a, f"f2_ld{buf}", sleep=3)
        stamp(a, 2)
        a.nop(4)
        for t in range(4):
            a(f"ds_write_b128 v{vWr}, {vr(AC2+t*4,4)} offset:{t*4096}")
        a(f"""
        s_add_u32 s{sACT}, s{sACT}, {2*54*1024}
        s_add_u32 s47, s47, {2*16*1280}
        s_add_u32 s{sCNT}, s{sCNT}, 1
        s_add_u32 s{sSEG}, s{sSEG}, 2
        s_waitcnt vmcnt(0)
        v_min3_u32 v216, v216, v217, v218
        v_min_u32 v216, v216, v219
        s_mov_b32 exec_lo, 0x7ffffff
        s_mov_b32 exec_hi, 0
        v_cmp_gt_u32 vcc, s{sCNT}, v216
        s_mov_b64 exec, -1
        s_mov_b32 s{sPF2}, 0
        s_waitcnt lgkmcnt(0)
        s_barrier
        """)
        for q in range(4):
            a(f"ds_read_b128 {vr(FT+q*4,4)}, v{vRd} offset:{q*1024}")
        a(f"""
        s_cbranch_vccnz f2_np{buf}
        s_mov_b32 s{sPF2}, 1
        """)
        f2_loads(1 - buf)
        a(f"""
        f2_np{buf}:
        s_waitcnt lgkmcnt(0)
        s_barrier
        """)
        b = FT
        for r in range(4):
            a(f"v_add_f32 v{b+r}, v{b+r}, v{b+4+r}")
            a(f"v_add_f32 v{b+8+r}, v{b+8+r}, v{b+12+r}")
        for r in range(4):
            a(f"v_add_f32 v{b+r}, v{b+r}, v{b+8+r}")
        x = XB[buf]
        for hf in range(2):
            d0, d1 = b+2*hf, b+2*hf+1
            rnd2(a, d0, d1, 212)
            a(f"v_mul_f32 v{d0}, v{d0}, v{200+2*hf}")
            a(f"v_mul_f32 v{d1}, v{d1}, v{201+2*hf}")
            rnd2(a, d0, d1, 212)
            a(f"""
            v_lshlrev_b32 v212, 16, v{x+hf}
            v_and_b32 v213, 0xffff0000, v{x+hf}
            v_add_f32 v{d0}, v{d0}, v212
            v_add_f32 v{d1}, v{d1}, v213
            v_cvt_pk_bf16_f32 v{b+4+hf}, v{d0}, v{d1}
            """)
        a(f"buffer_store_dwordx2 {vr(b+4,2)}, v{vO}, s[20:23], s{sXO} offen")
        stamp(a, 3)
        stamp_flush(a, 4, 1)
        a(f"""
        s_add_u32 s{sSTEP}, s{sSTEP}, 1
        s_add_u32 s{sXO}, s{sXO}, {2*16*1280}
        s_cmp_ge_u32 s{sSEG}, 128
        s_cbranch_scc1 f2_end
        """)
    a("s_branch f2_loop")
    a.label("f2_end")
    dstamp(a, 14, 3, f"s_cmp_lg_u32 s{sID}, 239\ns_cbranch_scc1 {{lab}}")
    a("s_endpgm")
```

```python
from gen_common import *
import os

P_SLEEP0 = int(os.environ.get("P_SLEEP0", "35"))
P_SLEEP1 = int(os.environ.get("P_SLEEP1", "46"))
U_SLEEPM = int(os.environ.get("U_SLEEPM", "14"))
U_SLEEPP = int(os.environ.get("U_SLEEPP", "12"))
STAMP = int(os.environ.get("STAMP", "0"))
L1FIRST = 0
FORCEPOL = os.environ.get("FORCEPOL", "")
U_SLEEPD = int(os.environ.get("U_SLEEPD", "18"))
DOOR = int(os.environ.get("DOOR", "1"))
C_GAP = int(os.environ.get("C_GAP", "56"))
C_UXTAIL = int(os.environ.get("C_UXTAIL", "16"))
V_SLEEP = int(os.environ.get("V_SLEEP", "4"))
VM_FILL = int(os.environ.get("VM_FILL", "3"))
PKADD = int(os.environ.get("PKADD", "1"))
PDELAY = int(os.environ.get("PDELAY", "0"))
TDEPTH = int(os.environ.get("TDEPTH", "2"))
PDEPTH = int(os.environ.get("PDEPTH", "2"))
CT0 = 20 * int(os.environ.get("CSEG0", "48"))
XMAP = int(os.environ.get("XMAP", "76540321"), 16)
WARM = int(os.environ.get("WARM", "0"))
DST = int(os.environ.get("DST", "0"))
NOMIMIC = int(os.environ.get("NOMIMIC", "1"))
ALAT = int(os.environ.get("ALAT", "44"))
VMFIRST = int(os.environ.get("VMFIRST", "0"))
V_HOLD = int(os.environ.get("V_HOLD", "14"))
V_LAZY = int(os.environ.get("V_LAZY", "0"))
U_HOLD = int(os.environ.get("U_HOLD", "0"))
P_HOLD = int(os.environ.get("P_HOLD", "0"))
NOTOK = int(os.environ.get("NOTOK", "0"))

WS, DBG, WQ, WK, XS = "s[8:11]", "s[12:15]", "s[16:19]", "s[20:23]", "s[24:27]"
sW, sID, sSTEP, sBUD = 3, 28, 29, 30
vLANE, vIDX = 2, 4
vL16, vL16b, vL16c = 5, 6, 7
vM8 = 187
sSA, sSB = 98, 99
MEMF = 16
ACC = 56
LDS_T = 0x14000
LDS_R = 0x15000
LDS_ROLE = 0x1F000


def wreg(t, ks, n=4):
    idx = (t * 20 + ks) * 4
    if idx < 256:
        return ar(idx, n)
    return vr(192 + idx - 256, n)


def widx(idx, n=4):
    return ar(idx, n) if idx < 256 else vr(192 + idx - 256, n)


def l16(off):
    return f"v{vL16 + off // 4096}", off % 4096


def poll_fail(a, retry_label, sleep=2):
    ok = a.newlabel("pok")
    a(f"""
    s_cbranch_vccz {ok}
    s_sub_u32 s{sBUD}, s{sBUD}, 1
    s_cmp_lt_i32 s{sBUD}, 0
    s_cbranch_scc1 {ok}
    s_sleep {sleep}
    s_branch {retry_label}
    """)
    a.label(ok)


def wait_flag(a, s_flagoff, s_need, s_seen, vt, sleep=8):
    top = a.newlabel("wf")
    done = a.newlabel("wfd")
    a.label(top)
    a(f"""
    s_cmp_ge_u32 s{s_seen}, s{s_need}
    s_cbranch_scc1 {done}
    buffer_load_dword v{vt}, off, {WS}, s{s_flagoff} sc1
    s_waitcnt vmcnt(0)
    v_readfirstlane_b32 s{s_seen}, v{vt}
    s_nop 3
    s_cmp_ge_u32 s{s_seen}, s{s_need}
    s_cbranch_scc1 {done}
    s_sub_u32 s{sBUD}, s{sBUD}, 1
    s_cmp_lt_i32 s{sBUD}, 0
    s_cbranch_scc1 {done}
    s_sleep {sleep}
    s_branch {top}
    """)
    a.label(done)


def vmax_chain(a, vt, regs):
    regs = list(regs)
    a(f"v_max3_u32 v{vt}, v{regs[0]}, v{regs[1]}, v{regs[2]}")
    k = 3
    while k < len(regs):
        if k + 1 < len(regs):
            a(f"v_max3_u32 v{vt}, v{vt}, v{regs[k]}, v{regs[k+1]}")
            k += 2
        else:
            a(f"v_max_u32 v{vt}, v{vt}, v{regs[k]}")
            k += 1
    a(f"v_cmp_eq_u32 vcc, -1, v{vt}")


def get_pol(a, vt):
    from gen_boot import dbg_wait_wg, DBG_INIT, DBG_POL
    dbg_wait_wg(a, [(DBG_INIT, 1), (DBG_POL, 1), (DBG_POL+4, 1)], vt)
    a(f"""
    buffer_load_dwordx2 v[184:185], off, {DBG}, 0 offset:{DBG_POL} sc1
    s_waitcnt vmcnt(0)
    v_readfirstlane_b32 s{sSA}, v184
    v_readfirstlane_b32 s{sSB}, v185
    s_nop 3
    s_and_b32 s{sSA}, s{sSA}, 2
    s_lshl_b32 s{sSA}, s{sSA}, 12
    s_and_b32 s{sSB}, s{sSB}, 2
    s_lshl_b32 s{sSB}, s{sSB}, 12
    v_add_u32 v{vM8}, 16384, v{vL16}
    """)


def mem_loads(a, s_memoff, flag="sc1", start=0):
    for kb in range(start, 10):
        r, o = l16(kb * 1024)
        if kb >= 8:
            r = f"v{vM8}"
        a(f"buffer_load_dwordx4 {vr(MEMF+4*kb,4)}, {r}, {WS}, s{s_memoff} offen offset:{o} {flag}")


DEFERRED = []
MODE2 = [False]


def flush_deferred(a):
    for f in DEFERRED:
        f()
    DEFERRED.clear()


def mem_proj(a, tiles, s_memoff, vmax, sleep=1, after_first=None):
    base = a.newlabel("mp")
    mem_loads(a, s_memoff, "" if L1FIRST else "sc1")
    for t in tiles:
        for r in range(4):
            a(f"v_mov_b32 v{ACC+4*t+r}, 0")

    def chk(kb):
        f = MEMF + 4 * kb
        return [f"s_waitcnt vmcnt({9-kb})",
                f"v_max3_u32 v{vmax}, v{f}, v{f+1}, v{f+2}",
                f"v_max_u32 v{vmax}, v{vmax}, v{f+3}\nv_cmp_eq_u32 vcc, -1, v{vmax}"]
    for x in chk(0):
        a(x)
    a(f"s_cbranch_vccnz {base}_r0")
    for kb in range(10):
        f = MEMF + 4 * kb
        a.label(f"{base}_c{kb}")
        if STAMP == 2 and kb in (0, 4, 9):
            a(f"s_memrealtime s[{ {0:86,4:88,9:90}[kb] }:{ {0:87,4:89,9:91}[kb] }]")
        if kb == 9 and after_first:
            after_first()
        nxt = chk(kb + 1) if kb < 9 else []
        for n, t in enumerate(tiles):
            a(f"v_smfmac_f32_16x16x64_bf16 {vr(ACC+4*t,4)}, {vr(f,4)}, {wreg(t,2*kb,8)}, v{vIDX}")
            if n < len(nxt):
                a(nxt[n])
        for x in nxt[len(tiles):]:
            a(x)
        if kb < 9:
            a(f"s_cbranch_vccnz {base}_r{kb+1}")

    def ool():
        for kb in range(10):
            a.label(f"{base}_r{kb}")
            a(f"""
            s_sub_u32 s{sBUD}, s{sBUD}, 1
            s_cmp_lt_i32 s{sBUD}, 0
            s_cbranch_scc1 {base}_c{kb}
            s_sleep {sleep}
            """)
            mem_loads(a, s_memoff, "sc1", kb)
            for x in chk(kb):
                a(x)
            a(f"s_cbranch_vccnz {base}_r{kb}")
            a(f"s_branch {base}_c{kb}")
    DEFERRED.append(ool)


LDS_M = 0x18000


def mem_setup(a):
    a(f"""
    s_lshl_b32 s40, s{sW}, 10
    v_add_u32 v176, s40, v{vL16}
    v_add_u32 v177, 4096, v176
    v_add_u32 v178, 16384, v176
    v_add_u32 v179, 0x{LDS_M:x}, v176
    v_add_u32 v175, 0x{LDS_M:x}, v{vL16}
    s_cmp_lt_u32 s{sW}, 2
    s_cbranch_scc1 {a.newlabel("ms")}_ok
    v_mov_b32 v178, 0x7ffffff0
    """)
    a.label(f"ms_{a.uid}_ok")


def mem_proj2(a, order, s_memoff, vmax, after_valid=None, fill=None):
    top = a.newlabel("mq")
    G = 160
    a.label(top)
    for k in range(3):
        a(f"buffer_load_dwordx4 {vr(G+4*k,4)}, v{176+k}, {WS}, s{s_memoff} offen sc1")
    for grp in order:
        for t in grp:
            for r in range(4):
                a(f"v_mov_b32 v{ACC+4*t+r}, 0")
    a("s_waitcnt vmcnt(2)")
    a(f"ds_write_b128 v179, {vr(G,4)}")
    a(f"v_max3_u32 v{vmax}, v{G}, v{G+1}, v{G+2}")
    a("s_waitcnt vmcnt(1)")
    a(f"ds_write_b128 v179, {vr(G+4,4)} offset:4096")
    a(f"v_max3_u32 v{vmax}, v{vmax}, v{G+3}, v{G+4}")
    a(f"v_max3_u32 v{vmax}, v{vmax}, v{G+5}, v{G+6}")
    a("s_waitcnt vmcnt(0)")
    a(f"ds_write_b128 v179, {vr(G+8,4)} offset:8192")
    a(f"v_max3_u32 v{vmax}, v{vmax}, v{G+7}, v{G+8}")
    a(f"v_max3_u32 v{vmax}, v{vmax}, v{G+9}, v{G+10}")
    a(f"v_max_u32 v{vmax}, v{vmax}, v{G+11}")
    a(f"v_cmp_eq_u32 vcc, -1, v{vmax}")
    poll_fail(a, top, sleep=1)
    if after_valid:
        after_valid()
    if STAMP == 2:
        a("s_memrealtime s[86:87]")
    join = a.newlabel("mj")
    labs = [a.newlabel("mw") for _ in range(4)]
    a(f"""
    s_cmp_ge_u32 s{sW}, 2
    s_cbranch_scc1 {labs[2]}
    s_cmp_eq_u32 s{sW}, 1
    s_cbranch_scc1 {labs[1]}
    """)

    def sm(t, kb, src):
        a(f"v_smfmac_f32_16x16x64_bf16 {vr(ACC+4*t,4)}, {vr(src,4)}, {wreg(t,2*kb,8)}, v{vIDX}")
    for w in range(4):
        a.label(labs[w])
        if w == 2:
            a(f"""
            s_cmp_eq_u32 s{sW}, 3
            s_cbranch_scc1 {labs[3]}
            """)
        own = [w, w + 4] + ([8 + w] if w < 2 else [])
        oth = [kb for kb in range(10) if kb not in own]
        a("s_waitcnt lgkmcnt(0)")
        a("s_barrier")
        if STAMP == 2:
            a("s_memrealtime s[88:89]")
        for kb in oth:
            a(f"ds_read_b128 {vr(MEMF+4*kb,4)}, v175 offset:{kb*1024}")
        for grp in order:
            for k, kb in enumerate(own):
                for t in grp:
                    sm(t, kb, G + 4*k)
        for gi, grp in enumerate(order):
            F = list(fill.get(gi, [])) if fill else []
            n = 0
            tot = len(oth) * len(grp)
            for k, kb in enumerate(oth):
                if gi == 0:
                    a(f"s_waitcnt lgkmcnt({len(oth)-1-k})")
                for t in grp:
                    sm(t, kb, MEMF + 4*kb)
                    n += 1
                    if F and n == 2:
                        a.nop(6)
                    if n >= 2 and F:
                        a(F.pop(0))
            for x in F:
                a(x)
        if w < 3:
            a(f"s_branch {join}")
    a.label(join)
    if STAMP == 2:
        a("s_memrealtime s[90:91]")


def combine_list(t0, t1, d01, d23):
    A, B = ACC + 4 * t0, ACC + 4 * t1
    L = [f"v_permlane32_swap_b32 v{A+r}, v{B+r}" for r in range(4)]
    L += [f"v_pk_add_f32 v[{A+r}:{A+r+1}], v[{A+r}:{A+r+1}], v[{B+r}:{B+r+1}]" for r in (0, 2)]
    L += [f"v_cvt_pk_bf16_f32 v{d01}, v{A}, v{A+1}", f"v_cvt_pk_bf16_f32 v{d23}, v{A+2}, v{A+3}"]
    return L


def combine_pair(a, t0, t1, d01, d23):
    A, B = ACC + 4 * t0, ACC + 4 * t1
    for r in range(4):
        a(f"v_permlane32_swap_b32 v{A+r}, v{B+r}")
    if PKADD:
        for r in (0, 2):
            a(f"v_pk_add_f32 v[{A+r}:{A+r+1}], v[{A+r}:{A+r+1}], v[{B+r}:{B+r+1}]")
    else:
        for r in range(4):
            a(f"v_add_f32 v{A+r}, v{A+r}, v{B+r}")
    a(f"v_cvt_pk_bf16_f32 v{d01}, v{A}, v{A+1}")
    a(f"v_cvt_pk_bf16_f32 v{d23}, v{A+2}, v{A+3}")


def load_wqk(a, mats=(WQ, WK), depth=3):
    a.comment("---- load Wq/Wk fragments")
    a(f"""
    v_lshrrev_b32 v10, 4, v{vLANE}          ; r = lane/16
    v_and_b32 v11, 15, v{vLANE}             ; chunk'
    v_and_b32 v12, 1, v10
    s_lshl_b32 s40, s{sW}, 1
    v_or_b32 v12, s40, v12                  ; f = (r&1)|(w<<1)
    v_lshlrev_b32 v12, 1, v12
    v_xor_b32 v11, v11, v12
    v_lshlrev_b32 v11, 4, v11
    s_lshl_b32 s40, s{sW}, 2
    v_add_u32 v12, s40, v10                 ; 4w+r
    v_lshl_add_u32 v11, v12, 13, v11
    s_lshl_b32 s41, s{sID}, 8
    s_lshl_b32 s42, s{sW}, 10
    v_bfe_u32 v12, v{vLANE}, 2, 2           ; r
    v_and_b32 v13, 3, v{vLANE}              ; c
    v_lshrrev_b32 v14, 1, v10               ; g>>1
    v_lshlrev_b32 v14, 4, v14               ; 16*(g>>1)
    v_and_b32 v15, 1, v10                   ; g&1
    v_lshl_add_u32 v14, v15, 2, v14         ; +4*(g&1)
    v_and_b32 v16, 1, v12
    v_add_u32 v14, v14, v16                 ; +(r&1)
    v_lshrrev_b32 v17, 1, v12               ; r>>1
    v_lshl_add_u32 v14, v17, 3, v14         ; +8*(r>>1)
    v_lshlrev_b32 v14, 8, v14
    v_lshl_add_u32 v14, v13, 3, v14         ; + c*8
    v_lshl_or_b32 v16, v15, 1, v16
    v_lshl_or_b32 v16, v17, 2, v16          ; f
    v_lshl_or_b32 v14, v16, 5, v14
    s_lshl_b32 s40, s{sW}, 6                ; (2w)<<5
    v_xor_b32 v18, s40, v14                 ; tile 2w
    v_xor_b32 v19, 32, v18                  ; tile 2w+1
    v_add_u32 v20, 0x10000, v18
    v_add_u32 v21, 0x10000, v19
    """)

    nm = len(mats)

    def dma(cn):
        buf = cn % 4
        for mat, sd in enumerate(mats):
            for q in range(4):
                a(f"""
                s_add_u32 s43, s42, {buf*32768 + mat*16384 + q*4096}
                s_mov_b32 m0, s43
                s_add_u32 s44, s41, {(cn*64+16*q)*8192}
                buffer_load_dwordx4 v11, {sd}, s44 offen lds
                """)
    for cn in range(depth):
        dma(cn)
    for cn in range(10):
        later = min(depth - 1, 9 - cn)
        a(f"s_waitcnt vmcnt({4*nm*later})")
        a("s_barrier")
        if cn + depth < 10:
            dma(cn + depth)
        buf = cn % 4
        for mat in range(nm):
            for tt in range(2):
                for ksl in range(2):
                    for j in range(2):
                        idx = ((mat*2+tt) * 20 + cn*2 + ksl) * 4 + 2*j
                        av = 18 + tt + (2 if buf >= 2 else 0)
                        a(f"ds_read_b64_tr_b16 {widx(idx,2)}, v{av} offset:{(buf&1)*32768 + mat*16384 + ksl*8192 + j*512}")
            a("s_waitcnt lgkmcnt(0)")
    a("s_barrier")


def load_wo(a, sd):
    a.comment("---- load Wo fragments")
    for q in range(5):
        a(f"""
        v_add_u32 v10, {64*q}, v{vLANE}
        v_mul_u32_u24 v11, 3277, v10
        v_lshrrev_b32 v11, 16, v11            ; row = q/20
        v_mul_u32_u24 v12, 20, v11
        v_sub_u32 v10, v10, v12               ; chunk
        v_mul_u32_u24 v11, 1280, v11
        v_lshl_add_u32 v{16+q}, v10, 4, v11
        """)
    a(f"""
    s_mul_i32 s41, s{sID}, 163840
    s_mul_i32 s40, s{sW}, 320
    s_add_u32 s41, s41, s40                 ; soffset
    s_mul_i32 s42, s{sW}, 20480
    v_lshrrev_b32 v10, 4, v{vLANE}          ; g
    v_bfe_u32 v11, v{vLANE}, 2, 2           ; r
    v_lshl_add_u32 v10, v10, 2, v11
    v_mul_u32_u24 v10, 320, v10
    v_and_b32 v11, 3, v{vLANE}
    v_lshl_add_u32 v10, v11, 3, v10
    v_add_u32 v21, s42, v10
    """)
    for half in range(2):
        a("s_mov_b32 s43, s42")
        for blk in range(4):
            for q in range(5):
                a(f"""
                s_mov_b32 m0, s43
                s_add_u32 s43, s43, 1024
                buffer_load_dwordx4 v{16+q}, {sd}, s41 offen lds
                """)
            a(f"s_add_u32 s41, s41, {16*1280}")
        a("s_waitcnt vmcnt(0)")
        for jt in range(10):
            for kl in range(2):
                for j in range(2):
                    idx = 160 + (jt*4 + half*2 + kl) * 4 + 2*j
                    a(f"ds_read_b64_tr_b16 {widx(idx,2)}, v21 offset:{(32*kl+16*j)*320 + jt*32}")
            if jt % 2 == 1:
                a("s_waitcnt lgkmcnt(0)")
    a("s_barrier")


def load_wvo(a):
    a.comment("---- load Wvo fragments (linear)")
    a(f"""
    s_lshl_b32 s40, s{sID}, 2
    s_add_u32 s40, s40, s{sW}
    s_mul_i32 s40, s40, 81920
    s_add_u32 s40, s40, 0x{WS_WVO:x}
    """)
    for f in range(80):
        a(f"buffer_load_dwordx4 {wreg(f//20, f%20)}, v{vL16}, {WS}, s40 offen offset:{(f%4)*1024}")
        if f % 4 == 3:
            a("s_add_u32 s40, s40, 4096")
        if f % 40 == 39:
            a("s_waitcnt vmcnt(20)" if f < 79 else "s_waitcnt vmcnt(0)")


vHG = 15


def dma_h_setup(a):
    a(f"""
    v_and_b32 v10, 15, v{vLANE}
    v_mul_u32_u24 v10, 1280, v10
    v_lshrrev_b32 v{vHG}, 4, v{vLANE}
    v_lshl_add_u32 v{vHG}, v{vHG}, 4, v10
    """)


def dma_h_init(a, s_hoff, s_buf):
    a(f"""
    s_mul_i32 s43, s{sW}, 10240
    s_add_u32 s43, s43, s{s_buf}
    s_lshr_b32 s44, s{sW}, 1
    s_mul_i32 s44, s44, 20480
    s_and_b32 s45, s{sW}, 1
    s_mul_i32 s45, s45, 640
    s_add_u32 s44, s44, s45
    s_add_u32 s44, s44, s{s_hoff}
    """)


def dma_h_one(a):
    a(f"""
    s_mov_b32 m0, s43
    s_add_u32 s43, s43, 1024
    buffer_load_dwordx4 v{vHG}, {WS}, s44 offen sc1 lds
    s_add_u32 s44, s44, 64
    """)


def dmal_init(a, s_hoff, s_buf):
    a(f"""
    s_mul_i32 s43, s{sW}, 10240
    s_add_u32 s44, s43, s{s_hoff}
    s_add_u32 s43, s43, s{s_buf}
    """)


def dmal_one(a):
    a(f"""
    s_mov_b32 m0, s43
    s_add_u32 s43, s43, 1024
    buffer_load_dwordx4 v{vL16}, {WS}, s44 offen sc1 lds
    s_add_u32 s44, s44, 1024
    """)


def dma_h(a, s_hoff, s_buf):
    dma_h_init(a, s_hoff, s_buf)
    for k in range(10):
        dma_h_one(a)


HF = 104
TACC = 72


def dense_proj(a, vH, transposed, hook=None, tiles=(0, 1, 2, 3)):
    def rd(ks):
        st = HF + (ks % 3) * 8
        for mt in range(2):
            a(f"ds_read_b128 {vr(st+4*mt,4)}, v{vH} offset:{mt*20480+ks*1024}")
    rd(0)
    rd(1)
    for ks in range(20):
        if ks + 2 < 20:
            rd(ks + 2)
            a("s_waitcnt lgkmcnt(4)")
        elif ks + 1 < 20:
            a("s_waitcnt lgkmcnt(2)")
        else:
            a("s_waitcnt lgkmcnt(0)")
        st = HF + (ks % 3) * 8
        for n, t in enumerate(tiles):
            for mt in range(2):
                acc = vr(TACC + (t*2+mt)*4, 4)
                c = "0" if ks == 0 else acc
                if transposed:
                    a(f"v_mfma_f32_16x16x32_bf16 {acc}, {wreg(t,ks)}, {vr(st+4*mt,4)}, {c}")
                else:
                    a(f"v_mfma_f32_16x16x32_bf16 {acc}, {vr(st+4*mt,4)}, {wreg(t,ks)}, {c}")
            if n == len(tiles) // 2 - 1 and hook:
                hook(ks)


def round_scale(a, xs, tmp, s_scale):
    def rnd():
        for k in range(0, len(xs), 2):
            x0 = xs[k]
            x1 = xs[k+1] if k + 1 < len(xs) else xs[k]
            a(f"v_cvt_pk_bf16_f32 v{tmp+k//2}, v{x0}, v{x1}")
        for k in range(0, len(xs), 2):
            a(f"v_lshlrev_b32 v{xs[k]}, 16, v{tmp+k//2}")
            if k + 1 < len(xs):
                a(f"v_and_b32 v{xs[k+1]}, 0xffff0000, v{tmp+k//2}")
    rnd()
    for x in xs:
        a(f"v_mul_f32 v{x}, s{s_scale}, v{x}")
    rnd()


def xlane(a, op, v, t, with8):
    if with8:
        a.nop(2)
        a(f"{op}_dpp v{v}, v{v}, v{v} row_ror:8 row_mask:0xf bank_mask:0xf")
    for sw in ("v_permlane16_swap_b32", "v_permlane32_swap_b32"):
        a(f"v_mov_b32 v{t}, v{v}")
        a.nop(2)
        a(f"{sw} v{v}, v{t}")
        a(f"{op} v{v}, v{v}, v{t}")


def softmax(a, xs, vm, vt, s_log2e, with8):
    a(f"v_max3_f32 v{vm}, v{xs[0]}, v{xs[1]}, v{xs[2]}")
    k = 3
    while k < len(xs):
        if k + 1 < len(xs):
            a(f"v_max3_f32 v{vm}, v{vm}, v{xs[k]}, v{xs[k+1]}")
            k += 2
        else:
            a(f"v_max_f32 v{vm}, v{vm}, v{xs[k]}")
            k += 1
    xlane(a, "v_max_f32", vm, vt, with8)
    for x in xs:
        a(f"v_sub_f32 v{x}, v{x}, v{vm}")
    for x in xs:
        a(f"v_mul_f32 v{x}, s{s_log2e}, v{x}")
    for x in xs:
        a(f"v_exp_f32 v{x}, v{x}")
    a(f"v_add_f32 v{vm}, v{xs[0]}, v{xs[1]}")
    for x in xs[2:]:
        a(f"v_add_f32 v{vm}, v{vm}, v{x}")
    xlane(a, "v_add_f32", vm, vt, with8)
    a(f"v_rcp_f32 v{vm}, v{vm}")
    a.nop(1)
    for x in xs:
        a(f"v_mul_f32 v{x}, v{x}, v{vm}")


def setup_qk_lds_addrs(a, vW, vR):
    a(f"""
    v_and_b32 v10, 15, v{vLANE}             ; n
    v_lshrrev_b32 v11, 4, v{vLANE}          ; g
    v_lshrrev_b32 v12, 1, v11
    v_lshl_add_u32 v10, v12, 4, v10         ; 16*(g>>1)+n
    s_lshl_b32 s40, s{sW}, 5
    v_add_u32 v10, s40, v10                 ; +32w
    v_lshlrev_b32 v10, 4, v10
    v_and_b32 v12, 1, v11
    v_lshl_add_u32 v10, v12, 3, v10
    v_add_u32 v{vW}, 0x{LDS_T:x}, v10
    v_bfe_u32 v12, v{vLANE}, 2, 2           ; r
    v_lshl_add_u32 v12, v11, 2, v12         ; 4g+r
    v_lshlrev_b32 v12, 4, v12
    v_and_b32 v13, 1, v{vLANE}
    v_lshl_add_u32 v12, v13, 3, v12
    v_add_u32 v{vR}, 0x{LDS_T:x}, v12
    """)


def setup_p_load_addrs(a, vA, vB, vM, wstride=8*640, hstride=10240):
    a(f"""
    v_bfe_u32 v10, v{vLANE}, 3, 1           ; rho
    v_and_b32 v11, 7, v{vLANE}              ; i
    v_lshrrev_b32 v12, 4, v{vLANE}          ; gA
    v_lshrrev_b32 v13, 1, v12               ; gA>>1
    v_and_b32 v14, 1, v12                   ; gA&1
    s_mul_i32 s40, s{sW}, {wstride}
    v_mul_u32_u24 v15, 640, v10
    v_add_u32 v15, s40, v15
    v_lshl_add_u32 v15, v13, 8, v15
    v_lshl_add_u32 v15, v11, 5, v15
    v_lshl_add_u32 v{vA}, v14, 4, v15
    v_lshl_add_u32 v15, v13, 2, v14
    v_mul_u32_u24 v15, 640, v15
    v_add_u32 v15, s40, v15
    v_lshl_add_u32 v15, v10, 6, v15
    v_lshl_add_u32 v15, v11, 3, v15
    v_add_u32 v{vB}, 512, v15
    s_mul_i32 s40, s{sW}, {8*hstride}
    v_mul_u32_u24 v15, {hstride}, v13
    v_add_u32 v15, s40, v15
    v_lshl_add_u32 v15, v14, 7, v15
    v_and_b32 v11, 15, v{vLANE}
    v_lshl_add_u32 v{vM}, v11, 3, v15
    """)


def p_loads(a, PF, vA, vB, s_off):
    for blk in range(2):
        for pi in range(2):
            a(f"buffer_load_dwordx4 {vr(PF+(blk*2+pi)*4,4)}, v{vA}, {WS}, s{s_off} offen offset:{(4*blk+pi)*640} sc1")
    for pi in range(2):
        a(f"buffer_load_dwordx2 {vr(PF+16+2*pi,2)}, v{vB}, {WS}, s{s_off} offen offset:{pi*640} sc1")


def p_combine(a, PF, BX, BM, CA, vmax):
    for blk in range(2):
        for pi in range(2):
            f = PF + (blk*2+pi)*4
            a(f"v_smfmac_f32_16x16x64_bf16 {vr(CA+4*pi,4)}, {vr(f,4)}, {vr(BX+8*blk,8)}, v{vIDX}")
            if vmax is not None:
                a(f"v_max3_u32 v{vmax}, v{vmax}, v{f}, v{f+1}")
                a(f"v_max3_u32 v{vmax}, v{vmax}, v{f+2}, v{f+3}")
    a.nop(2 if vmax is not None else 6)
    for pi in range(2):
        f = PF + 16 + 2*pi
        a(f"v_smfmac_f32_16x16x32_bf16 {vr(CA+4*pi,4)}, {vr(f,2)}, {vr(BM,4)}, v{vIDX}")
        if vmax is not None:
            a(f"v_max3_u32 v{vmax}, v{vmax}, v{f}, v{f+1}")


def setup_red_addrs(a, vWr, vRd):
    a(f"""
    v_and_b32 v10, 15, v{vLANE}             ; n
    v_lshrrev_b32 v11, 4, v{vLANE}          ; g
    v_and_b32 v12, 1, v11
    v_lshlrev_b32 v12, 10, v12              ; 4*(g&1)*256
    v_lshl_add_u32 v12, v10, 5, v12         ; + n*32
    v_lshrrev_b32 v13, 1, v11
    v_lshl_add_u32 v12, v13, 2, v12         ; + (g>>1)*4
    s_lshl_b32 s40, s{sW}, 3
    s_add_u32 s40, s40, 0x{LDS_R:x}
    v_add_u32 v12, s40, v12
    v_mov_b32 v13, 0x{LDS_R+0x2800:x}
    v_cmp_gt_u32 vcc, 8, v10
    s_nop 1
    v_cndmask_b32 v{vWr}, v13, v12, vcc
    v_lshlrev_b32 v12, 5, v{vLANE}
    v_add_u32 v{vRd}, 0x{LDS_R:x}, v12
    """)


def red_write(a, CA, vWr, off):
    for r in range(4):
        a(f"v_add_f32_dpp v{CA+r}, v{CA+4+r}, v{CA+r} row_ror:8 row_mask:0xf bank_mask:0xf")
    for r in range(4):
        a(f"ds_write_b32 v{vWr}, v{CA+r} offset:{off + r*256}")


LB = 140
L_SRC, L_DST, L_M, L_V, L_T, L_T2 = LB, LB+1, LB+2, LB+3, LB+4, LB+5
L_RAW, L_OUT, L_X, L_SC, L_SH = LB+8, LB+16, LB+24, LB+40, LB+56


def ln_wave_sum(a, v):
    for ctrl in ["quad_perm:[1,0,3,2]", "quad_perm:[2,3,0,1]", "row_half_mirror", "row_mirror"]:
        a.nop(2)
        a(f"v_add_f32_dpp v{v}, v{v}, v{v} {ctrl} row_mask:0xf bank_mask:0xf")
    a.nop(1)
    a(f"v_readlane_b32 s72, v{v}, 0")
    a(f"v_readlane_b32 s73, v{v}, 16")
    a(f"v_readlane_b32 s74, v{v}, 32")
    a.nop(2)
    a(f"v_mov_b32 v{v}, s72")
    a(f"v_add_f32 v{v}, s73, v{v}")
    a(f"v_add_f32 v{v}, s74, v{v}")


def bf16r(a, v):
    a(f"v_cvt_pk_bf16_f32 v{v}, v{v}, v{v}")
    a(f"v_and_b32 v{v}, 0xffff0000, v{v}")


def ln_setup(a, shift_idx, scale_idx, perm):
    a(f"""
    v_cmp_gt_u32 vcc, 40, v{vLANE}
    v_mov_b32 v{L_T}, 0x7ffffff0
    v_lshlrev_b32 v{L_DST}, 4, v{vLANE}
    """)
    if perm:
        a(f"""
        v_lshrrev_b32 v{L_SRC}, 1, v{vLANE}
        v_lshlrev_b32 v{L_SRC}, 5, v{L_SRC}
        v_and_b32 v{L_T2}, 1, v{vLANE}
        v_lshl_add_u32 v{L_SRC}, v{L_T2}, 3, v{L_SRC}
        """)
    else:
        a(f"v_mov_b32 v{L_SRC}, v{L_DST}")
    a(f"""
    v_lshlrev_b32 v{L_T2}, 1, v{L_SRC}
    v_cndmask_b32 v{L_SRC}, v{L_T}, v{L_SRC}, vcc
    v_cndmask_b32 v{L_T2}, v{L_T}, v{L_T2}, vcc
    v_cndmask_b32 v{L_DST}, v{L_T}, v{L_DST}, vcc
    s_mov_b64 s[76:77], vcc
    s_mov_b32 s72, {WS_MOD + scale_idx*2560}
    s_mov_b32 s73, {WS_MOD + shift_idx*2560}
    """)
    for dst, so in ((L_SC, 72), (L_SH, 73)):
        for h in range(2):
            if perm:
                a(f"buffer_load_dwordx2 {vr(dst+8*h,2)}, v{L_T2}, {WS}, s{so} offen offset:{h*1280}")
                a(f"buffer_load_dwordx2 {vr(dst+8*h+4,2)}, v{L_T2}, {WS}, s{so} offen offset:{h*1280+8}")
                a(f"buffer_load_dwordx2 {vr(dst+8*h+2,2)}, v{L_T2}, {WS}, s{so} offen offset:{h*1280+32}")
                a(f"buffer_load_dwordx2 {vr(dst+8*h+6,2)}, v{L_T2}, {WS}, s{so} offen offset:{h*1280+40}")
            else:
                a(f"buffer_load_dwordx4 {vr(dst+8*h,4)}, v{L_T2}, {WS}, s{so} offen offset:{h*1280} sc1")
                a(f"buffer_load_dwordx4 {vr(dst+8*h+4,4)}, v{L_T2}, {WS}, s{so} offen offset:{h*1280+16} sc1")
    a("s_waitcnt vmcnt(0)")
    for j in range(8):
        a(f"v_add_f32 v{L_SC+2*j}, 1.0, v{L_SC+2*j}")
        a(f"v_add_f32 v{L_SC+2*j+1}, 1.0, v{L_SC+2*j+1}")
        a(f"v_cvt_pk_bf16_f32 v{L_T}, v{L_SC+2*j}, v{L_SC+2*j+1}")
        a(f"v_lshlrev_b32 v{L_SC+2*j}, 16, v{L_T}")
        a(f"v_and_b32 v{L_SC+2*j+1}, 0xffff0000, v{L_T}")


def ln_load(a, srd_, s_off, fl, perm, raw=L_RAW, extra=0):
    if perm:
        for h in range(2):
            a(f"buffer_load_dwordx2 {vr(raw+4*h,2)}, v{L_SRC}, {srd_}, s{s_off} offen offset:{extra+h*640} {fl}")
            a(f"buffer_load_dwordx2 {vr(raw+4*h+2,2)}, v{L_SRC}, {srd_}, s{s_off} offen offset:{extra+h*640+16} {fl}")
        return 4
    for h in range(2):
        a(f"buffer_load_dwordx4 {vr(raw+4*h,4)}, v{L_SRC}, {srd_}, s{s_off} offen offset:{extra+h*640} {fl}")
    return 2


def ln_unpack(a, perm, raw=L_RAW):
    pos = [0, 2, 1, 3] if perm else [0, 1, 2, 3]
    for h in range(2):
        for j in range(4):
            d = 4*h + pos[j]
            a(f"v_lshlrev_b32 v{L_X+2*d}, 16, v{raw+4*h+j}")
            a(f"v_and_b32 v{L_X+2*d+1}, 0xffff0000, v{raw+4*h+j}")


def ln_compute_store(a, s_dst, extra=0, out=L_OUT):
    X = L_X
    a(f"v_add_f32 v{L_M}, v{X}, v{X+1}")
    a(f"v_add_f32 v{L_T}, v{X+2}, v{X+3}")
    for j in range(4, 16, 2):
        a(f"v_add_f32 v{L_M}, v{L_M}, v{X+j}")
        a(f"v_add_f32 v{L_T}, v{L_T}, v{X+j+1}")
    a(f"v_add_f32 v{L_M}, v{L_M}, v{L_T}")
    ln_wave_sum(a, L_M)
    a(f"v_mul_f32 v{L_M}, 0x3acccccd, v{L_M}")
    a(f"v_sub_f32 v{L_T}, v{X}, v{L_M}")
    a(f"v_mul_f32 v{L_V}, v{L_T}, v{L_T}")
    for j in range(1, 16):
        t = L_T if j % 2 == 0 else L_T2
        a(f"v_sub_f32 v{t}, v{X+j}, v{L_M}")
        a(f"v_fmac_f32 v{L_V}, v{t}, v{t}")
    a(f"v_cndmask_b32 v{L_V}, 0, v{L_V}, s[76:77]")
    ln_wave_sum(a, L_V)
    a(f"v_mul_f32 v{L_V}, 0x3acccccd, v{L_V}")
    bf16r(a, L_V)
    a(f"v_add_f32 v{L_V}, 0x3727c5ac, v{L_V}")
    bf16r(a, L_V)
    a(f"v_sqrt_f32 v{L_V}, v{L_V}")
    a.nop(1)
    bf16r(a, L_V)
    a(f"v_rcp_f32 v{L_V}, v{L_V}")
    bf16r(a, L_M)
    for j in range(8):
        x0, x1 = X + 2*j, X + 2*j + 1
        a(f"""
        v_sub_f32 v{x0}, v{x0}, v{L_M}
        v_sub_f32 v{x1}, v{x1}, v{L_M}
        v_cvt_pk_bf16_f32 v{L_T}, v{x0}, v{x1}
        v_lshlrev_b32 v{x0}, 16, v{L_T}
        v_and_b32 v{x1}, 0xffff0000, v{L_T}
        v_mul_f32 v{x0}, v{x0}, v{L_V}
        v_mul_f32 v{x1}, v{x1}, v{L_V}
        v_cvt_pk_bf16_f32 v{L_T}, v{x0}, v{x1}
        v_lshlrev_b32 v{x0}, 16, v{L_T}
        v_and_b32 v{x1}, 0xffff0000, v{L_T}
        v_mul_f32 v{x0}, v{x0}, v{L_SC+2*j}
        v_mul_f32 v{x1}, v{x1}, v{L_SC+2*j+1}
        v_cvt_pk_bf16_f32 v{L_T}, v{x0}, v{x1}
        v_lshlrev_b32 v{x0}, 16, v{L_T}
        v_and_b32 v{x1}, 0xffff0000, v{L_T}
        v_add_f32 v{x0}, v{x0}, v{L_SH+2*j}
        v_add_f32 v{x1}, v{x1}, v{L_SH+2*j+1}
        v_cvt_pk_bf16_f32 v{out+j}, v{x0}, v{x1}
        v_min_u32 v{out+j}, -2, v{out+j}
        """)
    a(f"buffer_store_dwordx4 {vr(out,4)}, v{L_DST}, {WS}, s{s_dst} offen offset:{extra} sc1")
    a(f"buffer_store_dwordx4 {vr(out+4,4)}, v{L_DST}, {WS}, s{s_dst} offen offset:{extra+640} sc1")


def wait_all(a, nl, vaddr, s_off, s_need, vt, ndw=1, sleep=4):
    top, done = a.newlabel("wa"), a.newlabel("wad")
    a.label(top)
    op = {1: "dword", 4: "dwordx4"}[ndw]
    a(f"""
    s_mov_b32 exec_lo, 0x{(1 << nl) - 1:x}
    s_mov_b32 exec_hi, 0
    buffer_load_{op} {vr(vt, ndw)}, v{vaddr}, {WS}, s{s_off} offen sc1
    s_waitcnt vmcnt(0)
    """)
    if ndw == 4:
        a(f"v_min3_u32 v{vt}, v{vt}, v{vt+1}, v{vt+2}")
        a(f"v_min_u32 v{vt}, v{vt}, v{vt+3}")
    a(f"""
    v_cmp_gt_u32 vcc, s{s_need}, v{vt}
    s_mov_b64 exec, -1
    s_cbranch_vccz {done}
    s_sub_u32 s{sBUD}, s{sBUD}, 1
    s_cmp_lt_i32 s{sBUD}, 0
    s_cbranch_scc1 {done}
    s_sleep {sleep}
    s_branch {top}
    """)
    a.label(done)


WS_TRACE = 0x0F000000


def stamp(a, slot):
    if not STAMP:
        return
    if STAMP == 2 and MODE2[0] and slot in (3, 4):
        slot = 6
    if STAMP == 2 and MODE2[0] and slot == 0:
        a("s_memtime s[80:81]")
        return
    a(f"s_memrealtime s[{80+2*slot}:{81+2*slot}]")


def dstamp(a, word, vt, cond=""):
    if not DST:
        return
    lab = a.newlabel("ds")
    a(f"""
    {cond.format(lab=lab)}
    s_cmp_lg_u32 s{sW}, 0
    s_cbranch_scc1 {lab}
    s_memrealtime s[80:81]
    s_waitcnt lgkmcnt(0)
    v_mov_b32 v{vt}, s80
    s_mov_b64 exec, 1
    buffer_store_dword v{vt}, off, {DBG}, 0 offset:{word*4}
    s_mov_b64 exec, -1
    {lab}:
    """)


def stamp_flush(a, n, vt):
    if not STAMP:
        return
    if STAMP == 2 and MODE2[0]:
        n = 7
    skip = a.newlabel("stf")
    a(f"""
    s_cmp_lg_u32 s{sW}, 0
    s_cbranch_scc1 {skip}
    s_waitcnt lgkmcnt(0)
    s_lshl_b32 s96, s{sSTEP}, 5
    s_add_u32 s96, s96, s97
    s_mov_b64 exec, 1
    """)
    for k in range(n):
        a(f"v_mov_b32 v{vt}, s{80+2*k}")
        a(f"buffer_store_dword v{vt}, off, {WS}, s96 offset:{4*k}")
        a.nop(2)
    a(f"v_mov_b32 v{vt}, s{sBUD}")
    a(f"buffer_store_dword v{vt}, off, {WS}, s96 offset:28")
    a("s_mov_b64 exec, -1")
    a.label(skip)


def gen_r(a):
    L = NAME + "_kernel"
    kernel_header(a, L)
    a(f"""
    s_cmp_ge_u32 s2, 256
    s_cbranch_scc1 r_end
    s_load_dwordx2 s[4:5], s[0:1], {KA_WS}
    s_load_dwordx2 s[6:7], s[0:1], {KA_DBG}
    s_load_dwordx4 s[32:35], s[0:1], {KA_WQ}
    s_load_dwordx2 s[36:37], s[0:1], {KA_X}
    v_lshrrev_b32 v1, 6, v0
    v_and_b32 v{vLANE}, 63, v0
    s_waitcnt lgkmcnt(0)
    """)
    srd(a, 8, 4, WS_SIZE)
    srd(a, 12, 6, 256)
    srd(a, 16, 32, D * H * E * 2)
    srd(a, 20, 34, D * H * E * 2)
    srd(a, 24, 36, S * D * 2)
    a(f"""
    v_readfirstlane_b32 s{sW}, v1
    v_lshlrev_b32 v{vL16}, 4, v{vLANE}
    v_add_u32 v{vL16b}, 4096, v{vL16}
    v_add_u32 v{vL16c}, 8192, v{vL16}
    v_mov_b32 v{vIDX}, 0x4444
    v_mov_b32 v10, 0xeeee
    v_and_b32 v11, 8, v{vLANE}
    v_cmp_ne_u32 vcc, 0, v11
    s_mov_b32 s{sBUD}, 200000
    v_mov_b32 v9, 0x{LDS_ROLE:x}
    v_cndmask_b32 v{vIDX}, v{vIDX}, v10, vcc
    s_cmp_lg_u32 s{sW}, 0
    s_cbranch_scc1 r_warm
    s_getreg_b32 s40, hwreg(HW_REG_XCC_ID)
    s_and_b32 s40, s40, 7
    s_mov_b64 exec, 1
    s_lshl_b32 s43, s40, 2
    s_lshr_b32 s43, 0x{XMAP:x}, s43
    s_and_b32 s43, s43, 7
    s_mov_b32 s48, 0
    """)
    a.label("r_try")
    a(f"""
    s_lshr_b32 s45, s43, 1
    s_lshl_b32 s45, s45, 2
    s_and_b32 s44, s43, 1
    s_lshl_b32 s44, s44, 7
    s_add_u32 s45, s45, s44
    v_mov_b32 v10, 1
    buffer_atomic_add v10, off, {DBG}, s45 sc0
    s_waitcnt vmcnt(0)
    v_readfirstlane_b32 s41, v10
    s_nop 3
    s_cmp_lt_u32 s41, 32
    s_cbranch_scc1 r_got
    s_add_u32 s48, s48, 1
    s_sub_u32 s43, s48, 1
    s_mov_b32 s42, 999
    s_cmp_ge_u32 s43, 8
    s_cbranch_scc1 r_role_done
    s_branch r_try
    """)
    a.label("r_got")
    a(f"""
    s_lshl_b32 s42, s43, 5
    s_add_u32 s42, s42, s41                 ; P: t, VM: 32+t
    s_cmp_lt_u32 s43, 2
    s_cbranch_scc1 r_role_done
    s_cmp_ge_u32 s43, 4
    s_cbranch_scc1 r_got4
    s_sub_u32 s43, s43, 2                   ; q = 0,1
    s_mul_i32 s44, s43, 10
    s_add_u32 s42, s41, s44
    s_add_u32 s42, s42, 239                 ; F2: 239 + 10q + t
    s_cmp_lt_u32 s41, 10
    s_cbranch_scc1 r_role_done
    s_mul_i32 s44, s43, 20
    s_add_u32 s42, s41, s44
    s_add_u32 s42, s42, 54                  ; U: 64 + 20q + (t-10)
    s_cmp_lt_u32 s41, 30
    s_cbranch_scc1 r_role_done
    s_lshl_b32 s44, s43, 1
    s_add_u32 s42, s41, s44
    s_add_u32 s42, s42, 174                 ; L: 204 + 2q + (t-30)
    s_branch r_role_done
    """)
    a.label("r_got4")
    a(f"""
    s_sub_u32 s43, s43, 4                   ; q = 0..3
    s_lshl_b32 s44, s43, 3
    s_add_u32 s42, s41, s44
    s_add_u32 s42, s42, 112                 ; T
    s_cmp_lt_u32 s41, 8
    s_cbranch_scc1 r_role_done
    s_add_u32 s42, s42, 24                  ; VO
    s_cmp_lt_u32 s41, 16
    s_cbranch_scc1 r_role_done
    s_add_u32 s42, s43, 208                 ; L: 204 + 4 + q
    s_cmp_eq_u32 s41, 23
    s_cbranch_scc1 r_role_done
    s_lshl_b32 s44, s43, 1
    s_add_u32 s42, s41, s44
    s_add_u32 s42, s42, 160                 ; A
    s_cmp_lt_u32 s41, 18
    s_cbranch_scc1 r_role_done
    s_mul_i32 s44, s43, 5
    s_add_u32 s42, s41, s44
    s_add_u32 s42, s42, 166                 ; C
    s_cmp_lt_u32 s41, 23
    s_cbranch_scc1 r_role_done
    s_mul_i32 s44, s43, 7
    s_add_u32 s42, s41, s44
    s_add_u32 s42, s42, 188                 ; F1: 212 + 7q + (t-24)
    s_cmp_eq_u32 s42, 239
    s_cselect_b32 s42, 264, s42
    s_add_u32 s44, s43, 260
    s_cmp_eq_u32 s41, 31
    s_cselect_b32 s42, s44, s42
    """)
    a.label("r_role_done")
    a(f"""
    v_mov_b32 v10, s42
    ds_write_b32 v9, v10
    s_mov_b64 exec, -1
    s_waitcnt lgkmcnt(0)
    """)
    a("s_branch r_role_wait")
    a.label("r_warm")
    if WARM:
        a(f"""
        s_getpc_b64 s[40:41]
        r_warm_pc:
        s_sub_u32 s40, s40, r_warm_pc-{L}
        s_subb_u32 s41, s41, 0
        s_lshr_b32 s42, s2, 3
        s_mul_i32 s42, s42, 3
        s_add_u32 s42, s42, s{sW}
        s_sub_u32 s42, s42, 1                   ; 0..95
        s_lshl_b32 s42, s42, 10
        v_add_u32 v12, s42, v{vL16}
        v_min_u32 v12, r_code_end-{L}-16, v12
        global_load_dwordx4 v[16:19], v12, s[40:41]
        s_waitcnt vmcnt(0)
        """)
    a.label("r_role_wait")
    a(f"""
    s_barrier
    ds_read_b32 v10, v9
    s_waitcnt lgkmcnt(0)
    v_readfirstlane_b32 s{sID}, v10
    s_mov_b32 s{sSTEP}, 0
    s_mov_b32 s50, 0x3db504f3          ; 128^-0.5
    s_mov_b32 s51, 0x3fb8aa3b          ; log2(e)
    s_mov_b32 s62, s50
    s_mov_b32 s63, s50
    s_mov_b32 s100, 0
    s_mul_i32 s97, s{sID}, {72*32}
    s_add_u32 s97, s97, 0x{WS_TRACE:x}
    s_barrier
    """)
    if STAMP:
        a(f"""
        s_memrealtime s[80:81]
        s_waitcnt lgkmcnt(0)
        v_mov_b32 v3, s80
        buffer_store_dword v3, off, {WS}, s97 offset:{71*32}
        """)
    a(f"""
    s_cmp_lt_u32 s{sID}, 32
    s_cbranch_scc1 role_p
    s_cmp_lt_u32 s{sID}, 64
    s_cbranch_scc1 role_vm
    s_cmp_lt_u32 s{sID}, 112
    s_cbranch_scc1 boot
    s_cmp_lt_u32 s{sID}, 144
    s_cbranch_scc1 role_t
    s_cmp_lt_u32 s{sID}, 176
    s_cbranch_scc1 role_vo
    s_cmp_ge_u32 s{sID}, 265
    s_cbranch_scc1 r_end
    s_branch boot
    boot_done:
    s_cmp_lt_u32 s{sID}, 112
    s_cbranch_scc1 role_u
    {"s_endpgm" if NOTOK else ""}
    s_cmp_lt_u32 s{sID}, 184
    s_cbranch_scc1 role_al
    s_cmp_lt_u32 s{sID}, 204
    s_cbranch_scc1 role_c
    s_cmp_lt_u32 s{sID}, 212
    s_cbranch_scc1 role_al
    s_cmp_lt_u32 s{sID}, 259
    s_cbranch_scc1 role_f
    s_sub_u32 s{sID}, s{sID}, 56            ; 260.. -> 204..
    s_cmp_lt_u32 s{sID}, 209
    s_cbranch_scc1 role_c
    s_endpgm
    """)

    KF, QF, KMF, SA = 72, 104, 120, 136
    X0 = 148
    vTW, vTR, vST, vSM = 8, 9, 12, 13
    sMEM, sPB, sKX, sFT, sSEEN, sNEED = 31, 32, 33, 34, 35, 36
    from gen_boot import dbg_wait_wg, DBG_MOD20
    a.label("role_p")
    MODE2[0] = True
    dstamp(a, 11, 3, f"s_cmp_lg_u32 s{sID}, 0\ns_cbranch_scc1 {{lab}}")
    if PDELAY:
        dbg_wait_wg(a, [(DBG_MOD20, 1)], 3, sleep=10)
    load_wqk(a, depth=PDEPTH)
    setup_qk_lds_addrs(a, vTW, vTR)
    a(f"""
    v_bfe_u32 v10, v{vLANE}, 3, 1           ; b
    v_and_b32 v11, 7, v{vLANE}              ; i
    v_lshrrev_b32 v14, 4, v{vLANE}          ; g
    v_lshlrev_b32 v{vST}, 8, v10
    v_lshl_add_u32 v{vST}, v11, 5, v{vST}
    v_lshl_add_u32 v{vST}, v14, 3, v{vST}
    v_lshlrev_b32 v{vSM}, 3, v11
    v_and_b32 v15, 1, v14
    v_lshl_add_u32 v{vSM}, v15, 2, v{vSM}
    v_lshrrev_b32 v15, 1, v14
    v_lshl_add_u32 v{vSM}, v15, 6, v{vSM}
    v_add_u32 v{vSM}, 512, v{vSM}
    v_mov_b32 v15, 0x7ffffff0
    v_cmp_ne_u32 vcc, 0, v10
    s_mov_b32 s52, 0xff00ff00
    s_mov_b32 s53, 0xff00ff00
    v_cndmask_b32 v{vSM}, v{vSM}, v15, vcc
    s_mov_b32 s54, 0
    s_mov_b32 s55, -1                       ; s[54:55]: lanes g>=2
    s_lshl_b32 s{sKX}, s{sID}, 13
    s_add_u32 s{sKX}, s{sKX}, 0x{WS_KX:x}
    s_lshl_b32 s{sFT}, s{sID}, 7
    s_add_u32 s{sFT}, s{sFT}, 0x{flag(FL_T):x}
    s_mov_b32 s{sSEEN}, 0
    s_mov_b32 s56, 0x{WS_FLAGS:x}
    ; KM store voff: g*128 + (l%8)*16, lanes with b=1 dropped
    v_lshlrev_b32 v189, 7, v14
    v_lshl_add_u32 v189, v11, 4, v189
    v_cndmask_b32 v189, v189, v15, vcc
    s_lshl_b32 s57, s{sID}, 11
    s_add_u32 s57, s57, 0x{WS_KM:x}
    s_lshl_b32 s58, s{sID}, 2
    s_add_u32 s58, s58, s{sW}
    s_lshl_b32 s60, s{sID}, 7
    s_add_u32 s60, s60, 0x{flag(FL_KM):x}
    v_cmp_gt_u32 vcc, 40, v{vLANE}
    v_mov_b32 v180, -1
    v_mov_b32 v181, -1
    v_mov_b32 v182, -1
    v_mov_b32 v183, -1
    v_cndmask_b32 v186, v15, v{vL16}, vcc
    """)
    get_pol(a, X0)
    mem_setup(a)
    a(f"""
    s_add_u32 s59, s{sSB}, 0x{WS_CRB + CRB_DOOR:x}
    s_add_u32 s64, s{sSB}, 0x{WS_CRB:x}
    s_lshr_b32 s40, s{sID}, 3
    s_lshl_b32 s40, s40, 14
    s_and_b32 s41, s{sID}, 7
    s_mul_i32 s41, s41, 640
    s_add_u32 s65, s40, s41
    s_add_u32 s65, s65, s64
    s_add_u32 s65, s65, {4*16384}           ; p base
    s_mov_b32 s61, 0x3e0293ee               ; 128^-0.5 * log2(e)
    """)
    a.label("p_loop")
    stamp(a, 0)
    a(f"""
    s_and_b32 s40, s{sSTEP}, 3
    s_lshl_b32 s40, s40, 17
    s_add_u32 s{sMEM}, s40, s64
    s_add_u32 s{sPB}, s40, s65
    s_xor_b32 s40, s40, 0x40000
    s_add_u32 s66, s40, s65
    s_cmp_lg_u32 s{sW}, 0
    s_cbranch_scc1 p_sync
    s_add_u32 s{sNEED}, s{sSTEP}, 1
    """)
    if P_HOLD:
        a(f"""
        s_cmp_eq_u32 s{sSTEP}, 0
        s_cbranch_scc1 p_nohold
        s_sleep {P_HOLD}
        p_nohold:
        """)
    wait_flag(a, sFT, sNEED, sSEEN, X0)
    for f in range(8):
        r, o = l16(f * 1024)
        a(f"buffer_load_dwordx4 {vr(KF+4*f,4)}, {r}, {WS}, s{sKX} offen offset:{o} sc1")
    a(f"""
    buffer_load_dword v190, off, {WS}, s{sFT} sc1
    s_cmp_eq_u32 s{sSTEP}, 0
    s_cbranch_scc1 p_sync
    s_sleep {P_SLEEP0-P_HOLD}
    """)
    a.label("p_sync")
    a("s_barrier")
    stamp(a, 1)
    def door():
        if not DOOR:
            return
        a(f"""
        s_cmp_lg_u32 s58, 3
        s_cbranch_scc1 p_nodoor
        s_mov_b64 exec, 1
        buffer_store_dword v188, off, {WS}, s59 sc1
        s_mov_b64 exec, -1
        p_nodoor:
        """)
    a(f"""
    s_add_u32 s40, s{sSTEP}, 1
    v_mov_b32 v188, s40
    """)
    qrd = [f"ds_read_b64_tr_b16 {vr(QF+4*k+2*tp,2)}, v{vTR} offset:{k*512+tp*256}" for k in range(4) for tp in range(2)]
    cl = combine_list(0, 1, X0+2, X0+3)
    fl = ["\n".join(cl[0:2]), "\n".join(cl[2:4]), "\n".join(cl[4:6]), "\n".join(cl[6:8]),
          f"ds_write_b64 v{vTW}, {vr(X0+2,2)}", "s_nop 0", "s_nop 0", "s_waitcnt lgkmcnt(0)\ns_barrier",
          "\n".join(qrd[0:2]), "\n".join(qrd[2:4]), "\n".join(qrd[4:6]), "\n".join(qrd[6:8])]
    mem_proj2(a, [[0, 1], [2, 3]], sMEM, X0, after_valid=door, fill={1: fl})
    stamp(a, 2)
    kc = combine_list(2, 3, X0+4, X0+5) + [f"ds_write_b64 v{vTW}, {vr(X0+4,2)} offset:2048"]
    n = 0
    for k in range(4):
        a(f"s_waitcnt lgkmcnt({[6, 4, 3, 1][k]})")
        for mt in range(2):
            acc = vr(SA+4*mt, 4)
            a(f"v_mfma_f32_16x16x32_bf16 {acc}, {vr(KF+(mt*4+k)*4,4)}, {vr(QF+4*k,4)}, {'0' if k==0 else acc}")
            n += 1
            if n == 2:
                a.nop(5)
            if n >= 2:
                for _ in range(3):
                    if kc:
                        a(kc.pop(0))
    assert not kc
    a(f"""
    s_waitcnt lgkmcnt(0)
    s_barrier
    s_cmp_lg_u32 s{sW}, 0
    s_cbranch_scc1 p_other
    """)
    stamp(a, 3)
    for k2 in range(4):
        for tp in range(2):
            a(f"ds_read_b64_tr_b16 {vr(KMF+4*k2+2*tp,2)}, v{vTR} offset:{2048+k2*512+tp*256}")
    T0 = X0 + 8
    M0, TT, S0, MR, XM, FF = X0+6, X0+7, X0+11, X0+5, X0+4, 172

    def mm(k):
        acc = vr(SA+8, 4)
        return f"""s_waitcnt lgkmcnt({6-2*k})
        v_mfma_f32_16x16x32_bf16 {acc}, {vr(KMF+4*k,4)}, {vr(QF+4*k,4)}, {'0' if k==0 else acc}"""
    if NOMIMIC:
        a(f"""
        v_cndmask_b32 v{X0}, v{SA}, v{SA+4}, s[52:53]
        v_cndmask_b32 v{X0+1}, v{SA+1}, v{SA+5}, s[52:53]
        v_cndmask_b32 v{X0+2}, v{SA+2}, v{SA+6}, s[52:53]
        v_cndmask_b32 v{X0+3}, v{SA+3}, v{SA+7}, s[52:53]
        v_max3_f32 v{M0}, v{X0}, v{X0+1}, v{X0+2}
        v_max_f32 v{M0}, v{M0}, v{X0+3}
        {mm(0)}
        v_max_f32_dpp v{M0}, v{M0}, v{M0} row_ror:8 row_mask:0xf bank_mask:0xf
        v_mov_b32 v{TT}, v{M0}
        {mm(1)}
        v_permlane32_swap_b32 v{M0}, v{TT}
        {mm(2)}
        v_max_f32 v{M0}, v{M0}, v{TT}
        {mm(3)}
        s_nop 7
        v_max3_f32 v{M0}, v{M0}, v{SA+8}, v{SA+9}
        v_max3_f32 v{M0}, v{M0}, v{SA+10}, v{SA+11}
        v_mov_b32 v{TT}, v{M0}
        v_cndmask_b32 v{XM}, v{SA+8}, v{SA+9}, s[52:53]
        v_cndmask_b32 v{FF}, v{SA+10}, v{SA+11}, s[52:53]
        v_permlane16_swap_b32 v{M0}, v{TT}
        v_cndmask_b32 v{XM}, v{XM}, v{FF}, s[54:55]
        v_max_f32 v{M0}, v{M0}, v{TT}
        v_mul_f32 v{M0}, s61, v{M0}
        v_fma_f32 v{XM}, v{XM}, s61, -v{M0}
        v_fma_f32 v{X0}, v{X0}, s61, -v{M0}
        v_exp_f32 v{XM}, v{XM}
        v_fma_f32 v{X0+1}, v{X0+1}, s61, -v{M0}
        v_exp_f32 v{X0}, v{X0}
        v_fma_f32 v{X0+2}, v{X0+2}, s61, -v{M0}
        v_exp_f32 v{X0+1}, v{X0+1}
        v_fma_f32 v{X0+3}, v{X0+3}, s61, -v{M0}
        v_exp_f32 v{X0+2}, v{X0+2}
        v_add_f32 v{S0}, v{X0}, v{XM}
        v_exp_f32 v{X0+3}, v{X0+3}
        v_add_f32 v{S0}, v{S0}, v{X0+1}
        v_add_f32 v{S0}, v{S0}, v{X0+2}
        v_add_f32 v{S0}, v{S0}, v{X0+3}
        v_mov_b32_dpp v{MR}, v{XM} row_ror:8 row_mask:0xf bank_mask:0xf
        s_nop 0
        v_add_f32_dpp v{S0}, v{S0}, v{S0} row_ror:8 row_mask:0xf bank_mask:0xf
        v_mov_b32 v{TT}, v{S0}
        s_nop 1
        v_permlane16_swap_b32 v{S0}, v{TT}
        v_add_f32 v{S0}, v{S0}, v{TT}
        v_mov_b32 v{TT}, v{S0}
        s_nop 1
        v_permlane32_swap_b32 v{S0}, v{TT}
        v_add_f32 v{S0}, v{S0}, v{TT}
        v_rcp_f32 v{S0}, v{S0}
        s_nop 0
        v_mul_f32 v{X0}, v{X0}, v{S0}
        v_mul_f32 v{X0+1}, v{X0+1}, v{S0}
        v_mul_f32 v{X0+2}, v{X0+2}, v{S0}
        v_mul_f32 v{X0+3}, v{X0+3}, v{S0}
        v_cvt_pk_bf16_f32 v{T0}, v{X0}, v{X0+1}
        v_cvt_pk_bf16_f32 v{T0+1}, v{X0+2}, v{X0+3}
        v_mul_f32 v{XM}, v{XM}, v{S0}
        v_min_u32 v{T0}, -2, v{T0}
        v_min_u32 v{T0+1}, -2, v{T0+1}
        v_mul_f32 v{MR}, v{MR}, v{S0}
        buffer_store_dwordx2 {vr(T0,2)}, v{vST}, {WS}, s{sPB} offen sc1
        v_cvt_pk_bf16_f32 v{T0+2}, v{XM}, v{MR}
        v_min_u32 v{T0+2}, -2, v{T0+2}
        buffer_store_dword v{T0+2}, v{vSM}, {WS}, s{sPB} offen sc1
        v_readfirstlane_b32 s{sSEEN}, v190
        s_branch p_next
        """)
    else:
        a(f"""
        v_cndmask_b32 v{X0}, v{SA}, v{SA+4}, s[52:53]
        v_cndmask_b32 v{X0+1}, v{SA+1}, v{SA+5}, s[52:53]
        v_cndmask_b32 v{X0+2}, v{SA+2}, v{SA+6}, s[52:53]
        v_cndmask_b32 v{X0+3}, v{SA+3}, v{SA+7}, s[52:53]
        v_cvt_pk_bf16_f32 v{T0}, v{X0}, v{X0+1}
        v_cvt_pk_bf16_f32 v{T0+1}, v{X0+2}, v{X0+3}
        v_lshlrev_b32 v{X0}, 16, v{T0}
        v_and_b32 v{X0+1}, 0xffff0000, v{T0}
        v_lshlrev_b32 v{X0+2}, 16, v{T0+1}
        v_and_b32 v{X0+3}, 0xffff0000, v{T0+1}
        v_pk_mul_f32 v[{X0}:{X0+1}], v[{X0}:{X0+1}], s[62:63]
        v_pk_mul_f32 v[{X0+2}:{X0+3}], v[{X0+2}:{X0+3}], s[62:63]
        v_cvt_pk_bf16_f32 v{T0}, v{X0}, v{X0+1}
        v_cvt_pk_bf16_f32 v{T0+1}, v{X0+2}, v{X0+3}
        {mm(0)}
        v_lshlrev_b32 v{X0}, 16, v{T0}
        v_and_b32 v{X0+1}, 0xffff0000, v{T0}
        {mm(1)}
        v_lshlrev_b32 v{X0+2}, 16, v{T0+1}
        v_and_b32 v{X0+3}, 0xffff0000, v{T0+1}
        {mm(2)}
        v_max3_f32 v{M0}, v{X0}, v{X0+1}, v{X0+2}
        v_max_f32 v{M0}, v{M0}, v{X0+3}
        {mm(3)}
        v_mul_f32 v{X0}, s51, v{X0}
        v_max_f32_dpp v{M0}, v{M0}, v{M0} row_ror:8 row_mask:0xf bank_mask:0xf
        v_mov_b32 v{TT}, v{M0}
        v_mul_f32 v{X0+1}, s51, v{X0+1}
        v_mul_f32 v{X0+2}, s51, v{X0+2}
        v_permlane16_swap_b32 v{M0}, v{TT}
        v_max_f32 v{M0}, v{M0}, v{TT}
        v_mov_b32 v{TT}, v{M0}
        v_mul_f32 v{X0+3}, s51, v{X0+3}
        v_max3_f32 v{MR}, v{SA+8}, v{SA+9}, v{SA+10}
        v_permlane32_swap_b32 v{M0}, v{TT}
        v_max_f32 v{MR}, v{MR}, v{SA+11}
        v_max_f32 v{M0}, v{M0}, v{TT}
        v_mov_b32 v{TT}, v{MR}
        v_cndmask_b32 v{XM}, v{SA+8}, v{SA+9}, s[52:53]
        v_cndmask_b32 v{FF}, v{SA+10}, v{SA+11}, s[52:53]
        v_permlane16_swap_b32 v{MR}, v{TT}
        v_cndmask_b32 v{XM}, v{XM}, v{FF}, s[54:55]
        v_max_f32 v{MR}, v{MR}, v{TT}
        v_mul_f32 v{M0}, s51, v{M0}
        v_cvt_pk_bf16_f32 v{T0+2}, v{XM}, v{MR}
        v_sub_f32 v{X0}, v{X0}, v{M0}
        v_lshlrev_b32 v{XM}, 16, v{T0+2}
        v_and_b32 v{MR}, 0xffff0000, v{T0+2}
        v_sub_f32 v{X0+1}, v{X0+1}, v{M0}
        v_pk_mul_f32 v[{XM}:{MR}], v[{XM}:{MR}], s[62:63]
        v_exp_f32 v{X0}, v{X0}
        v_cvt_pk_bf16_f32 v{T0+2}, v{XM}, v{MR}
        v_exp_f32 v{X0+1}, v{X0+1}
        v_and_b32 v{MR}, 0xffff0000, v{T0+2}
        v_lshlrev_b32 v{XM}, 16, v{T0+2}
        v_mul_f32 v{MR}, s51, v{MR}
        v_mul_f32 v{XM}, s51, v{XM}
        v_max_f32 v{MR}, v{MR}, v{M0}
        v_sub_f32 v{X0+2}, v{X0+2}, v{M0}
        v_sub_f32 v{XM}, v{XM}, v{MR}
        v_sub_f32 v{FF}, v{M0}, v{MR}
        v_exp_f32 v{XM}, v{XM}
        v_sub_f32 v{X0+3}, v{X0+3}, v{M0}
        v_exp_f32 v{FF}, v{FF}
        v_exp_f32 v{X0+2}, v{X0+2}
        v_add_f32 v{S0}, v{X0}, v{X0+1}
        v_exp_f32 v{X0+3}, v{X0+3}
        v_add_f32 v{S0}, v{S0}, v{X0+2}
        v_mov_b32_dpp v{MR}, v{XM} row_ror:8 row_mask:0xf bank_mask:0xf
        v_add_f32 v{S0}, v{S0}, v{X0+3}
        v_fma_f32 v{S0}, v{S0}, v{FF}, v{XM}
        v_mul_f32 v{X0}, v{X0}, v{FF}
        v_mul_f32 v{X0+1}, v{X0+1}, v{FF}
        v_add_f32_dpp v{S0}, v{S0}, v{S0} row_ror:8 row_mask:0xf bank_mask:0xf
        v_mov_b32 v{TT}, v{S0}
        v_mul_f32 v{X0+2}, v{X0+2}, v{FF}
        v_mul_f32 v{X0+3}, v{X0+3}, v{FF}
        v_permlane16_swap_b32 v{S0}, v{TT}
        v_add_f32 v{S0}, v{S0}, v{TT}
        v_mov_b32 v{TT}, v{S0}
        s_nop 1
        v_permlane32_swap_b32 v{S0}, v{TT}
        v_add_f32 v{S0}, v{S0}, v{TT}
        v_rcp_f32 v{S0}, v{S0}
        s_nop 0
        v_mul_f32 v{X0}, v{X0}, v{S0}
        v_mul_f32 v{X0+1}, v{X0+1}, v{S0}
        v_mul_f32 v{X0+2}, v{X0+2}, v{S0}
        v_mul_f32 v{X0+3}, v{X0+3}, v{S0}
        v_cvt_pk_bf16_f32 v{T0}, v{X0}, v{X0+1}
        v_cvt_pk_bf16_f32 v{T0+1}, v{X0+2}, v{X0+3}
        v_mul_f32 v{XM}, v{XM}, v{S0}
        v_min_u32 v{T0}, -2, v{T0}
        v_min_u32 v{T0+1}, -2, v{T0+1}
        v_mul_f32 v{MR}, v{MR}, v{S0}
        buffer_store_dwordx2 {vr(T0,2)}, v{vST}, {WS}, s{sPB} offen sc1
        v_cvt_pk_bf16_f32 v{T0+2}, v{XM}, v{MR}
        v_min_u32 v{T0+2}, -2, v{T0+2}
        buffer_store_dword v{T0+2}, v{vSM}, {WS}, s{sPB} offen sc1
        v_readfirstlane_b32 s{sSEEN}, v190
        s_branch p_next
        """)
    a.label("p_other")
    a(f"""
    s_cmp_lg_u32 s{sW}, 1
    s_cbranch_scc1 p_w23
    """)
    for k in range(4):
        for tp in range(2):
            a(f"ds_read_b64_tr_b16 {vr(KMF+4*k+2*tp,2)}, v{vTR} offset:{2048+k*512+tp*256}")
    a("s_waitcnt lgkmcnt(0)")
    for r in range(16):
        a(f"v_min_u32 v{KMF+r}, -2, v{KMF+r}")
    for k in range(4):
        a(f"buffer_store_dwordx4 {vr(KMF+4*k,4)}, v189, {WS}, s57 offen offset:{k*512} sc1")
    a(f"""
    s_waitcnt vmcnt(0)
    s_mov_b64 exec, 1
    buffer_store_dword v188, off, {WS}, s60 sc1
    s_mov_b64 exec, -1
    s_branch p_next
    """)
    a.label("p_w23")
    a(f"""
    s_cmp_lg_u32 s{sW}, 2
    s_cbranch_scc1 p_next
    buffer_store_dwordx4 v[180:183], v186, {WS}, s66 offen sc1
    s_cmp_lg_u32 s{sID}, 0
    s_cbranch_scc1 p_next
    s_add_u32 s40, s{sSTEP}, 1
    v_mov_b32 v{X0}, s40
    s_mov_b64 exec, 1
    buffer_store_dword v{X0}, off, {WS}, s56 sc1
    s_mov_b64 exec, -1
    """)
    a.label("p_next")
    dstamp(a, 12, 191, f"s_cmp_lg_u32 s{sID}, 0\ns_cbranch_scc1 {{lab}}\ns_cmp_lg_u32 s{sSTEP}, 1\ns_cbranch_scc1 {{lab}}")
    dstamp(a, 13, 191, f"s_cmp_lg_u32 s{sID}, 0\ns_cbranch_scc1 {{lab}}\ns_cmp_lg_u32 s{sSTEP}, 63\ns_cbranch_scc1 {{lab}}")
    dstamp(a, 15, 191, f"s_cmp_lg_u32 s{sID}, 0\ns_cbranch_scc1 {{lab}}\ns_cmp_lg_u32 s{sSTEP}, 11\ns_cbranch_scc1 {{lab}}")
    stamp(a, 4)
    stamp_flush(a, 5, 191)
    a(f"""
    s_add_u32 s{sKX}, s{sKX}, {32*8192}
    s_add_u32 s57, s57, {32*2048}
    s_add_u32 s{sSTEP}, s{sSTEP}, 1
    s_cmp_lt_u32 s{sSTEP}, 64
    s_cbranch_scc1 p_loop
    s_endpgm
    """)
    flush_deferred(a)

    AF, AC3, PKM = 72, 80, 120
    a.label("role_vm")
    a(f"""
    s_sub_u32 s{sID}, s{sID}, 32
    s_load_dwordx4 s[64:67], s[0:1], {KA_WV}
    s_waitcnt lgkmcnt(0)
    """)
    srd(a, 16, 64, D * H * E * 2)
    srd(a, 20, 66, D * H * E * 2)
    if PDELAY:
        dbg_wait_wg(a, [(DBG_MOD20, 1)], 3, sleep=10)
    load_wqk(a, (WQ,))
    load_wo(a, WK)
    setup_qk_lds_addrs(a, vTW, vTR)
    a(f"""
    ; sparse-A transposing read: e0 = 32(gA/2) + 16(r/2) + 8(gA%2) + 2(c/2) + (r%2)
    v_lshrrev_b32 v10, 5, v{vLANE}
    v_lshlrev_b32 v10, 5, v10
    v_bfe_u32 v11, v{vLANE}, 3, 1
    v_lshl_add_u32 v10, v11, 4, v10
    v_bfe_u32 v11, v{vLANE}, 4, 1
    v_lshl_add_u32 v10, v11, 3, v10
    v_bfe_u32 v11, v{vLANE}, 1, 1
    v_lshl_add_u32 v10, v11, 1, v10
    v_bfe_u32 v11, v{vLANE}, 2, 1
    v_add_u32 v10, v10, v11
    v_lshlrev_b32 v10, 4, v10
    v_and_b32 v11, 1, v{vLANE}
    v_lshl_add_u32 v10, v11, 3, v10
    v_add_u32 v{vTR}, 0x{LDS_T:x}, v10
    v_lshlrev_b32 v12, 3, v{vLANE}
    v_and_b32 v13, 31, v{vLANE}
    v_lshlrev_b32 v13, 3, v13
    v_lshrrev_b32 v10, 5, v{vLANE}
    v_lshl_add_u32 v13, v10, 14, v13
    v_mov_b32 v132, -1
    v_mov_b32 v133, -1
    v_mov_b32 v134, 0
    s_mul_i32 s57, s{sID}, 10240
    s_mul_i32 s40, s{sW}, 2560
    s_add_u32 s57, s57, s40
    s_add_u32 s57, s57, 0x{WS_UMC:x}
    s_lshl_b32 s61, s{sID}, 7
    s_lshl_b32 s40, s{sW}, 2
    s_add_u32 s61, s61, s40
    s_add_u32 s61, s61, 0x{flag(FL_UF):x}
    """)
    get_pol(a, 135)
    mem_setup(a)
    a(f"""
    s_add_u32 s64, s{sSB}, 0x{WS_CRB + 32768:x}
    s_mul_i32 s65, s{sW}, {10*16384}
    s_lshl_b32 s40, s{sID}, 8
    s_add_u32 s65, s65, s40
    s_add_u32 s65, s65, s{sSA}
    s_add_u32 s65, s65, 0x{WS_CRA:x}
    s_mov_b32 s66, 0
    s_mov_b32 s67, {2*CRA_SLOT}
    """)
    a.label("vm_loop")
    stamp(a, 0)
    for r in range(40):
        a(f"v_mov_b32 v{AC3+r}, 0")
    a(f"""
    s_and_b32 s40, s{sSTEP}, 3
    s_lshl_b32 s40, s40, 17
    s_add_u32 s{sMEM}, s40, s64
    s_add_u32 s58, s65, s66
    s_cmp_eq_u32 s{sSTEP}, 0
    s_cbranch_scc1 vm_sync
    s_sleep {V_SLEEP}
    vm_sync:
    s_barrier
    """)
    stamp(a, 1)
    def vm_flag():
        if V_LAZY:
            a(f"""
            s_mov_b64 exec, 1
            buffer_store_dword v134, off, {WS}, s61 sc1
            s_mov_b64 exec, -1
            """)
    mem_proj2(a, [[0, 1]], sMEM, 135, after_valid=vm_flag)
    stamp(a, 2)
    a.nop(8)
    combine_pair(a, 0, 1, 136, 137)
    a(f"""
    ds_write_b64 v{vTW}, v[136:137]
    s_waitcnt lgkmcnt(0)
    s_barrier
    """)
    for kb in range(2):
        for n in range(2):
            a(f"ds_read_b64_tr_b16 {vr(AF+4*kb+2*n,2)}, v{vTR} offset:{(64*kb+4*n)*16}")
    stamp(a, 3)

    def vm_pack(p):
        A, B = AC3 + 8*p, AC3 + 8*p + 4
        L = [f"v_permlane32_swap_b32 v{A+r}, v{B+r}" for r in range(4)]
        if PKADD:
            L += [f"v_pk_add_f32 v[{A+r}:{A+r+1}], v[{A+r}:{A+r+1}], v[{B+r}:{B+r+1}]" for r in (0, 2)]
        else:
            L += [f"v_add_f32 v{A+r}, v{A+r}, v{B+r}" for r in range(4)]
        L += [f"v_cvt_pk_bf16_f32 v{PKM+2*p}, v{A}, v{A+1}", f"v_cvt_pk_bf16_f32 v{PKM+2*p+1}, v{A+2}, v{A+3}",
              f"buffer_store_dwordx2 {vr(PKM+2*p,2)}, v13, {WS}, s{68+p} offen sc1"]
        return L
    for p in range(5):
        a(f"s_add_u32 s{68+p}, s58, {p*32768}")
    a("s_waitcnt lgkmcnt(0)")
    pend = []
    slot = 0
    last_mf = {}
    for p in range(5):
        for kb in range(2):
            for jj in range(2):
                jt = 2*p + jj
                a(f"v_smfmac_f32_16x16x64_bf16 {vr(AC3+4*jt,4)}, {vr(AF+4*kb,4)}, {widx(160+(jt*4+2*kb)*4,8)}, v{vIDX}")
                slot += 1
                rdy = slot + 8
                n = 0
                if pend and slot < pend[0][0]:
                    k = min(2, pend[0][0] - slot)
                    a.nop(k)
                    slot += k
                    n = 2
                while pend and pend[0][0] <= slot and n < VM_FILL:
                    a(pend.pop(0)[1])
                    slot += 1
                    n += 1
        for x in vm_pack(p):
            pend.append((rdy, x))
    while pend:
        if pend[0][0] > slot:
            a.nop(pend[0][0] - slot)
            slot = pend[0][0]
        a(pend.pop(0)[1])
        slot += 1
    stamp(a, 4)
    if V_HOLD:
        a(f"""
        s_cmp_eq_u32 s{sSTEP}, 63
        s_cbranch_scc1 vm_nohold
        s_sleep {V_HOLD}
        vm_nohold:
        """)
    for p in range(5):
        a(f"buffer_store_dwordx2 {vr(PKM+2*p,2)}, v12, {WS}, s57 offen offset:{p*512} sc1")
    a("s_add_u32 s40, s65, s67")
    for p in range(5):
        a(f"buffer_store_dwordx2 v[132:133], v13, {WS}, s40 offen sc1")
        a("s_add_u32 s40, s40, 32768")
    a(f"""
    s_add_u32 s57, s57, {UM_STEP}
    s_mov_b32 s67, s66
    s_add_u32 s66, s66, {CRA_SLOT}
    s_cmp_ge_u32 s66, {3*CRA_SLOT}
    s_cselect_b32 s66, 0, s66
    s_add_u32 s40, s{sSTEP}, 1
    v_mov_b32 v134, s40
    """)
    if not V_LAZY:
        a(f"""
        s_waitcnt vmcnt(5)
        s_mov_b64 exec, 1
        buffer_store_dword v134, off, {WS}, s61 sc1
        s_mov_b64 exec, -1
        """)
    stamp_flush(a, 5, 191)
    a(f"""
    s_add_u32 s{sSTEP}, s{sSTEP}, 1
    s_cmp_lt_u32 s{sSTEP}, 64
    s_cbranch_scc1 vm_loop
    s_waitcnt vmcnt(0)
    s_mov_b64 exec, 1
    buffer_store_dword v134, off, {WS}, s61 sc1
    s_endpgm
    """)
    flush_deferred(a)

    TX, BX, PF, BM, CA = 16, 48, 80, 104, 112
    vPA, vPB, vWr, vRd, vUM = 8, 9, 12, 13, 140
    sUX = 33
    a.label("role_u")
    MODE2[0] = False
    a(f"s_sub_u32 s{sID}, s{sID}, 64")
    setup_p_load_addrs(a, vPA, vPB, vUM, 16384, 256)
    a(f"""
    s_lshl_b32 s40, s{sW}, 9
    v_lshlrev_b32 v{vWr}, 3, v{vLANE}
    v_add_u32 v{vWr}, s40, v{vWr}
    ; final lane l: c8 = l/32, i = (l/4)%8, cp = l%4 ; src lane' = (r&1)*32 + (i/4)*16 + 8c8 + 2cp ; comp = r>>1
    v_bfe_u32 v10, v{vLANE}, 2, 1           ; r&1
    v_lshlrev_b32 v10, 5, v10
    v_bfe_u32 v11, v{vLANE}, 4, 1           ; i/4
    v_lshl_add_u32 v10, v11, 4, v10
    v_lshrrev_b32 v11, 5, v{vLANE}
    v_lshl_add_u32 v10, v11, 3, v10
    v_and_b32 v11, 3, v{vLANE}
    v_lshl_add_u32 v10, v11, 1, v10
    v_lshlrev_b32 v10, 3, v10
    v_bfe_u32 v11, v{vLANE}, 3, 1           ; r>>1
    v_lshl_add_u32 v{vRd}, v11, 2, v10
    v_add_u32 v14, 1024, v{vRd}
    v_lshlrev_b32 v15, 2, v{vLANE}
    v_lshlrev_b32 v133, 7, v{vLANE}
    v_mov_b32 v123, 0
    s_mul_i32 s{sUX}, s{sW}, {8*40960}
    s_lshl_b32 s40, s{sID}, 10
    s_add_u32 s{sUX}, s{sUX}, s40
    s_add_u32 s{sUX}, s{sUX}, 0x{WS_UX:x}
    s_lshl_b32 s{sFT}, s{sW}, 10
    s_add_u32 s{sFT}, s{sFT}, 0x{flag(FL_VO):x}
    v_mov_b32 v134, -1
    """)
    get_pol(a, 135)
    a(f"""
    s_add_u32 s60, s{sSB}, 0x{WS_CRB + CRB_DOOR:x}
    s_add_u32 s64, s{sSB}, 0x{WS_CRB + 4*16384:x}   ; p base
    s_lshl_b32 s65, s{sID}, 8
    s_cmp_ge_u32 s{sID}, 32
    s_cselect_b32 s40, 8192, 0
    s_add_u32 s65, s65, s40
    s_add_u32 s65, s65, s{sSB}
    s_add_u32 s65, s65, 0x{WS_CRB:x}
    s_lshl_b32 s57, s{sID}, 14
    s_add_u32 s57, s57, s{sSA}
    s_add_u32 s57, s57, 0x{WS_CRA:x}
    s_mov_b32 s66, 0
    """)
    a.label("u_loop")
    stamp(a, 0)
    a(f"""
    s_and_b32 s40, s{sSTEP}, 3
    s_lshl_b32 s40, s40, 17
    s_add_u32 s{sPB}, s40, s64
    s_xor_b32 s41, s40, 0x40000
    s_add_u32 s41, s41, s65
    s_add_u32 s40, s{sSTEP}, 1
    s_and_b32 s40, s40, 3
    s_lshl_b32 s40, s40, 17
    s_add_u32 s{sMEM}, s40, s65
    s_cmp_lg_u32 s{sW}, 1
    s_cbranch_scc1 u_noarm
    buffer_store_dword v134, v15, {WS}, s41 offen sc1
    s_add_u32 s41, s41, 32768
    buffer_store_dword v134, v15, {WS}, s41 offen sc1
    u_noarm:
    """)
    a(f"""
    s_add_u32 s{sNEED}, s{sSTEP}, 1
    s_mov_b64 exec, 255
    v_cmp_gt_u32 vcc, s{sNEED}, v123
    s_mov_b64 exec, -1
    s_cbranch_vccz u_vok
    """)
    wait_all(a, 8, 133, sFT, sNEED, 123)
    a.label("u_vok")
    if U_HOLD:
        a(f"""
        s_cmp_eq_u32 s{sW}, 0
        s_cbranch_scc1 u_nohold
        s_cmp_eq_u32 s{sSTEP}, 0
        s_cbranch_scc1 u_nohold
        s_sleep {U_HOLD}
        u_nohold:
        """)
    a(f"s_mov_b32 s40, s{sUX}")
    for hh in range(8):
        a(f"buffer_load_dwordx4 {vr(TX+4*hh,4)}, v{vL16}, {WS}, s40 offen sc1")
        a(f"s_add_u32 s40, s40, 40960")
    a(f"""
    s_mov_b64 exec, 255
    buffer_load_dword v123, v133, {WS}, s{sFT} offen sc1
    s_mov_b64 exec, -1
    s_add_u32 s58, s57, s66
    s_add_u32 s66, s66, {CRA_SLOT}
    s_cmp_ge_u32 s66, {3*CRA_SLOT}
    s_cselect_b32 s66, 0, s66
    s_waitcnt vmcnt(0)
    """)
    for hh in range(8):
        for d in range(4):
            a(f"v_mov_b32 v{BX + 8*(hh//2) + 2*d + hh%2}, v{TX+4*hh+d}")
    stamp(a, 1)
    a(f"""
    s_cmp_lg_u32 s{sW}, 0
    s_cbranch_scc1 u_dsync
    """)
    for k in range(3):
        a(f"buffer_load_dword v{124+k}, off, {WS}, s60 sc1")
        a(f"s_sleep 1")
    a.label("u_dspin")
    for k in range(4):
        a(f"""
        buffer_load_dword v{124+(k+3)%4}, off, {WS}, s60 sc1
        s_waitcnt vmcnt(3)
        v_cmp_le_u32 vcc, s{sNEED}, v{124+k}
        s_cbranch_vccnz u_ddone
        s_nop 7
        """)
    a(f"""
    s_sub_u32 s{sBUD}, s{sBUD}, 1
    s_cmp_ge_i32 s{sBUD}, 0
    s_cbranch_scc1 u_dspin
    """)
    a.label("u_ddone")
    stamp(a, 2)
    a(f"s_sleep {U_SLEEPD}")
    a.label("u_dsync")
    a("s_barrier")
    stamp(a, 3)
    def u_mloads():
        for k in range(2):
            a(f"buffer_load_dwordx2 {vr(PF+16+2*k,2)}, v{vPB}, {WS}, s{sPB} offen offset:{k*1280} sc1")
        for j in range(4):
            a(f"buffer_load_dwordx2 {vr(BM+2*j,2)}, v{vUM}, {WS}, s58 offen offset:{j*512} sc1")
    a.label("u_ppoll")
    for q in range(4):
        a(f"buffer_load_dwordx4 {vr(PF+4*q,4)}, v{vPA}, {WS}, s{sPB} offen offset:{q*1280} sc1")
    u_mloads()
    for r in range(4):
        a(f"v_mov_b32 v{CA+r}, 0")
    a("v_mov_b32 v122, 0")
    for q in range(4):
        f = PF + 4*q
        a(f"s_waitcnt vmcnt({9-q})")
        a(f"v_smfmac_f32_16x16x64_bf16 {vr(CA,4)}, {vr(f,4)}, {vr(BX+8*q,8)}, v{vIDX}")
        a(f"v_max3_u32 v122, v122, v{f}, v{f+1}")
        a(f"v_max3_u32 v122, v122, v{f+2}, v{f+3}")
    a("v_cmp_eq_u32 vcc, -1, v122")
    poll_fail(a, "u_ppoll", sleep=1)
    a.label("u_mchk")
    a(f"""
    s_waitcnt vmcnt(4)
    v_swap_b32 v{PF+17}, v{PF+18}
    v_max3_u32 v122, v{PF+16}, v{PF+17}, v{PF+18}
    v_max_u32 v122, v122, v{PF+19}
    s_waitcnt vmcnt(2)
    v_max3_u32 v122, v122, v{BM}, v{BM+1}
    v_max3_u32 v122, v122, v{BM+2}, v{BM+3}
    s_waitcnt vmcnt(0)
    v_max3_u32 v122, v122, v{BM+4}, v{BM+5}
    v_max3_u32 v122, v122, v{BM+6}, v{BM+7}
    v_cmp_eq_u32 vcc, -1, v122
    s_cbranch_vccnz u_mretry
    u_mok:
    v_smfmac_f32_16x16x64_bf16 {vr(CA,4)}, {vr(PF+16,4)}, {vr(BM,8)}, v{vIDX}
    """)

    def u_ool():
        a.label("u_mretry")
        a(f"""
        s_sub_u32 s{sBUD}, s{sBUD}, 1
        s_cmp_lt_i32 s{sBUD}, 0
        s_cbranch_scc1 u_mok
        """)
        u_mloads()
        a("s_branch u_mchk")
    DEFERRED.append(u_ool)
    a.nop(2)
    stamp(a, 4)
    a.nop(6)
    a(f"""
    v_permlane32_swap_b32 v{CA}, v{CA+1}
    v_permlane32_swap_b32 v{CA+2}, v{CA+3}
    v_add_f32 v{CA}, v{CA}, v{CA+1}
    v_add_f32 v{CA+1}, v{CA+2}, v{CA+3}
    ds_write_b64 v{vWr}, {vr(CA,2)}
    s_waitcnt lgkmcnt(0)
    s_barrier
    s_cmp_lg_u32 s{sW}, 0
    s_cbranch_scc1 u_next
    ds_read2_b32 v[124:125], v{vRd} offset0:0 offset1:2
    ds_read2_b32 v[126:127], v{vRd} offset0:128 offset1:130
    ds_read2_b32 v[128:129], v14 offset0:0 offset1:2
    ds_read2_b32 v[130:131], v14 offset0:128 offset1:130
    s_add_u32 s40, s{sMEM}, 32768
    s_waitcnt lgkmcnt(2)
    v_add_f32 v124, v124, v126
    v_add_f32 v125, v125, v127
    s_waitcnt lgkmcnt(0)
    v_add_f32 v128, v128, v130
    v_add_f32 v129, v129, v131
    v_add_f32 v124, v124, v128
    v_add_f32 v125, v125, v129
    v_cvt_pk_bf16_f32 v124, v124, v125
    v_min_u32 v124, -2, v124
    buffer_store_dword v124, v15, {WS}, {"s40" if VMFIRST else "s"+str(sMEM)} offen sc1
    buffer_store_dword v124, v15, {WS}, {"s"+str(sMEM) if VMFIRST else "s40"} offen sc1
    """)
    a.label("u_next")
    stamp(a, 5)
    stamp_flush(a, 6, 191)
    a(f"""
    s_add_u32 s{sUX}, s{sUX}, {UX_STEP}
    s_add_u32 s{sSTEP}, s{sSTEP}, 1
    s_cmp_lt_u32 s{sSTEP}, 63
    s_cbranch_scc1 u_loop
    s_endpgm
    """)
    flush_deferred(a)

    vH = 14
    sHOFF, sHBUF, sOUT, sFM = 37, 38, 39, 56

    def publish(role, sval, wv=3):
        lab = a.newlabel("pub")
        a(f"""
        s_cmp_lg_u32 s{sW}, {wv}
        s_cbranch_scc1 {lab}
        v_mov_b32 v3, {sval}
        s_mov_b64 exec, 1
        buffer_store_dword v3, off, {WS}, s{sFT} sc1
        s_mov_b64 exec, -1
        {lab}:
        """)

    from gen_boot import dbg_wait_wg, DBG_INIT, DBG_LN, N_INITW

    def ln_ready():
        top, done = a.newlabel("lr"), a.newlabel("lrd")
        a(f"""
        s_add_u32 s45, s{sSTEP}, 1
        s_and_b32 s46, s45, 7
        s_cmp_lg_u32 s46, 0
        s_cbranch_scc1 {done}
        s_cmp_ge_u32 s45, 64
        s_cbranch_scc1 {done}
        s_lshr_b32 s45, s45, 1
        {top}:
        buffer_load_dword v3, off, {DBG}, s45 offset:{DBG_LN} sc1
        s_waitcnt vmcnt(0)
        v_readfirstlane_b32 s44, v3
        s_sub_u32 s{sBUD}, s{sBUD}, 1
        s_cmp_lt_i32 s{sBUD}, 0
        s_cbranch_scc1 {done}
        s_cmp_ge_u32 s44, 1
        s_cbranch_scc1 {done}
        s_sleep 4
        s_branch {top}
        {done}:
        """)

    def loop_top():
        a(f"""
        v_add_u32 v{vH}, s{sHBUF}, v{vL16}
        s_sub_u32 s{sHBUF}, 40960, s{sHBUF}
        s_add_u32 s{sHOFF}, s{sHOFF}, 40960
        """)
        ln_ready()
        dmal_init(a, sHOFF, sHBUF)

    a.label("role_t")
    a(f"""
    s_sub_u32 s{sID}, s{sID}, 112
    s_mov_b32 s{sHOFF}, 0x{WS_H1F:x}
    s_mov_b32 s{sHBUF}, 0
    """)
    load_wqk(a, depth=TDEPTH)
    dbg_wait_wg(a, [(DBG_INIT, 1), (DBG_LN, 1)], 3)
    dmal_init(a, sHOFF, sHBUF)
    for k in range(10):
        dmal_one(a)
    a(f"""
    s_lshl_b32 s{sOUT}, s{sID}, 13
    s_lshl_b32 s40, s{sW}, 10
    s_add_u32 s{sOUT}, s{sOUT}, s40
    s_add_u32 s{sOUT}, s{sOUT}, 0x{WS_KX:x}
    s_lshl_b32 s{sFT}, s{sID}, 7
    s_add_u32 s{sFT}, s{sFT}, 0x{flag(FL_T):x}
    s_waitcnt vmcnt(0)
    s_barrier
    """)
    a.label("t_loop")
    stamp(a, 0)
    loop_top()
    DMK = [0, 1, 3, 4, 6, 7, 9, 10, 12, 13]

    def hook_t(ks):
        if ks in DMK:
            dmal_one(a)
        if ks == 5:
            a("s_waitcnt vmcnt(4)")
            a("s_barrier")
            publish("t", f"s{sSTEP}")
    dense_proj(a, vH, True, hook_t)
    stamp(a, 1)
    a.nop(4)
    PK = 128
    a(f"s_add_u32 s40, s{sOUT}, 0x{WS_QX-WS_KX:x}")
    for mat in (0, 1):
        for mt in range(2):
            tm = PK + (mat*2+mt) * 4
            for tt in range(2):
                b = TACC + ((mat*2+tt)*2 + mt) * 4
                a(f"v_cvt_pk_bf16_f32 v{tm+2*tt}, v{b}, v{b+1}")
                a(f"v_cvt_pk_bf16_f32 v{tm+2*tt+1}, v{b+2}, v{b+3}")
    a("s_waitcnt vmcnt(0)")
    for mat in (1, 0):
        for mt in range(2):
            tm = PK + (mat*2+mt) * 4
            so = "s40" if mat == 0 else f"s{sOUT}"
            a(f"buffer_store_dwordx4 {vr(tm,4)}, v{vL16+mt}, {WS}, {so} offen sc1")
    a(f"""
    s_add_u32 s{sOUT}, s{sOUT}, {32*8192}
    s_cmp_lg_u32 s{sSTEP}, 0
    s_cbranch_scc1 t_ne
    s_waitcnt vmcnt(0)
    s_barrier
    """)
    publish("t", "1")
    a("t_ne:")
    a("s_barrier")
    stamp(a, 2)
    stamp_flush(a, 3, 1)
    a(f"""
    s_add_u32 s{sSTEP}, s{sSTEP}, 1
    s_cmp_lt_u32 s{sSTEP}, 64
    s_cbranch_scc1 t_loop
    s_waitcnt vmcnt(0)
    s_barrier
    """)
    publish("t", f"s{sSTEP}")
    a(f"""
    {"s_endpgm" if NOTOK else ""}
    s_mov_b32 s{sSTEP}, 0
    s_add_u32 s97, s97, {300*72*32}
    s_cmp_ge_u32 s{sID}, {NC}
    s_cbranch_scc1 t_f1
    s_add_u32 s{sID}, s{sID}, {184+NC}
    s_branch role_c
    t_f1:
    s_cmp_ge_u32 s{sID}, {NC+3}
    s_cbranch_scc1 r_end
    s_add_u32 s{sID}, s{sID}, {212+24-NC}   ; F1 slices 24..26
    s_mov_b32 s100, {F1S+1}
    s_branch role_f
    """)

    VF, AC2 = 16, 128
    LDS_V = LDS_T
    a.label("role_vo")
    a(f"""
    s_sub_u32 s{sID}, s{sID}, 144
    s_load_dwordx4 s[64:67], s[0:1], {KA_WV}
    s_mov_b32 s{sHOFF}, 0x{WS_H1F:x}
    s_mov_b32 s{sHBUF}, 0
    s_waitcnt lgkmcnt(0)
    """)
    srd(a, 16, 64, D * H * E * 2)
    srd(a, 20, 66, D * H * E * 2)
    load_wqk(a, (WQ,))
    load_wo(a, WK)
    dbg_wait_wg(a, [(DBG_INIT, 1), (DBG_LN, 1)], 3)
    dmal_init(a, sHOFF, sHBUF)
    for k in range(10):
        dmal_one(a)
    a(f"""
    s_mul_i32 s{sOUT}, s{sID}, 40960
    s_mul_i32 s40, s{sW}, 10240
    s_add_u32 s{sOUT}, s{sOUT}, s40
    s_add_u32 s{sOUT}, s{sOUT}, 0x{WS_UX:x}
    s_lshl_b32 s{sFT}, s{sID}, 7
    s_add_u32 s{sFT}, s{sFT}, 0x{flag(FL_VO):x}
    s_lshl_b32 s40, s{sW}, 10
    s_add_u32 s40, s40, 0x{LDS_V:x}
    v_add_u32 v12, s40, v{vL16}
    v_add_u32 v13, 0x{LDS_V:x}, v{vL16}
    s_waitcnt vmcnt(0)
    s_barrier
    """)
    a.label("vo_loop")
    stamp(a, 0)
    loop_top()

    def hook_v(ks):
        if ks % 2 == 0:
            dmal_one(a)
    dense_proj(a, vH, True, hook_v, tiles=(0, 1))
    a.nop(6)
    for mt in range(2):
        for tt in range(2):
            b = TACC + (tt*2 + mt) * 4
            a(f"v_cvt_pk_bf16_f32 v{168+4*mt+2*tt}, v{b}, v{b+1}")
            a(f"v_cvt_pk_bf16_f32 v{168+4*mt+2*tt+1}, v{b+2}, v{b+3}")
        a(f"ds_write_b128 v12, {vr(168+4*mt,4)} offset:{mt*4096}")
    a(f"""
    s_waitcnt vmcnt(10) lgkmcnt(0)
    s_barrier
    """)
    stamp(a, 1)
    for k in range(4):
        for mt in range(2):
            a(f"ds_read_b128 {vr(VF+(mt*4+k)*4,4)}, v13 offset:{mt*4096+k*1024}")
    publish("vo", f"s{sSTEP}")
    for hb in range(2):
        for k in range(4):
            if hb == 0:
                a(f"s_waitcnt lgkmcnt({6-2*k})")
            for j5 in range(5):
                for mt in range(2):
                    acc = vr(AC2 + (j5*2+mt)*4, 4) if hb == 0 else vr(TACC + (j5*2+mt)*4, 4)
                    a(f"v_mfma_f32_16x16x32_bf16 {acc}, {vr(VF+(mt*4+k)*4,4)}, {widx(160+((hb*5+j5)*4+k)*4)}, {'0' if k == 0 else acc}")
                if hb == 1 and k < 3 and j5 < 2 and (k*2+j5) < 5:
                    q = k*2 + j5
                    tm = 168 + (q % 2) * 4
                    for mt in range(2):
                        b = AC2 + (q*2+mt)*4
                        a(f"v_cvt_pk_bf16_f32 v{tm+2*mt}, v{b}, v{b+1}")
                        a(f"v_cvt_pk_bf16_f32 v{tm+2*mt+1}, v{b+2}, v{b+3}")
                    r, o = l16(q * 1024)
                    a(f"buffer_store_dwordx4 {vr(tm,4)}, {r}, {WS}, s{sOUT} offen offset:{o} sc1")
    for q in range(5):
        tm = 176 + (q % 2) * 4
        for mt in range(2):
            b = TACC + (q*2+mt)*4
            a(f"v_cvt_pk_bf16_f32 v{tm+2*mt}, v{b}, v{b+1}")
            a(f"v_cvt_pk_bf16_f32 v{tm+2*mt+1}, v{b+2}, v{b+3}")
        r, o = l16((5+q) * 1024)
        a(f"buffer_store_dwordx4 {vr(tm,4)}, {r}, {WS}, s{sOUT} offen offset:{o} sc1")
    a(f"""
    s_add_u32 s{sOUT}, s{sOUT}, {UX_STEP}
    s_cmp_lg_u32 s{sSTEP}, 0
    s_cbranch_scc1 vo_ne
    s_waitcnt vmcnt(0)
    s_barrier
    """)
    publish("vo", "1")
    a(f"""
    vo_ne:
    s_waitcnt vmcnt(10)
    s_barrier
    """)
    stamp(a, 2)
    stamp_flush(a, 3, 1)
    a(f"""
    s_add_u32 s{sSTEP}, s{sSTEP}, 1
    s_cmp_lt_u32 s{sSTEP}, 64
    s_cbranch_scc1 vo_loop
    s_waitcnt vmcnt(0)
    s_barrier
    """)
    publish("vo", f"s{sSTEP}")
    a(f"""
    {"s_endpgm" if NOTOK else ""}
    s_mov_b32 s{sSTEP}, 0
    s_add_u32 s97, s97, {300*72*32}
    s_mov_b32 s100, {SENT0+1}
    s_cmp_ge_u32 s{sID}, 24
    s_cbranch_scc1 vo_a
    s_add_u32 s{sID}, s{sID}, 212           ; F1 slices 0..23
    s_mov_b32 s100, {F1S+1}
    s_branch role_f
    vo_a:
    s_add_u32 s{sID}, s{sID}, {176-24}
    s_branch role_a
    """)

    KF2, QF2, KMF2, SA2, Y0 = 16, 48, 80, 96, 120
    sKXR, sKM = 33, 57
    a.label("role_al")
    a(f"""
    s_sub_u32 s40, s{sID}, 176
    s_sub_u32 s41, s{sID}, 196
    s_cmp_lt_u32 s{sID}, 184
    s_cselect_b32 s40, s40, s41             ; 0..15
    s_lshl_b32 s40, s40, 1
    s_and_b32 s41, s{sW}, 1
    s_add_u32 s{sID}, s40, s41
    s_cmp_ge_u32 s{sW}, 2
    s_cbranch_scc1 role_l
    s_branch role_a2
    """)
    a.label("role_a")
    a(f"""
    s_sub_u32 s{sID}, s{sID}, 176
    s_lshl_b32 s{sID}, s{sID}, 2
    s_add_u32 s{sID}, s{sID}, s{sW}         ; head
    role_a2:
    v_bfe_u32 v10, v{vLANE}, 3, 1           ; b
    v_and_b32 v11, 7, v{vLANE}              ; i
    v_lshrrev_b32 v15, 4, v{vLANE}          ; g
    v_lshlrev_b32 v8, 7, v15
    v_lshl_add_u32 v8, v11, 4, v8
    v_mul_u32_u24 v10, {PB_RG}, v10
    v_lshl_add_u32 v{vST}, v11, 4, v10      ; + i*16
    v_and_b32 v11, 1, v15
    v_lshl_add_u32 v{vST}, v11, 3, v{vST}   ; + (g&1)*8
    v_lshrrev_b32 v11, 1, v15
    v_lshl_add_u32 v{vSM}, v11, 7, v{vST}
    v_lshl_add_u32 v{vST}, v11, 8, v{vST}
    v_and_b32 v10, 15, v{vLANE}
    v_lshlrev_b32 v11, 2, v15               ; 4g
    """)
    for r in range(4):
        a(f"v_add_u32 v15, {r}, v11")
        a(f"v_cmp_le_u32 s[{64+r*2}:{65+r*2}], v15, v10")
    a(f"""
    s_mov_b32 s54, 0
    s_mov_b32 s55, -1
    s_lshl_b32 s{sPB}, s{sID}, 9
    s_add_u32 s{sPB}, s{sPB}, 0x{WS_PT:x}
    ; mem part offset relative to token part: 16384 + (2(h/4) + h%2)*256 + ((h>>1)&1)*4 - h*512
    s_lshr_b32 s40, s{sID}, 2
    s_lshl_b32 s40, s40, 1
    s_and_b32 s41, s{sID}, 1
    s_add_u32 s40, s40, s41
    s_lshl_b32 s40, s40, 8
    s_bfe_u32 s41, s{sID}, 0x10001
    s_lshl_b32 s41, s41, 2
    s_add_u32 s40, s40, s41
    s_add_u32 s40, s40, 16384
    s_lshl_b32 s41, s{sID}, 9
    s_sub_u32 s61, s40, s41
    s_lshl_b32 s58, s{sID}, 7
    s_add_u32 s59, s58, 0x{flag(FL_A):x}
    s_add_u32 s58, s58, 0x{flag(FL_KM):x}
    s_mov_b32 s60, 0
    s_lshl_b32 s{sKXR}, s{sID}, 13
    s_add_u32 s{sKXR}, s{sKXR}, 0x{WS_KX:x}
    s_lshl_b32 s{sKM}, s{sID}, 11
    s_add_u32 s{sKM}, s{sKM}, 0x{WS_KM:x}
    s_lshl_b32 s{sFT}, s{sID}, 7
    s_add_u32 s{sFT}, s{sFT}, 0x{flag(FL_T):x}
    s_mov_b32 s{sSEEN}, 0
    s_mov_b32 s{sSTEP}, s100
    s_cmp_eq_u32 s100, 0
    s_cbranch_scc1 a_prim
    s_add_u32 s{sPB}, s{sPB}, {(SENT0+1)*PT_STEP}
    s_add_u32 s{sKXR}, s{sKXR}, {(SENT0+1)*32*8192}
    s_add_u32 s{sKM}, s{sKM}, {(SENT0+1)*32*2048}
    s_mov_b32 s59, 0x{flag(FL_DUMMY):x}
    """)
    wait_flag(a, 58, 100, 60, Y0, sleep=32)
    a.label("a_prim")

    KQ = [(16, 48), (144, 176)]

    def a_kq(need, buf):
        wait_flag(a, sFT, need, sSEEN, Y0+1, sleep=8)
        a(f"s_add_u32 s40, s{sKXR}, 0x{WS_QX-WS_KX:x}")
        for f in range(8):
            r, o = l16(f * 1024)
            a(f"buffer_load_dwordx4 {vr(KQ[buf][0]+4*f,4)}, {r}, {WS}, s{sKXR} offen offset:{o} sc1")
        for f in range(8):
            r, o = l16(f * 1024)
            a(f"buffer_load_dwordx4 {vr(KQ[buf][1]+4*f,4)}, {r}, {WS}, s40 offen offset:{o} sc1")
        a(f"s_add_u32 s{sKXR}, s{sKXR}, {32*8192}")

    def a_km():
        for k in range(4):
            a(f"buffer_load_dwordx4 {vr(KMF2+4*k,4)}, v8, {WS}, s{sKM} offen offset:{k*512} sc1")
    a(f"s_add_u32 s{sNEED}, s{sSTEP}, 1")
    a_kq(sNEED, 0)
    a("s_mov_b32 s47, 0")
    a.label("a_loop")
    for buf in range(2):
        KF2, QF2 = KQ[buf]
        stamp(a, 0)
        a(f"""
        s_add_u32 s{sNEED}, s{sSTEP}, 1
        s_cmp_eq_u32 s47, 1
        s_cbranch_scc1 a_chk{buf}
        s_cmp_ge_u32 s{sSTEP}, {SENT0}
        s_cbranch_scc1 a_kml{buf}
        """)
        wait_flag(a, 58, sNEED, 60, Y0, sleep=4)
        a.label(f"a_kml{buf}")
        a_km()
        a.label(f"a_chk{buf}")
        stamp(a, 1)
        a("s_waitcnt vmcnt(0)")
        vmax_chain(a, Y0, range(KMF2, KMF2+16))
        poll_fail(a, f"a_kml{buf}", sleep=3)
        stamp(a, 2)
        a(f"""
        s_cmp_ge_u32 s{sSTEP}, {SENT0}
        s_cselect_b32 s46, 2, 1
        s_cselect_b32 s45, {32*8192}, 0
        s_add_u32 s{sKXR}, s{sKXR}, s45
        s_add_u32 s45, s{sNEED}, s46
        s_min_u32 s45, s45, 64
        """)
        for qt in range(2):
            for k in range(4):
                for mt in range(qt + 1):
                    acc = vr(SA2+12*qt+4*mt, 4)
                    a(f"v_mfma_f32_16x16x32_bf16 {acc}, {vr(KF2+(mt*4+k)*4,4)}, {vr(QF2+(qt*4+k)*4,4)}, {'0' if k==0 else acc}")
                acc = vr(SA2+12*qt+8, 4)
                a(f"v_mfma_f32_16x16x32_bf16 {acc}, {vr(KMF2+4*k,4)}, {vr(QF2+(qt*4+k)*4,4)}, {'0' if k==0 else acc}")
        for qt in range(2):
            SB = SA2 + 12*qt
            if qt == 0:
                a.nop(2)
            a(f"""
            v_cndmask_b32 v{SB+8}, v{SB+8}, v{SB+10}, s[54:55]
            v_cndmask_b32 v{SB+9}, v{SB+9}, v{SB+11}, s[54:55]
            """)
            xs = [SB + k for k in range(4*(qt+1))] + [SB+8, SB+9]
            round_scale(a, xs, Y0+8, 50)
            a(f"v_mov_b32 v{Y0}, 0xce6e6b28")
            for k in range(4):
                a(f"v_cndmask_b32 v{SB+4*qt+k}, v{Y0}, v{SB+4*qt+k}, s[{64+2*k}:{65+2*k}]")
            softmax(a, xs, Y0+6, Y0+7, 51, False)
            O = 208 + 8*qt
            for half in range(2):
                for m in range(2):
                    if m <= qt:
                        a(f"v_cvt_pk_bf16_f32 v{O+2*half+m}, v{SB+4*m+2*half}, v{SB+4*m+2*half+1}")
                    else:
                        a(f"v_mov_b32 v{O+2*half+m}, 0")
            a(f"v_cvt_pk_bf16_f32 v{O+4}, v{SB+8}, v{SB+9}")
            for k in range(5):
                a(f"v_min_u32 v{O+k}, -2, v{O+k}")
            a(f"s_add_u32 s40, s{sPB}, {qt*2*PB_RG}")
            for half in range(2):
                a(f"buffer_store_dwordx2 {vr(O+2*half,2)}, v{vST}, {WS}, s40 offen offset:{half*128} sc1")
            a(f"s_add_u32 s40, s40, s61")
            a(f"buffer_store_dword v{O+4}, v{vSM}, {WS}, s40 offen sc1")
            if qt == 0:
                a(f"buffer_load_dword v{Y0+2}, off, {WS}, s58 sc1")
                a_kq(45, 1 - buf)
        a(f"""
        s_lshl_b32 s40, s46, 16
        s_add_u32 s{sKM}, s{sKM}, s40
        s_mul_i32 s40, s46, {PT_STEP}
        s_add_u32 s{sPB}, s{sPB}, s40
        v_mov_b32 v{Y0}, s{sNEED}
        s_waitcnt vmcnt(19)
        v_readfirstlane_b32 s60, v{Y0+2}
        s_add_u32 s{sSTEP}, s{sSTEP}, s46
        s_mov_b32 s47, 0
        s_nop 1
        s_cmp_le_u32 s60, s{sSTEP}
        s_cbranch_scc1 a_nk{buf}
        s_mov_b32 s47, 1
        """)
        a_km()
        a(f"""
        s_waitcnt vmcnt(4)
        s_branch a_pub{buf}
        a_nk{buf}:
        s_waitcnt vmcnt(0)
        a_pub{buf}:
        s_mov_b64 exec, 1
        buffer_store_dword v{Y0}, off, {WS}, s59 sc1
        s_mov_b64 exec, -1
        """)
        stamp(a, 3)
        if STAMP:
            a(f"s_sub_u32 s{sSTEP}, s{sSTEP}, s46")
            stamp_flush(a, 4, 1)
            a(f"s_add_u32 s{sSTEP}, s{sSTEP}, s46")
        a(f"""
        s_cmp_ge_u32 s{sSTEP}, 64
        s_cbranch_scc1 r_end
        """)
    a("s_branch a_loop")

    a.label("role_l")
    ln_setup(a, 3, 4, False)
    a(f"""
    s_mov_b32 s40, s{sID}                   ; row
    {"s_sub_u32 s3, s3, 2" if STAMP else ""}
    {"s_add_u32 s97, s97, " + str(100*72*32) if STAMP else ""}
    s_mul_i32 s46, s40, 1280
    s_add_u32 s47, s46, 0x{WS_H2F:x}
    s_lshl_b32 s48, s40, 7
    s_add_u32 s48, s48, 0x{flag(FL_L):x}
    s_mov_b32 s49, 0x{flag(FL_CC):x}
    v_lshlrev_b32 v9, 1, v{L_DST}
    v_cndmask_b32 v9, v{L_DST}, v9, s[76:77]
    s_mov_b32 s40, {WS_MOD + 2*2560}
    s_mov_b32 s52, 20
    """)
    GA = 48
    for h in range(2):
        a(f"buffer_load_dwordx4 {vr(GA+8*h,4)}, v9, {WS}, s40 offen offset:{h*1280} sc1")
        a(f"buffer_load_dwordx4 {vr(GA+8*h+4,4)}, v9, {WS}, s40 offen offset:{h*1280+16} sc1")
    a("s_mov_b32 s54, 0")
    a.label("l_loop")
    stamp(a, 0)
    a(f"""
    s_add_u32 s45, s{sSTEP}, 1
    s_add_u32 s41, s46, 0x{WS_ATT:x}
    s_add_u32 s42, s46, 0x{WS_X1:x}
    s_mov_b32 s53, 0
    s_cmp_eq_u32 s54, 1
    s_cbranch_scc1 l_chk
    """)
    ln_load(a, XS, 46, "", False, raw=24)
    a(f"""
    s_cmp_ge_u32 s{sSTEP}, {SENT0}
    s_cbranch_scc1 l_ld
    """)
    wait_flag(a, 49, 52, 53, 16, sleep=3)
    a.label("l_ld")
    ln_load(a, WS, 41, "sc1", False)
    a(f"buffer_load_dword v17, off, {WS}, s49 offset:128 sc1")
    a("s_waitcnt vmcnt(0)")
    a.label("l_chk")
    stamp(a, 1)
    vmax_chain(a, 16, range(L_RAW, L_RAW+8))
    poll_fail(a, "l_ld", sleep=3)
    a("v_readfirstlane_b32 s55, v17")
    ln_unpack(a, False)
    for j in range(8):
        x0, x1 = L_X + 2*j, L_X + 2*j + 1
        a(f"""
        v_mul_f32 v{x0}, v{x0}, v{GA+2*j}
        v_mul_f32 v{x1}, v{x1}, v{GA+2*j+1}
        v_cvt_pk_bf16_f32 v{L_T}, v{x0}, v{x1}
        v_lshlrev_b32 v{x0}, 16, v{L_T}
        v_and_b32 v{x1}, 0xffff0000, v{L_T}
        v_lshlrev_b32 v{L_T}, 16, v{24+j}
        v_and_b32 v{L_T2}, 0xffff0000, v{24+j}
        v_add_f32 v{x0}, v{x0}, v{L_T}
        v_add_f32 v{x1}, v{x1}, v{L_T2}
        v_cvt_pk_bf16_f32 v{32+j}, v{x0}, v{x1}
        v_lshlrev_b32 v{x0}, 16, v{32+j}
        v_and_b32 v{x1}, 0xffff0000, v{32+j}
        """)
    for j in range(8):
        a(f"v_min_u32 v{32+j}, -2, v{32+j}")
    a(f"buffer_store_dwordx4 v[32:35], v{L_DST}, {WS}, s42 offen sc1")
    a(f"buffer_store_dwordx4 v[36:39], v{L_DST}, {WS}, s42 offen offset:640 sc1")
    a(f"""
    s_mov_b32 s54, 0
    s_cmp_ge_u32 s{sSTEP}, {SENT0-1}
    s_cselect_b32 s55, 20, s55
    s_cmp_lt_u32 s55, 20
    s_cbranch_scc1 l_nopf
    s_cmp_ge_u32 s{sSTEP}, 63
    s_cbranch_scc1 l_nopf
    s_mov_b32 s54, 1
    s_add_u32 s40, s46, {32*1280}
    s_add_u32 s41, s41, {32*1280}
    """)
    ln_load(a, XS, 40, "", False, raw=24)
    ln_load(a, WS, 41, "sc1", False)
    a(f"buffer_load_dword v17, off, {WS}, s49 offset:256 sc1")
    a.label("l_nopf")
    ln_compute_store(a, 47)
    a("s_add_u32 s49, s49, 128")
    stamp(a, 2)
    a(f"""
    v_mov_b32 v16, s45
    s_add_u32 s46, s46, {32*1280}
    s_add_u32 s47, s47, {32*1280}
    s_waitcnt vmcnt(0)
    s_mov_b64 exec, 1
    buffer_store_dword v16, off, {WS}, s48 sc1
    s_mov_b64 exec, -1
    """)
    stamp(a, 3)
    stamp_flush(a, 4, 1)
    a(f"""
    s_add_u32 s{sSTEP}, s{sSTEP}, 1
    s_cmp_lt_u32 s{sSTEP}, 64
    s_cbranch_scc1 l_loop
    s_endpgm
    """)

    vPT, vBM, vXS = 240, 239, 242
    sUXR, sPFC = 33, 59
    sA, sV = 61, 62
    PFB = [16, 96]
    BMB = [128, 144]
    CAC = 176
    from gen_boot import arrive
    a.label("role_c")
    a(f"s_sub_u32 s{sID}, s{sID}, 184")
    setup_p_load_addrs(a, vPA, vPB, vBM)
    a(f"""
    s_lshl_b32 s40, s{sW}, 12
    v_add_u32 v{vPT}, s40, v{vL16}
    v_add_u32 v{vRd}, s40, v{vL16}
    s_lshl_b32 s40, s{sW}, 10
    v_add_u32 v{vWr}, s40, v{vL16}
    v_add_u32 v241, 16384, v{vWr}
    v_and_b32 v10, 15, v{vLANE}             ; n
    v_lshrrev_b32 v11, 5, v{vLANE}          ; pr
    v_lshl_add_u32 v10, v11, 4, v10
    v_bfe_u32 v11, v{vLANE}, 4, 1
    v_lshlrev_b32 v11, 2, v11
    s_lshl_b32 s40, s{sW}, 3
    v_add_u32 v11, s40, v11
    v_mul_u32_u24 v11, 1280, v11
    v_lshl_add_u32 v{vXS}, v10, 1, v11
    v_and_b32 v10, 1, v{vLANE}
    v_mov_b32 v11, 0x7ffffff0
    v_cmp_ne_u32 vcc, 0, v10
    v_lshlrev_b32 v243, 7, v{vLANE}
    v_mov_b32 v232, 0
    v_cndmask_b32 v{vXS}, v{vXS}, v11, vcc
    v_mov_b32 v231, 20
    s_lshl_b32 s40, s{sW}, 10
    s_add_u32 s{sFT}, s40, 0x{flag(FL_UF):x}
    s_add_u32 s{sA}, s40, 0x{flag(FL_A):x}
    s_add_u32 s{sV}, s40, 0x{flag(FL_VO):x}
    s_mov_b32 s{sFM}, 0x{flag(FL_MEM):x}
    s_mul_i32 s73, s{sW}, {8*40960}
    s_add_u32 s73, s73, 0x{WS_UX:x}
    s_add_u32 s76, s{sID}, {CT0}
    s_cmp_ge_u32 s{sID}, {NC}
    s_cselect_b32 s77, s76, s{sID}
    s_mov_b32 s78, s77
    s_mov_b32 s79, s77
    """)

    TIX = {57: 77, 60: 78, 68: 79}

    def dec(ss, sk):
        t = TIX[ss]
        a(f"""
        s_mul_i32 s{ss}, s{t}, 3277
        s_lshr_b32 s{ss}, s{ss}, 16
        s_mul_i32 s40, s{ss}, 20
        s_sub_u32 s{sk}, s{t}, s40
        """)

    def adv(ss, sk):
        t = TIX[ss]
        a(f"""
        s_add_u32 s40, s{t}, {NC}
        s_cmp_lt_u32 s40, {CT0}
        s_cselect_b32 s40, s40, s76
        s_add_u32 s41, s{t}, {2*NC}
        s_cmp_lt_u32 s{t}, {CT0}
        s_cselect_b32 s{t}, s40, s41
        """)
        dec(ss, sk)
    dec(57, 58)
    dec(60, 63)
    dec(68, 72)

    def c_needs():
        a(f"s_add_u32 s44, s60, 1")

    def c_offs():
        a(f"""
        s_mul_i32 s{sPB}, s60, {PT_STEP}
        s_add_u32 s{sPB}, s{sPB}, 0x{WS_PT:x}
        s_add_u32 s64, s{sPB}, {PB_RG}
        s_add_u32 s65, s{sPB}, {2*PB_RG}
        s_add_u32 s66, s{sPB}, {3*PB_RG}
        s_mul_i32 s67, s60, {UM_STEP}
        s_lshl_b32 s40, s63, 9
        s_add_u32 s67, s67, s40
        s_add_u32 s67, s67, 0x{WS_UMC:x}
        s_add_u32 s69, s67, 20480
        s_add_u32 s70, s67, 40960
        s_add_u32 s71, s67, 61440
        """)

    def c_flag_loads():
        a(f"""
        s_mov_b64 exec, 255
        buffer_load_dword v233, v243, {WS}, s{sA} offen sc1
        buffer_load_dwordx4 v[224:227], v243, {WS}, s{sFT} offen sc1
        s_mov_b64 exec, -1
        """)

    def c_test(fail):
        a(f"""
        v_min3_u32 v234, v233, v224, v225
        v_min3_u32 v234, v234, v226, v227
        s_mov_b64 exec, 255
        v_cmp_gt_u32 vcc, s44, v234
        s_mov_b64 exec, -1
        s_cbranch_vccnz {fail}
        """)

    def c_block():
        c_needs()
        top, retry, done = a.newlabel("cb"), a.newlabel("cb"), a.newlabel("cb")
        a.label(top)
        c_flag_loads()
        a("s_waitcnt vmcnt(0)")
        sk = a.newlabel("cb")
        a(f"""
        s_cmp_lt_u32 s60, {SENT0}
        s_cbranch_scc1 {sk}
        v_mov_b32 v233, 64
        {sk}:
        """)
        c_test(retry)
        a(f"s_branch {done}")
        a.label(retry)
        a(f"""
        s_sub_u32 s{sBUD}, s{sBUD}, 1
        s_cmp_lt_i32 s{sBUD}, 0
        s_cbranch_scc1 {done}
        s_sleep 3
        s_branch {top}
        """)
        a.label(done)

    def c_load_list(buf):
        L = []
        for rg in range(4):
            so = [sPB, 64, 65, 66][rg]
            PF = PFB[buf] + 20*rg
            for q in range(4):
                L.append(f"buffer_load_dwordx4 {vr(PF+q*4,4)}, v{vPT}, {WS}, s{so} offen offset:{q*1024} sc1")
            L.append(f"buffer_load_dwordx4 {vr(PF+16,4)}, v241, {WS}, s{so} offen sc1")
        for j in range(4):
            for pr in range(2):
                L.append(f"buffer_load_dwordx2 {ar(BMB[buf]+pr*8+2*j,2)}, v{vBM}, {WS}, s{[67,69,70,71][j]} offen offset:{pr*256} sc1")
        return L

    def c_ux(buf, tail_wait=False):
        ok, skip, end = a.newlabel("cux"), a.newlabel("cux"), a.newlabel("cux")
        a(f"""
        s_cmp_ge_u32 s68, 64
        s_cbranch_scc1 {skip}
        s_add_u32 s45, s68, 1
        s_mov_b64 exec, 255
        v_cmp_gt_u32 vcc, s45, v232
        s_mov_b64 exec, -1
        s_cbranch_vccz {ok}
        """)
        wait_all(a, 8, 243, sV, 45, 232)
        a.label(ok)
        a(f"""
        s_mul_i32 s{sUXR}, s68, {UX_STEP}
        s_lshl_b32 s40, s72, 11
        s_add_u32 s{sUXR}, s{sUXR}, s40
        s_add_u32 s{sUXR}, s{sUXR}, s73
        """)
        for hh in range(8):
            for pr in range(2):
                a(f"buffer_load_dwordx4 {ar(buf*64+pr*32+hh*4,4)}, v{vL16}, {WS}, s{sUXR} offen offset:{pr*1024} sc1")
            a(f"s_add_u32 s{sUXR}, s{sUXR}, 40960")
        if tail_wait:
            a("s_waitcnt vmcnt(16)")
            a(f"s_branch {end}")
        a.label(skip)
        if tail_wait:
            a("s_waitcnt vmcnt(0)")
        a.label(end)
        adv(68, 72)

    def c_burst(buf):
        c_block()
        c_offs()
        top = a.newlabel("cbl")
        a.label(top)
        for x in c_load_list(buf):
            a(x)
        c_flag_loads()
        a("s_waitcnt vmcnt(0)")
        vmax_chain(a, 3, range(PFB[buf], PFB[buf]+80))
        poll_fail(a, top, sleep=4)
        adv(60, 63)

    def c_compute(buf, LL, tag):
        b = Asm()
        for r in range(32):
            b(f"v_mov_b32 v{CAC+r}, 0")
        b.nop(1)
        for q in range(5):
            for pr in range(2):
                for rg in range(4):
                    f = PFB[buf] + 20*rg + q*4
                    B = ar(buf*64+pr*32+q*8, 8) if q < 4 else ar(BMB[buf]+pr*8, 8)
                    b(f"v_smfmac_f32_16x16x64_bf16 {vr(CAC+(pr*4+rg)*4,4)}, {vr(f,4)}, {B}, v{vIDX}")
        b.nop(6)
        for rg in range(4):
            A, B = CAC + rg*4, CAC + (4+rg)*4
            for r in range(4):
                b(f"v_permlane32_swap_b32 v{A+r}, v{B+r}")
            for r in range(4):
                b(f"v_add_f32 v{A+r}, v{A+r}, v{B+r}")
            b(f"ds_write_b128 v{vWr}, {vr(A,4)} offset:{rg*4096}")
        b(f"""
        s_waitcnt lgkmcnt(0)
        s_barrier
        """)
        FT = 208
        for q in range(4):
            b(f"ds_read_b128 {vr(FT+4*q,4)}, v{vRd} offset:{q*1024}")
        b(f"""
        s_mul_i32 s74, s57, {32*1280}
        s_lshl_b32 s75, s58, 6
        s_add_u32 s74, s74, s75
        s_add_u32 s74, s74, 0x{WS_ATT:x}
        s_lshl_b32 s75, s57, 7
        s_add_u32 s75, s75, 0x{flag(FL_CC):x}
        s_waitcnt lgkmcnt(0)
        """)
        for r in range(4):
            b(f"v_add_f32 v{FT+r}, v{FT+r}, v{FT+4+r}")
            b(f"v_add_f32 v{FT+8+r}, v{FT+8+r}, v{FT+12+r}")
        for r in range(4):
            b(f"v_add_f32 v{FT+r}, v{FT+r}, v{FT+8+r}")
        b.nop(1)
        for r in range(4):
            b(f"v_mov_b32_dpp v{FT+8+r}, v{FT+r} quad_perm:[1,0,3,2] row_mask:0xf bank_mask:0xf")
        for r in range(4):
            b(f"v_cvt_pk_bf16_f32 v{FT+r}, v{FT+r}, v{FT+8+r}")
            b(f"v_min_u32 v{FT+r}, -2, v{FT+r}")
            b(f"buffer_store_dword v{FT+r}, v{vXS}, {WS}, s74 offen offset:{r*1280} sc1")
        LL = list(LL)
        acc = 0
        nld = 0
        for ln in b.lines:
            t = ln.strip()
            if t == "s_barrier":
                a(f"""
                s_cmp_lg_u32 s{sW}, 3
                s_cbranch_scc1 c_rs{tag}
                s_waitcnt vmcnt({nld})
                s_mov_b64 exec, 1
                v_cmp_eq_u32 vcc, 19, v230
                v_mov_b32 v230, 0
                s_cbranch_vccz c_rt{tag}
                buffer_store_dword v231, off, {WS}, s56 sc1
                c_rt{tag}:
                s_mov_b64 exec, -1
                c_rs{tag}:
                """)
            a.lines.append(ln)
            if not t or t.startswith(";"):
                continue
            if t.startswith("v_smfmac"):
                acc += 16
            elif t.startswith("ds_") or t.startswith("s_waitcnt") or t.startswith("s_barrier"):
                acc += 24
            elif t.startswith("buffer_store"):
                acc = 0
            else:
                acc += 4
            if acc >= C_GAP and LL and not t.startswith("v_cvt_pk_bf16_f32 v2"):
                x = LL.pop(0)
                a(x)
                nld += x.count("buffer_load")
                acc = 0
        for x in LL:
            a(x)

    a("v_mov_b32 v230, 0")
    c_ux(0)
    c_ux(1)
    c_burst(0)
    a.label("c_loop")
    for buf in range(2):
        stamp(a, 0)
        plain, join, nb = a.newlabel("cpl"), a.newlabel("cjn"), a.newlabel("cnb")
        c_needs()
        a(f"s_mov_b32 s{sPFC}, 0")
        c_test(plain)
        a(f"""
        s_cmp_ge_u32 s60, {SENT0}
        s_cbranch_scc1 {plain}
        s_mov_b32 s{sPFC}, 1
        """)
        c_offs()
        def arrive_issue(tag, resolve):
            a(f"""
            s_barrier
            s_cmp_lg_u32 s{sW}, 3
            s_cbranch_scc1 c_nf{tag}
            s_lshl_b32 s40, s57, 2
            s_add_u32 s40, s40, 0x{flag(FL_CN):x}
            s_mov_b32 s56, s75
            v_mov_b32 v230, 1
            s_mov_b64 exec, 1
            buffer_atomic_add v230, off, {WS}, s40 sc0
            """)
            if resolve:
                a(f"""
                s_waitcnt vmcnt(0)
                v_cmp_eq_u32 vcc, 19, v230
                v_mov_b32 v230, 0
                s_cbranch_vccz c_ne{tag}
                buffer_store_dword v231, off, {WS}, s56 sc1
                c_ne{tag}:
                """)
            a(f"""
            s_mov_b64 exec, -1
            c_nf{tag}:
            """)
        FLG = f"""s_mov_b64 exec, 255
        buffer_load_dword v233, v243, {WS}, s{sA} offen sc1
        buffer_load_dwordx4 v[224:227], v243, {WS}, s{sFT} offen sc1
        s_mov_b64 exec, -1"""
        c_compute(buf, c_load_list(1 - buf) + [FLG], f"x{buf}")
        adv(60, 63)
        stamp(a, 1)
        c_ux(buf, tail_wait=True)
        arrive_issue(f"a{buf}", False)
        a(f"s_branch {join}")
        a.label(plain)
        c_compute(buf, [], f"y{buf}")
        stamp(a, 1)
        a("s_waitcnt vmcnt(0)")
        arrive_issue(f"b{buf}", True)
        c_ux(buf)
        a.label(join)
        adv(57, 58)
        stamp(a, 2)
        stamp_flush(a, 3, 1)
        a(f"""
        s_add_u32 s{sSTEP}, s{sSTEP}, 1
        s_cmp_ge_u32 s57, 64
        s_cbranch_scc1 r_end
        s_cmp_eq_u32 s{sPFC}, 1
        s_cbranch_scc1 {nb}
        """)
        c_burst(1 - buf)
        a.label(nb)
    a("s_branch c_loop")
    a.label("pre_boot")
    a(f"""
    v_mov_b32 v134, -1
    s_sub_u32 s40, s{sID}, 102
    s_lshl_b32 s40, s40, 21
    s_add_u32 s40, s40, 0x{WS_CRA + 0x1F0000:x}
    s_lshl_b32 s41, s{sW}, 14
    s_add_u32 s40, s40, s41
    s_mov_b32 s42, -1
    s_mov_b32 s43, -1
    s_mov_b64 exec, 1
    """)
    for k in range(3):
        for half in range(2):
            a(f"""
            s_add_u32 s41, s40, {half*8192 + (k%2)*4096 + k*1152}
            s_memtime s[44:45]
            s_waitcnt lgkmcnt(0)
            buffer_store_dword v134, off, {WS}, s41 sc1
            s_waitcnt vmcnt(0)
            buffer_load_dword v135, off, {WS}, s41 sc1
            s_waitcnt vmcnt(0)
            s_memtime s[46:47]
            s_waitcnt lgkmcnt(0)
            s_sub_u32 s46, s46, s44
            s_min_u32 s{42+half}, s{42+half}, s46
            """)
    a(f"""
    v_mov_b32 v136, s42
    v_mov_b32 v137, s43
    s_lshl_b32 s40, s{sW}, 3
    v_mov_b32 v135, s40
    ds_write_b64 v135, v[136:137]
    s_mov_b64 exec, -1
    s_waitcnt lgkmcnt(0)
    s_barrier
    v_mov_b32 v135, 0
    ds_read_b128 v[124:127], v135
    ds_read_b128 v[128:131], v135 offset:16
    s_waitcnt lgkmcnt(0)
    v_add3_u32 v124, v124, v126, v128
    v_add3_u32 v125, v125, v127, v129
    v_add_u32 v124, v124, v130
    v_add_u32 v125, v125, v131
    v_cmp_lt_u32 vcc, v125, v124
    v_mov_b32 v126, 1
    v_mov_b32 v127, 3
    v_cndmask_b32 v126, v126, v127, vcc
    {"v_mov_b32 v126, " + FORCEPOL if FORCEPOL else ""}
    s_sub_u32 s40, s{sID}, 102
    s_lshl_b32 s40, s40, 2
    s_barrier
    s_cmp_lg_u32 s{sW}, 0
    s_cbranch_scc1 boot_nrm0
    s_mov_b64 exec, 1
    buffer_store_dword v126, off, {DBG}, s40 offset:176 sc1
    s_mov_b64 exec, -1
    s_branch boot_nrm0
    """)
    from gen_boot import gen_boot
    gen_boot(a)
    from gen_f import gen_phase2
    gen_phase2(a)
    a.label("r_end")
    a("s_endpgm")
    a.label("r_code_end")
    return (L, 256, 256, 131072, kernel_desc(L, 512, 256))
```

```python
from gen_common import *
from gen_r import *

CNT_INIT, CNT_MOD20, CNT_MOD60, CNT_LN = 32, 36, 40, 64
DBG_INIT, DBG_MOD20, DBG_MOD60, DBG_LN, DBG_POL = 128+32, 128+36, 128+40, 128+64, 128+48
N_INITW = 68


def dbg_wait(a, off, need, vt, sleep=4):
    top, done = a.newlabel("dw"), a.newlabel("dwd")
    a.label(top)
    a(f"""
    buffer_load_dword v{vt}, off, {DBG}, 0 offset:{off} sc1
    s_waitcnt vmcnt(0)
    v_readfirstlane_b32 s44, v{vt}
    s_sub_u32 s{sBUD}, s{sBUD}, 1
    s_cmp_lt_i32 s{sBUD}, 0
    s_cbranch_scc1 {done}
    s_cmp_ge_u32 s44, {need}
    s_cbranch_scc1 {done}
    s_sleep {sleep}
    s_branch {top}
    """)
    a.label(done)


def dbg_wait_wg(a, items, vt, sleep=6):
    lab = a.newlabel("dwg")
    a(f"""
    s_cmp_lg_u32 s{sW}, 0
    s_cbranch_scc1 {lab}
    """)
    for off, need in items:
        dbg_wait(a, off, need, vt, sleep)
    a.label(lab)
    a("s_barrier")


def arrive(a, srd_, soff, off_cnt, n, off_flag, vt, soff_flag=None):
    lab = a.newlabel("ar")
    a(f"""
    v_mov_b32 v{vt}, 1
    buffer_atomic_add v{vt}, off, {srd_}, {soff} offset:{off_cnt} sc0
    s_waitcnt vmcnt(0)
    v_cmp_eq_u32 vcc, {n-1}, v{vt}
    v_mov_b32 v{vt}, 1
    s_cbranch_vccz {lab}
    buffer_store_dword v{vt}, off, {srd_}, {soff_flag or soff} offset:{off_flag} sc1
    {lab}:
    """)


def dbg_add(a, soff, off_cnt, n, vt, wv=0):
    lab = a.newlabel("da")
    a(f"""
    s_cmp_lg_u32 s{sW}, {wv}
    s_cbranch_scc1 {lab}
    s_mov_b64 exec, 1
    """)
    arrive(a, DBG, soff, off_cnt, n, off_cnt + 128, vt)
    a(f"""
    s_mov_b64 exec, -1
    {lab}:
    """)


def gen_boot(a):
    sBI = 31
    a.label("boot")
    a(f"""
    s_sub_u32 s{sBI}, s{sID}, 64            ; U: 0..39
    s_cmp_lt_u32 s{sID}, 112
    s_cbranch_scc1 boot_go
    s_sub_u32 s{sBI}, s{sID}, 136           ; 176..258 -> 40..122
    s_cmp_lt_u32 s{sID}, 259
    s_cbranch_scc1 boot_go
    s_sub_u32 s{sBI}, s{sID}, 137           ; 260..264 -> 123..127
    boot_go:
    s_load_dwordx4 s[64:67], s[0:1], {KA_C}
    s_load_dwordx2 s[68:69], s[0:1], {KA_MEM0}
    s_lshl_b32 s32, s{sBI}, 3
    s_lshl_b32 s40, s{sW}, 1
    s_add_u32 s32, s32, s40
    v_cmp_gt_u32 vcc, 40, v{vLANE}
    v_lshlrev_b32 v100, 5, v{vLANE}
    v_mov_b32 v10, 0x7ffffff0
    v_cndmask_b32 v100, v10, v100, vcc
    v_lshlrev_b32 v101, 6, v{vLANE}
    v_cndmask_b32 v101, v10, v101, vcc
    s_mov_b64 s[76:77], vcc
    s_mul_i32 s33, s32, 1280
    s_add_u32 s34, s33, {1024*1280}
    """)
    RAW = 160

    def xloads():
        for t in range(2):
            for r in range(2):
                a(f"buffer_load_dwordx4 {vr(RAW+16*t+8*r,4)}, v100, {XS}, s{33+t} offen offset:{r*1280}")
                a(f"buffer_load_dwordx4 {vr(RAW+16*t+8*r+4,4)}, v100, {XS}, s{33+t} offen offset:{r*1280+16}")
    a(f"""
    v_lshlrev_b32 v3, 4, v0
    s_sub_u32 s35, s{sBI}, 64
    s_waitcnt lgkmcnt(0)
    """)
    srd(a, 16, 64, D * 2)
    srd(a, 20, 66, D * 3840 * 2)
    srd(a, 72, 68, M * D * 2)
    a(f"""
    s_cmp_lt_u32 s35, 60
    s_cbranch_scc1 boot_mod
    s_sub_u32 s42, s{sBI}, 60
    s_cmp_lt_u32 s{sBI}, 64
    s_cselect_b32 s42, s{sBI}, s42
    """)
    xloads()
    a.label("boot_init")
    a(f"""
    s_lshl_b32 s41, s42, 12
    s_add_u32 s43, s41, 0x{WS_CRA:x}
    s_add_u32 s45, s41, 0x{WS_CRB + 0x10000 - 480*4096:x}
    s_cmp_ge_u32 s42, 480
    s_cselect_b32 s43, s45, s43
    s_sub_u32 s45, s41, {592*4096 - WS_FLAGS}
    s_cmp_ge_u32 s42, 592
    s_cselect_b32 s43, s45, s43
    s_cselect_b32 s46, 0, -1
    s_lshl_b32 s45, s42, 13
    s_add_u32 s45, s45, 0x{WS_CRB + CRB_DOOR - 608*8192:x}
    s_cmp_ge_u32 s42, 608
    s_cselect_b32 s43, s45, s43
    v_mov_b32 v12, s46
    v_mov_b32 v13, s46
    v_mov_b32 v14, s46
    v_mov_b32 v15, s46
    buffer_store_dwordx4 v[12:15], v3, {WS}, s43 offen sc1
    s_add_u32 s42, s42, {N_INITW}
    s_cmp_lt_u32 s42, 610
    s_cbranch_scc1 boot_init
    s_sub_u32 s42, s42, 610
    v_mov_b32 v12, -1
    v_mov_b32 v13, -1
    v_mov_b32 v14, -1
    v_mov_b32 v15, -1
    """)
    NL = 64 - SENT0
    regs = [(WS_PT + SENT0*PT_STEP, NL*PT_STEP), (WS_KM + SENT0*65536, NL*65536), (WS_ATT + SENT0*40960, NL*40960),
            (WS_X1 + SENT0*40960, NL*40960), (WS_H2F + SENT0*40960, NL*40960), (WS_ACT + SENT0*110592, NL*110592)]
    a.label("boot_arm")
    a("s_lshl_b32 s41, s42, 12")
    u = 0
    for k, (base, n) in enumerate(regs):
        if k == 0:
            a(f"s_add_u32 s43, s41, 0x{base:x}")
        else:
            a(f"""
            s_add_u32 s45, s41, 0x{base - u*4096:x}
            s_cmp_ge_u32 s42, {u}
            s_cselect_b32 s43, s45, s43
            """)
        assert n % 4096 == 0
        u += n // 4096
    a(f"""
    buffer_store_dwordx4 v[12:15], v3, {WS}, s43 offen sc1
    s_add_u32 s42, s42, {N_INITW}
    s_cmp_lt_u32 s42, {u}
    s_cbranch_scc1 boot_arm
    s_cmp_lg_u32 s{sBI}, 2
    s_cbranch_scc1 boot_nomem
    v_and_b32 v8, 7, v0
    v_mul_u32_u24 v8, 1280, v8
    v_lshrrev_b32 v9, 3, v0
    v_lshl_add_u32 v8, v9, 4, v8
    buffer_load_dwordx4 v[16:19], v8, s[72:75], 0 offen
    buffer_load_dwordx4 v[20:23], v8, s[72:75], 0 offen offset:512
    buffer_load_dwordx4 v[24:27], v8, s[72:75], 0 offen offset:1024
    s_waitcnt vmcnt(0)
    """)
    for k in range(12):
        a(f"v_min_u32 v{16+k}, -2, v{16+k}")
    for cp in range(2):
        for sel in range(2):
            base = WS_CRB + cp*32768 + sel*8192
            a(f"""
            s_mov_b32 s41, 0x{base:x}
            buffer_store_dwordx4 v[16:19], v3, {WS}, s41 offen sc1
            s_mov_b32 s41, 0x{base+4096:x}
            buffer_store_dwordx4 v[20:23], v3, {WS}, s41 offen sc1
            """)
    a(f"""
    s_cmp_ge_u32 s{sW}, 2
    s_cbranch_scc1 boot_nomem
    """)
    for cp in range(2):
        for sel in range(2):
            base = WS_CRB + cp*32768 + sel*8192 + 16384
            a(f"""
            s_mov_b32 s41, 0x{base:x}
            buffer_store_dwordx4 v[24:27], v3, {WS}, s41 offen sc1
            """)
    a.label("boot_nomem")
    a("s_waitcnt vmcnt(0)")
    a("s_barrier")
    dbg_add(a, "0", CNT_INIT, N_INITW, 12, wv=3)
    a(f"""
    s_and_b32 s40, s{sID}, 0xfffe
    s_cmp_eq_u32 s40, 102
    s_cbranch_scc1 pre_boot
    s_branch boot_nrm0
    """)
    a.label("boot_mod")
    a(f"""
    s_add_u32 s35, s35, 21
    s_cmp_ge_u32 s35, 60
    s_cselect_b32 s40, 60, 0
    s_sub_u32 s35, s35, s40
    v_and_b32 v8, 7, v0                     ; cc
    v_lshrrev_b32 v9, 3, v0                 ; rg
    v_mul_u32_u24 v10, 40, v9
    """)
    for i in range(5):
        a(f"buffer_load_dwordx2 {vr(104+2*i,2)}, v10, s[16:19], 0 offen offset:{8*i}")
    a(f"""
    v_mul_u32_u24 v11, {20*7680}, v9
    v_lshl_add_u32 v11, v8, 4, v11
    s_lshl_b32 s41, s35, 7
    """)
    for i in range(20):
        a(f"buffer_load_dwordx4 {vr(16+4*i,4)}, v11, s[20:23], s41 offen")
        a(f"s_add_u32 s41, s41, 7680")
    xloads()
    stamp(a, 0)
    a("s_waitcnt vmcnt(28)")
    stamp(a, 1)
    a("s_mov_b32 s42, 0xbfb8aa3b")
    C0, T0 = 116, 136
    for i in range(10):
        a(f"v_lshlrev_b32 v{C0+2*i}, 16, v{104+i}")
        a(f"v_and_b32 v{C0+2*i+1}, 0xffff0000, v{104+i}")
    for i in range(20):
        a(f"v_mul_f32 v{T0+i}, s42, v{C0+i}")
    for i in range(20):
        a(f"v_exp_f32 v{T0+i}, v{T0+i}")
    for i in range(20):
        a(f"v_add_f32 v{T0+i}, 1.0, v{T0+i}")
    for i in range(20):
        a(f"v_rcp_f32 v{T0+i}, v{T0+i}")
    for i in range(20):
        a(f"v_mul_f32 v{T0+i}, v{T0+i}, v{C0+i}")
    for i in range(10):
        a(f"v_cvt_pk_bf16_f32 v12, v{T0+2*i}, v{T0+2*i+1}")
        a(f"v_lshlrev_b32 v{C0+2*i}, 16, v12")
        a(f"v_and_b32 v{C0+2*i+1}, 0xffff0000, v12")
    for k in range(8):
        a(f"v_mov_b32 v{104+k}, 0")
    for i in range(20):
        a(f"s_waitcnt vmcnt({27-i})")
        for k in range(4):
            a(f"v_lshlrev_b32 v12, 16, v{16+4*i+k}")
            a(f"v_and_b32 v13, 0xffff0000, v{16+4*i+k}")
            a(f"v_fmac_f32 v{104+2*k}, v12, v{C0+i}")
            a(f"v_fmac_f32 v{105+2*k}, v13, v{C0+i}")
    stamp(a, 2)
    a(f"""
    v_lshlrev_b32 v12, 8, v9
    v_lshl_add_u32 v12, v8, 5, v12
    ds_write_b128 v12, v[104:107]
    ds_write_b128 v12, v[108:111] offset:16
    s_waitcnt lgkmcnt(0)
    s_barrier
    s_cmp_lg_u32 s{sW}, 0
    s_cbranch_scc1 boot_nrm0
    v_lshlrev_b32 v12, 2, v0
    """)
    for r in range(32):
        a(f"ds_read_b32 v{16+r}, v12 offset:{r*256}")
        if r == 15:
            a("s_waitcnt lgkmcnt(0)")
    a("s_waitcnt lgkmcnt(0)")
    for r in range(1, 32):
        a(f"v_add_f32 v16, v16, v{16+r}")
    a(f"""
    v_cvt_pk_bf16_f32 v16, v16, v16
    v_and_b32 v16, 0xffff0000, v16
    s_lshl_b32 s41, s35, 8
    buffer_store_dword v16, v12, {WS}, s41 offen offset:{WS_MOD} sc1
    s_waitcnt vmcnt(0)
    s_mov_b64 exec, 1
    s_cmp_ge_u32 s35, 20
    s_cbranch_scc1 boot_mod_no20
    """)
    arrive(a, DBG, "0", CNT_MOD20, 20, DBG_MOD20, 17)
    a.label("boot_mod_no20")
    arrive(a, DBG, "0", CNT_MOD60, 60, DBG_MOD60, 17)
    a("s_mov_b64 exec, -1")
    a.label("boot_nrm0")
    stamp(a, 3)
    X, NR = 16, 200
    a("s_mov_b32 s46, 0")
    a("s_waitcnt vmcnt(0)")
    a.label("boot_nrm")
    for j in range(8):
        a(f"v_lshlrev_b32 v{X+2*j}, 16, v{RAW+j}")
        a(f"v_and_b32 v{X+2*j+1}, 0xffff0000, v{RAW+j}")
    for j in range(24):
        a(f"v_mov_b32 v{RAW+j}, v{RAW+8+j}")
        a(f"v_mov_b32 v{NR+j}, v{NR+8+j}")
    a(f"v_add_f32 v12, v{X}, v{X+1}")
    for j in range(2, 16):
        a(f"v_add_f32 v12, v12, v{X+j}")
    ln_wave_sum(a, 12)
    a(f"v_mul_f32 v12, 0x3acccccd, v12")
    a(f"v_sub_f32 v14, v{X}, v12")
    a(f"v_mul_f32 v13, v14, v14")
    for j in range(1, 16):
        a(f"v_sub_f32 v14, v{X+j}, v12")
        a(f"v_fmac_f32 v13, v14, v14")
    a(f"v_cndmask_b32 v13, 0, v13, s[76:77]")
    ln_wave_sum(a, 13)
    a(f"v_mul_f32 v13, 0x3acccccd, v13")
    bf16r(a, 13)
    a(f"v_add_f32 v13, 0x3727c5ac, v13")
    bf16r(a, 13)
    a("v_sqrt_f32 v13, v13")
    a.nop(1)
    bf16r(a, 13)
    a("v_rcp_f32 v13, v13")
    bf16r(a, 12)
    for j in range(8):
        x0, x1 = X + 2*j, X + 2*j + 1
        a(f"""
        v_sub_f32 v{x0}, v{x0}, v12
        v_sub_f32 v{x1}, v{x1}, v12
        v_cvt_pk_bf16_f32 v14, v{x0}, v{x1}
        v_lshlrev_b32 v{x0}, 16, v14
        v_and_b32 v{x1}, 0xffff0000, v14
        v_mul_f32 v{x0}, v{x0}, v13
        v_mul_f32 v{x1}, v{x1}, v13
        v_cvt_pk_bf16_f32 v{NR+24+j}, v{x0}, v{x1}
        """)
    a(f"""
    s_add_u32 s46, s46, 1
    s_cmp_lt_u32 s46, 4
    s_cbranch_scc1 boot_nrm
    s_cmp_lg_u32 s{sW}, 0
    s_cbranch_scc1 boot_go2
    """)
    stamp(a, 4)
    dbg_wait(a, DBG_MOD20, 1, 12)
    stamp(a, 5)
    a.label("boot_go2")
    a(f"""
    s_barrier
    s_mov_b32 s40, {WS_MOD + 1*2560}
    s_mov_b32 s41, {WS_MOD + 0*2560}
    """)
    for k in range(4):
        a(f"buffer_load_dwordx4 {vr(32+4*k,4)}, v101, {WS}, s40 offen offset:{16*k} sc1")
    for k in range(4):
        a(f"buffer_load_dwordx4 {vr(48+4*k,4)}, v101, {WS}, s41 offen offset:{16*k} sc1")
    a(f"""
    v_lshlrev_b32 v100, 8, v{vLANE}
    s_lshl_b32 s40, s{sW}, 5
    v_add_u32 v100, s40, v100               ; b*256 + (2w)*16
    v_mov_b32 v10, 0x8000
    v_cndmask_b32 v100, v10, v100, s[76:77]
    ; global: linear LDS offset o -> (o/128)*256 + o%128
    v_lshrrev_b32 v10, 7, v3
    v_lshlrev_b32 v10, 8, v10
    v_and_b32 v11, 127, v3
    v_add_u32 v102, v10, v11
    s_lshr_b32 s40, s{sBI}, 1
    s_mul_i32 s40, s40, 20480
    s_and_b32 s41, s{sBI}, 1
    s_lshl_b32 s41, s41, 7
    s_add_u32 s40, s40, s41
    s_add_u32 s33, s40, 0x{WS_H1F:x}
    s_add_u32 s34, s33, {64*20480}
    s_waitcnt vmcnt(0)
    """)
    dst = [0, 2, 4, 6, 1, 3, 5, 7]
    OUT = 64
    for j in range(8):
        a(f"""
        v_add_f32 v{32+2*j}, 1.0, v{32+2*j}
        v_add_f32 v{33+2*j}, 1.0, v{33+2*j}
        v_cvt_pk_bf16_f32 v14, v{32+2*j}, v{33+2*j}
        v_lshlrev_b32 v{32+2*j}, 16, v14
        v_and_b32 v{33+2*j}, 0xffff0000, v14
        """)
    a(f"""
    s_lshr_b32 s47, s{sBI}, 5
    s_lshl_b32 s47, s47, 2
    s_mov_b32 s46, 0
    """)
    a.label("boot_out")
    for j in range(8):
        for r in range(2):
            src = NR + 8*r + j
            a(f"""
            v_lshlrev_b32 v12, 16, v{src}
            v_and_b32 v13, 0xffff0000, v{src}
            v_mul_f32 v12, v12, v{32+2*j}
            v_mul_f32 v13, v13, v{33+2*j}
            v_cvt_pk_bf16_f32 v14, v12, v13
            v_lshlrev_b32 v12, 16, v14
            v_and_b32 v13, 0xffff0000, v14
            v_add_f32 v12, v12, v{48+2*j}
            v_add_f32 v13, v13, v{49+2*j}
            v_cvt_pk_bf16_f32 v{OUT+8*r+dst[j]}, v12, v13
            v_mov_b32 v{src}, v{src+16}
            """)
    for rr in range(2):
        a(f"ds_write_b128 v100, {vr(OUT+8*rr,4)} offset:{rr*16}")
        a(f"ds_write_b128 v100, {vr(OUT+8*rr+4,4)} offset:{rr*16 + 128}")
    a("s_waitcnt lgkmcnt(0)")
    a("s_barrier")
    for k in range(3):
        a(f"ds_read_b128 {vr(16+k*4,4)}, v3 offset:{k*4096}")
    a("s_waitcnt lgkmcnt(0)")
    for k in range(2):
        a(f"s_add_u32 s40, s33, {k*8192}")
        a(f"buffer_store_dwordx4 {vr(16+k*4,4)}, v102, {WS}, s40 offen sc1")
    a(f"""
    s_cmp_ge_u32 s{sW}, 2
    s_cbranch_scc1 boot_st
    s_add_u32 s40, s33, {2*8192}
    buffer_store_dwordx4 v[24:27], v102, {WS}, s40 offen sc1
    boot_st:
    s_waitcnt vmcnt(0)
    s_barrier
    """)
    dbg_add(a, "s47", CNT_LN, 32, 12, wv=3)
    a(f"""
    s_mov_b32 s33, s34
    s_add_u32 s47, s47, 16
    s_add_u32 s46, s46, 1
    s_cmp_lt_u32 s46, 2
    s_cbranch_scc1 boot_out
    """)
    stamp(a, 6)
    if STAMP:
        a(f"s_mov_b32 s{sSTEP}, 70")
        stamp_flush(a, 7, 12)
        a(f"s_mov_b32 s{sSTEP}, 0")
    dbg_wait_wg(a, [(DBG_INIT, 1), (DBG_MOD60, 1)], 12)
    a("s_branch boot_done")
```

```python
from gen_common import *
import os

P_SLEEP0 = int(os.environ.get("P_SLEEP0", "35"))
P_SLEEP1 = int(os.environ.get("P_SLEEP1", "46"))
U_SLEEPM = int(os.environ.get("U_SLEEPM", "14"))
U_SLEEPP = int(os.environ.get("U_SLEEPP", "12"))
STAMP = int(os.environ.get("STAMP", "0"))
L1FIRST = 0
FORCEPOL = os.environ.get("FORCEPOL", "")
U_SLEEPD = int(os.environ.get("U_SLEEPD", "18"))
DOOR = int(os.environ.get("DOOR", "1"))
C_GAP = int(os.environ.get("C_GAP", "56"))
C_UXTAIL = int(os.environ.get("C_UXTAIL", "16"))
V_SLEEP = int(os.environ.get("V_SLEEP", "4"))
VM_FILL = int(os.environ.get("VM_FILL", "3"))
PKADD = int(os.environ.get("PKADD", "1"))
PDELAY = int(os.environ.get("PDELAY", "0"))
TDEPTH = int(os.environ.get("TDEPTH", "2"))
PDEPTH = int(os.environ.get("PDEPTH", "2"))
CT0 = 20 * int(os.environ.get("CSEG0", "54"))
XMAP = int(os.environ.get("XMAP", "76540321"), 16)
WARM = int(os.environ.get("WARM", "0"))
DST = int(os.environ.get("DST", "0"))
NOMIMIC = int(os.environ.get("NOMIMIC", "1"))
ALAT = int(os.environ.get("ALAT", "44"))
VMFIRST = int(os.environ.get("VMFIRST", "0"))
V_HOLD = int(os.environ.get("V_HOLD", "14"))
V_LAZY = int(os.environ.get("V_LAZY", "0"))
U_HOLD = int(os.environ.get("U_HOLD", "0"))
P_HOLD = int(os.environ.get("P_HOLD", "0"))
VDEPTH = int(os.environ.get("VDEPTH", "2"))
NOTOK = int(os.environ.get("NOTOK", "0"))

WS, DBG, WQ, WK, XS = "s[8:11]", "s[12:15]", "s[16:19]", "s[20:23]", "s[24:27]"
sW, sID, sSTEP, sBUD = 3, 28, 29, 30
vLANE, vIDX = 2, 4
vL16, vL16b, vL16c = 5, 6, 7
vM8 = 187
sSA, sSB = 98, 99
MEMF = 16
ACC = 56
LDS_T = 0x14000
LDS_R = 0x15000
LDS_ROLE = 0x1F000


def wreg(t, ks, n=4):
    idx = (t * 20 + ks) * 4
    if idx < 256:
        return ar(idx, n)
    return vr(192 + idx - 256, n)


def widx(idx, n=4):
    return ar(idx, n) if idx < 256 else vr(192 + idx - 256, n)


def l16(off):
    return f"v{vL16 + off // 4096}", off % 4096


def poll_fail(a, retry_label, sleep=2):
    ok = a.newlabel("pok")
    a(f"""
    s_cbranch_vccz {ok}
    s_sub_u32 s{sBUD}, s{sBUD}, 1
    s_cmp_lt_i32 s{sBUD}, 0
    s_cbranch_scc1 {ok}
    s_sleep {sleep}
    s_branch {retry_label}
    """)
    a.label(ok)


def wait_flag(a, s_flagoff, s_need, s_seen, vt, sleep=8):
    top = a.newlabel("wf")
    done = a.newlabel("wfd")
    a.label(top)
    a(f"""
    s_cmp_ge_u32 s{s_seen}, s{s_need}
    s_cbranch_scc1 {done}
    buffer_load_dword v{vt}, off, {WS}, s{s_flagoff} sc1
    s_waitcnt vmcnt(0)
    v_readfirstlane_b32 s{s_seen}, v{vt}
    s_nop 3
    s_cmp_ge_u32 s{s_seen}, s{s_need}
    s_cbranch_scc1 {done}
    s_sub_u32 s{sBUD}, s{sBUD}, 1
    s_cmp_lt_i32 s{sBUD}, 0
    s_cbranch_scc1 {done}
    s_sleep {sleep}
    s_branch {top}
    """)
    a.label(done)


def vmax_chain(a, vt, regs):
    regs = list(regs)
    a(f"v_max3_u32 v{vt}, v{regs[0]}, v{regs[1]}, v{regs[2]}")
    k = 3
    while k < len(regs):
        if k + 1 < len(regs):
            a(f"v_max3_u32 v{vt}, v{vt}, v{regs[k]}, v{regs[k+1]}")
            k += 2
        else:
            a(f"v_max_u32 v{vt}, v{vt}, v{regs[k]}")
            k += 1
    a(f"v_cmp_eq_u32 vcc, -1, v{vt}")


def get_pol(a, vt):
    from gen_boot import dbg_wait_wg, DBG_INIT, DBG_POL
    dbg_wait_wg(a, [(DBG_INIT, 1), (DBG_POL, 1), (DBG_POL+4, 1)], vt)
    a(f"""
    buffer_load_dwordx2 v[184:185], off, {DBG}, 0 offset:{DBG_POL} sc1
    s_waitcnt vmcnt(0)
    v_readfirstlane_b32 s{sSA}, v184
    v_readfirstlane_b32 s{sSB}, v185
    s_nop 3
    s_and_b32 s{sSA}, s{sSA}, 2
    s_lshl_b32 s{sSA}, s{sSA}, 12
    s_and_b32 s{sSB}, s{sSB}, 2
    s_lshl_b32 s{sSB}, s{sSB}, 12
    v_add_u32 v{vM8}, 16384, v{vL16}
    """)


def mem_loads(a, s_memoff, flag="sc1", start=0):
    for kb in range(start, 10):
        r, o = l16(kb * 1024)
        if kb >= 8:
            r = f"v{vM8}"
        a(f"buffer_load_dwordx4 {vr(MEMF+4*kb,4)}, {r}, {WS}, s{s_memoff} offen offset:{o} {flag}")


DEFERRED = []
MODE2 = [False]


def flush_deferred(a):
    for f in DEFERRED:
        f()
    DEFERRED.clear()


def mem_proj(a, tiles, s_memoff, vmax, sleep=1, after_first=None):
    base = a.newlabel("mp")
    mem_loads(a, s_memoff, "" if L1FIRST else "sc1")
    for t in tiles:
        for r in range(4):
            a(f"v_mov_b32 v{ACC+4*t+r}, 0")

    def chk(kb):
        f = MEMF + 4 * kb
        return [f"s_waitcnt vmcnt({9-kb})",
                f"v_max3_u32 v{vmax}, v{f}, v{f+1}, v{f+2}",
                f"v_max_u32 v{vmax}, v{vmax}, v{f+3}\nv_cmp_eq_u32 vcc, -1, v{vmax}"]
    for x in chk(0):
        a(x)
    a(f"s_cbranch_vccnz {base}_r0")
    for kb in range(10):
        f = MEMF + 4 * kb
        a.label(f"{base}_c{kb}")
        if STAMP == 2 and kb in (0, 4, 9):
            a(f"s_memrealtime s[{ {0:86,4:88,9:90}[kb] }:{ {0:87,4:89,9:91}[kb] }]")
        if kb == 9 and after_first:
            after_first()
        nxt = chk(kb + 1) if kb < 9 else []
        for n, t in enumerate(tiles):
            a(f"v_smfmac_f32_16x16x64_bf16 {vr(ACC+4*t,4)}, {vr(f,4)}, {wreg(t,2*kb,8)}, v{vIDX}")
            if n < len(nxt):
                a(nxt[n])
        for x in nxt[len(tiles):]:
            a(x)
        if kb < 9:
            a(f"s_cbranch_vccnz {base}_r{kb+1}")

    def ool():
        for kb in range(10):
            a.label(f"{base}_r{kb}")
            a(f"""
            s_sub_u32 s{sBUD}, s{sBUD}, 1
            s_cmp_lt_i32 s{sBUD}, 0
            s_cbranch_scc1 {base}_c{kb}
            s_sleep {sleep}
            """)
            mem_loads(a, s_memoff, "sc1", kb)
            for x in chk(kb):
                a(x)
            a(f"s_cbranch_vccnz {base}_r{kb}")
            a(f"s_branch {base}_c{kb}")
    DEFERRED.append(ool)


LDS_M = 0x18000


def mem_setup(a):
    a(f"""
    s_lshl_b32 s40, s{sW}, 10
    v_add_u32 v176, s40, v{vL16}
    v_add_u32 v177, 4096, v176
    v_add_u32 v178, 16384, v176
    v_add_u32 v179, 0x{LDS_M:x}, v176
    v_add_u32 v175, 0x{LDS_M:x}, v{vL16}
    s_cmp_lt_u32 s{sW}, 2
    s_cbranch_scc1 {a.newlabel("ms")}_ok
    v_mov_b32 v178, 0x7ffffff0
    """)
    a.label(f"ms_{a.uid}_ok")


def mem_proj2(a, order, s_memoff, vmax, after_valid=None, fill=None):
    top = a.newlabel("mq")
    G = 160
    a.label(top)
    for k in range(3):
        a(f"buffer_load_dwordx4 {vr(G+4*k,4)}, v{176+k}, {WS}, s{s_memoff} offen sc1")
    for grp in order:
        for t in grp:
            for r in range(4):
                a(f"v_mov_b32 v{ACC+4*t+r}, 0")
    a("s_waitcnt vmcnt(2)")
    a(f"ds_write_b128 v179, {vr(G,4)}")
    a(f"v_max3_u32 v{vmax}, v{G}, v{G+1}, v{G+2}")
    a("s_waitcnt vmcnt(1)")
    a(f"ds_write_b128 v179, {vr(G+4,4)} offset:4096")
    a(f"v_max3_u32 v{vmax}, v{vmax}, v{G+3}, v{G+4}")
    a(f"v_max3_u32 v{vmax}, v{vmax}, v{G+5}, v{G+6}")
    a("s_waitcnt vmcnt(0)")
    a(f"ds_write_b128 v179, {vr(G+8,4)} offset:8192")
    a(f"v_max3_u32 v{vmax}, v{vmax}, v{G+7}, v{G+8}")
    a(f"v_max3_u32 v{vmax}, v{vmax}, v{G+9}, v{G+10}")
    a(f"v_max_u32 v{vmax}, v{vmax}, v{G+11}")
    a(f"v_cmp_eq_u32 vcc, -1, v{vmax}")
    poll_fail(a, top, sleep=1)
    if after_valid:
        after_valid()
    if STAMP == 2:
        a("s_memrealtime s[86:87]")
    join = a.newlabel("mj")
    labs = [a.newlabel("mw") for _ in range(4)]
    a(f"""
    s_cmp_ge_u32 s{sW}, 2
    s_cbranch_scc1 {labs[2]}
    s_cmp_eq_u32 s{sW}, 1
    s_cbranch_scc1 {labs[1]}
    """)

    def sm(t, kb, src):
        a(f"v_smfmac_f32_16x16x64_bf16 {vr(ACC+4*t,4)}, {vr(src,4)}, {wreg(t,2*kb,8)}, v{vIDX}")
    for w in range(4):
        a.label(labs[w])
        if w == 2:
            a(f"""
            s_cmp_eq_u32 s{sW}, 3
            s_cbranch_scc1 {labs[3]}
            """)
        own = [w, w + 4] + ([8 + w] if w < 2 else [])
        oth = [kb for kb in range(10) if kb not in own]
        a("s_waitcnt lgkmcnt(0)")
        a("s_barrier")
        if STAMP == 2:
            a("s_memrealtime s[88:89]")
        for kb in oth:
            a(f"ds_read_b128 {vr(MEMF+4*kb,4)}, v175 offset:{kb*1024}")
        for grp in order:
            for k, kb in enumerate(own):
                for t in grp:
                    sm(t, kb, G + 4*k)
        for gi, grp in enumerate(order):
            F = list(fill.get(gi, [])) if fill else []
            n = 0
            tot = len(oth) * len(grp)
            for k, kb in enumerate(oth):
                if gi == 0:
                    a(f"s_waitcnt lgkmcnt({len(oth)-1-k})")
                for t in grp:
                    sm(t, kb, MEMF + 4*kb)
                    n += 1
                    if F and n == 2:
                        a.nop(6)
                    if n >= 2 and F:
                        a(F.pop(0))
            for x in F:
                a(x)
        if w < 3:
            a(f"s_branch {join}")
    a.label(join)
    if STAMP == 2:
        a("s_memrealtime s[90:91]")


def combine_list(t0, t1, d01, d23):
    A, B = ACC + 4 * t0, ACC + 4 * t1
    L = [f"v_permlane32_swap_b32 v{A+r}, v{B+r}" for r in range(4)]
    L += [f"v_pk_add_f32 v[{A+r}:{A+r+1}], v[{A+r}:{A+r+1}], v[{B+r}:{B+r+1}]" for r in (0, 2)]
    L += [f"v_cvt_pk_bf16_f32 v{d01}, v{A}, v{A+1}", f"v_cvt_pk_bf16_f32 v{d23}, v{A+2}, v{A+3}"]
    return L


def combine_pair(a, t0, t1, d01, d23):
    A, B = ACC + 4 * t0, ACC + 4 * t1
    for r in range(4):
        a(f"v_permlane32_swap_b32 v{A+r}, v{B+r}")
    if PKADD:
        for r in (0, 2):
            a(f"v_pk_add_f32 v[{A+r}:{A+r+1}], v[{A+r}:{A+r+1}], v[{B+r}:{B+r+1}]")
    else:
        for r in range(4):
            a(f"v_add_f32 v{A+r}, v{A+r}, v{B+r}")
    a(f"v_cvt_pk_bf16_f32 v{d01}, v{A}, v{A+1}")
    a(f"v_cvt_pk_bf16_f32 v{d23}, v{A+2}, v{A+3}")


def load_wqk(a, mats=(WQ, WK), depth=3, slot=32768, nbuf=4, pre=None, mid=None):
    a.comment("---- load Wq/Wk fragments")
    a(f"""
    v_lshrrev_b32 v10, 4, v{vLANE}          ; r = lane/16
    v_and_b32 v11, 15, v{vLANE}             ; chunk'
    v_and_b32 v12, 1, v10
    s_lshl_b32 s40, s{sW}, 1
    v_or_b32 v12, s40, v12                  ; f = (r&1)|(w<<1)
    v_lshlrev_b32 v12, 1, v12
    v_xor_b32 v11, v11, v12
    v_lshlrev_b32 v11, 4, v11
    s_lshl_b32 s40, s{sW}, 2
    v_add_u32 v12, s40, v10                 ; 4w+r
    v_lshl_add_u32 v11, v12, 13, v11
    s_lshl_b32 s41, s{sID}, 8
    s_lshl_b32 s42, s{sW}, 10
    v_bfe_u32 v12, v{vLANE}, 2, 2           ; r
    v_and_b32 v13, 3, v{vLANE}              ; c
    v_lshrrev_b32 v14, 1, v10               ; g>>1
    v_lshlrev_b32 v14, 4, v14               ; 16*(g>>1)
    v_and_b32 v15, 1, v10                   ; g&1
    v_lshl_add_u32 v14, v15, 2, v14         ; +4*(g&1)
    v_and_b32 v16, 1, v12
    v_add_u32 v14, v14, v16                 ; +(r&1)
    v_lshrrev_b32 v17, 1, v12               ; r>>1
    v_lshl_add_u32 v14, v17, 3, v14         ; +8*(r>>1)
    v_lshlrev_b32 v14, 8, v14
    v_lshl_add_u32 v14, v13, 3, v14         ; + c*8
    v_lshl_or_b32 v16, v15, 1, v16
    v_lshl_or_b32 v16, v17, 2, v16          ; f
    v_lshl_or_b32 v14, v16, 5, v14
    s_lshl_b32 s40, s{sW}, 6                ; (2w)<<5
    v_xor_b32 v18, s40, v14                 ; tile 2w
    v_xor_b32 v19, 32, v18                  ; tile 2w+1
    v_add_u32 v20, 0x10000, v18
    v_add_u32 v21, 0x10000, v19
    """)

    nm = len(mats)

    def dma(cn):
        buf = cn % nbuf
        for mat, sd in enumerate(mats):
            for q in range(4):
                a(f"""
                s_add_u32 s43, s42, {buf*slot + mat*16384 + q*4096}
                s_mov_b32 m0, s43
                s_add_u32 s44, s41, {(cn*64+16*q)*8192}
                buffer_load_dwordx4 v11, {sd}, s44 offen lds
                """)
    for cn in range(depth):
        dma(cn)
    if pre:
        pre()
    for cn in range(10):
        later = min(depth - 1, 9 - cn)
        extra = 20 if (pre and cn < depth) else 0
        a(f"s_waitcnt vmcnt({4*nm*later + extra})")
        a("s_barrier")
        if cn + depth < 10:
            dma(cn + depth)
        buf = cn % nbuf
        off = buf * slot
        for mat in range(nm):
            for tt in range(2):
                for ksl in range(2):
                    for j in range(2):
                        idx = ((mat*2+tt) * 20 + cn*2 + ksl) * 4 + 2*j
                        av = 18 + tt + (2 if off >= 65536 else 0)
                        a(f"ds_read_b64_tr_b16 {widx(idx,2)}, v{av} offset:{off % 65536 + mat*16384 + ksl*8192 + j*512}")
            a("s_waitcnt lgkmcnt(0)")
        if mid and cn == depth:
            mid()
    a("s_barrier")


def load_wv_wo(a):
    a.comment("---- Wo addressing")
    for q in range(5):
        a(f"""
        v_add_u32 v10, {64*q}, v{vLANE}
        v_mul_u32_u24 v11, 3277, v10
        v_lshrrev_b32 v11, 16, v11
        v_mul_u32_u24 v12, 20, v11
        v_sub_u32 v10, v10, v12
        v_mul_u32_u24 v11, 1280, v11
        v_lshl_add_u32 v{24+q}, v10, 4, v11
        """)
    a(f"""
    s_mul_i32 s46, s{sID}, 163840
    s_mul_i32 s40, s{sW}, 320
    s_add_u32 s46, s46, s40
    s_mul_i32 s47, s{sW}, 20480
    s_add_u32 s47, s47, {16384*(VDEPTH+1)}
    v_lshrrev_b32 v10, 4, v{vLANE}
    v_bfe_u32 v11, v{vLANE}, 2, 2
    v_lshl_add_u32 v10, v10, 2, v11
    v_mul_u32_u24 v10, 320, v10
    v_and_b32 v11, 3, v{vLANE}
    v_lshl_add_u32 v10, v11, 3, v10
    v_add_u32 v29, s47, v10
    """)

    def wo_dma():
        a("s_mov_b32 s45, s47")
        for blk_ in range(4):
            for q in range(5):
                a(f"""
                s_mov_b32 m0, s45
                s_add_u32 s45, s45, 1024
                buffer_load_dwordx4 v{24+q}, {WK}, s46 offen lds
                """)
            a(f"s_add_u32 s46, s46, {16*1280}")

    def wo_rd(half):
        for jt in range(10):
            for kl in range(2):
                for j in range(2):
                    idx = 160 + (jt*4 + half*2 + kl) * 4 + 2*j
                    a(f"ds_read_b64_tr_b16 {widx(idx,2)}, v29 offset:{(32*kl+16*j)*320 + jt*32}")
            if jt % 2 == 1:
                a("s_waitcnt lgkmcnt(0)")

    def mid():
        wo_rd(0)
        wo_dma()
    load_wqk(a, (WQ,), depth=VDEPTH, slot=16384, nbuf=VDEPTH+1, pre=wo_dma, mid=mid)
    wo_rd(1)
    a("s_barrier")


def load_wo(a, sd):
    a.comment("---- load Wo fragments")
    for q in range(5):
        a(f"""
        v_add_u32 v10, {64*q}, v{vLANE}
        v_mul_u32_u24 v11, 3277, v10
        v_lshrrev_b32 v11, 16, v11            ; row = q/20
        v_mul_u32_u24 v12, 20, v11
        v_sub_u32 v10, v10, v12               ; chunk
        v_mul_u32_u24 v11, 1280, v11
        v_lshl_add_u32 v{16+q}, v10, 4, v11
        """)
    a(f"""
    s_mul_i32 s41, s{sID}, 163840
    s_mul_i32 s40, s{sW}, 320
    s_add_u32 s41, s41, s40                 ; soffset
    s_mul_i32 s42, s{sW}, 20480
    v_lshrrev_b32 v10, 4, v{vLANE}          ; g
    v_bfe_u32 v11, v{vLANE}, 2, 2           ; r
    v_lshl_add_u32 v10, v10, 2, v11
    v_mul_u32_u24 v10, 320, v10
    v_and_b32 v11, 3, v{vLANE}
    v_lshl_add_u32 v10, v11, 3, v10
    v_add_u32 v21, s42, v10
    """)
    for half in range(2):
        a("s_mov_b32 s43, s42")
        for blk in range(4):
            for q in range(5):
                a(f"""
                s_mov_b32 m0, s43
                s_add_u32 s43, s43, 1024
                buffer_load_dwordx4 v{16+q}, {sd}, s41 offen lds
                """)
            a(f"s_add_u32 s41, s41, {16*1280}")
        a("s_waitcnt vmcnt(0)")
        for jt in range(10):
            for kl in range(2):
                for j in range(2):
                    idx = 160 + (jt*4 + half*2 + kl) * 4 + 2*j
                    a(f"ds_read_b64_tr_b16 {widx(idx,2)}, v21 offset:{(32*kl+16*j)*320 + jt*32}")
            if jt % 2 == 1:
                a("s_waitcnt lgkmcnt(0)")
    a("s_barrier")


def load_wvo(a):
    a.comment("---- load Wvo fragments (linear)")
    a(f"""
    s_lshl_b32 s40, s{sID}, 2
    s_add_u32 s40, s40, s{sW}
    s_mul_i32 s40, s40, 81920
    s_add_u32 s40, s40, 0x{WS_WVO:x}
    """)
    for f in range(80):
        a(f"buffer_load_dwordx4 {wreg(f//20, f%20)}, v{vL16}, {WS}, s40 offen offset:{(f%4)*1024}")
        if f % 4 == 3:
            a("s_add_u32 s40, s40, 4096")
        if f % 40 == 39:
            a("s_waitcnt vmcnt(20)" if f < 79 else "s_waitcnt vmcnt(0)")


vHG = 15


def dma_h_setup(a):
    a(f"""
    v_and_b32 v10, 15, v{vLANE}
    v_mul_u32_u24 v10, 1280, v10
    v_lshrrev_b32 v{vHG}, 4, v{vLANE}
    v_lshl_add_u32 v{vHG}, v{vHG}, 4, v10
    """)


def dma_h_init(a, s_hoff, s_buf):
    a(f"""
    s_mul_i32 s43, s{sW}, 10240
    s_add_u32 s43, s43, s{s_buf}
    s_lshr_b32 s44, s{sW}, 1
    s_mul_i32 s44, s44, 20480
    s_and_b32 s45, s{sW}, 1
    s_mul_i32 s45, s45, 640
    s_add_u32 s44, s44, s45
    s_add_u32 s44, s44, s{s_hoff}
    """)


def dma_h_one(a):
    a(f"""
    s_mov_b32 m0, s43
    s_add_u32 s43, s43, 1024
    buffer_load_dwordx4 v{vHG}, {WS}, s44 offen sc1 lds
    s_add_u32 s44, s44, 64
    """)


def dmal_init(a, s_hoff, s_buf):
    a(f"""
    s_mul_i32 s43, s{sW}, 10240
    s_add_u32 s44, s43, s{s_hoff}
    s_add_u32 s43, s43, s{s_buf}
    """)


def dmal_one(a):
    a(f"""
    s_mov_b32 m0, s43
    s_add_u32 s43, s43, 1024
    buffer_load_dwordx4 v{vL16}, {WS}, s44 offen sc1 lds
    s_add_u32 s44, s44, 1024
    """)


def dma_h(a, s_hoff, s_buf):
    dma_h_init(a, s_hoff, s_buf)
    for k in range(10):
        dma_h_one(a)


HF = 104
TACC = 72


def dense_proj(a, vH, transposed, hook=None, tiles=(0, 1, 2, 3)):
    def rd(ks):
        st = HF + (ks % 3) * 8
        for mt in range(2):
            a(f"ds_read_b128 {vr(st+4*mt,4)}, v{vH} offset:{mt*20480+ks*1024}")
    rd(0)
    rd(1)
    for ks in range(20):
        if ks + 2 < 20:
            rd(ks + 2)
            a("s_waitcnt lgkmcnt(4)")
        elif ks + 1 < 20:
            a("s_waitcnt lgkmcnt(2)")
        else:
            a("s_waitcnt lgkmcnt(0)")
        st = HF + (ks % 3) * 8
        for n, t in enumerate(tiles):
            for mt in range(2):
                acc = vr(TACC + (t*2+mt)*4, 4)
                c = "0" if ks == 0 else acc
                if transposed:
                    a(f"v_mfma_f32_16x16x32_bf16 {acc}, {wreg(t,ks)}, {vr(st+4*mt,4)}, {c}")
                else:
                    a(f"v_mfma_f32_16x16x32_bf16 {acc}, {vr(st+4*mt,4)}, {wreg(t,ks)}, {c}")
            if n == len(tiles) // 2 - 1 and hook:
                hook(ks)


def round_scale(a, xs, tmp, s_scale):
    def rnd():
        for k in range(0, len(xs), 2):
            x0 = xs[k]
            x1 = xs[k+1] if k + 1 < len(xs) else xs[k]
            a(f"v_cvt_pk_bf16_f32 v{tmp+k//2}, v{x0}, v{x1}")
        for k in range(0, len(xs), 2):
            a(f"v_lshlrev_b32 v{xs[k]}, 16, v{tmp+k//2}")
            if k + 1 < len(xs):
                a(f"v_and_b32 v{xs[k+1]}, 0xffff0000, v{tmp+k//2}")
    rnd()
    for x in xs:
        a(f"v_mul_f32 v{x}, s{s_scale}, v{x}")
    rnd()


def xlane(a, op, v, t, with8):
    if with8:
        a.nop(2)
        a(f"{op}_dpp v{v}, v{v}, v{v} row_ror:8 row_mask:0xf bank_mask:0xf")
    for sw in ("v_permlane16_swap_b32", "v_permlane32_swap_b32"):
        a(f"v_mov_b32 v{t}, v{v}")
        a.nop(2)
        a(f"{sw} v{v}, v{t}")
        a(f"{op} v{v}, v{v}, v{t}")


def softmax(a, xs, vm, vt, s_log2e, with8):
    a(f"v_max3_f32 v{vm}, v{xs[0]}, v{xs[1]}, v{xs[2]}")
    k = 3
    while k < len(xs):
        if k + 1 < len(xs):
            a(f"v_max3_f32 v{vm}, v{vm}, v{xs[k]}, v{xs[k+1]}")
            k += 2
        else:
            a(f"v_max_f32 v{vm}, v{vm}, v{xs[k]}")
            k += 1
    xlane(a, "v_max_f32", vm, vt, with8)
    for x in xs:
        a(f"v_sub_f32 v{x}, v{x}, v{vm}")
    for x in xs:
        a(f"v_mul_f32 v{x}, s{s_log2e}, v{x}")
    for x in xs:
        a(f"v_exp_f32 v{x}, v{x}")
    a(f"v_add_f32 v{vm}, v{xs[0]}, v{xs[1]}")
    for x in xs[2:]:
        a(f"v_add_f32 v{vm}, v{vm}, v{x}")
    xlane(a, "v_add_f32", vm, vt, with8)
    a(f"v_rcp_f32 v{vm}, v{vm}")
    a.nop(1)
    for x in xs:
        a(f"v_mul_f32 v{x}, v{x}, v{vm}")


def setup_qk_lds_addrs(a, vW, vR):
    a(f"""
    v_and_b32 v10, 15, v{vLANE}             ; n
    v_lshrrev_b32 v11, 4, v{vLANE}          ; g
    v_lshrrev_b32 v12, 1, v11
    v_lshl_add_u32 v10, v12, 4, v10         ; 16*(g>>1)+n
    s_lshl_b32 s40, s{sW}, 5
    v_add_u32 v10, s40, v10                 ; +32w
    v_lshlrev_b32 v10, 4, v10
    v_and_b32 v12, 1, v11
    v_lshl_add_u32 v10, v12, 3, v10
    v_add_u32 v{vW}, 0x{LDS_T:x}, v10
    v_bfe_u32 v12, v{vLANE}, 2, 2           ; r
    v_lshl_add_u32 v12, v11, 2, v12         ; 4g+r
    v_lshlrev_b32 v12, 4, v12
    v_and_b32 v13, 1, v{vLANE}
    v_lshl_add_u32 v12, v13, 3, v12
    v_add_u32 v{vR}, 0x{LDS_T:x}, v12
    """)


def setup_p_load_addrs(a, vA, vB, vM, wstride=8*640, hstride=10240):
    a(f"""
    v_bfe_u32 v10, v{vLANE}, 3, 1           ; rho
    v_and_b32 v11, 7, v{vLANE}              ; i
    v_lshrrev_b32 v12, 4, v{vLANE}          ; gA
    v_lshrrev_b32 v13, 1, v12               ; gA>>1
    v_and_b32 v14, 1, v12                   ; gA&1
    s_mul_i32 s40, s{sW}, {wstride}
    v_mul_u32_u24 v15, 640, v10
    v_add_u32 v15, s40, v15
    v_lshl_add_u32 v15, v13, 8, v15
    v_lshl_add_u32 v15, v11, 5, v15
    v_lshl_add_u32 v{vA}, v14, 4, v15
    v_lshl_add_u32 v15, v13, 2, v14
    v_mul_u32_u24 v15, 640, v15
    v_add_u32 v15, s40, v15
    v_lshl_add_u32 v15, v10, 6, v15
    v_lshl_add_u32 v15, v11, 3, v15
    v_add_u32 v{vB}, 512, v15
    s_mul_i32 s40, s{sW}, {8*hstride}
    v_mul_u32_u24 v15, {hstride}, v13
    v_add_u32 v15, s40, v15
    v_lshl_add_u32 v15, v14, 7, v15
    v_and_b32 v11, 15, v{vLANE}
    v_lshl_add_u32 v{vM}, v11, 3, v15
    """)


def p_loads(a, PF, vA, vB, s_off):
    for blk in range(2):
        for pi in range(2):
            a(f"buffer_load_dwordx4 {vr(PF+(blk*2+pi)*4,4)}, v{vA}, {WS}, s{s_off} offen offset:{(4*blk+pi)*640} sc1")
    for pi in range(2):
        a(f"buffer_load_dwordx2 {vr(PF+16+2*pi,2)}, v{vB}, {WS}, s{s_off} offen offset:{pi*640} sc1")


def p_combine(a, PF, BX, BM, CA, vmax):
    for blk in range(2):
        for pi in range(2):
            f = PF + (blk*2+pi)*4
            a(f"v_smfmac_f32_16x16x64_bf16 {vr(CA+4*pi,4)}, {vr(f,4)}, {vr(BX+8*blk,8)}, v{vIDX}")
            if vmax is not None:
                a(f"v_max3_u32 v{vmax}, v{vmax}, v{f}, v{f+1}")
                a(f"v_max3_u32 v{vmax}, v{vmax}, v{f+2}, v{f+3}")
    a.nop(2 if vmax is not None else 6)
    for pi in range(2):
        f = PF + 16 + 2*pi
        a(f"v_smfmac_f32_16x16x32_bf16 {vr(CA+4*pi,4)}, {vr(f,2)}, {vr(BM,4)}, v{vIDX}")
        if vmax is not None:
            a(f"v_max3_u32 v{vmax}, v{vmax}, v{f}, v{f+1}")


def setup_red_addrs(a, vWr, vRd):
    a(f"""
    v_and_b32 v10, 15, v{vLANE}             ; n
    v_lshrrev_b32 v11, 4, v{vLANE}          ; g
    v_and_b32 v12, 1, v11
    v_lshlrev_b32 v12, 10, v12              ; 4*(g&1)*256
    v_lshl_add_u32 v12, v10, 5, v12         ; + n*32
    v_lshrrev_b32 v13, 1, v11
    v_lshl_add_u32 v12, v13, 2, v12         ; + (g>>1)*4
    s_lshl_b32 s40, s{sW}, 3
    s_add_u32 s40, s40, 0x{LDS_R:x}
    v_add_u32 v12, s40, v12
    v_mov_b32 v13, 0x{LDS_R+0x2800:x}
    v_cmp_gt_u32 vcc, 8, v10
    s_nop 1
    v_cndmask_b32 v{vWr}, v13, v12, vcc
    v_lshlrev_b32 v12, 5, v{vLANE}
    v_add_u32 v{vRd}, 0x{LDS_R:x}, v12
    """)


def red_write(a, CA, vWr, off):
    for r in range(4):
        a(f"v_add_f32_dpp v{CA+r}, v{CA+4+r}, v{CA+r} row_ror:8 row_mask:0xf bank_mask:0xf")
    for r in range(4):
        a(f"ds_write_b32 v{vWr}, v{CA+r} offset:{off + r*256}")


LB = 140
L_SRC, L_DST, L_M, L_V, L_T, L_T2 = LB, LB+1, LB+2, LB+3, LB+4, LB+5
L_RAW, L_OUT, L_X, L_SC, L_SH = LB+8, LB+16, LB+24, LB+40, LB+56


def ln_wave_sum(a, v):
    for ctrl in ["quad_perm:[1,0,3,2]", "quad_perm:[2,3,0,1]", "row_half_mirror", "row_mirror"]:
        a.nop(2)
        a(f"v_add_f32_dpp v{v}, v{v}, v{v} {ctrl} row_mask:0xf bank_mask:0xf")
    a.nop(1)
    a(f"v_readlane_b32 s72, v{v}, 0")
    a(f"v_readlane_b32 s73, v{v}, 16")
    a(f"v_readlane_b32 s74, v{v}, 32")
    a.nop(2)
    a(f"v_mov_b32 v{v}, s72")
    a(f"v_add_f32 v{v}, s73, v{v}")
    a(f"v_add_f32 v{v}, s74, v{v}")


def bf16r(a, v):
    a(f"v_cvt_pk_bf16_f32 v{v}, v{v}, v{v}")
    a(f"v_and_b32 v{v}, 0xffff0000, v{v}")


def ln_setup(a, shift_idx, scale_idx, perm):
    a(f"""
    v_cmp_gt_u32 vcc, 40, v{vLANE}
    v_mov_b32 v{L_T}, 0x7ffffff0
    v_lshlrev_b32 v{L_DST}, 4, v{vLANE}
    """)
    if perm:
        a(f"""
        v_lshrrev_b32 v{L_SRC}, 1, v{vLANE}
        v_lshlrev_b32 v{L_SRC}, 5, v{L_SRC}
        v_and_b32 v{L_T2}, 1, v{vLANE}
        v_lshl_add_u32 v{L_SRC}, v{L_T2}, 3, v{L_SRC}
        """)
    else:
        a(f"v_mov_b32 v{L_SRC}, v{L_DST}")
    a(f"""
    v_lshlrev_b32 v{L_T2}, 1, v{L_SRC}
    v_cndmask_b32 v{L_SRC}, v{L_T}, v{L_SRC}, vcc
    v_cndmask_b32 v{L_T2}, v{L_T}, v{L_T2}, vcc
    v_cndmask_b32 v{L_DST}, v{L_T}, v{L_DST}, vcc
    s_mov_b64 s[76:77], vcc
    s_mov_b32 s72, {WS_MOD + scale_idx*2560}
    s_mov_b32 s73, {WS_MOD + shift_idx*2560}
    """)
    for dst, so in ((L_SC, 72), (L_SH, 73)):
        for h in range(2):
            if perm:
                a(f"buffer_load_dwordx2 {vr(dst+8*h,2)}, v{L_T2}, {WS}, s{so} offen offset:{h*1280}")
                a(f"buffer_load_dwordx2 {vr(dst+8*h+4,2)}, v{L_T2}, {WS}, s{so} offen offset:{h*1280+8}")
                a(f"buffer_load_dwordx2 {vr(dst+8*h+2,2)}, v{L_T2}, {WS}, s{so} offen offset:{h*1280+32}")
                a(f"buffer_load_dwordx2 {vr(dst+8*h+6,2)}, v{L_T2}, {WS}, s{so} offen offset:{h*1280+40}")
            else:
                a(f"buffer_load_dwordx4 {vr(dst+8*h,4)}, v{L_T2}, {WS}, s{so} offen offset:{h*1280} sc1")
                a(f"buffer_load_dwordx4 {vr(dst+8*h+4,4)}, v{L_T2}, {WS}, s{so} offen offset:{h*1280+16} sc1")
    a("s_waitcnt vmcnt(0)")
    for j in range(8):
        a(f"v_add_f32 v{L_SC+2*j}, 1.0, v{L_SC+2*j}")
        a(f"v_add_f32 v{L_SC+2*j+1}, 1.0, v{L_SC+2*j+1}")
        a(f"v_cvt_pk_bf16_f32 v{L_T}, v{L_SC+2*j}, v{L_SC+2*j+1}")
        a(f"v_lshlrev_b32 v{L_SC+2*j}, 16, v{L_T}")
        a(f"v_and_b32 v{L_SC+2*j+1}, 0xffff0000, v{L_T}")


def ln_load(a, srd_, s_off, fl, perm, raw=L_RAW, extra=0):
    if perm:
        for h in range(2):
            a(f"buffer_load_dwordx2 {vr(raw+4*h,2)}, v{L_SRC}, {srd_}, s{s_off} offen offset:{extra+h*640} {fl}")
            a(f"buffer_load_dwordx2 {vr(raw+4*h+2,2)}, v{L_SRC}, {srd_}, s{s_off} offen offset:{extra+h*640+16} {fl}")
        return 4
    for h in range(2):
        a(f"buffer_load_dwordx4 {vr(raw+4*h,4)}, v{L_SRC}, {srd_}, s{s_off} offen offset:{extra+h*640} {fl}")
    return 2


def ln_unpack(a, perm, raw=L_RAW):
    pos = [0, 2, 1, 3] if perm else [0, 1, 2, 3]
    for h in range(2):
        for j in range(4):
            d = 4*h + pos[j]
            a(f"v_lshlrev_b32 v{L_X+2*d}, 16, v{raw+4*h+j}")
            a(f"v_and_b32 v{L_X+2*d+1}, 0xffff0000, v{raw+4*h+j}")


def ln_compute_store(a, s_dst, extra=0, out=L_OUT):
    X = L_X
    a(f"v_add_f32 v{L_M}, v{X}, v{X+1}")
    a(f"v_add_f32 v{L_T}, v{X+2}, v{X+3}")
    for j in range(4, 16, 2):
        a(f"v_add_f32 v{L_M}, v{L_M}, v{X+j}")
        a(f"v_add_f32 v{L_T}, v{L_T}, v{X+j+1}")
    a(f"v_add_f32 v{L_M}, v{L_M}, v{L_T}")
    ln_wave_sum(a, L_M)
    a(f"v_mul_f32 v{L_M}, 0x3acccccd, v{L_M}")
    a(f"v_sub_f32 v{L_T}, v{X}, v{L_M}")
    a(f"v_mul_f32 v{L_V}, v{L_T}, v{L_T}")
    for j in range(1, 16):
        t = L_T if j % 2 == 0 else L_T2
        a(f"v_sub_f32 v{t}, v{X+j}, v{L_M}")
        a(f"v_fmac_f32 v{L_V}, v{t}, v{t}")
    a(f"v_cndmask_b32 v{L_V}, 0, v{L_V}, s[76:77]")
    ln_wave_sum(a, L_V)
    a(f"v_mul_f32 v{L_V}, 0x3acccccd, v{L_V}")
    bf16r(a, L_V)
    a(f"v_add_f32 v{L_V}, 0x3727c5ac, v{L_V}")
    bf16r(a, L_V)
    a(f"v_sqrt_f32 v{L_V}, v{L_V}")
    a.nop(1)
    bf16r(a, L_V)
    a(f"v_rcp_f32 v{L_V}, v{L_V}")
    bf16r(a, L_M)
    for j in range(8):
        x0, x1 = X + 2*j, X + 2*j + 1
        a(f"""
        v_sub_f32 v{x0}, v{x0}, v{L_M}
        v_sub_f32 v{x1}, v{x1}, v{L_M}
        v_cvt_pk_bf16_f32 v{L_T}, v{x0}, v{x1}
        v_lshlrev_b32 v{x0}, 16, v{L_T}
        v_and_b32 v{x1}, 0xffff0000, v{L_T}
        v_mul_f32 v{x0}, v{x0}, v{L_V}
        v_mul_f32 v{x1}, v{x1}, v{L_V}
        v_cvt_pk_bf16_f32 v{L_T}, v{x0}, v{x1}
        v_lshlrev_b32 v{x0}, 16, v{L_T}
        v_and_b32 v{x1}, 0xffff0000, v{L_T}
        v_mul_f32 v{x0}, v{x0}, v{L_SC+2*j}
        v_mul_f32 v{x1}, v{x1}, v{L_SC+2*j+1}
        v_cvt_pk_bf16_f32 v{L_T}, v{x0}, v{x1}
        v_lshlrev_b32 v{x0}, 16, v{L_T}
        v_and_b32 v{x1}, 0xffff0000, v{L_T}
        v_add_f32 v{x0}, v{x0}, v{L_SH+2*j}
        v_add_f32 v{x1}, v{x1}, v{L_SH+2*j+1}
        v_cvt_pk_bf16_f32 v{out+j}, v{x0}, v{x1}
        v_min_u32 v{out+j}, -2, v{out+j}
        """)
    a(f"buffer_store_dwordx4 {vr(out,4)}, v{L_DST}, {WS}, s{s_dst} offen offset:{extra} sc1")
    a(f"buffer_store_dwordx4 {vr(out+4,4)}, v{L_DST}, {WS}, s{s_dst} offen offset:{extra+640} sc1")


def wait_all(a, nl, vaddr, s_off, s_need, vt, ndw=1, sleep=4):
    top, done = a.newlabel("wa"), a.newlabel("wad")
    a.label(top)
    op = {1: "dword", 4: "dwordx4"}[ndw]
    a(f"""
    s_mov_b32 exec_lo, 0x{(1 << nl) - 1:x}
    s_mov_b32 exec_hi, 0
    buffer_load_{op} {vr(vt, ndw)}, v{vaddr}, {WS}, s{s_off} offen sc1
    s_waitcnt vmcnt(0)
    """)
    if ndw == 4:
        a(f"v_min3_u32 v{vt}, v{vt}, v{vt+1}, v{vt+2}")
        a(f"v_min_u32 v{vt}, v{vt}, v{vt+3}")
    a(f"""
    v_cmp_gt_u32 vcc, s{s_need}, v{vt}
    s_mov_b64 exec, -1
    s_cbranch_vccz {done}
    s_sub_u32 s{sBUD}, s{sBUD}, 1
    s_cmp_lt_i32 s{sBUD}, 0
    s_cbranch_scc1 {done}
    s_sleep {sleep}
    s_branch {top}
    """)
    a.label(done)


WS_TRACE = 0x0F000000


def stamp(a, slot):
    if not STAMP:
        return
    if STAMP == 2 and MODE2[0] and slot in (3, 4):
        slot = 6
    if STAMP == 2 and MODE2[0] and slot == 0:
        a("s_memtime s[80:81]")
        return
    a(f"s_memrealtime s[{80+2*slot}:{81+2*slot}]")


def dstamp(a, word, vt, cond=""):
    if not DST:
        return
    lab = a.newlabel("ds")
    a(f"""
    {cond.format(lab=lab)}
    s_cmp_lg_u32 s{sW}, 0
    s_cbranch_scc1 {lab}
    s_memrealtime s[80:81]
    s_waitcnt lgkmcnt(0)
    v_mov_b32 v{vt}, s80
    s_mov_b64 exec, 1
    buffer_store_dword v{vt}, off, {DBG}, 0 offset:{word*4}
    s_mov_b64 exec, -1
    {lab}:
    """)


def stamp_flush(a, n, vt):
    if not STAMP:
        return
    if STAMP == 2 and MODE2[0]:
        n = 7
    skip = a.newlabel("stf")
    a(f"""
    s_cmp_lg_u32 s{sW}, 0
    s_cbranch_scc1 {skip}
    s_waitcnt lgkmcnt(0)
    s_lshl_b32 s96, s{sSTEP}, 5
    s_add_u32 s96, s96, s97
    s_mov_b64 exec, 1
    """)
    for k in range(n):
        a(f"v_mov_b32 v{vt}, s{80+2*k}")
        a(f"buffer_store_dword v{vt}, off, {WS}, s96 offset:{4*k}")
        a.nop(2)
    a(f"v_mov_b32 v{vt}, s{sBUD}")
    a(f"buffer_store_dword v{vt}, off, {WS}, s96 offset:28")
    a("s_mov_b64 exec, -1")
    a.label(skip)


def gen_r(a):
    L = NAME + "_kernel"
    kernel_header(a, L)
    a(f"""
    s_cmp_ge_u32 s2, 256
    s_cbranch_scc1 r_end
    s_load_dwordx2 s[4:5], s[0:1], {KA_WS}
    s_load_dwordx2 s[6:7], s[0:1], {KA_DBG}
    s_load_dwordx4 s[32:35], s[0:1], {KA_WQ}
    s_load_dwordx2 s[36:37], s[0:1], {KA_X}
    v_lshrrev_b32 v1, 6, v0
    v_and_b32 v{vLANE}, 63, v0
    s_waitcnt lgkmcnt(0)
    """)
    srd(a, 8, 4, WS_SIZE)
    srd(a, 12, 6, 256)
    srd(a, 16, 32, D * H * E * 2)
    srd(a, 20, 34, D * H * E * 2)
    srd(a, 24, 36, S * D * 2)
    a(f"""
    v_readfirstlane_b32 s{sW}, v1
    v_lshlrev_b32 v{vL16}, 4, v{vLANE}
    v_add_u32 v{vL16b}, 4096, v{vL16}
    v_add_u32 v{vL16c}, 8192, v{vL16}
    v_mov_b32 v{vIDX}, 0x4444
    v_mov_b32 v10, 0xeeee
    v_and_b32 v11, 8, v{vLANE}
    v_cmp_ne_u32 vcc, 0, v11
    s_mov_b32 s{sBUD}, 200000
    v_mov_b32 v9, 0x{LDS_ROLE:x}
    v_cndmask_b32 v{vIDX}, v{vIDX}, v10, vcc
    s_cmp_lg_u32 s{sW}, 0
    s_cbranch_scc1 r_warm
    s_getreg_b32 s40, hwreg(HW_REG_XCC_ID)
    s_and_b32 s40, s40, 7
    s_mov_b64 exec, 1
    s_lshl_b32 s43, s40, 2
    s_lshr_b32 s43, 0x{XMAP:x}, s43
    s_and_b32 s43, s43, 7
    s_mov_b32 s48, 0
    """)
    a.label("r_try")
    a(f"""
    s_lshr_b32 s45, s43, 1
    s_lshl_b32 s45, s45, 2
    s_and_b32 s44, s43, 1
    s_lshl_b32 s44, s44, 7
    s_add_u32 s45, s45, s44
    v_mov_b32 v10, 1
    buffer_atomic_add v10, off, {DBG}, s45 sc0
    s_waitcnt vmcnt(0)
    v_readfirstlane_b32 s41, v10
    s_nop 3
    s_cmp_lt_u32 s41, 32
    s_cbranch_scc1 r_got
    s_add_u32 s48, s48, 1
    s_sub_u32 s43, s48, 1
    s_mov_b32 s42, 999
    s_cmp_ge_u32 s43, 8
    s_cbranch_scc1 r_role_done
    s_branch r_try
    """)
    a.label("r_got")
    a(f"""
    s_lshl_b32 s42, s43, 5
    s_add_u32 s42, s42, s41                 ; P: t, VM: 32+t
    s_cmp_lt_u32 s43, 2
    s_cbranch_scc1 r_role_done
    s_cmp_ge_u32 s43, 4
    s_cbranch_scc1 r_got4
    s_sub_u32 s43, s43, 2                   ; q = 0,1
    s_mul_i32 s44, s43, 10
    s_add_u32 s42, s41, s44
    s_add_u32 s42, s42, 239                 ; F2: 239 + 10q + t
    s_cmp_lt_u32 s41, 10
    s_cbranch_scc1 r_role_done
    s_mul_i32 s44, s43, 20
    s_add_u32 s42, s41, s44
    s_add_u32 s42, s42, 54                  ; U: 64 + 20q + (t-10)
    s_cmp_lt_u32 s41, 30
    s_cbranch_scc1 r_role_done
    s_lshl_b32 s44, s43, 1
    s_add_u32 s42, s41, s44
    s_add_u32 s42, s42, 174                 ; L: 204 + 2q + (t-30)
    s_branch r_role_done
    """)
    a.label("r_got4")
    a(f"""
    s_sub_u32 s43, s43, 4                   ; q = 0..3
    s_lshl_b32 s44, s43, 3
    s_add_u32 s42, s41, s44
    s_add_u32 s42, s42, 112                 ; T
    s_cmp_lt_u32 s41, 8
    s_cbranch_scc1 r_role_done
    s_add_u32 s42, s42, 24                  ; VO
    s_cmp_lt_u32 s41, 16
    s_cbranch_scc1 r_role_done
    s_add_u32 s42, s43, 208                 ; L: 204 + 4 + q
    s_cmp_eq_u32 s41, 23
    s_cbranch_scc1 r_role_done
    s_lshl_b32 s44, s43, 1
    s_add_u32 s42, s41, s44
    s_add_u32 s42, s42, 160                 ; A
    s_cmp_lt_u32 s41, 18
    s_cbranch_scc1 r_role_done
    s_mul_i32 s44, s43, 5
    s_add_u32 s42, s41, s44
    s_add_u32 s42, s42, 166                 ; C
    s_cmp_lt_u32 s41, 23
    s_cbranch_scc1 r_role_done
    s_mul_i32 s44, s43, 7
    s_add_u32 s42, s41, s44
    s_add_u32 s42, s42, 188                 ; F1: 212 + 7q + (t-24)
    s_cmp_eq_u32 s42, 239
    s_cselect_b32 s42, 264, s42
    s_add_u32 s44, s43, 260
    s_cmp_eq_u32 s41, 31
    s_cselect_b32 s42, s44, s42
    """)
    a.label("r_role_done")
    a(f"""
    v_mov_b32 v10, s42
    ds_write_b32 v9, v10
    s_mov_b64 exec, -1
    s_waitcnt lgkmcnt(0)
    """)
    a("s_branch r_role_wait")
    a.label("r_warm")
    if WARM:
        a(f"""
        s_getpc_b64 s[40:41]
        r_warm_pc:
        s_sub_u32 s40, s40, r_warm_pc-{L}
        s_subb_u32 s41, s41, 0
        s_lshr_b32 s42, s2, 3
        s_mul_i32 s42, s42, 3
        s_add_u32 s42, s42, s{sW}
        s_sub_u32 s42, s42, 1                   ; 0..95
        s_lshl_b32 s42, s42, 10
        v_add_u32 v12, s42, v{vL16}
        v_min_u32 v12, r_code_end-{L}-16, v12
        global_load_dwordx4 v[16:19], v12, s[40:41]
        s_waitcnt vmcnt(0)
        """)
    a.label("r_role_wait")
    a(f"""
    s_barrier
    ds_read_b32 v10, v9
    s_waitcnt lgkmcnt(0)
    v_readfirstlane_b32 s{sID}, v10
    s_mov_b32 s{sSTEP}, 0
    s_mov_b32 s50, 0x3db504f3          ; 128^-0.5
    s_mov_b32 s51, 0x3fb8aa3b          ; log2(e)
    s_mov_b32 s62, s50
    s_mov_b32 s63, s50
    s_mov_b32 s100, 0
    s_mul_i32 s97, s{sID}, {72*32}
    s_add_u32 s97, s97, 0x{WS_TRACE:x}
    s_barrier
    """)
    if STAMP:
        a(f"""
        s_memrealtime s[80:81]
        s_waitcnt lgkmcnt(0)
        v_mov_b32 v3, s80
        buffer_store_dword v3, off, {WS}, s97 offset:{71*32}
        """)
    a(f"""
    s_cmp_lt_u32 s{sID}, 32
    s_cbranch_scc1 role_p
    s_cmp_lt_u32 s{sID}, 64
    s_cbranch_scc1 role_vm
    s_cmp_lt_u32 s{sID}, 112
    s_cbranch_scc1 boot
    s_cmp_lt_u32 s{sID}, 144
    s_cbranch_scc1 role_t
    s_cmp_lt_u32 s{sID}, 176
    s_cbranch_scc1 role_vo
    s_cmp_ge_u32 s{sID}, 265
    s_cbranch_scc1 r_end
    s_branch boot
    boot_done:
    s_cmp_lt_u32 s{sID}, 112
    s_cbranch_scc1 role_u
    {"s_endpgm" if NOTOK else ""}
    s_cmp_lt_u32 s{sID}, 184
    s_cbranch_scc1 role_al
    s_cmp_lt_u32 s{sID}, 204
    s_cbranch_scc1 role_c
    s_cmp_lt_u32 s{sID}, 212
    s_cbranch_scc1 role_al
    s_cmp_lt_u32 s{sID}, 259
    s_cbranch_scc1 role_f
    s_sub_u32 s{sID}, s{sID}, 56            ; 260.. -> 204..
    s_cmp_lt_u32 s{sID}, 209
    s_cbranch_scc1 role_c
    s_endpgm
    """)

    KF, QF, KMF, SA = 72, 104, 120, 136
    X0 = 148
    vTW, vTR, vST, vSM = 8, 9, 12, 13
    sMEM, sPB, sKX, sFT, sSEEN, sNEED = 31, 32, 33, 34, 35, 36
    from gen_boot import dbg_wait_wg, DBG_MOD20
    a.label("role_p")
    MODE2[0] = True
    dstamp(a, 11, 3, f"s_cmp_lg_u32 s{sID}, 0\ns_cbranch_scc1 {{lab}}")
    if PDELAY:
        dbg_wait_wg(a, [(DBG_MOD20, 1)], 3, sleep=10)
    load_wqk(a, depth=PDEPTH)
    setup_qk_lds_addrs(a, vTW, vTR)
    a(f"""
    v_bfe_u32 v10, v{vLANE}, 3, 1           ; b
    v_and_b32 v11, 7, v{vLANE}              ; i
    v_lshrrev_b32 v14, 4, v{vLANE}          ; g
    v_lshlrev_b32 v{vST}, 8, v10
    v_lshl_add_u32 v{vST}, v11, 5, v{vST}
    v_lshl_add_u32 v{vST}, v14, 3, v{vST}
    v_lshlrev_b32 v{vSM}, 3, v11
    v_and_b32 v15, 1, v14
    v_lshl_add_u32 v{vSM}, v15, 2, v{vSM}
    v_lshrrev_b32 v15, 1, v14
    v_lshl_add_u32 v{vSM}, v15, 6, v{vSM}
    v_add_u32 v{vSM}, 512, v{vSM}
    v_mov_b32 v15, 0x7ffffff0
    v_cmp_ne_u32 vcc, 0, v10
    s_mov_b32 s52, 0xff00ff00
    s_mov_b32 s53, 0xff00ff00
    v_cndmask_b32 v{vSM}, v{vSM}, v15, vcc
    s_mov_b32 s54, 0
    s_mov_b32 s55, -1                       ; s[54:55]: lanes g>=2
    s_lshl_b32 s{sKX}, s{sID}, 13
    s_add_u32 s{sKX}, s{sKX}, 0x{WS_KX:x}
    s_lshl_b32 s{sFT}, s{sID}, 7
    s_add_u32 s{sFT}, s{sFT}, 0x{flag(FL_T):x}
    s_mov_b32 s{sSEEN}, 0
    s_mov_b32 s56, 0x{WS_FLAGS:x}
    ; KM store voff: g*128 + (l%8)*16, lanes with b=1 dropped
    v_lshlrev_b32 v189, 7, v14
    v_lshl_add_u32 v189, v11, 4, v189
    v_cndmask_b32 v189, v189, v15, vcc
    s_lshl_b32 s57, s{sID}, 11
    s_add_u32 s57, s57, 0x{WS_KM:x}
    s_lshl_b32 s58, s{sID}, 2
    s_add_u32 s58, s58, s{sW}
    s_lshl_b32 s60, s{sID}, 7
    s_add_u32 s60, s60, 0x{flag(FL_KM):x}
    v_cmp_gt_u32 vcc, 40, v{vLANE}
    v_mov_b32 v180, -1
    v_mov_b32 v181, -1
    v_mov_b32 v182, -1
    v_mov_b32 v183, -1
    v_cndmask_b32 v186, v15, v{vL16}, vcc
    """)
    get_pol(a, X0)
    mem_setup(a)
    a(f"""
    s_add_u32 s59, s{sSB}, 0x{WS_CRB + CRB_DOOR:x}
    s_add_u32 s64, s{sSB}, 0x{WS_CRB:x}
    s_lshr_b32 s40, s{sID}, 3
    s_lshl_b32 s40, s40, 14
    s_and_b32 s41, s{sID}, 7
    s_mul_i32 s41, s41, 640
    s_add_u32 s65, s40, s41
    s_add_u32 s65, s65, s64
    s_add_u32 s65, s65, {4*16384}           ; p base
    s_mov_b32 s61, 0x3e0293ee               ; 128^-0.5 * log2(e)
    """)
    a.label("p_loop")
    stamp(a, 0)
    a(f"""
    s_and_b32 s40, s{sSTEP}, 3
    s_lshl_b32 s40, s40, 17
    s_add_u32 s{sMEM}, s40, s64
    s_add_u32 s{sPB}, s40, s65
    s_xor_b32 s40, s40, 0x40000
    s_add_u32 s66, s40, s65
    s_cmp_lg_u32 s{sW}, 0
    s_cbranch_scc1 p_sync
    s_add_u32 s{sNEED}, s{sSTEP}, 1
    """)
    if P_HOLD:
        a(f"""
        s_cmp_eq_u32 s{sSTEP}, 0
        s_cbranch_scc1 p_nohold
        s_sleep {P_HOLD}
        p_nohold:
        """)
    wait_flag(a, sFT, sNEED, sSEEN, X0)
    for f in range(8):
        r, o = l16(f * 1024)
        a(f"buffer_load_dwordx4 {vr(KF+4*f,4)}, {r}, {WS}, s{sKX} offen offset:{o} sc1")
    a(f"""
    buffer_load_dword v190, off, {WS}, s{sFT} sc1
    s_cmp_eq_u32 s{sSTEP}, 0
    s_cbranch_scc1 p_sync
    s_sleep {P_SLEEP0-P_HOLD}
    """)
    a.label("p_sync")
    a("s_barrier")
    stamp(a, 1)
    def door():
        if not DOOR:
            return
        a(f"""
        s_cmp_lg_u32 s58, 3
        s_cbranch_scc1 p_nodoor
        s_mov_b64 exec, 1
        buffer_store_dword v188, off, {WS}, s59 sc1
        s_mov_b64 exec, -1
        p_nodoor:
        """)
    a(f"""
    s_add_u32 s40, s{sSTEP}, 1
    v_mov_b32 v188, s40
    """)
    qrd = [f"ds_read_b64_tr_b16 {vr(QF+4*k+2*tp,2)}, v{vTR} offset:{k*512+tp*256}" for k in range(4) for tp in range(2)]
    cl = combine_list(0, 1, X0+2, X0+3)
    fl = ["\n".join(cl[0:2]), "\n".join(cl[2:4]), "\n".join(cl[4:6]), "\n".join(cl[6:8]),
          f"ds_write_b64 v{vTW}, {vr(X0+2,2)}", "s_nop 0", "s_nop 0", "s_waitcnt lgkmcnt(0)\ns_barrier",
          "\n".join(qrd[0:2]), "\n".join(qrd[2:4]), "\n".join(qrd[4:6]), "\n".join(qrd[6:8])]
    mem_proj2(a, [[0, 1], [2, 3]], sMEM, X0, after_valid=door, fill={1: fl})
    stamp(a, 2)
    kc = combine_list(2, 3, X0+4, X0+5) + [f"ds_write_b64 v{vTW}, {vr(X0+4,2)} offset:2048"]
    n = 0
    for k in range(4):
        a(f"s_waitcnt lgkmcnt({[6, 4, 3, 1][k]})")
        for mt in range(2):
            acc = vr(SA+4*mt, 4)
            a(f"v_mfma_f32_16x16x32_bf16 {acc}, {vr(KF+(mt*4+k)*4,4)}, {vr(QF+4*k,4)}, {'0' if k==0 else acc}")
            n += 1
            if n == 2:
                a.nop(5)
            if n >= 2:
                for _ in range(3):
                    if kc:
                        a(kc.pop(0))
    assert not kc
    a(f"""
    s_waitcnt lgkmcnt(0)
    s_barrier
    s_cmp_lg_u32 s{sW}, 0
    s_cbranch_scc1 p_other
    """)
    stamp(a, 3)
    for k2 in range(4):
        for tp in range(2):
            a(f"ds_read_b64_tr_b16 {vr(KMF+4*k2+2*tp,2)}, v{vTR} offset:{2048+k2*512+tp*256}")
    T0 = X0 + 8
    M0, TT, S0, MR, XM, FF = X0+6, X0+7, X0+11, X0+5, X0+4, 172

    def mm(k):
        acc = vr(SA+8, 4)
        return f"""s_waitcnt lgkmcnt({6-2*k})
        v_mfma_f32_16x16x32_bf16 {acc}, {vr(KMF+4*k,4)}, {vr(QF+4*k,4)}, {'0' if k==0 else acc}"""
    if NOMIMIC:
        a(f"""
        v_cndmask_b32 v{X0}, v{SA}, v{SA+4}, s[52:53]
        v_cndmask_b32 v{X0+1}, v{SA+1}, v{SA+5}, s[52:53]
        v_cndmask_b32 v{X0+2}, v{SA+2}, v{SA+6}, s[52:53]
        v_cndmask_b32 v{X0+3}, v{SA+3}, v{SA+7}, s[52:53]
        v_max3_f32 v{M0}, v{X0}, v{X0+1}, v{X0+2}
        v_max_f32 v{M0}, v{M0}, v{X0+3}
        {mm(0)}
        v_max_f32_dpp v{M0}, v{M0}, v{M0} row_ror:8 row_mask:0xf bank_mask:0xf
        v_mov_b32 v{TT}, v{M0}
        {mm(1)}
        v_permlane32_swap_b32 v{M0}, v{TT}
        {mm(2)}
        v_max_f32 v{M0}, v{M0}, v{TT}
        {mm(3)}
        s_nop 7
        v_max3_f32 v{M0}, v{M0}, v{SA+8}, v{SA+9}
        v_max3_f32 v{M0}, v{M0}, v{SA+10}, v{SA+11}
        v_mov_b32 v{TT}, v{M0}
        v_cndmask_b32 v{XM}, v{SA+8}, v{SA+9}, s[52:53]
        v_cndmask_b32 v{FF}, v{SA+10}, v{SA+11}, s[52:53]
        v_permlane16_swap_b32 v{M0}, v{TT}
        v_cndmask_b32 v{XM}, v{XM}, v{FF}, s[54:55]
        v_max_f32 v{M0}, v{M0}, v{TT}
        v_mul_f32 v{M0}, s61, v{M0}
        v_fma_f32 v{XM}, v{XM}, s61, -v{M0}
        v_fma_f32 v{X0}, v{X0}, s61, -v{M0}
        v_exp_f32 v{XM}, v{XM}
        v_fma_f32 v{X0+1}, v{X0+1}, s61, -v{M0}
        v_exp_f32 v{X0}, v{X0}
        v_fma_f32 v{X0+2}, v{X0+2}, s61, -v{M0}
        v_exp_f32 v{X0+1}, v{X0+1}
        v_fma_f32 v{X0+3}, v{X0+3}, s61, -v{M0}
        v_exp_f32 v{X0+2}, v{X0+2}
        v_add_f32 v{S0}, v{X0}, v{XM}
        v_exp_f32 v{X0+3}, v{X0+3}
        v_add_f32 v{S0}, v{S0}, v{X0+1}
        v_add_f32 v{S0}, v{S0}, v{X0+2}
        v_add_f32 v{S0}, v{S0}, v{X0+3}
        v_mov_b32_dpp v{MR}, v{XM} row_ror:8 row_mask:0xf bank_mask:0xf
        s_nop 0
        v_add_f32_dpp v{S0}, v{S0}, v{S0} row_ror:8 row_mask:0xf bank_mask:0xf
        v_mov_b32 v{TT}, v{S0}
        s_nop 1
        v_permlane16_swap_b32 v{S0}, v{TT}
        v_add_f32 v{S0}, v{S0}, v{TT}
        v_mov_b32 v{TT}, v{S0}
        s_nop 1
        v_permlane32_swap_b32 v{S0}, v{TT}
        v_add_f32 v{S0}, v{S0}, v{TT}
        v_rcp_f32 v{S0}, v{S0}
        s_nop 0
        v_mul_f32 v{X0}, v{X0}, v{S0}
        v_mul_f32 v{X0+1}, v{X0+1}, v{S0}
        v_mul_f32 v{X0+2}, v{X0+2}, v{S0}
        v_mul_f32 v{X0+3}, v{X0+3}, v{S0}
        v_cvt_pk_bf16_f32 v{T0}, v{X0}, v{X0+1}
        v_cvt_pk_bf16_f32 v{T0+1}, v{X0+2}, v{X0+3}
        v_mul_f32 v{XM}, v{XM}, v{S0}
        v_min_u32 v{T0}, -2, v{T0}
        v_min_u32 v{T0+1}, -2, v{T0+1}
        v_mul_f32 v{MR}, v{MR}, v{S0}
        buffer_store_dwordx2 {vr(T0,2)}, v{vST}, {WS}, s{sPB} offen sc1
        v_cvt_pk_bf16_f32 v{T0+2}, v{XM}, v{MR}
        v_min_u32 v{T0+2}, -2, v{T0+2}
        buffer_store_dword v{T0+2}, v{vSM}, {WS}, s{sPB} offen sc1
        v_readfirstlane_b32 s{sSEEN}, v190
        s_branch p_next
        """)
    else:
        a(f"""
        v_cndmask_b32 v{X0}, v{SA}, v{SA+4}, s[52:53]
        v_cndmask_b32 v{X0+1}, v{SA+1}, v{SA+5}, s[52:53]
        v_cndmask_b32 v{X0+2}, v{SA+2}, v{SA+6}, s[52:53]
        v_cndmask_b32 v{X0+3}, v{SA+3}, v{SA+7}, s[52:53]
        v_cvt_pk_bf16_f32 v{T0}, v{X0}, v{X0+1}
        v_cvt_pk_bf16_f32 v{T0+1}, v{X0+2}, v{X0+3}
        v_lshlrev_b32 v{X0}, 16, v{T0}
        v_and_b32 v{X0+1}, 0xffff0000, v{T0}
        v_lshlrev_b32 v{X0+2}, 16, v{T0+1}
        v_and_b32 v{X0+3}, 0xffff0000, v{T0+1}
        v_pk_mul_f32 v[{X0}:{X0+1}], v[{X0}:{X0+1}], s[62:63]
        v_pk_mul_f32 v[{X0+2}:{X0+3}], v[{X0+2}:{X0+3}], s[62:63]
        v_cvt_pk_bf16_f32 v{T0}, v{X0}, v{X0+1}
        v_cvt_pk_bf16_f32 v{T0+1}, v{X0+2}, v{X0+3}
        {mm(0)}
        v_lshlrev_b32 v{X0}, 16, v{T0}
        v_and_b32 v{X0+1}, 0xffff0000, v{T0}
        {mm(1)}
        v_lshlrev_b32 v{X0+2}, 16, v{T0+1}
        v_and_b32 v{X0+3}, 0xffff0000, v{T0+1}
        {mm(2)}
        v_max3_f32 v{M0}, v{X0}, v{X0+1}, v{X0+2}
        v_max_f32 v{M0}, v{M0}, v{X0+3}
        {mm(3)}
        v_mul_f32 v{X0}, s51, v{X0}
        v_max_f32_dpp v{M0}, v{M0}, v{M0} row_ror:8 row_mask:0xf bank_mask:0xf
        v_mov_b32 v{TT}, v{M0}
        v_mul_f32 v{X0+1}, s51, v{X0+1}
        v_mul_f32 v{X0+2}, s51, v{X0+2}
        v_permlane16_swap_b32 v{M0}, v{TT}
        v_max_f32 v{M0}, v{M0}, v{TT}
        v_mov_b32 v{TT}, v{M0}
        v_mul_f32 v{X0+3}, s51, v{X0+3}
        v_max3_f32 v{MR}, v{SA+8}, v{SA+9}, v{SA+10}
        v_permlane32_swap_b32 v{M0}, v{TT}
        v_max_f32 v{MR}, v{MR}, v{SA+11}
        v_max_f32 v{M0}, v{M0}, v{TT}
        v_mov_b32 v{TT}, v{MR}
        v_cndmask_b32 v{XM}, v{SA+8}, v{SA+9}, s[52:53]
        v_cndmask_b32 v{FF}, v{SA+10}, v{SA+11}, s[52:53]
        v_permlane16_swap_b32 v{MR}, v{TT}
        v_cndmask_b32 v{XM}, v{XM}, v{FF}, s[54:55]
        v_max_f32 v{MR}, v{MR}, v{TT}
        v_mul_f32 v{M0}, s51, v{M0}
        v_cvt_pk_bf16_f32 v{T0+2}, v{XM}, v{MR}
        v_sub_f32 v{X0}, v{X0}, v{M0}
        v_lshlrev_b32 v{XM}, 16, v{T0+2}
        v_and_b32 v{MR}, 0xffff0000, v{T0+2}
        v_sub_f32 v{X0+1}, v{X0+1}, v{M0}
        v_pk_mul_f32 v[{XM}:{MR}], v[{XM}:{MR}], s[62:63]
        v_exp_f32 v{X0}, v{X0}
        v_cvt_pk_bf16_f32 v{T0+2}, v{XM}, v{MR}
        v_exp_f32 v{X0+1}, v{X0+1}
        v_and_b32 v{MR}, 0xffff0000, v{T0+2}
        v_lshlrev_b32 v{XM}, 16, v{T0+2}
        v_mul_f32 v{MR}, s51, v{MR}
        v_mul_f32 v{XM}, s51, v{XM}
        v_max_f32 v{MR}, v{MR}, v{M0}
        v_sub_f32 v{X0+2}, v{X0+2}, v{M0}
        v_sub_f32 v{XM}, v{XM}, v{MR}
        v_sub_f32 v{FF}, v{M0}, v{MR}
        v_exp_f32 v{XM}, v{XM}
        v_sub_f32 v{X0+3}, v{X0+3}, v{M0}
        v_exp_f32 v{FF}, v{FF}
        v_exp_f32 v{X0+2}, v{X0+2}
        v_add_f32 v{S0}, v{X0}, v{X0+1}
        v_exp_f32 v{X0+3}, v{X0+3}
        v_add_f32 v{S0}, v{S0}, v{X0+2}
        v_mov_b32_dpp v{MR}, v{XM} row_ror:8 row_mask:0xf bank_mask:0xf
        v_add_f32 v{S0}, v{S0}, v{X0+3}
        v_fma_f32 v{S0}, v{S0}, v{FF}, v{XM}
        v_mul_f32 v{X0}, v{X0}, v{FF}
        v_mul_f32 v{X0+1}, v{X0+1}, v{FF}
        v_add_f32_dpp v{S0}, v{S0}, v{S0} row_ror:8 row_mask:0xf bank_mask:0xf
        v_mov_b32 v{TT}, v{S0}
        v_mul_f32 v{X0+2}, v{X0+2}, v{FF}
        v_mul_f32 v{X0+3}, v{X0+3}, v{FF}
        v_permlane16_swap_b32 v{S0}, v{TT}
        v_add_f32 v{S0}, v{S0}, v{TT}
        v_mov_b32 v{TT}, v{S0}
        s_nop 1
        v_permlane32_swap_b32 v{S0}, v{TT}
        v_add_f32 v{S0}, v{S0}, v{TT}
        v_rcp_f32 v{S0}, v{S0}
        s_nop 0
        v_mul_f32 v{X0}, v{X0}, v{S0}
        v_mul_f32 v{X0+1}, v{X0+1}, v{S0}
        v_mul_f32 v{X0+2}, v{X0+2}, v{S0}
        v_mul_f32 v{X0+3}, v{X0+3}, v{S0}
        v_cvt_pk_bf16_f32 v{T0}, v{X0}, v{X0+1}
        v_cvt_pk_bf16_f32 v{T0+1}, v{X0+2}, v{X0+3}
        v_mul_f32 v{XM}, v{XM}, v{S0}
        v_min_u32 v{T0}, -2, v{T0}
        v_min_u32 v{T0+1}, -2, v{T0+1}
        v_mul_f32 v{MR}, v{MR}, v{S0}
        buffer_store_dwordx2 {vr(T0,2)}, v{vST}, {WS}, s{sPB} offen sc1
        v_cvt_pk_bf16_f32 v{T0+2}, v{XM}, v{MR}
        v_min_u32 v{T0+2}, -2, v{T0+2}
        buffer_store_dword v{T0+2}, v{vSM}, {WS}, s{sPB} offen sc1
        v_readfirstlane_b32 s{sSEEN}, v190
        s_branch p_next
        """)
    a.label("p_other")
    a(f"""
    s_cmp_lg_u32 s{sW}, 1
    s_cbranch_scc1 p_w23
    """)
    for k in range(4):
        for tp in range(2):
            a(f"ds_read_b64_tr_b16 {vr(KMF+4*k+2*tp,2)}, v{vTR} offset:{2048+k*512+tp*256}")
    a("s_waitcnt lgkmcnt(0)")
    for r in range(16):
        a(f"v_min_u32 v{KMF+r}, -2, v{KMF+r}")
    for k in range(4):
        a(f"buffer_store_dwordx4 {vr(KMF+4*k,4)}, v189, {WS}, s57 offen offset:{k*512} sc1")
    a(f"""
    s_waitcnt vmcnt(0)
    s_mov_b64 exec, 1
    buffer_store_dword v188, off, {WS}, s60 sc1
    s_mov_b64 exec, -1
    s_branch p_next
    """)
    a.label("p_w23")
    a(f"""
    s_cmp_lg_u32 s{sW}, 2
    s_cbranch_scc1 p_next
    buffer_store_dwordx4 v[180:183], v186, {WS}, s66 offen sc1
    s_cmp_lg_u32 s{sID}, 0
    s_cbranch_scc1 p_next
    s_add_u32 s40, s{sSTEP}, 1
    v_mov_b32 v{X0}, s40
    s_mov_b64 exec, 1
    buffer_store_dword v{X0}, off, {WS}, s56 sc1
    s_mov_b64 exec, -1
    """)
    a.label("p_next")
    dstamp(a, 12, 191, f"s_cmp_lg_u32 s{sID}, 0\ns_cbranch_scc1 {{lab}}\ns_cmp_lg_u32 s{sSTEP}, 1\ns_cbranch_scc1 {{lab}}")
    dstamp(a, 13, 191, f"s_cmp_lg_u32 s{sID}, 0\ns_cbranch_scc1 {{lab}}\ns_cmp_lg_u32 s{sSTEP}, 63\ns_cbranch_scc1 {{lab}}")
    dstamp(a, 15, 191, f"s_cmp_lg_u32 s{sID}, 0\ns_cbranch_scc1 {{lab}}\ns_cmp_lg_u32 s{sSTEP}, 11\ns_cbranch_scc1 {{lab}}")
    stamp(a, 4)
    stamp_flush(a, 5, 191)
    a(f"""
    s_add_u32 s{sKX}, s{sKX}, {32*8192}
    s_add_u32 s57, s57, {32*2048}
    s_add_u32 s{sSTEP}, s{sSTEP}, 1
    s_cmp_lt_u32 s{sSTEP}, 64
    s_cbranch_scc1 p_loop
    s_endpgm
    """)
    flush_deferred(a)

    AF, AC3, PKM = 72, 80, 120
    a.label("role_vm")
    a(f"""
    s_sub_u32 s{sID}, s{sID}, 32
    s_load_dwordx4 s[64:67], s[0:1], {KA_WV}
    s_waitcnt lgkmcnt(0)
    """)
    srd(a, 16, 64, D * H * E * 2)
    srd(a, 20, 66, D * H * E * 2)
    if PDELAY:
        dbg_wait_wg(a, [(DBG_MOD20, 1)], 3, sleep=10)
    load_wv_wo(a)
    setup_qk_lds_addrs(a, vTW, vTR)
    a(f"""
    ; sparse-A transposing read: e0 = 32(gA/2) + 16(r/2) + 8(gA%2) + 2(c/2) + (r%2)
    v_lshrrev_b32 v10, 5, v{vLANE}
    v_lshlrev_b32 v10, 5, v10
    v_bfe_u32 v11, v{vLANE}, 3, 1
    v_lshl_add_u32 v10, v11, 4, v10
    v_bfe_u32 v11, v{vLANE}, 4, 1
    v_lshl_add_u32 v10, v11, 3, v10
    v_bfe_u32 v11, v{vLANE}, 1, 1
    v_lshl_add_u32 v10, v11, 1, v10
    v_bfe_u32 v11, v{vLANE}, 2, 1
    v_add_u32 v10, v10, v11
    v_lshlrev_b32 v10, 4, v10
    v_and_b32 v11, 1, v{vLANE}
    v_lshl_add_u32 v10, v11, 3, v10
    v_add_u32 v{vTR}, 0x{LDS_T:x}, v10
    v_lshlrev_b32 v12, 3, v{vLANE}
    v_and_b32 v13, 31, v{vLANE}
    v_lshlrev_b32 v13, 3, v13
    v_lshrrev_b32 v10, 5, v{vLANE}
    v_lshl_add_u32 v13, v10, 14, v13
    v_mov_b32 v132, -1
    v_mov_b32 v133, -1
    v_mov_b32 v134, 0
    s_mul_i32 s57, s{sID}, 10240
    s_mul_i32 s40, s{sW}, 2560
    s_add_u32 s57, s57, s40
    s_add_u32 s57, s57, 0x{WS_UMC:x}
    s_lshl_b32 s61, s{sID}, 7
    s_lshl_b32 s40, s{sW}, 2
    s_add_u32 s61, s61, s40
    s_add_u32 s61, s61, 0x{flag(FL_UF):x}
    """)
    get_pol(a, 135)
    mem_setup(a)
    a(f"""
    s_add_u32 s64, s{sSB}, 0x{WS_CRB + 32768:x}
    s_mul_i32 s65, s{sW}, {10*16384}
    s_lshl_b32 s40, s{sID}, 8
    s_add_u32 s65, s65, s40
    s_add_u32 s65, s65, s{sSA}
    s_add_u32 s65, s65, 0x{WS_CRA:x}
    s_mov_b32 s66, 0
    s_mov_b32 s67, {2*CRA_SLOT}
    """)
    a.label("vm_loop")
    stamp(a, 0)
    for r in range(40):
        a(f"v_mov_b32 v{AC3+r}, 0")
    a(f"""
    s_and_b32 s40, s{sSTEP}, 3
    s_lshl_b32 s40, s40, 17
    s_add_u32 s{sMEM}, s40, s64
    s_add_u32 s58, s65, s66
    s_cmp_eq_u32 s{sSTEP}, 0
    s_cbranch_scc1 vm_sync
    s_sleep {V_SLEEP}
    vm_sync:
    s_barrier
    """)
    stamp(a, 1)
    def vm_flag():
        if V_LAZY:
            a(f"""
            s_mov_b64 exec, 1
            buffer_store_dword v134, off, {WS}, s61 sc1
            s_mov_b64 exec, -1
            """)
    mem_proj2(a, [[0, 1]], sMEM, 135, after_valid=vm_flag)
    stamp(a, 2)
    a.nop(8)
    combine_pair(a, 0, 1, 136, 137)
    a(f"""
    ds_write_b64 v{vTW}, v[136:137]
    s_waitcnt lgkmcnt(0)
    s_barrier
    """)
    for kb in range(2):
        for n in range(2):
            a(f"ds_read_b64_tr_b16 {vr(AF+4*kb+2*n,2)}, v{vTR} offset:{(64*kb+4*n)*16}")
    stamp(a, 3)

    def vm_pack(p):
        A, B = AC3 + 8*p, AC3 + 8*p + 4
        L = [f"v_permlane32_swap_b32 v{A+r}, v{B+r}" for r in range(4)]
        if PKADD:
            L += [f"v_pk_add_f32 v[{A+r}:{A+r+1}], v[{A+r}:{A+r+1}], v[{B+r}:{B+r+1}]" for r in (0, 2)]
        else:
            L += [f"v_add_f32 v{A+r}, v{A+r}, v{B+r}" for r in range(4)]
        L += [f"v_cvt_pk_bf16_f32 v{PKM+2*p}, v{A}, v{A+1}", f"v_cvt_pk_bf16_f32 v{PKM+2*p+1}, v{A+2}, v{A+3}",
              f"buffer_store_dwordx2 {vr(PKM+2*p,2)}, v13, {WS}, s{68+p} offen sc1"]
        return L
    for p in range(5):
        a(f"s_add_u32 s{68+p}, s58, {p*32768}")
    a("s_waitcnt lgkmcnt(0)")
    pend = []
    slot = 0
    last_mf = {}
    for p in range(5):
        for kb in range(2):
            for jj in range(2):
                jt = 2*p + jj
                a(f"v_smfmac_f32_16x16x64_bf16 {vr(AC3+4*jt,4)}, {vr(AF+4*kb,4)}, {widx(160+(jt*4+2*kb)*4,8)}, v{vIDX}")
                slot += 1
                rdy = slot + 8
                n = 0
                if pend and slot < pend[0][0]:
                    k = min(2, pend[0][0] - slot)
                    a.nop(k)
                    slot += k
                    n = 2
                while pend and pend[0][0] <= slot and n < VM_FILL:
                    a(pend.pop(0)[1])
                    slot += 1
                    n += 1
        for x in vm_pack(p):
            pend.append((rdy, x))
    while pend:
        if pend[0][0] > slot:
            a.nop(pend[0][0] - slot)
            slot = pend[0][0]
        a(pend.pop(0)[1])
        slot += 1
    stamp(a, 4)
    if V_HOLD:
        a(f"""
        s_cmp_eq_u32 s{sSTEP}, 63
        s_cbranch_scc1 vm_nohold
        s_sleep {V_HOLD}
        vm_nohold:
        """)
    for p in range(5):
        a(f"buffer_store_dwordx2 {vr(PKM+2*p,2)}, v12, {WS}, s57 offen offset:{p*512} sc1")
    a("s_add_u32 s40, s65, s67")
    for p in range(5):
        a(f"buffer_store_dwordx2 v[132:133], v13, {WS}, s40 offen sc1")
        a("s_add_u32 s40, s40, 32768")
    a(f"""
    s_add_u32 s57, s57, {UM_STEP}
    s_mov_b32 s67, s66
    s_add_u32 s66, s66, {CRA_SLOT}
    s_cmp_ge_u32 s66, {3*CRA_SLOT}
    s_cselect_b32 s66, 0, s66
    s_add_u32 s40, s{sSTEP}, 1
    v_mov_b32 v134, s40
    """)
    if not V_LAZY:
        a(f"""
        s_waitcnt vmcnt(5)
        s_mov_b64 exec, 1
        buffer_store_dword v134, off, {WS}, s61 sc1
        s_mov_b64 exec, -1
        """)
    stamp_flush(a, 5, 191)
    a(f"""
    s_add_u32 s{sSTEP}, s{sSTEP}, 1
    s_cmp_lt_u32 s{sSTEP}, 64
    s_cbranch_scc1 vm_loop
    s_waitcnt vmcnt(0)
    s_mov_b64 exec, 1
    buffer_store_dword v134, off, {WS}, s61 sc1
    s_endpgm
    """)
    flush_deferred(a)

    TX, BX, PF, BM, CA = 16, 48, 80, 104, 112
    vPA, vPB, vWr, vRd, vUM = 8, 9, 12, 13, 140
    sUX = 33
    a.label("role_u")
    MODE2[0] = False
    a(f"s_sub_u32 s{sID}, s{sID}, 64")
    setup_p_load_addrs(a, vPA, vPB, vUM, 16384, 256)
    a(f"""
    s_lshl_b32 s40, s{sW}, 9
    v_lshlrev_b32 v{vWr}, 3, v{vLANE}
    v_add_u32 v{vWr}, s40, v{vWr}
    ; final lane l: c8 = l/32, i = (l/4)%8, cp = l%4 ; src lane' = (r&1)*32 + (i/4)*16 + 8c8 + 2cp ; comp = r>>1
    v_bfe_u32 v10, v{vLANE}, 2, 1           ; r&1
    v_lshlrev_b32 v10, 5, v10
    v_bfe_u32 v11, v{vLANE}, 4, 1           ; i/4
    v_lshl_add_u32 v10, v11, 4, v10
    v_lshrrev_b32 v11, 5, v{vLANE}
    v_lshl_add_u32 v10, v11, 3, v10
    v_and_b32 v11, 3, v{vLANE}
    v_lshl_add_u32 v10, v11, 1, v10
    v_lshlrev_b32 v10, 3, v10
    v_bfe_u32 v11, v{vLANE}, 3, 1           ; r>>1
    v_lshl_add_u32 v{vRd}, v11, 2, v10
    v_add_u32 v14, 1024, v{vRd}
    v_lshlrev_b32 v15, 2, v{vLANE}
    v_lshlrev_b32 v133, 7, v{vLANE}
    v_mov_b32 v123, 0
    s_mul_i32 s{sUX}, s{sW}, {8*40960}
    s_lshl_b32 s40, s{sID}, 10
    s_add_u32 s{sUX}, s{sUX}, s40
    s_add_u32 s{sUX}, s{sUX}, 0x{WS_UX:x}
    s_lshl_b32 s{sFT}, s{sW}, 10
    s_add_u32 s{sFT}, s{sFT}, 0x{flag(FL_VO):x}
    v_mov_b32 v134, -1
    """)
    get_pol(a, 135)
    a(f"""
    s_add_u32 s60, s{sSB}, 0x{WS_CRB + CRB_DOOR:x}
    s_add_u32 s64, s{sSB}, 0x{WS_CRB + 4*16384:x}   ; p base
    s_lshl_b32 s65, s{sID}, 8
    s_cmp_ge_u32 s{sID}, 32
    s_cselect_b32 s40, 8192, 0
    s_add_u32 s65, s65, s40
    s_add_u32 s65, s65, s{sSB}
    s_add_u32 s65, s65, 0x{WS_CRB:x}
    s_lshl_b32 s57, s{sID}, 14
    s_add_u32 s57, s57, s{sSA}
    s_add_u32 s57, s57, 0x{WS_CRA:x}
    s_mov_b32 s66, 0
    """)
    a.label("u_loop")
    stamp(a, 0)
    a(f"""
    s_and_b32 s40, s{sSTEP}, 3
    s_lshl_b32 s40, s40, 17
    s_add_u32 s{sPB}, s40, s64
    s_xor_b32 s41, s40, 0x40000
    s_add_u32 s41, s41, s65
    s_add_u32 s40, s{sSTEP}, 1
    s_and_b32 s40, s40, 3
    s_lshl_b32 s40, s40, 17
    s_add_u32 s{sMEM}, s40, s65
    s_cmp_lg_u32 s{sW}, 1
    s_cbranch_scc1 u_noarm
    buffer_store_dword v134, v15, {WS}, s41 offen sc1
    s_add_u32 s41, s41, 32768
    buffer_store_dword v134, v15, {WS}, s41 offen sc1
    u_noarm:
    """)
    a(f"""
    s_add_u32 s{sNEED}, s{sSTEP}, 1
    s_mov_b64 exec, 255
    v_cmp_gt_u32 vcc, s{sNEED}, v123
    s_mov_b64 exec, -1
    s_cbranch_vccz u_vok
    """)
    wait_all(a, 8, 133, sFT, sNEED, 123)
    a.label("u_vok")
    if U_HOLD:
        a(f"""
        s_cmp_eq_u32 s{sW}, 0
        s_cbranch_scc1 u_nohold
        s_cmp_eq_u32 s{sSTEP}, 0
        s_cbranch_scc1 u_nohold
        s_sleep {U_HOLD}
        u_nohold:
        """)
    a(f"s_mov_b32 s40, s{sUX}")
    for hh in range(8):
        a(f"buffer_load_dwordx4 {vr(TX+4*hh,4)}, v{vL16}, {WS}, s40 offen sc1")
        a(f"s_add_u32 s40, s40, 40960")
    a(f"""
    s_mov_b64 exec, 255
    buffer_load_dword v123, v133, {WS}, s{sFT} offen sc1
    s_mov_b64 exec, -1
    s_add_u32 s58, s57, s66
    s_add_u32 s66, s66, {CRA_SLOT}
    s_cmp_ge_u32 s66, {3*CRA_SLOT}
    s_cselect_b32 s66, 0, s66
    s_waitcnt vmcnt(0)
    """)
    for hh in range(8):
        for d in range(4):
            a(f"v_mov_b32 v{BX + 8*(hh//2) + 2*d + hh%2}, v{TX+4*hh+d}")
    stamp(a, 1)
    a(f"""
    s_cmp_lg_u32 s{sW}, 0
    s_cbranch_scc1 u_dsync
    """)
    for k in range(3):
        a(f"buffer_load_dword v{124+k}, off, {WS}, s60 sc1")
        a(f"s_sleep 1")
    a.label("u_dspin")
    for k in range(4):
        a(f"""
        buffer_load_dword v{124+(k+3)%4}, off, {WS}, s60 sc1
        s_waitcnt vmcnt(3)
        v_cmp_le_u32 vcc, s{sNEED}, v{124+k}
        s_cbranch_vccnz u_ddone
        s_nop 7
        """)
    a(f"""
    s_sub_u32 s{sBUD}, s{sBUD}, 1
    s_cmp_ge_i32 s{sBUD}, 0
    s_cbranch_scc1 u_dspin
    """)
    a.label("u_ddone")
    stamp(a, 2)
    a(f"s_sleep {U_SLEEPD}")
    a.label("u_dsync")
    a("s_barrier")
    stamp(a, 3)
    def u_mloads():
        for k in range(2):
            a(f"buffer_load_dwordx2 {vr(PF+16+2*k,2)}, v{vPB}, {WS}, s{sPB} offen offset:{k*1280} sc1")
        for j in range(4):
            a(f"buffer_load_dwordx2 {vr(BM+2*j,2)}, v{vUM}, {WS}, s58 offen offset:{j*512} sc1")
    a.label("u_ppoll")
    for q in range(4):
        a(f"buffer_load_dwordx4 {vr(PF+4*q,4)}, v{vPA}, {WS}, s{sPB} offen offset:{q*1280} sc1")
    u_mloads()
    for r in range(4):
        a(f"v_mov_b32 v{CA+r}, 0")
    a("v_mov_b32 v122, 0")
    for q in range(4):
        f = PF + 4*q
        a(f"s_waitcnt vmcnt({9-q})")
        a(f"v_smfmac_f32_16x16x64_bf16 {vr(CA,4)}, {vr(f,4)}, {vr(BX+8*q,8)}, v{vIDX}")
        a(f"v_max3_u32 v122, v122, v{f}, v{f+1}")
        a(f"v_max3_u32 v122, v122, v{f+2}, v{f+3}")
    a("v_cmp_eq_u32 vcc, -1, v122")
    poll_fail(a, "u_ppoll", sleep=1)
    a.label("u_mchk")
    a(f"""
    s_waitcnt vmcnt(4)
    v_swap_b32 v{PF+17}, v{PF+18}
    v_max3_u32 v122, v{PF+16}, v{PF+17}, v{PF+18}
    v_max_u32 v122, v122, v{PF+19}
    s_waitcnt vmcnt(2)
    v_max3_u32 v122, v122, v{BM}, v{BM+1}
    v_max3_u32 v122, v122, v{BM+2}, v{BM+3}
    s_waitcnt vmcnt(0)
    v_max3_u32 v122, v122, v{BM+4}, v{BM+5}
    v_max3_u32 v122, v122, v{BM+6}, v{BM+7}
    v_cmp_eq_u32 vcc, -1, v122
    s_cbranch_vccnz u_mretry
    u_mok:
    v_smfmac_f32_16x16x64_bf16 {vr(CA,4)}, {vr(PF+16,4)}, {vr(BM,8)}, v{vIDX}
    """)

    def u_ool():
        a.label("u_mretry")
        a(f"""
        s_sub_u32 s{sBUD}, s{sBUD}, 1
        s_cmp_lt_i32 s{sBUD}, 0
        s_cbranch_scc1 u_mok
        """)
        u_mloads()
        a("s_branch u_mchk")
    DEFERRED.append(u_ool)
    a.nop(2)
    stamp(a, 4)
    a.nop(6)
    a(f"""
    v_permlane32_swap_b32 v{CA}, v{CA+1}
    v_permlane32_swap_b32 v{CA+2}, v{CA+3}
    v_add_f32 v{CA}, v{CA}, v{CA+1}
    v_add_f32 v{CA+1}, v{CA+2}, v{CA+3}
    ds_write_b64 v{vWr}, {vr(CA,2)}
    s_waitcnt lgkmcnt(0)
    s_barrier
    s_cmp_lg_u32 s{sW}, 0
    s_cbranch_scc1 u_next
    ds_read2_b32 v[124:125], v{vRd} offset0:0 offset1:2
    ds_read2_b32 v[126:127], v{vRd} offset0:128 offset1:130
    ds_read2_b32 v[128:129], v14 offset0:0 offset1:2
    ds_read2_b32 v[130:131], v14 offset0:128 offset1:130
    s_add_u32 s40, s{sMEM}, 32768
    s_waitcnt lgkmcnt(2)
    v_add_f32 v124, v124, v126
    v_add_f32 v125, v125, v127
    s_waitcnt lgkmcnt(0)
    v_add_f32 v128, v128, v130
    v_add_f32 v129, v129, v131
    v_add_f32 v124, v124, v128
    v_add_f32 v125, v125, v129
    v_cvt_pk_bf16_f32 v124, v124, v125
    v_min_u32 v124, -2, v124
    buffer_store_dword v124, v15, {WS}, {"s40" if VMFIRST else "s"+str(sMEM)} offen sc1
    buffer_store_dword v124, v15, {WS}, {"s"+str(sMEM) if VMFIRST else "s40"} offen sc1
    """)
    a.label("u_next")
    stamp(a, 5)
    stamp_flush(a, 6, 191)
    a(f"""
    s_add_u32 s{sUX}, s{sUX}, {UX_STEP}
    s_add_u32 s{sSTEP}, s{sSTEP}, 1
    s_cmp_lt_u32 s{sSTEP}, 63
    s_cbranch_scc1 u_loop
    s_endpgm
    """)
    flush_deferred(a)

    vH = 14
    sHOFF, sHBUF, sOUT, sFM = 37, 38, 39, 56

    def publish(role, sval, wv=3):
        lab = a.newlabel("pub")
        a(f"""
        s_cmp_lg_u32 s{sW}, {wv}
        s_cbranch_scc1 {lab}
        v_mov_b32 v3, {sval}
        s_mov_b64 exec, 1
        buffer_store_dword v3, off, {WS}, s{sFT} sc1
        s_mov_b64 exec, -1
        {lab}:
        """)

    from gen_boot import dbg_wait_wg, DBG_INIT, DBG_LN, N_INITW

    def ln_ready():
        top, done = a.newlabel("lr"), a.newlabel("lrd")
        a(f"""
        s_add_u32 s45, s{sSTEP}, 1
        s_and_b32 s46, s45, 7
        s_cmp_lg_u32 s46, 0
        s_cbranch_scc1 {done}
        s_cmp_ge_u32 s45, 64
        s_cbranch_scc1 {done}
        s_lshr_b32 s45, s45, 1
        {top}:
        buffer_load_dword v3, off, {DBG}, s45 offset:{DBG_LN} sc1
        s_waitcnt vmcnt(0)
        v_readfirstlane_b32 s44, v3
        s_sub_u32 s{sBUD}, s{sBUD}, 1
        s_cmp_lt_i32 s{sBUD}, 0
        s_cbranch_scc1 {done}
        s_cmp_ge_u32 s44, 1
        s_cbranch_scc1 {done}
        s_sleep 4
        s_branch {top}
        {done}:
        """)

    def loop_top():
        a(f"""
        v_add_u32 v{vH}, s{sHBUF}, v{vL16}
        s_sub_u32 s{sHBUF}, 40960, s{sHBUF}
        s_add_u32 s{sHOFF}, s{sHOFF}, 40960
        """)
        ln_ready()
        dmal_init(a, sHOFF, sHBUF)

    a.label("role_t")
    a(f"""
    s_sub_u32 s{sID}, s{sID}, 112
    s_mov_b32 s{sHOFF}, 0x{WS_H1F:x}
    s_mov_b32 s{sHBUF}, 0
    """)
    load_wqk(a, depth=TDEPTH)
    dbg_wait_wg(a, [(DBG_INIT, 1), (DBG_LN, 1)], 3, sleep=2)
    dmal_init(a, sHOFF, sHBUF)
    for k in range(10):
        dmal_one(a)
    a(f"""
    s_lshl_b32 s{sOUT}, s{sID}, 13
    s_lshl_b32 s40, s{sW}, 10
    s_add_u32 s{sOUT}, s{sOUT}, s40
    s_add_u32 s{sOUT}, s{sOUT}, 0x{WS_KX:x}
    s_lshl_b32 s{sFT}, s{sID}, 7
    s_add_u32 s{sFT}, s{sFT}, 0x{flag(FL_T):x}
    s_waitcnt vmcnt(0)
    s_barrier
    """)
    a.label("t_loop")
    stamp(a, 0)
    loop_top()
    DMK = [0, 1, 3, 4, 6, 7, 9, 10, 12, 13]

    def hook_t(ks):
        if ks in DMK:
            dmal_one(a)
        if ks == 5:
            a("s_waitcnt vmcnt(4)")
            a("s_barrier")
            publish("t", f"s{sSTEP}")
    dense_proj(a, vH, True, hook_t)
    stamp(a, 1)
    a.nop(4)
    PK = 128
    a(f"s_add_u32 s40, s{sOUT}, 0x{WS_QX-WS_KX:x}")
    for mat in (0, 1):
        for mt in range(2):
            tm = PK + (mat*2+mt) * 4
            for tt in range(2):
                b = TACC + ((mat*2+tt)*2 + mt) * 4
                a(f"v_cvt_pk_bf16_f32 v{tm+2*tt}, v{b}, v{b+1}")
                a(f"v_cvt_pk_bf16_f32 v{tm+2*tt+1}, v{b+2}, v{b+3}")
    a("s_waitcnt vmcnt(0)")
    for mat in (1, 0):
        for mt in range(2):
            tm = PK + (mat*2+mt) * 4
            so = "s40" if mat == 0 else f"s{sOUT}"
            a(f"buffer_store_dwordx4 {vr(tm,4)}, v{vL16+mt}, {WS}, {so} offen sc1")
    a(f"""
    s_add_u32 s{sOUT}, s{sOUT}, {32*8192}
    s_cmp_lg_u32 s{sSTEP}, 0
    s_cbranch_scc1 t_ne
    s_waitcnt vmcnt(0)
    s_barrier
    """)
    publish("t", "1")
    a("t_ne:")
    a("s_barrier")
    stamp(a, 2)
    stamp_flush(a, 3, 1)
    a(f"""
    s_add_u32 s{sSTEP}, s{sSTEP}, 1
    s_cmp_lt_u32 s{sSTEP}, 64
    s_cbranch_scc1 t_loop
    s_waitcnt vmcnt(0)
    s_barrier
    """)
    publish("t", f"s{sSTEP}")
    a(f"""
    {"s_endpgm" if NOTOK else ""}
    s_mov_b32 s{sSTEP}, 0
    s_add_u32 s97, s97, {300*72*32}
    s_cmp_ge_u32 s{sID}, 27
    s_cbranch_scc1 t_a
    s_add_u32 s{sID}, s{sID}, 212
    s_mov_b32 s100, {F1S+1}
    s_branch role_f
    t_a:
    s_add_u32 s{sID}, s{sID}, {176-27}
    s_mov_b32 s100, {SENT0+1}
    s_branch role_a
    """)

    VF, AC2 = 16, 128
    LDS_V = LDS_T
    a.label("role_vo")
    a(f"""
    s_sub_u32 s{sID}, s{sID}, 144
    s_load_dwordx4 s[64:67], s[0:1], {KA_WV}
    s_mov_b32 s{sHOFF}, 0x{WS_H1F:x}
    s_mov_b32 s{sHBUF}, 0
    s_waitcnt lgkmcnt(0)
    """)
    srd(a, 16, 64, D * H * E * 2)
    srd(a, 20, 66, D * H * E * 2)
    load_wv_wo(a)
    dbg_wait_wg(a, [(DBG_INIT, 1), (DBG_LN, 1)], 3, sleep=2)
    dmal_init(a, sHOFF, sHBUF)
    for k in range(10):
        dmal_one(a)
    a(f"""
    s_mul_i32 s{sOUT}, s{sID}, 40960
    s_mul_i32 s40, s{sW}, 10240
    s_add_u32 s{sOUT}, s{sOUT}, s40
    s_add_u32 s{sOUT}, s{sOUT}, 0x{WS_UX:x}
    s_lshl_b32 s{sFT}, s{sID}, 7
    s_add_u32 s{sFT}, s{sFT}, 0x{flag(FL_VO):x}
    s_lshl_b32 s40, s{sW}, 10
    s_add_u32 s40, s40, 0x{LDS_V:x}
    v_add_u32 v12, s40, v{vL16}
    v_add_u32 v13, 0x{LDS_V:x}, v{vL16}
    s_waitcnt vmcnt(0)
    s_barrier
    """)
    a.label("vo_loop")
    stamp(a, 0)
    loop_top()

    def hook_v(ks):
        if ks % 2 == 0:
            dmal_one(a)
    dense_proj(a, vH, True, hook_v, tiles=(0, 1))
    a.nop(6)
    for mt in range(2):
        for tt in range(2):
            b = TACC + (tt*2 + mt) * 4
            a(f"v_cvt_pk_bf16_f32 v{168+4*mt+2*tt}, v{b}, v{b+1}")
            a(f"v_cvt_pk_bf16_f32 v{168+4*mt+2*tt+1}, v{b+2}, v{b+3}")
        a(f"ds_write_b128 v12, {vr(168+4*mt,4)} offset:{mt*4096}")
    a(f"""
    s_waitcnt vmcnt(10) lgkmcnt(0)
    s_barrier
    """)
    stamp(a, 1)
    for k in range(4):
        for mt in range(2):
            a(f"ds_read_b128 {vr(VF+(mt*4+k)*4,4)}, v13 offset:{mt*4096+k*1024}")
    publish("vo", f"s{sSTEP}")
    for hb in range(2):
        for k in range(4):
            if hb == 0:
                a(f"s_waitcnt lgkmcnt({6-2*k})")
            for j5 in range(5):
                for mt in range(2):
                    acc = vr(AC2 + (j5*2+mt)*4, 4) if hb == 0 else vr(TACC + (j5*2+mt)*4, 4)
                    a(f"v_mfma_f32_16x16x32_bf16 {acc}, {vr(VF+(mt*4+k)*4,4)}, {widx(160+((hb*5+j5)*4+k)*4)}, {'0' if k == 0 else acc}")
                if hb == 1 and k < 3 and j5 < 2 and (k*2+j5) < 5:
                    q = k*2 + j5
                    tm = 168 + (q % 2) * 4
                    for mt in range(2):
                        b = AC2 + (q*2+mt)*4
                        a(f"v_cvt_pk_bf16_f32 v{tm+2*mt}, v{b}, v{b+1}")
                        a(f"v_cvt_pk_bf16_f32 v{tm+2*mt+1}, v{b+2}, v{b+3}")
                    r, o = l16(q * 1024)
                    a(f"buffer_store_dwordx4 {vr(tm,4)}, {r}, {WS}, s{sOUT} offen offset:{o} sc1")
    for q in range(5):
        tm = 176 + (q % 2) * 4
        for mt in range(2):
            b = TACC + (q*2+mt)*4
            a(f"v_cvt_pk_bf16_f32 v{tm+2*mt}, v{b}, v{b+1}")
            a(f"v_cvt_pk_bf16_f32 v{tm+2*mt+1}, v{b+2}, v{b+3}")
        r, o = l16((5+q) * 1024)
        a(f"buffer_store_dwordx4 {vr(tm,4)}, {r}, {WS}, s{sOUT} offen offset:{o} sc1")
    a(f"""
    s_add_u32 s{sOUT}, s{sOUT}, {UX_STEP}
    s_cmp_lg_u32 s{sSTEP}, 0
    s_cbranch_scc1 vo_ne
    s_waitcnt vmcnt(0)
    s_barrier
    """)
    publish("vo", "1")
    a(f"""
    vo_ne:
    s_waitcnt vmcnt(10)
    s_barrier
    """)
    stamp(a, 2)
    stamp_flush(a, 3, 1)
    a(f"""
    s_add_u32 s{sSTEP}, s{sSTEP}, 1
    s_cmp_lt_u32 s{sSTEP}, 64
    s_cbranch_scc1 vo_loop
    s_waitcnt vmcnt(0)
    s_barrier
    """)
    publish("vo", f"s{sSTEP}")
    a(f"""
    {"s_endpgm" if NOTOK else ""}
    s_mov_b32 s{sSTEP}, 0
    s_add_u32 s97, s97, {300*72*32}
    s_cmp_ge_u32 s{sID}, {NC}
    s_cbranch_scc1 vo_a
    s_add_u32 s{sID}, s{sID}, {184+NC}
    s_branch role_c
    vo_a:
    s_cmp_ge_u32 s{sID}, {NC+3}
    s_cbranch_scc1 r_end
    s_add_u32 s{sID}, s{sID}, {176+5-NC}
    s_mov_b32 s100, {SENT0+1}
    s_branch role_a
    """)

    KF2, QF2, KMF2, SA2, Y0 = 16, 48, 80, 96, 120
    sKXR, sKM = 33, 57
    a.label("role_al")
    a(f"""
    s_sub_u32 s40, s{sID}, 176
    s_sub_u32 s41, s{sID}, 196
    s_cmp_lt_u32 s{sID}, 184
    s_cselect_b32 s40, s40, s41             ; 0..15
    s_lshl_b32 s40, s40, 1
    s_and_b32 s41, s{sW}, 1
    s_add_u32 s{sID}, s40, s41
    s_cmp_ge_u32 s{sW}, 2
    s_cbranch_scc1 role_l
    s_branch role_a2
    """)
    a.label("role_a")
    a(f"""
    s_sub_u32 s{sID}, s{sID}, 176
    s_lshl_b32 s{sID}, s{sID}, 2
    s_add_u32 s{sID}, s{sID}, s{sW}         ; head
    role_a2:
    v_bfe_u32 v10, v{vLANE}, 3, 1           ; b
    v_and_b32 v11, 7, v{vLANE}              ; i
    v_lshrrev_b32 v15, 4, v{vLANE}          ; g
    v_lshlrev_b32 v8, 7, v15
    v_lshl_add_u32 v8, v11, 4, v8
    v_mul_u32_u24 v10, {PB_RG}, v10
    v_lshl_add_u32 v{vST}, v11, 4, v10      ; + i*16
    v_and_b32 v11, 1, v15
    v_lshl_add_u32 v{vST}, v11, 3, v{vST}   ; + (g&1)*8
    v_lshrrev_b32 v11, 1, v15
    v_lshl_add_u32 v{vSM}, v11, 7, v{vST}
    v_lshl_add_u32 v{vST}, v11, 8, v{vST}
    v_and_b32 v10, 15, v{vLANE}
    v_lshlrev_b32 v11, 2, v15               ; 4g
    """)
    for r in range(4):
        a(f"v_add_u32 v15, {r}, v11")
        a(f"v_cmp_le_u32 s[{64+r*2}:{65+r*2}], v15, v10")
    a(f"""
    s_mov_b32 s54, 0
    s_mov_b32 s55, -1
    s_lshl_b32 s{sPB}, s{sID}, 9
    s_add_u32 s{sPB}, s{sPB}, 0x{WS_PT:x}
    ; mem part offset relative to token part: 16384 + (2(h/4) + h%2)*256 + ((h>>1)&1)*4 - h*512
    s_lshr_b32 s40, s{sID}, 2
    s_lshl_b32 s40, s40, 1
    s_and_b32 s41, s{sID}, 1
    s_add_u32 s40, s40, s41
    s_lshl_b32 s40, s40, 8
    s_bfe_u32 s41, s{sID}, 0x10001
    s_lshl_b32 s41, s41, 2
    s_add_u32 s40, s40, s41
    s_add_u32 s40, s40, 16384
    s_lshl_b32 s41, s{sID}, 9
    s_sub_u32 s61, s40, s41
    s_lshl_b32 s58, s{sID}, 7
    s_add_u32 s59, s58, 0x{flag(FL_A):x}
    s_add_u32 s58, s58, 0x{flag(FL_KM):x}
    s_mov_b32 s60, 0
    s_lshl_b32 s{sKXR}, s{sID}, 13
    s_add_u32 s{sKXR}, s{sKXR}, 0x{WS_KX:x}
    s_lshl_b32 s{sKM}, s{sID}, 11
    s_add_u32 s{sKM}, s{sKM}, 0x{WS_KM:x}
    s_lshl_b32 s{sFT}, s{sID}, 7
    s_add_u32 s{sFT}, s{sFT}, 0x{flag(FL_T):x}
    s_mov_b32 s{sSEEN}, 0
    s_mov_b32 s{sSTEP}, s100
    s_cmp_eq_u32 s100, 0
    s_cbranch_scc1 a_prim
    s_add_u32 s{sPB}, s{sPB}, {(SENT0+1)*PT_STEP}
    s_add_u32 s{sKXR}, s{sKXR}, {(SENT0+1)*32*8192}
    s_add_u32 s{sKM}, s{sKM}, {(SENT0+1)*32*2048}
    s_mov_b32 s59, 0x{flag(FL_DUMMY):x}
    """)
    wait_flag(a, 58, 100, 60, Y0, sleep=32)
    a.label("a_prim")

    KQ = [(16, 48), (144, 176)]

    def a_kq(need, buf):
        wait_flag(a, sFT, need, sSEEN, Y0+1, sleep=8)
        a(f"s_add_u32 s40, s{sKXR}, 0x{WS_QX-WS_KX:x}")
        for f in range(8):
            r, o = l16(f * 1024)
            a(f"buffer_load_dwordx4 {vr(KQ[buf][0]+4*f,4)}, {r}, {WS}, s{sKXR} offen offset:{o} sc1")
        for f in range(8):
            r, o = l16(f * 1024)
            a(f"buffer_load_dwordx4 {vr(KQ[buf][1]+4*f,4)}, {r}, {WS}, s40 offen offset:{o} sc1")
        a(f"s_add_u32 s{sKXR}, s{sKXR}, {32*8192}")

    def a_km():
        for k in range(4):
            a(f"buffer_load_dwordx4 {vr(KMF2+4*k,4)}, v8, {WS}, s{sKM} offen offset:{k*512} sc1")
    a(f"s_add_u32 s{sNEED}, s{sSTEP}, 1")
    a_kq(sNEED, 0)
    a("s_mov_b32 s47, 0")
    a.label("a_loop")
    for buf in range(2):
        KF2, QF2 = KQ[buf]
        stamp(a, 0)
        a(f"""
        s_add_u32 s{sNEED}, s{sSTEP}, 1
        s_cmp_eq_u32 s47, 1
        s_cbranch_scc1 a_chk{buf}
        s_cmp_ge_u32 s{sSTEP}, {SENT0}
        s_cbranch_scc1 a_kml{buf}
        """)
        wait_flag(a, 58, sNEED, 60, Y0, sleep=4)
        a.label(f"a_kml{buf}")
        a_km()
        a.label(f"a_chk{buf}")
        stamp(a, 1)
        a("s_waitcnt vmcnt(0)")
        vmax_chain(a, Y0, range(KMF2, KMF2+16))
        poll_fail(a, f"a_kml{buf}", sleep=3)
        stamp(a, 2)
        a(f"""
        s_cmp_ge_u32 s{sSTEP}, {SENT0}
        s_cselect_b32 s46, 2, 1
        s_cselect_b32 s45, {32*8192}, 0
        s_add_u32 s{sKXR}, s{sKXR}, s45
        s_add_u32 s45, s{sNEED}, s46
        s_min_u32 s45, s45, 64
        """)
        for qt in range(2):
            for k in range(4):
                for mt in range(qt + 1):
                    acc = vr(SA2+12*qt+4*mt, 4)
                    a(f"v_mfma_f32_16x16x32_bf16 {acc}, {vr(KF2+(mt*4+k)*4,4)}, {vr(QF2+(qt*4+k)*4,4)}, {'0' if k==0 else acc}")
                acc = vr(SA2+12*qt+8, 4)
                a(f"v_mfma_f32_16x16x32_bf16 {acc}, {vr(KMF2+4*k,4)}, {vr(QF2+(qt*4+k)*4,4)}, {'0' if k==0 else acc}")
        for qt in range(2):
            SB = SA2 + 12*qt
            if qt == 0:
                a.nop(2)
            a(f"""
            v_cndmask_b32 v{SB+8}, v{SB+8}, v{SB+10}, s[54:55]
            v_cndmask_b32 v{SB+9}, v{SB+9}, v{SB+11}, s[54:55]
            """)
            xs = [SB + k for k in range(4*(qt+1))] + [SB+8, SB+9]
            round_scale(a, xs, Y0+8, 50)
            a(f"v_mov_b32 v{Y0}, 0xce6e6b28")
            for k in range(4):
                a(f"v_cndmask_b32 v{SB+4*qt+k}, v{Y0}, v{SB+4*qt+k}, s[{64+2*k}:{65+2*k}]")
            softmax(a, xs, Y0+6, Y0+7, 51, False)
            O = 208 + 8*qt
            for half in range(2):
                for m in range(2):
                    if m <= qt:
                        a(f"v_cvt_pk_bf16_f32 v{O+2*half+m}, v{SB+4*m+2*half}, v{SB+4*m+2*half+1}")
                    else:
                        a(f"v_mov_b32 v{O+2*half+m}, 0")
            a(f"v_cvt_pk_bf16_f32 v{O+4}, v{SB+8}, v{SB+9}")
            for k in range(5):
                a(f"v_min_u32 v{O+k}, -2, v{O+k}")
            a(f"s_add_u32 s40, s{sPB}, {qt*2*PB_RG}")
            for half in range(2):
                a(f"buffer_store_dwordx2 {vr(O+2*half,2)}, v{vST}, {WS}, s40 offen offset:{half*128} sc1")
            a(f"s_add_u32 s40, s40, s61")
            a(f"buffer_store_dword v{O+4}, v{vSM}, {WS}, s40 offen sc1")
            if qt == 0:
                a(f"buffer_load_dword v{Y0+2}, off, {WS}, s58 sc1")
                a_kq(45, 1 - buf)
        a(f"""
        s_lshl_b32 s40, s46, 16
        s_add_u32 s{sKM}, s{sKM}, s40
        s_mul_i32 s40, s46, {PT_STEP}
        s_add_u32 s{sPB}, s{sPB}, s40
        v_mov_b32 v{Y0}, s{sNEED}
        s_waitcnt vmcnt(19)
        v_readfirstlane_b32 s60, v{Y0+2}
        s_add_u32 s{sSTEP}, s{sSTEP}, s46
        s_mov_b32 s47, 0
        s_nop 1
        s_cmp_le_u32 s60, s{sSTEP}
        s_cbranch_scc1 a_nk{buf}
        s_mov_b32 s47, 1
        """)
        a_km()
        a(f"""
        s_waitcnt vmcnt(4)
        s_branch a_pub{buf}
        a_nk{buf}:
        s_waitcnt vmcnt(0)
        a_pub{buf}:
        s_mov_b64 exec, 1
        buffer_store_dword v{Y0}, off, {WS}, s59 sc1
        s_mov_b64 exec, -1
        """)
        stamp(a, 3)
        if STAMP:
            a(f"s_sub_u32 s{sSTEP}, s{sSTEP}, s46")
            stamp_flush(a, 4, 1)
            a(f"s_add_u32 s{sSTEP}, s{sSTEP}, s46")
        a(f"""
        s_cmp_ge_u32 s{sSTEP}, 64
        s_cbranch_scc1 r_end
        """)
    a("s_branch a_loop")

    a.label("role_l")
    ln_setup(a, 3, 4, False)
    a(f"""
    s_mov_b32 s40, s{sID}                   ; row
    {"s_sub_u32 s3, s3, 2" if STAMP else ""}
    {"s_add_u32 s97, s97, " + str(100*72*32) if STAMP else ""}
    s_mul_i32 s46, s40, 1280
    s_add_u32 s47, s46, 0x{WS_H2F:x}
    s_lshl_b32 s48, s40, 7
    s_add_u32 s48, s48, 0x{flag(FL_L):x}
    s_mov_b32 s49, 0x{flag(FL_CC):x}
    v_lshlrev_b32 v9, 1, v{L_DST}
    v_cndmask_b32 v9, v{L_DST}, v9, s[76:77]
    s_mov_b32 s40, {WS_MOD + 2*2560}
    s_mov_b32 s52, 20
    """)
    GA = 48
    for h in range(2):
        a(f"buffer_load_dwordx4 {vr(GA+8*h,4)}, v9, {WS}, s40 offen offset:{h*1280} sc1")
        a(f"buffer_load_dwordx4 {vr(GA+8*h+4,4)}, v9, {WS}, s40 offen offset:{h*1280+16} sc1")
    a("s_mov_b32 s54, 0")
    a.label("l_loop")
    stamp(a, 0)
    a(f"""
    s_add_u32 s45, s{sSTEP}, 1
    s_add_u32 s41, s46, 0x{WS_ATT:x}
    s_add_u32 s42, s46, 0x{WS_X1:x}
    s_mov_b32 s53, 0
    s_cmp_eq_u32 s54, 1
    s_cbranch_scc1 l_chk
    """)
    ln_load(a, XS, 46, "", False, raw=24)
    a(f"""
    s_cmp_ge_u32 s{sSTEP}, {SENT0}
    s_cbranch_scc1 l_ld
    """)
    wait_flag(a, 49, 52, 53, 16, sleep=3)
    a.label("l_ld")
    ln_load(a, WS, 41, "sc1", False)
    a(f"buffer_load_dword v17, off, {WS}, s49 offset:128 sc1")
    a("s_waitcnt vmcnt(0)")
    a.label("l_chk")
    stamp(a, 1)
    vmax_chain(a, 16, range(L_RAW, L_RAW+8))
    poll_fail(a, "l_ld", sleep=3)
    a("v_readfirstlane_b32 s55, v17")
    ln_unpack(a, False)
    for j in range(8):
        x0, x1 = L_X + 2*j, L_X + 2*j + 1
        a(f"""
        v_mul_f32 v{x0}, v{x0}, v{GA+2*j}
        v_mul_f32 v{x1}, v{x1}, v{GA+2*j+1}
        v_cvt_pk_bf16_f32 v{L_T}, v{x0}, v{x1}
        v_lshlrev_b32 v{x0}, 16, v{L_T}
        v_and_b32 v{x1}, 0xffff0000, v{L_T}
        v_lshlrev_b32 v{L_T}, 16, v{24+j}
        v_and_b32 v{L_T2}, 0xffff0000, v{24+j}
        v_add_f32 v{x0}, v{x0}, v{L_T}
        v_add_f32 v{x1}, v{x1}, v{L_T2}
        v_cvt_pk_bf16_f32 v{32+j}, v{x0}, v{x1}
        v_lshlrev_b32 v{x0}, 16, v{32+j}
        v_and_b32 v{x1}, 0xffff0000, v{32+j}
        """)
    for j in range(8):
        a(f"v_min_u32 v{32+j}, -2, v{32+j}")
    a(f"buffer_store_dwordx4 v[32:35], v{L_DST}, {WS}, s42 offen sc1")
    a(f"buffer_store_dwordx4 v[36:39], v{L_DST}, {WS}, s42 offen offset:640 sc1")
    a(f"""
    s_mov_b32 s54, 0
    s_cmp_ge_u32 s{sSTEP}, {SENT0-1}
    s_cselect_b32 s55, 20, s55
    s_cmp_lt_u32 s55, 20
    s_cbranch_scc1 l_nopf
    s_cmp_ge_u32 s{sSTEP}, 63
    s_cbranch_scc1 l_nopf
    s_mov_b32 s54, 1
    s_add_u32 s40, s46, {32*1280}
    s_add_u32 s41, s41, {32*1280}
    """)
    ln_load(a, XS, 40, "", False, raw=24)
    ln_load(a, WS, 41, "sc1", False)
    a(f"buffer_load_dword v17, off, {WS}, s49 offset:256 sc1")
    a.label("l_nopf")
    ln_compute_store(a, 47)
    a("s_add_u32 s49, s49, 128")
    stamp(a, 2)
    a(f"""
    v_mov_b32 v16, s45
    s_add_u32 s46, s46, {32*1280}
    s_add_u32 s47, s47, {32*1280}
    s_waitcnt vmcnt(0)
    s_mov_b64 exec, 1
    buffer_store_dword v16, off, {WS}, s48 sc1
    s_mov_b64 exec, -1
    """)
    stamp(a, 3)
    stamp_flush(a, 4, 1)
    a(f"""
    s_add_u32 s{sSTEP}, s{sSTEP}, 1
    s_cmp_lt_u32 s{sSTEP}, 64
    s_cbranch_scc1 l_loop
    s_endpgm
    """)

    vPT, vBM, vXS = 240, 239, 242
    sUXR, sPFC = 33, 59
    sA, sV = 61, 62
    PFB = [16, 96]
    BMB = [128, 144]
    CAC = 176
    from gen_boot import arrive
    a.label("role_c")
    a(f"s_sub_u32 s{sID}, s{sID}, 184")
    setup_p_load_addrs(a, vPA, vPB, vBM)
    a(f"""
    s_lshl_b32 s40, s{sW}, 12
    v_add_u32 v{vPT}, s40, v{vL16}
    v_add_u32 v{vRd}, s40, v{vL16}
    s_lshl_b32 s40, s{sW}, 10
    v_add_u32 v{vWr}, s40, v{vL16}
    v_add_u32 v241, 16384, v{vWr}
    v_and_b32 v10, 15, v{vLANE}             ; n
    v_lshrrev_b32 v11, 5, v{vLANE}          ; pr
    v_lshl_add_u32 v10, v11, 4, v10
    v_bfe_u32 v11, v{vLANE}, 4, 1
    v_lshlrev_b32 v11, 2, v11
    s_lshl_b32 s40, s{sW}, 3
    v_add_u32 v11, s40, v11
    v_mul_u32_u24 v11, 1280, v11
    v_lshl_add_u32 v{vXS}, v10, 1, v11
    v_and_b32 v10, 1, v{vLANE}
    v_mov_b32 v11, 0x7ffffff0
    v_cmp_ne_u32 vcc, 0, v10
    v_lshlrev_b32 v243, 7, v{vLANE}
    v_mov_b32 v232, 0
    v_cndmask_b32 v{vXS}, v{vXS}, v11, vcc
    v_mov_b32 v231, 20
    s_lshl_b32 s40, s{sW}, 10
    s_add_u32 s{sFT}, s40, 0x{flag(FL_UF):x}
    s_add_u32 s{sA}, s40, 0x{flag(FL_A):x}
    s_add_u32 s{sV}, s40, 0x{flag(FL_VO):x}
    s_mov_b32 s{sFM}, 0x{flag(FL_MEM):x}
    s_mul_i32 s73, s{sW}, {8*40960}
    s_add_u32 s73, s73, 0x{WS_UX:x}
    s_add_u32 s76, s{sID}, {CT0}
    s_cmp_ge_u32 s{sID}, {NC}
    s_cselect_b32 s77, s76, s{sID}
    s_mov_b32 s78, s77
    s_mov_b32 s79, s77
    """)

    TIX = {57: 77, 60: 78, 68: 79}

    def dec(ss, sk):
        t = TIX[ss]
        a(f"""
        s_mul_i32 s{ss}, s{t}, 3277
        s_lshr_b32 s{ss}, s{ss}, 16
        s_mul_i32 s40, s{ss}, 20
        s_sub_u32 s{sk}, s{t}, s40
        """)

    def adv(ss, sk):
        t = TIX[ss]
        a(f"""
        s_add_u32 s40, s{t}, {NC}
        s_cmp_lt_u32 s40, {CT0}
        s_cselect_b32 s40, s40, s76
        s_add_u32 s41, s{t}, {2*NC}
        s_cmp_lt_u32 s{t}, {CT0}
        s_cselect_b32 s{t}, s40, s41
        """)
        dec(ss, sk)
    dec(57, 58)
    dec(60, 63)
    dec(68, 72)

    def c_needs():
        a(f"s_add_u32 s44, s60, 1")

    def c_offs():
        a(f"""
        s_mul_i32 s{sPB}, s60, {PT_STEP}
        s_add_u32 s{sPB}, s{sPB}, 0x{WS_PT:x}
        s_add_u32 s64, s{sPB}, {PB_RG}
        s_add_u32 s65, s{sPB}, {2*PB_RG}
        s_add_u32 s66, s{sPB}, {3*PB_RG}
        s_mul_i32 s67, s60, {UM_STEP}
        s_lshl_b32 s40, s63, 9
        s_add_u32 s67, s67, s40
        s_add_u32 s67, s67, 0x{WS_UMC:x}
        s_add_u32 s69, s67, 20480
        s_add_u32 s70, s67, 40960
        s_add_u32 s71, s67, 61440
        """)

    def c_flag_loads():
        a(f"""
        s_mov_b64 exec, 255
        buffer_load_dword v233, v243, {WS}, s{sA} offen sc1
        buffer_load_dwordx4 v[224:227], v243, {WS}, s{sFT} offen sc1
        s_mov_b64 exec, -1
        """)

    def c_test(fail):
        a(f"""
        v_min3_u32 v234, v233, v224, v225
        v_min3_u32 v234, v234, v226, v227
        s_mov_b64 exec, 255
        v_cmp_gt_u32 vcc, s44, v234
        s_mov_b64 exec, -1
        s_cbranch_vccnz {fail}
        """)

    def c_block():
        c_needs()
        top, retry, done = a.newlabel("cb"), a.newlabel("cb"), a.newlabel("cb")
        a.label(top)
        c_flag_loads()
        a("s_waitcnt vmcnt(0)")
        sk = a.newlabel("cb")
        a(f"""
        s_cmp_lt_u32 s60, {SENT0}
        s_cbranch_scc1 {sk}
        v_mov_b32 v233, 64
        {sk}:
        """)
        c_test(retry)
        a(f"s_branch {done}")
        a.label(retry)
        a(f"""
        s_sub_u32 s{sBUD}, s{sBUD}, 1
        s_cmp_lt_i32 s{sBUD}, 0
        s_cbranch_scc1 {done}
        s_sleep 3
        s_branch {top}
        """)
        a.label(done)

    def c_load_list(buf):
        L = []
        for rg in range(4):
            so = [sPB, 64, 65, 66][rg]
            PF = PFB[buf] + 20*rg
            for q in range(4):
                L.append(f"buffer_load_dwordx4 {vr(PF+q*4,4)}, v{vPT}, {WS}, s{so} offen offset:{q*1024} sc1")
            L.append(f"buffer_load_dwordx4 {vr(PF+16,4)}, v241, {WS}, s{so} offen sc1")
        for j in range(4):
            for pr in range(2):
                L.append(f"buffer_load_dwordx2 {ar(BMB[buf]+pr*8+2*j,2)}, v{vBM}, {WS}, s{[67,69,70,71][j]} offen offset:{pr*256} sc1")
        return L

    def c_ux(buf, tail_wait=False):
        ok, skip, end = a.newlabel("cux"), a.newlabel("cux"), a.newlabel("cux")
        a(f"""
        s_cmp_ge_u32 s68, 64
        s_cbranch_scc1 {skip}
        s_add_u32 s45, s68, 1
        s_mov_b64 exec, 255
        v_cmp_gt_u32 vcc, s45, v232
        s_mov_b64 exec, -1
        s_cbranch_vccz {ok}
        """)
        wait_all(a, 8, 243, sV, 45, 232)
        a.label(ok)
        a(f"""
        s_mul_i32 s{sUXR}, s68, {UX_STEP}
        s_lshl_b32 s40, s72, 11
        s_add_u32 s{sUXR}, s{sUXR}, s40
        s_add_u32 s{sUXR}, s{sUXR}, s73
        """)
        for hh in range(8):
            for pr in range(2):
                a(f"buffer_load_dwordx4 {ar(buf*64+pr*32+hh*4,4)}, v{vL16}, {WS}, s{sUXR} offen offset:{pr*1024} sc1")
            a(f"s_add_u32 s{sUXR}, s{sUXR}, 40960")
        if tail_wait:
            a("s_waitcnt vmcnt(16)")
            a(f"s_branch {end}")
        a.label(skip)
        if tail_wait:
            a("s_waitcnt vmcnt(0)")
        a.label(end)
        adv(68, 72)

    def c_burst(buf):
        c_block()
        c_offs()
        top = a.newlabel("cbl")
        a.label(top)
        for x in c_load_list(buf):
            a(x)
        c_flag_loads()
        a("s_waitcnt vmcnt(0)")
        vmax_chain(a, 3, range(PFB[buf], PFB[buf]+80))
        poll_fail(a, top, sleep=4)
        adv(60, 63)

    def c_compute(buf, LL, tag):
        b = Asm()
        for r in range(32):
            b(f"v_mov_b32 v{CAC+r}, 0")
        b.nop(1)
        for q in range(5):
            for pr in range(2):
                for rg in range(4):
                    f = PFB[buf] + 20*rg + q*4
                    B = ar(buf*64+pr*32+q*8, 8) if q < 4 else ar(BMB[buf]+pr*8, 8)
                    b(f"v_smfmac_f32_16x16x64_bf16 {vr(CAC+(pr*4+rg)*4,4)}, {vr(f,4)}, {B}, v{vIDX}")
        b.nop(6)
        for rg in range(4):
            A, B = CAC + rg*4, CAC + (4+rg)*4
            for r in range(4):
                b(f"v_permlane32_swap_b32 v{A+r}, v{B+r}")
            for r in range(4):
                b(f"v_add_f32 v{A+r}, v{A+r}, v{B+r}")
            b(f"ds_write_b128 v{vWr}, {vr(A,4)} offset:{rg*4096}")
        b(f"""
        s_waitcnt lgkmcnt(0)
        s_barrier
        """)
        FT = 208
        for q in range(4):
            b(f"ds_read_b128 {vr(FT+4*q,4)}, v{vRd} offset:{q*1024}")
        b(f"""
        s_mul_i32 s74, s57, {32*1280}
        s_lshl_b32 s75, s58, 6
        s_add_u32 s74, s74, s75
        s_add_u32 s74, s74, 0x{WS_ATT:x}
        s_lshl_b32 s75, s57, 7
        s_add_u32 s75, s75, 0x{flag(FL_CC):x}
        s_waitcnt lgkmcnt(0)
        """)
        for r in range(4):
            b(f"v_add_f32 v{FT+r}, v{FT+r}, v{FT+4+r}")
            b(f"v_add_f32 v{FT+8+r}, v{FT+8+r}, v{FT+12+r}")
        for r in range(4):
            b(f"v_add_f32 v{FT+r}, v{FT+r}, v{FT+8+r}")
        b.nop(1)
        for r in range(4):
            b(f"v_mov_b32_dpp v{FT+8+r}, v{FT+r} quad_perm:[1,0,3,2] row_mask:0xf bank_mask:0xf")
        for r in range(4):
            b(f"v_cvt_pk_bf16_f32 v{FT+r}, v{FT+r}, v{FT+8+r}")
            b(f"v_min_u32 v{FT+r}, -2, v{FT+r}")
            b(f"buffer_store_dword v{FT+r}, v{vXS}, {WS}, s74 offen offset:{r*1280} sc1")
        LL = list(LL)
        acc = 0
        nld = 0
        for ln in b.lines:
            t = ln.strip()
            if t == "s_barrier":
                a(f"""
                s_cmp_lg_u32 s{sW}, 3
                s_cbranch_scc1 c_rs{tag}
                s_waitcnt vmcnt({nld})
                s_mov_b64 exec, 1
                v_cmp_eq_u32 vcc, 19, v230
                v_mov_b32 v230, 0
                s_cbranch_vccz c_rt{tag}
                buffer_store_dword v231, off, {WS}, s56 sc1
                c_rt{tag}:
                s_mov_b64 exec, -1
                c_rs{tag}:
                """)
            a.lines.append(ln)
            if not t or t.startswith(";"):
                continue
            if t.startswith("v_smfmac"):
                acc += 16
            elif t.startswith("ds_") or t.startswith("s_waitcnt") or t.startswith("s_barrier"):
                acc += 24
            elif t.startswith("buffer_store"):
                acc = 0
            else:
                acc += 4
            if acc >= C_GAP and LL and not t.startswith("v_cvt_pk_bf16_f32 v2"):
                x = LL.pop(0)
                a(x)
                nld += x.count("buffer_load")
                acc = 0
        for x in LL:
            a(x)

    a("v_mov_b32 v230, 0")
    c_ux(0)
    c_ux(1)
    c_burst(0)
    a.label("c_loop")
    for buf in range(2):
        stamp(a, 0)
        plain, join, nb = a.newlabel("cpl"), a.newlabel("cjn"), a.newlabel("cnb")
        c_needs()
        a(f"s_mov_b32 s{sPFC}, 0")
        c_test(plain)
        a(f"""
        s_cmp_ge_u32 s60, {SENT0}
        s_cbranch_scc1 {plain}
        s_mov_b32 s{sPFC}, 1
        """)
        c_offs()
        def arrive_issue(tag, resolve):
            a(f"""
            s_barrier
            s_cmp_lg_u32 s{sW}, 3
            s_cbranch_scc1 c_nf{tag}
            s_lshl_b32 s40, s57, 2
            s_add_u32 s40, s40, 0x{flag(FL_CN):x}
            s_mov_b32 s56, s75
            v_mov_b32 v230, 1
            s_mov_b64 exec, 1
            buffer_atomic_add v230, off, {WS}, s40 sc0
            """)
            if resolve:
                a(f"""
                s_waitcnt vmcnt(0)
                v_cmp_eq_u32 vcc, 19, v230
                v_mov_b32 v230, 0
                s_cbranch_vccz c_ne{tag}
                buffer_store_dword v231, off, {WS}, s56 sc1
                c_ne{tag}:
                """)
            a(f"""
            s_mov_b64 exec, -1
            c_nf{tag}:
            """)
        FLG = f"""s_mov_b64 exec, 255
        buffer_load_dword v233, v243, {WS}, s{sA} offen sc1
        buffer_load_dwordx4 v[224:227], v243, {WS}, s{sFT} offen sc1
        s_mov_b64 exec, -1"""
        c_compute(buf, c_load_list(1 - buf) + [FLG], f"x{buf}")
        adv(60, 63)
        stamp(a, 1)
        c_ux(buf, tail_wait=True)
        arrive_issue(f"a{buf}", False)
        a(f"s_branch {join}")
        a.label(plain)
        c_compute(buf, [], f"y{buf}")
        stamp(a, 1)
        a(FLG)
        a("s_waitcnt vmcnt(0)")
        arrive_issue(f"b{buf}", False)

        def resolve(tag, cnt):
            a(f"""
            s_cmp_lg_u32 s{sW}, 3
            s_cbranch_scc1 c_q{tag}
            s_waitcnt vmcnt({cnt})
            s_mov_b64 exec, 1
            v_cmp_eq_u32 vcc, 19, v230
            v_mov_b32 v230, 0
            s_cbranch_vccz c_p{tag}
            buffer_store_dword v231, off, {WS}, s56 sc1
            c_p{tag}:
            s_mov_b64 exec, -1
            c_q{tag}:
            """)
        slow = a.newlabel("csl")
        c_test(slow)
        a(f"""
        s_cmp_ge_u32 s60, {SENT0}
        s_cbranch_scc1 {slow}
        s_mov_b32 s{sPFC}, 1
        """)
        c_offs()
        LL = c_load_list(1 - buf)
        for x in LL:
            a(x)
        resolve(f"f{buf}", len(LL))
        a(FLG)
        adv(60, 63)
        c_ux(buf, tail_wait=True)
        a(f"s_branch {join}")
        a.label(slow)
        resolve(f"s{buf}", 0)
        c_ux(buf)
        a.label(join)
        adv(57, 58)
        stamp(a, 2)
        stamp_flush(a, 3, 1)
        a(f"""
        s_add_u32 s{sSTEP}, s{sSTEP}, 1
        s_cmp_ge_u32 s57, 64
        s_cbranch_scc1 r_end
        s_cmp_eq_u32 s{sPFC}, 1
        s_cbranch_scc1 {nb}
        """)
        c_burst(1 - buf)
        a.label(nb)
    a("s_branch c_loop")
    a.label("pre_boot")
    a(f"""
    v_mov_b32 v134, -1
    s_sub_u32 s40, s{sID}, 102
    s_lshl_b32 s40, s40, 21
    s_add_u32 s40, s40, 0x{WS_CRA + 0x1F0000:x}
    s_lshl_b32 s41, s{sW}, 14
    s_add_u32 s40, s40, s41
    s_mov_b32 s42, -1
    s_mov_b32 s43, -1
    s_mov_b64 exec, 1
    """)
    for k in range(3):
        for half in range(2):
            a(f"""
            s_add_u32 s41, s40, {half*8192 + (k%2)*4096 + k*1152}
            s_memtime s[44:45]
            s_waitcnt lgkmcnt(0)
            buffer_store_dword v134, off, {WS}, s41 sc1
            s_waitcnt vmcnt(0)
            buffer_load_dword v135, off, {WS}, s41 sc1
            s_waitcnt vmcnt(0)
            s_memtime s[46:47]
            s_waitcnt lgkmcnt(0)
            s_sub_u32 s46, s46, s44
            s_min_u32 s{42+half}, s{42+half}, s46
            """)
    a(f"""
    v_mov_b32 v136, s42
    v_mov_b32 v137, s43
    s_lshl_b32 s40, s{sW}, 3
    v_mov_b32 v135, s40
    ds_write_b64 v135, v[136:137]
    s_mov_b64 exec, -1
    s_waitcnt lgkmcnt(0)
    s_barrier
    v_mov_b32 v135, 0
    ds_read_b128 v[124:127], v135
    ds_read_b128 v[128:131], v135 offset:16
    s_waitcnt lgkmcnt(0)
    v_add3_u32 v124, v124, v126, v128
    v_add3_u32 v125, v125, v127, v129
    v_add_u32 v124, v124, v130
    v_add_u32 v125, v125, v131
    v_cmp_lt_u32 vcc, v125, v124
    v_mov_b32 v126, 1
    v_mov_b32 v127, 3
    v_cndmask_b32 v126, v126, v127, vcc
    {"v_mov_b32 v126, " + FORCEPOL if FORCEPOL else ""}
    s_sub_u32 s40, s{sID}, 102
    s_lshl_b32 s40, s40, 2
    s_barrier
    s_cmp_lg_u32 s{sW}, 0
    s_cbranch_scc1 boot_nrm0
    s_mov_b64 exec, 1
    buffer_store_dword v126, off, {DBG}, s40 offset:176 sc1
    s_mov_b64 exec, -1
    s_branch boot_nrm0
    """)
    from gen_boot import gen_boot
    gen_boot(a)
    from gen_f import gen_phase2
    gen_phase2(a)
    a.label("r_end")
    a("s_endpgm")
    a.label("r_code_end")
    return (L, 256, 256, max(131072, 16384*(VDEPTH+1) + 81920), kernel_desc(L, 512, 256))
```

```python
from gen_common import *
import os
from gen_r import *

NG = 1
OUTF = os.environ.get('OUTF', '')
F2_POLL = int(os.environ.get('F2_POLL', '8'))
F2_GATE = int(os.environ.get('F2_GATE', '4'))


def rnd2(a, x0, x1, t):
    a(f"v_cvt_pk_bf16_f32 v{t}, v{x0}, v{x1}")
    a(f"v_lshlrev_b32 v{x0}, 16, v{t}")
    a(f"v_and_b32 v{x1}, 0xffff0000, v{t}")


def gen_phase2(a):
    sG, sJ, sSEG, sCNT, sFL, sFO = 31, 32, 33, 34, 35, 36
    vF = 9
    a.label("role_f")
    a(f"""
    s_load_dwordx4 s[64:67], s[0:1], {KA_WG}
    s_load_dwordx2 s[68:69], s[0:1], {KA_WD}
    s_load_dwordx2 s[70:71], s[0:1], {KA_OUT}
    v_lshlrev_b32 v{vF}, 7, v{vLANE}
    s_mov_b32 s45, 0x{flag(FL_MEM):x}
    s_mov_b32 s46, 1
    s_mov_b32 s47, 0
    s_waitcnt lgkmcnt(0)
    """)
    wait_flag(a, 45, 46, 47, 3, sleep=16)
    a(f"""
    s_cmp_ge_u32 s{sID}, 239
    s_cbranch_scc1 role_f2
    """)
    a(f"""
    s_mov_b32 s{sG}, s100
    s_sub_u32 s{sJ}, s{sID}, 212
    s_cmp_ge_u32 s{sW}, 2
    s_cselect_b32 s72, s66, s64
    s_cselect_b32 s73, s67, s65
    """)
    srd(a, 16, 72, D * F * 2)
    a(f"""
    v_lshrrev_b32 v10, 3, v{vLANE}          ; r8
    v_and_b32 v11, 7, v{vLANE}
    v_bfe_u32 v12, v10, 1, 1
    s_and_b32 s40, s{sW}, 1
    s_lshl_b32 s41, s40, 1
    v_or_b32 v12, s41, v12                  ; f2 = b1 | b3<<1
    v_lshlrev_b32 v12, 1, v12
    v_xor_b32 v11, v11, v12
    v_lshlrev_b32 v11, 4, v11
    s_lshl_b32 s41, s40, 3
    v_add_u32 v10, s41, v10
    v_mul_u32_u24 v10, {F*2}, v10
    v_add_u32 v11, v10, v11
    s_lshl_b32 s42, s{sJ}, 7                ; soffset
    s_lshr_b32 s43, s{sW}, 1
    s_mul_i32 s43, s43, 40960
    s_lshl_b32 s41, s41, 7
    s_add_u32 s43, s43, s41
    v_lshrrev_b32 v12, 4, v{vLANE}          ; g
    v_bfe_u32 v13, v{vLANE}, 2, 2           ; r
    v_and_b32 v14, 3, v{vLANE}              ; c
    v_lshl_add_u32 v15, v12, 3, v13
    v_lshlrev_b32 v15, 7, v15
    v_lshl_add_u32 v15, v14, 3, v15
    v_lshrrev_b32 v13, 1, v13
    v_and_b32 v12, 1, v12
    v_lshl_or_b32 v13, v12, 1, v13
    v_lshl_or_b32 v15, v13, 5, v15
    s_lshl_b32 s41, s40, 6                  ; (2fp)<<5
    v_xor_b32 v16, s41, v15
    v_xor_b32 v17, 32, v16
    v_add_u32 v18, 40960, v16
    v_add_u32 v19, 40960, v17
    """)
    for ph in range(2):
        a("s_mov_b32 s44, s43")
        for q in range(20):
            a(f"""
            s_mov_b32 m0, s44
            s_add_u32 s44, s44, 2048
            buffer_load_dwordx4 v11, s[16:19], s42 offen lds
            s_add_u32 s42, s42, {16*F*2}
            """)
        a("s_waitcnt vmcnt(0)")
        a("s_barrier")
        for ksl in range(10):
            for t in range(4):
                for j in range(2):
                    idx = (t * 20 + ph*10 + ksl) * 4 + 2*j
                    dst = ar(idx, 2) if idx < 256 else vr(192 + idx - 256, 2)
                    a(f"ds_read_b64_tr_b16 {dst}, v{16+t} offset:{ksl*4096+j*512}")
            a("s_waitcnt lgkmcnt(0)")
        a("s_barrier")
    sHOFF, sHBUF, sOUT, sPFD = 37, 38, 39, 46
    vH = 14
    dma_h_setup(a)
    a(f"""
    v_and_b32 v10, 7, v{vLANE}
    v_lshrrev_b32 v11, 4, v{vLANE}
    v_xor_b32 v11, v11, v10
    v_lshlrev_b32 v11, 4, v11
    v_lshl_add_u32 v11, v10, 7, v11
    v_bfe_u32 v10, v{vLANE}, 3, 1
    v_mul_u32_u24 v10, 10240, v10
    v_add_u32 v23, v10, v11
    """)
    a(f"""
    s_mov_b32 s{sSEG}, s{sG}
    s_mov_b32 s{sCNT}, 0
    s_mov_b32 s{sFL}, 0x{flag(FL_L):x}
    s_lshl_b32 s{sFO}, s{sJ}, 7
    s_lshl_b32 s40, s{sW}, 2
    s_add_u32 s{sFO}, s{sFO}, s40
    s_add_u32 s{sFO}, s{sFO}, 0x{flag(FL_F1):x}
    s_mul_i32 s{sHOFF}, s{sG}, 40960
    s_add_u32 s{sHOFF}, s{sHOFF}, 0x{WS_H2F:x}
    s_mov_b32 s{sHBUF}, 0
    s_lshl_b32 s40, s{sG}, 1
    s_lshr_b32 s41, s{sW}, 1
    s_add_u32 s40, s40, s41
    s_mul_i32 s{sOUT}, s40, {54*1024}
    s_lshl_b32 s40, s{sJ}, 1
    s_and_b32 s42, s{sW}, 1
    s_add_u32 s40, s40, s42
    s_lshl_b32 s40, s40, 10
    s_add_u32 s{sOUT}, s{sOUT}, s40
    s_add_u32 s{sOUT}, s{sOUT}, 0x{WS_ACT:x}
    s_mul_i32 s47, s41, 20480
    s_mov_b32 s57, 0xbfb8aa3b
    s_mov_b32 s{sPFD}, 0
    s_add_u32 s56, s{sSEG}, 1
    s_cmp_eq_u32 s100, 0
    s_cbranch_scc1 f1_prim
    s_add_u32 s{sFO}, s{sFO}, {(FL_F1B-FL_F1)*128}
    """)
    wait_all(a, 32, vF, sFL, sSEG, 20, sleep=32)
    a.label("f1_prim")
    wait_all(a, 32, vF, sFL, 56, 20)
    dma_h(a, sHOFF, sHBUF)
    a.label("f1_loop")
    stamp(a, 0)
    a(f"""
    v_mov_b32 v3, s{sCNT}
    s_add_u32 s40, s{sHBUF}, s47
    v_add_u32 v{vH}, s40, v23
    v_xor_b32 v13, 64, v{vH}
    s_sub_u32 s{sHBUF}, 40960, s{sHBUF}
    s_add_u32 s61, s{sSEG}, 1
    s_cmp_ge_u32 s{sSEG}, {F1S}
    s_cselect_b32 s58, 2, 1
    s_mul_i32 s40, s58, 40960
    s_add_u32 s{sHOFF}, s{sHOFF}, s40
    s_add_u32 s{sSEG}, s{sSEG}, s58
    s_add_u32 s56, s{sSEG}, 1
    s_cmp_lg_u32 s{sPFD}, 0
    s_cbranch_scc1 f1_w1
    s_waitcnt vmcnt(0)
    f1_w1:
    s_waitcnt vmcnt(2)
    s_cmp_eq_u32 s{sPFD}, 2
    s_cbranch_scc0 f1_w2
    s_waitcnt vmcnt(1)
    f1_w2:
    s_mov_b32 exec_lo, -1
    s_mov_b32 exec_hi, 0
    v_cmp_gt_u32 vcc, s56, v20
    s_mov_b64 exec, -1
    s_barrier
    """)
    stamp(a, 1)
    HF1, AC1 = 24, 40

    def rd(ks):
        a(f"ds_read_b128 {vr(HF1+(ks%4)*4,4)}, v{vH if ks % 2 == 0 else 13} offset:{(ks//2)*1024}")

    def mm(with_dma):
        for k in range(3):
            rd(k)
        for ks in range(20):
            if ks + 3 < 20:
                rd(ks + 3)
            a(f"s_waitcnt lgkmcnt({min(3, 19-ks)})")
            for t in range(4):
                acc = vr(AC1 + 4*t, 4)
                a(f"v_mfma_f32_16x16x32_bf16 {acc}, {wreg(t,ks)}, {vr(HF1+(ks%4)*4,4)}, {'0' if ks == 0 else acc}")
                if with_dma and t == 1 and ks in (0, 1, 3, 4, 6, 7, 9, 10, 12, 13):
                    dma_h_one(a)
                if with_dma and t == 1 and ks == 15:
                    a(f"""
                    s_mov_b32 exec_lo, -1
                    s_mov_b32 exec_hi, 0
                    buffer_load_dword v20, v{vF}, {WS}, s{sFL} offen sc1
                    s_mov_b64 exec, -1
                    """)
    a(f"""
    s_mov_b32 s{sPFD}, 0
    s_cbranch_vccnz f1_plain
    s_mov_b32 s{sPFD}, 1
    """)
    dma_h_init(a, sHOFF, sHBUF)
    mm(True)
    a(f"""
    s_waitcnt vmcnt(11)
    s_mov_b64 exec, 1
    buffer_store_dword v3, off, {WS}, s{sFO} sc1
    s_mov_b64 exec, -1
    s_branch f1_epi
    """)
    a.label("f1_plain")
    a(f"""
    s_mov_b32 exec_lo, -1
    s_mov_b32 exec_hi, 0
    buffer_load_dword v20, v{vF}, {WS}, s{sFL} offen sc1
    s_mov_b64 exec, -1
    """)
    mm(False)
    a(f"""
    s_waitcnt vmcnt(0)
    s_mov_b64 exec, 1
    buffer_store_dword v3, off, {WS}, s{sFO} sc1
    s_mov_b32 exec_lo, -1
    s_mov_b32 exec_hi, 0
    v_cmp_gt_u32 vcc, s56, v20
    s_mov_b64 exec, -1
    s_cbranch_vccnz f1_epi
    s_mov_b32 s{sPFD}, 2
    """)
    dma_h(a, sHOFF, sHBUF)
    a.label("f1_epi")
    stamp(a, 2)
    a.nop(4)
    O = 60
    for tt in range(2):
        g = AC1 + tt * 4
        u = AC1 + (2 + tt) * 4
        for hf in range(2):
            g0, g1, u0, u1 = g+2*hf, g+2*hf+1, u+2*hf, u+2*hf+1
            rnd2(a, g0, g1, 64)
            rnd2(a, u0, u1, 65)
            a(f"""
            v_mul_f32 v66, s57, v{g0}
            v_mul_f32 v67, s57, v{g1}
            v_exp_f32 v66, v66
            v_exp_f32 v67, v67
            s_nop 0
            v_add_f32 v66, 1.0, v66
            v_add_f32 v67, 1.0, v67
            v_rcp_f32 v66, v66
            v_rcp_f32 v67, v67
            s_nop 0
            v_mul_f32 v{g0}, v{g0}, v66
            v_mul_f32 v{g1}, v{g1}, v67
            """)
            rnd2(a, g0, g1, 64)
            a(f"""
            v_mul_f32 v{g0}, v{g0}, v{u0}
            v_mul_f32 v{g1}, v{g1}, v{u1}
            v_cvt_pk_bf16_f32 v{O+2*tt+hf}, v{g0}, v{g1}
            """)
    for k in range(4):
        a(f"v_min_u32 v{O+k}, -2, v{O+k}")
    a(f"""
    buffer_store_dwordx4 {vr(O,4)}, v{vL16}, {WS}, s{sOUT} offen sc1
    s_mul_i32 s40, s58, {2*54*1024}
    s_add_u32 s{sOUT}, s{sOUT}, s40
    s_mov_b32 s{sCNT}, s61
    """)
    stamp(a, 3)
    stamp_flush(a, 4, 1)
    a(f"""
    s_add_u32 s{sSTEP}, s{sSTEP}, 1
    s_cmp_ge_u32 s{sSEG}, 64
    s_cbranch_scc1 f1_fin
    s_cmp_lg_u32 s{sPFD}, 0
    s_cbranch_scc1 f1_loop
    s_cmp_gt_u32 s{sCNT}, {SENT0}
    s_cbranch_scc1 f1_late
    v_mov_b32 v3, s{sCNT}
    s_waitcnt vmcnt(0)
    s_mov_b64 exec, 1
    buffer_store_dword v3, off, {WS}, s{sFO} sc1
    s_mov_b64 exec, -1
    s_cmp_ge_u32 s{sSEG}, {SENT0}
    s_cbranch_scc1 f1_late
    """)
    wait_all(a, 32, vF, sFL, 56, 20)
    dma_h(a, sHOFF, sHBUF)
    a("s_branch f1_loop")
    a.label("f1_late")
    a(f"""
    s_lshl_b32 s45, s{sSEG}, 7
    s_add_u32 s45, s45, 0x{flag(FL_CC):x}
    s_mov_b32 s59, 20
    s_mov_b32 s60, 0
    """)
    wait_flag(a, 45, 59, 60, 22, sleep=3)
    a.label("f1_late2")
    dma_h(a, sHOFF, sHBUF)
    a(f"""
    s_sub_u32 s43, s43, 10240
    v_add_u32 v21, s43, v{vL16}
    s_waitcnt vmcnt(0)
    """)
    for k in range(10):
        a(f"ds_read_b128 {vr(72+4*k,4)}, v21 offset:{k*1024}")
    a("s_waitcnt lgkmcnt(0)")
    vmax_chain(a, 22, range(72, 112))
    poll_fail(a, "f1_late2", sleep=3)
    a("s_branch f1_loop")
    a.label("f1_fin")
    a(f"""
    v_mov_b32 v3, s{sCNT}
    s_waitcnt vmcnt(0)
    s_mov_b64 exec, 1
    buffer_store_dword v3, off, {WS}, s{sFO} sc1
    s_endpgm
    """)

    a.label("role_f2")
    srd(a, 16, 68, D * F * 2)
    srd(a, 20, 70, S * D * 2)
    sKS0 = 37
    a(f"""
    s_sub_u32 s40, s{sID}, 239
    s_mul_i32 s{sG}, s40, 6554
    s_lshr_b32 s{sG}, s{sG}, 16
    s_mul_i32 s41, s{sG}, 10
    s_sub_u32 s{sJ}, s40, s41
    s_mul_i32 s{sKS0}, s{sW}, 13
    s_min_u32 s40, s{sW}, 1
    s_add_u32 s{sKS0}, s{sKS0}, s40
    v_lshrrev_b32 v10, 3, v{vLANE}
    v_and_b32 v11, 7, v{vLANE}
    v_bfe_u32 v12, v10, 1, 2
    v_lshlrev_b32 v12, 1, v12
    v_xor_b32 v11, v11, v12
    v_lshlrev_b32 v11, 4, v11
    v_mul_u32_u24 v10, {D*2}, v10
    v_add_u32 v11, v10, v11
    s_mul_i32 s42, s{sKS0}, {32*D*2}
    s_lshl_b32 s40, s{sJ}, 7
    s_add_u32 s42, s42, s40                 ; soffset
    s_mul_i32 s43, s{sW}, 28672
    v_lshrrev_b32 v12, 4, v{vLANE}          ; g
    v_bfe_u32 v13, v{vLANE}, 2, 2           ; r
    v_and_b32 v14, 3, v{vLANE}              ; c
    v_lshl_add_u32 v15, v12, 2, v13
    v_lshlrev_b32 v15, 7, v15
    v_lshl_add_u32 v15, v14, 3, v15
    v_lshrrev_b32 v13, 1, v13
    v_and_b32 v12, 1, v12
    v_lshl_or_b32 v13, v12, 1, v13
    v_lshl_or_b32 v15, v13, 5, v15
    """)
    for t in range(4):
        a(f"v_xor_b32 v{16+t}, {t<<5}, v15")
        a(f"v_add_u32 v{16+t}, s43, v{16+t}")
    for ph in range(2):
        a("s_mov_b32 s44, s43")
        for q in range(28):
            a(f"""
            s_mov_b32 m0, s44
            s_add_u32 s44, s44, 1024
            buffer_load_dwordx4 v11, s[16:19], s42 offen lds
            s_add_u32 s42, s42, {8*D*2}
            """)
        a("s_waitcnt vmcnt(0)")
        for ksl in range(7):
            for t in range(4):
                for j in range(2):
                    a(f"ds_read_b64_tr_b16 {ar(((ph*7+ksl)*4+t)*4+2*j,2)}, v{16+t} offset:{ksl*4096+j*2048}")
            a("s_waitcnt lgkmcnt(0)")
    a(f"""
    s_cmp_lt_u32 s{sW}, 2
    s_cbranch_scc1 f2_nz
    """)
    for r in range(16):
        a(f"v_accvgpr_write_b32 a{r}, 0")
    a.label("f2_nz")
    AF2, AC2, FT = 16, 128, 160
    vWr, vRd, vO, vG = 12, 13, 14, 15
    sACT, sXO = 38, 39
    a(f"""
    s_barrier
    s_mov_b32 s{sSEG}, s{sG}
    s_mov_b32 s{sCNT}, 1
    s_lshr_b32 s{sFL}, s{sG}, 1
    s_lshl_b32 s{sFL}, s{sFL}, 12
    s_add_u32 s{sFL}, s{sFL}, 0x{flag(FL_F1):x}
    s_mul_i32 s{sACT}, s{sG}, {54*1024}
    s_lshl_b32 s40, s{sKS0}, 10
    s_add_u32 s{sACT}, s{sACT}, s40
    s_add_u32 s{sACT}, s{sACT}, 0x{WS_ACT:x}
    s_lshl_b32 s40, s{sW}, 10
    v_add_u32 v{vWr}, s40, v{vL16}
    s_lshl_b32 s40, s{sW}, 12
    v_add_u32 v{vRd}, s40, v{vL16}
    ; output: token = l%16, col = 64j + 16w + 4g
    v_and_b32 v10, 15, v{vLANE}
    v_mul_u32_u24 v10, 1280, v10
    v_lshrrev_b32 v11, 4, v{vLANE}
    v_lshl_add_u32 v{vO}, v11, 3, v10
    v_lshlrev_b32 v11, 4, v11
    s_lshl_b32 s40, s{sJ}, 2
    s_add_u32 s40, s40, s{sW}
    s_lshl_b32 s{sXO}, s40, 5
    s_mul_i32 s41, s{sG}, {16*1280}
    s_add_u32 s{sXO}, s{sXO}, s41
    s_lshl_b32 s40, s40, 6
    s_add_u32 s40, s40, {WS_MOD + 5*2560}
    buffer_load_dwordx4 v[200:203], v11, {WS}, s40 offen sc1
    v_add_u32 v8, 12288, v{vL16}
    """)
    AFB = [16, 72]
    XB = [208, 210]
    sPF2 = 46

    def f2_loads(buf):
        for ks in range(14):
            off = ks * 1024
            av = [vL16, vL16b, vL16c, 8][off // 4096]
            a(f"buffer_load_dwordx4 {vr(AFB[buf]+ks*4,4)}, v{av}, {WS}, s{sACT} offen offset:{off%4096} sc1")
        a(f"buffer_load_dwordx2 {vr(XB[buf],2)}, v{vO}, {WS}, s47 offen sc1")

    def f2_nextflags():
        l1, l2 = a.newlabel("nf"), a.newlabel("nf")
        a(f"""
        s_and_b32 s40, s{sCNT}, 1
        s_cmp_ge_u32 s{sCNT}, {F1S}
        s_cselect_b32 s40, s40, 0
        s_mul_i32 s40, s40, {(FL_F1B-FL_F1)*128}
        s_add_u32 s{sFL}, s40, 0x{flag(FL_F1):x}
        s_mov_b32 exec_lo, 0x7ffffff
        s_mov_b32 exec_hi, 0
        s_cmp_ge_u32 s{sCNT}, {SENT0}
        s_cbranch_scc1 {l1}
        buffer_load_dwordx4 v[216:219], v{vF}, {WS}, s{sFL} offen sc1
        s_branch {l2}
        {l1}:
        s_mov_b32 s45, 0x{flag(FL_L):x}
        v_mov_b32 v217, 64
        v_mov_b32 v218, 64
        v_mov_b32 v219, 64
        buffer_load_dword v216, v{vF}, {WS}, s45 offen sc1
        {l2}:
        s_mov_b64 exec, -1
        """)
    a(f"""
    s_mov_b32 s{sPF2}, 0
    s_add_u32 s47, s{sXO}, 0x{WS_X1:x}
    """)
    a.label("f2_loop")
    for buf in range(2):
        AF2 = AFB[buf]
        stamp(a, 0)
        a(f"""
        s_cmp_eq_u32 s{sPF2}, 1
        s_cbranch_scc1 f2_mm{buf}
        s_cmp_ge_u32 s{sSEG}, {2*SENT0}
        s_cbranch_scc1 f2_gate{buf}
        """)
        wait_all(a, 27, vF, sFL, sCNT, 204, ndw=4, sleep=F2_POLL)
        a(f"s_branch f2_ld{buf}")
        a.label(f"f2_gate{buf}")
        a(f"""
        s_mov_b32 s45, 0x{flag(FL_L):x}
        s_mov_b32 s60, 0
        """)
        wait_flag(a, 45, sCNT, 60, 204, sleep=3)
        a(f"s_sleep {F2_GATE}")
        a.label(f"f2_ld{buf}")
        f2_loads(buf)
        a.label(f"f2_mm{buf}")
        stamp(a, 1)
        f2_nextflags()
        a("v_mov_b32 v204, 0")
        for ks in range(14):
            a(f"s_waitcnt vmcnt({15-ks})")
            for t in range(4):
                acc = vr(AC2 + t*4, 4)
                a(f"v_mfma_f32_16x16x32_bf16 {acc}, {ar((ks*4+t)*4,4)}, {vr(AF2+ks*4,4)}, {'0' if ks == 0 else acc}")
                if t < 2:
                    a(f"v_max3_u32 v204, v204, v{AF2+ks*4+2*t}, v{AF2+ks*4+2*t+1}")
        a(f"""
        s_waitcnt vmcnt(1)
        v_max3_u32 v204, v204, v{XB[buf]}, v{XB[buf]+1}
        v_cmp_eq_u32 vcc, -1, v204
        """)
        poll_fail(a, f"f2_ld{buf}", sleep=3)
        stamp(a, 2)
        a.nop(4)
        for t in range(4):
            a(f"ds_write_b128 v{vWr}, {vr(AC2+t*4,4)} offset:{t*4096}")
        a(f"""
        s_add_u32 s{sACT}, s{sACT}, {2*54*1024}
        s_add_u32 s47, s47, {2*16*1280}
        s_add_u32 s{sCNT}, s{sCNT}, 1
        s_add_u32 s{sSEG}, s{sSEG}, 2
        s_waitcnt vmcnt(0)
        v_min3_u32 v216, v216, v217, v218
        v_min_u32 v216, v216, v219
        s_mov_b32 exec_lo, 0x7ffffff
        s_mov_b32 exec_hi, 0
        v_cmp_gt_u32 vcc, s{sCNT}, v216
        s_mov_b64 exec, -1
        s_mov_b32 s{sPF2}, 0
        s_waitcnt lgkmcnt(0)
        s_barrier
        """)
        for q in range(4):
            a(f"ds_read_b128 {vr(FT+q*4,4)}, v{vRd} offset:{q*1024}")
        a(f"""
        s_cbranch_vccnz f2_np{buf}
        s_mov_b32 s{sPF2}, 1
        """)
        f2_loads(1 - buf)
        a(f"""
        f2_np{buf}:
        s_waitcnt lgkmcnt(0)
        s_barrier
        """)
        b = FT
        for r in range(4):
            a(f"v_add_f32 v{b+r}, v{b+r}, v{b+4+r}")
            a(f"v_add_f32 v{b+8+r}, v{b+8+r}, v{b+12+r}")
        for r in range(4):
            a(f"v_add_f32 v{b+r}, v{b+r}, v{b+8+r}")
        x = XB[buf]
        for hf in range(2):
            d0, d1 = b+2*hf, b+2*hf+1
            rnd2(a, d0, d1, 212)
            a(f"v_mul_f32 v{d0}, v{d0}, v{200+2*hf}")
            a(f"v_mul_f32 v{d1}, v{d1}, v{201+2*hf}")
            rnd2(a, d0, d1, 212)
            a(f"""
            v_lshlrev_b32 v212, 16, v{x+hf}
            v_and_b32 v213, 0xffff0000, v{x+hf}
            v_add_f32 v{d0}, v{d0}, v212
            v_add_f32 v{d1}, v{d1}, v213
            v_cvt_pk_bf16_f32 v{b+4+hf}, v{d0}, v{d1}
            """)
        a(f"buffer_store_dwordx2 {vr(b+4,2)}, v{vO}, s[20:23], s{sXO} offen")
        stamp(a, 3)
        stamp_flush(a, 4, 1)
        a(f"""
        s_add_u32 s{sSTEP}, s{sSTEP}, 1
        s_add_u32 s{sXO}, s{sXO}, {2*16*1280}
        s_cmp_ge_u32 s{sSEG}, 128
        s_cbranch_scc1 f2_end
        """)
    a("s_branch f2_loop")
    a.label("f2_end")
    dstamp(a, 14, 3, f"s_cmp_lg_u32 s{sID}, 239\ns_cbranch_scc1 {{lab}}")
    a("s_endpgm")
```

```python
from gen_common import *
import os

P_SLEEP0 = int(os.environ.get("P_SLEEP0", "35"))
P_SLEEP1 = int(os.environ.get("P_SLEEP1", "46"))
U_SLEEPM = int(os.environ.get("U_SLEEPM", "14"))
U_SLEEPP = int(os.environ.get("U_SLEEPP", "12"))
STAMP = int(os.environ.get("STAMP", "0"))
L1FIRST = 0
FORCEPOL = os.environ.get("FORCEPOL", "")
U_SLEEPD = int(os.environ.get("U_SLEEPD", "18"))
DOOR = int(os.environ.get("DOOR", "1"))
C_GAP = int(os.environ.get("C_GAP", "56"))
C_UXTAIL = int(os.environ.get("C_UXTAIL", "16"))
V_SLEEP = int(os.environ.get("V_SLEEP", "4"))
VM_FILL = int(os.environ.get("VM_FILL", "3"))
PKADD = int(os.environ.get("PKADD", "1"))
PDELAY = int(os.environ.get("PDELAY", "0"))
TDEPTH = int(os.environ.get("TDEPTH", "2"))
PDEPTH = int(os.environ.get("PDEPTH", "2"))
CT0 = 20 * int(os.environ.get("CSEG0", "46"))
XMAP = int(os.environ.get("XMAP", "76540321"), 16)
WARM = int(os.environ.get("WARM", "0"))
DST = int(os.environ.get("DST", "0"))
NOMIMIC = int(os.environ.get("NOMIMIC", "1"))
ALAT = int(os.environ.get("ALAT", "44"))
VMFIRST = int(os.environ.get("VMFIRST", "0"))
V_HOLD = int(os.environ.get("V_HOLD", "14"))
V_LAZY = int(os.environ.get("V_LAZY", "0"))
U_HOLD = int(os.environ.get("U_HOLD", "0"))
P_HOLD = int(os.environ.get("P_HOLD", "0"))
VDEPTH = int(os.environ.get("VDEPTH", "2"))
HELP = int(os.environ.get("HELP", "1"))
NOTOK = int(os.environ.get("NOTOK", "0"))

WS, DBG, WQ, WK, XS = "s[8:11]", "s[12:15]", "s[16:19]", "s[20:23]", "s[24:27]"
sW, sID, sSTEP, sBUD = 3, 28, 29, 30
vLANE, vIDX = 2, 4
vL16, vL16b, vL16c = 5, 6, 7
vM8 = 187
sSA, sSB = 98, 99
MEMF = 16
ACC = 56
LDS_T = 0x14000
LDS_R = 0x15000
LDS_ROLE = 0x1F000


def wreg(t, ks, n=4):
    idx = (t * 20 + ks) * 4
    if idx < 256:
        return ar(idx, n)
    return vr(192 + idx - 256, n)


def widx(idx, n=4):
    return ar(idx, n) if idx < 256 else vr(192 + idx - 256, n)


def l16(off):
    return f"v{vL16 + off // 4096}", off % 4096


def poll_fail(a, retry_label, sleep=2):
    ok = a.newlabel("pok")
    a(f"""
    s_cbranch_vccz {ok}
    s_sub_u32 s{sBUD}, s{sBUD}, 1
    s_cmp_lt_i32 s{sBUD}, 0
    s_cbranch_scc1 {ok}
    s_sleep {sleep}
    s_branch {retry_label}
    """)
    a.label(ok)


def wait_flag(a, s_flagoff, s_need, s_seen, vt, sleep=8):
    top = a.newlabel("wf")
    done = a.newlabel("wfd")
    a.label(top)
    a(f"""
    s_cmp_ge_u32 s{s_seen}, s{s_need}
    s_cbranch_scc1 {done}
    buffer_load_dword v{vt}, off, {WS}, s{s_flagoff} sc1
    s_waitcnt vmcnt(0)
    v_readfirstlane_b32 s{s_seen}, v{vt}
    s_nop 3
    s_cmp_ge_u32 s{s_seen}, s{s_need}
    s_cbranch_scc1 {done}
    s_sub_u32 s{sBUD}, s{sBUD}, 1
    s_cmp_lt_i32 s{sBUD}, 0
    s_cbranch_scc1 {done}
    s_sleep {sleep}
    s_branch {top}
    """)
    a.label(done)


def vmax_chain(a, vt, regs):
    regs = list(regs)
    a(f"v_max3_u32 v{vt}, v{regs[0]}, v{regs[1]}, v{regs[2]}")
    k = 3
    while k < len(regs):
        if k + 1 < len(regs):
            a(f"v_max3_u32 v{vt}, v{vt}, v{regs[k]}, v{regs[k+1]}")
            k += 2
        else:
            a(f"v_max_u32 v{vt}, v{vt}, v{regs[k]}")
            k += 1
    a(f"v_cmp_eq_u32 vcc, -1, v{vt}")


def get_pol(a, vt):
    from gen_boot import dbg_wait_wg, DBG_INIT, DBG_POL
    dbg_wait_wg(a, [(DBG_INIT, 1), (DBG_POL, 1), (DBG_POL+4, 1)], vt)
    a(f"""
    buffer_load_dwordx2 v[184:185], off, {DBG}, 0 offset:{DBG_POL} sc1
    s_waitcnt vmcnt(0)
    v_readfirstlane_b32 s{sSA}, v184
    v_readfirstlane_b32 s{sSB}, v185
    s_nop 3
    s_and_b32 s{sSA}, s{sSA}, 2
    s_lshl_b32 s{sSA}, s{sSA}, 12
    s_and_b32 s{sSB}, s{sSB}, 2
    s_lshl_b32 s{sSB}, s{sSB}, 12
    v_add_u32 v{vM8}, 16384, v{vL16}
    """)


def mem_loads(a, s_memoff, flag="sc1", start=0):
    for kb in range(start, 10):
        r, o = l16(kb * 1024)
        if kb >= 8:
            r = f"v{vM8}"
        a(f"buffer_load_dwordx4 {vr(MEMF+4*kb,4)}, {r}, {WS}, s{s_memoff} offen offset:{o} {flag}")


DEFERRED = []
MODE2 = [False]


def flush_deferred(a):
    for f in DEFERRED:
        f()
    DEFERRED.clear()


def mem_proj(a, tiles, s_memoff, vmax, sleep=1, after_first=None):
    base = a.newlabel("mp")
    mem_loads(a, s_memoff, "" if L1FIRST else "sc1")
    for t in tiles:
        for r in range(4):
            a(f"v_mov_b32 v{ACC+4*t+r}, 0")

    def chk(kb):
        f = MEMF + 4 * kb
        return [f"s_waitcnt vmcnt({9-kb})",
                f"v_max3_u32 v{vmax}, v{f}, v{f+1}, v{f+2}",
                f"v_max_u32 v{vmax}, v{vmax}, v{f+3}\nv_cmp_eq_u32 vcc, -1, v{vmax}"]
    for x in chk(0):
        a(x)
    a(f"s_cbranch_vccnz {base}_r0")
    for kb in range(10):
        f = MEMF + 4 * kb
        a.label(f"{base}_c{kb}")
        if STAMP == 2 and kb in (0, 4, 9):
            a(f"s_memrealtime s[{ {0:86,4:88,9:90}[kb] }:{ {0:87,4:89,9:91}[kb] }]")
        if kb == 9 and after_first:
            after_first()
        nxt = chk(kb + 1) if kb < 9 else []
        for n, t in enumerate(tiles):
            a(f"v_smfmac_f32_16x16x64_bf16 {vr(ACC+4*t,4)}, {vr(f,4)}, {wreg(t,2*kb,8)}, v{vIDX}")
            if n < len(nxt):
                a(nxt[n])
        for x in nxt[len(tiles):]:
            a(x)
        if kb < 9:
            a(f"s_cbranch_vccnz {base}_r{kb+1}")

    def ool():
        for kb in range(10):
            a.label(f"{base}_r{kb}")
            a(f"""
            s_sub_u32 s{sBUD}, s{sBUD}, 1
            s_cmp_lt_i32 s{sBUD}, 0
            s_cbranch_scc1 {base}_c{kb}
            s_sleep {sleep}
            """)
            mem_loads(a, s_memoff, "sc1", kb)
            for x in chk(kb):
                a(x)
            a(f"s_cbranch_vccnz {base}_r{kb}")
            a(f"s_branch {base}_c{kb}")
    DEFERRED.append(ool)


LDS_M = 0x18000


def mem_setup(a):
    a(f"""
    s_lshl_b32 s40, s{sW}, 10
    v_add_u32 v176, s40, v{vL16}
    v_add_u32 v177, 4096, v176
    v_add_u32 v178, 16384, v176
    v_add_u32 v179, 0x{LDS_M:x}, v176
    v_add_u32 v175, 0x{LDS_M:x}, v{vL16}
    s_cmp_lt_u32 s{sW}, 2
    s_cbranch_scc1 {a.newlabel("ms")}_ok
    v_mov_b32 v178, 0x7ffffff0
    """)
    a.label(f"ms_{a.uid}_ok")


def mem_proj2(a, order, s_memoff, vmax, after_valid=None, fill=None):
    top = a.newlabel("mq")
    G = 160
    a.label(top)
    for k in range(3):
        a(f"buffer_load_dwordx4 {vr(G+4*k,4)}, v{176+k}, {WS}, s{s_memoff} offen sc1")
    for grp in order:
        for t in grp:
            for r in range(4):
                a(f"v_mov_b32 v{ACC+4*t+r}, 0")
    a("s_waitcnt vmcnt(2)")
    a(f"ds_write_b128 v179, {vr(G,4)}")
    a(f"v_max3_u32 v{vmax}, v{G}, v{G+1}, v{G+2}")
    a("s_waitcnt vmcnt(1)")
    a(f"ds_write_b128 v179, {vr(G+4,4)} offset:4096")
    a(f"v_max3_u32 v{vmax}, v{vmax}, v{G+3}, v{G+4}")
    a(f"v_max3_u32 v{vmax}, v{vmax}, v{G+5}, v{G+6}")
    a("s_waitcnt vmcnt(0)")
    a(f"ds_write_b128 v179, {vr(G+8,4)} offset:8192")
    a(f"v_max3_u32 v{vmax}, v{vmax}, v{G+7}, v{G+8}")
    a(f"v_max3_u32 v{vmax}, v{vmax}, v{G+9}, v{G+10}")
    a(f"v_max_u32 v{vmax}, v{vmax}, v{G+11}")
    a(f"v_cmp_eq_u32 vcc, -1, v{vmax}")
    poll_fail(a, top, sleep=1)
    if after_valid:
        after_valid()
    if STAMP == 2:
        a("s_memrealtime s[86:87]")
    join = a.newlabel("mj")
    labs = [a.newlabel("mw") for _ in range(4)]
    a(f"""
    s_cmp_ge_u32 s{sW}, 2
    s_cbranch_scc1 {labs[2]}
    s_cmp_eq_u32 s{sW}, 1
    s_cbranch_scc1 {labs[1]}
    """)

    def sm(t, kb, src):
        a(f"v_smfmac_f32_16x16x64_bf16 {vr(ACC+4*t,4)}, {vr(src,4)}, {wreg(t,2*kb,8)}, v{vIDX}")
    for w in range(4):
        a.label(labs[w])
        if w == 2:
            a(f"""
            s_cmp_eq_u32 s{sW}, 3
            s_cbranch_scc1 {labs[3]}
            """)
        own = [w, w + 4] + ([8 + w] if w < 2 else [])
        oth = [kb for kb in range(10) if kb not in own]
        a("s_waitcnt lgkmcnt(0)")
        a("s_barrier")
        if STAMP == 2:
            a("s_memrealtime s[88:89]")
        for kb in oth:
            a(f"ds_read_b128 {vr(MEMF+4*kb,4)}, v175 offset:{kb*1024}")
        for grp in order:
            for k, kb in enumerate(own):
                for t in grp:
                    sm(t, kb, G + 4*k)
        for gi, grp in enumerate(order):
            F = list(fill.get(gi, [])) if fill else []
            n = 0
            tot = len(oth) * len(grp)
            for k, kb in enumerate(oth):
                if gi == 0:
                    a(f"s_waitcnt lgkmcnt({len(oth)-1-k})")
                for t in grp:
                    sm(t, kb, MEMF + 4*kb)
                    n += 1
                    if F and n == 2:
                        a.nop(6)
                    if n >= 2 and F:
                        a(F.pop(0))
            for x in F:
                a(x)
        if w < 3:
            a(f"s_branch {join}")
    a.label(join)
    if STAMP == 2:
        a("s_memrealtime s[90:91]")


def combine_list(t0, t1, d01, d23):
    A, B = ACC + 4 * t0, ACC + 4 * t1
    L = [f"v_permlane32_swap_b32 v{A+r}, v{B+r}" for r in range(4)]
    L += [f"v_pk_add_f32 v[{A+r}:{A+r+1}], v[{A+r}:{A+r+1}], v[{B+r}:{B+r+1}]" for r in (0, 2)]
    L += [f"v_cvt_pk_bf16_f32 v{d01}, v{A}, v{A+1}", f"v_cvt_pk_bf16_f32 v{d23}, v{A+2}, v{A+3}"]
    return L


def combine_pair(a, t0, t1, d01, d23):
    A, B = ACC + 4 * t0, ACC + 4 * t1
    for r in range(4):
        a(f"v_permlane32_swap_b32 v{A+r}, v{B+r}")
    if PKADD:
        for r in (0, 2):
            a(f"v_pk_add_f32 v[{A+r}:{A+r+1}], v[{A+r}:{A+r+1}], v[{B+r}:{B+r+1}]")
    else:
        for r in range(4):
            a(f"v_add_f32 v{A+r}, v{A+r}, v{B+r}")
    a(f"v_cvt_pk_bf16_f32 v{d01}, v{A}, v{A+1}")
    a(f"v_cvt_pk_bf16_f32 v{d23}, v{A+2}, v{A+3}")


def load_wqk(a, mats=(WQ, WK), depth=3, slot=32768, nbuf=4, pre=None, mid=None):
    a.comment("---- load Wq/Wk fragments")
    a(f"""
    v_lshrrev_b32 v10, 4, v{vLANE}          ; r = lane/16
    v_and_b32 v11, 15, v{vLANE}             ; chunk'
    v_and_b32 v12, 1, v10
    s_lshl_b32 s40, s{sW}, 1
    v_or_b32 v12, s40, v12                  ; f = (r&1)|(w<<1)
    v_lshlrev_b32 v12, 1, v12
    v_xor_b32 v11, v11, v12
    v_lshlrev_b32 v11, 4, v11
    s_lshl_b32 s40, s{sW}, 2
    v_add_u32 v12, s40, v10                 ; 4w+r
    v_lshl_add_u32 v11, v12, 13, v11
    s_lshl_b32 s41, s{sID}, 8
    s_lshl_b32 s42, s{sW}, 10
    v_bfe_u32 v12, v{vLANE}, 2, 2           ; r
    v_and_b32 v13, 3, v{vLANE}              ; c
    v_lshrrev_b32 v14, 1, v10               ; g>>1
    v_lshlrev_b32 v14, 4, v14               ; 16*(g>>1)
    v_and_b32 v15, 1, v10                   ; g&1
    v_lshl_add_u32 v14, v15, 2, v14         ; +4*(g&1)
    v_and_b32 v16, 1, v12
    v_add_u32 v14, v14, v16                 ; +(r&1)
    v_lshrrev_b32 v17, 1, v12               ; r>>1
    v_lshl_add_u32 v14, v17, 3, v14         ; +8*(r>>1)
    v_lshlrev_b32 v14, 8, v14
    v_lshl_add_u32 v14, v13, 3, v14         ; + c*8
    v_lshl_or_b32 v16, v15, 1, v16
    v_lshl_or_b32 v16, v17, 2, v16          ; f
    v_lshl_or_b32 v14, v16, 5, v14
    s_lshl_b32 s40, s{sW}, 6                ; (2w)<<5
    v_xor_b32 v18, s40, v14                 ; tile 2w
    v_xor_b32 v19, 32, v18                  ; tile 2w+1
    v_add_u32 v20, 0x10000, v18
    v_add_u32 v21, 0x10000, v19
    """)

    nm = len(mats)

    def dma(cn):
        buf = cn % nbuf
        for mat, sd in enumerate(mats):
            for q in range(4):
                a(f"""
                s_add_u32 s43, s42, {buf*slot + mat*16384 + q*4096}
                s_mov_b32 m0, s43
                s_add_u32 s44, s41, {(cn*64+16*q)*8192}
                buffer_load_dwordx4 v11, {sd}, s44 offen lds
                """)
    for cn in range(depth):
        dma(cn)
    if pre:
        pre()
    for cn in range(10):
        later = min(depth - 1, 9 - cn)
        extra = 20 if (pre and cn < depth) else 0
        a(f"s_waitcnt vmcnt({4*nm*later + extra})")
        a("s_barrier")
        if cn + depth < 10:
            dma(cn + depth)
        buf = cn % nbuf
        off = buf * slot
        for mat in range(nm):
            for tt in range(2):
                for ksl in range(2):
                    for j in range(2):
                        idx = ((mat*2+tt) * 20 + cn*2 + ksl) * 4 + 2*j
                        av = 18 + tt + (2 if off >= 65536 else 0)
                        a(f"ds_read_b64_tr_b16 {widx(idx,2)}, v{av} offset:{off % 65536 + mat*16384 + ksl*8192 + j*512}")
            a("s_waitcnt lgkmcnt(0)")
        if mid and cn == depth:
            mid()
    a("s_barrier")


def load_wv_wo(a):
    a.comment("---- Wo addressing")
    for q in range(5):
        a(f"""
        v_add_u32 v10, {64*q}, v{vLANE}
        v_mul_u32_u24 v11, 3277, v10
        v_lshrrev_b32 v11, 16, v11
        v_mul_u32_u24 v12, 20, v11
        v_sub_u32 v10, v10, v12
        v_mul_u32_u24 v11, 1280, v11
        v_lshl_add_u32 v{24+q}, v10, 4, v11
        """)
    a(f"""
    s_mul_i32 s46, s{sID}, 163840
    s_mul_i32 s40, s{sW}, 320
    s_add_u32 s46, s46, s40
    s_mul_i32 s47, s{sW}, 20480
    s_add_u32 s47, s47, {16384*(VDEPTH+1)}
    v_lshrrev_b32 v10, 4, v{vLANE}
    v_bfe_u32 v11, v{vLANE}, 2, 2
    v_lshl_add_u32 v10, v10, 2, v11
    v_mul_u32_u24 v10, 320, v10
    v_and_b32 v11, 3, v{vLANE}
    v_lshl_add_u32 v10, v11, 3, v10
    v_add_u32 v29, s47, v10
    """)

    def wo_dma():
        a("s_mov_b32 s45, s47")
        for blk_ in range(4):
            for q in range(5):
                a(f"""
                s_mov_b32 m0, s45
                s_add_u32 s45, s45, 1024
                buffer_load_dwordx4 v{24+q}, {WK}, s46 offen lds
                """)
            a(f"s_add_u32 s46, s46, {16*1280}")

    def wo_rd(half):
        for jt in range(10):
            for kl in range(2):
                for j in range(2):
                    idx = 160 + (jt*4 + half*2 + kl) * 4 + 2*j
                    a(f"ds_read_b64_tr_b16 {widx(idx,2)}, v29 offset:{(32*kl+16*j)*320 + jt*32}")
            if jt % 2 == 1:
                a("s_waitcnt lgkmcnt(0)")

    def mid():
        wo_rd(0)
        wo_dma()
    load_wqk(a, (WQ,), depth=VDEPTH, slot=16384, nbuf=VDEPTH+1, pre=wo_dma, mid=mid)
    wo_rd(1)
    a("s_barrier")


def load_wo(a, sd):
    a.comment("---- load Wo fragments")
    for q in range(5):
        a(f"""
        v_add_u32 v10, {64*q}, v{vLANE}
        v_mul_u32_u24 v11, 3277, v10
        v_lshrrev_b32 v11, 16, v11            ; row = q/20
        v_mul_u32_u24 v12, 20, v11
        v_sub_u32 v10, v10, v12               ; chunk
        v_mul_u32_u24 v11, 1280, v11
        v_lshl_add_u32 v{16+q}, v10, 4, v11
        """)
    a(f"""
    s_mul_i32 s41, s{sID}, 163840
    s_mul_i32 s40, s{sW}, 320
    s_add_u32 s41, s41, s40                 ; soffset
    s_mul_i32 s42, s{sW}, 20480
    v_lshrrev_b32 v10, 4, v{vLANE}          ; g
    v_bfe_u32 v11, v{vLANE}, 2, 2           ; r
    v_lshl_add_u32 v10, v10, 2, v11
    v_mul_u32_u24 v10, 320, v10
    v_and_b32 v11, 3, v{vLANE}
    v_lshl_add_u32 v10, v11, 3, v10
    v_add_u32 v21, s42, v10
    """)
    for half in range(2):
        a("s_mov_b32 s43, s42")
        for blk in range(4):
            for q in range(5):
                a(f"""
                s_mov_b32 m0, s43
                s_add_u32 s43, s43, 1024
                buffer_load_dwordx4 v{16+q}, {sd}, s41 offen lds
                """)
            a(f"s_add_u32 s41, s41, {16*1280}")
        a("s_waitcnt vmcnt(0)")
        for jt in range(10):
            for kl in range(2):
                for j in range(2):
                    idx = 160 + (jt*4 + half*2 + kl) * 4 + 2*j
                    a(f"ds_read_b64_tr_b16 {widx(idx,2)}, v21 offset:{(32*kl+16*j)*320 + jt*32}")
            if jt % 2 == 1:
                a("s_waitcnt lgkmcnt(0)")
    a("s_barrier")


def load_wvo(a):
    a.comment("---- load Wvo fragments (linear)")
    a(f"""
    s_lshl_b32 s40, s{sID}, 2
    s_add_u32 s40, s40, s{sW}
    s_mul_i32 s40, s40, 81920
    s_add_u32 s40, s40, 0x{WS_WVO:x}
    """)
    for f in range(80):
        a(f"buffer_load_dwordx4 {wreg(f//20, f%20)}, v{vL16}, {WS}, s40 offen offset:{(f%4)*1024}")
        if f % 4 == 3:
            a("s_add_u32 s40, s40, 4096")
        if f % 40 == 39:
            a("s_waitcnt vmcnt(20)" if f < 79 else "s_waitcnt vmcnt(0)")


vHG = 15


def dma_h_setup(a):
    a(f"""
    v_lshrrev_b32 v10, 3, v{vLANE}
    v_and_b32 v{vHG}, 7, v{vLANE}
    v_xor_b32 v{vHG}, v{vHG}, v10
    v_lshlrev_b32 v{vHG}, 4, v{vHG}
    v_mul_u32_u24 v10, 1280, v10
    v_add_u32 v{vHG}, v{vHG}, v10
    """)


def dma_h_init(a, s_hoff, s_buf):
    a(f"""
    s_mul_i32 s43, s{sW}, 10240
    s_add_u32 s44, s43, s{s_hoff}
    s_add_u32 s43, s43, s{s_buf}
    """)


def dma_h_one(a):
    a(f"""
    s_mov_b32 m0, s43
    s_add_u32 s43, s43, 1024
    buffer_load_dwordx4 v{vHG}, {WS}, s44 offen sc1 lds
    s_add_u32 s44, s44, 128
    """)


def dmal_init(a, s_hoff, s_buf):
    a(f"""
    s_mul_i32 s43, s{sW}, 10240
    s_add_u32 s44, s43, s{s_hoff}
    s_add_u32 s43, s43, s{s_buf}
    """)


def dmal_one(a):
    a(f"""
    s_mov_b32 m0, s43
    s_add_u32 s43, s43, 1024
    buffer_load_dwordx4 v{vL16}, {WS}, s44 offen sc1 lds
    s_add_u32 s44, s44, 1024
    """)


def dma_h(a, s_hoff, s_buf):
    dma_h_init(a, s_hoff, s_buf)
    for k in range(10):
        dma_h_one(a)


HF = 104
TACC = 72


def dense_proj(a, vH, transposed, hook=None, tiles=(0, 1, 2, 3)):
    def rd(ks):
        st = HF + (ks % 3) * 8
        for mt in range(2):
            a(f"ds_read_b128 {vr(st+4*mt,4)}, v{vH} offset:{mt*20480+ks*1024}")
    rd(0)
    rd(1)
    for ks in range(20):
        if ks + 2 < 20:
            rd(ks + 2)
            a("s_waitcnt lgkmcnt(4)")
        elif ks + 1 < 20:
            a("s_waitcnt lgkmcnt(2)")
        else:
            a("s_waitcnt lgkmcnt(0)")
        st = HF + (ks % 3) * 8
        for n, t in enumerate(tiles):
            for mt in range(2):
                acc = vr(TACC + (t*2+mt)*4, 4)
                c = "0" if ks == 0 else acc
                if transposed:
                    a(f"v_mfma_f32_16x16x32_bf16 {acc}, {wreg(t,ks)}, {vr(st+4*mt,4)}, {c}")
                else:
                    a(f"v_mfma_f32_16x16x32_bf16 {acc}, {vr(st+4*mt,4)}, {wreg(t,ks)}, {c}")
            if n == len(tiles) // 2 - 1 and hook:
                hook(ks)


def round_scale(a, xs, tmp, s_scale):
    def rnd():
        for k in range(0, len(xs), 2):
            x0 = xs[k]
            x1 = xs[k+1] if k + 1 < len(xs) else xs[k]
            a(f"v_cvt_pk_bf16_f32 v{tmp+k//2}, v{x0}, v{x1}")
        for k in range(0, len(xs), 2):
            a(f"v_lshlrev_b32 v{xs[k]}, 16, v{tmp+k//2}")
            if k + 1 < len(xs):
                a(f"v_and_b32 v{xs[k+1]}, 0xffff0000, v{tmp+k//2}")
    rnd()
    for x in xs:
        a(f"v_mul_f32 v{x}, s{s_scale}, v{x}")
    rnd()


def xlane(a, op, v, t, with8):
    if with8:
        a.nop(2)
        a(f"{op}_dpp v{v}, v{v}, v{v} row_ror:8 row_mask:0xf bank_mask:0xf")
    for sw in ("v_permlane16_swap_b32", "v_permlane32_swap_b32"):
        a(f"v_mov_b32 v{t}, v{v}")
        a.nop(2)
        a(f"{sw} v{v}, v{t}")
        a(f"{op} v{v}, v{v}, v{t}")


def softmax(a, xs, vm, vt, s_log2e, with8):
    a(f"v_max3_f32 v{vm}, v{xs[0]}, v{xs[1]}, v{xs[2]}")
    k = 3
    while k < len(xs):
        if k + 1 < len(xs):
            a(f"v_max3_f32 v{vm}, v{vm}, v{xs[k]}, v{xs[k+1]}")
            k += 2
        else:
            a(f"v_max_f32 v{vm}, v{vm}, v{xs[k]}")
            k += 1
    xlane(a, "v_max_f32", vm, vt, with8)
    for x in xs:
        a(f"v_sub_f32 v{x}, v{x}, v{vm}")
    for x in xs:
        a(f"v_mul_f32 v{x}, s{s_log2e}, v{x}")
    for x in xs:
        a(f"v_exp_f32 v{x}, v{x}")
    a(f"v_add_f32 v{vm}, v{xs[0]}, v{xs[1]}")
    for x in xs[2:]:
        a(f"v_add_f32 v{vm}, v{vm}, v{x}")
    xlane(a, "v_add_f32", vm, vt, with8)
    a(f"v_rcp_f32 v{vm}, v{vm}")
    a.nop(1)
    for x in xs:
        a(f"v_mul_f32 v{x}, v{x}, v{vm}")


def setup_qk_lds_addrs(a, vW, vR):
    a(f"""
    v_and_b32 v10, 15, v{vLANE}             ; n
    v_lshrrev_b32 v11, 4, v{vLANE}          ; g
    v_lshrrev_b32 v12, 1, v11
    v_lshl_add_u32 v10, v12, 4, v10         ; 16*(g>>1)+n
    s_lshl_b32 s40, s{sW}, 5
    v_add_u32 v10, s40, v10                 ; +32w
    v_lshlrev_b32 v10, 4, v10
    v_and_b32 v12, 1, v11
    v_lshl_add_u32 v10, v12, 3, v10
    v_add_u32 v{vW}, 0x{LDS_T:x}, v10
    v_bfe_u32 v12, v{vLANE}, 2, 2           ; r
    v_lshl_add_u32 v12, v11, 2, v12         ; 4g+r
    v_lshlrev_b32 v12, 4, v12
    v_and_b32 v13, 1, v{vLANE}
    v_lshl_add_u32 v12, v13, 3, v12
    v_add_u32 v{vR}, 0x{LDS_T:x}, v12
    """)


def setup_p_load_addrs(a, vA, vB, vM, wstride=8*640, hstride=10240):
    a(f"""
    v_bfe_u32 v10, v{vLANE}, 3, 1           ; rho
    v_and_b32 v11, 7, v{vLANE}              ; i
    v_lshrrev_b32 v12, 4, v{vLANE}          ; gA
    v_lshrrev_b32 v13, 1, v12               ; gA>>1
    v_and_b32 v14, 1, v12                   ; gA&1
    s_mul_i32 s40, s{sW}, {wstride}
    v_mul_u32_u24 v15, 640, v10
    v_add_u32 v15, s40, v15
    v_lshl_add_u32 v15, v13, 8, v15
    v_lshl_add_u32 v15, v11, 5, v15
    v_lshl_add_u32 v{vA}, v14, 4, v15
    v_lshl_add_u32 v15, v13, 2, v14
    v_mul_u32_u24 v15, 640, v15
    v_add_u32 v15, s40, v15
    v_lshl_add_u32 v15, v10, 6, v15
    v_lshl_add_u32 v15, v11, 3, v15
    v_add_u32 v{vB}, 512, v15
    s_mul_i32 s40, s{sW}, {8*hstride}
    v_mul_u32_u24 v15, {hstride}, v13
    v_add_u32 v15, s40, v15
    v_lshl_add_u32 v15, v14, 7, v15
    v_and_b32 v11, 15, v{vLANE}
    v_lshl_add_u32 v{vM}, v11, 3, v15
    """)


def p_loads(a, PF, vA, vB, s_off):
    for blk in range(2):
        for pi in range(2):
            a(f"buffer_load_dwordx4 {vr(PF+(blk*2+pi)*4,4)}, v{vA}, {WS}, s{s_off} offen offset:{(4*blk+pi)*640} sc1")
    for pi in range(2):
        a(f"buffer_load_dwordx2 {vr(PF+16+2*pi,2)}, v{vB}, {WS}, s{s_off} offen offset:{pi*640} sc1")


def p_combine(a, PF, BX, BM, CA, vmax):
    for blk in range(2):
        for pi in range(2):
            f = PF + (blk*2+pi)*4
            a(f"v_smfmac_f32_16x16x64_bf16 {vr(CA+4*pi,4)}, {vr(f,4)}, {vr(BX+8*blk,8)}, v{vIDX}")
            if vmax is not None:
                a(f"v_max3_u32 v{vmax}, v{vmax}, v{f}, v{f+1}")
                a(f"v_max3_u32 v{vmax}, v{vmax}, v{f+2}, v{f+3}")
    a.nop(2 if vmax is not None else 6)
    for pi in range(2):
        f = PF + 16 + 2*pi
        a(f"v_smfmac_f32_16x16x32_bf16 {vr(CA+4*pi,4)}, {vr(f,2)}, {vr(BM,4)}, v{vIDX}")
        if vmax is not None:
            a(f"v_max3_u32 v{vmax}, v{vmax}, v{f}, v{f+1}")


def setup_red_addrs(a, vWr, vRd):
    a(f"""
    v_and_b32 v10, 15, v{vLANE}             ; n
    v_lshrrev_b32 v11, 4, v{vLANE}          ; g
    v_and_b32 v12, 1, v11
    v_lshlrev_b32 v12, 10, v12              ; 4*(g&1)*256
    v_lshl_add_u32 v12, v10, 5, v12         ; + n*32
    v_lshrrev_b32 v13, 1, v11
    v_lshl_add_u32 v12, v13, 2, v12         ; + (g>>1)*4
    s_lshl_b32 s40, s{sW}, 3
    s_add_u32 s40, s40, 0x{LDS_R:x}
    v_add_u32 v12, s40, v12
    v_mov_b32 v13, 0x{LDS_R+0x2800:x}
    v_cmp_gt_u32 vcc, 8, v10
    s_nop 1
    v_cndmask_b32 v{vWr}, v13, v12, vcc
    v_lshlrev_b32 v12, 5, v{vLANE}
    v_add_u32 v{vRd}, 0x{LDS_R:x}, v12
    """)


def red_write(a, CA, vWr, off):
    for r in range(4):
        a(f"v_add_f32_dpp v{CA+r}, v{CA+4+r}, v{CA+r} row_ror:8 row_mask:0xf bank_mask:0xf")
    for r in range(4):
        a(f"ds_write_b32 v{vWr}, v{CA+r} offset:{off + r*256}")


LB = 140
L_SRC, L_DST, L_M, L_V, L_T, L_T2 = LB, LB+1, LB+2, LB+3, LB+4, LB+5
L_RAW, L_OUT, L_X, L_SC, L_SH = LB+8, LB+16, LB+24, LB+40, LB+56


def ln_wave_sum(a, v):
    for ctrl in ["quad_perm:[1,0,3,2]", "quad_perm:[2,3,0,1]", "row_half_mirror", "row_mirror"]:
        a.nop(2)
        a(f"v_add_f32_dpp v{v}, v{v}, v{v} {ctrl} row_mask:0xf bank_mask:0xf")
    a.nop(1)
    a(f"v_readlane_b32 s72, v{v}, 0")
    a(f"v_readlane_b32 s73, v{v}, 16")
    a(f"v_readlane_b32 s74, v{v}, 32")
    a.nop(2)
    a(f"v_mov_b32 v{v}, s72")
    a(f"v_add_f32 v{v}, s73, v{v}")
    a(f"v_add_f32 v{v}, s74, v{v}")


def bf16r(a, v):
    a(f"v_cvt_pk_bf16_f32 v{v}, v{v}, v{v}")
    a(f"v_and_b32 v{v}, 0xffff0000, v{v}")


def ln_setup(a, shift_idx, scale_idx, perm):
    a(f"""
    v_cmp_gt_u32 vcc, 40, v{vLANE}
    v_mov_b32 v{L_T}, 0x7ffffff0
    v_lshlrev_b32 v{L_DST}, 4, v{vLANE}
    """)
    if perm:
        a(f"""
        v_lshrrev_b32 v{L_SRC}, 1, v{vLANE}
        v_lshlrev_b32 v{L_SRC}, 5, v{L_SRC}
        v_and_b32 v{L_T2}, 1, v{vLANE}
        v_lshl_add_u32 v{L_SRC}, v{L_T2}, 3, v{L_SRC}
        """)
    else:
        a(f"v_mov_b32 v{L_SRC}, v{L_DST}")
    a(f"""
    v_lshlrev_b32 v{L_T2}, 1, v{L_SRC}
    v_cndmask_b32 v{L_SRC}, v{L_T}, v{L_SRC}, vcc
    v_cndmask_b32 v{L_T2}, v{L_T}, v{L_T2}, vcc
    v_cndmask_b32 v{L_DST}, v{L_T}, v{L_DST}, vcc
    s_mov_b64 s[76:77], vcc
    s_mov_b32 s72, {WS_MOD + scale_idx*2560}
    s_mov_b32 s73, {WS_MOD + shift_idx*2560}
    """)
    for dst, so in ((L_SC, 72), (L_SH, 73)):
        for h in range(2):
            if perm:
                a(f"buffer_load_dwordx2 {vr(dst+8*h,2)}, v{L_T2}, {WS}, s{so} offen offset:{h*1280}")
                a(f"buffer_load_dwordx2 {vr(dst+8*h+4,2)}, v{L_T2}, {WS}, s{so} offen offset:{h*1280+8}")
                a(f"buffer_load_dwordx2 {vr(dst+8*h+2,2)}, v{L_T2}, {WS}, s{so} offen offset:{h*1280+32}")
                a(f"buffer_load_dwordx2 {vr(dst+8*h+6,2)}, v{L_T2}, {WS}, s{so} offen offset:{h*1280+40}")
            else:
                a(f"buffer_load_dwordx4 {vr(dst+8*h,4)}, v{L_T2}, {WS}, s{so} offen offset:{h*1280} sc1")
                a(f"buffer_load_dwordx4 {vr(dst+8*h+4,4)}, v{L_T2}, {WS}, s{so} offen offset:{h*1280+16} sc1")
    a("s_waitcnt vmcnt(0)")
    for j in range(8):
        a(f"v_add_f32 v{L_SC+2*j}, 1.0, v{L_SC+2*j}")
        a(f"v_add_f32 v{L_SC+2*j+1}, 1.0, v{L_SC+2*j+1}")
        a(f"v_cvt_pk_bf16_f32 v{L_T}, v{L_SC+2*j}, v{L_SC+2*j+1}")
        a(f"v_lshlrev_b32 v{L_SC+2*j}, 16, v{L_T}")
        a(f"v_and_b32 v{L_SC+2*j+1}, 0xffff0000, v{L_T}")


def ln_load(a, srd_, s_off, fl, perm, raw=L_RAW, extra=0):
    if perm:
        for h in range(2):
            a(f"buffer_load_dwordx2 {vr(raw+4*h,2)}, v{L_SRC}, {srd_}, s{s_off} offen offset:{extra+h*640} {fl}")
            a(f"buffer_load_dwordx2 {vr(raw+4*h+2,2)}, v{L_SRC}, {srd_}, s{s_off} offen offset:{extra+h*640+16} {fl}")
        return 4
    for h in range(2):
        a(f"buffer_load_dwordx4 {vr(raw+4*h,4)}, v{L_SRC}, {srd_}, s{s_off} offen offset:{extra+h*640} {fl}")
    return 2


def ln_unpack(a, perm, raw=L_RAW):
    pos = [0, 2, 1, 3] if perm else [0, 1, 2, 3]
    for h in range(2):
        for j in range(4):
            d = 4*h + pos[j]
            a(f"v_lshlrev_b32 v{L_X+2*d}, 16, v{raw+4*h+j}")
            a(f"v_and_b32 v{L_X+2*d+1}, 0xffff0000, v{raw+4*h+j}")


def ln_compute_store(a, s_dst, extra=0, out=L_OUT):
    X = L_X
    a(f"v_add_f32 v{L_M}, v{X}, v{X+1}")
    a(f"v_add_f32 v{L_T}, v{X+2}, v{X+3}")
    for j in range(4, 16, 2):
        a(f"v_add_f32 v{L_M}, v{L_M}, v{X+j}")
        a(f"v_add_f32 v{L_T}, v{L_T}, v{X+j+1}")
    a(f"v_add_f32 v{L_M}, v{L_M}, v{L_T}")
    ln_wave_sum(a, L_M)
    a(f"v_mul_f32 v{L_M}, 0x3acccccd, v{L_M}")
    a(f"v_sub_f32 v{L_T}, v{X}, v{L_M}")
    a(f"v_mul_f32 v{L_V}, v{L_T}, v{L_T}")
    for j in range(1, 16):
        t = L_T if j % 2 == 0 else L_T2
        a(f"v_sub_f32 v{t}, v{X+j}, v{L_M}")
        a(f"v_fmac_f32 v{L_V}, v{t}, v{t}")
    a(f"v_cndmask_b32 v{L_V}, 0, v{L_V}, s[76:77]")
    ln_wave_sum(a, L_V)
    a(f"v_mul_f32 v{L_V}, 0x3acccccd, v{L_V}")
    bf16r(a, L_V)
    a(f"v_add_f32 v{L_V}, 0x3727c5ac, v{L_V}")
    bf16r(a, L_V)
    a(f"v_sqrt_f32 v{L_V}, v{L_V}")
    a.nop(1)
    bf16r(a, L_V)
    a(f"v_rcp_f32 v{L_V}, v{L_V}")
    bf16r(a, L_M)
    for j in range(8):
        x0, x1 = X + 2*j, X + 2*j + 1
        a(f"""
        v_sub_f32 v{x0}, v{x0}, v{L_M}
        v_sub_f32 v{x1}, v{x1}, v{L_M}
        v_cvt_pk_bf16_f32 v{L_T}, v{x0}, v{x1}
        v_lshlrev_b32 v{x0}, 16, v{L_T}
        v_and_b32 v{x1}, 0xffff0000, v{L_T}
        v_mul_f32 v{x0}, v{x0}, v{L_V}
        v_mul_f32 v{x1}, v{x1}, v{L_V}
        v_cvt_pk_bf16_f32 v{L_T}, v{x0}, v{x1}
        v_lshlrev_b32 v{x0}, 16, v{L_T}
        v_and_b32 v{x1}, 0xffff0000, v{L_T}
        v_mul_f32 v{x0}, v{x0}, v{L_SC+2*j}
        v_mul_f32 v{x1}, v{x1}, v{L_SC+2*j+1}
        v_cvt_pk_bf16_f32 v{L_T}, v{x0}, v{x1}
        v_lshlrev_b32 v{x0}, 16, v{L_T}
        v_and_b32 v{x1}, 0xffff0000, v{L_T}
        v_add_f32 v{x0}, v{x0}, v{L_SH+2*j}
        v_add_f32 v{x1}, v{x1}, v{L_SH+2*j+1}
        v_cvt_pk_bf16_f32 v{out+j}, v{x0}, v{x1}
        v_min_u32 v{out+j}, -2, v{out+j}
        """)
    a(f"buffer_store_dwordx4 {vr(out,4)}, v{L_DST}, {WS}, s{s_dst} offen offset:{extra} sc1")
    a(f"buffer_store_dwordx4 {vr(out+4,4)}, v{L_DST}, {WS}, s{s_dst} offen offset:{extra+640} sc1")


def wait_all(a, nl, vaddr, s_off, s_need, vt, ndw=1, sleep=4):
    top, done = a.newlabel("wa"), a.newlabel("wad")
    a.label(top)
    op = {1: "dword", 4: "dwordx4"}[ndw]
    a(f"""
    s_mov_b32 exec_lo, 0x{(1 << nl) - 1:x}
    s_mov_b32 exec_hi, 0
    buffer_load_{op} {vr(vt, ndw)}, v{vaddr}, {WS}, s{s_off} offen sc1
    s_waitcnt vmcnt(0)
    """)
    if ndw == 4:
        a(f"v_min3_u32 v{vt}, v{vt}, v{vt+1}, v{vt+2}")
        a(f"v_min_u32 v{vt}, v{vt}, v{vt+3}")
    a(f"""
    v_cmp_gt_u32 vcc, s{s_need}, v{vt}
    s_mov_b64 exec, -1
    s_cbranch_vccz {done}
    s_sub_u32 s{sBUD}, s{sBUD}, 1
    s_cmp_lt_i32 s{sBUD}, 0
    s_cbranch_scc1 {done}
    s_sleep {sleep}
    s_branch {top}
    """)
    a.label(done)


WS_TRACE = 0x0F000000


def stamp(a, slot):
    if not STAMP:
        return
    if STAMP == 2 and MODE2[0] and slot in (3, 4):
        slot = 6
    if STAMP == 2 and MODE2[0] and slot == 0:
        a("s_memtime s[80:81]")
        return
    a(f"s_memrealtime s[{80+2*slot}:{81+2*slot}]")


def dstamp(a, word, vt, cond=""):
    if not DST:
        return
    lab = a.newlabel("ds")
    a(f"""
    {cond.format(lab=lab)}
    s_cmp_lg_u32 s{sW}, 0
    s_cbranch_scc1 {lab}
    s_memrealtime s[80:81]
    s_waitcnt lgkmcnt(0)
    v_mov_b32 v{vt}, s80
    s_mov_b64 exec, 1
    buffer_store_dword v{vt}, off, {DBG}, 0 offset:{word*4}
    s_mov_b64 exec, -1
    {lab}:
    """)


def stamp_flush(a, n, vt):
    if not STAMP:
        return
    if STAMP == 2 and MODE2[0]:
        n = 7
    skip = a.newlabel("stf")
    a(f"""
    s_cmp_lg_u32 s{sW}, 0
    s_cbranch_scc1 {skip}
    s_waitcnt lgkmcnt(0)
    s_lshl_b32 s96, s{sSTEP}, 5
    s_add_u32 s96, s96, s97
    s_mov_b64 exec, 1
    """)
    for k in range(n):
        a(f"v_mov_b32 v{vt}, s{80+2*k}")
        a(f"buffer_store_dword v{vt}, off, {WS}, s96 offset:{4*k}")
        a.nop(2)
    a(f"v_mov_b32 v{vt}, s{sBUD}")
    a(f"buffer_store_dword v{vt}, off, {WS}, s96 offset:28")
    a("s_mov_b64 exec, -1")
    a.label(skip)


def gen_r(a):
    L = NAME + "_kernel"
    kernel_header(a, L)
    a(f"""
    s_cmp_ge_u32 s2, 256
    s_cbranch_scc1 r_end
    s_load_dwordx2 s[4:5], s[0:1], {KA_WS}
    s_load_dwordx2 s[6:7], s[0:1], {KA_DBG}
    s_load_dwordx4 s[32:35], s[0:1], {KA_WQ}
    s_load_dwordx2 s[36:37], s[0:1], {KA_X}
    v_lshrrev_b32 v1, 6, v0
    v_and_b32 v{vLANE}, 63, v0
    s_waitcnt lgkmcnt(0)
    """)
    srd(a, 8, 4, WS_SIZE)
    srd(a, 12, 6, 256)
    srd(a, 16, 32, D * H * E * 2)
    srd(a, 20, 34, D * H * E * 2)
    srd(a, 24, 36, S * D * 2)
    a(f"""
    v_readfirstlane_b32 s{sW}, v1
    v_lshlrev_b32 v{vL16}, 4, v{vLANE}
    v_add_u32 v{vL16b}, 4096, v{vL16}
    v_add_u32 v{vL16c}, 8192, v{vL16}
    v_mov_b32 v{vIDX}, 0x4444
    v_mov_b32 v10, 0xeeee
    v_and_b32 v11, 8, v{vLANE}
    v_cmp_ne_u32 vcc, 0, v11
    s_mov_b32 s{sBUD}, 200000
    v_mov_b32 v9, 0x{LDS_ROLE:x}
    v_cndmask_b32 v{vIDX}, v{vIDX}, v10, vcc
    s_cmp_lg_u32 s{sW}, 0
    s_cbranch_scc1 r_warm
    s_getreg_b32 s40, hwreg(HW_REG_XCC_ID)
    s_and_b32 s40, s40, 7
    s_mov_b64 exec, 1
    s_lshl_b32 s43, s40, 2
    s_lshr_b32 s43, 0x{XMAP:x}, s43
    s_and_b32 s43, s43, 7
    s_mov_b32 s48, 0
    """)
    a.label("r_try")
    a(f"""
    s_lshr_b32 s45, s43, 1
    s_lshl_b32 s45, s45, 2
    s_and_b32 s44, s43, 1
    s_lshl_b32 s44, s44, 7
    s_add_u32 s45, s45, s44
    v_mov_b32 v10, 1
    buffer_atomic_add v10, off, {DBG}, s45 sc0
    s_waitcnt vmcnt(0)
    v_readfirstlane_b32 s41, v10
    s_nop 3
    s_cmp_lt_u32 s41, 32
    s_cbranch_scc1 r_got
    s_add_u32 s48, s48, 1
    s_sub_u32 s43, s48, 1
    s_mov_b32 s42, 999
    s_cmp_ge_u32 s43, 8
    s_cbranch_scc1 r_role_done
    s_branch r_try
    """)
    a.label("r_got")
    a(f"""
    s_lshl_b32 s42, s43, 5
    s_add_u32 s42, s42, s41                 ; P: t, VM: 32+t
    s_cmp_lt_u32 s43, 2
    s_cbranch_scc1 r_role_done
    s_cmp_ge_u32 s43, 4
    s_cbranch_scc1 r_got4
    s_sub_u32 s43, s43, 2                   ; q = 0,1
    s_mul_i32 s44, s43, 10
    s_add_u32 s42, s41, s44
    s_add_u32 s42, s42, 239                 ; F2: 239 + 10q + t
    s_cmp_lt_u32 s41, 10
    s_cbranch_scc1 r_role_done
    s_mul_i32 s44, s43, 20
    s_add_u32 s42, s41, s44
    s_add_u32 s42, s42, 54                  ; U: 64 + 20q + (t-10)
    s_cmp_lt_u32 s41, 30
    s_cbranch_scc1 r_role_done
    s_lshl_b32 s44, s43, 1
    s_add_u32 s42, s41, s44
    s_add_u32 s42, s42, 174                 ; L: 204 + 2q + (t-30)
    s_branch r_role_done
    """)
    a.label("r_got4")
    a(f"""
    s_sub_u32 s43, s43, 4                   ; q = 0..3
    s_lshl_b32 s44, s43, 3
    s_add_u32 s42, s41, s44
    s_add_u32 s42, s42, 112                 ; T
    s_cmp_lt_u32 s41, 8
    s_cbranch_scc1 r_role_done
    s_add_u32 s42, s42, 24                  ; VO
    s_cmp_lt_u32 s41, 16
    s_cbranch_scc1 r_role_done
    s_add_u32 s42, s43, 208                 ; L: 204 + 4 + q
    s_cmp_eq_u32 s41, 23
    s_cbranch_scc1 r_role_done
    s_lshl_b32 s44, s43, 1
    s_add_u32 s42, s41, s44
    s_add_u32 s42, s42, 160                 ; A
    s_cmp_lt_u32 s41, 18
    s_cbranch_scc1 r_role_done
    s_mul_i32 s44, s43, 5
    s_add_u32 s42, s41, s44
    s_add_u32 s42, s42, 166                 ; C
    s_cmp_lt_u32 s41, 23
    s_cbranch_scc1 r_role_done
    s_mul_i32 s44, s43, 7
    s_add_u32 s42, s41, s44
    s_add_u32 s42, s42, 188                 ; F1: 212 + 7q + (t-24)
    s_cmp_eq_u32 s42, 239
    s_cselect_b32 s42, 264, s42
    s_add_u32 s44, s43, 260
    s_cmp_eq_u32 s41, 31
    s_cselect_b32 s42, s44, s42
    """)
    a.label("r_role_done")
    a(f"""
    v_mov_b32 v10, s42
    ds_write_b32 v9, v10
    s_mov_b64 exec, -1
    s_waitcnt lgkmcnt(0)
    """)
    a("s_branch r_role_wait")
    a.label("r_warm")
    if WARM:
        a(f"""
        s_getpc_b64 s[40:41]
        r_warm_pc:
        s_sub_u32 s40, s40, r_warm_pc-{L}
        s_subb_u32 s41, s41, 0
        s_lshr_b32 s42, s2, 3
        s_mul_i32 s42, s42, 3
        s_add_u32 s42, s42, s{sW}
        s_sub_u32 s42, s42, 1                   ; 0..95
        s_lshl_b32 s42, s42, 10
        v_add_u32 v12, s42, v{vL16}
        v_min_u32 v12, r_code_end-{L}-16, v12
        global_load_dwordx4 v[16:19], v12, s[40:41]
        s_waitcnt vmcnt(0)
        """)
    a.label("r_role_wait")
    a(f"""
    s_barrier
    ds_read_b32 v10, v9
    s_waitcnt lgkmcnt(0)
    v_readfirstlane_b32 s{sID}, v10
    s_mov_b32 s{sSTEP}, 0
    s_mov_b32 s50, 0x3db504f3          ; 128^-0.5
    s_mov_b32 s51, 0x3fb8aa3b          ; log2(e)
    s_mov_b32 s62, s50
    s_mov_b32 s63, s50
    s_mov_b32 s100, 0
    s_mul_i32 s97, s{sID}, {72*32}
    s_add_u32 s97, s97, 0x{WS_TRACE:x}
    s_barrier
    """)
    if STAMP:
        a(f"""
        s_memrealtime s[80:81]
        s_waitcnt lgkmcnt(0)
        v_mov_b32 v3, s80
        buffer_store_dword v3, off, {WS}, s97 offset:{71*32}
        """)
    a(f"""
    s_cmp_lt_u32 s{sID}, 32
    s_cbranch_scc1 role_p
    s_cmp_lt_u32 s{sID}, 64
    s_cbranch_scc1 role_vm
    s_cmp_lt_u32 s{sID}, 112
    s_cbranch_scc1 boot
    s_cmp_lt_u32 s{sID}, 144
    s_cbranch_scc1 role_t
    s_cmp_lt_u32 s{sID}, 176
    s_cbranch_scc1 role_vo
    s_cmp_ge_u32 s{sID}, 265
    s_cbranch_scc1 r_end
    s_branch boot
    boot_done:
    s_cmp_lt_u32 s{sID}, 112
    s_cbranch_scc1 role_u
    {"s_endpgm" if NOTOK else ""}
    s_cmp_lt_u32 s{sID}, 184
    s_cbranch_scc1 role_al
    s_cmp_lt_u32 s{sID}, 204
    s_cbranch_scc1 role_c
    s_cmp_lt_u32 s{sID}, 212
    s_cbranch_scc1 role_al
    s_cmp_lt_u32 s{sID}, 259
    s_cbranch_scc1 role_f
    s_sub_u32 s{sID}, s{sID}, 56            ; 260.. -> 204..
    s_cmp_lt_u32 s{sID}, 209
    s_cbranch_scc1 role_c
    s_endpgm
    """)

    KF, QF, KMF, SA = 72, 104, 120, 136
    X0 = 148
    vTW, vTR, vST, vSM = 8, 9, 12, 13
    sMEM, sPB, sKX, sFT, sSEEN, sNEED = 31, 32, 33, 34, 35, 36
    from gen_boot import dbg_wait_wg, DBG_MOD20
    a.label("role_p")
    MODE2[0] = True
    dstamp(a, 11, 3, f"s_cmp_lg_u32 s{sID}, 0\ns_cbranch_scc1 {{lab}}")
    if PDELAY:
        dbg_wait_wg(a, [(DBG_MOD20, 1)], 3, sleep=10)
    load_wqk(a, depth=PDEPTH)
    setup_qk_lds_addrs(a, vTW, vTR)
    a(f"""
    v_bfe_u32 v10, v{vLANE}, 3, 1           ; b
    v_and_b32 v11, 7, v{vLANE}              ; i
    v_lshrrev_b32 v14, 4, v{vLANE}          ; g
    v_lshlrev_b32 v{vST}, 8, v10
    v_lshl_add_u32 v{vST}, v11, 5, v{vST}
    v_lshl_add_u32 v{vST}, v14, 3, v{vST}
    v_lshlrev_b32 v{vSM}, 3, v11
    v_and_b32 v15, 1, v14
    v_lshl_add_u32 v{vSM}, v15, 2, v{vSM}
    v_lshrrev_b32 v15, 1, v14
    v_lshl_add_u32 v{vSM}, v15, 6, v{vSM}
    v_add_u32 v{vSM}, 512, v{vSM}
    v_mov_b32 v15, 0x7ffffff0
    v_cmp_ne_u32 vcc, 0, v10
    s_mov_b32 s52, 0xff00ff00
    s_mov_b32 s53, 0xff00ff00
    v_cndmask_b32 v{vSM}, v{vSM}, v15, vcc
    s_mov_b32 s54, 0
    s_mov_b32 s55, -1                       ; s[54:55]: lanes g>=2
    s_lshl_b32 s{sKX}, s{sID}, 13
    s_add_u32 s{sKX}, s{sKX}, 0x{WS_KX:x}
    s_lshl_b32 s{sFT}, s{sID}, 7
    s_add_u32 s{sFT}, s{sFT}, 0x{flag(FL_T):x}
    s_mov_b32 s{sSEEN}, 0
    s_mov_b32 s56, 0x{WS_FLAGS:x}
    ; KM store voff: g*128 + (l%8)*16, lanes with b=1 dropped
    v_lshlrev_b32 v189, 7, v14
    v_lshl_add_u32 v189, v11, 4, v189
    v_cndmask_b32 v189, v189, v15, vcc
    s_lshl_b32 s57, s{sID}, 11
    s_add_u32 s57, s57, 0x{WS_KM:x}
    s_lshl_b32 s58, s{sID}, 2
    s_add_u32 s58, s58, s{sW}
    s_lshl_b32 s60, s{sID}, 7
    s_add_u32 s60, s60, 0x{flag(FL_KM):x}
    v_cmp_gt_u32 vcc, 40, v{vLANE}
    v_mov_b32 v180, -1
    v_mov_b32 v181, -1
    v_mov_b32 v182, -1
    v_mov_b32 v183, -1
    v_cndmask_b32 v186, v15, v{vL16}, vcc
    """)
    get_pol(a, X0)
    mem_setup(a)
    a(f"""
    s_add_u32 s59, s{sSB}, 0x{WS_CRB + CRB_DOOR:x}
    s_add_u32 s64, s{sSB}, 0x{WS_CRB:x}
    s_lshr_b32 s40, s{sID}, 3
    s_lshl_b32 s40, s40, 14
    s_and_b32 s41, s{sID}, 7
    s_mul_i32 s41, s41, 640
    s_add_u32 s65, s40, s41
    s_add_u32 s65, s65, s64
    s_add_u32 s65, s65, {4*16384}           ; p base
    s_mov_b32 s61, 0x3e0293ee               ; 128^-0.5 * log2(e)
    """)
    a.label("p_loop")
    stamp(a, 0)
    a(f"""
    s_and_b32 s40, s{sSTEP}, 3
    s_lshl_b32 s40, s40, 17
    s_add_u32 s{sMEM}, s40, s64
    s_add_u32 s{sPB}, s40, s65
    s_xor_b32 s40, s40, 0x40000
    s_add_u32 s66, s40, s65
    s_cmp_lg_u32 s{sW}, 0
    s_cbranch_scc1 p_sync
    s_add_u32 s{sNEED}, s{sSTEP}, 1
    """)
    if P_HOLD:
        a(f"""
        s_cmp_eq_u32 s{sSTEP}, 0
        s_cbranch_scc1 p_nohold
        s_sleep {P_HOLD}
        p_nohold:
        """)
    wait_flag(a, sFT, sNEED, sSEEN, X0)
    for f in range(8):
        r, o = l16(f * 1024)
        a(f"buffer_load_dwordx4 {vr(KF+4*f,4)}, {r}, {WS}, s{sKX} offen offset:{o} sc1")
    a(f"""
    buffer_load_dword v190, off, {WS}, s{sFT} sc1
    s_cmp_eq_u32 s{sSTEP}, 0
    s_cbranch_scc1 p_sync
    s_sleep {P_SLEEP0-P_HOLD}
    """)
    a.label("p_sync")
    a("s_barrier")
    stamp(a, 1)
    def door():
        if not DOOR:
            return
        a(f"""
        s_cmp_lg_u32 s58, 3
        s_cbranch_scc1 p_nodoor
        s_mov_b64 exec, 1
        buffer_store_dword v188, off, {WS}, s59 sc1
        s_mov_b64 exec, -1
        p_nodoor:
        """)
    a(f"""
    s_add_u32 s40, s{sSTEP}, 1
    v_mov_b32 v188, s40
    """)
    qrd = [f"ds_read_b64_tr_b16 {vr(QF+4*k+2*tp,2)}, v{vTR} offset:{k*512+tp*256}" for k in range(4) for tp in range(2)]
    cl = combine_list(0, 1, X0+2, X0+3)
    fl = ["\n".join(cl[0:2]), "\n".join(cl[2:4]), "\n".join(cl[4:6]), "\n".join(cl[6:8]),
          f"ds_write_b64 v{vTW}, {vr(X0+2,2)}", "s_nop 0", "s_nop 0", "s_waitcnt lgkmcnt(0)\ns_barrier",
          "\n".join(qrd[0:2]), "\n".join(qrd[2:4]), "\n".join(qrd[4:6]), "\n".join(qrd[6:8])]
    mem_proj2(a, [[0, 1], [2, 3]], sMEM, X0, after_valid=door, fill={1: fl})
    stamp(a, 2)
    kc = combine_list(2, 3, X0+4, X0+5) + [f"ds_write_b64 v{vTW}, {vr(X0+4,2)} offset:2048"]
    n = 0
    for k in range(4):
        a(f"s_waitcnt lgkmcnt({[6, 4, 3, 1][k]})")
        for mt in range(2):
            acc = vr(SA+4*mt, 4)
            a(f"v_mfma_f32_16x16x32_bf16 {acc}, {vr(KF+(mt*4+k)*4,4)}, {vr(QF+4*k,4)}, {'0' if k==0 else acc}")
            n += 1
            if n == 2:
                a.nop(5)
            if n >= 2:
                for _ in range(3):
                    if kc:
                        a(kc.pop(0))
    assert not kc
    a(f"""
    s_waitcnt lgkmcnt(0)
    s_barrier
    s_cmp_lg_u32 s{sW}, 0
    s_cbranch_scc1 p_other
    """)
    stamp(a, 3)
    for k2 in range(4):
        for tp in range(2):
            a(f"ds_read_b64_tr_b16 {vr(KMF+4*k2+2*tp,2)}, v{vTR} offset:{2048+k2*512+tp*256}")
    T0 = X0 + 8
    M0, TT, S0, MR, XM, FF = X0+6, X0+7, X0+11, X0+5, X0+4, 172

    def mm(k):
        acc = vr(SA+8, 4)
        return f"""s_waitcnt lgkmcnt({6-2*k})
        v_mfma_f32_16x16x32_bf16 {acc}, {vr(KMF+4*k,4)}, {vr(QF+4*k,4)}, {'0' if k==0 else acc}"""
    if NOMIMIC:
        a(f"""
        v_cndmask_b32 v{X0}, v{SA}, v{SA+4}, s[52:53]
        v_cndmask_b32 v{X0+1}, v{SA+1}, v{SA+5}, s[52:53]
        v_cndmask_b32 v{X0+2}, v{SA+2}, v{SA+6}, s[52:53]
        v_cndmask_b32 v{X0+3}, v{SA+3}, v{SA+7}, s[52:53]
        v_max3_f32 v{M0}, v{X0}, v{X0+1}, v{X0+2}
        v_max_f32 v{M0}, v{M0}, v{X0+3}
        {mm(0)}
        v_max_f32_dpp v{M0}, v{M0}, v{M0} row_ror:8 row_mask:0xf bank_mask:0xf
        v_mov_b32 v{TT}, v{M0}
        {mm(1)}
        v_permlane32_swap_b32 v{M0}, v{TT}
        {mm(2)}
        v_max_f32 v{M0}, v{M0}, v{TT}
        {mm(3)}
        s_nop 7
        v_max3_f32 v{M0}, v{M0}, v{SA+8}, v{SA+9}
        v_max3_f32 v{M0}, v{M0}, v{SA+10}, v{SA+11}
        v_mov_b32 v{TT}, v{M0}
        v_cndmask_b32 v{XM}, v{SA+8}, v{SA+9}, s[52:53]
        v_cndmask_b32 v{FF}, v{SA+10}, v{SA+11}, s[52:53]
        v_permlane16_swap_b32 v{M0}, v{TT}
        v_cndmask_b32 v{XM}, v{XM}, v{FF}, s[54:55]
        v_max_f32 v{M0}, v{M0}, v{TT}
        v_mul_f32 v{M0}, s61, v{M0}
        v_fma_f32 v{XM}, v{XM}, s61, -v{M0}
        v_fma_f32 v{X0}, v{X0}, s61, -v{M0}
        v_exp_f32 v{XM}, v{XM}
        v_fma_f32 v{X0+1}, v{X0+1}, s61, -v{M0}
        v_exp_f32 v{X0}, v{X0}
        v_fma_f32 v{X0+2}, v{X0+2}, s61, -v{M0}
        v_exp_f32 v{X0+1}, v{X0+1}
        v_fma_f32 v{X0+3}, v{X0+3}, s61, -v{M0}
        v_exp_f32 v{X0+2}, v{X0+2}
        v_add_f32 v{S0}, v{X0}, v{XM}
        v_exp_f32 v{X0+3}, v{X0+3}
        v_add_f32 v{S0}, v{S0}, v{X0+1}
        v_add_f32 v{S0}, v{S0}, v{X0+2}
        v_add_f32 v{S0}, v{S0}, v{X0+3}
        v_mov_b32_dpp v{MR}, v{XM} row_ror:8 row_mask:0xf bank_mask:0xf
        s_nop 0
        v_add_f32_dpp v{S0}, v{S0}, v{S0} row_ror:8 row_mask:0xf bank_mask:0xf
        v_mov_b32 v{TT}, v{S0}
        s_nop 1
        v_permlane16_swap_b32 v{S0}, v{TT}
        v_add_f32 v{S0}, v{S0}, v{TT}
        v_mov_b32 v{TT}, v{S0}
        s_nop 1
        v_permlane32_swap_b32 v{S0}, v{TT}
        v_add_f32 v{S0}, v{S0}, v{TT}
        v_rcp_f32 v{S0}, v{S0}
        s_nop 0
        v_mul_f32 v{X0}, v{X0}, v{S0}
        v_mul_f32 v{X0+1}, v{X0+1}, v{S0}
        v_mul_f32 v{X0+2}, v{X0+2}, v{S0}
        v_mul_f32 v{X0+3}, v{X0+3}, v{S0}
        v_cvt_pk_bf16_f32 v{T0}, v{X0}, v{X0+1}
        v_cvt_pk_bf16_f32 v{T0+1}, v{X0+2}, v{X0+3}
        v_mul_f32 v{XM}, v{XM}, v{S0}
        v_min_u32 v{T0}, -2, v{T0}
        v_min_u32 v{T0+1}, -2, v{T0+1}
        v_mul_f32 v{MR}, v{MR}, v{S0}
        buffer_store_dwordx2 {vr(T0,2)}, v{vST}, {WS}, s{sPB} offen sc1
        v_cvt_pk_bf16_f32 v{T0+2}, v{XM}, v{MR}
        v_min_u32 v{T0+2}, -2, v{T0+2}
        buffer_store_dword v{T0+2}, v{vSM}, {WS}, s{sPB} offen sc1
        v_readfirstlane_b32 s{sSEEN}, v190
        s_branch p_next
        """)
    else:
        a(f"""
        v_cndmask_b32 v{X0}, v{SA}, v{SA+4}, s[52:53]
        v_cndmask_b32 v{X0+1}, v{SA+1}, v{SA+5}, s[52:53]
        v_cndmask_b32 v{X0+2}, v{SA+2}, v{SA+6}, s[52:53]
        v_cndmask_b32 v{X0+3}, v{SA+3}, v{SA+7}, s[52:53]
        v_cvt_pk_bf16_f32 v{T0}, v{X0}, v{X0+1}
        v_cvt_pk_bf16_f32 v{T0+1}, v{X0+2}, v{X0+3}
        v_lshlrev_b32 v{X0}, 16, v{T0}
        v_and_b32 v{X0+1}, 0xffff0000, v{T0}
        v_lshlrev_b32 v{X0+2}, 16, v{T0+1}
        v_and_b32 v{X0+3}, 0xffff0000, v{T0+1}
        v_pk_mul_f32 v[{X0}:{X0+1}], v[{X0}:{X0+1}], s[62:63]
        v_pk_mul_f32 v[{X0+2}:{X0+3}], v[{X0+2}:{X0+3}], s[62:63]
        v_cvt_pk_bf16_f32 v{T0}, v{X0}, v{X0+1}
        v_cvt_pk_bf16_f32 v{T0+1}, v{X0+2}, v{X0+3}
        {mm(0)}
        v_lshlrev_b32 v{X0}, 16, v{T0}
        v_and_b32 v{X0+1}, 0xffff0000, v{T0}
        {mm(1)}
        v_lshlrev_b32 v{X0+2}, 16, v{T0+1}
        v_and_b32 v{X0+3}, 0xffff0000, v{T0+1}
        {mm(2)}
        v_max3_f32 v{M0}, v{X0}, v{X0+1}, v{X0+2}
        v_max_f32 v{M0}, v{M0}, v{X0+3}
        {mm(3)}
        v_mul_f32 v{X0}, s51, v{X0}
        v_max_f32_dpp v{M0}, v{M0}, v{M0} row_ror:8 row_mask:0xf bank_mask:0xf
        v_mov_b32 v{TT}, v{M0}
        v_mul_f32 v{X0+1}, s51, v{X0+1}
        v_mul_f32 v{X0+2}, s51, v{X0+2}
        v_permlane16_swap_b32 v{M0}, v{TT}
        v_max_f32 v{M0}, v{M0}, v{TT}
        v_mov_b32 v{TT}, v{M0}
        v_mul_f32 v{X0+3}, s51, v{X0+3}
        v_max3_f32 v{MR}, v{SA+8}, v{SA+9}, v{SA+10}
        v_permlane32_swap_b32 v{M0}, v{TT}
        v_max_f32 v{MR}, v{MR}, v{SA+11}
        v_max_f32 v{M0}, v{M0}, v{TT}
        v_mov_b32 v{TT}, v{MR}
        v_cndmask_b32 v{XM}, v{SA+8}, v{SA+9}, s[52:53]
        v_cndmask_b32 v{FF}, v{SA+10}, v{SA+11}, s[52:53]
        v_permlane16_swap_b32 v{MR}, v{TT}
        v_cndmask_b32 v{XM}, v{XM}, v{FF}, s[54:55]
        v_max_f32 v{MR}, v{MR}, v{TT}
        v_mul_f32 v{M0}, s51, v{M0}
        v_cvt_pk_bf16_f32 v{T0+2}, v{XM}, v{MR}
        v_sub_f32 v{X0}, v{X0}, v{M0}
        v_lshlrev_b32 v{XM}, 16, v{T0+2}
        v_and_b32 v{MR}, 0xffff0000, v{T0+2}
        v_sub_f32 v{X0+1}, v{X0+1}, v{M0}
        v_pk_mul_f32 v[{XM}:{MR}], v[{XM}:{MR}], s[62:63]
        v_exp_f32 v{X0}, v{X0}
        v_cvt_pk_bf16_f32 v{T0+2}, v{XM}, v{MR}
        v_exp_f32 v{X0+1}, v{X0+1}
        v_and_b32 v{MR}, 0xffff0000, v{T0+2}
        v_lshlrev_b32 v{XM}, 16, v{T0+2}
        v_mul_f32 v{MR}, s51, v{MR}
        v_mul_f32 v{XM}, s51, v{XM}
        v_max_f32 v{MR}, v{MR}, v{M0}
        v_sub_f32 v{X0+2}, v{X0+2}, v{M0}
        v_sub_f32 v{XM}, v{XM}, v{MR}
        v_sub_f32 v{FF}, v{M0}, v{MR}
        v_exp_f32 v{XM}, v{XM}
        v_sub_f32 v{X0+3}, v{X0+3}, v{M0}
        v_exp_f32 v{FF}, v{FF}
        v_exp_f32 v{X0+2}, v{X0+2}
        v_add_f32 v{S0}, v{X0}, v{X0+1}
        v_exp_f32 v{X0+3}, v{X0+3}
        v_add_f32 v{S0}, v{S0}, v{X0+2}
        v_mov_b32_dpp v{MR}, v{XM} row_ror:8 row_mask:0xf bank_mask:0xf
        v_add_f32 v{S0}, v{S0}, v{X0+3}
        v_fma_f32 v{S0}, v{S0}, v{FF}, v{XM}
        v_mul_f32 v{X0}, v{X0}, v{FF}
        v_mul_f32 v{X0+1}, v{X0+1}, v{FF}
        v_add_f32_dpp v{S0}, v{S0}, v{S0} row_ror:8 row_mask:0xf bank_mask:0xf
        v_mov_b32 v{TT}, v{S0}
        v_mul_f32 v{X0+2}, v{X0+2}, v{FF}
        v_mul_f32 v{X0+3}, v{X0+3}, v{FF}
        v_permlane16_swap_b32 v{S0}, v{TT}
        v_add_f32 v{S0}, v{S0}, v{TT}
        v_mov_b32 v{TT}, v{S0}
        s_nop 1
        v_permlane32_swap_b32 v{S0}, v{TT}
        v_add_f32 v{S0}, v{S0}, v{TT}
        v_rcp_f32 v{S0}, v{S0}
        s_nop 0
        v_mul_f32 v{X0}, v{X0}, v{S0}
        v_mul_f32 v{X0+1}, v{X0+1}, v{S0}
        v_mul_f32 v{X0+2}, v{X0+2}, v{S0}
        v_mul_f32 v{X0+3}, v{X0+3}, v{S0}
        v_cvt_pk_bf16_f32 v{T0}, v{X0}, v{X0+1}
        v_cvt_pk_bf16_f32 v{T0+1}, v{X0+2}, v{X0+3}
        v_mul_f32 v{XM}, v{XM}, v{S0}
        v_min_u32 v{T0}, -2, v{T0}
        v_min_u32 v{T0+1}, -2, v{T0+1}
        v_mul_f32 v{MR}, v{MR}, v{S0}
        buffer_store_dwordx2 {vr(T0,2)}, v{vST}, {WS}, s{sPB} offen sc1
        v_cvt_pk_bf16_f32 v{T0+2}, v{XM}, v{MR}
        v_min_u32 v{T0+2}, -2, v{T0+2}
        buffer_store_dword v{T0+2}, v{vSM}, {WS}, s{sPB} offen sc1
        v_readfirstlane_b32 s{sSEEN}, v190
        s_branch p_next
        """)
    a.label("p_other")
    a(f"""
    s_cmp_lg_u32 s{sW}, 1
    s_cbranch_scc1 p_w23
    """)
    for k in range(4):
        for tp in range(2):
            a(f"ds_read_b64_tr_b16 {vr(KMF+4*k+2*tp,2)}, v{vTR} offset:{2048+k*512+tp*256}")
    a("s_waitcnt lgkmcnt(0)")
    for r in range(16):
        a(f"v_min_u32 v{KMF+r}, -2, v{KMF+r}")
    for k in range(4):
        a(f"buffer_store_dwordx4 {vr(KMF+4*k,4)}, v189, {WS}, s57 offen offset:{k*512} sc1")
    a(f"""
    s_waitcnt vmcnt(0)
    s_mov_b64 exec, 1
    buffer_store_dword v188, off, {WS}, s60 sc1
    s_mov_b64 exec, -1
    s_branch p_next
    """)
    a.label("p_w23")
    a(f"""
    s_cmp_lg_u32 s{sW}, 2
    s_cbranch_scc1 p_next
    buffer_store_dwordx4 v[180:183], v186, {WS}, s66 offen sc1
    s_cmp_lg_u32 s{sID}, 0
    s_cbranch_scc1 p_next
    s_add_u32 s40, s{sSTEP}, 1
    v_mov_b32 v{X0}, s40
    s_mov_b64 exec, 1
    buffer_store_dword v{X0}, off, {WS}, s56 sc1
    s_mov_b64 exec, -1
    """)
    a.label("p_next")
    dstamp(a, 12, 191, f"s_cmp_lg_u32 s{sID}, 0\ns_cbranch_scc1 {{lab}}\ns_cmp_lg_u32 s{sSTEP}, 1\ns_cbranch_scc1 {{lab}}")
    dstamp(a, 13, 191, f"s_cmp_lg_u32 s{sID}, 0\ns_cbranch_scc1 {{lab}}\ns_cmp_lg_u32 s{sSTEP}, 63\ns_cbranch_scc1 {{lab}}")
    dstamp(a, 15, 191, f"s_cmp_lg_u32 s{sID}, 0\ns_cbranch_scc1 {{lab}}\ns_cmp_lg_u32 s{sSTEP}, 11\ns_cbranch_scc1 {{lab}}")
    stamp(a, 4)
    stamp_flush(a, 5, 191)
    a(f"""
    s_add_u32 s{sKX}, s{sKX}, {32*8192}
    s_add_u32 s57, s57, {32*2048}
    s_add_u32 s{sSTEP}, s{sSTEP}, 1
    s_cmp_lt_u32 s{sSTEP}, 64
    s_cbranch_scc1 p_loop
    s_endpgm
    """)
    flush_deferred(a)

    AF, AC3, PKM = 72, 80, 120
    a.label("role_vm")
    a(f"""
    s_sub_u32 s{sID}, s{sID}, 32
    s_load_dwordx4 s[64:67], s[0:1], {KA_WV}
    s_waitcnt lgkmcnt(0)
    """)
    srd(a, 16, 64, D * H * E * 2)
    srd(a, 20, 66, D * H * E * 2)
    if PDELAY:
        dbg_wait_wg(a, [(DBG_MOD20, 1)], 3, sleep=10)
    load_wv_wo(a)
    setup_qk_lds_addrs(a, vTW, vTR)
    a(f"""
    ; sparse-A transposing read: e0 = 32(gA/2) + 16(r/2) + 8(gA%2) + 2(c/2) + (r%2)
    v_lshrrev_b32 v10, 5, v{vLANE}
    v_lshlrev_b32 v10, 5, v10
    v_bfe_u32 v11, v{vLANE}, 3, 1
    v_lshl_add_u32 v10, v11, 4, v10
    v_bfe_u32 v11, v{vLANE}, 4, 1
    v_lshl_add_u32 v10, v11, 3, v10
    v_bfe_u32 v11, v{vLANE}, 1, 1
    v_lshl_add_u32 v10, v11, 1, v10
    v_bfe_u32 v11, v{vLANE}, 2, 1
    v_add_u32 v10, v10, v11
    v_lshlrev_b32 v10, 4, v10
    v_and_b32 v11, 1, v{vLANE}
    v_lshl_add_u32 v10, v11, 3, v10
    v_add_u32 v{vTR}, 0x{LDS_T:x}, v10
    v_lshlrev_b32 v12, 3, v{vLANE}
    v_and_b32 v13, 31, v{vLANE}
    v_lshlrev_b32 v13, 3, v13
    v_lshrrev_b32 v10, 5, v{vLANE}
    v_lshl_add_u32 v13, v10, 14, v13
    v_mov_b32 v132, -1
    v_mov_b32 v133, -1
    v_mov_b32 v134, 0
    s_mul_i32 s57, s{sID}, 10240
    s_mul_i32 s40, s{sW}, 2560
    s_add_u32 s57, s57, s40
    s_add_u32 s57, s57, 0x{WS_UMC:x}
    s_lshl_b32 s61, s{sID}, 7
    s_lshl_b32 s40, s{sW}, 2
    s_add_u32 s61, s61, s40
    s_add_u32 s61, s61, 0x{flag(FL_UF):x}
    """)
    get_pol(a, 135)
    mem_setup(a)
    a(f"""
    s_add_u32 s64, s{sSB}, 0x{WS_CRB + 32768:x}
    s_mul_i32 s65, s{sW}, {10*16384}
    s_lshl_b32 s40, s{sID}, 8
    s_add_u32 s65, s65, s40
    s_add_u32 s65, s65, s{sSA}
    s_add_u32 s65, s65, 0x{WS_CRA:x}
    s_mov_b32 s66, 0
    s_mov_b32 s67, {2*CRA_SLOT}
    """)
    a.label("vm_loop")
    stamp(a, 0)
    for r in range(40):
        a(f"v_mov_b32 v{AC3+r}, 0")
    a(f"""
    s_and_b32 s40, s{sSTEP}, 3
    s_lshl_b32 s40, s40, 17
    s_add_u32 s{sMEM}, s40, s64
    s_add_u32 s58, s65, s66
    s_cmp_eq_u32 s{sSTEP}, 0
    s_cbranch_scc1 vm_sync
    s_sleep {V_SLEEP}
    vm_sync:
    s_barrier
    """)
    stamp(a, 1)
    def vm_flag():
        if V_LAZY:
            a(f"""
            s_mov_b64 exec, 1
            buffer_store_dword v134, off, {WS}, s61 sc1
            s_mov_b64 exec, -1
            """)
    mem_proj2(a, [[0, 1]], sMEM, 135, after_valid=vm_flag)
    stamp(a, 2)
    a.nop(8)
    combine_pair(a, 0, 1, 136, 137)
    a(f"""
    ds_write_b64 v{vTW}, v[136:137]
    s_waitcnt lgkmcnt(0)
    s_barrier
    """)
    for kb in range(2):
        for n in range(2):
            a(f"ds_read_b64_tr_b16 {vr(AF+4*kb+2*n,2)}, v{vTR} offset:{(64*kb+4*n)*16}")
    stamp(a, 3)

    def vm_pack(p):
        A, B = AC3 + 8*p, AC3 + 8*p + 4
        L = [f"v_permlane32_swap_b32 v{A+r}, v{B+r}" for r in range(4)]
        if PKADD:
            L += [f"v_pk_add_f32 v[{A+r}:{A+r+1}], v[{A+r}:{A+r+1}], v[{B+r}:{B+r+1}]" for r in (0, 2)]
        else:
            L += [f"v_add_f32 v{A+r}, v{A+r}, v{B+r}" for r in range(4)]
        L += [f"v_cvt_pk_bf16_f32 v{PKM+2*p}, v{A}, v{A+1}", f"v_cvt_pk_bf16_f32 v{PKM+2*p+1}, v{A+2}, v{A+3}",
              f"buffer_store_dwordx2 {vr(PKM+2*p,2)}, v13, {WS}, s{68+p} offen sc1"]
        return L
    for p in range(5):
        a(f"s_add_u32 s{68+p}, s58, {p*32768}")
    a("s_waitcnt lgkmcnt(0)")
    pend = []
    slot = 0
    last_mf = {}
    for p in range(5):
        for kb in range(2):
            for jj in range(2):
                jt = 2*p + jj
                a(f"v_smfmac_f32_16x16x64_bf16 {vr(AC3+4*jt,4)}, {vr(AF+4*kb,4)}, {widx(160+(jt*4+2*kb)*4,8)}, v{vIDX}")
                slot += 1
                rdy = slot + 8
                n = 0
                if pend and slot < pend[0][0]:
                    k = min(2, pend[0][0] - slot)
                    a.nop(k)
                    slot += k
                    n = 2
                while pend and pend[0][0] <= slot and n < VM_FILL:
                    a(pend.pop(0)[1])
                    slot += 1
                    n += 1
        for x in vm_pack(p):
            pend.append((rdy, x))
    while pend:
        if pend[0][0] > slot:
            a.nop(pend[0][0] - slot)
            slot = pend[0][0]
        a(pend.pop(0)[1])
        slot += 1
    stamp(a, 4)
    if V_HOLD:
        a(f"""
        s_cmp_eq_u32 s{sSTEP}, 63
        s_cbranch_scc1 vm_nohold
        s_sleep {V_HOLD}
        vm_nohold:
        """)
    for p in range(5):
        a(f"buffer_store_dwordx2 {vr(PKM+2*p,2)}, v12, {WS}, s57 offen offset:{p*512} sc1")
    a("s_add_u32 s40, s65, s67")
    for p in range(5):
        a(f"buffer_store_dwordx2 v[132:133], v13, {WS}, s40 offen sc1")
        a("s_add_u32 s40, s40, 32768")
    a(f"""
    s_add_u32 s57, s57, {UM_STEP}
    s_mov_b32 s67, s66
    s_add_u32 s66, s66, {CRA_SLOT}
    s_cmp_ge_u32 s66, {3*CRA_SLOT}
    s_cselect_b32 s66, 0, s66
    s_add_u32 s40, s{sSTEP}, 1
    v_mov_b32 v134, s40
    """)
    if not V_LAZY:
        a(f"""
        s_waitcnt vmcnt(5)
        s_mov_b64 exec, 1
        buffer_store_dword v134, off, {WS}, s61 sc1
        s_mov_b64 exec, -1
        """)
    stamp_flush(a, 5, 191)
    a(f"""
    s_add_u32 s{sSTEP}, s{sSTEP}, 1
    s_cmp_lt_u32 s{sSTEP}, 64
    s_cbranch_scc1 vm_loop
    s_waitcnt vmcnt(0)
    s_mov_b64 exec, 1
    buffer_store_dword v134, off, {WS}, s61 sc1
    s_endpgm
    """)
    flush_deferred(a)

    TX, BX, PF, BM, CA = 16, 48, 80, 104, 112
    vPA, vPB, vWr, vRd, vUM = 8, 9, 12, 13, 140
    sUX = 33
    a.label("role_u")
    MODE2[0] = False
    a(f"s_sub_u32 s{sID}, s{sID}, 64")
    setup_p_load_addrs(a, vPA, vPB, vUM, 16384, 256)
    a(f"""
    s_lshl_b32 s40, s{sW}, 9
    v_lshlrev_b32 v{vWr}, 3, v{vLANE}
    v_add_u32 v{vWr}, s40, v{vWr}
    ; final lane l: c8 = l/32, i = (l/4)%8, cp = l%4 ; src lane' = (r&1)*32 + (i/4)*16 + 8c8 + 2cp ; comp = r>>1
    v_bfe_u32 v10, v{vLANE}, 2, 1           ; r&1
    v_lshlrev_b32 v10, 5, v10
    v_bfe_u32 v11, v{vLANE}, 4, 1           ; i/4
    v_lshl_add_u32 v10, v11, 4, v10
    v_lshrrev_b32 v11, 5, v{vLANE}
    v_lshl_add_u32 v10, v11, 3, v10
    v_and_b32 v11, 3, v{vLANE}
    v_lshl_add_u32 v10, v11, 1, v10
    v_lshlrev_b32 v10, 3, v10
    v_bfe_u32 v11, v{vLANE}, 3, 1           ; r>>1
    v_lshl_add_u32 v{vRd}, v11, 2, v10
    v_add_u32 v14, 1024, v{vRd}
    v_lshlrev_b32 v15, 2, v{vLANE}
    v_lshlrev_b32 v133, 7, v{vLANE}
    v_mov_b32 v123, 0
    s_mul_i32 s{sUX}, s{sW}, {8*40960}
    s_lshl_b32 s40, s{sID}, 10
    s_add_u32 s{sUX}, s{sUX}, s40
    s_add_u32 s{sUX}, s{sUX}, 0x{WS_UX:x}
    s_lshl_b32 s{sFT}, s{sW}, 10
    s_add_u32 s{sFT}, s{sFT}, 0x{flag(FL_VO):x}
    v_mov_b32 v134, -1
    """)
    get_pol(a, 135)
    a(f"""
    s_add_u32 s60, s{sSB}, 0x{WS_CRB + CRB_DOOR:x}
    s_add_u32 s64, s{sSB}, 0x{WS_CRB + 4*16384:x}   ; p base
    s_lshl_b32 s65, s{sID}, 8
    s_cmp_ge_u32 s{sID}, 32
    s_cselect_b32 s40, 8192, 0
    s_add_u32 s65, s65, s40
    s_add_u32 s65, s65, s{sSB}
    s_add_u32 s65, s65, 0x{WS_CRB:x}
    s_lshl_b32 s57, s{sID}, 14
    s_add_u32 s57, s57, s{sSA}
    s_add_u32 s57, s57, 0x{WS_CRA:x}
    s_mov_b32 s66, 0
    """)
    a.label("u_loop")
    stamp(a, 0)
    a(f"""
    s_and_b32 s40, s{sSTEP}, 3
    s_lshl_b32 s40, s40, 17
    s_add_u32 s{sPB}, s40, s64
    s_xor_b32 s41, s40, 0x40000
    s_add_u32 s41, s41, s65
    s_add_u32 s40, s{sSTEP}, 1
    s_and_b32 s40, s40, 3
    s_lshl_b32 s40, s40, 17
    s_add_u32 s{sMEM}, s40, s65
    s_cmp_lg_u32 s{sW}, 1
    s_cbranch_scc1 u_noarm
    buffer_store_dword v134, v15, {WS}, s41 offen sc1
    s_add_u32 s41, s41, 32768
    buffer_store_dword v134, v15, {WS}, s41 offen sc1
    u_noarm:
    """)
    a(f"""
    s_add_u32 s{sNEED}, s{sSTEP}, 1
    s_mov_b64 exec, 255
    v_cmp_gt_u32 vcc, s{sNEED}, v123
    s_mov_b64 exec, -1
    s_cbranch_vccz u_vok
    """)
    wait_all(a, 8, 133, sFT, sNEED, 123)
    a.label("u_vok")
    if U_HOLD:
        a(f"""
        s_cmp_eq_u32 s{sW}, 0
        s_cbranch_scc1 u_nohold
        s_cmp_eq_u32 s{sSTEP}, 0
        s_cbranch_scc1 u_nohold
        s_sleep {U_HOLD}
        u_nohold:
        """)
    a(f"s_mov_b32 s40, s{sUX}")
    for hh in range(8):
        a(f"buffer_load_dwordx4 {vr(TX+4*hh,4)}, v{vL16}, {WS}, s40 offen sc1")
        a(f"s_add_u32 s40, s40, 40960")
    a(f"""
    s_mov_b64 exec, 255
    buffer_load_dword v123, v133, {WS}, s{sFT} offen sc1
    s_mov_b64 exec, -1
    s_add_u32 s58, s57, s66
    s_add_u32 s66, s66, {CRA_SLOT}
    s_cmp_ge_u32 s66, {3*CRA_SLOT}
    s_cselect_b32 s66, 0, s66
    s_waitcnt vmcnt(0)
    """)
    for hh in range(8):
        for d in range(4):
            a(f"v_mov_b32 v{BX + 8*(hh//2) + 2*d + hh%2}, v{TX+4*hh+d}")
    stamp(a, 1)
    a(f"""
    s_cmp_lg_u32 s{sW}, 0
    s_cbranch_scc1 u_dsync
    """)
    for k in range(3):
        a(f"buffer_load_dword v{124+k}, off, {WS}, s60 sc1")
        a(f"s_sleep 1")
    a.label("u_dspin")
    for k in range(4):
        a(f"""
        buffer_load_dword v{124+(k+3)%4}, off, {WS}, s60 sc1
        s_waitcnt vmcnt(3)
        v_cmp_le_u32 vcc, s{sNEED}, v{124+k}
        s_cbranch_vccnz u_ddone
        s_nop 7
        """)
    a(f"""
    s_sub_u32 s{sBUD}, s{sBUD}, 1
    s_cmp_ge_i32 s{sBUD}, 0
    s_cbranch_scc1 u_dspin
    """)
    a.label("u_ddone")
    stamp(a, 2)
    a(f"s_sleep {U_SLEEPD}")
    a.label("u_dsync")
    a("s_barrier")
    stamp(a, 3)
    def u_mloads():
        for k in range(2):
            a(f"buffer_load_dwordx2 {vr(PF+16+2*k,2)}, v{vPB}, {WS}, s{sPB} offen offset:{k*1280} sc1")
        for j in range(4):
            a(f"buffer_load_dwordx2 {vr(BM+2*j,2)}, v{vUM}, {WS}, s58 offen offset:{j*512} sc1")
    a.label("u_ppoll")
    for q in range(4):
        a(f"buffer_load_dwordx4 {vr(PF+4*q,4)}, v{vPA}, {WS}, s{sPB} offen offset:{q*1280} sc1")
    u_mloads()
    for r in range(4):
        a(f"v_mov_b32 v{CA+r}, 0")
    a("v_mov_b32 v122, 0")
    for q in range(4):
        f = PF + 4*q
        a(f"s_waitcnt vmcnt({9-q})")
        a(f"v_smfmac_f32_16x16x64_bf16 {vr(CA,4)}, {vr(f,4)}, {vr(BX+8*q,8)}, v{vIDX}")
        a(f"v_max3_u32 v122, v122, v{f}, v{f+1}")
        a(f"v_max3_u32 v122, v122, v{f+2}, v{f+3}")
    a("v_cmp_eq_u32 vcc, -1, v122")
    poll_fail(a, "u_ppoll", sleep=1)
    a.label("u_mchk")
    a(f"""
    s_waitcnt vmcnt(4)
    v_swap_b32 v{PF+17}, v{PF+18}
    v_max3_u32 v122, v{PF+16}, v{PF+17}, v{PF+18}
    v_max_u32 v122, v122, v{PF+19}
    s_waitcnt vmcnt(2)
    v_max3_u32 v122, v122, v{BM}, v{BM+1}
    v_max3_u32 v122, v122, v{BM+2}, v{BM+3}
    s_waitcnt vmcnt(0)
    v_max3_u32 v122, v122, v{BM+4}, v{BM+5}
    v_max3_u32 v122, v122, v{BM+6}, v{BM+7}
    v_cmp_eq_u32 vcc, -1, v122
    s_cbranch_vccnz u_mretry
    u_mok:
    v_smfmac_f32_16x16x64_bf16 {vr(CA,4)}, {vr(PF+16,4)}, {vr(BM,8)}, v{vIDX}
    """)

    def u_ool():
        a.label("u_mretry")
        a(f"""
        s_sub_u32 s{sBUD}, s{sBUD}, 1
        s_cmp_lt_i32 s{sBUD}, 0
        s_cbranch_scc1 u_mok
        """)
        u_mloads()
        a("s_branch u_mchk")
    DEFERRED.append(u_ool)
    a.nop(2)
    stamp(a, 4)
    a.nop(6)
    a(f"""
    v_permlane32_swap_b32 v{CA}, v{CA+1}
    v_permlane32_swap_b32 v{CA+2}, v{CA+3}
    v_add_f32 v{CA}, v{CA}, v{CA+1}
    v_add_f32 v{CA+1}, v{CA+2}, v{CA+3}
    ds_write_b64 v{vWr}, {vr(CA,2)}
    s_waitcnt lgkmcnt(0)
    s_barrier
    s_cmp_lg_u32 s{sW}, 0
    s_cbranch_scc1 u_next
    ds_read2_b32 v[124:125], v{vRd} offset0:0 offset1:2
    ds_read2_b32 v[126:127], v{vRd} offset0:128 offset1:130
    ds_read2_b32 v[128:129], v14 offset0:0 offset1:2
    ds_read2_b32 v[130:131], v14 offset0:128 offset1:130
    s_add_u32 s40, s{sMEM}, 32768
    s_waitcnt lgkmcnt(2)
    v_add_f32 v124, v124, v126
    v_add_f32 v125, v125, v127
    s_waitcnt lgkmcnt(0)
    v_add_f32 v128, v128, v130
    v_add_f32 v129, v129, v131
    v_add_f32 v124, v124, v128
    v_add_f32 v125, v125, v129
    v_cvt_pk_bf16_f32 v124, v124, v125
    v_min_u32 v124, -2, v124
    buffer_store_dword v124, v15, {WS}, {"s40" if VMFIRST else "s"+str(sMEM)} offen sc1
    buffer_store_dword v124, v15, {WS}, {"s"+str(sMEM) if VMFIRST else "s40"} offen sc1
    """)
    a.label("u_next")
    stamp(a, 5)
    stamp_flush(a, 6, 191)
    a(f"""
    s_add_u32 s{sUX}, s{sUX}, {UX_STEP}
    s_add_u32 s{sSTEP}, s{sSTEP}, 1
    s_cmp_lt_u32 s{sSTEP}, 63
    s_cbranch_scc1 u_loop
    s_endpgm
    """)
    flush_deferred(a)

    vH = 14
    sHOFF, sHBUF, sOUT, sFM = 37, 38, 39, 56

    def publish(role, sval, wv=3):
        lab = a.newlabel("pub")
        a(f"""
        s_cmp_lg_u32 s{sW}, {wv}
        s_cbranch_scc1 {lab}
        v_mov_b32 v3, {sval}
        s_mov_b64 exec, 1
        buffer_store_dword v3, off, {WS}, s{sFT} sc1
        s_mov_b64 exec, -1
        {lab}:
        """)

    from gen_boot import dbg_wait_wg, DBG_INIT, DBG_LN, N_INITW

    def ln_ready():
        top, done = a.newlabel("lr"), a.newlabel("lrd")
        a(f"""
        s_add_u32 s45, s{sSTEP}, 1
        s_and_b32 s46, s45, 7
        s_cmp_lg_u32 s46, 0
        s_cbranch_scc1 {done}
        s_cmp_ge_u32 s45, 64
        s_cbranch_scc1 {done}
        s_lshr_b32 s45, s45, 1
        {top}:
        buffer_load_dword v3, off, {DBG}, s45 offset:{DBG_LN} sc1
        s_waitcnt vmcnt(0)
        v_readfirstlane_b32 s44, v3
        s_sub_u32 s{sBUD}, s{sBUD}, 1
        s_cmp_lt_i32 s{sBUD}, 0
        s_cbranch_scc1 {done}
        s_cmp_ge_u32 s44, 1
        s_cbranch_scc1 {done}
        s_sleep 4
        s_branch {top}
        {done}:
        """)

    def loop_top():
        a(f"""
        v_add_u32 v{vH}, s{sHBUF}, v{vL16}
        s_sub_u32 s{sHBUF}, 40960, s{sHBUF}
        s_add_u32 s{sHOFF}, s{sHOFF}, 40960
        """)
        ln_ready()
        dmal_init(a, sHOFF, sHBUF)

    a.label("role_t")
    a(f"""
    s_sub_u32 s{sID}, s{sID}, 112
    s_mov_b32 s{sHOFF}, 0x{WS_H1F:x}
    s_mov_b32 s{sHBUF}, 0
    """)
    load_wqk(a, depth=TDEPTH)
    dbg_wait_wg(a, [(DBG_INIT, 1), (DBG_LN, 1)], 3, sleep=2)
    dmal_init(a, sHOFF, sHBUF)
    for k in range(10):
        dmal_one(a)
    a(f"""
    s_lshl_b32 s{sOUT}, s{sID}, 13
    s_lshl_b32 s40, s{sW}, 10
    s_add_u32 s{sOUT}, s{sOUT}, s40
    s_add_u32 s{sOUT}, s{sOUT}, 0x{WS_KX:x}
    s_lshl_b32 s{sFT}, s{sID}, 7
    s_add_u32 s{sFT}, s{sFT}, 0x{flag(FL_T):x}
    s_waitcnt vmcnt(0)
    s_barrier
    """)
    a.label("t_loop")
    stamp(a, 0)
    loop_top()
    DMK = [0, 1, 3, 4, 6, 7, 9, 10, 12, 13]

    def hook_t(ks):
        if ks in DMK:
            dmal_one(a)
        if ks == 5:
            a("s_waitcnt vmcnt(4)")
            a("s_barrier")
            publish("t", f"s{sSTEP}")
    dense_proj(a, vH, True, hook_t)
    stamp(a, 1)
    a.nop(4)
    PK = 128
    a(f"s_add_u32 s40, s{sOUT}, 0x{WS_QX-WS_KX:x}")
    for mat in (0, 1):
        for mt in range(2):
            tm = PK + (mat*2+mt) * 4
            for tt in range(2):
                b = TACC + ((mat*2+tt)*2 + mt) * 4
                a(f"v_cvt_pk_bf16_f32 v{tm+2*tt}, v{b}, v{b+1}")
                a(f"v_cvt_pk_bf16_f32 v{tm+2*tt+1}, v{b+2}, v{b+3}")
    a("s_waitcnt vmcnt(0)")
    for mat in (1, 0):
        for mt in range(2):
            tm = PK + (mat*2+mt) * 4
            so = "s40" if mat == 0 else f"s{sOUT}"
            a(f"buffer_store_dwordx4 {vr(tm,4)}, v{vL16+mt}, {WS}, {so} offen sc1")
    a(f"""
    s_add_u32 s{sOUT}, s{sOUT}, {32*8192}
    s_cmp_lg_u32 s{sSTEP}, 0
    s_cbranch_scc1 t_ne
    s_waitcnt vmcnt(0)
    s_barrier
    """)
    publish("t", "1")
    a("t_ne:")
    a("s_barrier")
    stamp(a, 2)
    stamp_flush(a, 3, 1)
    a(f"""
    s_add_u32 s{sSTEP}, s{sSTEP}, 1
    s_cmp_lt_u32 s{sSTEP}, 64
    s_cbranch_scc1 t_loop
    s_waitcnt vmcnt(0)
    s_barrier
    """)
    publish("t", f"s{sSTEP}")
    a(f"""
    {"s_endpgm" if NOTOK else ""}
    s_mov_b32 s{sSTEP}, 0
    s_add_u32 s97, s97, {300*72*32}
    s_branch {"help_c" if HELP else "help_f"}
    help_f:
    s_cmp_ge_u32 s{sID}, 27
    s_cbranch_scc1 t_a
    s_add_u32 s{sID}, s{sID}, 212
    s_mov_b32 s100, {F1S+1}
    s_branch role_f
    t_a:
    s_add_u32 s{sID}, s{sID}, {176-27}
    s_mov_b32 s100, {SENT0+1}
    s_branch role_a
    """)

    VF, AC2 = 16, 128
    LDS_V = LDS_T
    a.label("role_vo")
    a(f"""
    s_sub_u32 s{sID}, s{sID}, 144
    s_load_dwordx4 s[64:67], s[0:1], {KA_WV}
    s_mov_b32 s{sHOFF}, 0x{WS_H1F:x}
    s_mov_b32 s{sHBUF}, 0
    s_waitcnt lgkmcnt(0)
    """)
    srd(a, 16, 64, D * H * E * 2)
    srd(a, 20, 66, D * H * E * 2)
    load_wv_wo(a)
    dbg_wait_wg(a, [(DBG_INIT, 1), (DBG_LN, 1)], 3, sleep=2)
    dmal_init(a, sHOFF, sHBUF)
    for k in range(10):
        dmal_one(a)
    a(f"""
    s_mul_i32 s{sOUT}, s{sID}, 40960
    s_mul_i32 s40, s{sW}, 10240
    s_add_u32 s{sOUT}, s{sOUT}, s40
    s_add_u32 s{sOUT}, s{sOUT}, 0x{WS_UX:x}
    s_lshl_b32 s{sFT}, s{sID}, 7
    s_add_u32 s{sFT}, s{sFT}, 0x{flag(FL_VO):x}
    s_lshl_b32 s40, s{sW}, 10
    s_add_u32 s40, s40, 0x{LDS_V:x}
    v_add_u32 v12, s40, v{vL16}
    v_add_u32 v13, 0x{LDS_V:x}, v{vL16}
    s_waitcnt vmcnt(0)
    s_barrier
    """)
    a.label("vo_loop")
    stamp(a, 0)
    loop_top()

    def hook_v(ks):
        if ks % 2 == 0:
            dmal_one(a)
    dense_proj(a, vH, True, hook_v, tiles=(0, 1))
    a.nop(6)
    for mt in range(2):
        for tt in range(2):
            b = TACC + (tt*2 + mt) * 4
            a(f"v_cvt_pk_bf16_f32 v{168+4*mt+2*tt}, v{b}, v{b+1}")
            a(f"v_cvt_pk_bf16_f32 v{168+4*mt+2*tt+1}, v{b+2}, v{b+3}")
        a(f"ds_write_b128 v12, {vr(168+4*mt,4)} offset:{mt*4096}")
    a(f"""
    s_waitcnt vmcnt(10) lgkmcnt(0)
    s_barrier
    """)
    stamp(a, 1)
    for k in range(4):
        for mt in range(2):
            a(f"ds_read_b128 {vr(VF+(mt*4+k)*4,4)}, v13 offset:{mt*4096+k*1024}")
    publish("vo", f"s{sSTEP}")
    for hb in range(2):
        for k in range(4):
            if hb == 0:
                a(f"s_waitcnt lgkmcnt({6-2*k})")
            for j5 in range(5):
                for mt in range(2):
                    acc = vr(AC2 + (j5*2+mt)*4, 4) if hb == 0 else vr(TACC + (j5*2+mt)*4, 4)
                    a(f"v_mfma_f32_16x16x32_bf16 {acc}, {vr(VF+(mt*4+k)*4,4)}, {widx(160+((hb*5+j5)*4+k)*4)}, {'0' if k == 0 else acc}")
                if hb == 1 and k < 3 and j5 < 2 and (k*2+j5) < 5:
                    q = k*2 + j5
                    tm = 168 + (q % 2) * 4
                    for mt in range(2):
                        b = AC2 + (q*2+mt)*4
                        a(f"v_cvt_pk_bf16_f32 v{tm+2*mt}, v{b}, v{b+1}")
                        a(f"v_cvt_pk_bf16_f32 v{tm+2*mt+1}, v{b+2}, v{b+3}")
                    r, o = l16(q * 1024)
                    a(f"buffer_store_dwordx4 {vr(tm,4)}, {r}, {WS}, s{sOUT} offen offset:{o} sc1")
    for q in range(5):
        tm = 176 + (q % 2) * 4
        for mt in range(2):
            b = TACC + (q*2+mt)*4
            a(f"v_cvt_pk_bf16_f32 v{tm+2*mt}, v{b}, v{b+1}")
            a(f"v_cvt_pk_bf16_f32 v{tm+2*mt+1}, v{b+2}, v{b+3}")
        r, o = l16((5+q) * 1024)
        a(f"buffer_store_dwordx4 {vr(tm,4)}, {r}, {WS}, s{sOUT} offen offset:{o} sc1")
    a(f"""
    s_add_u32 s{sOUT}, s{sOUT}, {UX_STEP}
    s_cmp_lg_u32 s{sSTEP}, 0
    s_cbranch_scc1 vo_ne
    s_waitcnt vmcnt(0)
    s_barrier
    """)
    publish("vo", "1")
    a(f"""
    vo_ne:
    s_waitcnt vmcnt(10)
    s_barrier
    """)
    stamp(a, 2)
    stamp_flush(a, 3, 1)
    a(f"""
    s_add_u32 s{sSTEP}, s{sSTEP}, 1
    s_cmp_lt_u32 s{sSTEP}, 64
    s_cbranch_scc1 vo_loop
    s_waitcnt vmcnt(0)
    s_barrier
    """)
    publish("vo", f"s{sSTEP}")
    a(f"""
    {"s_endpgm" if NOTOK else ""}
    s_mov_b32 s{sSTEP}, 0
    s_add_u32 s97, s97, {300*72*32}
    s_branch {"help_f" if HELP else "help_c"}
    help_c:
    s_cmp_ge_u32 s{sID}, {NC}
    s_cbranch_scc1 vo_a
    s_add_u32 s{sID}, s{sID}, {184+NC}
    s_branch role_c
    vo_a:
    s_cmp_ge_u32 s{sID}, {NC+3}
    s_cbranch_scc1 r_end
    s_add_u32 s{sID}, s{sID}, {176+5-NC}
    s_mov_b32 s100, {SENT0+1}
    s_branch role_a
    """)

    KF2, QF2, KMF2, SA2, Y0 = 16, 48, 80, 96, 120
    sKXR, sKM = 33, 57
    a.label("role_al")
    a(f"""
    s_sub_u32 s40, s{sID}, 176
    s_sub_u32 s41, s{sID}, 196
    s_cmp_lt_u32 s{sID}, 184
    s_cselect_b32 s40, s40, s41             ; 0..15
    s_lshl_b32 s40, s40, 1
    s_and_b32 s41, s{sW}, 1
    s_add_u32 s{sID}, s40, s41
    s_cmp_ge_u32 s{sW}, 2
    s_cbranch_scc1 role_l
    s_branch role_a2
    """)
    a.label("role_a")
    a(f"""
    s_sub_u32 s{sID}, s{sID}, 176
    s_lshl_b32 s{sID}, s{sID}, 2
    s_add_u32 s{sID}, s{sID}, s{sW}         ; head
    role_a2:
    v_bfe_u32 v10, v{vLANE}, 3, 1           ; b
    v_and_b32 v11, 7, v{vLANE}              ; i
    v_lshrrev_b32 v15, 4, v{vLANE}          ; g
    v_lshlrev_b32 v8, 7, v15
    v_lshl_add_u32 v8, v11, 4, v8
    v_mul_u32_u24 v10, {PB_RG}, v10
    v_lshl_add_u32 v{vST}, v11, 4, v10      ; + i*16
    v_and_b32 v11, 1, v15
    v_lshl_add_u32 v{vST}, v11, 3, v{vST}   ; + (g&1)*8
    v_lshrrev_b32 v11, 1, v15
    v_lshl_add_u32 v{vSM}, v11, 7, v{vST}
    v_lshl_add_u32 v{vST}, v11, 8, v{vST}
    v_and_b32 v10, 15, v{vLANE}
    v_lshlrev_b32 v11, 2, v15               ; 4g
    """)
    for r in range(4):
        a(f"v_add_u32 v15, {r}, v11")
        a(f"v_cmp_le_u32 s[{64+r*2}:{65+r*2}], v15, v10")
    a(f"""
    s_mov_b32 s54, 0
    s_mov_b32 s55, -1
    s_lshl_b32 s{sPB}, s{sID}, 9
    s_add_u32 s{sPB}, s{sPB}, 0x{WS_PT:x}
    ; mem part offset relative to token part: 16384 + (2(h/4) + h%2)*256 + ((h>>1)&1)*4 - h*512
    s_lshr_b32 s40, s{sID}, 2
    s_lshl_b32 s40, s40, 1
    s_and_b32 s41, s{sID}, 1
    s_add_u32 s40, s40, s41
    s_lshl_b32 s40, s40, 8
    s_bfe_u32 s41, s{sID}, 0x10001
    s_lshl_b32 s41, s41, 2
    s_add_u32 s40, s40, s41
    s_add_u32 s40, s40, 16384
    s_lshl_b32 s41, s{sID}, 9
    s_sub_u32 s61, s40, s41
    s_lshl_b32 s58, s{sID}, 7
    s_add_u32 s59, s58, 0x{flag(FL_A):x}
    s_add_u32 s58, s58, 0x{flag(FL_KM):x}
    s_mov_b32 s60, 0
    s_lshl_b32 s{sKXR}, s{sID}, 13
    s_add_u32 s{sKXR}, s{sKXR}, 0x{WS_KX:x}
    s_lshl_b32 s{sKM}, s{sID}, 11
    s_add_u32 s{sKM}, s{sKM}, 0x{WS_KM:x}
    s_lshl_b32 s{sFT}, s{sID}, 7
    s_add_u32 s{sFT}, s{sFT}, 0x{flag(FL_T):x}
    s_mov_b32 s{sSEEN}, 0
    s_mov_b32 s{sSTEP}, s100
    s_cmp_eq_u32 s100, 0
    s_cbranch_scc1 a_prim
    s_add_u32 s{sPB}, s{sPB}, {(SENT0+1)*PT_STEP}
    s_add_u32 s{sKXR}, s{sKXR}, {(SENT0+1)*32*8192}
    s_add_u32 s{sKM}, s{sKM}, {(SENT0+1)*32*2048}
    s_mov_b32 s59, 0x{flag(FL_DUMMY):x}
    """)
    wait_flag(a, 58, 100, 60, Y0, sleep=32)
    a.label("a_prim")

    KQ = [(16, 48), (144, 176)]

    def a_kq(need, buf):
        wait_flag(a, sFT, need, sSEEN, Y0+1, sleep=8)
        a(f"s_add_u32 s40, s{sKXR}, 0x{WS_QX-WS_KX:x}")
        for f in range(8):
            r, o = l16(f * 1024)
            a(f"buffer_load_dwordx4 {vr(KQ[buf][0]+4*f,4)}, {r}, {WS}, s{sKXR} offen offset:{o} sc1")
        for f in range(8):
            r, o = l16(f * 1024)
            a(f"buffer_load_dwordx4 {vr(KQ[buf][1]+4*f,4)}, {r}, {WS}, s40 offen offset:{o} sc1")
        a(f"s_add_u32 s{sKXR}, s{sKXR}, {32*8192}")

    def a_km():
        for k in range(4):
            a(f"buffer_load_dwordx4 {vr(KMF2+4*k,4)}, v8, {WS}, s{sKM} offen offset:{k*512} sc1")
    a(f"s_add_u32 s{sNEED}, s{sSTEP}, 1")
    a_kq(sNEED, 0)
    a("s_mov_b32 s47, 0")
    a.label("a_loop")
    for buf in range(2):
        KF2, QF2 = KQ[buf]
        stamp(a, 0)
        a(f"""
        s_add_u32 s{sNEED}, s{sSTEP}, 1
        s_cmp_eq_u32 s47, 1
        s_cbranch_scc1 a_chk{buf}
        s_cmp_ge_u32 s{sSTEP}, {SENT0}
        s_cbranch_scc1 a_kml{buf}
        """)
        wait_flag(a, 58, sNEED, 60, Y0, sleep=4)
        a.label(f"a_kml{buf}")
        a_km()
        a.label(f"a_chk{buf}")
        stamp(a, 1)
        a("s_waitcnt vmcnt(0)")
        vmax_chain(a, Y0, range(KMF2, KMF2+16))
        poll_fail(a, f"a_kml{buf}", sleep=3)
        stamp(a, 2)
        a(f"""
        s_cmp_ge_u32 s{sSTEP}, {SENT0}
        s_cselect_b32 s46, 2, 1
        s_cselect_b32 s45, {32*8192}, 0
        s_add_u32 s{sKXR}, s{sKXR}, s45
        s_add_u32 s45, s{sNEED}, s46
        s_min_u32 s45, s45, 64
        """)
        for qt in range(2):
            for k in range(4):
                for mt in range(qt + 1):
                    acc = vr(SA2+12*qt+4*mt, 4)
                    a(f"v_mfma_f32_16x16x32_bf16 {acc}, {vr(KF2+(mt*4+k)*4,4)}, {vr(QF2+(qt*4+k)*4,4)}, {'0' if k==0 else acc}")
                acc = vr(SA2+12*qt+8, 4)
                a(f"v_mfma_f32_16x16x32_bf16 {acc}, {vr(KMF2+4*k,4)}, {vr(QF2+(qt*4+k)*4,4)}, {'0' if k==0 else acc}")
        for qt in range(2):
            SB = SA2 + 12*qt
            if qt == 0:
                a.nop(2)
            a(f"""
            v_cndmask_b32 v{SB+8}, v{SB+8}, v{SB+10}, s[54:55]
            v_cndmask_b32 v{SB+9}, v{SB+9}, v{SB+11}, s[54:55]
            """)
            xs = [SB + k for k in range(4*(qt+1))] + [SB+8, SB+9]
            round_scale(a, xs, Y0+8, 50)
            a(f"v_mov_b32 v{Y0}, 0xce6e6b28")
            for k in range(4):
                a(f"v_cndmask_b32 v{SB+4*qt+k}, v{Y0}, v{SB+4*qt+k}, s[{64+2*k}:{65+2*k}]")
            softmax(a, xs, Y0+6, Y0+7, 51, False)
            O = 208 + 8*qt
            for half in range(2):
                for m in range(2):
                    if m <= qt:
                        a(f"v_cvt_pk_bf16_f32 v{O+2*half+m}, v{SB+4*m+2*half}, v{SB+4*m+2*half+1}")
                    else:
                        a(f"v_mov_b32 v{O+2*half+m}, 0")
            a(f"v_cvt_pk_bf16_f32 v{O+4}, v{SB+8}, v{SB+9}")
            for k in range(5):
                a(f"v_min_u32 v{O+k}, -2, v{O+k}")
            a(f"s_add_u32 s40, s{sPB}, {qt*2*PB_RG}")
            for half in range(2):
                a(f"buffer_store_dwordx2 {vr(O+2*half,2)}, v{vST}, {WS}, s40 offen offset:{half*128} sc1")
            a(f"s_add_u32 s40, s40, s61")
            a(f"buffer_store_dword v{O+4}, v{vSM}, {WS}, s40 offen sc1")
            if qt == 0:
                a(f"buffer_load_dword v{Y0+2}, off, {WS}, s58 sc1")
                a_kq(45, 1 - buf)
        a(f"""
        s_lshl_b32 s40, s46, 16
        s_add_u32 s{sKM}, s{sKM}, s40
        s_mul_i32 s40, s46, {PT_STEP}
        s_add_u32 s{sPB}, s{sPB}, s40
        v_mov_b32 v{Y0}, s{sNEED}
        s_waitcnt vmcnt(19)
        v_readfirstlane_b32 s60, v{Y0+2}
        s_add_u32 s{sSTEP}, s{sSTEP}, s46
        s_mov_b32 s47, 0
        s_nop 1
        s_cmp_le_u32 s60, s{sSTEP}
        s_cbranch_scc1 a_nk{buf}
        s_mov_b32 s47, 1
        """)
        a_km()
        a(f"""
        s_waitcnt vmcnt(4)
        s_branch a_pub{buf}
        a_nk{buf}:
        s_waitcnt vmcnt(0)
        a_pub{buf}:
        s_mov_b64 exec, 1
        buffer_store_dword v{Y0}, off, {WS}, s59 sc1
        s_mov_b64 exec, -1
        """)
        stamp(a, 3)
        if STAMP:
            a(f"s_sub_u32 s{sSTEP}, s{sSTEP}, s46")
            stamp_flush(a, 4, 1)
            a(f"s_add_u32 s{sSTEP}, s{sSTEP}, s46")
        a(f"""
        s_cmp_ge_u32 s{sSTEP}, 64
        s_cbranch_scc1 r_end
        """)
    a("s_branch a_loop")

    a.label("role_l")
    ln_setup(a, 3, 4, False)
    a(f"""
    s_mov_b32 s40, s{sID}                   ; row
    {"s_sub_u32 s3, s3, 2" if STAMP else ""}
    {"s_add_u32 s97, s97, " + str(100*72*32) if STAMP else ""}
    s_mul_i32 s46, s40, 1280
    s_add_u32 s47, s46, 0x{WS_H2F:x}
    s_lshl_b32 s48, s40, 7
    s_add_u32 s48, s48, 0x{flag(FL_L):x}
    s_mov_b32 s49, 0x{flag(FL_CC):x}
    v_lshlrev_b32 v9, 1, v{L_DST}
    v_cndmask_b32 v9, v{L_DST}, v9, s[76:77]
    s_mov_b32 s40, {WS_MOD + 2*2560}
    s_mov_b32 s52, 20
    """)
    GA = 48
    for h in range(2):
        a(f"buffer_load_dwordx4 {vr(GA+8*h,4)}, v9, {WS}, s40 offen offset:{h*1280} sc1")
        a(f"buffer_load_dwordx4 {vr(GA+8*h+4,4)}, v9, {WS}, s40 offen offset:{h*1280+16} sc1")
    a("s_mov_b32 s54, 0")
    a.label("l_loop")
    stamp(a, 0)
    a(f"""
    s_add_u32 s45, s{sSTEP}, 1
    s_add_u32 s41, s46, 0x{WS_ATT:x}
    s_add_u32 s42, s46, 0x{WS_X1:x}
    s_mov_b32 s53, 0
    s_cmp_eq_u32 s54, 1
    s_cbranch_scc1 l_chk
    """)
    ln_load(a, XS, 46, "", False, raw=24)
    a(f"""
    s_cmp_ge_u32 s{sSTEP}, {SENT0}
    s_cbranch_scc1 l_ld
    """)
    wait_flag(a, 49, 52, 53, 16, sleep=3)
    a.label("l_ld")
    ln_load(a, WS, 41, "sc1", False)
    a(f"buffer_load_dword v17, off, {WS}, s49 offset:128 sc1")
    a("s_waitcnt vmcnt(0)")
    a.label("l_chk")
    stamp(a, 1)
    vmax_chain(a, 16, range(L_RAW, L_RAW+8))
    poll_fail(a, "l_ld", sleep=3)
    a("v_readfirstlane_b32 s55, v17")
    ln_unpack(a, False)
    for j in range(8):
        x0, x1 = L_X + 2*j, L_X + 2*j + 1
        a(f"""
        v_mul_f32 v{x0}, v{x0}, v{GA+2*j}
        v_mul_f32 v{x1}, v{x1}, v{GA+2*j+1}
        v_cvt_pk_bf16_f32 v{L_T}, v{x0}, v{x1}
        v_lshlrev_b32 v{x0}, 16, v{L_T}
        v_and_b32 v{x1}, 0xffff0000, v{L_T}
        v_lshlrev_b32 v{L_T}, 16, v{24+j}
        v_and_b32 v{L_T2}, 0xffff0000, v{24+j}
        v_add_f32 v{x0}, v{x0}, v{L_T}
        v_add_f32 v{x1}, v{x1}, v{L_T2}
        v_cvt_pk_bf16_f32 v{32+j}, v{x0}, v{x1}
        v_lshlrev_b32 v{x0}, 16, v{32+j}
        v_and_b32 v{x1}, 0xffff0000, v{32+j}
        """)
    for j in range(8):
        a(f"v_min_u32 v{32+j}, -2, v{32+j}")
    a(f"buffer_store_dwordx4 v[32:35], v{L_DST}, {WS}, s42 offen sc1")
    a(f"buffer_store_dwordx4 v[36:39], v{L_DST}, {WS}, s42 offen offset:640 sc1")
    a(f"""
    s_mov_b32 s54, 0
    s_cmp_ge_u32 s{sSTEP}, {SENT0-1}
    s_cselect_b32 s55, 20, s55
    s_cmp_lt_u32 s55, 20
    s_cbranch_scc1 l_nopf
    s_cmp_ge_u32 s{sSTEP}, 63
    s_cbranch_scc1 l_nopf
    s_mov_b32 s54, 1
    s_add_u32 s40, s46, {32*1280}
    s_add_u32 s41, s41, {32*1280}
    """)
    ln_load(a, XS, 40, "", False, raw=24)
    ln_load(a, WS, 41, "sc1", False)
    a(f"buffer_load_dword v17, off, {WS}, s49 offset:256 sc1")
    a.label("l_nopf")
    ln_compute_store(a, 47)
    a("s_add_u32 s49, s49, 128")
    stamp(a, 2)
    a(f"""
    v_mov_b32 v16, s45
    s_add_u32 s46, s46, {32*1280}
    s_add_u32 s47, s47, {32*1280}
    s_waitcnt vmcnt(0)
    s_mov_b64 exec, 1
    buffer_store_dword v16, off, {WS}, s48 sc1
    s_mov_b64 exec, -1
    """)
    stamp(a, 3)
    stamp_flush(a, 4, 1)
    a(f"""
    s_add_u32 s{sSTEP}, s{sSTEP}, 1
    s_cmp_lt_u32 s{sSTEP}, 64
    s_cbranch_scc1 l_loop
    s_endpgm
    """)

    vPT, vBM, vXS = 240, 239, 242
    sUXR, sPFC = 33, 59
    sA, sV = 61, 62
    PFB = [16, 96]
    BMB = [128, 144]
    CAC = 176
    from gen_boot import arrive
    a.label("role_c")
    a(f"s_sub_u32 s{sID}, s{sID}, 184")
    setup_p_load_addrs(a, vPA, vPB, vBM)
    a(f"""
    s_lshl_b32 s40, s{sW}, 12
    v_add_u32 v{vPT}, s40, v{vL16}
    v_add_u32 v{vRd}, s40, v{vL16}
    s_lshl_b32 s40, s{sW}, 10
    v_add_u32 v{vWr}, s40, v{vL16}
    v_add_u32 v241, 16384, v{vWr}
    v_and_b32 v10, 15, v{vLANE}             ; n
    v_lshrrev_b32 v11, 5, v{vLANE}          ; pr
    v_lshl_add_u32 v10, v11, 4, v10
    v_bfe_u32 v11, v{vLANE}, 4, 1
    v_lshlrev_b32 v11, 2, v11
    s_lshl_b32 s40, s{sW}, 3
    v_add_u32 v11, s40, v11
    v_mul_u32_u24 v11, 1280, v11
    v_lshl_add_u32 v{vXS}, v10, 1, v11
    v_and_b32 v10, 1, v{vLANE}
    v_mov_b32 v11, 0x7ffffff0
    v_cmp_ne_u32 vcc, 0, v10
    v_lshlrev_b32 v243, 7, v{vLANE}
    v_mov_b32 v232, 0
    v_cndmask_b32 v{vXS}, v{vXS}, v11, vcc
    v_mov_b32 v231, 20
    s_lshl_b32 s40, s{sW}, 10
    s_add_u32 s{sFT}, s40, 0x{flag(FL_UF):x}
    s_add_u32 s{sA}, s40, 0x{flag(FL_A):x}
    s_add_u32 s{sV}, s40, 0x{flag(FL_VO):x}
    s_mov_b32 s{sFM}, 0x{flag(FL_MEM):x}
    s_mul_i32 s73, s{sW}, {8*40960}
    s_add_u32 s73, s73, 0x{WS_UX:x}
    s_add_u32 s76, s{sID}, {CT0}
    s_cmp_ge_u32 s{sID}, {NC}
    s_cselect_b32 s77, s76, s{sID}
    s_mov_b32 s78, s77
    s_mov_b32 s79, s77
    """)

    TIX = {57: 77, 60: 78, 68: 79}

    def dec(ss, sk):
        t = TIX[ss]
        a(f"""
        s_mul_i32 s{ss}, s{t}, 3277
        s_lshr_b32 s{ss}, s{ss}, 16
        s_mul_i32 s40, s{ss}, 20
        s_sub_u32 s{sk}, s{t}, s40
        """)

    def adv(ss, sk):
        t = TIX[ss]
        a(f"""
        s_add_u32 s40, s{t}, {NC}
        s_cmp_lt_u32 s40, {CT0}
        s_cselect_b32 s40, s40, s76
        s_add_u32 s41, s{t}, {2*NC}
        s_cmp_lt_u32 s{t}, {CT0}
        s_cselect_b32 s{t}, s40, s41
        """)
        dec(ss, sk)
    dec(57, 58)
    dec(60, 63)
    dec(68, 72)

    def c_needs():
        a(f"s_add_u32 s44, s60, 1")

    def c_offs():
        a(f"""
        s_mul_i32 s{sPB}, s60, {PT_STEP}
        s_add_u32 s{sPB}, s{sPB}, 0x{WS_PT:x}
        s_add_u32 s64, s{sPB}, {PB_RG}
        s_add_u32 s65, s{sPB}, {2*PB_RG}
        s_add_u32 s66, s{sPB}, {3*PB_RG}
        s_mul_i32 s67, s60, {UM_STEP}
        s_lshl_b32 s40, s63, 9
        s_add_u32 s67, s67, s40
        s_add_u32 s67, s67, 0x{WS_UMC:x}
        s_add_u32 s69, s67, 20480
        s_add_u32 s70, s67, 40960
        s_add_u32 s71, s67, 61440
        """)

    def c_flag_loads():
        a(f"""
        s_mov_b64 exec, 255
        buffer_load_dword v233, v243, {WS}, s{sA} offen sc1
        buffer_load_dwordx4 v[224:227], v243, {WS}, s{sFT} offen sc1
        s_mov_b64 exec, -1
        """)

    def c_test(fail):
        a(f"""
        v_min3_u32 v234, v233, v224, v225
        v_min3_u32 v234, v234, v226, v227
        s_mov_b64 exec, 255
        v_cmp_gt_u32 vcc, s44, v234
        s_mov_b64 exec, -1
        s_cbranch_vccnz {fail}
        """)

    def c_block():
        c_needs()
        top, retry, done = a.newlabel("cb"), a.newlabel("cb"), a.newlabel("cb")
        a.label(top)
        c_flag_loads()
        a("s_waitcnt vmcnt(0)")
        sk = a.newlabel("cb")
        a(f"""
        s_cmp_lt_u32 s60, {SENT0}
        s_cbranch_scc1 {sk}
        v_mov_b32 v233, 64
        {sk}:
        """)
        c_test(retry)
        a(f"s_branch {done}")
        a.label(retry)
        a(f"""
        s_sub_u32 s{sBUD}, s{sBUD}, 1
        s_cmp_lt_i32 s{sBUD}, 0
        s_cbranch_scc1 {done}
        s_sleep 3
        s_branch {top}
        """)
        a.label(done)

    def c_load_list(buf):
        L = []
        for rg in range(4):
            so = [sPB, 64, 65, 66][rg]
            PF = PFB[buf] + 20*rg
            for q in range(4):
                L.append(f"buffer_load_dwordx4 {vr(PF+q*4,4)}, v{vPT}, {WS}, s{so} offen offset:{q*1024} sc1")
            L.append(f"buffer_load_dwordx4 {vr(PF+16,4)}, v241, {WS}, s{so} offen sc1")
        for j in range(4):
            for pr in range(2):
                L.append(f"buffer_load_dwordx2 {ar(BMB[buf]+pr*8+2*j,2)}, v{vBM}, {WS}, s{[67,69,70,71][j]} offen offset:{pr*256} sc1")
        return L

    def c_ux(buf, tail_wait=False):
        ok, skip, end = a.newlabel("cux"), a.newlabel("cux"), a.newlabel("cux")
        a(f"""
        s_cmp_ge_u32 s68, 64
        s_cbranch_scc1 {skip}
        s_add_u32 s45, s68, 1
        s_mov_b64 exec, 255
        v_cmp_gt_u32 vcc, s45, v232
        s_mov_b64 exec, -1
        s_cbranch_vccz {ok}
        """)
        wait_all(a, 8, 243, sV, 45, 232)
        a.label(ok)
        a(f"""
        s_mul_i32 s{sUXR}, s68, {UX_STEP}
        s_lshl_b32 s40, s72, 11
        s_add_u32 s{sUXR}, s{sUXR}, s40
        s_add_u32 s{sUXR}, s{sUXR}, s73
        """)
        for hh in range(8):
            for pr in range(2):
                a(f"buffer_load_dwordx4 {ar(buf*64+pr*32+hh*4,4)}, v{vL16}, {WS}, s{sUXR} offen offset:{pr*1024} sc1")
            a(f"s_add_u32 s{sUXR}, s{sUXR}, 40960")
        if tail_wait:
            a("s_waitcnt vmcnt(16)")
            a(f"s_branch {end}")
        a.label(skip)
        if tail_wait:
            a("s_waitcnt vmcnt(0)")
        a.label(end)
        adv(68, 72)

    def c_burst(buf):
        c_block()
        c_offs()
        top = a.newlabel("cbl")
        a.label(top)
        for x in c_load_list(buf):
            a(x)
        c_flag_loads()
        a("s_waitcnt vmcnt(0)")
        vmax_chain(a, 3, range(PFB[buf], PFB[buf]+80))
        poll_fail(a, top, sleep=4)
        adv(60, 63)

    def c_compute(buf, LL, tag):
        b = Asm()
        for r in range(32):
            b(f"v_mov_b32 v{CAC+r}, 0")
        b.nop(1)
        for q in range(5):
            for pr in range(2):
                for rg in range(4):
                    f = PFB[buf] + 20*rg + q*4
                    B = ar(buf*64+pr*32+q*8, 8) if q < 4 else ar(BMB[buf]+pr*8, 8)
                    b(f"v_smfmac_f32_16x16x64_bf16 {vr(CAC+(pr*4+rg)*4,4)}, {vr(f,4)}, {B}, v{vIDX}")
        b.nop(6)
        for rg in range(4):
            A, B = CAC + rg*4, CAC + (4+rg)*4
            for r in range(4):
                b(f"v_permlane32_swap_b32 v{A+r}, v{B+r}")
            for r in range(4):
                b(f"v_add_f32 v{A+r}, v{A+r}, v{B+r}")
            b(f"ds_write_b128 v{vWr}, {vr(A,4)} offset:{rg*4096}")
        b(f"""
        s_waitcnt lgkmcnt(0)
        s_barrier
        """)
        FT = 208
        for q in range(4):
            b(f"ds_read_b128 {vr(FT+4*q,4)}, v{vRd} offset:{q*1024}")
        b(f"""
        s_mul_i32 s74, s57, {32*1280}
        s_lshl_b32 s75, s58, 6
        s_add_u32 s74, s74, s75
        s_add_u32 s74, s74, 0x{WS_ATT:x}
        s_lshl_b32 s75, s57, 7
        s_add_u32 s75, s75, 0x{flag(FL_CC):x}
        s_waitcnt lgkmcnt(0)
        """)
        for r in range(4):
            b(f"v_add_f32 v{FT+r}, v{FT+r}, v{FT+4+r}")
            b(f"v_add_f32 v{FT+8+r}, v{FT+8+r}, v{FT+12+r}")
        for r in range(4):
            b(f"v_add_f32 v{FT+r}, v{FT+r}, v{FT+8+r}")
        b.nop(1)
        for r in range(4):
            b(f"v_mov_b32_dpp v{FT+8+r}, v{FT+r} quad_perm:[1,0,3,2] row_mask:0xf bank_mask:0xf")
        for r in range(4):
            b(f"v_cvt_pk_bf16_f32 v{FT+r}, v{FT+r}, v{FT+8+r}")
            b(f"v_min_u32 v{FT+r}, -2, v{FT+r}")
            b(f"buffer_store_dword v{FT+r}, v{vXS}, {WS}, s74 offen offset:{r*1280} sc1")
        LL = list(LL)
        acc = 0
        nld = 0
        for ln in b.lines:
            t = ln.strip()
            if t == "s_barrier":
                a(f"""
                s_cmp_lg_u32 s{sW}, 3
                s_cbranch_scc1 c_rs{tag}
                s_waitcnt vmcnt({nld})
                s_mov_b64 exec, 1
                v_cmp_eq_u32 vcc, 19, v230
                v_mov_b32 v230, 0
                s_cbranch_vccz c_rt{tag}
                buffer_store_dword v231, off, {WS}, s56 sc1
                c_rt{tag}:
                s_mov_b64 exec, -1
                c_rs{tag}:
                """)
            a.lines.append(ln)
            if not t or t.startswith(";"):
                continue
            if t.startswith("v_smfmac"):
                acc += 16
            elif t.startswith("ds_") or t.startswith("s_waitcnt") or t.startswith("s_barrier"):
                acc += 24
            elif t.startswith("buffer_store"):
                acc = 0
            else:
                acc += 4
            if acc >= C_GAP and LL and not t.startswith("v_cvt_pk_bf16_f32 v2"):
                x = LL.pop(0)
                a(x)
                nld += x.count("buffer_load")
                acc = 0
        for x in LL:
            a(x)

    a("v_mov_b32 v230, 0")
    c_ux(0)
    c_ux(1)
    c_burst(0)
    a.label("c_loop")
    for buf in range(2):
        stamp(a, 0)
        plain, join, nb = a.newlabel("cpl"), a.newlabel("cjn"), a.newlabel("cnb")
        c_needs()
        a(f"s_mov_b32 s{sPFC}, 0")
        c_test(plain)
        a(f"""
        s_cmp_ge_u32 s60, {SENT0}
        s_cbranch_scc1 {plain}
        s_mov_b32 s{sPFC}, 1
        """)
        c_offs()
        def arrive_issue(tag, resolve):
            a(f"""
            s_barrier
            s_cmp_lg_u32 s{sW}, 3
            s_cbranch_scc1 c_nf{tag}
            s_lshl_b32 s40, s57, 2
            s_add_u32 s40, s40, 0x{flag(FL_CN):x}
            s_mov_b32 s56, s75
            v_mov_b32 v230, 1
            s_mov_b64 exec, 1
            buffer_atomic_add v230, off, {WS}, s40 sc0
            """)
            if resolve:
                a(f"""
                s_waitcnt vmcnt(0)
                v_cmp_eq_u32 vcc, 19, v230
                v_mov_b32 v230, 0
                s_cbranch_vccz c_ne{tag}
                buffer_store_dword v231, off, {WS}, s56 sc1
                c_ne{tag}:
                """)
            a(f"""
            s_mov_b64 exec, -1
            c_nf{tag}:
            """)
        FLG = f"""s_mov_b64 exec, 255
        buffer_load_dword v233, v243, {WS}, s{sA} offen sc1
        buffer_load_dwordx4 v[224:227], v243, {WS}, s{sFT} offen sc1
        s_mov_b64 exec, -1"""
        c_compute(buf, c_load_list(1 - buf) + [FLG], f"x{buf}")
        adv(60, 63)
        stamp(a, 1)
        c_ux(buf, tail_wait=True)
        arrive_issue(f"a{buf}", False)
        a(f"s_branch {join}")
        a.label(plain)
        c_compute(buf, [], f"y{buf}")
        stamp(a, 1)
        a(FLG)
        a("s_waitcnt vmcnt(0)")
        arrive_issue(f"b{buf}", False)

        def resolve(tag, cnt):
            a(f"""
            s_cmp_lg_u32 s{sW}, 3
            s_cbranch_scc1 c_q{tag}
            s_waitcnt vmcnt({cnt})
            s_mov_b64 exec, 1
            v_cmp_eq_u32 vcc, 19, v230
            v_mov_b32 v230, 0
            s_cbranch_vccz c_p{tag}
            buffer_store_dword v231, off, {WS}, s56 sc1
            c_p{tag}:
            s_mov_b64 exec, -1
            c_q{tag}:
            """)
        slow = a.newlabel("csl")
        c_test(slow)
        a(f"""
        s_cmp_ge_u32 s60, {SENT0}
        s_cbranch_scc1 {slow}
        s_mov_b32 s{sPFC}, 1
        """)
        c_offs()
        LL = c_load_list(1 - buf)
        for x in LL:
            a(x)
        resolve(f"f{buf}", len(LL))
        a(FLG)
        adv(60, 63)
        c_ux(buf, tail_wait=True)
        a(f"s_branch {join}")
        a.label(slow)
        resolve(f"s{buf}", 0)
        c_ux(buf)
        a.label(join)
        adv(57, 58)
        stamp(a, 2)
        stamp_flush(a, 3, 1)
        a(f"""
        s_add_u32 s{sSTEP}, s{sSTEP}, 1
        s_cmp_ge_u32 s57, 64
        s_cbranch_scc1 r_end
        s_cmp_eq_u32 s{sPFC}, 1
        s_cbranch_scc1 {nb}
        """)
        c_burst(1 - buf)
        a.label(nb)
    a("s_branch c_loop")
    a.label("pre_boot")
    a(f"""
    v_mov_b32 v134, -1
    s_sub_u32 s40, s{sID}, 102
    s_lshl_b32 s40, s40, 21
    s_add_u32 s40, s40, 0x{WS_CRA + 0x1F0000:x}
    s_lshl_b32 s41, s{sW}, 14
    s_add_u32 s40, s40, s41
    s_mov_b32 s42, -1
    s_mov_b32 s43, -1
    s_mov_b64 exec, 1
    """)
    for k in range(3):
        for half in range(2):
            a(f"""
            s_add_u32 s41, s40, {half*8192 + (k%2)*4096 + k*1152}
            s_memtime s[44:45]
            s_waitcnt lgkmcnt(0)
            buffer_store_dword v134, off, {WS}, s41 sc1
            s_waitcnt vmcnt(0)
            buffer_load_dword v135, off, {WS}, s41 sc1
            s_waitcnt vmcnt(0)
            s_memtime s[46:47]
            s_waitcnt lgkmcnt(0)
            s_sub_u32 s46, s46, s44
            s_min_u32 s{42+half}, s{42+half}, s46
            """)
    a(f"""
    v_mov_b32 v136, s42
    v_mov_b32 v137, s43
    s_lshl_b32 s40, s{sW}, 3
    v_mov_b32 v135, s40
    ds_write_b64 v135, v[136:137]
    s_mov_b64 exec, -1
    s_waitcnt lgkmcnt(0)
    s_barrier
    v_mov_b32 v135, 0
    ds_read_b128 v[124:127], v135
    ds_read_b128 v[128:131], v135 offset:16
    s_waitcnt lgkmcnt(0)
    v_add3_u32 v124, v124, v126, v128
    v_add3_u32 v125, v125, v127, v129
    v_add_u32 v124, v124, v130
    v_add_u32 v125, v125, v131
    v_cmp_lt_u32 vcc, v125, v124
    v_mov_b32 v126, 1
    v_mov_b32 v127, 3
    v_cndmask_b32 v126, v126, v127, vcc
    {"v_mov_b32 v126, " + FORCEPOL if FORCEPOL else ""}
    s_sub_u32 s40, s{sID}, 102
    s_lshl_b32 s40, s40, 2
    s_barrier
    s_cmp_lg_u32 s{sW}, 0
    s_cbranch_scc1 boot_nrm0
    s_mov_b64 exec, 1
    buffer_store_dword v126, off, {DBG}, s40 offset:176 sc1
    s_mov_b64 exec, -1
    s_branch boot_nrm0
    """)
    from gen_boot import gen_boot
    gen_boot(a)
    from gen_f import gen_phase2
    gen_phase2(a)
    a.label("r_end")
    a("s_endpgm")
    a.label("r_code_end")
    return (L, 256, 256, max(131072, 16384*(VDEPTH+1) + 81920), kernel_desc(L, 512, 256))
```

```python
from gen_common import *
import os
from gen_r import *

NG = 1
OUTF = os.environ.get('OUTF', '')
F2_POLL = int(os.environ.get('F2_POLL', '8'))
F2_GATE = int(os.environ.get('F2_GATE', '4'))


def rnd2(a, x0, x1, t):
    a(f"v_cvt_pk_bf16_f32 v{t}, v{x0}, v{x1}")
    a(f"v_lshlrev_b32 v{x0}, 16, v{t}")
    a(f"v_and_b32 v{x1}, 0xffff0000, v{t}")


def gen_phase2(a):
    sG, sJ, sSEG, sCNT, sFL, sFO = 31, 32, 33, 34, 35, 36
    vF = 9
    a.label("role_f")
    if "f" in KILL:
        a("s_endpgm")
    a(f"""
    s_load_dwordx4 s[64:67], s[0:1], {KA_WG}
    s_load_dwordx2 s[68:69], s[0:1], {KA_WD}
    s_load_dwordx2 s[70:71], s[0:1], {KA_OUT}
    v_lshlrev_b32 v{vF}, 7, v{vLANE}
    s_mov_b32 s45, 0x{flag(FL_MEM):x}
    s_mov_b32 s46, 1
    s_mov_b32 s47, 0
    s_waitcnt lgkmcnt(0)
    """)
    wait_flag(a, 45, 46, 47, 3, sleep=16)
    a(f"""
    s_cmp_ge_u32 s{sID}, 239
    s_cbranch_scc1 role_f2
    """)
    a(f"""
    s_mov_b32 s{sG}, s100
    s_sub_u32 s{sJ}, s{sID}, 212
    s_cmp_ge_u32 s{sW}, 2
    s_cselect_b32 s72, s66, s64
    s_cselect_b32 s73, s67, s65
    """)
    srd(a, 16, 72, D * F * 2)
    a(f"""
    v_lshrrev_b32 v10, 3, v{vLANE}          ; r8
    v_and_b32 v11, 7, v{vLANE}
    v_bfe_u32 v12, v10, 1, 1
    s_and_b32 s40, s{sW}, 1
    s_lshl_b32 s41, s40, 1
    v_or_b32 v12, s41, v12                  ; f2 = b1 | b3<<1
    v_lshlrev_b32 v12, 1, v12
    v_xor_b32 v11, v11, v12
    v_lshlrev_b32 v11, 4, v11
    s_lshl_b32 s41, s40, 3
    v_add_u32 v10, s41, v10
    v_mul_u32_u24 v10, {F*2}, v10
    v_add_u32 v11, v10, v11
    s_lshl_b32 s42, s{sJ}, 7                ; soffset
    s_lshr_b32 s43, s{sW}, 1
    s_mul_i32 s43, s43, 40960
    s_lshl_b32 s41, s41, 7
    s_add_u32 s43, s43, s41
    v_lshrrev_b32 v12, 4, v{vLANE}          ; g
    v_bfe_u32 v13, v{vLANE}, 2, 2           ; r
    v_and_b32 v14, 3, v{vLANE}              ; c
    v_lshl_add_u32 v15, v12, 3, v13
    v_lshlrev_b32 v15, 7, v15
    v_lshl_add_u32 v15, v14, 3, v15
    v_lshrrev_b32 v13, 1, v13
    v_and_b32 v12, 1, v12
    v_lshl_or_b32 v13, v12, 1, v13
    v_lshl_or_b32 v15, v13, 5, v15
    s_lshl_b32 s41, s40, 6                  ; (2fp)<<5
    v_xor_b32 v16, s41, v15
    v_xor_b32 v17, 32, v16
    v_add_u32 v18, 40960, v16
    v_add_u32 v19, 40960, v17
    """)
    for ph in range(2):
        a("s_mov_b32 s44, s43")
        for q in range(20):
            a(f"""
            s_mov_b32 m0, s44
            s_add_u32 s44, s44, 2048
            buffer_load_dwordx4 v11, s[16:19], s42 offen lds
            s_add_u32 s42, s42, {16*F*2}
            """)
        a("s_waitcnt vmcnt(0)")
        a("s_barrier")
        for ksl in range(10):
            for t in range(4):
                for j in range(2):
                    idx = (t * 20 + ph*10 + ksl) * 4 + 2*j
                    dst = ar(idx, 2) if idx < 256 else vr(192 + idx - 256, 2)
                    a(f"ds_read_b64_tr_b16 {dst}, v{16+t} offset:{ksl*4096+j*512}")
            a("s_waitcnt lgkmcnt(0)")
        a("s_barrier")
    sHOFF, sHBUF, sOUT, sPFD = 37, 38, 39, 46
    vH = 14
    dma_h_setup(a)
    a(f"""
    v_and_b32 v10, 7, v{vLANE}
    v_lshrrev_b32 v11, 4, v{vLANE}
    v_xor_b32 v11, v11, v10
    v_lshlrev_b32 v11, 4, v11
    v_lshl_add_u32 v11, v10, 7, v11
    v_bfe_u32 v10, v{vLANE}, 3, 1
    v_mul_u32_u24 v10, 10240, v10
    v_add_u32 v23, v10, v11
    """)
    a(f"""
    s_mov_b32 s{sSEG}, s{sG}
    s_mov_b32 s{sCNT}, 0
    s_mov_b32 s{sFL}, 0x{flag(FL_L):x}
    s_lshl_b32 s{sFO}, s{sJ}, 7
    s_lshl_b32 s40, s{sW}, 2
    s_add_u32 s{sFO}, s{sFO}, s40
    s_add_u32 s{sFO}, s{sFO}, 0x{flag(FL_F1):x}
    s_mul_i32 s{sHOFF}, s{sG}, 40960
    s_add_u32 s{sHOFF}, s{sHOFF}, 0x{WS_H2F:x}
    s_mov_b32 s{sHBUF}, 0
    s_lshl_b32 s40, s{sG}, 1
    s_lshr_b32 s41, s{sW}, 1
    s_add_u32 s40, s40, s41
    s_mul_i32 s{sOUT}, s40, {54*1024}
    s_lshl_b32 s40, s{sJ}, 1
    s_and_b32 s42, s{sW}, 1
    s_add_u32 s40, s40, s42
    s_lshl_b32 s40, s40, 10
    s_add_u32 s{sOUT}, s{sOUT}, s40
    s_add_u32 s{sOUT}, s{sOUT}, 0x{WS_ACT:x}
    s_mul_i32 s47, s41, 20480
    s_mov_b32 s57, 0xbfb8aa3b
    s_mov_b32 s{sPFD}, 0
    s_add_u32 s56, s{sSEG}, 1
    s_cmp_eq_u32 s100, 0
    s_cbranch_scc1 f1_prim
    s_add_u32 s{sFO}, s{sFO}, {(FL_F1B-FL_F1)*128}
    """)
    wait_all(a, 32, vF, sFL, sSEG, 20, sleep=32)
    a.label("f1_prim")
    wait_all(a, 32, vF, sFL, 56, 20)
    dma_h(a, sHOFF, sHBUF)
    a.label("f1_loop")
    stamp(a, 0)
    a(f"""
    v_mov_b32 v3, s{sCNT}
    s_add_u32 s40, s{sHBUF}, s47
    v_add_u32 v{vH}, s40, v23
    v_xor_b32 v13, 64, v{vH}
    s_sub_u32 s{sHBUF}, 40960, s{sHBUF}
    s_add_u32 s61, s{sSEG}, 1
    s_cmp_ge_u32 s{sSEG}, {F1S}
    s_cselect_b32 s58, 2, 1
    s_mul_i32 s40, s58, 40960
    s_add_u32 s{sHOFF}, s{sHOFF}, s40
    s_add_u32 s{sSEG}, s{sSEG}, s58
    s_add_u32 s56, s{sSEG}, 1
    s_cmp_lg_u32 s{sPFD}, 0
    s_cbranch_scc1 f1_w1
    s_waitcnt vmcnt(0)
    f1_w1:
    s_waitcnt vmcnt(2)
    s_cmp_eq_u32 s{sPFD}, 2
    s_cbranch_scc0 f1_w2
    s_waitcnt vmcnt(1)
    f1_w2:
    s_mov_b32 exec_lo, -1
    s_mov_b32 exec_hi, 0
    v_cmp_gt_u32 vcc, s56, v20
    s_mov_b64 exec, -1
    s_barrier
    """)
    stamp(a, 1)
    HF1, AC1 = 24, 40

    def rd(ks):
        a(f"ds_read_b128 {vr(HF1+(ks%4)*4,4)}, v{vH if ks % 2 == 0 else 13} offset:{(ks//2)*1024}")

    def mm(with_dma):
        for k in range(3):
            rd(k)
        for ks in range(20):
            if ks + 3 < 20:
                rd(ks + 3)
            a(f"s_waitcnt lgkmcnt({min(3, 19-ks)})")
            for t in range(4):
                acc = vr(AC1 + 4*t, 4)
                a(f"v_mfma_f32_16x16x32_bf16 {acc}, {wreg(t,ks)}, {vr(HF1+(ks%4)*4,4)}, {'0' if ks == 0 else acc}")
                if with_dma and t == 1 and ks in (0, 1, 3, 4, 6, 7, 9, 10, 12, 13):
                    dma_h_one(a)
                if with_dma and t == 1 and ks == 15:
                    a(f"""
                    s_mov_b32 exec_lo, -1
                    s_mov_b32 exec_hi, 0
                    buffer_load_dword v20, v{vF}, {WS}, s{sFL} offen sc1
                    s_mov_b64 exec, -1
                    """)
    a(f"""
    s_mov_b32 s{sPFD}, 0
    s_cbranch_vccnz f1_plain
    s_mov_b32 s{sPFD}, 1
    """)
    dma_h_init(a, sHOFF, sHBUF)
    mm(True)
    a(f"""
    s_waitcnt vmcnt(11)
    s_mov_b64 exec, 1
    buffer_store_dword v3, off, {WS}, s{sFO} sc1
    s_mov_b64 exec, -1
    s_branch f1_epi
    """)
    a.label("f1_plain")
    a(f"""
    s_mov_b32 exec_lo, -1
    s_mov_b32 exec_hi, 0
    buffer_load_dword v20, v{vF}, {WS}, s{sFL} offen sc1
    s_mov_b64 exec, -1
    """)
    mm(False)
    a(f"""
    s_waitcnt vmcnt(0)
    s_mov_b64 exec, 1
    buffer_store_dword v3, off, {WS}, s{sFO} sc1
    s_mov_b32 exec_lo, -1
    s_mov_b32 exec_hi, 0
    v_cmp_gt_u32 vcc, s56, v20
    s_mov_b64 exec, -1
    s_cbranch_vccnz f1_epi
    s_mov_b32 s{sPFD}, 2
    """)
    dma_h(a, sHOFF, sHBUF)
    a.label("f1_epi")
    stamp(a, 2)
    a.nop(4)
    O = 60
    for tt in range(2):
        g = AC1 + tt * 4
        u = AC1 + (2 + tt) * 4
        for hf in range(2):
            g0, g1, u0, u1 = g+2*hf, g+2*hf+1, u+2*hf, u+2*hf+1
            rnd2(a, g0, g1, 64)
            rnd2(a, u0, u1, 65)
            a(f"""
            v_mul_f32 v66, s57, v{g0}
            v_mul_f32 v67, s57, v{g1}
            v_exp_f32 v66, v66
            v_exp_f32 v67, v67
            s_nop 0
            v_add_f32 v66, 1.0, v66
            v_add_f32 v67, 1.0, v67
            v_rcp_f32 v66, v66
            v_rcp_f32 v67, v67
            s_nop 0
            v_mul_f32 v{g0}, v{g0}, v66
            v_mul_f32 v{g1}, v{g1}, v67
            """)
            rnd2(a, g0, g1, 64)
            a(f"""
            v_mul_f32 v{g0}, v{g0}, v{u0}
            v_mul_f32 v{g1}, v{g1}, v{u1}
            v_cvt_pk_bf16_f32 v{O+2*tt+hf}, v{g0}, v{g1}
            """)
    for k in range(4):
        a(f"v_min_u32 v{O+k}, -2, v{O+k}")
    a(f"""
    buffer_store_dwordx4 {vr(O,4)}, v{vL16}, {WS}, s{sOUT} offen sc1
    s_mul_i32 s40, s58, {2*54*1024}
    s_add_u32 s{sOUT}, s{sOUT}, s40
    s_mov_b32 s{sCNT}, s61
    """)
    stamp(a, 3)
    stamp_flush(a, 4, 1)
    a(f"""
    s_add_u32 s{sSTEP}, s{sSTEP}, 1
    s_cmp_ge_u32 s{sSEG}, 64
    s_cbranch_scc1 f1_fin
    s_cmp_lg_u32 s{sPFD}, 0
    s_cbranch_scc1 f1_loop
    s_cmp_gt_u32 s{sCNT}, {SENT0}
    s_cbranch_scc1 f1_late
    v_mov_b32 v3, s{sCNT}
    s_waitcnt vmcnt(0)
    s_mov_b64 exec, 1
    buffer_store_dword v3, off, {WS}, s{sFO} sc1
    s_mov_b64 exec, -1
    s_cmp_ge_u32 s{sSEG}, {SENT0}
    s_cbranch_scc1 f1_late
    """)
    wait_all(a, 32, vF, sFL, 56, 20)
    dma_h(a, sHOFF, sHBUF)
    a("s_branch f1_loop")
    a.label("f1_late")
    a(f"""
    s_lshl_b32 s45, s{sSEG}, 7
    s_add_u32 s45, s45, 0x{flag(FL_CC):x}
    s_mov_b32 s59, 20
    s_mov_b32 s60, 0
    """)
    wait_flag(a, 45, 59, 60, 22, sleep=3)
    a.label("f1_late2")
    dma_h(a, sHOFF, sHBUF)
    a(f"""
    s_sub_u32 s43, s43, 10240
    v_add_u32 v21, s43, v{vL16}
    s_waitcnt vmcnt(0)
    """)
    for k in range(10):
        a(f"ds_read_b128 {vr(72+4*k,4)}, v21 offset:{k*1024}")
    a("s_waitcnt lgkmcnt(0)")
    vmax_chain(a, 22, range(72, 112))
    poll_fail(a, "f1_late2", sleep=3)
    a("s_branch f1_loop")
    a.label("f1_fin")
    a(f"""
    v_mov_b32 v3, s{sCNT}
    s_waitcnt vmcnt(0)
    s_mov_b64 exec, 1
    buffer_store_dword v3, off, {WS}, s{sFO} sc1
    s_endpgm
    """)

    a.label("role_f2")
    if "2" in KILL:
        a("s_endpgm")
    srd(a, 16, 68, D * F * 2)
    srd(a, 20, 70, S * D * 2)
    sKS0 = 37
    a(f"""
    s_sub_u32 s40, s{sID}, 239
    s_mul_i32 s{sG}, s40, 6554
    s_lshr_b32 s{sG}, s{sG}, 16
    s_mul_i32 s41, s{sG}, 10
    s_sub_u32 s{sJ}, s40, s41
    s_mul_i32 s{sKS0}, s{sW}, 13
    s_min_u32 s40, s{sW}, 1
    s_add_u32 s{sKS0}, s{sKS0}, s40
    v_lshrrev_b32 v10, 3, v{vLANE}
    v_and_b32 v11, 7, v{vLANE}
    v_bfe_u32 v12, v10, 1, 2
    v_lshlrev_b32 v12, 1, v12
    v_xor_b32 v11, v11, v12
    v_lshlrev_b32 v11, 4, v11
    v_mul_u32_u24 v10, {D*2}, v10
    v_add_u32 v11, v10, v11
    s_mul_i32 s42, s{sKS0}, {32*D*2}
    s_lshl_b32 s40, s{sJ}, 7
    s_add_u32 s42, s42, s40                 ; soffset
    s_mul_i32 s43, s{sW}, 28672
    v_lshrrev_b32 v12, 4, v{vLANE}          ; g
    v_bfe_u32 v13, v{vLANE}, 2, 2           ; r
    v_and_b32 v14, 3, v{vLANE}              ; c
    v_lshl_add_u32 v15, v12, 2, v13
    v_lshlrev_b32 v15, 7, v15
    v_lshl_add_u32 v15, v14, 3, v15
    v_lshrrev_b32 v13, 1, v13
    v_and_b32 v12, 1, v12
    v_lshl_or_b32 v13, v12, 1, v13
    v_lshl_or_b32 v15, v13, 5, v15
    """)
    for t in range(4):
        a(f"v_xor_b32 v{16+t}, {t<<5}, v15")
        a(f"v_add_u32 v{16+t}, s43, v{16+t}")
    for ph in range(2):
        a("s_mov_b32 s44, s43")
        for q in range(28):
            a(f"""
            s_mov_b32 m0, s44
            s_add_u32 s44, s44, 1024
            buffer_load_dwordx4 v11, s[16:19], s42 offen lds
            s_add_u32 s42, s42, {8*D*2}
            """)
        a("s_waitcnt vmcnt(0)")
        for ksl in range(7):
            for t in range(4):
                for j in range(2):
                    a(f"ds_read_b64_tr_b16 {ar(((ph*7+ksl)*4+t)*4+2*j,2)}, v{16+t} offset:{ksl*4096+j*2048}")
            a("s_waitcnt lgkmcnt(0)")
    a(f"""
    s_cmp_lt_u32 s{sW}, 2
    s_cbranch_scc1 f2_nz
    """)
    for r in range(16):
        a(f"v_accvgpr_write_b32 a{r}, 0")
    a.label("f2_nz")
    AF2, AC2, FT = 16, 128, 160
    vWr, vRd, vO, vG = 12, 13, 14, 15
    sACT, sXO = 38, 39
    a(f"""
    s_barrier
    s_mov_b32 s{sSEG}, s{sG}
    s_mov_b32 s{sCNT}, 1
    s_lshr_b32 s{sFL}, s{sG}, 1
    s_lshl_b32 s{sFL}, s{sFL}, 12
    s_add_u32 s{sFL}, s{sFL}, 0x{flag(FL_F1):x}
    s_mul_i32 s{sACT}, s{sG}, {54*1024}
    s_lshl_b32 s40, s{sKS0}, 10
    s_add_u32 s{sACT}, s{sACT}, s40
    s_add_u32 s{sACT}, s{sACT}, 0x{WS_ACT:x}
    s_lshl_b32 s40, s{sW}, 10
    v_add_u32 v{vWr}, s40, v{vL16}
    s_lshl_b32 s40, s{sW}, 12
    v_add_u32 v{vRd}, s40, v{vL16}
    ; output: token = l%16, col = 64j + 16w + 4g
    v_and_b32 v10, 15, v{vLANE}
    v_mul_u32_u24 v10, 1280, v10
    v_lshrrev_b32 v11, 4, v{vLANE}
    v_lshl_add_u32 v{vO}, v11, 3, v10
    v_lshlrev_b32 v11, 4, v11
    s_lshl_b32 s40, s{sJ}, 2
    s_add_u32 s40, s40, s{sW}
    s_lshl_b32 s{sXO}, s40, 5
    s_mul_i32 s41, s{sG}, {16*1280}
    s_add_u32 s{sXO}, s{sXO}, s41
    s_lshl_b32 s40, s40, 6
    s_add_u32 s40, s40, {WS_MOD + 5*2560}
    buffer_load_dwordx4 v[200:203], v11, {WS}, s40 offen sc1
    v_add_u32 v8, 12288, v{vL16}
    """)
    AFB = [16, 72]
    XB = [208, 210]
    sPF2 = 46

    def f2_loads(buf):
        for ks in range(14):
            off = ks * 1024
            av = [vL16, vL16b, vL16c, 8][off // 4096]
            a(f"buffer_load_dwordx4 {vr(AFB[buf]+ks*4,4)}, v{av}, {WS}, s{sACT} offen offset:{off%4096} sc1")
        a(f"buffer_load_dwordx2 {vr(XB[buf],2)}, v{vO}, {WS}, s47 offen sc1")

    def f2_nextflags():
        l1, l2 = a.newlabel("nf"), a.newlabel("nf")
        a(f"""
        s_and_b32 s40, s{sCNT}, 1
        s_cmp_ge_u32 s{sCNT}, {F1S}
        s_cselect_b32 s40, s40, 0
        s_mul_i32 s40, s40, {(FL_F1B-FL_F1)*128}
        s_add_u32 s{sFL}, s40, 0x{flag(FL_F1):x}
        s_mov_b32 exec_lo, 0x7ffffff
        s_mov_b32 exec_hi, 0
        s_cmp_ge_u32 s{sCNT}, {SENT0}
        s_cbranch_scc1 {l1}
        buffer_load_dwordx4 v[216:219], v{vF}, {WS}, s{sFL} offen sc1
        s_branch {l2}
        {l1}:
        s_mov_b32 s45, 0x{flag(FL_L):x}
        v_mov_b32 v217, 64
        v_mov_b32 v218, 64
        v_mov_b32 v219, 64
        buffer_load_dword v216, v{vF}, {WS}, s45 offen sc1
        {l2}:
        s_mov_b64 exec, -1
        """)
    a(f"""
    s_mov_b32 s{sPF2}, 0
    s_add_u32 s47, s{sXO}, 0x{WS_X1:x}
    """)
    a.label("f2_loop")
    for buf in range(2):
        AF2 = AFB[buf]
        stamp(a, 0)
        a(f"""
        s_cmp_eq_u32 s{sPF2}, 1
        s_cbranch_scc1 f2_mm{buf}
        s_cmp_ge_u32 s{sSEG}, {2*SENT0}
        s_cbranch_scc1 f2_gate{buf}
        """)
        wait_all(a, 27, vF, sFL, sCNT, 204, ndw=4, sleep=F2_POLL)
        a(f"s_branch f2_ld{buf}")
        a.label(f"f2_gate{buf}")
        a(f"""
        s_mov_b32 s45, 0x{flag(FL_L):x}
        s_mov_b32 s60, 0
        """)
        wait_flag(a, 45, sCNT, 60, 204, sleep=3)
        a(f"s_sleep {F2_GATE}")
        a.label(f"f2_ld{buf}")
        f2_loads(buf)
        a.label(f"f2_mm{buf}")
        stamp(a, 1)
        f2_nextflags()
        a("v_mov_b32 v204, 0")
        for ks in range(14):
            a(f"s_waitcnt vmcnt({15-ks})")
            for t in range(4):
                acc = vr(AC2 + t*4, 4)
                a(f"v_mfma_f32_16x16x32_bf16 {acc}, {ar((ks*4+t)*4,4)}, {vr(AF2+ks*4,4)}, {'0' if ks == 0 else acc}")
                if t < 2:
                    a(f"v_max3_u32 v204, v204, v{AF2+ks*4+2*t}, v{AF2+ks*4+2*t+1}")
        a(f"""
        s_waitcnt vmcnt(1)
        v_max3_u32 v204, v204, v{XB[buf]}, v{XB[buf]+1}
        v_cmp_eq_u32 vcc, -1, v204
        """)
        poll_fail(a, f"f2_ld{buf}", sleep=3)
        stamp(a, 2)
        a.nop(4)
        for t in range(4):
            a(f"ds_write_b128 v{vWr}, {vr(AC2+t*4,4)} offset:{t*4096}")
        a(f"""
        s_add_u32 s{sACT}, s{sACT}, {2*54*1024}
        s_add_u32 s47, s47, {2*16*1280}
        s_add_u32 s{sCNT}, s{sCNT}, 1
        s_add_u32 s{sSEG}, s{sSEG}, 2
        s_waitcnt vmcnt(0)
        v_min3_u32 v216, v216, v217, v218
        v_min_u32 v216, v216, v219
        s_mov_b32 exec_lo, 0x7ffffff
        s_mov_b32 exec_hi, 0
        v_cmp_gt_u32 vcc, s{sCNT}, v216
        s_mov_b64 exec, -1
        s_mov_b32 s{sPF2}, 0
        s_waitcnt lgkmcnt(0)
        s_barrier
        """)
        for q in range(4):
            a(f"ds_read_b128 {vr(FT+q*4,4)}, v{vRd} offset:{q*1024}")
        a(f"""
        s_cbranch_vccnz f2_np{buf}
        s_mov_b32 s{sPF2}, 1
        """)
        f2_loads(1 - buf)
        a(f"""
        f2_np{buf}:
        s_waitcnt lgkmcnt(0)
        s_barrier
        """)
        b = FT
        for r in range(4):
            a(f"v_add_f32 v{b+r}, v{b+r}, v{b+4+r}")
            a(f"v_add_f32 v{b+8+r}, v{b+8+r}, v{b+12+r}")
        for r in range(4):
            a(f"v_add_f32 v{b+r}, v{b+r}, v{b+8+r}")
        x = XB[buf]
        for hf in range(2):
            d0, d1 = b+2*hf, b+2*hf+1
            rnd2(a, d0, d1, 212)
            a(f"v_mul_f32 v{d0}, v{d0}, v{200+2*hf}")
            a(f"v_mul_f32 v{d1}, v{d1}, v{201+2*hf}")
            rnd2(a, d0, d1, 212)
            a(f"""
            v_lshlrev_b32 v212, 16, v{x+hf}
            v_and_b32 v213, 0xffff0000, v{x+hf}
            v_add_f32 v{d0}, v{d0}, v212
            v_add_f32 v{d1}, v{d1}, v213
            v_cvt_pk_bf16_f32 v{b+4+hf}, v{d0}, v{d1}
            """)
        a(f"buffer_store_dwordx2 {vr(b+4,2)}, v{vO}, s[20:23], s{sXO} offen")
        stamp(a, 3)
        stamp_flush(a, 4, 1)
        a(f"""
        s_add_u32 s{sSTEP}, s{sSTEP}, 1
        s_add_u32 s{sXO}, s{sXO}, {2*16*1280}
        s_cmp_ge_u32 s{sSEG}, 128
        s_cbranch_scc1 f2_end
        """)
    a("s_branch f2_loop")
    a.label("f2_end")
    dstamp(a, 14, 3, f"s_cmp_lg_u32 s{sID}, 239\ns_cbranch_scc1 {{lab}}")
    a("s_endpgm")
```

```python
from gen_common import *
import os

P_SLEEP0 = int(os.environ.get("P_SLEEP0", "35"))
P_SLEEP1 = int(os.environ.get("P_SLEEP1", "46"))
U_SLEEPM = int(os.environ.get("U_SLEEPM", "14"))
U_SLEEPP = int(os.environ.get("U_SLEEPP", "12"))
STAMP = int(os.environ.get("STAMP", "0"))
L1FIRST = 0
FORCEPOL = os.environ.get("FORCEPOL", "")
U_SLEEPD = int(os.environ.get("U_SLEEPD", "18"))
DOOR = int(os.environ.get("DOOR", "1"))
C_GAP = int(os.environ.get("C_GAP", "56"))
C_UXTAIL = int(os.environ.get("C_UXTAIL", "16"))
V_SLEEP = int(os.environ.get("V_SLEEP", "4"))
VM_FILL = int(os.environ.get("VM_FILL", "3"))
PKADD = int(os.environ.get("PKADD", "1"))
PDELAY = int(os.environ.get("PDELAY", "0"))
TDEPTH = int(os.environ.get("TDEPTH", "2"))
PDEPTH = int(os.environ.get("PDEPTH", "2"))
CT0 = 20 * int(os.environ.get("CSEG0", "46"))
XMAP = int(os.environ.get("XMAP", "76540321"), 16)
WARM = int(os.environ.get("WARM", "0"))
DST = int(os.environ.get("DST", "0"))
NOMIMIC = int(os.environ.get("NOMIMIC", "1"))
ALAT = int(os.environ.get("ALAT", "44"))
VMFIRST = int(os.environ.get("VMFIRST", "0"))
V_HOLD = int(os.environ.get("V_HOLD", "14"))
V_LAZY = int(os.environ.get("V_LAZY", "0"))
U_HOLD = int(os.environ.get("U_HOLD", "0"))
P_HOLD = int(os.environ.get("P_HOLD", "0"))
VDEPTH = int(os.environ.get("VDEPTH", "2"))
HELP = int(os.environ.get("HELP", "1"))
KILL = os.environ.get("KILL", "")
SWAPB = int(os.environ.get("SWAPB", "0"))
NOTOK = int(os.environ.get("NOTOK", "0"))

WS, DBG, WQ, WK, XS = "s[8:11]", "s[12:15]", "s[16:19]", "s[20:23]", "s[24:27]"
sW, sID, sSTEP, sBUD = 3, 28, 29, 30
vLANE, vIDX = 2, 4
vL16, vL16b, vL16c = 5, 6, 7
vM8 = 187
sSA, sSB = 98, 99
MEMF = 16
ACC = 56
LDS_T = 0x14000
LDS_R = 0x15000
LDS_ROLE = 0x1F000


def wreg(t, ks, n=4):
    idx = (t * 20 + ks) * 4
    if idx < 256:
        return ar(idx, n)
    return vr(192 + idx - 256, n)


def widx(idx, n=4):
    return ar(idx, n) if idx < 256 else vr(192 + idx - 256, n)


def l16(off):
    return f"v{vL16 + off // 4096}", off % 4096


def poll_fail(a, retry_label, sleep=2):
    ok = a.newlabel("pok")
    a(f"""
    s_cbranch_vccz {ok}
    s_sub_u32 s{sBUD}, s{sBUD}, 1
    s_cmp_lt_i32 s{sBUD}, 0
    s_cbranch_scc1 {ok}
    s_sleep {sleep}
    s_branch {retry_label}
    """)
    a.label(ok)


def wait_flag(a, s_flagoff, s_need, s_seen, vt, sleep=8):
    top = a.newlabel("wf")
    done = a.newlabel("wfd")
    a.label(top)
    a(f"""
    s_cmp_ge_u32 s{s_seen}, s{s_need}
    s_cbranch_scc1 {done}
    buffer_load_dword v{vt}, off, {WS}, s{s_flagoff} sc1
    s_waitcnt vmcnt(0)
    v_readfirstlane_b32 s{s_seen}, v{vt}
    s_nop 3
    s_cmp_ge_u32 s{s_seen}, s{s_need}
    s_cbranch_scc1 {done}
    s_sub_u32 s{sBUD}, s{sBUD}, 1
    s_cmp_lt_i32 s{sBUD}, 0
    s_cbranch_scc1 {done}
    s_sleep {sleep}
    s_branch {top}
    """)
    a.label(done)


def vmax_chain(a, vt, regs):
    regs = list(regs)
    a(f"v_max3_u32 v{vt}, v{regs[0]}, v{regs[1]}, v{regs[2]}")
    k = 3
    while k < len(regs):
        if k + 1 < len(regs):
            a(f"v_max3_u32 v{vt}, v{vt}, v{regs[k]}, v{regs[k+1]}")
            k += 2
        else:
            a(f"v_max_u32 v{vt}, v{vt}, v{regs[k]}")
            k += 1
    a(f"v_cmp_eq_u32 vcc, -1, v{vt}")


def get_pol(a, vt):
    from gen_boot import dbg_wait_wg, DBG_INIT, DBG_POL
    dbg_wait_wg(a, [(DBG_INIT, 1), (DBG_POL, 1), (DBG_POL+4, 1)], vt)
    a(f"""
    buffer_load_dwordx2 v[184:185], off, {DBG}, 0 offset:{DBG_POL} sc1
    s_waitcnt vmcnt(0)
    v_readfirstlane_b32 s{sSA}, v184
    v_readfirstlane_b32 s{sSB}, v185
    s_nop 3
    s_and_b32 s{sSA}, s{sSA}, 2
    s_lshl_b32 s{sSA}, s{sSA}, 12
    s_and_b32 s{sSB}, s{sSB}, 2
    s_lshl_b32 s{sSB}, s{sSB}, 12
    v_add_u32 v{vM8}, 16384, v{vL16}
    """)


def mem_loads(a, s_memoff, flag="sc1", start=0):
    for kb in range(start, 10):
        r, o = l16(kb * 1024)
        if kb >= 8:
            r = f"v{vM8}"
        a(f"buffer_load_dwordx4 {vr(MEMF+4*kb,4)}, {r}, {WS}, s{s_memoff} offen offset:{o} {flag}")


DEFERRED = []
MODE2 = [False]


def flush_deferred(a):
    for f in DEFERRED:
        f()
    DEFERRED.clear()


def mem_proj(a, tiles, s_memoff, vmax, sleep=1, after_first=None):
    base = a.newlabel("mp")
    mem_loads(a, s_memoff, "" if L1FIRST else "sc1")
    for t in tiles:
        for r in range(4):
            a(f"v_mov_b32 v{ACC+4*t+r}, 0")

    def chk(kb):
        f = MEMF + 4 * kb
        return [f"s_waitcnt vmcnt({9-kb})",
                f"v_max3_u32 v{vmax}, v{f}, v{f+1}, v{f+2}",
                f"v_max_u32 v{vmax}, v{vmax}, v{f+3}\nv_cmp_eq_u32 vcc, -1, v{vmax}"]
    for x in chk(0):
        a(x)
    a(f"s_cbranch_vccnz {base}_r0")
    for kb in range(10):
        f = MEMF + 4 * kb
        a.label(f"{base}_c{kb}")
        if STAMP == 2 and kb in (0, 4, 9):
            a(f"s_memrealtime s[{ {0:86,4:88,9:90}[kb] }:{ {0:87,4:89,9:91}[kb] }]")
        if kb == 9 and after_first:
            after_first()
        nxt = chk(kb + 1) if kb < 9 else []
        for n, t in enumerate(tiles):
            a(f"v_smfmac_f32_16x16x64_bf16 {vr(ACC+4*t,4)}, {vr(f,4)}, {wreg(t,2*kb,8)}, v{vIDX}")
            if n < len(nxt):
                a(nxt[n])
        for x in nxt[len(tiles):]:
            a(x)
        if kb < 9:
            a(f"s_cbranch_vccnz {base}_r{kb+1}")

    def ool():
        for kb in range(10):
            a.label(f"{base}_r{kb}")
            a(f"""
            s_sub_u32 s{sBUD}, s{sBUD}, 1
            s_cmp_lt_i32 s{sBUD}, 0
            s_cbranch_scc1 {base}_c{kb}
            s_sleep {sleep}
            """)
            mem_loads(a, s_memoff, "sc1", kb)
            for x in chk(kb):
                a(x)
            a(f"s_cbranch_vccnz {base}_r{kb}")
            a(f"s_branch {base}_c{kb}")
    DEFERRED.append(ool)


LDS_M = 0x18000


def mem_setup(a):
    a(f"""
    s_lshl_b32 s40, s{sW}, 10
    v_add_u32 v176, s40, v{vL16}
    v_add_u32 v177, 4096, v176
    v_add_u32 v178, 16384, v176
    v_add_u32 v179, 0x{LDS_M:x}, v176
    v_add_u32 v175, 0x{LDS_M:x}, v{vL16}
    s_cmp_lt_u32 s{sW}, 2
    s_cbranch_scc1 {a.newlabel("ms")}_ok
    v_mov_b32 v178, 0x7ffffff0
    """)
    a.label(f"ms_{a.uid}_ok")


def mem_proj2(a, order, s_memoff, vmax, after_valid=None, fill=None):
    top = a.newlabel("mq")
    G = 160
    a.label(top)
    for k in range(3):
        a(f"buffer_load_dwordx4 {vr(G+4*k,4)}, v{176+k}, {WS}, s{s_memoff} offen sc1")
    for grp in order:
        for t in grp:
            for r in range(4):
                a(f"v_mov_b32 v{ACC+4*t+r}, 0")
    a("s_waitcnt vmcnt(2)")
    a(f"ds_write_b128 v179, {vr(G,4)}")
    a(f"v_max3_u32 v{vmax}, v{G}, v{G+1}, v{G+2}")
    a("s_waitcnt vmcnt(1)")
    a(f"ds_write_b128 v179, {vr(G+4,4)} offset:4096")
    a(f"v_max3_u32 v{vmax}, v{vmax}, v{G+3}, v{G+4}")
    a(f"v_max3_u32 v{vmax}, v{vmax}, v{G+5}, v{G+6}")
    a("s_waitcnt vmcnt(0)")
    a(f"ds_write_b128 v179, {vr(G+8,4)} offset:8192")
    a(f"v_max3_u32 v{vmax}, v{vmax}, v{G+7}, v{G+8}")
    a(f"v_max3_u32 v{vmax}, v{vmax}, v{G+9}, v{G+10}")
    a(f"v_max_u32 v{vmax}, v{vmax}, v{G+11}")
    a(f"v_cmp_eq_u32 vcc, -1, v{vmax}")
    poll_fail(a, top, sleep=1)
    if after_valid:
        after_valid()
    if STAMP == 2:
        a("s_memrealtime s[86:87]")
    join = a.newlabel("mj")
    labs = [a.newlabel("mw") for _ in range(4)]
    a(f"""
    s_cmp_ge_u32 s{sW}, 2
    s_cbranch_scc1 {labs[2]}
    s_cmp_eq_u32 s{sW}, 1
    s_cbranch_scc1 {labs[1]}
    """)

    def sm(t, kb, src):
        a(f"v_smfmac_f32_16x16x64_bf16 {vr(ACC+4*t,4)}, {vr(src,4)}, {wreg(t,2*kb,8)}, v{vIDX}")
    for w in range(4):
        a.label(labs[w])
        if w == 2:
            a(f"""
            s_cmp_eq_u32 s{sW}, 3
            s_cbranch_scc1 {labs[3]}
            """)
        own = [w, w + 4] + ([8 + w] if w < 2 else [])
        oth = [kb for kb in range(10) if kb not in own]
        a("s_waitcnt lgkmcnt(0)")
        a("s_barrier")
        if STAMP == 2:
            a("s_memrealtime s[88:89]")
        for kb in oth:
            a(f"ds_read_b128 {vr(MEMF+4*kb,4)}, v175 offset:{kb*1024}")
        for grp in order:
            for k, kb in enumerate(own):
                for t in grp:
                    sm(t, kb, G + 4*k)
        for gi, grp in enumerate(order):
            F = list(fill.get(gi, [])) if fill else []
            n = 0
            tot = len(oth) * len(grp)
            for k, kb in enumerate(oth):
                if gi == 0:
                    a(f"s_waitcnt lgkmcnt({len(oth)-1-k})")
                for t in grp:
                    sm(t, kb, MEMF + 4*kb)
                    n += 1
                    if F and n == 2:
                        a.nop(6)
                    if n >= 2 and F:
                        a(F.pop(0))
            for x in F:
                a(x)
        if w < 3:
            a(f"s_branch {join}")
    a.label(join)
    if STAMP == 2:
        a("s_memrealtime s[90:91]")


def combine_list(t0, t1, d01, d23):
    A, B = ACC + 4 * t0, ACC + 4 * t1
    L = [f"v_permlane32_swap_b32 v{A+r}, v{B+r}" for r in range(4)]
    L += [f"v_pk_add_f32 v[{A+r}:{A+r+1}], v[{A+r}:{A+r+1}], v[{B+r}:{B+r+1}]" for r in (0, 2)]
    L += [f"v_cvt_pk_bf16_f32 v{d01}, v{A}, v{A+1}", f"v_cvt_pk_bf16_f32 v{d23}, v{A+2}, v{A+3}"]
    return L


def combine_pair(a, t0, t1, d01, d23):
    A, B = ACC + 4 * t0, ACC + 4 * t1
    for r in range(4):
        a(f"v_permlane32_swap_b32 v{A+r}, v{B+r}")
    if PKADD:
        for r in (0, 2):
            a(f"v_pk_add_f32 v[{A+r}:{A+r+1}], v[{A+r}:{A+r+1}], v[{B+r}:{B+r+1}]")
    else:
        for r in range(4):
            a(f"v_add_f32 v{A+r}, v{A+r}, v{B+r}")
    a(f"v_cvt_pk_bf16_f32 v{d01}, v{A}, v{A+1}")
    a(f"v_cvt_pk_bf16_f32 v{d23}, v{A+2}, v{A+3}")


def load_wqk(a, mats=(WQ, WK), depth=3, slot=32768, nbuf=4, pre=None, mid=None):
    a.comment("---- load Wq/Wk fragments")
    a(f"""
    v_lshrrev_b32 v10, 4, v{vLANE}          ; r = lane/16
    v_and_b32 v11, 15, v{vLANE}             ; chunk'
    v_and_b32 v12, 1, v10
    s_lshl_b32 s40, s{sW}, 1
    v_or_b32 v12, s40, v12                  ; f = (r&1)|(w<<1)
    v_lshlrev_b32 v12, 1, v12
    v_xor_b32 v11, v11, v12
    v_lshlrev_b32 v11, 4, v11
    s_lshl_b32 s40, s{sW}, 2
    v_add_u32 v12, s40, v10                 ; 4w+r
    v_lshl_add_u32 v11, v12, 13, v11
    s_lshl_b32 s41, s{sID}, 8
    s_lshl_b32 s42, s{sW}, 10
    v_bfe_u32 v12, v{vLANE}, 2, 2           ; r
    v_and_b32 v13, 3, v{vLANE}              ; c
    v_lshrrev_b32 v14, 1, v10               ; g>>1
    v_lshlrev_b32 v14, 4, v14               ; 16*(g>>1)
    v_and_b32 v15, 1, v10                   ; g&1
    v_lshl_add_u32 v14, v15, 2, v14         ; +4*(g&1)
    v_and_b32 v16, 1, v12
    v_add_u32 v14, v14, v16                 ; +(r&1)
    v_lshrrev_b32 v17, 1, v12               ; r>>1
    v_lshl_add_u32 v14, v17, 3, v14         ; +8*(r>>1)
    v_lshlrev_b32 v14, 8, v14
    v_lshl_add_u32 v14, v13, 3, v14         ; + c*8
    v_lshl_or_b32 v16, v15, 1, v16
    v_lshl_or_b32 v16, v17, 2, v16          ; f
    v_lshl_or_b32 v14, v16, 5, v14
    s_lshl_b32 s40, s{sW}, 6                ; (2w)<<5
    v_xor_b32 v18, s40, v14                 ; tile 2w
    v_xor_b32 v19, 32, v18                  ; tile 2w+1
    v_add_u32 v20, 0x10000, v18
    v_add_u32 v21, 0x10000, v19
    """)

    nm = len(mats)

    def dma(cn):
        buf = cn % nbuf
        for mat, sd in enumerate(mats):
            for q in range(4):
                a(f"""
                s_add_u32 s43, s42, {buf*slot + mat*16384 + q*4096}
                s_mov_b32 m0, s43
                s_add_u32 s44, s41, {(cn*64+16*q)*8192}
                buffer_load_dwordx4 v11, {sd}, s44 offen lds
                """)
    for cn in range(depth):
        dma(cn)
    if pre:
        pre()
    for cn in range(10):
        later = min(depth - 1, 9 - cn)
        extra = 20 if (pre and cn < depth) else 0
        a(f"s_waitcnt vmcnt({4*nm*later + extra})")
        a("s_barrier")
        if cn + depth < 10:
            dma(cn + depth)
        buf = cn % nbuf
        off = buf * slot
        for mat in range(nm):
            for tt in range(2):
                for ksl in range(2):
                    for j in range(2):
                        idx = ((mat*2+tt) * 20 + cn*2 + ksl) * 4 + 2*j
                        av = 18 + tt + (2 if off >= 65536 else 0)
                        a(f"ds_read_b64_tr_b16 {widx(idx,2)}, v{av} offset:{off % 65536 + mat*16384 + ksl*8192 + j*512}")
            a("s_waitcnt lgkmcnt(0)")
        if mid and cn == depth:
            mid()
    a("s_barrier")


def load_wv_wo(a):
    a.comment("---- Wo addressing")
    for q in range(5):
        a(f"""
        v_add_u32 v10, {64*q}, v{vLANE}
        v_mul_u32_u24 v11, 3277, v10
        v_lshrrev_b32 v11, 16, v11
        v_mul_u32_u24 v12, 20, v11
        v_sub_u32 v10, v10, v12
        v_mul_u32_u24 v11, 1280, v11
        v_lshl_add_u32 v{24+q}, v10, 4, v11
        """)
    a(f"""
    s_mul_i32 s46, s{sID}, 163840
    s_mul_i32 s40, s{sW}, 320
    s_add_u32 s46, s46, s40
    s_mul_i32 s47, s{sW}, 20480
    s_add_u32 s47, s47, {16384*(VDEPTH+1)}
    v_lshrrev_b32 v10, 4, v{vLANE}
    v_bfe_u32 v11, v{vLANE}, 2, 2
    v_lshl_add_u32 v10, v10, 2, v11
    v_mul_u32_u24 v10, 320, v10
    v_and_b32 v11, 3, v{vLANE}
    v_lshl_add_u32 v10, v11, 3, v10
    v_add_u32 v29, s47, v10
    """)

    def wo_dma():
        a("s_mov_b32 s45, s47")
        for blk_ in range(4):
            for q in range(5):
                a(f"""
                s_mov_b32 m0, s45
                s_add_u32 s45, s45, 1024
                buffer_load_dwordx4 v{24+q}, {WK}, s46 offen lds
                """)
            a(f"s_add_u32 s46, s46, {16*1280}")

    def wo_rd(half):
        for jt in range(10):
            for kl in range(2):
                for j in range(2):
                    idx = 160 + (jt*4 + half*2 + kl) * 4 + 2*j
                    a(f"ds_read_b64_tr_b16 {widx(idx,2)}, v29 offset:{(32*kl+16*j)*320 + jt*32}")
            if jt % 2 == 1:
                a("s_waitcnt lgkmcnt(0)")

    def mid():
        wo_rd(0)
        wo_dma()
    load_wqk(a, (WQ,), depth=VDEPTH, slot=16384, nbuf=VDEPTH+1, pre=wo_dma, mid=mid)
    wo_rd(1)
    a("s_barrier")


def load_wo(a, sd):
    a.comment("---- load Wo fragments")
    for q in range(5):
        a(f"""
        v_add_u32 v10, {64*q}, v{vLANE}
        v_mul_u32_u24 v11, 3277, v10
        v_lshrrev_b32 v11, 16, v11            ; row = q/20
        v_mul_u32_u24 v12, 20, v11
        v_sub_u32 v10, v10, v12               ; chunk
        v_mul_u32_u24 v11, 1280, v11
        v_lshl_add_u32 v{16+q}, v10, 4, v11
        """)
    a(f"""
    s_mul_i32 s41, s{sID}, 163840
    s_mul_i32 s40, s{sW}, 320
    s_add_u32 s41, s41, s40                 ; soffset
    s_mul_i32 s42, s{sW}, 20480
    v_lshrrev_b32 v10, 4, v{vLANE}          ; g
    v_bfe_u32 v11, v{vLANE}, 2, 2           ; r
    v_lshl_add_u32 v10, v10, 2, v11
    v_mul_u32_u24 v10, 320, v10
    v_and_b32 v11, 3, v{vLANE}
    v_lshl_add_u32 v10, v11, 3, v10
    v_add_u32 v21, s42, v10
    """)
    for half in range(2):
        a("s_mov_b32 s43, s42")
        for blk in range(4):
            for q in range(5):
                a(f"""
                s_mov_b32 m0, s43
                s_add_u32 s43, s43, 1024
                buffer_load_dwordx4 v{16+q}, {sd}, s41 offen lds
                """)
            a(f"s_add_u32 s41, s41, {16*1280}")
        a("s_waitcnt vmcnt(0)")
        for jt in range(10):
            for kl in range(2):
                for j in range(2):
                    idx = 160 + (jt*4 + half*2 + kl) * 4 + 2*j
                    a(f"ds_read_b64_tr_b16 {widx(idx,2)}, v21 offset:{(32*kl+16*j)*320 + jt*32}")
            if jt % 2 == 1:
                a("s_waitcnt lgkmcnt(0)")
    a("s_barrier")


def load_wvo(a):
    a.comment("---- load Wvo fragments (linear)")
    a(f"""
    s_lshl_b32 s40, s{sID}, 2
    s_add_u32 s40, s40, s{sW}
    s_mul_i32 s40, s40, 81920
    s_add_u32 s40, s40, 0x{WS_WVO:x}
    """)
    for f in range(80):
        a(f"buffer_load_dwordx4 {wreg(f//20, f%20)}, v{vL16}, {WS}, s40 offen offset:{(f%4)*1024}")
        if f % 4 == 3:
            a("s_add_u32 s40, s40, 4096")
        if f % 40 == 39:
            a("s_waitcnt vmcnt(20)" if f < 79 else "s_waitcnt vmcnt(0)")


vHG = 15


def dma_h_setup(a):
    a(f"""
    v_lshrrev_b32 v10, 3, v{vLANE}
    v_and_b32 v{vHG}, 7, v{vLANE}
    v_xor_b32 v{vHG}, v{vHG}, v10
    v_lshlrev_b32 v{vHG}, 4, v{vHG}
    v_mul_u32_u24 v10, 1280, v10
    v_add_u32 v{vHG}, v{vHG}, v10
    """)


def dma_h_init(a, s_hoff, s_buf):
    a(f"""
    s_mul_i32 s43, s{sW}, 10240
    s_add_u32 s44, s43, s{s_hoff}
    s_add_u32 s43, s43, s{s_buf}
    """)


def dma_h_one(a):
    a(f"""
    s_mov_b32 m0, s43
    s_add_u32 s43, s43, 1024
    buffer_load_dwordx4 v{vHG}, {WS}, s44 offen sc1 lds
    s_add_u32 s44, s44, 128
    """)


def dmal_init(a, s_hoff, s_buf):
    a(f"""
    s_mul_i32 s43, s{sW}, 10240
    s_add_u32 s44, s43, s{s_hoff}
    s_add_u32 s43, s43, s{s_buf}
    """)


def dmal_one(a):
    a(f"""
    s_mov_b32 m0, s43
    s_add_u32 s43, s43, 1024
    buffer_load_dwordx4 v{vL16}, {WS}, s44 offen sc1 lds
    s_add_u32 s44, s44, 1024
    """)


def dma_h(a, s_hoff, s_buf):
    dma_h_init(a, s_hoff, s_buf)
    for k in range(10):
        dma_h_one(a)


HF = 104
TACC = 72


def dense_proj(a, vH, transposed, hook=None, tiles=(0, 1, 2, 3)):
    def rd(ks):
        st = HF + (ks % 3) * 8
        for mt in range(2):
            a(f"ds_read_b128 {vr(st+4*mt,4)}, v{vH} offset:{mt*20480+ks*1024}")
    rd(0)
    rd(1)
    for ks in range(20):
        if ks + 2 < 20:
            rd(ks + 2)
            a("s_waitcnt lgkmcnt(4)")
        elif ks + 1 < 20:
            a("s_waitcnt lgkmcnt(2)")
        else:
            a("s_waitcnt lgkmcnt(0)")
        st = HF + (ks % 3) * 8
        for n, t in enumerate(tiles):
            for mt in range(2):
                acc = vr(TACC + (t*2+mt)*4, 4)
                c = "0" if ks == 0 else acc
                if transposed:
                    a(f"v_mfma_f32_16x16x32_bf16 {acc}, {wreg(t,ks)}, {vr(st+4*mt,4)}, {c}")
                else:
                    a(f"v_mfma_f32_16x16x32_bf16 {acc}, {vr(st+4*mt,4)}, {wreg(t,ks)}, {c}")
            if n == len(tiles) // 2 - 1 and hook:
                hook(ks)


def round_scale(a, xs, tmp, s_scale):
    def rnd():
        for k in range(0, len(xs), 2):
            x0 = xs[k]
            x1 = xs[k+1] if k + 1 < len(xs) else xs[k]
            a(f"v_cvt_pk_bf16_f32 v{tmp+k//2}, v{x0}, v{x1}")
        for k in range(0, len(xs), 2):
            a(f"v_lshlrev_b32 v{xs[k]}, 16, v{tmp+k//2}")
            if k + 1 < len(xs):
                a(f"v_and_b32 v{xs[k+1]}, 0xffff0000, v{tmp+k//2}")
    rnd()
    for x in xs:
        a(f"v_mul_f32 v{x}, s{s_scale}, v{x}")
    rnd()


def xlane(a, op, v, t, with8):
    if with8:
        a.nop(2)
        a(f"{op}_dpp v{v}, v{v}, v{v} row_ror:8 row_mask:0xf bank_mask:0xf")
    for sw in ("v_permlane16_swap_b32", "v_permlane32_swap_b32"):
        a(f"v_mov_b32 v{t}, v{v}")
        a.nop(2)
        a(f"{sw} v{v}, v{t}")
        a(f"{op} v{v}, v{v}, v{t}")


def softmax(a, xs, vm, vt, s_log2e, with8):
    a(f"v_max3_f32 v{vm}, v{xs[0]}, v{xs[1]}, v{xs[2]}")
    k = 3
    while k < len(xs):
        if k + 1 < len(xs):
            a(f"v_max3_f32 v{vm}, v{vm}, v{xs[k]}, v{xs[k+1]}")
            k += 2
        else:
            a(f"v_max_f32 v{vm}, v{vm}, v{xs[k]}")
            k += 1
    xlane(a, "v_max_f32", vm, vt, with8)
    for x in xs:
        a(f"v_sub_f32 v{x}, v{x}, v{vm}")
    for x in xs:
        a(f"v_mul_f32 v{x}, s{s_log2e}, v{x}")
    for x in xs:
        a(f"v_exp_f32 v{x}, v{x}")
    a(f"v_add_f32 v{vm}, v{xs[0]}, v{xs[1]}")
    for x in xs[2:]:
        a(f"v_add_f32 v{vm}, v{vm}, v{x}")
    xlane(a, "v_add_f32", vm, vt, with8)
    a(f"v_rcp_f32 v{vm}, v{vm}")
    a.nop(1)
    for x in xs:
        a(f"v_mul_f32 v{x}, v{x}, v{vm}")


def setup_qk_lds_addrs(a, vW, vR):
    a(f"""
    v_and_b32 v10, 15, v{vLANE}             ; n
    v_lshrrev_b32 v11, 4, v{vLANE}          ; g
    v_lshrrev_b32 v12, 1, v11
    v_lshl_add_u32 v10, v12, 4, v10         ; 16*(g>>1)+n
    s_lshl_b32 s40, s{sW}, 5
    v_add_u32 v10, s40, v10                 ; +32w
    v_lshlrev_b32 v10, 4, v10
    v_and_b32 v12, 1, v11
    v_lshl_add_u32 v10, v12, 3, v10
    v_add_u32 v{vW}, 0x{LDS_T:x}, v10
    v_bfe_u32 v12, v{vLANE}, 2, 2           ; r
    v_lshl_add_u32 v12, v11, 2, v12         ; 4g+r
    v_lshlrev_b32 v12, 4, v12
    v_and_b32 v13, 1, v{vLANE}
    v_lshl_add_u32 v12, v13, 3, v12
    v_add_u32 v{vR}, 0x{LDS_T:x}, v12
    """)


def setup_p_load_addrs(a, vA, vB, vM, wstride=8*640, hstride=10240):
    a(f"""
    v_bfe_u32 v10, v{vLANE}, 3, 1           ; rho
    v_and_b32 v11, 7, v{vLANE}              ; i
    v_lshrrev_b32 v12, 4, v{vLANE}          ; gA
    v_lshrrev_b32 v13, 1, v12               ; gA>>1
    v_and_b32 v14, 1, v12                   ; gA&1
    s_mul_i32 s40, s{sW}, {wstride}
    v_mul_u32_u24 v15, 640, v10
    v_add_u32 v15, s40, v15
    v_lshl_add_u32 v15, v13, 8, v15
    v_lshl_add_u32 v15, v11, 5, v15
    v_lshl_add_u32 v{vA}, v14, 4, v15
    v_lshl_add_u32 v15, v13, 2, v14
    v_mul_u32_u24 v15, 640, v15
    v_add_u32 v15, s40, v15
    v_lshl_add_u32 v15, v10, 6, v15
    v_lshl_add_u32 v15, v11, 3, v15
    v_add_u32 v{vB}, 512, v15
    s_mul_i32 s40, s{sW}, {8*hstride}
    v_mul_u32_u24 v15, {hstride}, v13
    v_add_u32 v15, s40, v15
    v_lshl_add_u32 v15, v14, 7, v15
    v_and_b32 v11, 15, v{vLANE}
    v_lshl_add_u32 v{vM}, v11, 3, v15
    """)


def p_loads(a, PF, vA, vB, s_off):
    for blk in range(2):
        for pi in range(2):
            a(f"buffer_load_dwordx4 {vr(PF+(blk*2+pi)*4,4)}, v{vA}, {WS}, s{s_off} offen offset:{(4*blk+pi)*640} sc1")
    for pi in range(2):
        a(f"buffer_load_dwordx2 {vr(PF+16+2*pi,2)}, v{vB}, {WS}, s{s_off} offen offset:{pi*640} sc1")


def p_combine(a, PF, BX, BM, CA, vmax):
    for blk in range(2):
        for pi in range(2):
            f = PF + (blk*2+pi)*4
            a(f"v_smfmac_f32_16x16x64_bf16 {vr(CA+4*pi,4)}, {vr(f,4)}, {vr(BX+8*blk,8)}, v{vIDX}")
            if vmax is not None:
                a(f"v_max3_u32 v{vmax}, v{vmax}, v{f}, v{f+1}")
                a(f"v_max3_u32 v{vmax}, v{vmax}, v{f+2}, v{f+3}")
    a.nop(2 if vmax is not None else 6)
    for pi in range(2):
        f = PF + 16 + 2*pi
        a(f"v_smfmac_f32_16x16x32_bf16 {vr(CA+4*pi,4)}, {vr(f,2)}, {vr(BM,4)}, v{vIDX}")
        if vmax is not None:
            a(f"v_max3_u32 v{vmax}, v{vmax}, v{f}, v{f+1}")


def setup_red_addrs(a, vWr, vRd):
    a(f"""
    v_and_b32 v10, 15, v{vLANE}             ; n
    v_lshrrev_b32 v11, 4, v{vLANE}          ; g
    v_and_b32 v12, 1, v11
    v_lshlrev_b32 v12, 10, v12              ; 4*(g&1)*256
    v_lshl_add_u32 v12, v10, 5, v12         ; + n*32
    v_lshrrev_b32 v13, 1, v11
    v_lshl_add_u32 v12, v13, 2, v12         ; + (g>>1)*4
    s_lshl_b32 s40, s{sW}, 3
    s_add_u32 s40, s40, 0x{LDS_R:x}
    v_add_u32 v12, s40, v12
    v_mov_b32 v13, 0x{LDS_R+0x2800:x}
    v_cmp_gt_u32 vcc, 8, v10
    s_nop 1
    v_cndmask_b32 v{vWr}, v13, v12, vcc
    v_lshlrev_b32 v12, 5, v{vLANE}
    v_add_u32 v{vRd}, 0x{LDS_R:x}, v12
    """)


def red_write(a, CA, vWr, off):
    for r in range(4):
        a(f"v_add_f32_dpp v{CA+r}, v{CA+4+r}, v{CA+r} row_ror:8 row_mask:0xf bank_mask:0xf")
    for r in range(4):
        a(f"ds_write_b32 v{vWr}, v{CA+r} offset:{off + r*256}")


LB = 140
L_SRC, L_DST, L_M, L_V, L_T, L_T2 = LB, LB+1, LB+2, LB+3, LB+4, LB+5
L_RAW, L_OUT, L_X, L_SC, L_SH = LB+8, LB+16, LB+24, LB+40, LB+56


def ln_wave_sum(a, v):
    for ctrl in ["quad_perm:[1,0,3,2]", "quad_perm:[2,3,0,1]", "row_half_mirror", "row_mirror"]:
        a.nop(2)
        a(f"v_add_f32_dpp v{v}, v{v}, v{v} {ctrl} row_mask:0xf bank_mask:0xf")
    a.nop(1)
    a(f"v_readlane_b32 s72, v{v}, 0")
    a(f"v_readlane_b32 s73, v{v}, 16")
    a(f"v_readlane_b32 s74, v{v}, 32")
    a.nop(2)
    a(f"v_mov_b32 v{v}, s72")
    a(f"v_add_f32 v{v}, s73, v{v}")
    a(f"v_add_f32 v{v}, s74, v{v}")


def bf16r(a, v):
    a(f"v_cvt_pk_bf16_f32 v{v}, v{v}, v{v}")
    a(f"v_and_b32 v{v}, 0xffff0000, v{v}")


def ln_setup(a, shift_idx, scale_idx, perm):
    a(f"""
    v_cmp_gt_u32 vcc, 40, v{vLANE}
    v_mov_b32 v{L_T}, 0x7ffffff0
    v_lshlrev_b32 v{L_DST}, 4, v{vLANE}
    """)
    if perm:
        a(f"""
        v_lshrrev_b32 v{L_SRC}, 1, v{vLANE}
        v_lshlrev_b32 v{L_SRC}, 5, v{L_SRC}
        v_and_b32 v{L_T2}, 1, v{vLANE}
        v_lshl_add_u32 v{L_SRC}, v{L_T2}, 3, v{L_SRC}
        """)
    else:
        a(f"v_mov_b32 v{L_SRC}, v{L_DST}")
    a(f"""
    v_lshlrev_b32 v{L_T2}, 1, v{L_SRC}
    v_cndmask_b32 v{L_SRC}, v{L_T}, v{L_SRC}, vcc
    v_cndmask_b32 v{L_T2}, v{L_T}, v{L_T2}, vcc
    v_cndmask_b32 v{L_DST}, v{L_T}, v{L_DST}, vcc
    s_mov_b64 s[76:77], vcc
    s_mov_b32 s72, {WS_MOD + scale_idx*2560}
    s_mov_b32 s73, {WS_MOD + shift_idx*2560}
    """)
    for dst, so in ((L_SC, 72), (L_SH, 73)):
        for h in range(2):
            if perm:
                a(f"buffer_load_dwordx2 {vr(dst+8*h,2)}, v{L_T2}, {WS}, s{so} offen offset:{h*1280}")
                a(f"buffer_load_dwordx2 {vr(dst+8*h+4,2)}, v{L_T2}, {WS}, s{so} offen offset:{h*1280+8}")
                a(f"buffer_load_dwordx2 {vr(dst+8*h+2,2)}, v{L_T2}, {WS}, s{so} offen offset:{h*1280+32}")
                a(f"buffer_load_dwordx2 {vr(dst+8*h+6,2)}, v{L_T2}, {WS}, s{so} offen offset:{h*1280+40}")
            else:
                a(f"buffer_load_dwordx4 {vr(dst+8*h,4)}, v{L_T2}, {WS}, s{so} offen offset:{h*1280} sc1")
                a(f"buffer_load_dwordx4 {vr(dst+8*h+4,4)}, v{L_T2}, {WS}, s{so} offen offset:{h*1280+16} sc1")
    a("s_waitcnt vmcnt(0)")
    for j in range(8):
        a(f"v_add_f32 v{L_SC+2*j}, 1.0, v{L_SC+2*j}")
        a(f"v_add_f32 v{L_SC+2*j+1}, 1.0, v{L_SC+2*j+1}")
        a(f"v_cvt_pk_bf16_f32 v{L_T}, v{L_SC+2*j}, v{L_SC+2*j+1}")
        a(f"v_lshlrev_b32 v{L_SC+2*j}, 16, v{L_T}")
        a(f"v_and_b32 v{L_SC+2*j+1}, 0xffff0000, v{L_T}")


def ln_load(a, srd_, s_off, fl, perm, raw=L_RAW, extra=0):
    if perm:
        for h in range(2):
            a(f"buffer_load_dwordx2 {vr(raw+4*h,2)}, v{L_SRC}, {srd_}, s{s_off} offen offset:{extra+h*640} {fl}")
            a(f"buffer_load_dwordx2 {vr(raw+4*h+2,2)}, v{L_SRC}, {srd_}, s{s_off} offen offset:{extra+h*640+16} {fl}")
        return 4
    for h in range(2):
        a(f"buffer_load_dwordx4 {vr(raw+4*h,4)}, v{L_SRC}, {srd_}, s{s_off} offen offset:{extra+h*640} {fl}")
    return 2


def ln_unpack(a, perm, raw=L_RAW):
    pos = [0, 2, 1, 3] if perm else [0, 1, 2, 3]
    for h in range(2):
        for j in range(4):
            d = 4*h + pos[j]
            a(f"v_lshlrev_b32 v{L_X+2*d}, 16, v{raw+4*h+j}")
            a(f"v_and_b32 v{L_X+2*d+1}, 0xffff0000, v{raw+4*h+j}")


def ln_compute_store(a, s_dst, extra=0, out=L_OUT):
    X = L_X
    a(f"v_add_f32 v{L_M}, v{X}, v{X+1}")
    a(f"v_add_f32 v{L_T}, v{X+2}, v{X+3}")
    for j in range(4, 16, 2):
        a(f"v_add_f32 v{L_M}, v{L_M}, v{X+j}")
        a(f"v_add_f32 v{L_T}, v{L_T}, v{X+j+1}")
    a(f"v_add_f32 v{L_M}, v{L_M}, v{L_T}")
    ln_wave_sum(a, L_M)
    a(f"v_mul_f32 v{L_M}, 0x3acccccd, v{L_M}")
    a(f"v_sub_f32 v{L_T}, v{X}, v{L_M}")
    a(f"v_mul_f32 v{L_V}, v{L_T}, v{L_T}")
    for j in range(1, 16):
        t = L_T if j % 2 == 0 else L_T2
        a(f"v_sub_f32 v{t}, v{X+j}, v{L_M}")
        a(f"v_fmac_f32 v{L_V}, v{t}, v{t}")
    a(f"v_cndmask_b32 v{L_V}, 0, v{L_V}, s[76:77]")
    ln_wave_sum(a, L_V)
    a(f"v_mul_f32 v{L_V}, 0x3acccccd, v{L_V}")
    bf16r(a, L_V)
    a(f"v_add_f32 v{L_V}, 0x3727c5ac, v{L_V}")
    bf16r(a, L_V)
    a(f"v_sqrt_f32 v{L_V}, v{L_V}")
    a.nop(1)
    bf16r(a, L_V)
    a(f"v_rcp_f32 v{L_V}, v{L_V}")
    bf16r(a, L_M)
    for j in range(8):
        x0, x1 = X + 2*j, X + 2*j + 1
        a(f"""
        v_sub_f32 v{x0}, v{x0}, v{L_M}
        v_sub_f32 v{x1}, v{x1}, v{L_M}
        v_cvt_pk_bf16_f32 v{L_T}, v{x0}, v{x1}
        v_lshlrev_b32 v{x0}, 16, v{L_T}
        v_and_b32 v{x1}, 0xffff0000, v{L_T}
        v_mul_f32 v{x0}, v{x0}, v{L_V}
        v_mul_f32 v{x1}, v{x1}, v{L_V}
        v_cvt_pk_bf16_f32 v{L_T}, v{x0}, v{x1}
        v_lshlrev_b32 v{x0}, 16, v{L_T}
        v_and_b32 v{x1}, 0xffff0000, v{L_T}
        v_mul_f32 v{x0}, v{x0}, v{L_SC+2*j}
        v_mul_f32 v{x1}, v{x1}, v{L_SC+2*j+1}
        v_cvt_pk_bf16_f32 v{L_T}, v{x0}, v{x1}
        v_lshlrev_b32 v{x0}, 16, v{L_T}
        v_and_b32 v{x1}, 0xffff0000, v{L_T}
        v_add_f32 v{x0}, v{x0}, v{L_SH+2*j}
        v_add_f32 v{x1}, v{x1}, v{L_SH+2*j+1}
        v_cvt_pk_bf16_f32 v{out+j}, v{x0}, v{x1}
        v_min_u32 v{out+j}, -2, v{out+j}
        """)
    a(f"buffer_store_dwordx4 {vr(out,4)}, v{L_DST}, {WS}, s{s_dst} offen offset:{extra} sc1")
    a(f"buffer_store_dwordx4 {vr(out+4,4)}, v{L_DST}, {WS}, s{s_dst} offen offset:{extra+640} sc1")


def wait_all(a, nl, vaddr, s_off, s_need, vt, ndw=1, sleep=4):
    top, done = a.newlabel("wa"), a.newlabel("wad")
    a.label(top)
    op = {1: "dword", 4: "dwordx4"}[ndw]
    a(f"""
    s_mov_b32 exec_lo, 0x{(1 << nl) - 1:x}
    s_mov_b32 exec_hi, 0
    buffer_load_{op} {vr(vt, ndw)}, v{vaddr}, {WS}, s{s_off} offen sc1
    s_waitcnt vmcnt(0)
    """)
    if ndw == 4:
        a(f"v_min3_u32 v{vt}, v{vt}, v{vt+1}, v{vt+2}")
        a(f"v_min_u32 v{vt}, v{vt}, v{vt+3}")
    a(f"""
    v_cmp_gt_u32 vcc, s{s_need}, v{vt}
    s_mov_b64 exec, -1
    s_cbranch_vccz {done}
    s_sub_u32 s{sBUD}, s{sBUD}, 1
    s_cmp_lt_i32 s{sBUD}, 0
    s_cbranch_scc1 {done}
    s_sleep {sleep}
    s_branch {top}
    """)
    a.label(done)


WS_TRACE = 0x0F000000


def stamp(a, slot):
    if not STAMP:
        return
    if STAMP == 2 and MODE2[0] and slot in (3, 4):
        slot = 6
    if STAMP == 2 and MODE2[0] and slot == 0:
        a("s_memtime s[80:81]")
        return
    a(f"s_memrealtime s[{80+2*slot}:{81+2*slot}]")


def dstamp(a, word, vt, cond=""):
    if not DST:
        return
    lab = a.newlabel("ds")
    a(f"""
    {cond.format(lab=lab)}
    s_cmp_lg_u32 s{sW}, 0
    s_cbranch_scc1 {lab}
    s_memrealtime s[80:81]
    s_waitcnt lgkmcnt(0)
    v_mov_b32 v{vt}, s80
    s_mov_b64 exec, 1
    buffer_store_dword v{vt}, off, {DBG}, 0 offset:{word*4}
    s_mov_b64 exec, -1
    {lab}:
    """)


def stamp_flush(a, n, vt):
    if not STAMP:
        return
    if STAMP == 2 and MODE2[0]:
        n = 7
    skip = a.newlabel("stf")
    a(f"""
    s_cmp_lg_u32 s{sW}, 0
    s_cbranch_scc1 {skip}
    s_waitcnt lgkmcnt(0)
    s_lshl_b32 s96, s{sSTEP}, 5
    s_add_u32 s96, s96, s97
    s_mov_b64 exec, 1
    """)
    for k in range(n):
        a(f"v_mov_b32 v{vt}, s{80+2*k}")
        a(f"buffer_store_dword v{vt}, off, {WS}, s96 offset:{4*k}")
        a.nop(2)
    a(f"v_mov_b32 v{vt}, s{sBUD}")
    a(f"buffer_store_dword v{vt}, off, {WS}, s96 offset:28")
    a("s_mov_b64 exec, -1")
    a.label(skip)


def gen_r(a):
    L = NAME + "_kernel"
    kernel_header(a, L)
    a(f"""
    s_cmp_ge_u32 s2, 256
    s_cbranch_scc1 r_end
    s_load_dwordx2 s[4:5], s[0:1], {KA_WS}
    s_load_dwordx2 s[6:7], s[0:1], {KA_DBG}
    s_load_dwordx4 s[32:35], s[0:1], {KA_WQ}
    s_load_dwordx2 s[36:37], s[0:1], {KA_X}
    v_lshrrev_b32 v1, 6, v0
    v_and_b32 v{vLANE}, 63, v0
    s_waitcnt lgkmcnt(0)
    """)
    srd(a, 8, 4, WS_SIZE)
    srd(a, 12, 6, 256)
    srd(a, 16, 32, D * H * E * 2)
    srd(a, 20, 34, D * H * E * 2)
    srd(a, 24, 36, S * D * 2)
    a(f"""
    v_readfirstlane_b32 s{sW}, v1
    v_lshlrev_b32 v{vL16}, 4, v{vLANE}
    v_add_u32 v{vL16b}, 4096, v{vL16}
    v_add_u32 v{vL16c}, 8192, v{vL16}
    v_mov_b32 v{vIDX}, 0x4444
    v_mov_b32 v10, 0xeeee
    v_and_b32 v11, 8, v{vLANE}
    v_cmp_ne_u32 vcc, 0, v11
    s_mov_b32 s{sBUD}, 200000
    v_mov_b32 v9, 0x{LDS_ROLE:x}
    v_cndmask_b32 v{vIDX}, v{vIDX}, v10, vcc
    s_cmp_lg_u32 s{sW}, 0
    s_cbranch_scc1 r_warm
    s_getreg_b32 s40, hwreg(HW_REG_XCC_ID)
    s_and_b32 s40, s40, 7
    s_mov_b64 exec, 1
    s_lshl_b32 s43, s40, 2
    s_lshr_b32 s43, 0x{XMAP:x}, s43
    s_and_b32 s43, s43, 7
    s_mov_b32 s48, 0
    """)
    a.label("r_try")
    a(f"""
    s_lshr_b32 s45, s43, 1
    s_lshl_b32 s45, s45, 2
    s_and_b32 s44, s43, 1
    s_lshl_b32 s44, s44, 7
    s_add_u32 s45, s45, s44
    v_mov_b32 v10, 1
    buffer_atomic_add v10, off, {DBG}, s45 sc0
    s_waitcnt vmcnt(0)
    v_readfirstlane_b32 s41, v10
    s_nop 3
    s_cmp_lt_u32 s41, 32
    s_cbranch_scc1 r_got
    s_add_u32 s48, s48, 1
    s_sub_u32 s43, s48, 1
    s_mov_b32 s42, 999
    s_cmp_ge_u32 s43, 8
    s_cbranch_scc1 r_role_done
    s_branch r_try
    """)
    a.label("r_got")
    a(f"""
    s_lshl_b32 s42, s43, 5
    s_add_u32 s42, s42, s41                 ; P: t, VM: 32+t
    s_cmp_lt_u32 s43, 2
    s_cbranch_scc1 r_role_done
    s_cmp_ge_u32 s43, 4
    s_cbranch_scc1 r_got4
    s_sub_u32 s43, s43, 2                   ; q = 0,1
    s_mul_i32 s44, s43, 10
    s_add_u32 s42, s41, s44
    s_add_u32 s42, s42, 239                 ; F2: 239 + 10q + t
    s_cmp_lt_u32 s41, 10
    s_cbranch_scc1 r_role_done
    s_mul_i32 s44, s43, 20
    s_add_u32 s42, s41, s44
    s_add_u32 s42, s42, 54                  ; U: 64 + 20q + (t-10)
    s_cmp_lt_u32 s41, 30
    s_cbranch_scc1 r_role_done
    s_lshl_b32 s44, s43, 1
    s_add_u32 s42, s41, s44
    s_add_u32 s42, s42, 174                 ; L: 204 + 2q + (t-30)
    s_branch r_role_done
    """)
    a.label("r_got4")
    a(f"""
    s_sub_u32 s43, s43, 4                   ; q = 0..3
    s_lshl_b32 s44, s43, 3
    s_add_u32 s42, s41, s44
    s_add_u32 s42, s42, 112                 ; T
    s_cmp_lt_u32 s41, 8
    s_cbranch_scc1 r_role_done
    s_add_u32 s42, s42, 24                  ; VO
    s_cmp_lt_u32 s41, 16
    s_cbranch_scc1 r_role_done
    s_add_u32 s42, s43, 208                 ; L: 204 + 4 + q
    s_cmp_eq_u32 s41, 23
    s_cbranch_scc1 r_role_done
    s_lshl_b32 s44, s43, 1
    s_add_u32 s42, s41, s44
    s_add_u32 s42, s42, 160                 ; A
    s_cmp_lt_u32 s41, 18
    s_cbranch_scc1 r_role_done
    s_mul_i32 s44, s43, 5
    s_add_u32 s42, s41, s44
    s_add_u32 s42, s42, 166                 ; C
    s_cmp_lt_u32 s41, 23
    s_cbranch_scc1 r_role_done
    s_mul_i32 s44, s43, 7
    s_add_u32 s42, s41, s44
    s_add_u32 s42, s42, 188                 ; F1: 212 + 7q + (t-24)
    s_cmp_eq_u32 s42, 239
    s_cselect_b32 s42, 264, s42
    s_add_u32 s44, s43, 260
    s_cmp_eq_u32 s41, 31
    s_cselect_b32 s42, s44, s42
    """)
    a.label("r_role_done")
    if SWAPB:
        a(f"""
        s_sub_u32 s44, s42, 239
        s_sub_u32 s45, s42, {SWAPB}
        s_add_u32 s46, s44, {SWAPB}
        s_add_u32 s47, s45, 239
        s_cmp_lt_u32 s44, 20
        s_cselect_b32 s42, s46, s42
        s_cmp_lt_u32 s45, 20
        s_cselect_b32 s42, s47, s42
        """)
    a(f"""
    v_mov_b32 v10, s42
    ds_write_b32 v9, v10
    s_mov_b64 exec, -1
    s_waitcnt lgkmcnt(0)
    """)
    a("s_branch r_role_wait")
    a.label("r_warm")
    if WARM:
        a(f"""
        s_getpc_b64 s[40:41]
        r_warm_pc:
        s_sub_u32 s40, s40, r_warm_pc-{L}
        s_subb_u32 s41, s41, 0
        s_lshr_b32 s42, s2, 3
        s_mul_i32 s42, s42, 3
        s_add_u32 s42, s42, s{sW}
        s_sub_u32 s42, s42, 1                   ; 0..95
        s_lshl_b32 s42, s42, 10
        v_add_u32 v12, s42, v{vL16}
        v_min_u32 v12, r_code_end-{L}-16, v12
        global_load_dwordx4 v[16:19], v12, s[40:41]
        s_waitcnt vmcnt(0)
        """)
    a.label("r_role_wait")
    a(f"""
    s_barrier
    ds_read_b32 v10, v9
    s_waitcnt lgkmcnt(0)
    v_readfirstlane_b32 s{sID}, v10
    s_mov_b32 s{sSTEP}, 0
    s_mov_b32 s50, 0x3db504f3          ; 128^-0.5
    s_mov_b32 s51, 0x3fb8aa3b          ; log2(e)
    s_mov_b32 s62, s50
    s_mov_b32 s63, s50
    s_mov_b32 s100, 0
    s_mul_i32 s97, s{sID}, {72*32}
    s_add_u32 s97, s97, 0x{WS_TRACE:x}
    s_barrier
    """)
    if STAMP:
        a(f"""
        s_memrealtime s[80:81]
        s_waitcnt lgkmcnt(0)
        v_mov_b32 v3, s80
        buffer_store_dword v3, off, {WS}, s97 offset:{71*32}
        """)
    a(f"""
    s_cmp_lt_u32 s{sID}, 32
    s_cbranch_scc1 role_p
    s_cmp_lt_u32 s{sID}, 64
    s_cbranch_scc1 role_vm
    s_cmp_lt_u32 s{sID}, 112
    s_cbranch_scc1 boot
    s_cmp_lt_u32 s{sID}, 144
    s_cbranch_scc1 role_t
    s_cmp_lt_u32 s{sID}, 176
    s_cbranch_scc1 role_vo
    s_cmp_ge_u32 s{sID}, 265
    s_cbranch_scc1 r_end
    s_branch boot
    boot_done:
    s_cmp_lt_u32 s{sID}, 112
    s_cbranch_scc1 role_u
    {"s_endpgm" if NOTOK else ""}
    s_cmp_lt_u32 s{sID}, 184
    s_cbranch_scc1 role_al
    s_cmp_lt_u32 s{sID}, 204
    s_cbranch_scc1 role_c
    s_cmp_lt_u32 s{sID}, 212
    s_cbranch_scc1 role_al
    s_cmp_lt_u32 s{sID}, 259
    s_cbranch_scc1 role_f
    s_sub_u32 s{sID}, s{sID}, 56            ; 260.. -> 204..
    s_cmp_lt_u32 s{sID}, 209
    s_cbranch_scc1 role_c
    s_endpgm
    """)

    KF, QF, KMF, SA = 72, 104, 120, 136
    X0 = 148
    vTW, vTR, vST, vSM = 8, 9, 12, 13
    sMEM, sPB, sKX, sFT, sSEEN, sNEED = 31, 32, 33, 34, 35, 36
    from gen_boot import dbg_wait_wg, DBG_MOD20
    a.label("role_p")
    MODE2[0] = True
    dstamp(a, 11, 3, f"s_cmp_lg_u32 s{sID}, 0\ns_cbranch_scc1 {{lab}}")
    if PDELAY:
        dbg_wait_wg(a, [(DBG_MOD20, 1)], 3, sleep=10)
    load_wqk(a, depth=PDEPTH)
    setup_qk_lds_addrs(a, vTW, vTR)
    a(f"""
    v_bfe_u32 v10, v{vLANE}, 3, 1           ; b
    v_and_b32 v11, 7, v{vLANE}              ; i
    v_lshrrev_b32 v14, 4, v{vLANE}          ; g
    v_lshlrev_b32 v{vST}, 8, v10
    v_lshl_add_u32 v{vST}, v11, 5, v{vST}
    v_lshl_add_u32 v{vST}, v14, 3, v{vST}
    v_lshlrev_b32 v{vSM}, 3, v11
    v_and_b32 v15, 1, v14
    v_lshl_add_u32 v{vSM}, v15, 2, v{vSM}
    v_lshrrev_b32 v15, 1, v14
    v_lshl_add_u32 v{vSM}, v15, 6, v{vSM}
    v_add_u32 v{vSM}, 512, v{vSM}
    v_mov_b32 v15, 0x7ffffff0
    v_cmp_ne_u32 vcc, 0, v10
    s_mov_b32 s52, 0xff00ff00
    s_mov_b32 s53, 0xff00ff00
    v_cndmask_b32 v{vSM}, v{vSM}, v15, vcc
    s_mov_b32 s54, 0
    s_mov_b32 s55, -1                       ; s[54:55]: lanes g>=2
    s_lshl_b32 s{sKX}, s{sID}, 13
    s_add_u32 s{sKX}, s{sKX}, 0x{WS_KX:x}
    s_lshl_b32 s{sFT}, s{sID}, 7
    s_add_u32 s{sFT}, s{sFT}, 0x{flag(FL_T):x}
    s_mov_b32 s{sSEEN}, 0
    s_mov_b32 s56, 0x{WS_FLAGS:x}
    ; KM store voff: g*128 + (l%8)*16, lanes with b=1 dropped
    v_lshlrev_b32 v189, 7, v14
    v_lshl_add_u32 v189, v11, 4, v189
    v_cndmask_b32 v189, v189, v15, vcc
    s_lshl_b32 s57, s{sID}, 11
    s_add_u32 s57, s57, 0x{WS_KM:x}
    s_lshl_b32 s58, s{sID}, 2
    s_add_u32 s58, s58, s{sW}
    s_lshl_b32 s60, s{sID}, 7
    s_add_u32 s60, s60, 0x{flag(FL_KM):x}
    v_cmp_gt_u32 vcc, 40, v{vLANE}
    v_mov_b32 v180, -1
    v_mov_b32 v181, -1
    v_mov_b32 v182, -1
    v_mov_b32 v183, -1
    v_cndmask_b32 v186, v15, v{vL16}, vcc
    """)
    get_pol(a, X0)
    mem_setup(a)
    a(f"""
    s_add_u32 s59, s{sSB}, 0x{WS_CRB + CRB_DOOR:x}
    s_add_u32 s64, s{sSB}, 0x{WS_CRB:x}
    s_lshr_b32 s40, s{sID}, 3
    s_lshl_b32 s40, s40, 14
    s_and_b32 s41, s{sID}, 7
    s_mul_i32 s41, s41, 640
    s_add_u32 s65, s40, s41
    s_add_u32 s65, s65, s64
    s_add_u32 s65, s65, {4*16384}           ; p base
    s_mov_b32 s61, 0x3e0293ee               ; 128^-0.5 * log2(e)
    """)
    a.label("p_loop")
    stamp(a, 0)
    a(f"""
    s_and_b32 s40, s{sSTEP}, 3
    s_lshl_b32 s40, s40, 17
    s_add_u32 s{sMEM}, s40, s64
    s_add_u32 s{sPB}, s40, s65
    s_xor_b32 s40, s40, 0x40000
    s_add_u32 s66, s40, s65
    s_cmp_lg_u32 s{sW}, 0
    s_cbranch_scc1 p_sync
    s_add_u32 s{sNEED}, s{sSTEP}, 1
    """)
    if P_HOLD:
        a(f"""
        s_cmp_eq_u32 s{sSTEP}, 0
        s_cbranch_scc1 p_nohold
        s_sleep {P_HOLD}
        p_nohold:
        """)
    wait_flag(a, sFT, sNEED, sSEEN, X0)
    for f in range(8):
        r, o = l16(f * 1024)
        a(f"buffer_load_dwordx4 {vr(KF+4*f,4)}, {r}, {WS}, s{sKX} offen offset:{o} sc1")
    a(f"""
    buffer_load_dword v190, off, {WS}, s{sFT} sc1
    s_cmp_eq_u32 s{sSTEP}, 0
    s_cbranch_scc1 p_sync
    s_sleep {P_SLEEP0-P_HOLD}
    """)
    a.label("p_sync")
    a("s_barrier")
    stamp(a, 1)
    def door():
        if not DOOR:
            return
        a(f"""
        s_cmp_lg_u32 s58, 3
        s_cbranch_scc1 p_nodoor
        s_mov_b64 exec, 1
        buffer_store_dword v188, off, {WS}, s59 sc1
        s_mov_b64 exec, -1
        p_nodoor:
        """)
    a(f"""
    s_add_u32 s40, s{sSTEP}, 1
    v_mov_b32 v188, s40
    """)
    qrd = [f"ds_read_b64_tr_b16 {vr(QF+4*k+2*tp,2)}, v{vTR} offset:{k*512+tp*256}" for k in range(4) for tp in range(2)]
    cl = combine_list(0, 1, X0+2, X0+3)
    fl = ["\n".join(cl[0:2]), "\n".join(cl[2:4]), "\n".join(cl[4:6]), "\n".join(cl[6:8]),
          f"ds_write_b64 v{vTW}, {vr(X0+2,2)}", "s_nop 0", "s_nop 0", "s_waitcnt lgkmcnt(0)\ns_barrier",
          "\n".join(qrd[0:2]), "\n".join(qrd[2:4]), "\n".join(qrd[4:6]), "\n".join(qrd[6:8])]
    mem_proj2(a, [[0, 1], [2, 3]], sMEM, X0, after_valid=door, fill={1: fl})
    stamp(a, 2)
    kc = combine_list(2, 3, X0+4, X0+5) + [f"ds_write_b64 v{vTW}, {vr(X0+4,2)} offset:2048"]
    n = 0
    for k in range(4):
        a(f"s_waitcnt lgkmcnt({[6, 4, 3, 1][k]})")
        for mt in range(2):
            acc = vr(SA+4*mt, 4)
            a(f"v_mfma_f32_16x16x32_bf16 {acc}, {vr(KF+(mt*4+k)*4,4)}, {vr(QF+4*k,4)}, {'0' if k==0 else acc}")
            n += 1
            if n == 2:
                a.nop(5)
            if n >= 2:
                for _ in range(3):
                    if kc:
                        a(kc.pop(0))
    assert not kc
    a(f"""
    s_waitcnt lgkmcnt(0)
    s_barrier
    s_cmp_lg_u32 s{sW}, 0
    s_cbranch_scc1 p_other
    """)
    stamp(a, 3)
    for k2 in range(4):
        for tp in range(2):
            a(f"ds_read_b64_tr_b16 {vr(KMF+4*k2+2*tp,2)}, v{vTR} offset:{2048+k2*512+tp*256}")
    T0 = X0 + 8
    M0, TT, S0, MR, XM, FF = X0+6, X0+7, X0+11, X0+5, X0+4, 172

    def mm(k):
        acc = vr(SA+8, 4)
        return f"""s_waitcnt lgkmcnt({6-2*k})
        v_mfma_f32_16x16x32_bf16 {acc}, {vr(KMF+4*k,4)}, {vr(QF+4*k,4)}, {'0' if k==0 else acc}"""
    if NOMIMIC:
        a(f"""
        v_cndmask_b32 v{X0}, v{SA}, v{SA+4}, s[52:53]
        v_cndmask_b32 v{X0+1}, v{SA+1}, v{SA+5}, s[52:53]
        v_cndmask_b32 v{X0+2}, v{SA+2}, v{SA+6}, s[52:53]
        v_cndmask_b32 v{X0+3}, v{SA+3}, v{SA+7}, s[52:53]
        v_max3_f32 v{M0}, v{X0}, v{X0+1}, v{X0+2}
        v_max_f32 v{M0}, v{M0}, v{X0+3}
        {mm(0)}
        v_max_f32_dpp v{M0}, v{M0}, v{M0} row_ror:8 row_mask:0xf bank_mask:0xf
        v_mov_b32 v{TT}, v{M0}
        {mm(1)}
        v_permlane32_swap_b32 v{M0}, v{TT}
        {mm(2)}
        v_max_f32 v{M0}, v{M0}, v{TT}
        {mm(3)}
        s_nop 7
        v_max3_f32 v{M0}, v{M0}, v{SA+8}, v{SA+9}
        v_max3_f32 v{M0}, v{M0}, v{SA+10}, v{SA+11}
        v_mov_b32 v{TT}, v{M0}
        v_cndmask_b32 v{XM}, v{SA+8}, v{SA+9}, s[52:53]
        v_cndmask_b32 v{FF}, v{SA+10}, v{SA+11}, s[52:53]
        v_permlane16_swap_b32 v{M0}, v{TT}
        v_cndmask_b32 v{XM}, v{XM}, v{FF}, s[54:55]
        v_max_f32 v{M0}, v{M0}, v{TT}
        v_mul_f32 v{M0}, s61, v{M0}
        v_fma_f32 v{XM}, v{XM}, s61, -v{M0}
        v_fma_f32 v{X0}, v{X0}, s61, -v{M0}
        v_exp_f32 v{XM}, v{XM}
        v_fma_f32 v{X0+1}, v{X0+1}, s61, -v{M0}
        v_exp_f32 v{X0}, v{X0}
        v_fma_f32 v{X0+2}, v{X0+2}, s61, -v{M0}
        v_exp_f32 v{X0+1}, v{X0+1}
        v_fma_f32 v{X0+3}, v{X0+3}, s61, -v{M0}
        v_exp_f32 v{X0+2}, v{X0+2}
        v_add_f32 v{S0}, v{X0}, v{XM}
        v_exp_f32 v{X0+3}, v{X0+3}
        v_add_f32 v{S0}, v{S0}, v{X0+1}
        v_add_f32 v{S0}, v{S0}, v{X0+2}
        v_add_f32 v{S0}, v{S0}, v{X0+3}
        v_mov_b32_dpp v{MR}, v{XM} row_ror:8 row_mask:0xf bank_mask:0xf
        s_nop 0
        v_add_f32_dpp v{S0}, v{S0}, v{S0} row_ror:8 row_mask:0xf bank_mask:0xf
        v_mov_b32 v{TT}, v{S0}
        s_nop 1
        v_permlane16_swap_b32 v{S0}, v{TT}
        v_add_f32 v{S0}, v{S0}, v{TT}
        v_mov_b32 v{TT}, v{S0}
        s_nop 1
        v_permlane32_swap_b32 v{S0}, v{TT}
        v_add_f32 v{S0}, v{S0}, v{TT}
        v_rcp_f32 v{S0}, v{S0}
        s_nop 0
        v_mul_f32 v{X0}, v{X0}, v{S0}
        v_mul_f32 v{X0+1}, v{X0+1}, v{S0}
        v_mul_f32 v{X0+2}, v{X0+2}, v{S0}
        v_mul_f32 v{X0+3}, v{X0+3}, v{S0}
        v_cvt_pk_bf16_f32 v{T0}, v{X0}, v{X0+1}
        v_cvt_pk_bf16_f32 v{T0+1}, v{X0+2}, v{X0+3}
        v_mul_f32 v{XM}, v{XM}, v{S0}
        v_min_u32 v{T0}, -2, v{T0}
        v_min_u32 v{T0+1}, -2, v{T0+1}
        v_mul_f32 v{MR}, v{MR}, v{S0}
        buffer_store_dwordx2 {vr(T0,2)}, v{vST}, {WS}, s{sPB} offen sc1
        v_cvt_pk_bf16_f32 v{T0+2}, v{XM}, v{MR}
        v_min_u32 v{T0+2}, -2, v{T0+2}
        buffer_store_dword v{T0+2}, v{vSM}, {WS}, s{sPB} offen sc1
        v_readfirstlane_b32 s{sSEEN}, v190
        s_branch p_next
        """)
    else:
        a(f"""
        v_cndmask_b32 v{X0}, v{SA}, v{SA+4}, s[52:53]
        v_cndmask_b32 v{X0+1}, v{SA+1}, v{SA+5}, s[52:53]
        v_cndmask_b32 v{X0+2}, v{SA+2}, v{SA+6}, s[52:53]
        v_cndmask_b32 v{X0+3}, v{SA+3}, v{SA+7}, s[52:53]
        v_cvt_pk_bf16_f32 v{T0}, v{X0}, v{X0+1}
        v_cvt_pk_bf16_f32 v{T0+1}, v{X0+2}, v{X0+3}
        v_lshlrev_b32 v{X0}, 16, v{T0}
        v_and_b32 v{X0+1}, 0xffff0000, v{T0}
        v_lshlrev_b32 v{X0+2}, 16, v{T0+1}
        v_and_b32 v{X0+3}, 0xffff0000, v{T0+1}
        v_pk_mul_f32 v[{X0}:{X0+1}], v[{X0}:{X0+1}], s[62:63]
        v_pk_mul_f32 v[{X0+2}:{X0+3}], v[{X0+2}:{X0+3}], s[62:63]
        v_cvt_pk_bf16_f32 v{T0}, v{X0}, v{X0+1}
        v_cvt_pk_bf16_f32 v{T0+1}, v{X0+2}, v{X0+3}
        {mm(0)}
        v_lshlrev_b32 v{X0}, 16, v{T0}
        v_and_b32 v{X0+1}, 0xffff0000, v{T0}
        {mm(1)}
        v_lshlrev_b32 v{X0+2}, 16, v{T0+1}
        v_and_b32 v{X0+3}, 0xffff0000, v{T0+1}
        {mm(2)}
        v_max3_f32 v{M0}, v{X0}, v{X0+1}, v{X0+2}
        v_max_f32 v{M0}, v{M0}, v{X0+3}
        {mm(3)}
        v_mul_f32 v{X0}, s51, v{X0}
        v_max_f32_dpp v{M0}, v{M0}, v{M0} row_ror:8 row_mask:0xf bank_mask:0xf
        v_mov_b32 v{TT}, v{M0}
        v_mul_f32 v{X0+1}, s51, v{X0+1}
        v_mul_f32 v{X0+2}, s51, v{X0+2}
        v_permlane16_swap_b32 v{M0}, v{TT}
        v_max_f32 v{M0}, v{M0}, v{TT}
        v_mov_b32 v{TT}, v{M0}
        v_mul_f32 v{X0+3}, s51, v{X0+3}
        v_max3_f32 v{MR}, v{SA+8}, v{SA+9}, v{SA+10}
        v_permlane32_swap_b32 v{M0}, v{TT}
        v_max_f32 v{MR}, v{MR}, v{SA+11}
        v_max_f32 v{M0}, v{M0}, v{TT}
        v_mov_b32 v{TT}, v{MR}
        v_cndmask_b32 v{XM}, v{SA+8}, v{SA+9}, s[52:53]
        v_cndmask_b32 v{FF}, v{SA+10}, v{SA+11}, s[52:53]
        v_permlane16_swap_b32 v{MR}, v{TT}
        v_cndmask_b32 v{XM}, v{XM}, v{FF}, s[54:55]
        v_max_f32 v{MR}, v{MR}, v{TT}
        v_mul_f32 v{M0}, s51, v{M0}
        v_cvt_pk_bf16_f32 v{T0+2}, v{XM}, v{MR}
        v_sub_f32 v{X0}, v{X0}, v{M0}
        v_lshlrev_b32 v{XM}, 16, v{T0+2}
        v_and_b32 v{MR}, 0xffff0000, v{T0+2}
        v_sub_f32 v{X0+1}, v{X0+1}, v{M0}
        v_pk_mul_f32 v[{XM}:{MR}], v[{XM}:{MR}], s[62:63]
        v_exp_f32 v{X0}, v{X0}
        v_cvt_pk_bf16_f32 v{T0+2}, v{XM}, v{MR}
        v_exp_f32 v{X0+1}, v{X0+1}
        v_and_b32 v{MR}, 0xffff0000, v{T0+2}
        v_lshlrev_b32 v{XM}, 16, v{T0+2}
        v_mul_f32 v{MR}, s51, v{MR}
        v_mul_f32 v{XM}, s51, v{XM}
        v_max_f32 v{MR}, v{MR}, v{M0}
        v_sub_f32 v{X0+2}, v{X0+2}, v{M0}
        v_sub_f32 v{XM}, v{XM}, v{MR}
        v_sub_f32 v{FF}, v{M0}, v{MR}
        v_exp_f32 v{XM}, v{XM}
        v_sub_f32 v{X0+3}, v{X0+3}, v{M0}
        v_exp_f32 v{FF}, v{FF}
        v_exp_f32 v{X0+2}, v{X0+2}
        v_add_f32 v{S0}, v{X0}, v{X0+1}
        v_exp_f32 v{X0+3}, v{X0+3}
        v_add_f32 v{S0}, v{S0}, v{X0+2}
        v_mov_b32_dpp v{MR}, v{XM} row_ror:8 row_mask:0xf bank_mask:0xf
        v_add_f32 v{S0}, v{S0}, v{X0+3}
        v_fma_f32 v{S0}, v{S0}, v{FF}, v{XM}
        v_mul_f32 v{X0}, v{X0}, v{FF}
        v_mul_f32 v{X0+1}, v{X0+1}, v{FF}
        v_add_f32_dpp v{S0}, v{S0}, v{S0} row_ror:8 row_mask:0xf bank_mask:0xf
        v_mov_b32 v{TT}, v{S0}
        v_mul_f32 v{X0+2}, v{X0+2}, v{FF}
        v_mul_f32 v{X0+3}, v{X0+3}, v{FF}
        v_permlane16_swap_b32 v{S0}, v{TT}
        v_add_f32 v{S0}, v{S0}, v{TT}
        v_mov_b32 v{TT}, v{S0}
        s_nop 1
        v_permlane32_swap_b32 v{S0}, v{TT}
        v_add_f32 v{S0}, v{S0}, v{TT}
        v_rcp_f32 v{S0}, v{S0}
        s_nop 0
        v_mul_f32 v{X0}, v{X0}, v{S0}
        v_mul_f32 v{X0+1}, v{X0+1}, v{S0}
        v_mul_f32 v{X0+2}, v{X0+2}, v{S0}
        v_mul_f32 v{X0+3}, v{X0+3}, v{S0}
        v_cvt_pk_bf16_f32 v{T0}, v{X0}, v{X0+1}
        v_cvt_pk_bf16_f32 v{T0+1}, v{X0+2}, v{X0+3}
        v_mul_f32 v{XM}, v{XM}, v{S0}
        v_min_u32 v{T0}, -2, v{T0}
        v_min_u32 v{T0+1}, -2, v{T0+1}
        v_mul_f32 v{MR}, v{MR}, v{S0}
        buffer_store_dwordx2 {vr(T0,2)}, v{vST}, {WS}, s{sPB} offen sc1
        v_cvt_pk_bf16_f32 v{T0+2}, v{XM}, v{MR}
        v_min_u32 v{T0+2}, -2, v{T0+2}
        buffer_store_dword v{T0+2}, v{vSM}, {WS}, s{sPB} offen sc1
        v_readfirstlane_b32 s{sSEEN}, v190
        s_branch p_next
        """)
    a.label("p_other")
    a(f"""
    s_cmp_lg_u32 s{sW}, 1
    s_cbranch_scc1 p_w23
    """)
    for k in range(4):
        for tp in range(2):
            a(f"ds_read_b64_tr_b16 {vr(KMF+4*k+2*tp,2)}, v{vTR} offset:{2048+k*512+tp*256}")
    a("s_waitcnt lgkmcnt(0)")
    for r in range(16):
        a(f"v_min_u32 v{KMF+r}, -2, v{KMF+r}")
    for k in range(4):
        a(f"buffer_store_dwordx4 {vr(KMF+4*k,4)}, v189, {WS}, s57 offen offset:{k*512} sc1")
    a(f"""
    s_waitcnt vmcnt(0)
    s_mov_b64 exec, 1
    buffer_store_dword v188, off, {WS}, s60 sc1
    s_mov_b64 exec, -1
    s_branch p_next
    """)
    a.label("p_w23")
    a(f"""
    s_cmp_lg_u32 s{sW}, 2
    s_cbranch_scc1 p_next
    buffer_store_dwordx4 v[180:183], v186, {WS}, s66 offen sc1
    s_cmp_lg_u32 s{sID}, 0
    s_cbranch_scc1 p_next
    s_add_u32 s40, s{sSTEP}, 1
    v_mov_b32 v{X0}, s40
    s_mov_b64 exec, 1
    buffer_store_dword v{X0}, off, {WS}, s56 sc1
    s_mov_b64 exec, -1
    """)
    a.label("p_next")
    dstamp(a, 12, 191, f"s_cmp_lg_u32 s{sID}, 0\ns_cbranch_scc1 {{lab}}\ns_cmp_lg_u32 s{sSTEP}, 1\ns_cbranch_scc1 {{lab}}")
    dstamp(a, 13, 191, f"s_cmp_lg_u32 s{sID}, 0\ns_cbranch_scc1 {{lab}}\ns_cmp_lg_u32 s{sSTEP}, 63\ns_cbranch_scc1 {{lab}}")
    dstamp(a, 15, 191, f"s_cmp_lg_u32 s{sID}, 0\ns_cbranch_scc1 {{lab}}\ns_cmp_lg_u32 s{sSTEP}, 11\ns_cbranch_scc1 {{lab}}")
    stamp(a, 4)
    stamp_flush(a, 5, 191)
    a(f"""
    s_add_u32 s{sKX}, s{sKX}, {32*8192}
    s_add_u32 s57, s57, {32*2048}
    s_add_u32 s{sSTEP}, s{sSTEP}, 1
    s_cmp_lt_u32 s{sSTEP}, 64
    s_cbranch_scc1 p_loop
    s_endpgm
    """)
    flush_deferred(a)

    AF, AC3, PKM = 72, 80, 120
    a.label("role_vm")
    a(f"""
    s_sub_u32 s{sID}, s{sID}, 32
    s_load_dwordx4 s[64:67], s[0:1], {KA_WV}
    s_waitcnt lgkmcnt(0)
    """)
    srd(a, 16, 64, D * H * E * 2)
    srd(a, 20, 66, D * H * E * 2)
    if PDELAY:
        dbg_wait_wg(a, [(DBG_MOD20, 1)], 3, sleep=10)
    load_wv_wo(a)
    setup_qk_lds_addrs(a, vTW, vTR)
    a(f"""
    ; sparse-A transposing read: e0 = 32(gA/2) + 16(r/2) + 8(gA%2) + 2(c/2) + (r%2)
    v_lshrrev_b32 v10, 5, v{vLANE}
    v_lshlrev_b32 v10, 5, v10
    v_bfe_u32 v11, v{vLANE}, 3, 1
    v_lshl_add_u32 v10, v11, 4, v10
    v_bfe_u32 v11, v{vLANE}, 4, 1
    v_lshl_add_u32 v10, v11, 3, v10
    v_bfe_u32 v11, v{vLANE}, 1, 1
    v_lshl_add_u32 v10, v11, 1, v10
    v_bfe_u32 v11, v{vLANE}, 2, 1
    v_add_u32 v10, v10, v11
    v_lshlrev_b32 v10, 4, v10
    v_and_b32 v11, 1, v{vLANE}
    v_lshl_add_u32 v10, v11, 3, v10
    v_add_u32 v{vTR}, 0x{LDS_T:x}, v10
    v_lshlrev_b32 v12, 3, v{vLANE}
    v_and_b32 v13, 31, v{vLANE}
    v_lshlrev_b32 v13, 3, v13
    v_lshrrev_b32 v10, 5, v{vLANE}
    v_lshl_add_u32 v13, v10, 14, v13
    v_mov_b32 v132, -1
    v_mov_b32 v133, -1
    v_mov_b32 v134, 0
    s_mul_i32 s57, s{sID}, 10240
    s_mul_i32 s40, s{sW}, 2560
    s_add_u32 s57, s57, s40
    s_add_u32 s57, s57, 0x{WS_UMC:x}
    s_lshl_b32 s61, s{sID}, 7
    s_lshl_b32 s40, s{sW}, 2
    s_add_u32 s61, s61, s40
    s_add_u32 s61, s61, 0x{flag(FL_UF):x}
    """)
    get_pol(a, 135)
    mem_setup(a)
    a(f"""
    s_add_u32 s64, s{sSB}, 0x{WS_CRB + 32768:x}
    s_mul_i32 s65, s{sW}, {10*16384}
    s_lshl_b32 s40, s{sID}, 8
    s_add_u32 s65, s65, s40
    s_add_u32 s65, s65, s{sSA}
    s_add_u32 s65, s65, 0x{WS_CRA:x}
    s_mov_b32 s66, 0
    s_mov_b32 s67, {2*CRA_SLOT}
    """)
    a.label("vm_loop")
    stamp(a, 0)
    for r in range(40):
        a(f"v_mov_b32 v{AC3+r}, 0")
    a(f"""
    s_and_b32 s40, s{sSTEP}, 3
    s_lshl_b32 s40, s40, 17
    s_add_u32 s{sMEM}, s40, s64
    s_add_u32 s58, s65, s66
    s_cmp_eq_u32 s{sSTEP}, 0
    s_cbranch_scc1 vm_sync
    s_sleep {V_SLEEP}
    vm_sync:
    s_barrier
    """)
    stamp(a, 1)
    def vm_flag():
        if V_LAZY:
            a(f"""
            s_mov_b64 exec, 1
            buffer_store_dword v134, off, {WS}, s61 sc1
            s_mov_b64 exec, -1
            """)
    mem_proj2(a, [[0, 1]], sMEM, 135, after_valid=vm_flag)
    stamp(a, 2)
    a.nop(8)
    combine_pair(a, 0, 1, 136, 137)
    a(f"""
    ds_write_b64 v{vTW}, v[136:137]
    s_waitcnt lgkmcnt(0)
    s_barrier
    """)
    for kb in range(2):
        for n in range(2):
            a(f"ds_read_b64_tr_b16 {vr(AF+4*kb+2*n,2)}, v{vTR} offset:{(64*kb+4*n)*16}")
    stamp(a, 3)

    def vm_pack(p):
        A, B = AC3 + 8*p, AC3 + 8*p + 4
        L = [f"v_permlane32_swap_b32 v{A+r}, v{B+r}" for r in range(4)]
        if PKADD:
            L += [f"v_pk_add_f32 v[{A+r}:{A+r+1}], v[{A+r}:{A+r+1}], v[{B+r}:{B+r+1}]" for r in (0, 2)]
        else:
            L += [f"v_add_f32 v{A+r}, v{A+r}, v{B+r}" for r in range(4)]
        L += [f"v_cvt_pk_bf16_f32 v{PKM+2*p}, v{A}, v{A+1}", f"v_cvt_pk_bf16_f32 v{PKM+2*p+1}, v{A+2}, v{A+3}",
              f"buffer_store_dwordx2 {vr(PKM+2*p,2)}, v13, {WS}, s{68+p} offen sc1"]
        return L
    for p in range(5):
        a(f"s_add_u32 s{68+p}, s58, {p*32768}")
    a("s_waitcnt lgkmcnt(0)")
    pend = []
    slot = 0
    last_mf = {}
    for p in range(5):
        for kb in range(2):
            for jj in range(2):
                jt = 2*p + jj
                a(f"v_smfmac_f32_16x16x64_bf16 {vr(AC3+4*jt,4)}, {vr(AF+4*kb,4)}, {widx(160+(jt*4+2*kb)*4,8)}, v{vIDX}")
                slot += 1
                rdy = slot + 8
                n = 0
                if pend and slot < pend[0][0]:
                    k = min(2, pend[0][0] - slot)
                    a.nop(k)
                    slot += k
                    n = 2
                while pend and pend[0][0] <= slot and n < VM_FILL:
                    a(pend.pop(0)[1])
                    slot += 1
                    n += 1
        for x in vm_pack(p):
            pend.append((rdy, x))
    while pend:
        if pend[0][0] > slot:
            a.nop(pend[0][0] - slot)
            slot = pend[0][0]
        a(pend.pop(0)[1])
        slot += 1
    stamp(a, 4)
    if V_HOLD:
        a(f"""
        s_cmp_eq_u32 s{sSTEP}, 63
        s_cbranch_scc1 vm_nohold
        s_sleep {V_HOLD}
        vm_nohold:
        """)
    for p in range(5):
        a(f"buffer_store_dwordx2 {vr(PKM+2*p,2)}, v12, {WS}, s57 offen offset:{p*512} sc1")
    a("s_add_u32 s40, s65, s67")
    for p in range(5):
        a(f"buffer_store_dwordx2 v[132:133], v13, {WS}, s40 offen sc1")
        a("s_add_u32 s40, s40, 32768")
    a(f"""
    s_add_u32 s57, s57, {UM_STEP}
    s_mov_b32 s67, s66
    s_add_u32 s66, s66, {CRA_SLOT}
    s_cmp_ge_u32 s66, {3*CRA_SLOT}
    s_cselect_b32 s66, 0, s66
    s_add_u32 s40, s{sSTEP}, 1
    v_mov_b32 v134, s40
    """)
    if not V_LAZY:
        a(f"""
        s_waitcnt vmcnt(5)
        s_mov_b64 exec, 1
        buffer_store_dword v134, off, {WS}, s61 sc1
        s_mov_b64 exec, -1
        """)
    stamp_flush(a, 5, 191)
    a(f"""
    s_add_u32 s{sSTEP}, s{sSTEP}, 1
    s_cmp_lt_u32 s{sSTEP}, 64
    s_cbranch_scc1 vm_loop
    s_waitcnt vmcnt(0)
    s_mov_b64 exec, 1
    buffer_store_dword v134, off, {WS}, s61 sc1
    s_endpgm
    """)
    flush_deferred(a)

    TX, BX, PF, BM, CA = 16, 48, 80, 104, 112
    vPA, vPB, vWr, vRd, vUM = 8, 9, 12, 13, 140
    sUX = 33
    a.label("role_u")
    MODE2[0] = False
    a(f"s_sub_u32 s{sID}, s{sID}, 64")
    setup_p_load_addrs(a, vPA, vPB, vUM, 16384, 256)
    a(f"""
    s_lshl_b32 s40, s{sW}, 9
    v_lshlrev_b32 v{vWr}, 3, v{vLANE}
    v_add_u32 v{vWr}, s40, v{vWr}
    ; final lane l: c8 = l/32, i = (l/4)%8, cp = l%4 ; src lane' = (r&1)*32 + (i/4)*16 + 8c8 + 2cp ; comp = r>>1
    v_bfe_u32 v10, v{vLANE}, 2, 1           ; r&1
    v_lshlrev_b32 v10, 5, v10
    v_bfe_u32 v11, v{vLANE}, 4, 1           ; i/4
    v_lshl_add_u32 v10, v11, 4, v10
    v_lshrrev_b32 v11, 5, v{vLANE}
    v_lshl_add_u32 v10, v11, 3, v10
    v_and_b32 v11, 3, v{vLANE}
    v_lshl_add_u32 v10, v11, 1, v10
    v_lshlrev_b32 v10, 3, v10
    v_bfe_u32 v11, v{vLANE}, 3, 1           ; r>>1
    v_lshl_add_u32 v{vRd}, v11, 2, v10
    v_add_u32 v14, 1024, v{vRd}
    v_lshlrev_b32 v15, 2, v{vLANE}
    v_lshlrev_b32 v133, 7, v{vLANE}
    v_mov_b32 v123, 0
    s_mul_i32 s{sUX}, s{sW}, {8*40960}
    s_lshl_b32 s40, s{sID}, 10
    s_add_u32 s{sUX}, s{sUX}, s40
    s_add_u32 s{sUX}, s{sUX}, 0x{WS_UX:x}
    s_lshl_b32 s{sFT}, s{sW}, 10
    s_add_u32 s{sFT}, s{sFT}, 0x{flag(FL_VO):x}
    v_mov_b32 v134, -1
    """)
    get_pol(a, 135)
    a(f"""
    s_add_u32 s60, s{sSB}, 0x{WS_CRB + CRB_DOOR:x}
    s_add_u32 s64, s{sSB}, 0x{WS_CRB + 4*16384:x}   ; p base
    s_lshl_b32 s65, s{sID}, 8
    s_cmp_ge_u32 s{sID}, 32
    s_cselect_b32 s40, 8192, 0
    s_add_u32 s65, s65, s40
    s_add_u32 s65, s65, s{sSB}
    s_add_u32 s65, s65, 0x{WS_CRB:x}
    s_lshl_b32 s57, s{sID}, 14
    s_add_u32 s57, s57, s{sSA}
    s_add_u32 s57, s57, 0x{WS_CRA:x}
    s_mov_b32 s66, 0
    """)
    a.label("u_loop")
    stamp(a, 0)
    a(f"""
    s_and_b32 s40, s{sSTEP}, 3
    s_lshl_b32 s40, s40, 17
    s_add_u32 s{sPB}, s40, s64
    s_xor_b32 s41, s40, 0x40000
    s_add_u32 s41, s41, s65
    s_add_u32 s40, s{sSTEP}, 1
    s_and_b32 s40, s40, 3
    s_lshl_b32 s40, s40, 17
    s_add_u32 s{sMEM}, s40, s65
    s_cmp_lg_u32 s{sW}, 1
    s_cbranch_scc1 u_noarm
    buffer_store_dword v134, v15, {WS}, s41 offen sc1
    s_add_u32 s41, s41, 32768
    buffer_store_dword v134, v15, {WS}, s41 offen sc1
    u_noarm:
    """)
    a(f"""
    s_add_u32 s{sNEED}, s{sSTEP}, 1
    s_mov_b64 exec, 255
    v_cmp_gt_u32 vcc, s{sNEED}, v123
    s_mov_b64 exec, -1
    s_cbranch_vccz u_vok
    """)
    wait_all(a, 8, 133, sFT, sNEED, 123)
    a.label("u_vok")
    if U_HOLD:
        a(f"""
        s_cmp_eq_u32 s{sW}, 0
        s_cbranch_scc1 u_nohold
        s_cmp_eq_u32 s{sSTEP}, 0
        s_cbranch_scc1 u_nohold
        s_sleep {U_HOLD}
        u_nohold:
        """)
    a(f"s_mov_b32 s40, s{sUX}")
    for hh in range(8):
        a(f"buffer_load_dwordx4 {vr(TX+4*hh,4)}, v{vL16}, {WS}, s40 offen sc1")
        a(f"s_add_u32 s40, s40, 40960")
    a(f"""
    s_mov_b64 exec, 255
    buffer_load_dword v123, v133, {WS}, s{sFT} offen sc1
    s_mov_b64 exec, -1
    s_add_u32 s58, s57, s66
    s_add_u32 s66, s66, {CRA_SLOT}
    s_cmp_ge_u32 s66, {3*CRA_SLOT}
    s_cselect_b32 s66, 0, s66
    s_waitcnt vmcnt(0)
    """)
    for hh in range(8):
        for d in range(4):
            a(f"v_mov_b32 v{BX + 8*(hh//2) + 2*d + hh%2}, v{TX+4*hh+d}")
    stamp(a, 1)
    a(f"""
    s_cmp_lg_u32 s{sW}, 0
    s_cbranch_scc1 u_dsync
    """)
    for k in range(3):
        a(f"buffer_load_dword v{124+k}, off, {WS}, s60 sc1")
        a(f"s_sleep 1")
    a.label("u_dspin")
    for k in range(4):
        a(f"""
        buffer_load_dword v{124+(k+3)%4}, off, {WS}, s60 sc1
        s_waitcnt vmcnt(3)
        v_cmp_le_u32 vcc, s{sNEED}, v{124+k}
        s_cbranch_vccnz u_ddone
        s_nop 7
        """)
    a(f"""
    s_sub_u32 s{sBUD}, s{sBUD}, 1
    s_cmp_ge_i32 s{sBUD}, 0
    s_cbranch_scc1 u_dspin
    """)
    a.label("u_ddone")
    stamp(a, 2)
    a(f"s_sleep {U_SLEEPD}")
    a.label("u_dsync")
    a("s_barrier")
    stamp(a, 3)
    def u_mloads():
        for k in range(2):
            a(f"buffer_load_dwordx2 {vr(PF+16+2*k,2)}, v{vPB}, {WS}, s{sPB} offen offset:{k*1280} sc1")
        for j in range(4):
            a(f"buffer_load_dwordx2 {vr(BM+2*j,2)}, v{vUM}, {WS}, s58 offen offset:{j*512} sc1")
    a.label("u_ppoll")
    for q in range(4):
        a(f"buffer_load_dwordx4 {vr(PF+4*q,4)}, v{vPA}, {WS}, s{sPB} offen offset:{q*1280} sc1")
    u_mloads()
    for r in range(4):
        a(f"v_mov_b32 v{CA+r}, 0")
    a("v_mov_b32 v122, 0")
    for q in range(4):
        f = PF + 4*q
        a(f"s_waitcnt vmcnt({9-q})")
        a(f"v_smfmac_f32_16x16x64_bf16 {vr(CA,4)}, {vr(f,4)}, {vr(BX+8*q,8)}, v{vIDX}")
        a(f"v_max3_u32 v122, v122, v{f}, v{f+1}")
        a(f"v_max3_u32 v122, v122, v{f+2}, v{f+3}")
    a("v_cmp_eq_u32 vcc, -1, v122")
    poll_fail(a, "u_ppoll", sleep=1)
    a.label("u_mchk")
    a(f"""
    s_waitcnt vmcnt(4)
    v_swap_b32 v{PF+17}, v{PF+18}
    v_max3_u32 v122, v{PF+16}, v{PF+17}, v{PF+18}
    v_max_u32 v122, v122, v{PF+19}
    s_waitcnt vmcnt(2)
    v_max3_u32 v122, v122, v{BM}, v{BM+1}
    v_max3_u32 v122, v122, v{BM+2}, v{BM+3}
    s_waitcnt vmcnt(0)
    v_max3_u32 v122, v122, v{BM+4}, v{BM+5}
    v_max3_u32 v122, v122, v{BM+6}, v{BM+7}
    v_cmp_eq_u32 vcc, -1, v122
    s_cbranch_vccnz u_mretry
    u_mok:
    v_smfmac_f32_16x16x64_bf16 {vr(CA,4)}, {vr(PF+16,4)}, {vr(BM,8)}, v{vIDX}
    """)

    def u_ool():
        a.label("u_mretry")
        a(f"""
        s_sub_u32 s{sBUD}, s{sBUD}, 1
        s_cmp_lt_i32 s{sBUD}, 0
        s_cbranch_scc1 u_mok
        """)
        u_mloads()
        a("s_branch u_mchk")
    DEFERRED.append(u_ool)
    a.nop(2)
    stamp(a, 4)
    a.nop(6)
    a(f"""
    v_permlane32_swap_b32 v{CA}, v{CA+1}
    v_permlane32_swap_b32 v{CA+2}, v{CA+3}
    v_add_f32 v{CA}, v{CA}, v{CA+1}
    v_add_f32 v{CA+1}, v{CA+2}, v{CA+3}
    ds_write_b64 v{vWr}, {vr(CA,2)}
    s_waitcnt lgkmcnt(0)
    s_barrier
    s_cmp_lg_u32 s{sW}, 0
    s_cbranch_scc1 u_next
    ds_read2_b32 v[124:125], v{vRd} offset0:0 offset1:2
    ds_read2_b32 v[126:127], v{vRd} offset0:128 offset1:130
    ds_read2_b32 v[128:129], v14 offset0:0 offset1:2
    ds_read2_b32 v[130:131], v14 offset0:128 offset1:130
    s_add_u32 s40, s{sMEM}, 32768
    s_waitcnt lgkmcnt(2)
    v_add_f32 v124, v124, v126
    v_add_f32 v125, v125, v127
    s_waitcnt lgkmcnt(0)
    v_add_f32 v128, v128, v130
    v_add_f32 v129, v129, v131
    v_add_f32 v124, v124, v128
    v_add_f32 v125, v125, v129
    v_cvt_pk_bf16_f32 v124, v124, v125
    v_min_u32 v124, -2, v124
    buffer_store_dword v124, v15, {WS}, {"s40" if VMFIRST else "s"+str(sMEM)} offen sc1
    buffer_store_dword v124, v15, {WS}, {"s"+str(sMEM) if VMFIRST else "s40"} offen sc1
    """)
    a.label("u_next")
    stamp(a, 5)
    stamp_flush(a, 6, 191)
    a(f"""
    s_add_u32 s{sUX}, s{sUX}, {UX_STEP}
    s_add_u32 s{sSTEP}, s{sSTEP}, 1
    s_cmp_lt_u32 s{sSTEP}, 63
    s_cbranch_scc1 u_loop
    s_endpgm
    """)
    flush_deferred(a)

    vH = 14
    sHOFF, sHBUF, sOUT, sFM = 37, 38, 39, 56

    def publish(role, sval, wv=3):
        lab = a.newlabel("pub")
        a(f"""
        s_cmp_lg_u32 s{sW}, {wv}
        s_cbranch_scc1 {lab}
        v_mov_b32 v3, {sval}
        s_mov_b64 exec, 1
        buffer_store_dword v3, off, {WS}, s{sFT} sc1
        s_mov_b64 exec, -1
        {lab}:
        """)

    from gen_boot import dbg_wait_wg, DBG_INIT, DBG_LN, N_INITW

    def ln_ready():
        top, done = a.newlabel("lr"), a.newlabel("lrd")
        a(f"""
        s_add_u32 s45, s{sSTEP}, 1
        s_and_b32 s46, s45, 7
        s_cmp_lg_u32 s46, 0
        s_cbranch_scc1 {done}
        s_cmp_ge_u32 s45, 64
        s_cbranch_scc1 {done}
        s_lshr_b32 s45, s45, 1
        {top}:
        buffer_load_dword v3, off, {DBG}, s45 offset:{DBG_LN} sc1
        s_waitcnt vmcnt(0)
        v_readfirstlane_b32 s44, v3
        s_sub_u32 s{sBUD}, s{sBUD}, 1
        s_cmp_lt_i32 s{sBUD}, 0
        s_cbranch_scc1 {done}
        s_cmp_ge_u32 s44, 1
        s_cbranch_scc1 {done}
        s_sleep 4
        s_branch {top}
        {done}:
        """)

    def loop_top():
        a(f"""
        v_add_u32 v{vH}, s{sHBUF}, v{vL16}
        s_sub_u32 s{sHBUF}, 40960, s{sHBUF}
        s_add_u32 s{sHOFF}, s{sHOFF}, 40960
        """)
        ln_ready()
        dmal_init(a, sHOFF, sHBUF)

    a.label("role_t")
    a(f"""
    s_sub_u32 s{sID}, s{sID}, 112
    s_mov_b32 s{sHOFF}, 0x{WS_H1F:x}
    s_mov_b32 s{sHBUF}, 0
    """)
    load_wqk(a, depth=TDEPTH)
    dbg_wait_wg(a, [(DBG_INIT, 1), (DBG_LN, 1)], 3, sleep=2)
    dmal_init(a, sHOFF, sHBUF)
    for k in range(10):
        dmal_one(a)
    a(f"""
    s_lshl_b32 s{sOUT}, s{sID}, 13
    s_lshl_b32 s40, s{sW}, 10
    s_add_u32 s{sOUT}, s{sOUT}, s40
    s_add_u32 s{sOUT}, s{sOUT}, 0x{WS_KX:x}
    s_lshl_b32 s{sFT}, s{sID}, 7
    s_add_u32 s{sFT}, s{sFT}, 0x{flag(FL_T):x}
    s_waitcnt vmcnt(0)
    s_barrier
    """)
    a.label("t_loop")
    stamp(a, 0)
    loop_top()
    DMK = [0, 1, 3, 4, 6, 7, 9, 10, 12, 13]

    def hook_t(ks):
        if ks in DMK:
            dmal_one(a)
        if ks == 5:
            a("s_waitcnt vmcnt(4)")
            a("s_barrier")
            publish("t", f"s{sSTEP}")
    dense_proj(a, vH, True, hook_t)
    stamp(a, 1)
    a.nop(4)
    PK = 128
    a(f"s_add_u32 s40, s{sOUT}, 0x{WS_QX-WS_KX:x}")
    for mat in (0, 1):
        for mt in range(2):
            tm = PK + (mat*2+mt) * 4
            for tt in range(2):
                b = TACC + ((mat*2+tt)*2 + mt) * 4
                a(f"v_cvt_pk_bf16_f32 v{tm+2*tt}, v{b}, v{b+1}")
                a(f"v_cvt_pk_bf16_f32 v{tm+2*tt+1}, v{b+2}, v{b+3}")
    a("s_waitcnt vmcnt(0)")
    for mat in (1, 0):
        for mt in range(2):
            tm = PK + (mat*2+mt) * 4
            so = "s40" if mat == 0 else f"s{sOUT}"
            a(f"buffer_store_dwordx4 {vr(tm,4)}, v{vL16+mt}, {WS}, {so} offen sc1")
    a(f"""
    s_add_u32 s{sOUT}, s{sOUT}, {32*8192}
    s_cmp_lg_u32 s{sSTEP}, 0
    s_cbranch_scc1 t_ne
    s_waitcnt vmcnt(0)
    s_barrier
    """)
    publish("t", "1")
    a("t_ne:")
    a("s_barrier")
    stamp(a, 2)
    stamp_flush(a, 3, 1)
    a(f"""
    s_add_u32 s{sSTEP}, s{sSTEP}, 1
    s_cmp_lt_u32 s{sSTEP}, 64
    s_cbranch_scc1 t_loop
    s_waitcnt vmcnt(0)
    s_barrier
    """)
    publish("t", f"s{sSTEP}")
    a(f"""
    {"s_endpgm" if NOTOK else ""}
    s_mov_b32 s{sSTEP}, 0
    s_add_u32 s97, s97, {300*72*32}
    s_branch {"help_c" if HELP else "help_f"}
    help_f:
    s_cmp_ge_u32 s{sID}, 27
    s_cbranch_scc1 t_a
    s_add_u32 s{sID}, s{sID}, 212
    s_mov_b32 s100, {F1S+1}
    s_branch role_f
    t_a:
    s_add_u32 s{sID}, s{sID}, {176-27}
    s_mov_b32 s100, {SENT0+1}
    s_branch role_a
    """)

    VF, AC2 = 16, 128
    LDS_V = LDS_T
    a.label("role_vo")
    a(f"""
    s_sub_u32 s{sID}, s{sID}, 144
    s_load_dwordx4 s[64:67], s[0:1], {KA_WV}
    s_mov_b32 s{sHOFF}, 0x{WS_H1F:x}
    s_mov_b32 s{sHBUF}, 0
    s_waitcnt lgkmcnt(0)
    """)
    srd(a, 16, 64, D * H * E * 2)
    srd(a, 20, 66, D * H * E * 2)
    load_wv_wo(a)
    dbg_wait_wg(a, [(DBG_INIT, 1), (DBG_LN, 1)], 3, sleep=2)
    dmal_init(a, sHOFF, sHBUF)
    for k in range(10):
        dmal_one(a)
    a(f"""
    s_mul_i32 s{sOUT}, s{sID}, 40960
    s_mul_i32 s40, s{sW}, 10240
    s_add_u32 s{sOUT}, s{sOUT}, s40
    s_add_u32 s{sOUT}, s{sOUT}, 0x{WS_UX:x}
    s_lshl_b32 s{sFT}, s{sID}, 7
    s_add_u32 s{sFT}, s{sFT}, 0x{flag(FL_VO):x}
    s_lshl_b32 s40, s{sW}, 10
    s_add_u32 s40, s40, 0x{LDS_V:x}
    v_add_u32 v12, s40, v{vL16}
    v_add_u32 v13, 0x{LDS_V:x}, v{vL16}
    s_waitcnt vmcnt(0)
    s_barrier
    """)
    a.label("vo_loop")
    stamp(a, 0)
    loop_top()

    def hook_v(ks):
        if ks % 2 == 0:
            dmal_one(a)
    dense_proj(a, vH, True, hook_v, tiles=(0, 1))
    a.nop(6)
    for mt in range(2):
        for tt in range(2):
            b = TACC + (tt*2 + mt) * 4
            a(f"v_cvt_pk_bf16_f32 v{168+4*mt+2*tt}, v{b}, v{b+1}")
            a(f"v_cvt_pk_bf16_f32 v{168+4*mt+2*tt+1}, v{b+2}, v{b+3}")
        a(f"ds_write_b128 v12, {vr(168+4*mt,4)} offset:{mt*4096}")
    a(f"""
    s_waitcnt vmcnt(10) lgkmcnt(0)
    s_barrier
    """)
    stamp(a, 1)
    for k in range(4):
        for mt in range(2):
            a(f"ds_read_b128 {vr(VF+(mt*4+k)*4,4)}, v13 offset:{mt*4096+k*1024}")
    publish("vo", f"s{sSTEP}")
    for hb in range(2):
        for k in range(4):
            if hb == 0:
                a(f"s_waitcnt lgkmcnt({6-2*k})")
            for j5 in range(5):
                for mt in range(2):
                    acc = vr(AC2 + (j5*2+mt)*4, 4) if hb == 0 else vr(TACC + (j5*2+mt)*4, 4)
                    a(f"v_mfma_f32_16x16x32_bf16 {acc}, {vr(VF+(mt*4+k)*4,4)}, {widx(160+((hb*5+j5)*4+k)*4)}, {'0' if k == 0 else acc}")
                if hb == 1 and k < 3 and j5 < 2 and (k*2+j5) < 5:
                    q = k*2 + j5
                    tm = 168 + (q % 2) * 4
                    for mt in range(2):
                        b = AC2 + (q*2+mt)*4
                        a(f"v_cvt_pk_bf16_f32 v{tm+2*mt}, v{b}, v{b+1}")
                        a(f"v_cvt_pk_bf16_f32 v{tm+2*mt+1}, v{b+2}, v{b+3}")
                    r, o = l16(q * 1024)
                    a(f"buffer_store_dwordx4 {vr(tm,4)}, {r}, {WS}, s{sOUT} offen offset:{o} sc1")
    for q in range(5):
        tm = 176 + (q % 2) * 4
        for mt in range(2):
            b = TACC + (q*2+mt)*4
            a(f"v_cvt_pk_bf16_f32 v{tm+2*mt}, v{b}, v{b+1}")
            a(f"v_cvt_pk_bf16_f32 v{tm+2*mt+1}, v{b+2}, v{b+3}")
        r, o = l16((5+q) * 1024)
        a(f"buffer_store_dwordx4 {vr(tm,4)}, {r}, {WS}, s{sOUT} offen offset:{o} sc1")
    a(f"""
    s_add_u32 s{sOUT}, s{sOUT}, {UX_STEP}
    s_cmp_lg_u32 s{sSTEP}, 0
    s_cbranch_scc1 vo_ne
    s_waitcnt vmcnt(0)
    s_barrier
    """)
    publish("vo", "1")
    a(f"""
    vo_ne:
    s_waitcnt vmcnt(10)
    s_barrier
    """)
    stamp(a, 2)
    stamp_flush(a, 3, 1)
    a(f"""
    s_add_u32 s{sSTEP}, s{sSTEP}, 1
    s_cmp_lt_u32 s{sSTEP}, 64
    s_cbranch_scc1 vo_loop
    s_waitcnt vmcnt(0)
    s_barrier
    """)
    publish("vo", f"s{sSTEP}")
    a(f"""
    {"s_endpgm" if NOTOK else ""}
    s_mov_b32 s{sSTEP}, 0
    s_add_u32 s97, s97, {300*72*32}
    s_branch {"help_f" if HELP else "help_c"}
    help_c:
    s_cmp_ge_u32 s{sID}, {NC}
    s_cbranch_scc1 vo_a
    s_add_u32 s{sID}, s{sID}, {184+NC}
    s_branch role_c
    vo_a:
    s_cmp_ge_u32 s{sID}, {NC+3}
    s_cbranch_scc1 r_end
    s_add_u32 s{sID}, s{sID}, {176+5-NC}
    s_mov_b32 s100, {SENT0+1}
    s_branch role_a
    """)

    KF2, QF2, KMF2, SA2, Y0 = 16, 48, 80, 96, 120
    sKXR, sKM = 33, 57
    a.label("role_al")
    a(f"""
    s_sub_u32 s40, s{sID}, 176
    s_sub_u32 s41, s{sID}, 196
    s_cmp_lt_u32 s{sID}, 184
    s_cselect_b32 s40, s40, s41             ; 0..15
    s_lshl_b32 s40, s40, 1
    s_and_b32 s41, s{sW}, 1
    s_add_u32 s{sID}, s40, s41
    s_cmp_ge_u32 s{sW}, 2
    s_cbranch_scc1 role_l
    s_branch role_a2
    """)
    a.label("role_a")
    a(f"""
    s_sub_u32 s{sID}, s{sID}, 176
    s_lshl_b32 s{sID}, s{sID}, 2
    s_add_u32 s{sID}, s{sID}, s{sW}         ; head
    role_a2:
    v_bfe_u32 v10, v{vLANE}, 3, 1           ; b
    v_and_b32 v11, 7, v{vLANE}              ; i
    v_lshrrev_b32 v15, 4, v{vLANE}          ; g
    v_lshlrev_b32 v8, 7, v15
    v_lshl_add_u32 v8, v11, 4, v8
    v_mul_u32_u24 v10, {PB_RG}, v10
    v_lshl_add_u32 v{vST}, v11, 4, v10      ; + i*16
    v_and_b32 v11, 1, v15
    v_lshl_add_u32 v{vST}, v11, 3, v{vST}   ; + (g&1)*8
    v_lshrrev_b32 v11, 1, v15
    v_lshl_add_u32 v{vSM}, v11, 7, v{vST}
    v_lshl_add_u32 v{vST}, v11, 8, v{vST}
    v_and_b32 v10, 15, v{vLANE}
    v_lshlrev_b32 v11, 2, v15               ; 4g
    """)
    for r in range(4):
        a(f"v_add_u32 v15, {r}, v11")
        a(f"v_cmp_le_u32 s[{64+r*2}:{65+r*2}], v15, v10")
    a(f"""
    s_mov_b32 s54, 0
    s_mov_b32 s55, -1
    s_lshl_b32 s{sPB}, s{sID}, 9
    s_add_u32 s{sPB}, s{sPB}, 0x{WS_PT:x}
    ; mem part offset relative to token part: 16384 + (2(h/4) + h%2)*256 + ((h>>1)&1)*4 - h*512
    s_lshr_b32 s40, s{sID}, 2
    s_lshl_b32 s40, s40, 1
    s_and_b32 s41, s{sID}, 1
    s_add_u32 s40, s40, s41
    s_lshl_b32 s40, s40, 8
    s_bfe_u32 s41, s{sID}, 0x10001
    s_lshl_b32 s41, s41, 2
    s_add_u32 s40, s40, s41
    s_add_u32 s40, s40, 16384
    s_lshl_b32 s41, s{sID}, 9
    s_sub_u32 s61, s40, s41
    s_lshl_b32 s58, s{sID}, 7
    s_add_u32 s59, s58, 0x{flag(FL_A):x}
    s_add_u32 s58, s58, 0x{flag(FL_KM):x}
    s_mov_b32 s60, 0
    s_lshl_b32 s{sKXR}, s{sID}, 13
    s_add_u32 s{sKXR}, s{sKXR}, 0x{WS_KX:x}
    s_lshl_b32 s{sKM}, s{sID}, 11
    s_add_u32 s{sKM}, s{sKM}, 0x{WS_KM:x}
    s_lshl_b32 s{sFT}, s{sID}, 7
    s_add_u32 s{sFT}, s{sFT}, 0x{flag(FL_T):x}
    s_mov_b32 s{sSEEN}, 0
    s_mov_b32 s{sSTEP}, s100
    s_cmp_eq_u32 s100, 0
    s_cbranch_scc1 a_prim
    s_add_u32 s{sPB}, s{sPB}, {(SENT0+1)*PT_STEP}
    s_add_u32 s{sKXR}, s{sKXR}, {(SENT0+1)*32*8192}
    s_add_u32 s{sKM}, s{sKM}, {(SENT0+1)*32*2048}
    s_mov_b32 s59, 0x{flag(FL_DUMMY):x}
    """)
    wait_flag(a, 58, 100, 60, Y0, sleep=32)
    a.label("a_prim")

    KQ = [(16, 48), (144, 176)]

    def a_kq(need, buf):
        wait_flag(a, sFT, need, sSEEN, Y0+1, sleep=8)
        a(f"s_add_u32 s40, s{sKXR}, 0x{WS_QX-WS_KX:x}")
        for f in range(8):
            r, o = l16(f * 1024)
            a(f"buffer_load_dwordx4 {vr(KQ[buf][0]+4*f,4)}, {r}, {WS}, s{sKXR} offen offset:{o} sc1")
        for f in range(8):
            r, o = l16(f * 1024)
            a(f"buffer_load_dwordx4 {vr(KQ[buf][1]+4*f,4)}, {r}, {WS}, s40 offen offset:{o} sc1")
        a(f"s_add_u32 s{sKXR}, s{sKXR}, {32*8192}")

    def a_km():
        for k in range(4):
            a(f"buffer_load_dwordx4 {vr(KMF2+4*k,4)}, v8, {WS}, s{sKM} offen offset:{k*512} sc1")
    a(f"s_add_u32 s{sNEED}, s{sSTEP}, 1")
    a_kq(sNEED, 0)
    a("s_mov_b32 s47, 0")
    a.label("a_loop")
    for buf in range(2):
        KF2, QF2 = KQ[buf]
        stamp(a, 0)
        a(f"""
        s_add_u32 s{sNEED}, s{sSTEP}, 1
        s_cmp_eq_u32 s47, 1
        s_cbranch_scc1 a_chk{buf}
        s_cmp_ge_u32 s{sSTEP}, {SENT0}
        s_cbranch_scc1 a_kml{buf}
        """)
        wait_flag(a, 58, sNEED, 60, Y0, sleep=4)
        a.label(f"a_kml{buf}")
        a_km()
        a.label(f"a_chk{buf}")
        stamp(a, 1)
        a("s_waitcnt vmcnt(0)")
        vmax_chain(a, Y0, range(KMF2, KMF2+16))
        poll_fail(a, f"a_kml{buf}", sleep=3)
        stamp(a, 2)
        a(f"""
        s_cmp_ge_u32 s{sSTEP}, {SENT0}
        s_cselect_b32 s46, 2, 1
        s_cselect_b32 s45, {32*8192}, 0
        s_add_u32 s{sKXR}, s{sKXR}, s45
        s_add_u32 s45, s{sNEED}, s46
        s_min_u32 s45, s45, 64
        """)
        for qt in range(2):
            for k in range(4):
                for mt in range(qt + 1):
                    acc = vr(SA2+12*qt+4*mt, 4)
                    a(f"v_mfma_f32_16x16x32_bf16 {acc}, {vr(KF2+(mt*4+k)*4,4)}, {vr(QF2+(qt*4+k)*4,4)}, {'0' if k==0 else acc}")
                acc = vr(SA2+12*qt+8, 4)
                a(f"v_mfma_f32_16x16x32_bf16 {acc}, {vr(KMF2+4*k,4)}, {vr(QF2+(qt*4+k)*4,4)}, {'0' if k==0 else acc}")
        for qt in range(2):
            SB = SA2 + 12*qt
            if qt == 0:
                a.nop(2)
            a(f"""
            v_cndmask_b32 v{SB+8}, v{SB+8}, v{SB+10}, s[54:55]
            v_cndmask_b32 v{SB+9}, v{SB+9}, v{SB+11}, s[54:55]
            """)
            xs = [SB + k for k in range(4*(qt+1))] + [SB+8, SB+9]
            round_scale(a, xs, Y0+8, 50)
            a(f"v_mov_b32 v{Y0}, 0xce6e6b28")
            for k in range(4):
                a(f"v_cndmask_b32 v{SB+4*qt+k}, v{Y0}, v{SB+4*qt+k}, s[{64+2*k}:{65+2*k}]")
            softmax(a, xs, Y0+6, Y0+7, 51, False)
            O = 208 + 8*qt
            for half in range(2):
                for m in range(2):
                    if m <= qt:
                        a(f"v_cvt_pk_bf16_f32 v{O+2*half+m}, v{SB+4*m+2*half}, v{SB+4*m+2*half+1}")
                    else:
                        a(f"v_mov_b32 v{O+2*half+m}, 0")
            a(f"v_cvt_pk_bf16_f32 v{O+4}, v{SB+8}, v{SB+9}")
            for k in range(5):
                a(f"v_min_u32 v{O+k}, -2, v{O+k}")
            a(f"s_add_u32 s40, s{sPB}, {qt*2*PB_RG}")
            for half in range(2):
                a(f"buffer_store_dwordx2 {vr(O+2*half,2)}, v{vST}, {WS}, s40 offen offset:{half*128} sc1")
            a(f"s_add_u32 s40, s40, s61")
            a(f"buffer_store_dword v{O+4}, v{vSM}, {WS}, s40 offen sc1")
            if qt == 0:
                a(f"buffer_load_dword v{Y0+2}, off, {WS}, s58 sc1")
                a_kq(45, 1 - buf)
        a(f"""
        s_lshl_b32 s40, s46, 16
        s_add_u32 s{sKM}, s{sKM}, s40
        s_mul_i32 s40, s46, {PT_STEP}
        s_add_u32 s{sPB}, s{sPB}, s40
        v_mov_b32 v{Y0}, s{sNEED}
        s_waitcnt vmcnt(19)
        v_readfirstlane_b32 s60, v{Y0+2}
        s_add_u32 s{sSTEP}, s{sSTEP}, s46
        s_mov_b32 s47, 0
        s_nop 1
        s_cmp_le_u32 s60, s{sSTEP}
        s_cbranch_scc1 a_nk{buf}
        s_mov_b32 s47, 1
        """)
        a_km()
        a(f"""
        s_waitcnt vmcnt(4)
        s_branch a_pub{buf}
        a_nk{buf}:
        s_waitcnt vmcnt(0)
        a_pub{buf}:
        s_mov_b64 exec, 1
        buffer_store_dword v{Y0}, off, {WS}, s59 sc1
        s_mov_b64 exec, -1
        """)
        stamp(a, 3)
        if STAMP:
            a(f"s_sub_u32 s{sSTEP}, s{sSTEP}, s46")
            stamp_flush(a, 4, 1)
            a(f"s_add_u32 s{sSTEP}, s{sSTEP}, s46")
        a(f"""
        s_cmp_ge_u32 s{sSTEP}, 64
        s_cbranch_scc1 r_end
        """)
    a("s_branch a_loop")

    a.label("role_l")
    if "l" in KILL:
        a("s_endpgm")
    ln_setup(a, 3, 4, False)
    a(f"""
    s_mov_b32 s40, s{sID}                   ; row
    {"s_sub_u32 s3, s3, 2" if STAMP else ""}
    {"s_add_u32 s97, s97, " + str(100*72*32) if STAMP else ""}
    s_mul_i32 s46, s40, 1280
    s_add_u32 s47, s46, 0x{WS_H2F:x}
    s_lshl_b32 s48, s40, 7
    s_add_u32 s48, s48, 0x{flag(FL_L):x}
    s_mov_b32 s49, 0x{flag(FL_CC):x}
    v_lshlrev_b32 v9, 1, v{L_DST}
    v_cndmask_b32 v9, v{L_DST}, v9, s[76:77]
    s_mov_b32 s40, {WS_MOD + 2*2560}
    s_mov_b32 s52, 20
    """)
    GA = 48
    for h in range(2):
        a(f"buffer_load_dwordx4 {vr(GA+8*h,4)}, v9, {WS}, s40 offen offset:{h*1280} sc1")
        a(f"buffer_load_dwordx4 {vr(GA+8*h+4,4)}, v9, {WS}, s40 offen offset:{h*1280+16} sc1")
    a("s_mov_b32 s54, 0")
    a.label("l_loop")
    stamp(a, 0)
    a(f"""
    s_add_u32 s45, s{sSTEP}, 1
    s_add_u32 s41, s46, 0x{WS_ATT:x}
    s_add_u32 s42, s46, 0x{WS_X1:x}
    s_mov_b32 s53, 0
    s_cmp_eq_u32 s54, 1
    s_cbranch_scc1 l_chk
    """)
    ln_load(a, XS, 46, "", False, raw=24)
    a(f"""
    s_cmp_ge_u32 s{sSTEP}, {SENT0}
    s_cbranch_scc1 l_ld
    """)
    wait_flag(a, 49, 52, 53, 16, sleep=3)
    a.label("l_ld")
    ln_load(a, WS, 41, "sc1", False)
    a(f"buffer_load_dword v17, off, {WS}, s49 offset:128 sc1")
    a("s_waitcnt vmcnt(0)")
    a.label("l_chk")
    stamp(a, 1)
    vmax_chain(a, 16, range(L_RAW, L_RAW+8))
    poll_fail(a, "l_ld", sleep=3)
    a("v_readfirstlane_b32 s55, v17")
    ln_unpack(a, False)
    for j in range(8):
        x0, x1 = L_X + 2*j, L_X + 2*j + 1
        a(f"""
        v_mul_f32 v{x0}, v{x0}, v{GA+2*j}
        v_mul_f32 v{x1}, v{x1}, v{GA+2*j+1}
        v_cvt_pk_bf16_f32 v{L_T}, v{x0}, v{x1}
        v_lshlrev_b32 v{x0}, 16, v{L_T}
        v_and_b32 v{x1}, 0xffff0000, v{L_T}
        v_lshlrev_b32 v{L_T}, 16, v{24+j}
        v_and_b32 v{L_T2}, 0xffff0000, v{24+j}
        v_add_f32 v{x0}, v{x0}, v{L_T}
        v_add_f32 v{x1}, v{x1}, v{L_T2}
        v_cvt_pk_bf16_f32 v{32+j}, v{x0}, v{x1}
        v_lshlrev_b32 v{x0}, 16, v{32+j}
        v_and_b32 v{x1}, 0xffff0000, v{32+j}
        """)
    for j in range(8):
        a(f"v_min_u32 v{32+j}, -2, v{32+j}")
    a(f"buffer_store_dwordx4 v[32:35], v{L_DST}, {WS}, s42 offen sc1")
    a(f"buffer_store_dwordx4 v[36:39], v{L_DST}, {WS}, s42 offen offset:640 sc1")
    a(f"""
    s_mov_b32 s54, 0
    s_cmp_ge_u32 s{sSTEP}, {SENT0-1}
    s_cselect_b32 s55, 20, s55
    s_cmp_lt_u32 s55, 20
    s_cbranch_scc1 l_nopf
    s_cmp_ge_u32 s{sSTEP}, 63
    s_cbranch_scc1 l_nopf
    s_mov_b32 s54, 1
    s_add_u32 s40, s46, {32*1280}
    s_add_u32 s41, s41, {32*1280}
    """)
    ln_load(a, XS, 40, "", False, raw=24)
    ln_load(a, WS, 41, "sc1", False)
    a(f"buffer_load_dword v17, off, {WS}, s49 offset:256 sc1")
    a.label("l_nopf")
    ln_compute_store(a, 47)
    a("s_add_u32 s49, s49, 128")
    stamp(a, 2)
    a(f"""
    v_mov_b32 v16, s45
    s_add_u32 s46, s46, {32*1280}
    s_add_u32 s47, s47, {32*1280}
    s_waitcnt vmcnt(0)
    s_mov_b64 exec, 1
    buffer_store_dword v16, off, {WS}, s48 sc1
    s_mov_b64 exec, -1
    """)
    stamp(a, 3)
    stamp_flush(a, 4, 1)
    a(f"""
    s_add_u32 s{sSTEP}, s{sSTEP}, 1
    s_cmp_lt_u32 s{sSTEP}, 64
    s_cbranch_scc1 l_loop
    s_endpgm
    """)

    vPT, vBM, vXS = 240, 239, 242
    sUXR, sPFC = 33, 59
    sA, sV = 61, 62
    PFB = [16, 96]
    BMB = [128, 144]
    CAC = 176
    from gen_boot import arrive
    a.label("role_c")
    if "c" in KILL:
        a("s_endpgm")
    a(f"s_sub_u32 s{sID}, s{sID}, 184")
    setup_p_load_addrs(a, vPA, vPB, vBM)
    a(f"""
    s_lshl_b32 s40, s{sW}, 12
    v_add_u32 v{vPT}, s40, v{vL16}
    v_add_u32 v{vRd}, s40, v{vL16}
    s_lshl_b32 s40, s{sW}, 10
    v_add_u32 v{vWr}, s40, v{vL16}
    v_add_u32 v241, 16384, v{vWr}
    v_and_b32 v10, 15, v{vLANE}             ; n
    v_lshrrev_b32 v11, 5, v{vLANE}          ; pr
    v_lshl_add_u32 v10, v11, 4, v10
    v_bfe_u32 v11, v{vLANE}, 4, 1
    v_lshlrev_b32 v11, 2, v11
    s_lshl_b32 s40, s{sW}, 3
    v_add_u32 v11, s40, v11
    v_mul_u32_u24 v11, 1280, v11
    v_lshl_add_u32 v{vXS}, v10, 1, v11
    v_and_b32 v10, 1, v{vLANE}
    v_mov_b32 v11, 0x7ffffff0
    v_cmp_ne_u32 vcc, 0, v10
    v_lshlrev_b32 v243, 7, v{vLANE}
    v_mov_b32 v232, 0
    v_cndmask_b32 v{vXS}, v{vXS}, v11, vcc
    v_mov_b32 v231, 20
    s_lshl_b32 s40, s{sW}, 10
    s_add_u32 s{sFT}, s40, 0x{flag(FL_UF):x}
    s_add_u32 s{sA}, s40, 0x{flag(FL_A):x}
    s_add_u32 s{sV}, s40, 0x{flag(FL_VO):x}
    s_mov_b32 s{sFM}, 0x{flag(FL_MEM):x}
    s_mul_i32 s73, s{sW}, {8*40960}
    s_add_u32 s73, s73, 0x{WS_UX:x}
    s_add_u32 s76, s{sID}, {CT0}
    s_cmp_ge_u32 s{sID}, {NC}
    s_cselect_b32 s77, s76, s{sID}
    s_mov_b32 s78, s77
    s_mov_b32 s79, s77
    """)

    TIX = {57: 77, 60: 78, 68: 79}

    def dec(ss, sk):
        t = TIX[ss]
        a(f"""
        s_mul_i32 s{ss}, s{t}, 3277
        s_lshr_b32 s{ss}, s{ss}, 16
        s_mul_i32 s40, s{ss}, 20
        s_sub_u32 s{sk}, s{t}, s40
        """)

    def adv(ss, sk):
        t = TIX[ss]
        a(f"""
        s_add_u32 s40, s{t}, {NC}
        s_cmp_lt_u32 s40, {CT0}
        s_cselect_b32 s40, s40, s76
        s_add_u32 s41, s{t}, {2*NC}
        s_cmp_lt_u32 s{t}, {CT0}
        s_cselect_b32 s{t}, s40, s41
        """)
        dec(ss, sk)
    dec(57, 58)
    dec(60, 63)
    dec(68, 72)

    def c_needs():
        a(f"s_add_u32 s44, s60, 1")

    def c_offs():
        a(f"""
        s_mul_i32 s{sPB}, s60, {PT_STEP}
        s_add_u32 s{sPB}, s{sPB}, 0x{WS_PT:x}
        s_add_u32 s64, s{sPB}, {PB_RG}
        s_add_u32 s65, s{sPB}, {2*PB_RG}
        s_add_u32 s66, s{sPB}, {3*PB_RG}
        s_mul_i32 s67, s60, {UM_STEP}
        s_lshl_b32 s40, s63, 9
        s_add_u32 s67, s67, s40
        s_add_u32 s67, s67, 0x{WS_UMC:x}
        s_add_u32 s69, s67, 20480
        s_add_u32 s70, s67, 40960
        s_add_u32 s71, s67, 61440
        """)

    def c_flag_loads():
        a(f"""
        s_mov_b64 exec, 255
        buffer_load_dword v233, v243, {WS}, s{sA} offen sc1
        buffer_load_dwordx4 v[224:227], v243, {WS}, s{sFT} offen sc1
        s_mov_b64 exec, -1
        """)

    def c_test(fail):
        a(f"""
        v_min3_u32 v234, v233, v224, v225
        v_min3_u32 v234, v234, v226, v227
        s_mov_b64 exec, 255
        v_cmp_gt_u32 vcc, s44, v234
        s_mov_b64 exec, -1
        s_cbranch_vccnz {fail}
        """)

    def c_block():
        c_needs()
        top, retry, done = a.newlabel("cb"), a.newlabel("cb"), a.newlabel("cb")
        a.label(top)
        c_flag_loads()
        a("s_waitcnt vmcnt(0)")
        sk = a.newlabel("cb")
        a(f"""
        s_cmp_lt_u32 s60, {SENT0}
        s_cbranch_scc1 {sk}
        v_mov_b32 v233, 64
        {sk}:
        """)
        c_test(retry)
        a(f"s_branch {done}")
        a.label(retry)
        a(f"""
        s_sub_u32 s{sBUD}, s{sBUD}, 1
        s_cmp_lt_i32 s{sBUD}, 0
        s_cbranch_scc1 {done}
        s_sleep 3
        s_branch {top}
        """)
        a.label(done)

    def c_load_list(buf):
        L = []
        for rg in range(4):
            so = [sPB, 64, 65, 66][rg]
            PF = PFB[buf] + 20*rg
            for q in range(4):
                L.append(f"buffer_load_dwordx4 {vr(PF+q*4,4)}, v{vPT}, {WS}, s{so} offen offset:{q*1024} sc1")
            L.append(f"buffer_load_dwordx4 {vr(PF+16,4)}, v241, {WS}, s{so} offen sc1")
        for j in range(4):
            for pr in range(2):
                L.append(f"buffer_load_dwordx2 {ar(BMB[buf]+pr*8+2*j,2)}, v{vBM}, {WS}, s{[67,69,70,71][j]} offen offset:{pr*256} sc1")
        return L

    def c_ux(buf, tail_wait=False):
        ok, skip, end = a.newlabel("cux"), a.newlabel("cux"), a.newlabel("cux")
        a(f"""
        s_cmp_ge_u32 s68, 64
        s_cbranch_scc1 {skip}
        s_add_u32 s45, s68, 1
        s_mov_b64 exec, 255
        v_cmp_gt_u32 vcc, s45, v232
        s_mov_b64 exec, -1
        s_cbranch_vccz {ok}
        """)
        wait_all(a, 8, 243, sV, 45, 232)
        a.label(ok)
        a(f"""
        s_mul_i32 s{sUXR}, s68, {UX_STEP}
        s_lshl_b32 s40, s72, 11
        s_add_u32 s{sUXR}, s{sUXR}, s40
        s_add_u32 s{sUXR}, s{sUXR}, s73
        """)
        for hh in range(8):
            for pr in range(2):
                a(f"buffer_load_dwordx4 {ar(buf*64+pr*32+hh*4,4)}, v{vL16}, {WS}, s{sUXR} offen offset:{pr*1024} sc1")
            a(f"s_add_u32 s{sUXR}, s{sUXR}, 40960")
        if tail_wait:
            a("s_waitcnt vmcnt(16)")
            a(f"s_branch {end}")
        a.label(skip)
        if tail_wait:
            a("s_waitcnt vmcnt(0)")
        a.label(end)
        adv(68, 72)

    def c_burst(buf):
        c_block()
        c_offs()
        top = a.newlabel("cbl")
        a.label(top)
        for x in c_load_list(buf):
            a(x)
        c_flag_loads()
        a("s_waitcnt vmcnt(0)")
        vmax_chain(a, 3, range(PFB[buf], PFB[buf]+80))
        poll_fail(a, top, sleep=4)
        adv(60, 63)

    def c_compute(buf, LL, tag):
        b = Asm()
        for r in range(32):
            b(f"v_mov_b32 v{CAC+r}, 0")
        b.nop(1)
        for q in range(5):
            for pr in range(2):
                for rg in range(4):
                    f = PFB[buf] + 20*rg + q*4
                    B = ar(buf*64+pr*32+q*8, 8) if q < 4 else ar(BMB[buf]+pr*8, 8)
                    b(f"v_smfmac_f32_16x16x64_bf16 {vr(CAC+(pr*4+rg)*4,4)}, {vr(f,4)}, {B}, v{vIDX}")
        b.nop(6)
        for rg in range(4):
            A, B = CAC + rg*4, CAC + (4+rg)*4
            for r in range(4):
                b(f"v_permlane32_swap_b32 v{A+r}, v{B+r}")
            for r in range(4):
                b(f"v_add_f32 v{A+r}, v{A+r}, v{B+r}")
            b(f"ds_write_b128 v{vWr}, {vr(A,4)} offset:{rg*4096}")
        b(f"""
        s_waitcnt lgkmcnt(0)
        s_barrier
        """)
        FT = 208
        for q in range(4):
            b(f"ds_read_b128 {vr(FT+4*q,4)}, v{vRd} offset:{q*1024}")
        b(f"""
        s_mul_i32 s74, s57, {32*1280}
        s_lshl_b32 s75, s58, 6
        s_add_u32 s74, s74, s75
        s_add_u32 s74, s74, 0x{WS_ATT:x}
        s_lshl_b32 s75, s57, 7
        s_add_u32 s75, s75, 0x{flag(FL_CC):x}
        s_waitcnt lgkmcnt(0)
        """)
        for r in range(4):
            b(f"v_add_f32 v{FT+r}, v{FT+r}, v{FT+4+r}")
            b(f"v_add_f32 v{FT+8+r}, v{FT+8+r}, v{FT+12+r}")
        for r in range(4):
            b(f"v_add_f32 v{FT+r}, v{FT+r}, v{FT+8+r}")
        b.nop(1)
        for r in range(4):
            b(f"v_mov_b32_dpp v{FT+8+r}, v{FT+r} quad_perm:[1,0,3,2] row_mask:0xf bank_mask:0xf")
        for r in range(4):
            b(f"v_cvt_pk_bf16_f32 v{FT+r}, v{FT+r}, v{FT+8+r}")
            b(f"v_min_u32 v{FT+r}, -2, v{FT+r}")
            b(f"buffer_store_dword v{FT+r}, v{vXS}, {WS}, s74 offen offset:{r*1280} sc1")
        LL = list(LL)
        acc = 0
        nld = 0
        for ln in b.lines:
            t = ln.strip()
            if t == "s_barrier":
                a(f"""
                s_cmp_lg_u32 s{sW}, 3
                s_cbranch_scc1 c_rs{tag}
                s_waitcnt vmcnt({nld})
                s_mov_b64 exec, 1
                v_cmp_eq_u32 vcc, 19, v230
                v_mov_b32 v230, 0
                s_cbranch_vccz c_rt{tag}
                buffer_store_dword v231, off, {WS}, s56 sc1
                c_rt{tag}:
                s_mov_b64 exec, -1
                c_rs{tag}:
                """)
            a.lines.append(ln)
            if not t or t.startswith(";"):
                continue
            if t.startswith("v_smfmac"):
                acc += 16
            elif t.startswith("ds_") or t.startswith("s_waitcnt") or t.startswith("s_barrier"):
                acc += 24
            elif t.startswith("buffer_store"):
                acc = 0
            else:
                acc += 4
            if acc >= C_GAP and LL and not t.startswith("v_cvt_pk_bf16_f32 v2"):
                x = LL.pop(0)
                a(x)
                nld += x.count("buffer_load")
                acc = 0
        for x in LL:
            a(x)

    a("v_mov_b32 v230, 0")
    c_ux(0)
    c_ux(1)
    c_burst(0)
    a.label("c_loop")
    for buf in range(2):
        stamp(a, 0)
        plain, join, nb = a.newlabel("cpl"), a.newlabel("cjn"), a.newlabel("cnb")
        c_needs()
        a(f"s_mov_b32 s{sPFC}, 0")
        c_test(plain)
        a(f"""
        s_cmp_ge_u32 s60, {SENT0}
        s_cbranch_scc1 {plain}
        s_mov_b32 s{sPFC}, 1
        """)
        c_offs()
        def arrive_issue(tag, resolve):
            a(f"""
            s_barrier
            s_cmp_lg_u32 s{sW}, 3
            s_cbranch_scc1 c_nf{tag}
            s_lshl_b32 s40, s57, 2
            s_add_u32 s40, s40, 0x{flag(FL_CN):x}
            s_mov_b32 s56, s75
            v_mov_b32 v230, 1
            s_mov_b64 exec, 1
            buffer_atomic_add v230, off, {WS}, s40 sc0
            """)
            if resolve:
                a(f"""
                s_waitcnt vmcnt(0)
                v_cmp_eq_u32 vcc, 19, v230
                v_mov_b32 v230, 0
                s_cbranch_vccz c_ne{tag}
                buffer_store_dword v231, off, {WS}, s56 sc1
                c_ne{tag}:
                """)
            a(f"""
            s_mov_b64 exec, -1
            c_nf{tag}:
            """)
        FLG = f"""s_mov_b64 exec, 255
        buffer_load_dword v233, v243, {WS}, s{sA} offen sc1
        buffer_load_dwordx4 v[224:227], v243, {WS}, s{sFT} offen sc1
        s_mov_b64 exec, -1"""
        c_compute(buf, c_load_list(1 - buf) + [FLG], f"x{buf}")
        adv(60, 63)
        stamp(a, 1)
        c_ux(buf, tail_wait=True)
        arrive_issue(f"a{buf}", False)
        a(f"s_branch {join}")
        a.label(plain)
        c_compute(buf, [], f"y{buf}")
        stamp(a, 1)
        a(FLG)
        a("s_waitcnt vmcnt(0)")
        arrive_issue(f"b{buf}", False)

        def resolve(tag, cnt):
            a(f"""
            s_cmp_lg_u32 s{sW}, 3
            s_cbranch_scc1 c_q{tag}
            s_waitcnt vmcnt({cnt})
            s_mov_b64 exec, 1
            v_cmp_eq_u32 vcc, 19, v230
            v_mov_b32 v230, 0
            s_cbranch_vccz c_p{tag}
            buffer_store_dword v231, off, {WS}, s56 sc1
            c_p{tag}:
            s_mov_b64 exec, -1
            c_q{tag}:
            """)
        slow = a.newlabel("csl")
        c_test(slow)
        a(f"""
        s_cmp_ge_u32 s60, {SENT0}
        s_cbranch_scc1 {slow}
        s_mov_b32 s{sPFC}, 1
        """)
        c_offs()
        LL = c_load_list(1 - buf)
        for x in LL:
            a(x)
        resolve(f"f{buf}", len(LL))
        a(FLG)
        adv(60, 63)
        c_ux(buf, tail_wait=True)
        a(f"s_branch {join}")
        a.label(slow)
        resolve(f"s{buf}", 0)
        c_ux(buf)
        a.label(join)
        adv(57, 58)
        stamp(a, 2)
        stamp_flush(a, 3, 1)
        a(f"""
        s_add_u32 s{sSTEP}, s{sSTEP}, 1
        s_cmp_ge_u32 s57, 64
        s_cbranch_scc1 r_end
        s_cmp_eq_u32 s{sPFC}, 1
        s_cbranch_scc1 {nb}
        """)
        c_burst(1 - buf)
        a.label(nb)
    a("s_branch c_loop")
    a.label("pre_boot")
    a(f"""
    v_mov_b32 v134, -1
    s_sub_u32 s40, s{sID}, 102
    s_lshl_b32 s40, s40, 21
    s_add_u32 s40, s40, 0x{WS_CRA + 0x1F0000:x}
    s_lshl_b32 s41, s{sW}, 14
    s_add_u32 s40, s40, s41
    s_mov_b32 s42, -1
    s_mov_b32 s43, -1
    s_mov_b64 exec, 1
    """)
    for k in range(3):
        for half in range(2):
            a(f"""
            s_add_u32 s41, s40, {half*8192 + (k%2)*4096 + k*1152}
            s_memtime s[44:45]
            s_waitcnt lgkmcnt(0)
            buffer_store_dword v134, off, {WS}, s41 sc1
            s_waitcnt vmcnt(0)
            buffer_load_dword v135, off, {WS}, s41 sc1
            s_waitcnt vmcnt(0)
            s_memtime s[46:47]
            s_waitcnt lgkmcnt(0)
            s_sub_u32 s46, s46, s44
            s_min_u32 s{42+half}, s{42+half}, s46
            """)
    a(f"""
    v_mov_b32 v136, s42
    v_mov_b32 v137, s43
    s_lshl_b32 s40, s{sW}, 3
    v_mov_b32 v135, s40
    ds_write_b64 v135, v[136:137]
    s_mov_b64 exec, -1
    s_waitcnt lgkmcnt(0)
    s_barrier
    v_mov_b32 v135, 0
    ds_read_b128 v[124:127], v135
    ds_read_b128 v[128:131], v135 offset:16
    s_waitcnt lgkmcnt(0)
    v_add3_u32 v124, v124, v126, v128
    v_add3_u32 v125, v125, v127, v129
    v_add_u32 v124, v124, v130
    v_add_u32 v125, v125, v131
    v_cmp_lt_u32 vcc, v125, v124
    v_mov_b32 v126, 1
    v_mov_b32 v127, 3
    v_cndmask_b32 v126, v126, v127, vcc
    {"v_mov_b32 v126, " + FORCEPOL if FORCEPOL else ""}
    s_sub_u32 s40, s{sID}, 102
    s_lshl_b32 s40, s40, 2
    s_barrier
    s_cmp_lg_u32 s{sW}, 0
    s_cbranch_scc1 boot_nrm0
    s_mov_b64 exec, 1
    buffer_store_dword v126, off, {DBG}, s40 offset:176 sc1
    s_mov_b64 exec, -1
    s_branch boot_nrm0
    """)
    from gen_boot import gen_boot
    gen_boot(a)
    from gen_f import gen_phase2
    gen_phase2(a)
    a.label("r_end")
    a("s_endpgm")
    a.label("r_code_end")
    return (L, 256, 256, max(131072, 16384*(VDEPTH+1) + 81920), kernel_desc(L, 512, 256))
```

```python
import sys
from gen_common import *
from gen_prep import gen_prep
from gen_ln import gen_ln

HEADER = open('cdna_kernels/' + NAME + '.s.ref').read().split('; Override launch geometry')[0]

DOC = """
; ------------------------------------------------------------------------------------------------
; ------------------------------------------------------------------------------------------------
"""


def build(stages):
    a = Asm()
    ks = []
    import os
    if not os.environ.get('PREPONLY'):
        from gen_r import gen_r
        ks.append(gen_r(a))
    out = HEADER
    import os
    for (L, grid, block, lds, desc) in ks:
        if os.environ.get('FINAL'):
            out += f"; @launch grid=({grid},1,1) block=({block},1,1) lds={lds}\n"
        else:
            out += f"; @launch kernel={L} grid=({grid},1,1) block=({block},1,1) lds={lds}\n"
    out += '.amdgcn_target "amdgcn-amd-amdhsa--gfx950"\n.text\n' + DOC.lstrip('\n')
    out += a.text()
    out += '.section .rodata,"a"\n'
    for (L, grid, block, lds, desc) in ks:
        out += desc
    return out


if __name__ == "__main__":
    stages = sys.argv[2].split(',') if len(sys.argv) > 2 else ['r', 'ffn']
    open(sys.argv[1], 'w').write(build(stages))
```

```python
from gen_common import *
import os
from gen_r import *

NG = 1
OUTF = os.environ.get('OUTF', '')
F2SYNC = int(os.environ.get('F2SYNC', '46'))
F2DLY = int(os.environ.get('F2DLY', '0'))
F2_POLL = int(os.environ.get('F2_POLL', '8'))
F2_GATE = int(os.environ.get('F2_GATE', '4'))


def rnd2(a, x0, x1, t):
    a(f"v_cvt_pk_bf16_f32 v{t}, v{x0}, v{x1}")
    a(f"v_lshlrev_b32 v{x0}, 16, v{t}")
    a(f"v_and_b32 v{x1}, 0xffff0000, v{t}")


def gen_phase2(a):
    sG, sJ, sSEG, sCNT, sFL, sFO = 31, 32, 33, 34, 35, 36
    vF = 9
    a.label("role_f")
    if "f" in KILL:
        a("s_endpgm")
    a(f"""
    s_load_dwordx4 s[64:67], s[0:1], {KA_WG}
    s_load_dwordx2 s[68:69], s[0:1], {KA_WD}
    s_load_dwordx2 s[70:71], s[0:1], {KA_OUT}
    v_lshlrev_b32 v{vF}, 7, v{vLANE}
    s_mov_b32 s45, 0x{flag(FL_MEM):x}
    s_mov_b32 s46, 1
    s_mov_b32 s47, 0
    s_waitcnt lgkmcnt(0)
    """)
    wait_flag(a, 45, 46, 47, 3, sleep=16)
    a(f"""
    s_cmp_ge_u32 s{sID}, 239
    s_cbranch_scc1 role_f2
    """)
    a(f"""
    s_mov_b32 s{sG}, s100
    s_sub_u32 s{sJ}, s{sID}, 212
    s_cmp_ge_u32 s{sW}, 2
    s_cselect_b32 s72, s66, s64
    s_cselect_b32 s73, s67, s65
    """)
    srd(a, 16, 72, D * F * 2)
    a(f"""
    v_lshrrev_b32 v10, 3, v{vLANE}          ; r8
    v_and_b32 v11, 7, v{vLANE}
    v_bfe_u32 v12, v10, 1, 1
    s_and_b32 s40, s{sW}, 1
    s_lshl_b32 s41, s40, 1
    v_or_b32 v12, s41, v12                  ; f2 = b1 | b3<<1
    v_lshlrev_b32 v12, 1, v12
    v_xor_b32 v11, v11, v12
    v_lshlrev_b32 v11, 4, v11
    s_lshl_b32 s41, s40, 3
    v_add_u32 v10, s41, v10
    v_mul_u32_u24 v10, {F*2}, v10
    v_add_u32 v11, v10, v11
    s_lshl_b32 s42, s{sJ}, 7                ; soffset
    s_lshr_b32 s43, s{sW}, 1
    s_mul_i32 s43, s43, 40960
    s_lshl_b32 s41, s41, 7
    s_add_u32 s43, s43, s41
    v_lshrrev_b32 v12, 4, v{vLANE}          ; g
    v_bfe_u32 v13, v{vLANE}, 2, 2           ; r
    v_and_b32 v14, 3, v{vLANE}              ; c
    v_lshl_add_u32 v15, v12, 3, v13
    v_lshlrev_b32 v15, 7, v15
    v_lshl_add_u32 v15, v14, 3, v15
    v_lshrrev_b32 v13, 1, v13
    v_and_b32 v12, 1, v12
    v_lshl_or_b32 v13, v12, 1, v13
    v_lshl_or_b32 v15, v13, 5, v15
    s_lshl_b32 s41, s40, 6                  ; (2fp)<<5
    v_xor_b32 v16, s41, v15
    v_xor_b32 v17, 32, v16
    v_add_u32 v18, 40960, v16
    v_add_u32 v19, 40960, v17
    """)
    for ph in range(2):
        a("s_mov_b32 s44, s43")
        for q in range(20):
            a(f"""
            s_mov_b32 m0, s44
            s_add_u32 s44, s44, 2048
            buffer_load_dwordx4 v11, s[16:19], s42 offen lds
            s_add_u32 s42, s42, {16*F*2}
            """)
        a("s_waitcnt vmcnt(0)")
        a("s_barrier")
        for ksl in range(10):
            for t in range(4):
                for j in range(2):
                    idx = (t * 20 + ph*10 + ksl) * 4 + 2*j
                    dst = ar(idx, 2) if idx < 256 else vr(192 + idx - 256, 2)
                    a(f"ds_read_b64_tr_b16 {dst}, v{16+t} offset:{ksl*4096+j*512}")
            a("s_waitcnt lgkmcnt(0)")
        a("s_barrier")
    sHOFF, sHBUF, sOUT, sPFD = 37, 38, 39, 46
    vH = 14
    dma_h_setup(a)
    a(f"""
    v_and_b32 v10, 7, v{vLANE}
    v_lshrrev_b32 v11, 4, v{vLANE}
    v_xor_b32 v11, v11, v10
    v_lshlrev_b32 v11, 4, v11
    v_lshl_add_u32 v11, v10, 7, v11
    v_bfe_u32 v10, v{vLANE}, 3, 1
    v_mul_u32_u24 v10, 10240, v10
    v_add_u32 v23, v10, v11
    """)
    a(f"""
    s_mov_b32 s{sSEG}, s{sG}
    s_mov_b32 s{sCNT}, 0
    s_mov_b32 s{sFL}, 0x{flag(FL_L):x}
    s_lshl_b32 s{sFO}, s{sJ}, 7
    s_lshl_b32 s40, s{sW}, 2
    s_add_u32 s{sFO}, s{sFO}, s40
    s_add_u32 s{sFO}, s{sFO}, 0x{flag(FL_F1):x}
    s_mul_i32 s{sHOFF}, s{sG}, 40960
    s_add_u32 s{sHOFF}, s{sHOFF}, 0x{WS_H2F:x}
    s_mov_b32 s{sHBUF}, 0
    s_lshl_b32 s40, s{sG}, 1
    s_lshr_b32 s41, s{sW}, 1
    s_add_u32 s40, s40, s41
    s_mul_i32 s{sOUT}, s40, {54*1024}
    s_lshl_b32 s40, s{sJ}, 1
    s_and_b32 s42, s{sW}, 1
    s_add_u32 s40, s40, s42
    s_lshl_b32 s40, s40, 10
    s_add_u32 s{sOUT}, s{sOUT}, s40
    s_add_u32 s{sOUT}, s{sOUT}, 0x{WS_ACT:x}
    s_mul_i32 s47, s41, 20480
    s_mov_b32 s57, 0xbfb8aa3b
    s_mov_b32 s{sPFD}, 0
    s_add_u32 s56, s{sSEG}, 1
    s_cmp_eq_u32 s100, 0
    s_cbranch_scc1 f1_prim
    s_add_u32 s{sFO}, s{sFO}, {(FL_F1B-FL_F1)*128}
    """)
    wait_all(a, 32, vF, sFL, sSEG, 20, sleep=32)
    a.label("f1_prim")
    wait_all(a, 32, vF, sFL, 56, 20)
    dma_h(a, sHOFF, sHBUF)
    a.label("f1_loop")
    stamp(a, 0)
    a(f"""
    v_mov_b32 v3, s{sCNT}
    s_add_u32 s40, s{sHBUF}, s47
    v_add_u32 v{vH}, s40, v23
    v_xor_b32 v13, 64, v{vH}
    s_sub_u32 s{sHBUF}, 40960, s{sHBUF}
    s_add_u32 s61, s{sSEG}, 1
    s_cmp_ge_u32 s{sSEG}, {F1S}
    s_cselect_b32 s58, 2, 1
    s_mul_i32 s40, s58, 40960
    s_add_u32 s{sHOFF}, s{sHOFF}, s40
    s_add_u32 s{sSEG}, s{sSEG}, s58
    s_add_u32 s56, s{sSEG}, 1
    s_cmp_lg_u32 s{sPFD}, 0
    s_cbranch_scc1 f1_w1
    s_waitcnt vmcnt(0)
    f1_w1:
    s_waitcnt vmcnt(2)
    s_cmp_eq_u32 s{sPFD}, 2
    s_cbranch_scc0 f1_w2
    s_waitcnt vmcnt(1)
    f1_w2:
    s_mov_b32 exec_lo, -1
    s_mov_b32 exec_hi, 0
    v_cmp_gt_u32 vcc, s56, v20
    s_mov_b64 exec, -1
    s_barrier
    """)
    stamp(a, 1)
    HF1, AC1 = 24, 40

    def rd(ks):
        a(f"ds_read_b128 {vr(HF1+(ks%4)*4,4)}, v{vH if ks % 2 == 0 else 13} offset:{(ks//2)*1024}")

    def mm(with_dma):
        for k in range(3):
            rd(k)
        for ks in range(20):
            if ks + 3 < 20:
                rd(ks + 3)
            a(f"s_waitcnt lgkmcnt({min(3, 19-ks)})")
            for t in range(4):
                acc = vr(AC1 + 4*t, 4)
                a(f"v_mfma_f32_16x16x32_bf16 {acc}, {wreg(t,ks)}, {vr(HF1+(ks%4)*4,4)}, {'0' if ks == 0 else acc}")
                if with_dma and t == 1 and ks in (0, 1, 3, 4, 6, 7, 9, 10, 12, 13):
                    dma_h_one(a)
                if with_dma and t == 1 and ks == 15:
                    a(f"""
                    s_mov_b32 exec_lo, -1
                    s_mov_b32 exec_hi, 0
                    buffer_load_dword v20, v{vF}, {WS}, s{sFL} offen sc1
                    s_mov_b64 exec, -1
                    """)
    a(f"""
    s_mov_b32 s{sPFD}, 0
    s_cbranch_vccnz f1_plain
    s_mov_b32 s{sPFD}, 1
    """)
    dma_h_init(a, sHOFF, sHBUF)
    mm(True)
    a(f"""
    s_waitcnt vmcnt(11)
    s_mov_b64 exec, 1
    buffer_store_dword v3, off, {WS}, s{sFO} sc1
    s_mov_b64 exec, -1
    s_branch f1_epi
    """)
    a.label("f1_plain")
    a(f"""
    s_mov_b32 exec_lo, -1
    s_mov_b32 exec_hi, 0
    buffer_load_dword v20, v{vF}, {WS}, s{sFL} offen sc1
    s_mov_b64 exec, -1
    """)
    mm(False)
    a(f"""
    s_waitcnt vmcnt(0)
    s_mov_b64 exec, 1
    buffer_store_dword v3, off, {WS}, s{sFO} sc1
    s_mov_b32 exec_lo, -1
    s_mov_b32 exec_hi, 0
    v_cmp_gt_u32 vcc, s56, v20
    s_mov_b64 exec, -1
    s_cbranch_vccnz f1_epi
    s_mov_b32 s{sPFD}, 2
    """)
    dma_h(a, sHOFF, sHBUF)
    a.label("f1_epi")
    stamp(a, 2)
    a.nop(4)
    O = 60
    for tt in range(2):
        g = AC1 + tt * 4
        u = AC1 + (2 + tt) * 4
        for hf in range(2):
            g0, g1, u0, u1 = g+2*hf, g+2*hf+1, u+2*hf, u+2*hf+1
            rnd2(a, g0, g1, 64)
            rnd2(a, u0, u1, 65)
            a(f"""
            v_mul_f32 v66, s57, v{g0}
            v_mul_f32 v67, s57, v{g1}
            v_exp_f32 v66, v66
            v_exp_f32 v67, v67
            s_nop 0
            v_add_f32 v66, 1.0, v66
            v_add_f32 v67, 1.0, v67
            v_rcp_f32 v66, v66
            v_rcp_f32 v67, v67
            s_nop 0
            v_mul_f32 v{g0}, v{g0}, v66
            v_mul_f32 v{g1}, v{g1}, v67
            """)
            rnd2(a, g0, g1, 64)
            a(f"""
            v_mul_f32 v{g0}, v{g0}, v{u0}
            v_mul_f32 v{g1}, v{g1}, v{u1}
            v_cvt_pk_bf16_f32 v{O+2*tt+hf}, v{g0}, v{g1}
            """)
    for k in range(4):
        a(f"v_min_u32 v{O+k}, -2, v{O+k}")
    a(f"""
    buffer_store_dwordx4 {vr(O,4)}, v{vL16}, {WS}, s{sOUT} offen sc1
    s_mul_i32 s40, s58, {2*54*1024}
    s_add_u32 s{sOUT}, s{sOUT}, s40
    s_mov_b32 s{sCNT}, s61
    """)
    stamp(a, 3)
    stamp_flush(a, 4, 1)
    a(f"""
    s_add_u32 s{sSTEP}, s{sSTEP}, 1
    s_cmp_ge_u32 s{sSEG}, 64
    s_cbranch_scc1 f1_fin
    s_cmp_lg_u32 s{sPFD}, 0
    s_cbranch_scc1 f1_loop
    s_cmp_gt_u32 s{sCNT}, {SENT0}
    s_cbranch_scc1 f1_late
    v_mov_b32 v3, s{sCNT}
    s_waitcnt vmcnt(0)
    s_mov_b64 exec, 1
    buffer_store_dword v3, off, {WS}, s{sFO} sc1
    s_mov_b64 exec, -1
    s_cmp_ge_u32 s{sSEG}, {SENT0}
    s_cbranch_scc1 f1_late
    """)
    wait_all(a, 32, vF, sFL, 56, 20)
    dma_h(a, sHOFF, sHBUF)
    a("s_branch f1_loop")
    a.label("f1_late")
    a(f"""
    s_lshl_b32 s45, s{sSEG}, 7
    s_add_u32 s45, s45, 0x{flag(FL_CC):x}
    s_mov_b32 s59, 20
    s_mov_b32 s60, 0
    """)
    wait_flag(a, 45, 59, 60, 22, sleep=3)
    a.label("f1_late2")
    dma_h(a, sHOFF, sHBUF)
    a(f"""
    s_sub_u32 s43, s43, 10240
    v_add_u32 v21, s43, v{vL16}
    s_waitcnt vmcnt(0)
    """)
    for k in range(10):
        a(f"ds_read_b128 {vr(72+4*k,4)}, v21 offset:{k*1024}")
    a("s_waitcnt lgkmcnt(0)")
    vmax_chain(a, 22, range(72, 112))
    poll_fail(a, "f1_late2", sleep=3)
    a("s_branch f1_loop")
    a.label("f1_fin")
    a(f"""
    v_mov_b32 v3, s{sCNT}
    s_waitcnt vmcnt(0)
    s_mov_b64 exec, 1
    buffer_store_dword v3, off, {WS}, s{sFO} sc1
    s_endpgm
    """)

    a.label("role_f2")
    if "2" in KILL:
        a("s_endpgm")
    srd(a, 16, 68, D * F * 2)
    srd(a, 20, 70, S * D * 2)
    sKS0 = 37
    a(f"""
    s_sub_u32 s40, s{sID}, 239
    s_mul_i32 s{sG}, s40, 6554
    s_lshr_b32 s{sG}, s{sG}, 16
    s_mul_i32 s41, s{sG}, 10
    s_sub_u32 s{sJ}, s40, s41
    s_mul_i32 s{sKS0}, s{sW}, 13
    s_min_u32 s40, s{sW}, 1
    s_add_u32 s{sKS0}, s{sKS0}, s40
    v_lshrrev_b32 v10, 3, v{vLANE}
    v_and_b32 v11, 7, v{vLANE}
    v_bfe_u32 v12, v10, 1, 2
    v_lshlrev_b32 v12, 1, v12
    v_xor_b32 v11, v11, v12
    v_lshlrev_b32 v11, 4, v11
    v_mul_u32_u24 v10, {D*2}, v10
    v_add_u32 v11, v10, v11
    s_mul_i32 s42, s{sKS0}, {32*D*2}
    s_lshl_b32 s40, s{sJ}, 7
    s_add_u32 s42, s42, s40                 ; soffset
    s_mul_i32 s43, s{sW}, 28672
    v_lshrrev_b32 v12, 4, v{vLANE}          ; g
    v_bfe_u32 v13, v{vLANE}, 2, 2           ; r
    v_and_b32 v14, 3, v{vLANE}              ; c
    v_lshl_add_u32 v15, v12, 2, v13
    v_lshlrev_b32 v15, 7, v15
    v_lshl_add_u32 v15, v14, 3, v15
    v_lshrrev_b32 v13, 1, v13
    v_and_b32 v12, 1, v12
    v_lshl_or_b32 v13, v12, 1, v13
    v_lshl_or_b32 v15, v13, 5, v15
    """)
    for t in range(4):
        a(f"v_xor_b32 v{16+t}, {t<<5}, v15")
        a(f"v_add_u32 v{16+t}, s43, v{16+t}")
    for ph in range(2):
        a("s_mov_b32 s44, s43")
        for q in range(28):
            a(f"""
            s_mov_b32 m0, s44
            s_add_u32 s44, s44, 1024
            buffer_load_dwordx4 v11, s[16:19], s42 offen lds
            s_add_u32 s42, s42, {8*D*2}
            """)
        a("s_waitcnt vmcnt(0)")
        for ksl in range(7):
            for t in range(4):
                for j in range(2):
                    a(f"ds_read_b64_tr_b16 {ar(((ph*7+ksl)*4+t)*4+2*j,2)}, v{16+t} offset:{ksl*4096+j*2048}")
            a("s_waitcnt lgkmcnt(0)")
    a(f"""
    s_cmp_lt_u32 s{sW}, 2
    s_cbranch_scc1 f2_nz
    """)
    for r in range(16):
        a(f"v_accvgpr_write_b32 a{r}, 0")
    a.label("f2_nz")
    AF2, AC2, FT = 16, 128, 160
    vWr, vRd, vO, vG = 12, 13, 14, 15
    sACT, sXO = 38, 39
    a(f"""
    s_barrier
    s_mov_b32 s{sSEG}, s{sG}
    s_mov_b32 s{sCNT}, 1
    s_lshr_b32 s{sFL}, s{sG}, 1
    s_lshl_b32 s{sFL}, s{sFL}, 12
    s_add_u32 s{sFL}, s{sFL}, 0x{flag(FL_F1):x}
    s_mul_i32 s{sACT}, s{sG}, {54*1024}
    s_lshl_b32 s40, s{sKS0}, 10
    s_add_u32 s{sACT}, s{sACT}, s40
    s_add_u32 s{sACT}, s{sACT}, 0x{WS_ACT:x}
    s_lshl_b32 s40, s{sW}, 10
    v_add_u32 v{vWr}, s40, v{vL16}
    s_lshl_b32 s40, s{sW}, 12
    v_add_u32 v{vRd}, s40, v{vL16}
    ; output: token = l%16, col = 64j + 16w + 4g
    v_and_b32 v10, 15, v{vLANE}
    v_mul_u32_u24 v10, 1280, v10
    v_lshrrev_b32 v11, 4, v{vLANE}
    v_lshl_add_u32 v{vO}, v11, 3, v10
    v_lshlrev_b32 v11, 4, v11
    s_lshl_b32 s40, s{sJ}, 2
    s_add_u32 s40, s40, s{sW}
    s_lshl_b32 s{sXO}, s40, 5
    s_mul_i32 s41, s{sG}, {16*1280}
    s_add_u32 s{sXO}, s{sXO}, s41
    s_lshl_b32 s40, s40, 6
    s_add_u32 s40, s40, {WS_MOD + 5*2560}
    buffer_load_dwordx4 v[200:203], v11, {WS}, s40 offen sc1
    v_add_u32 v8, 12288, v{vL16}
    """)
    AFB = [16, 72]
    XB = [208, 210]
    sPF2 = 46

    def f2_sync():
        if not F2SYNC:
            return
        top, done = a.newlabel("fs"), a.newlabel("fsd")
        a(f"""
        s_cmp_ge_u32 s{sSEG}, {2*F2SYNC}
        s_cbranch_scc1 {done}
        buffer_load_dword v205, off, {WS}, s48 sc1
        s_waitcnt vmcnt(0)
        {top}:
        buffer_load_dword v206, off, {WS}, s48 sc1
        s_waitcnt vmcnt(0)
        v_cmp_ne_u32 vcc, v205, v206
        s_cbranch_vccnz {done}
        v_cmp_le_u32 vcc, 63, v206
        s_cbranch_vccnz {done}
        s_sub_u32 s{sBUD}, s{sBUD}, 1
        s_cmp_ge_i32 s{sBUD}, 0
        s_cbranch_scc1 {top}
        {done}:
        """)
        if F2DLY:
            a(f"s_sleep {F2DLY}")

    def f2_loads(buf):
        for ks in range(14):
            off = ks * 1024
            av = [vL16, vL16b, vL16c, 8][off // 4096]
            a(f"buffer_load_dwordx4 {vr(AFB[buf]+ks*4,4)}, v{av}, {WS}, s{sACT} offen offset:{off%4096} sc1")
        a(f"buffer_load_dwordx2 {vr(XB[buf],2)}, v{vO}, {WS}, s47 offen sc1")

    def f2_nextflags():
        l1, l2 = a.newlabel("nf"), a.newlabel("nf")
        a(f"""
        s_and_b32 s40, s{sCNT}, 1
        s_cmp_ge_u32 s{sCNT}, {F1S}
        s_cselect_b32 s40, s40, 0
        s_mul_i32 s40, s40, {(FL_F1B-FL_F1)*128}
        s_add_u32 s{sFL}, s40, 0x{flag(FL_F1):x}
        s_mov_b32 exec_lo, 0x7ffffff
        s_mov_b32 exec_hi, 0
        s_cmp_ge_u32 s{sCNT}, {SENT0}
        s_cbranch_scc1 {l1}
        buffer_load_dwordx4 v[216:219], v{vF}, {WS}, s{sFL} offen sc1
        s_branch {l2}
        {l1}:
        s_mov_b32 s45, 0x{flag(FL_L):x}
        v_mov_b32 v217, 64
        v_mov_b32 v218, 64
        v_mov_b32 v219, 64
        buffer_load_dword v216, v{vF}, {WS}, s45 offen sc1
        {l2}:
        s_mov_b64 exec, -1
        """)
    if F2SYNC:
        get_pol(a, 205)
        a(f"s_add_u32 s48, s{sSB}, 0x{WS_CRB + CRB_DOOR + (256 if TICK else 0):x}")
    a(f"""
    s_mov_b32 s{sPF2}, 0
    s_add_u32 s47, s{sXO}, 0x{WS_X1:x}
    """)
    a.label("f2_loop")
    for buf in range(2):
        AF2 = AFB[buf]
        stamp(a, 0)
        a(f"""
        s_cmp_eq_u32 s{sPF2}, 1
        s_cbranch_scc1 f2_mm{buf}
        s_cmp_eq_u32 s{sPF2}, 2
        s_cbranch_scc1 f2_sy{buf}
        s_cmp_ge_u32 s{sSEG}, {2*SENT0}
        s_cbranch_scc1 f2_gate{buf}
        """)
        wait_all(a, 27, vF, sFL, sCNT, 204, ndw=4, sleep=F2_POLL)
        a.label(f"f2_sy{buf}")
        f2_sync()
        a(f"s_branch f2_ld{buf}")
        a.label(f"f2_gate{buf}")
        a(f"""
        s_mov_b32 s45, 0x{flag(FL_L):x}
        s_mov_b32 s60, 0
        """)
        wait_flag(a, 45, sCNT, 60, 204, sleep=3)
        a(f"s_sleep {F2_GATE}")
        a.label(f"f2_ld{buf}")
        f2_loads(buf)
        a.label(f"f2_mm{buf}")
        stamp(a, 1)
        f2_nextflags()
        a("v_mov_b32 v204, 0")
        for ks in range(14):
            a(f"s_waitcnt vmcnt({15-ks})")
            for t in range(4):
                acc = vr(AC2 + t*4, 4)
                a(f"v_mfma_f32_16x16x32_bf16 {acc}, {ar((ks*4+t)*4,4)}, {vr(AF2+ks*4,4)}, {'0' if ks == 0 else acc}")
                if t < 2:
                    a(f"v_max3_u32 v204, v204, v{AF2+ks*4+2*t}, v{AF2+ks*4+2*t+1}")
        a(f"""
        s_waitcnt vmcnt(1)
        v_max3_u32 v204, v204, v{XB[buf]}, v{XB[buf]+1}
        v_cmp_eq_u32 vcc, -1, v204
        """)
        poll_fail(a, f"f2_ld{buf}", sleep=3)
        stamp(a, 2)
        a.nop(4)
        for t in range(4):
            a(f"ds_write_b128 v{vWr}, {vr(AC2+t*4,4)} offset:{t*4096}")
        a(f"""
        s_add_u32 s{sACT}, s{sACT}, {2*54*1024}
        s_add_u32 s47, s47, {2*16*1280}
        s_add_u32 s{sCNT}, s{sCNT}, 1
        s_add_u32 s{sSEG}, s{sSEG}, 2
        s_waitcnt vmcnt(0)
        v_min3_u32 v216, v216, v217, v218
        v_min_u32 v216, v216, v219
        s_mov_b32 exec_lo, 0x7ffffff
        s_mov_b32 exec_hi, 0
        v_cmp_gt_u32 vcc, s{sCNT}, v216
        s_mov_b64 exec, -1
        s_mov_b32 s{sPF2}, 0
        s_waitcnt lgkmcnt(0)
        s_barrier
        """)
        for q in range(4):
            a(f"ds_read_b128 {vr(FT+q*4,4)}, v{vRd} offset:{q*1024}")
        a(f"""
        s_cbranch_vccnz f2_np{buf}
        s_mov_b32 s{sPF2}, 2
        s_cmp_lt_u32 s{sSEG}, {2*F2SYNC}
        s_cbranch_scc1 f2_np{buf}
        s_mov_b32 s{sPF2}, 1
        """)
        f2_loads(1 - buf)
        a(f"""
        f2_np{buf}:
        s_waitcnt lgkmcnt(0)
        s_barrier
        """)
        b = FT
        for r in range(4):
            a(f"v_add_f32 v{b+r}, v{b+r}, v{b+4+r}")
            a(f"v_add_f32 v{b+8+r}, v{b+8+r}, v{b+12+r}")
        for r in range(4):
            a(f"v_add_f32 v{b+r}, v{b+r}, v{b+8+r}")
        x = XB[buf]
        for hf in range(2):
            d0, d1 = b+2*hf, b+2*hf+1
            rnd2(a, d0, d1, 212)
            a(f"v_mul_f32 v{d0}, v{d0}, v{200+2*hf}")
            a(f"v_mul_f32 v{d1}, v{d1}, v{201+2*hf}")
            rnd2(a, d0, d1, 212)
            a(f"""
            v_lshlrev_b32 v212, 16, v{x+hf}
            v_and_b32 v213, 0xffff0000, v{x+hf}
            v_add_f32 v{d0}, v{d0}, v212
            v_add_f32 v{d1}, v{d1}, v213
            v_cvt_pk_bf16_f32 v{b+4+hf}, v{d0}, v{d1}
            """)
        a(f"buffer_store_dwordx2 {vr(b+4,2)}, v{vO}, s[20:23], s{sXO} offen")
        stamp(a, 3)
        stamp_flush(a, 4, 1)
        a(f"""
        s_add_u32 s{sSTEP}, s{sSTEP}, 1
        s_add_u32 s{sXO}, s{sXO}, {2*16*1280}
        s_cmp_ge_u32 s{sSEG}, 128
        s_cbranch_scc1 f2_end
        """)
    a("s_branch f2_loop")
    a.label("f2_end")
    dstamp(a, 14, 3, f"s_cmp_lg_u32 s{sID}, 239\ns_cbranch_scc1 {{lab}}")
    a("s_endpgm")
```

```python
from gen_common import *
import os

P_SLEEP0 = int(os.environ.get("P_SLEEP0", "37"))
P_SLEEP1 = int(os.environ.get("P_SLEEP1", "46"))
U_SLEEPM = int(os.environ.get("U_SLEEPM", "14"))
U_SLEEPP = int(os.environ.get("U_SLEEPP", "12"))
STAMP = int(os.environ.get("STAMP", "0"))
L1FIRST = 0
FORCEPOL = os.environ.get("FORCEPOL", "")
U_SLEEPD = int(os.environ.get("U_SLEEPD", "17"))
DOOR = int(os.environ.get("DOOR", "1"))
C_GAP = int(os.environ.get("C_GAP", "56"))
C_UXTAIL = int(os.environ.get("C_UXTAIL", "16"))
V_SLEEP = int(os.environ.get("V_SLEEP", "4"))
VM_FILL = int(os.environ.get("VM_FILL", "3"))
PKADD = int(os.environ.get("PKADD", "1"))
PDELAY = int(os.environ.get("PDELAY", "0"))
TDEPTH = int(os.environ.get("TDEPTH", "2"))
PDEPTH = int(os.environ.get("PDEPTH", "2"))
CT0 = 20 * int(os.environ.get("CSEG0", "46"))
XMAP = int(os.environ.get("XMAP", "76540321"), 16)
WARM = int(os.environ.get("WARM", "0"))
DST = int(os.environ.get("DST", "0"))
NOMIMIC = int(os.environ.get("NOMIMIC", "1"))
ALAT = int(os.environ.get("ALAT", "44"))
VMFIRST = int(os.environ.get("VMFIRST", "0"))
V_HOLD = int(os.environ.get("V_HOLD", "12"))
V_LAZY = int(os.environ.get("V_LAZY", "0"))
U_HOLD = int(os.environ.get("U_HOLD", "0"))
P_HOLD = int(os.environ.get("P_HOLD", "0"))
VDEPTH = int(os.environ.get("VDEPTH", "2"))
HELP = int(os.environ.get("HELP", "1"))
KILL = os.environ.get("KILL", "")
SWAPB = int(os.environ.get("SWAPB", "0"))
TICK = int(os.environ.get("TICK", "0"))
NOTOK = int(os.environ.get("NOTOK", "0"))

WS, DBG, WQ, WK, XS = "s[8:11]", "s[12:15]", "s[16:19]", "s[20:23]", "s[24:27]"
sW, sID, sSTEP, sBUD = 3, 28, 29, 30
vLANE, vIDX = 2, 4
vL16, vL16b, vL16c = 5, 6, 7
vM8 = 187
sSA, sSB = 98, 99
MEMF = 16
ACC = 56
LDS_T = 0x14000
LDS_R = 0x15000
LDS_ROLE = 0x1F000


def wreg(t, ks, n=4):
    idx = (t * 20 + ks) * 4
    if idx < 256:
        return ar(idx, n)
    return vr(192 + idx - 256, n)


def widx(idx, n=4):
    return ar(idx, n) if idx < 256 else vr(192 + idx - 256, n)


def l16(off):
    return f"v{vL16 + off // 4096}", off % 4096


def poll_fail(a, retry_label, sleep=2):
    ok = a.newlabel("pok")
    a(f"""
    s_cbranch_vccz {ok}
    s_sub_u32 s{sBUD}, s{sBUD}, 1
    s_cmp_lt_i32 s{sBUD}, 0
    s_cbranch_scc1 {ok}
    s_sleep {sleep}
    s_branch {retry_label}
    """)
    a.label(ok)


def wait_flag(a, s_flagoff, s_need, s_seen, vt, sleep=8):
    top = a.newlabel("wf")
    done = a.newlabel("wfd")
    a.label(top)
    a(f"""
    s_cmp_ge_u32 s{s_seen}, s{s_need}
    s_cbranch_scc1 {done}
    buffer_load_dword v{vt}, off, {WS}, s{s_flagoff} sc1
    s_waitcnt vmcnt(0)
    v_readfirstlane_b32 s{s_seen}, v{vt}
    s_nop 3
    s_cmp_ge_u32 s{s_seen}, s{s_need}
    s_cbranch_scc1 {done}
    s_sub_u32 s{sBUD}, s{sBUD}, 1
    s_cmp_lt_i32 s{sBUD}, 0
    s_cbranch_scc1 {done}
    s_sleep {sleep}
    s_branch {top}
    """)
    a.label(done)


def vmax_chain(a, vt, regs):
    regs = list(regs)
    a(f"v_max3_u32 v{vt}, v{regs[0]}, v{regs[1]}, v{regs[2]}")
    k = 3
    while k < len(regs):
        if k + 1 < len(regs):
            a(f"v_max3_u32 v{vt}, v{vt}, v{regs[k]}, v{regs[k+1]}")
            k += 2
        else:
            a(f"v_max_u32 v{vt}, v{vt}, v{regs[k]}")
            k += 1
    a(f"v_cmp_eq_u32 vcc, -1, v{vt}")


def get_pol(a, vt):
    from gen_boot import dbg_wait_wg, DBG_INIT, DBG_POL
    dbg_wait_wg(a, [(DBG_INIT, 1), (DBG_POL, 1), (DBG_POL+4, 1)], vt)
    a(f"""
    buffer_load_dwordx2 v[184:185], off, {DBG}, 0 offset:{DBG_POL} sc1
    s_waitcnt vmcnt(0)
    v_readfirstlane_b32 s{sSA}, v184
    v_readfirstlane_b32 s{sSB}, v185
    s_nop 3
    s_and_b32 s{sSA}, s{sSA}, 2
    s_lshl_b32 s{sSA}, s{sSA}, 12
    s_and_b32 s{sSB}, s{sSB}, 2
    s_lshl_b32 s{sSB}, s{sSB}, 12
    v_add_u32 v{vM8}, 16384, v{vL16}
    """)


def mem_loads(a, s_memoff, flag="sc1", start=0):
    for kb in range(start, 10):
        r, o = l16(kb * 1024)
        if kb >= 8:
            r = f"v{vM8}"
        a(f"buffer_load_dwordx4 {vr(MEMF+4*kb,4)}, {r}, {WS}, s{s_memoff} offen offset:{o} {flag}")


DEFERRED = []
MODE2 = [False]


def flush_deferred(a):
    for f in DEFERRED:
        f()
    DEFERRED.clear()


def mem_proj(a, tiles, s_memoff, vmax, sleep=1, after_first=None):
    base = a.newlabel("mp")
    mem_loads(a, s_memoff, "" if L1FIRST else "sc1")
    for t in tiles:
        for r in range(4):
            a(f"v_mov_b32 v{ACC+4*t+r}, 0")

    def chk(kb):
        f = MEMF + 4 * kb
        return [f"s_waitcnt vmcnt({9-kb})",
                f"v_max3_u32 v{vmax}, v{f}, v{f+1}, v{f+2}",
                f"v_max_u32 v{vmax}, v{vmax}, v{f+3}\nv_cmp_eq_u32 vcc, -1, v{vmax}"]
    for x in chk(0):
        a(x)
    a(f"s_cbranch_vccnz {base}_r0")
    for kb in range(10):
        f = MEMF + 4 * kb
        a.label(f"{base}_c{kb}")
        if STAMP == 2 and kb in (0, 4, 9):
            a(f"s_memrealtime s[{ {0:86,4:88,9:90}[kb] }:{ {0:87,4:89,9:91}[kb] }]")
        if kb == 9 and after_first:
            after_first()
        nxt = chk(kb + 1) if kb < 9 else []
        for n, t in enumerate(tiles):
            a(f"v_smfmac_f32_16x16x64_bf16 {vr(ACC+4*t,4)}, {vr(f,4)}, {wreg(t,2*kb,8)}, v{vIDX}")
            if n < len(nxt):
                a(nxt[n])
        for x in nxt[len(tiles):]:
            a(x)
        if kb < 9:
            a(f"s_cbranch_vccnz {base}_r{kb+1}")

    def ool():
        for kb in range(10):
            a.label(f"{base}_r{kb}")
            a(f"""
            s_sub_u32 s{sBUD}, s{sBUD}, 1
            s_cmp_lt_i32 s{sBUD}, 0
            s_cbranch_scc1 {base}_c{kb}
            s_sleep {sleep}
            """)
            mem_loads(a, s_memoff, "sc1", kb)
            for x in chk(kb):
                a(x)
            a(f"s_cbranch_vccnz {base}_r{kb}")
            a(f"s_branch {base}_c{kb}")
    DEFERRED.append(ool)


LDS_M = 0x18000


def mem_setup(a):
    a(f"""
    s_lshl_b32 s40, s{sW}, 10
    v_add_u32 v176, s40, v{vL16}
    v_add_u32 v177, 4096, v176
    v_add_u32 v178, 16384, v176
    v_add_u32 v179, 0x{LDS_M:x}, v176
    v_add_u32 v175, 0x{LDS_M:x}, v{vL16}
    s_cmp_lt_u32 s{sW}, 2
    s_cbranch_scc1 {a.newlabel("ms")}_ok
    v_mov_b32 v178, 0x7ffffff0
    """)
    a.label(f"ms_{a.uid}_ok")


def mem_proj2(a, order, s_memoff, vmax, after_valid=None, fill=None):
    top = a.newlabel("mq")
    G = 160
    a.label(top)
    for k in range(3):
        a(f"buffer_load_dwordx4 {vr(G+4*k,4)}, v{176+k}, {WS}, s{s_memoff} offen sc1")
    for grp in order:
        for t in grp:
            for r in range(4):
                a(f"v_mov_b32 v{ACC+4*t+r}, 0")
    a("s_waitcnt vmcnt(2)")
    a(f"ds_write_b128 v179, {vr(G,4)}")
    a(f"v_max3_u32 v{vmax}, v{G}, v{G+1}, v{G+2}")
    a("s_waitcnt vmcnt(1)")
    a(f"ds_write_b128 v179, {vr(G+4,4)} offset:4096")
    a(f"v_max3_u32 v{vmax}, v{vmax}, v{G+3}, v{G+4}")
    a(f"v_max3_u32 v{vmax}, v{vmax}, v{G+5}, v{G+6}")
    a("s_waitcnt vmcnt(0)")
    a(f"ds_write_b128 v179, {vr(G+8,4)} offset:8192")
    a(f"v_max3_u32 v{vmax}, v{vmax}, v{G+7}, v{G+8}")
    a(f"v_max3_u32 v{vmax}, v{vmax}, v{G+9}, v{G+10}")
    a(f"v_max_u32 v{vmax}, v{vmax}, v{G+11}")
    a(f"v_cmp_eq_u32 vcc, -1, v{vmax}")
    poll_fail(a, top, sleep=1)
    if after_valid:
        after_valid()
    if STAMP == 2:
        a("s_memrealtime s[86:87]")
    join = a.newlabel("mj")
    labs = [a.newlabel("mw") for _ in range(4)]
    a(f"""
    s_cmp_ge_u32 s{sW}, 2
    s_cbranch_scc1 {labs[2]}
    s_cmp_eq_u32 s{sW}, 1
    s_cbranch_scc1 {labs[1]}
    """)

    def sm(t, kb, src):
        a(f"v_smfmac_f32_16x16x64_bf16 {vr(ACC+4*t,4)}, {vr(src,4)}, {wreg(t,2*kb,8)}, v{vIDX}")
    for w in range(4):
        a.label(labs[w])
        if w == 2:
            a(f"""
            s_cmp_eq_u32 s{sW}, 3
            s_cbranch_scc1 {labs[3]}
            """)
        own = [w, w + 4] + ([8 + w] if w < 2 else [])
        oth = [kb for kb in range(10) if kb not in own]
        a("s_waitcnt lgkmcnt(0)")
        a("s_barrier")
        if STAMP == 2:
            a("s_memrealtime s[88:89]")
        for kb in oth:
            a(f"ds_read_b128 {vr(MEMF+4*kb,4)}, v175 offset:{kb*1024}")
        for grp in order:
            for k, kb in enumerate(own):
                for t in grp:
                    sm(t, kb, G + 4*k)
        for gi, grp in enumerate(order):
            F = list(fill.get(gi, [])) if fill else []
            n = 0
            tot = len(oth) * len(grp)
            for k, kb in enumerate(oth):
                if gi == 0:
                    a(f"s_waitcnt lgkmcnt({len(oth)-1-k})")
                for t in grp:
                    sm(t, kb, MEMF + 4*kb)
                    n += 1
                    if F and n == 2:
                        a.nop(6)
                    if n >= 2 and F:
                        a(F.pop(0))
            for x in F:
                a(x)
        if w < 3:
            a(f"s_branch {join}")
    a.label(join)
    if STAMP == 2:
        a("s_memrealtime s[90:91]")


def combine_list(t0, t1, d01, d23):
    A, B = ACC + 4 * t0, ACC + 4 * t1
    L = [f"v_permlane32_swap_b32 v{A+r}, v{B+r}" for r in range(4)]
    L += [f"v_pk_add_f32 v[{A+r}:{A+r+1}], v[{A+r}:{A+r+1}], v[{B+r}:{B+r+1}]" for r in (0, 2)]
    L += [f"v_cvt_pk_bf16_f32 v{d01}, v{A}, v{A+1}", f"v_cvt_pk_bf16_f32 v{d23}, v{A+2}, v{A+3}"]
    return L


def combine_pair(a, t0, t1, d01, d23):
    A, B = ACC + 4 * t0, ACC + 4 * t1
    for r in range(4):
        a(f"v_permlane32_swap_b32 v{A+r}, v{B+r}")
    if PKADD:
        for r in (0, 2):
            a(f"v_pk_add_f32 v[{A+r}:{A+r+1}], v[{A+r}:{A+r+1}], v[{B+r}:{B+r+1}]")
    else:
        for r in range(4):
            a(f"v_add_f32 v{A+r}, v{A+r}, v{B+r}")
    a(f"v_cvt_pk_bf16_f32 v{d01}, v{A}, v{A+1}")
    a(f"v_cvt_pk_bf16_f32 v{d23}, v{A+2}, v{A+3}")


def load_wqk(a, mats=(WQ, WK), depth=3, slot=32768, nbuf=4, pre=None, mid=None):
    a.comment("---- load Wq/Wk fragments")
    a(f"""
    v_lshrrev_b32 v10, 4, v{vLANE}          ; r = lane/16
    v_and_b32 v11, 15, v{vLANE}             ; chunk'
    v_and_b32 v12, 1, v10
    s_lshl_b32 s40, s{sW}, 1
    v_or_b32 v12, s40, v12                  ; f = (r&1)|(w<<1)
    v_lshlrev_b32 v12, 1, v12
    v_xor_b32 v11, v11, v12
    v_lshlrev_b32 v11, 4, v11
    s_lshl_b32 s40, s{sW}, 2
    v_add_u32 v12, s40, v10                 ; 4w+r
    v_lshl_add_u32 v11, v12, 13, v11
    s_lshl_b32 s41, s{sID}, 8
    s_lshl_b32 s42, s{sW}, 10
    v_bfe_u32 v12, v{vLANE}, 2, 2           ; r
    v_and_b32 v13, 3, v{vLANE}              ; c
    v_lshrrev_b32 v14, 1, v10               ; g>>1
    v_lshlrev_b32 v14, 4, v14               ; 16*(g>>1)
    v_and_b32 v15, 1, v10                   ; g&1
    v_lshl_add_u32 v14, v15, 2, v14         ; +4*(g&1)
    v_and_b32 v16, 1, v12
    v_add_u32 v14, v14, v16                 ; +(r&1)
    v_lshrrev_b32 v17, 1, v12               ; r>>1
    v_lshl_add_u32 v14, v17, 3, v14         ; +8*(r>>1)
    v_lshlrev_b32 v14, 8, v14
    v_lshl_add_u32 v14, v13, 3, v14         ; + c*8
    v_lshl_or_b32 v16, v15, 1, v16
    v_lshl_or_b32 v16, v17, 2, v16          ; f
    v_lshl_or_b32 v14, v16, 5, v14
    s_lshl_b32 s40, s{sW}, 6                ; (2w)<<5
    v_xor_b32 v18, s40, v14                 ; tile 2w
    v_xor_b32 v19, 32, v18                  ; tile 2w+1
    v_add_u32 v20, 0x10000, v18
    v_add_u32 v21, 0x10000, v19
    """)

    nm = len(mats)

    def dma(cn):
        buf = cn % nbuf
        for mat, sd in enumerate(mats):
            for q in range(4):
                a(f"""
                s_add_u32 s43, s42, {buf*slot + mat*16384 + q*4096}
                s_mov_b32 m0, s43
                s_add_u32 s44, s41, {(cn*64+16*q)*8192}
                buffer_load_dwordx4 v11, {sd}, s44 offen lds
                """)
    for cn in range(depth):
        dma(cn)
    if pre:
        pre()
    for cn in range(10):
        later = min(depth - 1, 9 - cn)
        extra = 20 if (pre and cn < depth) else 0
        a(f"s_waitcnt vmcnt({4*nm*later + extra})")
        a("s_barrier")
        if cn + depth < 10:
            dma(cn + depth)
        buf = cn % nbuf
        off = buf * slot
        for mat in range(nm):
            for tt in range(2):
                for ksl in range(2):
                    for j in range(2):
                        idx = ((mat*2+tt) * 20 + cn*2 + ksl) * 4 + 2*j
                        av = 18 + tt + (2 if off >= 65536 else 0)
                        a(f"ds_read_b64_tr_b16 {widx(idx,2)}, v{av} offset:{off % 65536 + mat*16384 + ksl*8192 + j*512}")
            a("s_waitcnt lgkmcnt(0)")
        if mid and cn == depth:
            mid()
    a("s_barrier")


def load_wv_wo(a):
    a.comment("---- Wo addressing")
    for q in range(5):
        a(f"""
        v_add_u32 v10, {64*q}, v{vLANE}
        v_mul_u32_u24 v11, 3277, v10
        v_lshrrev_b32 v11, 16, v11
        v_mul_u32_u24 v12, 20, v11
        v_sub_u32 v10, v10, v12
        v_mul_u32_u24 v11, 1280, v11
        v_lshl_add_u32 v{24+q}, v10, 4, v11
        """)
    a(f"""
    s_mul_i32 s46, s{sID}, 163840
    s_mul_i32 s40, s{sW}, 320
    s_add_u32 s46, s46, s40
    s_mul_i32 s47, s{sW}, 20480
    s_add_u32 s47, s47, {16384*(VDEPTH+1)}
    v_lshrrev_b32 v10, 4, v{vLANE}
    v_bfe_u32 v11, v{vLANE}, 2, 2
    v_lshl_add_u32 v10, v10, 2, v11
    v_mul_u32_u24 v10, 320, v10
    v_and_b32 v11, 3, v{vLANE}
    v_lshl_add_u32 v10, v11, 3, v10
    v_add_u32 v29, s47, v10
    """)

    def wo_dma():
        a("s_mov_b32 s45, s47")
        for blk_ in range(4):
            for q in range(5):
                a(f"""
                s_mov_b32 m0, s45
                s_add_u32 s45, s45, 1024
                buffer_load_dwordx4 v{24+q}, {WK}, s46 offen lds
                """)
            a(f"s_add_u32 s46, s46, {16*1280}")

    def wo_rd(half):
        for jt in range(10):
            for kl in range(2):
                for j in range(2):
                    idx = 160 + (jt*4 + half*2 + kl) * 4 + 2*j
                    a(f"ds_read_b64_tr_b16 {widx(idx,2)}, v29 offset:{(32*kl+16*j)*320 + jt*32}")
            if jt % 2 == 1:
                a("s_waitcnt lgkmcnt(0)")

    def mid():
        wo_rd(0)
        wo_dma()
    load_wqk(a, (WQ,), depth=VDEPTH, slot=16384, nbuf=VDEPTH+1, pre=wo_dma, mid=mid)
    wo_rd(1)
    a("s_barrier")


def load_wo(a, sd):
    a.comment("---- load Wo fragments")
    for q in range(5):
        a(f"""
        v_add_u32 v10, {64*q}, v{vLANE}
        v_mul_u32_u24 v11, 3277, v10
        v_lshrrev_b32 v11, 16, v11            ; row = q/20
        v_mul_u32_u24 v12, 20, v11
        v_sub_u32 v10, v10, v12               ; chunk
        v_mul_u32_u24 v11, 1280, v11
        v_lshl_add_u32 v{16+q}, v10, 4, v11
        """)
    a(f"""
    s_mul_i32 s41, s{sID}, 163840
    s_mul_i32 s40, s{sW}, 320
    s_add_u32 s41, s41, s40                 ; soffset
    s_mul_i32 s42, s{sW}, 20480
    v_lshrrev_b32 v10, 4, v{vLANE}          ; g
    v_bfe_u32 v11, v{vLANE}, 2, 2           ; r
    v_lshl_add_u32 v10, v10, 2, v11
    v_mul_u32_u24 v10, 320, v10
    v_and_b32 v11, 3, v{vLANE}
    v_lshl_add_u32 v10, v11, 3, v10
    v_add_u32 v21, s42, v10
    """)
    for half in range(2):
        a("s_mov_b32 s43, s42")
        for blk in range(4):
            for q in range(5):
                a(f"""
                s_mov_b32 m0, s43
                s_add_u32 s43, s43, 1024
                buffer_load_dwordx4 v{16+q}, {sd}, s41 offen lds
                """)
            a(f"s_add_u32 s41, s41, {16*1280}")
        a("s_waitcnt vmcnt(0)")
        for jt in range(10):
            for kl in range(2):
                for j in range(2):
                    idx = 160 + (jt*4 + half*2 + kl) * 4 + 2*j
                    a(f"ds_read_b64_tr_b16 {widx(idx,2)}, v21 offset:{(32*kl+16*j)*320 + jt*32}")
            if jt % 2 == 1:
                a("s_waitcnt lgkmcnt(0)")
    a("s_barrier")


def load_wvo(a):
    a.comment("---- load Wvo fragments (linear)")
    a(f"""
    s_lshl_b32 s40, s{sID}, 2
    s_add_u32 s40, s40, s{sW}
    s_mul_i32 s40, s40, 81920
    s_add_u32 s40, s40, 0x{WS_WVO:x}
    """)
    for f in range(80):
        a(f"buffer_load_dwordx4 {wreg(f//20, f%20)}, v{vL16}, {WS}, s40 offen offset:{(f%4)*1024}")
        if f % 4 == 3:
            a("s_add_u32 s40, s40, 4096")
        if f % 40 == 39:
            a("s_waitcnt vmcnt(20)" if f < 79 else "s_waitcnt vmcnt(0)")


vHG = 15


def dma_h_setup(a):
    a(f"""
    v_lshrrev_b32 v10, 3, v{vLANE}
    v_and_b32 v{vHG}, 7, v{vLANE}
    v_xor_b32 v{vHG}, v{vHG}, v10
    v_lshlrev_b32 v{vHG}, 4, v{vHG}
    v_mul_u32_u24 v10, 1280, v10
    v_add_u32 v{vHG}, v{vHG}, v10
    """)


def dma_h_init(a, s_hoff, s_buf):
    a(f"""
    s_mul_i32 s43, s{sW}, 10240
    s_add_u32 s44, s43, s{s_hoff}
    s_add_u32 s43, s43, s{s_buf}
    """)


def dma_h_one(a):
    a(f"""
    s_mov_b32 m0, s43
    s_add_u32 s43, s43, 1024
    buffer_load_dwordx4 v{vHG}, {WS}, s44 offen sc1 lds
    s_add_u32 s44, s44, 128
    """)


def dmal_init(a, s_hoff, s_buf):
    a(f"""
    s_mul_i32 s43, s{sW}, 10240
    s_add_u32 s44, s43, s{s_hoff}
    s_add_u32 s43, s43, s{s_buf}
    """)


def dmal_one(a):
    a(f"""
    s_mov_b32 m0, s43
    s_add_u32 s43, s43, 1024
    buffer_load_dwordx4 v{vL16}, {WS}, s44 offen sc1 lds
    s_add_u32 s44, s44, 1024
    """)


def dma_h(a, s_hoff, s_buf):
    dma_h_init(a, s_hoff, s_buf)
    for k in range(10):
        dma_h_one(a)


HF = 104
TACC = 72


def dense_proj(a, vH, transposed, hook=None, tiles=(0, 1, 2, 3)):
    def rd(ks):
        st = HF + (ks % 3) * 8
        for mt in range(2):
            a(f"ds_read_b128 {vr(st+4*mt,4)}, v{vH} offset:{mt*20480+ks*1024}")
    rd(0)
    rd(1)
    for ks in range(20):
        if ks + 2 < 20:
            rd(ks + 2)
            a("s_waitcnt lgkmcnt(4)")
        elif ks + 1 < 20:
            a("s_waitcnt lgkmcnt(2)")
        else:
            a("s_waitcnt lgkmcnt(0)")
        st = HF + (ks % 3) * 8
        for n, t in enumerate(tiles):
            for mt in range(2):
                acc = vr(TACC + (t*2+mt)*4, 4)
                c = "0" if ks == 0 else acc
                if transposed:
                    a(f"v_mfma_f32_16x16x32_bf16 {acc}, {wreg(t,ks)}, {vr(st+4*mt,4)}, {c}")
                else:
                    a(f"v_mfma_f32_16x16x32_bf16 {acc}, {vr(st+4*mt,4)}, {wreg(t,ks)}, {c}")
            if n == len(tiles) // 2 - 1 and hook:
                hook(ks)


def round_scale(a, xs, tmp, s_scale):
    def rnd():
        for k in range(0, len(xs), 2):
            x0 = xs[k]
            x1 = xs[k+1] if k + 1 < len(xs) else xs[k]
            a(f"v_cvt_pk_bf16_f32 v{tmp+k//2}, v{x0}, v{x1}")
        for k in range(0, len(xs), 2):
            a(f"v_lshlrev_b32 v{xs[k]}, 16, v{tmp+k//2}")
            if k + 1 < len(xs):
                a(f"v_and_b32 v{xs[k+1]}, 0xffff0000, v{tmp+k//2}")
    rnd()
    for x in xs:
        a(f"v_mul_f32 v{x}, s{s_scale}, v{x}")
    rnd()


def xlane(a, op, v, t, with8):
    if with8:
        a.nop(2)
        a(f"{op}_dpp v{v}, v{v}, v{v} row_ror:8 row_mask:0xf bank_mask:0xf")
    for sw in ("v_permlane16_swap_b32", "v_permlane32_swap_b32"):
        a(f"v_mov_b32 v{t}, v{v}")
        a.nop(2)
        a(f"{sw} v{v}, v{t}")
        a(f"{op} v{v}, v{v}, v{t}")


def softmax(a, xs, vm, vt, s_log2e, with8):
    a(f"v_max3_f32 v{vm}, v{xs[0]}, v{xs[1]}, v{xs[2]}")
    k = 3
    while k < len(xs):
        if k + 1 < len(xs):
            a(f"v_max3_f32 v{vm}, v{vm}, v{xs[k]}, v{xs[k+1]}")
            k += 2
        else:
            a(f"v_max_f32 v{vm}, v{vm}, v{xs[k]}")
            k += 1
    xlane(a, "v_max_f32", vm, vt, with8)
    for x in xs:
        a(f"v_sub_f32 v{x}, v{x}, v{vm}")
    for x in xs:
        a(f"v_mul_f32 v{x}, s{s_log2e}, v{x}")
    for x in xs:
        a(f"v_exp_f32 v{x}, v{x}")
    a(f"v_add_f32 v{vm}, v{xs[0]}, v{xs[1]}")
    for x in xs[2:]:
        a(f"v_add_f32 v{vm}, v{vm}, v{x}")
    xlane(a, "v_add_f32", vm, vt, with8)
    a(f"v_rcp_f32 v{vm}, v{vm}")
    a.nop(1)
    for x in xs:
        a(f"v_mul_f32 v{x}, v{x}, v{vm}")


def setup_qk_lds_addrs(a, vW, vR):
    a(f"""
    v_and_b32 v10, 15, v{vLANE}             ; n
    v_lshrrev_b32 v11, 4, v{vLANE}          ; g
    v_lshrrev_b32 v12, 1, v11
    v_lshl_add_u32 v10, v12, 4, v10         ; 16*(g>>1)+n
    s_lshl_b32 s40, s{sW}, 5
    v_add_u32 v10, s40, v10                 ; +32w
    v_lshlrev_b32 v10, 4, v10
    v_and_b32 v12, 1, v11
    v_lshl_add_u32 v10, v12, 3, v10
    v_add_u32 v{vW}, 0x{LDS_T:x}, v10
    v_bfe_u32 v12, v{vLANE}, 2, 2           ; r
    v_lshl_add_u32 v12, v11, 2, v12         ; 4g+r
    v_lshlrev_b32 v12, 4, v12
    v_and_b32 v13, 1, v{vLANE}
    v_lshl_add_u32 v12, v13, 3, v12
    v_add_u32 v{vR}, 0x{LDS_T:x}, v12
    """)


def setup_p_load_addrs(a, vA, vB, vM, wstride=8*640, hstride=10240):
    a(f"""
    v_bfe_u32 v10, v{vLANE}, 3, 1           ; rho
    v_and_b32 v11, 7, v{vLANE}              ; i
    v_lshrrev_b32 v12, 4, v{vLANE}          ; gA
    v_lshrrev_b32 v13, 1, v12               ; gA>>1
    v_and_b32 v14, 1, v12                   ; gA&1
    s_mul_i32 s40, s{sW}, {wstride}
    v_mul_u32_u24 v15, 640, v10
    v_add_u32 v15, s40, v15
    v_lshl_add_u32 v15, v13, 8, v15
    v_lshl_add_u32 v15, v11, 5, v15
    v_lshl_add_u32 v{vA}, v14, 4, v15
    v_lshl_add_u32 v15, v13, 2, v14
    v_mul_u32_u24 v15, 640, v15
    v_add_u32 v15, s40, v15
    v_lshl_add_u32 v15, v10, 6, v15
    v_lshl_add_u32 v15, v11, 3, v15
    v_add_u32 v{vB}, 512, v15
    s_mul_i32 s40, s{sW}, {8*hstride}
    v_mul_u32_u24 v15, {hstride}, v13
    v_add_u32 v15, s40, v15
    v_lshl_add_u32 v15, v14, 7, v15
    v_and_b32 v11, 15, v{vLANE}
    v_lshl_add_u32 v{vM}, v11, 3, v15
    """)


def p_loads(a, PF, vA, vB, s_off):
    for blk in range(2):
        for pi in range(2):
            a(f"buffer_load_dwordx4 {vr(PF+(blk*2+pi)*4,4)}, v{vA}, {WS}, s{s_off} offen offset:{(4*blk+pi)*640} sc1")
    for pi in range(2):
        a(f"buffer_load_dwordx2 {vr(PF+16+2*pi,2)}, v{vB}, {WS}, s{s_off} offen offset:{pi*640} sc1")


def p_combine(a, PF, BX, BM, CA, vmax):
    for blk in range(2):
        for pi in range(2):
            f = PF + (blk*2+pi)*4
            a(f"v_smfmac_f32_16x16x64_bf16 {vr(CA+4*pi,4)}, {vr(f,4)}, {vr(BX+8*blk,8)}, v{vIDX}")
            if vmax is not None:
                a(f"v_max3_u32 v{vmax}, v{vmax}, v{f}, v{f+1}")
                a(f"v_max3_u32 v{vmax}, v{vmax}, v{f+2}, v{f+3}")
    a.nop(2 if vmax is not None else 6)
    for pi in range(2):
        f = PF + 16 + 2*pi
        a(f"v_smfmac_f32_16x16x32_bf16 {vr(CA+4*pi,4)}, {vr(f,2)}, {vr(BM,4)}, v{vIDX}")
        if vmax is not None:
            a(f"v_max3_u32 v{vmax}, v{vmax}, v{f}, v{f+1}")


def setup_red_addrs(a, vWr, vRd):
    a(f"""
    v_and_b32 v10, 15, v{vLANE}             ; n
    v_lshrrev_b32 v11, 4, v{vLANE}          ; g
    v_and_b32 v12, 1, v11
    v_lshlrev_b32 v12, 10, v12              ; 4*(g&1)*256
    v_lshl_add_u32 v12, v10, 5, v12         ; + n*32
    v_lshrrev_b32 v13, 1, v11
    v_lshl_add_u32 v12, v13, 2, v12         ; + (g>>1)*4
    s_lshl_b32 s40, s{sW}, 3
    s_add_u32 s40, s40, 0x{LDS_R:x}
    v_add_u32 v12, s40, v12
    v_mov_b32 v13, 0x{LDS_R+0x2800:x}
    v_cmp_gt_u32 vcc, 8, v10
    s_nop 1
    v_cndmask_b32 v{vWr}, v13, v12, vcc
    v_lshlrev_b32 v12, 5, v{vLANE}
    v_add_u32 v{vRd}, 0x{LDS_R:x}, v12
    """)


def red_write(a, CA, vWr, off):
    for r in range(4):
        a(f"v_add_f32_dpp v{CA+r}, v{CA+4+r}, v{CA+r} row_ror:8 row_mask:0xf bank_mask:0xf")
    for r in range(4):
        a(f"ds_write_b32 v{vWr}, v{CA+r} offset:{off + r*256}")


LB = 140
L_SRC, L_DST, L_M, L_V, L_T, L_T2 = LB, LB+1, LB+2, LB+3, LB+4, LB+5
L_RAW, L_OUT, L_X, L_SC, L_SH = LB+8, LB+16, LB+24, LB+40, LB+56


def ln_wave_sum(a, v):
    for ctrl in ["quad_perm:[1,0,3,2]", "quad_perm:[2,3,0,1]", "row_half_mirror", "row_mirror"]:
        a.nop(2)
        a(f"v_add_f32_dpp v{v}, v{v}, v{v} {ctrl} row_mask:0xf bank_mask:0xf")
    a.nop(1)
    a(f"v_readlane_b32 s72, v{v}, 0")
    a(f"v_readlane_b32 s73, v{v}, 16")
    a(f"v_readlane_b32 s74, v{v}, 32")
    a.nop(2)
    a(f"v_mov_b32 v{v}, s72")
    a(f"v_add_f32 v{v}, s73, v{v}")
    a(f"v_add_f32 v{v}, s74, v{v}")


def bf16r(a, v):
    a(f"v_cvt_pk_bf16_f32 v{v}, v{v}, v{v}")
    a(f"v_and_b32 v{v}, 0xffff0000, v{v}")


def ln_setup(a, shift_idx, scale_idx, perm):
    a(f"""
    v_cmp_gt_u32 vcc, 40, v{vLANE}
    v_mov_b32 v{L_T}, 0x7ffffff0
    v_lshlrev_b32 v{L_DST}, 4, v{vLANE}
    """)
    if perm:
        a(f"""
        v_lshrrev_b32 v{L_SRC}, 1, v{vLANE}
        v_lshlrev_b32 v{L_SRC}, 5, v{L_SRC}
        v_and_b32 v{L_T2}, 1, v{vLANE}
        v_lshl_add_u32 v{L_SRC}, v{L_T2}, 3, v{L_SRC}
        """)
    else:
        a(f"v_mov_b32 v{L_SRC}, v{L_DST}")
    a(f"""
    v_lshlrev_b32 v{L_T2}, 1, v{L_SRC}
    v_cndmask_b32 v{L_SRC}, v{L_T}, v{L_SRC}, vcc
    v_cndmask_b32 v{L_T2}, v{L_T}, v{L_T2}, vcc
    v_cndmask_b32 v{L_DST}, v{L_T}, v{L_DST}, vcc
    s_mov_b64 s[76:77], vcc
    s_mov_b32 s72, {WS_MOD + scale_idx*2560}
    s_mov_b32 s73, {WS_MOD + shift_idx*2560}
    """)
    for dst, so in ((L_SC, 72), (L_SH, 73)):
        for h in range(2):
            if perm:
                a(f"buffer_load_dwordx2 {vr(dst+8*h,2)}, v{L_T2}, {WS}, s{so} offen offset:{h*1280}")
                a(f"buffer_load_dwordx2 {vr(dst+8*h+4,2)}, v{L_T2}, {WS}, s{so} offen offset:{h*1280+8}")
                a(f"buffer_load_dwordx2 {vr(dst+8*h+2,2)}, v{L_T2}, {WS}, s{so} offen offset:{h*1280+32}")
                a(f"buffer_load_dwordx2 {vr(dst+8*h+6,2)}, v{L_T2}, {WS}, s{so} offen offset:{h*1280+40}")
            else:
                a(f"buffer_load_dwordx4 {vr(dst+8*h,4)}, v{L_T2}, {WS}, s{so} offen offset:{h*1280} sc1")
                a(f"buffer_load_dwordx4 {vr(dst+8*h+4,4)}, v{L_T2}, {WS}, s{so} offen offset:{h*1280+16} sc1")
    a("s_waitcnt vmcnt(0)")
    for j in range(8):
        a(f"v_add_f32 v{L_SC+2*j}, 1.0, v{L_SC+2*j}")
        a(f"v_add_f32 v{L_SC+2*j+1}, 1.0, v{L_SC+2*j+1}")
        a(f"v_cvt_pk_bf16_f32 v{L_T}, v{L_SC+2*j}, v{L_SC+2*j+1}")
        a(f"v_lshlrev_b32 v{L_SC+2*j}, 16, v{L_T}")
        a(f"v_and_b32 v{L_SC+2*j+1}, 0xffff0000, v{L_T}")


def ln_load(a, srd_, s_off, fl, perm, raw=L_RAW, extra=0):
    if perm:
        for h in range(2):
            a(f"buffer_load_dwordx2 {vr(raw+4*h,2)}, v{L_SRC}, {srd_}, s{s_off} offen offset:{extra+h*640} {fl}")
            a(f"buffer_load_dwordx2 {vr(raw+4*h+2,2)}, v{L_SRC}, {srd_}, s{s_off} offen offset:{extra+h*640+16} {fl}")
        return 4
    for h in range(2):
        a(f"buffer_load_dwordx4 {vr(raw+4*h,4)}, v{L_SRC}, {srd_}, s{s_off} offen offset:{extra+h*640} {fl}")
    return 2


def ln_unpack(a, perm, raw=L_RAW):
    pos = [0, 2, 1, 3] if perm else [0, 1, 2, 3]
    for h in range(2):
        for j in range(4):
            d = 4*h + pos[j]
            a(f"v_lshlrev_b32 v{L_X+2*d}, 16, v{raw+4*h+j}")
            a(f"v_and_b32 v{L_X+2*d+1}, 0xffff0000, v{raw+4*h+j}")


def ln_compute_store(a, s_dst, extra=0, out=L_OUT):
    X = L_X
    a(f"v_add_f32 v{L_M}, v{X}, v{X+1}")
    a(f"v_add_f32 v{L_T}, v{X+2}, v{X+3}")
    for j in range(4, 16, 2):
        a(f"v_add_f32 v{L_M}, v{L_M}, v{X+j}")
        a(f"v_add_f32 v{L_T}, v{L_T}, v{X+j+1}")
    a(f"v_add_f32 v{L_M}, v{L_M}, v{L_T}")
    ln_wave_sum(a, L_M)
    a(f"v_mul_f32 v{L_M}, 0x3acccccd, v{L_M}")
    a(f"v_sub_f32 v{L_T}, v{X}, v{L_M}")
    a(f"v_mul_f32 v{L_V}, v{L_T}, v{L_T}")
    for j in range(1, 16):
        t = L_T if j % 2 == 0 else L_T2
        a(f"v_sub_f32 v{t}, v{X+j}, v{L_M}")
        a(f"v_fmac_f32 v{L_V}, v{t}, v{t}")
    a(f"v_cndmask_b32 v{L_V}, 0, v{L_V}, s[76:77]")
    ln_wave_sum(a, L_V)
    a(f"v_mul_f32 v{L_V}, 0x3acccccd, v{L_V}")
    bf16r(a, L_V)
    a(f"v_add_f32 v{L_V}, 0x3727c5ac, v{L_V}")
    bf16r(a, L_V)
    a(f"v_sqrt_f32 v{L_V}, v{L_V}")
    a.nop(1)
    bf16r(a, L_V)
    a(f"v_rcp_f32 v{L_V}, v{L_V}")
    bf16r(a, L_M)
    for j in range(8):
        x0, x1 = X + 2*j, X + 2*j + 1
        a(f"""
        v_sub_f32 v{x0}, v{x0}, v{L_M}
        v_sub_f32 v{x1}, v{x1}, v{L_M}
        v_cvt_pk_bf16_f32 v{L_T}, v{x0}, v{x1}
        v_lshlrev_b32 v{x0}, 16, v{L_T}
        v_and_b32 v{x1}, 0xffff0000, v{L_T}
        v_mul_f32 v{x0}, v{x0}, v{L_V}
        v_mul_f32 v{x1}, v{x1}, v{L_V}
        v_cvt_pk_bf16_f32 v{L_T}, v{x0}, v{x1}
        v_lshlrev_b32 v{x0}, 16, v{L_T}
        v_and_b32 v{x1}, 0xffff0000, v{L_T}
        v_mul_f32 v{x0}, v{x0}, v{L_SC+2*j}
        v_mul_f32 v{x1}, v{x1}, v{L_SC+2*j+1}
        v_cvt_pk_bf16_f32 v{L_T}, v{x0}, v{x1}
        v_lshlrev_b32 v{x0}, 16, v{L_T}
        v_and_b32 v{x1}, 0xffff0000, v{L_T}
        v_add_f32 v{x0}, v{x0}, v{L_SH+2*j}
        v_add_f32 v{x1}, v{x1}, v{L_SH+2*j+1}
        v_cvt_pk_bf16_f32 v{out+j}, v{x0}, v{x1}
        v_min_u32 v{out+j}, -2, v{out+j}
        """)
    a(f"buffer_store_dwordx4 {vr(out,4)}, v{L_DST}, {WS}, s{s_dst} offen offset:{extra} sc1")
    a(f"buffer_store_dwordx4 {vr(out+4,4)}, v{L_DST}, {WS}, s{s_dst} offen offset:{extra+640} sc1")


def wait_all(a, nl, vaddr, s_off, s_need, vt, ndw=1, sleep=4):
    top, done = a.newlabel("wa"), a.newlabel("wad")
    a.label(top)
    op = {1: "dword", 4: "dwordx4"}[ndw]
    a(f"""
    s_mov_b32 exec_lo, 0x{(1 << nl) - 1:x}
    s_mov_b32 exec_hi, 0
    buffer_load_{op} {vr(vt, ndw)}, v{vaddr}, {WS}, s{s_off} offen sc1
    s_waitcnt vmcnt(0)
    """)
    if ndw == 4:
        a(f"v_min3_u32 v{vt}, v{vt}, v{vt+1}, v{vt+2}")
        a(f"v_min_u32 v{vt}, v{vt}, v{vt+3}")
    a(f"""
    v_cmp_gt_u32 vcc, s{s_need}, v{vt}
    s_mov_b64 exec, -1
    s_cbranch_vccz {done}
    s_sub_u32 s{sBUD}, s{sBUD}, 1
    s_cmp_lt_i32 s{sBUD}, 0
    s_cbranch_scc1 {done}
    s_sleep {sleep}
    s_branch {top}
    """)
    a.label(done)


WS_TRACE = 0x0F000000


def stamp(a, slot):
    if not STAMP:
        return
    if STAMP == 2 and MODE2[0] and slot in (3, 4):
        slot = 6
    if STAMP == 2 and MODE2[0] and slot == 0:
        a("s_memtime s[80:81]")
        return
    a(f"s_memrealtime s[{80+2*slot}:{81+2*slot}]")


def dstamp(a, word, vt, cond=""):
    if not DST:
        return
    lab = a.newlabel("ds")
    a(f"""
    {cond.format(lab=lab)}
    s_cmp_lg_u32 s{sW}, 0
    s_cbranch_scc1 {lab}
    s_memrealtime s[80:81]
    s_waitcnt lgkmcnt(0)
    v_mov_b32 v{vt}, s80
    s_mov_b64 exec, 1
    buffer_store_dword v{vt}, off, {DBG}, 0 offset:{word*4}
    s_mov_b64 exec, -1
    {lab}:
    """)


def stamp_flush(a, n, vt):
    if not STAMP:
        return
    if STAMP == 2 and MODE2[0]:
        n = 7
    skip = a.newlabel("stf")
    a(f"""
    s_cmp_lg_u32 s{sW}, 0
    s_cbranch_scc1 {skip}
    s_waitcnt lgkmcnt(0)
    s_lshl_b32 s96, s{sSTEP}, 5
    s_add_u32 s96, s96, s97
    s_mov_b64 exec, 1
    """)
    for k in range(n):
        a(f"v_mov_b32 v{vt}, s{80+2*k}")
        a(f"buffer_store_dword v{vt}, off, {WS}, s96 offset:{4*k}")
        a.nop(2)
    a(f"v_mov_b32 v{vt}, s{sBUD}")
    a(f"buffer_store_dword v{vt}, off, {WS}, s96 offset:28")
    a("s_mov_b64 exec, -1")
    a.label(skip)


def gen_r(a):
    L = NAME + "_kernel"
    kernel_header(a, L)
    a(f"""
    s_cmp_ge_u32 s2, 256
    s_cbranch_scc1 r_end
    s_load_dwordx2 s[4:5], s[0:1], {KA_WS}
    s_load_dwordx2 s[6:7], s[0:1], {KA_DBG}
    s_load_dwordx4 s[32:35], s[0:1], {KA_WQ}
    s_load_dwordx2 s[36:37], s[0:1], {KA_X}
    v_lshrrev_b32 v1, 6, v0
    v_and_b32 v{vLANE}, 63, v0
    s_waitcnt lgkmcnt(0)
    """)
    srd(a, 8, 4, WS_SIZE)
    srd(a, 12, 6, 256)
    srd(a, 16, 32, D * H * E * 2)
    srd(a, 20, 34, D * H * E * 2)
    srd(a, 24, 36, S * D * 2)
    a(f"""
    v_readfirstlane_b32 s{sW}, v1
    v_lshlrev_b32 v{vL16}, 4, v{vLANE}
    v_add_u32 v{vL16b}, 4096, v{vL16}
    v_add_u32 v{vL16c}, 8192, v{vL16}
    v_mov_b32 v{vIDX}, 0x4444
    v_mov_b32 v10, 0xeeee
    v_and_b32 v11, 8, v{vLANE}
    v_cmp_ne_u32 vcc, 0, v11
    s_mov_b32 s{sBUD}, 200000
    v_mov_b32 v9, 0x{LDS_ROLE:x}
    v_cndmask_b32 v{vIDX}, v{vIDX}, v10, vcc
    s_cmp_lg_u32 s{sW}, 0
    s_cbranch_scc1 r_warm
    s_getreg_b32 s40, hwreg(HW_REG_XCC_ID)
    s_and_b32 s40, s40, 7
    s_mov_b64 exec, 1
    s_lshl_b32 s43, s40, 2
    s_lshr_b32 s43, 0x{XMAP:x}, s43
    s_and_b32 s43, s43, 7
    s_mov_b32 s48, 0
    """)
    a.label("r_try")
    a(f"""
    s_lshr_b32 s45, s43, 1
    s_lshl_b32 s45, s45, 2
    s_and_b32 s44, s43, 1
    s_lshl_b32 s44, s44, 7
    s_add_u32 s45, s45, s44
    v_mov_b32 v10, 1
    buffer_atomic_add v10, off, {DBG}, s45 sc0
    s_waitcnt vmcnt(0)
    v_readfirstlane_b32 s41, v10
    s_nop 3
    s_cmp_lt_u32 s41, 32
    s_cbranch_scc1 r_got
    s_add_u32 s48, s48, 1
    s_sub_u32 s43, s48, 1
    s_mov_b32 s42, 999
    s_cmp_ge_u32 s43, 8
    s_cbranch_scc1 r_role_done
    s_branch r_try
    """)
    a.label("r_got")
    a(f"""
    s_lshl_b32 s42, s43, 5
    s_add_u32 s42, s42, s41                 ; P: t, VM: 32+t
    s_cmp_lt_u32 s43, 2
    s_cbranch_scc1 r_role_done
    s_cmp_ge_u32 s43, 4
    s_cbranch_scc1 r_got4
    s_sub_u32 s43, s43, 2                   ; q = 0,1
    s_mul_i32 s44, s43, 10
    s_add_u32 s42, s41, s44
    s_add_u32 s42, s42, 239                 ; F2: 239 + 10q + t
    s_cmp_lt_u32 s41, 10
    s_cbranch_scc1 r_role_done
    s_mul_i32 s44, s43, 20
    s_add_u32 s42, s41, s44
    s_add_u32 s42, s42, 54                  ; U: 64 + 20q + (t-10)
    s_cmp_lt_u32 s41, 30
    s_cbranch_scc1 r_role_done
    s_lshl_b32 s44, s43, 1
    s_add_u32 s42, s41, s44
    s_add_u32 s42, s42, 174                 ; L: 204 + 2q + (t-30)
    s_branch r_role_done
    """)
    a.label("r_got4")
    a(f"""
    s_sub_u32 s43, s43, 4                   ; q = 0..3
    s_lshl_b32 s44, s43, 3
    s_add_u32 s42, s41, s44
    s_add_u32 s42, s42, 112                 ; T
    s_cmp_lt_u32 s41, 8
    s_cbranch_scc1 r_role_done
    s_add_u32 s42, s42, 24                  ; VO
    s_cmp_lt_u32 s41, 16
    s_cbranch_scc1 r_role_done
    s_add_u32 s42, s43, 208                 ; L: 204 + 4 + q
    s_cmp_eq_u32 s41, 23
    s_cbranch_scc1 r_role_done
    s_lshl_b32 s44, s43, 1
    s_add_u32 s42, s41, s44
    s_add_u32 s42, s42, 160                 ; A
    s_cmp_lt_u32 s41, 18
    s_cbranch_scc1 r_role_done
    s_mul_i32 s44, s43, 5
    s_add_u32 s42, s41, s44
    s_add_u32 s42, s42, 166                 ; C
    s_cmp_lt_u32 s41, 23
    s_cbranch_scc1 r_role_done
    s_mul_i32 s44, s43, 7
    s_add_u32 s42, s41, s44
    s_add_u32 s42, s42, 188                 ; F1: 212 + 7q + (t-24)
    s_cmp_eq_u32 s42, 239
    s_cselect_b32 s42, 264, s42
    s_add_u32 s44, s43, 260
    s_cmp_eq_u32 s41, 31
    s_cselect_b32 s42, s44, s42
    """)
    a.label("r_role_done")
    if SWAPB:
        a(f"""
        s_sub_u32 s44, s42, 239
        s_sub_u32 s45, s42, {SWAPB}
        s_add_u32 s46, s44, {SWAPB}
        s_add_u32 s47, s45, 239
        s_cmp_lt_u32 s44, 20
        s_cselect_b32 s42, s46, s42
        s_cmp_lt_u32 s45, 20
        s_cselect_b32 s42, s47, s42
        """)
    a(f"""
    v_mov_b32 v10, s42
    ds_write_b32 v9, v10
    s_mov_b64 exec, -1
    s_waitcnt lgkmcnt(0)
    """)
    a("s_branch r_role_wait")
    a.label("r_warm")
    if WARM:
        a(f"""
        s_getpc_b64 s[40:41]
        r_warm_pc:
        s_sub_u32 s40, s40, r_warm_pc-{L}
        s_subb_u32 s41, s41, 0
        s_lshr_b32 s42, s2, 3
        s_mul_i32 s42, s42, 3
        s_add_u32 s42, s42, s{sW}
        s_sub_u32 s42, s42, 1                   ; 0..95
        s_lshl_b32 s42, s42, 10
        v_add_u32 v12, s42, v{vL16}
        v_min_u32 v12, r_code_end-{L}-16, v12
        global_load_dwordx4 v[16:19], v12, s[40:41]
        s_waitcnt vmcnt(0)
        """)
    a.label("r_role_wait")
    a(f"""
    s_barrier
    ds_read_b32 v10, v9
    s_waitcnt lgkmcnt(0)
    v_readfirstlane_b32 s{sID}, v10
    s_mov_b32 s{sSTEP}, 0
    s_mov_b32 s50, 0x3db504f3          ; 128^-0.5
    s_mov_b32 s51, 0x3fb8aa3b          ; log2(e)
    s_mov_b32 s62, s50
    s_mov_b32 s63, s50
    s_mov_b32 s100, 0
    s_mul_i32 s97, s{sID}, {72*32}
    s_add_u32 s97, s97, 0x{WS_TRACE:x}
    s_barrier
    """)
    if STAMP:
        a(f"""
        s_memrealtime s[80:81]
        s_waitcnt lgkmcnt(0)
        v_mov_b32 v3, s80
        buffer_store_dword v3, off, {WS}, s97 offset:{71*32}
        """)
    a(f"""
    s_cmp_lt_u32 s{sID}, 32
    s_cbranch_scc1 role_p
    s_cmp_lt_u32 s{sID}, 64
    s_cbranch_scc1 role_vm
    s_cmp_lt_u32 s{sID}, 112
    s_cbranch_scc1 boot
    s_cmp_lt_u32 s{sID}, 144
    s_cbranch_scc1 role_t
    s_cmp_lt_u32 s{sID}, 176
    s_cbranch_scc1 role_vo
    s_cmp_ge_u32 s{sID}, 265
    s_cbranch_scc1 r_end
    s_branch boot
    boot_done:
    s_cmp_lt_u32 s{sID}, 112
    s_cbranch_scc1 role_u
    {"s_endpgm" if NOTOK else ""}
    s_cmp_lt_u32 s{sID}, 184
    s_cbranch_scc1 role_al
    s_cmp_lt_u32 s{sID}, 204
    s_cbranch_scc1 role_c
    s_cmp_lt_u32 s{sID}, 212
    s_cbranch_scc1 role_al
    s_cmp_lt_u32 s{sID}, 259
    s_cbranch_scc1 role_f
    s_sub_u32 s{sID}, s{sID}, 56            ; 260.. -> 204..
    s_cmp_lt_u32 s{sID}, 209
    s_cbranch_scc1 role_c
    s_endpgm
    """)

    KF, QF, KMF, SA = 72, 104, 120, 136
    X0 = 148
    vTW, vTR, vST, vSM = 8, 9, 12, 13
    sMEM, sPB, sKX, sFT, sSEEN, sNEED = 31, 32, 33, 34, 35, 36
    from gen_boot import dbg_wait_wg, DBG_MOD20
    a.label("role_p")
    MODE2[0] = True
    dstamp(a, 11, 3, f"s_cmp_lg_u32 s{sID}, 0\ns_cbranch_scc1 {{lab}}")
    if PDELAY:
        dbg_wait_wg(a, [(DBG_MOD20, 1)], 3, sleep=10)
    load_wqk(a, depth=PDEPTH)
    setup_qk_lds_addrs(a, vTW, vTR)
    a(f"""
    v_bfe_u32 v10, v{vLANE}, 3, 1           ; b
    v_and_b32 v11, 7, v{vLANE}              ; i
    v_lshrrev_b32 v14, 4, v{vLANE}          ; g
    v_lshlrev_b32 v{vST}, 8, v10
    v_lshl_add_u32 v{vST}, v11, 5, v{vST}
    v_lshl_add_u32 v{vST}, v14, 3, v{vST}
    v_lshlrev_b32 v{vSM}, 3, v11
    v_and_b32 v15, 1, v14
    v_lshl_add_u32 v{vSM}, v15, 2, v{vSM}
    v_lshrrev_b32 v15, 1, v14
    v_lshl_add_u32 v{vSM}, v15, 6, v{vSM}
    v_add_u32 v{vSM}, 512, v{vSM}
    v_mov_b32 v15, 0x7ffffff0
    v_cmp_ne_u32 vcc, 0, v10
    s_mov_b32 s52, 0xff00ff00
    s_mov_b32 s53, 0xff00ff00
    v_cndmask_b32 v{vSM}, v{vSM}, v15, vcc
    s_mov_b32 s54, 0
    s_mov_b32 s55, -1                       ; s[54:55]: lanes g>=2
    s_lshl_b32 s{sKX}, s{sID}, 13
    s_add_u32 s{sKX}, s{sKX}, 0x{WS_KX:x}
    s_lshl_b32 s{sFT}, s{sID}, 7
    s_add_u32 s{sFT}, s{sFT}, 0x{flag(FL_T):x}
    s_mov_b32 s{sSEEN}, 0
    s_mov_b32 s56, 0x{WS_FLAGS:x}
    ; KM store voff: g*128 + (l%8)*16, lanes with b=1 dropped
    v_lshlrev_b32 v189, 7, v14
    v_lshl_add_u32 v189, v11, 4, v189
    v_cndmask_b32 v189, v189, v15, vcc
    s_lshl_b32 s57, s{sID}, 11
    s_add_u32 s57, s57, 0x{WS_KM:x}
    s_lshl_b32 s58, s{sID}, 2
    s_add_u32 s58, s58, s{sW}
    s_lshl_b32 s60, s{sID}, 7
    s_add_u32 s60, s60, 0x{flag(FL_KM):x}
    v_cmp_gt_u32 vcc, 40, v{vLANE}
    v_mov_b32 v180, -1
    v_mov_b32 v181, -1
    v_mov_b32 v182, -1
    v_mov_b32 v183, -1
    v_cndmask_b32 v186, v15, v{vL16}, vcc
    """)
    get_pol(a, X0)
    mem_setup(a)
    a(f"""
    s_add_u32 s59, s{sSB}, 0x{WS_CRB + CRB_DOOR:x}
    s_add_u32 s64, s{sSB}, 0x{WS_CRB:x}
    s_lshr_b32 s40, s{sID}, 3
    s_lshl_b32 s40, s40, 14
    s_and_b32 s41, s{sID}, 7
    s_mul_i32 s41, s41, 640
    s_add_u32 s65, s40, s41
    s_add_u32 s65, s65, s64
    s_add_u32 s65, s65, {4*16384}           ; p base
    s_mov_b32 s61, 0x3e0293ee               ; 128^-0.5 * log2(e)
    """)
    a.label("p_loop")
    stamp(a, 0)
    a(f"""
    s_and_b32 s40, s{sSTEP}, 3
    s_lshl_b32 s40, s40, 17
    s_add_u32 s{sMEM}, s40, s64
    s_add_u32 s{sPB}, s40, s65
    s_xor_b32 s40, s40, 0x40000
    s_add_u32 s66, s40, s65
    s_cmp_lg_u32 s{sW}, 0
    s_cbranch_scc1 p_sync
    s_add_u32 s{sNEED}, s{sSTEP}, 1
    """)
    if P_HOLD:
        a(f"""
        s_cmp_eq_u32 s{sSTEP}, 0
        s_cbranch_scc1 p_nohold
        s_sleep {P_HOLD}
        p_nohold:
        """)
    wait_flag(a, sFT, sNEED, sSEEN, X0)
    for f in range(8):
        r, o = l16(f * 1024)
        a(f"buffer_load_dwordx4 {vr(KF+4*f,4)}, {r}, {WS}, s{sKX} offen offset:{o} sc1")
    a(f"""
    buffer_load_dword v190, off, {WS}, s{sFT} sc1
    s_cmp_eq_u32 s{sSTEP}, 0
    s_cbranch_scc1 p_sync
    s_sleep {P_SLEEP0-P_HOLD}
    """)
    a.label("p_sync")
    a("s_barrier")
    stamp(a, 1)
    def door():
        if not DOOR:
            return
        a(f"""
        s_cmp_lg_u32 s58, 3
        s_cbranch_scc1 p_nodoor
        s_mov_b64 exec, 1
        buffer_store_dword v188, off, {WS}, s59 sc1
        s_mov_b64 exec, -1
        p_nodoor:
        """)
    a(f"""
    s_add_u32 s40, s{sSTEP}, 1
    v_mov_b32 v188, s40
    """)
    qrd = [f"ds_read_b64_tr_b16 {vr(QF+4*k+2*tp,2)}, v{vTR} offset:{k*512+tp*256}" for k in range(4) for tp in range(2)]
    cl = combine_list(0, 1, X0+2, X0+3)
    fl = ["\n".join(cl[0:2]), "\n".join(cl[2:4]), "\n".join(cl[4:6]), "\n".join(cl[6:8]),
          f"ds_write_b64 v{vTW}, {vr(X0+2,2)}", "s_nop 0", "s_nop 0", "s_waitcnt lgkmcnt(0)\ns_barrier",
          "\n".join(qrd[0:2]), "\n".join(qrd[2:4]), "\n".join(qrd[4:6]), "\n".join(qrd[6:8])]
    mem_proj2(a, [[0, 1], [2, 3]], sMEM, X0, after_valid=door, fill={1: fl})
    stamp(a, 2)
    kc = combine_list(2, 3, X0+4, X0+5) + [f"ds_write_b64 v{vTW}, {vr(X0+4,2)} offset:2048"]
    n = 0
    for k in range(4):
        a(f"s_waitcnt lgkmcnt({[6, 4, 3, 1][k]})")
        for mt in range(2):
            acc = vr(SA+4*mt, 4)
            a(f"v_mfma_f32_16x16x32_bf16 {acc}, {vr(KF+(mt*4+k)*4,4)}, {vr(QF+4*k,4)}, {'0' if k==0 else acc}")
            n += 1
            if n == 2:
                a.nop(5)
            if n >= 2:
                for _ in range(3):
                    if kc:
                        a(kc.pop(0))
    assert not kc
    a(f"""
    s_waitcnt lgkmcnt(0)
    s_barrier
    s_cmp_lg_u32 s{sW}, 0
    s_cbranch_scc1 p_other
    """)
    stamp(a, 3)
    for k2 in range(4):
        for tp in range(2):
            a(f"ds_read_b64_tr_b16 {vr(KMF+4*k2+2*tp,2)}, v{vTR} offset:{2048+k2*512+tp*256}")
    T0 = X0 + 8
    M0, TT, S0, MR, XM, FF = X0+6, X0+7, X0+11, X0+5, X0+4, 172

    def mm(k):
        acc = vr(SA+8, 4)
        return f"""s_waitcnt lgkmcnt({6-2*k})
        v_mfma_f32_16x16x32_bf16 {acc}, {vr(KMF+4*k,4)}, {vr(QF+4*k,4)}, {'0' if k==0 else acc}"""
    if NOMIMIC:
        a(f"""
        v_cndmask_b32 v{X0}, v{SA}, v{SA+4}, s[52:53]
        v_cndmask_b32 v{X0+1}, v{SA+1}, v{SA+5}, s[52:53]
        v_cndmask_b32 v{X0+2}, v{SA+2}, v{SA+6}, s[52:53]
        v_cndmask_b32 v{X0+3}, v{SA+3}, v{SA+7}, s[52:53]
        v_max3_f32 v{M0}, v{X0}, v{X0+1}, v{X0+2}
        v_max_f32 v{M0}, v{M0}, v{X0+3}
        {mm(0)}
        v_max_f32_dpp v{M0}, v{M0}, v{M0} row_ror:8 row_mask:0xf bank_mask:0xf
        v_mov_b32 v{TT}, v{M0}
        {mm(1)}
        v_permlane32_swap_b32 v{M0}, v{TT}
        {mm(2)}
        v_max_f32 v{M0}, v{M0}, v{TT}
        {mm(3)}
        s_nop 7
        v_max3_f32 v{M0}, v{M0}, v{SA+8}, v{SA+9}
        v_max3_f32 v{M0}, v{M0}, v{SA+10}, v{SA+11}
        v_mov_b32 v{TT}, v{M0}
        v_cndmask_b32 v{XM}, v{SA+8}, v{SA+9}, s[52:53]
        v_cndmask_b32 v{FF}, v{SA+10}, v{SA+11}, s[52:53]
        v_permlane16_swap_b32 v{M0}, v{TT}
        v_cndmask_b32 v{XM}, v{XM}, v{FF}, s[54:55]
        v_max_f32 v{M0}, v{M0}, v{TT}
        v_mul_f32 v{M0}, s61, v{M0}
        v_fma_f32 v{XM}, v{XM}, s61, -v{M0}
        v_fma_f32 v{X0}, v{X0}, s61, -v{M0}
        v_exp_f32 v{XM}, v{XM}
        v_fma_f32 v{X0+1}, v{X0+1}, s61, -v{M0}
        v_exp_f32 v{X0}, v{X0}
        v_fma_f32 v{X0+2}, v{X0+2}, s61, -v{M0}
        v_exp_f32 v{X0+1}, v{X0+1}
        v_fma_f32 v{X0+3}, v{X0+3}, s61, -v{M0}
        v_exp_f32 v{X0+2}, v{X0+2}
        v_add_f32 v{S0}, v{X0}, v{XM}
        v_exp_f32 v{X0+3}, v{X0+3}
        v_add_f32 v{S0}, v{S0}, v{X0+1}
        v_add_f32 v{S0}, v{S0}, v{X0+2}
        v_add_f32 v{S0}, v{S0}, v{X0+3}
        v_mov_b32_dpp v{MR}, v{XM} row_ror:8 row_mask:0xf bank_mask:0xf
        s_nop 0
        v_add_f32_dpp v{S0}, v{S0}, v{S0} row_ror:8 row_mask:0xf bank_mask:0xf
        v_mov_b32 v{TT}, v{S0}
        s_nop 1
        v_permlane16_swap_b32 v{S0}, v{TT}
        v_add_f32 v{S0}, v{S0}, v{TT}
        v_mov_b32 v{TT}, v{S0}
        s_nop 1
        v_permlane32_swap_b32 v{S0}, v{TT}
        v_add_f32 v{S0}, v{S0}, v{TT}
        v_rcp_f32 v{S0}, v{S0}
        s_nop 0
        v_mul_f32 v{X0}, v{X0}, v{S0}
        v_mul_f32 v{X0+1}, v{X0+1}, v{S0}
        v_mul_f32 v{X0+2}, v{X0+2}, v{S0}
        v_mul_f32 v{X0+3}, v{X0+3}, v{S0}
        v_cvt_pk_bf16_f32 v{T0}, v{X0}, v{X0+1}
        v_cvt_pk_bf16_f32 v{T0+1}, v{X0+2}, v{X0+3}
        v_mul_f32 v{XM}, v{XM}, v{S0}
        v_min_u32 v{T0}, -2, v{T0}
        v_min_u32 v{T0+1}, -2, v{T0+1}
        v_mul_f32 v{MR}, v{MR}, v{S0}
        buffer_store_dwordx2 {vr(T0,2)}, v{vST}, {WS}, s{sPB} offen sc1
        v_cvt_pk_bf16_f32 v{T0+2}, v{XM}, v{MR}
        v_min_u32 v{T0+2}, -2, v{T0+2}
        buffer_store_dword v{T0+2}, v{vSM}, {WS}, s{sPB} offen sc1
        v_readfirstlane_b32 s{sSEEN}, v190
        s_branch p_next
        """)
    else:
        a(f"""
        v_cndmask_b32 v{X0}, v{SA}, v{SA+4}, s[52:53]
        v_cndmask_b32 v{X0+1}, v{SA+1}, v{SA+5}, s[52:53]
        v_cndmask_b32 v{X0+2}, v{SA+2}, v{SA+6}, s[52:53]
        v_cndmask_b32 v{X0+3}, v{SA+3}, v{SA+7}, s[52:53]
        v_cvt_pk_bf16_f32 v{T0}, v{X0}, v{X0+1}
        v_cvt_pk_bf16_f32 v{T0+1}, v{X0+2}, v{X0+3}
        v_lshlrev_b32 v{X0}, 16, v{T0}
        v_and_b32 v{X0+1}, 0xffff0000, v{T0}
        v_lshlrev_b32 v{X0+2}, 16, v{T0+1}
        v_and_b32 v{X0+3}, 0xffff0000, v{T0+1}
        v_pk_mul_f32 v[{X0}:{X0+1}], v[{X0}:{X0+1}], s[62:63]
        v_pk_mul_f32 v[{X0+2}:{X0+3}], v[{X0+2}:{X0+3}], s[62:63]
        v_cvt_pk_bf16_f32 v{T0}, v{X0}, v{X0+1}
        v_cvt_pk_bf16_f32 v{T0+1}, v{X0+2}, v{X0+3}
        {mm(0)}
        v_lshlrev_b32 v{X0}, 16, v{T0}
        v_and_b32 v{X0+1}, 0xffff0000, v{T0}
        {mm(1)}
        v_lshlrev_b32 v{X0+2}, 16, v{T0+1}
        v_and_b32 v{X0+3}, 0xffff0000, v{T0+1}
        {mm(2)}
        v_max3_f32 v{M0}, v{X0}, v{X0+1}, v{X0+2}
        v_max_f32 v{M0}, v{M0}, v{X0+3}
        {mm(3)}
        v_mul_f32 v{X0}, s51, v{X0}
        v_max_f32_dpp v{M0}, v{M0}, v{M0} row_ror:8 row_mask:0xf bank_mask:0xf
        v_mov_b32 v{TT}, v{M0}
        v_mul_f32 v{X0+1}, s51, v{X0+1}
        v_mul_f32 v{X0+2}, s51, v{X0+2}
        v_permlane16_swap_b32 v{M0}, v{TT}
        v_max_f32 v{M0}, v{M0}, v{TT}
        v_mov_b32 v{TT}, v{M0}
        v_mul_f32 v{X0+3}, s51, v{X0+3}
        v_max3_f32 v{MR}, v{SA+8}, v{SA+9}, v{SA+10}
        v_permlane32_swap_b32 v{M0}, v{TT}
        v_max_f32 v{MR}, v{MR}, v{SA+11}
        v_max_f32 v{M0}, v{M0}, v{TT}
        v_mov_b32 v{TT}, v{MR}
        v_cndmask_b32 v{XM}, v{SA+8}, v{SA+9}, s[52:53]
        v_cndmask_b32 v{FF}, v{SA+10}, v{SA+11}, s[52:53]
        v_permlane16_swap_b32 v{MR}, v{TT}
        v_cndmask_b32 v{XM}, v{XM}, v{FF}, s[54:55]
        v_max_f32 v{MR}, v{MR}, v{TT}
        v_mul_f32 v{M0}, s51, v{M0}
        v_cvt_pk_bf16_f32 v{T0+2}, v{XM}, v{MR}
        v_sub_f32 v{X0}, v{X0}, v{M0}
        v_lshlrev_b32 v{XM}, 16, v{T0+2}
        v_and_b32 v{MR}, 0xffff0000, v{T0+2}
        v_sub_f32 v{X0+1}, v{X0+1}, v{M0}
        v_pk_mul_f32 v[{XM}:{MR}], v[{XM}:{MR}], s[62:63]
        v_exp_f32 v{X0}, v{X0}
        v_cvt_pk_bf16_f32 v{T0+2}, v{XM}, v{MR}
        v_exp_f32 v{X0+1}, v{X0+1}
        v_and_b32 v{MR}, 0xffff0000, v{T0+2}
        v_lshlrev_b32 v{XM}, 16, v{T0+2}
        v_mul_f32 v{MR}, s51, v{MR}
        v_mul_f32 v{XM}, s51, v{XM}
        v_max_f32 v{MR}, v{MR}, v{M0}
        v_sub_f32 v{X0+2}, v{X0+2}, v{M0}
        v_sub_f32 v{XM}, v{XM}, v{MR}
        v_sub_f32 v{FF}, v{M0}, v{MR}
        v_exp_f32 v{XM}, v{XM}
        v_sub_f32 v{X0+3}, v{X0+3}, v{M0}
        v_exp_f32 v{FF}, v{FF}
        v_exp_f32 v{X0+2}, v{X0+2}
        v_add_f32 v{S0}, v{X0}, v{X0+1}
        v_exp_f32 v{X0+3}, v{X0+3}
        v_add_f32 v{S0}, v{S0}, v{X0+2}
        v_mov_b32_dpp v{MR}, v{XM} row_ror:8 row_mask:0xf bank_mask:0xf
        v_add_f32 v{S0}, v{S0}, v{X0+3}
        v_fma_f32 v{S0}, v{S0}, v{FF}, v{XM}
        v_mul_f32 v{X0}, v{X0}, v{FF}
        v_mul_f32 v{X0+1}, v{X0+1}, v{FF}
        v_add_f32_dpp v{S0}, v{S0}, v{S0} row_ror:8 row_mask:0xf bank_mask:0xf
        v_mov_b32 v{TT}, v{S0}
        v_mul_f32 v{X0+2}, v{X0+2}, v{FF}
        v_mul_f32 v{X0+3}, v{X0+3}, v{FF}
        v_permlane16_swap_b32 v{S0}, v{TT}
        v_add_f32 v{S0}, v{S0}, v{TT}
        v_mov_b32 v{TT}, v{S0}
        s_nop 1
        v_permlane32_swap_b32 v{S0}, v{TT}
        v_add_f32 v{S0}, v{S0}, v{TT}
        v_rcp_f32 v{S0}, v{S0}
        s_nop 0
        v_mul_f32 v{X0}, v{X0}, v{S0}
        v_mul_f32 v{X0+1}, v{X0+1}, v{S0}
        v_mul_f32 v{X0+2}, v{X0+2}, v{S0}
        v_mul_f32 v{X0+3}, v{X0+3}, v{S0}
        v_cvt_pk_bf16_f32 v{T0}, v{X0}, v{X0+1}
        v_cvt_pk_bf16_f32 v{T0+1}, v{X0+2}, v{X0+3}
        v_mul_f32 v{XM}, v{XM}, v{S0}
        v_min_u32 v{T0}, -2, v{T0}
        v_min_u32 v{T0+1}, -2, v{T0+1}
        v_mul_f32 v{MR}, v{MR}, v{S0}
        buffer_store_dwordx2 {vr(T0,2)}, v{vST}, {WS}, s{sPB} offen sc1
        v_cvt_pk_bf16_f32 v{T0+2}, v{XM}, v{MR}
        v_min_u32 v{T0+2}, -2, v{T0+2}
        buffer_store_dword v{T0+2}, v{vSM}, {WS}, s{sPB} offen sc1
        v_readfirstlane_b32 s{sSEEN}, v190
        s_branch p_next
        """)
    a.label("p_other")
    a(f"""
    s_cmp_lg_u32 s{sW}, 1
    s_cbranch_scc1 p_w23
    """)
    for k in range(4):
        for tp in range(2):
            a(f"ds_read_b64_tr_b16 {vr(KMF+4*k+2*tp,2)}, v{vTR} offset:{2048+k*512+tp*256}")
    a("s_waitcnt lgkmcnt(0)")
    for r in range(16):
        a(f"v_min_u32 v{KMF+r}, -2, v{KMF+r}")
    for k in range(4):
        a(f"buffer_store_dwordx4 {vr(KMF+4*k,4)}, v189, {WS}, s57 offen offset:{k*512} sc1")
    a(f"""
    s_waitcnt vmcnt(0)
    s_mov_b64 exec, 1
    buffer_store_dword v188, off, {WS}, s60 sc1
    s_mov_b64 exec, -1
    s_branch p_next
    """)
    a.label("p_w23")
    a(f"""
    s_cmp_lg_u32 s{sW}, 2
    s_cbranch_scc1 p_next
    buffer_store_dwordx4 v[180:183], v186, {WS}, s66 offen sc1
    s_cmp_lg_u32 s{sID}, 0
    s_cbranch_scc1 p_next
    s_add_u32 s40, s{sSTEP}, 1
    v_mov_b32 v{X0}, s40
    s_mov_b64 exec, 1
    buffer_store_dword v{X0}, off, {WS}, s56 sc1
    s_mov_b64 exec, -1
    """)
    a.label("p_next")
    dstamp(a, 12, 191, f"s_cmp_lg_u32 s{sID}, 0\ns_cbranch_scc1 {{lab}}\ns_cmp_lg_u32 s{sSTEP}, 1\ns_cbranch_scc1 {{lab}}")
    dstamp(a, 13, 191, f"s_cmp_lg_u32 s{sID}, 0\ns_cbranch_scc1 {{lab}}\ns_cmp_lg_u32 s{sSTEP}, 63\ns_cbranch_scc1 {{lab}}")
    dstamp(a, 15, 191, f"s_cmp_lg_u32 s{sID}, 0\ns_cbranch_scc1 {{lab}}\ns_cmp_lg_u32 s{sSTEP}, 11\ns_cbranch_scc1 {{lab}}")
    stamp(a, 4)
    stamp_flush(a, 5, 191)
    a(f"""
    s_add_u32 s{sKX}, s{sKX}, {32*8192}
    s_add_u32 s57, s57, {32*2048}
    s_add_u32 s{sSTEP}, s{sSTEP}, 1
    s_cmp_lt_u32 s{sSTEP}, 64
    s_cbranch_scc1 p_loop
    s_endpgm
    """)
    flush_deferred(a)

    AF, AC3, PKM = 72, 80, 120
    a.label("role_vm")
    a(f"""
    s_sub_u32 s{sID}, s{sID}, 32
    s_load_dwordx4 s[64:67], s[0:1], {KA_WV}
    s_waitcnt lgkmcnt(0)
    """)
    srd(a, 16, 64, D * H * E * 2)
    srd(a, 20, 66, D * H * E * 2)
    if PDELAY:
        dbg_wait_wg(a, [(DBG_MOD20, 1)], 3, sleep=10)
    load_wv_wo(a)
    setup_qk_lds_addrs(a, vTW, vTR)
    a(f"""
    ; sparse-A transposing read: e0 = 32(gA/2) + 16(r/2) + 8(gA%2) + 2(c/2) + (r%2)
    v_lshrrev_b32 v10, 5, v{vLANE}
    v_lshlrev_b32 v10, 5, v10
    v_bfe_u32 v11, v{vLANE}, 3, 1
    v_lshl_add_u32 v10, v11, 4, v10
    v_bfe_u32 v11, v{vLANE}, 4, 1
    v_lshl_add_u32 v10, v11, 3, v10
    v_bfe_u32 v11, v{vLANE}, 1, 1
    v_lshl_add_u32 v10, v11, 1, v10
    v_bfe_u32 v11, v{vLANE}, 2, 1
    v_add_u32 v10, v10, v11
    v_lshlrev_b32 v10, 4, v10
    v_and_b32 v11, 1, v{vLANE}
    v_lshl_add_u32 v10, v11, 3, v10
    v_add_u32 v{vTR}, 0x{LDS_T:x}, v10
    v_lshlrev_b32 v12, 3, v{vLANE}
    v_and_b32 v13, 31, v{vLANE}
    v_lshlrev_b32 v13, 3, v13
    v_lshrrev_b32 v10, 5, v{vLANE}
    v_lshl_add_u32 v13, v10, 14, v13
    v_mov_b32 v132, -1
    v_mov_b32 v133, -1
    v_mov_b32 v134, 0
    s_mul_i32 s57, s{sID}, 10240
    s_mul_i32 s40, s{sW}, 2560
    s_add_u32 s57, s57, s40
    s_add_u32 s57, s57, 0x{WS_UMC:x}
    s_lshl_b32 s61, s{sID}, 7
    s_lshl_b32 s40, s{sW}, 2
    s_add_u32 s61, s61, s40
    s_add_u32 s61, s61, 0x{flag(FL_UF):x}
    """)
    get_pol(a, 135)
    mem_setup(a)
    a(f"""
    s_add_u32 s64, s{sSB}, 0x{WS_CRB + 32768:x}
    s_mul_i32 s65, s{sW}, {10*16384}
    s_lshl_b32 s40, s{sID}, 8
    s_add_u32 s65, s65, s40
    s_add_u32 s65, s65, s{sSA}
    s_add_u32 s65, s65, 0x{WS_CRA:x}
    s_mov_b32 s66, 0
    s_mov_b32 s67, {2*CRA_SLOT}
    """)
    a.label("vm_loop")
    stamp(a, 0)
    for r in range(40):
        a(f"v_mov_b32 v{AC3+r}, 0")
    a(f"""
    s_and_b32 s40, s{sSTEP}, 3
    s_lshl_b32 s40, s40, 17
    s_add_u32 s{sMEM}, s40, s64
    s_add_u32 s58, s65, s66
    s_cmp_eq_u32 s{sSTEP}, 0
    s_cbranch_scc1 vm_sync
    s_sleep {V_SLEEP}
    vm_sync:
    s_barrier
    """)
    stamp(a, 1)
    def vm_flag():
        if V_LAZY:
            a(f"""
            s_mov_b64 exec, 1
            buffer_store_dword v134, off, {WS}, s61 sc1
            s_mov_b64 exec, -1
            """)
    mem_proj2(a, [[0, 1]], sMEM, 135, after_valid=vm_flag)
    stamp(a, 2)
    a.nop(8)
    combine_pair(a, 0, 1, 136, 137)
    a(f"""
    ds_write_b64 v{vTW}, v[136:137]
    s_waitcnt lgkmcnt(0)
    s_barrier
    """)
    for kb in range(2):
        for n in range(2):
            a(f"ds_read_b64_tr_b16 {vr(AF+4*kb+2*n,2)}, v{vTR} offset:{(64*kb+4*n)*16}")
    stamp(a, 3)

    def vm_pack(p):
        A, B = AC3 + 8*p, AC3 + 8*p + 4
        L = [f"v_permlane32_swap_b32 v{A+r}, v{B+r}" for r in range(4)]
        if PKADD:
            L += [f"v_pk_add_f32 v[{A+r}:{A+r+1}], v[{A+r}:{A+r+1}], v[{B+r}:{B+r+1}]" for r in (0, 2)]
        else:
            L += [f"v_add_f32 v{A+r}, v{A+r}, v{B+r}" for r in range(4)]
        L += [f"v_cvt_pk_bf16_f32 v{PKM+2*p}, v{A}, v{A+1}", f"v_cvt_pk_bf16_f32 v{PKM+2*p+1}, v{A+2}, v{A+3}",
              f"buffer_store_dwordx2 {vr(PKM+2*p,2)}, v13, {WS}, s{68+p} offen sc1"]
        return L
    for p in range(5):
        a(f"s_add_u32 s{68+p}, s58, {p*32768}")
    a("s_waitcnt lgkmcnt(0)")
    pend = []
    slot = 0
    last_mf = {}
    for p in range(5):
        for kb in range(2):
            for jj in range(2):
                jt = 2*p + jj
                a(f"v_smfmac_f32_16x16x64_bf16 {vr(AC3+4*jt,4)}, {vr(AF+4*kb,4)}, {widx(160+(jt*4+2*kb)*4,8)}, v{vIDX}")
                slot += 1
                rdy = slot + 8
                n = 0
                if pend and slot < pend[0][0]:
                    k = min(2, pend[0][0] - slot)
                    a.nop(k)
                    slot += k
                    n = 2
                while pend and pend[0][0] <= slot and n < VM_FILL:
                    a(pend.pop(0)[1])
                    slot += 1
                    n += 1
        for x in vm_pack(p):
            pend.append((rdy, x))
    while pend:
        if pend[0][0] > slot:
            a.nop(pend[0][0] - slot)
            slot = pend[0][0]
        a(pend.pop(0)[1])
        slot += 1
    stamp(a, 4)
    if V_HOLD:
        a(f"""
        s_cmp_eq_u32 s{sSTEP}, 63
        s_cbranch_scc1 vm_nohold
        s_sleep {V_HOLD}
        vm_nohold:
        """)
    for p in range(5):
        a(f"buffer_store_dwordx2 {vr(PKM+2*p,2)}, v12, {WS}, s57 offen offset:{p*512} sc1")
    a("s_add_u32 s40, s65, s67")
    for p in range(5):
        a(f"buffer_store_dwordx2 v[132:133], v13, {WS}, s40 offen sc1")
        a("s_add_u32 s40, s40, 32768")
    a(f"""
    s_add_u32 s57, s57, {UM_STEP}
    s_mov_b32 s67, s66
    s_add_u32 s66, s66, {CRA_SLOT}
    s_cmp_ge_u32 s66, {3*CRA_SLOT}
    s_cselect_b32 s66, 0, s66
    s_add_u32 s40, s{sSTEP}, 1
    v_mov_b32 v134, s40
    """)
    if not V_LAZY:
        a(f"""
        s_waitcnt vmcnt(5)
        s_mov_b64 exec, 1
        buffer_store_dword v134, off, {WS}, s61 sc1
        s_mov_b64 exec, -1
        """)
    stamp_flush(a, 5, 191)
    a(f"""
    s_add_u32 s{sSTEP}, s{sSTEP}, 1
    s_cmp_lt_u32 s{sSTEP}, 64
    s_cbranch_scc1 vm_loop
    s_waitcnt vmcnt(0)
    s_mov_b64 exec, 1
    buffer_store_dword v134, off, {WS}, s61 sc1
    s_endpgm
    """)
    flush_deferred(a)

    TX, BX, PF, BM, CA = 16, 48, 80, 104, 112
    vPA, vPB, vWr, vRd, vUM = 8, 9, 12, 13, 140
    sUX = 33
    a.label("role_u")
    MODE2[0] = False
    a(f"s_sub_u32 s{sID}, s{sID}, 64")
    setup_p_load_addrs(a, vPA, vPB, vUM, 16384, 256)
    a(f"""
    s_lshl_b32 s40, s{sW}, 9
    v_lshlrev_b32 v{vWr}, 3, v{vLANE}
    v_add_u32 v{vWr}, s40, v{vWr}
    ; final lane l: c8 = l/32, i = (l/4)%8, cp = l%4 ; src lane' = (r&1)*32 + (i/4)*16 + 8c8 + 2cp ; comp = r>>1
    v_bfe_u32 v10, v{vLANE}, 2, 1           ; r&1
    v_lshlrev_b32 v10, 5, v10
    v_bfe_u32 v11, v{vLANE}, 4, 1           ; i/4
    v_lshl_add_u32 v10, v11, 4, v10
    v_lshrrev_b32 v11, 5, v{vLANE}
    v_lshl_add_u32 v10, v11, 3, v10
    v_and_b32 v11, 3, v{vLANE}
    v_lshl_add_u32 v10, v11, 1, v10
    v_lshlrev_b32 v10, 3, v10
    v_bfe_u32 v11, v{vLANE}, 3, 1           ; r>>1
    v_lshl_add_u32 v{vRd}, v11, 2, v10
    v_add_u32 v14, 1024, v{vRd}
    v_lshlrev_b32 v15, 2, v{vLANE}
    v_lshlrev_b32 v133, 7, v{vLANE}
    v_mov_b32 v123, 0
    s_mul_i32 s{sUX}, s{sW}, {8*40960}
    s_lshl_b32 s40, s{sID}, 10
    s_add_u32 s{sUX}, s{sUX}, s40
    s_add_u32 s{sUX}, s{sUX}, 0x{WS_UX:x}
    s_lshl_b32 s{sFT}, s{sW}, 10
    s_add_u32 s{sFT}, s{sFT}, 0x{flag(FL_VO):x}
    v_mov_b32 v134, -1
    """)
    get_pol(a, 135)
    a(f"""
    s_add_u32 s60, s{sSB}, 0x{WS_CRB + CRB_DOOR:x}
    s_add_u32 s64, s{sSB}, 0x{WS_CRB + 4*16384:x}   ; p base
    s_lshl_b32 s65, s{sID}, 8
    s_cmp_ge_u32 s{sID}, 32
    s_cselect_b32 s40, 8192, 0
    s_add_u32 s65, s65, s40
    s_add_u32 s65, s65, s{sSB}
    s_add_u32 s65, s65, 0x{WS_CRB:x}
    s_lshl_b32 s57, s{sID}, 14
    s_add_u32 s57, s57, s{sSA}
    s_add_u32 s57, s57, 0x{WS_CRA:x}
    s_mov_b32 s66, 0
    """)
    a.label("u_loop")
    stamp(a, 0)
    a(f"""
    s_and_b32 s40, s{sSTEP}, 3
    s_lshl_b32 s40, s40, 17
    s_add_u32 s{sPB}, s40, s64
    s_xor_b32 s41, s40, 0x40000
    s_add_u32 s41, s41, s65
    s_add_u32 s40, s{sSTEP}, 1
    s_and_b32 s40, s40, 3
    s_lshl_b32 s40, s40, 17
    s_add_u32 s{sMEM}, s40, s65
    s_cmp_lg_u32 s{sW}, 1
    s_cbranch_scc1 u_noarm
    buffer_store_dword v134, v15, {WS}, s41 offen sc1
    s_add_u32 s41, s41, 32768
    buffer_store_dword v134, v15, {WS}, s41 offen sc1
    u_noarm:
    """)
    a(f"""
    s_add_u32 s{sNEED}, s{sSTEP}, 1
    s_mov_b64 exec, 255
    v_cmp_gt_u32 vcc, s{sNEED}, v123
    s_mov_b64 exec, -1
    s_cbranch_vccz u_vok
    """)
    wait_all(a, 8, 133, sFT, sNEED, 123)
    a.label("u_vok")
    if U_HOLD:
        a(f"""
        s_cmp_eq_u32 s{sW}, 0
        s_cbranch_scc1 u_nohold
        s_cmp_eq_u32 s{sSTEP}, 0
        s_cbranch_scc1 u_nohold
        s_sleep {U_HOLD}
        u_nohold:
        """)
    a(f"s_mov_b32 s40, s{sUX}")
    for hh in range(8):
        a(f"buffer_load_dwordx4 {vr(TX+4*hh,4)}, v{vL16}, {WS}, s40 offen sc1")
        a(f"s_add_u32 s40, s40, 40960")
    a(f"""
    s_mov_b64 exec, 255
    buffer_load_dword v123, v133, {WS}, s{sFT} offen sc1
    s_mov_b64 exec, -1
    s_add_u32 s58, s57, s66
    s_add_u32 s66, s66, {CRA_SLOT}
    s_cmp_ge_u32 s66, {3*CRA_SLOT}
    s_cselect_b32 s66, 0, s66
    s_waitcnt vmcnt(0)
    """)
    for hh in range(8):
        for d in range(4):
            a(f"v_mov_b32 v{BX + 8*(hh//2) + 2*d + hh%2}, v{TX+4*hh+d}")
    stamp(a, 1)
    a(f"""
    s_cmp_lg_u32 s{sW}, 0
    s_cbranch_scc1 u_dsync
    """)
    for k in range(3):
        a(f"buffer_load_dword v{124+k}, off, {WS}, s60 sc1")
        a(f"s_sleep 1")
    a.label("u_dspin")
    for k in range(4):
        a(f"""
        buffer_load_dword v{124+(k+3)%4}, off, {WS}, s60 sc1
        s_waitcnt vmcnt(3)
        v_cmp_le_u32 vcc, s{sNEED}, v{124+k}
        s_cbranch_vccnz u_ddone
        s_nop 7
        """)
    a(f"""
    s_sub_u32 s{sBUD}, s{sBUD}, 1
    s_cmp_ge_i32 s{sBUD}, 0
    s_cbranch_scc1 u_dspin
    """)
    a.label("u_ddone")
    stamp(a, 2)
    a(f"s_sleep {U_SLEEPD}")
    a.label("u_dsync")
    a("s_barrier")
    stamp(a, 3)
    def u_mloads():
        for k in range(2):
            a(f"buffer_load_dwordx2 {vr(PF+16+2*k,2)}, v{vPB}, {WS}, s{sPB} offen offset:{k*1280} sc1")
        for j in range(4):
            a(f"buffer_load_dwordx2 {vr(BM+2*j,2)}, v{vUM}, {WS}, s58 offen offset:{j*512} sc1")
    a.label("u_ppoll")
    for q in range(4):
        a(f"buffer_load_dwordx4 {vr(PF+4*q,4)}, v{vPA}, {WS}, s{sPB} offen offset:{q*1280} sc1")
    u_mloads()
    for r in range(4):
        a(f"v_mov_b32 v{CA+r}, 0")
    a("v_mov_b32 v122, 0")
    for q in range(4):
        f = PF + 4*q
        a(f"s_waitcnt vmcnt({9-q})")
        a(f"v_smfmac_f32_16x16x64_bf16 {vr(CA,4)}, {vr(f,4)}, {vr(BX+8*q,8)}, v{vIDX}")
        a(f"v_max3_u32 v122, v122, v{f}, v{f+1}")
        a(f"v_max3_u32 v122, v122, v{f+2}, v{f+3}")
    a("v_cmp_eq_u32 vcc, -1, v122")
    poll_fail(a, "u_ppoll", sleep=1)
    a.label("u_mchk")
    a(f"""
    s_waitcnt vmcnt(4)
    v_swap_b32 v{PF+17}, v{PF+18}
    v_max3_u32 v122, v{PF+16}, v{PF+17}, v{PF+18}
    v_max_u32 v122, v122, v{PF+19}
    s_waitcnt vmcnt(2)
    v_max3_u32 v122, v122, v{BM}, v{BM+1}
    v_max3_u32 v122, v122, v{BM+2}, v{BM+3}
    s_waitcnt vmcnt(0)
    v_max3_u32 v122, v122, v{BM+4}, v{BM+5}
    v_max3_u32 v122, v122, v{BM+6}, v{BM+7}
    v_cmp_eq_u32 vcc, -1, v122
    s_cbranch_vccnz u_mretry
    u_mok:
    v_smfmac_f32_16x16x64_bf16 {vr(CA,4)}, {vr(PF+16,4)}, {vr(BM,8)}, v{vIDX}
    """)

    def u_ool():
        a.label("u_mretry")
        a(f"""
        s_sub_u32 s{sBUD}, s{sBUD}, 1
        s_cmp_lt_i32 s{sBUD}, 0
        s_cbranch_scc1 u_mok
        """)
        u_mloads()
        a("s_branch u_mchk")
    DEFERRED.append(u_ool)
    a.nop(2)
    stamp(a, 4)
    a.nop(6)
    a(f"""
    v_permlane32_swap_b32 v{CA}, v{CA+1}
    v_permlane32_swap_b32 v{CA+2}, v{CA+3}
    v_add_f32 v{CA}, v{CA}, v{CA+1}
    v_add_f32 v{CA+1}, v{CA+2}, v{CA+3}
    ds_write_b64 v{vWr}, {vr(CA,2)}
    s_waitcnt lgkmcnt(0)
    s_barrier
    s_cmp_lg_u32 s{sW}, 0
    s_cbranch_scc1 u_next
    ds_read2_b32 v[124:125], v{vRd} offset0:0 offset1:2
    ds_read2_b32 v[126:127], v{vRd} offset0:128 offset1:130
    ds_read2_b32 v[128:129], v14 offset0:0 offset1:2
    ds_read2_b32 v[130:131], v14 offset0:128 offset1:130
    s_add_u32 s40, s{sMEM}, 32768
    s_waitcnt lgkmcnt(2)
    v_add_f32 v124, v124, v126
    v_add_f32 v125, v125, v127
    s_waitcnt lgkmcnt(0)
    v_add_f32 v128, v128, v130
    v_add_f32 v129, v129, v131
    v_add_f32 v124, v124, v128
    v_add_f32 v125, v125, v129
    v_cvt_pk_bf16_f32 v124, v124, v125
    v_min_u32 v124, -2, v124
    buffer_store_dword v124, v15, {WS}, {"s40" if VMFIRST else "s"+str(sMEM)} offen sc1
    buffer_store_dword v124, v15, {WS}, {"s"+str(sMEM) if VMFIRST else "s40"} offen sc1
    """)
    if TICK:
        a(f"""
        s_cmp_lg_u32 s{sID}, 0
        s_cbranch_scc1 u_next
        v_mov_b32 v125, s{sNEED}
        s_mov_b64 exec, 1
        buffer_store_dword v125, off, {WS}, s60 offset:256 sc1
        s_mov_b64 exec, -1
        """)
    a.label("u_next")
    stamp(a, 5)
    stamp_flush(a, 6, 191)
    a(f"""
    s_add_u32 s{sUX}, s{sUX}, {UX_STEP}
    s_add_u32 s{sSTEP}, s{sSTEP}, 1
    s_cmp_lt_u32 s{sSTEP}, 63
    s_cbranch_scc1 u_loop
    s_endpgm
    """)
    flush_deferred(a)

    vH = 14
    sHOFF, sHBUF, sOUT, sFM = 37, 38, 39, 56

    def publish(role, sval, wv=3):
        lab = a.newlabel("pub")
        a(f"""
        s_cmp_lg_u32 s{sW}, {wv}
        s_cbranch_scc1 {lab}
        v_mov_b32 v3, {sval}
        s_mov_b64 exec, 1
        buffer_store_dword v3, off, {WS}, s{sFT} sc1
        s_mov_b64 exec, -1
        {lab}:
        """)

    from gen_boot import dbg_wait_wg, DBG_INIT, DBG_LN, N_INITW

    def ln_ready():
        top, done = a.newlabel("lr"), a.newlabel("lrd")
        a(f"""
        s_add_u32 s45, s{sSTEP}, 1
        s_and_b32 s46, s45, 7
        s_cmp_lg_u32 s46, 0
        s_cbranch_scc1 {done}
        s_cmp_ge_u32 s45, 64
        s_cbranch_scc1 {done}
        s_lshr_b32 s45, s45, 1
        {top}:
        buffer_load_dword v3, off, {DBG}, s45 offset:{DBG_LN} sc1
        s_waitcnt vmcnt(0)
        v_readfirstlane_b32 s44, v3
        s_sub_u32 s{sBUD}, s{sBUD}, 1
        s_cmp_lt_i32 s{sBUD}, 0
        s_cbranch_scc1 {done}
        s_cmp_ge_u32 s44, 1
        s_cbranch_scc1 {done}
        s_sleep 4
        s_branch {top}
        {done}:
        """)

    def loop_top():
        a(f"""
        v_add_u32 v{vH}, s{sHBUF}, v{vL16}
        s_sub_u32 s{sHBUF}, 40960, s{sHBUF}
        s_add_u32 s{sHOFF}, s{sHOFF}, 40960
        """)
        ln_ready()
        dmal_init(a, sHOFF, sHBUF)

    a.label("role_t")
    a(f"""
    s_sub_u32 s{sID}, s{sID}, 112
    s_mov_b32 s{sHOFF}, 0x{WS_H1F:x}
    s_mov_b32 s{sHBUF}, 0
    """)
    load_wqk(a, depth=TDEPTH)
    dbg_wait_wg(a, [(DBG_INIT, 1), (DBG_LN, 1)], 3, sleep=2)
    dmal_init(a, sHOFF, sHBUF)
    for k in range(10):
        dmal_one(a)
    a(f"""
    s_lshl_b32 s{sOUT}, s{sID}, 13
    s_lshl_b32 s40, s{sW}, 10
    s_add_u32 s{sOUT}, s{sOUT}, s40
    s_add_u32 s{sOUT}, s{sOUT}, 0x{WS_KX:x}
    s_lshl_b32 s{sFT}, s{sID}, 7
    s_add_u32 s{sFT}, s{sFT}, 0x{flag(FL_T):x}
    s_waitcnt vmcnt(0)
    s_barrier
    """)
    a.label("t_loop")
    stamp(a, 0)
    loop_top()
    DMK = [0, 1, 3, 4, 6, 7, 9, 10, 12, 13]

    def hook_t(ks):
        if ks in DMK:
            dmal_one(a)
        if ks == 5:
            a("s_waitcnt vmcnt(4)")
            a("s_barrier")
            publish("t", f"s{sSTEP}")
    dense_proj(a, vH, True, hook_t)
    stamp(a, 1)
    a.nop(4)
    PK = 128
    a(f"s_add_u32 s40, s{sOUT}, 0x{WS_QX-WS_KX:x}")
    for mat in (0, 1):
        for mt in range(2):
            tm = PK + (mat*2+mt) * 4
            for tt in range(2):
                b = TACC + ((mat*2+tt)*2 + mt) * 4
                a(f"v_cvt_pk_bf16_f32 v{tm+2*tt}, v{b}, v{b+1}")
                a(f"v_cvt_pk_bf16_f32 v{tm+2*tt+1}, v{b+2}, v{b+3}")
    a("s_waitcnt vmcnt(0)")
    for mat in (1, 0):
        for mt in range(2):
            tm = PK + (mat*2+mt) * 4
            so = "s40" if mat == 0 else f"s{sOUT}"
            a(f"buffer_store_dwordx4 {vr(tm,4)}, v{vL16+mt}, {WS}, {so} offen sc1")
    a(f"""
    s_add_u32 s{sOUT}, s{sOUT}, {32*8192}
    s_cmp_lg_u32 s{sSTEP}, 0
    s_cbranch_scc1 t_ne
    s_waitcnt vmcnt(0)
    s_barrier
    """)
    publish("t", "1")
    a("t_ne:")
    a("s_barrier")
    stamp(a, 2)
    stamp_flush(a, 3, 1)
    a(f"""
    s_add_u32 s{sSTEP}, s{sSTEP}, 1
    s_cmp_lt_u32 s{sSTEP}, 64
    s_cbranch_scc1 t_loop
    s_waitcnt vmcnt(0)
    s_barrier
    """)
    publish("t", f"s{sSTEP}")
    a(f"""
    {"s_endpgm" if NOTOK else ""}
    s_mov_b32 s{sSTEP}, 0
    s_add_u32 s97, s97, {300*72*32}
    s_branch {"help_c" if HELP else "help_f"}
    help_f:
    s_cmp_ge_u32 s{sID}, 27
    s_cbranch_scc1 t_a
    s_add_u32 s{sID}, s{sID}, 212
    s_mov_b32 s100, {F1S+1}
    s_branch role_f
    t_a:
    s_add_u32 s{sID}, s{sID}, {176-27}
    s_mov_b32 s100, {SENT0+1}
    s_branch role_a
    """)

    VF, AC2 = 16, 128
    LDS_V = LDS_T
    a.label("role_vo")
    a(f"""
    s_sub_u32 s{sID}, s{sID}, 144
    s_load_dwordx4 s[64:67], s[0:1], {KA_WV}
    s_mov_b32 s{sHOFF}, 0x{WS_H1F:x}
    s_mov_b32 s{sHBUF}, 0
    s_waitcnt lgkmcnt(0)
    """)
    srd(a, 16, 64, D * H * E * 2)
    srd(a, 20, 66, D * H * E * 2)
    load_wv_wo(a)
    dbg_wait_wg(a, [(DBG_INIT, 1), (DBG_LN, 1)], 3, sleep=2)
    dmal_init(a, sHOFF, sHBUF)
    for k in range(10):
        dmal_one(a)
    a(f"""
    s_mul_i32 s{sOUT}, s{sID}, 40960
    s_mul_i32 s40, s{sW}, 10240
    s_add_u32 s{sOUT}, s{sOUT}, s40
    s_add_u32 s{sOUT}, s{sOUT}, 0x{WS_UX:x}
    s_lshl_b32 s{sFT}, s{sID}, 7
    s_add_u32 s{sFT}, s{sFT}, 0x{flag(FL_VO):x}
    s_lshl_b32 s40, s{sW}, 10
    s_add_u32 s40, s40, 0x{LDS_V:x}
    v_add_u32 v12, s40, v{vL16}
    v_add_u32 v13, 0x{LDS_V:x}, v{vL16}
    s_waitcnt vmcnt(0)
    s_barrier
    """)
    a.label("vo_loop")
    stamp(a, 0)
    loop_top()

    def hook_v(ks):
        if ks % 2 == 0:
            dmal_one(a)
    dense_proj(a, vH, True, hook_v, tiles=(0, 1))
    a.nop(6)
    for mt in range(2):
        for tt in range(2):
            b = TACC + (tt*2 + mt) * 4
            a(f"v_cvt_pk_bf16_f32 v{168+4*mt+2*tt}, v{b}, v{b+1}")
            a(f"v_cvt_pk_bf16_f32 v{168+4*mt+2*tt+1}, v{b+2}, v{b+3}")
        a(f"ds_write_b128 v12, {vr(168+4*mt,4)} offset:{mt*4096}")
    a(f"""
    s_waitcnt vmcnt(10) lgkmcnt(0)
    s_barrier
    """)
    stamp(a, 1)
    for k in range(4):
        for mt in range(2):
            a(f"ds_read_b128 {vr(VF+(mt*4+k)*4,4)}, v13 offset:{mt*4096+k*1024}")
    publish("vo", f"s{sSTEP}")
    for hb in range(2):
        for k in range(4):
            if hb == 0:
                a(f"s_waitcnt lgkmcnt({6-2*k})")
            for j5 in range(5):
                for mt in range(2):
                    acc = vr(AC2 + (j5*2+mt)*4, 4) if hb == 0 else vr(TACC + (j5*2+mt)*4, 4)
                    a(f"v_mfma_f32_16x16x32_bf16 {acc}, {vr(VF+(mt*4+k)*4,4)}, {widx(160+((hb*5+j5)*4+k)*4)}, {'0' if k == 0 else acc}")
                if hb == 1 and k < 3 and j5 < 2 and (k*2+j5) < 5:
                    q = k*2 + j5
                    tm = 168 + (q % 2) * 4
                    for mt in range(2):
                        b = AC2 + (q*2+mt)*4
                        a(f"v_cvt_pk_bf16_f32 v{tm+2*mt}, v{b}, v{b+1}")
                        a(f"v_cvt_pk_bf16_f32 v{tm+2*mt+1}, v{b+2}, v{b+3}")
                    r, o = l16(q * 1024)
                    a(f"buffer_store_dwordx4 {vr(tm,4)}, {r}, {WS}, s{sOUT} offen offset:{o} sc1")
    for q in range(5):
        tm = 176 + (q % 2) * 4
        for mt in range(2):
            b = TACC + (q*2+mt)*4
            a(f"v_cvt_pk_bf16_f32 v{tm+2*mt}, v{b}, v{b+1}")
            a(f"v_cvt_pk_bf16_f32 v{tm+2*mt+1}, v{b+2}, v{b+3}")
        r, o = l16((5+q) * 1024)
        a(f"buffer_store_dwordx4 {vr(tm,4)}, {r}, {WS}, s{sOUT} offen offset:{o} sc1")
    a(f"""
    s_add_u32 s{sOUT}, s{sOUT}, {UX_STEP}
    s_cmp_lg_u32 s{sSTEP}, 0
    s_cbranch_scc1 vo_ne
    s_waitcnt vmcnt(0)
    s_barrier
    """)
    publish("vo", "1")
    a(f"""
    vo_ne:
    s_waitcnt vmcnt(10)
    s_barrier
    """)
    stamp(a, 2)
    stamp_flush(a, 3, 1)
    a(f"""
    s_add_u32 s{sSTEP}, s{sSTEP}, 1
    s_cmp_lt_u32 s{sSTEP}, 64
    s_cbranch_scc1 vo_loop
    s_waitcnt vmcnt(0)
    s_barrier
    """)
    publish("vo", f"s{sSTEP}")
    a(f"""
    {"s_endpgm" if NOTOK else ""}
    s_mov_b32 s{sSTEP}, 0
    s_add_u32 s97, s97, {300*72*32}
    s_branch {"help_f" if HELP else "help_c"}
    help_c:
    s_cmp_ge_u32 s{sID}, {NC}
    s_cbranch_scc1 vo_a
    s_add_u32 s{sID}, s{sID}, {184+NC}
    s_branch role_c
    vo_a:
    s_cmp_ge_u32 s{sID}, {NC+3}
    s_cbranch_scc1 r_end
    s_add_u32 s{sID}, s{sID}, {176+5-NC}
    s_mov_b32 s100, {SENT0+1}
    s_branch role_a
    """)

    KF2, QF2, KMF2, SA2, Y0 = 16, 48, 80, 96, 120
    sKXR, sKM = 33, 57
    a.label("role_al")
    a(f"""
    s_sub_u32 s40, s{sID}, 176
    s_sub_u32 s41, s{sID}, 196
    s_cmp_lt_u32 s{sID}, 184
    s_cselect_b32 s40, s40, s41             ; 0..15
    s_lshl_b32 s40, s40, 1
    s_and_b32 s41, s{sW}, 1
    s_add_u32 s{sID}, s40, s41
    s_cmp_ge_u32 s{sW}, 2
    s_cbranch_scc1 role_l
    s_branch role_a2
    """)
    a.label("role_a")
    a(f"""
    s_sub_u32 s{sID}, s{sID}, 176
    s_lshl_b32 s{sID}, s{sID}, 2
    s_add_u32 s{sID}, s{sID}, s{sW}         ; head
    role_a2:
    v_bfe_u32 v10, v{vLANE}, 3, 1           ; b
    v_and_b32 v11, 7, v{vLANE}              ; i
    v_lshrrev_b32 v15, 4, v{vLANE}          ; g
    v_lshlrev_b32 v8, 7, v15
    v_lshl_add_u32 v8, v11, 4, v8
    v_mul_u32_u24 v10, {PB_RG}, v10
    v_lshl_add_u32 v{vST}, v11, 4, v10      ; + i*16
    v_and_b32 v11, 1, v15
    v_lshl_add_u32 v{vST}, v11, 3, v{vST}   ; + (g&1)*8
    v_lshrrev_b32 v11, 1, v15
    v_lshl_add_u32 v{vSM}, v11, 7, v{vST}
    v_lshl_add_u32 v{vST}, v11, 8, v{vST}
    v_and_b32 v10, 15, v{vLANE}
    v_lshlrev_b32 v11, 2, v15               ; 4g
    """)
    for r in range(4):
        a(f"v_add_u32 v15, {r}, v11")
        a(f"v_cmp_le_u32 s[{64+r*2}:{65+r*2}], v15, v10")
    a(f"""
    s_mov_b32 s54, 0
    s_mov_b32 s55, -1
    s_lshl_b32 s{sPB}, s{sID}, 9
    s_add_u32 s{sPB}, s{sPB}, 0x{WS_PT:x}
    ; mem part offset relative to token part: 16384 + (2(h/4) + h%2)*256 + ((h>>1)&1)*4 - h*512
    s_lshr_b32 s40, s{sID}, 2
    s_lshl_b32 s40, s40, 1
    s_and_b32 s41, s{sID}, 1
    s_add_u32 s40, s40, s41
    s_lshl_b32 s40, s40, 8
    s_bfe_u32 s41, s{sID}, 0x10001
    s_lshl_b32 s41, s41, 2
    s_add_u32 s40, s40, s41
    s_add_u32 s40, s40, 16384
    s_lshl_b32 s41, s{sID}, 9
    s_sub_u32 s61, s40, s41
    s_lshl_b32 s58, s{sID}, 7
    s_add_u32 s59, s58, 0x{flag(FL_A):x}
    s_add_u32 s58, s58, 0x{flag(FL_KM):x}
    s_mov_b32 s60, 0
    s_lshl_b32 s{sKXR}, s{sID}, 13
    s_add_u32 s{sKXR}, s{sKXR}, 0x{WS_KX:x}
    s_lshl_b32 s{sKM}, s{sID}, 11
    s_add_u32 s{sKM}, s{sKM}, 0x{WS_KM:x}
    s_lshl_b32 s{sFT}, s{sID}, 7
    s_add_u32 s{sFT}, s{sFT}, 0x{flag(FL_T):x}
    s_mov_b32 s{sSEEN}, 0
    s_mov_b32 s{sSTEP}, s100
    s_cmp_eq_u32 s100, 0
    s_cbranch_scc1 a_prim
    s_add_u32 s{sPB}, s{sPB}, {(SENT0+1)*PT_STEP}
    s_add_u32 s{sKXR}, s{sKXR}, {(SENT0+1)*32*8192}
    s_add_u32 s{sKM}, s{sKM}, {(SENT0+1)*32*2048}
    s_mov_b32 s59, 0x{flag(FL_DUMMY):x}
    """)
    wait_flag(a, 58, 100, 60, Y0, sleep=32)
    a.label("a_prim")

    KQ = [(16, 48), (144, 176)]

    def a_kq(need, buf):
        wait_flag(a, sFT, need, sSEEN, Y0+1, sleep=8)
        a(f"s_add_u32 s40, s{sKXR}, 0x{WS_QX-WS_KX:x}")
        for f in range(8):
            r, o = l16(f * 1024)
            a(f"buffer_load_dwordx4 {vr(KQ[buf][0]+4*f,4)}, {r}, {WS}, s{sKXR} offen offset:{o} sc1")
        for f in range(8):
            r, o = l16(f * 1024)
            a(f"buffer_load_dwordx4 {vr(KQ[buf][1]+4*f,4)}, {r}, {WS}, s40 offen offset:{o} sc1")
        a(f"s_add_u32 s{sKXR}, s{sKXR}, {32*8192}")

    def a_km():
        for k in range(4):
            a(f"buffer_load_dwordx4 {vr(KMF2+4*k,4)}, v8, {WS}, s{sKM} offen offset:{k*512} sc1")
    a(f"s_add_u32 s{sNEED}, s{sSTEP}, 1")
    a_kq(sNEED, 0)
    a("s_mov_b32 s47, 0")
    a.label("a_loop")
    for buf in range(2):
        KF2, QF2 = KQ[buf]
        stamp(a, 0)
        a(f"""
        s_add_u32 s{sNEED}, s{sSTEP}, 1
        s_cmp_eq_u32 s47, 1
        s_cbranch_scc1 a_chk{buf}
        s_cmp_ge_u32 s{sSTEP}, {SENT0}
        s_cbranch_scc1 a_kml{buf}
        """)
        wait_flag(a, 58, sNEED, 60, Y0, sleep=4)
        a.label(f"a_kml{buf}")
        a_km()
        a.label(f"a_chk{buf}")
        stamp(a, 1)
        a("s_waitcnt vmcnt(0)")
        vmax_chain(a, Y0, range(KMF2, KMF2+16))
        poll_fail(a, f"a_kml{buf}", sleep=3)
        stamp(a, 2)
        a(f"""
        s_cmp_ge_u32 s{sSTEP}, {SENT0}
        s_cselect_b32 s46, 2, 1
        s_cselect_b32 s45, {32*8192}, 0
        s_add_u32 s{sKXR}, s{sKXR}, s45
        s_add_u32 s45, s{sNEED}, s46
        s_min_u32 s45, s45, 64
        """)
        for qt in range(2):
            for k in range(4):
                for mt in range(qt + 1):
                    acc = vr(SA2+12*qt+4*mt, 4)
                    a(f"v_mfma_f32_16x16x32_bf16 {acc}, {vr(KF2+(mt*4+k)*4,4)}, {vr(QF2+(qt*4+k)*4,4)}, {'0' if k==0 else acc}")
                acc = vr(SA2+12*qt+8, 4)
                a(f"v_mfma_f32_16x16x32_bf16 {acc}, {vr(KMF2+4*k,4)}, {vr(QF2+(qt*4+k)*4,4)}, {'0' if k==0 else acc}")
        for qt in range(2):
            SB = SA2 + 12*qt
            if qt == 0:
                a.nop(2)
            a(f"""
            v_cndmask_b32 v{SB+8}, v{SB+8}, v{SB+10}, s[54:55]
            v_cndmask_b32 v{SB+9}, v{SB+9}, v{SB+11}, s[54:55]
            """)
            xs = [SB + k for k in range(4*(qt+1))] + [SB+8, SB+9]
            round_scale(a, xs, Y0+8, 50)
            a(f"v_mov_b32 v{Y0}, 0xce6e6b28")
            for k in range(4):
                a(f"v_cndmask_b32 v{SB+4*qt+k}, v{Y0}, v{SB+4*qt+k}, s[{64+2*k}:{65+2*k}]")
            softmax(a, xs, Y0+6, Y0+7, 51, False)
            O = 208 + 8*qt
            for half in range(2):
                for m in range(2):
                    if m <= qt:
                        a(f"v_cvt_pk_bf16_f32 v{O+2*half+m}, v{SB+4*m+2*half}, v{SB+4*m+2*half+1}")
                    else:
                        a(f"v_mov_b32 v{O+2*half+m}, 0")
            a(f"v_cvt_pk_bf16_f32 v{O+4}, v{SB+8}, v{SB+9}")
            for k in range(5):
                a(f"v_min_u32 v{O+k}, -2, v{O+k}")
            a(f"s_add_u32 s40, s{sPB}, {qt*2*PB_RG}")
            for half in range(2):
                a(f"buffer_store_dwordx2 {vr(O+2*half,2)}, v{vST}, {WS}, s40 offen offset:{half*128} sc1")
            a(f"s_add_u32 s40, s40, s61")
            a(f"buffer_store_dword v{O+4}, v{vSM}, {WS}, s40 offen sc1")
            if qt == 0:
                a(f"buffer_load_dword v{Y0+2}, off, {WS}, s58 sc1")
                a_kq(45, 1 - buf)
        a(f"""
        s_lshl_b32 s40, s46, 16
        s_add_u32 s{sKM}, s{sKM}, s40
        s_mul_i32 s40, s46, {PT_STEP}
        s_add_u32 s{sPB}, s{sPB}, s40
        v_mov_b32 v{Y0}, s{sNEED}
        s_waitcnt vmcnt(19)
        v_readfirstlane_b32 s60, v{Y0+2}
        s_add_u32 s{sSTEP}, s{sSTEP}, s46
        s_mov_b32 s47, 0
        s_nop 1
        s_cmp_le_u32 s60, s{sSTEP}
        s_cbranch_scc1 a_nk{buf}
        s_mov_b32 s47, 1
        """)
        a_km()
        a(f"""
        s_waitcnt vmcnt(4)
        s_branch a_pub{buf}
        a_nk{buf}:
        s_waitcnt vmcnt(0)
        a_pub{buf}:
        s_mov_b64 exec, 1
        buffer_store_dword v{Y0}, off, {WS}, s59 sc1
        s_mov_b64 exec, -1
        """)
        stamp(a, 3)
        if STAMP:
            a(f"s_sub_u32 s{sSTEP}, s{sSTEP}, s46")
            stamp_flush(a, 4, 1)
            a(f"s_add_u32 s{sSTEP}, s{sSTEP}, s46")
        a(f"""
        s_cmp_ge_u32 s{sSTEP}, 64
        s_cbranch_scc1 r_end
        """)
    a("s_branch a_loop")

    a.label("role_l")
    if "l" in KILL:
        a("s_endpgm")
    ln_setup(a, 3, 4, False)
    a(f"""
    s_mov_b32 s40, s{sID}                   ; row
    {"s_sub_u32 s3, s3, 2" if STAMP else ""}
    {"s_add_u32 s97, s97, " + str(100*72*32) if STAMP else ""}
    s_mul_i32 s46, s40, 1280
    s_add_u32 s47, s46, 0x{WS_H2F:x}
    s_lshl_b32 s48, s40, 7
    s_add_u32 s48, s48, 0x{flag(FL_L):x}
    s_mov_b32 s49, 0x{flag(FL_CC):x}
    v_lshlrev_b32 v9, 1, v{L_DST}
    v_cndmask_b32 v9, v{L_DST}, v9, s[76:77]
    s_mov_b32 s40, {WS_MOD + 2*2560}
    s_mov_b32 s52, 20
    """)
    GA = 48
    for h in range(2):
        a(f"buffer_load_dwordx4 {vr(GA+8*h,4)}, v9, {WS}, s40 offen offset:{h*1280} sc1")
        a(f"buffer_load_dwordx4 {vr(GA+8*h+4,4)}, v9, {WS}, s40 offen offset:{h*1280+16} sc1")
    a("s_mov_b32 s54, 0")
    a.label("l_loop")
    stamp(a, 0)
    a(f"""
    s_add_u32 s45, s{sSTEP}, 1
    s_add_u32 s41, s46, 0x{WS_ATT:x}
    s_add_u32 s42, s46, 0x{WS_X1:x}
    s_mov_b32 s53, 0
    s_cmp_eq_u32 s54, 1
    s_cbranch_scc1 l_chk
    """)
    ln_load(a, XS, 46, "", False, raw=24)
    a(f"""
    s_cmp_ge_u32 s{sSTEP}, {SENT0}
    s_cbranch_scc1 l_ld
    """)
    wait_flag(a, 49, 52, 53, 16, sleep=3)
    a.label("l_ld")
    ln_load(a, WS, 41, "sc1", False)
    a(f"buffer_load_dword v17, off, {WS}, s49 offset:128 sc1")
    a("s_waitcnt vmcnt(0)")
    a.label("l_chk")
    stamp(a, 1)
    vmax_chain(a, 16, range(L_RAW, L_RAW+8))
    poll_fail(a, "l_ld", sleep=3)
    a("v_readfirstlane_b32 s55, v17")
    ln_unpack(a, False)
    for j in range(8):
        x0, x1 = L_X + 2*j, L_X + 2*j + 1
        a(f"""
        v_mul_f32 v{x0}, v{x0}, v{GA+2*j}
        v_mul_f32 v{x1}, v{x1}, v{GA+2*j+1}
        v_cvt_pk_bf16_f32 v{L_T}, v{x0}, v{x1}
        v_lshlrev_b32 v{x0}, 16, v{L_T}
        v_and_b32 v{x1}, 0xffff0000, v{L_T}
        v_lshlrev_b32 v{L_T}, 16, v{24+j}
        v_and_b32 v{L_T2}, 0xffff0000, v{24+j}
        v_add_f32 v{x0}, v{x0}, v{L_T}
        v_add_f32 v{x1}, v{x1}, v{L_T2}
        v_cvt_pk_bf16_f32 v{32+j}, v{x0}, v{x1}
        v_lshlrev_b32 v{x0}, 16, v{32+j}
        v_and_b32 v{x1}, 0xffff0000, v{32+j}
        """)
    for j in range(8):
        a(f"v_min_u32 v{32+j}, -2, v{32+j}")
    a(f"buffer_store_dwordx4 v[32:35], v{L_DST}, {WS}, s42 offen sc1")
    a(f"buffer_store_dwordx4 v[36:39], v{L_DST}, {WS}, s42 offen offset:640 sc1")
    a(f"""
    s_mov_b32 s54, 0
    s_cmp_ge_u32 s{sSTEP}, {SENT0-1}
    s_cselect_b32 s55, 20, s55
    s_cmp_lt_u32 s55, 20
    s_cbranch_scc1 l_nopf
    s_cmp_ge_u32 s{sSTEP}, 63
    s_cbranch_scc1 l_nopf
    s_mov_b32 s54, 1
    s_add_u32 s40, s46, {32*1280}
    s_add_u32 s41, s41, {32*1280}
    """)
    ln_load(a, XS, 40, "", False, raw=24)
    ln_load(a, WS, 41, "sc1", False)
    a(f"buffer_load_dword v17, off, {WS}, s49 offset:256 sc1")
    a.label("l_nopf")
    ln_compute_store(a, 47)
    a("s_add_u32 s49, s49, 128")
    stamp(a, 2)
    a(f"""
    v_mov_b32 v16, s45
    s_add_u32 s46, s46, {32*1280}
    s_add_u32 s47, s47, {32*1280}
    s_waitcnt vmcnt(0)
    s_mov_b64 exec, 1
    buffer_store_dword v16, off, {WS}, s48 sc1
    s_mov_b64 exec, -1
    """)
    stamp(a, 3)
    stamp_flush(a, 4, 1)
    a(f"""
    s_add_u32 s{sSTEP}, s{sSTEP}, 1
    s_cmp_lt_u32 s{sSTEP}, 64
    s_cbranch_scc1 l_loop
    s_endpgm
    """)

    vPT, vBM, vXS = 240, 239, 242
    sUXR, sPFC = 33, 59
    sA, sV = 61, 62
    PFB = [16, 96]
    BMB = [128, 144]
    CAC = 176
    from gen_boot import arrive
    a.label("role_c")
    if "c" in KILL:
        a("s_endpgm")
    a(f"s_sub_u32 s{sID}, s{sID}, 184")
    setup_p_load_addrs(a, vPA, vPB, vBM)
    a(f"""
    s_lshl_b32 s40, s{sW}, 12
    v_add_u32 v{vPT}, s40, v{vL16}
    v_add_u32 v{vRd}, s40, v{vL16}
    s_lshl_b32 s40, s{sW}, 10
    v_add_u32 v{vWr}, s40, v{vL16}
    v_add_u32 v241, 16384, v{vWr}
    v_and_b32 v10, 15, v{vLANE}             ; n
    v_lshrrev_b32 v11, 5, v{vLANE}          ; pr
    v_lshl_add_u32 v10, v11, 4, v10
    v_bfe_u32 v11, v{vLANE}, 4, 1
    v_lshlrev_b32 v11, 2, v11
    s_lshl_b32 s40, s{sW}, 3
    v_add_u32 v11, s40, v11
    v_mul_u32_u24 v11, 1280, v11
    v_lshl_add_u32 v{vXS}, v10, 1, v11
    v_and_b32 v10, 1, v{vLANE}
    v_mov_b32 v11, 0x7ffffff0
    v_cmp_ne_u32 vcc, 0, v10
    v_lshlrev_b32 v243, 7, v{vLANE}
    v_mov_b32 v232, 0
    v_cndmask_b32 v{vXS}, v{vXS}, v11, vcc
    v_mov_b32 v231, 20
    s_lshl_b32 s40, s{sW}, 10
    s_add_u32 s{sFT}, s40, 0x{flag(FL_UF):x}
    s_add_u32 s{sA}, s40, 0x{flag(FL_A):x}
    s_add_u32 s{sV}, s40, 0x{flag(FL_VO):x}
    s_mov_b32 s{sFM}, 0x{flag(FL_MEM):x}
    s_mul_i32 s73, s{sW}, {8*40960}
    s_add_u32 s73, s73, 0x{WS_UX:x}
    s_add_u32 s76, s{sID}, {CT0}
    s_cmp_ge_u32 s{sID}, {NC}
    s_cselect_b32 s77, s76, s{sID}
    s_mov_b32 s78, s77
    s_mov_b32 s79, s77
    """)

    TIX = {57: 77, 60: 78, 68: 79}

    def dec(ss, sk):
        t = TIX[ss]
        a(f"""
        s_mul_i32 s{ss}, s{t}, 3277
        s_lshr_b32 s{ss}, s{ss}, 16
        s_mul_i32 s40, s{ss}, 20
        s_sub_u32 s{sk}, s{t}, s40
        """)

    def adv(ss, sk):
        t = TIX[ss]
        a(f"""
        s_add_u32 s40, s{t}, {NC}
        s_cmp_lt_u32 s40, {CT0}
        s_cselect_b32 s40, s40, s76
        s_add_u32 s41, s{t}, {2*NC}
        s_cmp_lt_u32 s{t}, {CT0}
        s_cselect_b32 s{t}, s40, s41
        """)
        dec(ss, sk)
    dec(57, 58)
    dec(60, 63)
    dec(68, 72)

    def c_needs():
        a(f"s_add_u32 s44, s60, 1")

    def c_offs():
        a(f"""
        s_mul_i32 s{sPB}, s60, {PT_STEP}
        s_add_u32 s{sPB}, s{sPB}, 0x{WS_PT:x}
        s_add_u32 s64, s{sPB}, {PB_RG}
        s_add_u32 s65, s{sPB}, {2*PB_RG}
        s_add_u32 s66, s{sPB}, {3*PB_RG}
        s_mul_i32 s67, s60, {UM_STEP}
        s_lshl_b32 s40, s63, 9
        s_add_u32 s67, s67, s40
        s_add_u32 s67, s67, 0x{WS_UMC:x}
        s_add_u32 s69, s67, 20480
        s_add_u32 s70, s67, 40960
        s_add_u32 s71, s67, 61440
        """)

    def c_flag_loads():
        a(f"""
        s_mov_b64 exec, 255
        buffer_load_dword v233, v243, {WS}, s{sA} offen sc1
        buffer_load_dwordx4 v[224:227], v243, {WS}, s{sFT} offen sc1
        s_mov_b64 exec, -1
        """)

    def c_test(fail):
        a(f"""
        v_min3_u32 v234, v233, v224, v225
        v_min3_u32 v234, v234, v226, v227
        s_mov_b64 exec, 255
        v_cmp_gt_u32 vcc, s44, v234
        s_mov_b64 exec, -1
        s_cbranch_vccnz {fail}
        """)

    def c_block():
        c_needs()
        top, retry, done = a.newlabel("cb"), a.newlabel("cb"), a.newlabel("cb")
        a.label(top)
        c_flag_loads()
        a("s_waitcnt vmcnt(0)")
        sk = a.newlabel("cb")
        a(f"""
        s_cmp_lt_u32 s60, {SENT0}
        s_cbranch_scc1 {sk}
        v_mov_b32 v233, 64
        {sk}:
        """)
        c_test(retry)
        a(f"s_branch {done}")
        a.label(retry)
        a(f"""
        s_sub_u32 s{sBUD}, s{sBUD}, 1
        s_cmp_lt_i32 s{sBUD}, 0
        s_cbranch_scc1 {done}
        s_sleep 3
        s_branch {top}
        """)
        a.label(done)

    def c_load_list(buf):
        L = []
        for rg in range(4):
            so = [sPB, 64, 65, 66][rg]
            PF = PFB[buf] + 20*rg
            for q in range(4):
                L.append(f"buffer_load_dwordx4 {vr(PF+q*4,4)}, v{vPT}, {WS}, s{so} offen offset:{q*1024} sc1")
            L.append(f"buffer_load_dwordx4 {vr(PF+16,4)}, v241, {WS}, s{so} offen sc1")
        for j in range(4):
            for pr in range(2):
                L.append(f"buffer_load_dwordx2 {ar(BMB[buf]+pr*8+2*j,2)}, v{vBM}, {WS}, s{[67,69,70,71][j]} offen offset:{pr*256} sc1")
        return L

    def c_ux(buf, tail_wait=False):
        ok, skip, end = a.newlabel("cux"), a.newlabel("cux"), a.newlabel("cux")
        a(f"""
        s_cmp_ge_u32 s68, 64
        s_cbranch_scc1 {skip}
        s_add_u32 s45, s68, 1
        s_mov_b64 exec, 255
        v_cmp_gt_u32 vcc, s45, v232
        s_mov_b64 exec, -1
        s_cbranch_vccz {ok}
        """)
        wait_all(a, 8, 243, sV, 45, 232)
        a.label(ok)
        a(f"""
        s_mul_i32 s{sUXR}, s68, {UX_STEP}
        s_lshl_b32 s40, s72, 11
        s_add_u32 s{sUXR}, s{sUXR}, s40
        s_add_u32 s{sUXR}, s{sUXR}, s73
        """)
        for hh in range(8):
            for pr in range(2):
                a(f"buffer_load_dwordx4 {ar(buf*64+pr*32+hh*4,4)}, v{vL16}, {WS}, s{sUXR} offen offset:{pr*1024} sc1")
            a(f"s_add_u32 s{sUXR}, s{sUXR}, 40960")
        if tail_wait:
            a("s_waitcnt vmcnt(16)")
            a(f"s_branch {end}")
        a.label(skip)
        if tail_wait:
            a("s_waitcnt vmcnt(0)")
        a.label(end)
        adv(68, 72)

    def c_burst(buf):
        c_block()
        c_offs()
        top = a.newlabel("cbl")
        a.label(top)
        for x in c_load_list(buf):
            a(x)
        c_flag_loads()
        a("s_waitcnt vmcnt(0)")
        vmax_chain(a, 3, range(PFB[buf], PFB[buf]+80))
        poll_fail(a, top, sleep=4)
        adv(60, 63)

    def c_compute(buf, LL, tag):
        b = Asm()
        for r in range(32):
            b(f"v_mov_b32 v{CAC+r}, 0")
        b.nop(1)
        for q in range(5):
            for pr in range(2):
                for rg in range(4):
                    f = PFB[buf] + 20*rg + q*4
                    B = ar(buf*64+pr*32+q*8, 8) if q < 4 else ar(BMB[buf]+pr*8, 8)
                    b(f"v_smfmac_f32_16x16x64_bf16 {vr(CAC+(pr*4+rg)*4,4)}, {vr(f,4)}, {B}, v{vIDX}")
        b.nop(6)
        for rg in range(4):
            A, B = CAC + rg*4, CAC + (4+rg)*4
            for r in range(4):
                b(f"v_permlane32_swap_b32 v{A+r}, v{B+r}")
            for r in range(4):
                b(f"v_add_f32 v{A+r}, v{A+r}, v{B+r}")
            b(f"ds_write_b128 v{vWr}, {vr(A,4)} offset:{rg*4096}")
        b(f"""
        s_waitcnt lgkmcnt(0)
        s_barrier
        """)
        FT = 208
        for q in range(4):
            b(f"ds_read_b128 {vr(FT+4*q,4)}, v{vRd} offset:{q*1024}")
        b(f"""
        s_mul_i32 s74, s57, {32*1280}
        s_lshl_b32 s75, s58, 6
        s_add_u32 s74, s74, s75
        s_add_u32 s74, s74, 0x{WS_ATT:x}
        s_lshl_b32 s75, s57, 7
        s_add_u32 s75, s75, 0x{flag(FL_CC):x}
        s_waitcnt lgkmcnt(0)
        """)
        for r in range(4):
            b(f"v_add_f32 v{FT+r}, v{FT+r}, v{FT+4+r}")
            b(f"v_add_f32 v{FT+8+r}, v{FT+8+r}, v{FT+12+r}")
        for r in range(4):
            b(f"v_add_f32 v{FT+r}, v{FT+r}, v{FT+8+r}")
        b.nop(1)
        for r in range(4):
            b(f"v_mov_b32_dpp v{FT+8+r}, v{FT+r} quad_perm:[1,0,3,2] row_mask:0xf bank_mask:0xf")
        for r in range(4):
            b(f"v_cvt_pk_bf16_f32 v{FT+r}, v{FT+r}, v{FT+8+r}")
            b(f"v_min_u32 v{FT+r}, -2, v{FT+r}")
            b(f"buffer_store_dword v{FT+r}, v{vXS}, {WS}, s74 offen offset:{r*1280} sc1")
        LL = list(LL)
        acc = 0
        nld = 0
        for ln in b.lines:
            t = ln.strip()
            if t == "s_barrier":
                a(f"""
                s_cmp_lg_u32 s{sW}, 3
                s_cbranch_scc1 c_rs{tag}
                s_waitcnt vmcnt({nld})
                s_mov_b64 exec, 1
                v_cmp_eq_u32 vcc, 19, v230
                v_mov_b32 v230, 0
                s_cbranch_vccz c_rt{tag}
                buffer_store_dword v231, off, {WS}, s56 sc1
                c_rt{tag}:
                s_mov_b64 exec, -1
                c_rs{tag}:
                """)
            a.lines.append(ln)
            if not t or t.startswith(";"):
                continue
            if t.startswith("v_smfmac"):
                acc += 16
            elif t.startswith("ds_") or t.startswith("s_waitcnt") or t.startswith("s_barrier"):
                acc += 24
            elif t.startswith("buffer_store"):
                acc = 0
            else:
                acc += 4
            if acc >= C_GAP and LL and not t.startswith("v_cvt_pk_bf16_f32 v2"):
                x = LL.pop(0)
                a(x)
                nld += x.count("buffer_load")
                acc = 0
        for x in LL:
            a(x)

    a("v_mov_b32 v230, 0")
    c_ux(0)
    c_ux(1)
    c_burst(0)
    a.label("c_loop")
    for buf in range(2):
        stamp(a, 0)
        plain, join, nb = a.newlabel("cpl"), a.newlabel("cjn"), a.newlabel("cnb")
        c_needs()
        a(f"s_mov_b32 s{sPFC}, 0")
        c_test(plain)
        a(f"""
        s_cmp_ge_u32 s60, {SENT0}
        s_cbranch_scc1 {plain}
        s_mov_b32 s{sPFC}, 1
        """)
        c_offs()
        def arrive_issue(tag, resolve):
            a(f"""
            s_barrier
            s_cmp_lg_u32 s{sW}, 3
            s_cbranch_scc1 c_nf{tag}
            s_lshl_b32 s40, s57, 2
            s_add_u32 s40, s40, 0x{flag(FL_CN):x}
            s_mov_b32 s56, s75
            v_mov_b32 v230, 1
            s_mov_b64 exec, 1
            buffer_atomic_add v230, off, {WS}, s40 sc0
            """)
            if resolve:
                a(f"""
                s_waitcnt vmcnt(0)
                v_cmp_eq_u32 vcc, 19, v230
                v_mov_b32 v230, 0
                s_cbranch_vccz c_ne{tag}
                buffer_store_dword v231, off, {WS}, s56 sc1
                c_ne{tag}:
                """)
            a(f"""
            s_mov_b64 exec, -1
            c_nf{tag}:
            """)
        FLG = f"""s_mov_b64 exec, 255
        buffer_load_dword v233, v243, {WS}, s{sA} offen sc1
        buffer_load_dwordx4 v[224:227], v243, {WS}, s{sFT} offen sc1
        s_mov_b64 exec, -1"""
        c_compute(buf, c_load_list(1 - buf) + [FLG], f"x{buf}")
        adv(60, 63)
        stamp(a, 1)
        c_ux(buf, tail_wait=True)
        arrive_issue(f"a{buf}", False)
        a(f"s_branch {join}")
        a.label(plain)
        c_compute(buf, [], f"y{buf}")
        stamp(a, 1)
        a(FLG)
        a("s_waitcnt vmcnt(0)")
        arrive_issue(f"b{buf}", False)

        def resolve(tag, cnt):
            a(f"""
            s_cmp_lg_u32 s{sW}, 3
            s_cbranch_scc1 c_q{tag}
            s_waitcnt vmcnt({cnt})
            s_mov_b64 exec, 1
            v_cmp_eq_u32 vcc, 19, v230
            v_mov_b32 v230, 0
            s_cbranch_vccz c_p{tag}
            buffer_store_dword v231, off, {WS}, s56 sc1
            c_p{tag}:
            s_mov_b64 exec, -1
            c_q{tag}:
            """)
        slow = a.newlabel("csl")
        c_test(slow)
        a(f"""
        s_cmp_ge_u32 s60, {SENT0}
        s_cbranch_scc1 {slow}
        s_mov_b32 s{sPFC}, 1
        """)
        c_offs()
        LL = c_load_list(1 - buf)
        for x in LL:
            a(x)
        resolve(f"f{buf}", len(LL))
        a(FLG)
        adv(60, 63)
        c_ux(buf, tail_wait=True)
        a(f"s_branch {join}")
        a.label(slow)
        resolve(f"s{buf}", 0)
        c_ux(buf)
        a.label(join)
        adv(57, 58)
        stamp(a, 2)
        stamp_flush(a, 3, 1)
        a(f"""
        s_add_u32 s{sSTEP}, s{sSTEP}, 1
        s_cmp_ge_u32 s57, 64
        s_cbranch_scc1 r_end
        s_cmp_eq_u32 s{sPFC}, 1
        s_cbranch_scc1 {nb}
        """)
        c_burst(1 - buf)
        a.label(nb)
    a("s_branch c_loop")
    a.label("pre_boot")
    a(f"""
    v_mov_b32 v134, -1
    s_sub_u32 s40, s{sID}, 102
    s_lshl_b32 s40, s40, 21
    s_add_u32 s40, s40, 0x{WS_CRA + 0x1F0000:x}
    s_lshl_b32 s41, s{sW}, 14
    s_add_u32 s40, s40, s41
    s_mov_b32 s42, -1
    s_mov_b32 s43, -1
    s_mov_b64 exec, 1
    """)
    for k in range(3):
        for half in range(2):
            a(f"""
            s_add_u32 s41, s40, {half*8192 + (k%2)*4096 + k*1152}
            s_memtime s[44:45]
            s_waitcnt lgkmcnt(0)
            buffer_store_dword v134, off, {WS}, s41 sc1
            s_waitcnt vmcnt(0)
            buffer_load_dword v135, off, {WS}, s41 sc1
            s_waitcnt vmcnt(0)
            s_memtime s[46:47]
            s_waitcnt lgkmcnt(0)
            s_sub_u32 s46, s46, s44
            s_min_u32 s{42+half}, s{42+half}, s46
            """)
    a(f"""
    v_mov_b32 v136, s42
    v_mov_b32 v137, s43
    s_lshl_b32 s40, s{sW}, 3
    v_mov_b32 v135, s40
    ds_write_b64 v135, v[136:137]
    s_mov_b64 exec, -1
    s_waitcnt lgkmcnt(0)
    s_barrier
    v_mov_b32 v135, 0
    ds_read_b128 v[124:127], v135
    ds_read_b128 v[128:131], v135 offset:16
    s_waitcnt lgkmcnt(0)
    v_add3_u32 v124, v124, v126, v128
    v_add3_u32 v125, v125, v127, v129
    v_add_u32 v124, v124, v130
    v_add_u32 v125, v125, v131
    v_cmp_lt_u32 vcc, v125, v124
    v_mov_b32 v126, 1
    v_mov_b32 v127, 3
    v_cndmask_b32 v126, v126, v127, vcc
    {"v_mov_b32 v126, " + FORCEPOL if FORCEPOL else ""}
    s_sub_u32 s40, s{sID}, 102
    s_lshl_b32 s40, s40, 2
    s_barrier
    s_cmp_lg_u32 s{sW}, 0
    s_cbranch_scc1 boot_nrm0
    s_mov_b64 exec, 1
    buffer_store_dword v126, off, {DBG}, s40 offset:176 sc1
    s_mov_b64 exec, -1
    s_branch boot_nrm0
    """)
    from gen_boot import gen_boot
    gen_boot(a)
    from gen_f import gen_phase2
    gen_phase2(a)
    a.label("r_end")
    a("s_endpgm")
    a.label("r_code_end")
    return (L, 256, 256, max(131072, 16384*(VDEPTH+1) + 81920), kernel_desc(L, 512, 256))
```

```python
from gen_common import *
import os
from gen_r import *

NG = 1
OUTF = os.environ.get('OUTF', '')
F2SYNC = int(os.environ.get('F2SYNC', '46'))
F2DLY = int(os.environ.get('F2DLY', '0'))
FEARLY = int(os.environ.get('FEARLY', '0'))
F2_POLL = int(os.environ.get('F2_POLL', '8'))
F2_GATE = int(os.environ.get('F2_GATE', '4'))


def rnd2(a, x0, x1, t):
    a(f"v_cvt_pk_bf16_f32 v{t}, v{x0}, v{x1}")
    a(f"v_lshlrev_b32 v{x0}, 16, v{t}")
    a(f"v_and_b32 v{x1}, 0xffff0000, v{t}")


def gen_phase2(a):
    sG, sJ, sSEG, sCNT, sFL, sFO = 31, 32, 33, 34, 35, 36
    vF = 9
    a.label("role_f")
    if "f" in KILL:
        a("s_endpgm")
    a(f"""
    s_load_dwordx4 s[64:67], s[0:1], {KA_WG}
    s_load_dwordx2 s[68:69], s[0:1], {KA_WD}
    s_load_dwordx2 s[70:71], s[0:1], {KA_OUT}
    v_lshlrev_b32 v{vF}, 7, v{vLANE}
    s_mov_b32 s45, 0x{flag(FL_MEM):x}
    s_mov_b32 s46, 1
    s_mov_b32 s47, 0
    s_waitcnt lgkmcnt(0)
    """)
    if FEARLY >= 1:
        a(f"""
        s_cmp_ge_u32 s{sID}, 239
        s_cbranch_scc1 role_f2
        """)
    if FEARLY < 2:
        wait_flag(a, 45, 46, 47, 3, sleep=16)
    a(f"""
    s_cmp_ge_u32 s{sID}, 239
    s_cbranch_scc1 role_f2
    """)
    a(f"""
    s_mov_b32 s{sG}, s100
    s_sub_u32 s{sJ}, s{sID}, 212
    s_cmp_ge_u32 s{sW}, 2
    s_cselect_b32 s72, s66, s64
    s_cselect_b32 s73, s67, s65
    """)
    srd(a, 16, 72, D * F * 2)
    a(f"""
    v_lshrrev_b32 v10, 3, v{vLANE}          ; r8
    v_and_b32 v11, 7, v{vLANE}
    v_bfe_u32 v12, v10, 1, 1
    s_and_b32 s40, s{sW}, 1
    s_lshl_b32 s41, s40, 1
    v_or_b32 v12, s41, v12                  ; f2 = b1 | b3<<1
    v_lshlrev_b32 v12, 1, v12
    v_xor_b32 v11, v11, v12
    v_lshlrev_b32 v11, 4, v11
    s_lshl_b32 s41, s40, 3
    v_add_u32 v10, s41, v10
    v_mul_u32_u24 v10, {F*2}, v10
    v_add_u32 v11, v10, v11
    s_lshl_b32 s42, s{sJ}, 7                ; soffset
    s_lshr_b32 s43, s{sW}, 1
    s_mul_i32 s43, s43, 40960
    s_lshl_b32 s41, s41, 7
    s_add_u32 s43, s43, s41
    v_lshrrev_b32 v12, 4, v{vLANE}          ; g
    v_bfe_u32 v13, v{vLANE}, 2, 2           ; r
    v_and_b32 v14, 3, v{vLANE}              ; c
    v_lshl_add_u32 v15, v12, 3, v13
    v_lshlrev_b32 v15, 7, v15
    v_lshl_add_u32 v15, v14, 3, v15
    v_lshrrev_b32 v13, 1, v13
    v_and_b32 v12, 1, v12
    v_lshl_or_b32 v13, v12, 1, v13
    v_lshl_or_b32 v15, v13, 5, v15
    s_lshl_b32 s41, s40, 6                  ; (2fp)<<5
    v_xor_b32 v16, s41, v15
    v_xor_b32 v17, 32, v16
    v_add_u32 v18, 40960, v16
    v_add_u32 v19, 40960, v17
    """)
    for ph in range(2):
        a("s_mov_b32 s44, s43")
        for q in range(20):
            a(f"""
            s_mov_b32 m0, s44
            s_add_u32 s44, s44, 2048
            buffer_load_dwordx4 v11, s[16:19], s42 offen lds
            s_add_u32 s42, s42, {16*F*2}
            """)
        a("s_waitcnt vmcnt(0)")
        a("s_barrier")
        for ksl in range(10):
            for t in range(4):
                for j in range(2):
                    idx = (t * 20 + ph*10 + ksl) * 4 + 2*j
                    dst = ar(idx, 2) if idx < 256 else vr(192 + idx - 256, 2)
                    a(f"ds_read_b64_tr_b16 {dst}, v{16+t} offset:{ksl*4096+j*512}")
            a("s_waitcnt lgkmcnt(0)")
        a("s_barrier")
    sHOFF, sHBUF, sOUT, sPFD = 37, 38, 39, 46
    vH = 14
    dma_h_setup(a)
    a(f"""
    v_and_b32 v10, 7, v{vLANE}
    v_lshrrev_b32 v11, 4, v{vLANE}
    v_xor_b32 v11, v11, v10
    v_lshlrev_b32 v11, 4, v11
    v_lshl_add_u32 v11, v10, 7, v11
    v_bfe_u32 v10, v{vLANE}, 3, 1
    v_mul_u32_u24 v10, 10240, v10
    v_add_u32 v23, v10, v11
    """)
    a(f"""
    s_mov_b32 s{sSEG}, s{sG}
    s_mov_b32 s{sCNT}, 0
    s_mov_b32 s{sFL}, 0x{flag(FL_L):x}
    s_lshl_b32 s{sFO}, s{sJ}, 7
    s_lshl_b32 s40, s{sW}, 2
    s_add_u32 s{sFO}, s{sFO}, s40
    s_add_u32 s{sFO}, s{sFO}, 0x{flag(FL_F1):x}
    s_mul_i32 s{sHOFF}, s{sG}, 40960
    s_add_u32 s{sHOFF}, s{sHOFF}, 0x{WS_H2F:x}
    s_mov_b32 s{sHBUF}, 0
    s_lshl_b32 s40, s{sG}, 1
    s_lshr_b32 s41, s{sW}, 1
    s_add_u32 s40, s40, s41
    s_mul_i32 s{sOUT}, s40, {54*1024}
    s_lshl_b32 s40, s{sJ}, 1
    s_and_b32 s42, s{sW}, 1
    s_add_u32 s40, s40, s42
    s_lshl_b32 s40, s40, 10
    s_add_u32 s{sOUT}, s{sOUT}, s40
    s_add_u32 s{sOUT}, s{sOUT}, 0x{WS_ACT:x}
    s_mul_i32 s47, s41, 20480
    s_mov_b32 s57, 0xbfb8aa3b
    s_mov_b32 s{sPFD}, 0
    s_add_u32 s56, s{sSEG}, 1
    s_cmp_eq_u32 s100, 0
    s_cbranch_scc1 f1_prim
    s_add_u32 s{sFO}, s{sFO}, {(FL_F1B-FL_F1)*128}
    """)
    wait_all(a, 32, vF, sFL, sSEG, 20, sleep=32)
    a.label("f1_prim")
    wait_all(a, 32, vF, sFL, 56, 20)
    dma_h(a, sHOFF, sHBUF)
    a.label("f1_loop")
    stamp(a, 0)
    a(f"""
    v_mov_b32 v3, s{sCNT}
    s_add_u32 s40, s{sHBUF}, s47
    v_add_u32 v{vH}, s40, v23
    v_xor_b32 v13, 64, v{vH}
    s_sub_u32 s{sHBUF}, 40960, s{sHBUF}
    s_add_u32 s61, s{sSEG}, 1
    s_cmp_ge_u32 s{sSEG}, {F1S}
    s_cselect_b32 s58, 2, 1
    s_mul_i32 s40, s58, 40960
    s_add_u32 s{sHOFF}, s{sHOFF}, s40
    s_add_u32 s{sSEG}, s{sSEG}, s58
    s_add_u32 s56, s{sSEG}, 1
    s_cmp_lg_u32 s{sPFD}, 0
    s_cbranch_scc1 f1_w1
    s_waitcnt vmcnt(0)
    f1_w1:
    s_waitcnt vmcnt(2)
    s_cmp_eq_u32 s{sPFD}, 2
    s_cbranch_scc0 f1_w2
    s_waitcnt vmcnt(1)
    f1_w2:
    s_mov_b32 exec_lo, -1
    s_mov_b32 exec_hi, 0
    v_cmp_gt_u32 vcc, s56, v20
    s_mov_b64 exec, -1
    s_barrier
    """)
    stamp(a, 1)
    HF1, AC1 = 24, 40

    def rd(ks):
        a(f"ds_read_b128 {vr(HF1+(ks%4)*4,4)}, v{vH if ks % 2 == 0 else 13} offset:{(ks//2)*1024}")

    def mm(with_dma):
        for k in range(3):
            rd(k)
        for ks in range(20):
            if ks + 3 < 20:
                rd(ks + 3)
            a(f"s_waitcnt lgkmcnt({min(3, 19-ks)})")
            for t in range(4):
                acc = vr(AC1 + 4*t, 4)
                a(f"v_mfma_f32_16x16x32_bf16 {acc}, {wreg(t,ks)}, {vr(HF1+(ks%4)*4,4)}, {'0' if ks == 0 else acc}")
                if with_dma and t == 1 and ks in (0, 1, 3, 4, 6, 7, 9, 10, 12, 13):
                    dma_h_one(a)
                if with_dma and t == 1 and ks == 15:
                    a(f"""
                    s_mov_b32 exec_lo, -1
                    s_mov_b32 exec_hi, 0
                    buffer_load_dword v20, v{vF}, {WS}, s{sFL} offen sc1
                    s_mov_b64 exec, -1
                    """)
    a(f"""
    s_mov_b32 s{sPFD}, 0
    s_cbranch_vccnz f1_plain
    s_mov_b32 s{sPFD}, 1
    """)
    dma_h_init(a, sHOFF, sHBUF)
    mm(True)
    a(f"""
    s_waitcnt vmcnt(11)
    s_mov_b64 exec, 1
    buffer_store_dword v3, off, {WS}, s{sFO} sc1
    s_mov_b64 exec, -1
    s_branch f1_epi
    """)
    a.label("f1_plain")
    a(f"""
    s_mov_b32 exec_lo, -1
    s_mov_b32 exec_hi, 0
    buffer_load_dword v20, v{vF}, {WS}, s{sFL} offen sc1
    s_mov_b64 exec, -1
    """)
    mm(False)
    a(f"""
    s_waitcnt vmcnt(0)
    s_mov_b64 exec, 1
    buffer_store_dword v3, off, {WS}, s{sFO} sc1
    s_mov_b32 exec_lo, -1
    s_mov_b32 exec_hi, 0
    v_cmp_gt_u32 vcc, s56, v20
    s_mov_b64 exec, -1
    s_cbranch_vccnz f1_epi
    s_mov_b32 s{sPFD}, 2
    """)
    dma_h(a, sHOFF, sHBUF)
    a.label("f1_epi")
    stamp(a, 2)
    a.nop(4)
    O = 60
    for tt in range(2):
        g = AC1 + tt * 4
        u = AC1 + (2 + tt) * 4
        for hf in range(2):
            g0, g1, u0, u1 = g+2*hf, g+2*hf+1, u+2*hf, u+2*hf+1
            rnd2(a, g0, g1, 64)
            rnd2(a, u0, u1, 65)
            a(f"""
            v_mul_f32 v66, s57, v{g0}
            v_mul_f32 v67, s57, v{g1}
            v_exp_f32 v66, v66
            v_exp_f32 v67, v67
            s_nop 0
            v_add_f32 v66, 1.0, v66
            v_add_f32 v67, 1.0, v67
            v_rcp_f32 v66, v66
            v_rcp_f32 v67, v67
            s_nop 0
            v_mul_f32 v{g0}, v{g0}, v66
            v_mul_f32 v{g1}, v{g1}, v67
            """)
            rnd2(a, g0, g1, 64)
            a(f"""
            v_mul_f32 v{g0}, v{g0}, v{u0}
            v_mul_f32 v{g1}, v{g1}, v{u1}
            v_cvt_pk_bf16_f32 v{O+2*tt+hf}, v{g0}, v{g1}
            """)
    for k in range(4):
        a(f"v_min_u32 v{O+k}, -2, v{O+k}")
    a(f"""
    buffer_store_dwordx4 {vr(O,4)}, v{vL16}, {WS}, s{sOUT} offen sc1
    s_mul_i32 s40, s58, {2*54*1024}
    s_add_u32 s{sOUT}, s{sOUT}, s40
    s_mov_b32 s{sCNT}, s61
    """)
    stamp(a, 3)
    stamp_flush(a, 4, 1)
    a(f"""
    s_add_u32 s{sSTEP}, s{sSTEP}, 1
    s_cmp_ge_u32 s{sSEG}, 64
    s_cbranch_scc1 f1_fin
    s_cmp_lg_u32 s{sPFD}, 0
    s_cbranch_scc1 f1_loop
    s_cmp_gt_u32 s{sCNT}, {SENT0}
    s_cbranch_scc1 f1_late
    v_mov_b32 v3, s{sCNT}
    s_waitcnt vmcnt(0)
    s_mov_b64 exec, 1
    buffer_store_dword v3, off, {WS}, s{sFO} sc1
    s_mov_b64 exec, -1
    s_cmp_ge_u32 s{sSEG}, {SENT0}
    s_cbranch_scc1 f1_late
    """)
    wait_all(a, 32, vF, sFL, 56, 20)
    dma_h(a, sHOFF, sHBUF)
    a("s_branch f1_loop")
    a.label("f1_late")
    a(f"""
    s_lshl_b32 s45, s{sSEG}, 7
    s_add_u32 s45, s45, 0x{flag(FL_CC):x}
    s_mov_b32 s59, 20
    s_mov_b32 s60, 0
    """)
    wait_flag(a, 45, 59, 60, 22, sleep=3)
    a.label("f1_late2")
    dma_h(a, sHOFF, sHBUF)
    a(f"""
    s_sub_u32 s43, s43, 10240
    v_add_u32 v21, s43, v{vL16}
    s_waitcnt vmcnt(0)
    """)
    for k in range(10):
        a(f"ds_read_b128 {vr(72+4*k,4)}, v21 offset:{k*1024}")
    a("s_waitcnt lgkmcnt(0)")
    vmax_chain(a, 22, range(72, 112))
    poll_fail(a, "f1_late2", sleep=3)
    a("s_branch f1_loop")
    a.label("f1_fin")
    a(f"""
    v_mov_b32 v3, s{sCNT}
    s_waitcnt vmcnt(0)
    s_mov_b64 exec, 1
    buffer_store_dword v3, off, {WS}, s{sFO} sc1
    s_endpgm
    """)

    a.label("role_f2")
    if "2" in KILL:
        a("s_endpgm")
    srd(a, 16, 68, D * F * 2)
    srd(a, 20, 70, S * D * 2)
    sKS0 = 37
    a(f"""
    s_sub_u32 s40, s{sID}, 239
    s_mul_i32 s{sG}, s40, 6554
    s_lshr_b32 s{sG}, s{sG}, 16
    s_mul_i32 s41, s{sG}, 10
    s_sub_u32 s{sJ}, s40, s41
    s_mul_i32 s{sKS0}, s{sW}, 13
    s_min_u32 s40, s{sW}, 1
    s_add_u32 s{sKS0}, s{sKS0}, s40
    v_lshrrev_b32 v10, 3, v{vLANE}
    v_and_b32 v11, 7, v{vLANE}
    v_bfe_u32 v12, v10, 1, 2
    v_lshlrev_b32 v12, 1, v12
    v_xor_b32 v11, v11, v12
    v_lshlrev_b32 v11, 4, v11
    v_mul_u32_u24 v10, {D*2}, v10
    v_add_u32 v11, v10, v11
    s_mul_i32 s42, s{sKS0}, {32*D*2}
    s_lshl_b32 s40, s{sJ}, 7
    s_add_u32 s42, s42, s40                 ; soffset
    s_mul_i32 s43, s{sW}, 28672
    v_lshrrev_b32 v12, 4, v{vLANE}          ; g
    v_bfe_u32 v13, v{vLANE}, 2, 2           ; r
    v_and_b32 v14, 3, v{vLANE}              ; c
    v_lshl_add_u32 v15, v12, 2, v13
    v_lshlrev_b32 v15, 7, v15
    v_lshl_add_u32 v15, v14, 3, v15
    v_lshrrev_b32 v13, 1, v13
    v_and_b32 v12, 1, v12
    v_lshl_or_b32 v13, v12, 1, v13
    v_lshl_or_b32 v15, v13, 5, v15
    """)
    for t in range(4):
        a(f"v_xor_b32 v{16+t}, {t<<5}, v15")
        a(f"v_add_u32 v{16+t}, s43, v{16+t}")
    for ph in range(2):
        a("s_mov_b32 s44, s43")
        for q in range(28):
            a(f"""
            s_mov_b32 m0, s44
            s_add_u32 s44, s44, 1024
            buffer_load_dwordx4 v11, s[16:19], s42 offen lds
            s_add_u32 s42, s42, {8*D*2}
            """)
        a("s_waitcnt vmcnt(0)")
        for ksl in range(7):
            for t in range(4):
                for j in range(2):
                    a(f"ds_read_b64_tr_b16 {ar(((ph*7+ksl)*4+t)*4+2*j,2)}, v{16+t} offset:{ksl*4096+j*2048}")
            a("s_waitcnt lgkmcnt(0)")
    a(f"""
    s_cmp_lt_u32 s{sW}, 2
    s_cbranch_scc1 f2_nz
    """)
    for r in range(16):
        a(f"v_accvgpr_write_b32 a{r}, 0")
    a.label("f2_nz")
    AF2, AC2, FT = 16, 128, 160
    vWr, vRd, vO, vG = 12, 13, 14, 15
    sACT, sXO = 38, 39
    a(f"""
    s_barrier
    s_mov_b32 s{sSEG}, s{sG}
    s_mov_b32 s{sCNT}, 1
    s_lshr_b32 s{sFL}, s{sG}, 1
    s_lshl_b32 s{sFL}, s{sFL}, 12
    s_add_u32 s{sFL}, s{sFL}, 0x{flag(FL_F1):x}
    s_mul_i32 s{sACT}, s{sG}, {54*1024}
    s_lshl_b32 s40, s{sKS0}, 10
    s_add_u32 s{sACT}, s{sACT}, s40
    s_add_u32 s{sACT}, s{sACT}, 0x{WS_ACT:x}
    s_lshl_b32 s40, s{sW}, 10
    v_add_u32 v{vWr}, s40, v{vL16}
    s_lshl_b32 s40, s{sW}, 12
    v_add_u32 v{vRd}, s40, v{vL16}
    ; output: token = l%16, col = 64j + 16w + 4g
    v_and_b32 v10, 15, v{vLANE}
    v_mul_u32_u24 v10, 1280, v10
    v_lshrrev_b32 v11, 4, v{vLANE}
    v_lshl_add_u32 v{vO}, v11, 3, v10
    v_lshlrev_b32 v11, 4, v11
    s_lshl_b32 s40, s{sJ}, 2
    s_add_u32 s40, s40, s{sW}
    s_lshl_b32 s{sXO}, s40, 5
    s_mul_i32 s41, s{sG}, {16*1280}
    s_add_u32 s{sXO}, s{sXO}, s41
    s_lshl_b32 s40, s40, 6
    s_add_u32 s40, s40, {WS_MOD + 5*2560}
    buffer_load_dwordx4 v[200:203], v11, {WS}, s40 offen sc1
    v_add_u32 v8, 12288, v{vL16}
    """)
    AFB = [16, 72]
    XB = [208, 210]
    sPF2 = 46

    def f2_sync():
        if not F2SYNC:
            return
        top, done = a.newlabel("fs"), a.newlabel("fsd")
        a(f"""
        s_cmp_ge_u32 s{sSEG}, {2*F2SYNC}
        s_cbranch_scc1 {done}
        buffer_load_dword v205, off, {WS}, s48 sc1
        s_waitcnt vmcnt(0)
        {top}:
        buffer_load_dword v206, off, {WS}, s48 sc1
        s_waitcnt vmcnt(0)
        v_cmp_ne_u32 vcc, v205, v206
        s_cbranch_vccnz {done}
        v_cmp_le_u32 vcc, 63, v206
        s_cbranch_vccnz {done}
        s_sub_u32 s{sBUD}, s{sBUD}, 1
        s_cmp_ge_i32 s{sBUD}, 0
        s_cbranch_scc1 {top}
        {done}:
        """)
        if F2DLY:
            a(f"s_sleep {F2DLY}")

    def f2_loads(buf):
        for ks in range(14):
            off = ks * 1024
            av = [vL16, vL16b, vL16c, 8][off // 4096]
            a(f"buffer_load_dwordx4 {vr(AFB[buf]+ks*4,4)}, v{av}, {WS}, s{sACT} offen offset:{off%4096} sc1")
        a(f"buffer_load_dwordx2 {vr(XB[buf],2)}, v{vO}, {WS}, s47 offen sc1")

    def f2_nextflags():
        l1, l2 = a.newlabel("nf"), a.newlabel("nf")
        a(f"""
        s_and_b32 s40, s{sCNT}, 1
        s_cmp_ge_u32 s{sCNT}, {F1S}
        s_cselect_b32 s40, s40, 0
        s_mul_i32 s40, s40, {(FL_F1B-FL_F1)*128}
        s_add_u32 s{sFL}, s40, 0x{flag(FL_F1):x}
        s_mov_b32 exec_lo, 0x7ffffff
        s_mov_b32 exec_hi, 0
        s_cmp_ge_u32 s{sCNT}, {SENT0}
        s_cbranch_scc1 {l1}
        buffer_load_dwordx4 v[216:219], v{vF}, {WS}, s{sFL} offen sc1
        s_branch {l2}
        {l1}:
        s_mov_b32 s45, 0x{flag(FL_L):x}
        v_mov_b32 v217, 64
        v_mov_b32 v218, 64
        v_mov_b32 v219, 64
        buffer_load_dword v216, v{vF}, {WS}, s45 offen sc1
        {l2}:
        s_mov_b64 exec, -1
        """)
    if F2SYNC:
        get_pol(a, 205)
        a(f"s_add_u32 s48, s{sSB}, 0x{WS_CRB + CRB_DOOR + (256 if TICK else 0):x}")
    a(f"""
    s_mov_b32 s{sPF2}, 0
    s_add_u32 s47, s{sXO}, 0x{WS_X1:x}
    """)
    a.label("f2_loop")
    for buf in range(2):
        AF2 = AFB[buf]
        stamp(a, 0)
        a(f"""
        s_cmp_eq_u32 s{sPF2}, 1
        s_cbranch_scc1 f2_mm{buf}
        s_cmp_eq_u32 s{sPF2}, 2
        s_cbranch_scc1 f2_sy{buf}
        s_cmp_ge_u32 s{sSEG}, {2*SENT0}
        s_cbranch_scc1 f2_gate{buf}
        """)
        wait_all(a, 27, vF, sFL, sCNT, 204, ndw=4, sleep=F2_POLL)
        a.label(f"f2_sy{buf}")
        f2_sync()
        a(f"s_branch f2_ld{buf}")
        a.label(f"f2_gate{buf}")
        a(f"""
        s_mov_b32 s45, 0x{flag(FL_L):x}
        s_mov_b32 s60, 0
        """)
        wait_flag(a, 45, sCNT, 60, 204, sleep=3)
        a(f"s_sleep {F2_GATE}")
        a.label(f"f2_ld{buf}")
        f2_loads(buf)
        a.label(f"f2_mm{buf}")
        stamp(a, 1)
        f2_nextflags()
        a("v_mov_b32 v204, 0")
        for ks in range(14):
            a(f"s_waitcnt vmcnt({15-ks})")
            for t in range(4):
                acc = vr(AC2 + t*4, 4)
                a(f"v_mfma_f32_16x16x32_bf16 {acc}, {ar((ks*4+t)*4,4)}, {vr(AF2+ks*4,4)}, {'0' if ks == 0 else acc}")
                if t < 2:
                    a(f"v_max3_u32 v204, v204, v{AF2+ks*4+2*t}, v{AF2+ks*4+2*t+1}")
        a(f"""
        s_waitcnt vmcnt(1)
        v_max3_u32 v204, v204, v{XB[buf]}, v{XB[buf]+1}
        v_cmp_eq_u32 vcc, -1, v204
        """)
        poll_fail(a, f"f2_ld{buf}", sleep=3)
        stamp(a, 2)
        a.nop(4)
        for t in range(4):
            a(f"ds_write_b128 v{vWr}, {vr(AC2+t*4,4)} offset:{t*4096}")
        a(f"""
        s_add_u32 s{sACT}, s{sACT}, {2*54*1024}
        s_add_u32 s47, s47, {2*16*1280}
        s_add_u32 s{sCNT}, s{sCNT}, 1
        s_add_u32 s{sSEG}, s{sSEG}, 2
        s_waitcnt vmcnt(0)
        v_min3_u32 v216, v216, v217, v218
        v_min_u32 v216, v216, v219
        s_mov_b32 exec_lo, 0x7ffffff
        s_mov_b32 exec_hi, 0
        v_cmp_gt_u32 vcc, s{sCNT}, v216
        s_mov_b64 exec, -1
        s_mov_b32 s{sPF2}, 0
        s_waitcnt lgkmcnt(0)
        s_barrier
        """)
        for q in range(4):
            a(f"ds_read_b128 {vr(FT+q*4,4)}, v{vRd} offset:{q*1024}")
        a(f"""
        s_cbranch_vccnz f2_np{buf}
        s_mov_b32 s{sPF2}, 2
        s_cmp_lt_u32 s{sSEG}, {2*F2SYNC}
        s_cbranch_scc1 f2_np{buf}
        s_mov_b32 s{sPF2}, 1
        """)
        f2_loads(1 - buf)
        a(f"""
        f2_np{buf}:
        s_waitcnt lgkmcnt(0)
        s_barrier
        """)
        b = FT
        for r in range(4):
            a(f"v_add_f32 v{b+r}, v{b+r}, v{b+4+r}")
            a(f"v_add_f32 v{b+8+r}, v{b+8+r}, v{b+12+r}")
        for r in range(4):
            a(f"v_add_f32 v{b+r}, v{b+r}, v{b+8+r}")
        x = XB[buf]
        for hf in range(2):
            d0, d1 = b+2*hf, b+2*hf+1
            rnd2(a, d0, d1, 212)
            a(f"v_mul_f32 v{d0}, v{d0}, v{200+2*hf}")
            a(f"v_mul_f32 v{d1}, v{d1}, v{201+2*hf}")
            rnd2(a, d0, d1, 212)
            a(f"""
            v_lshlrev_b32 v212, 16, v{x+hf}
            v_and_b32 v213, 0xffff0000, v{x+hf}
            v_add_f32 v{d0}, v{d0}, v212
            v_add_f32 v{d1}, v{d1}, v213
            v_cvt_pk_bf16_f32 v{b+4+hf}, v{d0}, v{d1}
            """)
        a(f"buffer_store_dwordx2 {vr(b+4,2)}, v{vO}, s[20:23], s{sXO} offen")
        stamp(a, 3)
        stamp_flush(a, 4, 1)
        a(f"""
        s_add_u32 s{sSTEP}, s{sSTEP}, 1
        s_add_u32 s{sXO}, s{sXO}, {2*16*1280}
        s_cmp_ge_u32 s{sSEG}, 128
        s_cbranch_scc1 f2_end
        """)
    a("s_branch f2_loop")
    a.label("f2_end")
    dstamp(a, 14, 3, f"s_cmp_lg_u32 s{sID}, 239\ns_cbranch_scc1 {{lab}}")
    a("s_endpgm")
```

```python
from gen_common import *
import os

P_SLEEP0 = int(os.environ.get("P_SLEEP0", "36"))
P_SLEEP1 = int(os.environ.get("P_SLEEP1", "46"))
U_SLEEPM = int(os.environ.get("U_SLEEPM", "14"))
U_SLEEPP = int(os.environ.get("U_SLEEPP", "12"))
STAMP = int(os.environ.get("STAMP", "0"))
L1FIRST = 0
FORCEPOL = os.environ.get("FORCEPOL", "")
U_SLEEPD = int(os.environ.get("U_SLEEPD", "12"))
DOOR = int(os.environ.get("DOOR", "1"))
C_GAP = int(os.environ.get("C_GAP", "56"))
C_UXTAIL = int(os.environ.get("C_UXTAIL", "16"))
V_SLEEP = int(os.environ.get("V_SLEEP", "4"))
VM_FILL = int(os.environ.get("VM_FILL", "3"))
PKADD = int(os.environ.get("PKADD", "1"))
PDELAY = int(os.environ.get("PDELAY", "0"))
TDEPTH = int(os.environ.get("TDEPTH", "2"))
PDEPTH = int(os.environ.get("PDEPTH", "2"))
CT0 = 20 * int(os.environ.get("CSEG0", "46"))
XMAP = int(os.environ.get("XMAP", "76540321"), 16)
WARM = int(os.environ.get("WARM", "0"))
DST = int(os.environ.get("DST", "0"))
NOMIMIC = int(os.environ.get("NOMIMIC", "1"))
ALAT = int(os.environ.get("ALAT", "44"))
VMFIRST = int(os.environ.get("VMFIRST", "0"))
V_HOLD = int(os.environ.get("V_HOLD", "12"))
V_LAZY = int(os.environ.get("V_LAZY", "0"))
U_HOLD = int(os.environ.get("U_HOLD", "0"))
P_HOLD = int(os.environ.get("P_HOLD", "0"))
VDEPTH = int(os.environ.get("VDEPTH", "2"))
HELP = int(os.environ.get("HELP", "1"))
KILL = os.environ.get("KILL", "")
SWAPB = int(os.environ.get("SWAPB", "0"))
TICK = int(os.environ.get("TICK", "0"))
DOORAT = int(os.environ.get("DOORAT", "8"))
NOTOK = int(os.environ.get("NOTOK", "0"))

WS, DBG, WQ, WK, XS = "s[8:11]", "s[12:15]", "s[16:19]", "s[20:23]", "s[24:27]"
sW, sID, sSTEP, sBUD = 3, 28, 29, 30
vLANE, vIDX = 2, 4
vL16, vL16b, vL16c = 5, 6, 7
vM8 = 187
sSA, sSB = 98, 99
MEMF = 16
ACC = 56
LDS_T = 0x14000
LDS_R = 0x15000
LDS_ROLE = 0x1F000


def wreg(t, ks, n=4):
    idx = (t * 20 + ks) * 4
    if idx < 256:
        return ar(idx, n)
    return vr(192 + idx - 256, n)


def widx(idx, n=4):
    return ar(idx, n) if idx < 256 else vr(192 + idx - 256, n)


def l16(off):
    return f"v{vL16 + off // 4096}", off % 4096


def poll_fail(a, retry_label, sleep=2):
    ok = a.newlabel("pok")
    a(f"""
    s_cbranch_vccz {ok}
    s_sub_u32 s{sBUD}, s{sBUD}, 1
    s_cmp_lt_i32 s{sBUD}, 0
    s_cbranch_scc1 {ok}
    s_sleep {sleep}
    s_branch {retry_label}
    """)
    a.label(ok)


def wait_flag(a, s_flagoff, s_need, s_seen, vt, sleep=8):
    top = a.newlabel("wf")
    done = a.newlabel("wfd")
    a.label(top)
    a(f"""
    s_cmp_ge_u32 s{s_seen}, s{s_need}
    s_cbranch_scc1 {done}
    buffer_load_dword v{vt}, off, {WS}, s{s_flagoff} sc1
    s_waitcnt vmcnt(0)
    v_readfirstlane_b32 s{s_seen}, v{vt}
    s_nop 3
    s_cmp_ge_u32 s{s_seen}, s{s_need}
    s_cbranch_scc1 {done}
    s_sub_u32 s{sBUD}, s{sBUD}, 1
    s_cmp_lt_i32 s{sBUD}, 0
    s_cbranch_scc1 {done}
    s_sleep {sleep}
    s_branch {top}
    """)
    a.label(done)


def vmax_chain(a, vt, regs):
    regs = list(regs)
    a(f"v_max3_u32 v{vt}, v{regs[0]}, v{regs[1]}, v{regs[2]}")
    k = 3
    while k < len(regs):
        if k + 1 < len(regs):
            a(f"v_max3_u32 v{vt}, v{vt}, v{regs[k]}, v{regs[k+1]}")
            k += 2
        else:
            a(f"v_max_u32 v{vt}, v{vt}, v{regs[k]}")
            k += 1
    a(f"v_cmp_eq_u32 vcc, -1, v{vt}")


def get_pol(a, vt):
    from gen_boot import dbg_wait_wg, DBG_INIT, DBG_POL
    dbg_wait_wg(a, [(DBG_INIT, 1), (DBG_POL, 1), (DBG_POL+4, 1)], vt)
    a(f"""
    buffer_load_dwordx2 v[184:185], off, {DBG}, 0 offset:{DBG_POL} sc1
    s_waitcnt vmcnt(0)
    v_readfirstlane_b32 s{sSA}, v184
    v_readfirstlane_b32 s{sSB}, v185
    s_nop 3
    s_and_b32 s{sSA}, s{sSA}, 2
    s_lshl_b32 s{sSA}, s{sSA}, 12
    s_and_b32 s{sSB}, s{sSB}, 2
    s_lshl_b32 s{sSB}, s{sSB}, 12
    v_add_u32 v{vM8}, 16384, v{vL16}
    """)


def mem_loads(a, s_memoff, flag="sc1", start=0):
    for kb in range(start, 10):
        r, o = l16(kb * 1024)
        if kb >= 8:
            r = f"v{vM8}"
        a(f"buffer_load_dwordx4 {vr(MEMF+4*kb,4)}, {r}, {WS}, s{s_memoff} offen offset:{o} {flag}")


DEFERRED = []
MODE2 = [False]


def flush_deferred(a):
    for f in DEFERRED:
        f()
    DEFERRED.clear()


def mem_proj(a, tiles, s_memoff, vmax, sleep=1, after_first=None):
    base = a.newlabel("mp")
    mem_loads(a, s_memoff, "" if L1FIRST else "sc1")
    for t in tiles:
        for r in range(4):
            a(f"v_mov_b32 v{ACC+4*t+r}, 0")

    def chk(kb):
        f = MEMF + 4 * kb
        return [f"s_waitcnt vmcnt({9-kb})",
                f"v_max3_u32 v{vmax}, v{f}, v{f+1}, v{f+2}",
                f"v_max_u32 v{vmax}, v{vmax}, v{f+3}\nv_cmp_eq_u32 vcc, -1, v{vmax}"]
    for x in chk(0):
        a(x)
    a(f"s_cbranch_vccnz {base}_r0")
    for kb in range(10):
        f = MEMF + 4 * kb
        a.label(f"{base}_c{kb}")
        if STAMP == 2 and kb in (0, 4, 9):
            a(f"s_memrealtime s[{ {0:86,4:88,9:90}[kb] }:{ {0:87,4:89,9:91}[kb] }]")
        if kb == 9 and after_first:
            after_first()
        nxt = chk(kb + 1) if kb < 9 else []
        for n, t in enumerate(tiles):
            a(f"v_smfmac_f32_16x16x64_bf16 {vr(ACC+4*t,4)}, {vr(f,4)}, {wreg(t,2*kb,8)}, v{vIDX}")
            if n < len(nxt):
                a(nxt[n])
        for x in nxt[len(tiles):]:
            a(x)
        if kb < 9:
            a(f"s_cbranch_vccnz {base}_r{kb+1}")

    def ool():
        for kb in range(10):
            a.label(f"{base}_r{kb}")
            a(f"""
            s_sub_u32 s{sBUD}, s{sBUD}, 1
            s_cmp_lt_i32 s{sBUD}, 0
            s_cbranch_scc1 {base}_c{kb}
            s_sleep {sleep}
            """)
            mem_loads(a, s_memoff, "sc1", kb)
            for x in chk(kb):
                a(x)
            a(f"s_cbranch_vccnz {base}_r{kb}")
            a(f"s_branch {base}_c{kb}")
    DEFERRED.append(ool)


LDS_M = 0x18000


def mem_setup(a):
    a(f"""
    s_lshl_b32 s40, s{sW}, 10
    v_add_u32 v176, s40, v{vL16}
    v_add_u32 v177, 4096, v176
    v_add_u32 v178, 16384, v176
    v_add_u32 v179, 0x{LDS_M:x}, v176
    v_add_u32 v175, 0x{LDS_M:x}, v{vL16}
    s_cmp_lt_u32 s{sW}, 2
    s_cbranch_scc1 {a.newlabel("ms")}_ok
    v_mov_b32 v178, 0x7ffffff0
    """)
    a.label(f"ms_{a.uid}_ok")


def mem_proj2(a, order, s_memoff, vmax, after_valid=None, fill=None, w3=None):
    top = a.newlabel("mq")
    G = 160
    a.label(top)
    for k in range(3):
        a(f"buffer_load_dwordx4 {vr(G+4*k,4)}, v{176+k}, {WS}, s{s_memoff} offen sc1")
    for grp in order:
        for t in grp:
            for r in range(4):
                a(f"v_mov_b32 v{ACC+4*t+r}, 0")
    a("s_waitcnt vmcnt(2)")
    a(f"ds_write_b128 v179, {vr(G,4)}")
    a(f"v_max3_u32 v{vmax}, v{G}, v{G+1}, v{G+2}")
    a("s_waitcnt vmcnt(1)")
    a(f"ds_write_b128 v179, {vr(G+4,4)} offset:4096")
    a(f"v_max3_u32 v{vmax}, v{vmax}, v{G+3}, v{G+4}")
    a(f"v_max3_u32 v{vmax}, v{vmax}, v{G+5}, v{G+6}")
    a("s_waitcnt vmcnt(0)")
    a(f"ds_write_b128 v179, {vr(G+8,4)} offset:8192")
    a(f"v_max3_u32 v{vmax}, v{vmax}, v{G+7}, v{G+8}")
    a(f"v_max3_u32 v{vmax}, v{vmax}, v{G+9}, v{G+10}")
    a(f"v_max_u32 v{vmax}, v{vmax}, v{G+11}")
    a(f"v_cmp_eq_u32 vcc, -1, v{vmax}")
    poll_fail(a, top, sleep=1)
    if after_valid:
        after_valid()
    if STAMP == 2:
        a("s_memrealtime s[86:87]")
    join = a.newlabel("mj")
    labs = [a.newlabel("mw") for _ in range(4)]
    a(f"""
    s_cmp_ge_u32 s{sW}, 2
    s_cbranch_scc1 {labs[2]}
    s_cmp_eq_u32 s{sW}, 1
    s_cbranch_scc1 {labs[1]}
    """)

    def sm(t, kb, src):
        a(f"v_smfmac_f32_16x16x64_bf16 {vr(ACC+4*t,4)}, {vr(src,4)}, {wreg(t,2*kb,8)}, v{vIDX}")
    for w in range(4):
        a.label(labs[w])
        if w == 2:
            a(f"""
            s_cmp_eq_u32 s{sW}, 3
            s_cbranch_scc1 {labs[3]}
            """)
        own = [w, w + 4] + ([8 + w] if w < 2 else [])
        oth = [kb for kb in range(10) if kb not in own]
        a("s_waitcnt lgkmcnt(0)")
        a("s_barrier")
        if STAMP == 2:
            a("s_memrealtime s[88:89]")
        for kb in oth:
            a(f"ds_read_b128 {vr(MEMF+4*kb,4)}, v175 offset:{kb*1024}")
        for grp in order:
            for k, kb in enumerate(own):
                for t in grp:
                    sm(t, kb, G + 4*k)
        cnt = 0
        for gi, grp in enumerate(order):
            F = list(fill.get(gi, [])) if fill else []
            n = 0
            tot = len(oth) * len(grp)
            for k, kb in enumerate(oth):
                if gi == 0:
                    a(f"s_waitcnt lgkmcnt({len(oth)-1-k})")
                for t in grp:
                    sm(t, kb, MEMF + 4*kb)
                    n += 1
                    cnt += 1
                    if w3 and w == 3 and cnt == w3[0]:
                        w3[1]()
                    if F and n == 2:
                        a.nop(6)
                    if n >= 2 and F:
                        a(F.pop(0))
            for x in F:
                a(x)
        if w < 3:
            a(f"s_branch {join}")
    a.label(join)
    if STAMP == 2:
        a("s_memrealtime s[90:91]")


def combine_list(t0, t1, d01, d23):
    A, B = ACC + 4 * t0, ACC + 4 * t1
    L = [f"v_permlane32_swap_b32 v{A+r}, v{B+r}" for r in range(4)]
    L += [f"v_pk_add_f32 v[{A+r}:{A+r+1}], v[{A+r}:{A+r+1}], v[{B+r}:{B+r+1}]" for r in (0, 2)]
    L += [f"v_cvt_pk_bf16_f32 v{d01}, v{A}, v{A+1}", f"v_cvt_pk_bf16_f32 v{d23}, v{A+2}, v{A+3}"]
    return L


def combine_pair(a, t0, t1, d01, d23):
    A, B = ACC + 4 * t0, ACC + 4 * t1
    for r in range(4):
        a(f"v_permlane32_swap_b32 v{A+r}, v{B+r}")
    if PKADD:
        for r in (0, 2):
            a(f"v_pk_add_f32 v[{A+r}:{A+r+1}], v[{A+r}:{A+r+1}], v[{B+r}:{B+r+1}]")
    else:
        for r in range(4):
            a(f"v_add_f32 v{A+r}, v{A+r}, v{B+r}")
    a(f"v_cvt_pk_bf16_f32 v{d01}, v{A}, v{A+1}")
    a(f"v_cvt_pk_bf16_f32 v{d23}, v{A+2}, v{A+3}")


def load_wqk(a, mats=(WQ, WK), depth=3, slot=32768, nbuf=4, pre=None, mid=None):
    a.comment("---- load Wq/Wk fragments")
    a(f"""
    v_lshrrev_b32 v10, 4, v{vLANE}          ; r = lane/16
    v_and_b32 v11, 15, v{vLANE}             ; chunk'
    v_and_b32 v12, 1, v10
    s_lshl_b32 s40, s{sW}, 1
    v_or_b32 v12, s40, v12                  ; f = (r&1)|(w<<1)
    v_lshlrev_b32 v12, 1, v12
    v_xor_b32 v11, v11, v12
    v_lshlrev_b32 v11, 4, v11
    s_lshl_b32 s40, s{sW}, 2
    v_add_u32 v12, s40, v10                 ; 4w+r
    v_lshl_add_u32 v11, v12, 13, v11
    s_lshl_b32 s41, s{sID}, 8
    s_lshl_b32 s42, s{sW}, 10
    v_bfe_u32 v12, v{vLANE}, 2, 2           ; r
    v_and_b32 v13, 3, v{vLANE}              ; c
    v_lshrrev_b32 v14, 1, v10               ; g>>1
    v_lshlrev_b32 v14, 4, v14               ; 16*(g>>1)
    v_and_b32 v15, 1, v10                   ; g&1
    v_lshl_add_u32 v14, v15, 2, v14         ; +4*(g&1)
    v_and_b32 v16, 1, v12
    v_add_u32 v14, v14, v16                 ; +(r&1)
    v_lshrrev_b32 v17, 1, v12               ; r>>1
    v_lshl_add_u32 v14, v17, 3, v14         ; +8*(r>>1)
    v_lshlrev_b32 v14, 8, v14
    v_lshl_add_u32 v14, v13, 3, v14         ; + c*8
    v_lshl_or_b32 v16, v15, 1, v16
    v_lshl_or_b32 v16, v17, 2, v16          ; f
    v_lshl_or_b32 v14, v16, 5, v14
    s_lshl_b32 s40, s{sW}, 6                ; (2w)<<5
    v_xor_b32 v18, s40, v14                 ; tile 2w
    v_xor_b32 v19, 32, v18                  ; tile 2w+1
    v_add_u32 v20, 0x10000, v18
    v_add_u32 v21, 0x10000, v19
    """)

    nm = len(mats)

    def dma(cn):
        buf = cn % nbuf
        for mat, sd in enumerate(mats):
            for q in range(4):
                a(f"""
                s_add_u32 s43, s42, {buf*slot + mat*16384 + q*4096}
                s_mov_b32 m0, s43
                s_add_u32 s44, s41, {(cn*64+16*q)*8192}
                buffer_load_dwordx4 v11, {sd}, s44 offen lds
                """)
    for cn in range(depth):
        dma(cn)
    if pre:
        pre()
    for cn in range(10):
        later = min(depth - 1, 9 - cn)
        extra = 20 if (pre and cn < depth) else 0
        a(f"s_waitcnt vmcnt({4*nm*later + extra})")
        a("s_barrier")
        if cn + depth < 10:
            dma(cn + depth)
        buf = cn % nbuf
        off = buf * slot
        for mat in range(nm):
            for tt in range(2):
                for ksl in range(2):
                    for j in range(2):
                        idx = ((mat*2+tt) * 20 + cn*2 + ksl) * 4 + 2*j
                        av = 18 + tt + (2 if off >= 65536 else 0)
                        a(f"ds_read_b64_tr_b16 {widx(idx,2)}, v{av} offset:{off % 65536 + mat*16384 + ksl*8192 + j*512}")
            a("s_waitcnt lgkmcnt(0)")
        if mid and cn == depth:
            mid()
    a("s_barrier")


def load_wv_wo(a):
    a.comment("---- Wo addressing")
    for q in range(5):
        a(f"""
        v_add_u32 v10, {64*q}, v{vLANE}
        v_mul_u32_u24 v11, 3277, v10
        v_lshrrev_b32 v11, 16, v11
        v_mul_u32_u24 v12, 20, v11
        v_sub_u32 v10, v10, v12
        v_mul_u32_u24 v11, 1280, v11
        v_lshl_add_u32 v{24+q}, v10, 4, v11
        """)
    a(f"""
    s_mul_i32 s46, s{sID}, 163840
    s_mul_i32 s40, s{sW}, 320
    s_add_u32 s46, s46, s40
    s_mul_i32 s47, s{sW}, 20480
    s_add_u32 s47, s47, {16384*(VDEPTH+1)}
    v_lshrrev_b32 v10, 4, v{vLANE}
    v_bfe_u32 v11, v{vLANE}, 2, 2
    v_lshl_add_u32 v10, v10, 2, v11
    v_mul_u32_u24 v10, 320, v10
    v_and_b32 v11, 3, v{vLANE}
    v_lshl_add_u32 v10, v11, 3, v10
    v_add_u32 v29, s47, v10
    """)

    def wo_dma():
        a("s_mov_b32 s45, s47")
        for blk_ in range(4):
            for q in range(5):
                a(f"""
                s_mov_b32 m0, s45
                s_add_u32 s45, s45, 1024
                buffer_load_dwordx4 v{24+q}, {WK}, s46 offen lds
                """)
            a(f"s_add_u32 s46, s46, {16*1280}")

    def wo_rd(half):
        for jt in range(10):
            for kl in range(2):
                for j in range(2):
                    idx = 160 + (jt*4 + half*2 + kl) * 4 + 2*j
                    a(f"ds_read_b64_tr_b16 {widx(idx,2)}, v29 offset:{(32*kl+16*j)*320 + jt*32}")
            if jt % 2 == 1:
                a("s_waitcnt lgkmcnt(0)")

    def mid():
        wo_rd(0)
        wo_dma()
    load_wqk(a, (WQ,), depth=VDEPTH, slot=16384, nbuf=VDEPTH+1, pre=wo_dma, mid=mid)
    wo_rd(1)
    a("s_barrier")


def load_wo(a, sd):
    a.comment("---- load Wo fragments")
    for q in range(5):
        a(f"""
        v_add_u32 v10, {64*q}, v{vLANE}
        v_mul_u32_u24 v11, 3277, v10
        v_lshrrev_b32 v11, 16, v11            ; row = q/20
        v_mul_u32_u24 v12, 20, v11
        v_sub_u32 v10, v10, v12               ; chunk
        v_mul_u32_u24 v11, 1280, v11
        v_lshl_add_u32 v{16+q}, v10, 4, v11
        """)
    a(f"""
    s_mul_i32 s41, s{sID}, 163840
    s_mul_i32 s40, s{sW}, 320
    s_add_u32 s41, s41, s40                 ; soffset
    s_mul_i32 s42, s{sW}, 20480
    v_lshrrev_b32 v10, 4, v{vLANE}          ; g
    v_bfe_u32 v11, v{vLANE}, 2, 2           ; r
    v_lshl_add_u32 v10, v10, 2, v11
    v_mul_u32_u24 v10, 320, v10
    v_and_b32 v11, 3, v{vLANE}
    v_lshl_add_u32 v10, v11, 3, v10
    v_add_u32 v21, s42, v10
    """)
    for half in range(2):
        a("s_mov_b32 s43, s42")
        for blk in range(4):
            for q in range(5):
                a(f"""
                s_mov_b32 m0, s43
                s_add_u32 s43, s43, 1024
                buffer_load_dwordx4 v{16+q}, {sd}, s41 offen lds
                """)
            a(f"s_add_u32 s41, s41, {16*1280}")
        a("s_waitcnt vmcnt(0)")
        for jt in range(10):
            for kl in range(2):
                for j in range(2):
                    idx = 160 + (jt*4 + half*2 + kl) * 4 + 2*j
                    a(f"ds_read_b64_tr_b16 {widx(idx,2)}, v21 offset:{(32*kl+16*j)*320 + jt*32}")
            if jt % 2 == 1:
                a("s_waitcnt lgkmcnt(0)")
    a("s_barrier")


def load_wvo(a):
    a.comment("---- load Wvo fragments (linear)")
    a(f"""
    s_lshl_b32 s40, s{sID}, 2
    s_add_u32 s40, s40, s{sW}
    s_mul_i32 s40, s40, 81920
    s_add_u32 s40, s40, 0x{WS_WVO:x}
    """)
    for f in range(80):
        a(f"buffer_load_dwordx4 {wreg(f//20, f%20)}, v{vL16}, {WS}, s40 offen offset:{(f%4)*1024}")
        if f % 4 == 3:
            a("s_add_u32 s40, s40, 4096")
        if f % 40 == 39:
            a("s_waitcnt vmcnt(20)" if f < 79 else "s_waitcnt vmcnt(0)")


vHG = 15


def dma_h_setup(a):
    a(f"""
    v_lshrrev_b32 v10, 3, v{vLANE}
    v_and_b32 v{vHG}, 7, v{vLANE}
    v_xor_b32 v{vHG}, v{vHG}, v10
    v_lshlrev_b32 v{vHG}, 4, v{vHG}
    v_mul_u32_u24 v10, 1280, v10
    v_add_u32 v{vHG}, v{vHG}, v10
    """)


def dma_h_init(a, s_hoff, s_buf):
    a(f"""
    s_mul_i32 s43, s{sW}, 10240
    s_add_u32 s44, s43, s{s_hoff}
    s_add_u32 s43, s43, s{s_buf}
    """)


def dma_h_one(a):
    a(f"""
    s_mov_b32 m0, s43
    s_add_u32 s43, s43, 1024
    buffer_load_dwordx4 v{vHG}, {WS}, s44 offen sc1 lds
    s_add_u32 s44, s44, 128
    """)


def dmal_init(a, s_hoff, s_buf):
    a(f"""
    s_mul_i32 s43, s{sW}, 10240
    s_add_u32 s44, s43, s{s_hoff}
    s_add_u32 s43, s43, s{s_buf}
    """)


def dmal_one(a):
    a(f"""
    s_mov_b32 m0, s43
    s_add_u32 s43, s43, 1024
    buffer_load_dwordx4 v{vL16}, {WS}, s44 offen sc1 lds
    s_add_u32 s44, s44, 1024
    """)


def dma_h(a, s_hoff, s_buf):
    dma_h_init(a, s_hoff, s_buf)
    for k in range(10):
        dma_h_one(a)


HF = 104
TACC = 72


def dense_proj(a, vH, transposed, hook=None, tiles=(0, 1, 2, 3)):
    def rd(ks):
        st = HF + (ks % 3) * 8
        for mt in range(2):
            a(f"ds_read_b128 {vr(st+4*mt,4)}, v{vH} offset:{mt*20480+ks*1024}")
    rd(0)
    rd(1)
    for ks in range(20):
        if ks + 2 < 20:
            rd(ks + 2)
            a("s_waitcnt lgkmcnt(4)")
        elif ks + 1 < 20:
            a("s_waitcnt lgkmcnt(2)")
        else:
            a("s_waitcnt lgkmcnt(0)")
        st = HF + (ks % 3) * 8
        for n, t in enumerate(tiles):
            for mt in range(2):
                acc = vr(TACC + (t*2+mt)*4, 4)
                c = "0" if ks == 0 else acc
                if transposed:
                    a(f"v_mfma_f32_16x16x32_bf16 {acc}, {wreg(t,ks)}, {vr(st+4*mt,4)}, {c}")
                else:
                    a(f"v_mfma_f32_16x16x32_bf16 {acc}, {vr(st+4*mt,4)}, {wreg(t,ks)}, {c}")
            if n == len(tiles) // 2 - 1 and hook:
                hook(ks)


def round_scale(a, xs, tmp, s_scale):
    def rnd():
        for k in range(0, len(xs), 2):
            x0 = xs[k]
            x1 = xs[k+1] if k + 1 < len(xs) else xs[k]
            a(f"v_cvt_pk_bf16_f32 v{tmp+k//2}, v{x0}, v{x1}")
        for k in range(0, len(xs), 2):
            a(f"v_lshlrev_b32 v{xs[k]}, 16, v{tmp+k//2}")
            if k + 1 < len(xs):
                a(f"v_and_b32 v{xs[k+1]}, 0xffff0000, v{tmp+k//2}")
    rnd()
    for x in xs:
        a(f"v_mul_f32 v{x}, s{s_scale}, v{x}")
    rnd()


def xlane(a, op, v, t, with8):
    if with8:
        a.nop(2)
        a(f"{op}_dpp v{v}, v{v}, v{v} row_ror:8 row_mask:0xf bank_mask:0xf")
    for sw in ("v_permlane16_swap_b32", "v_permlane32_swap_b32"):
        a(f"v_mov_b32 v{t}, v{v}")
        a.nop(2)
        a(f"{sw} v{v}, v{t}")
        a(f"{op} v{v}, v{v}, v{t}")


def softmax(a, xs, vm, vt, s_log2e, with8):
    a(f"v_max3_f32 v{vm}, v{xs[0]}, v{xs[1]}, v{xs[2]}")
    k = 3
    while k < len(xs):
        if k + 1 < len(xs):
            a(f"v_max3_f32 v{vm}, v{vm}, v{xs[k]}, v{xs[k+1]}")
            k += 2
        else:
            a(f"v_max_f32 v{vm}, v{vm}, v{xs[k]}")
            k += 1
    xlane(a, "v_max_f32", vm, vt, with8)
    for x in xs:
        a(f"v_sub_f32 v{x}, v{x}, v{vm}")
    for x in xs:
        a(f"v_mul_f32 v{x}, s{s_log2e}, v{x}")
    for x in xs:
        a(f"v_exp_f32 v{x}, v{x}")
    a(f"v_add_f32 v{vm}, v{xs[0]}, v{xs[1]}")
    for x in xs[2:]:
        a(f"v_add_f32 v{vm}, v{vm}, v{x}")
    xlane(a, "v_add_f32", vm, vt, with8)
    a(f"v_rcp_f32 v{vm}, v{vm}")
    a.nop(1)
    for x in xs:
        a(f"v_mul_f32 v{x}, v{x}, v{vm}")


def setup_qk_lds_addrs(a, vW, vR):
    a(f"""
    v_and_b32 v10, 15, v{vLANE}             ; n
    v_lshrrev_b32 v11, 4, v{vLANE}          ; g
    v_lshrrev_b32 v12, 1, v11
    v_lshl_add_u32 v10, v12, 4, v10         ; 16*(g>>1)+n
    s_lshl_b32 s40, s{sW}, 5
    v_add_u32 v10, s40, v10                 ; +32w
    v_lshlrev_b32 v10, 4, v10
    v_and_b32 v12, 1, v11
    v_lshl_add_u32 v10, v12, 3, v10
    v_add_u32 v{vW}, 0x{LDS_T:x}, v10
    v_bfe_u32 v12, v{vLANE}, 2, 2           ; r
    v_lshl_add_u32 v12, v11, 2, v12         ; 4g+r
    v_lshlrev_b32 v12, 4, v12
    v_and_b32 v13, 1, v{vLANE}
    v_lshl_add_u32 v12, v13, 3, v12
    v_add_u32 v{vR}, 0x{LDS_T:x}, v12
    """)


def setup_p_load_addrs(a, vA, vB, vM, wstride=8*640, hstride=10240):
    a(f"""
    v_bfe_u32 v10, v{vLANE}, 3, 1           ; rho
    v_and_b32 v11, 7, v{vLANE}              ; i
    v_lshrrev_b32 v12, 4, v{vLANE}          ; gA
    v_lshrrev_b32 v13, 1, v12               ; gA>>1
    v_and_b32 v14, 1, v12                   ; gA&1
    s_mul_i32 s40, s{sW}, {wstride}
    v_mul_u32_u24 v15, 640, v10
    v_add_u32 v15, s40, v15
    v_lshl_add_u32 v15, v13, 8, v15
    v_lshl_add_u32 v15, v11, 5, v15
    v_lshl_add_u32 v{vA}, v14, 4, v15
    v_lshl_add_u32 v15, v13, 2, v14
    v_mul_u32_u24 v15, 640, v15
    v_add_u32 v15, s40, v15
    v_lshl_add_u32 v15, v10, 6, v15
    v_lshl_add_u32 v15, v11, 3, v15
    v_add_u32 v{vB}, 512, v15
    s_mul_i32 s40, s{sW}, {8*hstride}
    v_mul_u32_u24 v15, {hstride}, v13
    v_add_u32 v15, s40, v15
    v_lshl_add_u32 v15, v14, 7, v15
    v_and_b32 v11, 15, v{vLANE}
    v_lshl_add_u32 v{vM}, v11, 3, v15
    """)


def p_loads(a, PF, vA, vB, s_off):
    for blk in range(2):
        for pi in range(2):
            a(f"buffer_load_dwordx4 {vr(PF+(blk*2+pi)*4,4)}, v{vA}, {WS}, s{s_off} offen offset:{(4*blk+pi)*640} sc1")
    for pi in range(2):
        a(f"buffer_load_dwordx2 {vr(PF+16+2*pi,2)}, v{vB}, {WS}, s{s_off} offen offset:{pi*640} sc1")


def p_combine(a, PF, BX, BM, CA, vmax):
    for blk in range(2):
        for pi in range(2):
            f = PF + (blk*2+pi)*4
            a(f"v_smfmac_f32_16x16x64_bf16 {vr(CA+4*pi,4)}, {vr(f,4)}, {vr(BX+8*blk,8)}, v{vIDX}")
            if vmax is not None:
                a(f"v_max3_u32 v{vmax}, v{vmax}, v{f}, v{f+1}")
                a(f"v_max3_u32 v{vmax}, v{vmax}, v{f+2}, v{f+3}")
    a.nop(2 if vmax is not None else 6)
    for pi in range(2):
        f = PF + 16 + 2*pi
        a(f"v_smfmac_f32_16x16x32_bf16 {vr(CA+4*pi,4)}, {vr(f,2)}, {vr(BM,4)}, v{vIDX}")
        if vmax is not None:
            a(f"v_max3_u32 v{vmax}, v{vmax}, v{f}, v{f+1}")


def setup_red_addrs(a, vWr, vRd):
    a(f"""
    v_and_b32 v10, 15, v{vLANE}             ; n
    v_lshrrev_b32 v11, 4, v{vLANE}          ; g
    v_and_b32 v12, 1, v11
    v_lshlrev_b32 v12, 10, v12              ; 4*(g&1)*256
    v_lshl_add_u32 v12, v10, 5, v12         ; + n*32
    v_lshrrev_b32 v13, 1, v11
    v_lshl_add_u32 v12, v13, 2, v12         ; + (g>>1)*4
    s_lshl_b32 s40, s{sW}, 3
    s_add_u32 s40, s40, 0x{LDS_R:x}
    v_add_u32 v12, s40, v12
    v_mov_b32 v13, 0x{LDS_R+0x2800:x}
    v_cmp_gt_u32 vcc, 8, v10
    s_nop 1
    v_cndmask_b32 v{vWr}, v13, v12, vcc
    v_lshlrev_b32 v12, 5, v{vLANE}
    v_add_u32 v{vRd}, 0x{LDS_R:x}, v12
    """)


def red_write(a, CA, vWr, off):
    for r in range(4):
        a(f"v_add_f32_dpp v{CA+r}, v{CA+4+r}, v{CA+r} row_ror:8 row_mask:0xf bank_mask:0xf")
    for r in range(4):
        a(f"ds_write_b32 v{vWr}, v{CA+r} offset:{off + r*256}")


LB = 140
L_SRC, L_DST, L_M, L_V, L_T, L_T2 = LB, LB+1, LB+2, LB+3, LB+4, LB+5
L_RAW, L_OUT, L_X, L_SC, L_SH = LB+8, LB+16, LB+24, LB+40, LB+56


def ln_wave_sum(a, v):
    for ctrl in ["quad_perm:[1,0,3,2]", "quad_perm:[2,3,0,1]", "row_half_mirror", "row_mirror"]:
        a.nop(2)
        a(f"v_add_f32_dpp v{v}, v{v}, v{v} {ctrl} row_mask:0xf bank_mask:0xf")
    a.nop(1)
    a(f"v_readlane_b32 s72, v{v}, 0")
    a(f"v_readlane_b32 s73, v{v}, 16")
    a(f"v_readlane_b32 s74, v{v}, 32")
    a.nop(2)
    a(f"v_mov_b32 v{v}, s72")
    a(f"v_add_f32 v{v}, s73, v{v}")
    a(f"v_add_f32 v{v}, s74, v{v}")


def bf16r(a, v):
    a(f"v_cvt_pk_bf16_f32 v{v}, v{v}, v{v}")
    a(f"v_and_b32 v{v}, 0xffff0000, v{v}")


def ln_setup(a, shift_idx, scale_idx, perm):
    a(f"""
    v_cmp_gt_u32 vcc, 40, v{vLANE}
    v_mov_b32 v{L_T}, 0x7ffffff0
    v_lshlrev_b32 v{L_DST}, 4, v{vLANE}
    """)
    if perm:
        a(f"""
        v_lshrrev_b32 v{L_SRC}, 1, v{vLANE}
        v_lshlrev_b32 v{L_SRC}, 5, v{L_SRC}
        v_and_b32 v{L_T2}, 1, v{vLANE}
        v_lshl_add_u32 v{L_SRC}, v{L_T2}, 3, v{L_SRC}
        """)
    else:
        a(f"v_mov_b32 v{L_SRC}, v{L_DST}")
    a(f"""
    v_lshlrev_b32 v{L_T2}, 1, v{L_SRC}
    v_cndmask_b32 v{L_SRC}, v{L_T}, v{L_SRC}, vcc
    v_cndmask_b32 v{L_T2}, v{L_T}, v{L_T2}, vcc
    v_cndmask_b32 v{L_DST}, v{L_T}, v{L_DST}, vcc
    s_mov_b64 s[76:77], vcc
    s_mov_b32 s72, {WS_MOD + scale_idx*2560}
    s_mov_b32 s73, {WS_MOD + shift_idx*2560}
    """)
    for dst, so in ((L_SC, 72), (L_SH, 73)):
        for h in range(2):
            if perm:
                a(f"buffer_load_dwordx2 {vr(dst+8*h,2)}, v{L_T2}, {WS}, s{so} offen offset:{h*1280}")
                a(f"buffer_load_dwordx2 {vr(dst+8*h+4,2)}, v{L_T2}, {WS}, s{so} offen offset:{h*1280+8}")
                a(f"buffer_load_dwordx2 {vr(dst+8*h+2,2)}, v{L_T2}, {WS}, s{so} offen offset:{h*1280+32}")
                a(f"buffer_load_dwordx2 {vr(dst+8*h+6,2)}, v{L_T2}, {WS}, s{so} offen offset:{h*1280+40}")
            else:
                a(f"buffer_load_dwordx4 {vr(dst+8*h,4)}, v{L_T2}, {WS}, s{so} offen offset:{h*1280} sc1")
                a(f"buffer_load_dwordx4 {vr(dst+8*h+4,4)}, v{L_T2}, {WS}, s{so} offen offset:{h*1280+16} sc1")
    a("s_waitcnt vmcnt(0)")
    for j in range(8):
        a(f"v_add_f32 v{L_SC+2*j}, 1.0, v{L_SC+2*j}")
        a(f"v_add_f32 v{L_SC+2*j+1}, 1.0, v{L_SC+2*j+1}")
        a(f"v_cvt_pk_bf16_f32 v{L_T}, v{L_SC+2*j}, v{L_SC+2*j+1}")
        a(f"v_lshlrev_b32 v{L_SC+2*j}, 16, v{L_T}")
        a(f"v_and_b32 v{L_SC+2*j+1}, 0xffff0000, v{L_T}")


def ln_load(a, srd_, s_off, fl, perm, raw=L_RAW, extra=0):
    if perm:
        for h in range(2):
            a(f"buffer_load_dwordx2 {vr(raw+4*h,2)}, v{L_SRC}, {srd_}, s{s_off} offen offset:{extra+h*640} {fl}")
            a(f"buffer_load_dwordx2 {vr(raw+4*h+2,2)}, v{L_SRC}, {srd_}, s{s_off} offen offset:{extra+h*640+16} {fl}")
        return 4
    for h in range(2):
        a(f"buffer_load_dwordx4 {vr(raw+4*h,4)}, v{L_SRC}, {srd_}, s{s_off} offen offset:{extra+h*640} {fl}")
    return 2


def ln_unpack(a, perm, raw=L_RAW):
    pos = [0, 2, 1, 3] if perm else [0, 1, 2, 3]
    for h in range(2):
        for j in range(4):
            d = 4*h + pos[j]
            a(f"v_lshlrev_b32 v{L_X+2*d}, 16, v{raw+4*h+j}")
            a(f"v_and_b32 v{L_X+2*d+1}, 0xffff0000, v{raw+4*h+j}")


def ln_compute_store(a, s_dst, extra=0, out=L_OUT):
    X = L_X
    a(f"v_add_f32 v{L_M}, v{X}, v{X+1}")
    a(f"v_add_f32 v{L_T}, v{X+2}, v{X+3}")
    for j in range(4, 16, 2):
        a(f"v_add_f32 v{L_M}, v{L_M}, v{X+j}")
        a(f"v_add_f32 v{L_T}, v{L_T}, v{X+j+1}")
    a(f"v_add_f32 v{L_M}, v{L_M}, v{L_T}")
    ln_wave_sum(a, L_M)
    a(f"v_mul_f32 v{L_M}, 0x3acccccd, v{L_M}")
    a(f"v_sub_f32 v{L_T}, v{X}, v{L_M}")
    a(f"v_mul_f32 v{L_V}, v{L_T}, v{L_T}")
    for j in range(1, 16):
        t = L_T if j % 2 == 0 else L_T2
        a(f"v_sub_f32 v{t}, v{X+j}, v{L_M}")
        a(f"v_fmac_f32 v{L_V}, v{t}, v{t}")
    a(f"v_cndmask_b32 v{L_V}, 0, v{L_V}, s[76:77]")
    ln_wave_sum(a, L_V)
    a(f"v_mul_f32 v{L_V}, 0x3acccccd, v{L_V}")
    bf16r(a, L_V)
    a(f"v_add_f32 v{L_V}, 0x3727c5ac, v{L_V}")
    bf16r(a, L_V)
    a(f"v_sqrt_f32 v{L_V}, v{L_V}")
    a.nop(1)
    bf16r(a, L_V)
    a(f"v_rcp_f32 v{L_V}, v{L_V}")
    bf16r(a, L_M)
    for j in range(8):
        x0, x1 = X + 2*j, X + 2*j + 1
        a(f"""
        v_sub_f32 v{x0}, v{x0}, v{L_M}
        v_sub_f32 v{x1}, v{x1}, v{L_M}
        v_cvt_pk_bf16_f32 v{L_T}, v{x0}, v{x1}
        v_lshlrev_b32 v{x0}, 16, v{L_T}
        v_and_b32 v{x1}, 0xffff0000, v{L_T}
        v_mul_f32 v{x0}, v{x0}, v{L_V}
        v_mul_f32 v{x1}, v{x1}, v{L_V}
        v_cvt_pk_bf16_f32 v{L_T}, v{x0}, v{x1}
        v_lshlrev_b32 v{x0}, 16, v{L_T}
        v_and_b32 v{x1}, 0xffff0000, v{L_T}
        v_mul_f32 v{x0}, v{x0}, v{L_SC+2*j}
        v_mul_f32 v{x1}, v{x1}, v{L_SC+2*j+1}
        v_cvt_pk_bf16_f32 v{L_T}, v{x0}, v{x1}
        v_lshlrev_b32 v{x0}, 16, v{L_T}
        v_and_b32 v{x1}, 0xffff0000, v{L_T}
        v_add_f32 v{x0}, v{x0}, v{L_SH+2*j}
        v_add_f32 v{x1}, v{x1}, v{L_SH+2*j+1}
        v_cvt_pk_bf16_f32 v{out+j}, v{x0}, v{x1}
        v_min_u32 v{out+j}, -2, v{out+j}
        """)
    a(f"buffer_store_dwordx4 {vr(out,4)}, v{L_DST}, {WS}, s{s_dst} offen offset:{extra} sc1")
    a(f"buffer_store_dwordx4 {vr(out+4,4)}, v{L_DST}, {WS}, s{s_dst} offen offset:{extra+640} sc1")


def wait_all(a, nl, vaddr, s_off, s_need, vt, ndw=1, sleep=4):
    top, done = a.newlabel("wa"), a.newlabel("wad")
    a.label(top)
    op = {1: "dword", 4: "dwordx4"}[ndw]
    a(f"""
    s_mov_b32 exec_lo, 0x{(1 << nl) - 1:x}
    s_mov_b32 exec_hi, 0
    buffer_load_{op} {vr(vt, ndw)}, v{vaddr}, {WS}, s{s_off} offen sc1
    s_waitcnt vmcnt(0)
    """)
    if ndw == 4:
        a(f"v_min3_u32 v{vt}, v{vt}, v{vt+1}, v{vt+2}")
        a(f"v_min_u32 v{vt}, v{vt}, v{vt+3}")
    a(f"""
    v_cmp_gt_u32 vcc, s{s_need}, v{vt}
    s_mov_b64 exec, -1
    s_cbranch_vccz {done}
    s_sub_u32 s{sBUD}, s{sBUD}, 1
    s_cmp_lt_i32 s{sBUD}, 0
    s_cbranch_scc1 {done}
    s_sleep {sleep}
    s_branch {top}
    """)
    a.label(done)


WS_TRACE = 0x0F000000


def stamp(a, slot):
    if not STAMP:
        return
    if STAMP == 2 and MODE2[0] and slot in (3, 4):
        slot = 6
    if STAMP == 2 and MODE2[0] and slot == 0:
        a("s_memtime s[80:81]")
        return
    a(f"s_memrealtime s[{80+2*slot}:{81+2*slot}]")


def dstamp(a, word, vt, cond=""):
    if not DST:
        return
    lab = a.newlabel("ds")
    a(f"""
    {cond.format(lab=lab)}
    s_cmp_lg_u32 s{sW}, 0
    s_cbranch_scc1 {lab}
    s_memrealtime s[80:81]
    s_waitcnt lgkmcnt(0)
    v_mov_b32 v{vt}, s80
    s_mov_b64 exec, 1
    buffer_store_dword v{vt}, off, {DBG}, 0 offset:{word*4}
    s_mov_b64 exec, -1
    {lab}:
    """)


def stamp_flush(a, n, vt):
    if not STAMP:
        return
    if STAMP == 2 and MODE2[0]:
        n = 7
    skip = a.newlabel("stf")
    a(f"""
    s_cmp_lg_u32 s{sW}, 0
    s_cbranch_scc1 {skip}
    s_waitcnt lgkmcnt(0)
    s_lshl_b32 s96, s{sSTEP}, 5
    s_add_u32 s96, s96, s97
    s_mov_b64 exec, 1
    """)
    for k in range(n):
        a(f"v_mov_b32 v{vt}, s{80+2*k}")
        a(f"buffer_store_dword v{vt}, off, {WS}, s96 offset:{4*k}")
        a.nop(2)
    a(f"v_mov_b32 v{vt}, s{sBUD}")
    a(f"buffer_store_dword v{vt}, off, {WS}, s96 offset:28")
    a("s_mov_b64 exec, -1")
    a.label(skip)


def gen_r(a):
    L = NAME + "_kernel"
    kernel_header(a, L)
    a(f"""
    s_cmp_ge_u32 s2, 256
    s_cbranch_scc1 r_end
    s_load_dwordx2 s[4:5], s[0:1], {KA_WS}
    s_load_dwordx2 s[6:7], s[0:1], {KA_DBG}
    s_load_dwordx4 s[32:35], s[0:1], {KA_WQ}
    s_load_dwordx2 s[36:37], s[0:1], {KA_X}
    v_lshrrev_b32 v1, 6, v0
    v_and_b32 v{vLANE}, 63, v0
    s_waitcnt lgkmcnt(0)
    """)
    srd(a, 8, 4, WS_SIZE)
    srd(a, 12, 6, 256)
    srd(a, 16, 32, D * H * E * 2)
    srd(a, 20, 34, D * H * E * 2)
    srd(a, 24, 36, S * D * 2)
    a(f"""
    v_readfirstlane_b32 s{sW}, v1
    v_lshlrev_b32 v{vL16}, 4, v{vLANE}
    v_add_u32 v{vL16b}, 4096, v{vL16}
    v_add_u32 v{vL16c}, 8192, v{vL16}
    v_mov_b32 v{vIDX}, 0x4444
    v_mov_b32 v10, 0xeeee
    v_and_b32 v11, 8, v{vLANE}
    v_cmp_ne_u32 vcc, 0, v11
    s_mov_b32 s{sBUD}, 200000
    v_mov_b32 v9, 0x{LDS_ROLE:x}
    v_cndmask_b32 v{vIDX}, v{vIDX}, v10, vcc
    s_cmp_lg_u32 s{sW}, 0
    s_cbranch_scc1 r_warm
    s_getreg_b32 s40, hwreg(HW_REG_XCC_ID)
    s_and_b32 s40, s40, 7
    s_mov_b64 exec, 1
    s_lshl_b32 s43, s40, 2
    s_lshr_b32 s43, 0x{XMAP:x}, s43
    s_and_b32 s43, s43, 7
    s_mov_b32 s48, 0
    """)
    a.label("r_try")
    a(f"""
    s_lshr_b32 s45, s43, 1
    s_lshl_b32 s45, s45, 2
    s_and_b32 s44, s43, 1
    s_lshl_b32 s44, s44, 7
    s_add_u32 s45, s45, s44
    v_mov_b32 v10, 1
    buffer_atomic_add v10, off, {DBG}, s45 sc0
    s_waitcnt vmcnt(0)
    v_readfirstlane_b32 s41, v10
    s_nop 3
    s_cmp_lt_u32 s41, 32
    s_cbranch_scc1 r_got
    s_add_u32 s48, s48, 1
    s_sub_u32 s43, s48, 1
    s_mov_b32 s42, 999
    s_cmp_ge_u32 s43, 8
    s_cbranch_scc1 r_role_done
    s_branch r_try
    """)
    a.label("r_got")
    a(f"""
    s_lshl_b32 s42, s43, 5
    s_add_u32 s42, s42, s41                 ; P: t, VM: 32+t
    s_cmp_lt_u32 s43, 2
    s_cbranch_scc1 r_role_done
    s_cmp_ge_u32 s43, 4
    s_cbranch_scc1 r_got4
    s_sub_u32 s43, s43, 2                   ; q = 0,1
    s_mul_i32 s44, s43, 10
    s_add_u32 s42, s41, s44
    s_add_u32 s42, s42, 239                 ; F2: 239 + 10q + t
    s_cmp_lt_u32 s41, 10
    s_cbranch_scc1 r_role_done
    s_mul_i32 s44, s43, 20
    s_add_u32 s42, s41, s44
    s_add_u32 s42, s42, 54                  ; U: 64 + 20q + (t-10)
    s_cmp_lt_u32 s41, 30
    s_cbranch_scc1 r_role_done
    s_lshl_b32 s44, s43, 1
    s_add_u32 s42, s41, s44
    s_add_u32 s42, s42, 174                 ; L: 204 + 2q + (t-30)
    s_branch r_role_done
    """)
    a.label("r_got4")
    a(f"""
    s_sub_u32 s43, s43, 4                   ; q = 0..3
    s_lshl_b32 s44, s43, 3
    s_add_u32 s42, s41, s44
    s_add_u32 s42, s42, 112                 ; T
    s_cmp_lt_u32 s41, 8
    s_cbranch_scc1 r_role_done
    s_add_u32 s42, s42, 24                  ; VO
    s_cmp_lt_u32 s41, 16
    s_cbranch_scc1 r_role_done
    s_add_u32 s42, s43, 208                 ; L: 204 + 4 + q
    s_cmp_eq_u32 s41, 23
    s_cbranch_scc1 r_role_done
    s_lshl_b32 s44, s43, 1
    s_add_u32 s42, s41, s44
    s_add_u32 s42, s42, 160                 ; A
    s_cmp_lt_u32 s41, 18
    s_cbranch_scc1 r_role_done
    s_mul_i32 s44, s43, 5
    s_add_u32 s42, s41, s44
    s_add_u32 s42, s42, 166                 ; C
    s_cmp_lt_u32 s41, 23
    s_cbranch_scc1 r_role_done
    s_mul_i32 s44, s43, 7
    s_add_u32 s42, s41, s44
    s_add_u32 s42, s42, 188                 ; F1: 212 + 7q + (t-24)
    s_cmp_eq_u32 s42, 239
    s_cselect_b32 s42, 264, s42
    s_add_u32 s44, s43, 260
    s_cmp_eq_u32 s41, 31
    s_cselect_b32 s42, s44, s42
    """)
    a.label("r_role_done")
    if SWAPB:
        a(f"""
        s_sub_u32 s44, s42, 239
        s_sub_u32 s45, s42, {SWAPB}
        s_add_u32 s46, s44, {SWAPB}
        s_add_u32 s47, s45, 239
        s_cmp_lt_u32 s44, 20
        s_cselect_b32 s42, s46, s42
        s_cmp_lt_u32 s45, 20
        s_cselect_b32 s42, s47, s42
        """)
    a(f"""
    v_mov_b32 v10, s42
    ds_write_b32 v9, v10
    s_mov_b64 exec, -1
    s_waitcnt lgkmcnt(0)
    """)
    a("s_branch r_role_wait")
    a.label("r_warm")
    if WARM:
        a(f"""
        s_getpc_b64 s[40:41]
        r_warm_pc:
        s_sub_u32 s40, s40, r_warm_pc-{L}
        s_subb_u32 s41, s41, 0
        s_lshr_b32 s42, s2, 3
        s_mul_i32 s42, s42, 3
        s_add_u32 s42, s42, s{sW}
        s_sub_u32 s42, s42, 1                   ; 0..95
        s_lshl_b32 s42, s42, 10
        v_add_u32 v12, s42, v{vL16}
        v_min_u32 v12, r_code_end-{L}-16, v12
        global_load_dwordx4 v[16:19], v12, s[40:41]
        s_waitcnt vmcnt(0)
        """)
    a.label("r_role_wait")
    a(f"""
    s_barrier
    ds_read_b32 v10, v9
    s_waitcnt lgkmcnt(0)
    v_readfirstlane_b32 s{sID}, v10
    s_mov_b32 s{sSTEP}, 0
    s_mov_b32 s50, 0x3db504f3          ; 128^-0.5
    s_mov_b32 s51, 0x3fb8aa3b          ; log2(e)
    s_mov_b32 s62, s50
    s_mov_b32 s63, s50
    s_mov_b32 s100, 0
    s_mul_i32 s97, s{sID}, {72*32}
    s_add_u32 s97, s97, 0x{WS_TRACE:x}
    s_barrier
    """)
    if STAMP:
        a(f"""
        s_memrealtime s[80:81]
        s_waitcnt lgkmcnt(0)
        v_mov_b32 v3, s80
        buffer_store_dword v3, off, {WS}, s97 offset:{71*32}
        """)
    a(f"""
    s_cmp_lt_u32 s{sID}, 32
    s_cbranch_scc1 role_p
    s_cmp_lt_u32 s{sID}, 64
    s_cbranch_scc1 role_vm
    s_cmp_lt_u32 s{sID}, 112
    s_cbranch_scc1 boot
    s_cmp_lt_u32 s{sID}, 144
    s_cbranch_scc1 role_t
    s_cmp_lt_u32 s{sID}, 176
    s_cbranch_scc1 role_vo
    s_cmp_ge_u32 s{sID}, 265
    s_cbranch_scc1 r_end
    s_branch boot
    boot_done:
    s_cmp_lt_u32 s{sID}, 112
    s_cbranch_scc1 role_u
    {"s_endpgm" if NOTOK else ""}
    s_cmp_lt_u32 s{sID}, 184
    s_cbranch_scc1 role_al
    s_cmp_lt_u32 s{sID}, 204
    s_cbranch_scc1 role_c
    s_cmp_lt_u32 s{sID}, 212
    s_cbranch_scc1 role_al
    s_cmp_lt_u32 s{sID}, 259
    s_cbranch_scc1 role_f
    s_sub_u32 s{sID}, s{sID}, 56            ; 260.. -> 204..
    s_cmp_lt_u32 s{sID}, 209
    s_cbranch_scc1 role_c
    s_endpgm
    """)

    KF, QF, KMF, SA = 72, 104, 120, 136
    X0 = 148
    vTW, vTR, vST, vSM = 8, 9, 12, 13
    sMEM, sPB, sKX, sFT, sSEEN, sNEED = 31, 32, 33, 34, 35, 36
    from gen_boot import dbg_wait_wg, DBG_MOD20
    a.label("role_p")
    MODE2[0] = True
    dstamp(a, 11, 3, f"s_cmp_lg_u32 s{sID}, 0\ns_cbranch_scc1 {{lab}}")
    if PDELAY:
        dbg_wait_wg(a, [(DBG_MOD20, 1)], 3, sleep=10)
    load_wqk(a, depth=PDEPTH)
    setup_qk_lds_addrs(a, vTW, vTR)
    a(f"""
    v_bfe_u32 v10, v{vLANE}, 3, 1           ; b
    v_and_b32 v11, 7, v{vLANE}              ; i
    v_lshrrev_b32 v14, 4, v{vLANE}          ; g
    v_lshlrev_b32 v{vST}, 8, v10
    v_lshl_add_u32 v{vST}, v11, 5, v{vST}
    v_lshl_add_u32 v{vST}, v14, 3, v{vST}
    v_lshlrev_b32 v{vSM}, 3, v11
    v_and_b32 v15, 1, v14
    v_lshl_add_u32 v{vSM}, v15, 2, v{vSM}
    v_lshrrev_b32 v15, 1, v14
    v_lshl_add_u32 v{vSM}, v15, 6, v{vSM}
    v_add_u32 v{vSM}, 512, v{vSM}
    v_mov_b32 v15, 0x7ffffff0
    v_cmp_ne_u32 vcc, 0, v10
    s_mov_b32 s52, 0xff00ff00
    s_mov_b32 s53, 0xff00ff00
    v_cndmask_b32 v{vSM}, v{vSM}, v15, vcc
    s_mov_b32 s54, 0
    s_mov_b32 s55, -1                       ; s[54:55]: lanes g>=2
    s_lshl_b32 s{sKX}, s{sID}, 13
    s_add_u32 s{sKX}, s{sKX}, 0x{WS_KX:x}
    s_lshl_b32 s{sFT}, s{sID}, 7
    s_add_u32 s{sFT}, s{sFT}, 0x{flag(FL_T):x}
    s_mov_b32 s{sSEEN}, 0
    s_mov_b32 s56, 0x{WS_FLAGS:x}
    ; KM store voff: g*128 + (l%8)*16, lanes with b=1 dropped
    v_lshlrev_b32 v189, 7, v14
    v_lshl_add_u32 v189, v11, 4, v189
    v_cndmask_b32 v189, v189, v15, vcc
    s_lshl_b32 s57, s{sID}, 11
    s_add_u32 s57, s57, 0x{WS_KM:x}
    s_lshl_b32 s58, s{sID}, 2
    s_add_u32 s58, s58, s{sW}
    s_lshl_b32 s60, s{sID}, 7
    s_add_u32 s60, s60, 0x{flag(FL_KM):x}
    v_cmp_gt_u32 vcc, 40, v{vLANE}
    v_mov_b32 v180, -1
    v_mov_b32 v181, -1
    v_mov_b32 v182, -1
    v_mov_b32 v183, -1
    v_cndmask_b32 v186, v15, v{vL16}, vcc
    """)
    get_pol(a, X0)
    mem_setup(a)
    a(f"""
    s_add_u32 s59, s{sSB}, 0x{WS_CRB + CRB_DOOR:x}
    s_add_u32 s64, s{sSB}, 0x{WS_CRB:x}
    s_lshr_b32 s40, s{sID}, 3
    s_lshl_b32 s40, s40, 14
    s_and_b32 s41, s{sID}, 7
    s_mul_i32 s41, s41, 640
    s_add_u32 s65, s40, s41
    s_add_u32 s65, s65, s64
    s_add_u32 s65, s65, {4*16384}           ; p base
    s_mov_b32 s61, 0x3e0293ee               ; 128^-0.5 * log2(e)
    """)
    a.label("p_loop")
    stamp(a, 0)
    a(f"""
    s_and_b32 s40, s{sSTEP}, 3
    s_lshl_b32 s40, s40, 17
    s_add_u32 s{sMEM}, s40, s64
    s_add_u32 s{sPB}, s40, s65
    s_xor_b32 s40, s40, 0x40000
    s_add_u32 s66, s40, s65
    s_cmp_lg_u32 s{sW}, 0
    s_cbranch_scc1 p_sync
    s_add_u32 s{sNEED}, s{sSTEP}, 1
    """)
    if P_HOLD:
        a(f"""
        s_cmp_eq_u32 s{sSTEP}, 0
        s_cbranch_scc1 p_nohold
        s_sleep {P_HOLD}
        p_nohold:
        """)
    wait_flag(a, sFT, sNEED, sSEEN, X0)
    for f in range(8):
        r, o = l16(f * 1024)
        a(f"buffer_load_dwordx4 {vr(KF+4*f,4)}, {r}, {WS}, s{sKX} offen offset:{o} sc1")
    a(f"""
    buffer_load_dword v190, off, {WS}, s{sFT} sc1
    s_cmp_eq_u32 s{sSTEP}, 0
    s_cbranch_scc1 p_sync
    s_sleep {P_SLEEP0-P_HOLD}
    """)
    a.label("p_sync")
    a("s_barrier")
    stamp(a, 1)
    def door():
        if not DOOR:
            return
        a(f"""
        s_cmp_lg_u32 s58, 3
        s_cbranch_scc1 p_nodoor
        s_mov_b64 exec, 1
        buffer_store_dword v188, off, {WS}, s59 sc1
        s_mov_b64 exec, -1
        p_nodoor:
        """)
    a(f"""
    s_add_u32 s40, s{sSTEP}, 1
    v_mov_b32 v188, s40
    """)
    qrd = [f"ds_read_b64_tr_b16 {vr(QF+4*k+2*tp,2)}, v{vTR} offset:{k*512+tp*256}" for k in range(4) for tp in range(2)]
    cl = combine_list(0, 1, X0+2, X0+3)
    fl = ["\n".join(cl[0:2]), "\n".join(cl[2:4]), "\n".join(cl[4:6]), "\n".join(cl[6:8]),
          f"ds_write_b64 v{vTW}, {vr(X0+2,2)}", "s_nop 0", "s_nop 0", "s_waitcnt lgkmcnt(0)\ns_barrier",
          "\n".join(qrd[0:2]), "\n".join(qrd[2:4]), "\n".join(qrd[4:6]), "\n".join(qrd[6:8])]
    mem_proj2(a, [[0, 1], [2, 3]], sMEM, X0, after_valid=None if DOORAT else door, fill={1: fl}, w3=(DOORAT, door) if DOORAT else None)
    stamp(a, 2)
    kc = combine_list(2, 3, X0+4, X0+5) + [f"ds_write_b64 v{vTW}, {vr(X0+4,2)} offset:2048"]
    n = 0
    for k in range(4):
        a(f"s_waitcnt lgkmcnt({[6, 4, 3, 1][k]})")
        for mt in range(2):
            acc = vr(SA+4*mt, 4)
            a(f"v_mfma_f32_16x16x32_bf16 {acc}, {vr(KF+(mt*4+k)*4,4)}, {vr(QF+4*k,4)}, {'0' if k==0 else acc}")
            n += 1
            if n == 2:
                a.nop(5)
            if n >= 2:
                for _ in range(3):
                    if kc:
                        a(kc.pop(0))
    assert not kc
    a(f"""
    s_waitcnt lgkmcnt(0)
    s_barrier
    s_cmp_lg_u32 s{sW}, 0
    s_cbranch_scc1 p_other
    """)
    stamp(a, 3)
    for k2 in range(4):
        for tp in range(2):
            a(f"ds_read_b64_tr_b16 {vr(KMF+4*k2+2*tp,2)}, v{vTR} offset:{2048+k2*512+tp*256}")
    T0 = X0 + 8
    M0, TT, S0, MR, XM, FF = X0+6, X0+7, X0+11, X0+5, X0+4, 172

    def mm(k):
        acc = vr(SA+8, 4)
        return f"""s_waitcnt lgkmcnt({6-2*k})
        v_mfma_f32_16x16x32_bf16 {acc}, {vr(KMF+4*k,4)}, {vr(QF+4*k,4)}, {'0' if k==0 else acc}"""
    if NOMIMIC:
        a(f"""
        v_cndmask_b32 v{X0}, v{SA}, v{SA+4}, s[52:53]
        v_cndmask_b32 v{X0+1}, v{SA+1}, v{SA+5}, s[52:53]
        v_cndmask_b32 v{X0+2}, v{SA+2}, v{SA+6}, s[52:53]
        v_cndmask_b32 v{X0+3}, v{SA+3}, v{SA+7}, s[52:53]
        v_max3_f32 v{M0}, v{X0}, v{X0+1}, v{X0+2}
        v_max_f32 v{M0}, v{M0}, v{X0+3}
        {mm(0)}
        v_max_f32_dpp v{M0}, v{M0}, v{M0} row_ror:8 row_mask:0xf bank_mask:0xf
        v_mov_b32 v{TT}, v{M0}
        {mm(1)}
        v_permlane32_swap_b32 v{M0}, v{TT}
        {mm(2)}
        v_max_f32 v{M0}, v{M0}, v{TT}
        {mm(3)}
        s_nop 7
        v_max3_f32 v{M0}, v{M0}, v{SA+8}, v{SA+9}
        v_max3_f32 v{M0}, v{M0}, v{SA+10}, v{SA+11}
        v_mov_b32 v{TT}, v{M0}
        v_cndmask_b32 v{XM}, v{SA+8}, v{SA+9}, s[52:53]
        v_cndmask_b32 v{FF}, v{SA+10}, v{SA+11}, s[52:53]
        v_permlane16_swap_b32 v{M0}, v{TT}
        v_cndmask_b32 v{XM}, v{XM}, v{FF}, s[54:55]
        v_max_f32 v{M0}, v{M0}, v{TT}
        v_mul_f32 v{M0}, s61, v{M0}
        v_fma_f32 v{XM}, v{XM}, s61, -v{M0}
        v_fma_f32 v{X0}, v{X0}, s61, -v{M0}
        v_exp_f32 v{XM}, v{XM}
        v_fma_f32 v{X0+1}, v{X0+1}, s61, -v{M0}
        v_exp_f32 v{X0}, v{X0}
        v_fma_f32 v{X0+2}, v{X0+2}, s61, -v{M0}
        v_exp_f32 v{X0+1}, v{X0+1}
        v_fma_f32 v{X0+3}, v{X0+3}, s61, -v{M0}
        v_exp_f32 v{X0+2}, v{X0+2}
        v_add_f32 v{S0}, v{X0}, v{XM}
        v_exp_f32 v{X0+3}, v{X0+3}
        v_add_f32 v{S0}, v{S0}, v{X0+1}
        v_add_f32 v{S0}, v{S0}, v{X0+2}
        v_add_f32 v{S0}, v{S0}, v{X0+3}
        v_mov_b32_dpp v{MR}, v{XM} row_ror:8 row_mask:0xf bank_mask:0xf
        s_nop 0
        v_add_f32_dpp v{S0}, v{S0}, v{S0} row_ror:8 row_mask:0xf bank_mask:0xf
        v_mov_b32 v{TT}, v{S0}
        s_nop 1
        v_permlane16_swap_b32 v{S0}, v{TT}
        v_add_f32 v{S0}, v{S0}, v{TT}
        v_mov_b32 v{TT}, v{S0}
        s_nop 1
        v_permlane32_swap_b32 v{S0}, v{TT}
        v_add_f32 v{S0}, v{S0}, v{TT}
        v_rcp_f32 v{S0}, v{S0}
        s_nop 0
        v_mul_f32 v{X0}, v{X0}, v{S0}
        v_mul_f32 v{X0+1}, v{X0+1}, v{S0}
        v_mul_f32 v{X0+2}, v{X0+2}, v{S0}
        v_mul_f32 v{X0+3}, v{X0+3}, v{S0}
        v_cvt_pk_bf16_f32 v{T0}, v{X0}, v{X0+1}
        v_cvt_pk_bf16_f32 v{T0+1}, v{X0+2}, v{X0+3}
        v_mul_f32 v{XM}, v{XM}, v{S0}
        v_min_u32 v{T0}, -2, v{T0}
        v_min_u32 v{T0+1}, -2, v{T0+1}
        v_mul_f32 v{MR}, v{MR}, v{S0}
        buffer_store_dwordx2 {vr(T0,2)}, v{vST}, {WS}, s{sPB} offen sc1
        v_cvt_pk_bf16_f32 v{T0+2}, v{XM}, v{MR}
        v_min_u32 v{T0+2}, -2, v{T0+2}
        buffer_store_dword v{T0+2}, v{vSM}, {WS}, s{sPB} offen sc1
        v_readfirstlane_b32 s{sSEEN}, v190
        s_branch p_next
        """)
    else:
        a(f"""
        v_cndmask_b32 v{X0}, v{SA}, v{SA+4}, s[52:53]
        v_cndmask_b32 v{X0+1}, v{SA+1}, v{SA+5}, s[52:53]
        v_cndmask_b32 v{X0+2}, v{SA+2}, v{SA+6}, s[52:53]
        v_cndmask_b32 v{X0+3}, v{SA+3}, v{SA+7}, s[52:53]
        v_cvt_pk_bf16_f32 v{T0}, v{X0}, v{X0+1}
        v_cvt_pk_bf16_f32 v{T0+1}, v{X0+2}, v{X0+3}
        v_lshlrev_b32 v{X0}, 16, v{T0}
        v_and_b32 v{X0+1}, 0xffff0000, v{T0}
        v_lshlrev_b32 v{X0+2}, 16, v{T0+1}
        v_and_b32 v{X0+3}, 0xffff0000, v{T0+1}
        v_pk_mul_f32 v[{X0}:{X0+1}], v[{X0}:{X0+1}], s[62:63]
        v_pk_mul_f32 v[{X0+2}:{X0+3}], v[{X0+2}:{X0+3}], s[62:63]
        v_cvt_pk_bf16_f32 v{T0}, v{X0}, v{X0+1}
        v_cvt_pk_bf16_f32 v{T0+1}, v{X0+2}, v{X0+3}
        {mm(0)}
        v_lshlrev_b32 v{X0}, 16, v{T0}
        v_and_b32 v{X0+1}, 0xffff0000, v{T0}
        {mm(1)}
        v_lshlrev_b32 v{X0+2}, 16, v{T0+1}
        v_and_b32 v{X0+3}, 0xffff0000, v{T0+1}
        {mm(2)}
        v_max3_f32 v{M0}, v{X0}, v{X0+1}, v{X0+2}
        v_max_f32 v{M0}, v{M0}, v{X0+3}
        {mm(3)}
        v_mul_f32 v{X0}, s51, v{X0}
        v_max_f32_dpp v{M0}, v{M0}, v{M0} row_ror:8 row_mask:0xf bank_mask:0xf
        v_mov_b32 v{TT}, v{M0}
        v_mul_f32 v{X0+1}, s51, v{X0+1}
        v_mul_f32 v{X0+2}, s51, v{X0+2}
        v_permlane16_swap_b32 v{M0}, v{TT}
        v_max_f32 v{M0}, v{M0}, v{TT}
        v_mov_b32 v{TT}, v{M0}
        v_mul_f32 v{X0+3}, s51, v{X0+3}
        v_max3_f32 v{MR}, v{SA+8}, v{SA+9}, v{SA+10}
        v_permlane32_swap_b32 v{M0}, v{TT}
        v_max_f32 v{MR}, v{MR}, v{SA+11}
        v_max_f32 v{M0}, v{M0}, v{TT}
        v_mov_b32 v{TT}, v{MR}
        v_cndmask_b32 v{XM}, v{SA+8}, v{SA+9}, s[52:53]
        v_cndmask_b32 v{FF}, v{SA+10}, v{SA+11}, s[52:53]
        v_permlane16_swap_b32 v{MR}, v{TT}
        v_cndmask_b32 v{XM}, v{XM}, v{FF}, s[54:55]
        v_max_f32 v{MR}, v{MR}, v{TT}
        v_mul_f32 v{M0}, s51, v{M0}
        v_cvt_pk_bf16_f32 v{T0+2}, v{XM}, v{MR}
        v_sub_f32 v{X0}, v{X0}, v{M0}
        v_lshlrev_b32 v{XM}, 16, v{T0+2}
        v_and_b32 v{MR}, 0xffff0000, v{T0+2}
        v_sub_f32 v{X0+1}, v{X0+1}, v{M0}
        v_pk_mul_f32 v[{XM}:{MR}], v[{XM}:{MR}], s[62:63]
        v_exp_f32 v{X0}, v{X0}
        v_cvt_pk_bf16_f32 v{T0+2}, v{XM}, v{MR}
        v_exp_f32 v{X0+1}, v{X0+1}
        v_and_b32 v{MR}, 0xffff0000, v{T0+2}
        v_lshlrev_b32 v{XM}, 16, v{T0+2}
        v_mul_f32 v{MR}, s51, v{MR}
        v_mul_f32 v{XM}, s51, v{XM}
        v_max_f32 v{MR}, v{MR}, v{M0}
        v_sub_f32 v{X0+2}, v{X0+2}, v{M0}
        v_sub_f32 v{XM}, v{XM}, v{MR}
        v_sub_f32 v{FF}, v{M0}, v{MR}
        v_exp_f32 v{XM}, v{XM}
        v_sub_f32 v{X0+3}, v{X0+3}, v{M0}
        v_exp_f32 v{FF}, v{FF}
        v_exp_f32 v{X0+2}, v{X0+2}
        v_add_f32 v{S0}, v{X0}, v{X0+1}
        v_exp_f32 v{X0+3}, v{X0+3}
        v_add_f32 v{S0}, v{S0}, v{X0+2}
        v_mov_b32_dpp v{MR}, v{XM} row_ror:8 row_mask:0xf bank_mask:0xf
        v_add_f32 v{S0}, v{S0}, v{X0+3}
        v_fma_f32 v{S0}, v{S0}, v{FF}, v{XM}
        v_mul_f32 v{X0}, v{X0}, v{FF}
        v_mul_f32 v{X0+1}, v{X0+1}, v{FF}
        v_add_f32_dpp v{S0}, v{S0}, v{S0} row_ror:8 row_mask:0xf bank_mask:0xf
        v_mov_b32 v{TT}, v{S0}
        v_mul_f32 v{X0+2}, v{X0+2}, v{FF}
        v_mul_f32 v{X0+3}, v{X0+3}, v{FF}
        v_permlane16_swap_b32 v{S0}, v{TT}
        v_add_f32 v{S0}, v{S0}, v{TT}
        v_mov_b32 v{TT}, v{S0}
        s_nop 1
        v_permlane32_swap_b32 v{S0}, v{TT}
        v_add_f32 v{S0}, v{S0}, v{TT}
        v_rcp_f32 v{S0}, v{S0}
        s_nop 0
        v_mul_f32 v{X0}, v{X0}, v{S0}
        v_mul_f32 v{X0+1}, v{X0+1}, v{S0}
        v_mul_f32 v{X0+2}, v{X0+2}, v{S0}
        v_mul_f32 v{X0+3}, v{X0+3}, v{S0}
        v_cvt_pk_bf16_f32 v{T0}, v{X0}, v{X0+1}
        v_cvt_pk_bf16_f32 v{T0+1}, v{X0+2}, v{X0+3}
        v_mul_f32 v{XM}, v{XM}, v{S0}
        v_min_u32 v{T0}, -2, v{T0}
        v_min_u32 v{T0+1}, -2, v{T0+1}
        v_mul_f32 v{MR}, v{MR}, v{S0}
        buffer_store_dwordx2 {vr(T0,2)}, v{vST}, {WS}, s{sPB} offen sc1
        v_cvt_pk_bf16_f32 v{T0+2}, v{XM}, v{MR}
        v_min_u32 v{T0+2}, -2, v{T0+2}
        buffer_store_dword v{T0+2}, v{vSM}, {WS}, s{sPB} offen sc1
        v_readfirstlane_b32 s{sSEEN}, v190
        s_branch p_next
        """)
    a.label("p_other")
    a(f"""
    s_cmp_lg_u32 s{sW}, 1
    s_cbranch_scc1 p_w23
    """)
    for k in range(4):
        for tp in range(2):
            a(f"ds_read_b64_tr_b16 {vr(KMF+4*k+2*tp,2)}, v{vTR} offset:{2048+k*512+tp*256}")
    a("s_waitcnt lgkmcnt(0)")
    for r in range(16):
        a(f"v_min_u32 v{KMF+r}, -2, v{KMF+r}")
    for k in range(4):
        a(f"buffer_store_dwordx4 {vr(KMF+4*k,4)}, v189, {WS}, s57 offen offset:{k*512} sc1")
    a(f"""
    s_waitcnt vmcnt(0)
    s_mov_b64 exec, 1
    buffer_store_dword v188, off, {WS}, s60 sc1
    s_mov_b64 exec, -1
    s_branch p_next
    """)
    a.label("p_w23")
    a(f"""
    s_cmp_lg_u32 s{sW}, 2
    s_cbranch_scc1 p_next
    buffer_store_dwordx4 v[180:183], v186, {WS}, s66 offen sc1
    s_cmp_lg_u32 s{sID}, 0
    s_cbranch_scc1 p_next
    s_add_u32 s40, s{sSTEP}, 1
    v_mov_b32 v{X0}, s40
    s_mov_b64 exec, 1
    buffer_store_dword v{X0}, off, {WS}, s56 sc1
    s_mov_b64 exec, -1
    """)
    a.label("p_next")
    dstamp(a, 12, 191, f"s_cmp_lg_u32 s{sID}, 0\ns_cbranch_scc1 {{lab}}\ns_cmp_lg_u32 s{sSTEP}, 1\ns_cbranch_scc1 {{lab}}")
    dstamp(a, 13, 191, f"s_cmp_lg_u32 s{sID}, 0\ns_cbranch_scc1 {{lab}}\ns_cmp_lg_u32 s{sSTEP}, 63\ns_cbranch_scc1 {{lab}}")
    dstamp(a, 15, 191, f"s_cmp_lg_u32 s{sID}, 0\ns_cbranch_scc1 {{lab}}\ns_cmp_lg_u32 s{sSTEP}, 11\ns_cbranch_scc1 {{lab}}")
    stamp(a, 4)
    stamp_flush(a, 5, 191)
    a(f"""
    s_add_u32 s{sKX}, s{sKX}, {32*8192}
    s_add_u32 s57, s57, {32*2048}
    s_add_u32 s{sSTEP}, s{sSTEP}, 1
    s_cmp_lt_u32 s{sSTEP}, 64
    s_cbranch_scc1 p_loop
    s_endpgm
    """)
    flush_deferred(a)

    AF, AC3, PKM = 72, 80, 120
    a.label("role_vm")
    a(f"""
    s_sub_u32 s{sID}, s{sID}, 32
    s_load_dwordx4 s[64:67], s[0:1], {KA_WV}
    s_waitcnt lgkmcnt(0)
    """)
    srd(a, 16, 64, D * H * E * 2)
    srd(a, 20, 66, D * H * E * 2)
    if PDELAY:
        dbg_wait_wg(a, [(DBG_MOD20, 1)], 3, sleep=10)
    load_wv_wo(a)
    setup_qk_lds_addrs(a, vTW, vTR)
    a(f"""
    ; sparse-A transposing read: e0 = 32(gA/2) + 16(r/2) + 8(gA%2) + 2(c/2) + (r%2)
    v_lshrrev_b32 v10, 5, v{vLANE}
    v_lshlrev_b32 v10, 5, v10
    v_bfe_u32 v11, v{vLANE}, 3, 1
    v_lshl_add_u32 v10, v11, 4, v10
    v_bfe_u32 v11, v{vLANE}, 4, 1
    v_lshl_add_u32 v10, v11, 3, v10
    v_bfe_u32 v11, v{vLANE}, 1, 1
    v_lshl_add_u32 v10, v11, 1, v10
    v_bfe_u32 v11, v{vLANE}, 2, 1
    v_add_u32 v10, v10, v11
    v_lshlrev_b32 v10, 4, v10
    v_and_b32 v11, 1, v{vLANE}
    v_lshl_add_u32 v10, v11, 3, v10
    v_add_u32 v{vTR}, 0x{LDS_T:x}, v10
    v_lshlrev_b32 v12, 3, v{vLANE}
    v_and_b32 v13, 31, v{vLANE}
    v_lshlrev_b32 v13, 3, v13
    v_lshrrev_b32 v10, 5, v{vLANE}
    v_lshl_add_u32 v13, v10, 14, v13
    v_mov_b32 v132, -1
    v_mov_b32 v133, -1
    v_mov_b32 v134, 0
    s_mul_i32 s57, s{sID}, 10240
    s_mul_i32 s40, s{sW}, 2560
    s_add_u32 s57, s57, s40
    s_add_u32 s57, s57, 0x{WS_UMC:x}
    s_lshl_b32 s61, s{sID}, 7
    s_lshl_b32 s40, s{sW}, 2
    s_add_u32 s61, s61, s40
    s_add_u32 s61, s61, 0x{flag(FL_UF):x}
    """)
    get_pol(a, 135)
    mem_setup(a)
    a(f"""
    s_add_u32 s64, s{sSB}, 0x{WS_CRB + 32768:x}
    s_mul_i32 s65, s{sW}, {10*16384}
    s_lshl_b32 s40, s{sID}, 8
    s_add_u32 s65, s65, s40
    s_add_u32 s65, s65, s{sSA}
    s_add_u32 s65, s65, 0x{WS_CRA:x}
    s_mov_b32 s66, 0
    s_mov_b32 s67, {2*CRA_SLOT}
    """)
    a.label("vm_loop")
    stamp(a, 0)
    for r in range(40):
        a(f"v_mov_b32 v{AC3+r}, 0")
    a(f"""
    s_and_b32 s40, s{sSTEP}, 3
    s_lshl_b32 s40, s40, 17
    s_add_u32 s{sMEM}, s40, s64
    s_add_u32 s58, s65, s66
    s_cmp_eq_u32 s{sSTEP}, 0
    s_cbranch_scc1 vm_sync
    s_sleep {V_SLEEP}
    vm_sync:
    s_barrier
    """)
    stamp(a, 1)
    def vm_flag():
        if V_LAZY:
            a(f"""
            s_mov_b64 exec, 1
            buffer_store_dword v134, off, {WS}, s61 sc1
            s_mov_b64 exec, -1
            """)
    mem_proj2(a, [[0, 1]], sMEM, 135, after_valid=vm_flag)
    stamp(a, 2)
    a.nop(8)
    combine_pair(a, 0, 1, 136, 137)
    a(f"""
    ds_write_b64 v{vTW}, v[136:137]
    s_waitcnt lgkmcnt(0)
    s_barrier
    """)
    for kb in range(2):
        for n in range(2):
            a(f"ds_read_b64_tr_b16 {vr(AF+4*kb+2*n,2)}, v{vTR} offset:{(64*kb+4*n)*16}")
    stamp(a, 3)

    def vm_pack(p):
        A, B = AC3 + 8*p, AC3 + 8*p + 4
        L = [f"v_permlane32_swap_b32 v{A+r}, v{B+r}" for r in range(4)]
        if PKADD:
            L += [f"v_pk_add_f32 v[{A+r}:{A+r+1}], v[{A+r}:{A+r+1}], v[{B+r}:{B+r+1}]" for r in (0, 2)]
        else:
            L += [f"v_add_f32 v{A+r}, v{A+r}, v{B+r}" for r in range(4)]
        L += [f"v_cvt_pk_bf16_f32 v{PKM+2*p}, v{A}, v{A+1}", f"v_cvt_pk_bf16_f32 v{PKM+2*p+1}, v{A+2}, v{A+3}",
              f"buffer_store_dwordx2 {vr(PKM+2*p,2)}, v13, {WS}, s{68+p} offen sc1"]
        return L
    for p in range(5):
        a(f"s_add_u32 s{68+p}, s58, {p*32768}")
    a("s_waitcnt lgkmcnt(0)")
    pend = []
    slot = 0
    last_mf = {}
    for p in range(5):
        for kb in range(2):
            for jj in range(2):
                jt = 2*p + jj
                a(f"v_smfmac_f32_16x16x64_bf16 {vr(AC3+4*jt,4)}, {vr(AF+4*kb,4)}, {widx(160+(jt*4+2*kb)*4,8)}, v{vIDX}")
                slot += 1
                rdy = slot + 8
                n = 0
                if pend and slot < pend[0][0]:
                    k = min(2, pend[0][0] - slot)
                    a.nop(k)
                    slot += k
                    n = 2
                while pend and pend[0][0] <= slot and n < VM_FILL:
                    a(pend.pop(0)[1])
                    slot += 1
                    n += 1
        for x in vm_pack(p):
            pend.append((rdy, x))
    while pend:
        if pend[0][0] > slot:
            a.nop(pend[0][0] - slot)
            slot = pend[0][0]
        a(pend.pop(0)[1])
        slot += 1
    stamp(a, 4)
    if V_HOLD:
        a(f"""
        s_cmp_eq_u32 s{sSTEP}, 63
        s_cbranch_scc1 vm_nohold
        s_sleep {V_HOLD}
        vm_nohold:
        """)
    for p in range(5):
        a(f"buffer_store_dwordx2 {vr(PKM+2*p,2)}, v12, {WS}, s57 offen offset:{p*512} sc1")
    a("s_add_u32 s40, s65, s67")
    for p in range(5):
        a(f"buffer_store_dwordx2 v[132:133], v13, {WS}, s40 offen sc1")
        a("s_add_u32 s40, s40, 32768")
    a(f"""
    s_add_u32 s57, s57, {UM_STEP}
    s_mov_b32 s67, s66
    s_add_u32 s66, s66, {CRA_SLOT}
    s_cmp_ge_u32 s66, {3*CRA_SLOT}
    s_cselect_b32 s66, 0, s66
    s_add_u32 s40, s{sSTEP}, 1
    v_mov_b32 v134, s40
    """)
    if not V_LAZY:
        a(f"""
        s_waitcnt vmcnt(5)
        s_mov_b64 exec, 1
        buffer_store_dword v134, off, {WS}, s61 sc1
        s_mov_b64 exec, -1
        """)
    stamp_flush(a, 5, 191)
    a(f"""
    s_add_u32 s{sSTEP}, s{sSTEP}, 1
    s_cmp_lt_u32 s{sSTEP}, 64
    s_cbranch_scc1 vm_loop
    s_waitcnt vmcnt(0)
    s_mov_b64 exec, 1
    buffer_store_dword v134, off, {WS}, s61 sc1
    s_endpgm
    """)
    flush_deferred(a)

    TX, BX, PF, BM, CA = 16, 48, 80, 104, 112
    vPA, vPB, vWr, vRd, vUM = 8, 9, 12, 13, 140
    sUX = 33
    a.label("role_u")
    MODE2[0] = False
    a(f"s_sub_u32 s{sID}, s{sID}, 64")
    setup_p_load_addrs(a, vPA, vPB, vUM, 16384, 256)
    a(f"""
    s_lshl_b32 s40, s{sW}, 9
    v_lshlrev_b32 v{vWr}, 3, v{vLANE}
    v_add_u32 v{vWr}, s40, v{vWr}
    ; final lane l: c8 = l/32, i = (l/4)%8, cp = l%4 ; src lane' = (r&1)*32 + (i/4)*16 + 8c8 + 2cp ; comp = r>>1
    v_bfe_u32 v10, v{vLANE}, 2, 1           ; r&1
    v_lshlrev_b32 v10, 5, v10
    v_bfe_u32 v11, v{vLANE}, 4, 1           ; i/4
    v_lshl_add_u32 v10, v11, 4, v10
    v_lshrrev_b32 v11, 5, v{vLANE}
    v_lshl_add_u32 v10, v11, 3, v10
    v_and_b32 v11, 3, v{vLANE}
    v_lshl_add_u32 v10, v11, 1, v10
    v_lshlrev_b32 v10, 3, v10
    v_bfe_u32 v11, v{vLANE}, 3, 1           ; r>>1
    v_lshl_add_u32 v{vRd}, v11, 2, v10
    v_add_u32 v14, 1024, v{vRd}
    v_lshlrev_b32 v15, 2, v{vLANE}
    v_lshlrev_b32 v133, 7, v{vLANE}
    v_mov_b32 v123, 0
    s_mul_i32 s{sUX}, s{sW}, {8*40960}
    s_lshl_b32 s40, s{sID}, 10
    s_add_u32 s{sUX}, s{sUX}, s40
    s_add_u32 s{sUX}, s{sUX}, 0x{WS_UX:x}
    s_lshl_b32 s{sFT}, s{sW}, 10
    s_add_u32 s{sFT}, s{sFT}, 0x{flag(FL_VO):x}
    v_mov_b32 v134, -1
    """)
    get_pol(a, 135)
    a(f"""
    s_add_u32 s60, s{sSB}, 0x{WS_CRB + CRB_DOOR:x}
    s_add_u32 s64, s{sSB}, 0x{WS_CRB + 4*16384:x}   ; p base
    s_lshl_b32 s65, s{sID}, 8
    s_cmp_ge_u32 s{sID}, 32
    s_cselect_b32 s40, 8192, 0
    s_add_u32 s65, s65, s40
    s_add_u32 s65, s65, s{sSB}
    s_add_u32 s65, s65, 0x{WS_CRB:x}
    s_lshl_b32 s57, s{sID}, 14
    s_add_u32 s57, s57, s{sSA}
    s_add_u32 s57, s57, 0x{WS_CRA:x}
    s_mov_b32 s66, 0
    """)
    a.label("u_loop")
    stamp(a, 0)
    a(f"""
    s_and_b32 s40, s{sSTEP}, 3
    s_lshl_b32 s40, s40, 17
    s_add_u32 s{sPB}, s40, s64
    s_xor_b32 s41, s40, 0x40000
    s_add_u32 s41, s41, s65
    s_add_u32 s40, s{sSTEP}, 1
    s_and_b32 s40, s40, 3
    s_lshl_b32 s40, s40, 17
    s_add_u32 s{sMEM}, s40, s65
    s_cmp_lg_u32 s{sW}, 1
    s_cbranch_scc1 u_noarm
    buffer_store_dword v134, v15, {WS}, s41 offen sc1
    s_add_u32 s41, s41, 32768
    buffer_store_dword v134, v15, {WS}, s41 offen sc1
    u_noarm:
    """)
    a(f"""
    s_add_u32 s{sNEED}, s{sSTEP}, 1
    s_mov_b64 exec, 255
    v_cmp_gt_u32 vcc, s{sNEED}, v123
    s_mov_b64 exec, -1
    s_cbranch_vccz u_vok
    """)
    wait_all(a, 8, 133, sFT, sNEED, 123)
    a.label("u_vok")
    if U_HOLD:
        a(f"""
        s_cmp_eq_u32 s{sW}, 0
        s_cbranch_scc1 u_nohold
        s_cmp_eq_u32 s{sSTEP}, 0
        s_cbranch_scc1 u_nohold
        s_sleep {U_HOLD}
        u_nohold:
        """)
    a(f"s_mov_b32 s40, s{sUX}")
    for hh in range(8):
        a(f"buffer_load_dwordx4 {vr(TX+4*hh,4)}, v{vL16}, {WS}, s40 offen sc1")
        a(f"s_add_u32 s40, s40, 40960")
    a(f"""
    s_mov_b64 exec, 255
    buffer_load_dword v123, v133, {WS}, s{sFT} offen sc1
    s_mov_b64 exec, -1
    s_add_u32 s58, s57, s66
    s_add_u32 s66, s66, {CRA_SLOT}
    s_cmp_ge_u32 s66, {3*CRA_SLOT}
    s_cselect_b32 s66, 0, s66
    s_waitcnt vmcnt(0)
    """)
    for hh in range(8):
        for d in range(4):
            a(f"v_mov_b32 v{BX + 8*(hh//2) + 2*d + hh%2}, v{TX+4*hh+d}")
    stamp(a, 1)
    a(f"""
    s_cmp_lg_u32 s{sW}, 0
    s_cbranch_scc1 u_dsync
    """)
    for k in range(3):
        a(f"buffer_load_dword v{124+k}, off, {WS}, s60 sc1")
        a(f"s_sleep 1")
    a.label("u_dspin")
    for k in range(4):
        a(f"""
        buffer_load_dword v{124+(k+3)%4}, off, {WS}, s60 sc1
        s_waitcnt vmcnt(3)
        v_cmp_le_u32 vcc, s{sNEED}, v{124+k}
        s_cbranch_vccnz u_ddone
        s_nop 7
        """)
    a(f"""
    s_sub_u32 s{sBUD}, s{sBUD}, 1
    s_cmp_ge_i32 s{sBUD}, 0
    s_cbranch_scc1 u_dspin
    """)
    a.label("u_ddone")
    stamp(a, 2)
    a(f"s_sleep {U_SLEEPD}")
    a.label("u_dsync")
    a("s_barrier")
    stamp(a, 3)
    def u_mloads():
        for k in range(2):
            a(f"buffer_load_dwordx2 {vr(PF+16+2*k,2)}, v{vPB}, {WS}, s{sPB} offen offset:{k*1280} sc1")
        for j in range(4):
            a(f"buffer_load_dwordx2 {vr(BM+2*j,2)}, v{vUM}, {WS}, s58 offen offset:{j*512} sc1")
    a.label("u_ppoll")
    for q in range(4):
        a(f"buffer_load_dwordx4 {vr(PF+4*q,4)}, v{vPA}, {WS}, s{sPB} offen offset:{q*1280} sc1")
    u_mloads()
    for r in range(4):
        a(f"v_mov_b32 v{CA+r}, 0")
    a("v_mov_b32 v122, 0")
    for q in range(4):
        f = PF + 4*q
        a(f"s_waitcnt vmcnt({9-q})")
        a(f"v_smfmac_f32_16x16x64_bf16 {vr(CA,4)}, {vr(f,4)}, {vr(BX+8*q,8)}, v{vIDX}")
        a(f"v_max3_u32 v122, v122, v{f}, v{f+1}")
        a(f"v_max3_u32 v122, v122, v{f+2}, v{f+3}")
    a("v_cmp_eq_u32 vcc, -1, v122")
    poll_fail(a, "u_ppoll", sleep=1)
    a.label("u_mchk")
    a(f"""
    s_waitcnt vmcnt(4)
    v_swap_b32 v{PF+17}, v{PF+18}
    v_max3_u32 v122, v{PF+16}, v{PF+17}, v{PF+18}
    v_max_u32 v122, v122, v{PF+19}
    s_waitcnt vmcnt(2)
    v_max3_u32 v122, v122, v{BM}, v{BM+1}
    v_max3_u32 v122, v122, v{BM+2}, v{BM+3}
    s_waitcnt vmcnt(0)
    v_max3_u32 v122, v122, v{BM+4}, v{BM+5}
    v_max3_u32 v122, v122, v{BM+6}, v{BM+7}
    v_cmp_eq_u32 vcc, -1, v122
    s_cbranch_vccnz u_mretry
    u_mok:
    v_smfmac_f32_16x16x64_bf16 {vr(CA,4)}, {vr(PF+16,4)}, {vr(BM,8)}, v{vIDX}
    """)

    def u_ool():
        a.label("u_mretry")
        a(f"""
        s_sub_u32 s{sBUD}, s{sBUD}, 1
        s_cmp_lt_i32 s{sBUD}, 0
        s_cbranch_scc1 u_mok
        """)
        u_mloads()
        a("s_branch u_mchk")
    DEFERRED.append(u_ool)
    a.nop(2)
    stamp(a, 4)
    a.nop(6)
    a(f"""
    v_permlane32_swap_b32 v{CA}, v{CA+1}
    v_permlane32_swap_b32 v{CA+2}, v{CA+3}
    v_add_f32 v{CA}, v{CA}, v{CA+1}
    v_add_f32 v{CA+1}, v{CA+2}, v{CA+3}
    ds_write_b64 v{vWr}, {vr(CA,2)}
    s_waitcnt lgkmcnt(0)
    s_barrier
    s_cmp_lg_u32 s{sW}, 0
    s_cbranch_scc1 u_next
    ds_read2_b32 v[124:125], v{vRd} offset0:0 offset1:2
    ds_read2_b32 v[126:127], v{vRd} offset0:128 offset1:130
    ds_read2_b32 v[128:129], v14 offset0:0 offset1:2
    ds_read2_b32 v[130:131], v14 offset0:128 offset1:130
    s_add_u32 s40, s{sMEM}, 32768
    s_waitcnt lgkmcnt(2)
    v_add_f32 v124, v124, v126
    v_add_f32 v125, v125, v127
    s_waitcnt lgkmcnt(0)
    v_add_f32 v128, v128, v130
    v_add_f32 v129, v129, v131
    v_add_f32 v124, v124, v128
    v_add_f32 v125, v125, v129
    v_cvt_pk_bf16_f32 v124, v124, v125
    v_min_u32 v124, -2, v124
    buffer_store_dword v124, v15, {WS}, {"s40" if VMFIRST else "s"+str(sMEM)} offen sc1
    buffer_store_dword v124, v15, {WS}, {"s"+str(sMEM) if VMFIRST else "s40"} offen sc1
    """)
    if TICK:
        a(f"""
        s_cmp_lg_u32 s{sID}, 0
        s_cbranch_scc1 u_next
        v_mov_b32 v125, s{sNEED}
        s_mov_b64 exec, 1
        buffer_store_dword v125, off, {WS}, s60 offset:256 sc1
        s_mov_b64 exec, -1
        """)
    a.label("u_next")
    stamp(a, 5)
    stamp_flush(a, 6, 191)
    a(f"""
    s_add_u32 s{sUX}, s{sUX}, {UX_STEP}
    s_add_u32 s{sSTEP}, s{sSTEP}, 1
    s_cmp_lt_u32 s{sSTEP}, 63
    s_cbranch_scc1 u_loop
    s_endpgm
    """)
    flush_deferred(a)

    vH = 14
    sHOFF, sHBUF, sOUT, sFM = 37, 38, 39, 56

    def publish(role, sval, wv=3):
        lab = a.newlabel("pub")
        a(f"""
        s_cmp_lg_u32 s{sW}, {wv}
        s_cbranch_scc1 {lab}
        v_mov_b32 v3, {sval}
        s_mov_b64 exec, 1
        buffer_store_dword v3, off, {WS}, s{sFT} sc1
        s_mov_b64 exec, -1
        {lab}:
        """)

    from gen_boot import dbg_wait_wg, DBG_INIT, DBG_LN, N_INITW

    def ln_ready():
        top, done = a.newlabel("lr"), a.newlabel("lrd")
        a(f"""
        s_add_u32 s45, s{sSTEP}, 1
        s_and_b32 s46, s45, 7
        s_cmp_lg_u32 s46, 0
        s_cbranch_scc1 {done}
        s_cmp_ge_u32 s45, 64
        s_cbranch_scc1 {done}
        s_lshr_b32 s45, s45, 1
        {top}:
        buffer_load_dword v3, off, {DBG}, s45 offset:{DBG_LN} sc1
        s_waitcnt vmcnt(0)
        v_readfirstlane_b32 s44, v3
        s_sub_u32 s{sBUD}, s{sBUD}, 1
        s_cmp_lt_i32 s{sBUD}, 0
        s_cbranch_scc1 {done}
        s_cmp_ge_u32 s44, 1
        s_cbranch_scc1 {done}
        s_sleep 4
        s_branch {top}
        {done}:
        """)

    def loop_top():
        a(f"""
        v_add_u32 v{vH}, s{sHBUF}, v{vL16}
        s_sub_u32 s{sHBUF}, 40960, s{sHBUF}
        s_add_u32 s{sHOFF}, s{sHOFF}, 40960
        """)
        ln_ready()
        dmal_init(a, sHOFF, sHBUF)

    a.label("role_t")
    a(f"""
    s_sub_u32 s{sID}, s{sID}, 112
    s_mov_b32 s{sHOFF}, 0x{WS_H1F:x}
    s_mov_b32 s{sHBUF}, 0
    """)
    load_wqk(a, depth=TDEPTH)
    dbg_wait_wg(a, [(DBG_INIT, 1), (DBG_LN, 1)], 3, sleep=2)
    dmal_init(a, sHOFF, sHBUF)
    for k in range(10):
        dmal_one(a)
    a(f"""
    s_lshl_b32 s{sOUT}, s{sID}, 13
    s_lshl_b32 s40, s{sW}, 10
    s_add_u32 s{sOUT}, s{sOUT}, s40
    s_add_u32 s{sOUT}, s{sOUT}, 0x{WS_KX:x}
    s_lshl_b32 s{sFT}, s{sID}, 7
    s_add_u32 s{sFT}, s{sFT}, 0x{flag(FL_T):x}
    s_waitcnt vmcnt(0)
    s_barrier
    """)
    a.label("t_loop")
    stamp(a, 0)
    loop_top()
    DMK = [0, 1, 3, 4, 6, 7, 9, 10, 12, 13]

    def hook_t(ks):
        if ks in DMK:
            dmal_one(a)
        if ks == 5:
            a("s_waitcnt vmcnt(4)")
            a("s_barrier")
            publish("t", f"s{sSTEP}")
    dense_proj(a, vH, True, hook_t)
    stamp(a, 1)
    a.nop(4)
    PK = 128
    a(f"s_add_u32 s40, s{sOUT}, 0x{WS_QX-WS_KX:x}")
    for mat in (0, 1):
        for mt in range(2):
            tm = PK + (mat*2+mt) * 4
            for tt in range(2):
                b = TACC + ((mat*2+tt)*2 + mt) * 4
                a(f"v_cvt_pk_bf16_f32 v{tm+2*tt}, v{b}, v{b+1}")
                a(f"v_cvt_pk_bf16_f32 v{tm+2*tt+1}, v{b+2}, v{b+3}")
    a("s_waitcnt vmcnt(0)")
    for mat in (1, 0):
        for mt in range(2):
            tm = PK + (mat*2+mt) * 4
            so = "s40" if mat == 0 else f"s{sOUT}"
            a(f"buffer_store_dwordx4 {vr(tm,4)}, v{vL16+mt}, {WS}, {so} offen sc1")
    a(f"""
    s_add_u32 s{sOUT}, s{sOUT}, {32*8192}
    s_cmp_lg_u32 s{sSTEP}, 0
    s_cbranch_scc1 t_ne
    s_waitcnt vmcnt(0)
    s_barrier
    """)
    publish("t", "1")
    a("t_ne:")
    a("s_barrier")
    stamp(a, 2)
    stamp_flush(a, 3, 1)
    a(f"""
    s_add_u32 s{sSTEP}, s{sSTEP}, 1
    s_cmp_lt_u32 s{sSTEP}, 64
    s_cbranch_scc1 t_loop
    s_waitcnt vmcnt(0)
    s_barrier
    """)
    publish("t", f"s{sSTEP}")
    a(f"""
    {"s_endpgm" if NOTOK else ""}
    s_mov_b32 s{sSTEP}, 0
    s_add_u32 s97, s97, {300*72*32}
    s_branch {"help_c" if HELP else "help_f"}
    help_f:
    s_cmp_ge_u32 s{sID}, 27
    s_cbranch_scc1 t_a
    s_add_u32 s{sID}, s{sID}, 212
    s_mov_b32 s100, {F1S+1}
    s_branch role_f
    t_a:
    s_add_u32 s{sID}, s{sID}, {176-27}
    s_mov_b32 s100, {SENT0+1}
    s_branch role_a
    """)

    VF, AC2 = 16, 128
    LDS_V = LDS_T
    a.label("role_vo")
    a(f"""
    s_sub_u32 s{sID}, s{sID}, 144
    s_load_dwordx4 s[64:67], s[0:1], {KA_WV}
    s_mov_b32 s{sHOFF}, 0x{WS_H1F:x}
    s_mov_b32 s{sHBUF}, 0
    s_waitcnt lgkmcnt(0)
    """)
    srd(a, 16, 64, D * H * E * 2)
    srd(a, 20, 66, D * H * E * 2)
    load_wv_wo(a)
    dbg_wait_wg(a, [(DBG_INIT, 1), (DBG_LN, 1)], 3, sleep=2)
    dmal_init(a, sHOFF, sHBUF)
    for k in range(10):
        dmal_one(a)
    a(f"""
    s_mul_i32 s{sOUT}, s{sID}, 40960
    s_mul_i32 s40, s{sW}, 10240
    s_add_u32 s{sOUT}, s{sOUT}, s40
    s_add_u32 s{sOUT}, s{sOUT}, 0x{WS_UX:x}
    s_lshl_b32 s{sFT}, s{sID}, 7
    s_add_u32 s{sFT}, s{sFT}, 0x{flag(FL_VO):x}
    s_lshl_b32 s40, s{sW}, 10
    s_add_u32 s40, s40, 0x{LDS_V:x}
    v_add_u32 v12, s40, v{vL16}
    v_add_u32 v13, 0x{LDS_V:x}, v{vL16}
    s_waitcnt vmcnt(0)
    s_barrier
    """)
    a.label("vo_loop")
    stamp(a, 0)
    loop_top()

    def hook_v(ks):
        if ks % 2 == 0:
            dmal_one(a)
    dense_proj(a, vH, True, hook_v, tiles=(0, 1))
    a.nop(6)
    for mt in range(2):
        for tt in range(2):
            b = TACC + (tt*2 + mt) * 4
            a(f"v_cvt_pk_bf16_f32 v{168+4*mt+2*tt}, v{b}, v{b+1}")
            a(f"v_cvt_pk_bf16_f32 v{168+4*mt+2*tt+1}, v{b+2}, v{b+3}")
        a(f"ds_write_b128 v12, {vr(168+4*mt,4)} offset:{mt*4096}")
    a(f"""
    s_waitcnt vmcnt(10) lgkmcnt(0)
    s_barrier
    """)
    stamp(a, 1)
    for k in range(4):
        for mt in range(2):
            a(f"ds_read_b128 {vr(VF+(mt*4+k)*4,4)}, v13 offset:{mt*4096+k*1024}")
    publish("vo", f"s{sSTEP}")
    for hb in range(2):
        for k in range(4):
            if hb == 0:
                a(f"s_waitcnt lgkmcnt({6-2*k})")
            for j5 in range(5):
                for mt in range(2):
                    acc = vr(AC2 + (j5*2+mt)*4, 4) if hb == 0 else vr(TACC + (j5*2+mt)*4, 4)
                    a(f"v_mfma_f32_16x16x32_bf16 {acc}, {vr(VF+(mt*4+k)*4,4)}, {widx(160+((hb*5+j5)*4+k)*4)}, {'0' if k == 0 else acc}")
                if hb == 1 and k < 3 and j5 < 2 and (k*2+j5) < 5:
                    q = k*2 + j5
                    tm = 168 + (q % 2) * 4
                    for mt in range(2):
                        b = AC2 + (q*2+mt)*4
                        a(f"v_cvt_pk_bf16_f32 v{tm+2*mt}, v{b}, v{b+1}")
                        a(f"v_cvt_pk_bf16_f32 v{tm+2*mt+1}, v{b+2}, v{b+3}")
                    r, o = l16(q * 1024)
                    a(f"buffer_store_dwordx4 {vr(tm,4)}, {r}, {WS}, s{sOUT} offen offset:{o} sc1")
    for q in range(5):
        tm = 176 + (q % 2) * 4
        for mt in range(2):
            b = TACC + (q*2+mt)*4
            a(f"v_cvt_pk_bf16_f32 v{tm+2*mt}, v{b}, v{b+1}")
            a(f"v_cvt_pk_bf16_f32 v{tm+2*mt+1}, v{b+2}, v{b+3}")
        r, o = l16((5+q) * 1024)
        a(f"buffer_store_dwordx4 {vr(tm,4)}, {r}, {WS}, s{sOUT} offen offset:{o} sc1")
    a(f"""
    s_add_u32 s{sOUT}, s{sOUT}, {UX_STEP}
    s_cmp_lg_u32 s{sSTEP}, 0
    s_cbranch_scc1 vo_ne
    s_waitcnt vmcnt(0)
    s_barrier
    """)
    publish("vo", "1")
    a(f"""
    vo_ne:
    s_waitcnt vmcnt(10)
    s_barrier
    """)
    stamp(a, 2)
    stamp_flush(a, 3, 1)
    a(f"""
    s_add_u32 s{sSTEP}, s{sSTEP}, 1
    s_cmp_lt_u32 s{sSTEP}, 64
    s_cbranch_scc1 vo_loop
    s_waitcnt vmcnt(0)
    s_barrier
    """)
    publish("vo", f"s{sSTEP}")
    a(f"""
    {"s_endpgm" if NOTOK else ""}
    s_mov_b32 s{sSTEP}, 0
    s_add_u32 s97, s97, {300*72*32}
    s_branch {"help_f" if HELP else "help_c"}
    help_c:
    s_cmp_ge_u32 s{sID}, {NC}
    s_cbranch_scc1 vo_a
    s_add_u32 s{sID}, s{sID}, {184+NC}
    s_branch role_c
    vo_a:
    s_cmp_ge_u32 s{sID}, {NC+3}
    s_cbranch_scc1 r_end
    s_add_u32 s{sID}, s{sID}, {176+5-NC}
    s_mov_b32 s100, {SENT0+1}
    s_branch role_a
    """)

    KF2, QF2, KMF2, SA2, Y0 = 16, 48, 80, 96, 120
    sKXR, sKM = 33, 57
    a.label("role_al")
    a(f"""
    s_sub_u32 s40, s{sID}, 176
    s_sub_u32 s41, s{sID}, 196
    s_cmp_lt_u32 s{sID}, 184
    s_cselect_b32 s40, s40, s41             ; 0..15
    s_lshl_b32 s40, s40, 1
    s_and_b32 s41, s{sW}, 1
    s_add_u32 s{sID}, s40, s41
    s_cmp_ge_u32 s{sW}, 2
    s_cbranch_scc1 role_l
    s_branch role_a2
    """)
    a.label("role_a")
    a(f"""
    s_sub_u32 s{sID}, s{sID}, 176
    s_lshl_b32 s{sID}, s{sID}, 2
    s_add_u32 s{sID}, s{sID}, s{sW}         ; head
    role_a2:
    v_bfe_u32 v10, v{vLANE}, 3, 1           ; b
    v_and_b32 v11, 7, v{vLANE}              ; i
    v_lshrrev_b32 v15, 4, v{vLANE}          ; g
    v_lshlrev_b32 v8, 7, v15
    v_lshl_add_u32 v8, v11, 4, v8
    v_mul_u32_u24 v10, {PB_RG}, v10
    v_lshl_add_u32 v{vST}, v11, 4, v10      ; + i*16
    v_and_b32 v11, 1, v15
    v_lshl_add_u32 v{vST}, v11, 3, v{vST}   ; + (g&1)*8
    v_lshrrev_b32 v11, 1, v15
    v_lshl_add_u32 v{vSM}, v11, 7, v{vST}
    v_lshl_add_u32 v{vST}, v11, 8, v{vST}
    v_and_b32 v10, 15, v{vLANE}
    v_lshlrev_b32 v11, 2, v15               ; 4g
    """)
    for r in range(4):
        a(f"v_add_u32 v15, {r}, v11")
        a(f"v_cmp_le_u32 s[{64+r*2}:{65+r*2}], v15, v10")
    a(f"""
    s_mov_b32 s54, 0
    s_mov_b32 s55, -1
    s_lshl_b32 s{sPB}, s{sID}, 9
    s_add_u32 s{sPB}, s{sPB}, 0x{WS_PT:x}
    ; mem part offset relative to token part: 16384 + (2(h/4) + h%2)*256 + ((h>>1)&1)*4 - h*512
    s_lshr_b32 s40, s{sID}, 2
    s_lshl_b32 s40, s40, 1
    s_and_b32 s41, s{sID}, 1
    s_add_u32 s40, s40, s41
    s_lshl_b32 s40, s40, 8
    s_bfe_u32 s41, s{sID}, 0x10001
    s_lshl_b32 s41, s41, 2
    s_add_u32 s40, s40, s41
    s_add_u32 s40, s40, 16384
    s_lshl_b32 s41, s{sID}, 9
    s_sub_u32 s61, s40, s41
    s_lshl_b32 s58, s{sID}, 7
    s_add_u32 s59, s58, 0x{flag(FL_A):x}
    s_add_u32 s58, s58, 0x{flag(FL_KM):x}
    s_mov_b32 s60, 0
    s_lshl_b32 s{sKXR}, s{sID}, 13
    s_add_u32 s{sKXR}, s{sKXR}, 0x{WS_KX:x}
    s_lshl_b32 s{sKM}, s{sID}, 11
    s_add_u32 s{sKM}, s{sKM}, 0x{WS_KM:x}
    s_lshl_b32 s{sFT}, s{sID}, 7
    s_add_u32 s{sFT}, s{sFT}, 0x{flag(FL_T):x}
    s_mov_b32 s{sSEEN}, 0
    s_mov_b32 s{sSTEP}, s100
    s_cmp_eq_u32 s100, 0
    s_cbranch_scc1 a_prim
    s_add_u32 s{sPB}, s{sPB}, {(SENT0+1)*PT_STEP}
    s_add_u32 s{sKXR}, s{sKXR}, {(SENT0+1)*32*8192}
    s_add_u32 s{sKM}, s{sKM}, {(SENT0+1)*32*2048}
    s_mov_b32 s59, 0x{flag(FL_DUMMY):x}
    """)
    wait_flag(a, 58, 100, 60, Y0, sleep=32)
    a.label("a_prim")

    KQ = [(16, 48), (144, 176)]

    def a_kq(need, buf):
        wait_flag(a, sFT, need, sSEEN, Y0+1, sleep=8)
        a(f"s_add_u32 s40, s{sKXR}, 0x{WS_QX-WS_KX:x}")
        for f in range(8):
            r, o = l16(f * 1024)
            a(f"buffer_load_dwordx4 {vr(KQ[buf][0]+4*f,4)}, {r}, {WS}, s{sKXR} offen offset:{o} sc1")
        for f in range(8):
            r, o = l16(f * 1024)
            a(f"buffer_load_dwordx4 {vr(KQ[buf][1]+4*f,4)}, {r}, {WS}, s40 offen offset:{o} sc1")
        a(f"s_add_u32 s{sKXR}, s{sKXR}, {32*8192}")

    def a_km():
        for k in range(4):
            a(f"buffer_load_dwordx4 {vr(KMF2+4*k,4)}, v8, {WS}, s{sKM} offen offset:{k*512} sc1")
    a(f"s_add_u32 s{sNEED}, s{sSTEP}, 1")
    a_kq(sNEED, 0)
    a("s_mov_b32 s47, 0")
    a.label("a_loop")
    for buf in range(2):
        KF2, QF2 = KQ[buf]
        stamp(a, 0)
        a(f"""
        s_add_u32 s{sNEED}, s{sSTEP}, 1
        s_cmp_eq_u32 s47, 1
        s_cbranch_scc1 a_chk{buf}
        s_cmp_ge_u32 s{sSTEP}, {SENT0}
        s_cbranch_scc1 a_kml{buf}
        """)
        wait_flag(a, 58, sNEED, 60, Y0, sleep=4)
        a.label(f"a_kml{buf}")
        a_km()
        a.label(f"a_chk{buf}")
        stamp(a, 1)
        a("s_waitcnt vmcnt(0)")
        vmax_chain(a, Y0, range(KMF2, KMF2+16))
        poll_fail(a, f"a_kml{buf}", sleep=3)
        stamp(a, 2)
        a(f"""
        s_cmp_ge_u32 s{sSTEP}, {SENT0}
        s_cselect_b32 s46, 2, 1
        s_cselect_b32 s45, {32*8192}, 0
        s_add_u32 s{sKXR}, s{sKXR}, s45
        s_add_u32 s45, s{sNEED}, s46
        s_min_u32 s45, s45, 64
        """)
        for qt in range(2):
            for k in range(4):
                for mt in range(qt + 1):
                    acc = vr(SA2+12*qt+4*mt, 4)
                    a(f"v_mfma_f32_16x16x32_bf16 {acc}, {vr(KF2+(mt*4+k)*4,4)}, {vr(QF2+(qt*4+k)*4,4)}, {'0' if k==0 else acc}")
                acc = vr(SA2+12*qt+8, 4)
                a(f"v_mfma_f32_16x16x32_bf16 {acc}, {vr(KMF2+4*k,4)}, {vr(QF2+(qt*4+k)*4,4)}, {'0' if k==0 else acc}")
        for qt in range(2):
            SB = SA2 + 12*qt
            if qt == 0:
                a.nop(2)
            a(f"""
            v_cndmask_b32 v{SB+8}, v{SB+8}, v{SB+10}, s[54:55]
            v_cndmask_b32 v{SB+9}, v{SB+9}, v{SB+11}, s[54:55]
            """)
            xs = [SB + k for k in range(4*(qt+1))] + [SB+8, SB+9]
            round_scale(a, xs, Y0+8, 50)
            a(f"v_mov_b32 v{Y0}, 0xce6e6b28")
            for k in range(4):
                a(f"v_cndmask_b32 v{SB+4*qt+k}, v{Y0}, v{SB+4*qt+k}, s[{64+2*k}:{65+2*k}]")
            softmax(a, xs, Y0+6, Y0+7, 51, False)
            O = 208 + 8*qt
            for half in range(2):
                for m in range(2):
                    if m <= qt:
                        a(f"v_cvt_pk_bf16_f32 v{O+2*half+m}, v{SB+4*m+2*half}, v{SB+4*m+2*half+1}")
                    else:
                        a(f"v_mov_b32 v{O+2*half+m}, 0")
            a(f"v_cvt_pk_bf16_f32 v{O+4}, v{SB+8}, v{SB+9}")
            for k in range(5):
                a(f"v_min_u32 v{O+k}, -2, v{O+k}")
            a(f"s_add_u32 s40, s{sPB}, {qt*2*PB_RG}")
            for half in range(2):
                a(f"buffer_store_dwordx2 {vr(O+2*half,2)}, v{vST}, {WS}, s40 offen offset:{half*128} sc1")
            a(f"s_add_u32 s40, s40, s61")
            a(f"buffer_store_dword v{O+4}, v{vSM}, {WS}, s40 offen sc1")
            if qt == 0:
                a(f"buffer_load_dword v{Y0+2}, off, {WS}, s58 sc1")
                a_kq(45, 1 - buf)
        a(f"""
        s_lshl_b32 s40, s46, 16
        s_add_u32 s{sKM}, s{sKM}, s40
        s_mul_i32 s40, s46, {PT_STEP}
        s_add_u32 s{sPB}, s{sPB}, s40
        v_mov_b32 v{Y0}, s{sNEED}
        s_waitcnt vmcnt(19)
        v_readfirstlane_b32 s60, v{Y0+2}
        s_add_u32 s{sSTEP}, s{sSTEP}, s46
        s_mov_b32 s47, 0
        s_nop 1
        s_cmp_le_u32 s60, s{sSTEP}
        s_cbranch_scc1 a_nk{buf}
        s_mov_b32 s47, 1
        """)
        a_km()
        a(f"""
        s_waitcnt vmcnt(4)
        s_branch a_pub{buf}
        a_nk{buf}:
        s_waitcnt vmcnt(0)
        a_pub{buf}:
        s_mov_b64 exec, 1
        buffer_store_dword v{Y0}, off, {WS}, s59 sc1
        s_mov_b64 exec, -1
        """)
        stamp(a, 3)
        if STAMP:
            a(f"s_sub_u32 s{sSTEP}, s{sSTEP}, s46")
            stamp_flush(a, 4, 1)
            a(f"s_add_u32 s{sSTEP}, s{sSTEP}, s46")
        a(f"""
        s_cmp_ge_u32 s{sSTEP}, 64
        s_cbranch_scc1 r_end
        """)
    a("s_branch a_loop")

    a.label("role_l")
    if "l" in KILL:
        a("s_endpgm")
    ln_setup(a, 3, 4, False)
    a(f"""
    s_mov_b32 s40, s{sID}                   ; row
    {"s_sub_u32 s3, s3, 2" if STAMP else ""}
    {"s_add_u32 s97, s97, " + str(100*72*32) if STAMP else ""}
    s_mul_i32 s46, s40, 1280
    s_add_u32 s47, s46, 0x{WS_H2F:x}
    s_lshl_b32 s48, s40, 7
    s_add_u32 s48, s48, 0x{flag(FL_L):x}
    s_mov_b32 s49, 0x{flag(FL_CC):x}
    v_lshlrev_b32 v9, 1, v{L_DST}
    v_cndmask_b32 v9, v{L_DST}, v9, s[76:77]
    s_mov_b32 s40, {WS_MOD + 2*2560}
    s_mov_b32 s52, 20
    """)
    GA = 48
    for h in range(2):
        a(f"buffer_load_dwordx4 {vr(GA+8*h,4)}, v9, {WS}, s40 offen offset:{h*1280} sc1")
        a(f"buffer_load_dwordx4 {vr(GA+8*h+4,4)}, v9, {WS}, s40 offen offset:{h*1280+16} sc1")
    a("s_mov_b32 s54, 0")
    a.label("l_loop")
    stamp(a, 0)
    a(f"""
    s_add_u32 s45, s{sSTEP}, 1
    s_add_u32 s41, s46, 0x{WS_ATT:x}
    s_add_u32 s42, s46, 0x{WS_X1:x}
    s_mov_b32 s53, 0
    s_cmp_eq_u32 s54, 1
    s_cbranch_scc1 l_chk
    """)
    ln_load(a, XS, 46, "", False, raw=24)
    a(f"""
    s_cmp_ge_u32 s{sSTEP}, {SENT0}
    s_cbranch_scc1 l_ld
    """)
    wait_flag(a, 49, 52, 53, 16, sleep=3)
    a.label("l_ld")
    ln_load(a, WS, 41, "sc1", False)
    a(f"buffer_load_dword v17, off, {WS}, s49 offset:128 sc1")
    a("s_waitcnt vmcnt(0)")
    a.label("l_chk")
    stamp(a, 1)
    vmax_chain(a, 16, range(L_RAW, L_RAW+8))
    poll_fail(a, "l_ld", sleep=3)
    a("v_readfirstlane_b32 s55, v17")
    ln_unpack(a, False)
    for j in range(8):
        x0, x1 = L_X + 2*j, L_X + 2*j + 1
        a(f"""
        v_mul_f32 v{x0}, v{x0}, v{GA+2*j}
        v_mul_f32 v{x1}, v{x1}, v{GA+2*j+1}
        v_cvt_pk_bf16_f32 v{L_T}, v{x0}, v{x1}
        v_lshlrev_b32 v{x0}, 16, v{L_T}
        v_and_b32 v{x1}, 0xffff0000, v{L_T}
        v_lshlrev_b32 v{L_T}, 16, v{24+j}
        v_and_b32 v{L_T2}, 0xffff0000, v{24+j}
        v_add_f32 v{x0}, v{x0}, v{L_T}
        v_add_f32 v{x1}, v{x1}, v{L_T2}
        v_cvt_pk_bf16_f32 v{32+j}, v{x0}, v{x1}
        v_lshlrev_b32 v{x0}, 16, v{32+j}
        v_and_b32 v{x1}, 0xffff0000, v{32+j}
        """)
    for j in range(8):
        a(f"v_min_u32 v{32+j}, -2, v{32+j}")
    a(f"buffer_store_dwordx4 v[32:35], v{L_DST}, {WS}, s42 offen sc1")
    a(f"buffer_store_dwordx4 v[36:39], v{L_DST}, {WS}, s42 offen offset:640 sc1")
    a(f"""
    s_mov_b32 s54, 0
    s_cmp_ge_u32 s{sSTEP}, {SENT0-1}
    s_cselect_b32 s55, 20, s55
    s_cmp_lt_u32 s55, 20
    s_cbranch_scc1 l_nopf
    s_cmp_ge_u32 s{sSTEP}, 63
    s_cbranch_scc1 l_nopf
    s_mov_b32 s54, 1
    s_add_u32 s40, s46, {32*1280}
    s_add_u32 s41, s41, {32*1280}
    """)
    ln_load(a, XS, 40, "", False, raw=24)
    ln_load(a, WS, 41, "sc1", False)
    a(f"buffer_load_dword v17, off, {WS}, s49 offset:256 sc1")
    a.label("l_nopf")
    ln_compute_store(a, 47)
    a("s_add_u32 s49, s49, 128")
    stamp(a, 2)
    a(f"""
    v_mov_b32 v16, s45
    s_add_u32 s46, s46, {32*1280}
    s_add_u32 s47, s47, {32*1280}
    s_waitcnt vmcnt(0)
    s_mov_b64 exec, 1
    buffer_store_dword v16, off, {WS}, s48 sc1
    s_mov_b64 exec, -1
    """)
    stamp(a, 3)
    stamp_flush(a, 4, 1)
    a(f"""
    s_add_u32 s{sSTEP}, s{sSTEP}, 1
    s_cmp_lt_u32 s{sSTEP}, 64
    s_cbranch_scc1 l_loop
    s_endpgm
    """)

    vPT, vBM, vXS = 240, 239, 242
    sUXR, sPFC = 33, 59
    sA, sV = 61, 62
    PFB = [16, 96]
    BMB = [128, 144]
    CAC = 176
    from gen_boot import arrive
    a.label("role_c")
    if "c" in KILL:
        a("s_endpgm")
    a(f"s_sub_u32 s{sID}, s{sID}, 184")
    setup_p_load_addrs(a, vPA, vPB, vBM)
    a(f"""
    s_lshl_b32 s40, s{sW}, 12
    v_add_u32 v{vPT}, s40, v{vL16}
    v_add_u32 v{vRd}, s40, v{vL16}
    s_lshl_b32 s40, s{sW}, 10
    v_add_u32 v{vWr}, s40, v{vL16}
    v_add_u32 v241, 16384, v{vWr}
    v_and_b32 v10, 15, v{vLANE}             ; n
    v_lshrrev_b32 v11, 5, v{vLANE}          ; pr
    v_lshl_add_u32 v10, v11, 4, v10
    v_bfe_u32 v11, v{vLANE}, 4, 1
    v_lshlrev_b32 v11, 2, v11
    s_lshl_b32 s40, s{sW}, 3
    v_add_u32 v11, s40, v11
    v_mul_u32_u24 v11, 1280, v11
    v_lshl_add_u32 v{vXS}, v10, 1, v11
    v_and_b32 v10, 1, v{vLANE}
    v_mov_b32 v11, 0x7ffffff0
    v_cmp_ne_u32 vcc, 0, v10
    v_lshlrev_b32 v243, 7, v{vLANE}
    v_mov_b32 v232, 0
    v_cndmask_b32 v{vXS}, v{vXS}, v11, vcc
    v_mov_b32 v231, 20
    s_lshl_b32 s40, s{sW}, 10
    s_add_u32 s{sFT}, s40, 0x{flag(FL_UF):x}
    s_add_u32 s{sA}, s40, 0x{flag(FL_A):x}
    s_add_u32 s{sV}, s40, 0x{flag(FL_VO):x}
    s_mov_b32 s{sFM}, 0x{flag(FL_MEM):x}
    s_mul_i32 s73, s{sW}, {8*40960}
    s_add_u32 s73, s73, 0x{WS_UX:x}
    s_add_u32 s76, s{sID}, {CT0}
    s_cmp_ge_u32 s{sID}, {NC}
    s_cselect_b32 s77, s76, s{sID}
    s_mov_b32 s78, s77
    s_mov_b32 s79, s77
    """)

    TIX = {57: 77, 60: 78, 68: 79}

    def dec(ss, sk):
        t = TIX[ss]
        a(f"""
        s_mul_i32 s{ss}, s{t}, 3277
        s_lshr_b32 s{ss}, s{ss}, 16
        s_mul_i32 s40, s{ss}, 20
        s_sub_u32 s{sk}, s{t}, s40
        """)

    def adv(ss, sk):
        t = TIX[ss]
        a(f"""
        s_add_u32 s40, s{t}, {NC}
        s_cmp_lt_u32 s40, {CT0}
        s_cselect_b32 s40, s40, s76
        s_add_u32 s41, s{t}, {2*NC}
        s_cmp_lt_u32 s{t}, {CT0}
        s_cselect_b32 s{t}, s40, s41
        """)
        dec(ss, sk)
    dec(57, 58)
    dec(60, 63)
    dec(68, 72)

    def c_needs():
        a(f"s_add_u32 s44, s60, 1")

    def c_offs():
        a(f"""
        s_mul_i32 s{sPB}, s60, {PT_STEP}
        s_add_u32 s{sPB}, s{sPB}, 0x{WS_PT:x}
        s_add_u32 s64, s{sPB}, {PB_RG}
        s_add_u32 s65, s{sPB}, {2*PB_RG}
        s_add_u32 s66, s{sPB}, {3*PB_RG}
        s_mul_i32 s67, s60, {UM_STEP}
        s_lshl_b32 s40, s63, 9
        s_add_u32 s67, s67, s40
        s_add_u32 s67, s67, 0x{WS_UMC:x}
        s_add_u32 s69, s67, 20480
        s_add_u32 s70, s67, 40960
        s_add_u32 s71, s67, 61440
        """)

    def c_flag_loads():
        a(f"""
        s_mov_b64 exec, 255
        buffer_load_dword v233, v243, {WS}, s{sA} offen sc1
        buffer_load_dwordx4 v[224:227], v243, {WS}, s{sFT} offen sc1
        s_mov_b64 exec, -1
        """)

    def c_test(fail):
        a(f"""
        v_min3_u32 v234, v233, v224, v225
        v_min3_u32 v234, v234, v226, v227
        s_mov_b64 exec, 255
        v_cmp_gt_u32 vcc, s44, v234
        s_mov_b64 exec, -1
        s_cbranch_vccnz {fail}
        """)

    def c_block():
        c_needs()
        top, retry, done = a.newlabel("cb"), a.newlabel("cb"), a.newlabel("cb")
        a.label(top)
        c_flag_loads()
        a("s_waitcnt vmcnt(0)")
        sk = a.newlabel("cb")
        a(f"""
        s_cmp_lt_u32 s60, {SENT0}
        s_cbranch_scc1 {sk}
        v_mov_b32 v233, 64
        {sk}:
        """)
        c_test(retry)
        a(f"s_branch {done}")
        a.label(retry)
        a(f"""
        s_sub_u32 s{sBUD}, s{sBUD}, 1
        s_cmp_lt_i32 s{sBUD}, 0
        s_cbranch_scc1 {done}
        s_sleep 3
        s_branch {top}
        """)
        a.label(done)

    def c_load_list(buf):
        L = []
        for rg in range(4):
            so = [sPB, 64, 65, 66][rg]
            PF = PFB[buf] + 20*rg
            for q in range(4):
                L.append(f"buffer_load_dwordx4 {vr(PF+q*4,4)}, v{vPT}, {WS}, s{so} offen offset:{q*1024} sc1")
            L.append(f"buffer_load_dwordx4 {vr(PF+16,4)}, v241, {WS}, s{so} offen sc1")
        for j in range(4):
            for pr in range(2):
                L.append(f"buffer_load_dwordx2 {ar(BMB[buf]+pr*8+2*j,2)}, v{vBM}, {WS}, s{[67,69,70,71][j]} offen offset:{pr*256} sc1")
        return L

    def c_ux(buf, tail_wait=False):
        ok, skip, end = a.newlabel("cux"), a.newlabel("cux"), a.newlabel("cux")
        a(f"""
        s_cmp_ge_u32 s68, 64
        s_cbranch_scc1 {skip}
        s_add_u32 s45, s68, 1
        s_mov_b64 exec, 255
        v_cmp_gt_u32 vcc, s45, v232
        s_mov_b64 exec, -1
        s_cbranch_vccz {ok}
        """)
        wait_all(a, 8, 243, sV, 45, 232)
        a.label(ok)
        a(f"""
        s_mul_i32 s{sUXR}, s68, {UX_STEP}
        s_lshl_b32 s40, s72, 11
        s_add_u32 s{sUXR}, s{sUXR}, s40
        s_add_u32 s{sUXR}, s{sUXR}, s73
        """)
        for hh in range(8):
            for pr in range(2):
                a(f"buffer_load_dwordx4 {ar(buf*64+pr*32+hh*4,4)}, v{vL16}, {WS}, s{sUXR} offen offset:{pr*1024} sc1")
            a(f"s_add_u32 s{sUXR}, s{sUXR}, 40960")
        if tail_wait:
            a("s_waitcnt vmcnt(16)")
            a(f"s_branch {end}")
        a.label(skip)
        if tail_wait:
            a("s_waitcnt vmcnt(0)")
        a.label(end)
        adv(68, 72)

    def c_burst(buf):
        c_block()
        c_offs()
        top = a.newlabel("cbl")
        a.label(top)
        for x in c_load_list(buf):
            a(x)
        c_flag_loads()
        a("s_waitcnt vmcnt(0)")
        vmax_chain(a, 3, range(PFB[buf], PFB[buf]+80))
        poll_fail(a, top, sleep=4)
        adv(60, 63)

    def c_compute(buf, LL, tag):
        b = Asm()
        for r in range(32):
            b(f"v_mov_b32 v{CAC+r}, 0")
        b.nop(1)
        for q in range(5):
            for pr in range(2):
                for rg in range(4):
                    f = PFB[buf] + 20*rg + q*4
                    B = ar(buf*64+pr*32+q*8, 8) if q < 4 else ar(BMB[buf]+pr*8, 8)
                    b(f"v_smfmac_f32_16x16x64_bf16 {vr(CAC+(pr*4+rg)*4,4)}, {vr(f,4)}, {B}, v{vIDX}")
        b.nop(6)
        for rg in range(4):
            A, B = CAC + rg*4, CAC + (4+rg)*4
            for r in range(4):
                b(f"v_permlane32_swap_b32 v{A+r}, v{B+r}")
            for r in range(4):
                b(f"v_add_f32 v{A+r}, v{A+r}, v{B+r}")
            b(f"ds_write_b128 v{vWr}, {vr(A,4)} offset:{rg*4096}")
        b(f"""
        s_waitcnt lgkmcnt(0)
        s_barrier
        """)
        FT = 208
        for q in range(4):
            b(f"ds_read_b128 {vr(FT+4*q,4)}, v{vRd} offset:{q*1024}")
        b(f"""
        s_mul_i32 s74, s57, {32*1280}
        s_lshl_b32 s75, s58, 6
        s_add_u32 s74, s74, s75
        s_add_u32 s74, s74, 0x{WS_ATT:x}
        s_lshl_b32 s75, s57, 7
        s_add_u32 s75, s75, 0x{flag(FL_CC):x}
        s_waitcnt lgkmcnt(0)
        """)
        for r in range(4):
            b(f"v_add_f32 v{FT+r}, v{FT+r}, v{FT+4+r}")
            b(f"v_add_f32 v{FT+8+r}, v{FT+8+r}, v{FT+12+r}")
        for r in range(4):
            b(f"v_add_f32 v{FT+r}, v{FT+r}, v{FT+8+r}")
        b.nop(1)
        for r in range(4):
            b(f"v_mov_b32_dpp v{FT+8+r}, v{FT+r} quad_perm:[1,0,3,2] row_mask:0xf bank_mask:0xf")
        for r in range(4):
            b(f"v_cvt_pk_bf16_f32 v{FT+r}, v{FT+r}, v{FT+8+r}")
            b(f"v_min_u32 v{FT+r}, -2, v{FT+r}")
            b(f"buffer_store_dword v{FT+r}, v{vXS}, {WS}, s74 offen offset:{r*1280} sc1")
        LL = list(LL)
        acc = 0
        nld = 0
        for ln in b.lines:
            t = ln.strip()
            if t == "s_barrier":
                a(f"""
                s_cmp_lg_u32 s{sW}, 3
                s_cbranch_scc1 c_rs{tag}
                s_waitcnt vmcnt({nld})
                s_mov_b64 exec, 1
                v_cmp_eq_u32 vcc, 19, v230
                v_mov_b32 v230, 0
                s_cbranch_vccz c_rt{tag}
                buffer_store_dword v231, off, {WS}, s56 sc1
                c_rt{tag}:
                s_mov_b64 exec, -1
                c_rs{tag}:
                """)
            a.lines.append(ln)
            if not t or t.startswith(";"):
                continue
            if t.startswith("v_smfmac"):
                acc += 16
            elif t.startswith("ds_") or t.startswith("s_waitcnt") or t.startswith("s_barrier"):
                acc += 24
            elif t.startswith("buffer_store"):
                acc = 0
            else:
                acc += 4
            if acc >= C_GAP and LL and not t.startswith("v_cvt_pk_bf16_f32 v2"):
                x = LL.pop(0)
                a(x)
                nld += x.count("buffer_load")
                acc = 0
        for x in LL:
            a(x)

    a("v_mov_b32 v230, 0")
    c_ux(0)
    c_ux(1)
    c_burst(0)
    a.label("c_loop")
    for buf in range(2):
        stamp(a, 0)
        plain, join, nb = a.newlabel("cpl"), a.newlabel("cjn"), a.newlabel("cnb")
        c_needs()
        a(f"s_mov_b32 s{sPFC}, 0")
        c_test(plain)
        a(f"""
        s_cmp_ge_u32 s60, {SENT0}
        s_cbranch_scc1 {plain}
        s_mov_b32 s{sPFC}, 1
        """)
        c_offs()
        def arrive_issue(tag, resolve):
            a(f"""
            s_barrier
            s_cmp_lg_u32 s{sW}, 3
            s_cbranch_scc1 c_nf{tag}
            s_lshl_b32 s40, s57, 2
            s_add_u32 s40, s40, 0x{flag(FL_CN):x}
            s_mov_b32 s56, s75
            v_mov_b32 v230, 1
            s_mov_b64 exec, 1
            buffer_atomic_add v230, off, {WS}, s40 sc0
            """)
            if resolve:
                a(f"""
                s_waitcnt vmcnt(0)
                v_cmp_eq_u32 vcc, 19, v230
                v_mov_b32 v230, 0
                s_cbranch_vccz c_ne{tag}
                buffer_store_dword v231, off, {WS}, s56 sc1
                c_ne{tag}:
                """)
            a(f"""
            s_mov_b64 exec, -1
            c_nf{tag}:
            """)
        FLG = f"""s_mov_b64 exec, 255
        buffer_load_dword v233, v243, {WS}, s{sA} offen sc1
        buffer_load_dwordx4 v[224:227], v243, {WS}, s{sFT} offen sc1
        s_mov_b64 exec, -1"""
        c_compute(buf, c_load_list(1 - buf) + [FLG], f"x{buf}")
        adv(60, 63)
        stamp(a, 1)
        c_ux(buf, tail_wait=True)
        arrive_issue(f"a{buf}", False)
        a(f"s_branch {join}")
        a.label(plain)
        c_compute(buf, [], f"y{buf}")
        stamp(a, 1)
        a(FLG)
        a("s_waitcnt vmcnt(0)")
        arrive_issue(f"b{buf}", False)

        def resolve(tag, cnt):
            a(f"""
            s_cmp_lg_u32 s{sW}, 3
            s_cbranch_scc1 c_q{tag}
            s_waitcnt vmcnt({cnt})
            s_mov_b64 exec, 1
            v_cmp_eq_u32 vcc, 19, v230
            v_mov_b32 v230, 0
            s_cbranch_vccz c_p{tag}
            buffer_store_dword v231, off, {WS}, s56 sc1
            c_p{tag}:
            s_mov_b64 exec, -1
            c_q{tag}:
            """)
        slow = a.newlabel("csl")
        c_test(slow)
        a(f"""
        s_cmp_ge_u32 s60, {SENT0}
        s_cbranch_scc1 {slow}
        s_mov_b32 s{sPFC}, 1
        """)
        c_offs()
        LL = c_load_list(1 - buf)
        for x in LL:
            a(x)
        resolve(f"f{buf}", len(LL))
        a(FLG)
        adv(60, 63)
        c_ux(buf, tail_wait=True)
        a(f"s_branch {join}")
        a.label(slow)
        resolve(f"s{buf}", 0)
        c_ux(buf)
        a.label(join)
        adv(57, 58)
        stamp(a, 2)
        stamp_flush(a, 3, 1)
        a(f"""
        s_add_u32 s{sSTEP}, s{sSTEP}, 1
        s_cmp_ge_u32 s57, 64
        s_cbranch_scc1 r_end
        s_cmp_eq_u32 s{sPFC}, 1
        s_cbranch_scc1 {nb}
        """)
        c_burst(1 - buf)
        a.label(nb)
    a("s_branch c_loop")
    a.label("pre_boot")
    a(f"""
    v_mov_b32 v134, -1
    s_sub_u32 s40, s{sID}, 102
    s_lshl_b32 s40, s40, 21
    s_add_u32 s40, s40, 0x{WS_CRA + 0x1F0000:x}
    s_lshl_b32 s41, s{sW}, 14
    s_add_u32 s40, s40, s41
    s_mov_b32 s42, -1
    s_mov_b32 s43, -1
    s_mov_b64 exec, 1
    """)
    for k in range(3):
        for half in range(2):
            a(f"""
            s_add_u32 s41, s40, {half*8192 + (k%2)*4096 + k*1152}
            s_memtime s[44:45]
            s_waitcnt lgkmcnt(0)
            buffer_store_dword v134, off, {WS}, s41 sc1
            s_waitcnt vmcnt(0)
            buffer_load_dword v135, off, {WS}, s41 sc1
            s_waitcnt vmcnt(0)
            s_memtime s[46:47]
            s_waitcnt lgkmcnt(0)
            s_sub_u32 s46, s46, s44
            s_min_u32 s{42+half}, s{42+half}, s46
            """)
    a(f"""
    v_mov_b32 v136, s42
    v_mov_b32 v137, s43
    s_lshl_b32 s40, s{sW}, 3
    v_mov_b32 v135, s40
    ds_write_b64 v135, v[136:137]
    s_mov_b64 exec, -1
    s_waitcnt lgkmcnt(0)
    s_barrier
    v_mov_b32 v135, 0
    ds_read_b128 v[124:127], v135
    ds_read_b128 v[128:131], v135 offset:16
    s_waitcnt lgkmcnt(0)
    v_add3_u32 v124, v124, v126, v128
    v_add3_u32 v125, v125, v127, v129
    v_add_u32 v124, v124, v130
    v_add_u32 v125, v125, v131
    v_cmp_lt_u32 vcc, v125, v124
    v_mov_b32 v126, 1
    v_mov_b32 v127, 3
    v_cndmask_b32 v126, v126, v127, vcc
    {"v_mov_b32 v126, " + FORCEPOL if FORCEPOL else ""}
    s_sub_u32 s40, s{sID}, 102
    s_lshl_b32 s40, s40, 2
    s_barrier
    s_cmp_lg_u32 s{sW}, 0
    s_cbranch_scc1 boot_nrm0
    s_mov_b64 exec, 1
    buffer_store_dword v126, off, {DBG}, s40 offset:176 sc1
    s_mov_b64 exec, -1
    s_branch boot_nrm0
    """)
    from gen_boot import gen_boot
    gen_boot(a)
    from gen_f import gen_phase2
    gen_phase2(a)
    a.label("r_end")
    a("s_endpgm")
    a.label("r_code_end")
    return (L, 256, 256, max(131072, 16384*(VDEPTH+1) + 81920), kernel_desc(L, 512, 256))
```

```python
from gen_common import *
import os

P_SLEEP0 = int(os.environ.get("P_SLEEP0", "36"))
P_SLEEP1 = int(os.environ.get("P_SLEEP1", "46"))
U_SLEEPM = int(os.environ.get("U_SLEEPM", "14"))
U_SLEEPP = int(os.environ.get("U_SLEEPP", "12"))
STAMP = int(os.environ.get("STAMP", "0"))
L1FIRST = 0
FORCEPOL = os.environ.get("FORCEPOL", "")
U_SLEEPD = int(os.environ.get("U_SLEEPD", "11"))
DOOR = int(os.environ.get("DOOR", "1"))
C_GAP = int(os.environ.get("C_GAP", "56"))
C_UXTAIL = int(os.environ.get("C_UXTAIL", "16"))
V_SLEEP = int(os.environ.get("V_SLEEP", "4"))
VM_FILL = int(os.environ.get("VM_FILL", "3"))
PKADD = int(os.environ.get("PKADD", "1"))
PDELAY = int(os.environ.get("PDELAY", "0"))
TDEPTH = int(os.environ.get("TDEPTH", "2"))
PDEPTH = int(os.environ.get("PDEPTH", "2"))
CT0 = 20 * int(os.environ.get("CSEG0", "46"))
XMAP = int(os.environ.get("XMAP", "76540321"), 16)
WARM = int(os.environ.get("WARM", "0"))
DST = int(os.environ.get("DST", "0"))
NOMIMIC = int(os.environ.get("NOMIMIC", "1"))
ALAT = int(os.environ.get("ALAT", "44"))
VMFIRST = int(os.environ.get("VMFIRST", "0"))
V_HOLD = int(os.environ.get("V_HOLD", "12"))
V_LAZY = int(os.environ.get("V_LAZY", "0"))
U_HOLD = int(os.environ.get("U_HOLD", "0"))
P_HOLD = int(os.environ.get("P_HOLD", "0"))
VDEPTH = int(os.environ.get("VDEPTH", "2"))
HELP = int(os.environ.get("HELP", "1"))
KILL = os.environ.get("KILL", "")
SWAPB = int(os.environ.get("SWAPB", "0"))
TICK = int(os.environ.get("TICK", "0"))
DOORAT = int(os.environ.get("DOORAT", "12"))
EARLYP = int(os.environ.get("EARLYP", "2"))
NOTOK = int(os.environ.get("NOTOK", "0"))

WS, DBG, WQ, WK, XS = "s[8:11]", "s[12:15]", "s[16:19]", "s[20:23]", "s[24:27]"
sW, sID, sSTEP, sBUD = 3, 28, 29, 30
vLANE, vIDX = 2, 4
vL16, vL16b, vL16c = 5, 6, 7
vM8 = 187
sSA, sSB = 98, 99
MEMF = 16
ACC = 56
LDS_T = 0x14000
LDS_R = 0x15000
LDS_ROLE = 0x1F000


def wreg(t, ks, n=4):
    idx = (t * 20 + ks) * 4
    if idx < 256:
        return ar(idx, n)
    return vr(192 + idx - 256, n)


def widx(idx, n=4):
    return ar(idx, n) if idx < 256 else vr(192 + idx - 256, n)


def l16(off):
    return f"v{vL16 + off // 4096}", off % 4096


def poll_fail(a, retry_label, sleep=2):
    ok = a.newlabel("pok")
    a(f"""
    s_cbranch_vccz {ok}
    s_sub_u32 s{sBUD}, s{sBUD}, 1
    s_cmp_lt_i32 s{sBUD}, 0
    s_cbranch_scc1 {ok}
    s_sleep {sleep}
    s_branch {retry_label}
    """)
    a.label(ok)


def wait_flag(a, s_flagoff, s_need, s_seen, vt, sleep=8):
    top = a.newlabel("wf")
    done = a.newlabel("wfd")
    a.label(top)
    a(f"""
    s_cmp_ge_u32 s{s_seen}, s{s_need}
    s_cbranch_scc1 {done}
    buffer_load_dword v{vt}, off, {WS}, s{s_flagoff} sc1
    s_waitcnt vmcnt(0)
    v_readfirstlane_b32 s{s_seen}, v{vt}
    s_nop 3
    s_cmp_ge_u32 s{s_seen}, s{s_need}
    s_cbranch_scc1 {done}
    s_sub_u32 s{sBUD}, s{sBUD}, 1
    s_cmp_lt_i32 s{sBUD}, 0
    s_cbranch_scc1 {done}
    s_sleep {sleep}
    s_branch {top}
    """)
    a.label(done)


def vmax_chain(a, vt, regs):
    regs = list(regs)
    a(f"v_max3_u32 v{vt}, v{regs[0]}, v{regs[1]}, v{regs[2]}")
    k = 3
    while k < len(regs):
        if k + 1 < len(regs):
            a(f"v_max3_u32 v{vt}, v{vt}, v{regs[k]}, v{regs[k+1]}")
            k += 2
        else:
            a(f"v_max_u32 v{vt}, v{vt}, v{regs[k]}")
            k += 1
    a(f"v_cmp_eq_u32 vcc, -1, v{vt}")


def get_pol(a, vt):
    from gen_boot import dbg_wait_wg, DBG_INIT, DBG_POL
    dbg_wait_wg(a, [(DBG_INIT, 1), (DBG_POL, 1), (DBG_POL+4, 1)], vt)
    a(f"""
    buffer_load_dwordx2 v[184:185], off, {DBG}, 0 offset:{DBG_POL} sc1
    s_waitcnt vmcnt(0)
    v_readfirstlane_b32 s{sSA}, v184
    v_readfirstlane_b32 s{sSB}, v185
    s_nop 3
    s_and_b32 s{sSA}, s{sSA}, 2
    s_lshl_b32 s{sSA}, s{sSA}, 12
    s_and_b32 s{sSB}, s{sSB}, 2
    s_lshl_b32 s{sSB}, s{sSB}, 12
    v_add_u32 v{vM8}, 16384, v{vL16}
    """)


def mem_loads(a, s_memoff, flag="sc1", start=0):
    for kb in range(start, 10):
        r, o = l16(kb * 1024)
        if kb >= 8:
            r = f"v{vM8}"
        a(f"buffer_load_dwordx4 {vr(MEMF+4*kb,4)}, {r}, {WS}, s{s_memoff} offen offset:{o} {flag}")


DEFERRED = []
MODE2 = [False]


def flush_deferred(a):
    for f in DEFERRED:
        f()
    DEFERRED.clear()


def mem_proj(a, tiles, s_memoff, vmax, sleep=1, after_first=None):
    base = a.newlabel("mp")
    mem_loads(a, s_memoff, "" if L1FIRST else "sc1")
    for t in tiles:
        for r in range(4):
            a(f"v_mov_b32 v{ACC+4*t+r}, 0")

    def chk(kb):
        f = MEMF + 4 * kb
        return [f"s_waitcnt vmcnt({9-kb})",
                f"v_max3_u32 v{vmax}, v{f}, v{f+1}, v{f+2}",
                f"v_max_u32 v{vmax}, v{vmax}, v{f+3}\nv_cmp_eq_u32 vcc, -1, v{vmax}"]
    for x in chk(0):
        a(x)
    a(f"s_cbranch_vccnz {base}_r0")
    for kb in range(10):
        f = MEMF + 4 * kb
        a.label(f"{base}_c{kb}")
        if STAMP == 2 and kb in (0, 4, 9):
            a(f"s_memrealtime s[{ {0:86,4:88,9:90}[kb] }:{ {0:87,4:89,9:91}[kb] }]")
        if kb == 9 and after_first:
            after_first()
        nxt = chk(kb + 1) if kb < 9 else []
        for n, t in enumerate(tiles):
            a(f"v_smfmac_f32_16x16x64_bf16 {vr(ACC+4*t,4)}, {vr(f,4)}, {wreg(t,2*kb,8)}, v{vIDX}")
            if n < len(nxt):
                a(nxt[n])
        for x in nxt[len(tiles):]:
            a(x)
        if kb < 9:
            a(f"s_cbranch_vccnz {base}_r{kb+1}")

    def ool():
        for kb in range(10):
            a.label(f"{base}_r{kb}")
            a(f"""
            s_sub_u32 s{sBUD}, s{sBUD}, 1
            s_cmp_lt_i32 s{sBUD}, 0
            s_cbranch_scc1 {base}_c{kb}
            s_sleep {sleep}
            """)
            mem_loads(a, s_memoff, "sc1", kb)
            for x in chk(kb):
                a(x)
            a(f"s_cbranch_vccnz {base}_r{kb}")
            a(f"s_branch {base}_c{kb}")
    DEFERRED.append(ool)


LDS_M = 0x18000


def mem_setup(a):
    a(f"""
    s_lshl_b32 s40, s{sW}, 10
    v_add_u32 v176, s40, v{vL16}
    v_add_u32 v177, 4096, v176
    v_add_u32 v178, 16384, v176
    v_add_u32 v179, 0x{LDS_M:x}, v176
    v_add_u32 v175, 0x{LDS_M:x}, v{vL16}
    s_cmp_lt_u32 s{sW}, 2
    s_cbranch_scc1 {a.newlabel("ms")}_ok
    v_mov_b32 v178, 0x7ffffff0
    """)
    a.label(f"ms_{a.uid}_ok")


def mem_proj2(a, order, s_memoff, vmax, after_valid=None, fill=None, w3=None):
    top = a.newlabel("mq")
    G = 160
    a.label(top)
    for k in range(3):
        a(f"buffer_load_dwordx4 {vr(G+4*k,4)}, v{176+k}, {WS}, s{s_memoff} offen sc1")
    for grp in order:
        for t in grp:
            for r in range(4):
                a(f"v_mov_b32 v{ACC+4*t+r}, 0")
    a("s_waitcnt vmcnt(2)")
    a(f"ds_write_b128 v179, {vr(G,4)}")
    a(f"v_max3_u32 v{vmax}, v{G}, v{G+1}, v{G+2}")
    a("s_waitcnt vmcnt(1)")
    a(f"ds_write_b128 v179, {vr(G+4,4)} offset:4096")
    a(f"v_max3_u32 v{vmax}, v{vmax}, v{G+3}, v{G+4}")
    a(f"v_max3_u32 v{vmax}, v{vmax}, v{G+5}, v{G+6}")
    a("s_waitcnt vmcnt(0)")
    a(f"ds_write_b128 v179, {vr(G+8,4)} offset:8192")
    a(f"v_max3_u32 v{vmax}, v{vmax}, v{G+7}, v{G+8}")
    a(f"v_max3_u32 v{vmax}, v{vmax}, v{G+9}, v{G+10}")
    a(f"v_max_u32 v{vmax}, v{vmax}, v{G+11}")
    a(f"v_cmp_eq_u32 vcc, -1, v{vmax}")
    poll_fail(a, top, sleep=1)
    if after_valid:
        after_valid()
    if STAMP == 2:
        a("s_memrealtime s[86:87]")
    join = a.newlabel("mj")
    labs = [a.newlabel("mw") for _ in range(4)]
    a(f"""
    s_cmp_ge_u32 s{sW}, 2
    s_cbranch_scc1 {labs[2]}
    s_cmp_eq_u32 s{sW}, 1
    s_cbranch_scc1 {labs[1]}
    """)

    def sm(t, kb, src):
        a(f"v_smfmac_f32_16x16x64_bf16 {vr(ACC+4*t,4)}, {vr(src,4)}, {wreg(t,2*kb,8)}, v{vIDX}")
    for w in range(4):
        a.label(labs[w])
        if w == 2:
            a(f"""
            s_cmp_eq_u32 s{sW}, 3
            s_cbranch_scc1 {labs[3]}
            """)
        own = [w, w + 4] + ([8 + w] if w < 2 else [])
        oth = [kb for kb in range(10) if kb not in own]
        a("s_waitcnt lgkmcnt(0)")
        a("s_barrier")
        if STAMP == 2:
            a("s_memrealtime s[88:89]")
        for kb in oth:
            a(f"ds_read_b128 {vr(MEMF+4*kb,4)}, v175 offset:{kb*1024}")
        for grp in order:
            for k, kb in enumerate(own):
                for t in grp:
                    sm(t, kb, G + 4*k)
        cnt = 0
        for gi, grp in enumerate(order):
            F = list(fill.get(gi, [])) if fill else []
            n = 0
            tot = len(oth) * len(grp)
            for k, kb in enumerate(oth):
                if gi == 0:
                    a(f"s_waitcnt lgkmcnt({len(oth)-1-k})")
                for t in grp:
                    sm(t, kb, MEMF + 4*kb)
                    n += 1
                    cnt += 1
                    if w3 and w == 3 and cnt == w3[0]:
                        w3[1]()
                    if F and n == 2:
                        a.nop(6)
                    if n >= 2 and F:
                        a(F.pop(0))
            for x in F:
                a(x)
        if w < 3:
            a(f"s_branch {join}")
    a.label(join)
    if STAMP == 2:
        a("s_memrealtime s[90:91]")


def combine_list(t0, t1, d01, d23):
    A, B = ACC + 4 * t0, ACC + 4 * t1
    L = [f"v_permlane32_swap_b32 v{A+r}, v{B+r}" for r in range(4)]
    L += [f"v_pk_add_f32 v[{A+r}:{A+r+1}], v[{A+r}:{A+r+1}], v[{B+r}:{B+r+1}]" for r in (0, 2)]
    L += [f"v_cvt_pk_bf16_f32 v{d01}, v{A}, v{A+1}", f"v_cvt_pk_bf16_f32 v{d23}, v{A+2}, v{A+3}"]
    return L


def combine_pair(a, t0, t1, d01, d23):
    A, B = ACC + 4 * t0, ACC + 4 * t1
    for r in range(4):
        a(f"v_permlane32_swap_b32 v{A+r}, v{B+r}")
    if PKADD:
        for r in (0, 2):
            a(f"v_pk_add_f32 v[{A+r}:{A+r+1}], v[{A+r}:{A+r+1}], v[{B+r}:{B+r+1}]")
    else:
        for r in range(4):
            a(f"v_add_f32 v{A+r}, v{A+r}, v{B+r}")
    a(f"v_cvt_pk_bf16_f32 v{d01}, v{A}, v{A+1}")
    a(f"v_cvt_pk_bf16_f32 v{d23}, v{A+2}, v{A+3}")


def load_wqk(a, mats=(WQ, WK), depth=3, slot=32768, nbuf=4, pre=None, mid=None):
    a.comment("---- load Wq/Wk fragments")
    a(f"""
    v_lshrrev_b32 v10, 4, v{vLANE}          ; r = lane/16
    v_and_b32 v11, 15, v{vLANE}             ; chunk'
    v_and_b32 v12, 1, v10
    s_lshl_b32 s40, s{sW}, 1
    v_or_b32 v12, s40, v12                  ; f = (r&1)|(w<<1)
    v_lshlrev_b32 v12, 1, v12
    v_xor_b32 v11, v11, v12
    v_lshlrev_b32 v11, 4, v11
    s_lshl_b32 s40, s{sW}, 2
    v_add_u32 v12, s40, v10                 ; 4w+r
    v_lshl_add_u32 v11, v12, 13, v11
    s_lshl_b32 s41, s{sID}, 8
    s_lshl_b32 s42, s{sW}, 10
    v_bfe_u32 v12, v{vLANE}, 2, 2           ; r
    v_and_b32 v13, 3, v{vLANE}              ; c
    v_lshrrev_b32 v14, 1, v10               ; g>>1
    v_lshlrev_b32 v14, 4, v14               ; 16*(g>>1)
    v_and_b32 v15, 1, v10                   ; g&1
    v_lshl_add_u32 v14, v15, 2, v14         ; +4*(g&1)
    v_and_b32 v16, 1, v12
    v_add_u32 v14, v14, v16                 ; +(r&1)
    v_lshrrev_b32 v17, 1, v12               ; r>>1
    v_lshl_add_u32 v14, v17, 3, v14         ; +8*(r>>1)
    v_lshlrev_b32 v14, 8, v14
    v_lshl_add_u32 v14, v13, 3, v14         ; + c*8
    v_lshl_or_b32 v16, v15, 1, v16
    v_lshl_or_b32 v16, v17, 2, v16          ; f
    v_lshl_or_b32 v14, v16, 5, v14
    s_lshl_b32 s40, s{sW}, 6                ; (2w)<<5
    v_xor_b32 v18, s40, v14                 ; tile 2w
    v_xor_b32 v19, 32, v18                  ; tile 2w+1
    v_add_u32 v20, 0x10000, v18
    v_add_u32 v21, 0x10000, v19
    """)

    nm = len(mats)

    def dma(cn):
        buf = cn % nbuf
        for mat, sd in enumerate(mats):
            for q in range(4):
                a(f"""
                s_add_u32 s43, s42, {buf*slot + mat*16384 + q*4096}
                s_mov_b32 m0, s43
                s_add_u32 s44, s41, {(cn*64+16*q)*8192}
                buffer_load_dwordx4 v11, {sd}, s44 offen lds
                """)
    for cn in range(depth):
        dma(cn)
    if pre:
        pre()
    for cn in range(10):
        later = min(depth - 1, 9 - cn)
        extra = 20 if (pre and cn < depth) else 0
        a(f"s_waitcnt vmcnt({4*nm*later + extra})")
        a("s_barrier")
        if cn + depth < 10:
            dma(cn + depth)
        buf = cn % nbuf
        off = buf * slot
        for mat in range(nm):
            for tt in range(2):
                for ksl in range(2):
                    for j in range(2):
                        idx = ((mat*2+tt) * 20 + cn*2 + ksl) * 4 + 2*j
                        av = 18 + tt + (2 if off >= 65536 else 0)
                        a(f"ds_read_b64_tr_b16 {widx(idx,2)}, v{av} offset:{off % 65536 + mat*16384 + ksl*8192 + j*512}")
            a("s_waitcnt lgkmcnt(0)")
        if mid and cn == depth:
            mid()
    a("s_barrier")


def load_wv_wo(a):
    a.comment("---- Wo addressing")
    for q in range(5):
        a(f"""
        v_add_u32 v10, {64*q}, v{vLANE}
        v_mul_u32_u24 v11, 3277, v10
        v_lshrrev_b32 v11, 16, v11
        v_mul_u32_u24 v12, 20, v11
        v_sub_u32 v10, v10, v12
        v_mul_u32_u24 v11, 1280, v11
        v_lshl_add_u32 v{24+q}, v10, 4, v11
        """)
    a(f"""
    s_mul_i32 s46, s{sID}, 163840
    s_mul_i32 s40, s{sW}, 320
    s_add_u32 s46, s46, s40
    s_mul_i32 s47, s{sW}, 20480
    s_add_u32 s47, s47, {16384*(VDEPTH+1)}
    v_lshrrev_b32 v10, 4, v{vLANE}
    v_bfe_u32 v11, v{vLANE}, 2, 2
    v_lshl_add_u32 v10, v10, 2, v11
    v_mul_u32_u24 v10, 320, v10
    v_and_b32 v11, 3, v{vLANE}
    v_lshl_add_u32 v10, v11, 3, v10
    v_add_u32 v29, s47, v10
    """)

    def wo_dma():
        a("s_mov_b32 s45, s47")
        for blk_ in range(4):
            for q in range(5):
                a(f"""
                s_mov_b32 m0, s45
                s_add_u32 s45, s45, 1024
                buffer_load_dwordx4 v{24+q}, {WK}, s46 offen lds
                """)
            a(f"s_add_u32 s46, s46, {16*1280}")

    def wo_rd(half):
        for jt in range(10):
            for kl in range(2):
                for j in range(2):
                    idx = 160 + (jt*4 + half*2 + kl) * 4 + 2*j
                    a(f"ds_read_b64_tr_b16 {widx(idx,2)}, v29 offset:{(32*kl+16*j)*320 + jt*32}")
            if jt % 2 == 1:
                a("s_waitcnt lgkmcnt(0)")

    def mid():
        wo_rd(0)
        wo_dma()
    load_wqk(a, (WQ,), depth=VDEPTH, slot=16384, nbuf=VDEPTH+1, pre=wo_dma, mid=mid)
    wo_rd(1)
    a("s_barrier")


def load_wo(a, sd):
    a.comment("---- load Wo fragments")
    for q in range(5):
        a(f"""
        v_add_u32 v10, {64*q}, v{vLANE}
        v_mul_u32_u24 v11, 3277, v10
        v_lshrrev_b32 v11, 16, v11            ; row = q/20
        v_mul_u32_u24 v12, 20, v11
        v_sub_u32 v10, v10, v12               ; chunk
        v_mul_u32_u24 v11, 1280, v11
        v_lshl_add_u32 v{16+q}, v10, 4, v11
        """)
    a(f"""
    s_mul_i32 s41, s{sID}, 163840
    s_mul_i32 s40, s{sW}, 320
    s_add_u32 s41, s41, s40                 ; soffset
    s_mul_i32 s42, s{sW}, 20480
    v_lshrrev_b32 v10, 4, v{vLANE}          ; g
    v_bfe_u32 v11, v{vLANE}, 2, 2           ; r
    v_lshl_add_u32 v10, v10, 2, v11
    v_mul_u32_u24 v10, 320, v10
    v_and_b32 v11, 3, v{vLANE}
    v_lshl_add_u32 v10, v11, 3, v10
    v_add_u32 v21, s42, v10
    """)
    for half in range(2):
        a("s_mov_b32 s43, s42")
        for blk in range(4):
            for q in range(5):
                a(f"""
                s_mov_b32 m0, s43
                s_add_u32 s43, s43, 1024
                buffer_load_dwordx4 v{16+q}, {sd}, s41 offen lds
                """)
            a(f"s_add_u32 s41, s41, {16*1280}")
        a("s_waitcnt vmcnt(0)")
        for jt in range(10):
            for kl in range(2):
                for j in range(2):
                    idx = 160 + (jt*4 + half*2 + kl) * 4 + 2*j
                    a(f"ds_read_b64_tr_b16 {widx(idx,2)}, v21 offset:{(32*kl+16*j)*320 + jt*32}")
            if jt % 2 == 1:
                a("s_waitcnt lgkmcnt(0)")
    a("s_barrier")


def load_wvo(a):
    a.comment("---- load Wvo fragments (linear)")
    a(f"""
    s_lshl_b32 s40, s{sID}, 2
    s_add_u32 s40, s40, s{sW}
    s_mul_i32 s40, s40, 81920
    s_add_u32 s40, s40, 0x{WS_WVO:x}
    """)
    for f in range(80):
        a(f"buffer_load_dwordx4 {wreg(f//20, f%20)}, v{vL16}, {WS}, s40 offen offset:{(f%4)*1024}")
        if f % 4 == 3:
            a("s_add_u32 s40, s40, 4096")
        if f % 40 == 39:
            a("s_waitcnt vmcnt(20)" if f < 79 else "s_waitcnt vmcnt(0)")


vHG = 15


def dma_h_setup(a):
    a(f"""
    v_lshrrev_b32 v10, 3, v{vLANE}
    v_and_b32 v{vHG}, 7, v{vLANE}
    v_xor_b32 v{vHG}, v{vHG}, v10
    v_lshlrev_b32 v{vHG}, 4, v{vHG}
    v_mul_u32_u24 v10, 1280, v10
    v_add_u32 v{vHG}, v{vHG}, v10
    """)


def dma_h_init(a, s_hoff, s_buf):
    a(f"""
    s_mul_i32 s43, s{sW}, 10240
    s_add_u32 s44, s43, s{s_hoff}
    s_add_u32 s43, s43, s{s_buf}
    """)


def dma_h_one(a):
    a(f"""
    s_mov_b32 m0, s43
    s_add_u32 s43, s43, 1024
    buffer_load_dwordx4 v{vHG}, {WS}, s44 offen sc1 lds
    s_add_u32 s44, s44, 128
    """)


def dmal_init(a, s_hoff, s_buf):
    a(f"""
    s_mul_i32 s43, s{sW}, 10240
    s_add_u32 s44, s43, s{s_hoff}
    s_add_u32 s43, s43, s{s_buf}
    """)


def dmal_one(a):
    a(f"""
    s_mov_b32 m0, s43
    s_add_u32 s43, s43, 1024
    buffer_load_dwordx4 v{vL16}, {WS}, s44 offen sc1 lds
    s_add_u32 s44, s44, 1024
    """)


def dma_h(a, s_hoff, s_buf):
    dma_h_init(a, s_hoff, s_buf)
    for k in range(10):
        dma_h_one(a)


HF = 104
TACC = 72


def dense_proj(a, vH, transposed, hook=None, tiles=(0, 1, 2, 3)):
    def rd(ks):
        st = HF + (ks % 3) * 8
        for mt in range(2):
            a(f"ds_read_b128 {vr(st+4*mt,4)}, v{vH} offset:{mt*20480+ks*1024}")
    rd(0)
    rd(1)
    for ks in range(20):
        if ks + 2 < 20:
            rd(ks + 2)
            a("s_waitcnt lgkmcnt(4)")
        elif ks + 1 < 20:
            a("s_waitcnt lgkmcnt(2)")
        else:
            a("s_waitcnt lgkmcnt(0)")
        st = HF + (ks % 3) * 8
        for n, t in enumerate(tiles):
            for mt in range(2):
                acc = vr(TACC + (t*2+mt)*4, 4)
                c = "0" if ks == 0 else acc
                if transposed:
                    a(f"v_mfma_f32_16x16x32_bf16 {acc}, {wreg(t,ks)}, {vr(st+4*mt,4)}, {c}")
                else:
                    a(f"v_mfma_f32_16x16x32_bf16 {acc}, {vr(st+4*mt,4)}, {wreg(t,ks)}, {c}")
            if n == len(tiles) // 2 - 1 and hook:
                hook(ks)


def round_scale(a, xs, tmp, s_scale):
    def rnd():
        for k in range(0, len(xs), 2):
            x0 = xs[k]
            x1 = xs[k+1] if k + 1 < len(xs) else xs[k]
            a(f"v_cvt_pk_bf16_f32 v{tmp+k//2}, v{x0}, v{x1}")
        for k in range(0, len(xs), 2):
            a(f"v_lshlrev_b32 v{xs[k]}, 16, v{tmp+k//2}")
            if k + 1 < len(xs):
                a(f"v_and_b32 v{xs[k+1]}, 0xffff0000, v{tmp+k//2}")
    rnd()
    for x in xs:
        a(f"v_mul_f32 v{x}, s{s_scale}, v{x}")
    rnd()


def xlane(a, op, v, t, with8):
    if with8:
        a.nop(2)
        a(f"{op}_dpp v{v}, v{v}, v{v} row_ror:8 row_mask:0xf bank_mask:0xf")
    for sw in ("v_permlane16_swap_b32", "v_permlane32_swap_b32"):
        a(f"v_mov_b32 v{t}, v{v}")
        a.nop(2)
        a(f"{sw} v{v}, v{t}")
        a(f"{op} v{v}, v{v}, v{t}")


def softmax(a, xs, vm, vt, s_log2e, with8):
    a(f"v_max3_f32 v{vm}, v{xs[0]}, v{xs[1]}, v{xs[2]}")
    k = 3
    while k < len(xs):
        if k + 1 < len(xs):
            a(f"v_max3_f32 v{vm}, v{vm}, v{xs[k]}, v{xs[k+1]}")
            k += 2
        else:
            a(f"v_max_f32 v{vm}, v{vm}, v{xs[k]}")
            k += 1
    xlane(a, "v_max_f32", vm, vt, with8)
    for x in xs:
        a(f"v_sub_f32 v{x}, v{x}, v{vm}")
    for x in xs:
        a(f"v_mul_f32 v{x}, s{s_log2e}, v{x}")
    for x in xs:
        a(f"v_exp_f32 v{x}, v{x}")
    a(f"v_add_f32 v{vm}, v{xs[0]}, v{xs[1]}")
    for x in xs[2:]:
        a(f"v_add_f32 v{vm}, v{vm}, v{x}")
    xlane(a, "v_add_f32", vm, vt, with8)
    a(f"v_rcp_f32 v{vm}, v{vm}")
    a.nop(1)
    for x in xs:
        a(f"v_mul_f32 v{x}, v{x}, v{vm}")


def setup_qk_lds_addrs(a, vW, vR):
    a(f"""
    v_and_b32 v10, 15, v{vLANE}             ; n
    v_lshrrev_b32 v11, 4, v{vLANE}          ; g
    v_lshrrev_b32 v12, 1, v11
    v_lshl_add_u32 v10, v12, 4, v10         ; 16*(g>>1)+n
    s_lshl_b32 s40, s{sW}, 5
    v_add_u32 v10, s40, v10                 ; +32w
    v_lshlrev_b32 v10, 4, v10
    v_and_b32 v12, 1, v11
    v_lshl_add_u32 v10, v12, 3, v10
    v_add_u32 v{vW}, 0x{LDS_T:x}, v10
    v_bfe_u32 v12, v{vLANE}, 2, 2           ; r
    v_lshl_add_u32 v12, v11, 2, v12         ; 4g+r
    v_lshlrev_b32 v12, 4, v12
    v_and_b32 v13, 1, v{vLANE}
    v_lshl_add_u32 v12, v13, 3, v12
    v_add_u32 v{vR}, 0x{LDS_T:x}, v12
    """)


def setup_p_load_addrs(a, vA, vB, vM, wstride=8*640, hstride=10240):
    a(f"""
    v_bfe_u32 v10, v{vLANE}, 3, 1           ; rho
    v_and_b32 v11, 7, v{vLANE}              ; i
    v_lshrrev_b32 v12, 4, v{vLANE}          ; gA
    v_lshrrev_b32 v13, 1, v12               ; gA>>1
    v_and_b32 v14, 1, v12                   ; gA&1
    s_mul_i32 s40, s{sW}, {wstride}
    v_mul_u32_u24 v15, 640, v10
    v_add_u32 v15, s40, v15
    v_lshl_add_u32 v15, v13, 8, v15
    v_lshl_add_u32 v15, v11, 5, v15
    v_lshl_add_u32 v{vA}, v14, 4, v15
    v_lshl_add_u32 v15, v13, 2, v14
    v_mul_u32_u24 v15, 640, v15
    v_add_u32 v15, s40, v15
    v_lshl_add_u32 v15, v10, 6, v15
    v_lshl_add_u32 v15, v11, 3, v15
    v_add_u32 v{vB}, 512, v15
    s_mul_i32 s40, s{sW}, {8*hstride}
    v_mul_u32_u24 v15, {hstride}, v13
    v_add_u32 v15, s40, v15
    v_lshl_add_u32 v15, v14, 7, v15
    v_and_b32 v11, 15, v{vLANE}
    v_lshl_add_u32 v{vM}, v11, 3, v15
    """)


def p_loads(a, PF, vA, vB, s_off):
    for blk in range(2):
        for pi in range(2):
            a(f"buffer_load_dwordx4 {vr(PF+(blk*2+pi)*4,4)}, v{vA}, {WS}, s{s_off} offen offset:{(4*blk+pi)*640} sc1")
    for pi in range(2):
        a(f"buffer_load_dwordx2 {vr(PF+16+2*pi,2)}, v{vB}, {WS}, s{s_off} offen offset:{pi*640} sc1")


def p_combine(a, PF, BX, BM, CA, vmax):
    for blk in range(2):
        for pi in range(2):
            f = PF + (blk*2+pi)*4
            a(f"v_smfmac_f32_16x16x64_bf16 {vr(CA+4*pi,4)}, {vr(f,4)}, {vr(BX+8*blk,8)}, v{vIDX}")
            if vmax is not None:
                a(f"v_max3_u32 v{vmax}, v{vmax}, v{f}, v{f+1}")
                a(f"v_max3_u32 v{vmax}, v{vmax}, v{f+2}, v{f+3}")
    a.nop(2 if vmax is not None else 6)
    for pi in range(2):
        f = PF + 16 + 2*pi
        a(f"v_smfmac_f32_16x16x32_bf16 {vr(CA+4*pi,4)}, {vr(f,2)}, {vr(BM,4)}, v{vIDX}")
        if vmax is not None:
            a(f"v_max3_u32 v{vmax}, v{vmax}, v{f}, v{f+1}")


def setup_red_addrs(a, vWr, vRd):
    a(f"""
    v_and_b32 v10, 15, v{vLANE}             ; n
    v_lshrrev_b32 v11, 4, v{vLANE}          ; g
    v_and_b32 v12, 1, v11
    v_lshlrev_b32 v12, 10, v12              ; 4*(g&1)*256
    v_lshl_add_u32 v12, v10, 5, v12         ; + n*32
    v_lshrrev_b32 v13, 1, v11
    v_lshl_add_u32 v12, v13, 2, v12         ; + (g>>1)*4
    s_lshl_b32 s40, s{sW}, 3
    s_add_u32 s40, s40, 0x{LDS_R:x}
    v_add_u32 v12, s40, v12
    v_mov_b32 v13, 0x{LDS_R+0x2800:x}
    v_cmp_gt_u32 vcc, 8, v10
    s_nop 1
    v_cndmask_b32 v{vWr}, v13, v12, vcc
    v_lshlrev_b32 v12, 5, v{vLANE}
    v_add_u32 v{vRd}, 0x{LDS_R:x}, v12
    """)


def red_write(a, CA, vWr, off):
    for r in range(4):
        a(f"v_add_f32_dpp v{CA+r}, v{CA+4+r}, v{CA+r} row_ror:8 row_mask:0xf bank_mask:0xf")
    for r in range(4):
        a(f"ds_write_b32 v{vWr}, v{CA+r} offset:{off + r*256}")


LB = 140
L_SRC, L_DST, L_M, L_V, L_T, L_T2 = LB, LB+1, LB+2, LB+3, LB+4, LB+5
L_RAW, L_OUT, L_X, L_SC, L_SH = LB+8, LB+16, LB+24, LB+40, LB+56


def ln_wave_sum(a, v):
    for ctrl in ["quad_perm:[1,0,3,2]", "quad_perm:[2,3,0,1]", "row_half_mirror", "row_mirror"]:
        a.nop(2)
        a(f"v_add_f32_dpp v{v}, v{v}, v{v} {ctrl} row_mask:0xf bank_mask:0xf")
    a.nop(1)
    a(f"v_readlane_b32 s72, v{v}, 0")
    a(f"v_readlane_b32 s73, v{v}, 16")
    a(f"v_readlane_b32 s74, v{v}, 32")
    a.nop(2)
    a(f"v_mov_b32 v{v}, s72")
    a(f"v_add_f32 v{v}, s73, v{v}")
    a(f"v_add_f32 v{v}, s74, v{v}")


def bf16r(a, v):
    a(f"v_cvt_pk_bf16_f32 v{v}, v{v}, v{v}")
    a(f"v_and_b32 v{v}, 0xffff0000, v{v}")


def ln_setup(a, shift_idx, scale_idx, perm):
    a(f"""
    v_cmp_gt_u32 vcc, 40, v{vLANE}
    v_mov_b32 v{L_T}, 0x7ffffff0
    v_lshlrev_b32 v{L_DST}, 4, v{vLANE}
    """)
    if perm:
        a(f"""
        v_lshrrev_b32 v{L_SRC}, 1, v{vLANE}
        v_lshlrev_b32 v{L_SRC}, 5, v{L_SRC}
        v_and_b32 v{L_T2}, 1, v{vLANE}
        v_lshl_add_u32 v{L_SRC}, v{L_T2}, 3, v{L_SRC}
        """)
    else:
        a(f"v_mov_b32 v{L_SRC}, v{L_DST}")
    a(f"""
    v_lshlrev_b32 v{L_T2}, 1, v{L_SRC}
    v_cndmask_b32 v{L_SRC}, v{L_T}, v{L_SRC}, vcc
    v_cndmask_b32 v{L_T2}, v{L_T}, v{L_T2}, vcc
    v_cndmask_b32 v{L_DST}, v{L_T}, v{L_DST}, vcc
    s_mov_b64 s[76:77], vcc
    s_mov_b32 s72, {WS_MOD + scale_idx*2560}
    s_mov_b32 s73, {WS_MOD + shift_idx*2560}
    """)
    for dst, so in ((L_SC, 72), (L_SH, 73)):
        for h in range(2):
            if perm:
                a(f"buffer_load_dwordx2 {vr(dst+8*h,2)}, v{L_T2}, {WS}, s{so} offen offset:{h*1280}")
                a(f"buffer_load_dwordx2 {vr(dst+8*h+4,2)}, v{L_T2}, {WS}, s{so} offen offset:{h*1280+8}")
                a(f"buffer_load_dwordx2 {vr(dst+8*h+2,2)}, v{L_T2}, {WS}, s{so} offen offset:{h*1280+32}")
                a(f"buffer_load_dwordx2 {vr(dst+8*h+6,2)}, v{L_T2}, {WS}, s{so} offen offset:{h*1280+40}")
            else:
                a(f"buffer_load_dwordx4 {vr(dst+8*h,4)}, v{L_T2}, {WS}, s{so} offen offset:{h*1280} sc1")
                a(f"buffer_load_dwordx4 {vr(dst+8*h+4,4)}, v{L_T2}, {WS}, s{so} offen offset:{h*1280+16} sc1")
    a("s_waitcnt vmcnt(0)")
    for j in range(8):
        a(f"v_add_f32 v{L_SC+2*j}, 1.0, v{L_SC+2*j}")
        a(f"v_add_f32 v{L_SC+2*j+1}, 1.0, v{L_SC+2*j+1}")
        a(f"v_cvt_pk_bf16_f32 v{L_T}, v{L_SC+2*j}, v{L_SC+2*j+1}")
        a(f"v_lshlrev_b32 v{L_SC+2*j}, 16, v{L_T}")
        a(f"v_and_b32 v{L_SC+2*j+1}, 0xffff0000, v{L_T}")


def ln_load(a, srd_, s_off, fl, perm, raw=L_RAW, extra=0):
    if perm:
        for h in range(2):
            a(f"buffer_load_dwordx2 {vr(raw+4*h,2)}, v{L_SRC}, {srd_}, s{s_off} offen offset:{extra+h*640} {fl}")
            a(f"buffer_load_dwordx2 {vr(raw+4*h+2,2)}, v{L_SRC}, {srd_}, s{s_off} offen offset:{extra+h*640+16} {fl}")
        return 4
    for h in range(2):
        a(f"buffer_load_dwordx4 {vr(raw+4*h,4)}, v{L_SRC}, {srd_}, s{s_off} offen offset:{extra+h*640} {fl}")
    return 2


def ln_unpack(a, perm, raw=L_RAW):
    pos = [0, 2, 1, 3] if perm else [0, 1, 2, 3]
    for h in range(2):
        for j in range(4):
            d = 4*h + pos[j]
            a(f"v_lshlrev_b32 v{L_X+2*d}, 16, v{raw+4*h+j}")
            a(f"v_and_b32 v{L_X+2*d+1}, 0xffff0000, v{raw+4*h+j}")


def ln_compute_store(a, s_dst, extra=0, out=L_OUT):
    X = L_X
    a(f"v_add_f32 v{L_M}, v{X}, v{X+1}")
    a(f"v_add_f32 v{L_T}, v{X+2}, v{X+3}")
    for j in range(4, 16, 2):
        a(f"v_add_f32 v{L_M}, v{L_M}, v{X+j}")
        a(f"v_add_f32 v{L_T}, v{L_T}, v{X+j+1}")
    a(f"v_add_f32 v{L_M}, v{L_M}, v{L_T}")
    ln_wave_sum(a, L_M)
    a(f"v_mul_f32 v{L_M}, 0x3acccccd, v{L_M}")
    a(f"v_sub_f32 v{L_T}, v{X}, v{L_M}")
    a(f"v_mul_f32 v{L_V}, v{L_T}, v{L_T}")
    for j in range(1, 16):
        t = L_T if j % 2 == 0 else L_T2
        a(f"v_sub_f32 v{t}, v{X+j}, v{L_M}")
        a(f"v_fmac_f32 v{L_V}, v{t}, v{t}")
    a(f"v_cndmask_b32 v{L_V}, 0, v{L_V}, s[76:77]")
    ln_wave_sum(a, L_V)
    a(f"v_mul_f32 v{L_V}, 0x3acccccd, v{L_V}")
    bf16r(a, L_V)
    a(f"v_add_f32 v{L_V}, 0x3727c5ac, v{L_V}")
    bf16r(a, L_V)
    a(f"v_sqrt_f32 v{L_V}, v{L_V}")
    a.nop(1)
    bf16r(a, L_V)
    a(f"v_rcp_f32 v{L_V}, v{L_V}")
    bf16r(a, L_M)
    for j in range(8):
        x0, x1 = X + 2*j, X + 2*j + 1
        a(f"""
        v_sub_f32 v{x0}, v{x0}, v{L_M}
        v_sub_f32 v{x1}, v{x1}, v{L_M}
        v_cvt_pk_bf16_f32 v{L_T}, v{x0}, v{x1}
        v_lshlrev_b32 v{x0}, 16, v{L_T}
        v_and_b32 v{x1}, 0xffff0000, v{L_T}
        v_mul_f32 v{x0}, v{x0}, v{L_V}
        v_mul_f32 v{x1}, v{x1}, v{L_V}
        v_cvt_pk_bf16_f32 v{L_T}, v{x0}, v{x1}
        v_lshlrev_b32 v{x0}, 16, v{L_T}
        v_and_b32 v{x1}, 0xffff0000, v{L_T}
        v_mul_f32 v{x0}, v{x0}, v{L_SC+2*j}
        v_mul_f32 v{x1}, v{x1}, v{L_SC+2*j+1}
        v_cvt_pk_bf16_f32 v{L_T}, v{x0}, v{x1}
        v_lshlrev_b32 v{x0}, 16, v{L_T}
        v_and_b32 v{x1}, 0xffff0000, v{L_T}
        v_add_f32 v{x0}, v{x0}, v{L_SH+2*j}
        v_add_f32 v{x1}, v{x1}, v{L_SH+2*j+1}
        v_cvt_pk_bf16_f32 v{out+j}, v{x0}, v{x1}
        v_min_u32 v{out+j}, -2, v{out+j}
        """)
    a(f"buffer_store_dwordx4 {vr(out,4)}, v{L_DST}, {WS}, s{s_dst} offen offset:{extra} sc1")
    a(f"buffer_store_dwordx4 {vr(out+4,4)}, v{L_DST}, {WS}, s{s_dst} offen offset:{extra+640} sc1")


def wait_all(a, nl, vaddr, s_off, s_need, vt, ndw=1, sleep=4):
    top, done = a.newlabel("wa"), a.newlabel("wad")
    a.label(top)
    op = {1: "dword", 4: "dwordx4"}[ndw]
    a(f"""
    s_mov_b32 exec_lo, 0x{(1 << nl) - 1:x}
    s_mov_b32 exec_hi, 0
    buffer_load_{op} {vr(vt, ndw)}, v{vaddr}, {WS}, s{s_off} offen sc1
    s_waitcnt vmcnt(0)
    """)
    if ndw == 4:
        a(f"v_min3_u32 v{vt}, v{vt}, v{vt+1}, v{vt+2}")
        a(f"v_min_u32 v{vt}, v{vt}, v{vt+3}")
    a(f"""
    v_cmp_gt_u32 vcc, s{s_need}, v{vt}
    s_mov_b64 exec, -1
    s_cbranch_vccz {done}
    s_sub_u32 s{sBUD}, s{sBUD}, 1
    s_cmp_lt_i32 s{sBUD}, 0
    s_cbranch_scc1 {done}
    s_sleep {sleep}
    s_branch {top}
    """)
    a.label(done)


WS_TRACE = 0x0F000000


def stamp(a, slot):
    if not STAMP:
        return
    if STAMP == 2 and MODE2[0] and slot in (3, 4):
        slot = 6
    if STAMP == 2 and MODE2[0] and slot == 0:
        a("s_memtime s[80:81]")
        return
    a(f"s_memrealtime s[{80+2*slot}:{81+2*slot}]")


def dstamp(a, word, vt, cond=""):
    if not DST:
        return
    lab = a.newlabel("ds")
    a(f"""
    {cond.format(lab=lab)}
    s_cmp_lg_u32 s{sW}, 0
    s_cbranch_scc1 {lab}
    s_memrealtime s[80:81]
    s_waitcnt lgkmcnt(0)
    v_mov_b32 v{vt}, s80
    s_mov_b64 exec, 1
    buffer_store_dword v{vt}, off, {DBG}, 0 offset:{word*4}
    s_mov_b64 exec, -1
    {lab}:
    """)


def stamp_flush(a, n, vt):
    if not STAMP:
        return
    if STAMP == 2 and MODE2[0]:
        n = 7
    skip = a.newlabel("stf")
    a(f"""
    s_cmp_lg_u32 s{sW}, 0
    s_cbranch_scc1 {skip}
    s_waitcnt lgkmcnt(0)
    s_lshl_b32 s96, s{sSTEP}, 5
    s_add_u32 s96, s96, s97
    s_mov_b64 exec, 1
    """)
    for k in range(n):
        a(f"v_mov_b32 v{vt}, s{80+2*k}")
        a(f"buffer_store_dword v{vt}, off, {WS}, s96 offset:{4*k}")
        a.nop(2)
    a(f"v_mov_b32 v{vt}, s{sBUD}")
    a(f"buffer_store_dword v{vt}, off, {WS}, s96 offset:28")
    a("s_mov_b64 exec, -1")
    a.label(skip)


def gen_r(a):
    L = NAME + "_kernel"
    kernel_header(a, L)
    a(f"""
    s_cmp_ge_u32 s2, 256
    s_cbranch_scc1 r_end
    s_load_dwordx2 s[4:5], s[0:1], {KA_WS}
    s_load_dwordx2 s[6:7], s[0:1], {KA_DBG}
    s_load_dwordx4 s[32:35], s[0:1], {KA_WQ}
    s_load_dwordx2 s[36:37], s[0:1], {KA_X}
    v_lshrrev_b32 v1, 6, v0
    v_and_b32 v{vLANE}, 63, v0
    s_waitcnt lgkmcnt(0)
    """)
    srd(a, 8, 4, WS_SIZE)
    srd(a, 12, 6, 256)
    srd(a, 16, 32, D * H * E * 2)
    srd(a, 20, 34, D * H * E * 2)
    srd(a, 24, 36, S * D * 2)
    a(f"""
    v_readfirstlane_b32 s{sW}, v1
    v_lshlrev_b32 v{vL16}, 4, v{vLANE}
    v_add_u32 v{vL16b}, 4096, v{vL16}
    v_add_u32 v{vL16c}, 8192, v{vL16}
    v_mov_b32 v{vIDX}, 0x4444
    v_mov_b32 v10, 0xeeee
    v_and_b32 v11, 8, v{vLANE}
    v_cmp_ne_u32 vcc, 0, v11
    s_mov_b32 s{sBUD}, 200000
    v_mov_b32 v9, 0x{LDS_ROLE:x}
    v_cndmask_b32 v{vIDX}, v{vIDX}, v10, vcc
    s_cmp_lg_u32 s{sW}, 0
    s_cbranch_scc1 r_warm
    s_getreg_b32 s40, hwreg(HW_REG_XCC_ID)
    s_and_b32 s40, s40, 7
    s_mov_b64 exec, 1
    s_lshl_b32 s43, s40, 2
    s_lshr_b32 s43, 0x{XMAP:x}, s43
    s_and_b32 s43, s43, 7
    s_mov_b32 s48, 0
    """)
    a.label("r_try")
    a(f"""
    s_lshr_b32 s45, s43, 1
    s_lshl_b32 s45, s45, 2
    s_and_b32 s44, s43, 1
    s_lshl_b32 s44, s44, 7
    s_add_u32 s45, s45, s44
    v_mov_b32 v10, 1
    buffer_atomic_add v10, off, {DBG}, s45 sc0
    s_waitcnt vmcnt(0)
    v_readfirstlane_b32 s41, v10
    s_nop 3
    s_cmp_lt_u32 s41, 32
    s_cbranch_scc1 r_got
    s_add_u32 s48, s48, 1
    s_sub_u32 s43, s48, 1
    s_mov_b32 s42, 999
    s_cmp_ge_u32 s43, 8
    s_cbranch_scc1 r_role_done
    s_branch r_try
    """)
    a.label("r_got")
    a(f"""
    s_lshl_b32 s42, s43, 5
    s_add_u32 s42, s42, s41                 ; P: t, VM: 32+t
    s_cmp_lt_u32 s43, 2
    s_cbranch_scc1 r_role_done
    s_cmp_ge_u32 s43, 4
    s_cbranch_scc1 r_got4
    s_sub_u32 s43, s43, 2                   ; q = 0,1
    s_mul_i32 s44, s43, 10
    s_add_u32 s42, s41, s44
    s_add_u32 s42, s42, 239                 ; F2: 239 + 10q + t
    s_cmp_lt_u32 s41, 10
    s_cbranch_scc1 r_role_done
    s_mul_i32 s44, s43, 20
    s_add_u32 s42, s41, s44
    s_add_u32 s42, s42, 54                  ; U: 64 + 20q + (t-10)
    s_cmp_lt_u32 s41, 30
    s_cbranch_scc1 r_role_done
    s_lshl_b32 s44, s43, 1
    s_add_u32 s42, s41, s44
    s_add_u32 s42, s42, 174                 ; L: 204 + 2q + (t-30)
    s_branch r_role_done
    """)
    a.label("r_got4")
    a(f"""
    s_sub_u32 s43, s43, 4                   ; q = 0..3
    s_lshl_b32 s44, s43, 3
    s_add_u32 s42, s41, s44
    s_add_u32 s42, s42, 112                 ; T
    s_cmp_lt_u32 s41, 8
    s_cbranch_scc1 r_role_done
    s_add_u32 s42, s42, 24                  ; VO
    s_cmp_lt_u32 s41, 16
    s_cbranch_scc1 r_role_done
    s_add_u32 s42, s43, 208                 ; L: 204 + 4 + q
    s_cmp_eq_u32 s41, 23
    s_cbranch_scc1 r_role_done
    s_lshl_b32 s44, s43, 1
    s_add_u32 s42, s41, s44
    s_add_u32 s42, s42, 160                 ; A
    s_cmp_lt_u32 s41, 18
    s_cbranch_scc1 r_role_done
    s_mul_i32 s44, s43, 5
    s_add_u32 s42, s41, s44
    s_add_u32 s42, s42, 166                 ; C
    s_cmp_lt_u32 s41, 23
    s_cbranch_scc1 r_role_done
    s_mul_i32 s44, s43, 7
    s_add_u32 s42, s41, s44
    s_add_u32 s42, s42, 188                 ; F1: 212 + 7q + (t-24)
    s_cmp_eq_u32 s42, 239
    s_cselect_b32 s42, 264, s42
    s_add_u32 s44, s43, 260
    s_cmp_eq_u32 s41, 31
    s_cselect_b32 s42, s44, s42
    """)
    a.label("r_role_done")
    if SWAPB:
        a(f"""
        s_sub_u32 s44, s42, 239
        s_sub_u32 s45, s42, {SWAPB}
        s_add_u32 s46, s44, {SWAPB}
        s_add_u32 s47, s45, 239
        s_cmp_lt_u32 s44, 20
        s_cselect_b32 s42, s46, s42
        s_cmp_lt_u32 s45, 20
        s_cselect_b32 s42, s47, s42
        """)
    a(f"""
    v_mov_b32 v10, s42
    ds_write_b32 v9, v10
    s_mov_b64 exec, -1
    s_waitcnt lgkmcnt(0)
    """)
    a("s_branch r_role_wait")
    a.label("r_warm")
    if WARM:
        a(f"""
        s_getpc_b64 s[40:41]
        r_warm_pc:
        s_sub_u32 s40, s40, r_warm_pc-{L}
        s_subb_u32 s41, s41, 0
        s_lshr_b32 s42, s2, 3
        s_mul_i32 s42, s42, 3
        s_add_u32 s42, s42, s{sW}
        s_sub_u32 s42, s42, 1                   ; 0..95
        s_lshl_b32 s42, s42, 10
        v_add_u32 v12, s42, v{vL16}
        v_min_u32 v12, r_code_end-{L}-16, v12
        global_load_dwordx4 v[16:19], v12, s[40:41]
        s_waitcnt vmcnt(0)
        """)
    a.label("r_role_wait")
    a(f"""
    s_barrier
    ds_read_b32 v10, v9
    s_waitcnt lgkmcnt(0)
    v_readfirstlane_b32 s{sID}, v10
    s_mov_b32 s{sSTEP}, 0
    s_mov_b32 s50, 0x3db504f3          ; 128^-0.5
    s_mov_b32 s51, 0x3fb8aa3b          ; log2(e)
    s_mov_b32 s62, s50
    s_mov_b32 s63, s50
    s_mov_b32 s100, 0
    s_mul_i32 s97, s{sID}, {72*32}
    s_add_u32 s97, s97, 0x{WS_TRACE:x}
    s_barrier
    """)
    if STAMP:
        a(f"""
        s_memrealtime s[80:81]
        s_waitcnt lgkmcnt(0)
        v_mov_b32 v3, s80
        buffer_store_dword v3, off, {WS}, s97 offset:{71*32}
        """)
    a(f"""
    s_cmp_lt_u32 s{sID}, 32
    s_cbranch_scc1 role_p
    s_cmp_lt_u32 s{sID}, 64
    s_cbranch_scc1 role_vm
    s_cmp_lt_u32 s{sID}, 112
    s_cbranch_scc1 boot
    s_cmp_lt_u32 s{sID}, 144
    s_cbranch_scc1 role_t
    s_cmp_lt_u32 s{sID}, 176
    s_cbranch_scc1 role_vo
    s_cmp_ge_u32 s{sID}, 265
    s_cbranch_scc1 r_end
    s_branch boot
    boot_done:
    s_cmp_lt_u32 s{sID}, 112
    s_cbranch_scc1 role_u
    {"s_endpgm" if NOTOK else ""}
    s_cmp_lt_u32 s{sID}, 184
    s_cbranch_scc1 role_al
    s_cmp_lt_u32 s{sID}, 204
    s_cbranch_scc1 role_c
    s_cmp_lt_u32 s{sID}, 212
    s_cbranch_scc1 role_al
    s_cmp_lt_u32 s{sID}, 259
    s_cbranch_scc1 role_f
    s_sub_u32 s{sID}, s{sID}, 56            ; 260.. -> 204..
    s_cmp_lt_u32 s{sID}, 209
    s_cbranch_scc1 role_c
    s_endpgm
    """)

    KF, QF, KMF, SA = 72, 104, 120, 136
    X0 = 148
    vTW, vTR, vST, vSM = 8, 9, 12, 13
    sMEM, sPB, sKX, sFT, sSEEN, sNEED = 31, 32, 33, 34, 35, 36
    from gen_boot import dbg_wait_wg, DBG_MOD20
    a.label("role_p")
    MODE2[0] = True
    dstamp(a, 11, 3, f"s_cmp_lg_u32 s{sID}, 0\ns_cbranch_scc1 {{lab}}")
    if PDELAY:
        dbg_wait_wg(a, [(DBG_MOD20, 1)], 3, sleep=10)
    load_wqk(a, depth=PDEPTH)
    setup_qk_lds_addrs(a, vTW, vTR)
    a(f"""
    v_bfe_u32 v10, v{vLANE}, 3, 1           ; b
    v_and_b32 v11, 7, v{vLANE}              ; i
    v_lshrrev_b32 v14, 4, v{vLANE}          ; g
    v_lshlrev_b32 v{vST}, 8, v10
    v_lshl_add_u32 v{vST}, v11, 5, v{vST}
    v_lshl_add_u32 v{vST}, v14, 3, v{vST}
    v_lshlrev_b32 v{vSM}, 3, v11
    v_and_b32 v15, 1, v14
    v_lshl_add_u32 v{vSM}, v15, 2, v{vSM}
    v_lshrrev_b32 v15, 1, v14
    v_lshl_add_u32 v{vSM}, v15, 6, v{vSM}
    v_add_u32 v{vSM}, 512, v{vSM}
    v_mov_b32 v15, 0x7ffffff0
    v_cmp_ne_u32 vcc, 0, v10
    s_mov_b32 s52, 0xff00ff00
    s_mov_b32 s53, 0xff00ff00
    v_cndmask_b32 v{vSM}, v{vSM}, v15, vcc
    s_mov_b32 s54, 0
    s_mov_b32 s55, -1                       ; s[54:55]: lanes g>=2
    s_lshl_b32 s{sKX}, s{sID}, 13
    s_add_u32 s{sKX}, s{sKX}, 0x{WS_KX:x}
    s_lshl_b32 s{sFT}, s{sID}, 7
    s_add_u32 s{sFT}, s{sFT}, 0x{flag(FL_T):x}
    s_mov_b32 s{sSEEN}, 0
    s_mov_b32 s56, 0x{WS_FLAGS:x}
    ; KM store voff: g*128 + (l%8)*16, lanes with b=1 dropped
    v_lshlrev_b32 v189, 7, v14
    v_lshl_add_u32 v189, v11, 4, v189
    v_cndmask_b32 v189, v189, v15, vcc
    s_lshl_b32 s57, s{sID}, 11
    s_add_u32 s57, s57, 0x{WS_KM:x}
    s_lshl_b32 s58, s{sID}, 2
    s_add_u32 s58, s58, s{sW}
    s_lshl_b32 s60, s{sID}, 7
    s_add_u32 s60, s60, 0x{flag(FL_KM):x}
    v_cmp_gt_u32 vcc, 40, v{vLANE}
    v_mov_b32 v180, -1
    v_mov_b32 v181, -1
    v_mov_b32 v182, -1
    v_mov_b32 v183, -1
    v_cndmask_b32 v186, v15, v{vL16}, vcc
    """)
    get_pol(a, X0)
    mem_setup(a)
    a(f"""
    s_add_u32 s59, s{sSB}, 0x{WS_CRB + CRB_DOOR:x}
    s_add_u32 s64, s{sSB}, 0x{WS_CRB:x}
    s_lshr_b32 s40, s{sID}, 3
    s_lshl_b32 s40, s40, 14
    s_and_b32 s41, s{sID}, 7
    s_mul_i32 s41, s41, 640
    s_add_u32 s65, s40, s41
    s_add_u32 s65, s65, s64
    s_add_u32 s65, s65, {4*16384}           ; p base
    s_mov_b32 s61, 0x3e0293ee               ; 128^-0.5 * log2(e)
    """)
    a.label("p_loop")
    stamp(a, 0)
    a(f"""
    s_and_b32 s40, s{sSTEP}, 3
    s_lshl_b32 s40, s40, 17
    s_add_u32 s{sMEM}, s40, s64
    s_add_u32 s{sPB}, s40, s65
    s_xor_b32 s40, s40, 0x40000
    s_add_u32 s66, s40, s65
    s_cmp_lg_u32 s{sW}, 0
    s_cbranch_scc1 p_sync
    s_add_u32 s{sNEED}, s{sSTEP}, 1
    """)
    if P_HOLD:
        a(f"""
        s_cmp_eq_u32 s{sSTEP}, 0
        s_cbranch_scc1 p_nohold
        s_sleep {P_HOLD}
        p_nohold:
        """)
    wait_flag(a, sFT, sNEED, sSEEN, X0)
    for f in range(8):
        r, o = l16(f * 1024)
        a(f"buffer_load_dwordx4 {vr(KF+4*f,4)}, {r}, {WS}, s{sKX} offen offset:{o} sc1")
    a(f"""
    buffer_load_dword v190, off, {WS}, s{sFT} sc1
    s_cmp_eq_u32 s{sSTEP}, 0
    s_cbranch_scc1 p_sync
    s_sleep {P_SLEEP0-P_HOLD}
    """)
    a.label("p_sync")
    a("s_barrier")
    stamp(a, 1)
    def door():
        if not DOOR:
            return
        a(f"""
        s_cmp_lg_u32 s58, 3
        s_cbranch_scc1 p_nodoor
        s_mov_b64 exec, 1
        buffer_store_dword v188, off, {WS}, s59 sc1
        s_mov_b64 exec, -1
        p_nodoor:
        """)
    a(f"""
    s_add_u32 s40, s{sSTEP}, 1
    v_mov_b32 v188, s40
    """)
    qrd = [f"ds_read_b64_tr_b16 {vr(QF+4*k+2*tp,2)}, v{vTR} offset:{k*512+tp*256}" for k in range(4) for tp in range(2)]
    cl = combine_list(0, 1, X0+2, X0+3)
    fl = ["\n".join(cl[0:2]), "\n".join(cl[2:4]), "\n".join(cl[4:6]), "\n".join(cl[6:8]),
          f"ds_write_b64 v{vTW}, {vr(X0+2,2)}", "s_nop 0", "s_nop 0", "s_waitcnt lgkmcnt(0)\ns_barrier",
          "\n".join(qrd[0:2]), "\n".join(qrd[2:4]), "\n".join(qrd[4:6]), "\n".join(qrd[6:8])]
    mem_proj2(a, [[0, 1], [2, 3]], sMEM, X0, after_valid=None if DOORAT else door, fill={1: fl}, w3=(DOORAT, door) if DOORAT else None)
    stamp(a, 2)
    kc = combine_list(2, 3, X0+4, X0+5) + [f"ds_write_b64 v{vTW}, {vr(X0+4,2)} offset:2048"]
    n = 0
    for k in range(4):
        a(f"s_waitcnt lgkmcnt({[6, 4, 3, 1][k]})")
        for mt in range(2):
            acc = vr(SA+4*mt, 4)
            a(f"v_mfma_f32_16x16x32_bf16 {acc}, {vr(KF+(mt*4+k)*4,4)}, {vr(QF+4*k,4)}, {'0' if k==0 else acc}")
            n += 1
            if n == 2:
                a.nop(5)
            if n >= 2:
                for _ in range(3):
                    if kc:
                        a(kc.pop(0))
    assert not kc
    a(f"""
    s_waitcnt lgkmcnt(0)
    s_barrier
    s_cmp_lg_u32 s{sW}, 0
    s_cbranch_scc1 p_other
    """)
    stamp(a, 3)
    for k2 in range(4):
        for tp in range(2):
            a(f"ds_read_b64_tr_b16 {vr(KMF+4*k2+2*tp,2)}, v{vTR} offset:{2048+k2*512+tp*256}")
    T0 = X0 + 8
    M0, TT, S0, MR, XM, FF = X0+6, X0+7, X0+11, X0+5, X0+4, 172

    def mm(k):
        acc = vr(SA+8, 4)
        return f"""s_waitcnt lgkmcnt({6-2*k})
        v_mfma_f32_16x16x32_bf16 {acc}, {vr(KMF+4*k,4)}, {vr(QF+4*k,4)}, {'0' if k==0 else acc}"""
    if NOMIMIC:
        a(f"""
        v_cndmask_b32 v{X0}, v{SA}, v{SA+4}, s[52:53]
        v_cndmask_b32 v{X0+1}, v{SA+1}, v{SA+5}, s[52:53]
        v_cndmask_b32 v{X0+2}, v{SA+2}, v{SA+6}, s[52:53]
        v_cndmask_b32 v{X0+3}, v{SA+3}, v{SA+7}, s[52:53]
        v_max3_f32 v{M0}, v{X0}, v{X0+1}, v{X0+2}
        v_max_f32 v{M0}, v{M0}, v{X0+3}
        {mm(0)}
        v_max_f32_dpp v{M0}, v{M0}, v{M0} row_ror:8 row_mask:0xf bank_mask:0xf
        v_mov_b32 v{TT}, v{M0}
        {mm(1)}
        v_permlane32_swap_b32 v{M0}, v{TT}
        {mm(2)}
        v_max_f32 v{M0}, v{M0}, v{TT}
        {mm(3)}
        s_nop 7
        v_max3_f32 v{M0}, v{M0}, v{SA+8}, v{SA+9}
        v_max3_f32 v{M0}, v{M0}, v{SA+10}, v{SA+11}
        v_mov_b32 v{TT}, v{M0}
        v_cndmask_b32 v{XM}, v{SA+8}, v{SA+9}, s[52:53]
        v_cndmask_b32 v{FF}, v{SA+10}, v{SA+11}, s[52:53]
        v_permlane16_swap_b32 v{M0}, v{TT}
        v_cndmask_b32 v{XM}, v{XM}, v{FF}, s[54:55]
        v_max_f32 v{M0}, v{M0}, v{TT}
        v_mul_f32 v{M0}, s61, v{M0}
        v_fma_f32 v{XM}, v{XM}, s61, -v{M0}
        v_fma_f32 v{X0}, v{X0}, s61, -v{M0}
        v_exp_f32 v{XM}, v{XM}
        v_fma_f32 v{X0+1}, v{X0+1}, s61, -v{M0}
        v_exp_f32 v{X0}, v{X0}
        v_fma_f32 v{X0+2}, v{X0+2}, s61, -v{M0}
        v_exp_f32 v{X0+1}, v{X0+1}
        v_fma_f32 v{X0+3}, v{X0+3}, s61, -v{M0}
        v_exp_f32 v{X0+2}, v{X0+2}
        v_add_f32 v{S0}, v{X0}, v{XM}
        v_exp_f32 v{X0+3}, v{X0+3}
        v_add_f32 v{S0}, v{S0}, v{X0+1}
        v_add_f32 v{S0}, v{S0}, v{X0+2}
        v_add_f32 v{S0}, v{S0}, v{X0+3}
        v_mov_b32_dpp v{MR}, v{XM} row_ror:8 row_mask:0xf bank_mask:0xf
        s_nop 0
        v_add_f32_dpp v{S0}, v{S0}, v{S0} row_ror:8 row_mask:0xf bank_mask:0xf
        v_mov_b32 v{TT}, v{S0}
        s_nop 1
        v_permlane16_swap_b32 v{S0}, v{TT}
        v_add_f32 v{S0}, v{S0}, v{TT}
        v_mov_b32 v{TT}, v{S0}
        s_nop 1
        v_permlane32_swap_b32 v{S0}, v{TT}
        v_add_f32 v{S0}, v{S0}, v{TT}
        v_rcp_f32 v{S0}, v{S0}
        s_nop 0
        v_mul_f32 v{X0}, v{X0}, v{S0}
        v_mul_f32 v{X0+1}, v{X0+1}, v{S0}
        v_mul_f32 v{X0+2}, v{X0+2}, v{S0}
        v_mul_f32 v{X0+3}, v{X0+3}, v{S0}
        v_cvt_pk_bf16_f32 v{T0}, v{X0}, v{X0+1}
        v_cvt_pk_bf16_f32 v{T0+1}, v{X0+2}, v{X0+3}
        v_mul_f32 v{XM}, v{XM}, v{S0}
        v_min_u32 v{T0}, -2, v{T0}
        v_min_u32 v{T0+1}, -2, v{T0+1}
        v_mul_f32 v{MR}, v{MR}, v{S0}
        buffer_store_dwordx2 {vr(T0,2)}, v{vST}, {WS}, s{sPB} offen sc1
        v_cvt_pk_bf16_f32 v{T0+2}, v{XM}, v{MR}
        v_min_u32 v{T0+2}, -2, v{T0+2}
        buffer_store_dword v{T0+2}, v{vSM}, {WS}, s{sPB} offen sc1
        v_readfirstlane_b32 s{sSEEN}, v190
        s_branch p_next
        """)
    else:
        a(f"""
        v_cndmask_b32 v{X0}, v{SA}, v{SA+4}, s[52:53]
        v_cndmask_b32 v{X0+1}, v{SA+1}, v{SA+5}, s[52:53]
        v_cndmask_b32 v{X0+2}, v{SA+2}, v{SA+6}, s[52:53]
        v_cndmask_b32 v{X0+3}, v{SA+3}, v{SA+7}, s[52:53]
        v_cvt_pk_bf16_f32 v{T0}, v{X0}, v{X0+1}
        v_cvt_pk_bf16_f32 v{T0+1}, v{X0+2}, v{X0+3}
        v_lshlrev_b32 v{X0}, 16, v{T0}
        v_and_b32 v{X0+1}, 0xffff0000, v{T0}
        v_lshlrev_b32 v{X0+2}, 16, v{T0+1}
        v_and_b32 v{X0+3}, 0xffff0000, v{T0+1}
        v_pk_mul_f32 v[{X0}:{X0+1}], v[{X0}:{X0+1}], s[62:63]
        v_pk_mul_f32 v[{X0+2}:{X0+3}], v[{X0+2}:{X0+3}], s[62:63]
        v_cvt_pk_bf16_f32 v{T0}, v{X0}, v{X0+1}
        v_cvt_pk_bf16_f32 v{T0+1}, v{X0+2}, v{X0+3}
        {mm(0)}
        v_lshlrev_b32 v{X0}, 16, v{T0}
        v_and_b32 v{X0+1}, 0xffff0000, v{T0}
        {mm(1)}
        v_lshlrev_b32 v{X0+2}, 16, v{T0+1}
        v_and_b32 v{X0+3}, 0xffff0000, v{T0+1}
        {mm(2)}
        v_max3_f32 v{M0}, v{X0}, v{X0+1}, v{X0+2}
        v_max_f32 v{M0}, v{M0}, v{X0+3}
        {mm(3)}
        v_mul_f32 v{X0}, s51, v{X0}
        v_max_f32_dpp v{M0}, v{M0}, v{M0} row_ror:8 row_mask:0xf bank_mask:0xf
        v_mov_b32 v{TT}, v{M0}
        v_mul_f32 v{X0+1}, s51, v{X0+1}
        v_mul_f32 v{X0+2}, s51, v{X0+2}
        v_permlane16_swap_b32 v{M0}, v{TT}
        v_max_f32 v{M0}, v{M0}, v{TT}
        v_mov_b32 v{TT}, v{M0}
        v_mul_f32 v{X0+3}, s51, v{X0+3}
        v_max3_f32 v{MR}, v{SA+8}, v{SA+9}, v{SA+10}
        v_permlane32_swap_b32 v{M0}, v{TT}
        v_max_f32 v{MR}, v{MR}, v{SA+11}
        v_max_f32 v{M0}, v{M0}, v{TT}
        v_mov_b32 v{TT}, v{MR}
        v_cndmask_b32 v{XM}, v{SA+8}, v{SA+9}, s[52:53]
        v_cndmask_b32 v{FF}, v{SA+10}, v{SA+11}, s[52:53]
        v_permlane16_swap_b32 v{MR}, v{TT}
        v_cndmask_b32 v{XM}, v{XM}, v{FF}, s[54:55]
        v_max_f32 v{MR}, v{MR}, v{TT}
        v_mul_f32 v{M0}, s51, v{M0}
        v_cvt_pk_bf16_f32 v{T0+2}, v{XM}, v{MR}
        v_sub_f32 v{X0}, v{X0}, v{M0}
        v_lshlrev_b32 v{XM}, 16, v{T0+2}
        v_and_b32 v{MR}, 0xffff0000, v{T0+2}
        v_sub_f32 v{X0+1}, v{X0+1}, v{M0}
        v_pk_mul_f32 v[{XM}:{MR}], v[{XM}:{MR}], s[62:63]
        v_exp_f32 v{X0}, v{X0}
        v_cvt_pk_bf16_f32 v{T0+2}, v{XM}, v{MR}
        v_exp_f32 v{X0+1}, v{X0+1}
        v_and_b32 v{MR}, 0xffff0000, v{T0+2}
        v_lshlrev_b32 v{XM}, 16, v{T0+2}
        v_mul_f32 v{MR}, s51, v{MR}
        v_mul_f32 v{XM}, s51, v{XM}
        v_max_f32 v{MR}, v{MR}, v{M0}
        v_sub_f32 v{X0+2}, v{X0+2}, v{M0}
        v_sub_f32 v{XM}, v{XM}, v{MR}
        v_sub_f32 v{FF}, v{M0}, v{MR}
        v_exp_f32 v{XM}, v{XM}
        v_sub_f32 v{X0+3}, v{X0+3}, v{M0}
        v_exp_f32 v{FF}, v{FF}
        v_exp_f32 v{X0+2}, v{X0+2}
        v_add_f32 v{S0}, v{X0}, v{X0+1}
        v_exp_f32 v{X0+3}, v{X0+3}
        v_add_f32 v{S0}, v{S0}, v{X0+2}
        v_mov_b32_dpp v{MR}, v{XM} row_ror:8 row_mask:0xf bank_mask:0xf
        v_add_f32 v{S0}, v{S0}, v{X0+3}
        v_fma_f32 v{S0}, v{S0}, v{FF}, v{XM}
        v_mul_f32 v{X0}, v{X0}, v{FF}
        v_mul_f32 v{X0+1}, v{X0+1}, v{FF}
        v_add_f32_dpp v{S0}, v{S0}, v{S0} row_ror:8 row_mask:0xf bank_mask:0xf
        v_mov_b32 v{TT}, v{S0}
        v_mul_f32 v{X0+2}, v{X0+2}, v{FF}
        v_mul_f32 v{X0+3}, v{X0+3}, v{FF}
        v_permlane16_swap_b32 v{S0}, v{TT}
        v_add_f32 v{S0}, v{S0}, v{TT}
        v_mov_b32 v{TT}, v{S0}
        s_nop 1
        v_permlane32_swap_b32 v{S0}, v{TT}
        v_add_f32 v{S0}, v{S0}, v{TT}
        v_rcp_f32 v{S0}, v{S0}
        s_nop 0
        v_mul_f32 v{X0}, v{X0}, v{S0}
        v_mul_f32 v{X0+1}, v{X0+1}, v{S0}
        v_mul_f32 v{X0+2}, v{X0+2}, v{S0}
        v_mul_f32 v{X0+3}, v{X0+3}, v{S0}
        v_cvt_pk_bf16_f32 v{T0}, v{X0}, v{X0+1}
        v_cvt_pk_bf16_f32 v{T0+1}, v{X0+2}, v{X0+3}
        v_mul_f32 v{XM}, v{XM}, v{S0}
        v_min_u32 v{T0}, -2, v{T0}
        v_min_u32 v{T0+1}, -2, v{T0+1}
        v_mul_f32 v{MR}, v{MR}, v{S0}
        buffer_store_dwordx2 {vr(T0,2)}, v{vST}, {WS}, s{sPB} offen sc1
        v_cvt_pk_bf16_f32 v{T0+2}, v{XM}, v{MR}
        v_min_u32 v{T0+2}, -2, v{T0+2}
        buffer_store_dword v{T0+2}, v{vSM}, {WS}, s{sPB} offen sc1
        v_readfirstlane_b32 s{sSEEN}, v190
        s_branch p_next
        """)
    a.label("p_other")
    a(f"""
    s_cmp_lg_u32 s{sW}, 1
    s_cbranch_scc1 p_w23
    """)
    for k in range(4):
        for tp in range(2):
            a(f"ds_read_b64_tr_b16 {vr(KMF+4*k+2*tp,2)}, v{vTR} offset:{2048+k*512+tp*256}")
    a("s_waitcnt lgkmcnt(0)")
    for r in range(16):
        a(f"v_min_u32 v{KMF+r}, -2, v{KMF+r}")
    for k in range(4):
        a(f"buffer_store_dwordx4 {vr(KMF+4*k,4)}, v189, {WS}, s57 offen offset:{k*512} sc1")
    a(f"""
    s_waitcnt vmcnt(0)
    s_mov_b64 exec, 1
    buffer_store_dword v188, off, {WS}, s60 sc1
    s_mov_b64 exec, -1
    s_branch p_next
    """)
    a.label("p_w23")
    a(f"""
    s_cmp_lg_u32 s{sW}, 2
    s_cbranch_scc1 p_next
    buffer_store_dwordx4 v[180:183], v186, {WS}, s66 offen sc1
    s_cmp_lg_u32 s{sID}, 0
    s_cbranch_scc1 p_next
    s_add_u32 s40, s{sSTEP}, 1
    v_mov_b32 v{X0}, s40
    s_mov_b64 exec, 1
    buffer_store_dword v{X0}, off, {WS}, s56 sc1
    s_mov_b64 exec, -1
    """)
    a.label("p_next")
    dstamp(a, 12, 191, f"s_cmp_lg_u32 s{sID}, 0\ns_cbranch_scc1 {{lab}}\ns_cmp_lg_u32 s{sSTEP}, 1\ns_cbranch_scc1 {{lab}}")
    dstamp(a, 13, 191, f"s_cmp_lg_u32 s{sID}, 0\ns_cbranch_scc1 {{lab}}\ns_cmp_lg_u32 s{sSTEP}, 63\ns_cbranch_scc1 {{lab}}")
    dstamp(a, 15, 191, f"s_cmp_lg_u32 s{sID}, 0\ns_cbranch_scc1 {{lab}}\ns_cmp_lg_u32 s{sSTEP}, 11\ns_cbranch_scc1 {{lab}}")
    stamp(a, 4)
    stamp_flush(a, 5, 191)
    a(f"""
    s_add_u32 s{sKX}, s{sKX}, {32*8192}
    s_add_u32 s57, s57, {32*2048}
    s_add_u32 s{sSTEP}, s{sSTEP}, 1
    s_cmp_lt_u32 s{sSTEP}, 64
    s_cbranch_scc1 p_loop
    s_endpgm
    """)
    flush_deferred(a)

    AF, AC3, PKM = 72, 80, 120
    a.label("role_vm")
    a(f"""
    s_sub_u32 s{sID}, s{sID}, 32
    s_load_dwordx4 s[64:67], s[0:1], {KA_WV}
    s_waitcnt lgkmcnt(0)
    """)
    srd(a, 16, 64, D * H * E * 2)
    srd(a, 20, 66, D * H * E * 2)
    if PDELAY:
        dbg_wait_wg(a, [(DBG_MOD20, 1)], 3, sleep=10)
    load_wv_wo(a)
    setup_qk_lds_addrs(a, vTW, vTR)
    a(f"""
    ; sparse-A transposing read: e0 = 32(gA/2) + 16(r/2) + 8(gA%2) + 2(c/2) + (r%2)
    v_lshrrev_b32 v10, 5, v{vLANE}
    v_lshlrev_b32 v10, 5, v10
    v_bfe_u32 v11, v{vLANE}, 3, 1
    v_lshl_add_u32 v10, v11, 4, v10
    v_bfe_u32 v11, v{vLANE}, 4, 1
    v_lshl_add_u32 v10, v11, 3, v10
    v_bfe_u32 v11, v{vLANE}, 1, 1
    v_lshl_add_u32 v10, v11, 1, v10
    v_bfe_u32 v11, v{vLANE}, 2, 1
    v_add_u32 v10, v10, v11
    v_lshlrev_b32 v10, 4, v10
    v_and_b32 v11, 1, v{vLANE}
    v_lshl_add_u32 v10, v11, 3, v10
    v_add_u32 v{vTR}, 0x{LDS_T:x}, v10
    v_lshlrev_b32 v12, 3, v{vLANE}
    v_and_b32 v13, 31, v{vLANE}
    v_lshlrev_b32 v13, 3, v13
    v_lshrrev_b32 v10, 5, v{vLANE}
    v_lshl_add_u32 v13, v10, 14, v13
    v_mov_b32 v132, -1
    v_mov_b32 v133, -1
    v_mov_b32 v134, 0
    s_mul_i32 s57, s{sID}, 10240
    s_mul_i32 s40, s{sW}, 2560
    s_add_u32 s57, s57, s40
    s_add_u32 s57, s57, 0x{WS_UMC:x}
    s_lshl_b32 s61, s{sID}, 7
    s_lshl_b32 s40, s{sW}, 2
    s_add_u32 s61, s61, s40
    s_add_u32 s61, s61, 0x{flag(FL_UF):x}
    """)
    get_pol(a, 135)
    mem_setup(a)
    a(f"""
    s_add_u32 s64, s{sSB}, 0x{WS_CRB + 32768:x}
    s_mul_i32 s65, s{sW}, {10*16384}
    s_lshl_b32 s40, s{sID}, 8
    s_add_u32 s65, s65, s40
    s_add_u32 s65, s65, s{sSA}
    s_add_u32 s65, s65, 0x{WS_CRA:x}
    s_mov_b32 s66, 0
    s_mov_b32 s67, {2*CRA_SLOT}
    """)
    a.label("vm_loop")
    stamp(a, 0)
    for r in range(40):
        a(f"v_mov_b32 v{AC3+r}, 0")
    a(f"""
    s_and_b32 s40, s{sSTEP}, 3
    s_lshl_b32 s40, s40, 17
    s_add_u32 s{sMEM}, s40, s64
    s_add_u32 s58, s65, s66
    s_cmp_eq_u32 s{sSTEP}, 0
    s_cbranch_scc1 vm_sync
    s_sleep {V_SLEEP}
    vm_sync:
    s_barrier
    """)
    stamp(a, 1)
    def vm_flag():
        if V_LAZY:
            a(f"""
            s_mov_b64 exec, 1
            buffer_store_dword v134, off, {WS}, s61 sc1
            s_mov_b64 exec, -1
            """)
    mem_proj2(a, [[0, 1]], sMEM, 135, after_valid=vm_flag)
    stamp(a, 2)
    a.nop(8)
    combine_pair(a, 0, 1, 136, 137)
    a(f"""
    ds_write_b64 v{vTW}, v[136:137]
    s_waitcnt lgkmcnt(0)
    s_barrier
    """)
    for kb in range(2):
        for n in range(2):
            a(f"ds_read_b64_tr_b16 {vr(AF+4*kb+2*n,2)}, v{vTR} offset:{(64*kb+4*n)*16}")
    stamp(a, 3)

    def vm_pack(p):
        A, B = AC3 + 8*p, AC3 + 8*p + 4
        L = [f"v_permlane32_swap_b32 v{A+r}, v{B+r}" for r in range(4)]
        if PKADD:
            L += [f"v_pk_add_f32 v[{A+r}:{A+r+1}], v[{A+r}:{A+r+1}], v[{B+r}:{B+r+1}]" for r in (0, 2)]
        else:
            L += [f"v_add_f32 v{A+r}, v{A+r}, v{B+r}" for r in range(4)]
        L += [f"v_cvt_pk_bf16_f32 v{PKM+2*p}, v{A}, v{A+1}", f"v_cvt_pk_bf16_f32 v{PKM+2*p+1}, v{A+2}, v{A+3}",
              f"buffer_store_dwordx2 {vr(PKM+2*p,2)}, v13, {WS}, s{68+p} offen sc1"]
        return L
    for p in range(5):
        a(f"s_add_u32 s{68+p}, s58, {p*32768}")
    a("s_waitcnt lgkmcnt(0)")
    pend = []
    slot = 0
    last_mf = {}
    for p in range(5):
        for kb in range(2):
            for jj in range(2):
                jt = 2*p + jj
                a(f"v_smfmac_f32_16x16x64_bf16 {vr(AC3+4*jt,4)}, {vr(AF+4*kb,4)}, {widx(160+(jt*4+2*kb)*4,8)}, v{vIDX}")
                slot += 1
                rdy = slot + 8
                n = 0
                if pend and slot < pend[0][0]:
                    k = min(2, pend[0][0] - slot)
                    a.nop(k)
                    slot += k
                    n = 2
                while pend and pend[0][0] <= slot and n < VM_FILL:
                    a(pend.pop(0)[1])
                    slot += 1
                    n += 1
        for x in vm_pack(p):
            pend.append((rdy, x))
    while pend:
        if pend[0][0] > slot:
            a.nop(pend[0][0] - slot)
            slot = pend[0][0]
        a(pend.pop(0)[1])
        slot += 1
    stamp(a, 4)
    if V_HOLD:
        a(f"""
        s_cmp_eq_u32 s{sSTEP}, 63
        s_cbranch_scc1 vm_nohold
        s_sleep {V_HOLD}
        vm_nohold:
        """)
    for p in range(5):
        a(f"buffer_store_dwordx2 {vr(PKM+2*p,2)}, v12, {WS}, s57 offen offset:{p*512} sc1")
    a("s_add_u32 s40, s65, s67")
    for p in range(5):
        a(f"buffer_store_dwordx2 v[132:133], v13, {WS}, s40 offen sc1")
        a("s_add_u32 s40, s40, 32768")
    a(f"""
    s_add_u32 s57, s57, {UM_STEP}
    s_mov_b32 s67, s66
    s_add_u32 s66, s66, {CRA_SLOT}
    s_cmp_ge_u32 s66, {3*CRA_SLOT}
    s_cselect_b32 s66, 0, s66
    s_add_u32 s40, s{sSTEP}, 1
    v_mov_b32 v134, s40
    """)
    if not V_LAZY:
        a(f"""
        s_waitcnt vmcnt(5)
        s_mov_b64 exec, 1
        buffer_store_dword v134, off, {WS}, s61 sc1
        s_mov_b64 exec, -1
        """)
    stamp_flush(a, 5, 191)
    a(f"""
    s_add_u32 s{sSTEP}, s{sSTEP}, 1
    s_cmp_lt_u32 s{sSTEP}, 64
    s_cbranch_scc1 vm_loop
    s_waitcnt vmcnt(0)
    s_mov_b64 exec, 1
    buffer_store_dword v134, off, {WS}, s61 sc1
    s_endpgm
    """)
    flush_deferred(a)

    TX, BX, PF, BM, CA = 16, 48, 80, 104, 112
    vPA, vPB, vWr, vRd, vUM = 8, 9, 12, 13, 140
    sUX = 33
    a.label("role_u")
    MODE2[0] = False
    a(f"s_sub_u32 s{sID}, s{sID}, 64")
    setup_p_load_addrs(a, vPA, vPB, vUM, 16384, 256)
    a(f"""
    s_lshl_b32 s40, s{sW}, 9
    v_lshlrev_b32 v{vWr}, 3, v{vLANE}
    v_add_u32 v{vWr}, s40, v{vWr}
    ; final lane l: c8 = l/32, i = (l/4)%8, cp = l%4 ; src lane' = (r&1)*32 + (i/4)*16 + 8c8 + 2cp ; comp = r>>1
    v_bfe_u32 v10, v{vLANE}, 2, 1           ; r&1
    v_lshlrev_b32 v10, 5, v10
    v_bfe_u32 v11, v{vLANE}, 4, 1           ; i/4
    v_lshl_add_u32 v10, v11, 4, v10
    v_lshrrev_b32 v11, 5, v{vLANE}
    v_lshl_add_u32 v10, v11, 3, v10
    v_and_b32 v11, 3, v{vLANE}
    v_lshl_add_u32 v10, v11, 1, v10
    v_lshlrev_b32 v10, 3, v10
    v_bfe_u32 v11, v{vLANE}, 3, 1           ; r>>1
    v_lshl_add_u32 v{vRd}, v11, 2, v10
    v_add_u32 v14, 1024, v{vRd}
    v_lshlrev_b32 v15, 2, v{vLANE}
    v_lshlrev_b32 v133, 7, v{vLANE}
    v_mov_b32 v123, 0
    s_mul_i32 s{sUX}, s{sW}, {8*40960}
    s_lshl_b32 s40, s{sID}, 10
    s_add_u32 s{sUX}, s{sUX}, s40
    s_add_u32 s{sUX}, s{sUX}, 0x{WS_UX:x}
    s_lshl_b32 s{sFT}, s{sW}, 10
    s_add_u32 s{sFT}, s{sFT}, 0x{flag(FL_VO):x}
    v_mov_b32 v134, -1
    """)
    get_pol(a, 135)
    a(f"""
    s_add_u32 s60, s{sSB}, 0x{WS_CRB + CRB_DOOR:x}
    s_add_u32 s64, s{sSB}, 0x{WS_CRB + 4*16384:x}   ; p base
    s_lshl_b32 s65, s{sID}, 8
    s_cmp_ge_u32 s{sID}, 32
    s_cselect_b32 s40, 8192, 0
    s_add_u32 s65, s65, s40
    s_add_u32 s65, s65, s{sSB}
    s_add_u32 s65, s65, 0x{WS_CRB:x}
    s_lshl_b32 s57, s{sID}, 14
    s_add_u32 s57, s57, s{sSA}
    s_add_u32 s57, s57, 0x{WS_CRA:x}
    s_mov_b32 s66, 0
    """)
    a.label("u_loop")
    stamp(a, 0)
    a(f"""
    s_and_b32 s40, s{sSTEP}, 3
    s_lshl_b32 s40, s40, 17
    s_add_u32 s{sPB}, s40, s64
    s_xor_b32 s41, s40, 0x40000
    s_add_u32 s41, s41, s65
    s_add_u32 s40, s{sSTEP}, 1
    s_and_b32 s40, s40, 3
    s_lshl_b32 s40, s40, 17
    s_add_u32 s{sMEM}, s40, s65
    s_cmp_lg_u32 s{sW}, 1
    s_cbranch_scc1 u_noarm
    buffer_store_dword v134, v15, {WS}, s41 offen sc1
    s_add_u32 s41, s41, 32768
    buffer_store_dword v134, v15, {WS}, s41 offen sc1
    u_noarm:
    """)
    a(f"""
    s_add_u32 s{sNEED}, s{sSTEP}, 1
    s_mov_b64 exec, 255
    v_cmp_gt_u32 vcc, s{sNEED}, v123
    s_mov_b64 exec, -1
    s_cbranch_vccz u_vok
    """)
    wait_all(a, 8, 133, sFT, sNEED, 123)
    a.label("u_vok")
    if U_HOLD:
        a(f"""
        s_cmp_eq_u32 s{sW}, 0
        s_cbranch_scc1 u_nohold
        s_cmp_eq_u32 s{sSTEP}, 0
        s_cbranch_scc1 u_nohold
        s_sleep {U_HOLD}
        u_nohold:
        """)
    a(f"s_mov_b32 s40, s{sUX}")
    for hh in range(8):
        a(f"buffer_load_dwordx4 {vr(TX+4*hh,4)}, v{vL16}, {WS}, s40 offen sc1")
        a(f"s_add_u32 s40, s40, 40960")
    a(f"""
    s_mov_b64 exec, 255
    buffer_load_dword v123, v133, {WS}, s{sFT} offen sc1
    s_mov_b64 exec, -1
    s_add_u32 s58, s57, s66
    s_add_u32 s66, s66, {CRA_SLOT}
    s_cmp_ge_u32 s66, {3*CRA_SLOT}
    s_cselect_b32 s66, 0, s66
    s_waitcnt vmcnt(0)
    """)
    for hh in range(8):
        for d in range(4):
            a(f"v_mov_b32 v{BX + 8*(hh//2) + 2*d + hh%2}, v{TX+4*hh+d}")
    stamp(a, 1)
    a(f"""
    s_cmp_lg_u32 s{sW}, 0
    s_cbranch_scc1 u_dsync
    """)
    for k in range(3):
        a(f"buffer_load_dword v{124+k}, off, {WS}, s60 sc1")
        a(f"s_sleep 1")
    a.label("u_dspin")
    for k in range(4):
        a(f"""
        buffer_load_dword v{124+(k+3)%4}, off, {WS}, s60 sc1
        s_waitcnt vmcnt(3)
        v_cmp_le_u32 vcc, s{sNEED}, v{124+k}
        s_cbranch_vccnz u_ddone
        s_nop 7
        """)
    a(f"""
    s_sub_u32 s{sBUD}, s{sBUD}, 1
    s_cmp_ge_i32 s{sBUD}, 0
    s_cbranch_scc1 u_dspin
    """)
    a.label("u_ddone")
    stamp(a, 2)
    a(f"s_sleep {U_SLEEPD}")
    a.label("u_dsync")
    a("s_barrier")
    stamp(a, 3)
    def u_mloads():
        for k in range(2):
            a(f"buffer_load_dwordx2 {vr(PF+16+2*k,2)}, v{vPB}, {WS}, s{sPB} offen offset:{k*1280} sc1")
        for j in range(4):
            a(f"buffer_load_dwordx2 {vr(BM+2*j,2)}, v{vUM}, {WS}, s58 offen offset:{j*512} sc1")
    a.label("u_ppoll")
    for q in range(4):
        a(f"buffer_load_dwordx4 {vr(PF+4*q,4)}, v{vPA}, {WS}, s{sPB} offen offset:{q*1280} sc1")
    u_mloads()
    for r in range(4):
        a(f"v_mov_b32 v{CA+r}, 0")
    a("v_mov_b32 v122, 0")
    for q in range(4):
        f = PF + 4*q
        a(f"s_waitcnt vmcnt({9-q})")
        a(f"v_smfmac_f32_16x16x64_bf16 {vr(CA,4)}, {vr(f,4)}, {vr(BX+8*q,8)}, v{vIDX}")
        a(f"v_max3_u32 v122, v122, v{f}, v{f+1}")
        a(f"v_max3_u32 v122, v122, v{f+2}, v{f+3}")
    a("v_cmp_eq_u32 vcc, -1, v122")
    poll_fail(a, "u_ppoll", sleep=1)
    a.label("u_mchk")
    a(f"""
    s_waitcnt vmcnt(4)
    v_swap_b32 v{PF+17}, v{PF+18}
    v_max3_u32 v122, v{PF+16}, v{PF+17}, v{PF+18}
    v_max_u32 v122, v122, v{PF+19}
    s_waitcnt vmcnt(2)
    v_max3_u32 v122, v122, v{BM}, v{BM+1}
    v_max3_u32 v122, v122, v{BM+2}, v{BM+3}
    s_waitcnt vmcnt(0)
    v_max3_u32 v122, v122, v{BM+4}, v{BM+5}
    v_max3_u32 v122, v122, v{BM+6}, v{BM+7}
    v_cmp_eq_u32 vcc, -1, v122
    s_cbranch_vccnz u_mretry
    u_mok:
    v_smfmac_f32_16x16x64_bf16 {vr(CA,4)}, {vr(PF+16,4)}, {vr(BM,8)}, v{vIDX}
    """)

    def u_ool():
        a.label("u_mretry")
        a(f"""
        s_sub_u32 s{sBUD}, s{sBUD}, 1
        s_cmp_lt_i32 s{sBUD}, 0
        s_cbranch_scc1 u_mok
        """)
        u_mloads()
        a("s_branch u_mchk")
    DEFERRED.append(u_ool)
    a.nop(2)
    stamp(a, 4)
    a.nop(6)
    a(f"""
    v_permlane32_swap_b32 v{CA}, v{CA+1}
    v_permlane32_swap_b32 v{CA+2}, v{CA+3}
    v_add_f32 v{CA}, v{CA}, v{CA+1}
    v_add_f32 v{CA+1}, v{CA+2}, v{CA+3}
    ds_write_b64 v{vWr}, {vr(CA,2)}
    s_waitcnt lgkmcnt(0)
    s_barrier
    s_cmp_lg_u32 s{sW}, 0
    s_cbranch_scc1 u_next
    ds_read2_b32 v[124:125], v{vRd} offset0:0 offset1:2
    ds_read2_b32 v[126:127], v{vRd} offset0:128 offset1:130
    ds_read2_b32 v[128:129], v14 offset0:0 offset1:2
    ds_read2_b32 v[130:131], v14 offset0:128 offset1:130
    s_add_u32 s40, s{sMEM}, 32768
    s_waitcnt lgkmcnt(2)
    v_add_f32 v124, v124, v126
    v_add_f32 v125, v125, v127
    s_waitcnt lgkmcnt(0)
    v_add_f32 v128, v128, v130
    v_add_f32 v129, v129, v131
    v_add_f32 v124, v124, v128
    v_add_f32 v125, v125, v129
    v_cvt_pk_bf16_f32 v124, v124, v125
    v_min_u32 v124, -2, v124
    buffer_store_dword v124, v15, {WS}, {"s40" if VMFIRST else "s"+str(sMEM)} offen sc1
    buffer_store_dword v124, v15, {WS}, {"s"+str(sMEM) if VMFIRST else "s40"} offen sc1
    """)
    if TICK:
        a(f"""
        s_cmp_lg_u32 s{sID}, 0
        s_cbranch_scc1 u_next
        v_mov_b32 v125, s{sNEED}
        s_mov_b64 exec, 1
        buffer_store_dword v125, off, {WS}, s60 offset:256 sc1
        s_mov_b64 exec, -1
        """)
    a.label("u_next")
    stamp(a, 5)
    stamp_flush(a, 6, 191)
    a(f"""
    s_add_u32 s{sUX}, s{sUX}, {UX_STEP}
    s_add_u32 s{sSTEP}, s{sSTEP}, 1
    s_cmp_lt_u32 s{sSTEP}, 63
    s_cbranch_scc1 u_loop
    s_endpgm
    """)
    flush_deferred(a)

    vH = 14
    sHOFF, sHBUF, sOUT, sFM = 37, 38, 39, 56

    def publish(role, sval, wv=3):
        lab = a.newlabel("pub")
        a(f"""
        s_cmp_lg_u32 s{sW}, {wv}
        s_cbranch_scc1 {lab}
        v_mov_b32 v3, {sval}
        s_mov_b64 exec, 1
        buffer_store_dword v3, off, {WS}, s{sFT} sc1
        s_mov_b64 exec, -1
        {lab}:
        """)

    from gen_boot import dbg_wait_wg, DBG_INIT, DBG_LN, N_INITW

    def ln_ready():
        top, done = a.newlabel("lr"), a.newlabel("lrd")
        a(f"""
        s_add_u32 s45, s{sSTEP}, 1
        s_and_b32 s46, s45, 7
        s_cmp_lg_u32 s46, 0
        s_cbranch_scc1 {done}
        s_cmp_ge_u32 s45, 64
        s_cbranch_scc1 {done}
        s_lshr_b32 s45, s45, 1
        {top}:
        buffer_load_dword v3, off, {DBG}, s45 offset:{DBG_LN} sc1
        s_waitcnt vmcnt(0)
        v_readfirstlane_b32 s44, v3
        s_sub_u32 s{sBUD}, s{sBUD}, 1
        s_cmp_lt_i32 s{sBUD}, 0
        s_cbranch_scc1 {done}
        s_cmp_ge_u32 s44, 1
        s_cbranch_scc1 {done}
        s_sleep 4
        s_branch {top}
        {done}:
        """)

    def loop_top():
        a(f"""
        v_add_u32 v{vH}, s{sHBUF}, v{vL16}
        s_sub_u32 s{sHBUF}, 40960, s{sHBUF}
        s_add_u32 s{sHOFF}, s{sHOFF}, 40960
        """)
        ln_ready()
        dmal_init(a, sHOFF, sHBUF)

    a.label("role_t")
    a(f"""
    s_sub_u32 s{sID}, s{sID}, 112
    s_mov_b32 s{sHOFF}, 0x{WS_H1F:x}
    s_mov_b32 s{sHBUF}, 0
    """)
    load_wqk(a, depth=TDEPTH)
    dbg_wait_wg(a, [(DBG_INIT, 1), (DBG_LN, 1)], 3, sleep=2)
    dmal_init(a, sHOFF, sHBUF)
    for k in range(10):
        dmal_one(a)
    a(f"""
    s_lshl_b32 s{sOUT}, s{sID}, 13
    s_lshl_b32 s40, s{sW}, 10
    s_add_u32 s{sOUT}, s{sOUT}, s40
    s_add_u32 s{sOUT}, s{sOUT}, 0x{WS_KX:x}
    s_lshl_b32 s{sFT}, s{sID}, 7
    s_add_u32 s{sFT}, s{sFT}, 0x{flag(FL_T):x}
    s_waitcnt vmcnt(0)
    s_barrier
    """)
    a.label("t_loop")
    stamp(a, 0)
    loop_top()
    DMK = [0, 1, 3, 4, 6, 7, 9, 10, 12, 13]

    def hook_t(ks):
        if ks in DMK:
            dmal_one(a)
        if ks == 5:
            a("s_waitcnt vmcnt(4)")
            a("s_barrier")
            publish("t", f"s{sSTEP}")
    dense_proj(a, vH, True, hook_t)
    stamp(a, 1)
    a.nop(4)
    PK = 128
    a(f"s_add_u32 s40, s{sOUT}, 0x{WS_QX-WS_KX:x}")
    for mat in (0, 1):
        for mt in range(2):
            tm = PK + (mat*2+mt) * 4
            for tt in range(2):
                b = TACC + ((mat*2+tt)*2 + mt) * 4
                a(f"v_cvt_pk_bf16_f32 v{tm+2*tt}, v{b}, v{b+1}")
                a(f"v_cvt_pk_bf16_f32 v{tm+2*tt+1}, v{b+2}, v{b+3}")
    a("s_waitcnt vmcnt(0)")
    for mat in (1, 0):
        for mt in range(2):
            tm = PK + (mat*2+mt) * 4
            so = "s40" if mat == 0 else f"s{sOUT}"
            a(f"buffer_store_dwordx4 {vr(tm,4)}, v{vL16+mt}, {WS}, {so} offen sc1")
    a(f"""
    s_add_u32 s{sOUT}, s{sOUT}, {32*8192}
    s_cmp_ge_u32 s{sSTEP}, {EARLYP}
    s_cbranch_scc1 t_ne
    s_add_u32 s46, s{sSTEP}, 1
    s_waitcnt vmcnt(0)
    s_barrier
    """)
    publish("t", "s46")
    a("t_ne:")
    a("s_barrier")
    stamp(a, 2)
    stamp_flush(a, 3, 1)
    a(f"""
    s_add_u32 s{sSTEP}, s{sSTEP}, 1
    s_cmp_lt_u32 s{sSTEP}, 64
    s_cbranch_scc1 t_loop
    s_waitcnt vmcnt(0)
    s_barrier
    """)
    publish("t", f"s{sSTEP}")
    a(f"""
    {"s_endpgm" if NOTOK else ""}
    s_mov_b32 s{sSTEP}, 0
    s_add_u32 s97, s97, {300*72*32}
    s_branch {"help_c" if HELP else "help_f"}
    help_f:
    s_cmp_ge_u32 s{sID}, 27
    s_cbranch_scc1 t_a
    s_add_u32 s{sID}, s{sID}, 212
    s_mov_b32 s100, {F1S+1}
    s_branch role_f
    t_a:
    s_add_u32 s{sID}, s{sID}, {176-27}
    s_mov_b32 s100, {SENT0+1}
    s_branch role_a
    """)

    VF, AC2 = 16, 128
    LDS_V = LDS_T
    a.label("role_vo")
    a(f"""
    s_sub_u32 s{sID}, s{sID}, 144
    s_load_dwordx4 s[64:67], s[0:1], {KA_WV}
    s_mov_b32 s{sHOFF}, 0x{WS_H1F:x}
    s_mov_b32 s{sHBUF}, 0
    s_waitcnt lgkmcnt(0)
    """)
    srd(a, 16, 64, D * H * E * 2)
    srd(a, 20, 66, D * H * E * 2)
    load_wv_wo(a)
    dbg_wait_wg(a, [(DBG_INIT, 1), (DBG_LN, 1)], 3, sleep=2)
    dmal_init(a, sHOFF, sHBUF)
    for k in range(10):
        dmal_one(a)
    a(f"""
    s_mul_i32 s{sOUT}, s{sID}, 40960
    s_mul_i32 s40, s{sW}, 10240
    s_add_u32 s{sOUT}, s{sOUT}, s40
    s_add_u32 s{sOUT}, s{sOUT}, 0x{WS_UX:x}
    s_lshl_b32 s{sFT}, s{sID}, 7
    s_add_u32 s{sFT}, s{sFT}, 0x{flag(FL_VO):x}
    s_lshl_b32 s40, s{sW}, 10
    s_add_u32 s40, s40, 0x{LDS_V:x}
    v_add_u32 v12, s40, v{vL16}
    v_add_u32 v13, 0x{LDS_V:x}, v{vL16}
    s_waitcnt vmcnt(0)
    s_barrier
    """)
    a.label("vo_loop")
    stamp(a, 0)
    loop_top()

    def hook_v(ks):
        if ks % 2 == 0:
            dmal_one(a)
    dense_proj(a, vH, True, hook_v, tiles=(0, 1))
    a.nop(6)
    for mt in range(2):
        for tt in range(2):
            b = TACC + (tt*2 + mt) * 4
            a(f"v_cvt_pk_bf16_f32 v{168+4*mt+2*tt}, v{b}, v{b+1}")
            a(f"v_cvt_pk_bf16_f32 v{168+4*mt+2*tt+1}, v{b+2}, v{b+3}")
        a(f"ds_write_b128 v12, {vr(168+4*mt,4)} offset:{mt*4096}")
    a(f"""
    s_waitcnt vmcnt(10) lgkmcnt(0)
    s_barrier
    """)
    stamp(a, 1)
    for k in range(4):
        for mt in range(2):
            a(f"ds_read_b128 {vr(VF+(mt*4+k)*4,4)}, v13 offset:{mt*4096+k*1024}")
    publish("vo", f"s{sSTEP}")
    for hb in range(2):
        for k in range(4):
            if hb == 0:
                a(f"s_waitcnt lgkmcnt({6-2*k})")
            for j5 in range(5):
                for mt in range(2):
                    acc = vr(AC2 + (j5*2+mt)*4, 4) if hb == 0 else vr(TACC + (j5*2+mt)*4, 4)
                    a(f"v_mfma_f32_16x16x32_bf16 {acc}, {vr(VF+(mt*4+k)*4,4)}, {widx(160+((hb*5+j5)*4+k)*4)}, {'0' if k == 0 else acc}")
                if hb == 1 and k < 3 and j5 < 2 and (k*2+j5) < 5:
                    q = k*2 + j5
                    tm = 168 + (q % 2) * 4
                    for mt in range(2):
                        b = AC2 + (q*2+mt)*4
                        a(f"v_cvt_pk_bf16_f32 v{tm+2*mt}, v{b}, v{b+1}")
                        a(f"v_cvt_pk_bf16_f32 v{tm+2*mt+1}, v{b+2}, v{b+3}")
                    r, o = l16(q * 1024)
                    a(f"buffer_store_dwordx4 {vr(tm,4)}, {r}, {WS}, s{sOUT} offen offset:{o} sc1")
    for q in range(5):
        tm = 176 + (q % 2) * 4
        for mt in range(2):
            b = TACC + (q*2+mt)*4
            a(f"v_cvt_pk_bf16_f32 v{tm+2*mt}, v{b}, v{b+1}")
            a(f"v_cvt_pk_bf16_f32 v{tm+2*mt+1}, v{b+2}, v{b+3}")
        r, o = l16((5+q) * 1024)
        a(f"buffer_store_dwordx4 {vr(tm,4)}, {r}, {WS}, s{sOUT} offen offset:{o} sc1")
    a(f"""
    s_add_u32 s{sOUT}, s{sOUT}, {UX_STEP}
    s_cmp_ge_u32 s{sSTEP}, {EARLYP}
    s_cbranch_scc1 vo_ne
    s_add_u32 s46, s{sSTEP}, 1
    s_waitcnt vmcnt(0)
    s_barrier
    """)
    publish("vo", "s46")
    a(f"""
    vo_ne:
    s_waitcnt vmcnt(10)
    s_barrier
    """)
    stamp(a, 2)
    stamp_flush(a, 3, 1)
    a(f"""
    s_add_u32 s{sSTEP}, s{sSTEP}, 1
    s_cmp_lt_u32 s{sSTEP}, 64
    s_cbranch_scc1 vo_loop
    s_waitcnt vmcnt(0)
    s_barrier
    """)
    publish("vo", f"s{sSTEP}")
    a(f"""
    {"s_endpgm" if NOTOK else ""}
    s_mov_b32 s{sSTEP}, 0
    s_add_u32 s97, s97, {300*72*32}
    s_branch {"help_f" if HELP else "help_c"}
    help_c:
    s_cmp_ge_u32 s{sID}, {NC}
    s_cbranch_scc1 vo_a
    s_add_u32 s{sID}, s{sID}, {184+NC}
    s_branch role_c
    vo_a:
    s_cmp_ge_u32 s{sID}, {NC+3}
    s_cbranch_scc1 r_end
    s_add_u32 s{sID}, s{sID}, {176+5-NC}
    s_mov_b32 s100, {SENT0+1}
    s_branch role_a
    """)

    KF2, QF2, KMF2, SA2, Y0 = 16, 48, 80, 96, 120
    sKXR, sKM = 33, 57
    a.label("role_al")
    a(f"""
    s_sub_u32 s40, s{sID}, 176
    s_sub_u32 s41, s{sID}, 196
    s_cmp_lt_u32 s{sID}, 184
    s_cselect_b32 s40, s40, s41             ; 0..15
    s_lshl_b32 s40, s40, 1
    s_and_b32 s41, s{sW}, 1
    s_add_u32 s{sID}, s40, s41
    s_cmp_ge_u32 s{sW}, 2
    s_cbranch_scc1 role_l
    s_branch role_a2
    """)
    a.label("role_a")
    a(f"""
    s_sub_u32 s{sID}, s{sID}, 176
    s_lshl_b32 s{sID}, s{sID}, 2
    s_add_u32 s{sID}, s{sID}, s{sW}         ; head
    role_a2:
    v_bfe_u32 v10, v{vLANE}, 3, 1           ; b
    v_and_b32 v11, 7, v{vLANE}              ; i
    v_lshrrev_b32 v15, 4, v{vLANE}          ; g
    v_lshlrev_b32 v8, 7, v15
    v_lshl_add_u32 v8, v11, 4, v8
    v_mul_u32_u24 v10, {PB_RG}, v10
    v_lshl_add_u32 v{vST}, v11, 4, v10      ; + i*16
    v_and_b32 v11, 1, v15
    v_lshl_add_u32 v{vST}, v11, 3, v{vST}   ; + (g&1)*8
    v_lshrrev_b32 v11, 1, v15
    v_lshl_add_u32 v{vSM}, v11, 7, v{vST}
    v_lshl_add_u32 v{vST}, v11, 8, v{vST}
    v_and_b32 v10, 15, v{vLANE}
    v_lshlrev_b32 v11, 2, v15               ; 4g
    """)
    for r in range(4):
        a(f"v_add_u32 v15, {r}, v11")
        a(f"v_cmp_le_u32 s[{64+r*2}:{65+r*2}], v15, v10")
    a(f"""
    s_mov_b32 s54, 0
    s_mov_b32 s55, -1
    s_lshl_b32 s{sPB}, s{sID}, 9
    s_add_u32 s{sPB}, s{sPB}, 0x{WS_PT:x}
    ; mem part offset relative to token part: 16384 + (2(h/4) + h%2)*256 + ((h>>1)&1)*4 - h*512
    s_lshr_b32 s40, s{sID}, 2
    s_lshl_b32 s40, s40, 1
    s_and_b32 s41, s{sID}, 1
    s_add_u32 s40, s40, s41
    s_lshl_b32 s40, s40, 8
    s_bfe_u32 s41, s{sID}, 0x10001
    s_lshl_b32 s41, s41, 2
    s_add_u32 s40, s40, s41
    s_add_u32 s40, s40, 16384
    s_lshl_b32 s41, s{sID}, 9
    s_sub_u32 s61, s40, s41
    s_lshl_b32 s58, s{sID}, 7
    s_add_u32 s59, s58, 0x{flag(FL_A):x}
    s_add_u32 s58, s58, 0x{flag(FL_KM):x}
    s_mov_b32 s60, 0
    s_lshl_b32 s{sKXR}, s{sID}, 13
    s_add_u32 s{sKXR}, s{sKXR}, 0x{WS_KX:x}
    s_lshl_b32 s{sKM}, s{sID}, 11
    s_add_u32 s{sKM}, s{sKM}, 0x{WS_KM:x}
    s_lshl_b32 s{sFT}, s{sID}, 7
    s_add_u32 s{sFT}, s{sFT}, 0x{flag(FL_T):x}
    s_mov_b32 s{sSEEN}, 0
    s_mov_b32 s{sSTEP}, s100
    s_cmp_eq_u32 s100, 0
    s_cbranch_scc1 a_prim
    s_add_u32 s{sPB}, s{sPB}, {(SENT0+1)*PT_STEP}
    s_add_u32 s{sKXR}, s{sKXR}, {(SENT0+1)*32*8192}
    s_add_u32 s{sKM}, s{sKM}, {(SENT0+1)*32*2048}
    s_mov_b32 s59, 0x{flag(FL_DUMMY):x}
    """)
    wait_flag(a, 58, 100, 60, Y0, sleep=32)
    a.label("a_prim")

    KQ = [(16, 48), (144, 176)]

    def a_kq(need, buf):
        wait_flag(a, sFT, need, sSEEN, Y0+1, sleep=8)
        a(f"s_add_u32 s40, s{sKXR}, 0x{WS_QX-WS_KX:x}")
        for f in range(8):
            r, o = l16(f * 1024)
            a(f"buffer_load_dwordx4 {vr(KQ[buf][0]+4*f,4)}, {r}, {WS}, s{sKXR} offen offset:{o} sc1")
        for f in range(8):
            r, o = l16(f * 1024)
            a(f"buffer_load_dwordx4 {vr(KQ[buf][1]+4*f,4)}, {r}, {WS}, s40 offen offset:{o} sc1")
        a(f"s_add_u32 s{sKXR}, s{sKXR}, {32*8192}")

    def a_km():
        for k in range(4):
            a(f"buffer_load_dwordx4 {vr(KMF2+4*k,4)}, v8, {WS}, s{sKM} offen offset:{k*512} sc1")
    a(f"s_add_u32 s{sNEED}, s{sSTEP}, 1")
    a_kq(sNEED, 0)
    a("s_mov_b32 s47, 0")
    a.label("a_loop")
    for buf in range(2):
        KF2, QF2 = KQ[buf]
        stamp(a, 0)
        a(f"""
        s_add_u32 s{sNEED}, s{sSTEP}, 1
        s_cmp_eq_u32 s47, 1
        s_cbranch_scc1 a_chk{buf}
        s_cmp_ge_u32 s{sSTEP}, {SENT0}
        s_cbranch_scc1 a_kml{buf}
        """)
        wait_flag(a, 58, sNEED, 60, Y0, sleep=4)
        a.label(f"a_kml{buf}")
        a_km()
        a.label(f"a_chk{buf}")
        stamp(a, 1)
        a("s_waitcnt vmcnt(0)")
        vmax_chain(a, Y0, range(KMF2, KMF2+16))
        poll_fail(a, f"a_kml{buf}", sleep=3)
        stamp(a, 2)
        a(f"""
        s_cmp_ge_u32 s{sSTEP}, {SENT0}
        s_cselect_b32 s46, 2, 1
        s_cselect_b32 s45, {32*8192}, 0
        s_add_u32 s{sKXR}, s{sKXR}, s45
        s_add_u32 s45, s{sNEED}, s46
        s_min_u32 s45, s45, 64
        """)
        for qt in range(2):
            for k in range(4):
                for mt in range(qt + 1):
                    acc = vr(SA2+12*qt+4*mt, 4)
                    a(f"v_mfma_f32_16x16x32_bf16 {acc}, {vr(KF2+(mt*4+k)*4,4)}, {vr(QF2+(qt*4+k)*4,4)}, {'0' if k==0 else acc}")
                acc = vr(SA2+12*qt+8, 4)
                a(f"v_mfma_f32_16x16x32_bf16 {acc}, {vr(KMF2+4*k,4)}, {vr(QF2+(qt*4+k)*4,4)}, {'0' if k==0 else acc}")
        for qt in range(2):
            SB = SA2 + 12*qt
            if qt == 0:
                a.nop(2)
            a(f"""
            v_cndmask_b32 v{SB+8}, v{SB+8}, v{SB+10}, s[54:55]
            v_cndmask_b32 v{SB+9}, v{SB+9}, v{SB+11}, s[54:55]
            """)
            xs = [SB + k for k in range(4*(qt+1))] + [SB+8, SB+9]
            round_scale(a, xs, Y0+8, 50)
            a(f"v_mov_b32 v{Y0}, 0xce6e6b28")
            for k in range(4):
                a(f"v_cndmask_b32 v{SB+4*qt+k}, v{Y0}, v{SB+4*qt+k}, s[{64+2*k}:{65+2*k}]")
            softmax(a, xs, Y0+6, Y0+7, 51, False)
            O = 208 + 8*qt
            for half in range(2):
                for m in range(2):
                    if m <= qt:
                        a(f"v_cvt_pk_bf16_f32 v{O+2*half+m}, v{SB+4*m+2*half}, v{SB+4*m+2*half+1}")
                    else:
                        a(f"v_mov_b32 v{O+2*half+m}, 0")
            a(f"v_cvt_pk_bf16_f32 v{O+4}, v{SB+8}, v{SB+9}")
            for k in range(5):
                a(f"v_min_u32 v{O+k}, -2, v{O+k}")
            a(f"s_add_u32 s40, s{sPB}, {qt*2*PB_RG}")
            for half in range(2):
                a(f"buffer_store_dwordx2 {vr(O+2*half,2)}, v{vST}, {WS}, s40 offen offset:{half*128} sc1")
            a(f"s_add_u32 s40, s40, s61")
            a(f"buffer_store_dword v{O+4}, v{vSM}, {WS}, s40 offen sc1")
            if qt == 0:
                a(f"buffer_load_dword v{Y0+2}, off, {WS}, s58 sc1")
                a_kq(45, 1 - buf)
        a(f"""
        s_lshl_b32 s40, s46, 16
        s_add_u32 s{sKM}, s{sKM}, s40
        s_mul_i32 s40, s46, {PT_STEP}
        s_add_u32 s{sPB}, s{sPB}, s40
        v_mov_b32 v{Y0}, s{sNEED}
        s_waitcnt vmcnt(19)
        v_readfirstlane_b32 s60, v{Y0+2}
        s_add_u32 s{sSTEP}, s{sSTEP}, s46
        s_mov_b32 s47, 0
        s_nop 1
        s_cmp_le_u32 s60, s{sSTEP}
        s_cbranch_scc1 a_nk{buf}
        s_mov_b32 s47, 1
        """)
        a_km()
        a(f"""
        s_waitcnt vmcnt(4)
        s_branch a_pub{buf}
        a_nk{buf}:
        s_waitcnt vmcnt(0)
        a_pub{buf}:
        s_mov_b64 exec, 1
        buffer_store_dword v{Y0}, off, {WS}, s59 sc1
        s_mov_b64 exec, -1
        """)
        stamp(a, 3)
        if STAMP:
            a(f"s_sub_u32 s{sSTEP}, s{sSTEP}, s46")
            stamp_flush(a, 4, 1)
            a(f"s_add_u32 s{sSTEP}, s{sSTEP}, s46")
        a(f"""
        s_cmp_ge_u32 s{sSTEP}, 64
        s_cbranch_scc1 r_end
        """)
    a("s_branch a_loop")

    a.label("role_l")
    if "l" in KILL:
        a("s_endpgm")
    ln_setup(a, 3, 4, False)
    a(f"""
    s_mov_b32 s40, s{sID}                   ; row
    {"s_sub_u32 s3, s3, 2" if STAMP else ""}
    {"s_add_u32 s97, s97, " + str(100*72*32) if STAMP else ""}
    s_mul_i32 s46, s40, 1280
    s_add_u32 s47, s46, 0x{WS_H2F:x}
    s_lshl_b32 s48, s40, 7
    s_add_u32 s48, s48, 0x{flag(FL_L):x}
    s_mov_b32 s49, 0x{flag(FL_CC):x}
    v_lshlrev_b32 v9, 1, v{L_DST}
    v_cndmask_b32 v9, v{L_DST}, v9, s[76:77]
    s_mov_b32 s40, {WS_MOD + 2*2560}
    s_mov_b32 s52, 20
    """)
    GA = 48
    for h in range(2):
        a(f"buffer_load_dwordx4 {vr(GA+8*h,4)}, v9, {WS}, s40 offen offset:{h*1280} sc1")
        a(f"buffer_load_dwordx4 {vr(GA+8*h+4,4)}, v9, {WS}, s40 offen offset:{h*1280+16} sc1")
    a("s_mov_b32 s54, 0")
    a.label("l_loop")
    stamp(a, 0)
    a(f"""
    s_add_u32 s45, s{sSTEP}, 1
    s_add_u32 s41, s46, 0x{WS_ATT:x}
    s_add_u32 s42, s46, 0x{WS_X1:x}
    s_mov_b32 s53, 0
    s_cmp_eq_u32 s54, 1
    s_cbranch_scc1 l_chk
    """)
    ln_load(a, XS, 46, "", False, raw=24)
    a(f"""
    s_cmp_ge_u32 s{sSTEP}, {SENT0}
    s_cbranch_scc1 l_ld
    """)
    wait_flag(a, 49, 52, 53, 16, sleep=3)
    a.label("l_ld")
    ln_load(a, WS, 41, "sc1", False)
    a(f"buffer_load_dword v17, off, {WS}, s49 offset:128 sc1")
    a("s_waitcnt vmcnt(0)")
    a.label("l_chk")
    stamp(a, 1)
    vmax_chain(a, 16, range(L_RAW, L_RAW+8))
    poll_fail(a, "l_ld", sleep=3)
    a("v_readfirstlane_b32 s55, v17")
    ln_unpack(a, False)
    for j in range(8):
        x0, x1 = L_X + 2*j, L_X + 2*j + 1
        a(f"""
        v_mul_f32 v{x0}, v{x0}, v{GA+2*j}
        v_mul_f32 v{x1}, v{x1}, v{GA+2*j+1}
        v_cvt_pk_bf16_f32 v{L_T}, v{x0}, v{x1}
        v_lshlrev_b32 v{x0}, 16, v{L_T}
        v_and_b32 v{x1}, 0xffff0000, v{L_T}
        v_lshlrev_b32 v{L_T}, 16, v{24+j}
        v_and_b32 v{L_T2}, 0xffff0000, v{24+j}
        v_add_f32 v{x0}, v{x0}, v{L_T}
        v_add_f32 v{x1}, v{x1}, v{L_T2}
        v_cvt_pk_bf16_f32 v{32+j}, v{x0}, v{x1}
        v_lshlrev_b32 v{x0}, 16, v{32+j}
        v_and_b32 v{x1}, 0xffff0000, v{32+j}
        """)
    for j in range(8):
        a(f"v_min_u32 v{32+j}, -2, v{32+j}")
    a(f"buffer_store_dwordx4 v[32:35], v{L_DST}, {WS}, s42 offen sc1")
    a(f"buffer_store_dwordx4 v[36:39], v{L_DST}, {WS}, s42 offen offset:640 sc1")
    a(f"""
    s_mov_b32 s54, 0
    s_cmp_ge_u32 s{sSTEP}, {SENT0-1}
    s_cselect_b32 s55, 20, s55
    s_cmp_lt_u32 s55, 20
    s_cbranch_scc1 l_nopf
    s_cmp_ge_u32 s{sSTEP}, 63
    s_cbranch_scc1 l_nopf
    s_mov_b32 s54, 1
    s_add_u32 s40, s46, {32*1280}
    s_add_u32 s41, s41, {32*1280}
    """)
    ln_load(a, XS, 40, "", False, raw=24)
    ln_load(a, WS, 41, "sc1", False)
    a(f"buffer_load_dword v17, off, {WS}, s49 offset:256 sc1")
    a.label("l_nopf")
    ln_compute_store(a, 47)
    a("s_add_u32 s49, s49, 128")
    stamp(a, 2)
    a(f"""
    v_mov_b32 v16, s45
    s_add_u32 s46, s46, {32*1280}
    s_add_u32 s47, s47, {32*1280}
    s_waitcnt vmcnt(0)
    s_mov_b64 exec, 1
    buffer_store_dword v16, off, {WS}, s48 sc1
    s_mov_b64 exec, -1
    """)
    stamp(a, 3)
    stamp_flush(a, 4, 1)
    a(f"""
    s_add_u32 s{sSTEP}, s{sSTEP}, 1
    s_cmp_lt_u32 s{sSTEP}, 64
    s_cbranch_scc1 l_loop
    s_endpgm
    """)

    vPT, vBM, vXS = 240, 239, 242
    sUXR, sPFC = 33, 59
    sA, sV = 61, 62
    PFB = [16, 96]
    BMB = [128, 144]
    CAC = 176
    from gen_boot import arrive
    a.label("role_c")
    if "c" in KILL:
        a("s_endpgm")
    a(f"s_sub_u32 s{sID}, s{sID}, 184")
    setup_p_load_addrs(a, vPA, vPB, vBM)
    a(f"""
    s_lshl_b32 s40, s{sW}, 12
    v_add_u32 v{vPT}, s40, v{vL16}
    v_add_u32 v{vRd}, s40, v{vL16}
    s_lshl_b32 s40, s{sW}, 10
    v_add_u32 v{vWr}, s40, v{vL16}
    v_add_u32 v241, 16384, v{vWr}
    v_and_b32 v10, 15, v{vLANE}             ; n
    v_lshrrev_b32 v11, 5, v{vLANE}          ; pr
    v_lshl_add_u32 v10, v11, 4, v10
    v_bfe_u32 v11, v{vLANE}, 4, 1
    v_lshlrev_b32 v11, 2, v11
    s_lshl_b32 s40, s{sW}, 3
    v_add_u32 v11, s40, v11
    v_mul_u32_u24 v11, 1280, v11
    v_lshl_add_u32 v{vXS}, v10, 1, v11
    v_and_b32 v10, 1, v{vLANE}
    v_mov_b32 v11, 0x7ffffff0
    v_cmp_ne_u32 vcc, 0, v10
    v_lshlrev_b32 v243, 7, v{vLANE}
    v_mov_b32 v232, 0
    v_cndmask_b32 v{vXS}, v{vXS}, v11, vcc
    v_mov_b32 v231, 20
    s_lshl_b32 s40, s{sW}, 10
    s_add_u32 s{sFT}, s40, 0x{flag(FL_UF):x}
    s_add_u32 s{sA}, s40, 0x{flag(FL_A):x}
    s_add_u32 s{sV}, s40, 0x{flag(FL_VO):x}
    s_mov_b32 s{sFM}, 0x{flag(FL_MEM):x}
    s_mul_i32 s73, s{sW}, {8*40960}
    s_add_u32 s73, s73, 0x{WS_UX:x}
    s_add_u32 s76, s{sID}, {CT0}
    s_cmp_ge_u32 s{sID}, {NC}
    s_cselect_b32 s77, s76, s{sID}
    s_mov_b32 s78, s77
    s_mov_b32 s79, s77
    """)

    TIX = {57: 77, 60: 78, 68: 79}

    def dec(ss, sk):
        t = TIX[ss]
        a(f"""
        s_mul_i32 s{ss}, s{t}, 3277
        s_lshr_b32 s{ss}, s{ss}, 16
        s_mul_i32 s40, s{ss}, 20
        s_sub_u32 s{sk}, s{t}, s40
        """)

    def adv(ss, sk):
        t = TIX[ss]
        a(f"""
        s_add_u32 s40, s{t}, {NC}
        s_cmp_lt_u32 s40, {CT0}
        s_cselect_b32 s40, s40, s76
        s_add_u32 s41, s{t}, {2*NC}
        s_cmp_lt_u32 s{t}, {CT0}
        s_cselect_b32 s{t}, s40, s41
        """)
        dec(ss, sk)
    dec(57, 58)
    dec(60, 63)
    dec(68, 72)

    def c_needs():
        a(f"s_add_u32 s44, s60, 1")

    def c_offs():
        a(f"""
        s_mul_i32 s{sPB}, s60, {PT_STEP}
        s_add_u32 s{sPB}, s{sPB}, 0x{WS_PT:x}
        s_add_u32 s64, s{sPB}, {PB_RG}
        s_add_u32 s65, s{sPB}, {2*PB_RG}
        s_add_u32 s66, s{sPB}, {3*PB_RG}
        s_mul_i32 s67, s60, {UM_STEP}
        s_lshl_b32 s40, s63, 9
        s_add_u32 s67, s67, s40
        s_add_u32 s67, s67, 0x{WS_UMC:x}
        s_add_u32 s69, s67, 20480
        s_add_u32 s70, s67, 40960
        s_add_u32 s71, s67, 61440
        """)

    def c_flag_loads():
        a(f"""
        s_mov_b64 exec, 255
        buffer_load_dword v233, v243, {WS}, s{sA} offen sc1
        buffer_load_dwordx4 v[224:227], v243, {WS}, s{sFT} offen sc1
        s_mov_b64 exec, -1
        """)

    def c_test(fail):
        a(f"""
        v_min3_u32 v234, v233, v224, v225
        v_min3_u32 v234, v234, v226, v227
        s_mov_b64 exec, 255
        v_cmp_gt_u32 vcc, s44, v234
        s_mov_b64 exec, -1
        s_cbranch_vccnz {fail}
        """)

    def c_block():
        c_needs()
        top, retry, done = a.newlabel("cb"), a.newlabel("cb"), a.newlabel("cb")
        a.label(top)
        c_flag_loads()
        a("s_waitcnt vmcnt(0)")
        sk = a.newlabel("cb")
        a(f"""
        s_cmp_lt_u32 s60, {SENT0}
        s_cbranch_scc1 {sk}
        v_mov_b32 v233, 64
        {sk}:
        """)
        c_test(retry)
        a(f"s_branch {done}")
        a.label(retry)
        a(f"""
        s_sub_u32 s{sBUD}, s{sBUD}, 1
        s_cmp_lt_i32 s{sBUD}, 0
        s_cbranch_scc1 {done}
        s_sleep 3
        s_branch {top}
        """)
        a.label(done)

    def c_load_list(buf):
        L = []
        for rg in range(4):
            so = [sPB, 64, 65, 66][rg]
            PF = PFB[buf] + 20*rg
            for q in range(4):
                L.append(f"buffer_load_dwordx4 {vr(PF+q*4,4)}, v{vPT}, {WS}, s{so} offen offset:{q*1024} sc1")
            L.append(f"buffer_load_dwordx4 {vr(PF+16,4)}, v241, {WS}, s{so} offen sc1")
        for j in range(4):
            for pr in range(2):
                L.append(f"buffer_load_dwordx2 {ar(BMB[buf]+pr*8+2*j,2)}, v{vBM}, {WS}, s{[67,69,70,71][j]} offen offset:{pr*256} sc1")
        return L

    def c_ux(buf, tail_wait=False):
        ok, skip, end = a.newlabel("cux"), a.newlabel("cux"), a.newlabel("cux")
        a(f"""
        s_cmp_ge_u32 s68, 64
        s_cbranch_scc1 {skip}
        s_add_u32 s45, s68, 1
        s_mov_b64 exec, 255
        v_cmp_gt_u32 vcc, s45, v232
        s_mov_b64 exec, -1
        s_cbranch_vccz {ok}
        """)
        wait_all(a, 8, 243, sV, 45, 232)
        a.label(ok)
        a(f"""
        s_mul_i32 s{sUXR}, s68, {UX_STEP}
        s_lshl_b32 s40, s72, 11
        s_add_u32 s{sUXR}, s{sUXR}, s40
        s_add_u32 s{sUXR}, s{sUXR}, s73
        """)
        for hh in range(8):
            for pr in range(2):
                a(f"buffer_load_dwordx4 {ar(buf*64+pr*32+hh*4,4)}, v{vL16}, {WS}, s{sUXR} offen offset:{pr*1024} sc1")
            a(f"s_add_u32 s{sUXR}, s{sUXR}, 40960")
        if tail_wait:
            a("s_waitcnt vmcnt(16)")
            a(f"s_branch {end}")
        a.label(skip)
        if tail_wait:
            a("s_waitcnt vmcnt(0)")
        a.label(end)
        adv(68, 72)

    def c_burst(buf):
        c_block()
        c_offs()
        top = a.newlabel("cbl")
        a.label(top)
        for x in c_load_list(buf):
            a(x)
        c_flag_loads()
        a("s_waitcnt vmcnt(0)")
        vmax_chain(a, 3, range(PFB[buf], PFB[buf]+80))
        poll_fail(a, top, sleep=4)
        adv(60, 63)

    def c_compute(buf, LL, tag):
        b = Asm()
        for r in range(32):
            b(f"v_mov_b32 v{CAC+r}, 0")
        b.nop(1)
        for q in range(5):
            for pr in range(2):
                for rg in range(4):
                    f = PFB[buf] + 20*rg + q*4
                    B = ar(buf*64+pr*32+q*8, 8) if q < 4 else ar(BMB[buf]+pr*8, 8)
                    b(f"v_smfmac_f32_16x16x64_bf16 {vr(CAC+(pr*4+rg)*4,4)}, {vr(f,4)}, {B}, v{vIDX}")
        b.nop(6)
        for rg in range(4):
            A, B = CAC + rg*4, CAC + (4+rg)*4
            for r in range(4):
                b(f"v_permlane32_swap_b32 v{A+r}, v{B+r}")
            for r in range(4):
                b(f"v_add_f32 v{A+r}, v{A+r}, v{B+r}")
            b(f"ds_write_b128 v{vWr}, {vr(A,4)} offset:{rg*4096}")
        b(f"""
        s_waitcnt lgkmcnt(0)
        s_barrier
        """)
        FT = 208
        for q in range(4):
            b(f"ds_read_b128 {vr(FT+4*q,4)}, v{vRd} offset:{q*1024}")
        b(f"""
        s_mul_i32 s74, s57, {32*1280}
        s_lshl_b32 s75, s58, 6
        s_add_u32 s74, s74, s75
        s_add_u32 s74, s74, 0x{WS_ATT:x}
        s_lshl_b32 s75, s57, 7
        s_add_u32 s75, s75, 0x{flag(FL_CC):x}
        s_waitcnt lgkmcnt(0)
        """)
        for r in range(4):
            b(f"v_add_f32 v{FT+r}, v{FT+r}, v{FT+4+r}")
            b(f"v_add_f32 v{FT+8+r}, v{FT+8+r}, v{FT+12+r}")
        for r in range(4):
            b(f"v_add_f32 v{FT+r}, v{FT+r}, v{FT+8+r}")
        b.nop(1)
        for r in range(4):
            b(f"v_mov_b32_dpp v{FT+8+r}, v{FT+r} quad_perm:[1,0,3,2] row_mask:0xf bank_mask:0xf")
        for r in range(4):
            b(f"v_cvt_pk_bf16_f32 v{FT+r}, v{FT+r}, v{FT+8+r}")
            b(f"v_min_u32 v{FT+r}, -2, v{FT+r}")
            b(f"buffer_store_dword v{FT+r}, v{vXS}, {WS}, s74 offen offset:{r*1280} sc1")
        LL = list(LL)
        acc = 0
        nld = 0
        for ln in b.lines:
            t = ln.strip()
            if t == "s_barrier":
                a(f"""
                s_cmp_lg_u32 s{sW}, 3
                s_cbranch_scc1 c_rs{tag}
                s_waitcnt vmcnt({nld})
                s_mov_b64 exec, 1
                v_cmp_eq_u32 vcc, 19, v230
                v_mov_b32 v230, 0
                s_cbranch_vccz c_rt{tag}
                buffer_store_dword v231, off, {WS}, s56 sc1
                c_rt{tag}:
                s_mov_b64 exec, -1
                c_rs{tag}:
                """)
            a.lines.append(ln)
            if not t or t.startswith(";"):
                continue
            if t.startswith("v_smfmac"):
                acc += 16
            elif t.startswith("ds_") or t.startswith("s_waitcnt") or t.startswith("s_barrier"):
                acc += 24
            elif t.startswith("buffer_store"):
                acc = 0
            else:
                acc += 4
            if acc >= C_GAP and LL and not t.startswith("v_cvt_pk_bf16_f32 v2"):
                x = LL.pop(0)
                a(x)
                nld += x.count("buffer_load")
                acc = 0
        for x in LL:
            a(x)

    a("v_mov_b32 v230, 0")
    c_ux(0)
    c_ux(1)
    c_burst(0)
    a.label("c_loop")
    for buf in range(2):
        stamp(a, 0)
        plain, join, nb = a.newlabel("cpl"), a.newlabel("cjn"), a.newlabel("cnb")
        c_needs()
        a(f"s_mov_b32 s{sPFC}, 0")
        c_test(plain)
        a(f"""
        s_cmp_ge_u32 s60, {SENT0}
        s_cbranch_scc1 {plain}
        s_mov_b32 s{sPFC}, 1
        """)
        c_offs()
        def arrive_issue(tag, resolve):
            a(f"""
            s_barrier
            s_cmp_lg_u32 s{sW}, 3
            s_cbranch_scc1 c_nf{tag}
            s_lshl_b32 s40, s57, 2
            s_add_u32 s40, s40, 0x{flag(FL_CN):x}
            s_mov_b32 s56, s75
            v_mov_b32 v230, 1
            s_mov_b64 exec, 1
            buffer_atomic_add v230, off, {WS}, s40 sc0
            """)
            if resolve:
                a(f"""
                s_waitcnt vmcnt(0)
                v_cmp_eq_u32 vcc, 19, v230
                v_mov_b32 v230, 0
                s_cbranch_vccz c_ne{tag}
                buffer_store_dword v231, off, {WS}, s56 sc1
                c_ne{tag}:
                """)
            a(f"""
            s_mov_b64 exec, -1
            c_nf{tag}:
            """)
        FLG = f"""s_mov_b64 exec, 255
        buffer_load_dword v233, v243, {WS}, s{sA} offen sc1
        buffer_load_dwordx4 v[224:227], v243, {WS}, s{sFT} offen sc1
        s_mov_b64 exec, -1"""
        c_compute(buf, c_load_list(1 - buf) + [FLG], f"x{buf}")
        adv(60, 63)
        stamp(a, 1)
        c_ux(buf, tail_wait=True)
        arrive_issue(f"a{buf}", False)
        a(f"s_branch {join}")
        a.label(plain)
        c_compute(buf, [], f"y{buf}")
        stamp(a, 1)
        a(FLG)
        a("s_waitcnt vmcnt(0)")
        arrive_issue(f"b{buf}", False)

        def resolve(tag, cnt):
            a(f"""
            s_cmp_lg_u32 s{sW}, 3
            s_cbranch_scc1 c_q{tag}
            s_waitcnt vmcnt({cnt})
            s_mov_b64 exec, 1
            v_cmp_eq_u32 vcc, 19, v230
            v_mov_b32 v230, 0
            s_cbranch_vccz c_p{tag}
            buffer_store_dword v231, off, {WS}, s56 sc1
            c_p{tag}:
            s_mov_b64 exec, -1
            c_q{tag}:
            """)
        slow = a.newlabel("csl")
        c_test(slow)
        a(f"""
        s_cmp_ge_u32 s60, {SENT0}
        s_cbranch_scc1 {slow}
        s_mov_b32 s{sPFC}, 1
        """)
        c_offs()
        LL = c_load_list(1 - buf)
        for x in LL:
            a(x)
        resolve(f"f{buf}", len(LL))
        a(FLG)
        adv(60, 63)
        c_ux(buf, tail_wait=True)
        a(f"s_branch {join}")
        a.label(slow)
        resolve(f"s{buf}", 0)
        c_ux(buf)
        a.label(join)
        adv(57, 58)
        stamp(a, 2)
        stamp_flush(a, 3, 1)
        a(f"""
        s_add_u32 s{sSTEP}, s{sSTEP}, 1
        s_cmp_ge_u32 s57, 64
        s_cbranch_scc1 r_end
        s_cmp_eq_u32 s{sPFC}, 1
        s_cbranch_scc1 {nb}
        """)
        c_burst(1 - buf)
        a.label(nb)
    a("s_branch c_loop")
    a.label("pre_boot")
    a(f"""
    v_mov_b32 v134, -1
    s_sub_u32 s40, s{sID}, 102
    s_lshl_b32 s40, s40, 21
    s_add_u32 s40, s40, 0x{WS_CRA + 0x1F0000:x}
    s_lshl_b32 s41, s{sW}, 14
    s_add_u32 s40, s40, s41
    s_mov_b32 s42, -1
    s_mov_b32 s43, -1
    s_mov_b64 exec, 1
    """)
    for k in range(3):
        for half in range(2):
            a(f"""
            s_add_u32 s41, s40, {half*8192 + (k%2)*4096 + k*1152}
            s_memtime s[44:45]
            s_waitcnt lgkmcnt(0)
            buffer_store_dword v134, off, {WS}, s41 sc1
            s_waitcnt vmcnt(0)
            buffer_load_dword v135, off, {WS}, s41 sc1
            s_waitcnt vmcnt(0)
            s_memtime s[46:47]
            s_waitcnt lgkmcnt(0)
            s_sub_u32 s46, s46, s44
            s_min_u32 s{42+half}, s{42+half}, s46
            """)
    a(f"""
    v_mov_b32 v136, s42
    v_mov_b32 v137, s43
    s_lshl_b32 s40, s{sW}, 3
    v_mov_b32 v135, s40
    ds_write_b64 v135, v[136:137]
    s_mov_b64 exec, -1
    s_waitcnt lgkmcnt(0)
    s_barrier
    v_mov_b32 v135, 0
    ds_read_b128 v[124:127], v135
    ds_read_b128 v[128:131], v135 offset:16
    s_waitcnt lgkmcnt(0)
    v_add3_u32 v124, v124, v126, v128
    v_add3_u32 v125, v125, v127, v129
    v_add_u32 v124, v124, v130
    v_add_u32 v125, v125, v131
    v_cmp_lt_u32 vcc, v125, v124
    v_mov_b32 v126, 1
    v_mov_b32 v127, 3
    v_cndmask_b32 v126, v126, v127, vcc
    {"v_mov_b32 v126, " + FORCEPOL if FORCEPOL else ""}
    s_sub_u32 s40, s{sID}, 102
    s_lshl_b32 s40, s40, 2
    s_barrier
    s_cmp_lg_u32 s{sW}, 0
    s_cbranch_scc1 boot_nrm0
    s_mov_b64 exec, 1
    buffer_store_dword v126, off, {DBG}, s40 offset:176 sc1
    s_mov_b64 exec, -1
    s_branch boot_nrm0
    """)
    from gen_boot import gen_boot
    gen_boot(a)
    from gen_f import gen_phase2
    gen_phase2(a)
    a.label("r_end")
    a("s_endpgm")
    a.label("r_code_end")
    return (L, 256, 256, max(131072, 16384*(VDEPTH+1) + 81920), kernel_desc(L, 512, 256))
```
